```python
import torch

def _softmax(x, axis=-1):
    return torch.softmax(x, dim=axis)

def _gelu(x):
    return torch.nn.functional.gelu(x, approximate='tanh')

def _silu(x):
    return torch.nn.functional.silu(x)

def _sigmoid(x):
    return torch.sigmoid(x)

def _layernorm(x, axis=-1, eps=1e-05):
    m = x.mean(dim=axis, keepdim=True)
    v = x.var(dim=axis, keepdim=True, unbiased=False)
    return (x - m) / torch.sqrt(v + eps)

def _scatter_add(tgt, idx, src, axis=0):
    return tgt.clone().index_add_(axis, idx, src)

def _segment_sum(src, seg, n):
    out = torch.zeros((n,) + src.shape[1:], dtype=src.dtype)
    return out.index_add_(0, seg, src)

def _pad(x, pw):
    flat = tuple((v for pair in reversed(pw) for v in pair))
    return torch.nn.functional.pad(x, flat)
kernel_name = 'gated_mix__ssm_conv_s5__mixer_gmlp__prompt'

def setup_inputs():

    _w = lambda a: (lambda t: t.to(torch.bfloat16) if t.is_floating_point() else t)(torch.as_tensor(a))

    def _A_setup():
        B, S, D = (1, 2048, 512)
        P = D
        Lambda_re = -0.5 * (lambda _x: torch.exp(torch.as_tensor(_x)))((lambda *s: torch.randn(*s, dtype=torch.bfloat16) * 0.8)(P))
        Lambda_im = (lambda *s: torch.randn(*s, dtype=torch.bfloat16) * 0.8)(P) * 1.0
        B_re = (lambda *s: torch.randn(*s, dtype=torch.bfloat16) * 0.8)(P, D) * D ** (-0.5)
        B_im = (lambda *s: torch.randn(*s, dtype=torch.bfloat16) * 0.8)(P, D) * D ** (-0.5)
        C_re = (lambda *s: torch.randn(*s, dtype=torch.bfloat16) * 0.8)(D, P) * P ** (-0.5)
        C_im = (lambda *s: torch.randn(*s, dtype=torch.bfloat16) * 0.8)(D, P) * P ** (-0.5)
        log_dt = (lambda *s: torch.randn(*s, dtype=torch.bfloat16) * 0.8)(P) * 0.3 - 2.0
        Dskip = (lambda *s: torch.randn(*s, dtype=torch.bfloat16) * 0.8)(D)
        return {'x': _w((lambda *s: torch.randn(*s, dtype=torch.bfloat16) * 0.05)(B, S, D)), 'Lambda_re': _w(Lambda_re), 'Lambda_im': _w(Lambda_im), 'B_re': _w(B_re), 'B_im': _w(B_im), 'C_re': _w(C_re), 'C_im': _w(C_im), 'log_dt': _w(log_dt), 'Dskip': _w(Dskip)}
    _A_in = _A_setup()

    def _B_setup():
        B, S, D, F = (1, 2048, 512, 1376)
        Fh = F // 2
        return {'x': _w((lambda *s: torch.randn(*s, dtype=torch.bfloat16) * 0.05)(B, S, D)), 'w_in': _w((lambda *s: torch.randn(*s, dtype=torch.bfloat16) * 0.2)(D, 2 * Fh)), 'w_sp': _w(0.01 * (lambda *s: torch.randn(*s, dtype=torch.bfloat16) * 0.2)(S, S)), 'b_sp': _w(1.0 + 0.01 * (lambda *s: torch.randn(*s, dtype=torch.bfloat16) * 0.05)(S)), 'w_out': _w((lambda *s: torch.randn(*s, dtype=torch.bfloat16) * 0.05)(Fh, D))}
    _B_in = _B_setup()
    return {'A_x': _A_in['x'], 'A_Lambda_re': _A_in['Lambda_re'], 'A_Lambda_im': _A_in['Lambda_im'], 'A_B_re': _A_in['B_re'], 'A_B_im': _A_in['B_im'], 'A_C_re': _A_in['C_re'], 'A_C_im': _A_in['C_im'], 'A_log_dt': _A_in['log_dt'], 'A_Dskip': _A_in['Dskip'], 'B_x': _B_in['x'], 'B_w_in': _B_in['w_in'], 'B_w_sp': _B_in['w_sp'], 'B_b_sp': _B_in['b_sp'], 'B_w_out': _B_in['w_out'], 'gate_w': _w((lambda *s: torch.randn(*s, dtype=torch.bfloat16) * 0.05)(512) * 16.0)}

def reference(A_x, A_Lambda_re, A_Lambda_im, A_B_re, A_B_im, A_C_re, A_C_im, A_log_dt, A_Dskip, B_x, B_w_in, B_w_sp, B_b_sp, B_w_out, gate_w):

    def _A_ref(x, Lambda_re, Lambda_im, B_re, B_im, C_re, C_im, log_dt, Dskip):
        Bsz, L, H = x.shape
        Lam = Lambda_re + 1j * Lambda_im
        Bmat = B_re + 1j * B_im
        Cmat = C_re + 1j * C_im
        dt = torch.exp(log_dt)
        Lam_bar = torch.exp(dt * Lam)
        B_bar = ((Lam_bar - 1.0) / Lam)[:, None] * Bmat
        Bu = torch.einsum('bld,pd->blp', x + 0j, B_bar)
        h = torch.zeros_like(Bu[:, 0, :])
        hs = []
        for t in range(L):
            h = Lam_bar[None, :] * h + Bu[:, t, :]
            hs.append(h)
        hseq = torch.stack(hs, 1)
        y = 2.0 * torch.einsum('blp,dp->bld', hseq, Cmat).real + x * Dskip[None, None, :]
        return y

    def _B_ref(x, w_in, w_sp, b_sp, w_out):
        B, S, D = x.shape
        F = w_in.shape[-1]
        Fh = F // 2
        z = _gelu(torch.einsum('bsd,df->bsf', x, w_in))
        z1 = z[..., :Fh].clone()
        z2 = _layernorm(z[..., Fh:], axis=-1)
        g = torch.einsum('ts,bsf->btf', w_sp, z2) + b_sp[None, :, None]
        return torch.einsum('bsf,fd->bsd', z1 * g, w_out)
    x = A_x
    g = _sigmoid((x * gate_w).sum(-1, keepdims=True))
    a = _A_ref(x, A_Lambda_re, A_Lambda_im, A_B_re, A_B_im, A_C_re, A_C_im, A_log_dt, A_Dskip)
    b = _B_ref(x, B_w_in, B_w_sp, B_b_sp, B_w_out)
    return g * a + (1 - g) * b
```

```python
import re

class Prog:
    def __init__(self):
        self.L = []
        self.vm = 0; self.vm_done = -1
        self.lg = 0; self.lg_done = -1
        self.nl = 0
    def __call__(self, s):
        for l in s.split("\n"):
            l = l.strip()
            if l: self.L.append(l)
    def atom(self, s): self.L.append("\n".join(l.strip() for l in s.split("\n") if l.strip()))
    def c(self, s): self.L.append("; " + s)
    def label(self, b="L"):
        self.nl += 1; return f".L{b}_{self.nl}"
    def put(self, lab): self.L.append(lab + ":")
    def vmem(self, s):
        self(s); t = self.vm; self.vm += 1; return t
    def lds(self, s):
        self(s); t = self.lg; self.lg += 1; return t
    def wait(self, vm=None, lg=None):
        parts = []
        if vm is not None and vm > self.vm_done:
            n = self.vm - vm - 1
            if n <= 63: parts.append(f"vmcnt({n})")
            self.vm_done = vm
        if lg is not None and lg > self.lg_done:
            n = self.lg - lg - 1
            if n <= 15: parts.append(f"lgkmcnt({n})")
            else: parts.append("lgkmcnt(15)")
            self.lg_done = lg
        if parts: self("s_waitcnt " + " ".join(parts))
    def wait_vm_all(self):
        self("s_waitcnt vmcnt(0)"); self.vm_done = self.vm - 1
    def wait_lg_all(self):
        self("s_waitcnt lgkmcnt(0)"); self.lg_done = self.lg - 1

def merge(main, fill, start=0, end=None):
    n = len(main) if end is None else end
    span = n - start
    out = []; k = 0
    for i, m in enumerate(main):
        out.append(m)
        if i >= start and i < n:
            tgt = ((i - start + 1) * len(fill)) // span
            while k < tgt:
                out.append(fill[k]); k += 1
    out += fill[k:]
    return out

REG = re.compile(r"(?<![\w.])([vas])(?:(\d+)|\[(\d+):(\d+)\])(?![\w])")
TRANS = ("v_exp_f32", "v_log_f32", "v_rcp_f32", "v_rsq_f32", "v_sqrt_f32", "v_sin_f32", "v_cos_f32", "v_rcp_iflag_f32")
def regs_of(op):
    r = set()
    for m in REG.finditer(op):
        k = m.group(1)
        if m.group(2) is not None: r.add((k, int(m.group(2))))
        else:
            for i in range(int(m.group(3)), int(m.group(4)) + 1): r.add((k, i))
    if re.search(r"\bvcc(_lo|_hi)?\b", op): r |= {("s", "vcc")}
    if re.search(r"\bexec\b", op): r |= {("s", "exec")}
    if re.search(r"\bm0\b", op): r |= {("s", "m0")}
    return r
def split_ops(rest):
    out = []; d = 0; cur = ""
    for ch in rest:
        if ch == "[": d += 1
        if ch == "]": d -= 1
        if ch == "," and d == 0: out.append(cur.strip()); cur = ""
        else: cur += ch
    out.append(cur.strip())
    return out
class I: pass
def parse(line):
    x = I(); x.line = line
    p = line.split(None, 1); mn = p[0]; rest = p[1] if len(p) > 1 else ""
    rest = rest.split(";")[0]
    rest_c = re.sub(r"\b(op_sel|op_sel_hi|neg_lo|neg_hi|quad_perm):\[[^\]]*\]", "", rest)
    ops = split_ops(rest_c)
    x.mn = mn; x.w = set(); x.r = set(); x.cls = "other"; x.states = 1; x.C = set(); x.AB = set(); x.data = set()
    x.dpp = ("_dpp" in mn) or bool(re.search(r"row_|quad_perm|wave_", rest))
    if mn == "s_nop": x.states = int(ops[0], 0) + 1; x.cls = "nop"; return x
    if mn.startswith("v_mfma"):
        x.cls = "mfma"; x.w = regs_of(ops[0]); x.AB = regs_of(ops[1]) | regs_of(ops[2]); x.C = regs_of(ops[3]); x.r = x.AB | x.C
        x.passes = 8 if "32x32x16" in mn else 4
        return x
    if mn.startswith("v_"):
        x.cls = "valu"
        if mn.startswith("v_cmp"):
            x.w = regs_of(ops[0]); x.r = set().union(*[regs_of(o) for o in ops[1:]])
        elif mn.startswith("v_permlane") and "swap" in mn:
            x.w = regs_of(ops[0]) | regs_of(ops[1]); x.r = set(x.w)
        elif mn.startswith(("v_add_co", "v_sub_co", "v_addc_co", "v_subb_co")):
            x.w = regs_of(ops[0]) | regs_of(ops[1]); x.r = set().union(*[regs_of(o) for o in ops[2:]])
        else:
            x.w = regs_of(ops[0]); x.r = set().union(*[regs_of(o) for o in ops[1:]]) if len(ops) > 1 else set()
            if mn.startswith(("v_fmac", "v_dot2c", "v_writelane")) or x.dpp: x.r |= x.w
        x.trans = any(mn.startswith(t) for t in TRANS)
        return x
    if mn.startswith(("buffer_", "global_")):
        x.cls = "vmem"; allr = [regs_of(o) for o in ops]
        x.ldsdma = bool(re.search(r"\blds\b", rest)) or "load_lds" in mn
        if "load" in mn and not x.ldsdma:
            x.w = allr[0]; x.r = set().union(*allr[1:])
        else:
            x.r = set().union(*allr)
            if "store" in mn:
                x.data = allr[0] if mn.startswith("buffer_") else allr[1]
                x.wide = mn.endswith(("x3", "x4"))
        return x
    if mn.startswith("ds_"):
        x.cls = "ds"; allr = [regs_of(o) for o in ops]
        if "read" in mn or "permute" in mn or "swizzle" in mn:
            x.w = allr[0]; x.r = set().union(*allr[1:])
        else: x.r = set().union(*allr)
        return x
    if mn.startswith("s_"):
        x.cls = "salu"
        if mn.startswith(("s_cmp", "s_cbranch", "s_branch", "s_waitcnt", "s_barrier", "s_endpgm", "s_sleep", "s_setprio", "s_bitcmp")):
            x.r = set().union(*[regs_of(o) for o in ops])
        else:
            x.w = regs_of(ops[0]); x.r = set().union(*[regs_of(o) for o in ops[1:]]) if len(ops) > 1 else set()
            if "saveexec" in mn: x.w |= {("s", "exec")}
        return x
    return x

def need(prev, cur):
    n = 0
    if prev.cls == "valu":
        wv = {r for r in prev.w if r[0] in "va"}; ws = {r for r in prev.w if r[0] == "s"}
        if cur.cls == "mfma" and wv & cur.r: n = max(n, 2)
        if cur.cls == "valu":
            if prev.trans and not cur.trans and wv & cur.r: n = max(n, 1)
            if prev.trans and cur.trans and wv & cur.r: n = max(n, 1)
            if (cur.mn.startswith("v_permlane") or cur.dpp) and wv & cur.r: n = max(n, 2)
            if cur.mn.startswith(("v_readlane", "v_readfirstlane")) and wv & cur.r: n = max(n, 1)
            if ws & cur.r: n = max(n, 4 if cur.mn.startswith(("v_readlane", "v_writelane")) else 2)
        if cur.cls == "vmem" and ws & cur.r: n = max(n, 5)
        if cur.cls == "salu" and ws & cur.r: n = max(n, 1)
    if prev.cls == "mfma":
        big = {8: 12, 4: 8}[prev.passes]
        if cur.cls == "mfma":
            if prev.w & cur.AB: n = max(n, big)
            if prev.w & cur.C and not (prev.w == cur.C and prev.passes == cur.passes): n = max(n, big - 2)
            if prev.w & cur.w and not (prev.w == cur.C): n = max(n, big)
        elif cur.cls in ("valu", "vmem", "ds"):
            if prev.w & (cur.r | cur.w): n = max(n, big)
            if cur.cls == "valu" and prev.C & cur.w: n = max(n, {8: 7, 4: 3}[prev.passes])
    if prev.cls == "salu" and ("s", "m0") in prev.w and cur.cls == "vmem" and cur.ldsdma: n = max(n, 1)
    if prev.cls == "vmem" and prev.data and getattr(prev, "wide", False) and prev.data & cur.w:
        n = max(n, 2 if cur.cls == "valu" else 1)
    return n

def hazard_pass(lines, window=14):
    out = []; hist = []
    added = 0
    for l in lines:
        if l.startswith(";") or l.startswith("."):
            out.append(l); continue
        if l.endswith(":"):
            out.append(l); continue
        cur = parse(l)
        req = 0; dist = 0
        for p in reversed(hist):
            nd = need(p, cur)
            if nd > dist: req = max(req, nd - dist)
            dist += p.states
            if dist >= window: break
        if req > 0:
            added += req
            k = req
            while k > 0:
                m = min(k, 16); nop = parse(f"s_nop {m-1}"); hist.append(nop); out.append(f"s_nop {m-1}"); k -= m
        hist.append(cur); out.append(l)
        if len(hist) > 40: hist = hist[-40:]
    return out, added
```

```python
import sys, math
from core import *

NAME = "gated_mix__ssm_conv_s5__mixer_gmlp__prompt_kernel"
EPOCH = 0; ZF = 0x1000; HF = 0x2000; PF = 0x3000; GATE = 0x4000
ST = 0x10000; EG = 0x50000; DBG = 0x80000
Z2N = 0x100000; Z1 = 0x400000; PB = 0x700000; HB = 0xA00000; WS_END = 0xE00000
OOB = 0x80000000
SPIN = 200000
SX, SW1, SWSP, SWS, SCRE, SCIM, SWOUT, SOUT = 4, 8, 12, 16, 20, 24, 28, 32
PLRE, PLIM, PLDT, PDSK, PBSP, PGW, PBRE, PBIM, PWIN = 36, 38, 40, 42, 44, 46, 48, 50, 52
ST_T = 54
SWV, SRB, SCOL, STB = 56, 57, 58, 59
SA, SB_, SC, SD = 60, 61, 62, 63
SPOLL = 64
SK = 80
SREG = 96
SE, SF = 97, 98
SSPIN = 99
def srd(b): return f"s[{b}:{b+3}]"
def v(a, n=1): return f"v{a}" if n == 1 else f"v[{a}:{a+n-1}]"
def ar(a, n=1): return f"a{a}" if n == 1 else f"a[{a}:{a+n-1}]"
def sp(a): return f"s[{a}:{a+1}]"
VL, VL16 = 1, 2
LOG2E = 1.4426950408889634
def f2u(x):
    import struct; return struct.unpack("<I", struct.pack("<f", x))[0]

class G:
    def __init__(self, opt):
        self.o = opt
        self.p = Prog()
        self.nstamp = 0

    def stamp(self, k):
        if self.o.get("stamps"):
            p = self.p
            p(f"s_memtime s[{SPOLL}:{SPOLL+1}]"); p.wait_lg_all()
            p(f"v_writelane_b32 v255, s{SPOLL}, {k}")
    def spoll(self, off_sreg, n, extra=None):
        p = self.p
        l = p.label("poll"); d = p.label("pd"); r = p.label("pr")
        p(f"s_mov_b32 s{SSPIN}, 0")
        p.put(l)
        nm = {1: "s_load_dword", 2: "s_load_dwordx2", 4: "s_load_dwordx4", 8: "s_load_dwordx8", 16: "s_load_dwordx16"}[n]
        dst = f"s{SPOLL}" if n == 1 else f"s[{SPOLL}:{SPOLL+n-1}]"
        p(f"{nm} {dst}, {sp(SWS)}, s{off_sreg} glc")
        if extra is not None: p(f"s_load_dword s{SF}, {sp(SWS)}, s{extra} glc")
        p.wait_lg_all()
        if n == 1:
            p(f"s_cmp_eq_u32 s{SPOLL}, s{ST_T}\ns_cbranch_scc0 {r}")
        for i in range(n // 2):
            p(f"s_cmp_eq_u64 s[{SPOLL+2*i}:{SPOLL+2*i+1}], {sp(ST_T)}\ns_cbranch_scc0 {r}")
        if extra is not None: p(f"s_cmp_eq_u32 s{SF}, s{ST_T}\ns_cbranch_scc0 {r}")
        p(f"s_branch {d}")
        p.put(r)
        p(f"s_add_u32 s{SSPIN}, s{SSPIN}, 1\ns_cmp_lt_u32 s{SSPIN}, {SPIN}\ns_cbranch_scc1 {l}")
        p.put(d)
    def flag(self, off_sreg, vt):
        p = self.p
        p(f"v_mov_b32 {v(vt)}, s{ST_T}")
        p(f"v_cmp_eq_u32 vcc, 0, {v(VL)}")
        p(f"v_mov_b32 {v(vt+1)}, {OOB}")
        p(f"v_cndmask_b32 {v(vt+1)}, {v(vt+1)}, {v(VL)}, vcc")
        p.vmem(f"buffer_store_dword {v(vt)}, {v(vt+1)}, {srd(SWS)}, s{off_sreg} offen sc1")
    def xhalf_sum(self, a, t):
        p = self.p
        p(f"v_mov_b32 {v(t)}, {v(a)}\nv_permlane32_swap_b32 {v(a)}, {v(t)}\nv_add_f32 {v(a)}, {v(a)}, {v(t)}")
    def rnd(self, d, s):
        self.p(f"v_cvt_pk_bf16_f32 {v(d)}, {v(s)}, {v(s)}\nv_lshlrev_b32 {v(d)}, 16, {v(d)}")
    def unpack(self, d, s):
        self.p(f"v_and_b32 {v(d+1)}, 0xffff0000, {v(s)}\nv_lshlrev_b32 {v(d)}, 16, {v(s)}")
    def plain_read_addr(self, dst4, base_sreg, t):
        p = self.p
        p(f"v_and_b32 {v(t)}, 31, {v(VL)}\nv_lshlrev_b32 {v(t)}, 7, {v(t)}")
        if base_sreg is not None: p(f"v_add_u32 {v(t)}, s{base_sreg}, {v(t)}")
        p(f"v_bfe_u32 {v(t+1)}, {v(VL)}, 1, 3\nv_lshrrev_b32 {v(dst4)}, 5, {v(VL)}\nv_xor_b32 {v(t+1)}, {v(t+1)}, {v(dst4)}")
        p(f"v_lshlrev_b32 {v(t+1)}, 4, {v(t+1)}")
        for ks in range(4):
            p(f"v_xor_b32 {v(dst4+ks)}, {32*ks}, {v(t+1)}\nv_add_u32 {v(dst4+ks)}, {v(dst4+ks)}, {v(t)}")
    def plain_dma_addr(self, dst4, rowbytes, t, rowstep=8):
        p = self.p
        p(f"v_lshrrev_b32 {v(t)}, 3, {v(VL)}\nv_mul_u32_u24 {v(t)}, {rowbytes}, {v(t)}")
        self.plain_dma_addr2(dst4, t, t + 1, rowstep * rowbytes)
    def plain_dma_addr2(self, dst4, vrow, t, step):
        p = self.p
        p(f"v_and_b32 {v(t)}, 7, {v(VL)}\nv_lshrrev_b32 {v(dst4)}, 4, {v(VL)}\nv_xor_b32 {v(t)}, {v(t)}, {v(dst4)}\nv_lshlrev_b32 {v(t)}, 4, {v(t)}")
        p(f"v_add_u32 {v(dst4)}, {v(t)}, {v(vrow)}")
        p(f"v_xor_b32 {v(t)}, 64, {v(t)}\nv_add_u32 {v(dst4+1)}, {v(t)}, {v(vrow)}")
        p(f"v_add_u32 {v(dst4+2)}, {2*(step-1024)}, {v(dst4)}\nv_add_u32 {v(dst4+3)}, {3*(step-1024)}, {v(dst4+1)}\nv_add_u32 {v(dst4+1)}, {step-1024}, {v(dst4+1)}")
    def panel_tr_addr(self, dst2, base_sreg, t, perm):
        p = self.p
        p(f"v_lshrrev_b32 {v(t)}, 5, {v(VL)}\nv_lshlrev_b32 {v(t)}, 10, {v(t)}")
        p(f"v_bfe_u32 {v(t+1)}, {v(VL)}, 2, 2\nv_lshl_add_u32 {v(t)}, {v(t+1)}, 7, {v(t)}")
        p(f"v_bfe_u32 {v(t+1)}, {v(VL)}, 4, 1\nv_lshl_add_u32 {v(t)}, {v(t+1)}, 5, {v(t)}")
        if perm:
            p(f"v_and_b32 {v(t+1)}, 1, {v(VL)}\nv_lshl_add_u32 {v(t)}, {v(t+1)}, 4, {v(t)}")
            p(f"v_bfe_u32 {v(t+1)}, {v(VL)}, 1, 1\nv_lshl_add_u32 {v(t)}, {v(t+1)}, 3, {v(t)}")
        else:
            p(f"v_and_b32 {v(t+1)}, 3, {v(VL)}\nv_lshl_add_u32 {v(t)}, {v(t+1)}, 3, {v(t)}")
        p(f"v_bfe_u32 {v(t+1)}, {v(VL)}, 3, 1\nv_lshlrev_b32 {v(t+1)}, 6, {v(t+1)}")
        if base_sreg is not None: p(f"v_add_u32 {v(t)}, s{base_sreg}, {v(t)}")
        p(f"v_add_u32 {v(dst2)}, {v(t)}, {v(t+1)}\nv_xor_b32 {v(t+1)}, 64, {v(t+1)}\nv_add_u32 {v(dst2+1)}, {v(t)}, {v(t+1)}")
    def unit_tr_addr(self, dst2, base_sreg, t, perm):
        p = self.p
        p(f"v_bfe_u32 {v(t)}, {v(VL)}, 4, 1\nv_lshlrev_b32 {v(t)}, 1, {v(t)}")
        p(f"v_bfe_u32 {v(t+1)}, {v(VL)}, {0 if perm else 1}, 1\nv_or_b32 {v(t)}, {v(t)}, {v(t+1)}")
        p(f"v_lshrrev_b32 {v(t+1)}, 5, {v(VL)}\nv_lshlrev_b32 {v(t+1)}, 1, {v(t+1)}\nv_xor_b32 {v(t+1)}, {v(t+1)}, {v(t)}")
        p(f"v_lshlrev_b32 {v(t)}, 9, {v(t)}")
        p(f"v_bfe_u32 {v(t+2)}, {v(VL)}, 2, 2\nv_lshl_add_u32 {v(t)}, {v(t+2)}, 4, {v(t)}")
        p(f"v_bfe_u32 {v(t+2)}, {v(VL)}, {1 if perm else 0}, 1\nv_lshl_add_u32 {v(t)}, {v(t+2)}, 3, {v(t)}")
        if base_sreg is not None: p(f"v_add_u32 {v(t)}, s{base_sreg}, {v(t)}")
        p(f"v_lshl_add_u32 {v(dst2)}, {v(t+1)}, 6, {v(t)}")
        p(f"v_xor_b32 {v(t+1)}, 1, {v(t+1)}\nv_lshl_add_u32 {v(dst2+1)}, {v(t+1)}, 6, {v(t)}")

    def gemm_loop(self, nstage, sps, nslot, reads, mfmas, dma, tick, rfront):
        p = self.p
        p.wait(vm=tick[0]); p("s_barrier")
        for op in reads(0): op()
        pend = []
        ns = nstage * sps
        for n in range(ns):
            rd = []
            if n + 1 < ns:
                if (n + 1) % sps == 0:
                    st = (n + 1) // sps
                    p.wait(vm=tick[st], lg=p.lg - 1); p("s_barrier")
                    if st - 1 + nslot < nstage:
                        d = dma(st - 1 + nslot)
                        q = (len(d) + sps - 1) // sps
                        pend = [d[i * q:(i + 1) * q] for i in range(sps)]
                rd = reads(n + 1)
            mm = mfmas(n)
            seq = merge(mm, rd, 0, rfront)
            if pend:
                dd = pend.pop(0)
                seq = merge(seq, dd, len(seq) // 2)
            for op in seq: op()

    def gelu_pair(self, a, t, out_packed=None):
        p = self.p
        p(f"v_cvt_pk_bf16_f32 {v(t)}, {v(a)}, {v(a+1)}")
        self.unpack(a, t)
        p(f"v_pk_mul_f32 {v(t,2)}, {v(a,2)}, {v(a,2)}")
        p(f"v_pk_fma_f32 {v(t,2)}, {v(t,2)}, {sp(SK)}, {v(self.VC0,2)} op_sel_hi:[1,0,0]")
        p(f"v_pk_mul_f32 {v(t,2)}, {v(t,2)}, {v(a,2)}")
        p(f"v_exp_f32 {v(t)}, {v(t)}\nv_exp_f32 {v(t+1)}, {v(t+1)}")
        p(f"v_pk_add_f32 {v(t,2)}, {v(t,2)}, 1.0 op_sel_hi:[1,0]")
        p(f"v_rcp_f32 {v(t)}, {v(t)}\nv_rcp_f32 {v(t+1)}, {v(t+1)}")
        p(f"v_pk_mul_f32 {v(t,2)}, {v(t,2)}, {v(a,2)}")
        if out_packed is not None:
            p(f"v_cvt_pk_bf16_f32 {v(out_packed)}, {v(t)}, {v(t+1)}")
        else:
            p(f"v_cvt_pk_bf16_f32 {v(t)}, {v(t)}, {v(t+1)}")
            self.unpack(a, t)
    def gelu_many(self, pairs, temps, outs=None):
        p = self.p
        ng = len(temps)
        for g0 in range(0, len(pairs), ng):
            grp = list(range(g0, min(g0 + ng, len(pairs))))
            streams = []
            for k, i in enumerate(grp):
                sub = Prog(); save = self.p; self.p = sub
                self.gelu_pair(pairs[i], temps[k], None if outs is None else outs[i])
                self.p = save
                streams.append(sub.L)
            for j in range(len(streams[0])):
                for s in streams: p(s[j])

    def wsp_setup(self, VD, VR, t):
        p = self.p
        self.plain_dma_addr(VD, 4096, t)
        self.plain_read_addr(VR, SREG, t)
        self.VWD, self.VWR = VD, VR
    def wsp_dma(self, batch):
        p = self.p
        p(f"s_lshl_b32 s{SA}, s{STB}, 18\ns_lshl_b32 s{SB_}, s{SWV}, 10\ns_add_u32 s{SA}, s{SA}, s{SB_}")
        t = None
        for s4 in range(4):
            st = batch * 4 + s4
            for hh in range(2):
                p(f"s_add_u32 s{SB_}, s{SA}, {st*128 + hh*131072}")
                p(f"s_add_u32 m0, s{SREG}, {s4*8192 + hh*4096}")
                for i in range(4):
                    t = p.vmem(f"buffer_load_dwordx4 {v(self.VWD+i)}, {srd(SWSP)}, s{SB_} offen offset:{i*1024} lds")
            self.wsp_t = getattr(self, "wsp_t", {}); self.wsp_t[st] = t
    def wsp_read(self, batch):
        p = self.p
        for s4 in range(4):
            st = batch * 4 + s4
            p.wait(vm=self.wsp_t[st])
            for ks in range(4):
                for nt in range(2):
                    kap = st * 4 + ks
                    p.lds(f"ds_read_b128 {ar((kap*2+nt)*4,4)}, {v(self.VWR+ks)} offset:{s4*8192+nt*4096}")
            p.wait(lg=p.lg - 8)
        p.wait_lg_all()

    def prologue(self):
        p = self.p
        self.END = p.label("end")
        p(f"s_cmp_ge_u32 s2, 256\ns_cbranch_scc1 {self.END}")
        for (r, off) in [(SX, 0), (PWIN, 80), (SWS, 136), (SWSP, 88), (SCRE, 40), (SCIM, 48), (SWOUT, 104), (SOUT, 120),
                         (PLDT, 56), (PDSK, 64), (PBSP, 96), (PGW, 112)]:
            p(f"s_load_dwordx2 {sp(r)}, s[0:1], {off}")
        p(f"s_load_dwordx4 s[{PBRE}:{PBRE+3}], s[0:1], 24")
        p(f"s_load_dwordx4 s[{PLRE}:{PLRE+3}], s[0:1], 8")
        p(f"v_lshrrev_b32 v2, 6, v0\nv_and_b32 {v(VL)}, 63, v0\nv_readfirstlane_b32 s{SWV}, v2\nv_lshlrev_b32 {v(VL16)}, 4, {v(VL)}")
        if self.o.get("stamps"): p("v_mov_b32 v255, 0")
        p(f"s_and_b32 s{SA}, s2, 7\ns_lshr_b32 s{SB_}, s2, 3")
        p(f"s_and_b32 s{SC}, s{SA}, 1\ns_lshl_b32 s{SC}, s{SC}, 2\ns_and_b32 s{SD}, s{SB_}, 3\ns_add_u32 s{SCOL}, s{SC}, s{SD}")
        p(f"s_lshr_b32 s{SA}, s{SA}, 1")
        p(f"s_lshr_b32 s{SC}, s{SB_}, 2\ns_lshl_b32 s{SD}, s{SA}, 3\ns_add_u32 s{STB}, s{SD}, s{SC}")
        p(f"s_and_b32 s{SC}, s{SC}, 3\ns_lshl_b32 s{SD}, s{SA}, 2\ns_add_u32 s{SRB}, s{SD}, s{SC}")
        p(f"s_mul_i32 s{SREG}, s{SWV}, 40960")
        for (r, n) in [(SX, 2097152), (SWSP, 8388608), (SWS, WS_END), (SCRE, 524288), (SCIM, 524288), (SWOUT, 704512), (SOUT, 4194304)]:
            p(f"s_mov_b32 s{r+2}, {n}\ns_mov_b32 s{r+3}, 0x20000")
        p(f"s_mov_b32 s{SW1+3}, 0x20000")
        self.LU = p.label("U"); self.LG = p.label("G")
        p(f"s_cmp_ge_u32 s{SB_}, 16\ns_cbranch_scc1 {self.LU}")
    def epoch(self):
        p = self.p
        p(f"s_load_dword s{ST_T}, {sp(SWS)}, {EPOCH} glc")
    def epoch2(self):
        p = self.p
        p.wait_lg_all()
        p(f"s_mul_i32 s{ST_T}, s{ST_T}, 0x9E3779B1\ns_add_u32 s{ST_T}, s{ST_T}, 0x7F4A7C15\ns_mov_b32 s{ST_T+1}, s{ST_T}")

    def phase_z(self):
        p = self.p
        ACC, FA, FB, XR, WR, XD, WD, T = 16, 112, 160, 168, 172, 176, 180, 186
        p.c("==== phase A: Z ====")
        self.plain_dma_addr(XD, 1024, T)
        p(f"v_lshrrev_b32 {v(T)}, 3, {v(VL)}\nv_mul_u32_u24 {v(T)}, 2752, {v(T)}")
        p(f"v_bfe_u32 {v(T+1)}, {v(VL)}, 4, 1\nv_lshlrev_b32 {v(T+1)}, 2, {v(T+1)}\nv_and_b32 {v(T+2)}, 7, {v(VL)}\nv_xor_b32 {v(T+1)}, {v(T+1)}, {v(T+2)}")
        p(f"v_lshl_add_u32 {v(T)}, {v(T+1)}, 4, {v(T)}")
        p(f"v_add_u32 {v(WD)}, 1376, {v(T)}\nv_add_u32 {v(WD+4)}, 64, {v(T)}")
        p(f"v_cmp_gt_u32 vcc, 4, {v(T+1)}\nv_add_u32 {v(T+2)}, {1376+128}, {v(T)}\nv_subrev_u32 {v(T+3)}, 64, {v(T)}")
        p(f"v_cndmask_b32 {v(WD+2)}, {v(T+3)}, {v(T+2)}, vcc")
        for pi in range(3): p(f"v_add_u32 {v(WD+2*pi+1)}, {8*2752-1024}, {v(WD+2*pi)}")
        p(f"s_lshl_b32 s{SC}, s{SRB}, 17\ns_lshl_b32 s{SA}, s{SWV}, 15\ns_add_u32 s{SC}, s{SC}, s{SA}")
        p(f"s_mul_i32 s{SD}, s{SWV}, {16*2752}\ns_mul_i32 s{SA}, s{SCOL}, 176\ns_add_u32 s{SD}, s{SD}, s{SA}")
        p(f"s_lshl_b32 s{SE}, s{SWV}, 12\ns_lshl_b32 s{SF}, s{SWV}, 11\ns_add_u32 s{SF}, s{SF}, 65536")
        p.wait_lg_all()
        p(f"s_mov_b32 s{SW1}, s{PWIN}\ns_mov_b32 s{SW1+1}, s{PWIN+1}\ns_mov_b32 s{SW1+2}, {512*2752}")
        tick = {}
        def dma(st):
            sl = st & 3; ops = []
            def x0():
                p(f"s_add_u32 s{SA}, s{SC}, {st*128}\ns_add_u32 m0, s{SE}, {sl*16384}")
                p.vmem(f"buffer_load_dwordx4 {v(XD)}, {srd(SX)}, s{SA} offen lds")
            ops.append(x0)
            for i in range(1, 4):
                ops.append(lambda i=i: p.vmem(f"buffer_load_dwordx4 {v(XD+i)}, {srd(SX)}, s{SA} offen offset:{i*1024} lds"))
            for pi in range(3):
                def w0(pi=pi):
                    if pi == 0: p(f"s_add_u32 s{SB_}, s{SD}, {st*64*2752}")
                    p(f"s_add_u32 m0, s{SF}, {sl*24576+pi*8192}")
                    p.vmem(f"buffer_load_dwordx4 {v(WD+2*pi)}, {srd(SW1)}, s{SB_} offen lds")
                def w1(pi=pi):
                    tick[st] = p.vmem(f"buffer_load_dwordx4 {v(WD+2*pi+1)}, {srd(SW1)}, s{SB_} offen offset:1024 lds")
                ops += [w0, w1]
            return ops
        for st in range(4):
            for op in dma(st): op()
        self.epoch()
        self.stamp(0)
        self.plain_read_addr(XR, SE, T)
        self.panel_tr_addr(WR, None, T, True)
        p(f"v_add_u32 {v(WR+2)}, {65536+49152}, {v(WR)}\nv_add_u32 {v(WR+3)}, {65536+49152}, {v(WR+1)}")
        p(f"v_add_u32 {v(WR)}, 65536, {v(WR)}\nv_add_u32 {v(WR+1)}, 65536, {v(WR+1)}")
        self.wsp_setup(200, 204, T)
        self.VC0 = 208
        c1 = -2 * LOG2E * 0.7978845608028654
        p(f"s_mov_b32 s{SK}, {f2u(c1*0.044715)}\nv_mov_b32 {v(self.VC0)}, {f2u(c1)}")
        self.epoch2()
        rt = {}
        def reads(n):
            st, ks = n // 4, n % 4; sl = st & 3; s = n & 1; ops = []
            def rb(): rt[(n, 'b')] = p.lds(f"ds_read_b128 {v(FB+4*s,4)}, {v(XR+ks)} offset:{sl*16384}")
            ops.append(rb)
            for mt in range(6):
                for a in range(2):
                    def ra(mt=mt, a=a):
                        rt[(n, mt)] = p.lds(f"ds_read_b64_tr_b16 {v(FA+24*s+4*mt+2*a,2)}, {v(WR+2*(sl>>1)+(mt&1))} offset:{(sl&1)*24576+(mt>>1)*8192+ks*2048+a*512}")
                    ops.append(ra)
            return ops
        def mfmas(n):
            s = n & 1; ops = []
            for mt in range(6):
                def m(mt=mt):
                    p.wait(lg=rt[(n, mt)])
                    c = "0" if n == 0 else v(ACC + 16 * mt, 16)
                    p(f"v_mfma_f32_32x32x16_bf16 {v(ACC+16*mt,16)}, {v(FA+24*s+4*mt,4)}, {v(FB+4*s,4)}, {c}")
                ops.append(m)
            return ops
        self.gemm_loop(8, 4, 4, reads, mfmas, dma, tick, 4)
        self.stamp(1)
        p("s_barrier")
        self.wsp_dma(0)
        TT = [112, 116, 120, 124]
        self.gelu_many([ACC + 2 * i for i in range(24)], TT)
        MA, MB = SK + 2, SK + 4
        p(f"s_cmp_lt_u32 s{SCOL}, 7")
        p(f"s_mov_b32 s{MA}, -1\ns_cselect_b32 s{MA+1}, -1, 0\ns_cselect_b32 s{MB}, -1, 0\ns_mov_b32 s{MB+1}, 0")
        p(f"s_mov_b32 s{SK+6}, {f2u(1/72)}\ns_cselect_b32 s{SK+6}, {f2u(1/88)}, s{SK+6}")
        S0, S1, MU = 112, 114, 116
        p(f"v_pk_add_f32 {v(S0,2)}, {v(ACC,2)}, {v(ACC+2,2)}\nv_pk_add_f32 {v(S1,2)}, {v(ACC+4,2)}, {v(ACC+6,2)}")
        for i in range(4, 16):
            s = S0 if i % 2 == 0 else S1
            p(f"v_pk_add_f32 {v(s,2)}, {v(s,2)}, {v(ACC+2*i,2)}")
        for (m, b) in [(MA, 16), (MB, 20)]:
            p(f"s_mov_b64 exec, {sp(m)}")
            for i in range(b, b + 4):
                s = S0 if i % 2 == 0 else S1
                p(f"v_pk_add_f32 {v(s,2)}, {v(s,2)}, {v(ACC+2*i,2)}")
        p("s_mov_b64 exec, -1")
        GR = 120
        p(f"v_pk_add_f32 {v(S0,2)}, {v(S0,2)}, {v(S1,2)}\nv_add_f32 {v(GR)}, {v(S0)}, {v(S0+1)}")
        self.xhalf_sum(GR, S0)
        p(f"v_mul_f32 {v(MU)}, s{SK+6}, {v(GR)}")
        D0, D1 = 124, 126
        p(f"v_mov_b32 {v(S0)}, 0\nv_mov_b32 {v(S0+1)}, 0\nv_mov_b32 {v(S1)}, 0\nv_mov_b32 {v(S1+1)}, 0")
        def m2(i):
            d = D0 if i % 2 == 0 else D1; s = S0 if i % 2 == 0 else S1
            p(f"v_pk_add_f32 {v(d,2)}, {v(ACC+2*i,2)}, {v(MU,2)} op_sel_hi:[1,0] neg_lo:[0,1] neg_hi:[0,1]")
            p(f"v_pk_fma_f32 {v(s,2)}, {v(d,2)}, {v(d,2)}, {v(s,2)}")
        for i in range(16): m2(i)
        for (m, b) in [(MA, 16), (MB, 20)]:
            p(f"s_mov_b64 exec, {sp(m)}")
            for i in range(b, b + 4): m2(i)
        p("s_mov_b64 exec, -1")
        p(f"v_pk_add_f32 {v(S0,2)}, {v(S0,2)}, {v(S1,2)}\nv_add_f32 {v(GR+2)}, {v(S0)}, {v(S0+1)}")
        self.xhalf_sum(GR + 2, S0)
        p(f"v_mov_b32 {v(GR+1)}, s{ST_T}\nv_mov_b32 {v(GR+3)}, s{ST_T}")
        VLO = 128
        p(f"v_cmp_gt_u32 vcc, 32, {v(VL)}\nv_mov_b32 {v(VLO)}, {OOB}\nv_cndmask_b32 {v(VLO)}, {v(VLO)}, {v(VL16)}, vcc")
        p(f"s_lshl_b32 s{SC}, s{SRB}, 2\ns_add_u32 s{SC}, s{SC}, s{SWV}")
        p(f"s_lshl_b32 s{SD}, s{SC}, 12\ns_add_u32 s{SD}, s{SD}, {ST}\ns_lshl_b32 s{SA}, s{SCOL}, 9\ns_add_u32 s{SA}, s{SA}, s{SD}")
        p.vmem(f"buffer_store_dwordx4 {v(GR,4)}, {v(VLO)}, {srd(SWS)}, s{SA} offen sc1")
        self.stamp(2)
        Z1P = 132
        self.gelu_many([ACC + 48 + 2 * i for i in range(24)], [112, 116, 156, 160], [Z1P + i for i in range(24)])
        p(f"s_lshl_b32 s{SA}, s{SCOL}, 6\ns_add_u32 s{SA}, s{SA}, s{SC}\ns_mul_i32 s{SE}, s{SA}, 5632")
        p(f"s_add_u32 s{SA}, s{SE}, {Z1}\ns_add_u32 s{SB_}, s{SA}, 4096")
        VA_, VB_ = 112, 113
        p(f"v_mov_b32 {v(114)}, {OOB}")
        p(f"v_cndmask_b32 {v(VA_)}, {v(114)}, {v(VL16)}, {sp(MA)}\nv_cndmask_b32 {v(VB_)}, {v(114)}, {v(VL16)}, {sp(MB)}")
        for mt in range(3):
            for q in range(2):
                r = v(Z1P + 8 * mt + 4 * q, 4)
                if mt < 2: p.vmem(f"buffer_store_dwordx4 {r}, {v(VL16)}, {srd(SWS)}, s{SA} offen offset:{mt*2048+q*1024} sc1")
                else: p.vmem(f"buffer_store_dwordx4 {r}, {v(VA_+q)}, {srd(SWS)}, s{SB_} offen offset:{q*1024} sc1")
        self.stamp(3)
        SG = 64 + 16
        SG = 64
        l = p.label("sp"); d = p.label("sd")
        p(f"s_mov_b32 s{SSPIN}, 0")
        p.put(l)
        for q in range(4):
            p.vmem(f"buffer_load_dwordx4 {v(SG+4*q,4)}, {v(VL16)}, {srd(SWS)}, s{SD} offen offset:{q*1024} sc1")
        p.wait_vm_all()
        p(f"v_xor_b32 {v(80)}, s{ST_T}, {v(SG+1)}")
        for r in [3, 5, 7, 9, 11, 13, 15]:
            p(f"v_xor_b32 {v(81)}, s{ST_T}, {v(SG+r)}\nv_or_b32 {v(80)}, {v(80)}, {v(81)}")
        p(f"v_cmp_ne_u32 vcc, 0, {v(80)}\ns_cmp_eq_u64 vcc, 0\ns_cbranch_scc1 {d}")
        p(f"s_add_u32 s{SSPIN}, s{SSPIN}, 1\ns_cmp_lt_u32 s{SSPIN}, {SPIN}\ns_cbranch_scc1 {l}")
        p.put(d)
        self.stamp(4)
        MN, VR, N3, I3, TM = 80, 81, 82, 83, 84
        p(f"v_add_f32 {v(MN)}, {v(SG)}, {v(SG+4)}\nv_add_f32 {v(TM)}, {v(SG+8)}, {v(SG+12)}\nv_add_f32 {v(MN)}, {v(MN)}, {v(TM)}")
        self.xhalf_sum(MN, TM)
        p(f"v_mul_f32 {v(MN)}, {f2u(1/688)}, {v(MN)}")
        p(f"v_cmp_gt_u32 vcc, 32, {v(VL)}\nv_mov_b32 {v(N3)}, {f2u(72.0)}\nv_mov_b32 {v(TM)}, {f2u(88.0)}\nv_cndmask_b32 {v(N3)}, {v(N3)}, {v(TM)}, vcc")
        p(f"v_mov_b32 {v(I3)}, {f2u(1/72)}\nv_mov_b32 {v(TM+1)}, {f2u(1/88)}\nv_cndmask_b32 {v(I3)}, {v(I3)}, {v(TM+1)}, vcc")
        p(f"v_add_f32 {v(VR)}, {v(SG+2)}, {v(SG+6)}\nv_add_f32 {v(TM+2)}, {v(SG+10)}, {v(SG+14)}\nv_add_f32 {v(VR)}, {v(VR)}, {v(TM+2)}")
        for q in range(4):
            n_, i_ = (TM, TM + 1) if q < 3 else (N3, I3)
            p(f"v_fma_f32 {v(TM+2)}, {v(SG+4*q)}, {v(i_)}, -{v(MN)}\nv_mul_f32 {v(TM+2)}, {v(TM+2)}, {v(TM+2)}\nv_fmac_f32 {v(VR)}, {v(TM+2)}, {v(n_)}")
        self.xhalf_sum(VR, TM)
        p(f"v_mul_f32 {v(VR)}, {f2u(1/688)}, {v(VR)}")
        self.rnd(MN, MN); self.rnd(VR, VR)
        p(f"v_add_f32 {v(VR)}, {f2u(1e-5)}, {v(VR)}"); self.rnd(VR, VR)
        p(f"v_sqrt_f32 {v(VR)}, {v(VR)}"); self.rnd(VR, VR)
        p(f"v_rcp_f32 {v(VR)}, {v(VR)}")
        ZP = 132
        for i in range(24):
            a = ACC + 2 * i
            p(f"v_pk_add_f32 {v(a,2)}, {v(a,2)}, {v(MN,2)} op_sel_hi:[1,0] neg_lo:[0,1] neg_hi:[0,1]")
        if self.o.get("ln_round", 1):
            for i in range(24): p(f"v_cvt_pk_bf16_f32 {v(ZP+i)}, {v(ACC+2*i)}, {v(ACC+2*i+1)}")
            for i in range(24): self.unpack(ACC + 2 * i, ZP + i)
        for i in range(24):
            a = ACC + 2 * i
            p(f"v_pk_mul_f32 {v(a,2)}, {v(a,2)}, {v(MN,2)} op_sel:[0,1] op_sel_hi:[1,1]")
        for i in range(24): p(f"v_cvt_pk_bf16_f32 {v(ZP+i)}, {v(ACC+2*i)}, {v(ACC+2*i+1)}")
        Q0, Q1, QA, QB = 84, 85, 86, 87
        p(f"v_lshrrev_b32 {v(Q1)}, 5, {v(VL)}\nv_lshlrev_b32 {v(Q1)}, 6, {v(Q1)}\nv_xor_b32 {v(Q0)}, {v(VL16)}, {v(Q1)}\nv_xor_b32 {v(Q1)}, 128, {v(Q0)}")
        p(f"v_cndmask_b32 {v(QA)}, {v(114)}, {v(Q0)}, {sp(MA)}\nv_cndmask_b32 {v(QB)}, {v(114)}, {v(Q1)}, {sp(MB)}")
        p(f"s_add_u32 s{SA}, s{SE}, {Z2N}\ns_add_u32 s{SB_}, s{SA}, 4096")
        for mt in range(3):
            for q in range(2):
                r = v(ZP + 8 * mt + 4 * q, 4)
                if mt < 2: t = p.vmem(f"buffer_store_dwordx4 {r}, {v(Q0+q)}, {srd(SWS)}, s{SA} offen offset:{mt*2048+q*1024} sc1")
                else: t = p.vmem(f"buffer_store_dwordx4 {r}, {v(QA+q)}, {srd(SWS)}, s{SB_} offen offset:{q*1024} sc1")
        self.wsp_read(0)
        p.wait(vm=t)
        p(f"s_lshl_b32 s{SA}, s{SCOL}, 6\ns_add_u32 s{SA}, s{SA}, s{SC}\ns_lshl_b32 s{SA}, s{SA}, 2\ns_add_u32 s{SA}, s{SA}, {ZF}")
        self.flag(SA, 88)
        self.stamp(5)
        p(f"s_branch {self.LG}")

    def phase_u(self):
        p = self.p
        ACC, FA, FB, XR, BR, XD, BD, T = 16, 80, 96, 112, 116, 120, 124, 128
        p.c("==== phase A: U ====")
        p.put(self.LU)
        p(f"v_lshrrev_b32 {v(T)}, 5, {v(VL)}\nv_lshlrev_b32 {v(T)}, 15, {v(T)}")
        p(f"v_bfe_u32 {v(T+1)}, {v(VL)}, 3, 1\nv_lshl_add_u32 {v(T)}, {v(T+1)}, 14, {v(T)}")
        p(f"v_bfe_u32 {v(T+1)}, {v(VL)}, 4, 1\nv_lshl_add_u32 {v(T)}, {v(T+1)}, 10, {v(T)}")
        self.plain_dma_addr2(XD, T, T + 1, 2048)
        self.plain_dma_addr(BD, 1024, T)
        p(f"s_lshr_b32 s{SA}, s{SWV}, 1\ns_and_b32 s{SB_}, s{SWV}, 1")
        p(f"s_lshl_b32 s{SC}, s{SRB}, 17\ns_lshl_b32 s{SD}, s{SA}, 16\ns_add_u32 s{SC}, s{SC}, s{SD}\ns_lshl_b32 s{SD}, s{SB_}, 13\ns_add_u32 s{SC}, s{SC}, s{SD}")
        p(f"s_lshl_b32 s{SD}, s{SCOL}, 16\ns_lshl_b32 s{SE}, s{SB_}, 15\ns_add_u32 s{SD}, s{SD}, s{SE}")
        p(f"s_lshl_b32 s{SE}, s{SWV}, 12")
        p.wait_lg_all()
        p(f"s_cmp_eq_u32 s{SA}, 0\ns_cselect_b32 s{SW1}, s{PBRE}, s{PBIM}\ns_cselect_b32 s{SW1+1}, s{PBRE+1}, s{PBIM+1}\ns_mov_b32 s{SW1+2}, 524288")
        tick = {}
        def dma(st):
            sl = st & 3; ops = []
            for (vd, sr, sb, lb) in [(XD, SX, SC, 0), (BD, SW1, SD, 65536)]:
                def f0(vd=vd, sr=sr, sb=sb, lb=lb):
                    p(f"s_add_u32 s{SA}, s{sb}, {st*128}\ns_add_u32 m0, s{SE}, {lb+sl*16384}")
                    p.vmem(f"buffer_load_dwordx4 {v(vd)}, {srd(sr)}, s{SA} offen lds")
                ops.append(f0)
                for i in range(1, 4):
                    def f(i=i, vd=vd, sr=sr):
                        tick[st] = p.vmem(f"buffer_load_dwordx4 {v(vd+i)}, {srd(sr)}, s{SA} offen offset:{i*1024} lds")
                    ops.append(f)
            return ops
        for st in range(4):
            for op in dma(st): op()
        self.epoch()
        self.stamp(0)
        WT, WP = SK + 8, SK + 9
        p(f"s_and_b32 s{WT}, s{SWV}, 1\ns_lshr_b32 s{WP}, s{SWV}, 1")
        PR = 140
        p(f"s_lshl_b32 s{SA}, s{SCOL}, 6\ns_lshl_b32 s{SB_}, s{WP}, 5\ns_add_u32 s{SA}, s{SA}, s{SB_}")
        p(f"v_and_b32 {v(T)}, 31, {v(VL)}\nv_add_u32 {v(T)}, s{SA}, {v(T)}\nv_lshlrev_b32 {v(T)}, 1, {v(T)}")
        p.vmem(f"global_load_ushort {v(PR)}, {v(T)}, {sp(PLRE)}")
        p.vmem(f"global_load_ushort {v(PR+1)}, {v(T)}, {sp(PLIM)}")
        tp = p.vmem(f"global_load_ushort {v(PR+2)}, {v(T)}, {sp(PLDT)}")
        p(f"s_lshl_b32 s{SA}, s{WT}, 13")
        self.plain_read_addr(XR, SA, T)
        p(f"s_lshl_b32 s{SA}, s{WP}, 12\ns_add_u32 s{SA}, s{SA}, 65536")
        self.plain_read_addr(BR, SA, T)
        self.wsp_setup(200, 204, T)
        self.epoch2()
        rt = {}
        def reads(n):
            st, ks = n // 4, n % 4; sl = st & 3; s = n & 1; ops = []
            for k in range(2):
                def ra(k=k): rt[(n, 'a', k)] = p.lds(f"ds_read_b128 {v(FA+8*s+4*k,4)}, {v(XR+ks)} offset:{sl*16384+k*4096}")
                def rb(k=k): rt[(n, 'b', k)] = p.lds(f"ds_read_b128 {v(FB+8*s+4*k,4)}, {v(BR+ks)} offset:{sl*16384+k*8192}")
                ops += [ra, rb]
            return ops
        def mfmas(n):
            s = n & 1; ops = []
            for (mt, cp) in [(0, 0), (1, 0), (1, 1), (0, 1)]:
                def m(mt=mt, cp=cp):
                    p.wait(lg=max(rt[(n, 'a', mt)], rt[(n, 'b', cp)]))
                    d = v(ACC + 32 * mt + 16 * cp, 16)
                    p(f"v_mfma_f32_32x32x16_bf16 {d}, {v(FA+8*s+4*mt,4)}, {v(FB+8*s+4*cp,4)}, {'0' if n == 0 else d}")
                ops.append(m)
            return ops
        self.gemm_loop(8, 4, 4, reads, mfmas, dma, tick, 3)
        self.stamp(1)
        p("s_barrier")
        self.wsp_dma(0)
        LB, CF, L16, L128, L256, LQ0, LQ1 = 144, 146, 148, 150, 152, 154, 156
        X0, X1, X2, X3 = 160, 161, 162, 163
        p(f"v_lshlrev_b32 {v(PR)}, 16, {v(PR)}\nv_lshlrev_b32 {v(PR+1)}, 16, {v(PR+1)}\nv_lshlrev_b32 {v(PR+2)}, 16, {v(PR+2)}")
        p(f"v_mul_f32 {v(X0)}, {f2u(LOG2E)}, {v(PR+2)}\nv_exp_f32 {v(X0)}, {v(X0)}"); self.rnd(X0, X0)
        p(f"v_mul_f32 {v(X1)}, {v(X0)}, {v(PR)}\nv_mul_f32 {v(X2)}, {v(X0)}, {v(PR+1)}")
        p(f"v_mul_f32 {v(X1)}, {f2u(LOG2E)}, {v(X1)}\nv_exp_f32 {v(X1)}, {v(X1)}")
        p(f"v_mul_f32 {v(X2)}, {f2u(1/(2*math.pi))}, {v(X2)}\nv_fract_f32 {v(X2)}, {v(X2)}")
        p(f"v_cos_f32 {v(X3)}, {v(X2)}\nv_sin_f32 {v(X2)}, {v(X2)}")
        p(f"v_mul_f32 {v(LB)}, {v(X1)}, {v(X3)}\nv_mul_f32 {v(LB+1)}, {v(X1)}, {v(X2)}")
        p(f"v_mul_f32 {v(X0)}, {v(PR)}, {v(PR)}\nv_fmac_f32 {v(X0)}, {v(PR+1)}, {v(PR+1)}\nv_rcp_f32 {v(X0)}, {v(X0)}")
        p(f"v_add_f32 {v(X1)}, -1.0, {v(LB)}\nv_add_f32 {v(X0)}, {v(X0)}, {v(X0)}")
        p(f"v_mul_f32 {v(X2)}, {v(X1)}, {v(PR)}\nv_fmac_f32 {v(X2)}, {v(LB+1)}, {v(PR+1)}\nv_mul_f32 {v(CF)}, {v(X2)}, {v(X0)}")
        p(f"v_mul_f32 {v(X2)}, {v(LB+1)}, {v(PR)}\nv_fma_f32 {v(X2)}, -{v(X1)}, {v(PR+1)}, {v(X2)}\nv_mul_f32 {v(CF+1)}, {v(X2)}, {v(X0)}")
        def csq(d, s):
            p(f"v_mul_f32 {v(X0)}, {v(s+1)}, {v(s+1)}\nv_add_f32 {v(X1)}, {v(s)}, {v(s)}")
            p(f"v_mul_f32 {v(d+1)}, {v(X1)}, {v(s+1)}\nv_fma_f32 {v(d)}, {v(s)}, {v(s)}, -{v(X0)}")
        def cmul(d, a, b):
            p(f"v_mul_f32 {v(X0)}, {v(a+1)}, {v(b+1)}\nv_mul_f32 {v(X1)}, {v(a+1)}, {v(b)}")
            p(f"v_fma_f32 {v(X0)}, {v(a)}, {v(b)}, -{v(X0)}\nv_fma_f32 {v(d+1)}, {v(a)}, {v(b+1)}, {v(X1)}\nv_mov_b32 {v(d)}, {v(X0)}")
        def cfma(d, a, b, c):
            p(f"v_fma_f32 {v(X0)}, {v(a)}, {v(b)}, {v(c)}\nv_fma_f32 {v(X1)}, {v(a)}, {v(b+1)}, {v(c+1)}")
            p(f"v_fma_f32 {v(X0)}, -{v(a+1)}, {v(b+1)}, {v(X0)}\nv_fma_f32 {v(d+1)}, {v(a+1)}, {v(b)}, {v(X1)}\nv_mov_b32 {v(d)}, {v(X0)}")
        L32, L64 = 164, 166
        csq(L16, LB); csq(L16, L16); csq(L16, L16); csq(L16, L16)
        csq(L32, L16); csq(L64, L32); csq(L128, L64); csq(L256, L128)
        p(f"v_cmp_gt_u32 vcc, 32, {v(VL)}\nv_cndmask_b32 {v(LQ0)}, {v(L32)}, 1.0, vcc\nv_cndmask_b32 {v(LQ0+1)}, {v(L32+1)}, 0, vcc")
        sk = p.label("wt0")
        p(f"s_cmp_eq_u32 s{WT}, 0\ns_cbranch_scc1 {sk}")
        cmul(LQ0, LQ0, L64)
        p.put(sk)
        cmul(LQ1, LQ0, L16)
        def U(sg, cp): return ACC + 32 * (sg >> 3) + 16 * cp + 4 * ((sg & 7) >> 1) + 2 * (sg & 1)
        def step(hr, hi, sg, nr, ni, t0, t1):
            A = v(LB, 2)
            p(f"v_pk_fma_f32 {v(t0,2)}, {A}, {v(hr,2)}, {v(U(sg,0),2)} op_sel_hi:[0,1,1]")
            p(f"v_pk_fma_f32 {v(t1,2)}, {A}, {v(hi,2)}, {v(U(sg,1),2)} op_sel_hi:[0,1,1]")
            p(f"v_pk_fma_f32 {v(nr,2)}, {A}, {v(hi,2)}, {v(t0,2)} op_sel:[1,0,0] op_sel_hi:[1,1,1] neg_lo:[1,0,0] neg_hi:[1,0,0]")
            p(f"v_pk_fma_f32 {v(ni,2)}, {A}, {v(hr,2)}, {v(t1,2)} op_sel:[1,0,0] op_sel_hi:[1,1,1]")
        HA, HBb, T0 = 80, 84, 88
        hr, hi = U(0, 0), U(0, 1)
        for sg in range(1, 16):
            nr, ni = (HA, HA + 2) if sg & 1 else (HBb, HBb + 2)
            step(hr, hi, sg, nr, ni, T0, T0 + 2)
            hr, hi = nr, ni
        EX = 92
        p(f"v_mov_b32 {v(EX)}, {v(hr)}\nv_mov_b32 {v(EX+1)}, {v(hi)}\nv_mov_b32 {v(EX+2)}, {v(hr+1)}\nv_mov_b32 {v(EX+3)}, {v(hi+1)}")
        SCR = 163840 - 4096
        p(f"s_lshl_b32 s{SA}, s{WP}, 11\ns_add_u32 s{SA}, s{SA}, {SCR}")
        p(f"v_and_b32 {v(T0)}, 31, {v(VL)}\nv_lshlrev_b32 {v(T0)}, 6, {v(T0)}\nv_add_u32 {v(T0)}, s{SA}, {v(T0)}")
        p(f"v_lshrrev_b32 {v(T0+1)}, 5, {v(VL)}\nv_lshl_add_u32 {v(T0+1)}, {v(T0+1)}, 4, {v(T0)}\ns_lshl_b32 s{SA}, s{WT}, 5\nv_add_u32 {v(T0+1)}, s{SA}, {v(T0+1)}")
        p.lds(f"ds_write_b128 {v(T0+1)}, {v(EX,4)}")
        p.wait_lg_all(); p("s_barrier")
        E8 = 96
        for i in range(4): p.lds(f"ds_read_b128 {v(E8+4*i,4)}, {v(T0)} offset:{16*i}")
        p.wait_lg_all()
        for q in range(1, 8): cfma(E8 + 2 * q, L16, E8 + 2 * (q - 1), E8 + 2 * q)
        GR = 112
        p(f"v_mov_b32 {v(GR)}, {v(E8+14)}\nv_mov_b32 {v(GR+1)}, s{ST_T}\nv_mov_b32 {v(GR+2)}, {v(E8+15)}\nv_mov_b32 {v(GR+3)}, s{ST_T}")
        p(f"s_cmp_eq_u32 s{WT}, 0\ns_cselect_b32 s{SA}, 32, 0")
        p(f"v_cmp_gt_u32 vcc, s{SA}, {v(VL)}\nv_mov_b32 {v(T0)}, {OOB}\nv_cndmask_b32 {v(T0)}, {v(T0)}, {v(VL16)}, vcc")
        p(f"s_lshl_b32 s{SC}, s{SCOL}, 14\ns_lshl_b32 s{SA}, s{WP}, 9\ns_add_u32 s{SC}, s{SC}, s{SA}\ns_add_u32 s{SC}, s{SC}, {EG}")
        p(f"s_lshl_b32 s{SA}, s{SRB}, 10\ns_add_u32 s{SA}, s{SA}, s{SC}")
        p.vmem(f"buffer_store_dwordx4 {v(GR,4)}, {v(T0)}, {srd(SWS)}, s{SA} offen sc1")
        self.stamp(2)
        CQ = 116
        p(f"v_cmp_gt_u32 vcc, 32, {v(VL)}")
        w1 = p.label("w1"); w2 = p.label("w2")
        p(f"s_cmp_eq_u32 s{WT}, 0\ns_cbranch_scc0 {w1}")
        p(f"v_cndmask_b32 {v(CQ)}, {v(E8+2)}, 0, vcc\nv_cndmask_b32 {v(CQ+1)}, {v(E8+3)}, 0, vcc")
        p(f"v_cndmask_b32 {v(CQ+2)}, {v(E8+4)}, {v(E8)}, vcc\nv_cndmask_b32 {v(CQ+3)}, {v(E8+5)}, {v(E8+1)}, vcc")
        p(f"s_branch {w2}")
        p.put(w1)
        for k in range(4): p(f"v_cndmask_b32 {v(CQ+k)}, {v(E8+10+k)}, {v(E8+6+k)}, vcc")
        p.put(w2)
        GX, GW, GU, GS = 168, 184, 188, 196
        p(f"s_lshl_b32 s{SD}, s{SRB}, 1\ns_add_u32 s{SD}, s{SD}, s{WT}")
        p(f"s_lshl_b32 s{SA}, s{SCOL}, 1\ns_add_u32 s{SA}, s{SA}, s{WP}")
        p(f"s_lshl_b32 s{SE}, s{SD}, 4\ns_add_u32 s{SE}, s{SE}, s{SA}")
        p(f"s_lshl_b32 s{SA}, s{SE}, 12")
        for r in range(4): p.vmem(f"buffer_load_dwordx4 {v(GX+4*r,4)}, {v(VL16)}, {srd(SX)}, s{SA} offen offset:{r*1024}")
        tg = p.vmem(f"global_load_dwordx4 {v(GW,4)}, {v(VL16)}, {sp(PGW)}")
        p.wait(vm=tg)
        for i in range(4): self.unpack(GU + 2 * i, GW + i)
        for r in range(4):
            for i in range(4):
                a = 208 + 2 * i
                self.unpack(a, GX + 4 * r + i)
                p(f"v_pk_mul_f32 {v(a,2)}, {v(a,2)}, {v(GU+2*i,2)}")
            for i in range(4): p(f"v_cvt_pk_bf16_f32 {v(GX+4*r+i)}, {v(208+2*i)}, {v(209+2*i)}")
            for i in range(4): self.unpack(208 + 2 * i, GX + 4 * r + i)
            p(f"v_pk_add_f32 {v(208,2)}, {v(208,2)}, {v(210,2)}\nv_pk_add_f32 {v(212,2)}, {v(212,2)}, {v(214,2)}\nv_pk_add_f32 {v(208,2)}, {v(208,2)}, {v(212,2)}")
            p(f"v_add_f32 {v(GS+r)}, {v(208)}, {v(209)}")
        for mod in ["quad_perm:[1,0,3,2]", "quad_perm:[2,3,0,1]", "row_half_mirror", "row_mirror"]:
            for r in range(4): p(f"v_add_f32_dpp {v(GS+r)}, {v(GS+r)}, {v(GS+r)} {mod} row_mask:0xf bank_mask:0xf")
        for sw in ["v_permlane16_swap_b32", "v_permlane32_swap_b32"]:
            for r in range(4): p(f"v_mov_b32 {v(208+r)}, {v(GS+r)}")
            for r in range(4): p(f"{sw} {v(GS+r)}, {v(208+r)}")
            for r in range(4): p(f"v_add_f32 {v(GS+r)}, {v(GS+r)}, {v(208+r)}")
        for r in range(4): self.rnd(GS + r, GS + r)
        for r in range(4): p(f"v_mul_f32 {v(GS+r)}, {f2u(-LOG2E)}, {v(GS+r)}")
        for r in range(4): p(f"v_exp_f32 {v(GS+r)}, {v(GS+r)}")
        for r in range(4): p(f"v_add_f32 {v(GS+r)}, 1.0, {v(GS+r)}")
        for r in range(4): p(f"v_rcp_f32 {v(GS+r)}, {v(GS+r)}")
        for r in range(4): self.rnd(GS + r, GS + r)
        p(f"v_cmp_eq_u32 vcc, 0, {v(VL)}\nv_mov_b32 {v(208)}, {OOB}\nv_cndmask_b32 {v(208)}, {v(208)}, {v(VL)}, vcc")
        p(f"s_lshl_b32 s{SA}, s{SE}, 4\ns_add_u32 s{SA}, s{SA}, {GATE}")
        p.vmem(f"buffer_store_dwordx4 {v(GS,4)}, {v(208)}, {srd(SWS)}, s{SA} offen sc1")
        self.stamp(3)
        EGR, EO, ET = 208, 240, 168
        p(f"v_lshrrev_b32 {v(ET)}, 5, {v(VL)}\nv_sub_u32 {v(ET)}, s{SRB}, {v(ET)}\nv_add_u32 {v(ET)}, -1, {v(ET)}")
        p(f"v_and_b32 {v(ET+1)}, 31, {v(VL)}\nv_lshlrev_b32 {v(ET+1)}, 4, {v(ET+1)}\nv_mov_b32 {v(ET+2)}, {OOB}\nv_mov_b32 {v(ET+3)}, s{ST_T}")
        EXP = 176
        for q in range(8):
            p(f"v_add_u32 {v(ET+4)}, {-2*q}, {v(ET)}\nv_cmp_le_i32 vcc, 0, {v(ET+4)}\nv_lshl_add_u32 {v(ET+4)}, {v(ET+4)}, 10, {v(ET+1)}")
            p(f"v_cndmask_b32 {v(EO+q)}, {v(ET+2)}, {v(ET+4)}, vcc\nv_cndmask_b32 {v(EXP+q)}, 0, {v(ET+3)}, vcc")
        l = p.label("ep"); d = p.label("ed")
        p(f"s_mov_b32 s{SSPIN}, 0")
        p.put(l)
        for q in range(8): p.vmem(f"buffer_load_dwordx4 {v(EGR+4*q,4)}, {v(EO+q)}, {srd(SWS)}, s{SC} offen sc1")
        p.wait_vm_all()
        p(f"v_mov_b32 {v(ET)}, 0")
        for q in range(8):
            for k in (1, 3):
                p(f"v_xor_b32 {v(ET+1)}, {v(EXP+q)}, {v(EGR+4*q+k)}\nv_or_b32 {v(ET)}, {v(ET)}, {v(ET+1)}")
        p(f"v_cmp_ne_u32 vcc, 0, {v(ET)}\ns_cmp_eq_u64 vcc, 0\ns_cbranch_scc1 {d}")
        p(f"s_add_u32 s{SSPIN}, s{SSPIN}, 1\ns_cmp_lt_u32 s{SSPIN}, {SPIN}\ns_cbranch_scc1 {l}")
        p.put(d)
        self.stamp(4)
        for q in range(8): p(f"v_mov_b32 {v(EGR+4*q+1)}, {v(EGR+4*q+2)}")
        S = EGR + 28
        for q in range(6, -1, -1): cfma(S, L256, S, EGR + 4 * q)
        p(f"v_mov_b32 {v(ET)}, {v(S)}\nv_mov_b32 {v(ET+1)}, {v(S+1)}\nv_permlane32_swap_b32 {v(S)}, {v(ET)}\nv_permlane32_swap_b32 {v(S+1)}, {v(ET+1)}")
        cfma(S, L128, ET, S)
        cfma(CQ, LQ0, S, CQ); cfma(CQ + 2, LQ1, S, CQ + 2)
        p(f"v_mov_b32 {v(HA)}, {v(CQ)}\nv_mov_b32 {v(HA+1)}, {v(CQ+2)}\nv_mov_b32 {v(HA+2)}, {v(CQ+1)}\nv_mov_b32 {v(HA+3)}, {v(CQ+3)}")
        hr, hi = HA, HA + 2
        OP = 208
        OT = 96
        Cc = v(CF, 2)
        for sg in range(16):
            step(hr, hi, sg, U(sg, 0), U(sg, 1), T0, T0 + 2)
            hr, hi = U(sg, 0), U(sg, 1)
            o = OT + 4 * (sg & 1) + 8 * ((sg >> 1) & 1)
            p(f"v_pk_mul_f32 {v(o,2)}, {Cc}, {v(hr,2)} op_sel_hi:[0,1]")
            p(f"v_pk_mul_f32 {v(o+2,2)}, {Cc}, {v(hi,2)} op_sel_hi:[0,1] neg_lo:[1,0] neg_hi:[1,0]")
            p(f"v_pk_fma_f32 {v(o,2)}, {Cc}, {v(hi,2)}, {v(o,2)} op_sel:[1,0,0] op_sel_hi:[1,1,1] neg_lo:[1,0,0] neg_hi:[1,0,0]")
            p(f"v_pk_fma_f32 {v(o+2,2)}, {Cc}, {v(hr,2)}, {v(o+2,2)} op_sel:[1,0,0] op_sel_hi:[1,1,1] neg_lo:[1,0,0] neg_hi:[1,0,0]")
            if sg & 1:
                q, i = sg >> 3, (sg & 7) >> 1
                for cp in range(2):
                    for e in range(2):
                        p(f"v_cvt_pk_bf16_f32 {v(OP+16*cp+8*e+4*q+i)}, {v(o-4+2*cp+e)}, {v(o+2*cp+e)}")
        p(f"s_lshl_b32 s{SA}, s{SD}, 3\ns_add_u32 s{SA}, s{SA}, s{SCOL}\ns_lshl_b32 s{SA}, s{SA}, 14\ns_lshl_b32 s{SB_}, s{WP}, 12\ns_add_u32 s{SA}, s{SA}, s{SB_}")
        p(f"s_add_u32 s{SA}, s{SA}, {HB}\ns_add_u32 s{SB_}, s{SA}, 8192")
        HO = 84
        p(f"v_lshrrev_b32 {v(T0)}, 5, {v(VL)}\nv_lshlrev_b32 {v(T0)}, 11, {v(T0)}\nv_and_b32 {v(T0+1)}, 31, {v(VL)}\nv_lshl_add_u32 {v(HO)}, {v(T0+1)}, 4, {v(T0)}")
        for k in range(1, 4): p(f"v_xor_b32 {v(HO+k)}, {64*k}, {v(HO)}")
        for cp in range(2):
            for k in range(4):
                t = p.vmem(f"buffer_store_dwordx4 {v(OP+16*cp+4*k,4)}, {v(HO+k)}, {srd(SWS)}, s{SA if cp == 0 else SB_} offen offset:{512*k} sc1")
        self.wsp_read(0)
        p.wait(vm=t)
        p(f"s_lshl_b32 s{SA}, s{SE}, 2\ns_add_u32 s{SA}, s{SA}, {HF}")
        self.flag(SA, 88)
        self.stamp(5)

    def phase_g(self):
        p = self.p
        p.c("==== phase B: G ====")
        p.put(self.LG)
        p.vm_done = -1
        self.wsp_dma(1)
        ACC, FA, TR, VB, VC, T = 16, 112, 160, 162, 163, 164
        self.unit_tr_addr(TR, SREG, T, True)
        p(f"v_add_u32 {v(VB)}, 4096, {v(VL16)}\nv_cmp_gt_u32 vcc, 32, {v(VL)}\nv_mov_b32 {v(VC)}, {OOB}\nv_cndmask_b32 {v(VC)}, {v(VC)}, {v(VB)}, vcc")
        self.wsp_read(1)
        self.stamp(6)
        p(f"s_lshl_b32 s{SA}, s{SCOL}, 8\ns_add_u32 s{SA}, s{SA}, {ZF}\ns_lshl_b32 s{SB_}, s{SWV}, 6\ns_add_u32 s{SB_}, s{SB_}, s{SA}")
        p(f"s_and_b32 s{SD}, s{SWV}, 1\ns_lshl_b32 s{SC}, s{STB}, 1\ns_add_u32 s{SC}, s{SC}, s{SD}")
        p(f"s_lshl_b32 s{SD}, s{SC}, 2\ns_add_u32 s{SD}, s{SD}, s{SA}")
        self.spoll(SB_, 16, extra=SD)
        self.stamp(7)
        p(f"s_lshl_b32 s{SA}, s{SCOL}, 6\ns_lshl_b32 s{SB_}, s{SWV}, 4\ns_add_u32 s{SA}, s{SA}, s{SB_}\ns_mul_i32 s{SE}, s{SA}, 5632\ns_add_u32 s{SE}, s{SE}, {Z2N}")
        NS = 6
        tick = {}
        def dma(b):
            sl = b % NS; ops = []
            def f0():
                p(f"s_add_u32 s{SA}, s{SE}, {b*5632}\ns_add_u32 m0, s{SREG}, {sl*6144}")
                p.vmem(f"buffer_load_dwordx4 {v(VL16)}, {srd(SWS)}, s{SA} offen sc1 lds")
            ops.append(f0)
            for i in range(1, 4): ops.append(lambda i=i: p.vmem(f"buffer_load_dwordx4 {v(VL16)}, {srd(SWS)}, s{SA} offen offset:{i*1024} sc1 lds"))
            def f4():
                p(f"s_add_u32 m0, s{SREG}, {sl*6144+4096}")
                p.vmem(f"buffer_load_dwordx4 {v(VB)}, {srd(SWS)}, s{SA} offen sc1 lds")
            def f5(): tick[b] = p.vmem(f"buffer_load_dwordx4 {v(VC)}, {srd(SWS)}, s{SA} offen offset:1024 sc1 lds")
            return ops + [f4, f5]
        for b in range(NS):
            for op in dma(b): op()
        Z1R, BI = 172, 184
        p(f"s_lshl_b32 s{SA}, s{SCOL}, 6\ns_add_u32 s{SA}, s{SA}, s{SC}\ns_mul_i32 s{SA}, s{SA}, 5632\ns_lshr_b32 s{SB_}, s{SWV}, 1\ns_lshl_b32 s{SB_}, s{SB_}, 10")
        p(f"s_add_u32 s{SA}, s{SA}, s{SB_}\ns_add_u32 s{SA}, s{SA}, {Z1}\ns_add_u32 s{SB_}, s{SA}, 4096")
        PV = 185
        p(f"s_cmp_lt_u32 s{SCOL}, 7\ns_cselect_b32 s{SD}, 64, 32\ns_lshr_b32 s{SF}, s{SWV}, 1\ns_lshl_b32 s{SF}, s{SF}, 5\ns_sub_u32 s{SD}, s{SD}, s{SF}")
        p(f"v_cmp_gt_u32 vcc, s{SD}, {v(VL)}\nv_mov_b32 {v(PV)}, {OOB}\nv_cndmask_b32 {v(PV)}, {v(PV)}, {v(VL16)}, vcc")
        p.vmem(f"buffer_load_dwordx4 {v(Z1R,4)}, {v(VL16)}, {srd(SWS)}, s{SA} offen sc1")
        p.vmem(f"buffer_load_dwordx4 {v(Z1R+4,4)}, {v(VL16)}, {srd(SWS)}, s{SA} offen offset:2048 sc1")
        p.vmem(f"buffer_load_dwordx4 {v(Z1R+8,4)}, {v(PV)}, {srd(SWS)}, s{SB_} offen sc1")
        p(f"v_and_b32 {v(T)}, 31, {v(VL)}\ns_lshl_b32 s{SA}, s{SC}, 5\nv_add_lshl_u32 {v(T)}, {v(T)}, s{SA}, 1")
        tz = p.vmem(f"global_load_ushort {v(BI)}, {v(T)}, {sp(PBSP)}")
        rt = {}
        def reads(b):
            sl = b % NS; s = b & 1; ops = []
            for ks in range(2):
                for mt in range(3):
                    for a in range(2):
                        def ra(ks=ks, mt=mt, a=a):
                            if ks == 0 and mt == 0 and a == 0: p.wait(vm=tick[b])
                            rt[(b, ks, mt)] = p.lds(f"ds_read_b64_tr_b16 {v(FA+24*s+12*ks+4*mt+2*a,2)}, {v(TR+a)} offset:{sl*6144+mt*2048+ks*256}")
                        ops.append(ra)
            return ops
        def mfmas(b):
            s = b & 1; ops = []
            for ks in range(2):
                for mt in range(3):
                    for nt in range(2):
                        def m(ks=ks, mt=mt, nt=nt):
                            p.wait(lg=rt[(b, ks, mt)])
                            d = v(ACC + 16 * (2 * mt + nt), 16); kap = 2 * b + ks
                            p(f"v_mfma_f32_32x32x16_bf16 {d}, {v(FA+24*s+12*ks+4*mt,4)}, {ar((kap*2+nt)*4,4)}, {'0' if kap == 0 else d}")
                        ops.append(m)
            return ops
        for op in reads(0): op()
        for b in range(16):
            mm = mfmas(b)
            seq = merge(mm, reads(b + 1), 0, 8) if b + 1 < 16 else mm
            if b + NS < 16:
                d = dma(b + NS)
                d0 = d[0]
                def first(d0=d0, b=b):
                    p.wait(lg=rt[(b, 1, 2)]); d0()
                seq = merge(seq, [first] + d[1:], len(seq) // 2)
            for op in seq: op()
        self.stamp(8)
        WD = 186
        p(f"v_lshrrev_b32 {v(T)}, 3, {v(VL)}\nv_lshlrev_b32 {v(T)}, 10, {v(T)}")
        p(f"v_bfe_u32 {v(T+1)}, {v(VL)}, 4, 1\nv_lshlrev_b32 {v(T+1)}, 2, {v(T+1)}\nv_and_b32 {v(T+2)}, 7, {v(VL)}\nv_xor_b32 {v(T+1)}, {v(T+1)}, {v(T+2)}")
        p(f"v_lshl_add_u32 {v(WD)}, {v(T+1)}, 4, {v(T)}")
        for i in range(1, 4): p(f"v_add_u32 {v(WD+i)}, {i*7168}, {v(WD)}")
        p(f"s_mul_i32 s{SE}, s{SWV}, {176*1024}\ns_lshl_b32 s{SA}, s{SCOL}, 7\ns_add_u32 s{SE}, s{SE}, s{SA}")
        for i in range(22):
            if i % 4 == 0: p(f"s_add_u32 s{SA}, s{SE}, {i*8192}\ns_add_u32 m0, s{SREG}, {18432+i*1024}")
            two = p.vmem(f"buffer_load_dwordx4 {v(WD+i%4)}, {srd(SWOUT)}, s{SA} offen offset:{(i%4)*1024} lds")
        VW = T; VRD = T + 1
        p(f"v_add_u32 {v(VW)}, s{SREG}, {v(VL16)}")
        cases = [p.label(f"rw{w}") for w in range(4)]; rdone = p.label("rwd")
        OWN = 112
        for w in range(1, 4): p(f"s_cmp_eq_u32 s{SWV}, {w}\ns_cbranch_scc1 {cases[w]}")
        lg0 = p.lg
        for w in range(4):
            p.put(cases[w]); p.lg = lg0
            for o in range(4):
                nt, q = o & 1, o >> 1
                for mt in range(3):
                    r = ACC + 16 * (2 * mt + nt) + 8 * q
                    for hq in range(2):
                        if o == w:
                            p(f"v_pk_mov_b32 {v(OWN+8*mt+4*hq,2)}, {v(r+4*hq,2)}, {v(r+4*hq,2)} op_sel:[0,1]\nv_pk_mov_b32 {v(OWN+8*mt+4*hq+2,2)}, {v(r+4*hq+2,2)}, {v(r+4*hq+2,2)} op_sel:[0,1]")
                        else:
                            slot = ((o - w) & 3) - 1
                            p.lds(f"ds_write_b128 {v(VW)}, {v(r+4*hq,4)} offset:{slot*6144+(2*mt+hq)*1024}")
            if w < 3: p(f"s_branch {rdone}\ns_nop 15")
        p.put(rdone)
        p.wait_lg_all(); p("s_barrier")
        RB = 16
        for k in range(1, 4):
            p(f"s_sub_u32 s{SA}, s{SWV}, {k}\ns_and_b32 s{SA}, s{SA}, 3\ns_mul_i32 s{SA}, s{SA}, 40960\nv_add_u32 {v(VRD+k-1)}, s{SA}, {v(VL16)}")
        tk = {}
        def rr(k, i): tk[(k, i)] = p.lds(f"ds_read_b128 {v(RB+24*(k-1)+4*i,4)}, {v(VRD+k-1)} offset:{(k-1)*6144+i*1024}")
        for k in range(1, 3):
            for i in range(6): rr(k, i)
        for k in range(1, 4):
            for i in range(6):
                p.wait(lg=tk[(k, i)])
                if k == 1: rr(3, i)
                for hh in range(2): p(f"v_pk_add_f32 {v(OWN+4*i+2*hh,2)}, {v(OWN+4*i+2*hh,2)}, {v(RB+24*(k-1)+4*i+2*hh,2)}")
        p("s_barrier")
        self.stamp(9)
        self.two = two
        self.c_setup()
        self.y_dma(0)
        p.wait(vm=tz)
        PK = 16; ZU = 32
        p(f"v_lshlrev_b32 {v(BI)}, 16, {v(BI)}")
        for i in range(12): p(f"v_cvt_pk_bf16_f32 {v(PK+i)}, {v(OWN+2*i)}, {v(OWN+2*i+1)}")
        for i in range(12): self.unpack(OWN + 2 * i, PK + i)
        for i in range(12): p(f"v_pk_add_f32 {v(OWN+2*i,2)}, {v(OWN+2*i,2)}, {v(BI,2)} op_sel_hi:[1,0]")
        for i in range(12): p(f"v_cvt_pk_bf16_f32 {v(PK+i)}, {v(OWN+2*i)}, {v(OWN+2*i+1)}")
        for i in range(12): self.unpack(OWN + 2 * i, PK + i)
        for i in range(12): self.unpack(ZU + 2 * i, Z1R + i)
        for i in range(12): p(f"v_pk_mul_f32 {v(OWN+2*i,2)}, {v(OWN+2*i,2)}, {v(ZU+2*i,2)}")
        for i in range(12): p(f"v_cvt_pk_bf16_f32 {v(PK+i)}, {v(OWN+2*i)}, {v(OWN+2*i+1)}")
        p(f"s_mul_i32 s{SA}, s{SC}, 45056\ns_mul_i32 s{SB_}, s{SCOL}, 5632\ns_add_u32 s{SA}, s{SA}, s{SB_}\ns_lshr_b32 s{SB_}, s{SWV}, 1\ns_lshl_b32 s{SB_}, s{SB_}, 10")
        p(f"s_add_u32 s{SA}, s{SA}, s{SB_}\ns_add_u32 s{SA}, s{SA}, {PB}\ns_add_u32 s{SB_}, s{SA}, 4096")
        p.vmem(f"buffer_store_dwordx4 {v(PK,4)}, {v(VL16)}, {srd(SWS)}, s{SA} offen sc1")
        p.vmem(f"buffer_store_dwordx4 {v(PK+4,4)}, {v(VL16)}, {srd(SWS)}, s{SA} offen offset:2048 sc1")
        tp = p.vmem(f"buffer_store_dwordx4 {v(PK+8,4)}, {v(PV)}, {srd(SWS)}, s{SB_} offen sc1")
        WT_ = 136
        p(f"s_add_u32 s{SA}, s{SREG}, 18432")
        self.panel_tr_addr(WT_, SA, 140, False)
        p.wait(vm=two)
        for kap in range(11):
            for mt in range(2):
                for a in range(2):
                    p.lds(f"ds_read_b64_tr_b16 {ar((kap*2+mt)*4+2*a,2)}, {v(WT_+mt)} offset:{kap*2048+a*512}")
            p.wait(lg=p.lg - 8)
        p.wait(vm=tp)
        p(f"s_lshl_b32 s{SA}, s{STB}, 3\ns_add_u32 s{SA}, s{SA}, s{SCOL}\ns_lshl_b32 s{SA}, s{SA}, 2\ns_add_u32 s{SA}, s{SA}, s{SWV}\ns_lshl_b32 s{SA}, s{SA}, 2\ns_add_u32 s{SA}, s{SA}, {PF}")
        self.flag(SA, 140)
        p.wait_lg_all()
        self.stamp(10)

    def c_setup(self):
        p = self.p
        self.CD, self.CR, self.HT = 190, 194, 198
        self.plain_dma_addr(self.CD, 1024, 200)
        self.plain_read_addr(self.CR, SREG, 200)
        p(f"s_add_u32 s{SA}, s{SREG}, 8192")
        self.unit_tr_addr(self.HT, SA, 200, False)
        p(f"s_lshl_b32 s{SB_}, s{STB}, 6\ns_add_u32 s{SB_}, s{SB_}, {HF}")
        self.spoll(SB_, 16)
        p(f"s_lshl_b32 s{SK+10}, s{SCOL}, 16\ns_lshl_b32 s{SA}, s{SWV}, 8\ns_add_u32 s{SK+10}, s{SK+10}, s{SA}")
        p(f"s_lshl_b32 s{SK+11}, s{STB}, 17\ns_lshl_b32 s{SA}, s{SWV}, 15\ns_add_u32 s{SK+11}, s{SK+11}, s{SA}\ns_add_u32 s{SK+11}, s{SK+11}, {HB}")
        self.yt = {}
    def y_dma(self, s):
        p = self.p; sl = s & 1
        for hh in range(2):
            p(f"s_add_u32 s{SA}, s{SK+10}, {(s>>1)*128+hh*32768}\ns_add_u32 m0, s{SREG}, {sl*16384+hh*4096}")
            for i in range(4): p.vmem(f"buffer_load_dwordx4 {v(self.CD+i)}, {srd(SCIM if s & 1 else SCRE)}, s{SA} offen offset:{i*1024} lds")
        for hh in range(2):
            p(f"s_add_u32 s{SA}, s{SK+11}, {s*8192+hh*4096}\ns_add_u32 m0, s{SREG}, {sl*16384+8192+hh*4096}")
            for i in range(4): self.yt[s] = p.vmem(f"buffer_load_dwordx4 {v(VL16)}, {srd(SWS)}, s{SA} offen offset:{i*1024} sc1 lds")
    def phase_c(self):
        p = self.p
        p.c("==== phase C ====")
        YA, BA, F = 16, 80, 144
        XE, GE, DE = 204, 212, 216
        self.y_dma(1)
        T = 220
        p(f"v_lshrrev_b32 {v(T)}, 4, {v(VL)}\nv_and_b32 {v(T+1)}, 15, {v(VL)}")
        p(f"v_lshlrev_b32 {v(T+2)}, 10, {v(T)}\nv_lshl_add_u32 {v(T+2)}, {v(T+1)}, 3, {v(T+2)}")
        p(f"v_lshlrev_b32 {v(T+3)}, 2, {v(T)}\nv_lshlrev_b32 {v(T+4)}, 3, {v(T+1)}")
        OV = 218
        p(f"v_lshlrev_b32 {v(OV)}, 1, {v(T+2)}")
        p(f"s_lshl_b32 s{SC}, s{STB}, 6\ns_lshl_b32 s{SA}, s{SWV}, 4\ns_add_u32 s{SC}, s{SC}, s{SA}")
        p(f"s_lshl_b32 s{SD}, s{SC}, 10\ns_lshl_b32 s{SA}, s{SCOL}, 7\ns_add_u32 s{SD}, s{SD}, s{SA}")
        for gi in range(4):
            p(f"s_add_u32 s{SA}, s{SD}, {gi*4096}")
            p.vmem(f"buffer_load_dwordx2 {v(XE+2*gi,2)}, {v(T+2)}, {srd(SX)}, s{SA} offen")
        p(f"s_lshl_b32 s{SA}, s{SC}, 2\ns_add_u32 s{SA}, s{SA}, {GATE}")
        for gi in range(4): p.vmem(f"buffer_load_dword {v(GE+gi)}, {v(T+3)}, {srd(SWS)}, s{SA} offen offset:{gi*16} sc1")
        p(f"s_lshl_b32 s{SA}, s{SCOL}, 7\nv_add_u32 {v(T+4)}, s{SA}, {v(T+4)}")
        te = p.vmem(f"global_load_dwordx2 {v(DE,2)}, {v(T+4)}, {sp(PDSK)}")
        rt = {}
        def reads(n):
            s, ks = n // 4, n % 4; sl = s & 1; fs = F + 16 * (n & 1); ops = []
            for k in range(2):
                def ra(k=k):
                    if ks == 0 and k == 0: p.wait(vm=self.yt[s])
                    rt[(n, 'a', k)] = p.lds(f"ds_read_b128 {v(fs+4*k,4)}, {v(self.CR+ks)} offset:{sl*16384+k*4096}")
                ops.append(ra)
                for a in range(2):
                    def rb(k=k, a=a):
                        rt[(n, 'b', k)] = p.lds(f"ds_read_b64_tr_b16 {v(fs+8+4*k+2*a,2)}, {v(self.HT+a)} offset:{sl*16384+(ks>>1)*4096+k*2048+(ks&1)*256}")
                    ops.append(rb)
            return ops
        def mfmas(n):
            fs = F + 16 * (n & 1); ops = []
            for (mt, nt) in [(0, 0), (1, 0), (1, 1), (0, 1)]:
                def m(mt=mt, nt=nt):
                    p.wait(lg=max(rt[(n, 'a', mt)], rt[(n, 'b', nt)]))
                    d = v(YA + 16 * (2 * mt + nt), 16)
                    p(f"v_mfma_f32_32x32x16_bf16 {d}, {v(fs+4*mt,4)}, {v(fs+8+4*nt,4)}, {'0' if n == 0 else d}")
                ops.append(m)
            return ops
        PA = 96
        pt = {}
        for op in reads(0): op()
        for n in range(16):
            if n % 4 == 3 and n // 4 < 2:
                p.wait(lg=p.lg - 1)
                self.y_dma(n // 4 + 2)
                if n // 4 == 1:
                    self.stamp(11)
                    p(f"s_lshl_b32 s{SA}, s{STB}, 7\ns_lshl_b32 s{SB_}, s{SWV}, 5\ns_add_u32 s{SB_}, s{SB_}, s{SA}\ns_add_u32 s{SB_}, s{SB_}, {PF}")
                    self.spoll(SB_, 8)
                    self.stamp(12)
                    p(f"s_mul_i32 s{SE}, s{STB}, {2*45056}\ns_mul_i32 s{SA}, s{SWV}, {22*512}\ns_add_u32 s{SE}, s{SE}, s{SA}\ns_add_u32 s{SE}, s{SE}, {PB}")
                    for kap in range(11):
                        for nt in range(2):
                            if kap % 4 == 0: p(f"s_add_u32 s{SA if nt == 0 else SB_}, s{SE}, {nt*45056+kap*1024}")
                            pt[(kap, nt)] = p.vmem(f"buffer_load_dwordx4 {ar(PA+(kap*2+nt)*4,4)}, {v(VL16)}, {srd(SWS)}, s{SA if nt == 0 else SB_} offen offset:{(kap%4)*1024} sc1")
            seq = merge(mfmas(n), reads(n + 1), 0, 3) if n + 1 < 16 else mfmas(n)
            for op in seq: op()
        self.stamp(13)
        RW, RX = 176, 177
        p(f"v_and_b32 {v(RW)}, 31, {v(VL)}\nv_lshlrev_b32 {v(RW)}, 8, {v(RW)}\nv_add_u32 {v(RW)}, s{SREG}, {v(RW)}")
        p(f"v_lshrrev_b32 {v(RX)}, 5, {v(VL)}\nv_and_b32 {v(RX+1)}, 7, {v(VL)}\nv_xor_b32 {v(RX)}, {v(RX)}, {v(RX+1)}\nv_lshlrev_b32 {v(RX)}, 4, {v(RX)}")
        WA = 178
        for i in range(4): p(f"v_xor_b32 {v(WA+i)}, {32*i}, {v(RX)}\nv_add_u32 {v(WA+i)}, {v(WA+i)}, {v(RW)}")
        def redw(acc, base):
            ops = []
            for mt in range(2):
                for nt in range(2):
                    for i in range(4):
                        ops.append(lambda mt=mt, nt=nt, i=i: p.lds(f"ds_write_b128 {v(WA+i)}, {v(acc+16*(2*mt+nt)+4*i,4)} offset:{base+nt*8192+mt*128}"))
            return ops
        def bm(kap):
            ops = []
            for (mt, nt) in [(0, 0), (1, 0), (1, 1), (0, 1)]:
                def m(mt=mt, nt=nt):
                    p.wait(vm=pt[(kap, nt)])
                    d = v(BA + 16 * (2 * mt + nt), 16)
                    p(f"v_mfma_f32_32x32x16_bf16 {d}, {ar((kap*2+mt)*4,4)}, {ar(PA+(kap*2+nt)*4,4)}, {'0' if kap == 0 else d}")
                ops.append(m)
            return ops
        mm = []
        for kap in range(10): mm += bm(kap)
        for op in merge(mm, redw(YA, 0), 4, 36): op()
        sk = p.label("k10")
        p(f"s_cmp_eq_u32 s{SWV}, 3\ns_cbranch_scc1 {sk}")
        for op in bm(10): op()
        p.put(sk)
        p("s_nop 15")
        for op in redw(BA, 16384): op()
        p.wait_lg_all(); p("s_barrier")
        self.stamp(14)
        RA = 182
        p(f"v_lshrrev_b32 {v(T)}, 4, {v(VL)}\nv_and_b32 {v(T+1)}, 15, {v(VL)}\nv_xor_b32 {v(T+1)}, {v(T+1)}, {v(T)}\nv_lshlrev_b32 {v(T+1)}, 4, {v(T+1)}")
        p(f"v_lshlrev_b32 {v(T)}, 8, {v(T)}\ns_lshl_b32 s{SA}, s{SWV}, 12\nv_add_u32 {v(T)}, s{SA}, {v(T)}")
        p(f"v_add_u32 {v(RA)}, {v(T)}, {v(T+1)}\nv_xor_b32 {v(T+1)}, 64, {v(T+1)}\nv_add_u32 {v(RA+1)}, {v(T)}, {v(T+1)}")
        p(f"v_add_u32 {v(RA+2)}, 81920, {v(RA)}\nv_add_u32 {v(RA+3)}, 81920, {v(RA+1)}")
        tk = {}
        def R(gi, which, s): return 16 + 32 * gi + 16 * which + 4 * s
        for gi in range(4):
            for which in range(2):
                p.wait(lg=p.lg - 12)
                for s in range(4):
                    tk[(gi, which)] = p.lds(f"ds_read_b128 {v(R(gi,which,s),4)}, {v(RA+2*(s>>1)+(gi&1))} offset:{(s&1)*40960+which*16384+gi*1024}")
        p.wait(vm=te)
        DU = 224
        self.unpack(DU, DE); self.unpack(DU + 2, DE + 1)
        p(f"s_lshl_b32 s{SD}, s{SD}, 1")
        for gi in range(4):
            y, b = R(gi, 0, 0), R(gi, 1, 0)
            X, OM = 228, 232
            p.wait(lg=tk[(gi, 1)])
            for r in (y, b):
                for hh in (0, 2):
                    p(f"v_pk_add_f32 {v(r+hh,2)}, {v(r+hh,2)}, {v(r+4+hh,2)}\nv_pk_add_f32 {v(r+8+hh,2)}, {v(r+8+hh,2)}, {v(r+12+hh,2)}")
                for hh in (0, 2): p(f"v_pk_add_f32 {v(r+hh,2)}, {v(r+hh,2)}, {v(r+8+hh,2)}")
            p(f"v_sub_f32 {v(OM)}, 1.0, {v(GE+gi)}"); self.rnd(OM, OM)
            p(f"v_cvt_pk_bf16_f32 {v(b+4)}, {v(b)}, {v(b+1)}\nv_cvt_pk_bf16_f32 {v(b+5)}, {v(b+2)}, {v(b+3)}")
            self.unpack(X, XE + 2 * gi); self.unpack(X + 2, XE + 2 * gi + 1)
            self.unpack(b, b + 4); self.unpack(b + 2, b + 5)
            for hh in (0, 2): p(f"v_pk_mul_f32 {v(X+hh,2)}, {v(X+hh,2)}, {v(DU+hh,2)}")
            for hh in (0, 2): p(f"v_pk_mul_f32 {v(b+hh,2)}, {v(b+hh,2)}, {v(OM,2)} op_sel_hi:[1,0]")
            p(f"v_cvt_pk_bf16_f32 {v(b+6)}, {v(X)}, {v(X+1)}\nv_cvt_pk_bf16_f32 {v(b+7)}, {v(X+2)}, {v(X+3)}")
            p(f"v_cvt_pk_bf16_f32 {v(b+4)}, {v(b)}, {v(b+1)}\nv_cvt_pk_bf16_f32 {v(b+5)}, {v(b+2)}, {v(b+3)}")
            self.unpack(X, b + 6); self.unpack(X + 2, b + 7)
            self.unpack(b, b + 4); self.unpack(b + 2, b + 5)
            for hh in (0, 2): p(f"v_pk_add_f32 {v(y+hh,2)}, {v(y+hh,2)}, {v(X+hh,2)}")
            p(f"v_mov_b32 {v(OM)}, {v(GE+gi)}")
            for hh in (0, 2): p(f"v_pk_fma_f32 {v(y+hh,2)}, {v(y+hh,2)}, {v(OM,2)}, {v(b+hh,2)} op_sel_hi:[1,0,1]")
            p(f"s_add_u32 s{SA}, s{SD}, {gi*8192}")
            p.vmem(f"buffer_store_dwordx4 {v(y,4)}, {v(OV)}, {srd(SOUT)}, s{SA} offen")
        ne = p.label("ne")
        p(f"s_lshl_b32 s{SA}, s{STB}, 3\ns_add_u32 s{SA}, s{SA}, s{SCOL}\ns_lshl_b32 s{SA}, s{SA}, 2\ns_add_u32 s{SA}, s{SA}, s{SWV}")
        p(f"s_cmp_eq_u32 s{SA}, {255*4}\ns_cbranch_scc0 {ne}")
        p(f"s_mov_b32 s{SA}, {EPOCH}")
        self.flag(SA, 240)
        p.put(ne)
        if self.o.get("stamps"):
            self.stamp(15)
            p(f"s_memrealtime s[{SPOLL}:{SPOLL+1}]"); p.wait_lg_all()
            p(f"v_writelane_b32 v255, s{SPOLL}, 16")
            p(f"s_lshl_b32 s{SA}, s2, 2\ns_add_u32 s{SA}, s{SA}, s{SWV}\ns_lshl_b32 s{SA}, s{SA}, 8\ns_add_u32 s{SA}, s{SA}, {DBG}")
            p(f"v_lshlrev_b32 v254, 2, {v(VL)}")
            p.vmem(f"buffer_store_dword v255, v254, {srd(SWS)}, s{SA} offen")
        p.put(self.END)
        p("s_endpgm")

    def build(self):
        self.prologue()
        vm0, lg0 = self.p.vm, self.p.lg
        self.phase_z()
        self.p.vm_done = -1; self.p.lg_done = -1
        self.p("s_nop 15")
        self.phase_u()
        self.phase_g()
        self.phase_c()
        lines, added = hazard_pass(self.p.L)
        hdr = open("gated_mix__ssm_conv_s5__mixer_gmlp__prompt.s.ref").read().split("; Override")[0]
        s = hdr + "; @launch grid=(256,1,1) block=(256,1,1) lds=163840\n"
        s += '.amdgcn_target "amdgcn-amd-amdhsa--gfx950"\n.text\n'
        s += f".globl {NAME}\n.p2align 8\n.type {NAME},@function\n{NAME}:\n"
        s += "\n".join((l if l.endswith(":") else "    " + l) for l in lines) + "\n"
        s += f""".section .rodata,"a"
.p2align 6
.amdhsa_kernel {NAME}
  .amdhsa_next_free_vgpr 512
  .amdhsa_next_free_sgpr 102
  .amdhsa_accum_offset 256
  .amdhsa_group_segment_fixed_size 0
  .amdhsa_kernarg_size 144
  .amdhsa_user_sgpr_count 2
  .amdhsa_user_sgpr_kernarg_segment_ptr 1
  .amdhsa_system_sgpr_workgroup_id_x 1
  .amdhsa_float_denorm_mode_32 3
.end_amdhsa_kernel
"""
        return s, added

if __name__ == "__main__":
    out = sys.argv[1]
    opt = {}
    for a in sys.argv[2:]:
        k, _, val = a.partition("="); opt[k] = int(val) if val else 1
    s, added = G(opt).build()
    open(out, "w").write(s)
    print("wrote", out, "nops added", added, "lines", s.count("\n"))
```

```python
import sys, math
from core import *

NAME = "gated_mix__ssm_conv_s5__mixer_gmlp__prompt_kernel"
EPOCH = 0; ZF = 0x1000; HF = 0x2000; PF = 0x3000; GATE = 0x4000
ST = 0x10000; EG = 0x50000; DBG = 0x80000
Z2N = 0x100000; Z1 = 0x400000; PB = 0x700000; HB = 0xA00000; WS_END = 0xE00000
OOB = 0x80000000
SPIN = 200000
SX, SW1, SWSP, SWS, SCRE, SCIM, SWOUT, SOUT = 4, 8, 12, 16, 20, 24, 28, 32
PLRE, PLIM, PLDT, PDSK, PBSP, PGW, PBRE, PBIM, PWIN = 36, 38, 40, 42, 44, 46, 48, 50, 52
ST_T = 54
SWV, SRB, SCOL, STB = 56, 57, 58, 59
SA, SB_, SC, SD = 60, 61, 62, 63
SPOLL = 64
SK = 80
SREG = 96
SE, SF = 97, 98
SSPIN = 99
def srd(b): return f"s[{b}:{b+3}]"
def v(a, n=1): return f"v{a}" if n == 1 else f"v[{a}:{a+n-1}]"
def ar(a, n=1): return f"a{a}" if n == 1 else f"a[{a}:{a+n-1}]"
def sp(a): return f"s[{a}:{a+1}]"
VL, VL16 = 1, 2
LOG2E = 1.4426950408889634
def f2u(x):
    import struct; return struct.unpack("<I", struct.pack("<f", x))[0]

class G:
    def __init__(self, opt):
        self.o = opt
        self.p = Prog()
        self.nstamp = 0

    def stamp(self, k):
        if self.o.get("stamps"):
            p = self.p
            p(f"s_memrealtime s[{SPOLL}:{SPOLL+1}]"); p.wait_lg_all()
            p(f"v_writelane_b32 v255, s{SPOLL}, {k}")
    def spoll(self, off_sreg, n, vt, extra=None):
        p = self.p
        l = p.label("poll"); d = p.label("pd")
        p(f"v_lshl_add_u32 {v(vt)}, {v(VL)}, 2, s{off_sreg}")
        if extra is not None:
            p(f"v_writelane_b32 {v(vt)}, s{extra}, {n}"); n += 1
        p(f"s_mov_b32 s{SSPIN}, 0")
        p.put(l)
        p.vmem(f"buffer_load_dword {v(vt+1)}, {v(vt)}, {srd(SWS)}, 0 offen sc1")
        p.wait_vm_all()
        p(f"v_cmp_ne_u32 vcc, s{ST_T}, {v(vt+1)}\ns_and_b32 s{SF}, vcc_lo, {(1<<n)-1}\ns_cbranch_scc0 {d}")
        p(f"s_add_u32 s{SSPIN}, s{SSPIN}, 1\ns_cmp_lt_u32 s{SSPIN}, {SPIN}\ns_cbranch_scc1 {l}")
        p.put(d)
    def flag(self, off_sreg, vt):
        p = self.p
        p(f"v_mov_b32 {v(vt)}, s{ST_T}")
        p(f"v_cmp_eq_u32 vcc, 0, {v(VL)}")
        p(f"v_mov_b32 {v(vt+1)}, {OOB}")
        p(f"v_cndmask_b32 {v(vt+1)}, {v(vt+1)}, {v(VL)}, vcc")
        p.vmem(f"buffer_store_dword {v(vt)}, {v(vt+1)}, {srd(SWS)}, s{off_sreg} offen sc1")
    def xhalf_sum(self, a, t):
        p = self.p
        p(f"v_mov_b32 {v(t)}, {v(a)}\nv_permlane32_swap_b32 {v(a)}, {v(t)}\nv_add_f32 {v(a)}, {v(a)}, {v(t)}")
    def rnd(self, d, s):
        self.p(f"v_cvt_pk_bf16_f32 {v(d)}, {v(s)}, {v(s)}\nv_lshlrev_b32 {v(d)}, 16, {v(d)}")
    def unpack(self, d, s):
        self.p(f"v_and_b32 {v(d+1)}, 0xffff0000, {v(s)}\nv_lshlrev_b32 {v(d)}, 16, {v(s)}")
    def plain_read_addr(self, dst4, base_sreg, t):
        p = self.p
        p(f"v_and_b32 {v(t)}, 31, {v(VL)}\nv_lshlrev_b32 {v(t)}, 7, {v(t)}")
        if base_sreg is not None: p(f"v_add_u32 {v(t)}, s{base_sreg}, {v(t)}")
        p(f"v_bfe_u32 {v(t+1)}, {v(VL)}, 1, 3\nv_lshrrev_b32 {v(dst4)}, 5, {v(VL)}\nv_xor_b32 {v(t+1)}, {v(t+1)}, {v(dst4)}")
        p(f"v_lshlrev_b32 {v(t+1)}, 4, {v(t+1)}")
        for ks in range(4):
            p(f"v_xor_b32 {v(dst4+ks)}, {32*ks}, {v(t+1)}\nv_add_u32 {v(dst4+ks)}, {v(dst4+ks)}, {v(t)}")
    def plain_dma_addr(self, dst4, rowbytes, t, rowstep=8):
        p = self.p
        p(f"v_lshrrev_b32 {v(t)}, 3, {v(VL)}\nv_mul_u32_u24 {v(t)}, {rowbytes}, {v(t)}")
        self.plain_dma_addr2(dst4, t, t + 1, rowstep * rowbytes)
    def plain_dma_addr2(self, dst4, vrow, t, step):
        p = self.p
        p(f"v_and_b32 {v(t)}, 7, {v(VL)}\nv_lshrrev_b32 {v(dst4)}, 4, {v(VL)}\nv_xor_b32 {v(t)}, {v(t)}, {v(dst4)}\nv_lshlrev_b32 {v(t)}, 4, {v(t)}")
        p(f"v_add_u32 {v(dst4)}, {v(t)}, {v(vrow)}")
        p(f"v_xor_b32 {v(t)}, 64, {v(t)}\nv_add_u32 {v(dst4+1)}, {v(t)}, {v(vrow)}")
        p(f"v_add_u32 {v(dst4+2)}, {2*(step-1024)}, {v(dst4)}\nv_add_u32 {v(dst4+3)}, {3*(step-1024)}, {v(dst4+1)}\nv_add_u32 {v(dst4+1)}, {step-1024}, {v(dst4+1)}")
    def panel_tr_addr(self, dst2, base_sreg, t, perm):
        p = self.p
        p(f"v_lshrrev_b32 {v(t)}, 5, {v(VL)}\nv_lshlrev_b32 {v(t)}, 10, {v(t)}")
        p(f"v_bfe_u32 {v(t+1)}, {v(VL)}, 2, 2\nv_lshl_add_u32 {v(t)}, {v(t+1)}, 7, {v(t)}")
        p(f"v_bfe_u32 {v(t+1)}, {v(VL)}, 4, 1\nv_lshl_add_u32 {v(t)}, {v(t+1)}, 5, {v(t)}")
        if perm:
            p(f"v_and_b32 {v(t+1)}, 1, {v(VL)}\nv_lshl_add_u32 {v(t)}, {v(t+1)}, 4, {v(t)}")
            p(f"v_bfe_u32 {v(t+1)}, {v(VL)}, 1, 1\nv_lshl_add_u32 {v(t)}, {v(t+1)}, 3, {v(t)}")
        else:
            p(f"v_and_b32 {v(t+1)}, 3, {v(VL)}\nv_lshl_add_u32 {v(t)}, {v(t+1)}, 3, {v(t)}")
        p(f"v_bfe_u32 {v(t+1)}, {v(VL)}, 3, 1\nv_lshlrev_b32 {v(t+1)}, 6, {v(t+1)}")
        if base_sreg is not None: p(f"v_add_u32 {v(t)}, s{base_sreg}, {v(t)}")
        p(f"v_add_u32 {v(dst2)}, {v(t)}, {v(t+1)}\nv_xor_b32 {v(t+1)}, 64, {v(t+1)}\nv_add_u32 {v(dst2+1)}, {v(t)}, {v(t+1)}")
    def unit_tr_addr(self, dst2, base_sreg, t, perm):
        p = self.p
        p(f"v_bfe_u32 {v(t)}, {v(VL)}, 4, 1\nv_lshlrev_b32 {v(t)}, 1, {v(t)}")
        p(f"v_bfe_u32 {v(t+1)}, {v(VL)}, {0 if perm else 1}, 1\nv_or_b32 {v(t)}, {v(t)}, {v(t+1)}")
        p(f"v_lshrrev_b32 {v(t+1)}, 5, {v(VL)}\nv_lshlrev_b32 {v(t+1)}, 1, {v(t+1)}\nv_xor_b32 {v(t+1)}, {v(t+1)}, {v(t)}")
        p(f"v_lshlrev_b32 {v(t)}, 9, {v(t)}")
        p(f"v_bfe_u32 {v(t+2)}, {v(VL)}, 2, 2\nv_lshl_add_u32 {v(t)}, {v(t+2)}, 4, {v(t)}")
        p(f"v_bfe_u32 {v(t+2)}, {v(VL)}, {1 if perm else 0}, 1\nv_lshl_add_u32 {v(t)}, {v(t+2)}, 3, {v(t)}")
        if base_sreg is not None: p(f"v_add_u32 {v(t)}, s{base_sreg}, {v(t)}")
        p(f"v_lshl_add_u32 {v(dst2)}, {v(t+1)}, 6, {v(t)}")
        p(f"v_xor_b32 {v(t+1)}, 1, {v(t+1)}\nv_lshl_add_u32 {v(dst2+1)}, {v(t+1)}, 6, {v(t)}")

    def gemm_loop(self, nstage, sps, nslot, reads, mfmas, dma, tick, rfront):
        p = self.p
        p.wait(vm=tick[0]); p("s_barrier")
        if self.o.get("stamps", 0) > 1: self.stamp(20)
        for op in reads(0): op()
        pend = []
        ns = nstage * sps
        for n in range(ns):
            rd = []
            if n + 1 < ns:
                if (n + 1) % sps == 0:
                    st = (n + 1) // sps
                    p.wait(vm=tick[st], lg=p.lg - 1); p("s_barrier")
                    if self.o.get("stamps", 0) > 1: self.stamp(20 + st)
                    if st - 1 + nslot < nstage:
                        d = dma(st - 1 + nslot)
                        q = (len(d) + sps - 1) // sps
                        pend = [d[i * q:(i + 1) * q] for i in range(sps)]
                rd = reads(n + 1)
            mm = mfmas(n)
            seq = merge(mm, rd, 0, rfront)
            if pend:
                dd = pend.pop(0)
                seq = merge(seq, dd, len(seq) // 2)
            for op in seq: op()

    def gelu_pair(self, a, t, out_packed=None):
        p = self.p
        p(f"v_cvt_pk_bf16_f32 {v(t)}, {v(a)}, {v(a+1)}")
        self.unpack(a, t)
        p(f"v_pk_mul_f32 {v(t,2)}, {v(a,2)}, {v(a,2)}")
        p(f"v_pk_fma_f32 {v(t,2)}, {v(t,2)}, {sp(SK)}, {v(self.VC0,2)} op_sel_hi:[1,0,0]")
        p(f"v_pk_mul_f32 {v(t,2)}, {v(t,2)}, {v(a,2)}")
        p(f"v_exp_f32 {v(t)}, {v(t)}\nv_exp_f32 {v(t+1)}, {v(t+1)}")
        p(f"v_pk_add_f32 {v(t,2)}, {v(t,2)}, 1.0 op_sel_hi:[1,0]")
        p(f"v_rcp_f32 {v(t)}, {v(t)}\nv_rcp_f32 {v(t+1)}, {v(t+1)}")
        p(f"v_pk_mul_f32 {v(t,2)}, {v(t,2)}, {v(a,2)}")
        if out_packed is not None:
            p(f"v_cvt_pk_bf16_f32 {v(out_packed)}, {v(t)}, {v(t+1)}")
        else:
            p(f"v_cvt_pk_bf16_f32 {v(t)}, {v(t)}, {v(t+1)}")
            self.unpack(a, t)
    def gelu_many(self, pairs, temps, outs=None):
        p = self.p
        ng = len(temps)
        for g0 in range(0, len(pairs), ng):
            grp = list(range(g0, min(g0 + ng, len(pairs))))
            streams = []
            for k, i in enumerate(grp):
                sub = Prog(); save = self.p; self.p = sub
                self.gelu_pair(pairs[i], temps[k], None if outs is None else outs[i])
                self.p = save
                streams.append(sub.L)
            for j in range(len(streams[0])):
                for s in streams: p(s[j])

    def wsp_setup(self, VD, VR, t):
        p = self.p
        self.plain_dma_addr(VD, 4096, t)
        self.plain_read_addr(VR, SREG, t)
        self.VWD, self.VWR = VD, VR
    def wsp_dma(self, batch):
        p = self.p
        p(f"s_lshl_b32 s{SA}, s{STB}, 18\ns_lshl_b32 s{SB_}, s{SWV}, 10\ns_add_u32 s{SA}, s{SA}, s{SB_}")
        t = None
        for s4 in range(4):
            st = batch * 4 + s4
            for hh in range(2):
                p(f"s_add_u32 s{SB_}, s{SA}, {st*128 + hh*131072}")
                p(f"s_add_u32 m0, s{SREG}, {s4*8192 + hh*4096}")
                for i in range(4):
                    t = p.vmem(f"buffer_load_dwordx4 {v(self.VWD+i)}, {srd(SWSP)}, s{SB_} offen offset:{i*1024} lds")
            self.wsp_t = getattr(self, "wsp_t", {}); self.wsp_t[st] = t
    def wsp_read(self, batch):
        p = self.p
        for s4 in range(4):
            st = batch * 4 + s4
            p.wait(vm=self.wsp_t[st])
            for ks in range(4):
                for nt in range(2):
                    kap = st * 4 + ks
                    p.lds(f"ds_read_b128 {ar((kap*2+nt)*4,4)}, {v(self.VWR+ks)} offset:{s4*8192+nt*4096}")
            p.wait(lg=p.lg - 8)
        p.wait_lg_all()

    def prologue(self):
        p = self.p
        self.END = p.label("end")
        p(f"s_cmp_ge_u32 s2, 256\ns_cbranch_scc1 {self.END}")
        for (r, off) in [(SX, 0), (PWIN, 80), (SWS, 136), (SWSP, 88), (SCRE, 40), (SCIM, 48), (SWOUT, 104), (SOUT, 120),
                         (PLDT, 56), (PDSK, 64), (PBSP, 96), (PGW, 112)]:
            p(f"s_load_dwordx2 {sp(r)}, s[0:1], {off}")
        p(f"s_load_dwordx4 s[{PBRE}:{PBRE+3}], s[0:1], 24")
        p(f"s_load_dwordx4 s[{PLRE}:{PLRE+3}], s[0:1], 8")
        p(f"v_lshrrev_b32 v2, 6, v0\nv_and_b32 {v(VL)}, 63, v0\nv_readfirstlane_b32 s{SWV}, v2\nv_lshlrev_b32 {v(VL16)}, 4, {v(VL)}")
        if self.o.get("stamps"):
            p("v_mov_b32 v255, 0")
            self.stamp(17)
        p(f"s_and_b32 s{SA}, s2, 7\ns_lshr_b32 s{SB_}, s2, 3")
        p(f"s_and_b32 s{SC}, s{SA}, 1\ns_lshl_b32 s{SC}, s{SC}, 2\ns_and_b32 s{SD}, s{SB_}, 3\ns_add_u32 s{SCOL}, s{SC}, s{SD}")
        p(f"s_lshr_b32 s{SA}, s{SA}, 1")
        p(f"s_lshr_b32 s{SC}, s{SB_}, 2\ns_lshl_b32 s{SD}, s{SA}, 3\ns_add_u32 s{STB}, s{SD}, s{SC}")
        p(f"s_and_b32 s{SC}, s{SC}, 3\ns_lshl_b32 s{SD}, s{SA}, 2\ns_add_u32 s{SRB}, s{SD}, s{SC}")
        p(f"s_mul_i32 s{SREG}, s{SWV}, 40960")
        for (r, n) in [(SX, 2097152), (SWSP, 8388608), (SWS, WS_END), (SCRE, 524288), (SCIM, 524288), (SWOUT, 704512), (SOUT, 4194304)]:
            p(f"s_mov_b32 s{r+2}, {n}\ns_mov_b32 s{r+3}, 0x20000")
        p(f"s_mov_b32 s{SW1+3}, 0x20000")
        self.LU = p.label("U"); self.LG = p.label("G")
        p(f"s_cmp_ge_u32 s{SB_}, 16\ns_cbranch_scc1 {self.LU}")
    def epoch(self):
        p = self.p
        p(f"s_load_dword s{ST_T}, {sp(SWS)}, {EPOCH}")
    def epoch2(self):
        p = self.p
        p.wait_lg_all()
        p(f"s_mul_i32 s{ST_T}, s{ST_T}, 0x9E3779B1\ns_add_u32 s{ST_T}, s{ST_T}, 0x7F4A7C15\ns_mov_b32 s{ST_T+1}, s{ST_T}")

    def phase_z(self):
        p = self.p
        ACC, FA, FB, XR, WR, XD, WD, T = 16, 112, 160, 168, 172, 176, 180, 186
        p.c("==== phase A: Z ====")
        self.plain_dma_addr(XD, 1024, T)
        p(f"v_lshrrev_b32 {v(T)}, 3, {v(VL)}\nv_mul_u32_u24 {v(T)}, 2752, {v(T)}")
        p(f"v_bfe_u32 {v(T+1)}, {v(VL)}, 4, 1\nv_lshlrev_b32 {v(T+1)}, 2, {v(T+1)}\nv_and_b32 {v(T+2)}, 7, {v(VL)}\nv_xor_b32 {v(T+1)}, {v(T+1)}, {v(T+2)}")
        p(f"v_lshl_add_u32 {v(T)}, {v(T+1)}, 4, {v(T)}")
        p(f"v_add_u32 {v(WD)}, 1376, {v(T)}\nv_add_u32 {v(WD+4)}, 64, {v(T)}")
        p(f"v_cmp_gt_u32 vcc, 4, {v(T+1)}\nv_add_u32 {v(T+2)}, {1376+128}, {v(T)}\nv_subrev_u32 {v(T+3)}, 64, {v(T)}")
        p(f"v_cndmask_b32 {v(WD+2)}, {v(T+3)}, {v(T+2)}, vcc")
        for pi in range(3): p(f"v_add_u32 {v(WD+2*pi+1)}, {8*2752-1024}, {v(WD+2*pi)}")
        p(f"s_lshl_b32 s{SC}, s{SRB}, 17\ns_lshl_b32 s{SA}, s{SWV}, 15\ns_add_u32 s{SC}, s{SC}, s{SA}")
        p(f"s_mul_i32 s{SD}, s{SWV}, {16*2752}\ns_mul_i32 s{SA}, s{SCOL}, 176\ns_add_u32 s{SD}, s{SD}, s{SA}")
        p(f"s_lshl_b32 s{SE}, s{SWV}, 12\ns_lshl_b32 s{SF}, s{SWV}, 11\ns_add_u32 s{SF}, s{SF}, 65536")
        p.wait_lg_all()
        p(f"s_mov_b32 s{SW1}, s{PWIN}\ns_mov_b32 s{SW1+1}, s{PWIN+1}\ns_mov_b32 s{SW1+2}, {512*2752}")
        tick = {}
        def dma(st):
            sl = st & 3; ops = []
            def x0():
                p(f"s_add_u32 s{SA}, s{SC}, {st*128}\ns_add_u32 m0, s{SE}, {sl*16384}")
                p.vmem(f"buffer_load_dwordx4 {v(XD)}, {srd(SX)}, s{SA} offen lds")
            ops.append(x0)
            for i in range(1, 4):
                ops.append(lambda i=i: p.vmem(f"buffer_load_dwordx4 {v(XD+i)}, {srd(SX)}, s{SA} offen offset:{i*1024} lds"))
            for pi in range(3):
                def w0(pi=pi):
                    if pi == 0: p(f"s_add_u32 s{SB_}, s{SD}, {st*64*2752}")
                    p(f"s_add_u32 m0, s{SF}, {sl*24576+pi*8192}")
                    p.vmem(f"buffer_load_dwordx4 {v(WD+2*pi)}, {srd(SW1)}, s{SB_} offen lds")
                def w1(pi=pi):
                    tick[st] = p.vmem(f"buffer_load_dwordx4 {v(WD+2*pi+1)}, {srd(SW1)}, s{SB_} offen offset:1024 lds")
                ops += [w0, w1]
            return ops
        for st in range(4):
            for op in dma(st): op()
        self.epoch()
        self.stamp(0)
        self.plain_read_addr(XR, SE, T)
        self.panel_tr_addr(WR, None, T, True)
        p(f"v_add_u32 {v(WR+2)}, {65536+49152}, {v(WR)}\nv_add_u32 {v(WR+3)}, {65536+49152}, {v(WR+1)}")
        p(f"v_add_u32 {v(WR)}, 65536, {v(WR)}\nv_add_u32 {v(WR+1)}, 65536, {v(WR+1)}")
        self.wsp_setup(200, 204, T)
        self.VC0 = 208
        c1 = -2 * LOG2E * 0.7978845608028654
        p(f"s_mov_b32 s{SK}, {f2u(c1*0.044715)}\nv_mov_b32 {v(self.VC0)}, {f2u(c1)}")
        self.epoch2()
        rt = {}
        def reads(n):
            st, ks = n // 4, n % 4; sl = st & 3; s = n & 1; ops = []
            def rb(): rt[(n, 'b')] = p.lds(f"ds_read_b128 {v(FB+4*s,4)}, {v(XR+ks)} offset:{sl*16384}")
            ops.append(rb)
            for mt in range(6):
                for a in range(2):
                    def ra(mt=mt, a=a):
                        rt[(n, mt)] = p.lds(f"ds_read_b64_tr_b16 {v(FA+24*s+4*mt+2*a,2)}, {v(WR+2*(sl>>1)+(mt&1))} offset:{(sl&1)*24576+(mt>>1)*8192+ks*2048+a*512}")
                    ops.append(ra)
            return ops
        def mfmas(n):
            s = n & 1; ops = []
            for mt in range(6):
                def m(mt=mt):
                    p.wait(lg=rt[(n, mt)])
                    c = "0" if n == 0 else v(ACC + 16 * mt, 16)
                    p(f"v_mfma_f32_32x32x16_bf16 {v(ACC+16*mt,16)}, {v(FA+24*s+4*mt,4)}, {v(FB+4*s,4)}, {c}")
                ops.append(m)
            return ops
        self.gemm_loop(8, 4, 4, reads, mfmas, dma, tick, 4)
        self.stamp(1)
        p("s_barrier")
        self.wsp_dma(0)
        TT = [112, 116, 120, 124]
        self.gelu_many([ACC + 2 * i for i in range(24)], TT)
        MA, MB = SK + 2, SK + 4
        p(f"s_cmp_lt_u32 s{SCOL}, 7")
        p(f"s_mov_b32 s{MA}, -1\ns_cselect_b32 s{MA+1}, -1, 0\ns_cselect_b32 s{MB}, -1, 0\ns_mov_b32 s{MB+1}, 0")
        p(f"s_mov_b32 s{SK+6}, {f2u(1/72)}\ns_cselect_b32 s{SK+6}, {f2u(1/88)}, s{SK+6}")
        S0, S1, MU = 112, 114, 116
        p(f"v_pk_add_f32 {v(S0,2)}, {v(ACC,2)}, {v(ACC+2,2)}\nv_pk_add_f32 {v(S1,2)}, {v(ACC+4,2)}, {v(ACC+6,2)}")
        for i in range(4, 16):
            s = S0 if i % 2 == 0 else S1
            p(f"v_pk_add_f32 {v(s,2)}, {v(s,2)}, {v(ACC+2*i,2)}")
        for (m, b) in [(MA, 16), (MB, 20)]:
            p(f"s_mov_b64 exec, {sp(m)}")
            for i in range(b, b + 4):
                s = S0 if i % 2 == 0 else S1
                p(f"v_pk_add_f32 {v(s,2)}, {v(s,2)}, {v(ACC+2*i,2)}")
        p("s_mov_b64 exec, -1")
        GR = 120
        p(f"v_pk_add_f32 {v(S0,2)}, {v(S0,2)}, {v(S1,2)}\nv_add_f32 {v(GR)}, {v(S0)}, {v(S0+1)}")
        self.xhalf_sum(GR, S0)
        p(f"v_mul_f32 {v(MU)}, s{SK+6}, {v(GR)}")
        D0, D1 = 124, 126
        p(f"v_mov_b32 {v(S0)}, 0\nv_mov_b32 {v(S0+1)}, 0\nv_mov_b32 {v(S1)}, 0\nv_mov_b32 {v(S1+1)}, 0")
        def m2(i):
            d = D0 if i % 2 == 0 else D1; s = S0 if i % 2 == 0 else S1
            p(f"v_pk_add_f32 {v(d,2)}, {v(ACC+2*i,2)}, {v(MU,2)} op_sel_hi:[1,0] neg_lo:[0,1] neg_hi:[0,1]")
            p(f"v_pk_fma_f32 {v(s,2)}, {v(d,2)}, {v(d,2)}, {v(s,2)}")
        for i in range(16): m2(i)
        for (m, b) in [(MA, 16), (MB, 20)]:
            p(f"s_mov_b64 exec, {sp(m)}")
            for i in range(b, b + 4): m2(i)
        p("s_mov_b64 exec, -1")
        p(f"v_pk_add_f32 {v(S0,2)}, {v(S0,2)}, {v(S1,2)}\nv_add_f32 {v(GR+2)}, {v(S0)}, {v(S0+1)}")
        self.xhalf_sum(GR + 2, S0)
        p(f"v_mov_b32 {v(GR+1)}, s{ST_T}\nv_mov_b32 {v(GR+3)}, s{ST_T}")
        VLO = 128
        p(f"v_cmp_gt_u32 vcc, 32, {v(VL)}\nv_mov_b32 {v(VLO)}, {OOB}\nv_cndmask_b32 {v(VLO)}, {v(VLO)}, {v(VL16)}, vcc")
        p(f"s_lshl_b32 s{SC}, s{SRB}, 2\ns_add_u32 s{SC}, s{SC}, s{SWV}")
        p(f"s_lshl_b32 s{SD}, s{SC}, 12\ns_add_u32 s{SD}, s{SD}, {ST}\ns_lshl_b32 s{SA}, s{SCOL}, 9\ns_add_u32 s{SA}, s{SA}, s{SD}")
        p.vmem(f"buffer_store_dwordx4 {v(GR,4)}, {v(VLO)}, {srd(SWS)}, s{SA} offen sc1")
        self.stamp(2)
        Z1P = 132
        self.gelu_many([ACC + 48 + 2 * i for i in range(24)], [112, 116, 156, 160], [Z1P + i for i in range(24)])
        p(f"s_lshl_b32 s{SA}, s{SCOL}, 6\ns_add_u32 s{SA}, s{SA}, s{SC}\ns_mul_i32 s{SE}, s{SA}, 5632")
        p(f"s_add_u32 s{SA}, s{SE}, {Z1}\ns_add_u32 s{SB_}, s{SA}, 4096")
        VA_, VB_ = 112, 113
        p(f"v_mov_b32 {v(114)}, {OOB}")
        p(f"v_cndmask_b32 {v(VA_)}, {v(114)}, {v(VL16)}, {sp(MA)}\nv_cndmask_b32 {v(VB_)}, {v(114)}, {v(VL16)}, {sp(MB)}")
        for mt in range(3):
            for q in range(2):
                r = v(Z1P + 8 * mt + 4 * q, 4)
                if mt < 2: p.vmem(f"buffer_store_dwordx4 {r}, {v(VL16)}, {srd(SWS)}, s{SA} offen offset:{mt*2048+q*1024} sc1")
                else: p.vmem(f"buffer_store_dwordx4 {r}, {v(VA_+q)}, {srd(SWS)}, s{SB_} offen offset:{q*1024} sc1")
        self.stamp(3)
        SG = 64 + 16
        SG = 64
        l = p.label("sp"); d = p.label("sd")
        p(f"s_mov_b32 s{SSPIN}, 0")
        p.put(l)
        for q in range(4):
            p.vmem(f"buffer_load_dwordx4 {v(SG+4*q,4)}, {v(VL16)}, {srd(SWS)}, s{SD} offen offset:{q*1024} sc1")
        p.wait_vm_all()
        p(f"v_xor_b32 {v(80)}, s{ST_T}, {v(SG+1)}")
        for r in [3, 5, 7, 9, 11, 13, 15]:
            p(f"v_xor_b32 {v(81)}, s{ST_T}, {v(SG+r)}\nv_or_b32 {v(80)}, {v(80)}, {v(81)}")
        p(f"v_cmp_ne_u32 vcc, 0, {v(80)}\ns_cmp_eq_u64 vcc, 0\ns_cbranch_scc1 {d}")
        p(f"s_add_u32 s{SSPIN}, s{SSPIN}, 1\ns_cmp_lt_u32 s{SSPIN}, {SPIN}\ns_cbranch_scc1 {l}")
        p.put(d)
        self.stamp(4)
        MN, VR, N3, I3, TM = 80, 81, 82, 83, 84
        p(f"v_add_f32 {v(MN)}, {v(SG)}, {v(SG+4)}\nv_add_f32 {v(TM)}, {v(SG+8)}, {v(SG+12)}\nv_add_f32 {v(MN)}, {v(MN)}, {v(TM)}")
        self.xhalf_sum(MN, TM)
        p(f"v_mul_f32 {v(MN)}, {f2u(1/688)}, {v(MN)}")
        p(f"v_cmp_gt_u32 vcc, 32, {v(VL)}\nv_mov_b32 {v(N3)}, {f2u(72.0)}\nv_mov_b32 {v(TM)}, {f2u(88.0)}\nv_cndmask_b32 {v(N3)}, {v(N3)}, {v(TM)}, vcc")
        p(f"v_mov_b32 {v(I3)}, {f2u(1/72)}\nv_mov_b32 {v(TM+1)}, {f2u(1/88)}\nv_cndmask_b32 {v(I3)}, {v(I3)}, {v(TM+1)}, vcc")
        p(f"v_add_f32 {v(VR)}, {v(SG+2)}, {v(SG+6)}\nv_add_f32 {v(TM+2)}, {v(SG+10)}, {v(SG+14)}\nv_add_f32 {v(VR)}, {v(VR)}, {v(TM+2)}")
        for q in range(4):
            n_, i_ = (TM, TM + 1) if q < 3 else (N3, I3)
            p(f"v_fma_f32 {v(TM+2)}, {v(SG+4*q)}, {v(i_)}, -{v(MN)}\nv_mul_f32 {v(TM+2)}, {v(TM+2)}, {v(TM+2)}\nv_fmac_f32 {v(VR)}, {v(TM+2)}, {v(n_)}")
        self.xhalf_sum(VR, TM)
        p(f"v_mul_f32 {v(VR)}, {f2u(1/688)}, {v(VR)}")
        self.rnd(MN, MN); self.rnd(VR, VR)
        p(f"v_add_f32 {v(VR)}, {f2u(1e-5)}, {v(VR)}"); self.rnd(VR, VR)
        p(f"v_sqrt_f32 {v(VR)}, {v(VR)}"); self.rnd(VR, VR)
        p(f"v_rcp_f32 {v(VR)}, {v(VR)}")
        ZP = 132
        for i in range(24):
            a = ACC + 2 * i
            p(f"v_pk_add_f32 {v(a,2)}, {v(a,2)}, {v(MN,2)} op_sel_hi:[1,0] neg_lo:[0,1] neg_hi:[0,1]")
        if self.o.get("ln_round", 1):
            for i in range(24): p(f"v_cvt_pk_bf16_f32 {v(ZP+i)}, {v(ACC+2*i)}, {v(ACC+2*i+1)}")
            for i in range(24): self.unpack(ACC + 2 * i, ZP + i)
        for i in range(24):
            a = ACC + 2 * i
            p(f"v_pk_mul_f32 {v(a,2)}, {v(a,2)}, {v(MN,2)} op_sel:[0,1] op_sel_hi:[1,1]")
        for i in range(24): p(f"v_cvt_pk_bf16_f32 {v(ZP+i)}, {v(ACC+2*i)}, {v(ACC+2*i+1)}")
        Q0, Q1, QA, QB = 84, 85, 86, 87
        p(f"v_lshrrev_b32 {v(Q1)}, 5, {v(VL)}\nv_lshlrev_b32 {v(Q1)}, 6, {v(Q1)}\nv_xor_b32 {v(Q0)}, {v(VL16)}, {v(Q1)}\nv_xor_b32 {v(Q1)}, 128, {v(Q0)}")
        p(f"v_cndmask_b32 {v(QA)}, {v(114)}, {v(Q0)}, {sp(MA)}\nv_cndmask_b32 {v(QB)}, {v(114)}, {v(Q1)}, {sp(MB)}")
        p(f"s_add_u32 s{SA}, s{SE}, {Z2N}\ns_add_u32 s{SB_}, s{SA}, 4096")
        for mt in range(3):
            for q in range(2):
                r = v(ZP + 8 * mt + 4 * q, 4)
                if mt < 2: t = p.vmem(f"buffer_store_dwordx4 {r}, {v(Q0+q)}, {srd(SWS)}, s{SA} offen offset:{mt*2048+q*1024} sc1")
                else: t = p.vmem(f"buffer_store_dwordx4 {r}, {v(QA+q)}, {srd(SWS)}, s{SB_} offen offset:{q*1024} sc1")
        self.wsp_read(0)
        p.wait(vm=t)
        p(f"s_lshl_b32 s{SA}, s{SCOL}, 6\ns_add_u32 s{SA}, s{SA}, s{SC}\ns_lshl_b32 s{SA}, s{SA}, 2\ns_add_u32 s{SA}, s{SA}, {ZF}")
        self.flag(SA, 88)
        self.stamp(5)
        p(f"s_branch {self.LG}")

    def phase_u(self):
        p = self.p
        ACC, FA, FB, XR, BR, XD, BD, T = 16, 80, 96, 112, 116, 120, 124, 128
        p.c("==== phase A: U ====")
        p.put(self.LU)
        p(f"v_lshrrev_b32 {v(T)}, 5, {v(VL)}\nv_lshlrev_b32 {v(T)}, 15, {v(T)}")
        p(f"v_bfe_u32 {v(T+1)}, {v(VL)}, 3, 1\nv_lshl_add_u32 {v(T)}, {v(T+1)}, 14, {v(T)}")
        p(f"v_bfe_u32 {v(T+1)}, {v(VL)}, 4, 1\nv_lshl_add_u32 {v(T)}, {v(T+1)}, 10, {v(T)}")
        self.plain_dma_addr2(XD, T, T + 1, 2048)
        self.plain_dma_addr(BD, 1024, T)
        p(f"s_lshr_b32 s{SA}, s{SWV}, 1\ns_and_b32 s{SB_}, s{SWV}, 1")
        p(f"s_lshl_b32 s{SC}, s{SRB}, 17\ns_lshl_b32 s{SD}, s{SA}, 16\ns_add_u32 s{SC}, s{SC}, s{SD}\ns_lshl_b32 s{SD}, s{SB_}, 13\ns_add_u32 s{SC}, s{SC}, s{SD}")
        p(f"s_lshl_b32 s{SD}, s{SCOL}, 16\ns_lshl_b32 s{SE}, s{SB_}, 15\ns_add_u32 s{SD}, s{SD}, s{SE}")
        p(f"s_lshl_b32 s{SE}, s{SWV}, 12")
        p.wait_lg_all()
        p(f"s_cmp_eq_u32 s{SA}, 0\ns_cselect_b32 s{SW1}, s{PBRE}, s{PBIM}\ns_cselect_b32 s{SW1+1}, s{PBRE+1}, s{PBIM+1}\ns_mov_b32 s{SW1+2}, 524288")
        tick = {}
        def dma(st):
            sl = st & 3; ops = []
            for (vd, sr, sb, lb) in [(XD, SX, SC, 0), (BD, SW1, SD, 65536)]:
                def f0(vd=vd, sr=sr, sb=sb, lb=lb):
                    p(f"s_add_u32 s{SA}, s{sb}, {st*128}\ns_add_u32 m0, s{SE}, {lb+sl*16384}")
                    p.vmem(f"buffer_load_dwordx4 {v(vd)}, {srd(sr)}, s{SA} offen lds")
                ops.append(f0)
                for i in range(1, 4):
                    def f(i=i, vd=vd, sr=sr):
                        tick[st] = p.vmem(f"buffer_load_dwordx4 {v(vd+i)}, {srd(sr)}, s{SA} offen offset:{i*1024} lds")
                    ops.append(f)
            return ops
        for st in range(4):
            for op in dma(st): op()
        self.epoch()
        self.stamp(0)
        WT, WP = SK + 8, SK + 9
        p(f"s_and_b32 s{WT}, s{SWV}, 1\ns_lshr_b32 s{WP}, s{SWV}, 1")
        PR = 140
        p(f"s_lshl_b32 s{SA}, s{SCOL}, 6\ns_lshl_b32 s{SB_}, s{WP}, 5\ns_add_u32 s{SA}, s{SA}, s{SB_}")
        p(f"v_and_b32 {v(T)}, 31, {v(VL)}\nv_add_u32 {v(T)}, s{SA}, {v(T)}\nv_lshlrev_b32 {v(T)}, 1, {v(T)}")
        p.vmem(f"global_load_ushort {v(PR)}, {v(T)}, {sp(PLRE)}")
        p.vmem(f"global_load_ushort {v(PR+1)}, {v(T)}, {sp(PLIM)}")
        tp = p.vmem(f"global_load_ushort {v(PR+2)}, {v(T)}, {sp(PLDT)}")
        p(f"s_lshl_b32 s{SA}, s{WT}, 13")
        self.plain_read_addr(XR, SA, T)
        p(f"s_lshl_b32 s{SA}, s{WP}, 12\ns_add_u32 s{SA}, s{SA}, 65536")
        self.plain_read_addr(BR, SA, T)
        self.wsp_setup(200, 204, T)
        self.epoch2()
        rt = {}
        def reads(n):
            st, ks = n // 4, n % 4; sl = st & 3; s = n & 1; ops = []
            for k in range(2):
                def ra(k=k): rt[(n, 'a', k)] = p.lds(f"ds_read_b128 {v(FA+8*s+4*k,4)}, {v(XR+ks)} offset:{sl*16384+k*4096}")
                def rb(k=k): rt[(n, 'b', k)] = p.lds(f"ds_read_b128 {v(FB+8*s+4*k,4)}, {v(BR+ks)} offset:{sl*16384+k*8192}")
                ops += [ra, rb]
            return ops
        def mfmas(n):
            s = n & 1; ops = []
            for (mt, cp) in [(0, 0), (1, 0), (1, 1), (0, 1)]:
                def m(mt=mt, cp=cp):
                    p.wait(lg=max(rt[(n, 'a', mt)], rt[(n, 'b', cp)]))
                    d = v(ACC + 32 * mt + 16 * cp, 16)
                    p(f"v_mfma_f32_32x32x16_bf16 {d}, {v(FA+8*s+4*mt,4)}, {v(FB+8*s+4*cp,4)}, {'0' if n == 0 else d}")
                ops.append(m)
            return ops
        self.gemm_loop(8, 4, 4, reads, mfmas, dma, tick, 3)
        self.stamp(1)
        p("s_barrier")
        self.wsp_dma(0)
        LB, CF, L16, L128, L256, LQ0, LQ1 = 144, 146, 148, 150, 152, 154, 156
        X0, X1, X2, X3 = 160, 161, 162, 163
        p(f"v_lshlrev_b32 {v(PR)}, 16, {v(PR)}\nv_lshlrev_b32 {v(PR+1)}, 16, {v(PR+1)}\nv_lshlrev_b32 {v(PR+2)}, 16, {v(PR+2)}")
        p(f"v_mul_f32 {v(X0)}, {f2u(LOG2E)}, {v(PR+2)}\nv_exp_f32 {v(X0)}, {v(X0)}"); self.rnd(X0, X0)
        p(f"v_mul_f32 {v(X1)}, {v(X0)}, {v(PR)}\nv_mul_f32 {v(X2)}, {v(X0)}, {v(PR+1)}")
        p(f"v_mul_f32 {v(X1)}, {f2u(LOG2E)}, {v(X1)}\nv_exp_f32 {v(X1)}, {v(X1)}")
        p(f"v_mul_f32 {v(X2)}, {f2u(1/(2*math.pi))}, {v(X2)}\nv_fract_f32 {v(X2)}, {v(X2)}")
        p(f"v_cos_f32 {v(X3)}, {v(X2)}\nv_sin_f32 {v(X2)}, {v(X2)}")
        p(f"v_mul_f32 {v(LB)}, {v(X1)}, {v(X3)}\nv_mul_f32 {v(LB+1)}, {v(X1)}, {v(X2)}")
        p(f"v_mul_f32 {v(X0)}, {v(PR)}, {v(PR)}\nv_fmac_f32 {v(X0)}, {v(PR+1)}, {v(PR+1)}\nv_rcp_f32 {v(X0)}, {v(X0)}")
        p(f"v_add_f32 {v(X1)}, -1.0, {v(LB)}\nv_add_f32 {v(X0)}, {v(X0)}, {v(X0)}")
        p(f"v_mul_f32 {v(X2)}, {v(X1)}, {v(PR)}\nv_fmac_f32 {v(X2)}, {v(LB+1)}, {v(PR+1)}\nv_mul_f32 {v(CF)}, {v(X2)}, {v(X0)}")
        p(f"v_mul_f32 {v(X2)}, {v(LB+1)}, {v(PR)}\nv_fma_f32 {v(X2)}, -{v(X1)}, {v(PR+1)}, {v(X2)}\nv_mul_f32 {v(CF+1)}, {v(X2)}, {v(X0)}")
        def csq(d, s):
            p(f"v_mul_f32 {v(X0)}, {v(s+1)}, {v(s+1)}\nv_add_f32 {v(X1)}, {v(s)}, {v(s)}")
            p(f"v_mul_f32 {v(d+1)}, {v(X1)}, {v(s+1)}\nv_fma_f32 {v(d)}, {v(s)}, {v(s)}, -{v(X0)}")
        def cmul(d, a, b):
            p(f"v_mul_f32 {v(X0)}, {v(a+1)}, {v(b+1)}\nv_mul_f32 {v(X1)}, {v(a+1)}, {v(b)}")
            p(f"v_fma_f32 {v(X0)}, {v(a)}, {v(b)}, -{v(X0)}\nv_fma_f32 {v(d+1)}, {v(a)}, {v(b+1)}, {v(X1)}\nv_mov_b32 {v(d)}, {v(X0)}")
        def cfma(d, a, b, c):
            p(f"v_fma_f32 {v(X0)}, {v(a)}, {v(b)}, {v(c)}\nv_fma_f32 {v(X1)}, {v(a)}, {v(b+1)}, {v(c+1)}")
            p(f"v_fma_f32 {v(X0)}, -{v(a+1)}, {v(b+1)}, {v(X0)}\nv_fma_f32 {v(d+1)}, {v(a+1)}, {v(b)}, {v(X1)}\nv_mov_b32 {v(d)}, {v(X0)}")
        L32, L64 = 164, 166
        csq(L16, LB); csq(L16, L16); csq(L16, L16); csq(L16, L16)
        csq(L32, L16); csq(L64, L32); csq(L128, L64); csq(L256, L128)
        p(f"v_cmp_gt_u32 vcc, 32, {v(VL)}\nv_cndmask_b32 {v(LQ0)}, {v(L32)}, 1.0, vcc\nv_cndmask_b32 {v(LQ0+1)}, {v(L32+1)}, 0, vcc")
        sk = p.label("wt0")
        p(f"s_cmp_eq_u32 s{WT}, 0\ns_cbranch_scc1 {sk}")
        cmul(LQ0, LQ0, L64)
        p.put(sk)
        cmul(LQ1, LQ0, L16)
        def U(sg, cp): return ACC + 32 * (sg >> 3) + 16 * cp + 4 * ((sg & 7) >> 1) + 2 * (sg & 1)
        def step(hr, hi, sg, nr, ni, t0, t1):
            A = v(LB, 2)
            p(f"v_pk_fma_f32 {v(t0,2)}, {A}, {v(hr,2)}, {v(U(sg,0),2)} op_sel_hi:[0,1,1]")
            p(f"v_pk_fma_f32 {v(t1,2)}, {A}, {v(hi,2)}, {v(U(sg,1),2)} op_sel_hi:[0,1,1]")
            p(f"v_pk_fma_f32 {v(nr,2)}, {A}, {v(hi,2)}, {v(t0,2)} op_sel:[1,0,0] op_sel_hi:[1,1,1] neg_lo:[1,0,0] neg_hi:[1,0,0]")
            p(f"v_pk_fma_f32 {v(ni,2)}, {A}, {v(hr,2)}, {v(t1,2)} op_sel:[1,0,0] op_sel_hi:[1,1,1]")
        HA, HBb, T0 = 80, 84, 88
        hr, hi = U(0, 0), U(0, 1)
        for sg in range(1, 16):
            nr, ni = (HA, HA + 2) if sg & 1 else (HBb, HBb + 2)
            step(hr, hi, sg, nr, ni, T0, T0 + 2)
            hr, hi = nr, ni
        EX = 92
        p(f"v_mov_b32 {v(EX)}, {v(hr)}\nv_mov_b32 {v(EX+1)}, {v(hi)}\nv_mov_b32 {v(EX+2)}, {v(hr+1)}\nv_mov_b32 {v(EX+3)}, {v(hi+1)}")
        SCR = 163840 - 4096
        p(f"s_lshl_b32 s{SA}, s{WP}, 11\ns_add_u32 s{SA}, s{SA}, {SCR}")
        p(f"v_and_b32 {v(T0)}, 31, {v(VL)}\nv_lshlrev_b32 {v(T0)}, 6, {v(T0)}\nv_add_u32 {v(T0)}, s{SA}, {v(T0)}")
        p(f"v_lshrrev_b32 {v(T0+1)}, 5, {v(VL)}\nv_lshl_add_u32 {v(T0+1)}, {v(T0+1)}, 4, {v(T0)}\ns_lshl_b32 s{SA}, s{WT}, 5\nv_add_u32 {v(T0+1)}, s{SA}, {v(T0+1)}")
        p.lds(f"ds_write_b128 {v(T0+1)}, {v(EX,4)}")
        p.wait_lg_all(); p("s_barrier")
        E8 = 96
        for i in range(4): p.lds(f"ds_read_b128 {v(E8+4*i,4)}, {v(T0)} offset:{16*i}")
        p.wait_lg_all()
        for q in range(1, 8): cfma(E8 + 2 * q, L16, E8 + 2 * (q - 1), E8 + 2 * q)
        GR = 112
        p(f"v_mov_b32 {v(GR)}, {v(E8+14)}\nv_mov_b32 {v(GR+1)}, s{ST_T}\nv_mov_b32 {v(GR+2)}, {v(E8+15)}\nv_mov_b32 {v(GR+3)}, s{ST_T}")
        p(f"s_cmp_eq_u32 s{WT}, 0\ns_cselect_b32 s{SA}, 32, 0")
        p(f"v_cmp_gt_u32 vcc, s{SA}, {v(VL)}\nv_mov_b32 {v(T0)}, {OOB}\nv_cndmask_b32 {v(T0)}, {v(T0)}, {v(VL16)}, vcc")
        p(f"s_lshl_b32 s{SC}, s{SCOL}, 14\ns_lshl_b32 s{SA}, s{WP}, 9\ns_add_u32 s{SC}, s{SC}, s{SA}\ns_add_u32 s{SC}, s{SC}, {EG}")
        p(f"s_lshl_b32 s{SA}, s{SRB}, 10\ns_add_u32 s{SA}, s{SA}, s{SC}")
        p.vmem(f"buffer_store_dwordx4 {v(GR,4)}, {v(T0)}, {srd(SWS)}, s{SA} offen sc1")
        self.stamp(2)
        CQ = 116
        p(f"v_cmp_gt_u32 vcc, 32, {v(VL)}")
        w1 = p.label("w1"); w2 = p.label("w2")
        p(f"s_cmp_eq_u32 s{WT}, 0\ns_cbranch_scc0 {w1}")
        p(f"v_cndmask_b32 {v(CQ)}, {v(E8+2)}, 0, vcc\nv_cndmask_b32 {v(CQ+1)}, {v(E8+3)}, 0, vcc")
        p(f"v_cndmask_b32 {v(CQ+2)}, {v(E8+4)}, {v(E8)}, vcc\nv_cndmask_b32 {v(CQ+3)}, {v(E8+5)}, {v(E8+1)}, vcc")
        p(f"s_branch {w2}")
        p.put(w1)
        for k in range(4): p(f"v_cndmask_b32 {v(CQ+k)}, {v(E8+10+k)}, {v(E8+6+k)}, vcc")
        p.put(w2)
        GX, GW, GU, GS = 168, 184, 188, 196
        p(f"s_lshl_b32 s{SD}, s{SRB}, 1\ns_add_u32 s{SD}, s{SD}, s{WT}")
        p(f"s_lshl_b32 s{SA}, s{SCOL}, 1\ns_add_u32 s{SA}, s{SA}, s{WP}")
        p(f"s_lshl_b32 s{SE}, s{SD}, 4\ns_add_u32 s{SE}, s{SE}, s{SA}")
        p(f"s_lshl_b32 s{SA}, s{SE}, 12")
        for r in range(4): p.vmem(f"buffer_load_dwordx4 {v(GX+4*r,4)}, {v(VL16)}, {srd(SX)}, s{SA} offen offset:{r*1024}")
        tg = p.vmem(f"global_load_dwordx4 {v(GW,4)}, {v(VL16)}, {sp(PGW)}")
        p.wait(vm=tg)
        for i in range(4): self.unpack(GU + 2 * i, GW + i)
        for r in range(4):
            for i in range(4):
                a = 208 + 2 * i
                self.unpack(a, GX + 4 * r + i)
                p(f"v_pk_mul_f32 {v(a,2)}, {v(a,2)}, {v(GU+2*i,2)}")
            for i in range(4): p(f"v_cvt_pk_bf16_f32 {v(GX+4*r+i)}, {v(208+2*i)}, {v(209+2*i)}")
            for i in range(4): self.unpack(208 + 2 * i, GX + 4 * r + i)
            p(f"v_pk_add_f32 {v(208,2)}, {v(208,2)}, {v(210,2)}\nv_pk_add_f32 {v(212,2)}, {v(212,2)}, {v(214,2)}\nv_pk_add_f32 {v(208,2)}, {v(208,2)}, {v(212,2)}")
            p(f"v_add_f32 {v(GS+r)}, {v(208)}, {v(209)}")
        for mod in ["quad_perm:[1,0,3,2]", "quad_perm:[2,3,0,1]", "row_half_mirror", "row_mirror"]:
            for r in range(4): p(f"v_add_f32_dpp {v(GS+r)}, {v(GS+r)}, {v(GS+r)} {mod} row_mask:0xf bank_mask:0xf")
        for sw in ["v_permlane16_swap_b32", "v_permlane32_swap_b32"]:
            for r in range(4): p(f"v_mov_b32 {v(208+r)}, {v(GS+r)}")
            for r in range(4): p(f"{sw} {v(GS+r)}, {v(208+r)}")
            for r in range(4): p(f"v_add_f32 {v(GS+r)}, {v(GS+r)}, {v(208+r)}")
        for r in range(4): self.rnd(GS + r, GS + r)
        for r in range(4): p(f"v_mul_f32 {v(GS+r)}, {f2u(-LOG2E)}, {v(GS+r)}")
        for r in range(4): p(f"v_exp_f32 {v(GS+r)}, {v(GS+r)}")
        for r in range(4): p(f"v_add_f32 {v(GS+r)}, 1.0, {v(GS+r)}")
        for r in range(4): p(f"v_rcp_f32 {v(GS+r)}, {v(GS+r)}")
        for r in range(4): self.rnd(GS + r, GS + r)
        p(f"v_cmp_eq_u32 vcc, 0, {v(VL)}\nv_mov_b32 {v(208)}, {OOB}\nv_cndmask_b32 {v(208)}, {v(208)}, {v(VL)}, vcc")
        p(f"s_lshl_b32 s{SA}, s{SE}, 4\ns_add_u32 s{SA}, s{SA}, {GATE}")
        p.vmem(f"buffer_store_dwordx4 {v(GS,4)}, {v(208)}, {srd(SWS)}, s{SA} offen sc1")
        self.stamp(3)
        EGR, EO, ET = 208, 240, 168
        p(f"v_lshrrev_b32 {v(ET)}, 5, {v(VL)}\nv_sub_u32 {v(ET)}, s{SRB}, {v(ET)}\nv_add_u32 {v(ET)}, -1, {v(ET)}")
        p(f"v_and_b32 {v(ET+1)}, 31, {v(VL)}\nv_lshlrev_b32 {v(ET+1)}, 4, {v(ET+1)}\nv_mov_b32 {v(ET+2)}, {OOB}\nv_mov_b32 {v(ET+3)}, s{ST_T}")
        EXP = 176
        for q in range(8):
            p(f"v_add_u32 {v(ET+4)}, {-2*q}, {v(ET)}\nv_cmp_le_i32 vcc, 0, {v(ET+4)}\nv_lshl_add_u32 {v(ET+4)}, {v(ET+4)}, 10, {v(ET+1)}")
            p(f"v_cndmask_b32 {v(EO+q)}, {v(ET+2)}, {v(ET+4)}, vcc\nv_cndmask_b32 {v(EXP+q)}, 0, {v(ET+3)}, vcc")
        l = p.label("ep"); d = p.label("ed")
        p(f"s_mov_b32 s{SSPIN}, 0")
        p.put(l)
        for q in range(8): p.vmem(f"buffer_load_dwordx4 {v(EGR+4*q,4)}, {v(EO+q)}, {srd(SWS)}, s{SC} offen sc1")
        p.wait_vm_all()
        p(f"v_mov_b32 {v(ET)}, 0")
        for q in range(8):
            for k in (1, 3):
                p(f"v_xor_b32 {v(ET+1)}, {v(EXP+q)}, {v(EGR+4*q+k)}\nv_or_b32 {v(ET)}, {v(ET)}, {v(ET+1)}")
        p(f"v_cmp_ne_u32 vcc, 0, {v(ET)}\ns_cmp_eq_u64 vcc, 0\ns_cbranch_scc1 {d}")
        p(f"s_add_u32 s{SSPIN}, s{SSPIN}, 1\ns_cmp_lt_u32 s{SSPIN}, {SPIN}\ns_cbranch_scc1 {l}")
        p.put(d)
        self.stamp(4)
        for q in range(8): p(f"v_mov_b32 {v(EGR+4*q+1)}, {v(EGR+4*q+2)}")
        S = EGR + 28
        for q in range(6, -1, -1): cfma(S, L256, S, EGR + 4 * q)
        p(f"v_mov_b32 {v(ET)}, {v(S)}\nv_mov_b32 {v(ET+1)}, {v(S+1)}\nv_permlane32_swap_b32 {v(S)}, {v(ET)}\nv_permlane32_swap_b32 {v(S+1)}, {v(ET+1)}")
        cfma(S, L128, ET, S)
        cfma(CQ, LQ0, S, CQ); cfma(CQ + 2, LQ1, S, CQ + 2)
        p(f"v_mov_b32 {v(HA)}, {v(CQ)}\nv_mov_b32 {v(HA+1)}, {v(CQ+2)}\nv_mov_b32 {v(HA+2)}, {v(CQ+1)}\nv_mov_b32 {v(HA+3)}, {v(CQ+3)}")
        hr, hi = HA, HA + 2
        OP = 208
        OT = 96
        Cc = v(CF, 2)
        for sg in range(16):
            step(hr, hi, sg, U(sg, 0), U(sg, 1), T0, T0 + 2)
            hr, hi = U(sg, 0), U(sg, 1)
            o = OT + 4 * (sg & 1) + 8 * ((sg >> 1) & 1)
            p(f"v_pk_mul_f32 {v(o,2)}, {Cc}, {v(hr,2)} op_sel_hi:[0,1]")
            p(f"v_pk_mul_f32 {v(o+2,2)}, {Cc}, {v(hi,2)} op_sel_hi:[0,1] neg_lo:[1,0] neg_hi:[1,0]")
            p(f"v_pk_fma_f32 {v(o,2)}, {Cc}, {v(hi,2)}, {v(o,2)} op_sel:[1,0,0] op_sel_hi:[1,1,1] neg_lo:[1,0,0] neg_hi:[1,0,0]")
            p(f"v_pk_fma_f32 {v(o+2,2)}, {Cc}, {v(hr,2)}, {v(o+2,2)} op_sel:[1,0,0] op_sel_hi:[1,1,1] neg_lo:[1,0,0] neg_hi:[1,0,0]")
            if sg & 1:
                q, i = sg >> 3, (sg & 7) >> 1
                for cp in range(2):
                    for e in range(2):
                        p(f"v_cvt_pk_bf16_f32 {v(OP+16*cp+8*e+4*q+i)}, {v(o-4+2*cp+e)}, {v(o+2*cp+e)}")
        p(f"s_lshl_b32 s{SA}, s{SD}, 3\ns_add_u32 s{SA}, s{SA}, s{SCOL}\ns_lshl_b32 s{SA}, s{SA}, 14\ns_lshl_b32 s{SB_}, s{WP}, 12\ns_add_u32 s{SA}, s{SA}, s{SB_}")
        p(f"s_add_u32 s{SA}, s{SA}, {HB}\ns_add_u32 s{SB_}, s{SA}, 8192")
        HO = 84
        p(f"v_lshrrev_b32 {v(T0)}, 5, {v(VL)}\nv_lshlrev_b32 {v(T0)}, 11, {v(T0)}\nv_and_b32 {v(T0+1)}, 31, {v(VL)}\nv_lshl_add_u32 {v(HO)}, {v(T0+1)}, 4, {v(T0)}")
        for k in range(1, 4): p(f"v_xor_b32 {v(HO+k)}, {64*k}, {v(HO)}")
        for cp in range(2):
            for k in range(4):
                t = p.vmem(f"buffer_store_dwordx4 {v(OP+16*cp+4*k,4)}, {v(HO+k)}, {srd(SWS)}, s{SA if cp == 0 else SB_} offen offset:{512*k} sc1")
        self.wsp_read(0)
        p.wait(vm=t)
        p(f"s_lshl_b32 s{SA}, s{SE}, 2\ns_add_u32 s{SA}, s{SA}, {HF}")
        self.flag(SA, 88)
        self.stamp(5)

    def phase_g(self):
        p = self.p
        p.c("==== phase B: G ====")
        p.put(self.LG)
        p.vm_done = -1
        self.wsp_dma(1)
        ACC, FA, TR, VB, VC, T = 16, 112, 160, 162, 163, 164
        self.unit_tr_addr(TR, SREG, T, True)
        p(f"v_add_u32 {v(VB)}, 4096, {v(VL16)}\nv_cmp_gt_u32 vcc, 32, {v(VL)}\nv_mov_b32 {v(VC)}, {OOB}\nv_cndmask_b32 {v(VC)}, {v(VC)}, {v(VB)}, vcc")
        self.wsp_read(1)
        self.stamp(6)
        p(f"s_lshl_b32 s{SA}, s{SCOL}, 8\ns_add_u32 s{SA}, s{SA}, {ZF}\ns_lshl_b32 s{SB_}, s{SWV}, 6\ns_add_u32 s{SB_}, s{SB_}, s{SA}")
        p(f"s_and_b32 s{SD}, s{SWV}, 1\ns_lshl_b32 s{SC}, s{STB}, 1\ns_add_u32 s{SC}, s{SC}, s{SD}")
        p(f"s_lshl_b32 s{SD}, s{SC}, 2\ns_add_u32 s{SD}, s{SD}, s{SA}")
        self.spoll(SB_, 16, T, extra=SD)
        self.stamp(7)
        p(f"s_lshl_b32 s{SA}, s{SCOL}, 6\ns_lshl_b32 s{SB_}, s{SWV}, 4\ns_add_u32 s{SA}, s{SA}, s{SB_}\ns_mul_i32 s{SE}, s{SA}, 5632\ns_add_u32 s{SE}, s{SE}, {Z2N}")
        NS = 6
        tick = {}
        def dma(b):
            sl = b % NS; ops = []
            def f0():
                p(f"s_add_u32 s{SA}, s{SE}, {b*5632}\ns_add_u32 m0, s{SREG}, {sl*6144}")
                p.vmem(f"buffer_load_dwordx4 {v(VL16)}, {srd(SWS)}, s{SA} offen sc1 lds")
            ops.append(f0)
            for i in range(1, 4): ops.append(lambda i=i: p.vmem(f"buffer_load_dwordx4 {v(VL16)}, {srd(SWS)}, s{SA} offen offset:{i*1024} sc1 lds"))
            def f4():
                p(f"s_add_u32 m0, s{SREG}, {sl*6144+4096}")
                p.vmem(f"buffer_load_dwordx4 {v(VB)}, {srd(SWS)}, s{SA} offen sc1 lds")
            def f5(): tick[b] = p.vmem(f"buffer_load_dwordx4 {v(VC)}, {srd(SWS)}, s{SA} offen offset:1024 sc1 lds")
            return ops + [f4, f5]
        for b in range(NS):
            for op in dma(b): op()
        Z1R, BI = 172, 184
        p(f"s_lshl_b32 s{SA}, s{SCOL}, 6\ns_add_u32 s{SA}, s{SA}, s{SC}\ns_mul_i32 s{SA}, s{SA}, 5632\ns_lshr_b32 s{SB_}, s{SWV}, 1\ns_lshl_b32 s{SB_}, s{SB_}, 10")
        p(f"s_add_u32 s{SA}, s{SA}, s{SB_}\ns_add_u32 s{SA}, s{SA}, {Z1}\ns_add_u32 s{SB_}, s{SA}, 4096")
        PV = 185
        p(f"s_cmp_lt_u32 s{SCOL}, 7\ns_cselect_b32 s{SD}, 64, 32\ns_lshr_b32 s{SF}, s{SWV}, 1\ns_lshl_b32 s{SF}, s{SF}, 5\ns_sub_u32 s{SD}, s{SD}, s{SF}")
        p(f"v_cmp_gt_u32 vcc, s{SD}, {v(VL)}\nv_mov_b32 {v(PV)}, {OOB}\nv_cndmask_b32 {v(PV)}, {v(PV)}, {v(VL16)}, vcc")
        p.vmem(f"buffer_load_dwordx4 {v(Z1R,4)}, {v(VL16)}, {srd(SWS)}, s{SA} offen sc1")
        p.vmem(f"buffer_load_dwordx4 {v(Z1R+4,4)}, {v(VL16)}, {srd(SWS)}, s{SA} offen offset:2048 sc1")
        p.vmem(f"buffer_load_dwordx4 {v(Z1R+8,4)}, {v(PV)}, {srd(SWS)}, s{SB_} offen sc1")
        p(f"v_and_b32 {v(T)}, 31, {v(VL)}\ns_lshl_b32 s{SA}, s{SC}, 5\nv_add_lshl_u32 {v(T)}, {v(T)}, s{SA}, 1")
        tz = p.vmem(f"global_load_ushort {v(BI)}, {v(T)}, {sp(PBSP)}")
        rt = {}
        def reads(b):
            sl = b % NS; s = b & 1; ops = []
            for ks in range(2):
                for mt in range(3):
                    for a in range(2):
                        def ra(ks=ks, mt=mt, a=a):
                            if ks == 0 and mt == 0 and a == 0: p.wait(vm=tick[b])
                            rt[(b, ks, mt)] = p.lds(f"ds_read_b64_tr_b16 {v(FA+24*s+12*ks+4*mt+2*a,2)}, {v(TR+a)} offset:{sl*6144+mt*2048+ks*256}")
                        ops.append(ra)
            return ops
        def mfmas(b):
            s = b & 1; ops = []
            for ks in range(2):
                for mt in range(3):
                    for nt in range(2):
                        def m(ks=ks, mt=mt, nt=nt):
                            p.wait(lg=rt[(b, ks, mt)])
                            d = v(ACC + 16 * (2 * mt + nt), 16); kap = 2 * b + ks
                            p(f"v_mfma_f32_32x32x16_bf16 {d}, {v(FA+24*s+12*ks+4*mt,4)}, {ar((kap*2+nt)*4,4)}, {'0' if kap == 0 else d}")
                        ops.append(m)
            return ops
        for op in reads(0): op()
        for b in range(16):
            mm = mfmas(b)
            seq = merge(mm, reads(b + 1), 0, 8) if b + 1 < 16 else mm
            if b + NS < 16:
                d = dma(b + NS)
                d0 = d[0]
                def first(d0=d0, b=b):
                    p.wait(lg=rt[(b, 1, 2)]); d0()
                seq = merge(seq, [first] + d[1:], len(seq) // 2)
            for op in seq: op()
        self.stamp(8)
        WD = 186
        p(f"v_lshrrev_b32 {v(T)}, 3, {v(VL)}\nv_lshlrev_b32 {v(T)}, 10, {v(T)}")
        p(f"v_bfe_u32 {v(T+1)}, {v(VL)}, 4, 1\nv_lshlrev_b32 {v(T+1)}, 2, {v(T+1)}\nv_and_b32 {v(T+2)}, 7, {v(VL)}\nv_xor_b32 {v(T+1)}, {v(T+1)}, {v(T+2)}")
        p(f"v_lshl_add_u32 {v(WD)}, {v(T+1)}, 4, {v(T)}")
        for i in range(1, 4): p(f"v_add_u32 {v(WD+i)}, {i*7168}, {v(WD)}")
        p(f"s_mul_i32 s{SE}, s{SWV}, {176*1024}\ns_lshl_b32 s{SA}, s{SCOL}, 7\ns_add_u32 s{SE}, s{SE}, s{SA}")
        for i in range(22):
            if i % 4 == 0: p(f"s_add_u32 s{SA}, s{SE}, {i*8192}\ns_add_u32 m0, s{SREG}, {18432+i*1024}")
            two = p.vmem(f"buffer_load_dwordx4 {v(WD+i%4)}, {srd(SWOUT)}, s{SA} offen offset:{(i%4)*1024} lds")
        VW = T; VRD = T + 1
        p(f"v_add_u32 {v(VW)}, s{SREG}, {v(VL16)}")
        cases = [p.label(f"rw{w}") for w in range(4)]; rdone = p.label("rwd")
        OWN = 112
        for w in range(1, 4): p(f"s_cmp_eq_u32 s{SWV}, {w}\ns_cbranch_scc1 {cases[w]}")
        lg0 = p.lg
        for w in range(4):
            p.put(cases[w]); p.lg = lg0
            for o in range(4):
                nt, q = o & 1, o >> 1
                for mt in range(3):
                    r = ACC + 16 * (2 * mt + nt) + 8 * q
                    for hq in range(2):
                        if o == w:
                            p(f"v_pk_mov_b32 {v(OWN+8*mt+4*hq,2)}, {v(r+4*hq,2)}, {v(r+4*hq,2)} op_sel:[0,1]\nv_pk_mov_b32 {v(OWN+8*mt+4*hq+2,2)}, {v(r+4*hq+2,2)}, {v(r+4*hq+2,2)} op_sel:[0,1]")
                        else:
                            slot = ((o - w) & 3) - 1
                            p.lds(f"ds_write_b128 {v(VW)}, {v(r+4*hq,4)} offset:{slot*6144+(2*mt+hq)*1024}")
            if w < 3: p(f"s_branch {rdone}\ns_nop 15")
        p.put(rdone)
        p.wait_lg_all(); p("s_barrier")
        RB = 16
        for k in range(1, 4):
            p(f"s_sub_u32 s{SA}, s{SWV}, {k}\ns_and_b32 s{SA}, s{SA}, 3\ns_mul_i32 s{SA}, s{SA}, 40960\nv_add_u32 {v(VRD+k-1)}, s{SA}, {v(VL16)}")
        tk = {}
        def rr(k, i): tk[(k, i)] = p.lds(f"ds_read_b128 {v(RB+24*(k-1)+4*i,4)}, {v(VRD+k-1)} offset:{(k-1)*6144+i*1024}")
        for k in range(1, 3):
            for i in range(6): rr(k, i)
        for k in range(1, 4):
            for i in range(6):
                p.wait(lg=tk[(k, i)])
                if k == 1: rr(3, i)
                for hh in range(2): p(f"v_pk_add_f32 {v(OWN+4*i+2*hh,2)}, {v(OWN+4*i+2*hh,2)}, {v(RB+24*(k-1)+4*i+2*hh,2)}")
        p("s_barrier")
        self.stamp(9)
        self.two = two
        self.c_setup()
        self.y_dma(0)
        p.wait(vm=tz)
        PK = 16; ZU = 32
        p(f"v_lshlrev_b32 {v(BI)}, 16, {v(BI)}")
        for i in range(12): p(f"v_cvt_pk_bf16_f32 {v(PK+i)}, {v(OWN+2*i)}, {v(OWN+2*i+1)}")
        for i in range(12): self.unpack(OWN + 2 * i, PK + i)
        for i in range(12): p(f"v_pk_add_f32 {v(OWN+2*i,2)}, {v(OWN+2*i,2)}, {v(BI,2)} op_sel_hi:[1,0]")
        for i in range(12): p(f"v_cvt_pk_bf16_f32 {v(PK+i)}, {v(OWN+2*i)}, {v(OWN+2*i+1)}")
        for i in range(12): self.unpack(OWN + 2 * i, PK + i)
        for i in range(12): self.unpack(ZU + 2 * i, Z1R + i)
        for i in range(12): p(f"v_pk_mul_f32 {v(OWN+2*i,2)}, {v(OWN+2*i,2)}, {v(ZU+2*i,2)}")
        for i in range(12): p(f"v_cvt_pk_bf16_f32 {v(PK+i)}, {v(OWN+2*i)}, {v(OWN+2*i+1)}")
        p(f"s_mul_i32 s{SA}, s{SC}, 45056\ns_mul_i32 s{SB_}, s{SCOL}, 5632\ns_add_u32 s{SA}, s{SA}, s{SB_}\ns_lshr_b32 s{SB_}, s{SWV}, 1\ns_lshl_b32 s{SB_}, s{SB_}, 10")
        p(f"s_add_u32 s{SA}, s{SA}, s{SB_}\ns_add_u32 s{SA}, s{SA}, {PB}\ns_add_u32 s{SB_}, s{SA}, 4096")
        p.vmem(f"buffer_store_dwordx4 {v(PK,4)}, {v(VL16)}, {srd(SWS)}, s{SA} offen sc1")
        p.vmem(f"buffer_store_dwordx4 {v(PK+4,4)}, {v(VL16)}, {srd(SWS)}, s{SA} offen offset:2048 sc1")
        tp = p.vmem(f"buffer_store_dwordx4 {v(PK+8,4)}, {v(PV)}, {srd(SWS)}, s{SB_} offen sc1")
        WT_ = 136
        p(f"s_add_u32 s{SA}, s{SREG}, 18432")
        self.panel_tr_addr(WT_, SA, 140, False)
        p.wait(vm=two)
        for kap in range(11):
            for mt in range(2):
                for a in range(2):
                    p.lds(f"ds_read_b64_tr_b16 {ar((kap*2+mt)*4+2*a,2)}, {v(WT_+mt)} offset:{kap*2048+a*512}")
            p.wait(lg=p.lg - 8)
        p.wait(vm=tp)
        p(f"s_lshl_b32 s{SA}, s{STB}, 3\ns_add_u32 s{SA}, s{SA}, s{SCOL}\ns_lshl_b32 s{SA}, s{SA}, 2\ns_add_u32 s{SA}, s{SA}, s{SWV}\ns_lshl_b32 s{SA}, s{SA}, 2\ns_add_u32 s{SA}, s{SA}, {PF}")
        self.flag(SA, 140)
        p.wait_lg_all()
        self.stamp(10)

    def c_setup(self):
        p = self.p
        self.CD, self.CR, self.HT = 190, 194, 198
        self.plain_dma_addr(self.CD, 1024, 200)
        self.plain_read_addr(self.CR, SREG, 200)
        p(f"s_add_u32 s{SA}, s{SREG}, 8192")
        self.unit_tr_addr(self.HT, SA, 200, False)
        p(f"s_lshl_b32 s{SB_}, s{STB}, 6\ns_add_u32 s{SB_}, s{SB_}, {HF}")
        self.spoll(SB_, 16, 200)
        p(f"s_lshl_b32 s{SK+10}, s{SCOL}, 16\ns_lshl_b32 s{SA}, s{SWV}, 8\ns_add_u32 s{SK+10}, s{SK+10}, s{SA}")
        p(f"s_lshl_b32 s{SK+11}, s{STB}, 17\ns_lshl_b32 s{SA}, s{SWV}, 15\ns_add_u32 s{SK+11}, s{SK+11}, s{SA}\ns_add_u32 s{SK+11}, s{SK+11}, {HB}")
        self.yt = {}
    def y_dma(self, s):
        p = self.p; sl = s & 1
        for hh in range(2):
            p(f"s_add_u32 s{SA}, s{SK+10}, {(s>>1)*128+hh*32768}\ns_add_u32 m0, s{SREG}, {sl*16384+hh*4096}")
            for i in range(4): p.vmem(f"buffer_load_dwordx4 {v(self.CD+i)}, {srd(SCIM if s & 1 else SCRE)}, s{SA} offen offset:{i*1024} lds")
        for hh in range(2):
            p(f"s_add_u32 s{SA}, s{SK+11}, {s*8192+hh*4096}\ns_add_u32 m0, s{SREG}, {sl*16384+8192+hh*4096}")
            for i in range(4): self.yt[s] = p.vmem(f"buffer_load_dwordx4 {v(VL16)}, {srd(SWS)}, s{SA} offen offset:{i*1024} sc1 lds")
    def phase_c(self):
        p = self.p
        p.c("==== phase C ====")
        YA, BA, F = 16, 80, 144
        XE, GE, DE = 204, 212, 216
        self.y_dma(1)
        T = 220
        p(f"v_lshrrev_b32 {v(T)}, 4, {v(VL)}\nv_and_b32 {v(T+1)}, 15, {v(VL)}")
        p(f"v_lshlrev_b32 {v(T+2)}, 10, {v(T)}\nv_lshl_add_u32 {v(T+2)}, {v(T+1)}, 3, {v(T+2)}")
        p(f"v_lshlrev_b32 {v(T+3)}, 2, {v(T)}\nv_lshlrev_b32 {v(T+4)}, 3, {v(T+1)}")
        OV = 218
        p(f"v_lshlrev_b32 {v(OV)}, 1, {v(T+2)}")
        p(f"s_lshl_b32 s{SC}, s{STB}, 6\ns_lshl_b32 s{SA}, s{SWV}, 4\ns_add_u32 s{SC}, s{SC}, s{SA}")
        p(f"s_lshl_b32 s{SD}, s{SC}, 10\ns_lshl_b32 s{SA}, s{SCOL}, 7\ns_add_u32 s{SD}, s{SD}, s{SA}")
        for gi in range(4):
            p(f"s_add_u32 s{SA}, s{SD}, {gi*4096}")
            p.vmem(f"buffer_load_dwordx2 {v(XE+2*gi,2)}, {v(T+2)}, {srd(SX)}, s{SA} offen")
        p(f"s_lshl_b32 s{SA}, s{SC}, 2\ns_add_u32 s{SA}, s{SA}, {GATE}")
        for gi in range(4): p.vmem(f"buffer_load_dword {v(GE+gi)}, {v(T+3)}, {srd(SWS)}, s{SA} offen offset:{gi*16} sc1")
        p(f"s_lshl_b32 s{SA}, s{SCOL}, 7\nv_add_u32 {v(T+4)}, s{SA}, {v(T+4)}")
        te = p.vmem(f"global_load_dwordx2 {v(DE,2)}, {v(T+4)}, {sp(PDSK)}")
        rt = {}
        def reads(n):
            s, ks = n // 4, n % 4; sl = s & 1; fs = F + 16 * (n & 1); ops = []
            for k in range(2):
                def ra(k=k):
                    if ks == 0 and k == 0: p.wait(vm=self.yt[s])
                    rt[(n, 'a', k)] = p.lds(f"ds_read_b128 {v(fs+4*k,4)}, {v(self.CR+ks)} offset:{sl*16384+k*4096}")
                ops.append(ra)
                for a in range(2):
                    def rb(k=k, a=a):
                        rt[(n, 'b', k)] = p.lds(f"ds_read_b64_tr_b16 {v(fs+8+4*k+2*a,2)}, {v(self.HT+a)} offset:{sl*16384+(ks>>1)*4096+k*2048+(ks&1)*256}")
                    ops.append(rb)
            return ops
        def mfmas(n):
            fs = F + 16 * (n & 1); ops = []
            for (mt, nt) in [(0, 0), (1, 0), (1, 1), (0, 1)]:
                def m(mt=mt, nt=nt):
                    p.wait(lg=max(rt[(n, 'a', mt)], rt[(n, 'b', nt)]))
                    d = v(YA + 16 * (2 * mt + nt), 16)
                    p(f"v_mfma_f32_32x32x16_bf16 {d}, {v(fs+4*mt,4)}, {v(fs+8+4*nt,4)}, {'0' if n == 0 else d}")
                ops.append(m)
            return ops
        PA = 96
        pt = {}
        for op in reads(0): op()
        for n in range(16):
            if n % 4 == 3 and n // 4 < 2:
                p.wait(lg=p.lg - 1)
                self.y_dma(n // 4 + 2)
                if n // 4 == 1:
                    self.stamp(11)
                    p(f"s_lshl_b32 s{SA}, s{STB}, 7\ns_lshl_b32 s{SB_}, s{SWV}, 5\ns_add_u32 s{SB_}, s{SB_}, s{SA}\ns_add_u32 s{SB_}, s{SB_}, {PF}")
                    self.spoll(SB_, 8, 200)
                    self.stamp(12)
                    p(f"s_mul_i32 s{SE}, s{STB}, {2*45056}\ns_mul_i32 s{SA}, s{SWV}, {22*512}\ns_add_u32 s{SE}, s{SE}, s{SA}\ns_add_u32 s{SE}, s{SE}, {PB}")
                    for kap in range(11):
                        for nt in range(2):
                            if kap % 4 == 0: p(f"s_add_u32 s{SA if nt == 0 else SB_}, s{SE}, {nt*45056+kap*1024}")
                            pt[(kap, nt)] = p.vmem(f"buffer_load_dwordx4 {ar(PA+(kap*2+nt)*4,4)}, {v(VL16)}, {srd(SWS)}, s{SA if nt == 0 else SB_} offen offset:{(kap%4)*1024} sc1")
            seq = merge(mfmas(n), reads(n + 1), 0, 3) if n + 1 < 16 else mfmas(n)
            for op in seq: op()
        self.stamp(13)
        RW, RX = 176, 177
        p(f"v_and_b32 {v(RW)}, 31, {v(VL)}\nv_lshlrev_b32 {v(RW)}, 8, {v(RW)}\nv_add_u32 {v(RW)}, s{SREG}, {v(RW)}")
        p(f"v_lshrrev_b32 {v(RX)}, 5, {v(VL)}\nv_and_b32 {v(RX+1)}, 7, {v(VL)}\nv_xor_b32 {v(RX)}, {v(RX)}, {v(RX+1)}\nv_lshlrev_b32 {v(RX)}, 4, {v(RX)}")
        WA = 178
        for i in range(4): p(f"v_xor_b32 {v(WA+i)}, {32*i}, {v(RX)}\nv_add_u32 {v(WA+i)}, {v(WA+i)}, {v(RW)}")
        def redw(acc, base):
            ops = []
            for mt in range(2):
                for nt in range(2):
                    for i in range(4):
                        ops.append(lambda mt=mt, nt=nt, i=i: p.lds(f"ds_write_b128 {v(WA+i)}, {v(acc+16*(2*mt+nt)+4*i,4)} offset:{base+nt*8192+mt*128}"))
            return ops
        def bm(kap):
            ops = []
            for (mt, nt) in [(0, 0), (1, 0), (1, 1), (0, 1)]:
                def m(mt=mt, nt=nt):
                    p.wait(vm=pt[(kap, nt)])
                    d = v(BA + 16 * (2 * mt + nt), 16)
                    p(f"v_mfma_f32_32x32x16_bf16 {d}, {ar((kap*2+mt)*4,4)}, {ar(PA+(kap*2+nt)*4,4)}, {'0' if kap == 0 else d}")
                ops.append(m)
            return ops
        mm = []
        for kap in range(10): mm += bm(kap)
        for op in merge(mm, redw(YA, 0), 4, 36): op()
        sk = p.label("k10")
        p(f"s_cmp_eq_u32 s{SWV}, 3\ns_cbranch_scc1 {sk}")
        for op in bm(10): op()
        p.put(sk)
        p("s_nop 15")
        for op in redw(BA, 16384): op()
        p.wait_lg_all(); p("s_barrier")
        self.stamp(14)
        RA = 182
        p(f"v_lshrrev_b32 {v(T)}, 4, {v(VL)}\nv_and_b32 {v(T+1)}, 15, {v(VL)}\nv_xor_b32 {v(T+1)}, {v(T+1)}, {v(T)}\nv_lshlrev_b32 {v(T+1)}, 4, {v(T+1)}")
        p(f"v_lshlrev_b32 {v(T)}, 8, {v(T)}\ns_lshl_b32 s{SA}, s{SWV}, 12\nv_add_u32 {v(T)}, s{SA}, {v(T)}")
        p(f"v_add_u32 {v(RA)}, {v(T)}, {v(T+1)}\nv_xor_b32 {v(T+1)}, 64, {v(T+1)}\nv_add_u32 {v(RA+1)}, {v(T)}, {v(T+1)}")
        p(f"v_add_u32 {v(RA+2)}, 81920, {v(RA)}\nv_add_u32 {v(RA+3)}, 81920, {v(RA+1)}")
        tk = {}
        def R(gi, which, s): return 16 + 32 * gi + 16 * which + 4 * s
        for gi in range(4):
            for which in range(2):
                p.wait(lg=p.lg - 12)
                for s in range(4):
                    tk[(gi, which)] = p.lds(f"ds_read_b128 {v(R(gi,which,s),4)}, {v(RA+2*(s>>1)+(gi&1))} offset:{(s&1)*40960+which*16384+gi*1024}")
        p.wait(vm=te)
        DU = 224
        self.unpack(DU, DE); self.unpack(DU + 2, DE + 1)
        p(f"s_lshl_b32 s{SD}, s{SD}, 1")
        for gi in range(4):
            y, b = R(gi, 0, 0), R(gi, 1, 0)
            X, OM = 228, 232
            p.wait(lg=tk[(gi, 1)])
            for r in (y, b):
                for hh in (0, 2):
                    p(f"v_pk_add_f32 {v(r+hh,2)}, {v(r+hh,2)}, {v(r+4+hh,2)}\nv_pk_add_f32 {v(r+8+hh,2)}, {v(r+8+hh,2)}, {v(r+12+hh,2)}")
                for hh in (0, 2): p(f"v_pk_add_f32 {v(r+hh,2)}, {v(r+hh,2)}, {v(r+8+hh,2)}")
            p(f"v_sub_f32 {v(OM)}, 1.0, {v(GE+gi)}"); self.rnd(OM, OM)
            p(f"v_cvt_pk_bf16_f32 {v(b+4)}, {v(b)}, {v(b+1)}\nv_cvt_pk_bf16_f32 {v(b+5)}, {v(b+2)}, {v(b+3)}")
            self.unpack(X, XE + 2 * gi); self.unpack(X + 2, XE + 2 * gi + 1)
            self.unpack(b, b + 4); self.unpack(b + 2, b + 5)
            for hh in (0, 2): p(f"v_pk_mul_f32 {v(X+hh,2)}, {v(X+hh,2)}, {v(DU+hh,2)}")
            for hh in (0, 2): p(f"v_pk_mul_f32 {v(b+hh,2)}, {v(b+hh,2)}, {v(OM,2)} op_sel_hi:[1,0]")
            p(f"v_cvt_pk_bf16_f32 {v(b+6)}, {v(X)}, {v(X+1)}\nv_cvt_pk_bf16_f32 {v(b+7)}, {v(X+2)}, {v(X+3)}")
            p(f"v_cvt_pk_bf16_f32 {v(b+4)}, {v(b)}, {v(b+1)}\nv_cvt_pk_bf16_f32 {v(b+5)}, {v(b+2)}, {v(b+3)}")
            self.unpack(X, b + 6); self.unpack(X + 2, b + 7)
            self.unpack(b, b + 4); self.unpack(b + 2, b + 5)
            for hh in (0, 2): p(f"v_pk_add_f32 {v(y+hh,2)}, {v(y+hh,2)}, {v(X+hh,2)}")
            p(f"v_mov_b32 {v(OM)}, {v(GE+gi)}")
            for hh in (0, 2): p(f"v_pk_fma_f32 {v(y+hh,2)}, {v(y+hh,2)}, {v(OM,2)}, {v(b+hh,2)} op_sel_hi:[1,0,1]")
            p(f"s_add_u32 s{SA}, s{SD}, {gi*8192}")
            p.vmem(f"buffer_store_dwordx4 {v(y,4)}, {v(OV)}, {srd(SOUT)}, s{SA} offen")
        ne = p.label("ne")
        p(f"s_lshl_b32 s{SA}, s{STB}, 3\ns_add_u32 s{SA}, s{SA}, s{SCOL}\ns_lshl_b32 s{SA}, s{SA}, 2\ns_add_u32 s{SA}, s{SA}, s{SWV}")
        p(f"s_cmp_eq_u32 s{SA}, {255*4}\ns_cbranch_scc0 {ne}")
        p(f"s_mov_b32 s{SA}, {EPOCH}")
        self.flag(SA, 240)
        p.put(ne)
        if self.o.get("stamps"):
            self.stamp(15)
            p(f"s_memrealtime s[{SPOLL}:{SPOLL+1}]"); p.wait_lg_all()
            p(f"v_writelane_b32 v255, s{SPOLL}, 16")
            p(f"s_lshl_b32 s{SA}, s2, 2\ns_add_u32 s{SA}, s{SA}, s{SWV}\ns_lshl_b32 s{SA}, s{SA}, 8\ns_add_u32 s{SA}, s{SA}, {DBG}")
            p(f"v_lshlrev_b32 v254, 2, {v(VL)}")
            p.vmem(f"buffer_store_dword v255, v254, {srd(SWS)}, s{SA} offen")
        p.put(self.END)
        p("s_endpgm")

    def build(self):
        self.prologue()
        vm0, lg0 = self.p.vm, self.p.lg
        self.phase_z()
        self.p.vm_done = -1; self.p.lg_done = -1
        self.p("s_nop 15")
        self.phase_u()
        self.phase_g()
        self.phase_c()
        lines, added = hazard_pass(self.p.L)
        hdr = open("gated_mix__ssm_conv_s5__mixer_gmlp__prompt.s.ref").read().split("; Override")[0]
        s = hdr + "; @launch grid=(256,1,1) block=(256,1,1) lds=163840\n"
        s += '.amdgcn_target "amdgcn-amd-amdhsa--gfx950"\n.text\n'
        s += f".globl {NAME}\n.p2align 8\n.type {NAME},@function\n{NAME}:\n"
        s += "\n".join((l if l.endswith(":") else "    " + l) for l in lines) + "\n"
        s += f""".section .rodata,"a"
.p2align 6
.amdhsa_kernel {NAME}
  .amdhsa_next_free_vgpr 512
  .amdhsa_next_free_sgpr 102
  .amdhsa_accum_offset 256
  .amdhsa_group_segment_fixed_size 0
  .amdhsa_kernarg_size 144
  .amdhsa_user_sgpr_count 2
  .amdhsa_user_sgpr_kernarg_segment_ptr 1
  .amdhsa_system_sgpr_workgroup_id_x 1
  .amdhsa_float_denorm_mode_32 3
.end_amdhsa_kernel
"""
        return s, added

if __name__ == "__main__":
    out = sys.argv[1]
    opt = {}
    for a in sys.argv[2:]:
        k, _, val = a.partition("="); opt[k] = int(val) if val else 1
    s, added = G(opt).build()
    open(out, "w").write(s)
    print("wrote", out, "nops added", added, "lines", s.count("\n"))
```

```python
import sys, math
from core import *

NAME = "gated_mix__ssm_conv_s5__mixer_gmlp__prompt_kernel"
EPOCH = 0; ZF = 0x1000; HF = 0x2000; PF = 0x3000; GATE = 0x4000
ST = 0x10000; EG = 0x50000; DBG = 0x80000
Z2N = 0x100000; Z1 = 0x400000; PB = 0x700000; HB = 0xA00000; WS_END = 0xE00000
OOB = 0x80000000
SPIN = 200000
SX, SW1, SWSP, SWS, SCRE, SCIM, SWOUT, SOUT = 4, 8, 12, 16, 20, 24, 28, 32
PLRE, PLIM, PLDT, PDSK, PBSP, PGW, PBRE, PBIM, PWIN = 36, 38, 40, 42, 44, 46, 48, 50, 52
ST_T = 54
SWV, SRB, SCOL, STB = 56, 57, 58, 59
SA, SB_, SC, SD = 60, 61, 62, 63
SPOLL = 64
SK = 80
SREG = 96
SE, SF = 97, 98
SSPIN = 99
def srd(b): return f"s[{b}:{b+3}]"
def v(a, n=1): return f"v{a}" if n == 1 else f"v[{a}:{a+n-1}]"
def ar(a, n=1): return f"a{a}" if n == 1 else f"a[{a}:{a+n-1}]"
def sp(a): return f"s[{a}:{a+1}]"
VL, VL16 = 1, 2
LOG2E = 1.4426950408889634
def f2u(x):
    import struct; return struct.unpack("<I", struct.pack("<f", x))[0]

class G:
    def __init__(self, opt):
        self.o = opt
        self.p = Prog()
        self.nstamp = 0

    def stamp(self, k):
        if self.o.get("stamps"):
            p = self.p
            p(f"s_memrealtime s[{SPOLL}:{SPOLL+1}]"); p.wait_lg_all()
            p(f"v_writelane_b32 v255, s{SPOLL}, {k}")
    def spoll(self, off_sreg, n, vt, extra=None):
        p = self.p
        l = p.label("poll"); d = p.label("pd")
        p(f"v_lshl_add_u32 {v(vt)}, {v(VL)}, 2, s{off_sreg}")
        if extra is not None:
            p(f"v_writelane_b32 {v(vt)}, s{extra}, {n}"); n += 1
        p(f"s_mov_b32 s{SSPIN}, 0")
        p.put(l)
        p.vmem(f"buffer_load_dword {v(vt+1)}, {v(vt)}, {srd(SWS)}, 0 offen sc1")
        p.wait_vm_all()
        p(f"v_cmp_ne_u32 vcc, s{ST_T}, {v(vt+1)}\ns_and_b32 s{SF}, vcc_lo, {(1<<n)-1}\ns_cbranch_scc0 {d}")
        p(f"s_add_u32 s{SSPIN}, s{SSPIN}, 1\ns_cmp_lt_u32 s{SSPIN}, {SPIN}\ns_cbranch_scc1 {l}")
        p.put(d)
    def flag(self, off_sreg, vt):
        p = self.p
        p(f"v_mov_b32 {v(vt)}, s{ST_T}")
        p(f"v_cmp_eq_u32 vcc, 0, {v(VL)}")
        p(f"v_mov_b32 {v(vt+1)}, {OOB}")
        p(f"v_cndmask_b32 {v(vt+1)}, {v(vt+1)}, {v(VL)}, vcc")
        p.vmem(f"buffer_store_dword {v(vt)}, {v(vt+1)}, {srd(SWS)}, s{off_sreg} offen sc1")
    def xhalf_sum(self, a, t):
        p = self.p
        p(f"v_mov_b32 {v(t)}, {v(a)}\nv_permlane32_swap_b32 {v(a)}, {v(t)}\nv_add_f32 {v(a)}, {v(a)}, {v(t)}")
    def rnd(self, d, s):
        self.p(f"v_cvt_pk_bf16_f32 {v(d)}, {v(s)}, {v(s)}\nv_lshlrev_b32 {v(d)}, 16, {v(d)}")
    def unpack(self, d, s):
        self.p(f"v_and_b32 {v(d+1)}, 0xffff0000, {v(s)}\nv_lshlrev_b32 {v(d)}, 16, {v(s)}")
    def plain_read_addr(self, dst4, base_sreg, t):
        p = self.p
        p(f"v_and_b32 {v(t)}, 31, {v(VL)}\nv_lshlrev_b32 {v(t)}, 7, {v(t)}")
        if base_sreg is not None: p(f"v_add_u32 {v(t)}, s{base_sreg}, {v(t)}")
        p(f"v_bfe_u32 {v(t+1)}, {v(VL)}, 1, 3\nv_lshrrev_b32 {v(dst4)}, 5, {v(VL)}\nv_xor_b32 {v(t+1)}, {v(t+1)}, {v(dst4)}")
        p(f"v_lshlrev_b32 {v(t+1)}, 4, {v(t+1)}")
        for ks in range(4):
            p(f"v_xor_b32 {v(dst4+ks)}, {32*ks}, {v(t+1)}\nv_add_u32 {v(dst4+ks)}, {v(dst4+ks)}, {v(t)}")
    def plain_dma_addr(self, dst4, rowbytes, t, rowstep=8):
        p = self.p
        p(f"v_lshrrev_b32 {v(t)}, 3, {v(VL)}\nv_mul_u32_u24 {v(t)}, {rowbytes}, {v(t)}")
        self.plain_dma_addr2(dst4, t, t + 1, rowstep * rowbytes)
    def plain_dma_addr2(self, dst4, vrow, t, step):
        p = self.p
        p(f"v_and_b32 {v(t)}, 7, {v(VL)}\nv_lshrrev_b32 {v(dst4)}, 4, {v(VL)}\nv_xor_b32 {v(t)}, {v(t)}, {v(dst4)}\nv_lshlrev_b32 {v(t)}, 4, {v(t)}")
        p(f"v_add_u32 {v(dst4)}, {v(t)}, {v(vrow)}")
        p(f"v_xor_b32 {v(t)}, 64, {v(t)}\nv_add_u32 {v(dst4+1)}, {v(t)}, {v(vrow)}")
        p(f"v_add_u32 {v(dst4+2)}, {2*(step-1024)}, {v(dst4)}\nv_add_u32 {v(dst4+3)}, {3*(step-1024)}, {v(dst4+1)}\nv_add_u32 {v(dst4+1)}, {step-1024}, {v(dst4+1)}")
    def panel_tr_addr(self, dst2, base_sreg, t, perm):
        p = self.p
        p(f"v_lshrrev_b32 {v(t)}, 5, {v(VL)}\nv_lshlrev_b32 {v(t)}, 10, {v(t)}")
        p(f"v_bfe_u32 {v(t+1)}, {v(VL)}, 2, 2\nv_lshl_add_u32 {v(t)}, {v(t+1)}, 7, {v(t)}")
        p(f"v_bfe_u32 {v(t+1)}, {v(VL)}, 4, 1\nv_lshl_add_u32 {v(t)}, {v(t+1)}, 5, {v(t)}")
        if perm:
            p(f"v_and_b32 {v(t+1)}, 1, {v(VL)}\nv_lshl_add_u32 {v(t)}, {v(t+1)}, 4, {v(t)}")
            p(f"v_bfe_u32 {v(t+1)}, {v(VL)}, 1, 1\nv_lshl_add_u32 {v(t)}, {v(t+1)}, 3, {v(t)}")
        else:
            p(f"v_and_b32 {v(t+1)}, 3, {v(VL)}\nv_lshl_add_u32 {v(t)}, {v(t+1)}, 3, {v(t)}")
        p(f"v_bfe_u32 {v(t+1)}, {v(VL)}, 3, 1\nv_lshlrev_b32 {v(t+1)}, 6, {v(t+1)}")
        if base_sreg is not None: p(f"v_add_u32 {v(t)}, s{base_sreg}, {v(t)}")
        p(f"v_add_u32 {v(dst2)}, {v(t)}, {v(t+1)}\nv_xor_b32 {v(t+1)}, 64, {v(t+1)}\nv_add_u32 {v(dst2+1)}, {v(t)}, {v(t+1)}")
    def unit_tr_addr(self, dst2, base_sreg, t, perm):
        p = self.p
        p(f"v_bfe_u32 {v(t)}, {v(VL)}, 4, 1\nv_lshlrev_b32 {v(t)}, 1, {v(t)}")
        p(f"v_bfe_u32 {v(t+1)}, {v(VL)}, {0 if perm else 1}, 1\nv_or_b32 {v(t)}, {v(t)}, {v(t+1)}")
        p(f"v_lshrrev_b32 {v(t+1)}, 5, {v(VL)}\nv_lshlrev_b32 {v(t+1)}, 1, {v(t+1)}\nv_xor_b32 {v(t+1)}, {v(t+1)}, {v(t)}")
        p(f"v_lshlrev_b32 {v(t)}, 9, {v(t)}")
        p(f"v_bfe_u32 {v(t+2)}, {v(VL)}, 2, 2\nv_lshl_add_u32 {v(t)}, {v(t+2)}, 4, {v(t)}")
        p(f"v_bfe_u32 {v(t+2)}, {v(VL)}, {1 if perm else 0}, 1\nv_lshl_add_u32 {v(t)}, {v(t+2)}, 3, {v(t)}")
        if base_sreg is not None: p(f"v_add_u32 {v(t)}, s{base_sreg}, {v(t)}")
        p(f"v_lshl_add_u32 {v(dst2)}, {v(t+1)}, 6, {v(t)}")
        p(f"v_xor_b32 {v(t+1)}, 1, {v(t+1)}\nv_lshl_add_u32 {v(dst2+1)}, {v(t+1)}, 6, {v(t)}")

    def gemm_loop(self, nstage, sps, nslot, reads, mfmas, dma, tick, rfront):
        p = self.p
        p.wait(vm=tick[0]); p("s_barrier")
        if self.o.get("stamps", 0) > 1: self.stamp(20)
        for op in reads(0): op()
        pend = []
        ns = nstage * sps
        for n in range(ns):
            rd = []
            if n + 1 < ns:
                if (n + 1) % sps == 0:
                    st = (n + 1) // sps
                    p.wait(vm=tick[st], lg=p.lg - 1); p("s_barrier")
                    if self.o.get("stamps", 0) > 1: self.stamp(20 + st)
                    if st - 1 + nslot < nstage:
                        d = dma(st - 1 + nslot)
                        q = (len(d) + sps - 1) // sps
                        pend = [d[i * q:(i + 1) * q] for i in range(sps)]
                rd = reads(n + 1)
            mm = mfmas(n)
            seq = merge(mm, rd, 0, rfront)
            if pend:
                dd = pend.pop(0)
                seq = merge(seq, dd, len(seq) // 2)
            for op in seq: op()

    def gelu_pair(self, a, t, out_packed=None):
        p = self.p
        p(f"v_cvt_pk_bf16_f32 {v(t)}, {v(a)}, {v(a+1)}")
        self.unpack(a, t)
        p(f"v_pk_mul_f32 {v(t,2)}, {v(a,2)}, {v(a,2)}")
        p(f"v_pk_fma_f32 {v(t,2)}, {v(t,2)}, {sp(SK)}, {v(self.VC0,2)} op_sel_hi:[1,0,0]")
        p(f"v_pk_mul_f32 {v(t,2)}, {v(t,2)}, {v(a,2)}")
        p(f"v_exp_f32 {v(t)}, {v(t)}\nv_exp_f32 {v(t+1)}, {v(t+1)}")
        p(f"v_pk_add_f32 {v(t,2)}, {v(t,2)}, 1.0 op_sel_hi:[1,0]")
        p(f"v_rcp_f32 {v(t)}, {v(t)}\nv_rcp_f32 {v(t+1)}, {v(t+1)}")
        p(f"v_pk_mul_f32 {v(t,2)}, {v(t,2)}, {v(a,2)}")
        if out_packed is not None:
            p(f"v_cvt_pk_bf16_f32 {v(out_packed)}, {v(t)}, {v(t+1)}")
        else:
            p(f"v_cvt_pk_bf16_f32 {v(t)}, {v(t)}, {v(t+1)}")
            self.unpack(a, t)
    def gelu_many(self, pairs, temps, outs=None):
        p = self.p
        ng = len(temps)
        for g0 in range(0, len(pairs), ng):
            grp = list(range(g0, min(g0 + ng, len(pairs))))
            streams = []
            for k, i in enumerate(grp):
                sub = Prog(); save = self.p; self.p = sub
                self.gelu_pair(pairs[i], temps[k], None if outs is None else outs[i])
                self.p = save
                streams.append(sub.L)
            for j in range(len(streams[0])):
                for s in streams: p(s[j])

    def wsp_setup(self, VD, VR, t):
        p = self.p
        self.plain_dma_addr(VD, 4096, t)
        self.plain_read_addr(VR, SREG, t)
        self.VWD, self.VWR = VD, VR
    def wsp_dma(self, batch):
        p = self.p
        p(f"s_lshl_b32 s{SA}, s{STB}, 18\ns_lshl_b32 s{SB_}, s{SWV}, 10\ns_add_u32 s{SA}, s{SA}, s{SB_}")
        t = None
        for s4 in range(4):
            st = batch * 4 + s4
            for hh in range(2):
                p(f"s_add_u32 s{SB_}, s{SA}, {st*128 + hh*131072}")
                p(f"s_add_u32 m0, s{SREG}, {s4*8192 + hh*4096}")
                for i in range(4):
                    t = p.vmem(f"buffer_load_dwordx4 {v(self.VWD+i)}, {srd(SWSP)}, s{SB_} offen offset:{i*1024} lds")
            self.wsp_t = getattr(self, "wsp_t", {}); self.wsp_t[st] = t
    def wsp_read(self, batch):
        p = self.p
        for s4 in range(4):
            st = batch * 4 + s4
            p.wait(vm=self.wsp_t[st])
            for ks in range(4):
                for nt in range(2):
                    kap = st * 4 + ks
                    p.lds(f"ds_read_b128 {ar((kap*2+nt)*4,4)}, {v(self.VWR+ks)} offset:{s4*8192+nt*4096}")
            p.wait(lg=p.lg - 8)
        p.wait_lg_all()

    def prologue(self):
        p = self.p
        self.END = p.label("end")
        p(f"s_cmp_ge_u32 s2, 256\ns_cbranch_scc1 {self.END}")
        for (r, off) in [(SX, 0), (PWIN, 80), (SWS, 136), (SWSP, 88), (SCRE, 40), (SCIM, 48), (SWOUT, 104), (SOUT, 120),
                         (PLDT, 56), (PDSK, 64), (PBSP, 96), (PGW, 112)]:
            p(f"s_load_dwordx2 {sp(r)}, s[0:1], {off}")
        p(f"s_load_dwordx4 s[{PBRE}:{PBRE+3}], s[0:1], 24")
        p(f"s_load_dwordx4 s[{PLRE}:{PLRE+3}], s[0:1], 8")
        p(f"v_lshrrev_b32 v2, 6, v0\nv_and_b32 {v(VL)}, 63, v0\nv_readfirstlane_b32 s{SWV}, v2\nv_lshlrev_b32 {v(VL16)}, 4, {v(VL)}")
        if self.o.get("stamps"):
            p("v_mov_b32 v255, 0")
            self.stamp(17)
        p(f"s_and_b32 s{SA}, s2, 7\ns_lshr_b32 s{SB_}, s2, 3")
        p(f"s_and_b32 s{SC}, s{SA}, 1\ns_lshl_b32 s{SC}, s{SC}, 2\ns_and_b32 s{SD}, s{SB_}, 3\ns_add_u32 s{SCOL}, s{SC}, s{SD}")
        p(f"s_lshr_b32 s{SA}, s{SA}, 1")
        p(f"s_lshr_b32 s{SC}, s{SB_}, 2\ns_lshl_b32 s{SD}, s{SA}, 3\ns_add_u32 s{STB}, s{SD}, s{SC}")
        p(f"s_and_b32 s{SC}, s{SC}, 3\ns_lshl_b32 s{SD}, s{SA}, 2\ns_add_u32 s{SRB}, s{SD}, s{SC}")
        p(f"s_mul_i32 s{SREG}, s{SWV}, 40960")
        for (r, n) in [(SX, 2097152), (SWSP, 8388608), (SWS, WS_END), (SCRE, 524288), (SCIM, 524288), (SWOUT, 704512), (SOUT, 4194304)]:
            p(f"s_mov_b32 s{r+2}, {n}\ns_mov_b32 s{r+3}, 0x20000")
        p(f"s_mov_b32 s{SW1+3}, 0x20000")
        self.LU = p.label("U"); self.LG = p.label("G")
        p(f"s_cmp_ge_u32 s{SB_}, 16\ns_cbranch_scc1 {self.LU}")
    def epoch(self):
        p = self.p
        p(f"s_load_dword s{ST_T}, {sp(SWS)}, {EPOCH}")
    def epoch2(self):
        p = self.p
        p.wait_lg_all()
        p(f"s_mul_i32 s{ST_T}, s{ST_T}, 0x9E3779B1\ns_add_u32 s{ST_T}, s{ST_T}, 0x7F4A7C15\ns_mov_b32 s{ST_T+1}, s{ST_T}")

    def phase_z(self):
        p = self.p
        ACC, FA, FB, XR, WR, XD, WD, T = 16, 112, 160, 168, 172, 176, 180, 186
        p.c("==== phase A: Z ====")
        self.plain_dma_addr(XD, 1024, T)
        p(f"v_lshrrev_b32 {v(T)}, 3, {v(VL)}\nv_mul_u32_u24 {v(T)}, 2752, {v(T)}")
        p(f"v_bfe_u32 {v(T+1)}, {v(VL)}, 4, 1\nv_lshlrev_b32 {v(T+1)}, 2, {v(T+1)}\nv_and_b32 {v(T+2)}, 7, {v(VL)}\nv_xor_b32 {v(T+1)}, {v(T+1)}, {v(T+2)}")
        p(f"v_lshl_add_u32 {v(T)}, {v(T+1)}, 4, {v(T)}")
        p(f"v_add_u32 {v(WD)}, 1376, {v(T)}\nv_add_u32 {v(WD+4)}, 64, {v(T)}")
        p(f"v_cmp_gt_u32 vcc, 4, {v(T+1)}\nv_add_u32 {v(T+2)}, {1376+128}, {v(T)}\nv_subrev_u32 {v(T+3)}, 64, {v(T)}")
        p(f"v_cndmask_b32 {v(WD+2)}, {v(T+3)}, {v(T+2)}, vcc")
        for pi in range(3): p(f"v_add_u32 {v(WD+2*pi+1)}, {8*2752-1024}, {v(WD+2*pi)}")
        p(f"s_lshl_b32 s{SC}, s{SRB}, 17\ns_lshl_b32 s{SA}, s{SWV}, 15\ns_add_u32 s{SC}, s{SC}, s{SA}")
        p(f"s_mul_i32 s{SD}, s{SWV}, {16*2752}\ns_mul_i32 s{SA}, s{SCOL}, 176\ns_add_u32 s{SD}, s{SD}, s{SA}")
        p(f"s_lshl_b32 s{SE}, s{SWV}, 12\ns_lshl_b32 s{SF}, s{SWV}, 11\ns_add_u32 s{SF}, s{SF}, 65536")
        p.wait_lg_all()
        p(f"s_mov_b32 s{SW1}, s{PWIN}\ns_mov_b32 s{SW1+1}, s{PWIN+1}\ns_mov_b32 s{SW1+2}, {512*2752}")
        tick = {}
        def dma(st):
            sl = st & 3; ops = []
            def x0():
                p(f"s_add_u32 s{SA}, s{SC}, {st*128}\ns_add_u32 m0, s{SE}, {sl*16384}")
                p.vmem(f"buffer_load_dwordx4 {v(XD)}, {srd(SX)}, s{SA} offen lds")
            ops.append(x0)
            for i in range(1, 4):
                ops.append(lambda i=i: p.vmem(f"buffer_load_dwordx4 {v(XD+i)}, {srd(SX)}, s{SA} offen offset:{i*1024} lds"))
            for pi in range(3):
                def w0(pi=pi):
                    if pi == 0: p(f"s_add_u32 s{SB_}, s{SD}, {st*64*2752}")
                    p(f"s_add_u32 m0, s{SF}, {sl*24576+pi*8192}")
                    p.vmem(f"buffer_load_dwordx4 {v(WD+2*pi)}, {srd(SW1)}, s{SB_} offen lds")
                def w1(pi=pi):
                    tick[st] = p.vmem(f"buffer_load_dwordx4 {v(WD+2*pi+1)}, {srd(SW1)}, s{SB_} offen offset:1024 lds")
                ops += [w0, w1]
            return ops
        for st in range(4):
            for op in dma(st): op()
        self.epoch()
        self.stamp(0)
        self.plain_read_addr(XR, SE, T)
        self.panel_tr_addr(WR, None, T, True)
        p(f"v_add_u32 {v(WR+2)}, {65536+49152}, {v(WR)}\nv_add_u32 {v(WR+3)}, {65536+49152}, {v(WR+1)}")
        p(f"v_add_u32 {v(WR)}, 65536, {v(WR)}\nv_add_u32 {v(WR+1)}, 65536, {v(WR+1)}")
        self.wsp_setup(200, 204, T)
        self.VC0 = 208
        c1 = -2 * LOG2E * 0.7978845608028654
        p(f"s_mov_b32 s{SK}, {f2u(c1*0.044715)}\nv_mov_b32 {v(self.VC0)}, {f2u(c1)}")
        self.epoch2()
        rt = {}
        def reads(n):
            st, ks = n // 4, n % 4; sl = st & 3; s = n & 1; ops = []
            def rb(): rt[(n, 'b')] = p.lds(f"ds_read_b128 {v(FB+4*s,4)}, {v(XR+ks)} offset:{sl*16384}")
            ops.append(rb)
            for mt in range(6):
                for a in range(2):
                    def ra(mt=mt, a=a):
                        rt[(n, mt)] = p.lds(f"ds_read_b64_tr_b16 {v(FA+24*s+4*mt+2*a,2)}, {v(WR+2*(sl>>1)+(mt&1))} offset:{(sl&1)*24576+(mt>>1)*8192+ks*2048+a*512}")
                    ops.append(ra)
            return ops
        def mfmas(n):
            s = n & 1; ops = []
            for mt in range(6):
                def m(mt=mt):
                    p.wait(lg=rt[(n, mt)])
                    c = "0" if n == 0 else v(ACC + 16 * mt, 16)
                    p(f"v_mfma_f32_32x32x16_bf16 {v(ACC+16*mt,16)}, {v(FA+24*s+4*mt,4)}, {v(FB+4*s,4)}, {c}")
                ops.append(m)
            return ops
        self.gemm_loop(8, 4, 4, reads, mfmas, dma, tick, 4)
        self.stamp(1)
        p("s_barrier")
        self.wsp_dma(0)
        TT = [112, 116, 120, 124]
        self.gelu_many([ACC + 2 * i for i in range(24)], TT)
        MA, MB = SK + 2, SK + 4
        p(f"s_cmp_lt_u32 s{SCOL}, 7")
        p(f"s_mov_b32 s{MA}, -1\ns_cselect_b32 s{MA+1}, -1, 0\ns_cselect_b32 s{MB}, -1, 0\ns_mov_b32 s{MB+1}, 0")
        p(f"s_mov_b32 s{SK+6}, {f2u(1/72)}\ns_cselect_b32 s{SK+6}, {f2u(1/88)}, s{SK+6}")
        S0, S1, MU = 112, 114, 116
        p(f"v_pk_add_f32 {v(S0,2)}, {v(ACC,2)}, {v(ACC+2,2)}\nv_pk_add_f32 {v(S1,2)}, {v(ACC+4,2)}, {v(ACC+6,2)}")
        for i in range(4, 16):
            s = S0 if i % 2 == 0 else S1
            p(f"v_pk_add_f32 {v(s,2)}, {v(s,2)}, {v(ACC+2*i,2)}")
        for (m, b) in [(MA, 16), (MB, 20)]:
            p(f"s_mov_b64 exec, {sp(m)}")
            for i in range(b, b + 4):
                s = S0 if i % 2 == 0 else S1
                p(f"v_pk_add_f32 {v(s,2)}, {v(s,2)}, {v(ACC+2*i,2)}")
        p("s_mov_b64 exec, -1")
        GR = 120
        p(f"v_pk_add_f32 {v(S0,2)}, {v(S0,2)}, {v(S1,2)}\nv_add_f32 {v(GR)}, {v(S0)}, {v(S0+1)}")
        self.xhalf_sum(GR, S0)
        p(f"v_mul_f32 {v(MU)}, s{SK+6}, {v(GR)}")
        D0, D1 = 124, 126
        p(f"v_mov_b32 {v(S0)}, 0\nv_mov_b32 {v(S0+1)}, 0\nv_mov_b32 {v(S1)}, 0\nv_mov_b32 {v(S1+1)}, 0")
        def m2(i):
            d = D0 if i % 2 == 0 else D1; s = S0 if i % 2 == 0 else S1
            p(f"v_pk_add_f32 {v(d,2)}, {v(ACC+2*i,2)}, {v(MU,2)} op_sel_hi:[1,0] neg_lo:[0,1] neg_hi:[0,1]")
            p(f"v_pk_fma_f32 {v(s,2)}, {v(d,2)}, {v(d,2)}, {v(s,2)}")
        for i in range(16): m2(i)
        for (m, b) in [(MA, 16), (MB, 20)]:
            p(f"s_mov_b64 exec, {sp(m)}")
            for i in range(b, b + 4): m2(i)
        p("s_mov_b64 exec, -1")
        p(f"v_pk_add_f32 {v(S0,2)}, {v(S0,2)}, {v(S1,2)}\nv_add_f32 {v(GR+2)}, {v(S0)}, {v(S0+1)}")
        self.xhalf_sum(GR + 2, S0)
        p(f"v_mov_b32 {v(GR+1)}, s{ST_T}\nv_mov_b32 {v(GR+3)}, s{ST_T}")
        VLO = 128
        p(f"v_cmp_gt_u32 vcc, 32, {v(VL)}\nv_mov_b32 {v(VLO)}, {OOB}\nv_cndmask_b32 {v(VLO)}, {v(VLO)}, {v(VL16)}, vcc")
        p(f"s_lshl_b32 s{SC}, s{SRB}, 2\ns_add_u32 s{SC}, s{SC}, s{SWV}")
        p(f"s_lshl_b32 s{SD}, s{SC}, 12\ns_add_u32 s{SD}, s{SD}, {ST}\ns_lshl_b32 s{SA}, s{SCOL}, 9\ns_add_u32 s{SA}, s{SA}, s{SD}")
        p.vmem(f"buffer_store_dwordx4 {v(GR,4)}, {v(VLO)}, {srd(SWS)}, s{SA} offen sc1")
        self.stamp(2)
        Z1P = 132
        self.gelu_many([ACC + 48 + 2 * i for i in range(24)], [112, 116, 156, 160], [Z1P + i for i in range(24)])
        p(f"s_lshl_b32 s{SA}, s{SCOL}, 6\ns_add_u32 s{SA}, s{SA}, s{SC}\ns_mul_i32 s{SE}, s{SA}, 5632")
        p(f"s_add_u32 s{SA}, s{SE}, {Z1}\ns_add_u32 s{SB_}, s{SA}, 4096")
        VA_, VB_ = 112, 113
        p(f"v_mov_b32 {v(114)}, {OOB}")
        p(f"v_cndmask_b32 {v(VA_)}, {v(114)}, {v(VL16)}, {sp(MA)}\nv_cndmask_b32 {v(VB_)}, {v(114)}, {v(VL16)}, {sp(MB)}")
        for mt in range(3):
            for q in range(2):
                r = v(Z1P + 8 * mt + 4 * q, 4)
                if mt < 2: p.vmem(f"buffer_store_dwordx4 {r}, {v(VL16)}, {srd(SWS)}, s{SA} offen offset:{mt*2048+q*1024} sc1")
                else: p.vmem(f"buffer_store_dwordx4 {r}, {v(VA_+q)}, {srd(SWS)}, s{SB_} offen offset:{q*1024} sc1")
        self.stamp(3)
        SG = 64 + 16
        SG = 64
        l = p.label("sp"); d = p.label("sd")
        p(f"s_mov_b32 s{SSPIN}, 0")
        p.put(l)
        for q in range(4):
            p.vmem(f"buffer_load_dwordx4 {v(SG+4*q,4)}, {v(VL16)}, {srd(SWS)}, s{SD} offen offset:{q*1024} sc1")
        p.wait_vm_all()
        p(f"v_xor_b32 {v(80)}, s{ST_T}, {v(SG+1)}")
        for r in [3, 5, 7, 9, 11, 13, 15]:
            p(f"v_xor_b32 {v(81)}, s{ST_T}, {v(SG+r)}\nv_or_b32 {v(80)}, {v(80)}, {v(81)}")
        p(f"v_cmp_ne_u32 vcc, 0, {v(80)}\ns_cmp_eq_u64 vcc, 0\ns_cbranch_scc1 {d}")
        p(f"s_add_u32 s{SSPIN}, s{SSPIN}, 1\ns_cmp_lt_u32 s{SSPIN}, {SPIN}\ns_cbranch_scc1 {l}")
        p.put(d)
        self.stamp(4)
        MN, VR, N3, I3, TM = 80, 81, 82, 83, 84
        p(f"v_add_f32 {v(MN)}, {v(SG)}, {v(SG+4)}\nv_add_f32 {v(TM)}, {v(SG+8)}, {v(SG+12)}\nv_add_f32 {v(MN)}, {v(MN)}, {v(TM)}")
        self.xhalf_sum(MN, TM)
        p(f"v_mul_f32 {v(MN)}, {f2u(1/688)}, {v(MN)}")
        p(f"v_cmp_gt_u32 vcc, 32, {v(VL)}\nv_mov_b32 {v(N3)}, {f2u(72.0)}\nv_mov_b32 {v(TM)}, {f2u(88.0)}\nv_cndmask_b32 {v(N3)}, {v(N3)}, {v(TM)}, vcc")
        p(f"v_mov_b32 {v(I3)}, {f2u(1/72)}\nv_mov_b32 {v(TM+1)}, {f2u(1/88)}\nv_cndmask_b32 {v(I3)}, {v(I3)}, {v(TM+1)}, vcc")
        p(f"v_add_f32 {v(VR)}, {v(SG+2)}, {v(SG+6)}\nv_add_f32 {v(TM+2)}, {v(SG+10)}, {v(SG+14)}\nv_add_f32 {v(VR)}, {v(VR)}, {v(TM+2)}")
        for q in range(4):
            n_, i_ = (TM, TM + 1) if q < 3 else (N3, I3)
            p(f"v_fma_f32 {v(TM+2)}, {v(SG+4*q)}, {v(i_)}, -{v(MN)}\nv_mul_f32 {v(TM+2)}, {v(TM+2)}, {v(TM+2)}\nv_fmac_f32 {v(VR)}, {v(TM+2)}, {v(n_)}")
        self.xhalf_sum(VR, TM)
        p(f"v_mul_f32 {v(VR)}, {f2u(1/688)}, {v(VR)}")
        self.rnd(MN, MN); self.rnd(VR, VR)
        p(f"v_add_f32 {v(VR)}, {f2u(1e-5)}, {v(VR)}"); self.rnd(VR, VR)
        p(f"v_sqrt_f32 {v(VR)}, {v(VR)}"); self.rnd(VR, VR)
        p(f"v_rcp_f32 {v(VR)}, {v(VR)}")
        ZP = 132
        for i in range(24):
            a = ACC + 2 * i
            p(f"v_pk_add_f32 {v(a,2)}, {v(a,2)}, {v(MN,2)} op_sel_hi:[1,0] neg_lo:[0,1] neg_hi:[0,1]")
        if self.o.get("ln_round", 1):
            for i in range(24): p(f"v_cvt_pk_bf16_f32 {v(ZP+i)}, {v(ACC+2*i)}, {v(ACC+2*i+1)}")
            for i in range(24): self.unpack(ACC + 2 * i, ZP + i)
        for i in range(24):
            a = ACC + 2 * i
            p(f"v_pk_mul_f32 {v(a,2)}, {v(a,2)}, {v(MN,2)} op_sel:[0,1] op_sel_hi:[1,1]")
        for i in range(24): p(f"v_cvt_pk_bf16_f32 {v(ZP+i)}, {v(ACC+2*i)}, {v(ACC+2*i+1)}")
        Q0, Q1, QA, QB = 84, 85, 86, 87
        p(f"v_lshrrev_b32 {v(Q1)}, 5, {v(VL)}\nv_lshlrev_b32 {v(Q1)}, 6, {v(Q1)}\nv_xor_b32 {v(Q0)}, {v(VL16)}, {v(Q1)}\nv_xor_b32 {v(Q1)}, 128, {v(Q0)}")
        p(f"v_cndmask_b32 {v(QA)}, {v(114)}, {v(Q0)}, {sp(MA)}\nv_cndmask_b32 {v(QB)}, {v(114)}, {v(Q1)}, {sp(MB)}")
        p(f"s_add_u32 s{SA}, s{SE}, {Z2N}\ns_add_u32 s{SB_}, s{SA}, 4096")
        for mt in range(3):
            for q in range(2):
                r = v(ZP + 8 * mt + 4 * q, 4)
                if mt < 2: t = p.vmem(f"buffer_store_dwordx4 {r}, {v(Q0+q)}, {srd(SWS)}, s{SA} offen offset:{mt*2048+q*1024} sc1")
                else: t = p.vmem(f"buffer_store_dwordx4 {r}, {v(QA+q)}, {srd(SWS)}, s{SB_} offen offset:{q*1024} sc1")
        self.wsp_read(0)
        p.wait(vm=t)
        p(f"s_lshl_b32 s{SA}, s{SCOL}, 6\ns_add_u32 s{SA}, s{SA}, s{SC}\ns_lshl_b32 s{SA}, s{SA}, 2\ns_add_u32 s{SA}, s{SA}, {ZF}")
        self.flag(SA, 88)
        self.stamp(5)
        p(f"s_branch {self.LG}")

    def phase_u(self):
        p = self.p
        ACC, FA, FB, XR, BR, XD, BD, T = 16, 80, 96, 112, 116, 120, 124, 128
        p.c("==== phase A: U ====")
        p.put(self.LU)
        p(f"v_lshrrev_b32 {v(T)}, 5, {v(VL)}\nv_lshlrev_b32 {v(T)}, 15, {v(T)}")
        p(f"v_bfe_u32 {v(T+1)}, {v(VL)}, 3, 1\nv_lshl_add_u32 {v(T)}, {v(T+1)}, 14, {v(T)}")
        p(f"v_bfe_u32 {v(T+1)}, {v(VL)}, 4, 1\nv_lshl_add_u32 {v(T)}, {v(T+1)}, 10, {v(T)}")
        self.plain_dma_addr2(XD, T, T + 1, 2048)
        self.plain_dma_addr(BD, 1024, T)
        p(f"s_lshr_b32 s{SA}, s{SWV}, 1\ns_and_b32 s{SB_}, s{SWV}, 1")
        p(f"s_lshl_b32 s{SC}, s{SRB}, 17\ns_lshl_b32 s{SD}, s{SA}, 16\ns_add_u32 s{SC}, s{SC}, s{SD}\ns_lshl_b32 s{SD}, s{SB_}, 13\ns_add_u32 s{SC}, s{SC}, s{SD}")
        p(f"s_lshl_b32 s{SD}, s{SCOL}, 16\ns_lshl_b32 s{SE}, s{SB_}, 15\ns_add_u32 s{SD}, s{SD}, s{SE}")
        p(f"s_lshl_b32 s{SE}, s{SWV}, 12")
        p.wait_lg_all()
        p(f"s_cmp_eq_u32 s{SA}, 0\ns_cselect_b32 s{SW1}, s{PBRE}, s{PBIM}\ns_cselect_b32 s{SW1+1}, s{PBRE+1}, s{PBIM+1}\ns_mov_b32 s{SW1+2}, 524288")
        tick = {}
        def dma(st):
            sl = st & 3; ops = []
            for (vd, sr, sb, lb) in [(XD, SX, SC, 0), (BD, SW1, SD, 65536)]:
                def f0(vd=vd, sr=sr, sb=sb, lb=lb):
                    p(f"s_add_u32 s{SA}, s{sb}, {st*128}\ns_add_u32 m0, s{SE}, {lb+sl*16384}")
                    p.vmem(f"buffer_load_dwordx4 {v(vd)}, {srd(sr)}, s{SA} offen lds")
                ops.append(f0)
                for i in range(1, 4):
                    def f(i=i, vd=vd, sr=sr):
                        tick[st] = p.vmem(f"buffer_load_dwordx4 {v(vd+i)}, {srd(sr)}, s{SA} offen offset:{i*1024} lds")
                    ops.append(f)
            return ops
        for st in range(4):
            for op in dma(st): op()
        self.epoch()
        self.stamp(0)
        WT, WP = SK + 8, SK + 9
        p(f"s_and_b32 s{WT}, s{SWV}, 1\ns_lshr_b32 s{WP}, s{SWV}, 1")
        PR = 140
        p(f"s_lshl_b32 s{SA}, s{SCOL}, 6\ns_lshl_b32 s{SB_}, s{WP}, 5\ns_add_u32 s{SA}, s{SA}, s{SB_}")
        p(f"v_and_b32 {v(T)}, 31, {v(VL)}\nv_add_u32 {v(T)}, s{SA}, {v(T)}\nv_lshlrev_b32 {v(T)}, 1, {v(T)}")
        p.vmem(f"global_load_ushort {v(PR)}, {v(T)}, {sp(PLRE)}")
        p.vmem(f"global_load_ushort {v(PR+1)}, {v(T)}, {sp(PLIM)}")
        tp = p.vmem(f"global_load_ushort {v(PR+2)}, {v(T)}, {sp(PLDT)}")
        p(f"s_lshl_b32 s{SA}, s{WT}, 13")
        self.plain_read_addr(XR, SA, T)
        p(f"s_lshl_b32 s{SA}, s{WP}, 12\ns_add_u32 s{SA}, s{SA}, 65536")
        self.plain_read_addr(BR, SA, T)
        self.wsp_setup(200, 204, T)
        self.epoch2()
        rt = {}
        def reads(n):
            st, ks = n // 4, n % 4; sl = st & 3; s = n & 1; ops = []
            for k in range(2):
                def ra(k=k): rt[(n, 'a', k)] = p.lds(f"ds_read_b128 {v(FA+8*s+4*k,4)}, {v(XR+ks)} offset:{sl*16384+k*4096}")
                def rb(k=k): rt[(n, 'b', k)] = p.lds(f"ds_read_b128 {v(FB+8*s+4*k,4)}, {v(BR+ks)} offset:{sl*16384+k*8192}")
                ops += [ra, rb]
            return ops
        def mfmas(n):
            s = n & 1; ops = []
            for (mt, cp) in [(0, 0), (1, 0), (1, 1), (0, 1)]:
                def m(mt=mt, cp=cp):
                    p.wait(lg=max(rt[(n, 'a', mt)], rt[(n, 'b', cp)]))
                    d = v(ACC + 32 * mt + 16 * cp, 16)
                    p(f"v_mfma_f32_32x32x16_bf16 {d}, {v(FA+8*s+4*mt,4)}, {v(FB+8*s+4*cp,4)}, {'0' if n == 0 else d}")
                ops.append(m)
            return ops
        self.gemm_loop(8, 4, 4, reads, mfmas, dma, tick, 3)
        self.stamp(1)
        p("s_barrier")
        self.wsp_dma(0)
        LB, CF, L16, L128, L256, LQ0, LQ1 = 144, 146, 148, 150, 152, 154, 156
        X0, X1, X2, X3 = 160, 161, 162, 163
        p(f"v_lshlrev_b32 {v(PR)}, 16, {v(PR)}\nv_lshlrev_b32 {v(PR+1)}, 16, {v(PR+1)}\nv_lshlrev_b32 {v(PR+2)}, 16, {v(PR+2)}")
        p(f"v_mul_f32 {v(X0)}, {f2u(LOG2E)}, {v(PR+2)}\nv_exp_f32 {v(X0)}, {v(X0)}"); self.rnd(X0, X0)
        p(f"v_mul_f32 {v(X1)}, {v(X0)}, {v(PR)}\nv_mul_f32 {v(X2)}, {v(X0)}, {v(PR+1)}")
        p(f"v_mul_f32 {v(X1)}, {f2u(LOG2E)}, {v(X1)}\nv_exp_f32 {v(X1)}, {v(X1)}")
        p(f"v_mul_f32 {v(X2)}, {f2u(1/(2*math.pi))}, {v(X2)}\nv_fract_f32 {v(X2)}, {v(X2)}")
        p(f"v_cos_f32 {v(X3)}, {v(X2)}\nv_sin_f32 {v(X2)}, {v(X2)}")
        p(f"v_mul_f32 {v(LB)}, {v(X1)}, {v(X3)}\nv_mul_f32 {v(LB+1)}, {v(X1)}, {v(X2)}")
        p(f"v_mul_f32 {v(X0)}, {v(PR)}, {v(PR)}\nv_fmac_f32 {v(X0)}, {v(PR+1)}, {v(PR+1)}\nv_rcp_f32 {v(X0)}, {v(X0)}")
        p(f"v_add_f32 {v(X1)}, -1.0, {v(LB)}\nv_add_f32 {v(X0)}, {v(X0)}, {v(X0)}")
        p(f"v_mul_f32 {v(X2)}, {v(X1)}, {v(PR)}\nv_fmac_f32 {v(X2)}, {v(LB+1)}, {v(PR+1)}\nv_mul_f32 {v(CF)}, {v(X2)}, {v(X0)}")
        p(f"v_mul_f32 {v(X2)}, {v(LB+1)}, {v(PR)}\nv_fma_f32 {v(X2)}, -{v(X1)}, {v(PR+1)}, {v(X2)}\nv_mul_f32 {v(CF+1)}, {v(X2)}, {v(X0)}")
        def csq(d, s):
            p(f"v_mul_f32 {v(X0)}, {v(s+1)}, {v(s+1)}\nv_add_f32 {v(X1)}, {v(s)}, {v(s)}")
            p(f"v_mul_f32 {v(d+1)}, {v(X1)}, {v(s+1)}\nv_fma_f32 {v(d)}, {v(s)}, {v(s)}, -{v(X0)}")
        def cmul(d, a, b):
            p(f"v_mul_f32 {v(X0)}, {v(a+1)}, {v(b+1)}\nv_mul_f32 {v(X1)}, {v(a+1)}, {v(b)}")
            p(f"v_fma_f32 {v(X0)}, {v(a)}, {v(b)}, -{v(X0)}\nv_fma_f32 {v(d+1)}, {v(a)}, {v(b+1)}, {v(X1)}\nv_mov_b32 {v(d)}, {v(X0)}")
        def cfma(d, a, b, c):
            p(f"v_fma_f32 {v(X0)}, {v(a)}, {v(b)}, {v(c)}\nv_fma_f32 {v(X1)}, {v(a)}, {v(b+1)}, {v(c+1)}")
            p(f"v_fma_f32 {v(X0)}, -{v(a+1)}, {v(b+1)}, {v(X0)}\nv_fma_f32 {v(d+1)}, {v(a+1)}, {v(b)}, {v(X1)}\nv_mov_b32 {v(d)}, {v(X0)}")
        L32, L64 = 164, 166
        csq(L16, LB); csq(L16, L16); csq(L16, L16); csq(L16, L16)
        csq(L32, L16); csq(L64, L32); csq(L128, L64); csq(L256, L128)
        p(f"v_cmp_gt_u32 vcc, 32, {v(VL)}\nv_cndmask_b32 {v(LQ0)}, {v(L32)}, 1.0, vcc\nv_cndmask_b32 {v(LQ0+1)}, {v(L32+1)}, 0, vcc")
        sk = p.label("wt0")
        p(f"s_cmp_eq_u32 s{WT}, 0\ns_cbranch_scc1 {sk}")
        cmul(LQ0, LQ0, L64)
        p.put(sk)
        cmul(LQ1, LQ0, L16)
        def U(sg, cp): return ACC + 32 * (sg >> 3) + 16 * cp + 4 * ((sg & 7) >> 1) + 2 * (sg & 1)
        def step(hr, hi, sg, nr, ni, t0, t1):
            A = v(LB, 2)
            p(f"v_pk_fma_f32 {v(t0,2)}, {A}, {v(hr,2)}, {v(U(sg,0),2)} op_sel_hi:[0,1,1]")
            p(f"v_pk_fma_f32 {v(t1,2)}, {A}, {v(hi,2)}, {v(U(sg,1),2)} op_sel_hi:[0,1,1]")
            p(f"v_pk_fma_f32 {v(nr,2)}, {A}, {v(hi,2)}, {v(t0,2)} op_sel:[1,0,0] op_sel_hi:[1,1,1] neg_lo:[1,0,0] neg_hi:[1,0,0]")
            p(f"v_pk_fma_f32 {v(ni,2)}, {A}, {v(hr,2)}, {v(t1,2)} op_sel:[1,0,0] op_sel_hi:[1,1,1]")
        HA, HBb, T0 = 80, 84, 88
        hr, hi = U(0, 0), U(0, 1)
        for sg in range(1, 16):
            nr, ni = (HA, HA + 2) if sg & 1 else (HBb, HBb + 2)
            step(hr, hi, sg, nr, ni, T0, T0 + 2)
            hr, hi = nr, ni
        EX = 92
        p(f"v_mov_b32 {v(EX)}, {v(hr)}\nv_mov_b32 {v(EX+1)}, {v(hi)}\nv_mov_b32 {v(EX+2)}, {v(hr+1)}\nv_mov_b32 {v(EX+3)}, {v(hi+1)}")
        SCR = 163840 - 4096
        p(f"s_lshl_b32 s{SA}, s{WP}, 11\ns_add_u32 s{SA}, s{SA}, {SCR}")
        p(f"v_and_b32 {v(T0)}, 31, {v(VL)}\nv_lshlrev_b32 {v(T0)}, 6, {v(T0)}\nv_add_u32 {v(T0)}, s{SA}, {v(T0)}")
        p(f"v_lshrrev_b32 {v(T0+1)}, 5, {v(VL)}\nv_lshl_add_u32 {v(T0+1)}, {v(T0+1)}, 4, {v(T0)}\ns_lshl_b32 s{SA}, s{WT}, 5\nv_add_u32 {v(T0+1)}, s{SA}, {v(T0+1)}")
        p.lds(f"ds_write_b128 {v(T0+1)}, {v(EX,4)}")
        p.wait_lg_all(); p("s_barrier")
        E8 = 96
        for i in range(4): p.lds(f"ds_read_b128 {v(E8+4*i,4)}, {v(T0)} offset:{16*i}")
        p.wait_lg_all()
        for q in range(1, 8): cfma(E8 + 2 * q, L16, E8 + 2 * (q - 1), E8 + 2 * q)
        GR = 112
        p(f"v_mov_b32 {v(GR)}, {v(E8+14)}\nv_mov_b32 {v(GR+1)}, s{ST_T}\nv_mov_b32 {v(GR+2)}, {v(E8+15)}\nv_mov_b32 {v(GR+3)}, s{ST_T}")
        p(f"s_cmp_eq_u32 s{WT}, 0\ns_cselect_b32 s{SA}, 32, 0")
        p(f"v_cmp_gt_u32 vcc, s{SA}, {v(VL)}\nv_mov_b32 {v(T0)}, {OOB}\nv_cndmask_b32 {v(T0)}, {v(T0)}, {v(VL16)}, vcc")
        p(f"s_lshl_b32 s{SC}, s{SCOL}, 14\ns_lshl_b32 s{SA}, s{WP}, 9\ns_add_u32 s{SC}, s{SC}, s{SA}\ns_add_u32 s{SC}, s{SC}, {EG}")
        p(f"s_lshl_b32 s{SA}, s{SRB}, 10\ns_add_u32 s{SA}, s{SA}, s{SC}")
        p.vmem(f"buffer_store_dwordx4 {v(GR,4)}, {v(T0)}, {srd(SWS)}, s{SA} offen sc1")
        self.stamp(2)
        CQ = 116
        p(f"v_cmp_gt_u32 vcc, 32, {v(VL)}")
        w1 = p.label("w1"); w2 = p.label("w2")
        p(f"s_cmp_eq_u32 s{WT}, 0\ns_cbranch_scc0 {w1}")
        p(f"v_cndmask_b32 {v(CQ)}, {v(E8+2)}, 0, vcc\nv_cndmask_b32 {v(CQ+1)}, {v(E8+3)}, 0, vcc")
        p(f"v_cndmask_b32 {v(CQ+2)}, {v(E8+4)}, {v(E8)}, vcc\nv_cndmask_b32 {v(CQ+3)}, {v(E8+5)}, {v(E8+1)}, vcc")
        p(f"s_branch {w2}")
        p.put(w1)
        for k in range(4): p(f"v_cndmask_b32 {v(CQ+k)}, {v(E8+10+k)}, {v(E8+6+k)}, vcc")
        p.put(w2)
        GX, GW, GU, GS = 168, 184, 188, 196
        p(f"s_lshl_b32 s{SD}, s{SRB}, 1\ns_add_u32 s{SD}, s{SD}, s{WT}")
        p(f"s_lshl_b32 s{SA}, s{SCOL}, 1\ns_add_u32 s{SA}, s{SA}, s{WP}")
        p(f"s_lshl_b32 s{SE}, s{SD}, 4\ns_add_u32 s{SE}, s{SE}, s{SA}")
        p(f"s_lshl_b32 s{SA}, s{SE}, 12")
        for r in range(4): p.vmem(f"buffer_load_dwordx4 {v(GX+4*r,4)}, {v(VL16)}, {srd(SX)}, s{SA} offen offset:{r*1024}")
        tg = p.vmem(f"global_load_dwordx4 {v(GW,4)}, {v(VL16)}, {sp(PGW)}")
        p.wait(vm=tg)
        for i in range(4): self.unpack(GU + 2 * i, GW + i)
        for r in range(4):
            for i in range(4):
                a = 208 + 2 * i
                self.unpack(a, GX + 4 * r + i)
                p(f"v_pk_mul_f32 {v(a,2)}, {v(a,2)}, {v(GU+2*i,2)}")
            for i in range(4): p(f"v_cvt_pk_bf16_f32 {v(GX+4*r+i)}, {v(208+2*i)}, {v(209+2*i)}")
            for i in range(4): self.unpack(208 + 2 * i, GX + 4 * r + i)
            p(f"v_pk_add_f32 {v(208,2)}, {v(208,2)}, {v(210,2)}\nv_pk_add_f32 {v(212,2)}, {v(212,2)}, {v(214,2)}\nv_pk_add_f32 {v(208,2)}, {v(208,2)}, {v(212,2)}")
            p(f"v_add_f32 {v(GS+r)}, {v(208)}, {v(209)}")
        for mod in ["quad_perm:[1,0,3,2]", "quad_perm:[2,3,0,1]", "row_half_mirror", "row_mirror"]:
            for r in range(4): p(f"v_add_f32_dpp {v(GS+r)}, {v(GS+r)}, {v(GS+r)} {mod} row_mask:0xf bank_mask:0xf")
        for sw in ["v_permlane16_swap_b32", "v_permlane32_swap_b32"]:
            for r in range(4): p(f"v_mov_b32 {v(208+r)}, {v(GS+r)}")
            for r in range(4): p(f"{sw} {v(GS+r)}, {v(208+r)}")
            for r in range(4): p(f"v_add_f32 {v(GS+r)}, {v(GS+r)}, {v(208+r)}")
        for r in range(4): self.rnd(GS + r, GS + r)
        for r in range(4): p(f"v_mul_f32 {v(GS+r)}, {f2u(-LOG2E)}, {v(GS+r)}")
        for r in range(4): p(f"v_exp_f32 {v(GS+r)}, {v(GS+r)}")
        for r in range(4): p(f"v_add_f32 {v(GS+r)}, 1.0, {v(GS+r)}")
        for r in range(4): p(f"v_rcp_f32 {v(GS+r)}, {v(GS+r)}")
        for r in range(4): self.rnd(GS + r, GS + r)
        p(f"v_cmp_eq_u32 vcc, 0, {v(VL)}\nv_mov_b32 {v(208)}, {OOB}\nv_cndmask_b32 {v(208)}, {v(208)}, {v(VL)}, vcc")
        p(f"s_lshl_b32 s{SA}, s{SE}, 4\ns_add_u32 s{SA}, s{SA}, {GATE}")
        p.vmem(f"buffer_store_dwordx4 {v(GS,4)}, {v(208)}, {srd(SWS)}, s{SA} offen sc1")
        self.stamp(3)
        EGR, EO, ET = 208, 240, 168
        p(f"v_lshrrev_b32 {v(ET)}, 5, {v(VL)}\nv_sub_u32 {v(ET)}, s{SRB}, {v(ET)}\nv_add_u32 {v(ET)}, -1, {v(ET)}")
        p(f"v_and_b32 {v(ET+1)}, 31, {v(VL)}\nv_lshlrev_b32 {v(ET+1)}, 4, {v(ET+1)}\nv_mov_b32 {v(ET+2)}, {OOB}\nv_mov_b32 {v(ET+3)}, s{ST_T}")
        EXP = 176
        for q in range(8):
            p(f"v_add_u32 {v(ET+4)}, {-2*q}, {v(ET)}\nv_cmp_le_i32 vcc, 0, {v(ET+4)}\nv_lshl_add_u32 {v(ET+4)}, {v(ET+4)}, 10, {v(ET+1)}")
            p(f"v_cndmask_b32 {v(EO+q)}, {v(ET+2)}, {v(ET+4)}, vcc\nv_cndmask_b32 {v(EXP+q)}, 0, {v(ET+3)}, vcc")
        l = p.label("ep"); d = p.label("ed")
        p(f"s_mov_b32 s{SSPIN}, 0")
        p.put(l)
        for q in range(8): p.vmem(f"buffer_load_dwordx4 {v(EGR+4*q,4)}, {v(EO+q)}, {srd(SWS)}, s{SC} offen sc1")
        p.wait_vm_all()
        p(f"v_mov_b32 {v(ET)}, 0")
        for q in range(8):
            for k in (1, 3):
                p(f"v_xor_b32 {v(ET+1)}, {v(EXP+q)}, {v(EGR+4*q+k)}\nv_or_b32 {v(ET)}, {v(ET)}, {v(ET+1)}")
        p(f"v_cmp_ne_u32 vcc, 0, {v(ET)}\ns_cmp_eq_u64 vcc, 0\ns_cbranch_scc1 {d}")
        p(f"s_add_u32 s{SSPIN}, s{SSPIN}, 1\ns_cmp_lt_u32 s{SSPIN}, {SPIN}\ns_cbranch_scc1 {l}")
        p.put(d)
        self.stamp(4)
        for q in range(8): p(f"v_mov_b32 {v(EGR+4*q+1)}, {v(EGR+4*q+2)}")
        S = EGR + 28
        for q in range(6, -1, -1): cfma(S, L256, S, EGR + 4 * q)
        p(f"v_mov_b32 {v(ET)}, {v(S)}\nv_mov_b32 {v(ET+1)}, {v(S+1)}\nv_permlane32_swap_b32 {v(S)}, {v(ET)}\nv_permlane32_swap_b32 {v(S+1)}, {v(ET+1)}")
        cfma(S, L128, ET, S)
        cfma(CQ, LQ0, S, CQ); cfma(CQ + 2, LQ1, S, CQ + 2)
        p(f"v_mov_b32 {v(HA)}, {v(CQ)}\nv_mov_b32 {v(HA+1)}, {v(CQ+2)}\nv_mov_b32 {v(HA+2)}, {v(CQ+1)}\nv_mov_b32 {v(HA+3)}, {v(CQ+3)}")
        hr, hi = HA, HA + 2
        OP = 208
        OT = 96
        Cc = v(CF, 2)
        for sg in range(16):
            step(hr, hi, sg, U(sg, 0), U(sg, 1), T0, T0 + 2)
            hr, hi = U(sg, 0), U(sg, 1)
            o = OT + 4 * (sg & 1) + 8 * ((sg >> 1) & 1)
            p(f"v_pk_mul_f32 {v(o,2)}, {Cc}, {v(hr,2)} op_sel_hi:[0,1]")
            p(f"v_pk_mul_f32 {v(o+2,2)}, {Cc}, {v(hi,2)} op_sel_hi:[0,1] neg_lo:[1,0] neg_hi:[1,0]")
            p(f"v_pk_fma_f32 {v(o,2)}, {Cc}, {v(hi,2)}, {v(o,2)} op_sel:[1,0,0] op_sel_hi:[1,1,1] neg_lo:[1,0,0] neg_hi:[1,0,0]")
            p(f"v_pk_fma_f32 {v(o+2,2)}, {Cc}, {v(hr,2)}, {v(o+2,2)} op_sel:[1,0,0] op_sel_hi:[1,1,1] neg_lo:[1,0,0] neg_hi:[1,0,0]")
            if sg & 1:
                q, i = sg >> 3, (sg & 7) >> 1
                for cp in range(2):
                    for e in range(2):
                        p(f"v_cvt_pk_bf16_f32 {v(OP+16*cp+8*e+4*q+i)}, {v(o-4+2*cp+e)}, {v(o+2*cp+e)}")
        p(f"s_lshl_b32 s{SA}, s{SD}, 3\ns_add_u32 s{SA}, s{SA}, s{SCOL}\ns_lshl_b32 s{SA}, s{SA}, 14\ns_lshl_b32 s{SB_}, s{WP}, 12\ns_add_u32 s{SA}, s{SA}, s{SB_}")
        p(f"s_add_u32 s{SA}, s{SA}, {HB}\ns_add_u32 s{SB_}, s{SA}, 8192")
        HO = 84
        p(f"v_lshrrev_b32 {v(T0)}, 5, {v(VL)}\nv_lshlrev_b32 {v(T0)}, 11, {v(T0)}\nv_and_b32 {v(T0+1)}, 31, {v(VL)}\nv_lshl_add_u32 {v(HO)}, {v(T0+1)}, 4, {v(T0)}")
        for k in range(1, 4): p(f"v_xor_b32 {v(HO+k)}, {64*k}, {v(HO)}")
        for cp in range(2):
            for k in range(4):
                t = p.vmem(f"buffer_store_dwordx4 {v(OP+16*cp+4*k,4)}, {v(HO+k)}, {srd(SWS)}, s{SA if cp == 0 else SB_} offen offset:{512*k} sc1")
        self.wsp_read(0)
        p.wait(vm=t)
        p(f"s_lshl_b32 s{SA}, s{SE}, 2\ns_add_u32 s{SA}, s{SA}, {HF}")
        self.flag(SA, 88)
        self.stamp(5)

    def phase_g(self):
        p = self.p
        p.c("==== phase B: G ====")
        p.put(self.LG)
        p.vm_done = -1
        self.wsp_dma(1)
        ACC, FA, TR, VB, VC, T = 16, 112, 160, 162, 163, 164
        self.unit_tr_addr(TR, SREG, T, True)
        p(f"v_add_u32 {v(VB)}, 4096, {v(VL16)}\nv_cmp_gt_u32 vcc, 32, {v(VL)}\nv_mov_b32 {v(VC)}, {OOB}\nv_cndmask_b32 {v(VC)}, {v(VC)}, {v(VB)}, vcc")
        self.wsp_read(1)
        self.stamp(6)
        p(f"s_lshl_b32 s{SA}, s{SCOL}, 8\ns_add_u32 s{SA}, s{SA}, {ZF}\ns_lshl_b32 s{SB_}, s{SWV}, 6\ns_add_u32 s{SB_}, s{SB_}, s{SA}")
        p(f"s_and_b32 s{SD}, s{SWV}, 1\ns_lshl_b32 s{SC}, s{STB}, 1\ns_add_u32 s{SC}, s{SC}, s{SD}")
        p(f"s_lshl_b32 s{SD}, s{SC}, 2\ns_add_u32 s{SD}, s{SD}, s{SA}")
        self.spoll(SB_, 16, T, extra=SD)
        self.stamp(7)
        p(f"s_lshl_b32 s{SA}, s{SCOL}, 6\ns_lshl_b32 s{SB_}, s{SWV}, 4\ns_add_u32 s{SA}, s{SA}, s{SB_}\ns_mul_i32 s{SE}, s{SA}, 5632\ns_add_u32 s{SE}, s{SE}, {Z2N}")
        NS = 6
        tick = {}
        def dma(b):
            sl = b % NS; ops = []
            def f0():
                p(f"s_add_u32 s{SA}, s{SE}, {b*5632}\ns_add_u32 m0, s{SREG}, {sl*6144}")
                p.vmem(f"buffer_load_dwordx4 {v(VL16)}, {srd(SWS)}, s{SA} offen sc1 lds")
            ops.append(f0)
            for i in range(1, 4): ops.append(lambda i=i: p.vmem(f"buffer_load_dwordx4 {v(VL16)}, {srd(SWS)}, s{SA} offen offset:{i*1024} sc1 lds"))
            def f4():
                p(f"s_add_u32 m0, s{SREG}, {sl*6144+4096}")
                p.vmem(f"buffer_load_dwordx4 {v(VB)}, {srd(SWS)}, s{SA} offen sc1 lds")
            def f5(): tick[b] = p.vmem(f"buffer_load_dwordx4 {v(VC)}, {srd(SWS)}, s{SA} offen offset:1024 sc1 lds")
            return ops + [f4, f5]
        for b in range(NS):
            for op in dma(b): op()
        Z1R, BI = 172, 184
        p(f"s_lshl_b32 s{SA}, s{SCOL}, 6\ns_add_u32 s{SA}, s{SA}, s{SC}\ns_mul_i32 s{SA}, s{SA}, 5632\ns_lshr_b32 s{SB_}, s{SWV}, 1\ns_lshl_b32 s{SB_}, s{SB_}, 10")
        p(f"s_add_u32 s{SA}, s{SA}, s{SB_}\ns_add_u32 s{SA}, s{SA}, {Z1}\ns_add_u32 s{SB_}, s{SA}, 4096")
        PV = 185
        p(f"s_cmp_lt_u32 s{SCOL}, 7\ns_cselect_b32 s{SD}, 64, 32\ns_lshr_b32 s{SF}, s{SWV}, 1\ns_lshl_b32 s{SF}, s{SF}, 5\ns_sub_u32 s{SD}, s{SD}, s{SF}")
        p(f"v_cmp_gt_u32 vcc, s{SD}, {v(VL)}\nv_mov_b32 {v(PV)}, {OOB}\nv_cndmask_b32 {v(PV)}, {v(PV)}, {v(VL16)}, vcc")
        p.vmem(f"buffer_load_dwordx4 {v(Z1R,4)}, {v(VL16)}, {srd(SWS)}, s{SA} offen sc1")
        p.vmem(f"buffer_load_dwordx4 {v(Z1R+4,4)}, {v(VL16)}, {srd(SWS)}, s{SA} offen offset:2048 sc1")
        p.vmem(f"buffer_load_dwordx4 {v(Z1R+8,4)}, {v(PV)}, {srd(SWS)}, s{SB_} offen sc1")
        p(f"v_and_b32 {v(T)}, 31, {v(VL)}\ns_lshl_b32 s{SA}, s{SC}, 5\nv_add_lshl_u32 {v(T)}, {v(T)}, s{SA}, 1")
        tz = p.vmem(f"global_load_ushort {v(BI)}, {v(T)}, {sp(PBSP)}")
        rt = {}
        def reads(b):
            sl = b % NS; s = b & 1; ops = []
            for ks in range(2):
                for mt in range(3):
                    for a in range(2):
                        def ra(ks=ks, mt=mt, a=a):
                            if ks == 0 and mt == 0 and a == 0: p.wait(vm=tick[b])
                            rt[(b, ks, mt)] = p.lds(f"ds_read_b64_tr_b16 {v(FA+24*s+12*ks+4*mt+2*a,2)}, {v(TR+a)} offset:{sl*6144+mt*2048+ks*256}")
                        ops.append(ra)
            return ops
        def mfmas(b):
            s = b & 1; ops = []
            for ks in range(2):
                for mt in range(3):
                    for nt in range(2):
                        def m(ks=ks, mt=mt, nt=nt):
                            p.wait(lg=rt[(b, ks, mt)])
                            d = v(ACC + 16 * (2 * mt + nt), 16); kap = 2 * b + ks
                            p(f"v_mfma_f32_32x32x16_bf16 {d}, {v(FA+24*s+12*ks+4*mt,4)}, {ar((kap*2+nt)*4,4)}, {'0' if kap == 0 else d}")
                        ops.append(m)
            return ops
        for op in reads(0): op()
        for b in range(16):
            mm = mfmas(b)
            seq = merge(mm, reads(b + 1), 0, 8) if b + 1 < 16 else mm
            if b + NS < 16:
                d = dma(b + NS)
                d0 = d[0]
                def first(d0=d0, b=b):
                    p.wait(lg=rt[(b, 1, 2)]); d0()
                seq = merge(seq, [first] + d[1:], len(seq) // 2)
            for op in seq: op()
        self.stamp(8)
        WD = 186
        p(f"v_lshrrev_b32 {v(T)}, 3, {v(VL)}\nv_lshlrev_b32 {v(T)}, 10, {v(T)}")
        p(f"v_bfe_u32 {v(T+1)}, {v(VL)}, 4, 1\nv_lshlrev_b32 {v(T+1)}, 2, {v(T+1)}\nv_and_b32 {v(T+2)}, 7, {v(VL)}\nv_xor_b32 {v(T+1)}, {v(T+1)}, {v(T+2)}")
        p(f"v_lshl_add_u32 {v(WD)}, {v(T+1)}, 4, {v(T)}")
        for i in range(1, 4): p(f"v_add_u32 {v(WD+i)}, {i*7168}, {v(WD)}")
        p(f"s_mul_i32 s{SE}, s{SWV}, {176*1024}\ns_lshl_b32 s{SA}, s{SCOL}, 7\ns_add_u32 s{SE}, s{SE}, s{SA}")
        for i in range(22):
            if i % 4 == 0: p(f"s_add_u32 s{SA}, s{SE}, {i*8192}\ns_add_u32 m0, s{SREG}, {18432+i*1024}")
            two = p.vmem(f"buffer_load_dwordx4 {v(WD+i%4)}, {srd(SWOUT)}, s{SA} offen offset:{(i%4)*1024} lds")
        VW = T; VRD = T + 1
        p(f"v_add_u32 {v(VW)}, s{SREG}, {v(VL16)}")
        cases = [p.label(f"rw{w}") for w in range(4)]; rdone = p.label("rwd")
        OWN = 112
        for w in range(1, 4): p(f"s_cmp_eq_u32 s{SWV}, {w}\ns_cbranch_scc1 {cases[w]}")
        lg0 = p.lg
        for w in range(4):
            p.put(cases[w]); p.lg = lg0
            for o in range(4):
                nt, q = o & 1, o >> 1
                for mt in range(3):
                    r = ACC + 16 * (2 * mt + nt) + 8 * q
                    for hq in range(2):
                        if o == w:
                            p(f"v_pk_mov_b32 {v(OWN+8*mt+4*hq,2)}, {v(r+4*hq,2)}, {v(r+4*hq,2)} op_sel:[0,1]\nv_pk_mov_b32 {v(OWN+8*mt+4*hq+2,2)}, {v(r+4*hq+2,2)}, {v(r+4*hq+2,2)} op_sel:[0,1]")
                        else:
                            slot = ((o - w) & 3) - 1
                            p.lds(f"ds_write_b128 {v(VW)}, {v(r+4*hq,4)} offset:{slot*6144+(2*mt+hq)*1024}")
            if w < 3: p(f"s_branch {rdone}\ns_nop 15")
        p.put(rdone)
        p.wait_lg_all(); p("s_barrier")
        RB = 16
        for k in range(1, 4):
            p(f"s_sub_u32 s{SA}, s{SWV}, {k}\ns_and_b32 s{SA}, s{SA}, 3\ns_mul_i32 s{SA}, s{SA}, 40960\nv_add_u32 {v(VRD+k-1)}, s{SA}, {v(VL16)}")
        tk = {}
        def rr(k, i): tk[(k, i)] = p.lds(f"ds_read_b128 {v(RB+24*(k-1)+4*i,4)}, {v(VRD+k-1)} offset:{(k-1)*6144+i*1024}")
        for k in range(1, 3):
            for i in range(6): rr(k, i)
        for k in range(1, 4):
            for i in range(6):
                p.wait(lg=tk[(k, i)])
                if k == 1: rr(3, i)
                for hh in range(2): p(f"v_pk_add_f32 {v(OWN+4*i+2*hh,2)}, {v(OWN+4*i+2*hh,2)}, {v(RB+24*(k-1)+4*i+2*hh,2)}")
        p("s_barrier")
        self.stamp(9)
        self.two = two
        self.c_setup()
        self.y_dma(0)
        p.wait(vm=tz)
        PK = 16; ZU = 32
        p(f"v_lshlrev_b32 {v(BI)}, 16, {v(BI)}")
        for i in range(12): p(f"v_cvt_pk_bf16_f32 {v(PK+i)}, {v(OWN+2*i)}, {v(OWN+2*i+1)}")
        for i in range(12): self.unpack(OWN + 2 * i, PK + i)
        for i in range(12): p(f"v_pk_add_f32 {v(OWN+2*i,2)}, {v(OWN+2*i,2)}, {v(BI,2)} op_sel_hi:[1,0]")
        for i in range(12): p(f"v_cvt_pk_bf16_f32 {v(PK+i)}, {v(OWN+2*i)}, {v(OWN+2*i+1)}")
        for i in range(12): self.unpack(OWN + 2 * i, PK + i)
        for i in range(12): self.unpack(ZU + 2 * i, Z1R + i)
        for i in range(12): p(f"v_pk_mul_f32 {v(OWN+2*i,2)}, {v(OWN+2*i,2)}, {v(ZU+2*i,2)}")
        for i in range(12): p(f"v_cvt_pk_bf16_f32 {v(PK+i)}, {v(OWN+2*i)}, {v(OWN+2*i+1)}")
        p(f"s_mul_i32 s{SA}, s{SC}, 45056\ns_mul_i32 s{SB_}, s{SCOL}, 5632\ns_add_u32 s{SA}, s{SA}, s{SB_}\ns_lshr_b32 s{SB_}, s{SWV}, 1\ns_lshl_b32 s{SB_}, s{SB_}, 10")
        p(f"s_add_u32 s{SA}, s{SA}, s{SB_}\ns_add_u32 s{SA}, s{SA}, {PB}\ns_add_u32 s{SB_}, s{SA}, 4096")
        p.vmem(f"buffer_store_dwordx4 {v(PK,4)}, {v(VL16)}, {srd(SWS)}, s{SA} offen sc1")
        p.vmem(f"buffer_store_dwordx4 {v(PK+4,4)}, {v(VL16)}, {srd(SWS)}, s{SA} offen offset:2048 sc1")
        tp = p.vmem(f"buffer_store_dwordx4 {v(PK+8,4)}, {v(PV)}, {srd(SWS)}, s{SB_} offen sc1")
        WT_ = 136
        p(f"s_add_u32 s{SA}, s{SREG}, 18432")
        self.panel_tr_addr(WT_, SA, 140, False)
        p.wait(vm=two)
        for kap in range(11):
            for mt in range(2):
                for a in range(2):
                    p.lds(f"ds_read_b64_tr_b16 {ar((kap*2+mt)*4+2*a,2)}, {v(WT_+mt)} offset:{kap*2048+a*512}")
            p.wait(lg=p.lg - 8)
        p.wait(vm=tp)
        p(f"s_lshl_b32 s{SA}, s{STB}, 3\ns_add_u32 s{SA}, s{SA}, s{SCOL}\ns_lshl_b32 s{SA}, s{SA}, 2\ns_add_u32 s{SA}, s{SA}, s{SWV}\ns_lshl_b32 s{SA}, s{SA}, 2\ns_add_u32 s{SA}, s{SA}, {PF}")
        self.flag(SA, 140)
        p.wait_lg_all()
        self.stamp(10)

    def c_setup(self):
        p = self.p
        self.CD, self.CR, self.HT = 190, 194, 198
        self.plain_dma_addr(self.CD, 1024, 200)
        self.plain_read_addr(self.CR, SREG, 200)
        p(f"s_add_u32 s{SA}, s{SREG}, 8192")
        self.unit_tr_addr(self.HT, SA, 200, False)
        p(f"s_lshl_b32 s{SB_}, s{STB}, 6\ns_add_u32 s{SB_}, s{SB_}, {HF}")
        self.spoll(SB_, 16, 200)
        p(f"s_lshl_b32 s{SK+10}, s{SCOL}, 16\ns_lshl_b32 s{SA}, s{SWV}, 8\ns_add_u32 s{SK+10}, s{SK+10}, s{SA}")
        p(f"s_lshl_b32 s{SK+11}, s{STB}, 17\ns_lshl_b32 s{SA}, s{SWV}, 15\ns_add_u32 s{SK+11}, s{SK+11}, s{SA}\ns_add_u32 s{SK+11}, s{SK+11}, {HB}")
        self.yt = {}
    def y_dma(self, s):
        p = self.p; sl = s & 1
        for hh in range(2):
            p(f"s_add_u32 s{SA}, s{SK+10}, {(s>>1)*128+hh*32768}\ns_add_u32 m0, s{SREG}, {sl*16384+hh*4096}")
            for i in range(4): p.vmem(f"buffer_load_dwordx4 {v(self.CD+i)}, {srd(SCIM if s & 1 else SCRE)}, s{SA} offen offset:{i*1024} lds")
        for hh in range(2):
            p(f"s_add_u32 s{SA}, s{SK+11}, {s*8192+hh*4096}\ns_add_u32 m0, s{SREG}, {sl*16384+8192+hh*4096}")
            for i in range(4): self.yt[s] = p.vmem(f"buffer_load_dwordx4 {v(VL16)}, {srd(SWS)}, s{SA} offen offset:{i*1024} sc1 lds")
    def phase_c(self):
        p = self.p
        p.c("==== phase C ====")
        YA, BA, F = 16, 80, 144
        XE, GE, DE = 204, 212, 216
        self.y_dma(1)
        T = 220
        p(f"v_lshrrev_b32 {v(T)}, 4, {v(VL)}\nv_and_b32 {v(T+1)}, 15, {v(VL)}")
        p(f"v_lshlrev_b32 {v(T+2)}, 10, {v(T)}\nv_lshl_add_u32 {v(T+2)}, {v(T+1)}, 3, {v(T+2)}")
        p(f"v_lshlrev_b32 {v(T+3)}, 2, {v(T)}\nv_lshlrev_b32 {v(T+4)}, 3, {v(T+1)}")
        OV = 218
        p(f"v_lshlrev_b32 {v(OV)}, 1, {v(T+2)}")
        p(f"s_lshl_b32 s{SC}, s{STB}, 6\ns_lshl_b32 s{SA}, s{SWV}, 4\ns_add_u32 s{SC}, s{SC}, s{SA}")
        p(f"s_lshl_b32 s{SD}, s{SC}, 10\ns_lshl_b32 s{SA}, s{SCOL}, 7\ns_add_u32 s{SD}, s{SD}, s{SA}")
        for gi in range(4):
            p(f"s_add_u32 s{SA}, s{SD}, {gi*4096}")
            p.vmem(f"buffer_load_dwordx2 {v(XE+2*gi,2)}, {v(T+2)}, {srd(SX)}, s{SA} offen")
        p(f"s_lshl_b32 s{SA}, s{SC}, 2\ns_add_u32 s{SA}, s{SA}, {GATE}")
        for gi in range(4): p.vmem(f"buffer_load_dword {v(GE+gi)}, {v(T+3)}, {srd(SWS)}, s{SA} offen offset:{gi*16} sc1")
        p(f"s_lshl_b32 s{SA}, s{SCOL}, 7\nv_add_u32 {v(T+4)}, s{SA}, {v(T+4)}")
        te = p.vmem(f"global_load_dwordx2 {v(DE,2)}, {v(T+4)}, {sp(PDSK)}")
        rt = {}
        def reads(n):
            s, ks = n // 4, n % 4; sl = s & 1; fs = F + 16 * (n & 1); ops = []
            for k in range(2):
                def ra(k=k):
                    if ks == 0 and k == 0: p.wait(vm=self.yt[s])
                    rt[(n, 'a', k)] = p.lds(f"ds_read_b128 {v(fs+4*k,4)}, {v(self.CR+ks)} offset:{sl*16384+k*4096}")
                ops.append(ra)
                for a in range(2):
                    def rb(k=k, a=a):
                        rt[(n, 'b', k)] = p.lds(f"ds_read_b64_tr_b16 {v(fs+8+4*k+2*a,2)}, {v(self.HT+a)} offset:{sl*16384+(ks>>1)*4096+k*2048+(ks&1)*256}")
                    ops.append(rb)
            return ops
        def mfmas(n):
            fs = F + 16 * (n & 1); ops = []
            for (mt, nt) in [(0, 0), (1, 0), (1, 1), (0, 1)]:
                def m(mt=mt, nt=nt):
                    p.wait(lg=max(rt[(n, 'a', mt)], rt[(n, 'b', nt)]))
                    d = v(YA + 16 * (2 * mt + nt), 16)
                    p(f"v_mfma_f32_32x32x16_bf16 {d}, {v(fs+4*mt,4)}, {v(fs+8+4*nt,4)}, {'0' if n == 0 else d}")
                ops.append(m)
            return ops
        PA = 96
        pt = {}
        for op in reads(0): op()
        for n in range(16):
            if n % 4 == 3 and n // 4 < 2:
                p.wait(lg=p.lg - 1)
                self.y_dma(n // 4 + 2)
                if n // 4 == 1:
                    self.stamp(11)
                    p(f"s_lshl_b32 s{SA}, s{STB}, 7\ns_lshl_b32 s{SB_}, s{SWV}, 5\ns_add_u32 s{SB_}, s{SB_}, s{SA}\ns_add_u32 s{SB_}, s{SB_}, {PF}")
                    self.spoll(SB_, 8, 200)
                    self.stamp(12)
                    p(f"s_mul_i32 s{SE}, s{STB}, {2*45056}\ns_mul_i32 s{SA}, s{SWV}, {22*512}\ns_add_u32 s{SE}, s{SE}, s{SA}\ns_add_u32 s{SE}, s{SE}, {PB}")
                    for kap in range(11):
                        for nt in range(2):
                            if kap % 4 == 0: p(f"s_add_u32 s{SA if nt == 0 else SB_}, s{SE}, {nt*45056+kap*1024}")
                            pt[(kap, nt)] = p.vmem(f"buffer_load_dwordx4 {ar(PA+(kap*2+nt)*4,4)}, {v(VL16)}, {srd(SWS)}, s{SA if nt == 0 else SB_} offen offset:{(kap%4)*1024} sc1")
            seq = merge(mfmas(n), reads(n + 1), 0, 3) if n + 1 < 16 else mfmas(n)
            for op in seq: op()
        self.stamp(13)
        RW, RX = 176, 177
        p(f"v_and_b32 {v(RW)}, 31, {v(VL)}\nv_lshlrev_b32 {v(RW)}, 8, {v(RW)}\nv_add_u32 {v(RW)}, s{SREG}, {v(RW)}")
        p(f"v_lshrrev_b32 {v(RX)}, 5, {v(VL)}\nv_and_b32 {v(RX+1)}, 7, {v(VL)}\nv_xor_b32 {v(RX)}, {v(RX)}, {v(RX+1)}\nv_lshlrev_b32 {v(RX)}, 4, {v(RX)}")
        WA = 178
        for i in range(4): p(f"v_xor_b32 {v(WA+i)}, {32*i}, {v(RX)}\nv_add_u32 {v(WA+i)}, {v(WA+i)}, {v(RW)}")
        def redw(acc, base):
            ops = []
            for mt in range(2):
                for nt in range(2):
                    for i in range(4):
                        ops.append(lambda mt=mt, nt=nt, i=i: p.lds(f"ds_write_b128 {v(WA+i)}, {v(acc+16*(2*mt+nt)+4*i,4)} offset:{base+nt*8192+mt*128}"))
            return ops
        def bm(kap):
            ops = []
            for (mt, nt) in [(0, 0), (1, 0), (1, 1), (0, 1)]:
                def m(mt=mt, nt=nt):
                    p.wait(vm=pt[(kap, nt)])
                    d = v(BA + 16 * (2 * mt + nt), 16)
                    p(f"v_mfma_f32_32x32x16_bf16 {d}, {ar((kap*2+mt)*4,4)}, {ar(PA+(kap*2+nt)*4,4)}, {'0' if kap == 0 else d}")
                ops.append(m)
            return ops
        mm = []
        for kap in range(10): mm += bm(kap)
        for op in merge(mm, redw(YA, 0), 4, 36): op()
        sk = p.label("k10")
        p(f"s_cmp_eq_u32 s{SWV}, 3\ns_cbranch_scc1 {sk}")
        for op in bm(10): op()
        p.put(sk)
        p("s_nop 15")
        for op in redw(BA, 16384): op()
        p.wait_lg_all(); p("s_barrier")
        self.stamp(14)
        RA = 182
        p(f"v_lshrrev_b32 {v(T)}, 4, {v(VL)}\nv_and_b32 {v(T+1)}, 15, {v(VL)}\nv_xor_b32 {v(T+1)}, {v(T+1)}, {v(T)}\nv_lshlrev_b32 {v(T+1)}, 4, {v(T+1)}")
        p(f"v_lshlrev_b32 {v(T)}, 8, {v(T)}\ns_lshl_b32 s{SA}, s{SWV}, 12\nv_add_u32 {v(T)}, s{SA}, {v(T)}")
        p(f"v_add_u32 {v(RA)}, {v(T)}, {v(T+1)}\nv_xor_b32 {v(T+1)}, 64, {v(T+1)}\nv_add_u32 {v(RA+1)}, {v(T)}, {v(T+1)}")
        p(f"v_add_u32 {v(RA+2)}, 81920, {v(RA)}\nv_add_u32 {v(RA+3)}, 81920, {v(RA+1)}")
        tk = {}
        def R(gi, which, s): return 16 + 32 * gi + 16 * which + 4 * s
        for gi in range(4):
            for which in range(2):
                p.wait(lg=p.lg - 12)
                for s in range(4):
                    tk[(gi, which)] = p.lds(f"ds_read_b128 {v(R(gi,which,s),4)}, {v(RA+2*(s>>1)+(gi&1))} offset:{(s&1)*40960+which*16384+gi*1024}")
        p.wait(vm=te)
        DU = 224
        self.unpack(DU, DE); self.unpack(DU + 2, DE + 1)
        p(f"s_lshl_b32 s{SD}, s{SD}, 1")
        for gi in range(4):
            y, b = R(gi, 0, 0), R(gi, 1, 0)
            X, OM = 228, 232
            p.wait(lg=tk[(gi, 1)])
            for r in (y, b):
                for hh in (0, 2):
                    p(f"v_pk_add_f32 {v(r+hh,2)}, {v(r+hh,2)}, {v(r+4+hh,2)}\nv_pk_add_f32 {v(r+8+hh,2)}, {v(r+8+hh,2)}, {v(r+12+hh,2)}")
                for hh in (0, 2): p(f"v_pk_add_f32 {v(r+hh,2)}, {v(r+hh,2)}, {v(r+8+hh,2)}")
            p(f"v_sub_f32 {v(OM)}, 1.0, {v(GE+gi)}"); self.rnd(OM, OM)
            p(f"v_cvt_pk_bf16_f32 {v(b+4)}, {v(b)}, {v(b+1)}\nv_cvt_pk_bf16_f32 {v(b+5)}, {v(b+2)}, {v(b+3)}")
            self.unpack(X, XE + 2 * gi); self.unpack(X + 2, XE + 2 * gi + 1)
            self.unpack(b, b + 4); self.unpack(b + 2, b + 5)
            for hh in (0, 2): p(f"v_pk_mul_f32 {v(X+hh,2)}, {v(X+hh,2)}, {v(DU+hh,2)}")
            for hh in (0, 2): p(f"v_pk_mul_f32 {v(b+hh,2)}, {v(b+hh,2)}, {v(OM,2)} op_sel_hi:[1,0]")
            p(f"v_cvt_pk_bf16_f32 {v(b+6)}, {v(X)}, {v(X+1)}\nv_cvt_pk_bf16_f32 {v(b+7)}, {v(X+2)}, {v(X+3)}")
            p(f"v_cvt_pk_bf16_f32 {v(b+4)}, {v(b)}, {v(b+1)}\nv_cvt_pk_bf16_f32 {v(b+5)}, {v(b+2)}, {v(b+3)}")
            self.unpack(X, b + 6); self.unpack(X + 2, b + 7)
            self.unpack(b, b + 4); self.unpack(b + 2, b + 5)
            for hh in (0, 2): p(f"v_pk_add_f32 {v(y+hh,2)}, {v(y+hh,2)}, {v(X+hh,2)}")
            p(f"v_mov_b32 {v(OM)}, {v(GE+gi)}")
            for hh in (0, 2): p(f"v_pk_fma_f32 {v(y+hh,2)}, {v(y+hh,2)}, {v(OM,2)}, {v(b+hh,2)} op_sel_hi:[1,0,1]")
            p(f"s_add_u32 s{SA}, s{SD}, {gi*8192}")
            p.vmem(f"buffer_store_dwordx4 {v(y,4)}, {v(OV)}, {srd(SOUT)}, s{SA} offen")
        ne = p.label("ne")
        p(f"s_lshl_b32 s{SA}, s{STB}, 3\ns_add_u32 s{SA}, s{SA}, s{SCOL}\ns_lshl_b32 s{SA}, s{SA}, 2\ns_add_u32 s{SA}, s{SA}, s{SWV}")
        p(f"s_cmp_eq_u32 s{SA}, {255*4}\ns_cbranch_scc0 {ne}")
        p(f"s_mov_b32 s{SA}, {EPOCH}")
        self.flag(SA, 240)
        p.put(ne)
        if self.o.get("stamps"):
            self.stamp(15)
            p(f"s_memrealtime s[{SPOLL}:{SPOLL+1}]"); p.wait_lg_all()
            p(f"v_writelane_b32 v255, s{SPOLL}, 16")
            p(f"s_lshl_b32 s{SA}, s2, 2\ns_add_u32 s{SA}, s{SA}, s{SWV}\ns_lshl_b32 s{SA}, s{SA}, 8\ns_add_u32 s{SA}, s{SA}, {DBG}")
            p(f"v_lshlrev_b32 v254, 2, {v(VL)}")
            p.vmem(f"buffer_store_dword v255, v254, {srd(SWS)}, s{SA} offen")
            if "dbgwg" in self.o:
                nd = p.label("nd")
                p(f"s_lshl_b32 s{SA}, s2, 2\ns_add_u32 s{SA}, s{SA}, s{SWV}\ns_cmp_eq_u32 s{SA}, {self.o['dbgwg']*4}\ns_cbranch_scc0 {nd}")
                p(f"s_load_dwordx2 s[{SX}:{SX+1}], s[0:1], 128\ns_waitcnt lgkmcnt(0)\ns_mov_b32 s{SX+2}, 64")
                p(f"v_readlane_b32 s{SA}, v255, 17\nv_subrev_u32 v255, s{SA}, v255")
                p.vmem(f"buffer_store_dword v255, v254, {srd(SX)}, 0 offen")
                p.put(nd)
        p.put(self.END)
        p("s_endpgm")

    def build(self):
        self.prologue()
        vm0, lg0 = self.p.vm, self.p.lg
        self.phase_z()
        self.p.vm_done = -1; self.p.lg_done = -1
        self.p("s_nop 15")
        self.phase_u()
        self.phase_g()
        self.phase_c()
        lines, added = hazard_pass(self.p.L)
        hdr = open("gated_mix__ssm_conv_s5__mixer_gmlp__prompt.s.ref").read().split("; Override")[0]
        s = hdr + "; @launch grid=(256,1,1) block=(256,1,1) lds=163840\n"
        s += '.amdgcn_target "amdgcn-amd-amdhsa--gfx950"\n.text\n'
        s += f".globl {NAME}\n.p2align 8\n.type {NAME},@function\n{NAME}:\n"
        s += "\n".join((l if l.endswith(":") else "    " + l) for l in lines) + "\n"
        s += f""".section .rodata,"a"
.p2align 6
.amdhsa_kernel {NAME}
  .amdhsa_next_free_vgpr 512
  .amdhsa_next_free_sgpr 102
  .amdhsa_accum_offset 256
  .amdhsa_group_segment_fixed_size 0
  .amdhsa_kernarg_size 144
  .amdhsa_user_sgpr_count 2
  .amdhsa_user_sgpr_kernarg_segment_ptr 1
  .amdhsa_system_sgpr_workgroup_id_x 1
  .amdhsa_float_denorm_mode_32 3
.end_amdhsa_kernel
"""
        return s, added

if __name__ == "__main__":
    out = sys.argv[1]
    opt = {}
    for a in sys.argv[2:]:
        k, _, val = a.partition("="); opt[k] = int(val) if val else 1
    s, added = G(opt).build()
    open(out, "w").write(s)
    print("wrote", out, "nops added", added, "lines", s.count("\n"))
```

```python
import sys, math
from core import *

NAME = "gated_mix__ssm_conv_s5__mixer_gmlp__prompt_kernel"
EPOCH = 0; ZF = 0x1000; HF = 0x2000; PF = 0x3000; GATE = 0x4000
ST = 0x10000; EG = 0x50000; DBG = 0x80000
Z2N = 0x100000; Z1 = 0x400000; PB = 0x700000; HB = 0xA00000; WS_END = 0xE00000
OOB = 0x80000000
SPIN = 200000
SX, SW1, SWSP, SWS, SCRE, SCIM, SWOUT, SOUT = 4, 8, 12, 16, 20, 24, 28, 32
PLRE, PLIM, PLDT, PDSK, PBSP, PGW, PBRE, PBIM, PWIN = 36, 38, 40, 42, 44, 46, 48, 50, 52
ST_T = 54
SWV, SRB, SCOL, STB = 56, 57, 58, 59
SA, SB_, SC, SD = 60, 61, 62, 63
SPOLL = 64
SK = 80
SREG = 96
SE, SF = 97, 98
SSPIN = 99
def srd(b): return f"s[{b}:{b+3}]"
def v(a, n=1): return f"v{a}" if n == 1 else f"v[{a}:{a+n-1}]"
def ar(a, n=1): return f"a{a}" if n == 1 else f"a[{a}:{a+n-1}]"
def sp(a): return f"s[{a}:{a+1}]"
VL, VL16 = 1, 2
LOG2E = 1.4426950408889634
def f2u(x):
    import struct; return struct.unpack("<I", struct.pack("<f", x))[0]

class G:
    def __init__(self, opt):
        self.o = opt
        self.p = Prog()
        self.nstamp = 0

    def stamp(self, k):
        if self.o.get("stamps"):
            p = self.p
            p(f"s_memrealtime s[{SPOLL}:{SPOLL+1}]"); p.wait_lg_all()
            p(f"v_writelane_b32 v255, s{SPOLL}, {k}")
    def spoll(self, off_sreg, n, vt, extra=None):
        p = self.p
        l = p.label("poll"); d = p.label("pd")
        p(f"v_lshl_add_u32 {v(vt)}, {v(VL)}, 2, s{off_sreg}")
        if extra is not None:
            p(f"v_writelane_b32 {v(vt)}, s{extra}, {n}"); n += 1
        p(f"s_mov_b32 s{SSPIN}, 0")
        p.put(l)
        p.vmem(f"buffer_load_dword {v(vt+1)}, {v(vt)}, {srd(SWS)}, 0 offen sc1")
        p.wait_vm_all()
        p(f"v_cmp_ne_u32 vcc, s{ST_T}, {v(vt+1)}\ns_and_b32 s{SF}, vcc_lo, {(1<<n)-1}\ns_cbranch_scc0 {d}")
        p(f"s_add_u32 s{SSPIN}, s{SSPIN}, 1\ns_cmp_lt_u32 s{SSPIN}, {SPIN}\ns_cbranch_scc1 {l}")
        p.put(d)
    def flag(self, off_sreg, vt):
        p = self.p
        p(f"v_mov_b32 {v(vt)}, s{ST_T}")
        p(f"v_cmp_eq_u32 vcc, 0, {v(VL)}")
        p(f"v_mov_b32 {v(vt+1)}, {OOB}")
        p(f"v_cndmask_b32 {v(vt+1)}, {v(vt+1)}, {v(VL)}, vcc")
        p.vmem(f"buffer_store_dword {v(vt)}, {v(vt+1)}, {srd(SWS)}, s{off_sreg} offen sc1")
    def xhalf_sum(self, a, t):
        p = self.p
        p(f"v_mov_b32 {v(t)}, {v(a)}\nv_permlane32_swap_b32 {v(a)}, {v(t)}\nv_add_f32 {v(a)}, {v(a)}, {v(t)}")
    def rnd(self, d, s):
        self.p(f"v_cvt_pk_bf16_f32 {v(d)}, {v(s)}, {v(s)}\nv_lshlrev_b32 {v(d)}, 16, {v(d)}")
    def unpack(self, d, s):
        self.p(f"v_and_b32 {v(d+1)}, 0xffff0000, {v(s)}\nv_lshlrev_b32 {v(d)}, 16, {v(s)}")
    def plain_read_addr(self, dst4, base_sreg, t):
        p = self.p
        p(f"v_and_b32 {v(t)}, 31, {v(VL)}\nv_lshlrev_b32 {v(t)}, 7, {v(t)}")
        if base_sreg is not None: p(f"v_add_u32 {v(t)}, s{base_sreg}, {v(t)}")
        p(f"v_bfe_u32 {v(t+1)}, {v(VL)}, 1, 3\nv_lshrrev_b32 {v(dst4)}, 5, {v(VL)}\nv_xor_b32 {v(t+1)}, {v(t+1)}, {v(dst4)}")
        p(f"v_lshlrev_b32 {v(t+1)}, 4, {v(t+1)}")
        for ks in range(4):
            p(f"v_xor_b32 {v(dst4+ks)}, {32*ks}, {v(t+1)}\nv_add_u32 {v(dst4+ks)}, {v(dst4+ks)}, {v(t)}")
    def plain_dma_addr(self, dst4, rowbytes, t, rowstep=8):
        p = self.p
        p(f"v_lshrrev_b32 {v(t)}, 3, {v(VL)}\nv_mul_u32_u24 {v(t)}, {rowbytes}, {v(t)}")
        self.plain_dma_addr2(dst4, t, t + 1, rowstep * rowbytes)
    def plain_dma_addr2(self, dst4, vrow, t, step):
        p = self.p
        p(f"v_and_b32 {v(t)}, 7, {v(VL)}\nv_lshrrev_b32 {v(dst4)}, 4, {v(VL)}\nv_xor_b32 {v(t)}, {v(t)}, {v(dst4)}\nv_lshlrev_b32 {v(t)}, 4, {v(t)}")
        p(f"v_add_u32 {v(dst4)}, {v(t)}, {v(vrow)}")
        p(f"v_xor_b32 {v(t)}, 64, {v(t)}\nv_add_u32 {v(dst4+1)}, {v(t)}, {v(vrow)}")
        p(f"v_add_u32 {v(dst4+2)}, {2*(step-1024)}, {v(dst4)}\nv_add_u32 {v(dst4+3)}, {3*(step-1024)}, {v(dst4+1)}\nv_add_u32 {v(dst4+1)}, {step-1024}, {v(dst4+1)}")
    def panel_tr_addr(self, dst2, base_sreg, t, perm):
        p = self.p
        p(f"v_lshrrev_b32 {v(t)}, 5, {v(VL)}\nv_lshlrev_b32 {v(t)}, 10, {v(t)}")
        p(f"v_bfe_u32 {v(t+1)}, {v(VL)}, 2, 2\nv_lshl_add_u32 {v(t)}, {v(t+1)}, 7, {v(t)}")
        p(f"v_bfe_u32 {v(t+1)}, {v(VL)}, 4, 1\nv_lshl_add_u32 {v(t)}, {v(t+1)}, 5, {v(t)}")
        if perm:
            p(f"v_and_b32 {v(t+1)}, 1, {v(VL)}\nv_lshl_add_u32 {v(t)}, {v(t+1)}, 4, {v(t)}")
            p(f"v_bfe_u32 {v(t+1)}, {v(VL)}, 1, 1\nv_lshl_add_u32 {v(t)}, {v(t+1)}, 3, {v(t)}")
        else:
            p(f"v_and_b32 {v(t+1)}, 3, {v(VL)}\nv_lshl_add_u32 {v(t)}, {v(t+1)}, 3, {v(t)}")
        p(f"v_bfe_u32 {v(t+1)}, {v(VL)}, 3, 1\nv_lshlrev_b32 {v(t+1)}, 6, {v(t+1)}")
        if base_sreg is not None: p(f"v_add_u32 {v(t)}, s{base_sreg}, {v(t)}")
        p(f"v_add_u32 {v(dst2)}, {v(t)}, {v(t+1)}\nv_xor_b32 {v(t+1)}, 64, {v(t+1)}\nv_add_u32 {v(dst2+1)}, {v(t)}, {v(t+1)}")
    def unit_tr_addr(self, dst2, base_sreg, t, perm):
        p = self.p
        p(f"v_bfe_u32 {v(t)}, {v(VL)}, 4, 1\nv_lshlrev_b32 {v(t)}, 1, {v(t)}")
        p(f"v_bfe_u32 {v(t+1)}, {v(VL)}, {0 if perm else 1}, 1\nv_or_b32 {v(t)}, {v(t)}, {v(t+1)}")
        p(f"v_lshrrev_b32 {v(t+1)}, 5, {v(VL)}\nv_lshlrev_b32 {v(t+1)}, 1, {v(t+1)}\nv_xor_b32 {v(t+1)}, {v(t+1)}, {v(t)}")
        p(f"v_lshlrev_b32 {v(t)}, 9, {v(t)}")
        p(f"v_bfe_u32 {v(t+2)}, {v(VL)}, 2, 2\nv_lshl_add_u32 {v(t)}, {v(t+2)}, 4, {v(t)}")
        p(f"v_bfe_u32 {v(t+2)}, {v(VL)}, {1 if perm else 0}, 1\nv_lshl_add_u32 {v(t)}, {v(t+2)}, 3, {v(t)}")
        if base_sreg is not None: p(f"v_add_u32 {v(t)}, s{base_sreg}, {v(t)}")
        p(f"v_lshl_add_u32 {v(dst2)}, {v(t+1)}, 6, {v(t)}")
        p(f"v_xor_b32 {v(t+1)}, 1, {v(t+1)}\nv_lshl_add_u32 {v(dst2+1)}, {v(t+1)}, 6, {v(t)}")

    def gemm_loop(self, nstage, sps, nslot, reads, mfmas, dma, tick, rfront):
        p = self.p
        p.wait(vm=tick[0]); p("s_barrier")
        if self.o.get("stamps", 0) > 1: self.stamp(20)
        for op in reads(0): op()
        pend = []
        ns = nstage * sps
        for n in range(ns):
            rd = []
            if n + 1 < ns:
                if (n + 1) % sps == 0:
                    st = (n + 1) // sps
                    p.wait(vm=tick[st], lg=p.lg - 1); p("s_barrier")
                    if self.o.get("stamps", 0) > 1: self.stamp(20 + st)
                    if st - 1 + nslot < nstage:
                        d = dma(st - 1 + nslot)
                        q = (len(d) + sps - 1) // sps
                        pend = [d[i * q:(i + 1) * q] for i in range(sps)]
                rd = reads(n + 1)
            mm = mfmas(n)
            seq = merge(mm, rd, 0, rfront)
            if pend:
                dd = pend.pop(0)
                seq = merge(seq, dd, len(seq) // 2)
            for op in seq: op()

    def gelu_pair(self, a, t, out_packed=None):
        p = self.p
        p(f"v_cvt_pk_bf16_f32 {v(t)}, {v(a)}, {v(a+1)}")
        self.unpack(a, t)
        p(f"v_pk_mul_f32 {v(t,2)}, {v(a,2)}, {v(a,2)}")
        p(f"v_pk_fma_f32 {v(t,2)}, {v(t,2)}, {sp(SK)}, {v(self.VC0,2)} op_sel_hi:[1,0,0]")
        p(f"v_pk_mul_f32 {v(t,2)}, {v(t,2)}, {v(a,2)}")
        p(f"v_exp_f32 {v(t)}, {v(t)}\nv_exp_f32 {v(t+1)}, {v(t+1)}")
        p(f"v_pk_add_f32 {v(t,2)}, {v(t,2)}, 1.0 op_sel_hi:[1,0]")
        p(f"v_rcp_f32 {v(t)}, {v(t)}\nv_rcp_f32 {v(t+1)}, {v(t+1)}")
        p(f"v_pk_mul_f32 {v(t,2)}, {v(t,2)}, {v(a,2)}")
        if out_packed is not None:
            p(f"v_cvt_pk_bf16_f32 {v(out_packed)}, {v(t)}, {v(t+1)}")
        else:
            p(f"v_cvt_pk_bf16_f32 {v(t)}, {v(t)}, {v(t+1)}")
            self.unpack(a, t)
    def gelu_many(self, pairs, temps, outs=None):
        p = self.p
        ng = len(temps)
        for g0 in range(0, len(pairs), ng):
            grp = list(range(g0, min(g0 + ng, len(pairs))))
            streams = []
            for k, i in enumerate(grp):
                sub = Prog(); save = self.p; self.p = sub
                self.gelu_pair(pairs[i], temps[k], None if outs is None else outs[i])
                self.p = save
                streams.append(sub.L)
            for j in range(len(streams[0])):
                for s in streams: p(s[j])

    def wsp_setup(self, VD, VR, t):
        p = self.p
        self.plain_dma_addr(VD, 4096, t)
        self.plain_read_addr(VR, SREG, t)
        self.VWD, self.VWR = VD, VR
    def wsp_dma(self, batch):
        p = self.p
        p(f"s_lshl_b32 s{SA}, s{STB}, 18\ns_lshl_b32 s{SB_}, s{SWV}, 10\ns_add_u32 s{SA}, s{SA}, s{SB_}")
        t = None
        for s4 in range(4):
            st = batch * 4 + s4
            for hh in range(2):
                p(f"s_add_u32 s{SB_}, s{SA}, {st*128 + hh*131072}")
                p(f"s_add_u32 m0, s{SREG}, {s4*8192 + hh*4096}")
                for i in range(4):
                    t = p.vmem(f"buffer_load_dwordx4 {v(self.VWD+i)}, {srd(SWSP)}, s{SB_} offen offset:{i*1024} lds")
            self.wsp_t = getattr(self, "wsp_t", {}); self.wsp_t[st] = t
    def wsp_read(self, batch):
        p = self.p
        for s4 in range(4):
            st = batch * 4 + s4
            p.wait(vm=self.wsp_t[st])
            for ks in range(4):
                for nt in range(2):
                    kap = st * 4 + ks
                    p.lds(f"ds_read_b128 {ar((kap*2+nt)*4,4)}, {v(self.VWR+ks)} offset:{s4*8192+nt*4096}")
            p.wait(lg=p.lg - 8)
        p.wait_lg_all()

    def prologue(self):
        p = self.p
        self.END = p.label("end")
        p(f"s_cmp_ge_u32 s2, 256\ns_cbranch_scc1 {self.END}")
        for (r, off) in [(SX, 0), (PWIN, 80), (SWS, 136), (SWSP, 88), (SCRE, 40), (SCIM, 48), (SWOUT, 104), (SOUT, 120),
                         (PLDT, 56), (PDSK, 64), (PBSP, 96), (PGW, 112)]:
            p(f"s_load_dwordx2 {sp(r)}, s[0:1], {off}")
        p(f"s_load_dwordx4 s[{PBRE}:{PBRE+3}], s[0:1], 24")
        p(f"s_load_dwordx4 s[{PLRE}:{PLRE+3}], s[0:1], 8")
        p(f"v_lshrrev_b32 v2, 6, v0\nv_and_b32 {v(VL)}, 63, v0\nv_readfirstlane_b32 s{SWV}, v2\nv_lshlrev_b32 {v(VL16)}, 4, {v(VL)}")
        if self.o.get("stamps"):
            p("v_mov_b32 v255, 0")
            self.stamp(17)
        if self.o.get("spin_to"):
            p(f"s_memrealtime s[{SPOLL}:{SPOLL+1}]\ns_waitcnt lgkmcnt(0)\nv_mov_b32 v253, s{SPOLL}")
        p(f"s_and_b32 s{SA}, s2, 7\ns_lshr_b32 s{SB_}, s2, 3")
        p(f"s_and_b32 s{SC}, s{SA}, 1\ns_lshl_b32 s{SC}, s{SC}, 2\ns_and_b32 s{SD}, s{SB_}, 3\ns_add_u32 s{SCOL}, s{SC}, s{SD}")
        p(f"s_lshr_b32 s{SA}, s{SA}, 1")
        p(f"s_lshr_b32 s{SC}, s{SB_}, 2\ns_lshl_b32 s{SD}, s{SA}, 3\ns_add_u32 s{STB}, s{SD}, s{SC}")
        p(f"s_and_b32 s{SC}, s{SC}, 3\ns_lshl_b32 s{SD}, s{SA}, 2\ns_add_u32 s{SRB}, s{SD}, s{SC}")
        p(f"s_mul_i32 s{SREG}, s{SWV}, 40960")
        for (r, n) in [(SX, 2097152), (SWSP, 8388608), (SWS, WS_END), (SCRE, 524288), (SCIM, 524288), (SWOUT, 704512), (SOUT, 4194304)]:
            p(f"s_mov_b32 s{r+2}, {n}\ns_mov_b32 s{r+3}, 0x20000")
        p(f"s_mov_b32 s{SW1+3}, 0x20000")
        self.LU = p.label("U"); self.LG = p.label("G")
        p(f"s_cmp_ge_u32 s{SB_}, 16\ns_cbranch_scc1 {self.LU}")
    def epoch(self):
        p = self.p
        p(f"s_load_dword s{ST_T}, {sp(SWS)}, {EPOCH}")
    def epoch2(self):
        p = self.p
        p.wait_lg_all()
        p(f"s_mul_i32 s{ST_T}, s{ST_T}, 0x9E3779B1\ns_add_u32 s{ST_T}, s{ST_T}, 0x7F4A7C15\ns_mov_b32 s{ST_T+1}, s{ST_T}")

    def phase_z(self):
        p = self.p
        ACC, FA, FB, XR, WR, XD, WD, T = 16, 112, 160, 168, 172, 176, 180, 186
        p.c("==== phase A: Z ====")
        self.plain_dma_addr(XD, 1024, T)
        p(f"v_lshrrev_b32 {v(T)}, 3, {v(VL)}\nv_mul_u32_u24 {v(T)}, 2752, {v(T)}")
        p(f"v_bfe_u32 {v(T+1)}, {v(VL)}, 4, 1\nv_lshlrev_b32 {v(T+1)}, 2, {v(T+1)}\nv_and_b32 {v(T+2)}, 7, {v(VL)}\nv_xor_b32 {v(T+1)}, {v(T+1)}, {v(T+2)}")
        p(f"v_lshl_add_u32 {v(T)}, {v(T+1)}, 4, {v(T)}")
        p(f"v_add_u32 {v(WD)}, 1376, {v(T)}\nv_add_u32 {v(WD+4)}, 64, {v(T)}")
        p(f"v_cmp_gt_u32 vcc, 4, {v(T+1)}\nv_add_u32 {v(T+2)}, {1376+128}, {v(T)}\nv_subrev_u32 {v(T+3)}, 64, {v(T)}")
        p(f"v_cndmask_b32 {v(WD+2)}, {v(T+3)}, {v(T+2)}, vcc")
        for pi in range(3): p(f"v_add_u32 {v(WD+2*pi+1)}, {8*2752-1024}, {v(WD+2*pi)}")
        p(f"s_lshl_b32 s{SC}, s{SRB}, 17\ns_lshl_b32 s{SA}, s{SWV}, 15\ns_add_u32 s{SC}, s{SC}, s{SA}")
        p(f"s_mul_i32 s{SD}, s{SWV}, {16*2752}\ns_mul_i32 s{SA}, s{SCOL}, 176\ns_add_u32 s{SD}, s{SD}, s{SA}")
        p(f"s_lshl_b32 s{SE}, s{SWV}, 12\ns_lshl_b32 s{SF}, s{SWV}, 11\ns_add_u32 s{SF}, s{SF}, 65536")
        p.wait_lg_all()
        p(f"s_mov_b32 s{SW1}, s{PWIN}\ns_mov_b32 s{SW1+1}, s{PWIN+1}\ns_mov_b32 s{SW1+2}, {512*2752}")
        tick = {}
        def dma(st):
            sl = st & 3; ops = []
            def x0():
                p(f"s_add_u32 s{SA}, s{SC}, {st*128}\ns_add_u32 m0, s{SE}, {sl*16384}")
                p.vmem(f"buffer_load_dwordx4 {v(XD)}, {srd(SX)}, s{SA} offen lds")
            ops.append(x0)
            for i in range(1, 4):
                ops.append(lambda i=i: p.vmem(f"buffer_load_dwordx4 {v(XD+i)}, {srd(SX)}, s{SA} offen offset:{i*1024} lds"))
            for pi in range(3):
                def w0(pi=pi):
                    if pi == 0: p(f"s_add_u32 s{SB_}, s{SD}, {st*64*2752}")
                    p(f"s_add_u32 m0, s{SF}, {sl*24576+pi*8192}")
                    p.vmem(f"buffer_load_dwordx4 {v(WD+2*pi)}, {srd(SW1)}, s{SB_} offen lds")
                def w1(pi=pi):
                    tick[st] = p.vmem(f"buffer_load_dwordx4 {v(WD+2*pi+1)}, {srd(SW1)}, s{SB_} offen offset:1024 lds")
                ops += [w0, w1]
            return ops
        for st in range(4):
            for op in dma(st): op()
        self.epoch()
        self.stamp(0)
        self.plain_read_addr(XR, SE, T)
        self.panel_tr_addr(WR, None, T, True)
        p(f"v_add_u32 {v(WR+2)}, {65536+49152}, {v(WR)}\nv_add_u32 {v(WR+3)}, {65536+49152}, {v(WR+1)}")
        p(f"v_add_u32 {v(WR)}, 65536, {v(WR)}\nv_add_u32 {v(WR+1)}, 65536, {v(WR+1)}")
        self.wsp_setup(200, 204, T)
        self.VC0 = 208
        c1 = -2 * LOG2E * 0.7978845608028654
        p(f"s_mov_b32 s{SK}, {f2u(c1*0.044715)}\nv_mov_b32 {v(self.VC0)}, {f2u(c1)}")
        self.epoch2()
        rt = {}
        def reads(n):
            st, ks = n // 4, n % 4; sl = st & 3; s = n & 1; ops = []
            def rb(): rt[(n, 'b')] = p.lds(f"ds_read_b128 {v(FB+4*s,4)}, {v(XR+ks)} offset:{sl*16384}")
            ops.append(rb)
            for mt in range(6):
                for a in range(2):
                    def ra(mt=mt, a=a):
                        rt[(n, mt)] = p.lds(f"ds_read_b64_tr_b16 {v(FA+24*s+4*mt+2*a,2)}, {v(WR+2*(sl>>1)+(mt&1))} offset:{(sl&1)*24576+(mt>>1)*8192+ks*2048+a*512}")
                    ops.append(ra)
            return ops
        def mfmas(n):
            s = n & 1; ops = []
            for mt in range(6):
                def m(mt=mt):
                    p.wait(lg=rt[(n, mt)])
                    c = "0" if n == 0 else v(ACC + 16 * mt, 16)
                    p(f"v_mfma_f32_32x32x16_bf16 {v(ACC+16*mt,16)}, {v(FA+24*s+4*mt,4)}, {v(FB+4*s,4)}, {c}")
                ops.append(m)
            return ops
        self.gemm_loop(8, 4, 4, reads, mfmas, dma, tick, 4)
        self.stamp(1)
        p("s_barrier")
        self.wsp_dma(0)
        TT = [112, 116, 120, 124]
        self.gelu_many([ACC + 2 * i for i in range(24)], TT)
        MA, MB = SK + 2, SK + 4
        p(f"s_cmp_lt_u32 s{SCOL}, 7")
        p(f"s_mov_b32 s{MA}, -1\ns_cselect_b32 s{MA+1}, -1, 0\ns_cselect_b32 s{MB}, -1, 0\ns_mov_b32 s{MB+1}, 0")
        p(f"s_mov_b32 s{SK+6}, {f2u(1/72)}\ns_cselect_b32 s{SK+6}, {f2u(1/88)}, s{SK+6}")
        S0, S1, MU = 112, 114, 116
        p(f"v_pk_add_f32 {v(S0,2)}, {v(ACC,2)}, {v(ACC+2,2)}\nv_pk_add_f32 {v(S1,2)}, {v(ACC+4,2)}, {v(ACC+6,2)}")
        for i in range(4, 16):
            s = S0 if i % 2 == 0 else S1
            p(f"v_pk_add_f32 {v(s,2)}, {v(s,2)}, {v(ACC+2*i,2)}")
        for (m, b) in [(MA, 16), (MB, 20)]:
            p(f"s_mov_b64 exec, {sp(m)}")
            for i in range(b, b + 4):
                s = S0 if i % 2 == 0 else S1
                p(f"v_pk_add_f32 {v(s,2)}, {v(s,2)}, {v(ACC+2*i,2)}")
        p("s_mov_b64 exec, -1")
        GR = 120
        p(f"v_pk_add_f32 {v(S0,2)}, {v(S0,2)}, {v(S1,2)}\nv_add_f32 {v(GR)}, {v(S0)}, {v(S0+1)}")
        self.xhalf_sum(GR, S0)
        p(f"v_mul_f32 {v(MU)}, s{SK+6}, {v(GR)}")
        D0, D1 = 124, 126
        p(f"v_mov_b32 {v(S0)}, 0\nv_mov_b32 {v(S0+1)}, 0\nv_mov_b32 {v(S1)}, 0\nv_mov_b32 {v(S1+1)}, 0")
        def m2(i):
            d = D0 if i % 2 == 0 else D1; s = S0 if i % 2 == 0 else S1
            p(f"v_pk_add_f32 {v(d,2)}, {v(ACC+2*i,2)}, {v(MU,2)} op_sel_hi:[1,0] neg_lo:[0,1] neg_hi:[0,1]")
            p(f"v_pk_fma_f32 {v(s,2)}, {v(d,2)}, {v(d,2)}, {v(s,2)}")
        for i in range(16): m2(i)
        for (m, b) in [(MA, 16), (MB, 20)]:
            p(f"s_mov_b64 exec, {sp(m)}")
            for i in range(b, b + 4): m2(i)
        p("s_mov_b64 exec, -1")
        p(f"v_pk_add_f32 {v(S0,2)}, {v(S0,2)}, {v(S1,2)}\nv_add_f32 {v(GR+2)}, {v(S0)}, {v(S0+1)}")
        self.xhalf_sum(GR + 2, S0)
        p(f"v_mov_b32 {v(GR+1)}, s{ST_T}\nv_mov_b32 {v(GR+3)}, s{ST_T}")
        VLO = 128
        p(f"v_cmp_gt_u32 vcc, 32, {v(VL)}\nv_mov_b32 {v(VLO)}, {OOB}\nv_cndmask_b32 {v(VLO)}, {v(VLO)}, {v(VL16)}, vcc")
        p(f"s_lshl_b32 s{SC}, s{SRB}, 2\ns_add_u32 s{SC}, s{SC}, s{SWV}")
        p(f"s_lshl_b32 s{SD}, s{SC}, 12\ns_add_u32 s{SD}, s{SD}, {ST}\ns_lshl_b32 s{SA}, s{SCOL}, 9\ns_add_u32 s{SA}, s{SA}, s{SD}")
        p.vmem(f"buffer_store_dwordx4 {v(GR,4)}, {v(VLO)}, {srd(SWS)}, s{SA} offen sc1")
        self.stamp(2)
        Z1P = 132
        self.gelu_many([ACC + 48 + 2 * i for i in range(24)], [112, 116, 156, 160], [Z1P + i for i in range(24)])
        p(f"s_lshl_b32 s{SA}, s{SCOL}, 6\ns_add_u32 s{SA}, s{SA}, s{SC}\ns_mul_i32 s{SE}, s{SA}, 5632")
        p(f"s_add_u32 s{SA}, s{SE}, {Z1}\ns_add_u32 s{SB_}, s{SA}, 4096")
        VA_, VB_ = 112, 113
        p(f"v_mov_b32 {v(114)}, {OOB}")
        p(f"v_cndmask_b32 {v(VA_)}, {v(114)}, {v(VL16)}, {sp(MA)}\nv_cndmask_b32 {v(VB_)}, {v(114)}, {v(VL16)}, {sp(MB)}")
        for mt in range(3):
            for q in range(2):
                r = v(Z1P + 8 * mt + 4 * q, 4)
                if mt < 2: p.vmem(f"buffer_store_dwordx4 {r}, {v(VL16)}, {srd(SWS)}, s{SA} offen offset:{mt*2048+q*1024} sc1")
                else: p.vmem(f"buffer_store_dwordx4 {r}, {v(VA_+q)}, {srd(SWS)}, s{SB_} offen offset:{q*1024} sc1")
        self.stamp(3)
        SG = 64 + 16
        SG = 64
        l = p.label("sp"); d = p.label("sd")
        p(f"s_mov_b32 s{SSPIN}, 0")
        p.put(l)
        for q in range(4):
            p.vmem(f"buffer_load_dwordx4 {v(SG+4*q,4)}, {v(VL16)}, {srd(SWS)}, s{SD} offen offset:{q*1024} sc1")
        p.wait_vm_all()
        p(f"v_xor_b32 {v(80)}, s{ST_T}, {v(SG+1)}")
        for r in [3, 5, 7, 9, 11, 13, 15]:
            p(f"v_xor_b32 {v(81)}, s{ST_T}, {v(SG+r)}\nv_or_b32 {v(80)}, {v(80)}, {v(81)}")
        p(f"v_cmp_ne_u32 vcc, 0, {v(80)}\ns_cmp_eq_u64 vcc, 0\ns_cbranch_scc1 {d}")
        p(f"s_add_u32 s{SSPIN}, s{SSPIN}, 1\ns_cmp_lt_u32 s{SSPIN}, {SPIN}\ns_cbranch_scc1 {l}")
        p.put(d)
        self.stamp(4)
        MN, VR, N3, I3, TM = 80, 81, 82, 83, 84
        p(f"v_add_f32 {v(MN)}, {v(SG)}, {v(SG+4)}\nv_add_f32 {v(TM)}, {v(SG+8)}, {v(SG+12)}\nv_add_f32 {v(MN)}, {v(MN)}, {v(TM)}")
        self.xhalf_sum(MN, TM)
        p(f"v_mul_f32 {v(MN)}, {f2u(1/688)}, {v(MN)}")
        p(f"v_cmp_gt_u32 vcc, 32, {v(VL)}\nv_mov_b32 {v(N3)}, {f2u(72.0)}\nv_mov_b32 {v(TM)}, {f2u(88.0)}\nv_cndmask_b32 {v(N3)}, {v(N3)}, {v(TM)}, vcc")
        p(f"v_mov_b32 {v(I3)}, {f2u(1/72)}\nv_mov_b32 {v(TM+1)}, {f2u(1/88)}\nv_cndmask_b32 {v(I3)}, {v(I3)}, {v(TM+1)}, vcc")
        p(f"v_add_f32 {v(VR)}, {v(SG+2)}, {v(SG+6)}\nv_add_f32 {v(TM+2)}, {v(SG+10)}, {v(SG+14)}\nv_add_f32 {v(VR)}, {v(VR)}, {v(TM+2)}")
        for q in range(4):
            n_, i_ = (TM, TM + 1) if q < 3 else (N3, I3)
            p(f"v_fma_f32 {v(TM+2)}, {v(SG+4*q)}, {v(i_)}, -{v(MN)}\nv_mul_f32 {v(TM+2)}, {v(TM+2)}, {v(TM+2)}\nv_fmac_f32 {v(VR)}, {v(TM+2)}, {v(n_)}")
        self.xhalf_sum(VR, TM)
        p(f"v_mul_f32 {v(VR)}, {f2u(1/688)}, {v(VR)}")
        self.rnd(MN, MN); self.rnd(VR, VR)
        p(f"v_add_f32 {v(VR)}, {f2u(1e-5)}, {v(VR)}"); self.rnd(VR, VR)
        p(f"v_sqrt_f32 {v(VR)}, {v(VR)}"); self.rnd(VR, VR)
        p(f"v_rcp_f32 {v(VR)}, {v(VR)}")
        ZP = 132
        for i in range(24):
            a = ACC + 2 * i
            p(f"v_pk_add_f32 {v(a,2)}, {v(a,2)}, {v(MN,2)} op_sel_hi:[1,0] neg_lo:[0,1] neg_hi:[0,1]")
        if self.o.get("ln_round", 1):
            for i in range(24): p(f"v_cvt_pk_bf16_f32 {v(ZP+i)}, {v(ACC+2*i)}, {v(ACC+2*i+1)}")
            for i in range(24): self.unpack(ACC + 2 * i, ZP + i)
        for i in range(24):
            a = ACC + 2 * i
            p(f"v_pk_mul_f32 {v(a,2)}, {v(a,2)}, {v(MN,2)} op_sel:[0,1] op_sel_hi:[1,1]")
        for i in range(24): p(f"v_cvt_pk_bf16_f32 {v(ZP+i)}, {v(ACC+2*i)}, {v(ACC+2*i+1)}")
        Q0, Q1, QA, QB = 84, 85, 86, 87
        p(f"v_lshrrev_b32 {v(Q1)}, 5, {v(VL)}\nv_lshlrev_b32 {v(Q1)}, 6, {v(Q1)}\nv_xor_b32 {v(Q0)}, {v(VL16)}, {v(Q1)}\nv_xor_b32 {v(Q1)}, 128, {v(Q0)}")
        p(f"v_cndmask_b32 {v(QA)}, {v(114)}, {v(Q0)}, {sp(MA)}\nv_cndmask_b32 {v(QB)}, {v(114)}, {v(Q1)}, {sp(MB)}")
        p(f"s_add_u32 s{SA}, s{SE}, {Z2N}\ns_add_u32 s{SB_}, s{SA}, 4096")
        for mt in range(3):
            for q in range(2):
                r = v(ZP + 8 * mt + 4 * q, 4)
                if mt < 2: t = p.vmem(f"buffer_store_dwordx4 {r}, {v(Q0+q)}, {srd(SWS)}, s{SA} offen offset:{mt*2048+q*1024} sc1")
                else: t = p.vmem(f"buffer_store_dwordx4 {r}, {v(QA+q)}, {srd(SWS)}, s{SB_} offen offset:{q*1024} sc1")
        self.wsp_read(0)
        p.wait(vm=t)
        p(f"s_lshl_b32 s{SA}, s{SCOL}, 6\ns_add_u32 s{SA}, s{SA}, s{SC}\ns_lshl_b32 s{SA}, s{SA}, 2\ns_add_u32 s{SA}, s{SA}, {ZF}")
        self.flag(SA, 88)
        self.stamp(5)
        p(f"s_branch {self.LG}")

    def phase_u(self):
        p = self.p
        ACC, FA, FB, XR, BR, XD, BD, T = 16, 80, 96, 112, 116, 120, 124, 128
        p.c("==== phase A: U ====")
        p.put(self.LU)
        p(f"v_lshrrev_b32 {v(T)}, 5, {v(VL)}\nv_lshlrev_b32 {v(T)}, 15, {v(T)}")
        p(f"v_bfe_u32 {v(T+1)}, {v(VL)}, 3, 1\nv_lshl_add_u32 {v(T)}, {v(T+1)}, 14, {v(T)}")
        p(f"v_bfe_u32 {v(T+1)}, {v(VL)}, 4, 1\nv_lshl_add_u32 {v(T)}, {v(T+1)}, 10, {v(T)}")
        self.plain_dma_addr2(XD, T, T + 1, 2048)
        self.plain_dma_addr(BD, 1024, T)
        p(f"s_lshr_b32 s{SA}, s{SWV}, 1\ns_and_b32 s{SB_}, s{SWV}, 1")
        p(f"s_lshl_b32 s{SC}, s{SRB}, 17\ns_lshl_b32 s{SD}, s{SA}, 16\ns_add_u32 s{SC}, s{SC}, s{SD}\ns_lshl_b32 s{SD}, s{SB_}, 13\ns_add_u32 s{SC}, s{SC}, s{SD}")
        p(f"s_lshl_b32 s{SD}, s{SCOL}, 16\ns_lshl_b32 s{SE}, s{SB_}, 15\ns_add_u32 s{SD}, s{SD}, s{SE}")
        p(f"s_lshl_b32 s{SE}, s{SWV}, 12")
        p.wait_lg_all()
        p(f"s_cmp_eq_u32 s{SA}, 0\ns_cselect_b32 s{SW1}, s{PBRE}, s{PBIM}\ns_cselect_b32 s{SW1+1}, s{PBRE+1}, s{PBIM+1}\ns_mov_b32 s{SW1+2}, 524288")
        tick = {}
        def dma(st):
            sl = st & 3; ops = []
            for (vd, sr, sb, lb) in [(XD, SX, SC, 0), (BD, SW1, SD, 65536)]:
                def f0(vd=vd, sr=sr, sb=sb, lb=lb):
                    p(f"s_add_u32 s{SA}, s{sb}, {st*128}\ns_add_u32 m0, s{SE}, {lb+sl*16384}")
                    p.vmem(f"buffer_load_dwordx4 {v(vd)}, {srd(sr)}, s{SA} offen lds")
                ops.append(f0)
                for i in range(1, 4):
                    def f(i=i, vd=vd, sr=sr):
                        tick[st] = p.vmem(f"buffer_load_dwordx4 {v(vd+i)}, {srd(sr)}, s{SA} offen offset:{i*1024} lds")
                    ops.append(f)
            return ops
        for st in range(4):
            for op in dma(st): op()
        self.epoch()
        self.stamp(0)
        WT, WP = SK + 8, SK + 9
        p(f"s_and_b32 s{WT}, s{SWV}, 1\ns_lshr_b32 s{WP}, s{SWV}, 1")
        PR = 140
        p(f"s_lshl_b32 s{SA}, s{SCOL}, 6\ns_lshl_b32 s{SB_}, s{WP}, 5\ns_add_u32 s{SA}, s{SA}, s{SB_}")
        p(f"v_and_b32 {v(T)}, 31, {v(VL)}\nv_add_u32 {v(T)}, s{SA}, {v(T)}\nv_lshlrev_b32 {v(T)}, 1, {v(T)}")
        p.vmem(f"global_load_ushort {v(PR)}, {v(T)}, {sp(PLRE)}")
        p.vmem(f"global_load_ushort {v(PR+1)}, {v(T)}, {sp(PLIM)}")
        tp = p.vmem(f"global_load_ushort {v(PR+2)}, {v(T)}, {sp(PLDT)}")
        p(f"s_lshl_b32 s{SA}, s{WT}, 13")
        self.plain_read_addr(XR, SA, T)
        p(f"s_lshl_b32 s{SA}, s{WP}, 12\ns_add_u32 s{SA}, s{SA}, 65536")
        self.plain_read_addr(BR, SA, T)
        self.wsp_setup(200, 204, T)
        self.epoch2()
        rt = {}
        def reads(n):
            st, ks = n // 4, n % 4; sl = st & 3; s = n & 1; ops = []
            for k in range(2):
                def ra(k=k): rt[(n, 'a', k)] = p.lds(f"ds_read_b128 {v(FA+8*s+4*k,4)}, {v(XR+ks)} offset:{sl*16384+k*4096}")
                def rb(k=k): rt[(n, 'b', k)] = p.lds(f"ds_read_b128 {v(FB+8*s+4*k,4)}, {v(BR+ks)} offset:{sl*16384+k*8192}")
                ops += [ra, rb]
            return ops
        def mfmas(n):
            s = n & 1; ops = []
            for (mt, cp) in [(0, 0), (1, 0), (1, 1), (0, 1)]:
                def m(mt=mt, cp=cp):
                    p.wait(lg=max(rt[(n, 'a', mt)], rt[(n, 'b', cp)]))
                    d = v(ACC + 32 * mt + 16 * cp, 16)
                    p(f"v_mfma_f32_32x32x16_bf16 {d}, {v(FA+8*s+4*mt,4)}, {v(FB+8*s+4*cp,4)}, {'0' if n == 0 else d}")
                ops.append(m)
            return ops
        self.gemm_loop(8, 4, 4, reads, mfmas, dma, tick, 3)
        self.stamp(1)
        p("s_barrier")
        self.wsp_dma(0)
        LB, CF, L16, L128, L256, LQ0, LQ1 = 144, 146, 148, 150, 152, 154, 156
        X0, X1, X2, X3 = 160, 161, 162, 163
        p(f"v_lshlrev_b32 {v(PR)}, 16, {v(PR)}\nv_lshlrev_b32 {v(PR+1)}, 16, {v(PR+1)}\nv_lshlrev_b32 {v(PR+2)}, 16, {v(PR+2)}")
        p(f"v_mul_f32 {v(X0)}, {f2u(LOG2E)}, {v(PR+2)}\nv_exp_f32 {v(X0)}, {v(X0)}"); self.rnd(X0, X0)
        p(f"v_mul_f32 {v(X1)}, {v(X0)}, {v(PR)}\nv_mul_f32 {v(X2)}, {v(X0)}, {v(PR+1)}")
        p(f"v_mul_f32 {v(X1)}, {f2u(LOG2E)}, {v(X1)}\nv_exp_f32 {v(X1)}, {v(X1)}")
        p(f"v_mul_f32 {v(X2)}, {f2u(1/(2*math.pi))}, {v(X2)}\nv_fract_f32 {v(X2)}, {v(X2)}")
        p(f"v_cos_f32 {v(X3)}, {v(X2)}\nv_sin_f32 {v(X2)}, {v(X2)}")
        p(f"v_mul_f32 {v(LB)}, {v(X1)}, {v(X3)}\nv_mul_f32 {v(LB+1)}, {v(X1)}, {v(X2)}")
        p(f"v_mul_f32 {v(X0)}, {v(PR)}, {v(PR)}\nv_fmac_f32 {v(X0)}, {v(PR+1)}, {v(PR+1)}\nv_rcp_f32 {v(X0)}, {v(X0)}")
        p(f"v_add_f32 {v(X1)}, -1.0, {v(LB)}\nv_add_f32 {v(X0)}, {v(X0)}, {v(X0)}")
        p(f"v_mul_f32 {v(X2)}, {v(X1)}, {v(PR)}\nv_fmac_f32 {v(X2)}, {v(LB+1)}, {v(PR+1)}\nv_mul_f32 {v(CF)}, {v(X2)}, {v(X0)}")
        p(f"v_mul_f32 {v(X2)}, {v(LB+1)}, {v(PR)}\nv_fma_f32 {v(X2)}, -{v(X1)}, {v(PR+1)}, {v(X2)}\nv_mul_f32 {v(CF+1)}, {v(X2)}, {v(X0)}")
        def csq(d, s):
            p(f"v_mul_f32 {v(X0)}, {v(s+1)}, {v(s+1)}\nv_add_f32 {v(X1)}, {v(s)}, {v(s)}")
            p(f"v_mul_f32 {v(d+1)}, {v(X1)}, {v(s+1)}\nv_fma_f32 {v(d)}, {v(s)}, {v(s)}, -{v(X0)}")
        def cmul(d, a, b):
            p(f"v_mul_f32 {v(X0)}, {v(a+1)}, {v(b+1)}\nv_mul_f32 {v(X1)}, {v(a+1)}, {v(b)}")
            p(f"v_fma_f32 {v(X0)}, {v(a)}, {v(b)}, -{v(X0)}\nv_fma_f32 {v(d+1)}, {v(a)}, {v(b+1)}, {v(X1)}\nv_mov_b32 {v(d)}, {v(X0)}")
        def cfma(d, a, b, c):
            p(f"v_fma_f32 {v(X0)}, {v(a)}, {v(b)}, {v(c)}\nv_fma_f32 {v(X1)}, {v(a)}, {v(b+1)}, {v(c+1)}")
            p(f"v_fma_f32 {v(X0)}, -{v(a+1)}, {v(b+1)}, {v(X0)}\nv_fma_f32 {v(d+1)}, {v(a+1)}, {v(b)}, {v(X1)}\nv_mov_b32 {v(d)}, {v(X0)}")
        L32, L64 = 164, 166
        csq(L16, LB); csq(L16, L16); csq(L16, L16); csq(L16, L16)
        csq(L32, L16); csq(L64, L32); csq(L128, L64); csq(L256, L128)
        p(f"v_cmp_gt_u32 vcc, 32, {v(VL)}\nv_cndmask_b32 {v(LQ0)}, {v(L32)}, 1.0, vcc\nv_cndmask_b32 {v(LQ0+1)}, {v(L32+1)}, 0, vcc")
        sk = p.label("wt0")
        p(f"s_cmp_eq_u32 s{WT}, 0\ns_cbranch_scc1 {sk}")
        cmul(LQ0, LQ0, L64)
        p.put(sk)
        cmul(LQ1, LQ0, L16)
        def U(sg, cp): return ACC + 32 * (sg >> 3) + 16 * cp + 4 * ((sg & 7) >> 1) + 2 * (sg & 1)
        def step(hr, hi, sg, nr, ni, t0, t1):
            A = v(LB, 2)
            p(f"v_pk_fma_f32 {v(t0,2)}, {A}, {v(hr,2)}, {v(U(sg,0),2)} op_sel_hi:[0,1,1]")
            p(f"v_pk_fma_f32 {v(t1,2)}, {A}, {v(hi,2)}, {v(U(sg,1),2)} op_sel_hi:[0,1,1]")
            p(f"v_pk_fma_f32 {v(nr,2)}, {A}, {v(hi,2)}, {v(t0,2)} op_sel:[1,0,0] op_sel_hi:[1,1,1] neg_lo:[1,0,0] neg_hi:[1,0,0]")
            p(f"v_pk_fma_f32 {v(ni,2)}, {A}, {v(hr,2)}, {v(t1,2)} op_sel:[1,0,0] op_sel_hi:[1,1,1]")
        HA, HBb, T0 = 80, 84, 88
        hr, hi = U(0, 0), U(0, 1)
        for sg in range(1, 16):
            nr, ni = (HA, HA + 2) if sg & 1 else (HBb, HBb + 2)
            step(hr, hi, sg, nr, ni, T0, T0 + 2)
            hr, hi = nr, ni
        EX = 92
        p(f"v_mov_b32 {v(EX)}, {v(hr)}\nv_mov_b32 {v(EX+1)}, {v(hi)}\nv_mov_b32 {v(EX+2)}, {v(hr+1)}\nv_mov_b32 {v(EX+3)}, {v(hi+1)}")
        SCR = 163840 - 4096
        p(f"s_lshl_b32 s{SA}, s{WP}, 11\ns_add_u32 s{SA}, s{SA}, {SCR}")
        p(f"v_and_b32 {v(T0)}, 31, {v(VL)}\nv_lshlrev_b32 {v(T0)}, 6, {v(T0)}\nv_add_u32 {v(T0)}, s{SA}, {v(T0)}")
        p(f"v_lshrrev_b32 {v(T0+1)}, 5, {v(VL)}\nv_lshl_add_u32 {v(T0+1)}, {v(T0+1)}, 4, {v(T0)}\ns_lshl_b32 s{SA}, s{WT}, 5\nv_add_u32 {v(T0+1)}, s{SA}, {v(T0+1)}")
        p.lds(f"ds_write_b128 {v(T0+1)}, {v(EX,4)}")
        p.wait_lg_all(); p("s_barrier")
        E8 = 96
        for i in range(4): p.lds(f"ds_read_b128 {v(E8+4*i,4)}, {v(T0)} offset:{16*i}")
        p.wait_lg_all()
        for q in range(1, 8): cfma(E8 + 2 * q, L16, E8 + 2 * (q - 1), E8 + 2 * q)
        GR = 112
        p(f"v_mov_b32 {v(GR)}, {v(E8+14)}\nv_mov_b32 {v(GR+1)}, s{ST_T}\nv_mov_b32 {v(GR+2)}, {v(E8+15)}\nv_mov_b32 {v(GR+3)}, s{ST_T}")
        p(f"s_cmp_eq_u32 s{WT}, 0\ns_cselect_b32 s{SA}, 32, 0")
        p(f"v_cmp_gt_u32 vcc, s{SA}, {v(VL)}\nv_mov_b32 {v(T0)}, {OOB}\nv_cndmask_b32 {v(T0)}, {v(T0)}, {v(VL16)}, vcc")
        p(f"s_lshl_b32 s{SC}, s{SCOL}, 14\ns_lshl_b32 s{SA}, s{WP}, 9\ns_add_u32 s{SC}, s{SC}, s{SA}\ns_add_u32 s{SC}, s{SC}, {EG}")
        p(f"s_lshl_b32 s{SA}, s{SRB}, 10\ns_add_u32 s{SA}, s{SA}, s{SC}")
        p.vmem(f"buffer_store_dwordx4 {v(GR,4)}, {v(T0)}, {srd(SWS)}, s{SA} offen sc1")
        self.stamp(2)
        CQ = 116
        p(f"v_cmp_gt_u32 vcc, 32, {v(VL)}")
        w1 = p.label("w1"); w2 = p.label("w2")
        p(f"s_cmp_eq_u32 s{WT}, 0\ns_cbranch_scc0 {w1}")
        p(f"v_cndmask_b32 {v(CQ)}, {v(E8+2)}, 0, vcc\nv_cndmask_b32 {v(CQ+1)}, {v(E8+3)}, 0, vcc")
        p(f"v_cndmask_b32 {v(CQ+2)}, {v(E8+4)}, {v(E8)}, vcc\nv_cndmask_b32 {v(CQ+3)}, {v(E8+5)}, {v(E8+1)}, vcc")
        p(f"s_branch {w2}")
        p.put(w1)
        for k in range(4): p(f"v_cndmask_b32 {v(CQ+k)}, {v(E8+10+k)}, {v(E8+6+k)}, vcc")
        p.put(w2)
        GX, GW, GU, GS = 168, 184, 188, 196
        p(f"s_lshl_b32 s{SD}, s{SRB}, 1\ns_add_u32 s{SD}, s{SD}, s{WT}")
        p(f"s_lshl_b32 s{SA}, s{SCOL}, 1\ns_add_u32 s{SA}, s{SA}, s{WP}")
        p(f"s_lshl_b32 s{SE}, s{SD}, 4\ns_add_u32 s{SE}, s{SE}, s{SA}")
        p(f"s_lshl_b32 s{SA}, s{SE}, 12")
        for r in range(4): p.vmem(f"buffer_load_dwordx4 {v(GX+4*r,4)}, {v(VL16)}, {srd(SX)}, s{SA} offen offset:{r*1024}")
        tg = p.vmem(f"global_load_dwordx4 {v(GW,4)}, {v(VL16)}, {sp(PGW)}")
        p.wait(vm=tg)
        for i in range(4): self.unpack(GU + 2 * i, GW + i)
        for r in range(4):
            for i in range(4):
                a = 208 + 2 * i
                self.unpack(a, GX + 4 * r + i)
                p(f"v_pk_mul_f32 {v(a,2)}, {v(a,2)}, {v(GU+2*i,2)}")
            for i in range(4): p(f"v_cvt_pk_bf16_f32 {v(GX+4*r+i)}, {v(208+2*i)}, {v(209+2*i)}")
            for i in range(4): self.unpack(208 + 2 * i, GX + 4 * r + i)
            p(f"v_pk_add_f32 {v(208,2)}, {v(208,2)}, {v(210,2)}\nv_pk_add_f32 {v(212,2)}, {v(212,2)}, {v(214,2)}\nv_pk_add_f32 {v(208,2)}, {v(208,2)}, {v(212,2)}")
            p(f"v_add_f32 {v(GS+r)}, {v(208)}, {v(209)}")
        for mod in ["quad_perm:[1,0,3,2]", "quad_perm:[2,3,0,1]", "row_half_mirror", "row_mirror"]:
            for r in range(4): p(f"v_add_f32_dpp {v(GS+r)}, {v(GS+r)}, {v(GS+r)} {mod} row_mask:0xf bank_mask:0xf")
        for sw in ["v_permlane16_swap_b32", "v_permlane32_swap_b32"]:
            for r in range(4): p(f"v_mov_b32 {v(208+r)}, {v(GS+r)}")
            for r in range(4): p(f"{sw} {v(GS+r)}, {v(208+r)}")
            for r in range(4): p(f"v_add_f32 {v(GS+r)}, {v(GS+r)}, {v(208+r)}")
        for r in range(4): self.rnd(GS + r, GS + r)
        for r in range(4): p(f"v_mul_f32 {v(GS+r)}, {f2u(-LOG2E)}, {v(GS+r)}")
        for r in range(4): p(f"v_exp_f32 {v(GS+r)}, {v(GS+r)}")
        for r in range(4): p(f"v_add_f32 {v(GS+r)}, 1.0, {v(GS+r)}")
        for r in range(4): p(f"v_rcp_f32 {v(GS+r)}, {v(GS+r)}")
        for r in range(4): self.rnd(GS + r, GS + r)
        p(f"v_cmp_eq_u32 vcc, 0, {v(VL)}\nv_mov_b32 {v(208)}, {OOB}\nv_cndmask_b32 {v(208)}, {v(208)}, {v(VL)}, vcc")
        p(f"s_lshl_b32 s{SA}, s{SE}, 4\ns_add_u32 s{SA}, s{SA}, {GATE}")
        p.vmem(f"buffer_store_dwordx4 {v(GS,4)}, {v(208)}, {srd(SWS)}, s{SA} offen sc1")
        self.stamp(3)
        EGR, EO, ET = 208, 240, 168
        p(f"v_lshrrev_b32 {v(ET)}, 5, {v(VL)}\nv_sub_u32 {v(ET)}, s{SRB}, {v(ET)}\nv_add_u32 {v(ET)}, -1, {v(ET)}")
        p(f"v_and_b32 {v(ET+1)}, 31, {v(VL)}\nv_lshlrev_b32 {v(ET+1)}, 4, {v(ET+1)}\nv_mov_b32 {v(ET+2)}, {OOB}\nv_mov_b32 {v(ET+3)}, s{ST_T}")
        EXP = 176
        for q in range(8):
            p(f"v_add_u32 {v(ET+4)}, {-2*q}, {v(ET)}\nv_cmp_le_i32 vcc, 0, {v(ET+4)}\nv_lshl_add_u32 {v(ET+4)}, {v(ET+4)}, 10, {v(ET+1)}")
            p(f"v_cndmask_b32 {v(EO+q)}, {v(ET+2)}, {v(ET+4)}, vcc\nv_cndmask_b32 {v(EXP+q)}, 0, {v(ET+3)}, vcc")
        l = p.label("ep"); d = p.label("ed")
        p(f"s_mov_b32 s{SSPIN}, 0")
        p.put(l)
        for q in range(8): p.vmem(f"buffer_load_dwordx4 {v(EGR+4*q,4)}, {v(EO+q)}, {srd(SWS)}, s{SC} offen sc1")
        p.wait_vm_all()
        p(f"v_mov_b32 {v(ET)}, 0")
        for q in range(8):
            for k in (1, 3):
                p(f"v_xor_b32 {v(ET+1)}, {v(EXP+q)}, {v(EGR+4*q+k)}\nv_or_b32 {v(ET)}, {v(ET)}, {v(ET+1)}")
        p(f"v_cmp_ne_u32 vcc, 0, {v(ET)}\ns_cmp_eq_u64 vcc, 0\ns_cbranch_scc1 {d}")
        p(f"s_add_u32 s{SSPIN}, s{SSPIN}, 1\ns_cmp_lt_u32 s{SSPIN}, {SPIN}\ns_cbranch_scc1 {l}")
        p.put(d)
        self.stamp(4)
        for q in range(8): p(f"v_mov_b32 {v(EGR+4*q+1)}, {v(EGR+4*q+2)}")
        S = EGR + 28
        for q in range(6, -1, -1): cfma(S, L256, S, EGR + 4 * q)
        p(f"v_mov_b32 {v(ET)}, {v(S)}\nv_mov_b32 {v(ET+1)}, {v(S+1)}\nv_permlane32_swap_b32 {v(S)}, {v(ET)}\nv_permlane32_swap_b32 {v(S+1)}, {v(ET+1)}")
        cfma(S, L128, ET, S)
        cfma(CQ, LQ0, S, CQ); cfma(CQ + 2, LQ1, S, CQ + 2)
        p(f"v_mov_b32 {v(HA)}, {v(CQ)}\nv_mov_b32 {v(HA+1)}, {v(CQ+2)}\nv_mov_b32 {v(HA+2)}, {v(CQ+1)}\nv_mov_b32 {v(HA+3)}, {v(CQ+3)}")
        hr, hi = HA, HA + 2
        OP = 208
        OT = 96
        Cc = v(CF, 2)
        for sg in range(16):
            step(hr, hi, sg, U(sg, 0), U(sg, 1), T0, T0 + 2)
            hr, hi = U(sg, 0), U(sg, 1)
            o = OT + 4 * (sg & 1) + 8 * ((sg >> 1) & 1)
            p(f"v_pk_mul_f32 {v(o,2)}, {Cc}, {v(hr,2)} op_sel_hi:[0,1]")
            p(f"v_pk_mul_f32 {v(o+2,2)}, {Cc}, {v(hi,2)} op_sel_hi:[0,1] neg_lo:[1,0] neg_hi:[1,0]")
            p(f"v_pk_fma_f32 {v(o,2)}, {Cc}, {v(hi,2)}, {v(o,2)} op_sel:[1,0,0] op_sel_hi:[1,1,1] neg_lo:[1,0,0] neg_hi:[1,0,0]")
            p(f"v_pk_fma_f32 {v(o+2,2)}, {Cc}, {v(hr,2)}, {v(o+2,2)} op_sel:[1,0,0] op_sel_hi:[1,1,1] neg_lo:[1,0,0] neg_hi:[1,0,0]")
            if sg & 1:
                q, i = sg >> 3, (sg & 7) >> 1
                for cp in range(2):
                    for e in range(2):
                        p(f"v_cvt_pk_bf16_f32 {v(OP+16*cp+8*e+4*q+i)}, {v(o-4+2*cp+e)}, {v(o+2*cp+e)}")
        p(f"s_lshl_b32 s{SA}, s{SD}, 3\ns_add_u32 s{SA}, s{SA}, s{SCOL}\ns_lshl_b32 s{SA}, s{SA}, 14\ns_lshl_b32 s{SB_}, s{WP}, 12\ns_add_u32 s{SA}, s{SA}, s{SB_}")
        p(f"s_add_u32 s{SA}, s{SA}, {HB}\ns_add_u32 s{SB_}, s{SA}, 8192")
        HO = 84
        p(f"v_lshrrev_b32 {v(T0)}, 5, {v(VL)}\nv_lshlrev_b32 {v(T0)}, 11, {v(T0)}\nv_and_b32 {v(T0+1)}, 31, {v(VL)}\nv_lshl_add_u32 {v(HO)}, {v(T0+1)}, 4, {v(T0)}")
        for k in range(1, 4): p(f"v_xor_b32 {v(HO+k)}, {64*k}, {v(HO)}")
        for cp in range(2):
            for k in range(4):
                t = p.vmem(f"buffer_store_dwordx4 {v(OP+16*cp+4*k,4)}, {v(HO+k)}, {srd(SWS)}, s{SA if cp == 0 else SB_} offen offset:{512*k} sc1")
        self.wsp_read(0)
        p.wait(vm=t)
        p(f"s_lshl_b32 s{SA}, s{SE}, 2\ns_add_u32 s{SA}, s{SA}, {HF}")
        self.flag(SA, 88)
        self.stamp(5)

    def phase_g(self):
        p = self.p
        p.c("==== phase B: G ====")
        p.put(self.LG)
        p.vm_done = -1
        self.wsp_dma(1)
        ACC, FA, TR, VB, VC, T = 16, 112, 160, 162, 163, 164
        self.unit_tr_addr(TR, SREG, T, True)
        p(f"v_add_u32 {v(VB)}, 4096, {v(VL16)}\nv_cmp_gt_u32 vcc, 32, {v(VL)}\nv_mov_b32 {v(VC)}, {OOB}\nv_cndmask_b32 {v(VC)}, {v(VC)}, {v(VB)}, vcc")
        self.wsp_read(1)
        self.stamp(6)
        p(f"s_lshl_b32 s{SA}, s{SCOL}, 8\ns_add_u32 s{SA}, s{SA}, {ZF}\ns_lshl_b32 s{SB_}, s{SWV}, 6\ns_add_u32 s{SB_}, s{SB_}, s{SA}")
        p(f"s_and_b32 s{SD}, s{SWV}, 1\ns_lshl_b32 s{SC}, s{STB}, 1\ns_add_u32 s{SC}, s{SC}, s{SD}")
        p(f"s_lshl_b32 s{SD}, s{SC}, 2\ns_add_u32 s{SD}, s{SD}, s{SA}")
        self.spoll(SB_, 16, T, extra=SD)
        self.stamp(7)
        p(f"s_lshl_b32 s{SA}, s{SCOL}, 6\ns_lshl_b32 s{SB_}, s{SWV}, 4\ns_add_u32 s{SA}, s{SA}, s{SB_}\ns_mul_i32 s{SE}, s{SA}, 5632\ns_add_u32 s{SE}, s{SE}, {Z2N}")
        NS = 6
        tick = {}
        def dma(b):
            sl = b % NS; ops = []
            def f0():
                p(f"s_add_u32 s{SA}, s{SE}, {b*5632}\ns_add_u32 m0, s{SREG}, {sl*6144}")
                p.vmem(f"buffer_load_dwordx4 {v(VL16)}, {srd(SWS)}, s{SA} offen sc1 lds")
            ops.append(f0)
            for i in range(1, 4): ops.append(lambda i=i: p.vmem(f"buffer_load_dwordx4 {v(VL16)}, {srd(SWS)}, s{SA} offen offset:{i*1024} sc1 lds"))
            def f4():
                p(f"s_add_u32 m0, s{SREG}, {sl*6144+4096}")
                p.vmem(f"buffer_load_dwordx4 {v(VB)}, {srd(SWS)}, s{SA} offen sc1 lds")
            def f5(): tick[b] = p.vmem(f"buffer_load_dwordx4 {v(VC)}, {srd(SWS)}, s{SA} offen offset:1024 sc1 lds")
            return ops + [f4, f5]
        for b in range(NS):
            for op in dma(b): op()
        Z1R, BI = 172, 184
        p(f"s_lshl_b32 s{SA}, s{SCOL}, 6\ns_add_u32 s{SA}, s{SA}, s{SC}\ns_mul_i32 s{SA}, s{SA}, 5632\ns_lshr_b32 s{SB_}, s{SWV}, 1\ns_lshl_b32 s{SB_}, s{SB_}, 10")
        p(f"s_add_u32 s{SA}, s{SA}, s{SB_}\ns_add_u32 s{SA}, s{SA}, {Z1}\ns_add_u32 s{SB_}, s{SA}, 4096")
        PV = 185
        p(f"s_cmp_lt_u32 s{SCOL}, 7\ns_cselect_b32 s{SD}, 64, 32\ns_lshr_b32 s{SF}, s{SWV}, 1\ns_lshl_b32 s{SF}, s{SF}, 5\ns_sub_u32 s{SD}, s{SD}, s{SF}")
        p(f"v_cmp_gt_u32 vcc, s{SD}, {v(VL)}\nv_mov_b32 {v(PV)}, {OOB}\nv_cndmask_b32 {v(PV)}, {v(PV)}, {v(VL16)}, vcc")
        p.vmem(f"buffer_load_dwordx4 {v(Z1R,4)}, {v(VL16)}, {srd(SWS)}, s{SA} offen sc1")
        p.vmem(f"buffer_load_dwordx4 {v(Z1R+4,4)}, {v(VL16)}, {srd(SWS)}, s{SA} offen offset:2048 sc1")
        p.vmem(f"buffer_load_dwordx4 {v(Z1R+8,4)}, {v(PV)}, {srd(SWS)}, s{SB_} offen sc1")
        p(f"v_and_b32 {v(T)}, 31, {v(VL)}\ns_lshl_b32 s{SA}, s{SC}, 5\nv_add_lshl_u32 {v(T)}, {v(T)}, s{SA}, 1")
        tz = p.vmem(f"global_load_ushort {v(BI)}, {v(T)}, {sp(PBSP)}")
        rt = {}
        def reads(b):
            sl = b % NS; s = b & 1; ops = []
            for ks in range(2):
                for mt in range(3):
                    for a in range(2):
                        def ra(ks=ks, mt=mt, a=a):
                            if ks == 0 and mt == 0 and a == 0: p.wait(vm=tick[b])
                            rt[(b, ks, mt)] = p.lds(f"ds_read_b64_tr_b16 {v(FA+24*s+12*ks+4*mt+2*a,2)}, {v(TR+a)} offset:{sl*6144+mt*2048+ks*256}")
                        ops.append(ra)
            return ops
        def mfmas(b):
            s = b & 1; ops = []
            for ks in range(2):
                for mt in range(3):
                    for nt in range(2):
                        def m(ks=ks, mt=mt, nt=nt):
                            p.wait(lg=rt[(b, ks, mt)])
                            d = v(ACC + 16 * (2 * mt + nt), 16); kap = 2 * b + ks
                            p(f"v_mfma_f32_32x32x16_bf16 {d}, {v(FA+24*s+12*ks+4*mt,4)}, {ar((kap*2+nt)*4,4)}, {'0' if kap == 0 else d}")
                        ops.append(m)
            return ops
        for op in reads(0): op()
        for b in range(16):
            mm = mfmas(b)
            seq = merge(mm, reads(b + 1), 0, 8) if b + 1 < 16 else mm
            if b + NS < 16:
                d = dma(b + NS)
                d0 = d[0]
                def first(d0=d0, b=b):
                    p.wait(lg=rt[(b, 1, 2)]); d0()
                seq = merge(seq, [first] + d[1:], len(seq) // 2)
            for op in seq: op()
        self.stamp(8)
        WD = 186
        p(f"v_lshrrev_b32 {v(T)}, 3, {v(VL)}\nv_lshlrev_b32 {v(T)}, 10, {v(T)}")
        p(f"v_bfe_u32 {v(T+1)}, {v(VL)}, 4, 1\nv_lshlrev_b32 {v(T+1)}, 2, {v(T+1)}\nv_and_b32 {v(T+2)}, 7, {v(VL)}\nv_xor_b32 {v(T+1)}, {v(T+1)}, {v(T+2)}")
        p(f"v_lshl_add_u32 {v(WD)}, {v(T+1)}, 4, {v(T)}")
        for i in range(1, 4): p(f"v_add_u32 {v(WD+i)}, {i*7168}, {v(WD)}")
        p(f"s_mul_i32 s{SE}, s{SWV}, {176*1024}\ns_lshl_b32 s{SA}, s{SCOL}, 7\ns_add_u32 s{SE}, s{SE}, s{SA}")
        for i in range(22):
            if i % 4 == 0: p(f"s_add_u32 s{SA}, s{SE}, {i*8192}\ns_add_u32 m0, s{SREG}, {18432+i*1024}")
            two = p.vmem(f"buffer_load_dwordx4 {v(WD+i%4)}, {srd(SWOUT)}, s{SA} offen offset:{(i%4)*1024} lds")
        VW = T; VRD = T + 1
        p(f"v_add_u32 {v(VW)}, s{SREG}, {v(VL16)}")
        cases = [p.label(f"rw{w}") for w in range(4)]; rdone = p.label("rwd")
        OWN = 112
        for w in range(1, 4): p(f"s_cmp_eq_u32 s{SWV}, {w}\ns_cbranch_scc1 {cases[w]}")
        lg0 = p.lg
        for w in range(4):
            p.put(cases[w]); p.lg = lg0
            for o in range(4):
                nt, q = o & 1, o >> 1
                for mt in range(3):
                    r = ACC + 16 * (2 * mt + nt) + 8 * q
                    for hq in range(2):
                        if o == w:
                            p(f"v_pk_mov_b32 {v(OWN+8*mt+4*hq,2)}, {v(r+4*hq,2)}, {v(r+4*hq,2)} op_sel:[0,1]\nv_pk_mov_b32 {v(OWN+8*mt+4*hq+2,2)}, {v(r+4*hq+2,2)}, {v(r+4*hq+2,2)} op_sel:[0,1]")
                        else:
                            slot = ((o - w) & 3) - 1
                            p.lds(f"ds_write_b128 {v(VW)}, {v(r+4*hq,4)} offset:{slot*6144+(2*mt+hq)*1024}")
            if w < 3: p(f"s_branch {rdone}\ns_nop 15")
        p.put(rdone)
        p.wait_lg_all(); p("s_barrier")
        RB = 16
        for k in range(1, 4):
            p(f"s_sub_u32 s{SA}, s{SWV}, {k}\ns_and_b32 s{SA}, s{SA}, 3\ns_mul_i32 s{SA}, s{SA}, 40960\nv_add_u32 {v(VRD+k-1)}, s{SA}, {v(VL16)}")
        tk = {}
        def rr(k, i): tk[(k, i)] = p.lds(f"ds_read_b128 {v(RB+24*(k-1)+4*i,4)}, {v(VRD+k-1)} offset:{(k-1)*6144+i*1024}")
        for k in range(1, 3):
            for i in range(6): rr(k, i)
        for k in range(1, 4):
            for i in range(6):
                p.wait(lg=tk[(k, i)])
                if k == 1: rr(3, i)
                for hh in range(2): p(f"v_pk_add_f32 {v(OWN+4*i+2*hh,2)}, {v(OWN+4*i+2*hh,2)}, {v(RB+24*(k-1)+4*i+2*hh,2)}")
        p("s_barrier")
        self.stamp(9)
        self.two = two
        self.c_setup()
        self.y_dma(0)
        p.wait(vm=tz)
        PK = 16; ZU = 32
        p(f"v_lshlrev_b32 {v(BI)}, 16, {v(BI)}")
        for i in range(12): p(f"v_cvt_pk_bf16_f32 {v(PK+i)}, {v(OWN+2*i)}, {v(OWN+2*i+1)}")
        for i in range(12): self.unpack(OWN + 2 * i, PK + i)
        for i in range(12): p(f"v_pk_add_f32 {v(OWN+2*i,2)}, {v(OWN+2*i,2)}, {v(BI,2)} op_sel_hi:[1,0]")
        for i in range(12): p(f"v_cvt_pk_bf16_f32 {v(PK+i)}, {v(OWN+2*i)}, {v(OWN+2*i+1)}")
        for i in range(12): self.unpack(OWN + 2 * i, PK + i)
        for i in range(12): self.unpack(ZU + 2 * i, Z1R + i)
        for i in range(12): p(f"v_pk_mul_f32 {v(OWN+2*i,2)}, {v(OWN+2*i,2)}, {v(ZU+2*i,2)}")
        for i in range(12): p(f"v_cvt_pk_bf16_f32 {v(PK+i)}, {v(OWN+2*i)}, {v(OWN+2*i+1)}")
        p(f"s_mul_i32 s{SA}, s{SC}, 45056\ns_mul_i32 s{SB_}, s{SCOL}, 5632\ns_add_u32 s{SA}, s{SA}, s{SB_}\ns_lshr_b32 s{SB_}, s{SWV}, 1\ns_lshl_b32 s{SB_}, s{SB_}, 10")
        p(f"s_add_u32 s{SA}, s{SA}, s{SB_}\ns_add_u32 s{SA}, s{SA}, {PB}\ns_add_u32 s{SB_}, s{SA}, 4096")
        p.vmem(f"buffer_store_dwordx4 {v(PK,4)}, {v(VL16)}, {srd(SWS)}, s{SA} offen sc1")
        p.vmem(f"buffer_store_dwordx4 {v(PK+4,4)}, {v(VL16)}, {srd(SWS)}, s{SA} offen offset:2048 sc1")
        tp = p.vmem(f"buffer_store_dwordx4 {v(PK+8,4)}, {v(PV)}, {srd(SWS)}, s{SB_} offen sc1")
        WT_ = 136
        p(f"s_add_u32 s{SA}, s{SREG}, 18432")
        self.panel_tr_addr(WT_, SA, 140, False)
        p.wait(vm=two)
        for kap in range(11):
            for mt in range(2):
                for a in range(2):
                    p.lds(f"ds_read_b64_tr_b16 {ar((kap*2+mt)*4+2*a,2)}, {v(WT_+mt)} offset:{kap*2048+a*512}")
            p.wait(lg=p.lg - 8)
        p.wait(vm=tp)
        p(f"s_lshl_b32 s{SA}, s{STB}, 3\ns_add_u32 s{SA}, s{SA}, s{SCOL}\ns_lshl_b32 s{SA}, s{SA}, 2\ns_add_u32 s{SA}, s{SA}, s{SWV}\ns_lshl_b32 s{SA}, s{SA}, 2\ns_add_u32 s{SA}, s{SA}, {PF}")
        self.flag(SA, 140)
        p.wait_lg_all()
        self.stamp(10)

    def c_setup(self):
        p = self.p
        self.CD, self.CR, self.HT = 190, 194, 198
        self.plain_dma_addr(self.CD, 1024, 200)
        self.plain_read_addr(self.CR, SREG, 200)
        p(f"s_add_u32 s{SA}, s{SREG}, 8192")
        self.unit_tr_addr(self.HT, SA, 200, False)
        p(f"s_lshl_b32 s{SB_}, s{STB}, 6\ns_add_u32 s{SB_}, s{SB_}, {HF}")
        self.spoll(SB_, 16, 200)
        p(f"s_lshl_b32 s{SK+10}, s{SCOL}, 16\ns_lshl_b32 s{SA}, s{SWV}, 8\ns_add_u32 s{SK+10}, s{SK+10}, s{SA}")
        p(f"s_lshl_b32 s{SK+11}, s{STB}, 17\ns_lshl_b32 s{SA}, s{SWV}, 15\ns_add_u32 s{SK+11}, s{SK+11}, s{SA}\ns_add_u32 s{SK+11}, s{SK+11}, {HB}")
        self.yt = {}
    def y_dma(self, s):
        p = self.p; sl = s & 1
        for hh in range(2):
            p(f"s_add_u32 s{SA}, s{SK+10}, {(s>>1)*128+hh*32768}\ns_add_u32 m0, s{SREG}, {sl*16384+hh*4096}")
            for i in range(4): p.vmem(f"buffer_load_dwordx4 {v(self.CD+i)}, {srd(SCIM if s & 1 else SCRE)}, s{SA} offen offset:{i*1024} lds")
        for hh in range(2):
            p(f"s_add_u32 s{SA}, s{SK+11}, {s*8192+hh*4096}\ns_add_u32 m0, s{SREG}, {sl*16384+8192+hh*4096}")
            for i in range(4): self.yt[s] = p.vmem(f"buffer_load_dwordx4 {v(VL16)}, {srd(SWS)}, s{SA} offen offset:{i*1024} sc1 lds")
    def phase_c(self):
        p = self.p
        p.c("==== phase C ====")
        YA, BA, F = 16, 80, 144
        XE, GE, DE = 204, 212, 216
        self.y_dma(1)
        T = 220
        p(f"v_lshrrev_b32 {v(T)}, 4, {v(VL)}\nv_and_b32 {v(T+1)}, 15, {v(VL)}")
        p(f"v_lshlrev_b32 {v(T+2)}, 10, {v(T)}\nv_lshl_add_u32 {v(T+2)}, {v(T+1)}, 3, {v(T+2)}")
        p(f"v_lshlrev_b32 {v(T+3)}, 2, {v(T)}\nv_lshlrev_b32 {v(T+4)}, 3, {v(T+1)}")
        OV = 218
        p(f"v_lshlrev_b32 {v(OV)}, 1, {v(T+2)}")
        p(f"s_lshl_b32 s{SC}, s{STB}, 6\ns_lshl_b32 s{SA}, s{SWV}, 4\ns_add_u32 s{SC}, s{SC}, s{SA}")
        p(f"s_lshl_b32 s{SD}, s{SC}, 10\ns_lshl_b32 s{SA}, s{SCOL}, 7\ns_add_u32 s{SD}, s{SD}, s{SA}")
        for gi in range(4):
            p(f"s_add_u32 s{SA}, s{SD}, {gi*4096}")
            p.vmem(f"buffer_load_dwordx2 {v(XE+2*gi,2)}, {v(T+2)}, {srd(SX)}, s{SA} offen")
        p(f"s_lshl_b32 s{SA}, s{SC}, 2\ns_add_u32 s{SA}, s{SA}, {GATE}")
        for gi in range(4): p.vmem(f"buffer_load_dword {v(GE+gi)}, {v(T+3)}, {srd(SWS)}, s{SA} offen offset:{gi*16} sc1")
        p(f"s_lshl_b32 s{SA}, s{SCOL}, 7\nv_add_u32 {v(T+4)}, s{SA}, {v(T+4)}")
        te = p.vmem(f"global_load_dwordx2 {v(DE,2)}, {v(T+4)}, {sp(PDSK)}")
        rt = {}
        def reads(n):
            s, ks = n // 4, n % 4; sl = s & 1; fs = F + 16 * (n & 1); ops = []
            for k in range(2):
                def ra(k=k):
                    if ks == 0 and k == 0: p.wait(vm=self.yt[s])
                    rt[(n, 'a', k)] = p.lds(f"ds_read_b128 {v(fs+4*k,4)}, {v(self.CR+ks)} offset:{sl*16384+k*4096}")
                ops.append(ra)
                for a in range(2):
                    def rb(k=k, a=a):
                        rt[(n, 'b', k)] = p.lds(f"ds_read_b64_tr_b16 {v(fs+8+4*k+2*a,2)}, {v(self.HT+a)} offset:{sl*16384+(ks>>1)*4096+k*2048+(ks&1)*256}")
                    ops.append(rb)
            return ops
        def mfmas(n):
            fs = F + 16 * (n & 1); ops = []
            for (mt, nt) in [(0, 0), (1, 0), (1, 1), (0, 1)]:
                def m(mt=mt, nt=nt):
                    p.wait(lg=max(rt[(n, 'a', mt)], rt[(n, 'b', nt)]))
                    d = v(YA + 16 * (2 * mt + nt), 16)
                    p(f"v_mfma_f32_32x32x16_bf16 {d}, {v(fs+4*mt,4)}, {v(fs+8+4*nt,4)}, {'0' if n == 0 else d}")
                ops.append(m)
            return ops
        PA = 96
        pt = {}
        for op in reads(0): op()
        for n in range(16):
            if n % 4 == 3 and n // 4 < 2:
                p.wait(lg=p.lg - 1)
                self.y_dma(n // 4 + 2)
                if n // 4 == 1:
                    self.stamp(11)
                    p(f"s_lshl_b32 s{SA}, s{STB}, 7\ns_lshl_b32 s{SB_}, s{SWV}, 5\ns_add_u32 s{SB_}, s{SB_}, s{SA}\ns_add_u32 s{SB_}, s{SB_}, {PF}")
                    self.spoll(SB_, 8, 200)
                    self.stamp(12)
                    p(f"s_mul_i32 s{SE}, s{STB}, {2*45056}\ns_mul_i32 s{SA}, s{SWV}, {22*512}\ns_add_u32 s{SE}, s{SE}, s{SA}\ns_add_u32 s{SE}, s{SE}, {PB}")
                    for kap in range(11):
                        for nt in range(2):
                            if kap % 4 == 0: p(f"s_add_u32 s{SA if nt == 0 else SB_}, s{SE}, {nt*45056+kap*1024}")
                            pt[(kap, nt)] = p.vmem(f"buffer_load_dwordx4 {ar(PA+(kap*2+nt)*4,4)}, {v(VL16)}, {srd(SWS)}, s{SA if nt == 0 else SB_} offen offset:{(kap%4)*1024} sc1")
            seq = merge(mfmas(n), reads(n + 1), 0, 3) if n + 1 < 16 else mfmas(n)
            for op in seq: op()
        self.stamp(13)
        RW, RX = 176, 177
        p(f"v_and_b32 {v(RW)}, 31, {v(VL)}\nv_lshlrev_b32 {v(RW)}, 8, {v(RW)}\nv_add_u32 {v(RW)}, s{SREG}, {v(RW)}")
        p(f"v_lshrrev_b32 {v(RX)}, 5, {v(VL)}\nv_and_b32 {v(RX+1)}, 7, {v(VL)}\nv_xor_b32 {v(RX)}, {v(RX)}, {v(RX+1)}\nv_lshlrev_b32 {v(RX)}, 4, {v(RX)}")
        WA = 178
        for i in range(4): p(f"v_xor_b32 {v(WA+i)}, {32*i}, {v(RX)}\nv_add_u32 {v(WA+i)}, {v(WA+i)}, {v(RW)}")
        def redw(acc, base):
            ops = []
            for mt in range(2):
                for nt in range(2):
                    for i in range(4):
                        ops.append(lambda mt=mt, nt=nt, i=i: p.lds(f"ds_write_b128 {v(WA+i)}, {v(acc+16*(2*mt+nt)+4*i,4)} offset:{base+nt*8192+mt*128}"))
            return ops
        def bm(kap):
            ops = []
            for (mt, nt) in [(0, 0), (1, 0), (1, 1), (0, 1)]:
                def m(mt=mt, nt=nt):
                    p.wait(vm=pt[(kap, nt)])
                    d = v(BA + 16 * (2 * mt + nt), 16)
                    p(f"v_mfma_f32_32x32x16_bf16 {d}, {ar((kap*2+mt)*4,4)}, {ar(PA+(kap*2+nt)*4,4)}, {'0' if kap == 0 else d}")
                ops.append(m)
            return ops
        mm = []
        for kap in range(10): mm += bm(kap)
        for op in merge(mm, redw(YA, 0), 4, 36): op()
        sk = p.label("k10")
        p(f"s_cmp_eq_u32 s{SWV}, 3\ns_cbranch_scc1 {sk}")
        for op in bm(10): op()
        p.put(sk)
        p("s_nop 15")
        for op in redw(BA, 16384): op()
        p.wait_lg_all(); p("s_barrier")
        self.stamp(14)
        RA = 182
        p(f"v_lshrrev_b32 {v(T)}, 4, {v(VL)}\nv_and_b32 {v(T+1)}, 15, {v(VL)}\nv_xor_b32 {v(T+1)}, {v(T+1)}, {v(T)}\nv_lshlrev_b32 {v(T+1)}, 4, {v(T+1)}")
        p(f"v_lshlrev_b32 {v(T)}, 8, {v(T)}\ns_lshl_b32 s{SA}, s{SWV}, 12\nv_add_u32 {v(T)}, s{SA}, {v(T)}")
        p(f"v_add_u32 {v(RA)}, {v(T)}, {v(T+1)}\nv_xor_b32 {v(T+1)}, 64, {v(T+1)}\nv_add_u32 {v(RA+1)}, {v(T)}, {v(T+1)}")
        p(f"v_add_u32 {v(RA+2)}, 81920, {v(RA)}\nv_add_u32 {v(RA+3)}, 81920, {v(RA+1)}")
        tk = {}
        def R(gi, which, s): return 16 + 32 * gi + 16 * which + 4 * s
        for gi in range(4):
            for which in range(2):
                p.wait(lg=p.lg - 12)
                for s in range(4):
                    tk[(gi, which)] = p.lds(f"ds_read_b128 {v(R(gi,which,s),4)}, {v(RA+2*(s>>1)+(gi&1))} offset:{(s&1)*40960+which*16384+gi*1024}")
        p.wait(vm=te)
        DU = 224
        self.unpack(DU, DE); self.unpack(DU + 2, DE + 1)
        p(f"s_lshl_b32 s{SD}, s{SD}, 1")
        for gi in range(4):
            y, b = R(gi, 0, 0), R(gi, 1, 0)
            X, OM = 228, 232
            p.wait(lg=tk[(gi, 1)])
            for r in (y, b):
                for hh in (0, 2):
                    p(f"v_pk_add_f32 {v(r+hh,2)}, {v(r+hh,2)}, {v(r+4+hh,2)}\nv_pk_add_f32 {v(r+8+hh,2)}, {v(r+8+hh,2)}, {v(r+12+hh,2)}")
                for hh in (0, 2): p(f"v_pk_add_f32 {v(r+hh,2)}, {v(r+hh,2)}, {v(r+8+hh,2)}")
            p(f"v_sub_f32 {v(OM)}, 1.0, {v(GE+gi)}"); self.rnd(OM, OM)
            p(f"v_cvt_pk_bf16_f32 {v(b+4)}, {v(b)}, {v(b+1)}\nv_cvt_pk_bf16_f32 {v(b+5)}, {v(b+2)}, {v(b+3)}")
            self.unpack(X, XE + 2 * gi); self.unpack(X + 2, XE + 2 * gi + 1)
            self.unpack(b, b + 4); self.unpack(b + 2, b + 5)
            for hh in (0, 2): p(f"v_pk_mul_f32 {v(X+hh,2)}, {v(X+hh,2)}, {v(DU+hh,2)}")
            for hh in (0, 2): p(f"v_pk_mul_f32 {v(b+hh,2)}, {v(b+hh,2)}, {v(OM,2)} op_sel_hi:[1,0]")
            p(f"v_cvt_pk_bf16_f32 {v(b+6)}, {v(X)}, {v(X+1)}\nv_cvt_pk_bf16_f32 {v(b+7)}, {v(X+2)}, {v(X+3)}")
            p(f"v_cvt_pk_bf16_f32 {v(b+4)}, {v(b)}, {v(b+1)}\nv_cvt_pk_bf16_f32 {v(b+5)}, {v(b+2)}, {v(b+3)}")
            self.unpack(X, b + 6); self.unpack(X + 2, b + 7)
            self.unpack(b, b + 4); self.unpack(b + 2, b + 5)
            for hh in (0, 2): p(f"v_pk_add_f32 {v(y+hh,2)}, {v(y+hh,2)}, {v(X+hh,2)}")
            p(f"v_mov_b32 {v(OM)}, {v(GE+gi)}")
            for hh in (0, 2): p(f"v_pk_fma_f32 {v(y+hh,2)}, {v(y+hh,2)}, {v(OM,2)}, {v(b+hh,2)} op_sel_hi:[1,0,1]")
            p(f"s_add_u32 s{SA}, s{SD}, {gi*8192}")
            p.vmem(f"buffer_store_dwordx4 {v(y,4)}, {v(OV)}, {srd(SOUT)}, s{SA} offen")
        ne = p.label("ne")
        p(f"s_lshl_b32 s{SA}, s{STB}, 3\ns_add_u32 s{SA}, s{SA}, s{SCOL}\ns_lshl_b32 s{SA}, s{SA}, 2\ns_add_u32 s{SA}, s{SA}, s{SWV}")
        p(f"s_cmp_eq_u32 s{SA}, {255*4}\ns_cbranch_scc0 {ne}")
        p(f"s_mov_b32 s{SA}, {EPOCH}")
        self.flag(SA, 240)
        p.put(ne)
        if self.o.get("stamps"):
            self.stamp(15)
            p(f"s_memrealtime s[{SPOLL}:{SPOLL+1}]"); p.wait_lg_all()
            p(f"v_writelane_b32 v255, s{SPOLL}, 16")
            p(f"s_lshl_b32 s{SA}, s2, 2\ns_add_u32 s{SA}, s{SA}, s{SWV}\ns_lshl_b32 s{SA}, s{SA}, 8\ns_add_u32 s{SA}, s{SA}, {DBG}")
            p(f"v_lshlrev_b32 v254, 2, {v(VL)}")
            p.vmem(f"buffer_store_dword v255, v254, {srd(SWS)}, s{SA} offen")
            if "dbgwg" in self.o:
                nd = p.label("nd")
                p(f"s_lshl_b32 s{SA}, s2, 2\ns_add_u32 s{SA}, s{SA}, s{SWV}\ns_cmp_eq_u32 s{SA}, {self.o['dbgwg']*4}\ns_cbranch_scc0 {nd}")
                p(f"s_load_dwordx2 s[{SX}:{SX+1}], s[0:1], 128\ns_waitcnt lgkmcnt(0)\ns_mov_b32 s{SX+2}, 64")
                p(f"v_readlane_b32 s{SA}, v255, 17\nv_subrev_u32 v255, s{SA}, v255")
                p.vmem(f"buffer_store_dword v255, v254, {srd(SX)}, 0 offen")
                p.put(nd)
        if self.o.get("spin_to"):
            sl = p.label("spin")
            p(f"v_readlane_b32 s{SA}, v253, 0")
            p.put(sl)
            p(f"s_memrealtime s[{SPOLL}:{SPOLL+1}]\ns_waitcnt lgkmcnt(0)\ns_sub_u32 s{SB_}, s{SPOLL}, s{SA}\ns_cmp_lt_u32 s{SB_}, {self.o['spin_to']}\ns_cbranch_scc1 {sl}")
        p.put(self.END)
        p("s_endpgm")

    def build(self):
        self.prologue()
        vm0, lg0 = self.p.vm, self.p.lg
        self.phase_z()
        self.p.vm_done = -1; self.p.lg_done = -1
        self.p("s_nop 15")
        self.phase_u()
        self.phase_g()
        self.phase_c()
        lines, added = hazard_pass(self.p.L)
        hdr = open("gated_mix__ssm_conv_s5__mixer_gmlp__prompt.s.ref").read().split("; Override")[0]
        s = hdr + "; @launch grid=(256,1,1) block=(256,1,1) lds=163840\n"
        s += '.amdgcn_target "amdgcn-amd-amdhsa--gfx950"\n.text\n'
        s += f".globl {NAME}\n.p2align 8\n.type {NAME},@function\n{NAME}:\n"
        s += "\n".join((l if l.endswith(":") else "    " + l) for l in lines) + "\n"
        s += f""".section .rodata,"a"
.p2align 6
.amdhsa_kernel {NAME}
  .amdhsa_next_free_vgpr 512
  .amdhsa_next_free_sgpr 102
  .amdhsa_accum_offset 256
  .amdhsa_group_segment_fixed_size 0
  .amdhsa_kernarg_size 144
  .amdhsa_user_sgpr_count 2
  .amdhsa_user_sgpr_kernarg_segment_ptr 1
  .amdhsa_system_sgpr_workgroup_id_x 1
  .amdhsa_float_denorm_mode_32 3
.end_amdhsa_kernel
"""
        return s, added

if __name__ == "__main__":
    out = sys.argv[1]
    opt = {}
    for a in sys.argv[2:]:
        k, _, val = a.partition("="); opt[k] = int(val) if val else 1
    s, added = G(opt).build()
    open(out, "w").write(s)
    print("wrote", out, "nops added", added, "lines", s.count("\n"))
```

```python
import sys, math, struct
from core import *

NAME = "gated_mix__ssm_conv_s5__mixer_gmlp__prompt_kernel"
EPOCH = 0; GATE = 0x4000
ST = 0x10000; EG = 0x50000; DBG = 0x80000
Z2N = 0x100000; Z1 = 0x400000; PB = 0x700000; HB = 0xA00000
ZF = 0xE00000; HF = 0xE10000; PF = 0xE20000; WS_END = 0xE40000
OOB = 0x80000000
SPIN = 200000
SX, SW1, SWSP, SWS, SCRE, SCIM, SWOUT, SOUT = 4, 8, 12, 16, 20, 24, 28, 32
PLRE, PLIM, PLDT, PDSK, PBSP, PGW, PBRE, PBIM, PWIN = 36, 38, 40, 42, 44, 46, 48, 50, 52
ST_T = 100
SWV, SRB, SCOL, STB = 56, 57, 58, 59
SA, SB_, SC, SD = 60, 61, 62, 63
SSTMP = 64
SDO, SWB, SPB0, SPST, SPSP = 68, 69, 70, 71, 72
SXB, SW1B, SXL, SWL = 73, 74, 75, 76
SPC = 77
SCB, SHB = 78, 79
SK = 80
SREG = 96
SE, SF = 97, 98
SSPIN = 99
SLATE = 101
def srd(b): return f"s[{b}:{b+3}]"
def v(a, n=1): return f"v{a}" if n == 1 else f"v[{a}:{a+n-1}]"
def ar(a, n=1): return f"a{a}" if n == 1 else f"a[{a}:{a+n-1}]"
def sp(a): return f"s[{a}:{a+1}]"
VL, VL16, VOOB = 1, 2, 3
LOG2E = 1.4426950408889634
def f2u(x): return struct.unpack("<I", struct.pack("<f", x))[0]
MF = "v_mfma_f32_32x32x16_bf16"

class G:
    def __init__(self, opt):
        self.o = opt
        self.p = Prog()

    def stamp(self, k):
        if self.o.get("stamps"):
            p = self.p
            p(f"s_memrealtime s[{SSTMP}:{SSTMP+1}]\ns_memtime s[{SSTMP+2}:{SSTMP+3}]"); p.wait_lg_all()
            p(f"v_writelane_b32 v255, s{SSTMP}, {k}\nv_writelane_b32 v255, s{SSTMP+2}, {k+32}")
    def cap(self, fn):
        sub = Prog(); save = self.p; self.p = sub
        fn()
        self.p = save
        assert sub.vm == 0 and sub.lg == 0
        return [(lambda l=l: self.p(l)) for l in sub.L]
    def run(self, ops):
        for op in ops: op()
    def dseq(self, items):
        p = self.p
        def setup(it):
            if it[0] is not None: p(f"s_add_u32 m0, s{it[0][0]}, {it[0][1]}")
            if it[1] is not None: p(f"s_add_u32 s{SDO}, s{it[1][0]}, {it[1][1]}")
        ops = [lambda: setup(items[0])]
        for i, it in enumerate(items):
            def f(i=i, it=it):
                t = p.vmem(it[2])
                if it[3]: it[3](t)
                if i + 1 < len(items): setup(items[i + 1])
            ops.append(f)
        return ops
    def poll_addr(self, vt, groups):
        p = self.p; n0 = 0
        p(f"v_mov_b32 {v(vt)}, {v(VOOB)}")
        for (sr, n) in groups:
            if n == 1: p(f"v_writelane_b32 {v(vt)}, s{sr}, {n0}")
            else:
                p(f"s_sub_u32 s{sr}, s{sr}, {n0*128}\nv_lshl_add_u32 {v(vt+1)}, {v(VL)}, 7, s{sr}")
                m = ((1 << n) - 1) << n0
                p(f"s_mov_b32 vcc_lo, {m & 0xffffffff}\ns_mov_b32 vcc_hi, {m >> 32}\nv_cndmask_b32 {v(vt)}, {v(vt)}, {v(vt+1)}, vcc")
            n0 += n
        return n0
    def poll(self, vt, n):
        p = self.p
        l = p.label("poll"); d = p.label("pd")
        p(f"s_mov_b32 s{SSPIN}, 0")
        p.put(l)
        p.vmem(f"buffer_load_dword {v(vt+1)}, {v(vt)}, {srd(SWS)}, 0 offen sc1")
        p.wait_vm_all()
        p(f"v_cmp_ne_u32 vcc, s{ST_T}, {v(vt+1)}")
        if n <= 32: p(f"s_and_b32 s{SF}, vcc_lo, {(1<<n)-1}")
        else: p(f"s_and_b32 vcc_hi, vcc_hi, {(1<<(n-32))-1}\ns_or_b32 s{SF}, vcc_lo, vcc_hi")
        p(f"s_cbranch_scc0 {d}")
        p(f"s_add_u32 s{SSPIN}, s{SSPIN}, 1\ns_cmp_lt_u32 s{SSPIN}, {SPIN}\ns_cbranch_scc1 {l}")
        p.put(d)
    def flag_prep(self, vt):
        p = self.p
        p(f"v_mov_b32 {v(vt)}, s{ST_T}\nv_mov_b32 {v(vt+1)}, {v(VOOB)}\nv_writelane_b32 {v(vt+1)}, 0, 0")
    def flag(self, off_sreg, vt):
        self.p.vmem(f"buffer_store_dword {v(vt)}, {v(vt+1)}, {srd(SWS)}, s{off_sreg} offen sc1")
    def xhalf_sum(self, a, t):
        self.p(f"v_mov_b32 {v(t)}, {v(a)}\nv_permlane32_swap_b32 {v(a)}, {v(t)}\nv_add_f32 {v(a)}, {v(a)}, {v(t)}")
    def rnd(self, d, s):
        self.p(f"v_cvt_pk_bf16_f32 {v(d)}, {v(s)}, {v(s)}\nv_lshlrev_b32 {v(d)}, 16, {v(d)}")
    def unpack(self, d, s):
        self.p(f"v_and_b32 {v(d+1)}, 0xffff0000, {v(s)}\nv_lshlrev_b32 {v(d)}, 16, {v(s)}")
    def plain_read_addr(self, dst4, base_sreg, t):
        p = self.p
        p(f"v_and_b32 {v(t)}, 31, {v(VL)}\nv_lshlrev_b32 {v(t)}, 7, {v(t)}")
        if base_sreg is not None: p(f"v_add_u32 {v(t)}, s{base_sreg}, {v(t)}")
        p(f"v_bfe_u32 {v(t+1)}, {v(VL)}, 1, 3\nv_lshrrev_b32 {v(dst4)}, 5, {v(VL)}\nv_xor_b32 {v(t+1)}, {v(t+1)}, {v(dst4)}")
        p(f"v_lshlrev_b32 {v(t+1)}, 4, {v(t+1)}")
        for ks in range(4):
            p(f"v_xor_b32 {v(dst4+ks)}, {32*ks}, {v(t+1)}\nv_add_u32 {v(dst4+ks)}, {v(dst4+ks)}, {v(t)}")
    def plain_dma_addr(self, dst4, rowbytes, t, rowstep=8):
        p = self.p
        p(f"v_lshrrev_b32 {v(t)}, 3, {v(VL)}\nv_mul_u32_u24 {v(t)}, {rowbytes}, {v(t)}")
        self.plain_dma_addr2(dst4, t, t + 1, rowstep * rowbytes)
    def plain_dma_addr2(self, dst4, vrow, t, step):
        p = self.p
        p(f"v_and_b32 {v(t)}, 7, {v(VL)}\nv_lshrrev_b32 {v(dst4)}, 4, {v(VL)}\nv_xor_b32 {v(t)}, {v(t)}, {v(dst4)}\nv_lshlrev_b32 {v(t)}, 4, {v(t)}")
        p(f"v_add_u32 {v(dst4)}, {v(t)}, {v(vrow)}")
        p(f"v_xor_b32 {v(t)}, 64, {v(t)}\nv_add_u32 {v(dst4+1)}, {v(t)}, {v(vrow)}")
        p(f"v_add_u32 {v(dst4+2)}, {2*(step-1024)}, {v(dst4)}\nv_add_u32 {v(dst4+3)}, {3*(step-1024)}, {v(dst4+1)}\nv_add_u32 {v(dst4+1)}, {step-1024}, {v(dst4+1)}")
    def panel_tr_addr(self, dst2, base_sreg, t, perm):
        p = self.p
        p(f"v_lshrrev_b32 {v(t)}, 5, {v(VL)}\nv_lshlrev_b32 {v(t)}, 10, {v(t)}")
        p(f"v_bfe_u32 {v(t+1)}, {v(VL)}, 2, 2\nv_lshl_add_u32 {v(t)}, {v(t+1)}, 7, {v(t)}")
        p(f"v_bfe_u32 {v(t+1)}, {v(VL)}, 4, 1\nv_lshl_add_u32 {v(t)}, {v(t+1)}, 5, {v(t)}")
        if perm:
            p(f"v_and_b32 {v(t+1)}, 1, {v(VL)}\nv_lshl_add_u32 {v(t)}, {v(t+1)}, 4, {v(t)}")
            p(f"v_bfe_u32 {v(t+1)}, {v(VL)}, 1, 1\nv_lshl_add_u32 {v(t)}, {v(t+1)}, 3, {v(t)}")
        else:
            p(f"v_and_b32 {v(t+1)}, 3, {v(VL)}\nv_lshl_add_u32 {v(t)}, {v(t+1)}, 3, {v(t)}")
        p(f"v_bfe_u32 {v(t+1)}, {v(VL)}, 3, 1\nv_lshlrev_b32 {v(t+1)}, 6, {v(t+1)}")
        if base_sreg is not None: p(f"v_add_u32 {v(t)}, s{base_sreg}, {v(t)}")
        p(f"v_add_u32 {v(dst2)}, {v(t)}, {v(t+1)}\nv_xor_b32 {v(t+1)}, 64, {v(t+1)}\nv_add_u32 {v(dst2+1)}, {v(t)}, {v(t+1)}")
    def unit_tr_addr(self, dst2, base_sreg, t, perm, flip_sreg=None):
        p = self.p
        p(f"v_bfe_u32 {v(t)}, {v(VL)}, 4, 1")
        if flip_sreg is not None: p(f"v_xor_b32 {v(t)}, s{flip_sreg}, {v(t)}")
        p(f"v_lshlrev_b32 {v(t)}, 1, {v(t)}")
        p(f"v_bfe_u32 {v(t+1)}, {v(VL)}, {0 if perm else 1}, 1\nv_or_b32 {v(t)}, {v(t)}, {v(t+1)}")
        p(f"v_lshrrev_b32 {v(t+1)}, 5, {v(VL)}\nv_lshlrev_b32 {v(t+1)}, 1, {v(t+1)}\nv_xor_b32 {v(t+1)}, {v(t+1)}, {v(t)}")
        p(f"v_lshlrev_b32 {v(t)}, 9, {v(t)}")
        p(f"v_bfe_u32 {v(t+2)}, {v(VL)}, 2, 2\nv_lshl_add_u32 {v(t)}, {v(t+2)}, 4, {v(t)}")
        p(f"v_bfe_u32 {v(t+2)}, {v(VL)}, {1 if perm else 0}, 1\nv_lshl_add_u32 {v(t)}, {v(t+2)}, 3, {v(t)}")
        if base_sreg is not None: p(f"v_add_u32 {v(t)}, s{base_sreg}, {v(t)}")
        p(f"v_lshl_add_u32 {v(dst2)}, {v(t+1)}, 6, {v(t)}")
        p(f"v_xor_b32 {v(t+1)}, 1, {v(t+1)}\nv_lshl_add_u32 {v(dst2+1)}, {v(t+1)}, 6, {v(t)}")

    def gemm_loop(self, nslot, reads, mfmas, dma, tick, rfront, npro, extra, valu=None):
        p = self.p
        p.wait(vm=tick[0]); p("s_barrier")
        self.stamp(20)
        self.run(reads(0))
        d = []
        for st in range(npro, nslot): d += dma(st)
        q = (len(d) + 2) // 3
        pend = [d[i * q:(i + 1) * q] for i in range(3)]
        for n in range(32):
            rd = []
            if n + 1 < 32:
                if (n + 1) % 4 == 0:
                    st = (n + 1) // 4
                    p.wait(vm=tick[st], lg=p.lg - 1); p("s_barrier")
                    d = dma(st - 1 + nslot) if st - 1 + nslot < 8 else extra.get(st, lambda: [])()
                    q = (len(d) + 3) // 4
                    pend = [d[i * q:(i + 1) * q] for i in range(4)]
                rd = reads(n + 1)
            seq = merge(mfmas(n), rd, 0, rfront)
            if pend: seq = merge(seq, pend.pop(0), len(seq) // 2)
            if valu and n in valu: seq = merge(seq, valu[n])
            self.run(seq)

    def gate(self, GX, GW, GU, GS, GT):
        p = self.p
        for i in range(4): self.unpack(GU + 2 * i, GW + i)
        for r in range(4):
            for i in range(4):
                a = GT + 2 * i
                self.unpack(a, GX + 4 * r + i)
                p(f"v_pk_mul_f32 {v(a,2)}, {v(a,2)}, {v(GU+2*i,2)}")
            for i in range(4): p(f"v_cvt_pk_bf16_f32 {v(GX+4*r+i)}, {v(GT+2*i)}, {v(GT+1+2*i)}")
            for i in range(4): self.unpack(GT + 2 * i, GX + 4 * r + i)
            p(f"v_pk_add_f32 {v(GT,2)}, {v(GT,2)}, {v(GT+2,2)}\nv_pk_add_f32 {v(GT+4,2)}, {v(GT+4,2)}, {v(GT+6,2)}\nv_pk_add_f32 {v(GT,2)}, {v(GT,2)}, {v(GT+4,2)}")
            p(f"v_add_f32 {v(GS+r)}, {v(GT)}, {v(GT+1)}")
        for mod in ["quad_perm:[1,0,3,2]", "quad_perm:[2,3,0,1]", "row_half_mirror", "row_mirror"]:
            for r in range(4): p(f"v_add_f32_dpp {v(GS+r)}, {v(GS+r)}, {v(GS+r)} {mod} row_mask:0xf bank_mask:0xf")
        for sw in ["v_permlane16_swap_b32", "v_permlane32_swap_b32"]:
            for r in range(4): p(f"v_mov_b32 {v(GT+r)}, {v(GS+r)}")
            for r in range(4): p(f"{sw} {v(GS+r)}, {v(GT+r)}")
            for r in range(4): p(f"v_add_f32 {v(GS+r)}, {v(GS+r)}, {v(GT+r)}")
        for r in range(4): self.rnd(GS + r, GS + r)
        for r in range(4): p(f"v_mul_f32 {v(GS+r)}, {f2u(-LOG2E)}, {v(GS+r)}")
        for r in range(4): p(f"v_exp_f32 {v(GS+r)}, {v(GS+r)}")
        for r in range(4): p(f"v_add_f32 {v(GS+r)}, 1.0, {v(GS+r)}")
        for r in range(4): p(f"v_rcp_f32 {v(GS+r)}, {v(GS+r)}")
        for r in range(4): self.rnd(GS + r, GS + r)
        p(f"v_mov_b32 {v(GT)}, {v(VOOB)}\nv_writelane_b32 {v(GT)}, 0, 0")

    def w_dma_addr(self, dst3, t, colbase):
        p = self.p
        for i in range(3):
            p(f"v_add_u32 {v(t)}, {64*i}, {v(VL)}\nv_mul_u32_u24 {v(t+1)}, 171, {v(t)}\nv_lshrrev_b32 {v(t+1)}, 11, {v(t+1)}")
            p(f"v_mul_u32_u24 {v(t+2)}, 12, {v(t+1)}\nv_sub_u32 {v(t)}, {v(t)}, {v(t+2)}\nv_cmp_eq_u32 vcc, 11, {v(t)}")
            p(f"v_mul_u32_u24 {v(t+1)}, 2752, {v(t+1)}\nv_lshl_add_u32 {v(t)}, {v(t)}, 4, {v(t+1)}")
            if colbase - 1024 * i: p(f"v_add_u32 {v(t)}, {colbase-1024*i}, {v(t)}")
            p(f"v_cndmask_b32 {v(dst3+i)}, {v(t)}, {v(VOOB)}, vcc")
    def w_tr_addr(self, dst, base, t):
        p = self.p
        p(f"v_lshrrev_b32 {v(t)}, 5, {v(VL)}\nv_bfe_u32 {v(t+1)}, {v(VL)}, 2, 2\nv_lshl_add_u32 {v(t)}, {v(t)}, 3, {v(t+1)}\nv_mul_u32_u24 {v(t)}, 192, {v(t)}")
        p(f"v_bfe_u32 {v(t+1)}, {v(VL)}, 4, 1\nv_lshl_add_u32 {v(t)}, {v(t+1)}, 5, {v(t)}")
        p(f"v_and_b32 {v(t+1)}, 1, {v(VL)}\nv_lshl_add_u32 {v(t)}, {v(t+1)}, 4, {v(t)}")
        p(f"v_bfe_u32 {v(t+1)}, {v(VL)}, 1, 1\nv_lshl_add_u32 {v(t)}, {v(t+1)}, 3, {v(t)}")
        p(f"v_add_u32 {v(dst)}, {base}, {v(t)}")
    def valid_masks(self):
        MA, MB = SK + 2, SK + 4
        self.p.atom(f"s_cmp_lt_u32 s{SCOL}, 7\ns_mov_b32 s{MA}, -1\ns_cselect_b32 s{MA+1}, -1, 0\ns_cselect_b32 s{MB}, -1, 0\ns_mov_b32 s{MB+1}, 0\n"
                    f"s_mov_b32 s{SK+6}, {f2u(1/72)}\ns_cselect_b32 s{SK+6}, {f2u(1/88)}, s{SK+6}")
        c1 = -2 * LOG2E * 0.7978845608028654
        self.p(f"s_mov_b32 s{SK}, {f2u(c1*0.044715)}\nv_mov_b32 {v(self.VC0)}, {f2u(c1)}")

    def gelu_pair(self, a, t, out_packed=None):
        p = self.p
        p(f"v_cvt_pk_bf16_f32 {v(t)}, {v(a)}, {v(a+1)}")
        self.unpack(a, t)
        p(f"v_pk_mul_f32 {v(t,2)}, {v(a,2)}, {v(a,2)}")
        p(f"v_pk_fma_f32 {v(t,2)}, {v(t,2)}, {sp(SK)}, {v(self.VC0,2)} op_sel_hi:[1,0,0]")
        p(f"v_pk_mul_f32 {v(t,2)}, {v(t,2)}, {v(a,2)}")
        p(f"v_exp_f32 {v(t)}, {v(t)}\nv_exp_f32 {v(t+1)}, {v(t+1)}")
        p(f"v_pk_add_f32 {v(t,2)}, {v(t,2)}, 1.0 op_sel_hi:[1,0]")
        p(f"v_rcp_f32 {v(t)}, {v(t)}\nv_rcp_f32 {v(t+1)}, {v(t+1)}")
        p(f"v_pk_mul_f32 {v(t,2)}, {v(t,2)}, {v(a,2)}")
        if out_packed is not None:
            p(f"v_cvt_pk_bf16_f32 {v(out_packed)}, {v(t)}, {v(t+1)}")
        else:
            p(f"v_cvt_pk_bf16_f32 {v(t)}, {v(t)}, {v(t+1)}")
            self.unpack(a, t)
    def gelu_many(self, pairs, temps, outs=None):
        p = self.p; ng = len(temps)
        for g0 in range(0, len(pairs), ng):
            streams = []
            for k, i in enumerate(range(g0, min(g0 + ng, len(pairs)))):
                sub = Prog(); save = self.p; self.p = sub
                self.gelu_pair(pairs[i], temps[k], None if outs is None else outs[i])
                self.p = save
                streams.append(sub.L)
            for j in range(len(streams[0])):
                for s in streams: p(s[j])

    VWD, VWR, VWA, VC0 = 240, 244, 248, 252
    def wsp_setup(self, t):
        p = self.p
        self.plain_dma_addr(self.VWD, 4096, t)
        p(f"s_and_b32 s{SA}, s{SWV}, 1\ns_lshl_b32 s{SA}, s{SA}, 12")
        self.plain_read_addr(self.VWR, SA, t)
        p(f"s_lshl_b32 s{SWB}, s{STB}, 18\ns_lshl_b32 s{SB_}, s{SWV}, 10\ns_add_u32 s{SWB}, s{SWB}, s{SB_}")
        self.wsp_t = {}
    def piece(self, st):
        return {0: (SPB0, 0), 1: (SPST, 0), 7: (SREG, 32768)}.get(st, (SREG, (6 - st) * 8192))
    def wsp_dma(self, st):
        items = []; sr, im = self.piece(st)
        for hh in range(2):
            for i in range(4):
                def cb(t): self.wsp_t[st] = t
                items.append(((sr, im + hh * 4096) if i == 0 else None, (SWB, st * 128 + hh * 131072) if i == 0 else None,
                              f"buffer_load_dwordx4 {v(self.VWD+i)}, {srd(SWSP)}, s{SDO} offen offset:{i*1024} lds", cb))
        return self.dseq(items)
    def wsp_read(self, st, newbase=True):
        p = self.p; sr, im = self.piece(st)
        def pre():
            if newbase:
                for ks in range(4): p(f"v_add_u32 {v(self.VWA+ks)}, s{sr}, {v(self.VWR+ks)}")
            p.wait(vm=self.wsp_t[st], lg=p.lg - 8)
        ops = [pre]
        for nt in range(2):
            for ks in range(4):
                def f(ks=ks, nt=nt):
                    p.lds(f"ds_read_b128 {ar(((st*4+ks)*2+nt)*4,4)}, {v(self.VWA+ks)} offset:{im}")
                    p(f"v_xor_b32 {v(self.VWA+ks)}, 4096, {v(self.VWA+ks)}")
                ops.append(f)
        return ops

    def prologue(self):
        p = self.p
        self.END = p.label("end")
        p(f"s_cmp_ge_u32 s2, 256\ns_cbranch_scc1 {self.END}")
        p(f"s_load_dwordx2 {sp(SX)}, s[0:1], 0\ns_load_dwordx2 {sp(PWIN)}, s[0:1], 80\ns_load_dwordx4 s[{PBRE}:{PBRE+3}], s[0:1], 24")
        p(f"s_load_dwordx2 {sp(PGW)}, s[0:1], 112\ns_load_dwordx4 s[{PLRE}:{PLRE+3}], s[0:1], 8\ns_load_dwordx2 {sp(PLDT)}, s[0:1], 56\ns_load_dwordx2 {sp(SWS)}, s[0:1], 136")
        p(f"v_lshrrev_b32 v2, 6, v0\nv_and_b32 {v(VL)}, 63, v0\nv_readfirstlane_b32 s{SWV}, v2\nv_lshlrev_b32 {v(VL16)}, 4, {v(VL)}\nv_mov_b32 {v(VOOB)}, {OOB}")
        if self.o.get("stamps"):
            p("v_mov_b32 v255, 0")
            self.stamp(17)
        p(f"s_and_b32 s{SA}, s2, 7\ns_lshr_b32 s{SB_}, s2, 3")
        p(f"s_and_b32 s{SC}, s{SA}, 1\ns_lshl_b32 s{SC}, s{SC}, 2\ns_and_b32 s{SD}, s{SB_}, 3\ns_add_u32 s{SCOL}, s{SC}, s{SD}")
        p(f"s_lshr_b32 s{SA}, s{SA}, 1")
        p(f"s_lshr_b32 s{SC}, s{SB_}, 2\ns_lshl_b32 s{SD}, s{SA}, 3\ns_add_u32 s{STB}, s{SD}, s{SC}")
        p(f"s_and_b32 s{SC}, s{SC}, 3\ns_lshl_b32 s{SD}, s{SA}, 2\ns_add_u32 s{SRB}, s{SD}, s{SC}")
        p(f"s_mov_b32 s{SX+2}, 2097152\ns_mov_b32 s{SX+3}, 0x20000\ns_mov_b32 s{SW1+3}, 0x20000")
        self.LU = p.label("U"); self.LG = p.label("G")
        p(f"s_cmp_ge_u32 s{SB_}, 16\ns_cbranch_scc1 {self.LU}")
    def late_args(self):
        p = self.p
        for (r, off) in [(SWSP, 88), (SCRE, 40), (SCIM, 48), (SWOUT, 104), (SOUT, 120), (PDSK, 64), (PBSP, 96)]:
            p(f"s_load_dwordx2 {sp(r)}, s[0:1], {off}")
        p(f"s_load_dword s{ST_T}, {sp(SWS)}, {EPOCH}")
        for (r, n) in [(SWSP, 8388608), (SWS, WS_END), (SCRE, 524288), (SCIM, 524288), (SWOUT, 704512), (SOUT, 4194304)]:
            p(f"s_mov_b32 s{r+2}, {n}\ns_mov_b32 s{r+3}, 0x20000")
    def epoch2(self):
        p = self.p
        p.wait_lg_all()
        p(f"s_mul_i32 s{ST_T}, s{ST_T}, 0x9E3779B1\ns_add_u32 s{ST_T}, s{ST_T}, 0x7F4A7C15")

    def phase_z(self):
        p = self.p; o = self.o
        ACC, FA, FB, XR, WR, XD, WD, T = 16, 64, 88, 96, 100, 104, 108, 112
        p.c("==== phase A: Z ====")
        self.plain_dma_addr(XD, 1024, T)
        p(f"s_lshl_b32 s{SXB}, s{SRB}, 17\ns_lshl_b32 s{SA}, s{SWV}, 15\ns_add_u32 s{SXB}, s{SXB}, s{SA}")
        p(f"s_mul_i32 s{SREG}, s{SWV}, 40960")
        tick = {}
        def xdma(st, cb=None):
            return [((SREG, (st & 3) * 4096) if i == 0 else None, (SXB, st * 128) if i == 0 else None,
                     f"buffer_load_dwordx4 {v(XD+i)}, {srd(SX)}, s{SDO} offen offset:{i*1024} lds", cb) for i in range(4)]
        def wdma(st, cb=None):
            return [((SWL, (st & 3) * 40960) if i == 0 else None, (SW1B, st * 64 * 2752) if i == 0 else None,
                     f"buffer_load_dwordx4 {v(WD+i)}, {srd(SW1)}, s{SDO} offen offset:{i*1024} lds", cb) for i in range(3)]
        def dma(st):
            def cb(t): tick[st] = t
            return self.dseq(wdma(st) + xdma(st, cb))
        self.w_dma_addr(WD, T, 1376)
        p(f"s_mul_i32 s{SW1B}, s{SWV}, {16*2752}\ns_mul_i32 s{SA}, s{SCOL}, 176\ns_add_u32 s{SW1B}, s{SW1B}, s{SA}")
        p(f"s_mul_i32 s{SWL}, s{SWV}, 3072\ns_add_u32 s{SWL}, s{SWL}, 16384\ns_mov_b32 s{SW1+2}, {512*2752}")
        p.wait_lg_all()
        p(f"s_mov_b64 {sp(SW1)}, {sp(PWIN)}")
        npro = o.get("npro", 3)
        self.run(dma(0))
        self.late_args()
        def setup():
            self.plain_read_addr(XR, SREG, T)
            self.w_tr_addr(WR, 16384, T)
            self.p(f"v_add_u32 {v(WR+1)}, 81920, {v(WR)}")
            self.wsp_setup(T)
            self.p(f"s_add_u32 s{SPB0}, s{SREG}, 32768\ns_mov_b32 s{SPST}, s{SREG}")
            self.valid_masks()
        d = []
        for st in range(1, npro): d += dma(st)
        self.run(merge(self.cap(setup), d))
        self.epoch2()
        self.stamp(0)
        rt = {}
        def reads(n):
            st, ks = n // 4, n % 4; sl = st & 3; s = n & 1; ops = []
            def rb(): rt[(n, 'b')] = p.lds(f"ds_read_b128 {v(FB+4*s,4)}, {v(XR+ks)} offset:{sl*4096}")
            ops.append(rb)
            for mt in range(3):
                for a in range(2):
                    def ra(mt=mt, a=a):
                        rt[(n, mt)] = p.lds(f"ds_read_b64_tr_b16 {v(FA+12*s+4*mt+2*a,2)}, {v(WR+(sl>>1))} offset:{(sl&1)*40960+ks*3072+a*768+mt*64}")
                    ops.append(ra)
            return ops
        def mfmas(n):
            s = n & 1; ops = []
            for mt in range(3):
                def m(mt=mt):
                    p.wait(lg=rt[(n, mt)])
                    c = "0" if n == 0 else v(ACC + 16 * mt, 16)
                    p(f"{MF} {v(ACC+16*mt,16)}, {v(FA+12*s+4*mt,4)}, {v(FB+4*s,4)}, {c}")
                ops.append(m)
            return ops
        GX, GW, GU, GS, GT = 128, 144, 148, 156, 160
        gt = {}
        def gload():
            p(f"s_lshl_b32 s{SE}, s{SRB}, 2\ns_add_u32 s{SE}, s{SE}, s{SWV}\ns_lshl_b32 s{SE}, s{SE}, 3\ns_add_u32 s{SE}, s{SE}, s{SCOL}\ns_lshl_b32 s{SA}, s{SE}, 12")
            for r in range(4): p.vmem(f"buffer_load_dwordx4 {v(GX+4*r,4)}, {v(VL16)}, {srd(SX)}, s{SA} offen offset:{r*1024}")
            gt['t'] = p.vmem(f"global_load_dwordx4 {v(GW,4)}, {v(VL16)}, {sp(PGW)}")
        def gstore():
            p(f"s_lshl_b32 s{SA}, s{SE}, 4\ns_add_u32 s{SA}, s{SA}, {GATE}")
            p.vmem(f"buffer_store_dwordx4 {v(GS,4)}, {v(GT)}, {srd(SWS)}, s{SA} offen sc1")
        gops = [lambda: p.wait(vm=gt['t'])] + self.cap(lambda: self.gate(GX, GW, GU, GS, GT)) + [gstore]
        def touch(sr, base_expr, n, reg):
            p(base_expr)
            for i in range(n):
                if i: p(f"s_add_u32 s{SA}, s{SA}, 8192")
                p.vmem(f"buffer_load_dword {v(reg)}, {v(170)}, {srd(sr)}, s{SA} offen")
        def touch_wsp():
            p(f"v_lshlrev_b32 {v(170)}, 7, {v(VL)}\ns_lshr_b32 s{SB_}, s2, 3\ns_lshl_b32 s{SB_}, s{SB_}, 2\ns_add_u32 s{SPC}, s{SB_}, s{SWV}")
            touch(SWSP, f"s_lshr_b32 s{SA}, s{STB}, 3\ns_lshl_b32 s{SA}, s{SA}, 21\ns_add_u32 s{SA}, s{SA}, {1<<20}\ns_lshl_b32 s{SB_}, s{SPC}, 14\ns_add_u32 s{SA}, s{SA}, s{SB_}", 2, 171)
        def touch_c():
            p.atom(f"s_cmp_lt_u32 s{SPC}, 32\ns_cselect_b64 {sp(SW1)}, {sp(SCRE)}, {sp(SCIM)}\ns_mov_b32 s{SW1+2}, 524288")
            touch(SW1, f"s_and_b32 s{SA}, s{SPC}, 31\ns_lshl_b32 s{SA}, s{SA}, 13\ns_lshr_b32 s{SB_}, s{SCOL}, 2\ns_lshl_b32 s{SB_}, s{SB_}, 18\ns_add_u32 s{SA}, s{SA}, s{SB_}", 1, 171)
            p(f"v_lshrrev_b32 {v(170)}, 2, {v(VL)}\nv_lshlrev_b32 {v(170)}, 10, {v(170)}\nv_and_b32 {v(172)}, 3, {v(VL)}\nv_lshl_add_u32 {v(170)}, {v(172)}, 7, {v(170)}")
            touch(SWOUT, f"s_lshl_b32 s{SA}, s{SPC}, 14\ns_lshr_b32 s{SB_}, s{SCOL}, 2\ns_lshl_b32 s{SB_}, s{SB_}, 9\ns_add_u32 s{SA}, s{SA}, s{SB_}", 1, 171)
        valu = {28: [gload]}
        if o.get("touch", 1): valu[29] = [touch_wsp]
        self.gemm_loop(4, reads, mfmas, dma, tick, 2, npro, {5: lambda: self.wsp_dma(0), 6: lambda: self.wsp_dma(1)}, valu)
        self.stamp(1)
        MA, MB = SK + 2, SK + 4
        GR, VLO = 72, 80
        def seg1b():
            p = self.p
            S0, S1, MU = 64, 66, 68
            p(f"v_pk_add_f32 {v(S0,2)}, {v(ACC,2)}, {v(ACC+2,2)}\nv_pk_add_f32 {v(S1,2)}, {v(ACC+4,2)}, {v(ACC+6,2)}")
            for i in range(4, 16):
                s = S0 if i % 2 == 0 else S1
                p(f"v_pk_add_f32 {v(s,2)}, {v(s,2)}, {v(ACC+2*i,2)}")
            for (m, b) in [(MA, 16), (MB, 20)]:
                p(f"s_mov_b64 exec, {sp(m)}")
                for i in range(b, b + 4):
                    s = S0 if i % 2 == 0 else S1
                    p(f"v_pk_add_f32 {v(s,2)}, {v(s,2)}, {v(ACC+2*i,2)}")
            p("s_mov_b64 exec, -1")
            p(f"v_pk_add_f32 {v(S0,2)}, {v(S0,2)}, {v(S1,2)}\nv_add_f32 {v(GR)}, {v(S0)}, {v(S0+1)}")
            p(f"v_mov_b32 {v(S0)}, {v(GR)}\nv_mov_b32 {v(GR+1)}, s{ST_T}\nv_mov_b32 {v(GR+3)}, s{ST_T}\nv_permlane32_swap_b32 {v(GR)}, {v(S0)}\nv_add_f32 {v(GR)}, {v(GR)}, {v(S0)}")
            p(f"v_mul_f32 {v(MU)}, s{SK+6}, {v(GR)}")
            D0, D1 = 76, 78
            def m2(i, first=False):
                d = D0 if i % 2 == 0 else D1; s = S0 if i % 2 == 0 else S1
                p(f"v_pk_add_f32 {v(d,2)}, {v(ACC+2*i,2)}, {v(MU,2)} op_sel_hi:[1,0] neg_lo:[0,1] neg_hi:[0,1]")
                if first: p(f"v_pk_mul_f32 {v(s,2)}, {v(d,2)}, {v(d,2)}")
                else: p(f"v_pk_fma_f32 {v(s,2)}, {v(d,2)}, {v(d,2)}, {v(s,2)}")
            for i in range(16): m2(i, i < 2)
            for (m, b) in [(MA, 16), (MB, 20)]:
                p(f"s_mov_b64 exec, {sp(m)}")
                for i in range(b, b + 4): m2(i)
            p("s_mov_b64 exec, -1")
            p(f"v_pk_add_f32 {v(S0,2)}, {v(S0,2)}, {v(S1,2)}\nv_add_f32 {v(GR+2)}, {v(S0)}, {v(S0+1)}")
            p(f"v_mov_b32 {v(S0)}, {v(GR+2)}\nv_cmp_gt_u32 vcc, 32, {v(VL)}")
            p(f"s_lshl_b32 s{SC}, s{SRB}, 2\ns_add_u32 s{SC}, s{SC}, s{SWV}")
            p(f"v_permlane32_swap_b32 {v(GR+2)}, {v(S0)}\nv_cndmask_b32 {v(VLO)}, {v(VOOB)}, {v(VL16)}, vcc\nv_add_f32 {v(GR+2)}, {v(GR+2)}, {v(S0)}")
            p(f"s_lshl_b32 s{SD}, s{SC}, 12\ns_add_u32 s{SD}, s{SD}, {ST}\ns_lshl_b32 s{SA}, s{SCOL}, 9\ns_add_u32 s{SA}, s{SA}, s{SD}")
        seg1 = self.cap(lambda: self.gelu_many([ACC + 2 * i for i in range(24)], [64, 68, 72, 76]))
        ng = o.get("zg", 3)
        def bar(): p.wait(lg=p.lg - 1); p("s_barrier")
        fill = []
        for st in range(2, 2 + ng): fill += self.wsp_dma(st)
        h = len(seg1) // 4
        self.run(merge(seg1[:h], [lambda: p("s_barrier")] + self.wsp_read(0) + self.wsp_read(1) + [lambda: p.wait(lg=p.lg - 1)]) + merge(seg1[h:], fill))
        seg1b()
        p.vmem(f"buffer_store_dwordx4 {v(GR,4)}, {v(VLO)}, {srd(SWS)}, s{SA} offen sc1")
        self.stamp(2)
        fill = []
        for st in range(2 + ng, 7): fill += self.wsp_dma(st)
        self.run(merge(gops, fill + self.wsp_read(2)))
        Q0, Q1, QA, QB = 112, 113, 114, 115
        p(f"v_lshrrev_b32 {v(Q1)}, 5, {v(VL)}\nv_lshlrev_b32 {v(Q1)}, 6, {v(Q1)}\nv_xor_b32 {v(Q0)}, {v(VL16)}, {v(Q1)}\nv_xor_b32 {v(Q1)}, 128, {v(Q0)}")
        p(f"v_cndmask_b32 {v(QA)}, {v(VOOB)}, {v(Q0)}, {sp(MA)}\nv_cndmask_b32 {v(QB)}, {v(VOOB)}, {v(Q1)}, {sp(MB)}")
        p(f"s_lshl_b32 s{SA}, s{SCOL}, 6\ns_add_u32 s{SC}, s{SA}, s{SC}\ns_mul_i32 s{SE}, s{SC}, 5632")
        self.flag_prep(118)
        MN, VR, N3, I3, TM = 80, 81, 82, 83, 84
        p(f"v_cmp_gt_u32 vcc, 32, {v(VL)}\nv_mov_b32 {v(N3)}, {f2u(72.0)}\nv_mov_b32 {v(TM)}, {f2u(88.0)}\nv_mov_b32 {v(I3)}, {f2u(1/72)}\nv_mov_b32 {v(TM+1)}, {f2u(1/88)}")
        p(f"v_cndmask_b32 {v(N3)}, {v(N3)}, {v(TM)}, vcc\nv_cndmask_b32 {v(I3)}, {v(I3)}, {v(TM+1)}, vcc")
        if o.get("z7early", 1):
            p.wait(lg=p.lg - 1); self.run(self.wsp_dma(7))
        self.stamp(3)
        SG = 64
        l = p.label("sp"); dl = p.label("sd")
        p(f"s_mov_b32 s{SSPIN}, 0")
        p.put(l)
        for q in range(4):
            p.vmem(f"buffer_load_dwordx4 {v(SG+4*q,4)}, {v(VL16)}, {srd(SWS)}, s{SD} offen offset:{q*1024} sc1")
        p.wait_vm_all()
        X0 = 116
        p(f"v_xor_b32 {v(MN)}, s{ST_T}, {v(SG+1)}\nv_xor_b32 {v(VR)}, s{ST_T}, {v(SG+3)}")
        for r in [5, 9, 13]:
            p(f"v_xor_b32 {v(X0)}, s{ST_T}, {v(SG+r)}\nv_xor_b32 {v(X0+1)}, s{ST_T}, {v(SG+r+2)}\nv_or3_b32 {v(MN)}, {v(MN)}, {v(X0)}, {v(X0+1)}")
        p(f"v_or_b32 {v(MN)}, {v(MN)}, {v(VR)}")
        p(f"v_cmp_ne_u32 vcc, 0, {v(MN)}\ns_cmp_eq_u64 vcc, 0\ns_cbranch_scc1 {dl}")
        p(f"s_add_u32 s{SSPIN}, s{SSPIN}, 1\ns_cmp_lt_u32 s{SSPIN}, {SPIN}\ns_cbranch_scc1 {l}")
        p.put(dl)
        self.stamp(4)
        p(f"v_add_f32 {v(MN)}, {v(SG)}, {v(SG+4)}\nv_add_f32 {v(TM+2)}, {v(SG+8)}, {v(SG+12)}\nv_add_f32 {v(MN)}, {v(MN)}, {v(TM+2)}")
        p(f"v_mov_b32 {v(TM+3)}, {v(MN)}\nv_add_f32 {v(VR)}, {v(SG+2)}, {v(SG+6)}\nv_add_f32 {v(TM+2)}, {v(SG+10)}, {v(SG+14)}")
        p(f"v_permlane32_swap_b32 {v(MN)}, {v(TM+3)}\nv_add_f32 {v(VR)}, {v(VR)}, {v(TM+2)}\nv_add_f32 {v(MN)}, {v(MN)}, {v(TM+3)}")
        p(f"v_mul_f32 {v(MN)}, {f2u(1/688)}, {v(MN)}")
        for q in range(4):
            n_, i_ = (TM, TM + 1) if q < 3 else (N3, I3)
            p(f"v_fma_f32 {v(TM+2)}, {v(SG+4*q)}, {v(i_)}, -{v(MN)}\nv_mul_f32 {v(TM+2)}, {v(TM+2)}, {v(TM+2)}\nv_fmac_f32 {v(VR)}, {v(TM+2)}, {v(n_)}")
        self.rnd(MN, MN)
        p(f"v_mov_b32 {v(TM)}, {v(VR)}")
        ZP = 88
        for i in range(24):
            a = ACC + 2 * i
            p(f"v_pk_add_f32 {v(a,2)}, {v(a,2)}, {v(MN,2)} op_sel_hi:[1,0] neg_lo:[0,1] neg_hi:[0,1]")
            if i == 1: p(f"v_permlane32_swap_b32 {v(VR)}, {v(TM)}")
            if i == 2: p(f"v_add_f32 {v(VR)}, {v(VR)}, {v(TM)}\nv_mul_f32 {v(VR)}, {f2u(1/688)}, {v(VR)}"); self.rnd(VR, VR)
            if i == 3: p(f"v_add_f32 {v(VR)}, {f2u(1e-5)}, {v(VR)}"); self.rnd(VR, VR)
            if i == 4: p(f"v_sqrt_f32 {v(VR)}, {v(VR)}")
            if i == 5: self.rnd(VR, VR)
            if i == 6: p(f"v_rcp_f32 {v(VR)}, {v(VR)}")
        p(f"s_add_u32 s{SA}, s{SE}, {Z2N}\ns_add_u32 s{SB_}, s{SA}, 4096")
        for u in range(6):
            mt, q = u >> 1, u & 1
            R4 = range(4 * u, 4 * u + 4)
            if o.get("ln_round", 1):
                for i in R4: p(f"v_cvt_pk_bf16_f32 {v(ZP+i)}, {v(ACC+2*i)}, {v(ACC+2*i+1)}")
                for i in R4: self.unpack(ACC + 2 * i, ZP + i)
            for i in R4: p(f"v_pk_mul_f32 {v(ACC+2*i,2)}, {v(ACC+2*i,2)}, {v(MN,2)} op_sel:[0,1] op_sel_hi:[1,1]")
            for i in R4: p(f"v_cvt_pk_bf16_f32 {v(ZP+i)}, {v(ACC+2*i)}, {v(ACC+2*i+1)}")
            r = v(ZP + 4 * u, 4)
            if mt < 2: t = p.vmem(f"buffer_store_dwordx4 {r}, {v(Q0+q)}, {srd(SWS)}, s{SA} offen offset:{mt*2048+q*1024} sc1")
            else: t = p.vmem(f"buffer_store_dwordx4 {r}, {v(QA+q)}, {srd(SWS)}, s{SB_} offen offset:{q*1024} sc1")
        p(f"s_lshl_b32 s{SE}, s{SC}, 7\ns_add_u32 s{SE}, s{SE}, {ZF}")
        if not o.get("z7early", 1): self.run(self.wsp_dma(7))
        for st in range(3, 7): self.run(self.wsp_read(st, False))
        p.wait(vm=t)
        self.flag(SE, 118)
        if o.get("touch", 1): touch_c()
        self.run(self.wsp_read(7, False))
        p(f"s_mov_b32 s{SLATE}, 0")
        self.stamp(5)
        p(f"s_branch {self.LG}")

    def phase_u(self):
        p = self.p; o = self.o
        ACC, ZA, FA, FB, FW, FX = 16, 80, 128, 144, 160, 184
        XR, BR, X1R, WR, XD, BD, WD, T = 192, 196, 200, 204, 206, 210, 214, 60
        p.c("==== phase A: U ====")
        p.put(self.LU)
        WT, WP = SK + 8, SK + 9
        p(f"v_lshrrev_b32 {v(T)}, 5, {v(VL)}\nv_lshlrev_b32 {v(T)}, 15, {v(T)}")
        p(f"v_bfe_u32 {v(T+1)}, {v(VL)}, 3, 1\nv_lshl_add_u32 {v(T)}, {v(T+1)}, 14, {v(T)}")
        p(f"v_bfe_u32 {v(T+1)}, {v(VL)}, 4, 1\nv_lshl_add_u32 {v(T)}, {v(T+1)}, 10, {v(T)}")
        self.plain_dma_addr2(XD, T, T + 1, 2048)
        p(f"s_lshr_b32 s{WP}, s{SWV}, 1\ns_and_b32 s{WT}, s{SWV}, 1\ns_lshl_b32 s{SA}, s{WT}, 5")
        for i in range(4): p(f"v_xor_b32 {v(XD+i)}, s{SA}, {v(XD+i)}")
        self.plain_dma_addr(BD, 1024, T)
        self.w_dma_addr(WD, T, 0)
        p(f"s_lshl_b32 s{SXB}, s{SRB}, 17\ns_lshl_b32 s{SD}, s{WP}, 16\ns_add_u32 s{SXB}, s{SXB}, s{SD}\ns_lshl_b32 s{SD}, s{WT}, 13\ns_add_u32 s{SXB}, s{SXB}, s{SD}")
        p(f"s_lshl_b32 s{SW1B}, s{SCOL}, 16\ns_lshl_b32 s{SD}, s{WT}, 15\ns_add_u32 s{SW1B}, s{SW1B}, s{SD}")
        p(f"s_lshl_b32 s{SXL}, s{SWV}, 12\ns_mov_b32 s{SW1+2}, 524288")
        SWIB = SCB
        p(f"s_mul_i32 s{SWIB}, s{SWV}, {16*2752}\ns_mul_i32 s{SA}, s{SCOL}, 176\ns_add_u32 s{SWIB}, s{SWIB}, s{SA}")
        p(f"s_mul_i32 s{SWL}, s{SWV}, 3072\ns_add_u32 s{SWL}, s{SWL}, 98304\ns_mov_b32 s{PWIN+2}, {512*2752}\ns_mov_b32 s{PWIN+3}, 0x20000")
        PR = 228
        p(f"s_lshl_b32 s{SD}, s{SRB}, 1\ns_add_u32 s{SD}, s{SD}, s{WT}")
        p(f"s_lshl_b32 s{SA}, s{SCOL}, 1\ns_add_u32 s{SA}, s{SA}, s{WP}")
        p(f"s_lshl_b32 s{SE}, s{SD}, 4\ns_add_u32 s{SE}, s{SE}, s{SA}")
        p(f"s_lshl_b32 s{SA}, s{SA}, 5\nv_and_b32 {v(T)}, 31, {v(VL)}\nv_add_lshl_u32 {v(T)}, {v(T)}, s{SA}, 1")
        p.wait_lg_all()
        p(f"s_cmp_eq_u32 s{WP}, 0\ns_cselect_b64 {sp(SW1)}, {sp(PBRE)}, {sp(PBIM)}")
        tick = {}
        def dma(st):
            sl = st % 3; items = []
            def cb(t): tick[st] = t
            for i in range(3):
                items.append(((SWL, sl * 12288) if i == 0 else None, (SWIB, st * 64 * 2752) if i == 0 else None,
                              f"buffer_load_dwordx4 {v(WD+i)}, {srd(PWIN)}, s{SDO} offen offset:{i*1024} lds", None))
            for (vd, sr, sb, lb) in [(XD, SX, SXB, 0), (BD, SW1, SW1B, 49152)]:
                for i in range(4):
                    items.append(((SXL, lb + sl * 16384) if i == 0 else None, (sb, st * 128) if i == 0 else None,
                                  f"buffer_load_dwordx4 {v(vd+i)}, {srd(sr)}, s{SDO} offen offset:{i*1024} lds", cb))
            return self.dseq(items)
        self.run(dma(0))
        p.vmem(f"global_load_ushort {v(PR)}, {v(T)}, {sp(PLRE)}")
        p.vmem(f"global_load_ushort {v(PR+1)}, {v(T)}, {sp(PLIM)}")
        tp = p.vmem(f"global_load_ushort {v(PR+2)}, {v(T)}, {sp(PLDT)}")
        npro = 2
        self.late_args()
        def setup():
            p = self.p
            p(f"s_mul_i32 s{SREG}, s{SWV}, 40960\ns_lshl_b32 s{SA}, s{WT}, 13")
            self.plain_read_addr(XR, SA, T)
            p(f"s_lshl_b32 s{SA}, s{WP}, 12\ns_add_u32 s{SA}, s{SA}, 49152")
            self.plain_read_addr(BR, SA, T)
            self.w_tr_addr(WR, 98304, T)
            p(f"v_bfe_u32 {v(T)}, {v(VL)}, 3, 1\nv_lshlrev_b32 {v(T+1)}, 12, {v(T)}\nv_xor_b32 {v(T)}, s{WT}, {v(T)}\nv_lshlrev_b32 {v(T)}, 1, {v(T)}")
            p(f"v_bfe_u32 {v(T+2)}, {v(VL)}, 1, 2\nv_lshl_add_u32 {v(T+1)}, {v(T+2)}, 10, {v(T+1)}")
            p(f"v_and_b32 {v(T+2)}, 1, {v(T+2)}\nv_lshl_add_u32 {v(T)}, {v(T+2)}, 2, {v(T)}")
            p(f"v_and_b32 {v(T+2)}, 1, {v(VL)}\nv_lshl_add_u32 {v(T+1)}, {v(T+2)}, 8, {v(T+1)}\nv_or_b32 {v(T)}, {v(T)}, {v(T+2)}")
            p(f"v_bfe_u32 {v(T+2)}, {v(VL)}, 4, 1\nv_lshl_add_u32 {v(T+1)}, {v(T+2)}, 7, {v(T+1)}")
            p(f"s_lshl_b32 s{SA}, s{WP}, 13\ns_lshl_b32 s{SB_}, s{WT}, 9\ns_add_u32 s{SA}, s{SA}, s{SB_}\nv_add_u32 {v(T+1)}, s{SA}, {v(T+1)}")
            p(f"v_lshrrev_b32 {v(T+2)}, 5, {v(VL)}\nv_xor_b32 {v(T)}, {v(T)}, {v(T+2)}\nv_lshlrev_b32 {v(T)}, 4, {v(T)}")
            for ks in range(4): p(f"v_xor_b32 {v(X1R+ks)}, {32*ks}, {v(T)}\nv_add_u32 {v(X1R+ks)}, {v(X1R+ks)}, {v(T+1)}")
            self.wsp_setup(T)
            p(f"s_lshl_b32 s{SPST}, s{WT}, 13\ns_mul_i32 s{SA}, s{WP}, 49152\ns_add_u32 s{SPST}, s{SPST}, s{SA}\ns_add_u32 s{SPB0}, s{SPST}, 32768")
            self.valid_masks()
        self.run(merge(self.cap(setup), dma(1)))
        LB, CF, L16, L128, L256, LQ0, LQ1 = 218, 220, 222, 224, 226, 228, 230
        X0, X1, X2, X3 = 232, 233, 234, 235
        L32, L64 = 236, 238
        def csq(d, s):
            p = self.p
            p(f"v_mul_f32 {v(X0)}, {v(s+1)}, {v(s+1)}\nv_add_f32 {v(X1)}, {v(s)}, {v(s)}")
            p(f"v_mul_f32 {v(d+1)}, {v(X1)}, {v(s+1)}\nv_fma_f32 {v(d)}, {v(s)}, {v(s)}, -{v(X0)}")
        def cmul(d, a, b):
            p = self.p
            p(f"v_mul_f32 {v(X0)}, {v(a+1)}, {v(b+1)}\nv_mul_f32 {v(X1)}, {v(a+1)}, {v(b)}")
            p(f"v_fma_f32 {v(X0)}, {v(a)}, {v(b)}, -{v(X0)}\nv_fma_f32 {v(d+1)}, {v(a)}, {v(b+1)}, {v(X1)}\nv_mov_b32 {v(d)}, {v(X0)}")
        def cfma(d, a, b, c):
            p = self.p
            p(f"v_fma_f32 {v(X0)}, {v(a)}, {v(b)}, {v(c)}\nv_fma_f32 {v(X1)}, {v(a)}, {v(b+1)}, {v(c+1)}")
            p(f"v_fma_f32 {v(X0)}, -{v(a+1)}, {v(b+1)}, {v(X0)}\nv_fma_f32 {v(d+1)}, {v(a+1)}, {v(b)}, {v(X1)}\nv_mov_b32 {v(d)}, {v(X0)}")
        def params():
            p = self.p
            p(f"v_lshlrev_b32 {v(PR)}, 16, {v(PR)}\nv_lshlrev_b32 {v(PR+1)}, 16, {v(PR+1)}\nv_lshlrev_b32 {v(PR+2)}, 16, {v(PR+2)}")
            p(f"v_mul_f32 {v(X0)}, {f2u(LOG2E)}, {v(PR+2)}\nv_exp_f32 {v(X0)}, {v(X0)}"); self.rnd(X0, X0)
            p(f"v_mul_f32 {v(X1)}, {v(X0)}, {v(PR)}\nv_mul_f32 {v(X2)}, {v(X0)}, {v(PR+1)}")
            p(f"v_mul_f32 {v(X1)}, {f2u(LOG2E)}, {v(X1)}\nv_exp_f32 {v(X1)}, {v(X1)}")
            p(f"v_mul_f32 {v(X2)}, {f2u(1/(2*math.pi))}, {v(X2)}\nv_fract_f32 {v(X2)}, {v(X2)}")
            p(f"v_cos_f32 {v(X3)}, {v(X2)}\nv_sin_f32 {v(X2)}, {v(X2)}")
            p(f"v_mul_f32 {v(X0)}, {v(PR)}, {v(PR)}")
            p(f"v_mul_f32 {v(LB)}, {v(X1)}, {v(X3)}\nv_mul_f32 {v(LB+1)}, {v(X1)}, {v(X2)}")
            p(f"v_fmac_f32 {v(X0)}, {v(PR+1)}, {v(PR+1)}\nv_rcp_f32 {v(X0)}, {v(X0)}")
            p(f"v_add_f32 {v(X1)}, -1.0, {v(LB)}\nv_add_f32 {v(X0)}, {v(X0)}, {v(X0)}")
            p(f"v_mul_f32 {v(X2)}, {v(X1)}, {v(PR)}\nv_fmac_f32 {v(X2)}, {v(LB+1)}, {v(PR+1)}\nv_mul_f32 {v(CF)}, {v(X2)}, {v(X0)}")
            p(f"v_mul_f32 {v(X2)}, {v(LB+1)}, {v(PR)}\nv_fma_f32 {v(X2)}, -{v(X1)}, {v(PR+1)}, {v(X2)}\nv_mul_f32 {v(CF+1)}, {v(X2)}, {v(X0)}")
            csq(L16, LB); csq(L16, L16); csq(L16, L16); csq(L16, L16)
            csq(L32, L16); csq(L64, L32); csq(L128, L64); csq(L256, L128)
            p.atom(f"s_cmp_eq_u32 s{WT}, 0\ns_cselect_b64 vcc, -1, 0")
            p(f"v_cndmask_b32 {v(L64)}, {v(L64)}, 1.0, vcc\nv_cndmask_b32 {v(L64+1)}, {v(L64+1)}, 0, vcc")
            p(f"v_cmp_gt_u32 vcc, 32, {v(VL)}\nv_cndmask_b32 {v(LQ0)}, {v(L32)}, 1.0, vcc\nv_cndmask_b32 {v(LQ0+1)}, {v(L32+1)}, 0, vcc")
            cmul(LQ0, LQ0, L64); cmul(LQ1, LQ0, L16)
        self.epoch2()
        self.stamp(0)
        pops = [lambda: p.wait(vm=tp)] + self.cap(params)
        valu = {}
        q = (len(pops) + 15) // 16
        for i in range(16): valu[4 + i] = pops[i * q:(i + 1) * q]
        rt = {}
        def reads(n):
            st, ks = n // 4, n % 4; sl = st % 3; s = n & 1; ops = []
            for k in range(2):
                def ra(k=k): rt[(n, 'a', k)] = p.lds(f"ds_read_b128 {v(FA+8*s+4*k,4)}, {v(XR+(ks^k))} offset:{sl*16384+k*4096}")
                def rb(k=k): rt[(n, 'b', k)] = p.lds(f"ds_read_b128 {v(FB+8*s+4*k,4)}, {v(BR+ks)} offset:{sl*16384+k*8192}")
                ops += [ra, rb]
            def rx(): p.lds(f"ds_read_b128 {v(FX+4*s,4)}, {v(X1R+ks)} offset:{sl*16384}")
            ops.append(rx)
            for mt in range(3):
                for a in range(2):
                    def rw(mt=mt, a=a):
                        rt[(n, 'w', mt)] = p.lds(f"ds_read_b64_tr_b16 {v(FW+12*s+4*mt+2*a,2)}, {v(WR)} offset:{sl*12288+ks*3072+a*768+mt*64}")
                    ops.append(rw)
            return ops
        def mfmas(n):
            s = n & 1; ops = []
            for (mt, cp) in [(0, 0), (1, 0), (1, 1), (0, 1)]:
                def m(mt=mt, cp=cp):
                    if (mt, cp) == (0, 0): p.wait(lg=rt[(n, 'b', 1)])
                    d = v(ACC + 32 * mt + 16 * cp, 16)
                    p(f"{MF} {d}, {v(FA+8*s+4*mt,4)}, {v(FB+8*s+4*cp,4)}, {'0' if n == 0 else d}")
                ops.append(m)
            for mt in range(3):
                def m(mt=mt):
                    if mt == 0: p.wait(lg=rt[(n, 'w', 2)])
                    d = v(ZA + 16 * mt, 16)
                    p(f"{MF} {d}, {v(FW+12*s+4*mt,4)}, {v(FX+4*s,4)}, {'0' if n == 0 else d}")
                ops.append(m)
            return ops
        self.gemm_loop(3, reads, mfmas, dma, tick, 5, npro, {6: lambda: self.wsp_dma(0), 7: lambda: self.wsp_dma(1)}, valu)
        self.stamp(1)
        def U(sg, cp): return ACC + 32 * (sg >> 3) + 16 * cp + 4 * ((sg & 7) >> 1) + 2 * (sg & 1)
        def step(hr, hi, sg, nr, ni, t0, t1):
            p = self.p; A = v(LB, 2)
            p(f"v_pk_fma_f32 {v(t0,2)}, {A}, {v(hr,2)}, {v(U(sg,0),2)} op_sel_hi:[0,1,1]")
            p(f"v_pk_fma_f32 {v(t1,2)}, {A}, {v(hi,2)}, {v(U(sg,1),2)} op_sel_hi:[0,1,1]")
            p(f"v_pk_fma_f32 {v(nr,2)}, {A}, {v(hi,2)}, {v(t0,2)} op_sel:[1,0,0] op_sel_hi:[1,1,1] neg_lo:[1,0,0] neg_hi:[1,0,0]")
            p(f"v_pk_fma_f32 {v(ni,2)}, {A}, {v(hr,2)}, {v(t1,2)} op_sel:[1,0,0] op_sel_hi:[1,1,1]")
        HA, HBb, T0, EX, E8, AD, GR, CQ = 128, 132, 136, 140, 144, 160, 164, 168
        SCR = 98304
        p(f"s_lshl_b32 s{SA}, s{WP}, 11\ns_add_u32 s{SA}, s{SA}, {SCR}")
        p(f"v_and_b32 {v(AD)}, 31, {v(VL)}\nv_lshlrev_b32 {v(AD)}, 6, {v(AD)}\nv_add_u32 {v(AD)}, s{SA}, {v(AD)}")
        p(f"v_lshrrev_b32 {v(AD+1)}, 5, {v(VL)}\nv_lshl_add_u32 {v(AD+1)}, {v(AD+1)}, 4, {v(AD)}\ns_lshl_b32 s{SA}, s{WT}, 5\nv_add_u32 {v(AD+1)}, s{SA}, {v(AD+1)}")
        p("s_barrier")
        def pass1():
            hr, hi = U(0, 0), U(0, 1)
            for sg in range(1, 16):
                nr, ni = (HA, HA + 2) if sg & 1 else (HBb, HBb + 2)
                step(hr, hi, sg, nr, ni, T0, T0 + 2)
                hr, hi = nr, ni
            self.p(f"v_mov_b32 {v(EX)}, {v(hr)}\nv_mov_b32 {v(EX+1)}, {v(hi)}\nv_mov_b32 {v(EX+2)}, {v(hr+1)}\nv_mov_b32 {v(EX+3)}, {v(hi+1)}")
        self.run(merge(self.cap(pass1), self.wsp_read(0)))
        p.lds(f"ds_write_b128 {v(AD+1)}, {v(EX,4)}")
        p.wait_lg_all(); p("s_barrier")
        for i in range(4): p.lds(f"ds_read_b128 {v(E8+4*i,4)}, {v(AD)} offset:{16*i}")
        te = p.lg - 1
        self.run(self.wsp_read(1))
        p(f"s_cmp_eq_u32 s{WT}, 0\ns_cselect_b32 s{SA}, 32, 0")
        p(f"v_cmp_gt_u32 vcc, s{SA}, {v(VL)}\nv_mov_b32 {v(GR+1)}, s{ST_T}\nv_mov_b32 {v(GR+3)}, s{ST_T}\nv_cndmask_b32 {v(T0)}, {v(VOOB)}, {v(VL16)}, vcc")
        p(f"s_lshl_b32 s{SC}, s{SCOL}, 14\ns_lshl_b32 s{SA}, s{WP}, 9\ns_add_u32 s{SC}, s{SC}, s{SA}\ns_add_u32 s{SC}, s{SC}, {EG}")
        p(f"s_lshl_b32 s{SA}, s{SRB}, 10\ns_add_u32 s{SA}, s{SA}, s{SC}")
        p.wait(lg=te)
        for q in range(1, 8): cfma(E8 + 2 * q, L16, E8 + 2 * (q - 1), E8 + 2 * q)
        p(f"v_mov_b32 {v(GR)}, {v(E8+14)}\nv_mov_b32 {v(GR+2)}, {v(E8+15)}")
        p.vmem(f"buffer_store_dwordx4 {v(GR,4)}, {v(T0)}, {srd(SWS)}, s{SA} offen sc1")
        p.wait_lg_all(); p("s_barrier")
        self.stamp(2)
        p(f"v_cmp_gt_u32 vcc, 32, {v(VL)}")
        w1 = p.label("w1"); w2 = p.label("w2")
        p(f"s_cmp_eq_u32 s{WT}, 0\ns_cbranch_scc0 {w1}")
        p(f"v_cndmask_b32 {v(CQ)}, {v(E8+2)}, 0, vcc\nv_cndmask_b32 {v(CQ+1)}, {v(E8+3)}, 0, vcc")
        p(f"v_cndmask_b32 {v(CQ+2)}, {v(E8+4)}, {v(E8)}, vcc\nv_cndmask_b32 {v(CQ+3)}, {v(E8+5)}, {v(E8+1)}, vcc")
        p(f"s_branch {w2}")
        p.put(w1)
        for k in range(4): p(f"v_cndmask_b32 {v(CQ+k)}, {v(E8+10+k)}, {v(E8+6+k)}, vcc")
        p.put(w2)
        Z1P = 192
        EGR, EO, EXP, ET = 80, 144, 152, 160
        def eo():
            p = self.p
            p(f"v_lshrrev_b32 {v(ET)}, 5, {v(VL)}\nv_sub_u32 {v(ET)}, s{SRB}, {v(ET)}\nv_add_u32 {v(ET)}, -1, {v(ET)}")
            p(f"v_and_b32 {v(ET+1)}, 31, {v(VL)}\nv_lshlrev_b32 {v(ET+1)}, 4, {v(ET+1)}\nv_mov_b32 {v(ET+3)}, s{ST_T}")
            for q in range(8):
                p(f"v_add_u32 {v(ET+2)}, {-2*q}, {v(ET)}\nv_cmp_le_i32 vcc, 0, {v(ET+2)}\nv_lshl_add_u32 {v(ET+2)}, {v(ET+2)}, 10, {v(ET+1)}")
                p(f"v_cndmask_b32 {v(EO+q)}, {v(VOOB)}, {v(ET+2)}, vcc\nv_cndmask_b32 {v(EXP+q)}, 0, {v(ET+3)}, vcc")
        ga = self.cap(lambda: (eo(), self.gelu_many([ZA + 2 * i for i in range(16)], [172, 176, 180, 184], [Z1P + i for i in range(16)])))
        gb = self.cap(lambda: self.gelu_many([ZA + 2 * i for i in range(16, 24)], [172, 176, 180, 184], [Z1P + i for i in range(16, 24)]))
        ua, ub = o.get("ua", 3), o.get("ub", 1)
        fill = []
        for st in range(2, 2 + ua): fill += self.wsp_dma(st)
        self.run(merge(ga, fill))
        et = {}
        def eload(q):
            et['t'] = p.vmem(f"buffer_load_dwordx4 {v(EGR+4*q,4)}, {v(EO+q)}, {srd(SWS)}, s{SC} offen sc1")
        fill = [(lambda q=q: eload(q)) for q in range(8)]
        for st in range(2 + ua, 2 + ua + ub): fill += self.wsp_dma(st)
        self.run(merge(gb, fill))
        ug = ua + ub
        self.stamp(3)
        l = p.label("ep"); dl = p.label("ed")
        p.wait(vm=et['t'])
        p(f"s_mov_b32 s{SSPIN}, 0")
        p.put(l)
        p(f"v_mov_b32 {v(ET)}, 0")
        for q in range(8):
            p(f"v_xor_b32 {v(ET+1)}, {v(EXP+q)}, {v(EGR+4*q+1)}\nv_xor_b32 {v(ET+2)}, {v(EXP+q)}, {v(EGR+4*q+3)}\nv_or3_b32 {v(ET)}, {v(ET)}, {v(ET+1)}, {v(ET+2)}")
        p(f"v_cmp_ne_u32 vcc, 0, {v(ET)}\ns_cmp_eq_u64 vcc, 0\ns_cbranch_scc1 {dl}")
        for q in range(8): p(f"buffer_load_dwordx4 {v(EGR+4*q,4)}, {v(EO+q)}, {srd(SWS)}, s{SC} offen sc1")
        p("s_waitcnt vmcnt(0)")
        p(f"s_add_u32 s{SSPIN}, s{SSPIN}, 1\ns_cmp_lt_u32 s{SSPIN}, {SPIN}\ns_cbranch_scc1 {l}")
        p.put(dl)
        self.stamp(4)
        OP, OT, HO = 80, 144, 132
        MA, MB = SK + 2, SK + 4
        def pass2():
            p = self.p
            for q in range(8): p(f"v_mov_b32 {v(EGR+4*q+1)}, {v(EGR+4*q+2)}")
            S = EGR + 28
            for q in range(6, -1, -1): cfma(S, L256, S, EGR + 4 * q)
            p(f"v_mov_b32 {v(ET)}, {v(S)}\nv_mov_b32 {v(ET+1)}, {v(S+1)}\nv_permlane32_swap_b32 {v(S)}, {v(ET)}\nv_permlane32_swap_b32 {v(S+1)}, {v(ET+1)}")
            cfma(S, L128, ET, S)
            cfma(CQ, LQ0, S, CQ); cfma(CQ + 2, LQ1, S, CQ + 2)
            p(f"v_mov_b32 {v(HA)}, {v(CQ)}\nv_mov_b32 {v(HA+1)}, {v(CQ+2)}\nv_mov_b32 {v(HA+2)}, {v(CQ+1)}\nv_mov_b32 {v(HA+3)}, {v(CQ+3)}")
            hr, hi = HA, HA + 2
            Cc = v(CF, 2)
            for sg in range(16):
                step(hr, hi, sg, U(sg, 0), U(sg, 1), T0, T0 + 2)
                hr, hi = U(sg, 0), U(sg, 1)
                oo = OT + 4 * (sg & 1) + 8 * ((sg >> 1) & 1)
                p(f"v_pk_mul_f32 {v(oo,2)}, {Cc}, {v(hr,2)} op_sel_hi:[0,1]")
                p(f"v_pk_mul_f32 {v(oo+2,2)}, {Cc}, {v(hi,2)} op_sel_hi:[0,1] neg_lo:[1,0] neg_hi:[1,0]")
                p(f"v_pk_fma_f32 {v(oo,2)}, {Cc}, {v(hi,2)}, {v(oo,2)} op_sel:[1,0,0] op_sel_hi:[1,1,1] neg_lo:[1,0,0] neg_hi:[1,0,0]")
                p(f"v_pk_fma_f32 {v(oo+2,2)}, {Cc}, {v(hr,2)}, {v(oo+2,2)} op_sel:[1,0,0] op_sel_hi:[1,1,1] neg_lo:[1,0,0] neg_hi:[1,0,0]")
                if sg & 1:
                    q, i = sg >> 3, (sg & 7) >> 1
                    for cp in range(2):
                        for e in range(2):
                            p(f"v_cvt_pk_bf16_f32 {v(OP+16*cp+8*e+4*q+i)}, {v(oo-4+2*cp+e)}, {v(oo+2*cp+e)}")
            p(f"s_lshl_b32 s{SA}, s{SD}, 3\ns_add_u32 s{SA}, s{SA}, s{SCOL}\ns_lshl_b32 s{SA}, s{SA}, 14\ns_lshl_b32 s{SB_}, s{WP}, 12\ns_add_u32 s{SA}, s{SA}, s{SB_}")
            p(f"s_add_u32 s{SA}, s{SA}, {HB}\ns_add_u32 s{SB_}, s{SA}, 8192")
            p(f"v_lshrrev_b32 {v(T0)}, 5, {v(VL)}\nv_lshlrev_b32 {v(T0)}, 11, {v(T0)}\nv_and_b32 {v(T0+1)}, 31, {v(VL)}\nv_lshl_add_u32 {v(HO)}, {v(T0+1)}, 4, {v(T0)}")
            for k in range(1, 4): p(f"v_xor_b32 {v(HO+k)}, {64*k}, {v(HO)}")
        fill = []
        for st in range(2 + ug, 7): fill += self.wsp_dma(st)
        fill += self.wsp_read(2) + [lambda: p.wait(lg=p.lg - 1)] + self.wsp_dma(7)
        for st in range(3, 2 + ug): fill += self.wsp_read(st, False)
        self.run(merge(self.cap(pass2), fill))
        for cp in range(2):
            for k in range(4):
                t = p.vmem(f"buffer_store_dwordx4 {v(OP+16*cp+4*k,4)}, {v(HO+k)}, {srd(SWS)}, s{SA if cp == 0 else SB_} offen offset:{512*k} sc1")
        VA_ = 176
        p(f"s_lshl_b32 s{SA}, s{SCOL}, 6\ns_lshl_b32 s{SB_}, s{SRB}, 2\ns_add_u32 s{SA}, s{SA}, s{SB_}\ns_add_u32 s{SA}, s{SA}, s{SWV}\ns_mul_i32 s{SA}, s{SA}, 5632")
        p(f"s_add_u32 s{SA}, s{SA}, {Z1}\ns_add_u32 s{SB_}, s{SA}, 4096")
        p(f"v_cndmask_b32 {v(VA_)}, {v(VOOB)}, {v(VL16)}, {sp(MA)}\nv_cndmask_b32 {v(VA_+1)}, {v(VOOB)}, {v(VL16)}, {sp(MB)}")
        for u in range(6):
            mt, q = u >> 1, u & 1
            r = v(Z1P + 4 * u, 4)
            if mt < 2: p.vmem(f"buffer_store_dwordx4 {r}, {v(VL16)}, {srd(SWS)}, s{SA} offen offset:{mt*2048+q*1024} sc1")
            else: p.vmem(f"buffer_store_dwordx4 {r}, {v(VA_+q)}, {srd(SWS)}, s{SB_} offen offset:{q*1024} sc1")
        p(f"s_lshl_b32 s{SLATE}, s{SE}, 7\ns_add_u32 s{SLATE}, s{SLATE}, {HF}")
        for st in range(2 + ug, 8): self.run(self.wsp_read(st, False))
        self.stamp(5)

    def phase_g(self):
        p = self.p; o = self.o
        p.c("==== phase B: G ====")
        p.put(self.LG)
        p.vm_done = -1; p.lg_done = -1
        ACC, FA, TR, T = 16, 112, 184, 186
        Z1R, BI, PV, WD, PL = 190, 202, 203, 204, 208
        NT, Q = SK + 8, SK + 9
        p(f"s_and_b32 s{NT}, s{SWV}, 1\ns_lshr_b32 s{Q}, s{SWV}, 1")
        self.unit_tr_addr(TR, SREG, T, True, flip_sreg=Q)
        p(f"s_lshl_b32 s{SA}, s{SCOL}, 13\ns_add_u32 s{SA}, s{SA}, {ZF}\ns_lshl_b32 s{SB_}, s{SWV}, 11\ns_add_u32 s{SB_}, s{SB_}, s{SA}")
        p(f"s_lshl_b32 s{SC}, s{STB}, 1\ns_add_u32 s{SC}, s{SC}, s{NT}")
        p(f"s_lshr_b32 s{SD}, s{SC}, 2\ns_lshl_b32 s{SD}, s{SD}, 1\ns_and_b32 s{SA}, s{SC}, 1\ns_add_u32 s{SD}, s{SD}, s{SA}\ns_lshl_b32 s{SD}, s{SD}, 3\ns_add_u32 s{SD}, s{SD}, s{SCOL}")
        p(f"s_lshl_b32 s{SD}, s{SD}, 1\ns_bfe_u32 s{SA}, s{SC}, 0x10001\ns_add_u32 s{SD}, s{SD}, s{SA}\ns_lshl_b32 s{SD}, s{SD}, 7\ns_add_u32 s{SD}, s{SD}, {HF}")
        p(f"s_lshl_b32 s{SE}, s{STB}, 11\ns_add_u32 s{SE}, s{SE}, {HF}")
        nl = self.poll_addr(PL, [(SB_, 16)])
        PL2 = 222
        nl2 = self.poll_addr(PL2, [(SE, 16), (SD, 1)])
        p(f"s_lshl_b32 s{SA}, s{STB}, 8\ns_add_u32 s{SA}, s{SA}, {ZF}")
        p(f"v_bfe_u32 {v(T)}, {v(VL)}, 1, 3\nv_lshlrev_b32 {v(T)}, 13, {v(T)}\nv_and_b32 {v(T+1)}, 1, {v(VL)}\nv_lshl_add_u32 {v(T)}, {v(T+1)}, 7, {v(T)}\nv_add_u32 {v(T)}, s{SA}, {v(T)}")
        p(f"s_mov_b32 vcc_lo, 0\ns_mov_b32 vcc_hi, 0xffff\nv_cndmask_b32 {v(PL2)}, {v(PL2)}, {v(T)}, vcc")
        self.flag_prep(220)
        p(f"v_lshrrev_b32 {v(T)}, 3, {v(VL)}\nv_lshlrev_b32 {v(T)}, 10, {v(T)}")
        p(f"v_bfe_u32 {v(T+1)}, {v(VL)}, 4, 1\nv_lshlrev_b32 {v(T+1)}, 2, {v(T+1)}\nv_and_b32 {v(T+2)}, 7, {v(VL)}\nv_xor_b32 {v(T+1)}, {v(T+1)}, {v(T+2)}")
        p(f"v_lshl_add_u32 {v(WD)}, {v(T+1)}, 4, {v(T)}")
        for i in range(1, 4): p(f"v_add_u32 {v(WD+i)}, {i*7168}, {v(WD)}")
        p(f"s_mul_i32 s{SXB}, s{SWV}, {176*1024}\ns_lshl_b32 s{SA}, s{SCOL}, 7\ns_add_u32 s{SXB}, s{SXB}, s{SA}")
        p(f"s_lshl_b32 s{SA}, s{SCOL}, 6\ns_lshl_b32 s{SB_}, s{SWV}, 4\ns_add_u32 s{SA}, s{SA}, s{SB_}\ns_mul_i32 s{SE}, s{SA}, 5632\ns_add_u32 s{SE}, s{SE}, {Z2N}")
        p(f"s_cmp_lt_u32 s{SCOL}, 7\ns_cselect_b32 s{SD}, 64, 32\ns_lshl_b32 s{SF}, s{Q}, 5\ns_sub_u32 s{SD}, s{SD}, s{SF}")
        p(f"v_cmp_gt_u32 vcc, s{SD}, {v(VL)}\nv_and_b32 {v(T)}, 31, {v(VL)}\ns_lshl_b32 s{SA}, s{SC}, 5\nv_cndmask_b32 {v(PV)}, {v(VOOB)}, {v(VL16)}, vcc")
        p(f"v_add_lshl_u32 {v(T)}, {v(T)}, s{SA}, 1")
        p.vmem(f"global_load_ushort {v(BI)}, {v(T)}, {sp(PBSP)}")
        self.c_setup()
        self.panel_tr_addr(228, SREG, 224, False)
        p.wait_lg_all(); p("s_barrier")
        self.stamp(6)
        self.poll(PL, nl)
        nf = p.label("nf")
        p(f"s_cmp_eq_u32 s{SLATE}, 0\ns_cbranch_scc1 {nf}")
        self.flag(SLATE, 220)
        p.put(nf)
        self.stamp(7)
        tick = {}
        def dma(B):
            sl = B % 3; items = []
            for i in range(11):
                def cb(t, i=i): tick[(B, i)] = t
                g = i // 4
                items.append(((SREG, sl * 11264 + g * 4096) if i % 4 == 0 else None, (SE, B * 11264 + g * 4096) if i % 4 == 0 else None,
                              f"buffer_load_dwordx4 {v(VL16)}, {srd(SWS)}, s{SDO} offen offset:{(i%4)*1024} {o.get('gmod', 'sc1')} lds", cb))
            return self.dseq(items)
        wo = {}
        def wo_dma(i0, i1, base):
            items = []
            for i in range(i0, i1):
                def cb(t, i=i): wo[i] = t
                k = i - i0
                items.append(((SREG, base + k * 1024) if k % 4 == 0 else None, (SXB, i * 8192) if k % 4 == 0 else None,
                              f"buffer_load_dwordx4 {v(WD+k%4)}, {srd(SWOUT)}, s{SDO} offen offset:{(k%4)*1024} lds", cb))
            return self.dseq(items)
        d0 = dma(0) + dma(1) + dma(2)
        kpro = o.get("gpro", 18)
        self.run(d0[:kpro])
        lt = {}
        def late_issue():
            lt['p'] = p.vmem(f"buffer_load_dword {v(PL2+1)}, {v(PL2)}, {srd(SWS)}, 0 offen sc1")
        def late_check():
            l = p.label("lp"); d = p.label("ld")
            p.wait(vm=lt['p'])
            p(f"s_mov_b32 s{SSPIN}, 0")
            p.put(l)
            p(f"v_cmp_ne_u32 vcc, s{ST_T}, {v(PL2+1)}\ns_and_b32 vcc_lo, vcc_lo, 0x1ffff\ns_and_b32 vcc_hi, vcc_hi, 0xffff\ns_or_b32 s{SF}, vcc_lo, vcc_hi\ns_cbranch_scc0 {d}")
            p(f"buffer_load_dword {v(PL2+1)}, {v(PL2)}, {srd(SWS)}, 0 offen sc1\ns_waitcnt vmcnt(0)")
            p(f"s_add_u32 s{SSPIN}, s{SSPIN}, 1\ns_cmp_lt_u32 s{SSPIN}, {SPIN}\ns_cbranch_scc1 {l}")
            p.put(d)
            p(f"s_lshl_b32 s{SA}, s{SCOL}, 6\ns_add_u32 s{SA}, s{SA}, s{SC}\ns_mul_i32 s{SA}, s{SA}, 5632\ns_lshl_b32 s{SB_}, s{Q}, 10")
            p(f"s_add_u32 s{SA}, s{SA}, s{SB_}\ns_add_u32 s{SA}, s{SA}, {Z1}\ns_add_u32 s{SB_}, s{SA}, 4096")
            p.vmem(f"buffer_load_dwordx4 {v(Z1R,4)}, {v(VL16)}, {srd(SWS)}, s{SA} offen sc1")
            p.vmem(f"buffer_load_dwordx4 {v(Z1R+4,4)}, {v(VL16)}, {srd(SWS)}, s{SA} offen offset:2048 sc1")
            lt['z'] = p.vmem(f"buffer_load_dwordx4 {v(Z1R+8,4)}, {v(PV)}, {srd(SWS)}, s{SB_} offen sc1")
        rt = {}
        def fset(hb): return FA + 24 * (2 if hb == 15 else hb & 1)
        def reads(hb):
            B, e = hb >> 1, hb & 1; sl = B % 3; ops = []
            for ks in range(2):
                for mt in range(3):
                    for a in range(2):
                        def ra(ks=ks, mt=mt, a=a):
                            if (ks, mt, a) == (0, 0, 0): p.wait(vm=tick[(B, 10 if e else 5)])
                            rt[(hb, ks, mt)] = p.lds(f"ds_read_b64_tr_b16 {v(fset(hb)+12*ks+4*mt+2*a,2)}, {v(TR+a)} offset:{sl*11264+e*5632+mt*2048+ks*256}")
                        ops.append(ra)
            return ops
        def mf(hb, ks, mt, nt):
            def m():
                p.wait(lg=rt[(hb, ks, mt)])
                d = v(ACC + 16 * (2 * mt + nt), 16); kap = 2 * hb + ks
                p(f"{MF} {d}, {v(fset(hb)+12*ks+4*mt,4)}, {ar((kap*2+nt)*4,4)}, {'0' if kap == 0 else d}")
            return m
        self.run(reads(0))
        pend = d0[kpro:]
        for hb in range(14):
            if o.get("gstamps") and hb % 2 == 0: self.stamp(21 + hb // 2)
            mm = [mf(hb, ks, mt, nt) for ks in range(2) for mt in range(3) for nt in range(2)]
            rd = reads(hb + 1) + (reads(15) if hb == 13 else [])
            if hb == 13: seq = merge(mm, rd, 0, 12)
            else: seq = merge(mm, rd, 0, 8)
            if hb & 1:
                B = hb >> 1
                d = dma(B + 3) if B + 3 < 8 else (wo_dma(0, 18, 22528) if B == 5 else wo_dma(18, 22, 0))
                if o.get("nowo") and B + 3 >= 8: wo['t'] = -1; self.run(merge(seq, pend)); pend = []; continue
                d0 = d[1]
                def first(d0=d0, hb=hb):
                    p.wait(lg=rt[(hb, 1, 2)]); d0()
                d = [d[0], first] + d[2:]
                k = 5 if B < 6 else len(d)
                seq = merge(seq, pend + d[:k], len(seq) * 2 // 3 if not pend else len(seq) // 3)
                pend = d[k:]
            elif pend:
                k = (7 if hb < 12 else 8) if hb else 10
                seq = merge(seq, pend[:k], len(seq) // 3); pend = pend[k:]
            if hb == 10: seq = seq + [late_issue]
            if hb == 12: seq = [late_check] + seq
            self.run(seq)
        assert not pend
        VW, VRD, WT_ = T, T + 1, 228
        p(f"s_add_u32 s{SA}, s{SREG}, 4096\nv_add_u32 {v(VW)}, s{SA}, {v(VL16)}")
        def rw(mt, nt):
            ops = []
            for q in range(2):
                k = nt + 2 * q
                if k == 0: continue
                for hq in range(2):
                    r = ACC + 16 * (2 * mt + nt) + 8 * q + 4 * hq
                    ops.append(lambda r=r, k=k, hq=hq: p.lds(f"ds_write_b128 {v(VW)}, {v(r,4)} offset:{(k-1)*6144+(2*mt+hq)*1024}"))
            return ops
        def wo_rd(kap):
            def f():
                p.wait(vm=wo[2 * kap + 1], lg=p.lg - 12)
                for mt in range(2):
                    for a in range(2):
                        base = 22528 + kap * 2048 if kap < 9 else (kap - 9) * 2048
                        wo['r'] = p.lds(f"ds_read_b64_tr_b16 {ar((kap*2+mt)*4+2*a,2)}, {v(WT_+mt)} offset:{base+a*512}")
            return f
        tiles = [(0, 1), (1, 1), (2, 1), (0, 0), (1, 0), (2, 0)]
        y0 = self.y_dma(0)
        for ti, (mt, nt) in enumerate(tiles):
            mm = [mf(hb, ks, mt, nt) for hb in (14, 15) for ks in range(2)]
            f = []
            if ti < 3: f = [wo_rd(3 * ti + k) for k in range(3)]
            if ti == 3: f = [lambda: p.wait(lg=wo['r'])] + y0[:3]
            if ti == 4: f = y0[3:6]
            if ti == 5: f = y0[6:9]
            if ti >= 2: f = merge(rw(*tiles[ti - 2]), f)
            self.run(merge(mm, f))
        self.stamp(8)
        for k in range(1, 4):
            p(f"s_xor_b32 s{SA}, s{SWV}, {k}\ns_mul_i32 s{SA}, s{SA}, 40960\ns_add_u32 s{SA}, s{SA}, 4096\nv_add_u32 {v(VRD+k-1)}, s{SA}, {v(VL16)}")
        self.run(merge(rw(*tiles[4]) + rw(*tiles[5]), y0[9:13]))
        p.wait_lg_all(); p("s_barrier")
        RB = 112
        def own(i): return ACC + 32 * (i >> 1) + 4 * (i & 1)
        tk = {}
        def rr(k, i): tk[(k, i)] = p.lds(f"ds_read_b128 {v(RB+24*(k-1)+4*i,4)}, {v(VRD+k-1)} offset:{(k-1)*6144+i*1024}")
        for k in range(1, 3):
            for i in range(6): rr(k, i)
        self.run(y0[13:])
        for k in range(1, 4):
            for i in range(6):
                p.wait(lg=tk[(k, i)])
                if k == 1: rr(3, i)
                for hh in range(2): p(f"v_pk_add_f32 {v(own(i)+2*hh,2)}, {v(own(i)+2*hh,2)}, {v(RB+24*(k-1)+4*i+2*hh,2)}")
        p("s_barrier")
        self.stamp(9)
        PK, ZU = 112, 128
        def ow2(i): return own(i >> 1) + 2 * (i & 1)
        def pepi():
            p = self.p
            p(f"v_lshlrev_b32 {v(BI)}, 16, {v(BI)}")
            for i in range(12): p(f"v_cvt_pk_bf16_f32 {v(PK+i)}, {v(ow2(i))}, {v(ow2(i)+1)}")
            for i in range(12): self.unpack(ow2(i), PK + i)
            for i in range(12): p(f"v_pk_add_f32 {v(ow2(i),2)}, {v(ow2(i),2)}, {v(BI,2)} op_sel_hi:[1,0]")
            for i in range(12): p(f"v_cvt_pk_bf16_f32 {v(PK+i)}, {v(ow2(i))}, {v(ow2(i)+1)}")
            for i in range(12): self.unpack(ow2(i), PK + i)
            for i in range(12): self.unpack(ZU + 2 * i, Z1R + i)
            for i in range(12): p(f"v_pk_mul_f32 {v(ow2(i),2)}, {v(ow2(i),2)}, {v(ZU+2*i,2)}")
            for i in range(12): p(f"v_cvt_pk_bf16_f32 {v(PK+i)}, {v(ow2(i))}, {v(ow2(i)+1)}")
            p(f"s_mul_i32 s{SA}, s{SC}, 45056\ns_mul_i32 s{SB_}, s{SCOL}, 5632\ns_add_u32 s{SA}, s{SA}, s{SB_}\ns_lshl_b32 s{SB_}, s{Q}, 10")
            p(f"s_add_u32 s{SA}, s{SA}, s{SB_}\ns_add_u32 s{SA}, s{SA}, {PB}\ns_add_u32 s{SB_}, s{SA}, 4096")
        p.wait(vm=lt['z'])
        y1 = self.y_dma(1)
        k1 = o.get("y1a", 9)
        self.run(merge(self.cap(pepi), y1[:k1]))
        p.vmem(f"buffer_store_dwordx4 {v(PK,4)}, {v(VL16)}, {srd(SWS)}, s{SA} offen sc1")
        p.vmem(f"buffer_store_dwordx4 {v(PK+4,4)}, {v(VL16)}, {srd(SWS)}, s{SA} offen offset:2048 sc1")
        self.tp = p.vmem(f"buffer_store_dwordx4 {v(PK+8,4)}, {v(PV)}, {srd(SWS)}, s{SB_} offen sc1")
        self.run(merge([wo_rd(9), wo_rd(10)], y1[k1:]))
        p(f"s_lshl_b32 s{SLATE}, s{STB}, 3\ns_add_u32 s{SLATE}, s{SLATE}, s{SCOL}\ns_lshl_b32 s{SLATE}, s{SLATE}, 2\ns_add_u32 s{SLATE}, s{SLATE}, s{SWV}\ns_lshl_b32 s{SLATE}, s{SLATE}, 7\ns_add_u32 s{SLATE}, s{SLATE}, {PF}")
        self.stamp(10)

    CD, CR, HT = 210, 214, 218
    def c_setup(self):
        p = self.p
        self.plain_dma_addr(self.CD, 1024, 224)
        p(f"s_add_u32 s{SA}, s{SREG}, 4096")
        self.plain_read_addr(self.CR, SA, 224)
        p(f"s_add_u32 s{SA}, s{SREG}, {4096+8192}")
        self.unit_tr_addr(self.HT, SA, 224, False)
        p(f"s_lshl_b32 s{SCB}, s{SCOL}, 16\ns_lshl_b32 s{SA}, s{SWV}, 8\ns_add_u32 s{SCB}, s{SCB}, s{SA}")
        p(f"s_lshl_b32 s{SHB}, s{STB}, 17\ns_lshl_b32 s{SA}, s{SWV}, 15\ns_add_u32 s{SHB}, s{SHB}, s{SA}\ns_add_u32 s{SHB}, s{SHB}, {HB}")
        self.yt = {}
    def y_dma(self, s):
        sl = (s & 1) ^ 1; items = []
        def cb(t): self.yt[s] = t
        for hh in range(2):
            for i in range(4):
                items.append(((SREG, 4096 + sl * 18432 + hh * 4096) if i == 0 else None, (SCB, (s >> 1) * 128 + hh * 32768) if i == 0 else None,
                              f"buffer_load_dwordx4 {v(self.CD+i)}, {srd(SCIM if s & 1 else SCRE)}, s{SDO} offen offset:{i*1024} lds", None))
        for hh in range(2):
            for i in range(4):
                items.append(((SREG, 4096 + sl * 18432 + 8192 + hh * 4096) if i == 0 else None, (SHB, s * 8192 + hh * 4096) if i == 0 else None,
                              f"buffer_load_dwordx4 {v(VL16)}, {srd(SWS)}, s{SDO} offen offset:{i*1024} sc1 lds", cb))
        return self.dseq(items)
    def phase_c(self):
        p = self.p; o = self.o
        p.c("==== phase C ====")
        YA, BA, F = 16, 80, 144
        XE, GE, DE, OV, P10, PL, T = 186, 194, 198, 200, 201, 202, 204
        RW, RX, WA, RA = 176, 177, 180, 230
        ep = {}
        def setup():
            p = self.p
            p(f"v_lshrrev_b32 {v(T)}, 4, {v(VL)}\nv_and_b32 {v(T+1)}, 15, {v(VL)}")
            p(f"v_lshlrev_b32 {v(T+2)}, 10, {v(T)}\nv_lshl_add_u32 {v(T+2)}, {v(T+1)}, 3, {v(T+2)}")
            p(f"v_lshlrev_b32 {v(T+3)}, 2, {v(T)}\nv_lshlrev_b32 {v(T+4)}, 3, {v(T+1)}")
            p(f"v_lshlrev_b32 {v(OV)}, 1, {v(T+2)}")
            p(f"s_lshl_b32 s{SC}, s{STB}, 6\ns_lshl_b32 s{SA}, s{SWV}, 4\ns_add_u32 s{SC}, s{SC}, s{SA}")
            p(f"s_lshl_b32 s{SD}, s{SC}, 10\ns_lshl_b32 s{SA}, s{SCOL}, 7\ns_add_u32 s{SD}, s{SD}, s{SA}\nv_add_u32 {v(T+4)}, s{SA}, {v(T+4)}")
            p(f"s_lshl_b32 s{SA}, s{STB}, 12\ns_lshl_b32 s{SB_}, s{SWV}, 10\ns_add_u32 s{SB_}, s{SB_}, s{SA}\ns_add_u32 s{SB_}, s{SB_}, {PF}")
            self.poll_addr(PL, [(SB_, 8)])
            p.atom(f"s_cmp_eq_u32 s{SWV}, 3\ns_cselect_b64 vcc, -1, 0")
            p(f"v_cndmask_b32 {v(P10)}, {v(VL16)}, {v(VOOB)}, vcc")
            p(f"s_mul_i32 s{SE}, s{STB}, {2*45056}\ns_mul_i32 s{SA}, s{SWV}, {22*512}\ns_add_u32 s{SE}, s{SE}, s{SA}\ns_add_u32 s{SE}, s{SE}, {PB}")
            p(f"s_add_u32 s{SA}, s{SREG}, 4096\nv_and_b32 {v(RW)}, 31, {v(VL)}\nv_lshlrev_b32 {v(RW)}, 8, {v(RW)}\nv_add_u32 {v(RW)}, s{SA}, {v(RW)}")
            p(f"v_lshrrev_b32 {v(RX)}, 5, {v(VL)}\nv_and_b32 {v(RX+1)}, 7, {v(VL)}\nv_xor_b32 {v(RX)}, {v(RX)}, {v(RX+1)}\nv_lshlrev_b32 {v(RX)}, 4, {v(RX)}")
            for i in range(4): p(f"v_xor_b32 {v(WA+i)}, {32*i}, {v(RX)}\nv_add_u32 {v(WA+i)}, {v(WA+i)}, {v(RW)}")
            p(f"v_xor_b32 {v(T+1)}, {v(T+1)}, {v(T)}\nv_lshlrev_b32 {v(T+1)}, 4, {v(T+1)}")
            p(f"v_lshlrev_b32 {v(T)}, 8, {v(T)}\ns_lshl_b32 s{SA}, s{SWV}, 12\ns_add_u32 s{SA}, s{SA}, 4096\nv_add_u32 {v(T)}, s{SA}, {v(T)}")
            p(f"v_add_u32 {v(RA)}, {v(T)}, {v(T+1)}\nv_xor_b32 {v(T+1)}, 64, {v(T+1)}\nv_add_u32 {v(RA+1)}, {v(T)}, {v(T+1)}")
            p(f"v_add_u32 {v(RA+2)}, 81920, {v(RA)}\nv_add_u32 {v(RA+3)}, 81920, {v(RA+1)}")
        def eloads():
            for gi in range(4):
                p(f"s_add_u32 s{SA}, s{SD}, {gi*4096}")
                p.vmem(f"buffer_load_dwordx2 {v(XE+2*gi,2)}, {v(T+2)}, {srd(SX)}, s{SA} offen")
            p(f"s_lshl_b32 s{SA}, s{SC}, 2\ns_add_u32 s{SA}, s{SA}, {GATE}")
            for gi in range(4): p.vmem(f"buffer_load_dword {v(GE+gi)}, {v(T+3)}, {srd(SWS)}, s{SA} offen offset:{gi*16} sc1")
            ep['t'] = p.vmem(f"global_load_dwordx2 {v(DE,2)}, {v(T+4)}, {sp(PDSK)}")
        rt = {}
        def reads(n):
            s, ks = n // 4, n % 4; sl = (s & 1) ^ 1; fs = F + 16 * (n & 1); ops = []
            for k in range(2):
                def ra(k=k):
                    if ks == 0 and k == 0: p.wait(vm=self.yt[s])
                    rt[(n, 'a', k)] = p.lds(f"ds_read_b128 {v(fs+4*k,4)}, {v(self.CR+ks)} offset:{sl*18432+k*4096}")
                ops.append(ra)
                for a in range(2):
                    def rb(k=k, a=a):
                        rt[(n, 'b', k)] = p.lds(f"ds_read_b64_tr_b16 {v(fs+8+4*k+2*a,2)}, {v(self.HT+a)} offset:{sl*18432+(ks>>1)*4096+k*2048+(ks&1)*256}")
                    ops.append(rb)
            return ops
        T4 = [(0, 0), (1, 0), (1, 1), (0, 1)]
        def mfmas(n):
            fs = F + 16 * (n & 1); ops = []
            for (mt, nt) in T4:
                def m(mt=mt, nt=nt):
                    p.wait(lg=max(rt[(n, 'a', mt)], rt[(n, 'b', nt)]))
                    d = v(YA + 16 * (2 * mt + nt), 16)
                    p(f"{MF} {d}, {v(fs+4*mt,4)}, {v(fs+8+4*nt,4)}, {'0' if n == 0 else d}")
                ops.append(m)
            return ops
        PA = 96
        pt = {}
        def ploads():
            ops = []
            for nt in range(2):
                for kap in range(11):
                    def f(kap=kap, nt=nt):
                        if kap % 4 == 0: p(f"s_add_u32 s{SB_}, s{SE}, {nt*45056+kap*1024}")
                        pt[(kap, nt)] = p.vmem(f"buffer_load_dwordx4 {ar(PA+(kap*2+nt)*4,4)}, {v(P10 if kap == 10 else VL16)}, {srd(SWS)}, s{SB_} offen offset:{(kap%4)*1024} sc1")
                    ops.append(f)
            return ops
        def pflag():
            p.wait(vm=self.tp); self.flag(SLATE, 220)
        pl = {}
        def pf_issue(): pl['t'] = p.vmem(f"buffer_load_dword {v(PL+1)}, {v(PL)}, {srd(SWS)}, 0 offen sc1")
        def pf_check():
            l = p.label("pp"); d = p.label("pd")
            p.wait(vm=pl['t'])
            p(f"s_mov_b32 s{SSPIN}, 0")
            p.put(l)
            p(f"v_cmp_ne_u32 vcc, s{ST_T}, {v(PL+1)}\ns_and_b32 s{SF}, vcc_lo, 0xff\ns_cbranch_scc0 {d}")
            p(f"buffer_load_dword {v(PL+1)}, {v(PL)}, {srd(SWS)}, 0 offen sc1\ns_waitcnt vmcnt(0)")
            p(f"s_add_u32 s{SSPIN}, s{SSPIN}, 1\ns_cmp_lt_u32 s{SSPIN}, {SPIN}\ns_cbranch_scc1 {l}")
            p.put(d)
        su = self.cap(setup)
        self.run(reads(0))
        q = (len(su) + 2) // 3
        pend = [su[i * q:(i + 1) * q] for i in range(3)]
        nflag = o.get("nflag", 2)
        for n in range(16):
            if n == 3:
                p.wait(lg=p.lg - 1); d = self.y_dma(2); pend = [[eloads] + d[:5], d[5:9], d[9:13], d[13:]]
            if n == 7:
                p.wait(lg=p.lg - 1); self.stamp(11)
                d = self.y_dma(3); pend = [d[:5], d[5:9], d[9:13], d[13:] + [pf_issue]]
            if n == 11:
                pf_check(); self.stamp(12)
                d = ploads(); pend = [d[:4], d[4:8], d[8:12], d[12:16], d[16:19]]; prest = d[19:]
            seq = merge(mfmas(n), reads(n + 1), 0, 3) if n + 1 < 16 else mfmas(n)
            if pend: seq = merge(seq, pend.pop(0), 1)
            if n == nflag: seq = seq + [pflag]
            self.run(seq)
        self.stamp(13)
        def redw(acc, base, tiles):
            return [(lambda mt=mt, nt=nt, i=i: p.lds(f"ds_write_b128 {v(WA+i)}, {v(acc+16*(2*mt+nt)+4*i,4)} offset:{base+nt*8192+mt*128}"))
                    for (mt, nt) in tiles for i in range(4)]
        def bm(kap, mt, nt):
            def m():
                p.wait(vm=pt[(kap, nt)])
                d = v(BA + 16 * (2 * mt + nt), 16)
                p(f"{MF} {d}, {ar((kap*2+mt)*4,4)}, {ar(PA+(kap*2+nt)*4,4)}, {'0' if kap == 0 else d}")
            return m
        mm0 = [bm(kap, mt, 0) for kap in range(11) for mt in range(2)]
        self.run(prest)
        self.run(merge(mm0, redw(YA, 18432, T4), 2, 20))
        p.wait_lg_all(); p("s_barrier")
        tk = {}
        def R(gi, s): return 16 + 16 * gi + 4 * s
        def rd(gi, which):
            def f():
                p.wait(lg=p.lg - 12)
                for s in range(4):
                    tk[(gi, which)] = p.lds(f"ds_read_b128 {v(R(gi,s)+64*which,4)}, {v(RA+2*(s>>1)+(gi&1))} offset:{(s&1)*40960+(1-which)*18432+gi*1024}")
            return f
        DU, X, OM = 144, 148, 152
        def apart(gi):
            p = self.p
            y = R(gi, 0)
            for hh in (0, 2):
                p(f"v_pk_add_f32 {v(y+hh,2)}, {v(y+hh,2)}, {v(y+4+hh,2)}\nv_pk_add_f32 {v(y+8+hh,2)}, {v(y+8+hh,2)}, {v(y+12+hh,2)}")
            self.unpack(X, XE + 2 * gi); self.unpack(X + 2, XE + 2 * gi + 1)
            for hh in (0, 2): p(f"v_pk_add_f32 {v(y+hh,2)}, {v(y+hh,2)}, {v(y+8+hh,2)}")
            for hh in (0, 2): p(f"v_pk_mul_f32 {v(X+hh,2)}, {v(X+hh,2)}, {v(DU+hh,2)}")
            p(f"v_cvt_pk_bf16_f32 {v(y+4)}, {v(X)}, {v(X+1)}\nv_cvt_pk_bf16_f32 {v(y+5)}, {v(X+2)}, {v(X+3)}")
            self.unpack(X, y + 4); self.unpack(X + 2, y + 5)
            p(f"v_mov_b32 {v(y+6)}, {v(GE+gi)}\nv_sub_f32 {v(OM+2*gi)}, 1.0, {v(GE+gi)}")
            for hh in (0, 2): p(f"v_pk_add_f32 {v(y+hh,2)}, {v(y+hh,2)}, {v(X+hh,2)}")
            self.rnd(OM + 2 * gi, OM + 2 * gi)
            for hh in (0, 2): p(f"v_pk_mul_f32 {v(y+hh,2)}, {v(y+hh,2)}, {v(y+6,2)} op_sel_hi:[1,0]")
        fill = [rd(gi, 0) for gi in range(4)]
        fill += [lambda: p.wait(vm=ep['t'])] + self.cap(lambda: (self.unpack(DU, DE), self.unpack(DU + 2, DE + 1)))
        w0 = redw(BA, 0, [(0, 0), (1, 0)])
        for gi in range(4): fill += [lambda gi=gi: p.wait(lg=tk[(gi, 0)])] + merge(self.cap(lambda: apart(gi)), w0[2 * gi:2 * gi + 2])
        mm1 = [bm(kap, 0, 1) for kap in range(11)]
        mm2 = [bm(kap, 1, 1) for kap in range(11)]
        h = len(fill) * 6 // 10
        self.run(merge(mm1, fill[:h]))
        self.run(merge(mm2, fill[h:] + redw(BA, 0, [(0, 1)])))
        self.run(redw(BA, 0, [(1, 1)]))
        p.wait_lg_all(); p("s_barrier")
        self.stamp(14)
        for gi in range(4): rd(gi, 1)()
        p(f"s_lshl_b32 s{SD}, s{SD}, 1")
        for gi in range(4):
            y, b = R(gi, 0), R(gi, 0) + 64
            p.wait(lg=tk[(gi, 1)])
            for hh in (0, 2):
                p(f"v_pk_add_f32 {v(b+hh,2)}, {v(b+hh,2)}, {v(b+4+hh,2)}\nv_pk_add_f32 {v(b+8+hh,2)}, {v(b+8+hh,2)}, {v(b+12+hh,2)}")
            for hh in (0, 2): p(f"v_pk_add_f32 {v(b+hh,2)}, {v(b+hh,2)}, {v(b+8+hh,2)}")
            p(f"v_cvt_pk_bf16_f32 {v(b+4)}, {v(b)}, {v(b+1)}\nv_cvt_pk_bf16_f32 {v(b+5)}, {v(b+2)}, {v(b+3)}")
            self.unpack(b, b + 4); self.unpack(b + 2, b + 5)
            for hh in (0, 2): p(f"v_pk_mul_f32 {v(b+hh,2)}, {v(b+hh,2)}, {v(OM+2*gi,2)} op_sel_hi:[1,0]")
            p(f"v_cvt_pk_bf16_f32 {v(b+4)}, {v(b)}, {v(b+1)}\nv_cvt_pk_bf16_f32 {v(b+5)}, {v(b+2)}, {v(b+3)}")
            self.unpack(b, b + 4); self.unpack(b + 2, b + 5)
            for hh in (0, 2): p(f"v_pk_add_f32 {v(y+hh,2)}, {v(y+hh,2)}, {v(b+hh,2)}")
            if "pscale" in o:
                for k in range(4): p(f"v_mul_f32 {v(y+k)}, {f2u(1+float(o['pscale'])*1e-4)}, {v(y+k)}")
            if "padd" in o and gi == 0:
                p(f"s_cmp_eq_u32 s2, 0\ns_cselect_b32 s{SA}, {f2u(float(o['padd'])*1e-4)}, 0\nv_add_f32 {v(y)}, s{SA}, {v(y)}")
            p(f"s_add_u32 s{SA}, s{SD}, {gi*8192}")
            p.vmem(f"buffer_store_dwordx4 {v(y,4)}, {v(OV)}, {srd(SOUT)}, s{SA} offen{' ' + o['outmod'] if 'outmod' in o else ''}")
        ne = p.label("ne")
        p(f"s_lshl_b32 s{SA}, s{STB}, 3\ns_add_u32 s{SA}, s{SA}, s{SCOL}\ns_lshl_b32 s{SA}, s{SA}, 2\ns_add_u32 s{SA}, s{SA}, s{SWV}")
        p(f"s_cmp_eq_u32 s{SA}, {255*4}\ns_cbranch_scc0 {ne}")
        p(f"s_mov_b32 s{SA}, {EPOCH}")
        self.flag(SA, 220)
        p.put(ne)
        if o.get("stamps"):
            self.stamp(15)
            p(f"s_lshl_b32 s{SA}, s2, 2\ns_add_u32 s{SA}, s{SA}, s{SWV}\ns_lshl_b32 s{SA}, s{SA}, 8\ns_add_u32 s{SA}, s{SA}, {DBG}")
            p(f"v_lshlrev_b32 v254, 2, {v(VL)}")
            p.vmem(f"buffer_store_dword v255, v254, {srd(SWS)}, s{SA} offen")
        p.put(self.END)
        p("s_endpgm")

    def build(self):
        self.prologue()
        self.phase_z()
        self.p.vm_done = -1; self.p.lg_done = -1
        self.p("s_nop 15")
        self.phase_u()
        self.phase_g()
        self.phase_c()
        lines, added = hazard_pass([x for l in self.p.L for x in l.split(chr(10))])
        hdr = open("gated_mix__ssm_conv_s5__mixer_gmlp__prompt.s.ref").read().split("; Override")[0]
        s = hdr + "; @launch grid=(256,1,1) block=(256,1,1) lds=163840\n"
        s += '.amdgcn_target "amdgcn-amd-amdhsa--gfx950"\n.text\n'
        s += f".globl {NAME}\n.p2align 8\n.type {NAME},@function\n{NAME}:\n"
        s += "\n".join((l if l.endswith(":") else "    " + l) for l in lines) + "\n"
        s += f""".section .rodata,"a"
.p2align 6
.amdhsa_kernel {NAME}
  .amdhsa_next_free_vgpr 512
  .amdhsa_next_free_sgpr 102
  .amdhsa_accum_offset 256
  .amdhsa_group_segment_fixed_size 0
  .amdhsa_kernarg_size 144
  .amdhsa_user_sgpr_count 2
  .amdhsa_user_sgpr_kernarg_segment_ptr 1
  .amdhsa_system_sgpr_workgroup_id_x 1
  .amdhsa_float_denorm_mode_32 3
.end_amdhsa_kernel
"""
        return s, added

if __name__ == "__main__":
    out = sys.argv[1]
    opt = {}
    for a in sys.argv[2:]:
        k, _, val = a.partition("=")
        try: opt[k] = int(val) if val else 1
        except ValueError: opt[k] = val
    s, added = G(opt).build()
    open(out, "w").write(s)
    print("wrote", out, "nops added", added, "lines", s.count("\n"))
```

```python
import sys, math, struct
from core import *

NAME = "gated_mix__ssm_conv_s5__mixer_gmlp__prompt_kernel"
EPOCH = 0; GATE = 0x4000
ST = 0x10000; EG = 0x50000; DBG = 0x80000
Z2N = 0x100000; Z1 = 0x400000; PB = 0x700000; HB = 0xA00000
ZF = 0xE00000; HF = 0xE10000; PF = 0xE20000; Z1F = 0xE40000; WS_END = 0xE50000
OOB = 0x80000000
SPIN = 200000
SX, SW1, SWSP, SWS, SCRE, SCIM, SWOUT, SOUT = 4, 8, 12, 16, 20, 24, 28, 32
PLRE, PLIM, PLDT, PDSK, PBSP, PGW, PBRE, PBIM, PWIN = 36, 38, 40, 42, 44, 46, 48, 50, 52
ST_T = 100
SWV, SRB, SCOL, STB = 56, 57, 58, 59
SA, SB_, SC, SD = 60, 61, 62, 63
SSTMP = 64
SDO, SWB, SPB0, SPST, SPSP = 68, 69, 70, 71, 72
SXB, SW1B, SXL, SWL = 73, 74, 75, 76
SPC = 77
SCB, SHB = 78, 79
SK = 80
SREG = 96
SE, SF = 97, 98
SSPIN = 99
SLATE = 101
SJ = 3
SGB = 95
SZI = 72
SPB = 90
def srd(b): return f"s[{b}:{b+3}]"
def v(a, n=1): return f"v{a}" if n == 1 else f"v[{a}:{a+n-1}]"
def ar(a, n=1): return f"a{a}" if n == 1 else f"a[{a}:{a+n-1}]"
def sp(a): return f"s[{a}:{a+1}]"
VL, VL16, VOOB = 1, 2, 3
LOG2E = 1.4426950408889634
def f2u(x): return struct.unpack("<I", struct.pack("<f", x))[0]
MF = "v_mfma_f32_32x32x16_bf16"

class G:
    def __init__(self, opt):
        self.o = opt
        self.p = Prog()

    def stamp(self, k):
        if self.o.get("stamps"):
            p = self.p
            p(f"s_memrealtime s[{SSTMP}:{SSTMP+1}]\ns_memtime s[{SSTMP+2}:{SSTMP+3}]"); p.wait_lg_all()
            p(f"v_writelane_b32 v255, s{SSTMP}, {k}\nv_writelane_b32 v255, s{SSTMP+2}, {k+32}")
    def cap(self, fn):
        sub = Prog(); save = self.p; self.p = sub
        fn()
        self.p = save
        assert sub.vm == 0 and sub.lg == 0
        return [(lambda l=l: self.p(l)) for l in sub.L]
    def run(self, ops):
        for op in ops: op()
    def dseq(self, items):
        p = self.p
        def setup(it):
            if it[0] is not None: p(f"s_add_u32 m0, s{it[0][0]}, {it[0][1]}")
            if it[1] is not None: p(f"s_add_u32 s{SDO}, s{it[1][0]}, {it[1][1]}")
        ops = [lambda: setup(items[0])]
        for i, it in enumerate(items):
            def f(i=i, it=it):
                t = p.vmem(it[2])
                if it[3]: it[3](t)
                if i + 1 < len(items): setup(items[i + 1])
            ops.append(f)
        return ops
    def poll_addr(self, vt, groups):
        p = self.p; n0 = 0
        p(f"v_mov_b32 {v(vt)}, {v(VOOB)}")
        for (sr, n) in groups:
            if n == 1: p(f"v_writelane_b32 {v(vt)}, s{sr}, {n0}")
            else:
                p(f"s_sub_u32 s{sr}, s{sr}, {n0*128}\nv_lshl_add_u32 {v(vt+1)}, {v(VL)}, 7, s{sr}")
                m = ((1 << n) - 1) << n0
                p(f"s_mov_b32 vcc_lo, {m & 0xffffffff}\ns_mov_b32 vcc_hi, {m >> 32}\nv_cndmask_b32 {v(vt)}, {v(vt)}, {v(vt+1)}, vcc")
            n0 += n
        return n0
    def poll(self, vt, n):
        p = self.p
        l = p.label("poll"); d = p.label("pd")
        p(f"s_mov_b32 s{SSPIN}, 0")
        p.put(l)
        p.vmem(f"buffer_load_dword {v(vt+1)}, {v(vt)}, {srd(SWS)}, 0 offen sc1")
        p.wait_vm_all()
        p(f"v_cmp_ne_u32 vcc, s{ST_T}, {v(vt+1)}")
        if n <= 32: p(f"s_and_b32 s{SF}, vcc_lo, {(1<<n)-1}")
        else: p(f"s_and_b32 vcc_hi, vcc_hi, {(1<<(n-32))-1}\ns_or_b32 s{SF}, vcc_lo, vcc_hi")
        p(f"s_cbranch_scc0 {d}")
        p(f"s_add_u32 s{SSPIN}, s{SSPIN}, 1\ns_cmp_lt_u32 s{SSPIN}, {SPIN}\ns_cbranch_scc1 {l}")
        p.put(d)
    def flag_prep(self, vt):
        p = self.p
        p(f"v_mov_b32 {v(vt)}, s{ST_T}\nv_mov_b32 {v(vt+1)}, {v(VOOB)}\nv_writelane_b32 {v(vt+1)}, 0, 0")
    def flag(self, off_sreg, vt):
        self.p.vmem(f"buffer_store_dword {v(vt)}, {v(vt+1)}, {srd(SWS)}, s{off_sreg} offen sc1")
    def xhalf_sum(self, a, t):
        self.p(f"v_mov_b32 {v(t)}, {v(a)}\nv_permlane32_swap_b32 {v(a)}, {v(t)}\nv_add_f32 {v(a)}, {v(a)}, {v(t)}")
    def rnd(self, d, s):
        self.p(f"v_cvt_pk_bf16_f32 {v(d)}, {v(s)}, {v(s)}\nv_lshlrev_b32 {v(d)}, 16, {v(d)}")
    def unpack(self, d, s):
        self.p(f"v_and_b32 {v(d+1)}, 0xffff0000, {v(s)}\nv_lshlrev_b32 {v(d)}, 16, {v(s)}")
    def plain_read_addr(self, dst4, base_sreg, t):
        p = self.p
        p(f"v_and_b32 {v(t)}, 31, {v(VL)}\nv_lshlrev_b32 {v(t)}, 7, {v(t)}")
        if base_sreg is not None: p(f"v_add_u32 {v(t)}, s{base_sreg}, {v(t)}")
        p(f"v_bfe_u32 {v(t+1)}, {v(VL)}, 1, 3\nv_lshrrev_b32 {v(dst4)}, 5, {v(VL)}\nv_xor_b32 {v(t+1)}, {v(t+1)}, {v(dst4)}")
        p(f"v_lshlrev_b32 {v(t+1)}, 4, {v(t+1)}")
        for ks in range(4):
            p(f"v_xor_b32 {v(dst4+ks)}, {32*ks}, {v(t+1)}\nv_add_u32 {v(dst4+ks)}, {v(dst4+ks)}, {v(t)}")
    def plain_dma_addr(self, dst4, rowbytes, t, rowstep=8):
        p = self.p
        p(f"v_lshrrev_b32 {v(t)}, 3, {v(VL)}\nv_mul_u32_u24 {v(t)}, {rowbytes}, {v(t)}")
        self.plain_dma_addr2(dst4, t, t + 1, rowstep * rowbytes)
    def plain_dma_addr2(self, dst4, vrow, t, step):
        p = self.p
        p(f"v_and_b32 {v(t)}, 7, {v(VL)}\nv_lshrrev_b32 {v(dst4)}, 4, {v(VL)}\nv_xor_b32 {v(t)}, {v(t)}, {v(dst4)}\nv_lshlrev_b32 {v(t)}, 4, {v(t)}")
        p(f"v_add_u32 {v(dst4)}, {v(t)}, {v(vrow)}")
        p(f"v_xor_b32 {v(t)}, 64, {v(t)}\nv_add_u32 {v(dst4+1)}, {v(t)}, {v(vrow)}")
        p(f"v_add_u32 {v(dst4+2)}, {2*(step-1024)}, {v(dst4)}\nv_add_u32 {v(dst4+3)}, {3*(step-1024)}, {v(dst4+1)}\nv_add_u32 {v(dst4+1)}, {step-1024}, {v(dst4+1)}")
    def panel_tr_addr(self, dst2, base_sreg, t, perm):
        p = self.p
        p(f"v_lshrrev_b32 {v(t)}, 5, {v(VL)}\nv_lshlrev_b32 {v(t)}, 10, {v(t)}")
        p(f"v_bfe_u32 {v(t+1)}, {v(VL)}, 2, 2\nv_lshl_add_u32 {v(t)}, {v(t+1)}, 7, {v(t)}")
        p(f"v_bfe_u32 {v(t+1)}, {v(VL)}, 4, 1\nv_lshl_add_u32 {v(t)}, {v(t+1)}, 5, {v(t)}")
        if perm:
            p(f"v_and_b32 {v(t+1)}, 1, {v(VL)}\nv_lshl_add_u32 {v(t)}, {v(t+1)}, 4, {v(t)}")
            p(f"v_bfe_u32 {v(t+1)}, {v(VL)}, 1, 1\nv_lshl_add_u32 {v(t)}, {v(t+1)}, 3, {v(t)}")
        else:
            p(f"v_and_b32 {v(t+1)}, 3, {v(VL)}\nv_lshl_add_u32 {v(t)}, {v(t+1)}, 3, {v(t)}")
        p(f"v_bfe_u32 {v(t+1)}, {v(VL)}, 3, 1\nv_lshlrev_b32 {v(t+1)}, 6, {v(t+1)}")
        if base_sreg is not None: p(f"v_add_u32 {v(t)}, s{base_sreg}, {v(t)}")
        p(f"v_add_u32 {v(dst2)}, {v(t)}, {v(t+1)}\nv_xor_b32 {v(t+1)}, 64, {v(t+1)}\nv_add_u32 {v(dst2+1)}, {v(t)}, {v(t+1)}")
    def unit_tr_addr(self, dst2, base_sreg, t, perm, flip_sreg=None):
        p = self.p
        p(f"v_bfe_u32 {v(t)}, {v(VL)}, 4, 1")
        if flip_sreg is not None: p(f"v_xor_b32 {v(t)}, s{flip_sreg}, {v(t)}")
        p(f"v_lshlrev_b32 {v(t)}, 1, {v(t)}")
        p(f"v_bfe_u32 {v(t+1)}, {v(VL)}, {0 if perm else 1}, 1\nv_or_b32 {v(t)}, {v(t)}, {v(t+1)}")
        p(f"v_lshrrev_b32 {v(t+1)}, 5, {v(VL)}\nv_lshlrev_b32 {v(t+1)}, 1, {v(t+1)}\nv_xor_b32 {v(t+1)}, {v(t+1)}, {v(t)}")
        p(f"v_lshlrev_b32 {v(t)}, 9, {v(t)}")
        p(f"v_bfe_u32 {v(t+2)}, {v(VL)}, 2, 2\nv_lshl_add_u32 {v(t)}, {v(t+2)}, 4, {v(t)}")
        p(f"v_bfe_u32 {v(t+2)}, {v(VL)}, {1 if perm else 0}, 1\nv_lshl_add_u32 {v(t)}, {v(t+2)}, 3, {v(t)}")
        if base_sreg is not None: p(f"v_add_u32 {v(t)}, s{base_sreg}, {v(t)}")
        p(f"v_lshl_add_u32 {v(dst2)}, {v(t+1)}, 6, {v(t)}")
        p(f"v_xor_b32 {v(t+1)}, 1, {v(t+1)}\nv_lshl_add_u32 {v(dst2+1)}, {v(t+1)}, 6, {v(t)}")

    def gemm_loop(self, nslot, reads, mfmas, dma, tick, rfront, npro, extra, valu=None):
        p = self.p
        p.wait(vm=tick[0]); p("s_barrier")
        self.stamp(20)
        self.run(reads(0))
        d = []
        for st in range(npro, nslot): d += dma(st)
        q = (len(d) + 2) // 3
        pend = [d[i * q:(i + 1) * q] for i in range(3)]
        for n in range(32):
            rd = []
            if n + 1 < 32:
                if (n + 1) % 4 == 0:
                    st = (n + 1) // 4
                    p.wait(vm=tick[st], lg=p.lg - 1); p("s_barrier")
                    d = dma(st - 1 + nslot) if st - 1 + nslot < 8 else extra.get(st, lambda: [])()
                    q = (len(d) + 3) // 4
                    pend = [d[i * q:(i + 1) * q] for i in range(4)]
                rd = reads(n + 1)
            seq = merge(mfmas(n), rd, 0, rfront)
            if pend: seq = merge(seq, pend.pop(0), len(seq) // 2)
            if valu and n in valu: seq = merge(seq, valu[n])
            self.run(seq)

    def gate(self, GX, GW, GU, GS, GT):
        p = self.p
        for i in range(4):
            for r in range(4):
                p(f"v_dot2_f32_bf16 {v(GS+r)}, {v(GX+4*r+i)}, {v(GW+i)}, {'0' if i == 0 else v(GS+r)}")
        p("s_nop 2")
        for mod in ["quad_perm:[1,0,3,2]", "quad_perm:[2,3,0,1]", "row_half_mirror", "row_mirror"]:
            for r in range(4): p(f"v_add_f32_dpp {v(GS+r)}, {v(GS+r)}, {v(GS+r)} {mod} row_mask:0xf bank_mask:0xf")
        for sw in ["v_permlane16_swap_b32", "v_permlane32_swap_b32"]:
            for r in range(4): p(f"v_mov_b32 {v(GT+r)}, {v(GS+r)}")
            for r in range(4): p(f"{sw} {v(GS+r)}, {v(GT+r)}")
            for r in range(4): p(f"v_add_f32 {v(GS+r)}, {v(GS+r)}, {v(GT+r)}")
        for r in range(4): p(f"v_mul_f32 {v(GS+r)}, {f2u(-LOG2E)}, {v(GS+r)}")
        for r in range(4): p(f"v_exp_f32 {v(GS+r)}, {v(GS+r)}")
        for r in range(4): p(f"v_add_f32 {v(GS+r)}, 1.0, {v(GS+r)}")
        for r in range(4): p(f"v_rcp_f32 {v(GS+r)}, {v(GS+r)}")
        p(f"v_mov_b32 {v(GT)}, {v(VOOB)}\nv_writelane_b32 {v(GT)}, 0, 0")

    def w_dma_addr(self, dst3, t, colbase):
        p = self.p
        for i in range(3):
            p(f"v_add_u32 {v(t)}, {64*i}, {v(VL)}\nv_mul_u32_u24 {v(t+1)}, 171, {v(t)}\nv_lshrrev_b32 {v(t+1)}, 11, {v(t+1)}")
            p(f"v_mul_u32_u24 {v(t+2)}, 12, {v(t+1)}\nv_sub_u32 {v(t)}, {v(t)}, {v(t+2)}\nv_cmp_eq_u32 vcc, 11, {v(t)}")
            p(f"v_mul_u32_u24 {v(t+1)}, 2752, {v(t+1)}\nv_lshl_add_u32 {v(t)}, {v(t)}, 4, {v(t+1)}")
            if colbase - 1024 * i: p(f"v_add_u32 {v(t)}, {colbase-1024*i}, {v(t)}")
            p(f"v_cndmask_b32 {v(dst3+i)}, {v(t)}, {v(VOOB)}, vcc")
    def w_tr_addr(self, dst, base, t):
        p = self.p
        p(f"v_lshrrev_b32 {v(t)}, 5, {v(VL)}\nv_bfe_u32 {v(t+1)}, {v(VL)}, 2, 2\nv_lshl_add_u32 {v(t)}, {v(t)}, 3, {v(t+1)}\nv_mul_u32_u24 {v(t)}, 192, {v(t)}")
        p(f"v_bfe_u32 {v(t+1)}, {v(VL)}, 4, 1\nv_lshl_add_u32 {v(t)}, {v(t+1)}, 5, {v(t)}")
        p(f"v_and_b32 {v(t+1)}, 1, {v(VL)}\nv_lshl_add_u32 {v(t)}, {v(t+1)}, 4, {v(t)}")
        p(f"v_bfe_u32 {v(t+1)}, {v(VL)}, 1, 1\nv_lshl_add_u32 {v(t)}, {v(t+1)}, 3, {v(t)}")
        p(f"v_add_u32 {v(dst)}, {base}, {v(t)}")
    def valid_masks(self):
        MA, MB = SK + 2, SK + 4
        self.p.atom(f"s_cmp_lt_u32 s{SCOL}, 7\ns_mov_b32 s{MA}, -1\ns_cselect_b32 s{MA+1}, -1, 0\ns_cselect_b32 s{MB}, -1, 0\ns_mov_b32 s{MB+1}, 0\n"
                    f"s_mov_b32 s{SK+6}, {f2u(1/72)}\ns_cselect_b32 s{SK+6}, {f2u(1/88)}, s{SK+6}")
        c1 = -2 * LOG2E * 0.7978845608028654
        self.p(f"s_mov_b32 s{SK}, {f2u(c1*0.044715)}\nv_mov_b32 {v(self.VC0)}, {f2u(c1)}")

    def gelu_pair(self, a, t, out_packed=None):
        p = self.p
        p(f"v_pk_mul_f32 {v(t,2)}, {v(a,2)}, {v(a,2)}")
        p(f"v_pk_fma_f32 {v(t,2)}, {v(t,2)}, {sp(SK)}, {v(self.VC0,2)} op_sel_hi:[1,0,0]")
        p(f"v_pk_mul_f32 {v(t,2)}, {v(t,2)}, {v(a,2)}")
        p(f"v_exp_f32 {v(t)}, {v(t)}\nv_exp_f32 {v(t+1)}, {v(t+1)}")
        p(f"v_pk_add_f32 {v(t,2)}, {v(t,2)}, 1.0 op_sel_hi:[1,0]")
        p(f"v_rcp_f32 {v(t)}, {v(t)}\nv_rcp_f32 {v(t+1)}, {v(t+1)}")
        if out_packed is not None:
            p(f"v_pk_mul_f32 {v(t,2)}, {v(t,2)}, {v(a,2)}")
            p(f"v_cvt_pk_bf16_f32 {v(out_packed)}, {v(t)}, {v(t+1)}")
        else:
            p(f"v_pk_mul_f32 {v(a,2)}, {v(t,2)}, {v(a,2)}")
    def gelu_many(self, pairs, temps, outs=None):
        p = self.p; ng = len(temps)
        for g0 in range(0, len(pairs), ng):
            streams = []
            for k, i in enumerate(range(g0, min(g0 + ng, len(pairs)))):
                sub = Prog(); save = self.p; self.p = sub
                self.gelu_pair(pairs[i], temps[k], None if outs is None else outs[i])
                self.p = save
                streams.append(sub.L)
            for j in range(len(streams[0])):
                for s in streams: p(s[j])

    VWD, VWR, VWA, VC0 = 240, 244, 248, 252
    def wsp_setup(self, t):
        p = self.p
        self.plain_dma_addr(self.VWD, 4096, t)
        p(f"s_and_b32 s{SA}, s{SWV}, 1\ns_lshl_b32 s{SA}, s{SA}, 12")
        self.plain_read_addr(self.VWR, SA, t)
        p(f"s_lshl_b32 s{SWB}, s{STB}, 18\ns_lshl_b32 s{SB_}, s{SWV}, 10\ns_add_u32 s{SWB}, s{SWB}, s{SB_}")
        self.wsp_t = {}
    def piece(self, st): return (SPB + st % 5, 0)
    def wsp_dma(self, st):
        if self.o.get("x_nowsp") and st >= 2:
            self.wsp_t[st] = -1
            return [lambda: None] * 9
        items = []; sr, im = self.piece(st)
        for hh in range(2):
            for i in range(4):
                def cb(t): self.wsp_t[st] = t
                items.append(((sr, im + hh * 4096) if i == 0 else None, (SWB, st * 128 + hh * 131072) if i == 0 else None,
                              f"buffer_load_dwordx4 {v(self.VWD+i)}, {srd(SWSP)}, s{SDO} offen offset:{i*1024} lds", cb))
        return self.dseq(items)
    def wsp_read(self, st):
        if self.o.get("x_nord"): return [lambda: None]
        p = self.p; sr, im = self.piece(st)
        def pre():
            for ks in range(4): p(f"v_add_u32 {v(self.VWA+ks)}, s{sr}, {v(self.VWR+ks)}")
            p.wait(vm=self.wsp_t[st], lg=p.lg - 8)
        ops = [pre]
        for nt in range(2):
            for ks in range(4):
                def f(ks=ks, nt=nt):
                    p.lds(f"ds_read_b128 {ar(((st*4+ks)*2+nt)*4,4)}, {v(self.VWA+ks)} offset:{im}")
                    if nt == 0: p(f"v_xor_b32 {v(self.VWA+ks)}, 4096, {v(self.VWA+ks)}")
                ops.append(f)
        return ops

    def prologue(self):
        p = self.p
        self.END = p.label("end")
        p(f"s_cmp_ge_u32 s2, 256\ns_cbranch_scc1 {self.END}")
        p(f"s_load_dwordx2 {sp(SX)}, s[0:1], 0\ns_load_dwordx2 {sp(PWIN)}, s[0:1], 80\ns_load_dwordx4 s[{PBRE}:{PBRE+3}], s[0:1], 24")
        p(f"s_load_dwordx2 {sp(PGW)}, s[0:1], 112\ns_load_dwordx4 s[{PLRE}:{PLRE+3}], s[0:1], 8\ns_load_dwordx2 {sp(PLDT)}, s[0:1], 56\ns_load_dwordx2 {sp(SWS)}, s[0:1], 136")
        p(f"v_lshrrev_b32 v2, 6, v0\nv_and_b32 {v(VL)}, 63, v0\nv_readfirstlane_b32 s{SWV}, v2\nv_lshlrev_b32 {v(VL16)}, 4, {v(VL)}\nv_mov_b32 {v(VOOB)}, {OOB}")
        if self.o.get("stamps"):
            p("v_mov_b32 v255, 0")
            self.stamp(17)
        p(f"s_and_b32 s{SA}, s2, 7\ns_lshr_b32 s{SB_}, s2, 3")
        p(f"s_and_b32 s{SC}, s{SA}, 1\ns_lshl_b32 s{SC}, s{SC}, 2\ns_and_b32 s{SD}, s{SB_}, 3\ns_add_u32 s{SCOL}, s{SC}, s{SD}")
        p(f"s_lshr_b32 s{SA}, s{SA}, 1")
        p(f"s_lshr_b32 s{SC}, s{SB_}, 2\ns_lshl_b32 s{SD}, s{SA}, 3\ns_add_u32 s{STB}, s{SD}, s{SC}")
        p(f"s_and_b32 s{SC}, s{SC}, 3\ns_lshl_b32 s{SD}, s{SA}, 2\ns_add_u32 s{SRB}, s{SD}, s{SC}")
        if self.o.get("map", 1) == 1:
            p(f"s_and_b32 s{SD}, s2, 7\ns_lshl_b32 s{SD}, s{SD}, 2\ns_lshr_b32 s{STB}, s{SB_}, 3\ns_add_u32 s{STB}, s{STB}, s{SD}\ns_and_b32 s{SJ}, s{SB_}, 7")
        else: p(f"s_mov_b32 s{SJ}, s{SCOL}")
        p(f"s_mov_b32 s{SX+2}, 2097152\ns_mov_b32 s{SX+3}, 0x20000\ns_mov_b32 s{SW1+3}, 0x20000")
        self.LU = p.label("U"); self.LG = p.label("G")
        p(f"s_cmp_ge_u32 s{SB_}, 16\ns_cbranch_scc1 {self.LU}")
    def code_prefetch(self, va, vd):
        if not self.o.get("cpf", 1): return
        p = self.p
        sk = p.label("cpf"); here = p.label("pc")
        nsl = self.o.get("cpfn", 6)
        p(f"s_lshr_b32 s{SA}, s2, 3\ns_and_b32 s{SA}, s{SA}, 15\ns_lshl_b32 s{SA}, s{SA}, 2\ns_add_u32 s{SA}, s{SA}, s{SWV}")
        p(f"s_cmp_ge_u32 s{SA}, {nsl}\ns_cbranch_scc1 {sk}")
        p(f"s_getpc_b64 s[{SSTMP}:{SSTMP+1}]")
        p.put(here)
        p(f"s_sub_u32 s{SSTMP}, s{SSTMP}, {here}-{NAME}\ns_subb_u32 s{SSTMP+1}, s{SSTMP+1}, 0")
        p(f"s_lshl_b32 s{SA}, s{SA}, 13\nv_lshl_add_u32 {v(va)}, {v(VL)}, 7, s{SA}\nv_min_u32 {v(va)}, {self.END}-{NAME}, {v(va)}")
        p(f"global_load_dword {v(vd)}, {v(va)}, s[{SSTMP}:{SSTMP+1}]")
        p.put(sk)
    def late_args(self):
        p = self.p
        for (r, off) in [(SWSP, 88), (SCRE, 40), (SCIM, 48), (SWOUT, 104), (SOUT, 120), (PDSK, 64), (PBSP, 96)]:
            p(f"s_load_dwordx2 {sp(r)}, s[0:1], {off}")
        p(f"s_load_dword s{ST_T}, {sp(SWS)}, {EPOCH}")
        for (r, n) in [(SWSP, 8388608), (SWS, WS_END), (SCRE, 524288), (SCIM, 524288), (SWOUT, 704512), (SOUT, 4194304)]:
            p(f"s_mov_b32 s{r+2}, {n}\ns_mov_b32 s{r+3}, 0x20000")
    def epoch2(self):
        p = self.p
        p.wait_lg_all()
        p(f"s_mul_i32 s{ST_T}, s{ST_T}, 0x9E3779B1\ns_add_u32 s{ST_T}, s{ST_T}, 0x7F4A7C15")

    def touch_wsp(self, va, vd):
        p = self.p
        p(f"v_lshlrev_b32 {v(va)}, 7, {v(VL)}\ns_lshr_b32 s{SB_}, s2, 3\ns_lshl_b32 s{SB_}, s{SB_}, 2\ns_add_u32 s{SB_}, s{SB_}, s{SWV}\ns_lshl_b32 s{SB_}, s{SB_}, 13")
        p(f"s_and_b32 s{SA}, s2, 7\ns_lshl_b32 s{SA}, s{SA}, 20\ns_add_u32 s{SA}, s{SA}, s{SB_}")
        p.vmem(f"buffer_load_dword {v(vd)}, {v(va)}, {srd(SWSP)}, s{SA} offen")
    def touch_c(self, va, vd):
        p = self.p
        p(f"v_lshlrev_b32 {v(va)}, 7, {v(VL)}\ns_lshr_b32 s{SB_}, s2, 3\ns_lshl_b32 s{SB_}, s{SB_}, 2\ns_add_u32 s{SB_}, s{SB_}, s{SWV}\ns_lshl_b32 s{SA}, s{SB_}, 13")
        p.vmem(f"buffer_load_dword {v(vd)}, {v(va)}, {srd(SWOUT)}, s{SA} offen")
        p.vmem(f"buffer_load_dword {v(vd)}, {v(va)}, {srd(SCRE)}, s{SA} offen")
        p.vmem(f"buffer_load_dword {v(vd)}, {v(va)}, {srd(SCIM)}, s{SA} offen")
        p(f"s_add_u32 s{SA}, s{SA}, 524288")
        p.vmem(f"buffer_load_dword {v(vd)}, {v(va)}, {srd(SWOUT)}, s{SA} offen")
    GTR, GPL = 236, 238
    def g_early(self, t):
        p = self.p
        p(f"s_lshr_b32 s{SA}, s{SWV}, 1")
        self.unit_tr_addr(self.GTR, SREG, t, True, flip_sreg=SA)
        p(f"s_lshl_b32 s{SA}, s{SJ}, 13\ns_add_u32 s{SA}, s{SA}, {ZF}\ns_lshl_b32 s{SB_}, s{SWV}, 11\ns_add_u32 s{SB_}, s{SB_}, s{SA}")
        self.poll_addr(self.GPL, [(SB_, 16)])
        p(f"s_lshl_b32 s{SA}, s{STB}, 8\ns_add_u32 s{SA}, s{SA}, {ZF}")
        p(f"v_bfe_u32 {v(t)}, {v(VL)}, 1, 3\nv_lshlrev_b32 {v(t)}, 13, {v(t)}\nv_and_b32 {v(t+1)}, 1, {v(VL)}\nv_lshl_add_u32 {v(t)}, {v(t+1)}, 7, {v(t)}\nv_add_u32 {v(t)}, s{SA}, {v(t)}")
        p(f"s_mov_b32 vcc_lo, 0xffff0000\ns_mov_b32 vcc_hi, 0\nv_cndmask_b32 {v(self.GPL)}, {v(self.GPL)}, {v(t)}, vcc")
        p(f"s_lshl_b32 s{SA}, s{SJ}, 6\ns_lshl_b32 s{SB_}, s{STB}, 1\ns_add_u32 s{SA}, s{SA}, s{SB_}\ns_and_b32 s{SB_}, s{SWV}, 1\ns_add_u32 s{SZI}, s{SA}, s{SB_}")
        p(f"s_lshl_b32 s{SA}, s{SZI}, 7\ns_add_u32 s{SA}, s{SA}, {Z1F}\nv_writelane_b32 {v(self.GPL)}, s{SA}, 32")
        p(f"s_lshl_b32 s{SA}, s{SJ}, 6\ns_lshl_b32 s{SB_}, s{SWV}, 4\ns_add_u32 s{SA}, s{SA}, s{SB_}\ns_mul_i32 s{SGB}, s{SA}, 5632\ns_add_u32 s{SGB}, s{SGB}, {Z2N}")
    def g_poll_issue(self):
        self.gp = self.p.vmem(f"buffer_load_dword {v(self.GPL+1)}, {v(self.GPL)}, {srd(SWS)}, 0 offen sc1")

    def phase_z(self):
        p = self.p; o = self.o
        ACC, FA, FB, XR, WR, XD, WD, T = 16, 64, 88, 96, 100, 104, 108, 112
        p.c("==== phase A: Z ====")
        self.plain_dma_addr(XD, 1024, T)
        p(f"s_lshl_b32 s{SXB}, s{SRB}, 17\ns_lshl_b32 s{SA}, s{SWV}, 15\ns_add_u32 s{SXB}, s{SXB}, s{SA}")
        p(f"s_mul_i32 s{SREG}, s{SWV}, 40960")
        tick = {}
        def xdma(st, cb=None):
            return [((SREG, (st & 3) * 4096) if i == 0 else None, (SXB, st * 128) if i == 0 else None,
                     f"buffer_load_dwordx4 {v(XD+i)}, {srd(SX)}, s{SDO} offen offset:{i*1024} lds", cb) for i in range(4)]
        def wdma(st, cb=None):
            return [((SWL, (st & 3) * 40960) if i == 0 else None, (SW1B, st * 64 * 2752) if i == 0 else None,
                     f"buffer_load_dwordx4 {v(WD+i)}, {srd(SW1)}, s{SDO} offen offset:{i*1024} lds", cb) for i in range(3)]
        def dma(st):
            def cb(t): tick[st] = t
            return self.dseq(wdma(st) + xdma(st, cb))
        self.w_dma_addr(WD, T, 1376)
        p(f"s_mul_i32 s{SW1B}, s{SWV}, {16*2752}\ns_mul_i32 s{SA}, s{SCOL}, 176\ns_add_u32 s{SW1B}, s{SW1B}, s{SA}")
        p(f"s_mul_i32 s{SWL}, s{SWV}, 3072\ns_add_u32 s{SWL}, s{SWL}, 16384\ns_mov_b32 s{SW1+2}, {512*2752}")
        p.wait_lg_all()
        p(f"s_mov_b64 {sp(SW1)}, {sp(PWIN)}")
        npro = o.get("npro", 3)
        self.code_prefetch(170, 171)
        self.run(dma(0))
        self.late_args()
        def setup():
            self.plain_read_addr(XR, SREG, T)
            self.w_tr_addr(WR, 16384, T)
            self.p(f"v_add_u32 {v(WR+1)}, 81920, {v(WR)}")
            self.wsp_setup(T)
            self.p(f"s_add_u32 s{SPB}, s{SREG}, 32768\ns_mov_b32 s{SPB+1}, s{SREG}\ns_add_u32 s{SPB+2}, s{SREG}, 8192\ns_add_u32 s{SPB+3}, s{SREG}, 16384\ns_add_u32 s{SPB+4}, s{SREG}, 24576")
            self.valid_masks()
        d = []
        for st in range(1, npro): d += dma(st)
        self.run(merge(self.cap(setup), d))
        self.epoch2()
        self.stamp(0)
        rt = {}
        def reads(n):
            st, ks = n // 4, n % 4; sl = st & 3; s = n & 1; ops = []
            def rb(): rt[(n, 'b')] = p.lds(f"ds_read_b128 {v(FB+4*s,4)}, {v(XR+ks)} offset:{sl*4096}")
            ops.append(rb)
            for mt in range(3):
                for a in range(2):
                    def ra(mt=mt, a=a):
                        rt[(n, mt)] = p.lds(f"ds_read_b64_tr_b16 {v(FA+12*s+4*mt+2*a,2)}, {v(WR+(sl>>1))} offset:{(sl&1)*40960+ks*3072+a*768+mt*64}")
                    ops.append(ra)
            return ops
        def mfmas(n):
            s = n & 1; ops = []
            for mt in range(3):
                def m(mt=mt):
                    p.wait(lg=rt[(n, mt)])
                    c = "0" if n == 0 else v(ACC + 16 * mt, 16)
                    p(f"{MF} {v(ACC+16*mt,16)}, {v(FA+12*s+4*mt,4)}, {v(FB+4*s,4)}, {c}")
                ops.append(m)
            return ops
        GX, GW, GU, GS, GT = 128, 144, 148, 156, 160
        gt = {}
        def gload():
            p(f"s_lshl_b32 s{SE}, s{SRB}, 2\ns_add_u32 s{SE}, s{SE}, s{SWV}\ns_lshl_b32 s{SE}, s{SE}, 3\ns_add_u32 s{SE}, s{SE}, s{SCOL}\ns_lshl_b32 s{SA}, s{SE}, 12")
            for r in range(4): p.vmem(f"buffer_load_dwordx4 {v(GX+4*r,4)}, {v(VL16)}, {srd(SX)}, s{SA} offen offset:{r*1024}")
            gt['t'] = p.vmem(f"global_load_dwordx4 {v(GW,4)}, {v(VL16)}, {sp(PGW)}")
        def gstore():
            p(f"s_lshl_b32 s{SA}, s{SE}, 4\ns_add_u32 s{SA}, s{SA}, {GATE}")
            p.vmem(f"buffer_store_dwordx4 {v(GS,4)}, {v(GT)}, {srd(SWS)}, s{SA} offen sc1")
        gops = [lambda: p.wait(vm=gt['t'])] + self.cap(lambda: self.gate(GX, GW, GU, GS, GT)) + [gstore]
        valu = {28: [gload]}
        def touch_u():
            p(f"v_lshlrev_b32 {v(170)}, 7, {v(VL)}\ns_lshr_b32 s{SB_}, s2, 3\ns_lshl_b32 s{SB_}, s{SB_}, 2\ns_add_u32 s{SB_}, s{SB_}, s{SWV}\ns_lshl_b32 s{SB_}, s{SB_}, 13")
            p(f"s_and_b32 s{SA}, s2, 7\ns_lshl_b32 s{SA}, s{SA}, 20\ns_add_u32 s{SA}, s{SA}, s{SB_}\ns_add_u32 s{SA}, s{SA}, {1<<19}")
            p.vmem(f"buffer_load_dword {v(171)}, {v(170)}, {srd(SWSP)}, s{SA} offen")
        if o.get("touchu"): valu[o["touchu"]] = [touch_u]
        if o.get("touch", 0): valu[o.get("tstep", 1)] = [lambda: self.touch_wsp(170, 171)]
        self.gemm_loop(4, reads, mfmas, dma, tick, 2, npro, {5: lambda: self.wsp_dma(0), 6: lambda: self.wsp_dma(1)}, valu)
        self.stamp(1)
        MA, MB = SK + 2, SK + 4
        GR, VLO = 72, 80
        def seg1b():
            p = self.p
            S0, S1, MU = 64, 66, 68
            p(f"v_pk_add_f32 {v(S0,2)}, {v(ACC,2)}, {v(ACC+2,2)}\nv_pk_add_f32 {v(S1,2)}, {v(ACC+4,2)}, {v(ACC+6,2)}")
            for i in range(4, 16):
                s = S0 if i % 2 == 0 else S1
                p(f"v_pk_add_f32 {v(s,2)}, {v(s,2)}, {v(ACC+2*i,2)}")
            for (m, b) in [(MA, 16), (MB, 20)]:
                p(f"s_mov_b64 exec, {sp(m)}")
                for i in range(b, b + 4):
                    s = S0 if i % 2 == 0 else S1
                    p(f"v_pk_add_f32 {v(s,2)}, {v(s,2)}, {v(ACC+2*i,2)}")
            p("s_mov_b64 exec, -1")
            p(f"v_pk_add_f32 {v(S0,2)}, {v(S0,2)}, {v(S1,2)}\nv_add_f32 {v(GR)}, {v(S0)}, {v(S0+1)}")
            p(f"v_mov_b32 {v(S0)}, {v(GR)}\nv_mov_b32 {v(GR+1)}, s{ST_T}\nv_mov_b32 {v(GR+3)}, s{ST_T}\nv_permlane32_swap_b32 {v(GR)}, {v(S0)}\nv_add_f32 {v(GR)}, {v(GR)}, {v(S0)}")
            p(f"v_mul_f32 {v(MU)}, s{SK+6}, {v(GR)}")
            D0, D1 = 76, 78
            def m2(i, first=False):
                d = D0 if i % 2 == 0 else D1; s = S0 if i % 2 == 0 else S1
                p(f"v_pk_add_f32 {v(d,2)}, {v(ACC+2*i,2)}, {v(MU,2)} op_sel_hi:[1,0] neg_lo:[0,1] neg_hi:[0,1]")
                if first: p(f"v_pk_mul_f32 {v(s,2)}, {v(d,2)}, {v(d,2)}")
                else: p(f"v_pk_fma_f32 {v(s,2)}, {v(d,2)}, {v(d,2)}, {v(s,2)}")
            for i in range(16): m2(i, i < 2)
            for (m, b) in [(MA, 16), (MB, 20)]:
                p(f"s_mov_b64 exec, {sp(m)}")
                for i in range(b, b + 4): m2(i)
            p("s_mov_b64 exec, -1")
            p(f"v_pk_add_f32 {v(S0,2)}, {v(S0,2)}, {v(S1,2)}\nv_add_f32 {v(GR+2)}, {v(S0)}, {v(S0+1)}")
            p(f"v_mov_b32 {v(S0)}, {v(GR+2)}\nv_cmp_gt_u32 vcc, 32, {v(VL)}")
            p(f"s_lshl_b32 s{SC}, s{SRB}, 2\ns_add_u32 s{SC}, s{SC}, s{SWV}")
            p(f"v_permlane32_swap_b32 {v(GR+2)}, {v(S0)}\nv_cndmask_b32 {v(VLO)}, {v(VOOB)}, {v(VL16)}, vcc\nv_add_f32 {v(GR+2)}, {v(GR+2)}, {v(S0)}")
            p(f"s_lshl_b32 s{SD}, s{SC}, 12\ns_add_u32 s{SD}, s{SD}, {ST}\ns_lshl_b32 s{SA}, s{SCOL}, 9\ns_add_u32 s{SA}, s{SA}, s{SD}")
        seg1 = self.cap(lambda: self.gelu_many([ACC + 2 * i for i in range(24)], [64, 68, 72, 76]))
        h = len(seg1) // 5
        f1 = self.wsp_dma(2) + [lambda: p("s_barrier")]
        f2 = self.wsp_dma(3) + self.wsp_dma(4)
        self.run(merge(seg1[:h], f1) + merge(seg1[h:], f2))
        seg1b()
        p.vmem(f"buffer_store_dwordx4 {v(GR,4)}, {v(VLO)}, {srd(SWS)}, s{SA} offen sc1")
        self.stamp(2)
        lgw = lambda: p.wait(lg=p.lg - 1)
        Q0, Q1, QA, QB = 112, 113, 114, 115
        MN, VR, N3, I3, TM = 80, 81, 82, 83, 84
        def misc():
            p = self.p
            self.g_early(120)
            p(f"v_lshrrev_b32 {v(Q1)}, 5, {v(VL)}\nv_lshlrev_b32 {v(Q1)}, 6, {v(Q1)}\nv_xor_b32 {v(Q0)}, {v(VL16)}, {v(Q1)}\nv_xor_b32 {v(Q1)}, 128, {v(Q0)}")
            p(f"v_cndmask_b32 {v(QA)}, {v(VOOB)}, {v(Q0)}, {sp(MA)}\nv_cndmask_b32 {v(QB)}, {v(VOOB)}, {v(Q1)}, {sp(MB)}")
            p(f"s_lshl_b32 s{SA}, s{SCOL}, 6\ns_add_u32 s{SC}, s{SA}, s{SC}\ns_mul_i32 s{SE}, s{SC}, 5632")
            self.flag_prep(118)
            p(f"v_cmp_gt_u32 vcc, 32, {v(VL)}\nv_mov_b32 {v(N3)}, {f2u(72.0)}\nv_mov_b32 {v(TM)}, {f2u(88.0)}\nv_mov_b32 {v(I3)}, {f2u(1/72)}\nv_mov_b32 {v(TM+1)}, {f2u(1/88)}")
            p(f"v_cndmask_b32 {v(N3)}, {v(N3)}, {v(TM)}, vcc\nv_cndmask_b32 {v(I3)}, {v(I3)}, {v(TM+1)}, vcc")
        za = o.get("za", 1)
        f = self.wsp_read(0) + self.wsp_read(1) + [lgw]
        for st in range(5, 5 + za): f += self.wsp_dma(st)
        self.run(merge(gops + self.cap(misc), f))
        self.stamp(3)
        SG = 64
        for q in range(4):
            ts = p.vmem(f"buffer_load_dwordx4 {v(SG+4*q,4)}, {v(VL16)}, {srd(SWS)}, s{SD} offen offset:{q*1024} sc1")
        for st in range(5 + za, 7): self.run(self.wsp_dma(st))
        l = p.label("sp"); dl = p.label("sd")
        p.wait(vm=ts)
        p(f"s_mov_b32 s{SSPIN}, 0")
        p.put(l)
        X0 = 116
        p(f"v_xor_b32 {v(MN)}, s{ST_T}, {v(SG+1)}\nv_xor_b32 {v(VR)}, s{ST_T}, {v(SG+3)}")
        for r in [5, 9, 13]:
            p(f"v_xor_b32 {v(X0)}, s{ST_T}, {v(SG+r)}\nv_xor_b32 {v(X0+1)}, s{ST_T}, {v(SG+r+2)}\nv_or3_b32 {v(MN)}, {v(MN)}, {v(X0)}, {v(X0+1)}")
        p(f"v_or_b32 {v(MN)}, {v(MN)}, {v(VR)}")
        p(f"v_cmp_ne_u32 vcc, 0, {v(MN)}\ns_cmp_eq_u64 vcc, 0\ns_cbranch_scc1 {dl}")
        for q in range(4):
            p(f"buffer_load_dwordx4 {v(SG+4*q,4)}, {v(VL16)}, {srd(SWS)}, s{SD} offen offset:{q*1024} sc1")
        p("s_waitcnt vmcnt(0)")
        p(f"s_add_u32 s{SSPIN}, s{SSPIN}, 1\ns_cmp_lt_u32 s{SSPIN}, {SPIN}\ns_cbranch_scc1 {l}")
        p.put(dl)
        self.stamp(4)
        p(f"v_add_f32 {v(MN)}, {v(SG)}, {v(SG+4)}\nv_add_f32 {v(TM+2)}, {v(SG+8)}, {v(SG+12)}\nv_add_f32 {v(MN)}, {v(MN)}, {v(TM+2)}")
        p(f"v_mov_b32 {v(TM+3)}, {v(MN)}\nv_add_f32 {v(VR)}, {v(SG+2)}, {v(SG+6)}\nv_add_f32 {v(TM+2)}, {v(SG+10)}, {v(SG+14)}")
        p(f"v_permlane32_swap_b32 {v(MN)}, {v(TM+3)}\nv_add_f32 {v(VR)}, {v(VR)}, {v(TM+2)}\nv_add_f32 {v(MN)}, {v(MN)}, {v(TM+3)}")
        p(f"v_mul_f32 {v(MN)}, {f2u(1/688)}, {v(MN)}")
        for q in range(4):
            n_, i_ = (TM, TM + 1) if q < 3 else (N3, I3)
            p(f"v_fma_f32 {v(TM+2)}, {v(SG+4*q)}, {v(i_)}, -{v(MN)}\nv_mul_f32 {v(TM+2)}, {v(TM+2)}, {v(TM+2)}\nv_fmac_f32 {v(VR)}, {v(TM+2)}, {v(n_)}")
        self.xhalf_sum(VR, TM)
        p(f"v_mov_b32 {v(TM)}, {f2u(1e-5)}\nv_fmac_f32 {v(TM)}, {f2u(1/688)}, {v(VR)}\nv_rsq_f32 {v(VR)}, {v(TM)}")
        p(f"s_add_u32 s{SA}, s{SE}, {Z2N}\ns_add_u32 s{SB_}, s{SA}, 4096")
        p(f"v_mul_f32 {v(MN)}, {v(MN)}, {v(VR)}")
        ZP = 88
        for u in range(6):
            mt, q = u >> 1, u & 1
            R4 = range(4 * u, 4 * u + 4)
            for i in R4: p(f"v_pk_fma_f32 {v(ACC+2*i,2)}, {v(ACC+2*i,2)}, {v(MN,2)}, {v(MN,2)} op_sel:[0,1,0] op_sel_hi:[1,1,0] neg_lo:[0,0,1] neg_hi:[0,0,1]")
            for i in R4: p(f"v_cvt_pk_bf16_f32 {v(ZP+i)}, {v(ACC+2*i)}, {v(ACC+2*i+1)}")
            r = v(ZP + 4 * u, 4)
            if mt < 2: t = p.vmem(f"buffer_store_dwordx4 {r}, {v(Q0+q)}, {srd(SWS)}, s{SA} offen offset:{mt*2048+q*1024} sc1")
            else: t = p.vmem(f"buffer_store_dwordx4 {r}, {v(QA+q)}, {srd(SWS)}, s{SB_} offen offset:{q*1024} sc1")
        p(f"s_lshl_b32 s{SE}, s{SC}, 7\ns_add_u32 s{SE}, s{SE}, {ZF}")
        for st in range(2, 5): self.run(self.wsp_read(st))
        p.wait(vm=t)
        self.flag(SE, 118)
        self.run([lgw] + self.wsp_dma(7))
        if o.get("touchc", 0): self.touch_c(170, 171)
        for st in range(5, 8): self.run(self.wsp_read(st))
        self.g_poll_issue()
        p(f"s_mov_b32 s{SLATE}, 0")
        self.stamp(5)
        p(f"s_branch {self.LG}")

    def phase_u(self):
        p = self.p; o = self.o
        ACC, ZA, FA, FB, FW, FX = 16, 80, 128, 144, 160, 184
        XR, BR, X1R, WR, XD, BD, WD, T = 192, 196, 200, 204, 206, 210, 214, 60
        p.c("==== phase A: U ====")
        p.put(self.LU)
        WT, WP = SK + 8, SK + 9
        p(f"v_lshrrev_b32 {v(T)}, 5, {v(VL)}\nv_lshlrev_b32 {v(T)}, 15, {v(T)}")
        p(f"v_bfe_u32 {v(T+1)}, {v(VL)}, 3, 1\nv_lshl_add_u32 {v(T)}, {v(T+1)}, 14, {v(T)}")
        p(f"v_bfe_u32 {v(T+1)}, {v(VL)}, 4, 1\nv_lshl_add_u32 {v(T)}, {v(T+1)}, 10, {v(T)}")
        self.plain_dma_addr2(XD, T, T + 1, 2048)
        p(f"s_lshr_b32 s{WP}, s{SWV}, 1\ns_and_b32 s{WT}, s{SWV}, 1\ns_lshl_b32 s{SA}, s{WT}, 5")
        for i in range(4): p(f"v_xor_b32 {v(XD+i)}, s{SA}, {v(XD+i)}")
        self.plain_dma_addr(BD, 1024, T)
        self.w_dma_addr(WD, T, 0)
        p(f"s_lshl_b32 s{SXB}, s{SRB}, 17\ns_lshl_b32 s{SD}, s{WP}, 16\ns_add_u32 s{SXB}, s{SXB}, s{SD}\ns_lshl_b32 s{SD}, s{WT}, 13\ns_add_u32 s{SXB}, s{SXB}, s{SD}")
        p(f"s_lshl_b32 s{SW1B}, s{SCOL}, 16\ns_lshl_b32 s{SD}, s{WT}, 15\ns_add_u32 s{SW1B}, s{SW1B}, s{SD}")
        p(f"s_lshl_b32 s{SXL}, s{SWV}, 12\ns_mov_b32 s{SW1+2}, 524288")
        SWIB = SCB
        p(f"s_mul_i32 s{SWIB}, s{SWV}, {16*2752}\ns_mul_i32 s{SA}, s{SCOL}, 176\ns_add_u32 s{SWIB}, s{SWIB}, s{SA}")
        p(f"s_mul_i32 s{SWL}, s{SWV}, 3072\ns_add_u32 s{SWL}, s{SWL}, 98304\ns_mov_b32 s{PWIN+2}, {512*2752}\ns_mov_b32 s{PWIN+3}, 0x20000")
        PR = 228
        p(f"s_lshl_b32 s{SD}, s{SRB}, 1\ns_add_u32 s{SD}, s{SD}, s{WT}")
        p(f"s_lshl_b32 s{SA}, s{SCOL}, 1\ns_add_u32 s{SA}, s{SA}, s{WP}")
        p(f"s_lshl_b32 s{SE}, s{SD}, 4\ns_add_u32 s{SE}, s{SE}, s{SA}")
        p(f"s_lshl_b32 s{SA}, s{SA}, 5\nv_and_b32 {v(T)}, 31, {v(VL)}\nv_add_lshl_u32 {v(T)}, {v(T)}, s{SA}, 1")
        p.wait_lg_all()
        p(f"s_cmp_eq_u32 s{WP}, 0\ns_cselect_b64 {sp(SW1)}, {sp(PBRE)}, {sp(PBIM)}")
        tick = {}
        def dma(st):
            sl = st % 3; items = []
            def cb(t): tick[st] = t
            for i in range(3):
                items.append(((SWL, sl * 12288) if i == 0 else None, (SWIB, st * 64 * 2752) if i == 0 else None,
                              f"buffer_load_dwordx4 {v(WD+i)}, {srd(PWIN)}, s{SDO} offen offset:{i*1024} lds", None))
            for (vd, sr, sb, lb) in [(XD, SX, SXB, 0), (BD, SW1, SW1B, 49152)]:
                for i in range(4):
                    items.append(((SXL, lb + sl * 16384) if i == 0 else None, (sb, st * 128) if i == 0 else None,
                                  f"buffer_load_dwordx4 {v(vd+i)}, {srd(sr)}, s{SDO} offen offset:{i*1024} lds", cb))
            return self.dseq(items)
        self.run(dma(0))
        p.vmem(f"global_load_ushort {v(PR)}, {v(T)}, {sp(PLRE)}")
        p.vmem(f"global_load_ushort {v(PR+1)}, {v(T)}, {sp(PLIM)}")
        tp = p.vmem(f"global_load_ushort {v(PR+2)}, {v(T)}, {sp(PLDT)}")
        npro = 2
        self.late_args()
        def setup():
            p = self.p
            p(f"s_mul_i32 s{SREG}, s{SWV}, 40960\ns_lshl_b32 s{SA}, s{WT}, 13")
            self.plain_read_addr(XR, SA, T)
            p(f"s_lshl_b32 s{SA}, s{WP}, 12\ns_add_u32 s{SA}, s{SA}, 49152")
            self.plain_read_addr(BR, SA, T)
            self.w_tr_addr(WR, 98304, T)
            p(f"v_bfe_u32 {v(T)}, {v(VL)}, 3, 1\nv_lshlrev_b32 {v(T+1)}, 12, {v(T)}\nv_xor_b32 {v(T)}, s{WT}, {v(T)}\nv_lshlrev_b32 {v(T)}, 1, {v(T)}")
            p(f"v_bfe_u32 {v(T+2)}, {v(VL)}, 1, 2\nv_lshl_add_u32 {v(T+1)}, {v(T+2)}, 10, {v(T+1)}")
            p(f"v_and_b32 {v(T+2)}, 1, {v(T+2)}\nv_lshl_add_u32 {v(T)}, {v(T+2)}, 2, {v(T)}")
            p(f"v_and_b32 {v(T+2)}, 1, {v(VL)}\nv_lshl_add_u32 {v(T+1)}, {v(T+2)}, 8, {v(T+1)}\nv_or_b32 {v(T)}, {v(T)}, {v(T+2)}")
            p(f"v_bfe_u32 {v(T+2)}, {v(VL)}, 4, 1\nv_lshl_add_u32 {v(T+1)}, {v(T+2)}, 7, {v(T+1)}")
            p(f"s_lshl_b32 s{SA}, s{WP}, 13\ns_lshl_b32 s{SB_}, s{WT}, 9\ns_add_u32 s{SA}, s{SA}, s{SB_}\nv_add_u32 {v(T+1)}, s{SA}, {v(T+1)}")
            p(f"v_lshrrev_b32 {v(T+2)}, 5, {v(VL)}\nv_xor_b32 {v(T)}, {v(T)}, {v(T+2)}\nv_lshlrev_b32 {v(T)}, 4, {v(T)}")
            for ks in range(4): p(f"v_xor_b32 {v(X1R+ks)}, {32*ks}, {v(T)}\nv_add_u32 {v(X1R+ks)}, {v(X1R+ks)}, {v(T+1)}")
            self.wsp_setup(T)
            p(f"s_lshl_b32 s{SPB+1}, s{WT}, 13\ns_mul_i32 s{SA}, s{WP}, 49152\ns_add_u32 s{SPB+1}, s{SPB+1}, s{SA}\ns_add_u32 s{SPB}, s{SPB+1}, 32768\ns_add_u32 s{SPB+2}, s{SPB+1}, 16384")
            p(f"s_lshl_b32 s{SA}, s{SWV}, 13\ns_add_u32 s{SPB+3}, s{SA}, {13*8192}\ns_add_u32 s{SPB+4}, s{SA}, {17*8192}")
            p.atom(f"s_cmp_eq_u32 s{SWV}, 3\ns_cselect_b32 s{SPB+4}, {12*8192}, s{SPB+4}")
            self.valid_masks()
        self.run(merge(self.cap(setup), dma(1)))
        LB, CF, L16, L128, L256, LQ0, LQ1 = 218, 220, 222, 224, 226, 228, 230
        X0, X1, X2, X3 = 232, 233, 234, 235
        L32, L64 = 236, 238
        def csq(d, s):
            p = self.p
            p(f"v_mul_f32 {v(X0)}, {v(s+1)}, {v(s+1)}\nv_add_f32 {v(X1)}, {v(s)}, {v(s)}")
            p(f"v_mul_f32 {v(d+1)}, {v(X1)}, {v(s+1)}\nv_fma_f32 {v(d)}, {v(s)}, {v(s)}, -{v(X0)}")
        def cmul(d, a, b):
            p = self.p
            p(f"v_mul_f32 {v(X0)}, {v(a+1)}, {v(b+1)}\nv_mul_f32 {v(X1)}, {v(a+1)}, {v(b)}")
            p(f"v_fma_f32 {v(X0)}, {v(a)}, {v(b)}, -{v(X0)}\nv_fma_f32 {v(d+1)}, {v(a)}, {v(b+1)}, {v(X1)}\nv_mov_b32 {v(d)}, {v(X0)}")
        def cfma(d, a, b, c):
            p = self.p
            p(f"v_fma_f32 {v(X0)}, {v(a)}, {v(b)}, {v(c)}\nv_fma_f32 {v(X1)}, {v(a)}, {v(b+1)}, {v(c+1)}")
            p(f"v_fma_f32 {v(X0)}, -{v(a+1)}, {v(b+1)}, {v(X0)}\nv_fma_f32 {v(d+1)}, {v(a+1)}, {v(b)}, {v(X1)}\nv_mov_b32 {v(d)}, {v(X0)}")
        def params():
            p = self.p
            p(f"v_lshlrev_b32 {v(PR)}, 16, {v(PR)}\nv_lshlrev_b32 {v(PR+1)}, 16, {v(PR+1)}\nv_lshlrev_b32 {v(PR+2)}, 16, {v(PR+2)}")
            p(f"v_mul_f32 {v(X0)}, {f2u(LOG2E)}, {v(PR+2)}\nv_exp_f32 {v(X0)}, {v(X0)}"); self.rnd(X0, X0)
            p(f"v_mul_f32 {v(X1)}, {v(X0)}, {v(PR)}\nv_mul_f32 {v(X2)}, {v(X0)}, {v(PR+1)}")
            p(f"v_mul_f32 {v(X1)}, {f2u(LOG2E)}, {v(X1)}\nv_exp_f32 {v(X1)}, {v(X1)}")
            p(f"v_mul_f32 {v(X2)}, {f2u(1/(2*math.pi))}, {v(X2)}\nv_fract_f32 {v(X2)}, {v(X2)}")
            p(f"v_cos_f32 {v(X3)}, {v(X2)}\nv_sin_f32 {v(X2)}, {v(X2)}")
            p(f"v_mul_f32 {v(X0)}, {v(PR)}, {v(PR)}")
            p(f"v_mul_f32 {v(LB)}, {v(X1)}, {v(X3)}\nv_mul_f32 {v(LB+1)}, {v(X1)}, {v(X2)}")
            p(f"v_fmac_f32 {v(X0)}, {v(PR+1)}, {v(PR+1)}\nv_rcp_f32 {v(X0)}, {v(X0)}")
            p(f"v_add_f32 {v(X1)}, -1.0, {v(LB)}\nv_add_f32 {v(X0)}, {v(X0)}, {v(X0)}")
            p(f"v_mul_f32 {v(X2)}, {v(X1)}, {v(PR)}\nv_fmac_f32 {v(X2)}, {v(LB+1)}, {v(PR+1)}\nv_mul_f32 {v(CF)}, {v(X2)}, {v(X0)}")
            p(f"v_mul_f32 {v(X2)}, {v(LB+1)}, {v(PR)}\nv_fma_f32 {v(X2)}, -{v(X1)}, {v(PR+1)}, {v(X2)}\nv_mul_f32 {v(CF+1)}, {v(X2)}, {v(X0)}")
            csq(L16, LB); csq(L16, L16); csq(L16, L16); csq(L16, L16)
            csq(L32, L16); csq(L64, L32); csq(L128, L64); csq(L256, L128)
            p.atom(f"s_cmp_eq_u32 s{WT}, 0\ns_cselect_b64 vcc, -1, 0")
            p(f"v_cndmask_b32 {v(L64)}, {v(L64)}, 1.0, vcc\nv_cndmask_b32 {v(L64+1)}, {v(L64+1)}, 0, vcc")
            p(f"v_cmp_gt_u32 vcc, 32, {v(VL)}\nv_cndmask_b32 {v(LQ0)}, {v(L32)}, 1.0, vcc\nv_cndmask_b32 {v(LQ0+1)}, {v(L32+1)}, 0, vcc")
            cmul(LQ0, LQ0, L64); cmul(LQ1, LQ0, L16)
        self.epoch2()
        self.stamp(0)
        pops = [lambda: p.wait(vm=tp)] + self.cap(params)
        valu = {}
        q = (len(pops) + 15) // 16
        for i in range(16): valu[8 + i] = pops[i * q:(i + 1) * q]
        if o.get("touch", 0): valu[o.get("tstep", 1)] = [lambda: self.touch_wsp(217, 205)]
        rt = {}
        def reads(n):
            st, ks = n // 4, n % 4; sl = st % 3; s = n & 1; ops = []
            for k in range(2):
                def ra(k=k): rt[(n, 'a', k)] = p.lds(f"ds_read_b128 {v(FA+8*s+4*k,4)}, {v(XR+(ks^k))} offset:{sl*16384+k*4096}")
                def rb(k=k): rt[(n, 'b', k)] = p.lds(f"ds_read_b128 {v(FB+8*s+4*k,4)}, {v(BR+ks)} offset:{sl*16384+k*8192}")
                ops += [ra, rb]
            def rx(): p.lds(f"ds_read_b128 {v(FX+4*s,4)}, {v(X1R+ks)} offset:{sl*16384}")
            ops.append(rx)
            for mt in range(3):
                for a in range(2):
                    def rw(mt=mt, a=a):
                        rt[(n, 'w', mt)] = p.lds(f"ds_read_b64_tr_b16 {v(FW+12*s+4*mt+2*a,2)}, {v(WR)} offset:{sl*12288+ks*3072+a*768+mt*64}")
                    ops.append(rw)
            return ops
        def mfmas(n):
            s = n & 1; ops = []
            for (mt, cp) in [(0, 0), (1, 0), (1, 1), (0, 1)]:
                def m(mt=mt, cp=cp):
                    if (mt, cp) == (0, 0): p.wait(lg=rt[(n, 'b', 1)])
                    d = v(ACC + 32 * mt + 16 * cp, 16)
                    p(f"{MF} {d}, {v(FA+8*s+4*mt,4)}, {v(FB+8*s+4*cp,4)}, {'0' if n == 0 else d}")
                ops.append(m)
            for mt in range(3):
                def m(mt=mt):
                    if mt == 0: p.wait(lg=rt[(n, 'w', 2)])
                    d = v(ZA + 16 * mt, 16)
                    p(f"{MF} {d}, {v(FW+12*s+4*mt,4)}, {v(FX+4*s,4)}, {'0' if n == 0 else d}")
                ops.append(m)
            return ops
        self.gemm_loop(3, reads, mfmas, dma, tick, 5, npro, {6: lambda: self.wsp_dma(0), 7: lambda: self.wsp_dma(1)}, valu)
        self.stamp(1)
        def U(sg, cp): return ACC + 32 * (sg >> 3) + 16 * cp + 4 * ((sg & 7) >> 1) + 2 * (sg & 1)
        def step(hr, hi, sg, nr, ni, t0, t1):
            p = self.p; A = v(LB, 2)
            p(f"v_pk_fma_f32 {v(t0,2)}, {A}, {v(hr,2)}, {v(U(sg,0),2)} op_sel_hi:[0,1,1]")
            p(f"v_pk_fma_f32 {v(t1,2)}, {A}, {v(hi,2)}, {v(U(sg,1),2)} op_sel_hi:[0,1,1]")
            p(f"v_pk_fma_f32 {v(nr,2)}, {A}, {v(hi,2)}, {v(t0,2)} op_sel:[1,0,0] op_sel_hi:[1,1,1] neg_lo:[1,0,0] neg_hi:[1,0,0]")
            p(f"v_pk_fma_f32 {v(ni,2)}, {A}, {v(hr,2)}, {v(t1,2)} op_sel:[1,0,0] op_sel_hi:[1,1,1]")
        HA, HBb, T0, EX, E8, AD, GR, CQ = 128, 132, 136, 140, 144, 160, 164, 168
        SCR = 98304
        p(f"s_lshl_b32 s{SA}, s{WP}, 11\ns_add_u32 s{SA}, s{SA}, {SCR}")
        p(f"v_and_b32 {v(AD)}, 31, {v(VL)}\nv_lshlrev_b32 {v(AD)}, 6, {v(AD)}\nv_add_u32 {v(AD)}, s{SA}, {v(AD)}")
        p(f"v_lshrrev_b32 {v(AD+1)}, 5, {v(VL)}\nv_lshl_add_u32 {v(AD+1)}, {v(AD+1)}, 4, {v(AD)}\ns_lshl_b32 s{SA}, s{WT}, 5\nv_add_u32 {v(AD+1)}, s{SA}, {v(AD+1)}")
        Z1P = 192
        SZ0, SZ1 = SXL, SWL
        VA_ = 176
        MA, MB = SK + 2, SK + 4
        def z1st(u):
            mt, q = u >> 1, u & 1
            for i in range(4): p(f"v_cvt_pk_bf16_f32 {v(Z1P+4*u+i)}, {v(ZA+8*u+2*i)}, {v(ZA+8*u+2*i+1)}")
            r = v(Z1P + 4 * u, 4)
            if mt < 2: p.vmem(f"buffer_store_dwordx4 {r}, {v(VL16)}, {srd(SWS)}, s{SZ0} offen offset:{mt*2048+q*1024} sc1")
            else: p.vmem(f"buffer_store_dwordx4 {r}, {v(VA_+q)}, {srd(SWS)}, s{SZ1} offen offset:{q*1024} sc1")
        p(f"s_lshl_b32 s{SA}, s{SCOL}, 6\ns_lshl_b32 s{SB_}, s{SRB}, 2\ns_add_u32 s{SA}, s{SA}, s{SB_}\ns_add_u32 s{SA}, s{SA}, s{SWV}\ns_mul_i32 s{SA}, s{SA}, 5632")
        p(f"s_add_u32 s{SZ0}, s{SA}, {Z1}\ns_add_u32 s{SZ1}, s{SZ0}, 4096")
        p(f"v_cndmask_b32 {v(VA_)}, {v(VOOB)}, {v(VL16)}, {sp(MA)}\nv_cndmask_b32 {v(VA_+1)}, {v(VOOB)}, {v(VL16)}, {sp(MB)}")
        zs = [(lambda u=u: z1st(u)) for u in range(6)]
        self.run(zs[:2])
        p("s_barrier")
        def pass1():
            hr, hi = U(0, 0), U(0, 1)
            for sg in range(1, 16):
                nr, ni = (HA, HA + 2) if sg & 1 else (HBb, HBb + 2)
                step(hr, hi, sg, nr, ni, T0, T0 + 2)
                hr, hi = nr, ni
            self.p(f"v_mov_b32 {v(EX)}, {v(hr)}\nv_mov_b32 {v(EX+1)}, {v(hi)}\nv_mov_b32 {v(EX+2)}, {v(hr+1)}\nv_mov_b32 {v(EX+3)}, {v(hi+1)}")
        d2 = self.wsp_dma(2) + self.wsp_dma(3)
        self.run(merge(merge(self.cap(pass1), zs[2:]), d2[:7]))
        p.lds(f"ds_write_b128 {v(AD+1)}, {v(EX,4)}")
        p.wait_lg_all(); p("s_barrier")
        for i in range(4): p.lds(f"ds_read_b128 {v(E8+4*i,4)}, {v(AD)} offset:{16*i}")
        te = p.lg - 1
        self.run(d2[7:11])
        p(f"s_cmp_eq_u32 s{WT}, 0\ns_cselect_b32 s{SA}, 32, 0")
        p(f"v_cmp_gt_u32 vcc, s{SA}, {v(VL)}\nv_mov_b32 {v(GR+1)}, s{ST_T}\nv_mov_b32 {v(GR+3)}, s{ST_T}\nv_cndmask_b32 {v(T0)}, {v(VOOB)}, {v(VL16)}, vcc")
        p(f"s_lshl_b32 s{SC}, s{SCOL}, 14\ns_lshl_b32 s{SA}, s{WP}, 9\ns_add_u32 s{SC}, s{SC}, s{SA}\ns_add_u32 s{SC}, s{SC}, {EG}")
        p(f"s_lshl_b32 s{SA}, s{SRB}, 10\ns_add_u32 s{SA}, s{SA}, s{SC}")
        p.wait(lg=te); p("s_barrier")
        self.run(merge(self.cap(lambda: [cfma(E8 + 2 * q, L16, E8 + 2 * (q - 1), E8 + 2 * q) for q in range(1, 8)]), d2[11:15]))
        p(f"v_mov_b32 {v(GR)}, {v(E8+14)}\nv_mov_b32 {v(GR+2)}, {v(E8+15)}")
        p.vmem(f"buffer_store_dwordx4 {v(GR,4)}, {v(T0)}, {srd(SWS)}, s{SA} offen sc1")
        self.run(d2[15:])
        self.stamp(2)
        p(f"v_cmp_gt_u32 vcc, 32, {v(VL)}")
        w1 = p.label("w1"); w2 = p.label("w2")
        p(f"s_cmp_eq_u32 s{WT}, 0\ns_cbranch_scc0 {w1}")
        p(f"v_cndmask_b32 {v(CQ)}, {v(E8+2)}, 0, vcc\nv_cndmask_b32 {v(CQ+1)}, {v(E8+3)}, 0, vcc")
        p(f"v_cndmask_b32 {v(CQ+2)}, {v(E8+4)}, {v(E8)}, vcc\nv_cndmask_b32 {v(CQ+3)}, {v(E8+5)}, {v(E8+1)}, vcc")
        p(f"s_branch {w2}")
        p.put(w1)
        for k in range(4): p(f"v_cndmask_b32 {v(CQ+k)}, {v(E8+10+k)}, {v(E8+6+k)}, vcc")
        p.put(w2)
        Z1P = 192
        EGR, EO, EXP, ET = 80, 144, 152, 160
        def eo():
            p = self.p
            p(f"v_lshrrev_b32 {v(ET)}, 5, {v(VL)}\nv_sub_u32 {v(ET)}, s{SRB}, {v(ET)}\nv_add_u32 {v(ET)}, -1, {v(ET)}")
            p(f"v_and_b32 {v(ET+1)}, 31, {v(VL)}\nv_lshlrev_b32 {v(ET+1)}, 4, {v(ET+1)}\nv_mov_b32 {v(ET+3)}, s{ST_T}")
            for q in range(8):
                p(f"v_add_u32 {v(ET+2)}, {-2*q}, {v(ET)}\nv_cmp_le_i32 vcc, 0, {v(ET+2)}\nv_lshl_add_u32 {v(ET+2)}, {v(ET+2)}, 10, {v(ET+1)}")
                p(f"v_cndmask_b32 {v(EO+q)}, {v(VOOB)}, {v(ET+2)}, vcc\nv_cndmask_b32 {v(EXP+q)}, 0, {v(ET+3)}, vcc")
        lgw = lambda: p.wait(lg=p.lg - 1)
        self.run(merge(self.cap(lambda: (eo(), self.g_early(184))), self.wsp_dma(4) + self.wsp_read(0) + self.wsp_read(1)))
        et = {}
        def eload(q):
            et['t'] = p.vmem(f"buffer_load_dwordx4 {v(EGR+4*q,4)}, {v(EO+q)}, {srd(SWS)}, s{SC} offen sc1")
        for q in range(8): eload(q)
        self.run([lgw] + self.wsp_dma(5))
        self.stamp(3)
        l = p.label("ep"); dl = p.label("ed")
        p.wait(vm=et['t'])
        p(f"s_mov_b32 s{SSPIN}, 0")
        p.put(l)
        p(f"v_mov_b32 {v(ET)}, 0")
        for q in range(8):
            p(f"v_xor_b32 {v(ET+1)}, {v(EXP+q)}, {v(EGR+4*q+1)}\nv_xor_b32 {v(ET+2)}, {v(EXP+q)}, {v(EGR+4*q+3)}\nv_or3_b32 {v(ET)}, {v(ET)}, {v(ET+1)}, {v(ET+2)}")
        p(f"v_cmp_ne_u32 vcc, 0, {v(ET)}\ns_cmp_eq_u64 vcc, 0\ns_cbranch_scc1 {dl}")
        for q in range(8): p(f"buffer_load_dwordx4 {v(EGR+4*q,4)}, {v(EO+q)}, {srd(SWS)}, s{SC} offen sc1")
        p("s_waitcnt vmcnt(0)")
        p(f"s_add_u32 s{SSPIN}, s{SSPIN}, 1\ns_cmp_lt_u32 s{SSPIN}, {SPIN}\ns_cbranch_scc1 {l}")
        p.put(dl)
        self.flag_prep(178)
        p(f"s_lshl_b32 s{SA}, s{SCOL}, 6\ns_lshl_b32 s{SB_}, s{SRB}, 2\ns_add_u32 s{SA}, s{SA}, s{SB_}\ns_add_u32 s{SA}, s{SA}, s{SWV}\ns_lshl_b32 s{SA}, s{SA}, 7\ns_add_u32 s{SA}, s{SA}, {Z1F}")
        self.flag(SA, 178)
        self.stamp(4)
        OP, OT, HO = 80, 144, 132
        MA, MB = SK + 2, SK + 4
        SH0, SH1 = SXB, SW1B
        def pass2a():
            p = self.p
            p(f"s_lshl_b32 s{SA}, s{SD}, 3\ns_add_u32 s{SA}, s{SA}, s{SCOL}\ns_lshl_b32 s{SA}, s{SA}, 14\ns_lshl_b32 s{SB_}, s{WP}, 12\ns_add_u32 s{SA}, s{SA}, s{SB_}")
            p(f"s_add_u32 s{SH0}, s{SA}, {HB}\ns_add_u32 s{SH1}, s{SH0}, 8192")
            p(f"v_lshrrev_b32 {v(T0)}, 5, {v(VL)}\nv_lshlrev_b32 {v(T0)}, 11, {v(T0)}\nv_and_b32 {v(T0+1)}, 31, {v(VL)}\nv_lshl_add_u32 {v(HO)}, {v(T0+1)}, 4, {v(T0)}")
            for k in range(1, 4): p(f"v_xor_b32 {v(HO+k)}, {64*k}, {v(HO)}")
            for q in range(8): p(f"v_mov_b32 {v(EGR+4*q+1)}, {v(EGR+4*q+2)}")
            S = EGR + 28
            for q in range(6, -1, -1): cfma(S, L256, S, EGR + 4 * q)
            p(f"v_mov_b32 {v(ET)}, {v(S)}\nv_mov_b32 {v(ET+1)}, {v(S+1)}\nv_permlane32_swap_b32 {v(S)}, {v(ET)}\nv_permlane32_swap_b32 {v(S+1)}, {v(ET+1)}")
            cfma(S, L128, ET, S)
            cfma(CQ, LQ0, S, CQ); cfma(CQ + 2, LQ1, S, CQ + 2)
            p(f"v_mov_b32 {v(HA)}, {v(CQ)}\nv_mov_b32 {v(HA+1)}, {v(CQ+2)}\nv_mov_b32 {v(HA+2)}, {v(CQ+1)}\nv_mov_b32 {v(HA+3)}, {v(CQ+3)}")
        def pass2(s0, s1):
            p = self.p
            Cc = v(CF, 2)
            for sg in range(s0, s1):
                hr, hi = (HA, HA + 2) if sg == 0 else (U(sg - 1, 0), U(sg - 1, 1))
                step(hr, hi, sg, U(sg, 0), U(sg, 1), T0, T0 + 2)
                hr, hi = U(sg, 0), U(sg, 1)
                oo = OT + 4 * (sg & 1) + 8 * ((sg >> 1) & 1)
                p(f"v_pk_mul_f32 {v(oo,2)}, {Cc}, {v(hr,2)} op_sel_hi:[0,1]")
                p(f"v_pk_mul_f32 {v(oo+2,2)}, {Cc}, {v(hi,2)} op_sel_hi:[0,1] neg_lo:[1,0] neg_hi:[1,0]")
                p(f"v_pk_fma_f32 {v(oo,2)}, {Cc}, {v(hi,2)}, {v(oo,2)} op_sel:[1,0,0] op_sel_hi:[1,1,1] neg_lo:[1,0,0] neg_hi:[1,0,0]")
                p(f"v_pk_fma_f32 {v(oo+2,2)}, {Cc}, {v(hr,2)}, {v(oo+2,2)} op_sel:[1,0,0] op_sel_hi:[1,1,1] neg_lo:[1,0,0] neg_hi:[1,0,0]")
                if sg & 1:
                    q, i = sg >> 3, (sg & 7) >> 1
                    for cp in range(2):
                        for e in range(2):
                            p(f"v_cvt_pk_bf16_f32 {v(OP+16*cp+8*e+4*q+i)}, {v(oo-4+2*cp+e)}, {v(oo+2*cp+e)}")
        def hst(cp, k):
            if o.get("x_nost"): return
            p.vmem(f"buffer_store_dwordx4 {v(OP+16*cp+4*k,4)}, {v(HO+k)}, {srd(SWS)}, s{SH0 if cp == 0 else SH1} offen offset:{512*k} sc1")
        self.run(merge(self.cap(pass2a), self.wsp_dma(6) + self.wsp_read(2) + [lgw]))
        self.run(merge(self.cap(lambda: pass2(0, 8)), self.wsp_dma(7) + self.wsp_read(3)))
        self.run(merge(merge(self.cap(lambda: pass2(8, 16)), [(lambda cp=cp, k=k: hst(cp, k)) for k in (0, 2) for cp in range(2)]), self.wsp_read(4) + self.wsp_read(5)))
        self.g_poll_issue()
        h2 = [(lambda cp=cp, k=k: hst(cp, k)) for k in (1, 3) for cp in range(2)]
        self.run(merge(self.wsp_read(6) + self.wsp_read(7), h2))
        p(f"s_lshl_b32 s{SLATE}, s{SE}, 7\ns_add_u32 s{SLATE}, s{SLATE}, {HF}")
        self.stamp(5)

    def phase_g(self):
        p = self.p; o = self.o
        p.c("==== phase B: G ====")
        p.put(self.LG)
        p.vm_done = -1; p.lg_done = -1
        ACC, FA, TR, T = 16, 112, self.GTR, 186
        Z1R, BI, PV, WD, PL, PL2, PL3 = 190, 202, 203, self.WD, self.GPL, 222, 234
        NT, Q = SK + 8, SK + 9
        p(f"s_mov_b32 s{SCOL}, s{SJ}")
        def late_setup():
            p = self.p
            p(f"s_lshl_b32 s{SE}, s{STB}, 11\ns_add_u32 s{SE}, s{SE}, {HF}")
            self.poll_addr(PL3, [(SE, 16)])
            self.flag_prep(220)
            p(f"v_lshrrev_b32 {v(T)}, 3, {v(VL)}\nv_lshlrev_b32 {v(T)}, 10, {v(T)}")
            p(f"v_bfe_u32 {v(T+1)}, {v(VL)}, 4, 1\nv_lshlrev_b32 {v(T+1)}, 2, {v(T+1)}\nv_and_b32 {v(T+2)}, 7, {v(VL)}\nv_xor_b32 {v(T+1)}, {v(T+1)}, {v(T+2)}")
            p(f"v_lshl_add_u32 {v(WD)}, {v(T+1)}, 4, {v(T)}")
            for i in range(1, 4): p(f"v_add_u32 {v(WD+i)}, {i*7168}, {v(WD)}")
            p(f"s_mul_i32 s{SXB}, s{SWV}, {176*1024}\ns_lshl_b32 s{SA}, s{SCOL}, 7\ns_add_u32 s{SXB}, s{SXB}, s{SA}")
            self.c_setup()
            self.panel_tr_addr(228, SREG, 224, False)
        p(f"s_and_b32 s{NT}, s{SWV}, 1\ns_lshr_b32 s{Q}, s{SWV}, 1")
        p(f"s_lshl_b32 s{SC}, s{STB}, 1\ns_add_u32 s{SC}, s{SC}, s{NT}")
        p.atom(f"s_cmp_lt_u32 s{SCOL}, 7\ns_cselect_b32 s{SD}, 64, 32")
        p(f"s_lshl_b32 s{SF}, s{Q}, 5\ns_sub_u32 s{SD}, s{SD}, s{SF}")
        p(f"v_cmp_gt_u32 vcc, s{SD}, {v(VL)}\nv_and_b32 {v(T)}, 31, {v(VL)}\ns_lshl_b32 s{SA}, s{SC}, 5\nv_cndmask_b32 {v(PV)}, {v(VOOB)}, {v(VL16)}, vcc")
        p(f"v_add_lshl_u32 {v(T)}, {v(T)}, s{SA}, 1")
        p.vmem(f"global_load_ushort {v(BI)}, {v(T)}, {sp(PBSP)}")
        p(f"s_mul_i32 s{SD}, s{SZI}, 5632\ns_lshl_b32 s{SB_}, s{Q}, 10\ns_add_u32 s{SD}, s{SD}, s{SB_}\ns_add_u32 s{SD}, s{SD}, {Z1}\ns_add_u32 s{SE}, s{SD}, 4096")
        p(f"v_and_b32 {v(PL2)}, 31, {v(VL)}\nv_lshlrev_b32 {v(PL2)}, 2, {v(PL2)}")
        p.wait_lg_all(); p("s_barrier")
        self.stamp(6)
        l = p.label("gp"); dn = p.label("gd")
        p("s_waitcnt vmcnt(5)")
        p(f"s_cmp_lg_u32 s{SLATE}, 0\ns_cbranch_scc1 {l}\ns_waitcnt vmcnt(0)")
        p.put(l)
        p(f"v_cmp_ne_u32 vcc, s{ST_T}, {v(PL+1)}\ns_and_b32 vcc_hi, vcc_hi, 1\ns_or_b32 s{SF}, vcc_lo, vcc_hi\ns_cbranch_scc0 {dn}")
        self.poll(PL, 33)
        p.put(dn)
        g0 = p.vm
        def late_flag():
            nf = p.label("nf")
            p(f"s_cmp_eq_u32 s{SLATE}, 0\ns_cbranch_scc1 {nf}")
            p(f"s_waitcnt vmcnt({p.vm - g0})")
            p(f"buffer_store_dword {v(220)}, {v(221)}, {srd(SWS)}, s{SLATE} offen sc1")
            p.put(nf)
        p.vm_done = -1
        self.stamp(7)
        tick = {}
        def dma(B):
            sl = B % 3; items = []
            for i in range(11):
                def cb(t, i=i): tick[(B, i)] = t
                g = i // 4
                items.append(((SREG, sl * 11264 + g * 4096) if i % 4 == 0 else None, (SGB, B * 11264 + g * 4096) if i % 4 == 0 else None,
                              f"buffer_load_dwordx4 {v(VL16)}, {srd(SWS)}, s{SDO} offen offset:{(i%4)*1024} {o.get('gmod', 'sc1')} lds", cb))
            return self.dseq(items)
        d0 = dma(0) + dma(1) + dma(2)
        kpro = o.get("gpro", 22)
        p.vmem(f"buffer_load_dwordx4 {v(Z1R,4)}, {v(VL16)}, {srd(SWS)}, s{SD} offen sc1")
        p.vmem(f"buffer_load_dwordx4 {v(Z1R+4,4)}, {v(VL16)}, {srd(SWS)}, s{SD} offen offset:2048 sc1")
        tz1 = p.vmem(f"buffer_load_dwordx4 {v(Z1R+8,4)}, {v(PV)}, {srd(SWS)}, s{SE} offen sc1")
        k0 = o.get("gk0", 10)
        self.run(merge(self.cap(late_setup), d0[:k0], 0, 40))
        p(f"s_lshl_b32 s{SA}, s{STB}, 8\ns_add_u32 s{SA}, s{SA}, {GATE}")
        p.vmem(f"buffer_load_dword {v(self.GY)}, {v(PL2)}, {srd(SWS)}, s{SA} offen sc1")
        p.vmem(f"buffer_load_dword {v(self.GY+2)}, {v(PL2)}, {srd(SWS)}, s{SA} offen offset:128 sc1")
        def z1gelu():
            c1 = -2 * LOG2E * 0.7978845608028654
            self.VC0 = 184
            self.p(f"s_mov_b32 s{SK}, {f2u(c1*0.044715)}\nv_mov_b32 {v(184)}, {f2u(c1)}")
            for i in range(12): self.unpack(self.ZUP[i], Z1R + i)
            self.gelu_many(self.ZUP, [160, 162, 164, 166])
        p.wait(vm=tz1)
        self.run(merge(self.cap(z1gelu), d0[k0:kpro]))
        lt = {}
        def issue(r):
            lt[r] = p.vmem(f"buffer_load_dword {v(r+1)}, {v(r)}, {srd(SWS)}, 0 offen sc1")
        def check(r, mask):
            l = p.label("lp"); d = p.label("ld")
            p.wait(vm=lt[r])
            p(f"s_mov_b32 s{SSPIN}, 0")
            p.put(l)
            p(f"v_cmp_ne_u32 vcc, s{ST_T}, {v(r+1)}\ns_and_b32 s{SF}, vcc_lo, {mask}\ns_cbranch_scc0 {d}")
            p(f"buffer_load_dword {v(r+1)}, {v(r)}, {srd(SWS)}, 0 offen sc1\ns_waitcnt vmcnt(0)")
            p(f"s_add_u32 s{SSPIN}, s{SSPIN}, 1\ns_cmp_lt_u32 s{SSPIN}, {SPIN}\ns_cbranch_scc1 {l}")
            p.put(d)
        rt = {}
        def fset(hb): return FA + 24 * (2 if hb == 15 else hb & 1)
        def reads(hb):
            B, e = hb >> 1, hb & 1; sl = B % 3; ops = []
            for ks in range(2):
                for mt in range(3):
                    for a in range(2):
                        def ra(ks=ks, mt=mt, a=a):
                            if (ks, mt, a) == (0, 0, 0): p.wait(vm=tick[(B, 10 if e else 5)])
                            rt[(hb, ks, mt)] = p.lds(f"ds_read_b64_tr_b16 {v(fset(hb)+12*ks+4*mt+2*a,2)}, {v(TR+a)} offset:{sl*11264+e*5632+mt*2048+ks*256}")
                        ops.append(ra)
            return ops
        def mf(hb, ks, mt, nt):
            def m():
                p.wait(lg=rt[(hb, ks, mt)])
                d = v(ACC + 16 * (2 * mt + nt), 16); kap = 2 * hb + ks
                p(f"{MF} {d}, {v(fset(hb)+12*ks+4*mt,4)}, {ar((kap*2+nt)*4,4)}, {'0' if kap == 0 else d}")
            return m
        y0 = self.y_dma(0)
        hchk = o.get("hchk", 4)
        self.run(reads(0))
        pend = d0[kpro:]
        for hb in range(14):
            if o.get("gstamps") and hb % 2 == 0: self.stamp(21 + hb // 2)
            mm = [mf(hb, ks, mt, nt) for ks in range(2) for mt in range(3) for nt in range(2)]
            rd = reads(hb + 1) + (reads(15) if hb == 13 else [])
            if hb == 13: seq = merge(mm, rd, 0, 12)
            else: seq = merge(mm, rd, 0, 8)
            if hb & 1 and hb <= 11:
                B = hb >> 1
                d = dma(B + 3) if B + 3 < 8 else y0
                d1 = d[1]
                def first(d1=d1, hb=hb):
                    p.wait(lg=rt[(hb, 1, 2)]); d1()
                d = [d[0], first] + d[2:]
                seq = merge(seq, pend + d[:5], len(seq) * 2 // 3 if not pend else len(seq) // 3)
                pend = d[5:]
            elif pend:
                k = 7 if hb else 8
                if hb == 12: k = 6
                seq = merge(seq, pend[:k], len(seq) // 3); pend = pend[k:]
            if hb == o.get("hflag", 3): seq = seq + [late_flag]
            if hb == 10: seq = seq + [lambda: issue(PL3)]
            if hb == 12: seq = [lambda: check(PL3, 0xffff)] + seq
            self.run(seq)
        assert not pend
        VW, VRD = T, T + 1
        p(f"s_add_u32 s{SA}, s{SREG}, 4096\nv_add_u32 {v(VW)}, s{SA}, {v(VL16)}")
        def rw(mt, nt):
            ops = []
            for q in range(2):
                k = nt + 2 * q
                if k == 0: continue
                for hq in range(2):
                    r = ACC + 16 * (2 * mt + nt) + 8 * q + 4 * hq
                    ops.append(lambda r=r, k=k, hq=hq: p.lds(f"ds_write_b128 {v(VW)}, {v(r,4)} offset:{(k-1)*6144+(2*mt+hq)*1024}"))
            return ops
        tiles = [(0, 1), (1, 1), (2, 1), (0, 0), (1, 0), (2, 0)]
        for ti, (mt, nt) in enumerate(tiles):
            mm = [mf(hb, ks, mt, nt) for hb in (14, 15) for ks in range(2)]
            f = rw(*tiles[ti - 2]) if ti >= 2 else []
            self.run(merge(mm, f))
        self.stamp(8)
        for k in range(1, 4):
            p(f"s_xor_b32 s{SA}, s{SWV}, {k}\ns_mul_i32 s{SA}, s{SA}, 40960\ns_add_u32 s{SA}, s{SA}, 4096\nv_add_u32 {v(VRD+k-1)}, s{SA}, {v(VL16)}")
        self.run(rw(*tiles[4]) + rw(*tiles[5]))
        p.wait_lg_all(); p("s_barrier")
        RB = 112
        def own(i): return ACC + 32 * (i >> 1) + 4 * (i & 1)
        tk = {}
        def rr(k, i): tk[(k, i)] = p.lds(f"ds_read_b128 {v(RB+24*(k-1)+4*i,4)}, {v(VRD+k-1)} offset:{(k-1)*6144+i*1024}")
        for k in range(1, 3):
            for i in range(6): rr(k, i)
        yr0 = self.y_read(0)
        for k in range(1, 4):
            for i in range(6):
                p.wait(lg=tk[(k, i)])
                if k == 1: rr(3, i)
                for hh in range(2): p(f"v_pk_add_f32 {v(own(i)+2*hh,2)}, {v(own(i)+2*hh,2)}, {v(RB+24*(k-1)+4*i+2*hh,2)}")
        p("s_barrier")
        self.stamp(9)
        PK = 112
        def ow2(i): return own(i >> 1) + 2 * (i & 1)
        def pepi():
            p = self.p
            OG = 152
            p.atom(f"s_cmp_eq_u32 s{NT}, 0\ns_cselect_b64 vcc, -1, 0")
            p(f"v_lshlrev_b32 {v(BI)}, 16, {v(BI)}\nv_cndmask_b32 {v(OG)}, {v(self.GY+2)}, {v(self.GY)}, vcc\nv_sub_f32 {v(OG)}, 1.0, {v(OG)}\nv_mul_f32 {v(OG+1)}, {v(OG)}, {v(BI)}")
            for i in range(12): p(f"v_pk_fma_f32 {v(ow2(i),2)}, {v(ow2(i),2)}, {v(OG,2)}, {v(OG,2)} op_sel:[0,0,1] op_sel_hi:[1,0,1]")
            for i in range(12): p(f"v_pk_mul_f32 {v(ow2(i),2)}, {v(ow2(i),2)}, {v(self.ZUP[i],2)}")
            for i in range(12): p(f"v_cvt_pk_bf16_f32 {v(PK+i)}, {v(ow2(i))}, {v(ow2(i)+1)}")
            p(f"s_mul_i32 s{SA}, s{SC}, 45056\ns_mul_i32 s{SB_}, s{SCOL}, 5632\ns_add_u32 s{SA}, s{SA}, s{SB_}\ns_lshl_b32 s{SB_}, s{Q}, 10")
            p(f"s_add_u32 s{SA}, s{SA}, s{SB_}\ns_add_u32 s{SA}, s{SA}, {PB}\ns_add_u32 s{SB_}, s{SA}, 4096")
        self.y1 = self.y_dma(1)
        self.run(merge(merge(self.cap(pepi), self.y1[:4]), yr0))
        self.y1 = self.y1[4:]
        p.vmem(f"buffer_store_dwordx4 {v(PK,4)}, {v(VL16)}, {srd(SWS)}, s{SA} offen sc1")
        p.vmem(f"buffer_store_dwordx4 {v(PK+4,4)}, {v(VL16)}, {srd(SWS)}, s{SA} offen offset:2048 sc1")
        self.tp = p.vmem(f"buffer_store_dwordx4 {v(PK+8,4)}, {v(PV)}, {srd(SWS)}, s{SB_} offen sc1")
        p(f"s_lshl_b32 s{SLATE}, s{STB}, 3\ns_add_u32 s{SLATE}, s{SLATE}, s{SCOL}\ns_lshl_b32 s{SLATE}, s{SLATE}, 2\ns_add_u32 s{SLATE}, s{SLATE}, s{SWV}\ns_lshl_b32 s{SLATE}, s{SLATE}, 7\ns_add_u32 s{SLATE}, s{SLATE}, {PF}")
        self.stamp(10)

    CD, CR, HT, GY, WD, WT_ = 210, 214, 218, 240, 244, 228
    ZUP = [4, 6, 8, 10, 12, 14, 204, 206, 208, 248, 250, 252]
    def c_setup(self):
        p = self.p
        self.plain_dma_addr(self.CD, 1024, 224)
        p(f"s_add_u32 s{SA}, s{SREG}, 4096")
        self.plain_read_addr(self.CR, SA, 224)
        p(f"s_add_u32 s{SA}, s{SREG}, {4096+8192}")
        self.unit_tr_addr(self.HT, SA, 224, False)
        p(f"s_lshl_b32 s{SCB}, s{SCOL}, 16\ns_lshl_b32 s{SA}, s{SWV}, 8\ns_add_u32 s{SCB}, s{SCB}, s{SA}")
        p(f"s_lshl_b32 s{SHB}, s{STB}, 17\ns_lshl_b32 s{SA}, s{SWV}, 15\ns_add_u32 s{SHB}, s{SHB}, s{SA}\ns_add_u32 s{SHB}, s{SHB}, {HB}")
        self.yt = {}
    def y_dma(self, s):
        sl = (s & 1) ^ 1; items = []
        def cb(t): self.yt[s] = t
        for hh in range(2):
            for i in range(4):
                items.append(((SREG, 4096 + sl * 18432 + hh * 4096) if i == 0 else None, (SCB, (s >> 1) * 128 + hh * 32768) if i == 0 else None,
                              f"buffer_load_dwordx4 {v(self.CD+i)}, {srd(SCIM if s & 1 else SCRE)}, s{SDO} offen offset:{i*1024} lds", None))
        for hh in range(2):
            for i in range(4):
                items.append(((SREG, 4096 + sl * 18432 + 8192 + hh * 4096) if i == 0 else None, (SHB, s * 8192 + hh * 4096) if i == 0 else None,
                              f"buffer_load_dwordx4 {v(VL16)}, {srd(SWS)}, s{SDO} offen offset:{i*1024} sc1 lds", cb))
        return self.dseq(items)
    def y_read(self, s):
        p = self.p; sl = (s & 1) ^ 1; ops = []
        self.yr = getattr(self, "yr", {})
        for ks in range(4):
            def f(ks=ks):
                p.wait(vm=self.yt[s], lg=p.lg - 10)
                b = 64 * s + 16 * ks
                for k in range(2):
                    p.lds(f"ds_read_b128 {ar(b+4*k,4)}, {v(self.CR+ks)} offset:{sl*18432+k*4096}")
                    for a in range(2):
                        self.yr[(s, ks)] = p.lds(f"ds_read_b64_tr_b16 {ar(b+8+4*k+2*a,2)}, {v(self.HT+a)} offset:{sl*18432+(ks>>1)*4096+k*2048+(ks&1)*256}")
            ops.append(f)
        return ops
    def phase_c(self):
        p = self.p; o = self.o
        p.c("==== phase C ====")
        YA, BA, F = 16, 80, 144
        XE, GE, DE, OV, P10, PL, T = 186, 194, 198, 200, 201, 202, 204
        RW, RX, WA, RA = 176, 177, 180, 230
        ep = {}
        def setup():
            p = self.p
            p(f"v_lshrrev_b32 {v(T)}, 4, {v(VL)}\nv_and_b32 {v(T+1)}, 15, {v(VL)}")
            p(f"v_lshlrev_b32 {v(T+2)}, 10, {v(T)}\nv_lshl_add_u32 {v(T+2)}, {v(T+1)}, 3, {v(T+2)}")
            p(f"v_lshlrev_b32 {v(T+3)}, 2, {v(T)}\nv_lshlrev_b32 {v(T+4)}, 3, {v(T+1)}")
            p(f"v_lshlrev_b32 {v(OV)}, 1, {v(T+2)}")
            p(f"s_lshl_b32 s{SC}, s{STB}, 6\ns_lshl_b32 s{SA}, s{SWV}, 4\ns_add_u32 s{SC}, s{SC}, s{SA}")
            p(f"s_lshl_b32 s{SD}, s{SC}, 10\ns_lshl_b32 s{SA}, s{SCOL}, 7\ns_add_u32 s{SD}, s{SD}, s{SA}\nv_add_u32 {v(T+4)}, s{SA}, {v(T+4)}")
            p(f"s_lshl_b32 s{SA}, s{STB}, 12\ns_lshl_b32 s{SB_}, s{SWV}, 10\ns_add_u32 s{SB_}, s{SB_}, s{SA}\ns_add_u32 s{SB_}, s{SB_}, {PF}")
            self.poll_addr(PL, [(SB_, 8)])
            p.atom(f"s_cmp_eq_u32 s{SWV}, 3\ns_cselect_b64 vcc, -1, 0")
            p(f"v_cndmask_b32 {v(P10)}, {v(VL16)}, {v(VOOB)}, vcc")
            p(f"s_mul_i32 s{SE}, s{STB}, {2*45056}\ns_mul_i32 s{SA}, s{SWV}, {22*512}\ns_add_u32 s{SE}, s{SE}, s{SA}\ns_add_u32 s{SE}, s{SE}, {PB}")
            p(f"s_add_u32 s{SA}, s{SREG}, 4096\nv_and_b32 {v(RW)}, 31, {v(VL)}\nv_lshlrev_b32 {v(RW)}, 8, {v(RW)}\nv_add_u32 {v(RW)}, s{SA}, {v(RW)}")
            p(f"v_lshrrev_b32 {v(RX)}, 5, {v(VL)}\nv_and_b32 {v(RX+1)}, 7, {v(VL)}\nv_xor_b32 {v(RX)}, {v(RX)}, {v(RX+1)}\nv_lshlrev_b32 {v(RX)}, 4, {v(RX)}")
            for i in range(4): p(f"v_xor_b32 {v(WA+i)}, {32*i}, {v(RX)}\nv_add_u32 {v(WA+i)}, {v(WA+i)}, {v(RW)}")
            p(f"v_xor_b32 {v(T+1)}, {v(T+1)}, {v(T)}\nv_lshlrev_b32 {v(T+1)}, 4, {v(T+1)}")
            p(f"v_lshlrev_b32 {v(T)}, 8, {v(T)}\ns_lshl_b32 s{SA}, s{SWV}, 12\ns_add_u32 s{SA}, s{SA}, 4096\nv_add_u32 {v(T)}, s{SA}, {v(T)}")
            p(f"v_add_u32 {v(RA)}, {v(T)}, {v(T+1)}\nv_xor_b32 {v(T+1)}, 64, {v(T+1)}\nv_add_u32 {v(RA+1)}, {v(T)}, {v(T+1)}")
            p(f"v_add_u32 {v(RA+2)}, 81920, {v(RA)}\nv_add_u32 {v(RA+3)}, 81920, {v(RA+1)}")
        def eloads():
            for gi in range(4):
                p(f"s_add_u32 s{SA}, s{SD}, {gi*4096}")
                p.vmem(f"buffer_load_dwordx2 {v(XE+2*gi,2)}, {v(T+2)}, {srd(SX)}, s{SA} offen")
            p(f"s_lshl_b32 s{SA}, s{SC}, 2\ns_add_u32 s{SA}, s{SA}, {GATE}")
            for gi in range(4): p.vmem(f"buffer_load_dword {v(GE+gi)}, {v(T+3)}, {srd(SWS)}, s{SA} offen offset:{gi*16} sc1")
            ep['t'] = p.vmem(f"global_load_dwordx2 {v(DE,2)}, {v(T+4)}, {sp(PDSK)}")
        T4 = [(0, 0), (1, 0), (1, 1), (0, 1)]
        def ym(s):
            ops = []
            for ks in range(4):
                for (mt, nt) in T4:
                    def m(ks=ks, mt=mt, nt=nt):
                        p.wait(lg=self.yr[(s, ks)])
                        d = v(YA + 16 * (2 * mt + nt), 16); b = 64 * s + 16 * ks
                        p(f"{MF} {d}, {ar(b+4*mt,4)}, {ar(b+8+4*nt,4)}, {'0' if (s, ks) == (0, 0) else d}")
                    ops.append(m)
            return ops
        PA = 80
        pt = {}
        def ploads():
            ops = []
            for nt in range(2):
                for kap in range(11):
                    def f(kap=kap, nt=nt):
                        if kap % 4 == 0: p(f"s_add_u32 s{SB_}, s{SE}, {nt*45056+kap*1024}")
                        pt[(kap, nt)] = p.vmem(f"buffer_load_dwordx4 {v(PA+(kap*2+nt)*4,4)}, {v(P10 if kap == 10 else VL16)}, {srd(SWS)}, s{SB_} offen offset:{(kap%4)*1024} sc1")
                    ops.append(f)
            return ops
        wo = {}
        def wo_dma():
            items = []
            for (i0, i1, base) in [(18, 22, 0), (0, 18, 22528)]:
                for i in range(i0, i1):
                    def cb(t, i=i): wo[i] = t
                    k = i - i0
                    items.append(((SREG, base + k * 1024) if k % 4 == 0 else None, (SXB, i * 8192) if k % 4 == 0 else None,
                                  f"buffer_load_dwordx4 {v(self.WD+k%4)}, {srd(SWOUT)}, s{SDO} offen offset:{(k%4)*1024} lds", cb))
            return self.dseq(items)
        def wo_rd(kap):
            def f():
                p.wait(vm=wo[2 * kap + 1], lg=p.lg - 12)
                for mt in range(2):
                    for a in range(2):
                        base = 22528 + kap * 2048 if kap < 9 else (kap - 9) * 2048
                        wo[('r', kap)] = p.lds(f"ds_read_b64_tr_b16 {ar((kap*2+mt)*4+2*a,2)}, {v(self.WT_+mt)} offset:{base+a*512}")
            return f
        def pflag():
            p.wait(vm=self.tp); self.flag(SLATE, 220)
        pl = {}
        def pf_issue(): pl['t'] = p.vmem(f"buffer_load_dword {v(PL+1)}, {v(PL)}, {srd(SWS)}, 0 offen sc1")
        def pf_check():
            l = p.label("pp"); d = p.label("pd")
            p.wait(vm=pl['t'])
            p(f"s_mov_b32 s{SSPIN}, 0")
            p.put(l)
            p(f"v_cmp_ne_u32 vcc, s{ST_T}, {v(PL+1)}\ns_and_b32 s{SF}, vcc_lo, 0xff\ns_cbranch_scc0 {d}")
            p(f"buffer_load_dword {v(PL+1)}, {v(PL)}, {srd(SWS)}, 0 offen sc1\ns_waitcnt vmcnt(0)")
            p(f"s_add_u32 s{SSPIN}, s{SSPIN}, 1\ns_cmp_lt_u32 s{SSPIN}, {SPIN}\ns_cbranch_scc1 {l}")
            p.put(d)
        su = self.cap(setup)
        lgw = lambda: p.wait(lg=p.lg - 1)
        y2, y3, wd, pl_ = self.y_dma(2), self.y_dma(3), wo_dma(), ploads()
        self.run(merge(merge(ym(0), su), self.y1 + [lgw] + y2[:5]))
        self.run([pflag] + y2[5:13])
        self.run(merge(self.y_read(1), y2[13:] + [eloads]))
        self.stamp(11)
        self.run(merge(ym(1), [lgw] + y3))
        self.run(merge(self.y_read(2), wd[:5]))
        self.run(merge(ym(2), [lgw] + wd[5:14] + [pf_issue] + wd[14:]))
        self.run(self.y_read(3))
        pf_check(); self.stamp(12)
        self.run(merge(ym(3), pl_[:12]))
        prest = pl_[12:]
        self.stamp(13)
        def redw(acc, base, tiles):
            return [(lambda mt=mt, nt=nt, i=i: p.lds(f"ds_write_b128 {v(WA+i)}, {v(acc+16*(2*mt+nt)+4*i,4)} offset:{base+nt*8192+mt*128}"))
                    for (mt, nt) in tiles for i in range(4)]
        def bm(kap, mt, nt):
            def m():
                p.wait(vm=pt[(kap, nt)], lg=wo[('r', kap)])
                d = v(YA + 16 * (2 * mt + nt), 16)
                p(f"{MF} {d}, {ar((kap*2+mt)*4,4)}, {v(PA+(kap*2+nt)*4,4)}, {d}")
            return m
        def yscale(mt, nt, pk=True):
            if pk: return [(lambda i=i: p(f"v_pk_mul_f32 {v(YA+16*(2*mt+nt)+2*i,2)}, {v(YA+16*(2*mt+nt)+2*i,2)}, {v(self.GY+2*nt,2)} op_sel_hi:[1,0]")) for i in range(8)]
            return [(lambda i=i: p(f"v_mul_f32 {v(YA+16*(2*mt+nt)+i)}, {v(YA+16*(2*mt+nt)+i)}, {v(self.GY+2*nt)}")) for i in range(16)]
        DU, X = 168, 0
        XP = [4, 8, 12, 172]
        def xpart():
            p = self.p
            self.unpack(DU, DE); self.unpack(DU + 2, DE + 1)
            for gi in range(4):
                x = XP[gi]
                self.unpack(x, XE + 2 * gi); self.unpack(x + 2, XE + 2 * gi + 1)
                for k in range(4): p(f"v_mul_f32 {v(x+k)}, {v(x+k)}, {v(DU+k)}")
                for k in range(4): p(f"v_mul_f32 {v(x+k)}, {v(x+k)}, {v(GE+gi)}")
        self.run(merge(merge(yscale(0, 0) + yscale(1, 0) + yscale(1, 1) + yscale(0, 1), prest), [wo_rd(k) for k in range(11)]))
        mm0 = [bm(kap, mt, 0) for kap in range(11) for mt in range(2)]
        self.run(merge(mm0, [lambda: p.wait(vm=ep['t'])] + self.cap(xpart)))
        mm1 = [bm(kap, 0, 1) for kap in range(11)]
        mm2 = [bm(kap, 1, 1) for kap in range(11)]
        self.run(merge(mm1, redw(YA, 0, [(0, 0), (1, 0)]), 2))
        self.run(merge(mm2, redw(YA, 0, [(0, 1)]), 4))
        self.run(redw(YA, 0, [(1, 1)]))
        p.wait_lg_all(); p("s_barrier")
        self.stamp(14)
        tk = {}
        def R(gi, s): return 16 + 16 * gi + 4 * s
        for gi in range(4):
            p.wait(lg=p.lg - 12)
            for s_ in range(4):
                tk[gi] = p.lds(f"ds_read_b128 {v(R(gi,s_),4)}, {v(RA+2*(s_>>1)+(gi&1))} offset:{(s_&1)*40960+gi*1024}")
        p(f"s_lshl_b32 s{SD}, s{SD}, 1")
        for gi in range(4):
            y = R(gi, 0)
            p.wait(lg=tk[gi])
            for hh in (0, 2):
                p(f"v_pk_add_f32 {v(y+hh,2)}, {v(y+hh,2)}, {v(y+4+hh,2)}\nv_pk_add_f32 {v(y+8+hh,2)}, {v(y+8+hh,2)}, {v(y+12+hh,2)}")
            for hh in (0, 2): p(f"v_pk_add_f32 {v(y+hh,2)}, {v(y+hh,2)}, {v(XP[gi]+hh,2)}")
            for hh in (0, 2): p(f"v_pk_add_f32 {v(y+hh,2)}, {v(y+hh,2)}, {v(y+8+hh,2)}")
            p(f"s_add_u32 s{SA}, s{SD}, {gi*8192}")
            p.vmem(f"buffer_store_dwordx4 {v(y,4)}, {v(OV)}, {srd(SOUT)}, s{SA} offen{' ' + o['outmod'] if 'outmod' in o else ''}")
        ne = p.label("ne")
        p(f"s_lshl_b32 s{SA}, s{STB}, 3\ns_add_u32 s{SA}, s{SA}, s{SCOL}\ns_lshl_b32 s{SA}, s{SA}, 2\ns_add_u32 s{SA}, s{SA}, s{SWV}")
        p(f"s_cmp_eq_u32 s{SA}, {255*4}\ns_cbranch_scc0 {ne}")
        p(f"s_mov_b32 s{SA}, {EPOCH}")
        self.flag(SA, 220)
        p.put(ne)
        if o.get("stamps"):
            self.stamp(15)
            p(f"s_lshl_b32 s{SA}, s2, 2\ns_add_u32 s{SA}, s{SA}, s{SWV}\ns_lshl_b32 s{SA}, s{SA}, 8\ns_add_u32 s{SA}, s{SA}, {DBG}")
            p(f"v_lshlrev_b32 v254, 2, {v(VL)}")
            p.vmem(f"buffer_store_dword v255, v254, {srd(SWS)}, s{SA} offen")
        p.put(self.END)
        p("s_endpgm")

    def build(self):
        self.prologue()
        self.phase_z()
        self.p.vm_done = -1; self.p.lg_done = -1
        self.p("s_nop 15")
        self.phase_u()
        self.phase_g()
        self.phase_c()
        lines, added = hazard_pass([x for l in self.p.L for x in l.split(chr(10))])
        hdr = open("gated_mix__ssm_conv_s5__mixer_gmlp__prompt.s.ref").read().split("; Override")[0]
        s = hdr + "; @launch grid=(256,1,1) block=(256,1,1) lds=163840\n"
        s += '.amdgcn_target "amdgcn-amd-amdhsa--gfx950"\n.text\n'
        s += f".globl {NAME}\n.p2align 8\n.type {NAME},@function\n{NAME}:\n"
        s += "\n".join((l if l.endswith(":") else "    " + l) for l in lines) + "\n"
        s += f""".section .rodata,"a"
.p2align 6
.amdhsa_kernel {NAME}
  .amdhsa_next_free_vgpr 512
  .amdhsa_next_free_sgpr 102
  .amdhsa_accum_offset 256
  .amdhsa_group_segment_fixed_size 0
  .amdhsa_kernarg_size 144
  .amdhsa_user_sgpr_count 2
  .amdhsa_user_sgpr_kernarg_segment_ptr 1
  .amdhsa_system_sgpr_workgroup_id_x 1
  .amdhsa_float_denorm_mode_32 3
.end_amdhsa_kernel
"""
        return s, added

if __name__ == "__main__":
    out = sys.argv[1]
    opt = {}
    for a in sys.argv[2:]:
        k, _, val = a.partition("=")
        try: opt[k] = int(val) if val else 1
        except ValueError: opt[k] = val
    s, added = G(opt).build()
    open(out, "w").write(s)
    print("wrote", out, "nops added", added, "lines", s.count("\n"))
```

```python
import sys, math, struct
from core import *

NAME = "gated_mix__ssm_conv_s5__mixer_gmlp__prompt_kernel"
EPOCH = 0; GATE = 0x4000
ST = 0x10000; EG = 0x50000; DBG = 0x80000
Z2N = 0x100000; Z1 = 0x400000; PB = 0x700000; HB = 0xA00000
ZF = 0xE00000; HF = 0xE10000; PF = 0xE20000; Z1F = 0xE40000; WS_END = 0xE50000
OOB = 0x80000000
SPIN = 200000
SX, SW1, SWSP, SWS, SCRE, SCIM, SWOUT, SOUT = 4, 8, 12, 16, 20, 24, 28, 32
PLRE, PLIM, PLDT, PDSK, PBSP, PGW, PBRE, PBIM, PWIN = 36, 38, 40, 42, 44, 46, 48, 50, 52
ST_T = 100
SWV, SRB, SCOL, STB = 56, 57, 58, 59
SA, SB_, SC, SD = 60, 61, 62, 63
SSTMP = 64
SDO, SWB, SPB0, SPST, SPSP = 68, 69, 70, 71, 72
SXB, SW1B, SXL, SWL = 73, 74, 75, 76
SPC = 77
SCB, SHB = 78, 79
SK = 80
SREG = 96
SE, SF = 97, 98
SSPIN = 99
SLATE = 101
SJ = 3
SGB = 95
SZI = 72
SPB = 90
def srd(b): return f"s[{b}:{b+3}]"
def v(a, n=1): return f"v{a}" if n == 1 else f"v[{a}:{a+n-1}]"
def ar(a, n=1): return f"a{a}" if n == 1 else f"a[{a}:{a+n-1}]"
def sp(a): return f"s[{a}:{a+1}]"
VL, VL16, VOOB = 1, 2, 3
LOG2E = 1.4426950408889634
def f2u(x): return struct.unpack("<I", struct.pack("<f", x))[0]
MF = "v_mfma_f32_32x32x16_bf16"

class G:
    def __init__(self, opt):
        self.o = opt
        self.p = Prog()

    def stamp(self, k):
        if self.o.get("spin_from") == k:
            p = self.p
            p(f"s_memrealtime s[{SSTMP}:{SSTMP+1}]"); p.wait_lg_all()
            p(f"v_mov_b32 v254, s{SSTMP}")
        if self.o.get("stamps"):
            p = self.p
            p(f"s_memrealtime s[{SSTMP}:{SSTMP+1}]\ns_memtime s[{SSTMP+2}:{SSTMP+3}]"); p.wait_lg_all()
            p(f"v_writelane_b32 v255, s{SSTMP}, {k}\nv_writelane_b32 v255, s{SSTMP+2}, {k+32}")
    def cap(self, fn):
        sub = Prog(); save = self.p; self.p = sub
        fn()
        self.p = save
        assert sub.vm == 0 and sub.lg == 0
        return [(lambda l=l: self.p(l)) for l in sub.L]
    def run(self, ops):
        for op in ops: op()
    def dseq(self, items):
        p = self.p
        def setup(it):
            if it[0] is not None: p(f"s_add_u32 m0, s{it[0][0]}, {it[0][1]}")
            if it[1] is not None: p(f"s_add_u32 s{SDO}, s{it[1][0]}, {it[1][1]}")
        ops = [lambda: setup(items[0])]
        for i, it in enumerate(items):
            def f(i=i, it=it):
                t = p.vmem(it[2])
                if it[3]: it[3](t)
                if i + 1 < len(items): setup(items[i + 1])
            ops.append(f)
        return ops
    def poll_addr(self, vt, groups):
        p = self.p; n0 = 0
        p(f"v_mov_b32 {v(vt)}, {v(VOOB)}")
        for (sr, n) in groups:
            if n == 1: p(f"v_writelane_b32 {v(vt)}, s{sr}, {n0}")
            else:
                p(f"s_sub_u32 s{sr}, s{sr}, {n0*128}\nv_lshl_add_u32 {v(vt+1)}, {v(VL)}, 7, s{sr}")
                m = ((1 << n) - 1) << n0
                p(f"s_mov_b32 vcc_lo, {m & 0xffffffff}\ns_mov_b32 vcc_hi, {m >> 32}\nv_cndmask_b32 {v(vt)}, {v(vt)}, {v(vt+1)}, vcc")
            n0 += n
        return n0
    def poll(self, vt, n):
        p = self.p
        l = p.label("poll"); d = p.label("pd")
        p(f"s_mov_b32 s{SSPIN}, 0")
        p.put(l)
        p.vmem(f"buffer_load_dword {v(vt+1)}, {v(vt)}, {srd(SWS)}, 0 offen sc1")
        p.wait_vm_all()
        p(f"v_cmp_ne_u32 vcc, s{ST_T}, {v(vt+1)}")
        if n <= 32: p(f"s_and_b32 s{SF}, vcc_lo, {(1<<n)-1}")
        else: p(f"s_and_b32 vcc_hi, vcc_hi, {(1<<(n-32))-1}\ns_or_b32 s{SF}, vcc_lo, vcc_hi")
        p(f"s_cbranch_scc0 {d}")
        p(f"s_add_u32 s{SSPIN}, s{SSPIN}, 1\ns_cmp_lt_u32 s{SSPIN}, {SPIN}\ns_cbranch_scc1 {l}")
        p.put(d)
    def flag_prep(self, vt):
        p = self.p
        p(f"v_mov_b32 {v(vt)}, s{ST_T}\nv_mov_b32 {v(vt+1)}, {v(VOOB)}\nv_writelane_b32 {v(vt+1)}, 0, 0")
    def flag(self, off_sreg, vt):
        self.p.vmem(f"buffer_store_dword {v(vt)}, {v(vt+1)}, {srd(SWS)}, s{off_sreg} offen sc1")
    def xhalf_sum(self, a, t):
        self.p(f"v_mov_b32 {v(t)}, {v(a)}\nv_permlane32_swap_b32 {v(a)}, {v(t)}\nv_add_f32 {v(a)}, {v(a)}, {v(t)}")
    def rnd(self, d, s):
        self.p(f"v_cvt_pk_bf16_f32 {v(d)}, {v(s)}, {v(s)}\nv_lshlrev_b32 {v(d)}, 16, {v(d)}")
    def unpack(self, d, s):
        self.p(f"v_and_b32 {v(d+1)}, 0xffff0000, {v(s)}\nv_lshlrev_b32 {v(d)}, 16, {v(s)}")
    def plain_read_addr(self, dst4, base_sreg, t):
        p = self.p
        p(f"v_and_b32 {v(t)}, 31, {v(VL)}\nv_lshlrev_b32 {v(t)}, 7, {v(t)}")
        if base_sreg is not None: p(f"v_add_u32 {v(t)}, s{base_sreg}, {v(t)}")
        p(f"v_bfe_u32 {v(t+1)}, {v(VL)}, 1, 3\nv_lshrrev_b32 {v(dst4)}, 5, {v(VL)}\nv_xor_b32 {v(t+1)}, {v(t+1)}, {v(dst4)}")
        p(f"v_lshlrev_b32 {v(t+1)}, 4, {v(t+1)}")
        for ks in range(4):
            p(f"v_xor_b32 {v(dst4+ks)}, {32*ks}, {v(t+1)}\nv_add_u32 {v(dst4+ks)}, {v(dst4+ks)}, {v(t)}")
    def plain_dma_addr(self, dst4, rowbytes, t, rowstep=8):
        p = self.p
        p(f"v_lshrrev_b32 {v(t)}, 3, {v(VL)}\nv_mul_u32_u24 {v(t)}, {rowbytes}, {v(t)}")
        self.plain_dma_addr2(dst4, t, t + 1, rowstep * rowbytes)
    def plain_dma_addr2(self, dst4, vrow, t, step):
        p = self.p
        p(f"v_and_b32 {v(t)}, 7, {v(VL)}\nv_lshrrev_b32 {v(dst4)}, 4, {v(VL)}\nv_xor_b32 {v(t)}, {v(t)}, {v(dst4)}\nv_lshlrev_b32 {v(t)}, 4, {v(t)}")
        p(f"v_add_u32 {v(dst4)}, {v(t)}, {v(vrow)}")
        p(f"v_xor_b32 {v(t)}, 64, {v(t)}\nv_add_u32 {v(dst4+1)}, {v(t)}, {v(vrow)}")
        p(f"v_add_u32 {v(dst4+2)}, {2*(step-1024)}, {v(dst4)}\nv_add_u32 {v(dst4+3)}, {3*(step-1024)}, {v(dst4+1)}\nv_add_u32 {v(dst4+1)}, {step-1024}, {v(dst4+1)}")
    def panel_tr_addr(self, dst2, base_sreg, t, perm):
        p = self.p
        p(f"v_lshrrev_b32 {v(t)}, 5, {v(VL)}\nv_lshlrev_b32 {v(t)}, 10, {v(t)}")
        p(f"v_bfe_u32 {v(t+1)}, {v(VL)}, 2, 2\nv_lshl_add_u32 {v(t)}, {v(t+1)}, 7, {v(t)}")
        p(f"v_bfe_u32 {v(t+1)}, {v(VL)}, 4, 1\nv_lshl_add_u32 {v(t)}, {v(t+1)}, 5, {v(t)}")
        if perm:
            p(f"v_and_b32 {v(t+1)}, 1, {v(VL)}\nv_lshl_add_u32 {v(t)}, {v(t+1)}, 4, {v(t)}")
            p(f"v_bfe_u32 {v(t+1)}, {v(VL)}, 1, 1\nv_lshl_add_u32 {v(t)}, {v(t+1)}, 3, {v(t)}")
        else:
            p(f"v_and_b32 {v(t+1)}, 3, {v(VL)}\nv_lshl_add_u32 {v(t)}, {v(t+1)}, 3, {v(t)}")
        p(f"v_bfe_u32 {v(t+1)}, {v(VL)}, 3, 1\nv_lshlrev_b32 {v(t+1)}, 6, {v(t+1)}")
        if base_sreg is not None: p(f"v_add_u32 {v(t)}, s{base_sreg}, {v(t)}")
        p(f"v_add_u32 {v(dst2)}, {v(t)}, {v(t+1)}\nv_xor_b32 {v(t+1)}, 64, {v(t+1)}\nv_add_u32 {v(dst2+1)}, {v(t)}, {v(t+1)}")
    def unit_tr_addr(self, dst2, base_sreg, t, perm, flip_sreg=None):
        p = self.p
        p(f"v_bfe_u32 {v(t)}, {v(VL)}, 4, 1")
        if flip_sreg is not None: p(f"v_xor_b32 {v(t)}, s{flip_sreg}, {v(t)}")
        p(f"v_lshlrev_b32 {v(t)}, 1, {v(t)}")
        p(f"v_bfe_u32 {v(t+1)}, {v(VL)}, {0 if perm else 1}, 1\nv_or_b32 {v(t)}, {v(t)}, {v(t+1)}")
        p(f"v_lshrrev_b32 {v(t+1)}, 5, {v(VL)}\nv_lshlrev_b32 {v(t+1)}, 1, {v(t+1)}\nv_xor_b32 {v(t+1)}, {v(t+1)}, {v(t)}")
        p(f"v_lshlrev_b32 {v(t)}, 9, {v(t)}")
        p(f"v_bfe_u32 {v(t+2)}, {v(VL)}, 2, 2\nv_lshl_add_u32 {v(t)}, {v(t+2)}, 4, {v(t)}")
        p(f"v_bfe_u32 {v(t+2)}, {v(VL)}, {1 if perm else 0}, 1\nv_lshl_add_u32 {v(t)}, {v(t+2)}, 3, {v(t)}")
        if base_sreg is not None: p(f"v_add_u32 {v(t)}, s{base_sreg}, {v(t)}")
        p(f"v_lshl_add_u32 {v(dst2)}, {v(t+1)}, 6, {v(t)}")
        p(f"v_xor_b32 {v(t+1)}, 1, {v(t+1)}\nv_lshl_add_u32 {v(dst2+1)}, {v(t+1)}, 6, {v(t)}")

    def gemm_loop(self, nslot, reads, mfmas, dma, tick, rfront, npro, extra, valu=None):
        p = self.p
        p.wait(vm=tick[0]); p("s_barrier")
        self.stamp(20)
        self.run(reads(0))
        d = []
        for st in range(npro, nslot): d += dma(st)
        q = (len(d) + 2) // 3
        pend = [d[i * q:(i + 1) * q] for i in range(3)]
        for n in range(32):
            rd = []
            if n + 1 < 32:
                if (n + 1) % 4 == 0:
                    st = (n + 1) // 4
                    p.wait(vm=tick[st], lg=p.lg - 1); p("s_barrier")
                    d = dma(st - 1 + nslot) if st - 1 + nslot < 8 else extra.get(st, lambda: [])()
                    q = (len(d) + 3) // 4
                    pend = [d[i * q:(i + 1) * q] for i in range(4)]
                rd = reads(n + 1)
            seq = merge(mfmas(n), rd, 0, rfront)
            if pend: seq = merge(seq, pend.pop(0), len(seq) // 2)
            if valu and n in valu: seq = merge(seq, valu[n])
            self.run(seq)

    def gate(self, GX, GW, GU, GS, GT):
        p = self.p
        for i in range(4):
            for r in range(4):
                p(f"v_dot2_f32_bf16 {v(GS+r)}, {v(GX+4*r+i)}, {v(GW+i)}, {'0' if i == 0 else v(GS+r)}")
        p("s_nop 2")
        for mod in ["quad_perm:[1,0,3,2]", "quad_perm:[2,3,0,1]", "row_half_mirror", "row_mirror"]:
            for r in range(4): p(f"v_add_f32_dpp {v(GS+r)}, {v(GS+r)}, {v(GS+r)} {mod} row_mask:0xf bank_mask:0xf")
        for sw in ["v_permlane16_swap_b32", "v_permlane32_swap_b32"]:
            for r in range(4): p(f"v_mov_b32 {v(GT+r)}, {v(GS+r)}")
            for r in range(4): p(f"{sw} {v(GS+r)}, {v(GT+r)}")
            for r in range(4): p(f"v_add_f32 {v(GS+r)}, {v(GS+r)}, {v(GT+r)}")
        for r in range(4): p(f"v_mul_f32 {v(GS+r)}, {f2u(-LOG2E)}, {v(GS+r)}")
        for r in range(4): p(f"v_exp_f32 {v(GS+r)}, {v(GS+r)}")
        for r in range(4): p(f"v_add_f32 {v(GS+r)}, 1.0, {v(GS+r)}")
        for r in range(4): p(f"v_rcp_f32 {v(GS+r)}, {v(GS+r)}")
        p(f"v_mov_b32 {v(GT)}, {v(VOOB)}\nv_writelane_b32 {v(GT)}, 0, 0")

    def w_dma_addr(self, dst3, t, colbase):
        p = self.p
        for i in range(3):
            p(f"v_add_u32 {v(t)}, {64*i}, {v(VL)}\nv_mul_u32_u24 {v(t+1)}, 171, {v(t)}\nv_lshrrev_b32 {v(t+1)}, 11, {v(t+1)}")
            p(f"v_mul_u32_u24 {v(t+2)}, 12, {v(t+1)}\nv_sub_u32 {v(t)}, {v(t)}, {v(t+2)}\nv_cmp_eq_u32 vcc, 11, {v(t)}")
            p(f"v_mul_u32_u24 {v(t+1)}, 2752, {v(t+1)}\nv_lshl_add_u32 {v(t)}, {v(t)}, 4, {v(t+1)}")
            if colbase - 1024 * i: p(f"v_add_u32 {v(t)}, {colbase-1024*i}, {v(t)}")
            p(f"v_cndmask_b32 {v(dst3+i)}, {v(t)}, {v(VOOB)}, vcc")
    def w_tr_addr(self, dst, base, t):
        p = self.p
        p(f"v_lshrrev_b32 {v(t)}, 5, {v(VL)}\nv_bfe_u32 {v(t+1)}, {v(VL)}, 2, 2\nv_lshl_add_u32 {v(t)}, {v(t)}, 3, {v(t+1)}\nv_mul_u32_u24 {v(t)}, 192, {v(t)}")
        p(f"v_bfe_u32 {v(t+1)}, {v(VL)}, 4, 1\nv_lshl_add_u32 {v(t)}, {v(t+1)}, 5, {v(t)}")
        p(f"v_and_b32 {v(t+1)}, 1, {v(VL)}\nv_lshl_add_u32 {v(t)}, {v(t+1)}, 4, {v(t)}")
        p(f"v_bfe_u32 {v(t+1)}, {v(VL)}, 1, 1\nv_lshl_add_u32 {v(t)}, {v(t+1)}, 3, {v(t)}")
        p(f"v_add_u32 {v(dst)}, {base}, {v(t)}")
    def valid_masks(self):
        MA, MB = SK + 2, SK + 4
        self.p.atom(f"s_cmp_lt_u32 s{SCOL}, 7\ns_mov_b32 s{MA}, -1\ns_cselect_b32 s{MA+1}, -1, 0\ns_cselect_b32 s{MB}, -1, 0\ns_mov_b32 s{MB+1}, 0\n"
                    f"s_mov_b32 s{SK+6}, {f2u(1/72)}\ns_cselect_b32 s{SK+6}, {f2u(1/88)}, s{SK+6}")
        c1 = -2 * LOG2E * 0.7978845608028654
        self.p(f"s_mov_b32 s{SK}, {f2u(c1*0.044715)}\nv_mov_b32 {v(self.VC0)}, {f2u(c1)}")

    def gelu_pair(self, a, t, out_packed=None):
        p = self.p
        p(f"v_pk_mul_f32 {v(t,2)}, {v(a,2)}, {v(a,2)}")
        p(f"v_pk_fma_f32 {v(t,2)}, {v(t,2)}, {sp(SK)}, {v(self.VC0,2)} op_sel_hi:[1,0,0]")
        p(f"v_pk_mul_f32 {v(t,2)}, {v(t,2)}, {v(a,2)}")
        p(f"v_exp_f32 {v(t)}, {v(t)}\nv_exp_f32 {v(t+1)}, {v(t+1)}")
        p(f"v_pk_add_f32 {v(t,2)}, {v(t,2)}, 1.0 op_sel_hi:[1,0]")
        p(f"v_rcp_f32 {v(t)}, {v(t)}\nv_rcp_f32 {v(t+1)}, {v(t+1)}")
        if out_packed is not None:
            p(f"v_pk_mul_f32 {v(t,2)}, {v(t,2)}, {v(a,2)}")
            p(f"v_cvt_pk_bf16_f32 {v(out_packed)}, {v(t)}, {v(t+1)}")
        else:
            p(f"v_pk_mul_f32 {v(a,2)}, {v(t,2)}, {v(a,2)}")
    def gelu_many(self, pairs, temps, outs=None):
        p = self.p; ng = len(temps)
        for g0 in range(0, len(pairs), ng):
            streams = []
            for k, i in enumerate(range(g0, min(g0 + ng, len(pairs)))):
                sub = Prog(); save = self.p; self.p = sub
                self.gelu_pair(pairs[i], temps[k], None if outs is None else outs[i])
                self.p = save
                streams.append(sub.L)
            for j in range(len(streams[0])):
                for s in streams: p(s[j])

    VWD, VWR, VWA, VC0 = 240, 244, 248, 252
    def wsp_setup(self, t):
        p = self.p
        self.plain_dma_addr(self.VWD, 4096, t)
        p(f"s_and_b32 s{SA}, s{SWV}, 1\ns_lshl_b32 s{SA}, s{SA}, 12")
        self.plain_read_addr(self.VWR, SA, t)
        p(f"s_lshl_b32 s{SWB}, s{STB}, 18\ns_lshl_b32 s{SB_}, s{SWV}, 10\ns_add_u32 s{SWB}, s{SWB}, s{SB_}")
        self.wsp_t = {}
    def piece(self, st): return (SPB + st % 5, 0)
    def wsp_dma(self, st):
        if self.o.get("x_nowsp") and st >= 2:
            self.wsp_t[st] = -1
            return [lambda: None] * 9
        items = []; sr, im = self.piece(st)
        for hh in range(2):
            for i in range(4):
                def cb(t): self.wsp_t[st] = t
                items.append(((sr, im + hh * 4096) if i == 0 else None, (SWB, st * 128 + hh * 131072) if i == 0 else None,
                              f"buffer_load_dwordx4 {v(self.VWD+i)}, {srd(SWSP)}, s{SDO} offen offset:{i*1024} lds", cb))
        return self.dseq(items)
    def wsp_read(self, st):
        if self.o.get("x_nord"): return [lambda: None]
        p = self.p; sr, im = self.piece(st)
        def pre():
            for ks in range(4): p(f"v_add_u32 {v(self.VWA+ks)}, s{sr}, {v(self.VWR+ks)}")
            p.wait(vm=self.wsp_t[st], lg=p.lg - 8)
        ops = [pre]
        for nt in range(2):
            for ks in range(4):
                def f(ks=ks, nt=nt):
                    p.lds(f"ds_read_b128 {ar(((st*4+ks)*2+nt)*4,4)}, {v(self.VWA+ks)} offset:{im}")
                    if nt == 0: p(f"v_xor_b32 {v(self.VWA+ks)}, 4096, {v(self.VWA+ks)}")
                ops.append(f)
        return ops

    def prologue(self):
        p = self.p
        self.END = p.label("end")
        p(f"s_cmp_ge_u32 s2, 256\ns_cbranch_scc1 {self.END}")
        p(f"s_load_dwordx2 {sp(SX)}, s[0:1], 0\ns_load_dwordx2 {sp(PWIN)}, s[0:1], 80\ns_load_dwordx4 s[{PBRE}:{PBRE+3}], s[0:1], 24")
        p(f"s_load_dwordx2 {sp(PGW)}, s[0:1], 112\ns_load_dwordx4 s[{PLRE}:{PLRE+3}], s[0:1], 8\ns_load_dwordx2 {sp(PLDT)}, s[0:1], 56\ns_load_dwordx2 {sp(SWS)}, s[0:1], 136")
        p(f"v_lshrrev_b32 v2, 6, v0\nv_and_b32 {v(VL)}, 63, v0\nv_readfirstlane_b32 s{SWV}, v2\nv_lshlrev_b32 {v(VL16)}, 4, {v(VL)}\nv_mov_b32 {v(VOOB)}, {OOB}")
        if self.o.get("stamps"): p("v_mov_b32 v255, 0")
        self.stamp(17)
        p(f"s_and_b32 s{SA}, s2, 7\ns_lshr_b32 s{SB_}, s2, 3")
        p(f"s_and_b32 s{SC}, s{SA}, 1\ns_lshl_b32 s{SC}, s{SC}, 2\ns_and_b32 s{SD}, s{SB_}, 3\ns_add_u32 s{SCOL}, s{SC}, s{SD}")
        p(f"s_lshr_b32 s{SA}, s{SA}, 1")
        p(f"s_lshr_b32 s{SC}, s{SB_}, 2\ns_lshl_b32 s{SD}, s{SA}, 3\ns_add_u32 s{STB}, s{SD}, s{SC}")
        p(f"s_and_b32 s{SC}, s{SC}, 3\ns_lshl_b32 s{SD}, s{SA}, 2\ns_add_u32 s{SRB}, s{SD}, s{SC}")
        if self.o.get("map", 1) == 1:
            p(f"s_and_b32 s{SD}, s2, 7\ns_lshl_b32 s{SD}, s{SD}, 2\ns_lshr_b32 s{STB}, s{SB_}, 3\ns_add_u32 s{STB}, s{STB}, s{SD}\ns_and_b32 s{SJ}, s{SB_}, 7")
        else: p(f"s_mov_b32 s{SJ}, s{SCOL}")
        p(f"s_mov_b32 s{SX+2}, 2097152\ns_mov_b32 s{SX+3}, 0x20000\ns_mov_b32 s{SW1+3}, 0x20000")
        self.LU = p.label("U"); self.LG = p.label("G")
        p(f"s_cmp_ge_u32 s{SB_}, 16\ns_cbranch_scc1 {self.LU}")
    def code_prefetch(self, va, vd):
        if not self.o.get("cpf", 1): return
        p = self.p
        sk = p.label("cpf"); here = p.label("pc")
        nsl = self.o.get("cpfn", 6)
        p(f"s_lshr_b32 s{SA}, s2, 3\ns_and_b32 s{SA}, s{SA}, 15\ns_lshl_b32 s{SA}, s{SA}, 2\ns_add_u32 s{SA}, s{SA}, s{SWV}")
        p(f"s_cmp_ge_u32 s{SA}, {nsl}\ns_cbranch_scc1 {sk}")
        p(f"s_getpc_b64 s[{SSTMP}:{SSTMP+1}]")
        p.put(here)
        p(f"s_sub_u32 s{SSTMP}, s{SSTMP}, {here}-{NAME}\ns_subb_u32 s{SSTMP+1}, s{SSTMP+1}, 0")
        p(f"s_lshl_b32 s{SA}, s{SA}, 13\nv_lshl_add_u32 {v(va)}, {v(VL)}, 7, s{SA}\nv_min_u32 {v(va)}, {self.END}-{NAME}, {v(va)}")
        p(f"global_load_dword {v(vd)}, {v(va)}, s[{SSTMP}:{SSTMP+1}]")
        p.put(sk)
    def late_args(self):
        p = self.p
        for (r, off) in [(SWSP, 88), (SCRE, 40), (SCIM, 48), (SWOUT, 104), (SOUT, 120), (PDSK, 64), (PBSP, 96)]:
            p(f"s_load_dwordx2 {sp(r)}, s[0:1], {off}")
        p(f"s_load_dword s{ST_T}, {sp(SWS)}, {EPOCH}")
        for (r, n) in [(SWSP, 8388608), (SWS, WS_END), (SCRE, 524288), (SCIM, 524288), (SWOUT, 704512), (SOUT, 4194304)]:
            p(f"s_mov_b32 s{r+2}, {n}\ns_mov_b32 s{r+3}, 0x20000")
    def epoch2(self):
        p = self.p
        p.wait_lg_all()
        p(f"s_mul_i32 s{ST_T}, s{ST_T}, 0x9E3779B1\ns_add_u32 s{ST_T}, s{ST_T}, 0x7F4A7C15")

    def touch_wsp(self, va, vd):
        p = self.p
        p(f"v_lshlrev_b32 {v(va)}, 7, {v(VL)}\ns_lshr_b32 s{SB_}, s2, 3\ns_lshl_b32 s{SB_}, s{SB_}, 2\ns_add_u32 s{SB_}, s{SB_}, s{SWV}\ns_lshl_b32 s{SB_}, s{SB_}, 13")
        p(f"s_and_b32 s{SA}, s2, 7\ns_lshl_b32 s{SA}, s{SA}, 20\ns_add_u32 s{SA}, s{SA}, s{SB_}")
        p.vmem(f"buffer_load_dword {v(vd)}, {v(va)}, {srd(SWSP)}, s{SA} offen")
    def touch_c(self, va, vd):
        p = self.p
        p(f"v_lshlrev_b32 {v(va)}, 7, {v(VL)}\ns_lshr_b32 s{SB_}, s2, 3\ns_lshl_b32 s{SB_}, s{SB_}, 2\ns_add_u32 s{SB_}, s{SB_}, s{SWV}\ns_lshl_b32 s{SA}, s{SB_}, 13")
        p.vmem(f"buffer_load_dword {v(vd)}, {v(va)}, {srd(SWOUT)}, s{SA} offen")
        p.vmem(f"buffer_load_dword {v(vd)}, {v(va)}, {srd(SCRE)}, s{SA} offen")
        p.vmem(f"buffer_load_dword {v(vd)}, {v(va)}, {srd(SCIM)}, s{SA} offen")
        p(f"s_add_u32 s{SA}, s{SA}, 524288")
        p.vmem(f"buffer_load_dword {v(vd)}, {v(va)}, {srd(SWOUT)}, s{SA} offen")
    GTR, GPL = 236, 238
    def g_early(self, t):
        p = self.p
        p(f"s_lshr_b32 s{SA}, s{SWV}, 1")
        self.unit_tr_addr(self.GTR, SREG, t, True, flip_sreg=SA)
        p(f"s_lshl_b32 s{SA}, s{SJ}, 13\ns_add_u32 s{SA}, s{SA}, {ZF}\ns_lshl_b32 s{SB_}, s{SWV}, 11\ns_add_u32 s{SB_}, s{SB_}, s{SA}")
        self.poll_addr(self.GPL, [(SB_, 16)])
        p(f"s_lshl_b32 s{SA}, s{STB}, 8\ns_add_u32 s{SA}, s{SA}, {ZF}")
        p(f"v_bfe_u32 {v(t)}, {v(VL)}, 1, 3\nv_lshlrev_b32 {v(t)}, 13, {v(t)}\nv_and_b32 {v(t+1)}, 1, {v(VL)}\nv_lshl_add_u32 {v(t)}, {v(t+1)}, 7, {v(t)}\nv_add_u32 {v(t)}, s{SA}, {v(t)}")
        p(f"s_mov_b32 vcc_lo, 0xffff0000\ns_mov_b32 vcc_hi, 0\nv_cndmask_b32 {v(self.GPL)}, {v(self.GPL)}, {v(t)}, vcc")
        p(f"s_lshl_b32 s{SA}, s{SJ}, 6\ns_lshl_b32 s{SB_}, s{STB}, 1\ns_add_u32 s{SA}, s{SA}, s{SB_}\ns_and_b32 s{SB_}, s{SWV}, 1\ns_add_u32 s{SZI}, s{SA}, s{SB_}")
        p(f"s_lshl_b32 s{SA}, s{SZI}, 7\ns_add_u32 s{SA}, s{SA}, {Z1F}\nv_writelane_b32 {v(self.GPL)}, s{SA}, 32")
        p(f"s_lshl_b32 s{SA}, s{SJ}, 6\ns_lshl_b32 s{SB_}, s{SWV}, 4\ns_add_u32 s{SA}, s{SA}, s{SB_}\ns_mul_i32 s{SGB}, s{SA}, 5632\ns_add_u32 s{SGB}, s{SGB}, {Z2N}")
    def g_poll_issue(self):
        self.gp = self.p.vmem(f"buffer_load_dword {v(self.GPL+1)}, {v(self.GPL)}, {srd(SWS)}, 0 offen sc1")

    def phase_z(self):
        p = self.p; o = self.o
        ACC, FA, FB, XR, WR, XD, WD, T = 16, 64, 88, 96, 100, 104, 108, 112
        p.c("==== phase A: Z ====")
        self.plain_dma_addr(XD, 1024, T)
        p(f"s_lshl_b32 s{SXB}, s{SRB}, 17\ns_lshl_b32 s{SA}, s{SWV}, 15\ns_add_u32 s{SXB}, s{SXB}, s{SA}")
        p(f"s_mul_i32 s{SREG}, s{SWV}, 40960")
        tick = {}
        def xdma(st, cb=None):
            return [((SREG, (st & 3) * 4096) if i == 0 else None, (SXB, st * 128) if i == 0 else None,
                     f"buffer_load_dwordx4 {v(XD+i)}, {srd(SX)}, s{SDO} offen offset:{i*1024} lds", cb) for i in range(4)]
        def wdma(st, cb=None):
            return [((SWL, (st & 3) * 40960) if i == 0 else None, (SW1B, st * 64 * 2752) if i == 0 else None,
                     f"buffer_load_dwordx4 {v(WD+i)}, {srd(SW1)}, s{SDO} offen offset:{i*1024} lds", cb) for i in range(3)]
        def dma(st):
            def cb(t): tick[st] = t
            return self.dseq(wdma(st) + xdma(st, cb))
        self.w_dma_addr(WD, T, 1376)
        p(f"s_mul_i32 s{SW1B}, s{SWV}, {16*2752}\ns_mul_i32 s{SA}, s{SCOL}, 176\ns_add_u32 s{SW1B}, s{SW1B}, s{SA}")
        p(f"s_mul_i32 s{SWL}, s{SWV}, 3072\ns_add_u32 s{SWL}, s{SWL}, 16384\ns_mov_b32 s{SW1+2}, {512*2752}")
        p.wait_lg_all()
        p(f"s_mov_b64 {sp(SW1)}, {sp(PWIN)}")
        npro = o.get("npro", 3)
        self.code_prefetch(170, 171)
        self.run(dma(0))
        self.late_args()
        def setup():
            self.plain_read_addr(XR, SREG, T)
            self.w_tr_addr(WR, 16384, T)
            self.p(f"v_add_u32 {v(WR+1)}, 81920, {v(WR)}")
            self.wsp_setup(T)
            self.p(f"s_add_u32 s{SPB}, s{SREG}, 32768\ns_mov_b32 s{SPB+1}, s{SREG}\ns_add_u32 s{SPB+2}, s{SREG}, 8192\ns_add_u32 s{SPB+3}, s{SREG}, 16384\ns_add_u32 s{SPB+4}, s{SREG}, 24576")
            self.valid_masks()
        d = []
        for st in range(1, npro): d += dma(st)
        self.run(merge(self.cap(setup), d))
        self.epoch2()
        self.stamp(0)
        rt = {}
        def reads(n):
            st, ks = n // 4, n % 4; sl = st & 3; s = n & 1; ops = []
            def rb(): rt[(n, 'b')] = p.lds(f"ds_read_b128 {v(FB+4*s,4)}, {v(XR+ks)} offset:{sl*4096}")
            ops.append(rb)
            for mt in range(3):
                for a in range(2):
                    def ra(mt=mt, a=a):
                        rt[(n, mt)] = p.lds(f"ds_read_b64_tr_b16 {v(FA+12*s+4*mt+2*a,2)}, {v(WR+(sl>>1))} offset:{(sl&1)*40960+ks*3072+a*768+mt*64}")
                    ops.append(ra)
            return ops
        def mfmas(n):
            s = n & 1; ops = []
            for mt in range(3):
                def m(mt=mt):
                    p.wait(lg=rt[(n, mt)])
                    c = "0" if n == 0 else v(ACC + 16 * mt, 16)
                    p(f"{MF} {v(ACC+16*mt,16)}, {v(FA+12*s+4*mt,4)}, {v(FB+4*s,4)}, {c}")
                ops.append(m)
            return ops
        GX, GW, GU, GS, GT = 128, 144, 148, 156, 160
        gt = {}
        def gload():
            p(f"s_lshl_b32 s{SE}, s{SRB}, 2\ns_add_u32 s{SE}, s{SE}, s{SWV}\ns_lshl_b32 s{SE}, s{SE}, 3\ns_add_u32 s{SE}, s{SE}, s{SCOL}\ns_lshl_b32 s{SA}, s{SE}, 12")
            for r in range(4): p.vmem(f"buffer_load_dwordx4 {v(GX+4*r,4)}, {v(VL16)}, {srd(SX)}, s{SA} offen offset:{r*1024}")
            gt['t'] = p.vmem(f"global_load_dwordx4 {v(GW,4)}, {v(VL16)}, {sp(PGW)}")
        def gstore():
            p(f"s_lshl_b32 s{SA}, s{SE}, 4\ns_add_u32 s{SA}, s{SA}, {GATE}")
            p.vmem(f"buffer_store_dwordx4 {v(GS,4)}, {v(GT)}, {srd(SWS)}, s{SA} offen sc1")
        gops = [lambda: p.wait(vm=gt['t'])] + self.cap(lambda: self.gate(GX, GW, GU, GS, GT)) + [gstore]
        valu = {28: [gload]}
        def touch_u():
            p(f"v_lshlrev_b32 {v(170)}, 7, {v(VL)}\ns_lshr_b32 s{SB_}, s2, 3\ns_lshl_b32 s{SB_}, s{SB_}, 2\ns_add_u32 s{SB_}, s{SB_}, s{SWV}\ns_lshl_b32 s{SB_}, s{SB_}, 13")
            p(f"s_and_b32 s{SA}, s2, 7\ns_lshl_b32 s{SA}, s{SA}, 20\ns_add_u32 s{SA}, s{SA}, s{SB_}\ns_add_u32 s{SA}, s{SA}, {1<<19}")
            p.vmem(f"buffer_load_dword {v(171)}, {v(170)}, {srd(SWSP)}, s{SA} offen")
        if o.get("touchu"): valu[o["touchu"]] = [touch_u]
        if o.get("touch", 0): valu[o.get("tstep", 1)] = [lambda: self.touch_wsp(170, 171)]
        self.gemm_loop(4, reads, mfmas, dma, tick, 2, npro, {5: lambda: self.wsp_dma(0), 6: lambda: self.wsp_dma(1)}, valu)
        self.stamp(1)
        MA, MB = SK + 2, SK + 4
        GR, VLO = 72, 80
        def seg1b():
            p = self.p
            S0, S1, MU = 64, 66, 68
            p(f"v_pk_add_f32 {v(S0,2)}, {v(ACC,2)}, {v(ACC+2,2)}\nv_pk_add_f32 {v(S1,2)}, {v(ACC+4,2)}, {v(ACC+6,2)}")
            for i in range(4, 16):
                s = S0 if i % 2 == 0 else S1
                p(f"v_pk_add_f32 {v(s,2)}, {v(s,2)}, {v(ACC+2*i,2)}")
            for (m, b) in [(MA, 16), (MB, 20)]:
                p(f"s_mov_b64 exec, {sp(m)}")
                for i in range(b, b + 4):
                    s = S0 if i % 2 == 0 else S1
                    p(f"v_pk_add_f32 {v(s,2)}, {v(s,2)}, {v(ACC+2*i,2)}")
            p("s_mov_b64 exec, -1")
            p(f"v_pk_add_f32 {v(S0,2)}, {v(S0,2)}, {v(S1,2)}\nv_add_f32 {v(GR)}, {v(S0)}, {v(S0+1)}")
            p(f"v_mov_b32 {v(S0)}, {v(GR)}\nv_mov_b32 {v(GR+1)}, s{ST_T}\nv_mov_b32 {v(GR+3)}, s{ST_T}\nv_permlane32_swap_b32 {v(GR)}, {v(S0)}\nv_add_f32 {v(GR)}, {v(GR)}, {v(S0)}")
            p(f"v_mul_f32 {v(MU)}, s{SK+6}, {v(GR)}")
            D0, D1 = 76, 78
            def m2(i, first=False):
                d = D0 if i % 2 == 0 else D1; s = S0 if i % 2 == 0 else S1
                p(f"v_pk_add_f32 {v(d,2)}, {v(ACC+2*i,2)}, {v(MU,2)} op_sel_hi:[1,0] neg_lo:[0,1] neg_hi:[0,1]")
                if first: p(f"v_pk_mul_f32 {v(s,2)}, {v(d,2)}, {v(d,2)}")
                else: p(f"v_pk_fma_f32 {v(s,2)}, {v(d,2)}, {v(d,2)}, {v(s,2)}")
            for i in range(16): m2(i, i < 2)
            for (m, b) in [(MA, 16), (MB, 20)]:
                p(f"s_mov_b64 exec, {sp(m)}")
                for i in range(b, b + 4): m2(i)
            p("s_mov_b64 exec, -1")
            p(f"v_pk_add_f32 {v(S0,2)}, {v(S0,2)}, {v(S1,2)}\nv_add_f32 {v(GR+2)}, {v(S0)}, {v(S0+1)}")
            p(f"v_mov_b32 {v(S0)}, {v(GR+2)}\nv_cmp_gt_u32 vcc, 32, {v(VL)}")
            p(f"s_lshl_b32 s{SC}, s{SRB}, 2\ns_add_u32 s{SC}, s{SC}, s{SWV}")
            p(f"v_permlane32_swap_b32 {v(GR+2)}, {v(S0)}\nv_cndmask_b32 {v(VLO)}, {v(VOOB)}, {v(VL16)}, vcc\nv_add_f32 {v(GR+2)}, {v(GR+2)}, {v(S0)}")
            p(f"s_lshl_b32 s{SD}, s{SC}, 12\ns_add_u32 s{SD}, s{SD}, {ST}\ns_lshl_b32 s{SA}, s{SCOL}, 9\ns_add_u32 s{SA}, s{SA}, s{SD}")
        seg1 = self.cap(lambda: self.gelu_many([ACC + 2 * i for i in range(24)], [64, 68, 72, 76]))
        h = len(seg1) // 5
        f1 = self.wsp_dma(2) + [lambda: p("s_barrier")]
        f2 = self.wsp_dma(3) + self.wsp_dma(4)
        self.run(merge(seg1[:h], f1) + merge(seg1[h:], f2))
        seg1b()
        p.vmem(f"buffer_store_dwordx4 {v(GR,4)}, {v(VLO)}, {srd(SWS)}, s{SA} offen sc1")
        self.stamp(2)
        lgw = lambda: p.wait(lg=p.lg - 1)
        Q0, Q1, QA, QB = 112, 113, 114, 115
        MN, VR, N3, I3, TM = 80, 81, 82, 83, 84
        def misc():
            p = self.p
            self.g_early(120)
            p(f"v_lshrrev_b32 {v(Q1)}, 5, {v(VL)}\nv_lshlrev_b32 {v(Q1)}, 6, {v(Q1)}\nv_xor_b32 {v(Q0)}, {v(VL16)}, {v(Q1)}\nv_xor_b32 {v(Q1)}, 128, {v(Q0)}")
            p(f"v_cndmask_b32 {v(QA)}, {v(VOOB)}, {v(Q0)}, {sp(MA)}\nv_cndmask_b32 {v(QB)}, {v(VOOB)}, {v(Q1)}, {sp(MB)}")
            p(f"s_lshl_b32 s{SA}, s{SCOL}, 6\ns_add_u32 s{SC}, s{SA}, s{SC}\ns_mul_i32 s{SE}, s{SC}, 5632")
            self.flag_prep(118)
            p(f"v_cmp_gt_u32 vcc, 32, {v(VL)}\nv_mov_b32 {v(N3)}, {f2u(72.0)}\nv_mov_b32 {v(TM)}, {f2u(88.0)}\nv_mov_b32 {v(I3)}, {f2u(1/72)}\nv_mov_b32 {v(TM+1)}, {f2u(1/88)}")
            p(f"v_cndmask_b32 {v(N3)}, {v(N3)}, {v(TM)}, vcc\nv_cndmask_b32 {v(I3)}, {v(I3)}, {v(TM+1)}, vcc")
        za = o.get("za", 1)
        f = self.wsp_read(0) + self.wsp_read(1) + [lgw]
        for st in range(5, 5 + za): f += self.wsp_dma(st)
        self.run(merge(gops + self.cap(misc), f))
        self.stamp(3)
        SG = 64
        for q in range(4):
            ts = p.vmem(f"buffer_load_dwordx4 {v(SG+4*q,4)}, {v(VL16)}, {srd(SWS)}, s{SD} offen offset:{q*1024} sc1")
        for st in range(5 + za, 7): self.run(self.wsp_dma(st))
        l = p.label("sp"); dl = p.label("sd")
        p.wait(vm=ts)
        p(f"s_mov_b32 s{SSPIN}, 0")
        p.put(l)
        X0 = 116
        p(f"v_xor_b32 {v(MN)}, s{ST_T}, {v(SG+1)}\nv_xor_b32 {v(VR)}, s{ST_T}, {v(SG+3)}")
        for r in [5, 9, 13]:
            p(f"v_xor_b32 {v(X0)}, s{ST_T}, {v(SG+r)}\nv_xor_b32 {v(X0+1)}, s{ST_T}, {v(SG+r+2)}\nv_or3_b32 {v(MN)}, {v(MN)}, {v(X0)}, {v(X0+1)}")
        p(f"v_or_b32 {v(MN)}, {v(MN)}, {v(VR)}")
        p(f"v_cmp_ne_u32 vcc, 0, {v(MN)}\ns_cmp_eq_u64 vcc, 0\ns_cbranch_scc1 {dl}")
        for q in range(4):
            p(f"buffer_load_dwordx4 {v(SG+4*q,4)}, {v(VL16)}, {srd(SWS)}, s{SD} offen offset:{q*1024} sc1")
        p("s_waitcnt vmcnt(0)")
        p(f"s_add_u32 s{SSPIN}, s{SSPIN}, 1\ns_cmp_lt_u32 s{SSPIN}, {SPIN}\ns_cbranch_scc1 {l}")
        p.put(dl)
        self.stamp(4)
        p(f"v_add_f32 {v(MN)}, {v(SG)}, {v(SG+4)}\nv_add_f32 {v(TM+2)}, {v(SG+8)}, {v(SG+12)}\nv_add_f32 {v(MN)}, {v(MN)}, {v(TM+2)}")
        p(f"v_mov_b32 {v(TM+3)}, {v(MN)}\nv_add_f32 {v(VR)}, {v(SG+2)}, {v(SG+6)}\nv_add_f32 {v(TM+2)}, {v(SG+10)}, {v(SG+14)}")
        p(f"v_permlane32_swap_b32 {v(MN)}, {v(TM+3)}\nv_add_f32 {v(VR)}, {v(VR)}, {v(TM+2)}\nv_add_f32 {v(MN)}, {v(MN)}, {v(TM+3)}")
        p(f"v_mul_f32 {v(MN)}, {f2u(1/688)}, {v(MN)}")
        for q in range(4):
            n_, i_ = (TM, TM + 1) if q < 3 else (N3, I3)
            p(f"v_fma_f32 {v(TM+2)}, {v(SG+4*q)}, {v(i_)}, -{v(MN)}\nv_mul_f32 {v(TM+2)}, {v(TM+2)}, {v(TM+2)}\nv_fmac_f32 {v(VR)}, {v(TM+2)}, {v(n_)}")
        self.xhalf_sum(VR, TM)
        p(f"v_mov_b32 {v(TM)}, {f2u(1e-5)}\nv_fmac_f32 {v(TM)}, {f2u(1/688)}, {v(VR)}\nv_rsq_f32 {v(VR)}, {v(TM)}")
        p(f"s_add_u32 s{SA}, s{SE}, {Z2N}\ns_add_u32 s{SB_}, s{SA}, 4096")
        p(f"v_mul_f32 {v(MN)}, {v(MN)}, {v(VR)}")
        ZP = 88
        for u in range(6):
            mt, q = u >> 1, u & 1
            R4 = range(4 * u, 4 * u + 4)
            for i in R4: p(f"v_pk_fma_f32 {v(ACC+2*i,2)}, {v(ACC+2*i,2)}, {v(MN,2)}, {v(MN,2)} op_sel:[0,1,0] op_sel_hi:[1,1,0] neg_lo:[0,0,1] neg_hi:[0,0,1]")
            for i in R4: p(f"v_cvt_pk_bf16_f32 {v(ZP+i)}, {v(ACC+2*i)}, {v(ACC+2*i+1)}")
            r = v(ZP + 4 * u, 4)
            if mt < 2: t = p.vmem(f"buffer_store_dwordx4 {r}, {v(Q0+q)}, {srd(SWS)}, s{SA} offen offset:{mt*2048+q*1024} sc1")
            else: t = p.vmem(f"buffer_store_dwordx4 {r}, {v(QA+q)}, {srd(SWS)}, s{SB_} offen offset:{q*1024} sc1")
        p(f"s_lshl_b32 s{SE}, s{SC}, 7\ns_add_u32 s{SE}, s{SE}, {ZF}")
        for st in range(2, 5): self.run(self.wsp_read(st))
        p.wait(vm=t)
        self.flag(SE, 118)
        self.run([lgw] + self.wsp_dma(7))
        if o.get("touchc", 0): self.touch_c(170, 171)
        for st in range(5, 8): self.run(self.wsp_read(st))
        self.g_poll_issue()
        p(f"s_mov_b32 s{SLATE}, 0")
        self.stamp(5)
        p(f"s_branch {self.LG}")

    def phase_u(self):
        p = self.p; o = self.o
        ACC, ZA, FA, FB, FW, FX = 16, 80, 128, 144, 160, 184
        XR, BR, X1R, WR, XD, BD, WD, T = 192, 196, 200, 204, 206, 210, 214, 60
        p.c("==== phase A: U ====")
        p.put(self.LU)
        WT, WP = SK + 8, SK + 9
        p(f"v_lshrrev_b32 {v(T)}, 5, {v(VL)}\nv_lshlrev_b32 {v(T)}, 15, {v(T)}")
        p(f"v_bfe_u32 {v(T+1)}, {v(VL)}, 3, 1\nv_lshl_add_u32 {v(T)}, {v(T+1)}, 14, {v(T)}")
        p(f"v_bfe_u32 {v(T+1)}, {v(VL)}, 4, 1\nv_lshl_add_u32 {v(T)}, {v(T+1)}, 10, {v(T)}")
        self.plain_dma_addr2(XD, T, T + 1, 2048)
        p(f"s_lshr_b32 s{WP}, s{SWV}, 1\ns_and_b32 s{WT}, s{SWV}, 1\ns_lshl_b32 s{SA}, s{WT}, 5")
        for i in range(4): p(f"v_xor_b32 {v(XD+i)}, s{SA}, {v(XD+i)}")
        self.plain_dma_addr(BD, 1024, T)
        self.w_dma_addr(WD, T, 0)
        p(f"s_lshl_b32 s{SXB}, s{SRB}, 17\ns_lshl_b32 s{SD}, s{WP}, 16\ns_add_u32 s{SXB}, s{SXB}, s{SD}\ns_lshl_b32 s{SD}, s{WT}, 13\ns_add_u32 s{SXB}, s{SXB}, s{SD}")
        p(f"s_lshl_b32 s{SW1B}, s{SCOL}, 16\ns_lshl_b32 s{SD}, s{WT}, 15\ns_add_u32 s{SW1B}, s{SW1B}, s{SD}")
        p(f"s_lshl_b32 s{SXL}, s{SWV}, 12\ns_mov_b32 s{SW1+2}, 524288")
        SWIB = SCB
        p(f"s_mul_i32 s{SWIB}, s{SWV}, {16*2752}\ns_mul_i32 s{SA}, s{SCOL}, 176\ns_add_u32 s{SWIB}, s{SWIB}, s{SA}")
        p(f"s_mul_i32 s{SWL}, s{SWV}, 3072\ns_add_u32 s{SWL}, s{SWL}, 98304\ns_mov_b32 s{PWIN+2}, {512*2752}\ns_mov_b32 s{PWIN+3}, 0x20000")
        PR = 228
        p(f"s_lshl_b32 s{SD}, s{SRB}, 1\ns_add_u32 s{SD}, s{SD}, s{WT}")
        p(f"s_lshl_b32 s{SA}, s{SCOL}, 1\ns_add_u32 s{SA}, s{SA}, s{WP}")
        p(f"s_lshl_b32 s{SE}, s{SD}, 4\ns_add_u32 s{SE}, s{SE}, s{SA}")
        p(f"s_lshl_b32 s{SA}, s{SA}, 5\nv_and_b32 {v(T)}, 31, {v(VL)}\nv_add_lshl_u32 {v(T)}, {v(T)}, s{SA}, 1")
        p.wait_lg_all()
        p(f"s_cmp_eq_u32 s{WP}, 0\ns_cselect_b64 {sp(SW1)}, {sp(PBRE)}, {sp(PBIM)}")
        tick = {}
        def dma(st):
            sl = st % 3; items = []
            def cb(t): tick[st] = t
            for i in range(3):
                items.append(((SWL, sl * 12288) if i == 0 else None, (SWIB, st * 64 * 2752) if i == 0 else None,
                              f"buffer_load_dwordx4 {v(WD+i)}, {srd(PWIN)}, s{SDO} offen offset:{i*1024} lds", None))
            for (vd, sr, sb, lb) in [(XD, SX, SXB, 0), (BD, SW1, SW1B, 49152)]:
                for i in range(4):
                    items.append(((SXL, lb + sl * 16384) if i == 0 else None, (sb, st * 128) if i == 0 else None,
                                  f"buffer_load_dwordx4 {v(vd+i)}, {srd(sr)}, s{SDO} offen offset:{i*1024} lds", cb))
            return self.dseq(items)
        self.run(dma(0))
        p.vmem(f"global_load_ushort {v(PR)}, {v(T)}, {sp(PLRE)}")
        p.vmem(f"global_load_ushort {v(PR+1)}, {v(T)}, {sp(PLIM)}")
        tp = p.vmem(f"global_load_ushort {v(PR+2)}, {v(T)}, {sp(PLDT)}")
        npro = 2
        self.late_args()
        def setup():
            p = self.p
            p(f"s_mul_i32 s{SREG}, s{SWV}, 40960\ns_lshl_b32 s{SA}, s{WT}, 13")
            self.plain_read_addr(XR, SA, T)
            p(f"s_lshl_b32 s{SA}, s{WP}, 12\ns_add_u32 s{SA}, s{SA}, 49152")
            self.plain_read_addr(BR, SA, T)
            self.w_tr_addr(WR, 98304, T)
            p(f"v_bfe_u32 {v(T)}, {v(VL)}, 3, 1\nv_lshlrev_b32 {v(T+1)}, 12, {v(T)}\nv_xor_b32 {v(T)}, s{WT}, {v(T)}\nv_lshlrev_b32 {v(T)}, 1, {v(T)}")
            p(f"v_bfe_u32 {v(T+2)}, {v(VL)}, 1, 2\nv_lshl_add_u32 {v(T+1)}, {v(T+2)}, 10, {v(T+1)}")
            p(f"v_and_b32 {v(T+2)}, 1, {v(T+2)}\nv_lshl_add_u32 {v(T)}, {v(T+2)}, 2, {v(T)}")
            p(f"v_and_b32 {v(T+2)}, 1, {v(VL)}\nv_lshl_add_u32 {v(T+1)}, {v(T+2)}, 8, {v(T+1)}\nv_or_b32 {v(T)}, {v(T)}, {v(T+2)}")
            p(f"v_bfe_u32 {v(T+2)}, {v(VL)}, 4, 1\nv_lshl_add_u32 {v(T+1)}, {v(T+2)}, 7, {v(T+1)}")
            p(f"s_lshl_b32 s{SA}, s{WP}, 13\ns_lshl_b32 s{SB_}, s{WT}, 9\ns_add_u32 s{SA}, s{SA}, s{SB_}\nv_add_u32 {v(T+1)}, s{SA}, {v(T+1)}")
            p(f"v_lshrrev_b32 {v(T+2)}, 5, {v(VL)}\nv_xor_b32 {v(T)}, {v(T)}, {v(T+2)}\nv_lshlrev_b32 {v(T)}, 4, {v(T)}")
            for ks in range(4): p(f"v_xor_b32 {v(X1R+ks)}, {32*ks}, {v(T)}\nv_add_u32 {v(X1R+ks)}, {v(X1R+ks)}, {v(T+1)}")
            self.wsp_setup(T)
            p(f"s_lshl_b32 s{SPB+1}, s{WT}, 13\ns_mul_i32 s{SA}, s{WP}, 49152\ns_add_u32 s{SPB+1}, s{SPB+1}, s{SA}\ns_add_u32 s{SPB}, s{SPB+1}, 32768\ns_add_u32 s{SPB+2}, s{SPB+1}, 16384")
            p(f"s_lshl_b32 s{SA}, s{SWV}, 13\ns_add_u32 s{SPB+3}, s{SA}, {13*8192}\ns_add_u32 s{SPB+4}, s{SA}, {17*8192}")
            p.atom(f"s_cmp_eq_u32 s{SWV}, 3\ns_cselect_b32 s{SPB+4}, {12*8192}, s{SPB+4}")
            self.valid_masks()
        self.run(merge(self.cap(setup), dma(1)))
        LB, CF, L16, L128, L256, LQ0, LQ1 = 218, 220, 222, 224, 226, 228, 230
        X0, X1, X2, X3 = 232, 233, 234, 235
        L32, L64 = 236, 238
        def csq(d, s):
            p = self.p
            p(f"v_mul_f32 {v(X0)}, {v(s+1)}, {v(s+1)}\nv_add_f32 {v(X1)}, {v(s)}, {v(s)}")
            p(f"v_mul_f32 {v(d+1)}, {v(X1)}, {v(s+1)}\nv_fma_f32 {v(d)}, {v(s)}, {v(s)}, -{v(X0)}")
        def cmul(d, a, b):
            p = self.p
            p(f"v_mul_f32 {v(X0)}, {v(a+1)}, {v(b+1)}\nv_mul_f32 {v(X1)}, {v(a+1)}, {v(b)}")
            p(f"v_fma_f32 {v(X0)}, {v(a)}, {v(b)}, -{v(X0)}\nv_fma_f32 {v(d+1)}, {v(a)}, {v(b+1)}, {v(X1)}\nv_mov_b32 {v(d)}, {v(X0)}")
        def cfma(d, a, b, c):
            p = self.p
            p(f"v_fma_f32 {v(X0)}, {v(a)}, {v(b)}, {v(c)}\nv_fma_f32 {v(X1)}, {v(a)}, {v(b+1)}, {v(c+1)}")
            p(f"v_fma_f32 {v(X0)}, -{v(a+1)}, {v(b+1)}, {v(X0)}\nv_fma_f32 {v(d+1)}, {v(a+1)}, {v(b)}, {v(X1)}\nv_mov_b32 {v(d)}, {v(X0)}")
        def params():
            p = self.p
            p(f"v_lshlrev_b32 {v(PR)}, 16, {v(PR)}\nv_lshlrev_b32 {v(PR+1)}, 16, {v(PR+1)}\nv_lshlrev_b32 {v(PR+2)}, 16, {v(PR+2)}")
            p(f"v_mul_f32 {v(X0)}, {f2u(LOG2E)}, {v(PR+2)}\nv_exp_f32 {v(X0)}, {v(X0)}"); self.rnd(X0, X0)
            p(f"v_mul_f32 {v(X1)}, {v(X0)}, {v(PR)}\nv_mul_f32 {v(X2)}, {v(X0)}, {v(PR+1)}")
            p(f"v_mul_f32 {v(X1)}, {f2u(LOG2E)}, {v(X1)}\nv_exp_f32 {v(X1)}, {v(X1)}")
            p(f"v_mul_f32 {v(X2)}, {f2u(1/(2*math.pi))}, {v(X2)}\nv_fract_f32 {v(X2)}, {v(X2)}")
            p(f"v_cos_f32 {v(X3)}, {v(X2)}\nv_sin_f32 {v(X2)}, {v(X2)}")
            p(f"v_mul_f32 {v(X0)}, {v(PR)}, {v(PR)}")
            p(f"v_mul_f32 {v(LB)}, {v(X1)}, {v(X3)}\nv_mul_f32 {v(LB+1)}, {v(X1)}, {v(X2)}")
            p(f"v_fmac_f32 {v(X0)}, {v(PR+1)}, {v(PR+1)}\nv_rcp_f32 {v(X0)}, {v(X0)}")
            p(f"v_add_f32 {v(X1)}, -1.0, {v(LB)}\nv_add_f32 {v(X0)}, {v(X0)}, {v(X0)}")
            p(f"v_mul_f32 {v(X2)}, {v(X1)}, {v(PR)}\nv_fmac_f32 {v(X2)}, {v(LB+1)}, {v(PR+1)}\nv_mul_f32 {v(CF)}, {v(X2)}, {v(X0)}")
            p(f"v_mul_f32 {v(X2)}, {v(LB+1)}, {v(PR)}\nv_fma_f32 {v(X2)}, -{v(X1)}, {v(PR+1)}, {v(X2)}\nv_mul_f32 {v(CF+1)}, {v(X2)}, {v(X0)}")
            csq(L16, LB); csq(L16, L16); csq(L16, L16); csq(L16, L16)
            csq(L32, L16); csq(L64, L32); csq(L128, L64); csq(L256, L128)
            p.atom(f"s_cmp_eq_u32 s{WT}, 0\ns_cselect_b64 vcc, -1, 0")
            p(f"v_cndmask_b32 {v(L64)}, {v(L64)}, 1.0, vcc\nv_cndmask_b32 {v(L64+1)}, {v(L64+1)}, 0, vcc")
            p(f"v_cmp_gt_u32 vcc, 32, {v(VL)}\nv_cndmask_b32 {v(LQ0)}, {v(L32)}, 1.0, vcc\nv_cndmask_b32 {v(LQ0+1)}, {v(L32+1)}, 0, vcc")
            cmul(LQ0, LQ0, L64); cmul(LQ1, LQ0, L16)
        self.epoch2()
        self.stamp(0)
        pops = [lambda: p.wait(vm=tp)] + self.cap(params)
        valu = {}
        q = (len(pops) + 15) // 16
        for i in range(16): valu[8 + i] = pops[i * q:(i + 1) * q]
        if o.get("touch", 0): valu[o.get("tstep", 1)] = [lambda: self.touch_wsp(217, 205)]
        rt = {}
        def reads(n):
            st, ks = n // 4, n % 4; sl = st % 3; s = n & 1; ops = []
            for k in range(2):
                def ra(k=k): rt[(n, 'a', k)] = p.lds(f"ds_read_b128 {v(FA+8*s+4*k,4)}, {v(XR+(ks^k))} offset:{sl*16384+k*4096}")
                def rb(k=k): rt[(n, 'b', k)] = p.lds(f"ds_read_b128 {v(FB+8*s+4*k,4)}, {v(BR+ks)} offset:{sl*16384+k*8192}")
                ops += [ra, rb]
            def rx(): p.lds(f"ds_read_b128 {v(FX+4*s,4)}, {v(X1R+ks)} offset:{sl*16384}")
            ops.append(rx)
            for mt in range(3):
                for a in range(2):
                    def rw(mt=mt, a=a):
                        rt[(n, 'w', mt)] = p.lds(f"ds_read_b64_tr_b16 {v(FW+12*s+4*mt+2*a,2)}, {v(WR)} offset:{sl*12288+ks*3072+a*768+mt*64}")
                    ops.append(rw)
            return ops
        def mfmas(n):
            s = n & 1; ops = []
            for (mt, cp) in [(0, 0), (1, 0), (1, 1), (0, 1)]:
                def m(mt=mt, cp=cp):
                    if (mt, cp) == (0, 0): p.wait(lg=rt[(n, 'b', 1)])
                    d = v(ACC + 32 * mt + 16 * cp, 16)
                    p(f"{MF} {d}, {v(FA+8*s+4*mt,4)}, {v(FB+8*s+4*cp,4)}, {'0' if n == 0 else d}")
                ops.append(m)
            for mt in range(3):
                def m(mt=mt):
                    if mt == 0: p.wait(lg=rt[(n, 'w', 2)])
                    d = v(ZA + 16 * mt, 16)
                    p(f"{MF} {d}, {v(FW+12*s+4*mt,4)}, {v(FX+4*s,4)}, {'0' if n == 0 else d}")
                ops.append(m)
            return ops
        self.gemm_loop(3, reads, mfmas, dma, tick, 5, npro, {6: lambda: self.wsp_dma(0), 7: lambda: self.wsp_dma(1)}, valu)
        self.stamp(1)
        def U(sg, cp): return ACC + 32 * (sg >> 3) + 16 * cp + 4 * ((sg & 7) >> 1) + 2 * (sg & 1)
        def step(hr, hi, sg, nr, ni, t0, t1):
            p = self.p; A = v(LB, 2)
            p(f"v_pk_fma_f32 {v(t0,2)}, {A}, {v(hr,2)}, {v(U(sg,0),2)} op_sel_hi:[0,1,1]")
            p(f"v_pk_fma_f32 {v(t1,2)}, {A}, {v(hi,2)}, {v(U(sg,1),2)} op_sel_hi:[0,1,1]")
            p(f"v_pk_fma_f32 {v(nr,2)}, {A}, {v(hi,2)}, {v(t0,2)} op_sel:[1,0,0] op_sel_hi:[1,1,1] neg_lo:[1,0,0] neg_hi:[1,0,0]")
            p(f"v_pk_fma_f32 {v(ni,2)}, {A}, {v(hr,2)}, {v(t1,2)} op_sel:[1,0,0] op_sel_hi:[1,1,1]")
        HA, HBb, T0, EX, E8, AD, GR, CQ = 128, 132, 136, 140, 144, 160, 164, 168
        SCR = 98304
        p(f"s_lshl_b32 s{SA}, s{WP}, 11\ns_add_u32 s{SA}, s{SA}, {SCR}")
        p(f"v_and_b32 {v(AD)}, 31, {v(VL)}\nv_lshlrev_b32 {v(AD)}, 6, {v(AD)}\nv_add_u32 {v(AD)}, s{SA}, {v(AD)}")
        p(f"v_lshrrev_b32 {v(AD+1)}, 5, {v(VL)}\nv_lshl_add_u32 {v(AD+1)}, {v(AD+1)}, 4, {v(AD)}\ns_lshl_b32 s{SA}, s{WT}, 5\nv_add_u32 {v(AD+1)}, s{SA}, {v(AD+1)}")
        Z1P = 192
        SZ0, SZ1 = SXL, SWL
        VA_ = 176
        MA, MB = SK + 2, SK + 4
        def z1st(u):
            mt, q = u >> 1, u & 1
            for i in range(4): p(f"v_cvt_pk_bf16_f32 {v(Z1P+4*u+i)}, {v(ZA+8*u+2*i)}, {v(ZA+8*u+2*i+1)}")
            r = v(Z1P + 4 * u, 4)
            if mt < 2: p.vmem(f"buffer_store_dwordx4 {r}, {v(VL16)}, {srd(SWS)}, s{SZ0} offen offset:{mt*2048+q*1024} sc1")
            else: p.vmem(f"buffer_store_dwordx4 {r}, {v(VA_+q)}, {srd(SWS)}, s{SZ1} offen offset:{q*1024} sc1")
        p(f"s_lshl_b32 s{SA}, s{SCOL}, 6\ns_lshl_b32 s{SB_}, s{SRB}, 2\ns_add_u32 s{SA}, s{SA}, s{SB_}\ns_add_u32 s{SA}, s{SA}, s{SWV}\ns_mul_i32 s{SA}, s{SA}, 5632")
        p(f"s_add_u32 s{SZ0}, s{SA}, {Z1}\ns_add_u32 s{SZ1}, s{SZ0}, 4096")
        p(f"v_cndmask_b32 {v(VA_)}, {v(VOOB)}, {v(VL16)}, {sp(MA)}\nv_cndmask_b32 {v(VA_+1)}, {v(VOOB)}, {v(VL16)}, {sp(MB)}")
        zs = [(lambda u=u: z1st(u)) for u in range(6)]
        self.run(zs[:2])
        p("s_barrier")
        def pass1():
            hr, hi = U(0, 0), U(0, 1)
            for sg in range(1, 16):
                nr, ni = (HA, HA + 2) if sg & 1 else (HBb, HBb + 2)
                step(hr, hi, sg, nr, ni, T0, T0 + 2)
                hr, hi = nr, ni
            self.p(f"v_mov_b32 {v(EX)}, {v(hr)}\nv_mov_b32 {v(EX+1)}, {v(hi)}\nv_mov_b32 {v(EX+2)}, {v(hr+1)}\nv_mov_b32 {v(EX+3)}, {v(hi+1)}")
        d2 = self.wsp_dma(2) + self.wsp_dma(3)
        self.run(merge(merge(self.cap(pass1), zs[2:]), d2[:7]))
        p.lds(f"ds_write_b128 {v(AD+1)}, {v(EX,4)}")
        p.wait_lg_all(); p("s_barrier")
        for i in range(4): p.lds(f"ds_read_b128 {v(E8+4*i,4)}, {v(AD)} offset:{16*i}")
        te = p.lg - 1
        self.run(d2[7:11])
        p(f"s_cmp_eq_u32 s{WT}, 0\ns_cselect_b32 s{SA}, 32, 0")
        p(f"v_cmp_gt_u32 vcc, s{SA}, {v(VL)}\nv_mov_b32 {v(GR+1)}, s{ST_T}\nv_mov_b32 {v(GR+3)}, s{ST_T}\nv_cndmask_b32 {v(T0)}, {v(VOOB)}, {v(VL16)}, vcc")
        p(f"s_lshl_b32 s{SC}, s{SCOL}, 14\ns_lshl_b32 s{SA}, s{WP}, 9\ns_add_u32 s{SC}, s{SC}, s{SA}\ns_add_u32 s{SC}, s{SC}, {EG}")
        p(f"s_lshl_b32 s{SA}, s{SRB}, 10\ns_add_u32 s{SA}, s{SA}, s{SC}")
        p.wait(lg=te); p("s_barrier")
        self.run(merge(self.cap(lambda: [cfma(E8 + 2 * q, L16, E8 + 2 * (q - 1), E8 + 2 * q) for q in range(1, 8)]), d2[11:15]))
        p(f"v_mov_b32 {v(GR)}, {v(E8+14)}\nv_mov_b32 {v(GR+2)}, {v(E8+15)}")
        p.vmem(f"buffer_store_dwordx4 {v(GR,4)}, {v(T0)}, {srd(SWS)}, s{SA} offen sc1")
        self.run(d2[15:])
        self.stamp(2)
        p(f"v_cmp_gt_u32 vcc, 32, {v(VL)}")
        w1 = p.label("w1"); w2 = p.label("w2")
        p(f"s_cmp_eq_u32 s{WT}, 0\ns_cbranch_scc0 {w1}")
        p(f"v_cndmask_b32 {v(CQ)}, {v(E8+2)}, 0, vcc\nv_cndmask_b32 {v(CQ+1)}, {v(E8+3)}, 0, vcc")
        p(f"v_cndmask_b32 {v(CQ+2)}, {v(E8+4)}, {v(E8)}, vcc\nv_cndmask_b32 {v(CQ+3)}, {v(E8+5)}, {v(E8+1)}, vcc")
        p(f"s_branch {w2}")
        p.put(w1)
        for k in range(4): p(f"v_cndmask_b32 {v(CQ+k)}, {v(E8+10+k)}, {v(E8+6+k)}, vcc")
        p.put(w2)
        Z1P = 192
        EGR, EO, EXP, ET = 80, 144, 152, 160
        def eo():
            p = self.p
            p(f"v_lshrrev_b32 {v(ET)}, 5, {v(VL)}\nv_sub_u32 {v(ET)}, s{SRB}, {v(ET)}\nv_add_u32 {v(ET)}, -1, {v(ET)}")
            p(f"v_and_b32 {v(ET+1)}, 31, {v(VL)}\nv_lshlrev_b32 {v(ET+1)}, 4, {v(ET+1)}\nv_mov_b32 {v(ET+3)}, s{ST_T}")
            for q in range(8):
                p(f"v_add_u32 {v(ET+2)}, {-2*q}, {v(ET)}\nv_cmp_le_i32 vcc, 0, {v(ET+2)}\nv_lshl_add_u32 {v(ET+2)}, {v(ET+2)}, 10, {v(ET+1)}")
                p(f"v_cndmask_b32 {v(EO+q)}, {v(VOOB)}, {v(ET+2)}, vcc\nv_cndmask_b32 {v(EXP+q)}, 0, {v(ET+3)}, vcc")
        lgw = lambda: p.wait(lg=p.lg - 1)
        self.run(merge(self.cap(lambda: (eo(), self.g_early(184))), self.wsp_dma(4) + self.wsp_read(0) + self.wsp_read(1)))
        et = {}
        def eload(q):
            et['t'] = p.vmem(f"buffer_load_dwordx4 {v(EGR+4*q,4)}, {v(EO+q)}, {srd(SWS)}, s{SC} offen sc1")
        for q in range(8): eload(q)
        self.run([lgw] + self.wsp_dma(5))
        self.stamp(3)
        l = p.label("ep"); dl = p.label("ed")
        p.wait(vm=et['t'])
        p(f"s_mov_b32 s{SSPIN}, 0")
        p.put(l)
        p(f"v_mov_b32 {v(ET)}, 0")
        for q in range(8):
            p(f"v_xor_b32 {v(ET+1)}, {v(EXP+q)}, {v(EGR+4*q+1)}\nv_xor_b32 {v(ET+2)}, {v(EXP+q)}, {v(EGR+4*q+3)}\nv_or3_b32 {v(ET)}, {v(ET)}, {v(ET+1)}, {v(ET+2)}")
        p(f"v_cmp_ne_u32 vcc, 0, {v(ET)}\ns_cmp_eq_u64 vcc, 0\ns_cbranch_scc1 {dl}")
        for q in range(8): p(f"buffer_load_dwordx4 {v(EGR+4*q,4)}, {v(EO+q)}, {srd(SWS)}, s{SC} offen sc1")
        p("s_waitcnt vmcnt(0)")
        p(f"s_add_u32 s{SSPIN}, s{SSPIN}, 1\ns_cmp_lt_u32 s{SSPIN}, {SPIN}\ns_cbranch_scc1 {l}")
        p.put(dl)
        self.flag_prep(178)
        p(f"s_lshl_b32 s{SA}, s{SCOL}, 6\ns_lshl_b32 s{SB_}, s{SRB}, 2\ns_add_u32 s{SA}, s{SA}, s{SB_}\ns_add_u32 s{SA}, s{SA}, s{SWV}\ns_lshl_b32 s{SA}, s{SA}, 7\ns_add_u32 s{SA}, s{SA}, {Z1F}")
        self.flag(SA, 178)
        self.stamp(4)
        OP, OT, HO = 80, 144, 132
        MA, MB = SK + 2, SK + 4
        SH0, SH1 = SXB, SW1B
        def pass2a():
            p = self.p
            p(f"s_lshl_b32 s{SA}, s{SD}, 3\ns_add_u32 s{SA}, s{SA}, s{SCOL}\ns_lshl_b32 s{SA}, s{SA}, 14\ns_lshl_b32 s{SB_}, s{WP}, 12\ns_add_u32 s{SA}, s{SA}, s{SB_}")
            p(f"s_add_u32 s{SH0}, s{SA}, {HB}\ns_add_u32 s{SH1}, s{SH0}, 8192")
            p(f"v_lshrrev_b32 {v(T0)}, 5, {v(VL)}\nv_lshlrev_b32 {v(T0)}, 11, {v(T0)}\nv_and_b32 {v(T0+1)}, 31, {v(VL)}\nv_lshl_add_u32 {v(HO)}, {v(T0+1)}, 4, {v(T0)}")
            for k in range(1, 4): p(f"v_xor_b32 {v(HO+k)}, {64*k}, {v(HO)}")
            for q in range(8): p(f"v_mov_b32 {v(EGR+4*q+1)}, {v(EGR+4*q+2)}")
            S = EGR + 28
            for q in range(6, -1, -1): cfma(S, L256, S, EGR + 4 * q)
            p(f"v_mov_b32 {v(ET)}, {v(S)}\nv_mov_b32 {v(ET+1)}, {v(S+1)}\nv_permlane32_swap_b32 {v(S)}, {v(ET)}\nv_permlane32_swap_b32 {v(S+1)}, {v(ET+1)}")
            cfma(S, L128, ET, S)
            cfma(CQ, LQ0, S, CQ); cfma(CQ + 2, LQ1, S, CQ + 2)
            p(f"v_mov_b32 {v(HA)}, {v(CQ)}\nv_mov_b32 {v(HA+1)}, {v(CQ+2)}\nv_mov_b32 {v(HA+2)}, {v(CQ+1)}\nv_mov_b32 {v(HA+3)}, {v(CQ+3)}")
        def pass2(s0, s1):
            p = self.p
            Cc = v(CF, 2)
            for sg in range(s0, s1):
                hr, hi = (HA, HA + 2) if sg == 0 else (U(sg - 1, 0), U(sg - 1, 1))
                step(hr, hi, sg, U(sg, 0), U(sg, 1), T0, T0 + 2)
                hr, hi = U(sg, 0), U(sg, 1)
                oo = OT + 4 * (sg & 1) + 8 * ((sg >> 1) & 1)
                p(f"v_pk_mul_f32 {v(oo,2)}, {Cc}, {v(hr,2)} op_sel_hi:[0,1]")
                p(f"v_pk_mul_f32 {v(oo+2,2)}, {Cc}, {v(hi,2)} op_sel_hi:[0,1] neg_lo:[1,0] neg_hi:[1,0]")
                p(f"v_pk_fma_f32 {v(oo,2)}, {Cc}, {v(hi,2)}, {v(oo,2)} op_sel:[1,0,0] op_sel_hi:[1,1,1] neg_lo:[1,0,0] neg_hi:[1,0,0]")
                p(f"v_pk_fma_f32 {v(oo+2,2)}, {Cc}, {v(hr,2)}, {v(oo+2,2)} op_sel:[1,0,0] op_sel_hi:[1,1,1] neg_lo:[1,0,0] neg_hi:[1,0,0]")
                if sg & 1:
                    q, i = sg >> 3, (sg & 7) >> 1
                    for cp in range(2):
                        for e in range(2):
                            p(f"v_cvt_pk_bf16_f32 {v(OP+16*cp+8*e+4*q+i)}, {v(oo-4+2*cp+e)}, {v(oo+2*cp+e)}")
        def hst(cp, k):
            if o.get("x_nost"): return
            p.vmem(f"buffer_store_dwordx4 {v(OP+16*cp+4*k,4)}, {v(HO+k)}, {srd(SWS)}, s{SH0 if cp == 0 else SH1} offen offset:{512*k} sc1")
        self.run(merge(self.cap(pass2a), self.wsp_dma(6) + self.wsp_read(2) + [lgw]))
        self.run(merge(self.cap(lambda: pass2(0, 8)), self.wsp_dma(7) + self.wsp_read(3)))
        self.run(merge(merge(self.cap(lambda: pass2(8, 16)), [(lambda cp=cp, k=k: hst(cp, k)) for k in (0, 2) for cp in range(2)]), self.wsp_read(4) + self.wsp_read(5)))
        self.g_poll_issue()
        h2 = [(lambda cp=cp, k=k: hst(cp, k)) for k in (1, 3) for cp in range(2)]
        self.run(merge(self.wsp_read(6) + self.wsp_read(7), h2))
        p(f"s_lshl_b32 s{SLATE}, s{SE}, 7\ns_add_u32 s{SLATE}, s{SLATE}, {HF}")
        self.stamp(5)

    def phase_g(self):
        p = self.p; o = self.o
        p.c("==== phase B: G ====")
        p.put(self.LG)
        p.vm_done = -1; p.lg_done = -1
        ACC, FA, TR, T = 16, 112, self.GTR, 186
        Z1R, BI, PV, WD, PL, PL2, PL3 = 190, 202, 203, self.WD, self.GPL, 222, 234
        NT, Q = SK + 8, SK + 9
        p(f"s_mov_b32 s{SCOL}, s{SJ}")
        def late_setup():
            p = self.p
            p(f"s_lshl_b32 s{SE}, s{STB}, 11\ns_add_u32 s{SE}, s{SE}, {HF}")
            self.poll_addr(PL3, [(SE, 16)])
            self.flag_prep(220)
            p(f"v_lshrrev_b32 {v(T)}, 3, {v(VL)}\nv_lshlrev_b32 {v(T)}, 10, {v(T)}")
            p(f"v_bfe_u32 {v(T+1)}, {v(VL)}, 4, 1\nv_lshlrev_b32 {v(T+1)}, 2, {v(T+1)}\nv_and_b32 {v(T+2)}, 7, {v(VL)}\nv_xor_b32 {v(T+1)}, {v(T+1)}, {v(T+2)}")
            p(f"v_lshl_add_u32 {v(WD)}, {v(T+1)}, 4, {v(T)}")
            for i in range(1, 4): p(f"v_add_u32 {v(WD+i)}, {i*7168}, {v(WD)}")
            p(f"s_mul_i32 s{SXB}, s{SWV}, {176*1024}\ns_lshl_b32 s{SA}, s{SCOL}, 7\ns_add_u32 s{SXB}, s{SXB}, s{SA}")
            self.c_setup()
            self.panel_tr_addr(228, SREG, 224, False)
        p(f"s_and_b32 s{NT}, s{SWV}, 1\ns_lshr_b32 s{Q}, s{SWV}, 1")
        p(f"s_lshl_b32 s{SC}, s{STB}, 1\ns_add_u32 s{SC}, s{SC}, s{NT}")
        p.atom(f"s_cmp_lt_u32 s{SCOL}, 7\ns_cselect_b32 s{SD}, 64, 32")
        p(f"s_lshl_b32 s{SF}, s{Q}, 5\ns_sub_u32 s{SD}, s{SD}, s{SF}")
        p(f"v_cmp_gt_u32 vcc, s{SD}, {v(VL)}\nv_and_b32 {v(T)}, 31, {v(VL)}\ns_lshl_b32 s{SA}, s{SC}, 5\nv_cndmask_b32 {v(PV)}, {v(VOOB)}, {v(VL16)}, vcc")
        p(f"v_add_lshl_u32 {v(T)}, {v(T)}, s{SA}, 1")
        p.vmem(f"global_load_ushort {v(BI)}, {v(T)}, {sp(PBSP)}")
        p(f"s_mul_i32 s{SD}, s{SZI}, 5632\ns_lshl_b32 s{SB_}, s{Q}, 10\ns_add_u32 s{SD}, s{SD}, s{SB_}\ns_add_u32 s{SD}, s{SD}, {Z1}\ns_add_u32 s{SE}, s{SD}, 4096")
        p(f"v_and_b32 {v(PL2)}, 31, {v(VL)}\nv_lshlrev_b32 {v(PL2)}, 2, {v(PL2)}")
        p.wait_lg_all(); p("s_barrier")
        self.stamp(6)
        l = p.label("gp"); dn = p.label("gd")
        p("s_waitcnt vmcnt(5)")
        p(f"s_cmp_lg_u32 s{SLATE}, 0\ns_cbranch_scc1 {l}\ns_waitcnt vmcnt(0)")
        p.put(l)
        p(f"v_cmp_ne_u32 vcc, s{ST_T}, {v(PL+1)}\ns_and_b32 vcc_hi, vcc_hi, 1\ns_or_b32 s{SF}, vcc_lo, vcc_hi\ns_cbranch_scc0 {dn}")
        self.poll(PL, 33)
        p.put(dn)
        g0 = p.vm
        def late_flag():
            nf = p.label("nf")
            p(f"s_cmp_eq_u32 s{SLATE}, 0\ns_cbranch_scc1 {nf}")
            p(f"s_waitcnt vmcnt({p.vm - g0})")
            p(f"buffer_store_dword {v(220)}, {v(221)}, {srd(SWS)}, s{SLATE} offen sc1")
            p.put(nf)
        p.vm_done = -1
        self.stamp(7)
        tick = {}
        def dma(B):
            sl = B % 3; items = []
            for i in range(11):
                def cb(t, i=i): tick[(B, i)] = t
                g = i // 4
                items.append(((SREG, sl * 11264 + g * 4096) if i % 4 == 0 else None, (SGB, B * 11264 + g * 4096) if i % 4 == 0 else None,
                              f"buffer_load_dwordx4 {v(VL16)}, {srd(SWS)}, s{SDO} offen offset:{(i%4)*1024} {o.get('gmod', 'sc1')} lds", cb))
            return self.dseq(items)
        d0 = dma(0) + dma(1) + dma(2)
        kpro = o.get("gpro", 22)
        p.vmem(f"buffer_load_dwordx4 {v(Z1R,4)}, {v(VL16)}, {srd(SWS)}, s{SD} offen sc1")
        p.vmem(f"buffer_load_dwordx4 {v(Z1R+4,4)}, {v(VL16)}, {srd(SWS)}, s{SD} offen offset:2048 sc1")
        tz1 = p.vmem(f"buffer_load_dwordx4 {v(Z1R+8,4)}, {v(PV)}, {srd(SWS)}, s{SE} offen sc1")
        k0 = o.get("gk0", 10)
        self.run(merge(self.cap(late_setup), d0[:k0], 0, 40))
        p(f"s_lshl_b32 s{SA}, s{STB}, 8\ns_add_u32 s{SA}, s{SA}, {GATE}")
        p.vmem(f"buffer_load_dword {v(self.GY)}, {v(PL2)}, {srd(SWS)}, s{SA} offen sc1")
        p.vmem(f"buffer_load_dword {v(self.GY+2)}, {v(PL2)}, {srd(SWS)}, s{SA} offen offset:128 sc1")
        def z1gelu():
            c1 = -2 * LOG2E * 0.7978845608028654
            self.VC0 = 184
            self.p(f"s_mov_b32 s{SK}, {f2u(c1*0.044715)}\nv_mov_b32 {v(184)}, {f2u(c1)}")
            for i in range(12): self.unpack(self.ZUP[i], Z1R + i)
            self.gelu_many(self.ZUP, [160, 162, 164, 166])
        p.wait(vm=tz1)
        self.run(merge(self.cap(z1gelu), d0[k0:kpro]))
        lt = {}
        def issue(r):
            lt[r] = p.vmem(f"buffer_load_dword {v(r+1)}, {v(r)}, {srd(SWS)}, 0 offen sc1")
        def check(r, mask):
            l = p.label("lp"); d = p.label("ld")
            p.wait(vm=lt[r])
            p(f"s_mov_b32 s{SSPIN}, 0")
            p.put(l)
            p(f"v_cmp_ne_u32 vcc, s{ST_T}, {v(r+1)}\ns_and_b32 s{SF}, vcc_lo, {mask}\ns_cbranch_scc0 {d}")
            p(f"buffer_load_dword {v(r+1)}, {v(r)}, {srd(SWS)}, 0 offen sc1\ns_waitcnt vmcnt(0)")
            p(f"s_add_u32 s{SSPIN}, s{SSPIN}, 1\ns_cmp_lt_u32 s{SSPIN}, {SPIN}\ns_cbranch_scc1 {l}")
            p.put(d)
        rt = {}
        def fset(hb): return FA + 24 * (2 if hb == 15 else hb & 1)
        def reads(hb):
            B, e = hb >> 1, hb & 1; sl = B % 3; ops = []
            for ks in range(2):
                for mt in range(3):
                    for a in range(2):
                        def ra(ks=ks, mt=mt, a=a):
                            if (ks, mt, a) == (0, 0, 0): p.wait(vm=tick[(B, 10 if e else 5)])
                            rt[(hb, ks, mt)] = p.lds(f"ds_read_b64_tr_b16 {v(fset(hb)+12*ks+4*mt+2*a,2)}, {v(TR+a)} offset:{sl*11264+e*5632+mt*2048+ks*256}")
                        ops.append(ra)
            return ops
        def mf(hb, ks, mt, nt):
            def m():
                p.wait(lg=rt[(hb, ks, mt)])
                d = v(ACC + 16 * (2 * mt + nt), 16); kap = 2 * hb + ks
                p(f"{MF} {d}, {v(fset(hb)+12*ks+4*mt,4)}, {ar((kap*2+nt)*4,4)}, {'0' if kap == 0 else d}")
            return m
        y0 = self.y_dma(0)
        hchk = o.get("hchk", 4)
        self.run(reads(0))
        pend = d0[kpro:]
        for hb in range(14):
            if o.get("gstamps") and hb % 2 == 0: self.stamp(21 + hb // 2)
            mm = [mf(hb, ks, mt, nt) for ks in range(2) for mt in range(3) for nt in range(2)]
            rd = reads(hb + 1) + (reads(15) if hb == 13 else [])
            if hb == 13: seq = merge(mm, rd, 0, 12)
            else: seq = merge(mm, rd, 0, 8)
            if hb & 1 and hb <= 11:
                B = hb >> 1
                d = dma(B + 3) if B + 3 < 8 else y0
                d1 = d[1]
                def first(d1=d1, hb=hb):
                    p.wait(lg=rt[(hb, 1, 2)]); d1()
                d = [d[0], first] + d[2:]
                seq = merge(seq, pend + d[:5], len(seq) * 2 // 3 if not pend else len(seq) // 3)
                pend = d[5:]
            elif pend:
                k = 7 if hb else 8
                if hb == 12: k = 6
                seq = merge(seq, pend[:k], len(seq) // 3); pend = pend[k:]
            if hb == o.get("hflag", 3): seq = seq + [late_flag]
            if hb == 10: seq = seq + [lambda: issue(PL3)]
            if hb == 12: seq = [lambda: check(PL3, 0xffff)] + seq
            self.run(seq)
        assert not pend
        VW, VRD = T, T + 1
        p(f"s_add_u32 s{SA}, s{SREG}, 4096\nv_add_u32 {v(VW)}, s{SA}, {v(VL16)}")
        def rw(mt, nt):
            ops = []
            for q in range(2):
                k = nt + 2 * q
                if k == 0: continue
                for hq in range(2):
                    r = ACC + 16 * (2 * mt + nt) + 8 * q + 4 * hq
                    ops.append(lambda r=r, k=k, hq=hq: p.lds(f"ds_write_b128 {v(VW)}, {v(r,4)} offset:{(k-1)*6144+(2*mt+hq)*1024}"))
            return ops
        tiles = [(0, 1), (1, 1), (2, 1), (0, 0), (1, 0), (2, 0)]
        for ti, (mt, nt) in enumerate(tiles):
            mm = [mf(hb, ks, mt, nt) for hb in (14, 15) for ks in range(2)]
            f = rw(*tiles[ti - 2]) if ti >= 2 else []
            self.run(merge(mm, f))
        self.stamp(8)
        for k in range(1, 4):
            p(f"s_xor_b32 s{SA}, s{SWV}, {k}\ns_mul_i32 s{SA}, s{SA}, 40960\ns_add_u32 s{SA}, s{SA}, 4096\nv_add_u32 {v(VRD+k-1)}, s{SA}, {v(VL16)}")
        self.run(rw(*tiles[4]) + rw(*tiles[5]))
        p.wait_lg_all(); p("s_barrier")
        RB = 112
        def own(i): return ACC + 32 * (i >> 1) + 4 * (i & 1)
        tk = {}
        def rr(k, i): tk[(k, i)] = p.lds(f"ds_read_b128 {v(RB+24*(k-1)+4*i,4)}, {v(VRD+k-1)} offset:{(k-1)*6144+i*1024}")
        for k in range(1, 3):
            for i in range(6): rr(k, i)
        yr0 = self.y_read(0)
        for k in range(1, 4):
            for i in range(6):
                p.wait(lg=tk[(k, i)])
                if k == 1: rr(3, i)
                for hh in range(2): p(f"v_pk_add_f32 {v(own(i)+2*hh,2)}, {v(own(i)+2*hh,2)}, {v(RB+24*(k-1)+4*i+2*hh,2)}")
        p("s_barrier")
        self.stamp(9)
        PK = 112
        def ow2(i): return own(i >> 1) + 2 * (i & 1)
        def pepi():
            p = self.p
            OG = 152
            p.atom(f"s_cmp_eq_u32 s{NT}, 0\ns_cselect_b64 vcc, -1, 0")
            p(f"v_lshlrev_b32 {v(BI)}, 16, {v(BI)}\nv_cndmask_b32 {v(OG)}, {v(self.GY+2)}, {v(self.GY)}, vcc\nv_sub_f32 {v(OG)}, 1.0, {v(OG)}\nv_mul_f32 {v(OG+1)}, {v(OG)}, {v(BI)}")
            for i in range(12): p(f"v_pk_fma_f32 {v(ow2(i),2)}, {v(ow2(i),2)}, {v(OG,2)}, {v(OG,2)} op_sel:[0,0,1] op_sel_hi:[1,0,1]")
            for i in range(12): p(f"v_pk_mul_f32 {v(ow2(i),2)}, {v(ow2(i),2)}, {v(self.ZUP[i],2)}")
            for i in range(12): p(f"v_cvt_pk_bf16_f32 {v(PK+i)}, {v(ow2(i))}, {v(ow2(i)+1)}")
            p(f"s_mul_i32 s{SA}, s{SC}, 45056\ns_mul_i32 s{SB_}, s{SCOL}, 5632\ns_add_u32 s{SA}, s{SA}, s{SB_}\ns_lshl_b32 s{SB_}, s{Q}, 10")
            p(f"s_add_u32 s{SA}, s{SA}, s{SB_}\ns_add_u32 s{SA}, s{SA}, {PB}\ns_add_u32 s{SB_}, s{SA}, 4096")
        self.y1 = self.y_dma(1)
        self.run(merge(merge(self.cap(pepi), self.y1[:4]), yr0))
        self.y1 = self.y1[4:]
        p.vmem(f"buffer_store_dwordx4 {v(PK,4)}, {v(VL16)}, {srd(SWS)}, s{SA} offen sc1")
        p.vmem(f"buffer_store_dwordx4 {v(PK+4,4)}, {v(VL16)}, {srd(SWS)}, s{SA} offen offset:2048 sc1")
        self.tp = p.vmem(f"buffer_store_dwordx4 {v(PK+8,4)}, {v(PV)}, {srd(SWS)}, s{SB_} offen sc1")
        p(f"s_lshl_b32 s{SLATE}, s{STB}, 3\ns_add_u32 s{SLATE}, s{SLATE}, s{SCOL}\ns_lshl_b32 s{SLATE}, s{SLATE}, 2\ns_add_u32 s{SLATE}, s{SLATE}, s{SWV}\ns_lshl_b32 s{SLATE}, s{SLATE}, 7\ns_add_u32 s{SLATE}, s{SLATE}, {PF}")
        self.stamp(10)

    CD, CR, HT, GY, WD, WT_ = 210, 214, 218, 240, 244, 228
    ZUP = [4, 6, 8, 10, 12, 14, 204, 206, 208, 248, 250, 252]
    def c_setup(self):
        p = self.p
        self.plain_dma_addr(self.CD, 1024, 224)
        p(f"s_add_u32 s{SA}, s{SREG}, 4096")
        self.plain_read_addr(self.CR, SA, 224)
        p(f"s_add_u32 s{SA}, s{SREG}, {4096+8192}")
        self.unit_tr_addr(self.HT, SA, 224, False)
        p(f"s_lshl_b32 s{SCB}, s{SCOL}, 16\ns_lshl_b32 s{SA}, s{SWV}, 8\ns_add_u32 s{SCB}, s{SCB}, s{SA}")
        p(f"s_lshl_b32 s{SHB}, s{STB}, 17\ns_lshl_b32 s{SA}, s{SWV}, 15\ns_add_u32 s{SHB}, s{SHB}, s{SA}\ns_add_u32 s{SHB}, s{SHB}, {HB}")
        self.yt = {}
    def y_dma(self, s):
        sl = (s & 1) ^ 1; items = []
        def cb(t): self.yt[s] = t
        for hh in range(2):
            for i in range(4):
                items.append(((SREG, 4096 + sl * 18432 + hh * 4096) if i == 0 else None, (SCB, (s >> 1) * 128 + hh * 32768) if i == 0 else None,
                              f"buffer_load_dwordx4 {v(self.CD+i)}, {srd(SCIM if s & 1 else SCRE)}, s{SDO} offen offset:{i*1024} lds", None))
        for hh in range(2):
            for i in range(4):
                items.append(((SREG, 4096 + sl * 18432 + 8192 + hh * 4096) if i == 0 else None, (SHB, s * 8192 + hh * 4096) if i == 0 else None,
                              f"buffer_load_dwordx4 {v(VL16)}, {srd(SWS)}, s{SDO} offen offset:{i*1024} sc1 lds", cb))
        return self.dseq(items)
    def y_read(self, s):
        p = self.p; sl = (s & 1) ^ 1; ops = []
        self.yr = getattr(self, "yr", {})
        for ks in range(4):
            def f(ks=ks):
                p.wait(vm=self.yt[s], lg=p.lg - 10)
                b = 64 * s + 16 * ks
                for k in range(2):
                    p.lds(f"ds_read_b128 {ar(b+4*k,4)}, {v(self.CR+ks)} offset:{sl*18432+k*4096}")
                    for a in range(2):
                        self.yr[(s, ks)] = p.lds(f"ds_read_b64_tr_b16 {ar(b+8+4*k+2*a,2)}, {v(self.HT+a)} offset:{sl*18432+(ks>>1)*4096+k*2048+(ks&1)*256}")
            ops.append(f)
        return ops
    def phase_c(self):
        p = self.p; o = self.o
        p.c("==== phase C ====")
        YA, BA, F = 16, 80, 144
        XE, GE, DE, OV, P10, PL, T = 186, 194, 198, 200, 201, 202, 204
        RW, RX, WA, RA = 176, 177, 180, 230
        ep = {}
        def setup():
            p = self.p
            p(f"v_lshrrev_b32 {v(T)}, 4, {v(VL)}\nv_and_b32 {v(T+1)}, 15, {v(VL)}")
            p(f"v_lshlrev_b32 {v(T+2)}, 10, {v(T)}\nv_lshl_add_u32 {v(T+2)}, {v(T+1)}, 3, {v(T+2)}")
            p(f"v_lshlrev_b32 {v(T+3)}, 2, {v(T)}\nv_lshlrev_b32 {v(T+4)}, 3, {v(T+1)}")
            p(f"v_lshlrev_b32 {v(OV)}, 1, {v(T+2)}")
            p(f"s_lshl_b32 s{SC}, s{STB}, 6\ns_lshl_b32 s{SA}, s{SWV}, 4\ns_add_u32 s{SC}, s{SC}, s{SA}")
            p(f"s_lshl_b32 s{SD}, s{SC}, 10\ns_lshl_b32 s{SA}, s{SCOL}, 7\ns_add_u32 s{SD}, s{SD}, s{SA}\nv_add_u32 {v(T+4)}, s{SA}, {v(T+4)}")
            p(f"s_lshl_b32 s{SA}, s{STB}, 12\ns_lshl_b32 s{SB_}, s{SWV}, 10\ns_add_u32 s{SB_}, s{SB_}, s{SA}\ns_add_u32 s{SB_}, s{SB_}, {PF}")
            self.poll_addr(PL, [(SB_, 8)])
            p.atom(f"s_cmp_eq_u32 s{SWV}, 3\ns_cselect_b64 vcc, -1, 0")
            p(f"v_cndmask_b32 {v(P10)}, {v(VL16)}, {v(VOOB)}, vcc")
            p(f"s_mul_i32 s{SE}, s{STB}, {2*45056}\ns_mul_i32 s{SA}, s{SWV}, {22*512}\ns_add_u32 s{SE}, s{SE}, s{SA}\ns_add_u32 s{SE}, s{SE}, {PB}")
            p(f"s_add_u32 s{SA}, s{SREG}, 4096\nv_and_b32 {v(RW)}, 31, {v(VL)}\nv_lshlrev_b32 {v(RW)}, 8, {v(RW)}\nv_add_u32 {v(RW)}, s{SA}, {v(RW)}")
            p(f"v_lshrrev_b32 {v(RX)}, 5, {v(VL)}\nv_and_b32 {v(RX+1)}, 7, {v(VL)}\nv_xor_b32 {v(RX)}, {v(RX)}, {v(RX+1)}\nv_lshlrev_b32 {v(RX)}, 4, {v(RX)}")
            for i in range(4): p(f"v_xor_b32 {v(WA+i)}, {32*i}, {v(RX)}\nv_add_u32 {v(WA+i)}, {v(WA+i)}, {v(RW)}")
            p(f"v_xor_b32 {v(T+1)}, {v(T+1)}, {v(T)}\nv_lshlrev_b32 {v(T+1)}, 4, {v(T+1)}")
            p(f"v_lshlrev_b32 {v(T)}, 8, {v(T)}\ns_lshl_b32 s{SA}, s{SWV}, 12\ns_add_u32 s{SA}, s{SA}, 4096\nv_add_u32 {v(T)}, s{SA}, {v(T)}")
            p(f"v_add_u32 {v(RA)}, {v(T)}, {v(T+1)}\nv_xor_b32 {v(T+1)}, 64, {v(T+1)}\nv_add_u32 {v(RA+1)}, {v(T)}, {v(T+1)}")
            p(f"v_add_u32 {v(RA+2)}, 81920, {v(RA)}\nv_add_u32 {v(RA+3)}, 81920, {v(RA+1)}")
        def eloads():
            for gi in range(4):
                p(f"s_add_u32 s{SA}, s{SD}, {gi*4096}")
                p.vmem(f"buffer_load_dwordx2 {v(XE+2*gi,2)}, {v(T+2)}, {srd(SX)}, s{SA} offen")
            p(f"s_lshl_b32 s{SA}, s{SC}, 2\ns_add_u32 s{SA}, s{SA}, {GATE}")
            for gi in range(4): p.vmem(f"buffer_load_dword {v(GE+gi)}, {v(T+3)}, {srd(SWS)}, s{SA} offen offset:{gi*16} sc1")
            ep['t'] = p.vmem(f"global_load_dwordx2 {v(DE,2)}, {v(T+4)}, {sp(PDSK)}")
        T4 = [(0, 0), (1, 0), (1, 1), (0, 1)]
        def ym(s):
            ops = []
            for ks in range(4):
                for (mt, nt) in T4:
                    def m(ks=ks, mt=mt, nt=nt):
                        p.wait(lg=self.yr[(s, ks)])
                        d = v(YA + 16 * (2 * mt + nt), 16); b = 64 * s + 16 * ks
                        p(f"{MF} {d}, {ar(b+4*mt,4)}, {ar(b+8+4*nt,4)}, {'0' if (s, ks) == (0, 0) else d}")
                    ops.append(m)
            return ops
        PA = 80
        pt = {}
        def ploads():
            ops = []
            for nt in range(2):
                for kap in range(11):
                    def f(kap=kap, nt=nt):
                        if kap % 4 == 0: p(f"s_add_u32 s{SB_}, s{SE}, {nt*45056+kap*1024}")
                        pt[(kap, nt)] = p.vmem(f"buffer_load_dwordx4 {v(PA+(kap*2+nt)*4,4)}, {v(P10 if kap == 10 else VL16)}, {srd(SWS)}, s{SB_} offen offset:{(kap%4)*1024} sc1")
                    ops.append(f)
            return ops
        wo = {}
        def wo_dma():
            items = []
            for (i0, i1, base) in [(18, 22, 0), (0, 18, 22528)]:
                for i in range(i0, i1):
                    def cb(t, i=i): wo[i] = t
                    k = i - i0
                    items.append(((SREG, base + k * 1024) if k % 4 == 0 else None, (SXB, i * 8192) if k % 4 == 0 else None,
                                  f"buffer_load_dwordx4 {v(self.WD+k%4)}, {srd(SWOUT)}, s{SDO} offen offset:{(k%4)*1024} lds", cb))
            return self.dseq(items)
        def wo_rd(kap):
            def f():
                p.wait(vm=wo[2 * kap + 1], lg=p.lg - 12)
                for mt in range(2):
                    for a in range(2):
                        base = 22528 + kap * 2048 if kap < 9 else (kap - 9) * 2048
                        wo[('r', kap)] = p.lds(f"ds_read_b64_tr_b16 {ar((kap*2+mt)*4+2*a,2)}, {v(self.WT_+mt)} offset:{base+a*512}")
            return f
        def pflag():
            p.wait(vm=self.tp); self.flag(SLATE, 220)
        pl = {}
        def pf_issue(): pl['t'] = p.vmem(f"buffer_load_dword {v(PL+1)}, {v(PL)}, {srd(SWS)}, 0 offen sc1")
        def pf_check():
            l = p.label("pp"); d = p.label("pd")
            p.wait(vm=pl['t'])
            p(f"s_mov_b32 s{SSPIN}, 0")
            p.put(l)
            p(f"v_cmp_ne_u32 vcc, s{ST_T}, {v(PL+1)}\ns_and_b32 s{SF}, vcc_lo, 0xff\ns_cbranch_scc0 {d}")
            p(f"buffer_load_dword {v(PL+1)}, {v(PL)}, {srd(SWS)}, 0 offen sc1\ns_waitcnt vmcnt(0)")
            p(f"s_add_u32 s{SSPIN}, s{SSPIN}, 1\ns_cmp_lt_u32 s{SSPIN}, {SPIN}\ns_cbranch_scc1 {l}")
            p.put(d)
        su = self.cap(setup)
        lgw = lambda: p.wait(lg=p.lg - 1)
        y2, y3, wd, pl_ = self.y_dma(2), self.y_dma(3), wo_dma(), ploads()
        self.run(merge(merge(ym(0), su), self.y1 + [lgw] + y2[:5]))
        self.run([pflag] + y2[5:13])
        self.run(merge(self.y_read(1), y2[13:] + [eloads]))
        self.stamp(11)
        self.run(merge(ym(1), [lgw] + y3))
        self.run(merge(self.y_read(2), wd[:5]))
        self.run(merge(ym(2), [lgw] + wd[5:14] + [pf_issue] + wd[14:]))
        self.run(self.y_read(3))
        pf_check(); self.stamp(12)
        self.run(merge(ym(3), pl_[:12]))
        prest = pl_[12:]
        self.stamp(13)
        def redw(acc, base, tiles):
            return [(lambda mt=mt, nt=nt, i=i: p.lds(f"ds_write_b128 {v(WA+i)}, {v(acc+16*(2*mt+nt)+4*i,4)} offset:{base+nt*8192+mt*128}"))
                    for (mt, nt) in tiles for i in range(4)]
        def bm(kap, mt, nt):
            def m():
                p.wait(vm=pt[(kap, nt)], lg=wo[('r', kap)])
                d = v(YA + 16 * (2 * mt + nt), 16)
                p(f"{MF} {d}, {ar((kap*2+mt)*4,4)}, {v(PA+(kap*2+nt)*4,4)}, {d}")
            return m
        def yscale(mt, nt, pk=True):
            if pk: return [(lambda i=i: p(f"v_pk_mul_f32 {v(YA+16*(2*mt+nt)+2*i,2)}, {v(YA+16*(2*mt+nt)+2*i,2)}, {v(self.GY+2*nt,2)} op_sel_hi:[1,0]")) for i in range(8)]
            return [(lambda i=i: p(f"v_mul_f32 {v(YA+16*(2*mt+nt)+i)}, {v(YA+16*(2*mt+nt)+i)}, {v(self.GY+2*nt)}")) for i in range(16)]
        DU, X = 168, 0
        XP = [4, 8, 12, 172]
        def xpart():
            p = self.p
            self.unpack(DU, DE); self.unpack(DU + 2, DE + 1)
            for gi in range(4):
                x = XP[gi]
                self.unpack(x, XE + 2 * gi); self.unpack(x + 2, XE + 2 * gi + 1)
                for k in range(4): p(f"v_mul_f32 {v(x+k)}, {v(x+k)}, {v(DU+k)}")
                for k in range(4): p(f"v_mul_f32 {v(x+k)}, {v(x+k)}, {v(GE+gi)}")
        self.run(merge(merge(yscale(0, 0) + yscale(1, 0) + yscale(1, 1) + yscale(0, 1), prest), [wo_rd(k) for k in range(11)]))
        mm0 = [bm(kap, mt, 0) for kap in range(11) for mt in range(2)]
        self.run(merge(mm0, [lambda: p.wait(vm=ep['t'])] + self.cap(xpart)))
        mm1 = [bm(kap, 0, 1) for kap in range(11)]
        mm2 = [bm(kap, 1, 1) for kap in range(11)]
        self.run(merge(mm1, redw(YA, 0, [(0, 0), (1, 0)]), 2))
        self.run(merge(mm2, redw(YA, 0, [(0, 1)]), 4))
        self.run(redw(YA, 0, [(1, 1)]))
        p.wait_lg_all(); p("s_barrier")
        self.stamp(14)
        tk = {}
        def R(gi, s): return 16 + 16 * gi + 4 * s
        for gi in range(4):
            p.wait(lg=p.lg - 12)
            for s_ in range(4):
                tk[gi] = p.lds(f"ds_read_b128 {v(R(gi,s_),4)}, {v(RA+2*(s_>>1)+(gi&1))} offset:{(s_&1)*40960+gi*1024}")
        p(f"s_lshl_b32 s{SD}, s{SD}, 1")
        for gi in range(4):
            y = R(gi, 0)
            p.wait(lg=tk[gi])
            for hh in (0, 2):
                p(f"v_pk_add_f32 {v(y+hh,2)}, {v(y+hh,2)}, {v(y+4+hh,2)}\nv_pk_add_f32 {v(y+8+hh,2)}, {v(y+8+hh,2)}, {v(y+12+hh,2)}")
            for hh in (0, 2): p(f"v_pk_add_f32 {v(y+hh,2)}, {v(y+hh,2)}, {v(XP[gi]+hh,2)}")
            for hh in (0, 2): p(f"v_pk_add_f32 {v(y+hh,2)}, {v(y+hh,2)}, {v(y+8+hh,2)}")
            p(f"s_add_u32 s{SA}, s{SD}, {gi*8192}")
            p.vmem(f"buffer_store_dwordx4 {v(y,4)}, {v(OV)}, {srd(SOUT)}, s{SA} offen{' ' + o['outmod'] if 'outmod' in o else ''}")
        ne = p.label("ne")
        p(f"s_lshl_b32 s{SA}, s{STB}, 3\ns_add_u32 s{SA}, s{SA}, s{SCOL}\ns_lshl_b32 s{SA}, s{SA}, 2\ns_add_u32 s{SA}, s{SA}, s{SWV}")
        p(f"s_cmp_eq_u32 s{SA}, {255*4}\ns_cbranch_scc0 {ne}")
        p(f"s_mov_b32 s{SA}, {EPOCH}")
        self.flag(SA, 220)
        p.put(ne)
        if o.get("stamps"):
            self.stamp(15)
            p(f"s_lshl_b32 s{SA}, s2, 2\ns_add_u32 s{SA}, s{SA}, s{SWV}\ns_lshl_b32 s{SA}, s{SA}, 8\ns_add_u32 s{SA}, s{SA}, {DBG}")
            p(f"v_lshlrev_b32 v254, 2, {v(VL)}")
            p.vmem(f"buffer_store_dword v255, v254, {srd(SWS)}, s{SA} offen")
        if "spin_from" in o:
            self.stamp(15)
            sl = p.label("spin")
            p(f"v_readlane_b32 s{SA}, v254, 0")
            p.put(sl)
            p(f"s_memrealtime s[{SSTMP}:{SSTMP+1}]\ns_waitcnt lgkmcnt(0)\ns_sub_u32 s{SB_}, s{SSTMP}, s{SA}\ns_cmp_lt_u32 s{SB_}, 3000\ns_cbranch_scc1 {sl}")
        p.put(self.END)
        p("s_endpgm")

    def build(self):
        self.prologue()
        self.phase_z()
        self.p.vm_done = -1; self.p.lg_done = -1
        self.p("s_nop 15")
        self.phase_u()
        self.phase_g()
        self.phase_c()
        lines, added = hazard_pass([x for l in self.p.L for x in l.split(chr(10))])
        hdr = open("gated_mix__ssm_conv_s5__mixer_gmlp__prompt.s.ref").read().split("; Override")[0]
        s = hdr + "; @launch grid=(256,1,1) block=(256,1,1) lds=163840\n"
        s += '.amdgcn_target "amdgcn-amd-amdhsa--gfx950"\n.text\n'
        s += f".globl {NAME}\n.p2align 8\n.type {NAME},@function\n{NAME}:\n"
        s += "\n".join((l if l.endswith(":") else "    " + l) for l in lines) + "\n"
        s += f""".section .rodata,"a"
.p2align 6
.amdhsa_kernel {NAME}
  .amdhsa_next_free_vgpr 512
  .amdhsa_next_free_sgpr 102
  .amdhsa_accum_offset 256
  .amdhsa_group_segment_fixed_size 0
  .amdhsa_kernarg_size 144
  .amdhsa_user_sgpr_count 2
  .amdhsa_user_sgpr_kernarg_segment_ptr 1
  .amdhsa_system_sgpr_workgroup_id_x 1
  .amdhsa_float_denorm_mode_32 3
.end_amdhsa_kernel
"""
        return s, added

if __name__ == "__main__":
    out = sys.argv[1]
    opt = {}
    for a in sys.argv[2:]:
        k, _, val = a.partition("=")
        try: opt[k] = int(val) if val else 1
        except ValueError: opt[k] = val
    s, added = G(opt).build()
    open(out, "w").write(s)
    print("wrote", out, "nops added", added, "lines", s.count("\n"))
```

```python
import sys, math, struct
from core import *

NAME = "gated_mix__ssm_conv_s5__mixer_gmlp__prompt_kernel"
EPOCH = 0; GATE = 0x4000
ST = 0x10000; EG = 0x50000; DBG = 0x80000
Z2N = 0x100000; Z1 = 0x400000; PB = 0x700000; HB = 0xA00000
ZF = 0xE00000; HF = 0xE10000; PF = 0xE20000; WS_END = 0xE40000
OOB = 0x80000000
SPIN = 200000
SX, SW1, SWSP, SWS, SCRE, SCIM, SWOUT, SOUT = 4, 8, 12, 16, 20, 24, 28, 32
PLRE, PLIM, PLDT, PDSK, PBSP, PGW, PBRE, PBIM, PWIN = 36, 38, 40, 42, 44, 46, 48, 50, 52
ST_T = 100
SWV, SRB, SCOL, STB = 56, 57, 58, 59
SA, SB_, SC, SD = 60, 61, 62, 63
SSTMP = 64
SDO, SWB, SPB0, SPST, SPSP = 68, 69, 70, 71, 72
SXB, SW1B, SXL, SWL = 73, 74, 75, 76
SPC = 77
SCB, SHB = 78, 79
SK = 80
SREG = 96
SE, SF = 97, 98
SSPIN = 99
SLATE = 101
def srd(b): return f"s[{b}:{b+3}]"
def v(a, n=1): return f"v{a}" if n == 1 else f"v[{a}:{a+n-1}]"
def ar(a, n=1): return f"a{a}" if n == 1 else f"a[{a}:{a+n-1}]"
def sp(a): return f"s[{a}:{a+1}]"
VL, VL16, VOOB = 1, 2, 3
LOG2E = 1.4426950408889634
def f2u(x): return struct.unpack("<I", struct.pack("<f", x))[0]
MF = "v_mfma_f32_32x32x16_bf16"

class G:
    def __init__(self, opt):
        self.o = opt
        self.p = Prog()

    def stamp(self, k):
        if self.o.get("spin_from") == k:
            p = self.p
            p(f"s_memrealtime s[{SSTMP}:{SSTMP+1}]"); p.wait_lg_all()
            p(f"v_mov_b32 v254, s{SSTMP}")
        if self.o.get("stamps"):
            p = self.p
            p(f"s_memrealtime s[{SSTMP}:{SSTMP+1}]\ns_memtime s[{SSTMP+2}:{SSTMP+3}]"); p.wait_lg_all()
            p(f"v_writelane_b32 v255, s{SSTMP}, {k}\nv_writelane_b32 v255, s{SSTMP+2}, {k+32}")
    def cap(self, fn):
        sub = Prog(); save = self.p; self.p = sub
        fn()
        self.p = save
        assert sub.vm == 0 and sub.lg == 0
        return [(lambda l=l: self.p(l)) for l in sub.L]
    def run(self, ops):
        for op in ops: op()
    def dseq(self, items):
        p = self.p
        def setup(it):
            if it[0] is not None: p(f"s_add_u32 m0, s{it[0][0]}, {it[0][1]}")
            if it[1] is not None: p(f"s_add_u32 s{SDO}, s{it[1][0]}, {it[1][1]}")
        ops = [lambda: setup(items[0])]
        for i, it in enumerate(items):
            def f(i=i, it=it):
                t = p.vmem(it[2])
                if it[3]: it[3](t)
                if i + 1 < len(items): setup(items[i + 1])
            ops.append(f)
        return ops
    def poll_addr(self, vt, groups):
        p = self.p; n0 = 0
        p(f"v_mov_b32 {v(vt)}, {v(VOOB)}")
        for (sr, n) in groups:
            if n == 1: p(f"v_writelane_b32 {v(vt)}, s{sr}, {n0}")
            else:
                p(f"s_sub_u32 s{sr}, s{sr}, {n0*128}\nv_lshl_add_u32 {v(vt+1)}, {v(VL)}, 7, s{sr}")
                m = ((1 << n) - 1) << n0
                p(f"s_mov_b32 vcc_lo, {m & 0xffffffff}\ns_mov_b32 vcc_hi, {m >> 32}\nv_cndmask_b32 {v(vt)}, {v(vt)}, {v(vt+1)}, vcc")
            n0 += n
        return n0
    def poll(self, vt, n):
        p = self.p
        l = p.label("poll"); d = p.label("pd")
        p(f"s_mov_b32 s{SSPIN}, 0")
        p.put(l)
        p.vmem(f"buffer_load_dword {v(vt+1)}, {v(vt)}, {srd(SWS)}, 0 offen sc1")
        p.wait_vm_all()
        p(f"v_cmp_ne_u32 vcc, s{ST_T}, {v(vt+1)}")
        if n <= 32: p(f"s_and_b32 s{SF}, vcc_lo, {(1<<n)-1}")
        else: p(f"s_and_b32 vcc_hi, vcc_hi, {(1<<(n-32))-1}\ns_or_b32 s{SF}, vcc_lo, vcc_hi")
        p(f"s_cbranch_scc0 {d}")
        p(f"s_add_u32 s{SSPIN}, s{SSPIN}, 1\ns_cmp_lt_u32 s{SSPIN}, {SPIN}\ns_cbranch_scc1 {l}")
        p.put(d)
    def flag_prep(self, vt):
        p = self.p
        p(f"v_mov_b32 {v(vt)}, s{ST_T}\nv_mov_b32 {v(vt+1)}, {v(VOOB)}\nv_writelane_b32 {v(vt+1)}, 0, 0")
    def flag(self, off_sreg, vt):
        self.p.vmem(f"buffer_store_dword {v(vt)}, {v(vt+1)}, {srd(SWS)}, s{off_sreg} offen sc1")
    def xhalf_sum(self, a, t):
        self.p(f"v_mov_b32 {v(t)}, {v(a)}\nv_permlane32_swap_b32 {v(a)}, {v(t)}\nv_add_f32 {v(a)}, {v(a)}, {v(t)}")
    def rnd(self, d, s):
        self.p(f"v_cvt_pk_bf16_f32 {v(d)}, {v(s)}, {v(s)}\nv_lshlrev_b32 {v(d)}, 16, {v(d)}")
    def unpack(self, d, s):
        self.p(f"v_and_b32 {v(d+1)}, 0xffff0000, {v(s)}\nv_lshlrev_b32 {v(d)}, 16, {v(s)}")
    def plain_read_addr(self, dst4, base_sreg, t):
        p = self.p
        p(f"v_and_b32 {v(t)}, 31, {v(VL)}\nv_lshlrev_b32 {v(t)}, 7, {v(t)}")
        if base_sreg is not None: p(f"v_add_u32 {v(t)}, s{base_sreg}, {v(t)}")
        p(f"v_bfe_u32 {v(t+1)}, {v(VL)}, 1, 3\nv_lshrrev_b32 {v(dst4)}, 5, {v(VL)}\nv_xor_b32 {v(t+1)}, {v(t+1)}, {v(dst4)}")
        p(f"v_lshlrev_b32 {v(t+1)}, 4, {v(t+1)}")
        for ks in range(4):
            p(f"v_xor_b32 {v(dst4+ks)}, {32*ks}, {v(t+1)}\nv_add_u32 {v(dst4+ks)}, {v(dst4+ks)}, {v(t)}")
    def plain_dma_addr(self, dst4, rowbytes, t, rowstep=8):
        p = self.p
        p(f"v_lshrrev_b32 {v(t)}, 3, {v(VL)}\nv_mul_u32_u24 {v(t)}, {rowbytes}, {v(t)}")
        self.plain_dma_addr2(dst4, t, t + 1, rowstep * rowbytes)
    def plain_dma_addr2(self, dst4, vrow, t, step):
        p = self.p
        p(f"v_and_b32 {v(t)}, 7, {v(VL)}\nv_lshrrev_b32 {v(dst4)}, 4, {v(VL)}\nv_xor_b32 {v(t)}, {v(t)}, {v(dst4)}\nv_lshlrev_b32 {v(t)}, 4, {v(t)}")
        p(f"v_add_u32 {v(dst4)}, {v(t)}, {v(vrow)}")
        p(f"v_xor_b32 {v(t)}, 64, {v(t)}\nv_add_u32 {v(dst4+1)}, {v(t)}, {v(vrow)}")
        p(f"v_add_u32 {v(dst4+2)}, {2*(step-1024)}, {v(dst4)}\nv_add_u32 {v(dst4+3)}, {3*(step-1024)}, {v(dst4+1)}\nv_add_u32 {v(dst4+1)}, {step-1024}, {v(dst4+1)}")
    def panel_tr_addr(self, dst2, base_sreg, t, perm):
        p = self.p
        p(f"v_lshrrev_b32 {v(t)}, 5, {v(VL)}\nv_lshlrev_b32 {v(t)}, 10, {v(t)}")
        p(f"v_bfe_u32 {v(t+1)}, {v(VL)}, 2, 2\nv_lshl_add_u32 {v(t)}, {v(t+1)}, 7, {v(t)}")
        p(f"v_bfe_u32 {v(t+1)}, {v(VL)}, 4, 1\nv_lshl_add_u32 {v(t)}, {v(t+1)}, 5, {v(t)}")
        if perm:
            p(f"v_and_b32 {v(t+1)}, 1, {v(VL)}\nv_lshl_add_u32 {v(t)}, {v(t+1)}, 4, {v(t)}")
            p(f"v_bfe_u32 {v(t+1)}, {v(VL)}, 1, 1\nv_lshl_add_u32 {v(t)}, {v(t+1)}, 3, {v(t)}")
        else:
            p(f"v_and_b32 {v(t+1)}, 3, {v(VL)}\nv_lshl_add_u32 {v(t)}, {v(t+1)}, 3, {v(t)}")
        p(f"v_bfe_u32 {v(t+1)}, {v(VL)}, 3, 1\nv_lshlrev_b32 {v(t+1)}, 6, {v(t+1)}")
        if base_sreg is not None: p(f"v_add_u32 {v(t)}, s{base_sreg}, {v(t)}")
        p(f"v_add_u32 {v(dst2)}, {v(t)}, {v(t+1)}\nv_xor_b32 {v(t+1)}, 64, {v(t+1)}\nv_add_u32 {v(dst2+1)}, {v(t)}, {v(t+1)}")
    def unit_tr_addr(self, dst2, base_sreg, t, perm, flip_sreg=None):
        p = self.p
        p(f"v_bfe_u32 {v(t)}, {v(VL)}, 4, 1")
        if flip_sreg is not None: p(f"v_xor_b32 {v(t)}, s{flip_sreg}, {v(t)}")
        p(f"v_lshlrev_b32 {v(t)}, 1, {v(t)}")
        p(f"v_bfe_u32 {v(t+1)}, {v(VL)}, {0 if perm else 1}, 1\nv_or_b32 {v(t)}, {v(t)}, {v(t+1)}")
        p(f"v_lshrrev_b32 {v(t+1)}, 5, {v(VL)}\nv_lshlrev_b32 {v(t+1)}, 1, {v(t+1)}\nv_xor_b32 {v(t+1)}, {v(t+1)}, {v(t)}")
        p(f"v_lshlrev_b32 {v(t)}, 9, {v(t)}")
        p(f"v_bfe_u32 {v(t+2)}, {v(VL)}, 2, 2\nv_lshl_add_u32 {v(t)}, {v(t+2)}, 4, {v(t)}")
        p(f"v_bfe_u32 {v(t+2)}, {v(VL)}, {1 if perm else 0}, 1\nv_lshl_add_u32 {v(t)}, {v(t+2)}, 3, {v(t)}")
        if base_sreg is not None: p(f"v_add_u32 {v(t)}, s{base_sreg}, {v(t)}")
        p(f"v_lshl_add_u32 {v(dst2)}, {v(t+1)}, 6, {v(t)}")
        p(f"v_xor_b32 {v(t+1)}, 1, {v(t+1)}\nv_lshl_add_u32 {v(dst2+1)}, {v(t+1)}, 6, {v(t)}")

    def gemm_loop(self, nslot, reads, mfmas, dma, tick, rfront, npro, extra, valu=None):
        p = self.p
        p.wait(vm=tick[0]); p("s_barrier")
        self.stamp(20)
        self.run(reads(0))
        d = []
        for st in range(npro, nslot): d += dma(st)
        q = (len(d) + 2) // 3
        pend = [d[i * q:(i + 1) * q] for i in range(3)]
        for n in range(32):
            rd = []
            if n + 1 < 32:
                if (n + 1) % 4 == 0:
                    st = (n + 1) // 4
                    p.wait(vm=tick[st], lg=p.lg - 1); p("s_barrier")
                    d = dma(st - 1 + nslot) if st - 1 + nslot < 8 else extra.get(st, lambda: [])()
                    q = (len(d) + 3) // 4
                    pend = [d[i * q:(i + 1) * q] for i in range(4)]
                rd = reads(n + 1)
            seq = merge(mfmas(n), rd, 0, rfront)
            if pend: seq = merge(seq, pend.pop(0), len(seq) // 2)
            if valu and n in valu: seq = merge(seq, valu[n])
            self.run(seq)

    def gate(self, GX, GW, GU, GS, GT):
        p = self.p
        for i in range(4): self.unpack(GU + 2 * i, GW + i)
        for r in range(4):
            for i in range(4):
                a = GT + 2 * i
                self.unpack(a, GX + 4 * r + i)
                p(f"v_pk_mul_f32 {v(a,2)}, {v(a,2)}, {v(GU+2*i,2)}")
            for i in range(4): p(f"v_cvt_pk_bf16_f32 {v(GX+4*r+i)}, {v(GT+2*i)}, {v(GT+1+2*i)}")
            for i in range(4): self.unpack(GT + 2 * i, GX + 4 * r + i)
            p(f"v_pk_add_f32 {v(GT,2)}, {v(GT,2)}, {v(GT+2,2)}\nv_pk_add_f32 {v(GT+4,2)}, {v(GT+4,2)}, {v(GT+6,2)}\nv_pk_add_f32 {v(GT,2)}, {v(GT,2)}, {v(GT+4,2)}")
            p(f"v_add_f32 {v(GS+r)}, {v(GT)}, {v(GT+1)}")
        for mod in ["quad_perm:[1,0,3,2]", "quad_perm:[2,3,0,1]", "row_half_mirror", "row_mirror"]:
            for r in range(4): p(f"v_add_f32_dpp {v(GS+r)}, {v(GS+r)}, {v(GS+r)} {mod} row_mask:0xf bank_mask:0xf")
        for sw in ["v_permlane16_swap_b32", "v_permlane32_swap_b32"]:
            for r in range(4): p(f"v_mov_b32 {v(GT+r)}, {v(GS+r)}")
            for r in range(4): p(f"{sw} {v(GS+r)}, {v(GT+r)}")
            for r in range(4): p(f"v_add_f32 {v(GS+r)}, {v(GS+r)}, {v(GT+r)}")
        for r in range(4): self.rnd(GS + r, GS + r)
        for r in range(4): p(f"v_mul_f32 {v(GS+r)}, {f2u(-LOG2E)}, {v(GS+r)}")
        for r in range(4): p(f"v_exp_f32 {v(GS+r)}, {v(GS+r)}")
        for r in range(4): p(f"v_add_f32 {v(GS+r)}, 1.0, {v(GS+r)}")
        for r in range(4): p(f"v_rcp_f32 {v(GS+r)}, {v(GS+r)}")
        for r in range(4): self.rnd(GS + r, GS + r)
        p(f"v_mov_b32 {v(GT)}, {v(VOOB)}\nv_writelane_b32 {v(GT)}, 0, 0")

    def w_dma_addr(self, dst3, t, colbase):
        p = self.p
        for i in range(3):
            p(f"v_add_u32 {v(t)}, {64*i}, {v(VL)}\nv_mul_u32_u24 {v(t+1)}, 171, {v(t)}\nv_lshrrev_b32 {v(t+1)}, 11, {v(t+1)}")
            p(f"v_mul_u32_u24 {v(t+2)}, 12, {v(t+1)}\nv_sub_u32 {v(t)}, {v(t)}, {v(t+2)}\nv_cmp_eq_u32 vcc, 11, {v(t)}")
            p(f"v_mul_u32_u24 {v(t+1)}, 2752, {v(t+1)}\nv_lshl_add_u32 {v(t)}, {v(t)}, 4, {v(t+1)}")
            if colbase - 1024 * i: p(f"v_add_u32 {v(t)}, {colbase-1024*i}, {v(t)}")
            p(f"v_cndmask_b32 {v(dst3+i)}, {v(t)}, {v(VOOB)}, vcc")
    def w_tr_addr(self, dst, base, t):
        p = self.p
        p(f"v_lshrrev_b32 {v(t)}, 5, {v(VL)}\nv_bfe_u32 {v(t+1)}, {v(VL)}, 2, 2\nv_lshl_add_u32 {v(t)}, {v(t)}, 3, {v(t+1)}\nv_mul_u32_u24 {v(t)}, 192, {v(t)}")
        p(f"v_bfe_u32 {v(t+1)}, {v(VL)}, 4, 1\nv_lshl_add_u32 {v(t)}, {v(t+1)}, 5, {v(t)}")
        p(f"v_and_b32 {v(t+1)}, 1, {v(VL)}\nv_lshl_add_u32 {v(t)}, {v(t+1)}, 4, {v(t)}")
        p(f"v_bfe_u32 {v(t+1)}, {v(VL)}, 1, 1\nv_lshl_add_u32 {v(t)}, {v(t+1)}, 3, {v(t)}")
        p(f"v_add_u32 {v(dst)}, {base}, {v(t)}")
    def valid_masks(self):
        MA, MB = SK + 2, SK + 4
        self.p.atom(f"s_cmp_lt_u32 s{SCOL}, 7\ns_mov_b32 s{MA}, -1\ns_cselect_b32 s{MA+1}, -1, 0\ns_cselect_b32 s{MB}, -1, 0\ns_mov_b32 s{MB+1}, 0\n"
                    f"s_mov_b32 s{SK+6}, {f2u(1/72)}\ns_cselect_b32 s{SK+6}, {f2u(1/88)}, s{SK+6}")
        c1 = -2 * LOG2E * 0.7978845608028654
        self.p(f"s_mov_b32 s{SK}, {f2u(c1*0.044715)}\nv_mov_b32 {v(self.VC0)}, {f2u(c1)}")

    def gelu_pair(self, a, t, out_packed=None):
        p = self.p
        p(f"v_cvt_pk_bf16_f32 {v(t)}, {v(a)}, {v(a+1)}")
        self.unpack(a, t)
        p(f"v_pk_mul_f32 {v(t,2)}, {v(a,2)}, {v(a,2)}")
        p(f"v_pk_fma_f32 {v(t,2)}, {v(t,2)}, {sp(SK)}, {v(self.VC0,2)} op_sel_hi:[1,0,0]")
        p(f"v_pk_mul_f32 {v(t,2)}, {v(t,2)}, {v(a,2)}")
        p(f"v_exp_f32 {v(t)}, {v(t)}\nv_exp_f32 {v(t+1)}, {v(t+1)}")
        p(f"v_pk_add_f32 {v(t,2)}, {v(t,2)}, 1.0 op_sel_hi:[1,0]")
        p(f"v_rcp_f32 {v(t)}, {v(t)}\nv_rcp_f32 {v(t+1)}, {v(t+1)}")
        p(f"v_pk_mul_f32 {v(t,2)}, {v(t,2)}, {v(a,2)}")
        if out_packed is not None:
            p(f"v_cvt_pk_bf16_f32 {v(out_packed)}, {v(t)}, {v(t+1)}")
        else:
            p(f"v_cvt_pk_bf16_f32 {v(t)}, {v(t)}, {v(t+1)}")
            self.unpack(a, t)
    def gelu_many(self, pairs, temps, outs=None):
        p = self.p; ng = len(temps)
        for g0 in range(0, len(pairs), ng):
            streams = []
            for k, i in enumerate(range(g0, min(g0 + ng, len(pairs)))):
                sub = Prog(); save = self.p; self.p = sub
                self.gelu_pair(pairs[i], temps[k], None if outs is None else outs[i])
                self.p = save
                streams.append(sub.L)
            for j in range(len(streams[0])):
                for s in streams: p(s[j])

    VWD, VWR, VWA, VC0 = 240, 244, 248, 252
    def wsp_setup(self, t):
        p = self.p
        self.plain_dma_addr(self.VWD, 4096, t)
        p(f"s_and_b32 s{SA}, s{SWV}, 1\ns_lshl_b32 s{SA}, s{SA}, 12")
        self.plain_read_addr(self.VWR, SA, t)
        p(f"s_lshl_b32 s{SWB}, s{STB}, 18\ns_lshl_b32 s{SB_}, s{SWV}, 10\ns_add_u32 s{SWB}, s{SWB}, s{SB_}")
        self.wsp_t = {}
    def piece(self, st):
        return {0: (SPB0, 0), 1: (SPST, 0), 7: (SREG, 32768)}.get(st, (SREG, (6 - st) * 8192))
    def wsp_dma(self, st):
        items = []; sr, im = self.piece(st)
        for hh in range(2):
            for i in range(4):
                def cb(t): self.wsp_t[st] = t
                items.append(((sr, im + hh * 4096) if i == 0 else None, (SWB, st * 128 + hh * 131072) if i == 0 else None,
                              f"buffer_load_dwordx4 {v(self.VWD+i)}, {srd(SWSP)}, s{SDO} offen offset:{i*1024} lds", cb))
        return self.dseq(items)
    def wsp_read(self, st, newbase=True):
        p = self.p; sr, im = self.piece(st)
        def pre():
            if newbase:
                for ks in range(4): p(f"v_add_u32 {v(self.VWA+ks)}, s{sr}, {v(self.VWR+ks)}")
            p.wait(vm=self.wsp_t[st], lg=p.lg - 8)
        ops = [pre]
        for nt in range(2):
            for ks in range(4):
                def f(ks=ks, nt=nt):
                    p.lds(f"ds_read_b128 {ar(((st*4+ks)*2+nt)*4,4)}, {v(self.VWA+ks)} offset:{im}")
                    p(f"v_xor_b32 {v(self.VWA+ks)}, 4096, {v(self.VWA+ks)}")
                ops.append(f)
        return ops

    def prologue(self):
        p = self.p
        self.END = p.label("end")
        p(f"s_cmp_ge_u32 s2, 256\ns_cbranch_scc1 {self.END}")
        p(f"s_load_dwordx2 {sp(SX)}, s[0:1], 0\ns_load_dwordx2 {sp(PWIN)}, s[0:1], 80\ns_load_dwordx4 s[{PBRE}:{PBRE+3}], s[0:1], 24")
        p(f"s_load_dwordx2 {sp(PGW)}, s[0:1], 112\ns_load_dwordx4 s[{PLRE}:{PLRE+3}], s[0:1], 8\ns_load_dwordx2 {sp(PLDT)}, s[0:1], 56\ns_load_dwordx2 {sp(SWS)}, s[0:1], 136")
        p(f"v_lshrrev_b32 v2, 6, v0\nv_and_b32 {v(VL)}, 63, v0\nv_readfirstlane_b32 s{SWV}, v2\nv_lshlrev_b32 {v(VL16)}, 4, {v(VL)}\nv_mov_b32 {v(VOOB)}, {OOB}")
        if self.o.get("stamps"):
            p("v_mov_b32 v255, 0")
            self.stamp(17)
        p(f"s_and_b32 s{SA}, s2, 7\ns_lshr_b32 s{SB_}, s2, 3")
        p(f"s_and_b32 s{SC}, s{SA}, 1\ns_lshl_b32 s{SC}, s{SC}, 2\ns_and_b32 s{SD}, s{SB_}, 3\ns_add_u32 s{SCOL}, s{SC}, s{SD}")
        p(f"s_lshr_b32 s{SA}, s{SA}, 1")
        p(f"s_lshr_b32 s{SC}, s{SB_}, 2\ns_lshl_b32 s{SD}, s{SA}, 3\ns_add_u32 s{STB}, s{SD}, s{SC}")
        p(f"s_and_b32 s{SC}, s{SC}, 3\ns_lshl_b32 s{SD}, s{SA}, 2\ns_add_u32 s{SRB}, s{SD}, s{SC}")
        p(f"s_mov_b32 s{SX+2}, 2097152\ns_mov_b32 s{SX+3}, 0x20000\ns_mov_b32 s{SW1+3}, 0x20000")
        self.LU = p.label("U"); self.LG = p.label("G")
        p(f"s_cmp_ge_u32 s{SB_}, 16\ns_cbranch_scc1 {self.LU}")
    def late_args(self):
        p = self.p
        for (r, off) in [(SWSP, 88), (SCRE, 40), (SCIM, 48), (SWOUT, 104), (SOUT, 120), (PDSK, 64), (PBSP, 96)]:
            p(f"s_load_dwordx2 {sp(r)}, s[0:1], {off}")
        p(f"s_load_dword s{ST_T}, {sp(SWS)}, {EPOCH}")
        for (r, n) in [(SWSP, 8388608), (SWS, WS_END), (SCRE, 524288), (SCIM, 524288), (SWOUT, 704512), (SOUT, 4194304)]:
            p(f"s_mov_b32 s{r+2}, {n}\ns_mov_b32 s{r+3}, 0x20000")
    def epoch2(self):
        p = self.p
        p.wait_lg_all()
        p(f"s_mul_i32 s{ST_T}, s{ST_T}, 0x9E3779B1\ns_add_u32 s{ST_T}, s{ST_T}, 0x7F4A7C15")

    def phase_z(self):
        p = self.p; o = self.o
        ACC, FA, FB, XR, WR, XD, WD, T = 16, 64, 88, 96, 100, 104, 108, 112
        p.c("==== phase A: Z ====")
        self.plain_dma_addr(XD, 1024, T)
        p(f"s_lshl_b32 s{SXB}, s{SRB}, 17\ns_lshl_b32 s{SA}, s{SWV}, 15\ns_add_u32 s{SXB}, s{SXB}, s{SA}")
        p(f"s_mul_i32 s{SREG}, s{SWV}, 40960")
        tick = {}
        def xdma(st, cb=None):
            return [((SREG, (st & 3) * 4096) if i == 0 else None, (SXB, st * 128) if i == 0 else None,
                     f"buffer_load_dwordx4 {v(XD+i)}, {srd(SX)}, s{SDO} offen offset:{i*1024} lds", cb) for i in range(4)]
        def wdma(st, cb=None):
            return [((SWL, (st & 3) * 40960) if i == 0 else None, (SW1B, st * 64 * 2752) if i == 0 else None,
                     f"buffer_load_dwordx4 {v(WD+i)}, {srd(SW1)}, s{SDO} offen offset:{i*1024} lds", cb) for i in range(3)]
        def dma(st):
            def cb(t): tick[st] = t
            return self.dseq(wdma(st) + xdma(st, cb))
        self.w_dma_addr(WD, T, 1376)
        p(f"s_mul_i32 s{SW1B}, s{SWV}, {16*2752}\ns_mul_i32 s{SA}, s{SCOL}, 176\ns_add_u32 s{SW1B}, s{SW1B}, s{SA}")
        p(f"s_mul_i32 s{SWL}, s{SWV}, 3072\ns_add_u32 s{SWL}, s{SWL}, 16384\ns_mov_b32 s{SW1+2}, {512*2752}")
        p.wait_lg_all()
        p(f"s_mov_b64 {sp(SW1)}, {sp(PWIN)}")
        npro = o.get("npro", 3)
        self.run(dma(0))
        self.late_args()
        def setup():
            self.plain_read_addr(XR, SREG, T)
            self.w_tr_addr(WR, 16384, T)
            self.p(f"v_add_u32 {v(WR+1)}, 81920, {v(WR)}")
            self.wsp_setup(T)
            self.p(f"s_add_u32 s{SPB0}, s{SREG}, 32768\ns_mov_b32 s{SPST}, s{SREG}")
            self.valid_masks()
        d = []
        for st in range(1, npro): d += dma(st)
        self.run(merge(self.cap(setup), d))
        self.epoch2()
        self.stamp(0)
        rt = {}
        def reads(n):
            st, ks = n // 4, n % 4; sl = st & 3; s = n & 1; ops = []
            def rb(): rt[(n, 'b')] = p.lds(f"ds_read_b128 {v(FB+4*s,4)}, {v(XR+ks)} offset:{sl*4096}")
            ops.append(rb)
            for mt in range(3):
                for a in range(2):
                    def ra(mt=mt, a=a):
                        rt[(n, mt)] = p.lds(f"ds_read_b64_tr_b16 {v(FA+12*s+4*mt+2*a,2)}, {v(WR+(sl>>1))} offset:{(sl&1)*40960+ks*3072+a*768+mt*64}")
                    ops.append(ra)
            return ops
        def mfmas(n):
            s = n & 1; ops = []
            for mt in range(3):
                def m(mt=mt):
                    p.wait(lg=rt[(n, mt)])
                    c = "0" if n == 0 else v(ACC + 16 * mt, 16)
                    p(f"{MF} {v(ACC+16*mt,16)}, {v(FA+12*s+4*mt,4)}, {v(FB+4*s,4)}, {c}")
                ops.append(m)
            return ops
        GX, GW, GU, GS, GT = 128, 144, 148, 156, 160
        gt = {}
        def gload():
            p(f"s_lshl_b32 s{SE}, s{SRB}, 2\ns_add_u32 s{SE}, s{SE}, s{SWV}\ns_lshl_b32 s{SE}, s{SE}, 3\ns_add_u32 s{SE}, s{SE}, s{SCOL}\ns_lshl_b32 s{SA}, s{SE}, 12")
            for r in range(4): p.vmem(f"buffer_load_dwordx4 {v(GX+4*r,4)}, {v(VL16)}, {srd(SX)}, s{SA} offen offset:{r*1024}")
            gt['t'] = p.vmem(f"global_load_dwordx4 {v(GW,4)}, {v(VL16)}, {sp(PGW)}")
        def gstore():
            p(f"s_lshl_b32 s{SA}, s{SE}, 4\ns_add_u32 s{SA}, s{SA}, {GATE}")
            p.vmem(f"buffer_store_dwordx4 {v(GS,4)}, {v(GT)}, {srd(SWS)}, s{SA} offen sc1")
        gops = [lambda: p.wait(vm=gt['t'])] + self.cap(lambda: self.gate(GX, GW, GU, GS, GT)) + [gstore]
        def touch(sr, base_expr, n, reg):
            p(base_expr)
            for i in range(n):
                if i: p(f"s_add_u32 s{SA}, s{SA}, 8192")
                p.vmem(f"buffer_load_dword {v(reg)}, {v(170)}, {srd(sr)}, s{SA} offen")
        def touch_wsp():
            p(f"v_lshlrev_b32 {v(170)}, 7, {v(VL)}\ns_lshr_b32 s{SB_}, s2, 3\ns_lshl_b32 s{SB_}, s{SB_}, 2\ns_add_u32 s{SPC}, s{SB_}, s{SWV}")
            touch(SWSP, f"s_lshr_b32 s{SA}, s{STB}, 3\ns_lshl_b32 s{SA}, s{SA}, 21\ns_add_u32 s{SA}, s{SA}, {1<<20}\ns_lshl_b32 s{SB_}, s{SPC}, 14\ns_add_u32 s{SA}, s{SA}, s{SB_}", 2, 171)
        def touch_c():
            p.atom(f"s_cmp_lt_u32 s{SPC}, 32\ns_cselect_b64 {sp(SW1)}, {sp(SCRE)}, {sp(SCIM)}\ns_mov_b32 s{SW1+2}, 524288")
            touch(SW1, f"s_and_b32 s{SA}, s{SPC}, 31\ns_lshl_b32 s{SA}, s{SA}, 13\ns_lshr_b32 s{SB_}, s{SCOL}, 2\ns_lshl_b32 s{SB_}, s{SB_}, 18\ns_add_u32 s{SA}, s{SA}, s{SB_}", 1, 171)
            p(f"v_lshrrev_b32 {v(170)}, 2, {v(VL)}\nv_lshlrev_b32 {v(170)}, 10, {v(170)}\nv_and_b32 {v(172)}, 3, {v(VL)}\nv_lshl_add_u32 {v(170)}, {v(172)}, 7, {v(170)}")
            touch(SWOUT, f"s_lshl_b32 s{SA}, s{SPC}, 14\ns_lshr_b32 s{SB_}, s{SCOL}, 2\ns_lshl_b32 s{SB_}, s{SB_}, 9\ns_add_u32 s{SA}, s{SA}, s{SB_}", 1, 171)
        valu = {28: [gload]}
        if o.get("touch", 1): valu[29] = [touch_wsp]
        self.gemm_loop(4, reads, mfmas, dma, tick, 2, npro, {5: lambda: self.wsp_dma(0), 6: lambda: self.wsp_dma(1)}, valu)
        self.stamp(1)
        MA, MB = SK + 2, SK + 4
        GR, VLO = 72, 80
        def seg1b():
            p = self.p
            S0, S1, MU = 64, 66, 68
            p(f"v_pk_add_f32 {v(S0,2)}, {v(ACC,2)}, {v(ACC+2,2)}\nv_pk_add_f32 {v(S1,2)}, {v(ACC+4,2)}, {v(ACC+6,2)}")
            for i in range(4, 16):
                s = S0 if i % 2 == 0 else S1
                p(f"v_pk_add_f32 {v(s,2)}, {v(s,2)}, {v(ACC+2*i,2)}")
            for (m, b) in [(MA, 16), (MB, 20)]:
                p(f"s_mov_b64 exec, {sp(m)}")
                for i in range(b, b + 4):
                    s = S0 if i % 2 == 0 else S1
                    p(f"v_pk_add_f32 {v(s,2)}, {v(s,2)}, {v(ACC+2*i,2)}")
            p("s_mov_b64 exec, -1")
            p(f"v_pk_add_f32 {v(S0,2)}, {v(S0,2)}, {v(S1,2)}\nv_add_f32 {v(GR)}, {v(S0)}, {v(S0+1)}")
            p(f"v_mov_b32 {v(S0)}, {v(GR)}\nv_mov_b32 {v(GR+1)}, s{ST_T}\nv_mov_b32 {v(GR+3)}, s{ST_T}\nv_permlane32_swap_b32 {v(GR)}, {v(S0)}\nv_add_f32 {v(GR)}, {v(GR)}, {v(S0)}")
            p(f"v_mul_f32 {v(MU)}, s{SK+6}, {v(GR)}")
            D0, D1 = 76, 78
            def m2(i, first=False):
                d = D0 if i % 2 == 0 else D1; s = S0 if i % 2 == 0 else S1
                p(f"v_pk_add_f32 {v(d,2)}, {v(ACC+2*i,2)}, {v(MU,2)} op_sel_hi:[1,0] neg_lo:[0,1] neg_hi:[0,1]")
                if first: p(f"v_pk_mul_f32 {v(s,2)}, {v(d,2)}, {v(d,2)}")
                else: p(f"v_pk_fma_f32 {v(s,2)}, {v(d,2)}, {v(d,2)}, {v(s,2)}")
            for i in range(16): m2(i, i < 2)
            for (m, b) in [(MA, 16), (MB, 20)]:
                p(f"s_mov_b64 exec, {sp(m)}")
                for i in range(b, b + 4): m2(i)
            p("s_mov_b64 exec, -1")
            p(f"v_pk_add_f32 {v(S0,2)}, {v(S0,2)}, {v(S1,2)}\nv_add_f32 {v(GR+2)}, {v(S0)}, {v(S0+1)}")
            p(f"v_mov_b32 {v(S0)}, {v(GR+2)}\nv_cmp_gt_u32 vcc, 32, {v(VL)}")
            p(f"s_lshl_b32 s{SC}, s{SRB}, 2\ns_add_u32 s{SC}, s{SC}, s{SWV}")
            p(f"v_permlane32_swap_b32 {v(GR+2)}, {v(S0)}\nv_cndmask_b32 {v(VLO)}, {v(VOOB)}, {v(VL16)}, vcc\nv_add_f32 {v(GR+2)}, {v(GR+2)}, {v(S0)}")
            p(f"s_lshl_b32 s{SD}, s{SC}, 12\ns_add_u32 s{SD}, s{SD}, {ST}\ns_lshl_b32 s{SA}, s{SCOL}, 9\ns_add_u32 s{SA}, s{SA}, s{SD}")
        seg1 = self.cap(lambda: self.gelu_many([ACC + 2 * i for i in range(24)], [64, 68, 72, 76]))
        ng = o.get("zg", 3)
        def bar(): p.wait(lg=p.lg - 1); p("s_barrier")
        fill = []
        for st in range(2, 2 + ng): fill += self.wsp_dma(st)
        h = len(seg1) // 4
        self.run(merge(seg1[:h], [lambda: p("s_barrier")] + self.wsp_read(0) + self.wsp_read(1) + [lambda: p.wait(lg=p.lg - 1)]) + merge(seg1[h:], fill))
        seg1b()
        p.vmem(f"buffer_store_dwordx4 {v(GR,4)}, {v(VLO)}, {srd(SWS)}, s{SA} offen sc1")
        self.stamp(2)
        fill = []
        for st in range(2 + ng, 7): fill += self.wsp_dma(st)
        self.run(merge(gops, fill + self.wsp_read(2)))
        Q0, Q1, QA, QB = 112, 113, 114, 115
        p(f"v_lshrrev_b32 {v(Q1)}, 5, {v(VL)}\nv_lshlrev_b32 {v(Q1)}, 6, {v(Q1)}\nv_xor_b32 {v(Q0)}, {v(VL16)}, {v(Q1)}\nv_xor_b32 {v(Q1)}, 128, {v(Q0)}")
        p(f"v_cndmask_b32 {v(QA)}, {v(VOOB)}, {v(Q0)}, {sp(MA)}\nv_cndmask_b32 {v(QB)}, {v(VOOB)}, {v(Q1)}, {sp(MB)}")
        p(f"s_lshl_b32 s{SA}, s{SCOL}, 6\ns_add_u32 s{SC}, s{SA}, s{SC}\ns_mul_i32 s{SE}, s{SC}, 5632")
        self.flag_prep(118)
        MN, VR, N3, I3, TM = 80, 81, 82, 83, 84
        p(f"v_cmp_gt_u32 vcc, 32, {v(VL)}\nv_mov_b32 {v(N3)}, {f2u(72.0)}\nv_mov_b32 {v(TM)}, {f2u(88.0)}\nv_mov_b32 {v(I3)}, {f2u(1/72)}\nv_mov_b32 {v(TM+1)}, {f2u(1/88)}")
        p(f"v_cndmask_b32 {v(N3)}, {v(N3)}, {v(TM)}, vcc\nv_cndmask_b32 {v(I3)}, {v(I3)}, {v(TM+1)}, vcc")
        if o.get("z7early", 1):
            p.wait(lg=p.lg - 1); self.run(self.wsp_dma(7))
        self.stamp(3)
        SG = 64
        l = p.label("sp"); dl = p.label("sd")
        p(f"s_mov_b32 s{SSPIN}, 0")
        p.put(l)
        for q in range(4):
            p.vmem(f"buffer_load_dwordx4 {v(SG+4*q,4)}, {v(VL16)}, {srd(SWS)}, s{SD} offen offset:{q*1024} sc1")
        p.wait_vm_all()
        X0 = 116
        p(f"v_xor_b32 {v(MN)}, s{ST_T}, {v(SG+1)}\nv_xor_b32 {v(VR)}, s{ST_T}, {v(SG+3)}")
        for r in [5, 9, 13]:
            p(f"v_xor_b32 {v(X0)}, s{ST_T}, {v(SG+r)}\nv_xor_b32 {v(X0+1)}, s{ST_T}, {v(SG+r+2)}\nv_or3_b32 {v(MN)}, {v(MN)}, {v(X0)}, {v(X0+1)}")
        p(f"v_or_b32 {v(MN)}, {v(MN)}, {v(VR)}")
        p(f"v_cmp_ne_u32 vcc, 0, {v(MN)}\ns_cmp_eq_u64 vcc, 0\ns_cbranch_scc1 {dl}")
        p(f"s_add_u32 s{SSPIN}, s{SSPIN}, 1\ns_cmp_lt_u32 s{SSPIN}, {SPIN}\ns_cbranch_scc1 {l}")
        p.put(dl)
        self.stamp(4)
        p(f"v_add_f32 {v(MN)}, {v(SG)}, {v(SG+4)}\nv_add_f32 {v(TM+2)}, {v(SG+8)}, {v(SG+12)}\nv_add_f32 {v(MN)}, {v(MN)}, {v(TM+2)}")
        p(f"v_mov_b32 {v(TM+3)}, {v(MN)}\nv_add_f32 {v(VR)}, {v(SG+2)}, {v(SG+6)}\nv_add_f32 {v(TM+2)}, {v(SG+10)}, {v(SG+14)}")
        p(f"v_permlane32_swap_b32 {v(MN)}, {v(TM+3)}\nv_add_f32 {v(VR)}, {v(VR)}, {v(TM+2)}\nv_add_f32 {v(MN)}, {v(MN)}, {v(TM+3)}")
        p(f"v_mul_f32 {v(MN)}, {f2u(1/688)}, {v(MN)}")
        for q in range(4):
            n_, i_ = (TM, TM + 1) if q < 3 else (N3, I3)
            p(f"v_fma_f32 {v(TM+2)}, {v(SG+4*q)}, {v(i_)}, -{v(MN)}\nv_mul_f32 {v(TM+2)}, {v(TM+2)}, {v(TM+2)}\nv_fmac_f32 {v(VR)}, {v(TM+2)}, {v(n_)}")
        self.rnd(MN, MN)
        p(f"v_mov_b32 {v(TM)}, {v(VR)}")
        ZP = 88
        for i in range(24):
            a = ACC + 2 * i
            p(f"v_pk_add_f32 {v(a,2)}, {v(a,2)}, {v(MN,2)} op_sel_hi:[1,0] neg_lo:[0,1] neg_hi:[0,1]")
            if i == 1: p(f"v_permlane32_swap_b32 {v(VR)}, {v(TM)}")
            if i == 2: p(f"v_add_f32 {v(VR)}, {v(VR)}, {v(TM)}\nv_mul_f32 {v(VR)}, {f2u(1/688)}, {v(VR)}"); self.rnd(VR, VR)
            if i == 3: p(f"v_add_f32 {v(VR)}, {f2u(1e-5)}, {v(VR)}"); self.rnd(VR, VR)
            if i == 4: p(f"v_sqrt_f32 {v(VR)}, {v(VR)}")
            if i == 5: self.rnd(VR, VR)
            if i == 6: p(f"v_rcp_f32 {v(VR)}, {v(VR)}")
        p(f"s_add_u32 s{SA}, s{SE}, {Z2N}\ns_add_u32 s{SB_}, s{SA}, 4096")
        for u in range(6):
            mt, q = u >> 1, u & 1
            R4 = range(4 * u, 4 * u + 4)
            if o.get("ln_round", 1):
                for i in R4: p(f"v_cvt_pk_bf16_f32 {v(ZP+i)}, {v(ACC+2*i)}, {v(ACC+2*i+1)}")
                for i in R4: self.unpack(ACC + 2 * i, ZP + i)
            for i in R4: p(f"v_pk_mul_f32 {v(ACC+2*i,2)}, {v(ACC+2*i,2)}, {v(MN,2)} op_sel:[0,1] op_sel_hi:[1,1]")
            for i in R4: p(f"v_cvt_pk_bf16_f32 {v(ZP+i)}, {v(ACC+2*i)}, {v(ACC+2*i+1)}")
            r = v(ZP + 4 * u, 4)
            if mt < 2: t = p.vmem(f"buffer_store_dwordx4 {r}, {v(Q0+q)}, {srd(SWS)}, s{SA} offen offset:{mt*2048+q*1024} sc1")
            else: t = p.vmem(f"buffer_store_dwordx4 {r}, {v(QA+q)}, {srd(SWS)}, s{SB_} offen offset:{q*1024} sc1")
        p(f"s_lshl_b32 s{SE}, s{SC}, 7\ns_add_u32 s{SE}, s{SE}, {ZF}")
        if not o.get("z7early", 1): self.run(self.wsp_dma(7))
        for st in range(3, 7): self.run(self.wsp_read(st, False))
        p.wait(vm=t)
        self.flag(SE, 118)
        if o.get("touch", 1): touch_c()
        self.run(self.wsp_read(7, False))
        p(f"s_mov_b32 s{SLATE}, 0")
        self.stamp(5)
        p(f"s_branch {self.LG}")

    def phase_u(self):
        p = self.p; o = self.o
        ACC, ZA, FA, FB, FW, FX = 16, 80, 128, 144, 160, 184
        XR, BR, X1R, WR, XD, BD, WD, T = 192, 196, 200, 204, 206, 210, 214, 60
        p.c("==== phase A: U ====")
        p.put(self.LU)
        WT, WP = SK + 8, SK + 9
        p(f"v_lshrrev_b32 {v(T)}, 5, {v(VL)}\nv_lshlrev_b32 {v(T)}, 15, {v(T)}")
        p(f"v_bfe_u32 {v(T+1)}, {v(VL)}, 3, 1\nv_lshl_add_u32 {v(T)}, {v(T+1)}, 14, {v(T)}")
        p(f"v_bfe_u32 {v(T+1)}, {v(VL)}, 4, 1\nv_lshl_add_u32 {v(T)}, {v(T+1)}, 10, {v(T)}")
        self.plain_dma_addr2(XD, T, T + 1, 2048)
        p(f"s_lshr_b32 s{WP}, s{SWV}, 1\ns_and_b32 s{WT}, s{SWV}, 1\ns_lshl_b32 s{SA}, s{WT}, 5")
        for i in range(4): p(f"v_xor_b32 {v(XD+i)}, s{SA}, {v(XD+i)}")
        self.plain_dma_addr(BD, 1024, T)
        self.w_dma_addr(WD, T, 0)
        p(f"s_lshl_b32 s{SXB}, s{SRB}, 17\ns_lshl_b32 s{SD}, s{WP}, 16\ns_add_u32 s{SXB}, s{SXB}, s{SD}\ns_lshl_b32 s{SD}, s{WT}, 13\ns_add_u32 s{SXB}, s{SXB}, s{SD}")
        p(f"s_lshl_b32 s{SW1B}, s{SCOL}, 16\ns_lshl_b32 s{SD}, s{WT}, 15\ns_add_u32 s{SW1B}, s{SW1B}, s{SD}")
        p(f"s_lshl_b32 s{SXL}, s{SWV}, 12\ns_mov_b32 s{SW1+2}, 524288")
        SWIB = SCB
        p(f"s_mul_i32 s{SWIB}, s{SWV}, {16*2752}\ns_mul_i32 s{SA}, s{SCOL}, 176\ns_add_u32 s{SWIB}, s{SWIB}, s{SA}")
        p(f"s_mul_i32 s{SWL}, s{SWV}, 3072\ns_add_u32 s{SWL}, s{SWL}, 98304\ns_mov_b32 s{PWIN+2}, {512*2752}\ns_mov_b32 s{PWIN+3}, 0x20000")
        PR = 228
        p(f"s_lshl_b32 s{SD}, s{SRB}, 1\ns_add_u32 s{SD}, s{SD}, s{WT}")
        p(f"s_lshl_b32 s{SA}, s{SCOL}, 1\ns_add_u32 s{SA}, s{SA}, s{WP}")
        p(f"s_lshl_b32 s{SE}, s{SD}, 4\ns_add_u32 s{SE}, s{SE}, s{SA}")
        p(f"s_lshl_b32 s{SA}, s{SA}, 5\nv_and_b32 {v(T)}, 31, {v(VL)}\nv_add_lshl_u32 {v(T)}, {v(T)}, s{SA}, 1")
        p.wait_lg_all()
        p(f"s_cmp_eq_u32 s{WP}, 0\ns_cselect_b64 {sp(SW1)}, {sp(PBRE)}, {sp(PBIM)}")
        tick = {}
        def dma(st):
            sl = st % 3; items = []
            def cb(t): tick[st] = t
            for i in range(3):
                items.append(((SWL, sl * 12288) if i == 0 else None, (SWIB, st * 64 * 2752) if i == 0 else None,
                              f"buffer_load_dwordx4 {v(WD+i)}, {srd(PWIN)}, s{SDO} offen offset:{i*1024} lds", None))
            for (vd, sr, sb, lb) in [(XD, SX, SXB, 0), (BD, SW1, SW1B, 49152)]:
                for i in range(4):
                    items.append(((SXL, lb + sl * 16384) if i == 0 else None, (sb, st * 128) if i == 0 else None,
                                  f"buffer_load_dwordx4 {v(vd+i)}, {srd(sr)}, s{SDO} offen offset:{i*1024} lds", cb))
            return self.dseq(items)
        self.run(dma(0))
        p.vmem(f"global_load_ushort {v(PR)}, {v(T)}, {sp(PLRE)}")
        p.vmem(f"global_load_ushort {v(PR+1)}, {v(T)}, {sp(PLIM)}")
        tp = p.vmem(f"global_load_ushort {v(PR+2)}, {v(T)}, {sp(PLDT)}")
        npro = 2
        self.late_args()
        def setup():
            p = self.p
            p(f"s_mul_i32 s{SREG}, s{SWV}, 40960\ns_lshl_b32 s{SA}, s{WT}, 13")
            self.plain_read_addr(XR, SA, T)
            p(f"s_lshl_b32 s{SA}, s{WP}, 12\ns_add_u32 s{SA}, s{SA}, 49152")
            self.plain_read_addr(BR, SA, T)
            self.w_tr_addr(WR, 98304, T)
            p(f"v_bfe_u32 {v(T)}, {v(VL)}, 3, 1\nv_lshlrev_b32 {v(T+1)}, 12, {v(T)}\nv_xor_b32 {v(T)}, s{WT}, {v(T)}\nv_lshlrev_b32 {v(T)}, 1, {v(T)}")
            p(f"v_bfe_u32 {v(T+2)}, {v(VL)}, 1, 2\nv_lshl_add_u32 {v(T+1)}, {v(T+2)}, 10, {v(T+1)}")
            p(f"v_and_b32 {v(T+2)}, 1, {v(T+2)}\nv_lshl_add_u32 {v(T)}, {v(T+2)}, 2, {v(T)}")
            p(f"v_and_b32 {v(T+2)}, 1, {v(VL)}\nv_lshl_add_u32 {v(T+1)}, {v(T+2)}, 8, {v(T+1)}\nv_or_b32 {v(T)}, {v(T)}, {v(T+2)}")
            p(f"v_bfe_u32 {v(T+2)}, {v(VL)}, 4, 1\nv_lshl_add_u32 {v(T+1)}, {v(T+2)}, 7, {v(T+1)}")
            p(f"s_lshl_b32 s{SA}, s{WP}, 13\ns_lshl_b32 s{SB_}, s{WT}, 9\ns_add_u32 s{SA}, s{SA}, s{SB_}\nv_add_u32 {v(T+1)}, s{SA}, {v(T+1)}")
            p(f"v_lshrrev_b32 {v(T+2)}, 5, {v(VL)}\nv_xor_b32 {v(T)}, {v(T)}, {v(T+2)}\nv_lshlrev_b32 {v(T)}, 4, {v(T)}")
            for ks in range(4): p(f"v_xor_b32 {v(X1R+ks)}, {32*ks}, {v(T)}\nv_add_u32 {v(X1R+ks)}, {v(X1R+ks)}, {v(T+1)}")
            self.wsp_setup(T)
            p(f"s_lshl_b32 s{SPST}, s{WT}, 13\ns_mul_i32 s{SA}, s{WP}, 49152\ns_add_u32 s{SPST}, s{SPST}, s{SA}\ns_add_u32 s{SPB0}, s{SPST}, 32768")
            self.valid_masks()
        self.run(merge(self.cap(setup), dma(1)))
        LB, CF, L16, L128, L256, LQ0, LQ1 = 218, 220, 222, 224, 226, 228, 230
        X0, X1, X2, X3 = 232, 233, 234, 235
        L32, L64 = 236, 238
        def csq(d, s):
            p = self.p
            p(f"v_mul_f32 {v(X0)}, {v(s+1)}, {v(s+1)}\nv_add_f32 {v(X1)}, {v(s)}, {v(s)}")
            p(f"v_mul_f32 {v(d+1)}, {v(X1)}, {v(s+1)}\nv_fma_f32 {v(d)}, {v(s)}, {v(s)}, -{v(X0)}")
        def cmul(d, a, b):
            p = self.p
            p(f"v_mul_f32 {v(X0)}, {v(a+1)}, {v(b+1)}\nv_mul_f32 {v(X1)}, {v(a+1)}, {v(b)}")
            p(f"v_fma_f32 {v(X0)}, {v(a)}, {v(b)}, -{v(X0)}\nv_fma_f32 {v(d+1)}, {v(a)}, {v(b+1)}, {v(X1)}\nv_mov_b32 {v(d)}, {v(X0)}")
        def cfma(d, a, b, c):
            p = self.p
            p(f"v_fma_f32 {v(X0)}, {v(a)}, {v(b)}, {v(c)}\nv_fma_f32 {v(X1)}, {v(a)}, {v(b+1)}, {v(c+1)}")
            p(f"v_fma_f32 {v(X0)}, -{v(a+1)}, {v(b+1)}, {v(X0)}\nv_fma_f32 {v(d+1)}, {v(a+1)}, {v(b)}, {v(X1)}\nv_mov_b32 {v(d)}, {v(X0)}")
        def params():
            p = self.p
            p(f"v_lshlrev_b32 {v(PR)}, 16, {v(PR)}\nv_lshlrev_b32 {v(PR+1)}, 16, {v(PR+1)}\nv_lshlrev_b32 {v(PR+2)}, 16, {v(PR+2)}")
            p(f"v_mul_f32 {v(X0)}, {f2u(LOG2E)}, {v(PR+2)}\nv_exp_f32 {v(X0)}, {v(X0)}"); self.rnd(X0, X0)
            p(f"v_mul_f32 {v(X1)}, {v(X0)}, {v(PR)}\nv_mul_f32 {v(X2)}, {v(X0)}, {v(PR+1)}")
            p(f"v_mul_f32 {v(X1)}, {f2u(LOG2E)}, {v(X1)}\nv_exp_f32 {v(X1)}, {v(X1)}")
            p(f"v_mul_f32 {v(X2)}, {f2u(1/(2*math.pi))}, {v(X2)}\nv_fract_f32 {v(X2)}, {v(X2)}")
            p(f"v_cos_f32 {v(X3)}, {v(X2)}\nv_sin_f32 {v(X2)}, {v(X2)}")
            p(f"v_mul_f32 {v(X0)}, {v(PR)}, {v(PR)}")
            p(f"v_mul_f32 {v(LB)}, {v(X1)}, {v(X3)}\nv_mul_f32 {v(LB+1)}, {v(X1)}, {v(X2)}")
            p(f"v_fmac_f32 {v(X0)}, {v(PR+1)}, {v(PR+1)}\nv_rcp_f32 {v(X0)}, {v(X0)}")
            p(f"v_add_f32 {v(X1)}, -1.0, {v(LB)}\nv_add_f32 {v(X0)}, {v(X0)}, {v(X0)}")
            p(f"v_mul_f32 {v(X2)}, {v(X1)}, {v(PR)}\nv_fmac_f32 {v(X2)}, {v(LB+1)}, {v(PR+1)}\nv_mul_f32 {v(CF)}, {v(X2)}, {v(X0)}")
            p(f"v_mul_f32 {v(X2)}, {v(LB+1)}, {v(PR)}\nv_fma_f32 {v(X2)}, -{v(X1)}, {v(PR+1)}, {v(X2)}\nv_mul_f32 {v(CF+1)}, {v(X2)}, {v(X0)}")
            csq(L16, LB); csq(L16, L16); csq(L16, L16); csq(L16, L16)
            csq(L32, L16); csq(L64, L32); csq(L128, L64); csq(L256, L128)
            p.atom(f"s_cmp_eq_u32 s{WT}, 0\ns_cselect_b64 vcc, -1, 0")
            p(f"v_cndmask_b32 {v(L64)}, {v(L64)}, 1.0, vcc\nv_cndmask_b32 {v(L64+1)}, {v(L64+1)}, 0, vcc")
            p(f"v_cmp_gt_u32 vcc, 32, {v(VL)}\nv_cndmask_b32 {v(LQ0)}, {v(L32)}, 1.0, vcc\nv_cndmask_b32 {v(LQ0+1)}, {v(L32+1)}, 0, vcc")
            cmul(LQ0, LQ0, L64); cmul(LQ1, LQ0, L16)
        self.epoch2()
        self.stamp(0)
        pops = [lambda: p.wait(vm=tp)] + self.cap(params)
        valu = {}
        q = (len(pops) + 15) // 16
        for i in range(16): valu[4 + i] = pops[i * q:(i + 1) * q]
        rt = {}
        def reads(n):
            st, ks = n // 4, n % 4; sl = st % 3; s = n & 1; ops = []
            for k in range(2):
                def ra(k=k): rt[(n, 'a', k)] = p.lds(f"ds_read_b128 {v(FA+8*s+4*k,4)}, {v(XR+(ks^k))} offset:{sl*16384+k*4096}")
                def rb(k=k): rt[(n, 'b', k)] = p.lds(f"ds_read_b128 {v(FB+8*s+4*k,4)}, {v(BR+ks)} offset:{sl*16384+k*8192}")
                ops += [ra, rb]
            def rx(): p.lds(f"ds_read_b128 {v(FX+4*s,4)}, {v(X1R+ks)} offset:{sl*16384}")
            ops.append(rx)
            for mt in range(3):
                for a in range(2):
                    def rw(mt=mt, a=a):
                        rt[(n, 'w', mt)] = p.lds(f"ds_read_b64_tr_b16 {v(FW+12*s+4*mt+2*a,2)}, {v(WR)} offset:{sl*12288+ks*3072+a*768+mt*64}")
                    ops.append(rw)
            return ops
        def mfmas(n):
            s = n & 1; ops = []
            for (mt, cp) in [(0, 0), (1, 0), (1, 1), (0, 1)]:
                def m(mt=mt, cp=cp):
                    if (mt, cp) == (0, 0): p.wait(lg=rt[(n, 'b', 1)])
                    d = v(ACC + 32 * mt + 16 * cp, 16)
                    p(f"{MF} {d}, {v(FA+8*s+4*mt,4)}, {v(FB+8*s+4*cp,4)}, {'0' if n == 0 else d}")
                ops.append(m)
            for mt in range(3):
                def m(mt=mt):
                    if mt == 0: p.wait(lg=rt[(n, 'w', 2)])
                    d = v(ZA + 16 * mt, 16)
                    p(f"{MF} {d}, {v(FW+12*s+4*mt,4)}, {v(FX+4*s,4)}, {'0' if n == 0 else d}")
                ops.append(m)
            return ops
        self.gemm_loop(3, reads, mfmas, dma, tick, 5, npro, {6: lambda: self.wsp_dma(0), 7: lambda: self.wsp_dma(1)}, valu)
        self.stamp(1)
        def U(sg, cp): return ACC + 32 * (sg >> 3) + 16 * cp + 4 * ((sg & 7) >> 1) + 2 * (sg & 1)
        def step(hr, hi, sg, nr, ni, t0, t1):
            p = self.p; A = v(LB, 2)
            p(f"v_pk_fma_f32 {v(t0,2)}, {A}, {v(hr,2)}, {v(U(sg,0),2)} op_sel_hi:[0,1,1]")
            p(f"v_pk_fma_f32 {v(t1,2)}, {A}, {v(hi,2)}, {v(U(sg,1),2)} op_sel_hi:[0,1,1]")
            p(f"v_pk_fma_f32 {v(nr,2)}, {A}, {v(hi,2)}, {v(t0,2)} op_sel:[1,0,0] op_sel_hi:[1,1,1] neg_lo:[1,0,0] neg_hi:[1,0,0]")
            p(f"v_pk_fma_f32 {v(ni,2)}, {A}, {v(hr,2)}, {v(t1,2)} op_sel:[1,0,0] op_sel_hi:[1,1,1]")
        HA, HBb, T0, EX, E8, AD, GR, CQ = 128, 132, 136, 140, 144, 160, 164, 168
        SCR = 98304
        p(f"s_lshl_b32 s{SA}, s{WP}, 11\ns_add_u32 s{SA}, s{SA}, {SCR}")
        p(f"v_and_b32 {v(AD)}, 31, {v(VL)}\nv_lshlrev_b32 {v(AD)}, 6, {v(AD)}\nv_add_u32 {v(AD)}, s{SA}, {v(AD)}")
        p(f"v_lshrrev_b32 {v(AD+1)}, 5, {v(VL)}\nv_lshl_add_u32 {v(AD+1)}, {v(AD+1)}, 4, {v(AD)}\ns_lshl_b32 s{SA}, s{WT}, 5\nv_add_u32 {v(AD+1)}, s{SA}, {v(AD+1)}")
        p("s_barrier")
        def pass1():
            hr, hi = U(0, 0), U(0, 1)
            for sg in range(1, 16):
                nr, ni = (HA, HA + 2) if sg & 1 else (HBb, HBb + 2)
                step(hr, hi, sg, nr, ni, T0, T0 + 2)
                hr, hi = nr, ni
            self.p(f"v_mov_b32 {v(EX)}, {v(hr)}\nv_mov_b32 {v(EX+1)}, {v(hi)}\nv_mov_b32 {v(EX+2)}, {v(hr+1)}\nv_mov_b32 {v(EX+3)}, {v(hi+1)}")
        self.run(merge(self.cap(pass1), self.wsp_read(0)))
        p.lds(f"ds_write_b128 {v(AD+1)}, {v(EX,4)}")
        p.wait_lg_all(); p("s_barrier")
        for i in range(4): p.lds(f"ds_read_b128 {v(E8+4*i,4)}, {v(AD)} offset:{16*i}")
        te = p.lg - 1
        self.run(self.wsp_read(1))
        p(f"s_cmp_eq_u32 s{WT}, 0\ns_cselect_b32 s{SA}, 32, 0")
        p(f"v_cmp_gt_u32 vcc, s{SA}, {v(VL)}\nv_mov_b32 {v(GR+1)}, s{ST_T}\nv_mov_b32 {v(GR+3)}, s{ST_T}\nv_cndmask_b32 {v(T0)}, {v(VOOB)}, {v(VL16)}, vcc")
        p(f"s_lshl_b32 s{SC}, s{SCOL}, 14\ns_lshl_b32 s{SA}, s{WP}, 9\ns_add_u32 s{SC}, s{SC}, s{SA}\ns_add_u32 s{SC}, s{SC}, {EG}")
        p(f"s_lshl_b32 s{SA}, s{SRB}, 10\ns_add_u32 s{SA}, s{SA}, s{SC}")
        p.wait(lg=te)
        for q in range(1, 8): cfma(E8 + 2 * q, L16, E8 + 2 * (q - 1), E8 + 2 * q)
        p(f"v_mov_b32 {v(GR)}, {v(E8+14)}\nv_mov_b32 {v(GR+2)}, {v(E8+15)}")
        p.vmem(f"buffer_store_dwordx4 {v(GR,4)}, {v(T0)}, {srd(SWS)}, s{SA} offen sc1")
        p.wait_lg_all(); p("s_barrier")
        self.stamp(2)
        p(f"v_cmp_gt_u32 vcc, 32, {v(VL)}")
        w1 = p.label("w1"); w2 = p.label("w2")
        p(f"s_cmp_eq_u32 s{WT}, 0\ns_cbranch_scc0 {w1}")
        p(f"v_cndmask_b32 {v(CQ)}, {v(E8+2)}, 0, vcc\nv_cndmask_b32 {v(CQ+1)}, {v(E8+3)}, 0, vcc")
        p(f"v_cndmask_b32 {v(CQ+2)}, {v(E8+4)}, {v(E8)}, vcc\nv_cndmask_b32 {v(CQ+3)}, {v(E8+5)}, {v(E8+1)}, vcc")
        p(f"s_branch {w2}")
        p.put(w1)
        for k in range(4): p(f"v_cndmask_b32 {v(CQ+k)}, {v(E8+10+k)}, {v(E8+6+k)}, vcc")
        p.put(w2)
        Z1P = 192
        EGR, EO, EXP, ET = 80, 144, 152, 160
        def eo():
            p = self.p
            p(f"v_lshrrev_b32 {v(ET)}, 5, {v(VL)}\nv_sub_u32 {v(ET)}, s{SRB}, {v(ET)}\nv_add_u32 {v(ET)}, -1, {v(ET)}")
            p(f"v_and_b32 {v(ET+1)}, 31, {v(VL)}\nv_lshlrev_b32 {v(ET+1)}, 4, {v(ET+1)}\nv_mov_b32 {v(ET+3)}, s{ST_T}")
            for q in range(8):
                p(f"v_add_u32 {v(ET+2)}, {-2*q}, {v(ET)}\nv_cmp_le_i32 vcc, 0, {v(ET+2)}\nv_lshl_add_u32 {v(ET+2)}, {v(ET+2)}, 10, {v(ET+1)}")
                p(f"v_cndmask_b32 {v(EO+q)}, {v(VOOB)}, {v(ET+2)}, vcc\nv_cndmask_b32 {v(EXP+q)}, 0, {v(ET+3)}, vcc")
        ga = self.cap(lambda: (eo(), self.gelu_many([ZA + 2 * i for i in range(16)], [172, 176, 180, 184], [Z1P + i for i in range(16)])))
        gb = self.cap(lambda: self.gelu_many([ZA + 2 * i for i in range(16, 24)], [172, 176, 180, 184], [Z1P + i for i in range(16, 24)]))
        ua, ub = o.get("ua", 3), o.get("ub", 1)
        fill = []
        for st in range(2, 2 + ua): fill += self.wsp_dma(st)
        self.run(merge(ga, fill))
        et = {}
        def eload(q):
            et['t'] = p.vmem(f"buffer_load_dwordx4 {v(EGR+4*q,4)}, {v(EO+q)}, {srd(SWS)}, s{SC} offen sc1")
        fill = [(lambda q=q: eload(q)) for q in range(8)]
        for st in range(2 + ua, 2 + ua + ub): fill += self.wsp_dma(st)
        self.run(merge(gb, fill))
        ug = ua + ub
        self.stamp(3)
        l = p.label("ep"); dl = p.label("ed")
        p.wait(vm=et['t'])
        p(f"s_mov_b32 s{SSPIN}, 0")
        p.put(l)
        p(f"v_mov_b32 {v(ET)}, 0")
        for q in range(8):
            p(f"v_xor_b32 {v(ET+1)}, {v(EXP+q)}, {v(EGR+4*q+1)}\nv_xor_b32 {v(ET+2)}, {v(EXP+q)}, {v(EGR+4*q+3)}\nv_or3_b32 {v(ET)}, {v(ET)}, {v(ET+1)}, {v(ET+2)}")
        p(f"v_cmp_ne_u32 vcc, 0, {v(ET)}\ns_cmp_eq_u64 vcc, 0\ns_cbranch_scc1 {dl}")
        for q in range(8): p(f"buffer_load_dwordx4 {v(EGR+4*q,4)}, {v(EO+q)}, {srd(SWS)}, s{SC} offen sc1")
        p("s_waitcnt vmcnt(0)")
        p(f"s_add_u32 s{SSPIN}, s{SSPIN}, 1\ns_cmp_lt_u32 s{SSPIN}, {SPIN}\ns_cbranch_scc1 {l}")
        p.put(dl)
        self.stamp(4)
        OP, OT, HO = 80, 144, 132
        MA, MB = SK + 2, SK + 4
        def pass2():
            p = self.p
            for q in range(8): p(f"v_mov_b32 {v(EGR+4*q+1)}, {v(EGR+4*q+2)}")
            S = EGR + 28
            for q in range(6, -1, -1): cfma(S, L256, S, EGR + 4 * q)
            p(f"v_mov_b32 {v(ET)}, {v(S)}\nv_mov_b32 {v(ET+1)}, {v(S+1)}\nv_permlane32_swap_b32 {v(S)}, {v(ET)}\nv_permlane32_swap_b32 {v(S+1)}, {v(ET+1)}")
            cfma(S, L128, ET, S)
            cfma(CQ, LQ0, S, CQ); cfma(CQ + 2, LQ1, S, CQ + 2)
            p(f"v_mov_b32 {v(HA)}, {v(CQ)}\nv_mov_b32 {v(HA+1)}, {v(CQ+2)}\nv_mov_b32 {v(HA+2)}, {v(CQ+1)}\nv_mov_b32 {v(HA+3)}, {v(CQ+3)}")
            hr, hi = HA, HA + 2
            Cc = v(CF, 2)
            for sg in range(16):
                step(hr, hi, sg, U(sg, 0), U(sg, 1), T0, T0 + 2)
                hr, hi = U(sg, 0), U(sg, 1)
                oo = OT + 4 * (sg & 1) + 8 * ((sg >> 1) & 1)
                p(f"v_pk_mul_f32 {v(oo,2)}, {Cc}, {v(hr,2)} op_sel_hi:[0,1]")
                p(f"v_pk_mul_f32 {v(oo+2,2)}, {Cc}, {v(hi,2)} op_sel_hi:[0,1] neg_lo:[1,0] neg_hi:[1,0]")
                p(f"v_pk_fma_f32 {v(oo,2)}, {Cc}, {v(hi,2)}, {v(oo,2)} op_sel:[1,0,0] op_sel_hi:[1,1,1] neg_lo:[1,0,0] neg_hi:[1,0,0]")
                p(f"v_pk_fma_f32 {v(oo+2,2)}, {Cc}, {v(hr,2)}, {v(oo+2,2)} op_sel:[1,0,0] op_sel_hi:[1,1,1] neg_lo:[1,0,0] neg_hi:[1,0,0]")
                if sg & 1:
                    q, i = sg >> 3, (sg & 7) >> 1
                    for cp in range(2):
                        for e in range(2):
                            p(f"v_cvt_pk_bf16_f32 {v(OP+16*cp+8*e+4*q+i)}, {v(oo-4+2*cp+e)}, {v(oo+2*cp+e)}")
            p(f"s_lshl_b32 s{SA}, s{SD}, 3\ns_add_u32 s{SA}, s{SA}, s{SCOL}\ns_lshl_b32 s{SA}, s{SA}, 14\ns_lshl_b32 s{SB_}, s{WP}, 12\ns_add_u32 s{SA}, s{SA}, s{SB_}")
            p(f"s_add_u32 s{SA}, s{SA}, {HB}\ns_add_u32 s{SB_}, s{SA}, 8192")
            p(f"v_lshrrev_b32 {v(T0)}, 5, {v(VL)}\nv_lshlrev_b32 {v(T0)}, 11, {v(T0)}\nv_and_b32 {v(T0+1)}, 31, {v(VL)}\nv_lshl_add_u32 {v(HO)}, {v(T0+1)}, 4, {v(T0)}")
            for k in range(1, 4): p(f"v_xor_b32 {v(HO+k)}, {64*k}, {v(HO)}")
        fill = []
        for st in range(2 + ug, 7): fill += self.wsp_dma(st)
        fill += self.wsp_read(2) + [lambda: p.wait(lg=p.lg - 1)] + self.wsp_dma(7)
        for st in range(3, 2 + ug): fill += self.wsp_read(st, False)
        self.run(merge(self.cap(pass2), fill))
        for cp in range(2):
            for k in range(4):
                t = p.vmem(f"buffer_store_dwordx4 {v(OP+16*cp+4*k,4)}, {v(HO+k)}, {srd(SWS)}, s{SA if cp == 0 else SB_} offen offset:{512*k} sc1")
        VA_ = 176
        p(f"s_lshl_b32 s{SA}, s{SCOL}, 6\ns_lshl_b32 s{SB_}, s{SRB}, 2\ns_add_u32 s{SA}, s{SA}, s{SB_}\ns_add_u32 s{SA}, s{SA}, s{SWV}\ns_mul_i32 s{SA}, s{SA}, 5632")
        p(f"s_add_u32 s{SA}, s{SA}, {Z1}\ns_add_u32 s{SB_}, s{SA}, 4096")
        p(f"v_cndmask_b32 {v(VA_)}, {v(VOOB)}, {v(VL16)}, {sp(MA)}\nv_cndmask_b32 {v(VA_+1)}, {v(VOOB)}, {v(VL16)}, {sp(MB)}")
        for u in range(6):
            mt, q = u >> 1, u & 1
            r = v(Z1P + 4 * u, 4)
            if mt < 2: p.vmem(f"buffer_store_dwordx4 {r}, {v(VL16)}, {srd(SWS)}, s{SA} offen offset:{mt*2048+q*1024} sc1")
            else: p.vmem(f"buffer_store_dwordx4 {r}, {v(VA_+q)}, {srd(SWS)}, s{SB_} offen offset:{q*1024} sc1")
        p(f"s_lshl_b32 s{SLATE}, s{SE}, 7\ns_add_u32 s{SLATE}, s{SLATE}, {HF}")
        for st in range(2 + ug, 8): self.run(self.wsp_read(st, False))
        self.stamp(5)

    def phase_g(self):
        p = self.p; o = self.o
        p.c("==== phase B: G ====")
        p.put(self.LG)
        p.vm_done = -1; p.lg_done = -1
        ACC, FA, TR, T = 16, 112, 184, 186
        Z1R, BI, PV, WD, PL = 190, 202, 203, 204, 208
        NT, Q = SK + 8, SK + 9
        p(f"s_and_b32 s{NT}, s{SWV}, 1\ns_lshr_b32 s{Q}, s{SWV}, 1")
        self.unit_tr_addr(TR, SREG, T, True, flip_sreg=Q)
        p(f"s_lshl_b32 s{SA}, s{SCOL}, 13\ns_add_u32 s{SA}, s{SA}, {ZF}\ns_lshl_b32 s{SB_}, s{SWV}, 11\ns_add_u32 s{SB_}, s{SB_}, s{SA}")
        p(f"s_lshl_b32 s{SC}, s{STB}, 1\ns_add_u32 s{SC}, s{SC}, s{NT}")
        p(f"s_lshr_b32 s{SD}, s{SC}, 2\ns_lshl_b32 s{SD}, s{SD}, 1\ns_and_b32 s{SA}, s{SC}, 1\ns_add_u32 s{SD}, s{SD}, s{SA}\ns_lshl_b32 s{SD}, s{SD}, 3\ns_add_u32 s{SD}, s{SD}, s{SCOL}")
        p(f"s_lshl_b32 s{SD}, s{SD}, 1\ns_bfe_u32 s{SA}, s{SC}, 0x10001\ns_add_u32 s{SD}, s{SD}, s{SA}\ns_lshl_b32 s{SD}, s{SD}, 7\ns_add_u32 s{SD}, s{SD}, {HF}")
        p(f"s_lshl_b32 s{SE}, s{STB}, 11\ns_add_u32 s{SE}, s{SE}, {HF}")
        nl = self.poll_addr(PL, [(SB_, 16)])
        PL2 = 222
        nl2 = self.poll_addr(PL2, [(SE, 16), (SD, 1)])
        p(f"s_lshl_b32 s{SA}, s{STB}, 8\ns_add_u32 s{SA}, s{SA}, {ZF}")
        p(f"v_bfe_u32 {v(T)}, {v(VL)}, 1, 3\nv_lshlrev_b32 {v(T)}, 13, {v(T)}\nv_and_b32 {v(T+1)}, 1, {v(VL)}\nv_lshl_add_u32 {v(T)}, {v(T+1)}, 7, {v(T)}\nv_add_u32 {v(T)}, s{SA}, {v(T)}")
        p(f"s_mov_b32 vcc_lo, 0\ns_mov_b32 vcc_hi, 0xffff\nv_cndmask_b32 {v(PL2)}, {v(PL2)}, {v(T)}, vcc")
        self.flag_prep(220)
        p(f"v_lshrrev_b32 {v(T)}, 3, {v(VL)}\nv_lshlrev_b32 {v(T)}, 10, {v(T)}")
        p(f"v_bfe_u32 {v(T+1)}, {v(VL)}, 4, 1\nv_lshlrev_b32 {v(T+1)}, 2, {v(T+1)}\nv_and_b32 {v(T+2)}, 7, {v(VL)}\nv_xor_b32 {v(T+1)}, {v(T+1)}, {v(T+2)}")
        p(f"v_lshl_add_u32 {v(WD)}, {v(T+1)}, 4, {v(T)}")
        for i in range(1, 4): p(f"v_add_u32 {v(WD+i)}, {i*7168}, {v(WD)}")
        p(f"s_mul_i32 s{SXB}, s{SWV}, {176*1024}\ns_lshl_b32 s{SA}, s{SCOL}, 7\ns_add_u32 s{SXB}, s{SXB}, s{SA}")
        p(f"s_lshl_b32 s{SA}, s{SCOL}, 6\ns_lshl_b32 s{SB_}, s{SWV}, 4\ns_add_u32 s{SA}, s{SA}, s{SB_}\ns_mul_i32 s{SE}, s{SA}, 5632\ns_add_u32 s{SE}, s{SE}, {Z2N}")
        p(f"s_cmp_lt_u32 s{SCOL}, 7\ns_cselect_b32 s{SD}, 64, 32\ns_lshl_b32 s{SF}, s{Q}, 5\ns_sub_u32 s{SD}, s{SD}, s{SF}")
        p(f"v_cmp_gt_u32 vcc, s{SD}, {v(VL)}\nv_and_b32 {v(T)}, 31, {v(VL)}\ns_lshl_b32 s{SA}, s{SC}, 5\nv_cndmask_b32 {v(PV)}, {v(VOOB)}, {v(VL16)}, vcc")
        p(f"v_add_lshl_u32 {v(T)}, {v(T)}, s{SA}, 1")
        p.vmem(f"global_load_ushort {v(BI)}, {v(T)}, {sp(PBSP)}")
        self.c_setup()
        self.panel_tr_addr(228, SREG, 224, False)
        p.wait_lg_all(); p("s_barrier")
        self.stamp(6)
        self.poll(PL, nl)
        nf = p.label("nf")
        p(f"s_cmp_eq_u32 s{SLATE}, 0\ns_cbranch_scc1 {nf}")
        self.flag(SLATE, 220)
        p.put(nf)
        self.stamp(7)
        tick = {}
        def dma(B):
            sl = B % 3; items = []
            for i in range(11):
                def cb(t, i=i): tick[(B, i)] = t
                g = i // 4
                items.append(((SREG, sl * 11264 + g * 4096) if i % 4 == 0 else None, (SE, B * 11264 + g * 4096) if i % 4 == 0 else None,
                              f"buffer_load_dwordx4 {v(VL16)}, {srd(SWS)}, s{SDO} offen offset:{(i%4)*1024} {o.get('gmod', 'sc1')} lds", cb))
            return self.dseq(items)
        wo = {}
        def wo_dma(i0, i1, base):
            items = []
            for i in range(i0, i1):
                def cb(t, i=i): wo[i] = t
                k = i - i0
                items.append(((SREG, base + k * 1024) if k % 4 == 0 else None, (SXB, i * 8192) if k % 4 == 0 else None,
                              f"buffer_load_dwordx4 {v(WD+k%4)}, {srd(SWOUT)}, s{SDO} offen offset:{(k%4)*1024} lds", cb))
            return self.dseq(items)
        d0 = dma(0) + dma(1) + dma(2)
        kpro = o.get("gpro", 18)
        self.run(d0[:kpro])
        lt = {}
        def late_issue():
            lt['p'] = p.vmem(f"buffer_load_dword {v(PL2+1)}, {v(PL2)}, {srd(SWS)}, 0 offen sc1")
        def late_check():
            l = p.label("lp"); d = p.label("ld")
            p.wait(vm=lt['p'])
            p(f"s_mov_b32 s{SSPIN}, 0")
            p.put(l)
            p(f"v_cmp_ne_u32 vcc, s{ST_T}, {v(PL2+1)}\ns_and_b32 vcc_lo, vcc_lo, 0x1ffff\ns_and_b32 vcc_hi, vcc_hi, 0xffff\ns_or_b32 s{SF}, vcc_lo, vcc_hi\ns_cbranch_scc0 {d}")
            p(f"buffer_load_dword {v(PL2+1)}, {v(PL2)}, {srd(SWS)}, 0 offen sc1\ns_waitcnt vmcnt(0)")
            p(f"s_add_u32 s{SSPIN}, s{SSPIN}, 1\ns_cmp_lt_u32 s{SSPIN}, {SPIN}\ns_cbranch_scc1 {l}")
            p.put(d)
            p(f"s_lshl_b32 s{SA}, s{SCOL}, 6\ns_add_u32 s{SA}, s{SA}, s{SC}\ns_mul_i32 s{SA}, s{SA}, 5632\ns_lshl_b32 s{SB_}, s{Q}, 10")
            p(f"s_add_u32 s{SA}, s{SA}, s{SB_}\ns_add_u32 s{SA}, s{SA}, {Z1}\ns_add_u32 s{SB_}, s{SA}, 4096")
            p.vmem(f"buffer_load_dwordx4 {v(Z1R,4)}, {v(VL16)}, {srd(SWS)}, s{SA} offen sc1")
            p.vmem(f"buffer_load_dwordx4 {v(Z1R+4,4)}, {v(VL16)}, {srd(SWS)}, s{SA} offen offset:2048 sc1")
            lt['z'] = p.vmem(f"buffer_load_dwordx4 {v(Z1R+8,4)}, {v(PV)}, {srd(SWS)}, s{SB_} offen sc1")
        rt = {}
        def fset(hb): return FA + 24 * (2 if hb == 15 else hb & 1)
        def reads(hb):
            B, e = hb >> 1, hb & 1; sl = B % 3; ops = []
            for ks in range(2):
                for mt in range(3):
                    for a in range(2):
                        def ra(ks=ks, mt=mt, a=a):
                            if (ks, mt, a) == (0, 0, 0): p.wait(vm=tick[(B, 10 if e else 5)])
                            rt[(hb, ks, mt)] = p.lds(f"ds_read_b64_tr_b16 {v(fset(hb)+12*ks+4*mt+2*a,2)}, {v(TR+a)} offset:{sl*11264+e*5632+mt*2048+ks*256}")
                        ops.append(ra)
            return ops
        def mf(hb, ks, mt, nt):
            def m():
                p.wait(lg=rt[(hb, ks, mt)])
                d = v(ACC + 16 * (2 * mt + nt), 16); kap = 2 * hb + ks
                p(f"{MF} {d}, {v(fset(hb)+12*ks+4*mt,4)}, {ar((kap*2+nt)*4,4)}, {'0' if kap == 0 else d}")
            return m
        self.run(reads(0))
        pend = d0[kpro:]
        for hb in range(14):
            if o.get("gstamps") and hb % 2 == 0: self.stamp(21 + hb // 2)
            mm = [mf(hb, ks, mt, nt) for ks in range(2) for mt in range(3) for nt in range(2)]
            rd = reads(hb + 1) + (reads(15) if hb == 13 else [])
            if hb == 13: seq = merge(mm, rd, 0, 12)
            else: seq = merge(mm, rd, 0, 8)
            if hb & 1:
                B = hb >> 1
                d = dma(B + 3) if B + 3 < 8 else (wo_dma(0, 18, 22528) if B == 5 else wo_dma(18, 22, 0))
                if o.get("nowo") and B + 3 >= 8: wo['t'] = -1; self.run(merge(seq, pend)); pend = []; continue
                d0 = d[1]
                def first(d0=d0, hb=hb):
                    p.wait(lg=rt[(hb, 1, 2)]); d0()
                d = [d[0], first] + d[2:]
                k = 5 if B < 6 else len(d)
                seq = merge(seq, pend + d[:k], len(seq) * 2 // 3 if not pend else len(seq) // 3)
                pend = d[k:]
            elif pend:
                k = (7 if hb < 12 else 8) if hb else 10
                seq = merge(seq, pend[:k], len(seq) // 3); pend = pend[k:]
            if hb == 10: seq = seq + [late_issue]
            if hb == 12: seq = [late_check] + seq
            self.run(seq)
        assert not pend
        VW, VRD, WT_ = T, T + 1, 228
        p(f"s_add_u32 s{SA}, s{SREG}, 4096\nv_add_u32 {v(VW)}, s{SA}, {v(VL16)}")
        def rw(mt, nt):
            ops = []
            for q in range(2):
                k = nt + 2 * q
                if k == 0: continue
                for hq in range(2):
                    r = ACC + 16 * (2 * mt + nt) + 8 * q + 4 * hq
                    ops.append(lambda r=r, k=k, hq=hq: p.lds(f"ds_write_b128 {v(VW)}, {v(r,4)} offset:{(k-1)*6144+(2*mt+hq)*1024}"))
            return ops
        def wo_rd(kap):
            def f():
                p.wait(vm=wo[2 * kap + 1], lg=p.lg - 12)
                for mt in range(2):
                    for a in range(2):
                        base = 22528 + kap * 2048 if kap < 9 else (kap - 9) * 2048
                        wo['r'] = p.lds(f"ds_read_b64_tr_b16 {ar((kap*2+mt)*4+2*a,2)}, {v(WT_+mt)} offset:{base+a*512}")
            return f
        tiles = [(0, 1), (1, 1), (2, 1), (0, 0), (1, 0), (2, 0)]
        y0 = self.y_dma(0)
        for ti, (mt, nt) in enumerate(tiles):
            mm = [mf(hb, ks, mt, nt) for hb in (14, 15) for ks in range(2)]
            f = []
            if ti < 3: f = [wo_rd(3 * ti + k) for k in range(3)]
            if ti == 3: f = [lambda: p.wait(lg=wo['r'])] + y0[:3]
            if ti == 4: f = y0[3:6]
            if ti == 5: f = y0[6:9]
            if ti >= 2: f = merge(rw(*tiles[ti - 2]), f)
            self.run(merge(mm, f))
        self.stamp(8)
        for k in range(1, 4):
            p(f"s_xor_b32 s{SA}, s{SWV}, {k}\ns_mul_i32 s{SA}, s{SA}, 40960\ns_add_u32 s{SA}, s{SA}, 4096\nv_add_u32 {v(VRD+k-1)}, s{SA}, {v(VL16)}")
        self.run(merge(rw(*tiles[4]) + rw(*tiles[5]), y0[9:13]))
        p.wait_lg_all(); p("s_barrier")
        RB = 112
        def own(i): return ACC + 32 * (i >> 1) + 4 * (i & 1)
        tk = {}
        def rr(k, i): tk[(k, i)] = p.lds(f"ds_read_b128 {v(RB+24*(k-1)+4*i,4)}, {v(VRD+k-1)} offset:{(k-1)*6144+i*1024}")
        for k in range(1, 3):
            for i in range(6): rr(k, i)
        self.run(y0[13:])
        for k in range(1, 4):
            for i in range(6):
                p.wait(lg=tk[(k, i)])
                if k == 1: rr(3, i)
                for hh in range(2): p(f"v_pk_add_f32 {v(own(i)+2*hh,2)}, {v(own(i)+2*hh,2)}, {v(RB+24*(k-1)+4*i+2*hh,2)}")
        p("s_barrier")
        self.stamp(9)
        PK, ZU = 112, 128
        def ow2(i): return own(i >> 1) + 2 * (i & 1)
        def pepi():
            p = self.p
            p(f"v_lshlrev_b32 {v(BI)}, 16, {v(BI)}")
            for i in range(12): p(f"v_cvt_pk_bf16_f32 {v(PK+i)}, {v(ow2(i))}, {v(ow2(i)+1)}")
            for i in range(12): self.unpack(ow2(i), PK + i)
            for i in range(12): p(f"v_pk_add_f32 {v(ow2(i),2)}, {v(ow2(i),2)}, {v(BI,2)} op_sel_hi:[1,0]")
            for i in range(12): p(f"v_cvt_pk_bf16_f32 {v(PK+i)}, {v(ow2(i))}, {v(ow2(i)+1)}")
            for i in range(12): self.unpack(ow2(i), PK + i)
            for i in range(12): self.unpack(ZU + 2 * i, Z1R + i)
            for i in range(12): p(f"v_pk_mul_f32 {v(ow2(i),2)}, {v(ow2(i),2)}, {v(ZU+2*i,2)}")
            for i in range(12): p(f"v_cvt_pk_bf16_f32 {v(PK+i)}, {v(ow2(i))}, {v(ow2(i)+1)}")
            p(f"s_mul_i32 s{SA}, s{SC}, 45056\ns_mul_i32 s{SB_}, s{SCOL}, 5632\ns_add_u32 s{SA}, s{SA}, s{SB_}\ns_lshl_b32 s{SB_}, s{Q}, 10")
            p(f"s_add_u32 s{SA}, s{SA}, s{SB_}\ns_add_u32 s{SA}, s{SA}, {PB}\ns_add_u32 s{SB_}, s{SA}, 4096")
        p.wait(vm=lt['z'])
        y1 = self.y_dma(1)
        k1 = o.get("y1a", 9)
        self.run(merge(self.cap(pepi), y1[:k1]))
        p.vmem(f"buffer_store_dwordx4 {v(PK,4)}, {v(VL16)}, {srd(SWS)}, s{SA} offen sc1")
        p.vmem(f"buffer_store_dwordx4 {v(PK+4,4)}, {v(VL16)}, {srd(SWS)}, s{SA} offen offset:2048 sc1")
        self.tp = p.vmem(f"buffer_store_dwordx4 {v(PK+8,4)}, {v(PV)}, {srd(SWS)}, s{SB_} offen sc1")
        self.run(merge([wo_rd(9), wo_rd(10)], y1[k1:]))
        p(f"s_lshl_b32 s{SLATE}, s{STB}, 3\ns_add_u32 s{SLATE}, s{SLATE}, s{SCOL}\ns_lshl_b32 s{SLATE}, s{SLATE}, 2\ns_add_u32 s{SLATE}, s{SLATE}, s{SWV}\ns_lshl_b32 s{SLATE}, s{SLATE}, 7\ns_add_u32 s{SLATE}, s{SLATE}, {PF}")
        self.stamp(10)

    CD, CR, HT = 210, 214, 218
    def c_setup(self):
        p = self.p
        self.plain_dma_addr(self.CD, 1024, 224)
        p(f"s_add_u32 s{SA}, s{SREG}, 4096")
        self.plain_read_addr(self.CR, SA, 224)
        p(f"s_add_u32 s{SA}, s{SREG}, {4096+8192}")
        self.unit_tr_addr(self.HT, SA, 224, False)
        p(f"s_lshl_b32 s{SCB}, s{SCOL}, 16\ns_lshl_b32 s{SA}, s{SWV}, 8\ns_add_u32 s{SCB}, s{SCB}, s{SA}")
        p(f"s_lshl_b32 s{SHB}, s{STB}, 17\ns_lshl_b32 s{SA}, s{SWV}, 15\ns_add_u32 s{SHB}, s{SHB}, s{SA}\ns_add_u32 s{SHB}, s{SHB}, {HB}")
        self.yt = {}
    def y_dma(self, s):
        sl = (s & 1) ^ 1; items = []
        def cb(t): self.yt[s] = t
        for hh in range(2):
            for i in range(4):
                items.append(((SREG, 4096 + sl * 18432 + hh * 4096) if i == 0 else None, (SCB, (s >> 1) * 128 + hh * 32768) if i == 0 else None,
                              f"buffer_load_dwordx4 {v(self.CD+i)}, {srd(SCIM if s & 1 else SCRE)}, s{SDO} offen offset:{i*1024} lds", None))
        for hh in range(2):
            for i in range(4):
                items.append(((SREG, 4096 + sl * 18432 + 8192 + hh * 4096) if i == 0 else None, (SHB, s * 8192 + hh * 4096) if i == 0 else None,
                              f"buffer_load_dwordx4 {v(VL16)}, {srd(SWS)}, s{SDO} offen offset:{i*1024} sc1 lds", cb))
        return self.dseq(items)
    def phase_c(self):
        p = self.p; o = self.o
        p.c("==== phase C ====")
        YA, BA, F = 16, 80, 144
        XE, GE, DE, OV, P10, PL, T = 186, 194, 198, 200, 201, 202, 204
        RW, RX, WA, RA = 176, 177, 180, 230
        ep = {}
        def setup():
            p = self.p
            p(f"v_lshrrev_b32 {v(T)}, 4, {v(VL)}\nv_and_b32 {v(T+1)}, 15, {v(VL)}")
            p(f"v_lshlrev_b32 {v(T+2)}, 10, {v(T)}\nv_lshl_add_u32 {v(T+2)}, {v(T+1)}, 3, {v(T+2)}")
            p(f"v_lshlrev_b32 {v(T+3)}, 2, {v(T)}\nv_lshlrev_b32 {v(T+4)}, 3, {v(T+1)}")
            p(f"v_lshlrev_b32 {v(OV)}, 1, {v(T+2)}")
            p(f"s_lshl_b32 s{SC}, s{STB}, 6\ns_lshl_b32 s{SA}, s{SWV}, 4\ns_add_u32 s{SC}, s{SC}, s{SA}")
            p(f"s_lshl_b32 s{SD}, s{SC}, 10\ns_lshl_b32 s{SA}, s{SCOL}, 7\ns_add_u32 s{SD}, s{SD}, s{SA}\nv_add_u32 {v(T+4)}, s{SA}, {v(T+4)}")
            p(f"s_lshl_b32 s{SA}, s{STB}, 12\ns_lshl_b32 s{SB_}, s{SWV}, 10\ns_add_u32 s{SB_}, s{SB_}, s{SA}\ns_add_u32 s{SB_}, s{SB_}, {PF}")
            self.poll_addr(PL, [(SB_, 8)])
            p.atom(f"s_cmp_eq_u32 s{SWV}, 3\ns_cselect_b64 vcc, -1, 0")
            p(f"v_cndmask_b32 {v(P10)}, {v(VL16)}, {v(VOOB)}, vcc")
            p(f"s_mul_i32 s{SE}, s{STB}, {2*45056}\ns_mul_i32 s{SA}, s{SWV}, {22*512}\ns_add_u32 s{SE}, s{SE}, s{SA}\ns_add_u32 s{SE}, s{SE}, {PB}")
            p(f"s_add_u32 s{SA}, s{SREG}, 4096\nv_and_b32 {v(RW)}, 31, {v(VL)}\nv_lshlrev_b32 {v(RW)}, 8, {v(RW)}\nv_add_u32 {v(RW)}, s{SA}, {v(RW)}")
            p(f"v_lshrrev_b32 {v(RX)}, 5, {v(VL)}\nv_and_b32 {v(RX+1)}, 7, {v(VL)}\nv_xor_b32 {v(RX)}, {v(RX)}, {v(RX+1)}\nv_lshlrev_b32 {v(RX)}, 4, {v(RX)}")
            for i in range(4): p(f"v_xor_b32 {v(WA+i)}, {32*i}, {v(RX)}\nv_add_u32 {v(WA+i)}, {v(WA+i)}, {v(RW)}")
            p(f"v_xor_b32 {v(T+1)}, {v(T+1)}, {v(T)}\nv_lshlrev_b32 {v(T+1)}, 4, {v(T+1)}")
            p(f"v_lshlrev_b32 {v(T)}, 8, {v(T)}\ns_lshl_b32 s{SA}, s{SWV}, 12\ns_add_u32 s{SA}, s{SA}, 4096\nv_add_u32 {v(T)}, s{SA}, {v(T)}")
            p(f"v_add_u32 {v(RA)}, {v(T)}, {v(T+1)}\nv_xor_b32 {v(T+1)}, 64, {v(T+1)}\nv_add_u32 {v(RA+1)}, {v(T)}, {v(T+1)}")
            p(f"v_add_u32 {v(RA+2)}, 81920, {v(RA)}\nv_add_u32 {v(RA+3)}, 81920, {v(RA+1)}")
        def eloads():
            for gi in range(4):
                p(f"s_add_u32 s{SA}, s{SD}, {gi*4096}")
                p.vmem(f"buffer_load_dwordx2 {v(XE+2*gi,2)}, {v(T+2)}, {srd(SX)}, s{SA} offen")
            p(f"s_lshl_b32 s{SA}, s{SC}, 2\ns_add_u32 s{SA}, s{SA}, {GATE}")
            for gi in range(4): p.vmem(f"buffer_load_dword {v(GE+gi)}, {v(T+3)}, {srd(SWS)}, s{SA} offen offset:{gi*16} sc1")
            ep['t'] = p.vmem(f"global_load_dwordx2 {v(DE,2)}, {v(T+4)}, {sp(PDSK)}")
        rt = {}
        def reads(n):
            s, ks = n // 4, n % 4; sl = (s & 1) ^ 1; fs = F + 16 * (n & 1); ops = []
            for k in range(2):
                def ra(k=k):
                    if ks == 0 and k == 0: p.wait(vm=self.yt[s])
                    rt[(n, 'a', k)] = p.lds(f"ds_read_b128 {v(fs+4*k,4)}, {v(self.CR+ks)} offset:{sl*18432+k*4096}")
                ops.append(ra)
                for a in range(2):
                    def rb(k=k, a=a):
                        rt[(n, 'b', k)] = p.lds(f"ds_read_b64_tr_b16 {v(fs+8+4*k+2*a,2)}, {v(self.HT+a)} offset:{sl*18432+(ks>>1)*4096+k*2048+(ks&1)*256}")
                    ops.append(rb)
            return ops
        T4 = [(0, 0), (1, 0), (1, 1), (0, 1)]
        def mfmas(n):
            fs = F + 16 * (n & 1); ops = []
            for (mt, nt) in T4:
                def m(mt=mt, nt=nt):
                    p.wait(lg=max(rt[(n, 'a', mt)], rt[(n, 'b', nt)]))
                    d = v(YA + 16 * (2 * mt + nt), 16)
                    p(f"{MF} {d}, {v(fs+4*mt,4)}, {v(fs+8+4*nt,4)}, {'0' if n == 0 else d}")
                ops.append(m)
            return ops
        PA = 96
        pt = {}
        def ploads():
            ops = []
            for nt in range(2):
                for kap in range(11):
                    def f(kap=kap, nt=nt):
                        if kap % 4 == 0: p(f"s_add_u32 s{SB_}, s{SE}, {nt*45056+kap*1024}")
                        pt[(kap, nt)] = p.vmem(f"buffer_load_dwordx4 {ar(PA+(kap*2+nt)*4,4)}, {v(P10 if kap == 10 else VL16)}, {srd(SWS)}, s{SB_} offen offset:{(kap%4)*1024} sc1")
                    ops.append(f)
            return ops
        def pflag():
            p.wait(vm=self.tp); self.flag(SLATE, 220)
        pl = {}
        def pf_issue(): pl['t'] = p.vmem(f"buffer_load_dword {v(PL+1)}, {v(PL)}, {srd(SWS)}, 0 offen sc1")
        def pf_check():
            l = p.label("pp"); d = p.label("pd")
            p.wait(vm=pl['t'])
            p(f"s_mov_b32 s{SSPIN}, 0")
            p.put(l)
            p(f"v_cmp_ne_u32 vcc, s{ST_T}, {v(PL+1)}\ns_and_b32 s{SF}, vcc_lo, 0xff\ns_cbranch_scc0 {d}")
            p(f"buffer_load_dword {v(PL+1)}, {v(PL)}, {srd(SWS)}, 0 offen sc1\ns_waitcnt vmcnt(0)")
            p(f"s_add_u32 s{SSPIN}, s{SSPIN}, 1\ns_cmp_lt_u32 s{SSPIN}, {SPIN}\ns_cbranch_scc1 {l}")
            p.put(d)
        su = self.cap(setup)
        self.run(reads(0))
        q = (len(su) + 2) // 3
        pend = [su[i * q:(i + 1) * q] for i in range(3)]
        nflag = o.get("nflag", 2)
        for n in range(16):
            if n == 3:
                p.wait(lg=p.lg - 1); d = self.y_dma(2); pend = [[eloads] + d[:5], d[5:9], d[9:13], d[13:]]
            if n == 7:
                p.wait(lg=p.lg - 1); self.stamp(11)
                d = self.y_dma(3); pend = [d[:5], d[5:9], d[9:13], d[13:] + [pf_issue]]
            if n == 11:
                pf_check(); self.stamp(12)
                d = ploads(); pend = [d[:4], d[4:8], d[8:12], d[12:16], d[16:19]]; prest = d[19:]
            seq = merge(mfmas(n), reads(n + 1), 0, 3) if n + 1 < 16 else mfmas(n)
            if pend: seq = merge(seq, pend.pop(0), 1)
            if n == nflag: seq = seq + [pflag]
            self.run(seq)
        self.stamp(13)
        def redw(acc, base, tiles):
            return [(lambda mt=mt, nt=nt, i=i: p.lds(f"ds_write_b128 {v(WA+i)}, {v(acc+16*(2*mt+nt)+4*i,4)} offset:{base+nt*8192+mt*128}"))
                    for (mt, nt) in tiles for i in range(4)]
        def bm(kap, mt, nt):
            def m():
                p.wait(vm=pt[(kap, nt)])
                d = v(BA + 16 * (2 * mt + nt), 16)
                p(f"{MF} {d}, {ar((kap*2+mt)*4,4)}, {ar(PA+(kap*2+nt)*4,4)}, {'0' if kap == 0 else d}")
            return m
        mm0 = [bm(kap, mt, 0) for kap in range(11) for mt in range(2)]
        self.run(prest)
        self.run(merge(mm0, redw(YA, 18432, T4), 2, 20))
        p.wait_lg_all(); p("s_barrier")
        tk = {}
        def R(gi, s): return 16 + 16 * gi + 4 * s
        def rd(gi, which):
            def f():
                p.wait(lg=p.lg - 12)
                for s in range(4):
                    tk[(gi, which)] = p.lds(f"ds_read_b128 {v(R(gi,s)+64*which,4)}, {v(RA+2*(s>>1)+(gi&1))} offset:{(s&1)*40960+(1-which)*18432+gi*1024}")
            return f
        DU, X, OM = 144, 148, 152
        def apart(gi):
            p = self.p
            y = R(gi, 0)
            for hh in (0, 2):
                p(f"v_pk_add_f32 {v(y+hh,2)}, {v(y+hh,2)}, {v(y+4+hh,2)}\nv_pk_add_f32 {v(y+8+hh,2)}, {v(y+8+hh,2)}, {v(y+12+hh,2)}")
            self.unpack(X, XE + 2 * gi); self.unpack(X + 2, XE + 2 * gi + 1)
            for hh in (0, 2): p(f"v_pk_add_f32 {v(y+hh,2)}, {v(y+hh,2)}, {v(y+8+hh,2)}")
            for hh in (0, 2): p(f"v_pk_mul_f32 {v(X+hh,2)}, {v(X+hh,2)}, {v(DU+hh,2)}")
            p(f"v_cvt_pk_bf16_f32 {v(y+4)}, {v(X)}, {v(X+1)}\nv_cvt_pk_bf16_f32 {v(y+5)}, {v(X+2)}, {v(X+3)}")
            self.unpack(X, y + 4); self.unpack(X + 2, y + 5)
            p(f"v_mov_b32 {v(y+6)}, {v(GE+gi)}\nv_sub_f32 {v(OM+2*gi)}, 1.0, {v(GE+gi)}")
            for hh in (0, 2): p(f"v_pk_add_f32 {v(y+hh,2)}, {v(y+hh,2)}, {v(X+hh,2)}")
            self.rnd(OM + 2 * gi, OM + 2 * gi)
            for hh in (0, 2): p(f"v_pk_mul_f32 {v(y+hh,2)}, {v(y+hh,2)}, {v(y+6,2)} op_sel_hi:[1,0]")
        fill = [rd(gi, 0) for gi in range(4)]
        fill += [lambda: p.wait(vm=ep['t'])] + self.cap(lambda: (self.unpack(DU, DE), self.unpack(DU + 2, DE + 1)))
        w0 = redw(BA, 0, [(0, 0), (1, 0)])
        for gi in range(4): fill += [lambda gi=gi: p.wait(lg=tk[(gi, 0)])] + merge(self.cap(lambda: apart(gi)), w0[2 * gi:2 * gi + 2])
        mm1 = [bm(kap, 0, 1) for kap in range(11)]
        mm2 = [bm(kap, 1, 1) for kap in range(11)]
        h = len(fill) * 6 // 10
        self.run(merge(mm1, fill[:h]))
        self.run(merge(mm2, fill[h:] + redw(BA, 0, [(0, 1)])))
        self.run(redw(BA, 0, [(1, 1)]))
        p.wait_lg_all(); p("s_barrier")
        self.stamp(14)
        for gi in range(4): rd(gi, 1)()
        p(f"s_lshl_b32 s{SD}, s{SD}, 1")
        for gi in range(4):
            y, b = R(gi, 0), R(gi, 0) + 64
            p.wait(lg=tk[(gi, 1)])
            for hh in (0, 2):
                p(f"v_pk_add_f32 {v(b+hh,2)}, {v(b+hh,2)}, {v(b+4+hh,2)}\nv_pk_add_f32 {v(b+8+hh,2)}, {v(b+8+hh,2)}, {v(b+12+hh,2)}")
            for hh in (0, 2): p(f"v_pk_add_f32 {v(b+hh,2)}, {v(b+hh,2)}, {v(b+8+hh,2)}")
            p(f"v_cvt_pk_bf16_f32 {v(b+4)}, {v(b)}, {v(b+1)}\nv_cvt_pk_bf16_f32 {v(b+5)}, {v(b+2)}, {v(b+3)}")
            self.unpack(b, b + 4); self.unpack(b + 2, b + 5)
            for hh in (0, 2): p(f"v_pk_mul_f32 {v(b+hh,2)}, {v(b+hh,2)}, {v(OM+2*gi,2)} op_sel_hi:[1,0]")
            p(f"v_cvt_pk_bf16_f32 {v(b+4)}, {v(b)}, {v(b+1)}\nv_cvt_pk_bf16_f32 {v(b+5)}, {v(b+2)}, {v(b+3)}")
            self.unpack(b, b + 4); self.unpack(b + 2, b + 5)
            for hh in (0, 2): p(f"v_pk_add_f32 {v(y+hh,2)}, {v(y+hh,2)}, {v(b+hh,2)}")
            if "pscale" in o:
                for k in range(4): p(f"v_mul_f32 {v(y+k)}, {f2u(1+float(o['pscale'])*1e-4)}, {v(y+k)}")
            if "padd" in o and gi == 0:
                p(f"s_cmp_eq_u32 s2, 0\ns_cselect_b32 s{SA}, {f2u(float(o['padd'])*1e-4)}, 0\nv_add_f32 {v(y)}, s{SA}, {v(y)}")
            p(f"s_add_u32 s{SA}, s{SD}, {gi*8192}")
            p.vmem(f"buffer_store_dwordx4 {v(y,4)}, {v(OV)}, {srd(SOUT)}, s{SA} offen{' ' + o['outmod'] if 'outmod' in o else ''}")
        ne = p.label("ne")
        p(f"s_lshl_b32 s{SA}, s{STB}, 3\ns_add_u32 s{SA}, s{SA}, s{SCOL}\ns_lshl_b32 s{SA}, s{SA}, 2\ns_add_u32 s{SA}, s{SA}, s{SWV}")
        p(f"s_cmp_eq_u32 s{SA}, {255*4}\ns_cbranch_scc0 {ne}")
        p(f"s_mov_b32 s{SA}, {EPOCH}")
        self.flag(SA, 220)
        p.put(ne)
        if o.get("stamps"):
            self.stamp(15)
            p(f"s_lshl_b32 s{SA}, s2, 2\ns_add_u32 s{SA}, s{SA}, s{SWV}\ns_lshl_b32 s{SA}, s{SA}, 8\ns_add_u32 s{SA}, s{SA}, {DBG}")
            p(f"v_lshlrev_b32 v254, 2, {v(VL)}")
            p.vmem(f"buffer_store_dword v255, v254, {srd(SWS)}, s{SA} offen")
        if "spin_from" in o:
            self.stamp(15)
            sl = p.label("spin")
            p(f"v_readlane_b32 s{SA}, v254, 0")
            p.put(sl)
            p(f"s_memrealtime s[{SSTMP}:{SSTMP+1}]\ns_waitcnt lgkmcnt(0)\ns_sub_u32 s{SB_}, s{SSTMP}, s{SA}\ns_cmp_lt_u32 s{SB_}, 3000\ns_cbranch_scc1 {sl}")
        p.put(self.END)
        p("s_endpgm")

    def build(self):
        self.prologue()
        self.phase_z()
        self.p.vm_done = -1; self.p.lg_done = -1
        self.p("s_nop 15")
        self.phase_u()
        self.phase_g()
        self.phase_c()
        lines, added = hazard_pass([x for l in self.p.L for x in l.split(chr(10))])
        hdr = open("gated_mix__ssm_conv_s5__mixer_gmlp__prompt.s.ref").read().split("; Override")[0]
        s = hdr + "; @launch grid=(256,1,1) block=(256,1,1) lds=163840\n"
        s += '.amdgcn_target "amdgcn-amd-amdhsa--gfx950"\n.text\n'
        s += f".globl {NAME}\n.p2align 8\n.type {NAME},@function\n{NAME}:\n"
        s += "\n".join((l if l.endswith(":") else "    " + l) for l in lines) + "\n"
        s += f""".section .rodata,"a"
.p2align 6
.amdhsa_kernel {NAME}
  .amdhsa_next_free_vgpr 512
  .amdhsa_next_free_sgpr 102
  .amdhsa_accum_offset 256
  .amdhsa_group_segment_fixed_size 0
  .amdhsa_kernarg_size 144
  .amdhsa_user_sgpr_count 2
  .amdhsa_user_sgpr_kernarg_segment_ptr 1
  .amdhsa_system_sgpr_workgroup_id_x 1
  .amdhsa_float_denorm_mode_32 3
.end_amdhsa_kernel
"""
        return s, added

if __name__ == "__main__":
    out = sys.argv[1]
    opt = {}
    for a in sys.argv[2:]:
        k, _, val = a.partition("=")
        try: opt[k] = int(val) if val else 1
        except ValueError: opt[k] = val
    s, added = G(opt).build()
    open(out, "w").write(s)
    print("wrote", out, "nops added", added, "lines", s.count("\n"))
```

```python
import sys, math, struct
from core import *

NAME = "gated_mix__ssm_conv_s5__mixer_gmlp__prompt_kernel"
EPOCH = 0; GATE = 0x4000
ST = 0x10000; EG = 0x50000; DBG = 0x80000
Z2N = 0x100000; Z1 = 0x400000; PB = 0x700000; HB = 0xA00000
ZF = 0xE00000; HF = 0xE10000; PF = 0xE20000; Z1F = 0xE40000; WS_END = 0xE50000
OOB = 0x80000000
SPIN = 200000
SX, SW1, SWSP, SWS, SCRE, SCIM, SWOUT, SOUT = 4, 8, 12, 16, 20, 24, 28, 32
PLRE, PLIM, PLDT, PDSK, PBSP, PGW, PBRE, PBIM, PWIN = 36, 38, 40, 42, 44, 46, 48, 50, 52
ST_T = 100
SWV, SRB, SCOL, STB = 56, 57, 58, 59
SA, SB_, SC, SD = 60, 61, 62, 63
SSTMP = 64
SDO, SWB, SPB0, SPST, SPSP = 68, 69, 70, 71, 72
SXB, SW1B, SXL, SWL = 73, 74, 75, 76
SPC = 77
SCB, SHB = 78, 79
SK = 80
SREG = 96
SE, SF = 97, 98
SSPIN = 99
SLATE = 101
SJ = 3
SGB = 95
SPFP = 70
SPFE = 79
SZI = 72
SPB = 90
def srd(b): return f"s[{b}:{b+3}]"
def v(a, n=1): return f"v{a}" if n == 1 else f"v[{a}:{a+n-1}]"
def ar(a, n=1): return f"a{a}" if n == 1 else f"a[{a}:{a+n-1}]"
def sp(a): return f"s[{a}:{a+1}]"
VL, VL16, VOOB = 1, 2, 3
LOG2E = 1.4426950408889634
def f2u(x): return struct.unpack("<I", struct.pack("<f", x))[0]
MF = "v_mfma_f32_32x32x16_bf16"

class G:
    def __init__(self, opt):
        self.o = opt
        self.p = Prog()

    def stamp(self, k):
        if self.o.get("spin_from") == k:
            p = self.p
            p(f"s_memrealtime s[{SSTMP}:{SSTMP+1}]"); p.wait_lg_all()
            p(f"v_mov_b32 v254, s{SSTMP}")
        if self.o.get("stamps"):
            p = self.p
            p(f"s_memrealtime s[{SSTMP}:{SSTMP+1}]\ns_memtime s[{SSTMP+2}:{SSTMP+3}]"); p.wait_lg_all()
            p(f"v_writelane_b32 v255, s{SSTMP}, {k}\nv_writelane_b32 v255, s{SSTMP+2}, {k+32}")
    def cap(self, fn):
        sub = Prog(); save = self.p; self.p = sub
        fn()
        self.p = save
        assert sub.vm == 0 and sub.lg == 0
        return [(lambda l=l: self.p(l)) for l in sub.L]
    def run(self, ops):
        for op in ops: op()
    def dseq(self, items):
        p = self.p
        def setup(it):
            if it[0] is not None: p(f"s_add_u32 m0, s{it[0][0]}, {it[0][1]}")
            if it[1] is not None: p(f"s_add_u32 s{SDO}, s{it[1][0]}, {it[1][1]}")
        ops = [lambda: setup(items[0])]
        for i, it in enumerate(items):
            def f(i=i, it=it):
                t = p.vmem(it[2])
                if it[3]: it[3](t)
                if i + 1 < len(items): setup(items[i + 1])
            ops.append(f)
        return ops
    def poll_addr(self, vt, groups):
        p = self.p; n0 = 0
        p(f"v_mov_b32 {v(vt)}, {v(VOOB)}")
        for (sr, n) in groups:
            if n == 1: p(f"v_writelane_b32 {v(vt)}, s{sr}, {n0}")
            else:
                p(f"s_sub_u32 s{sr}, s{sr}, {n0*128}\nv_lshl_add_u32 {v(vt+1)}, {v(VL)}, 7, s{sr}")
                m = ((1 << n) - 1) << n0
                p(f"s_mov_b32 vcc_lo, {m & 0xffffffff}\ns_mov_b32 vcc_hi, {m >> 32}\nv_cndmask_b32 {v(vt)}, {v(vt)}, {v(vt+1)}, vcc")
            n0 += n
        return n0
    def poll(self, vt, n):
        p = self.p
        l = p.label("poll"); d = p.label("pd")
        p(f"s_mov_b32 s{SSPIN}, 0")
        p.put(l)
        p.vmem(f"buffer_load_dword {v(vt+1)}, {v(vt)}, {srd(SWS)}, 0 offen sc1")
        p.wait_vm_all()
        p(f"v_cmp_ne_u32 vcc, s{ST_T}, {v(vt+1)}")
        if n <= 32: p(f"s_and_b32 s{SF}, vcc_lo, {(1<<n)-1}")
        else: p(f"s_and_b32 vcc_hi, vcc_hi, {(1<<(n-32))-1}\ns_or_b32 s{SF}, vcc_lo, vcc_hi")
        p(f"s_cbranch_scc0 {d}")
        p(f"s_add_u32 s{SSPIN}, s{SSPIN}, 1\ns_cmp_lt_u32 s{SSPIN}, {SPIN}\ns_cbranch_scc1 {l}")
        p.put(d)
    def flag_prep(self, vt):
        p = self.p
        p(f"v_mov_b32 {v(vt)}, s{ST_T}\nv_mov_b32 {v(vt+1)}, {v(VOOB)}\nv_writelane_b32 {v(vt+1)}, 0, 0")
    def flag(self, off_sreg, vt):
        self.p.vmem(f"buffer_store_dword {v(vt)}, {v(vt+1)}, {srd(SWS)}, s{off_sreg} offen sc1")
    def xhalf_sum(self, a, t):
        self.p(f"v_mov_b32 {v(t)}, {v(a)}\nv_permlane32_swap_b32 {v(a)}, {v(t)}\nv_add_f32 {v(a)}, {v(a)}, {v(t)}")
    def rnd(self, d, s):
        self.p(f"v_cvt_pk_bf16_f32 {v(d)}, {v(s)}, {v(s)}\nv_lshlrev_b32 {v(d)}, 16, {v(d)}")
    def unpack(self, d, s):
        self.p(f"v_and_b32 {v(d+1)}, 0xffff0000, {v(s)}\nv_lshlrev_b32 {v(d)}, 16, {v(s)}")
    def plain_read_addr(self, dst4, base_sreg, t):
        p = self.p
        p(f"v_and_b32 {v(t)}, 31, {v(VL)}\nv_lshlrev_b32 {v(t)}, 7, {v(t)}")
        if base_sreg is not None: p(f"v_add_u32 {v(t)}, s{base_sreg}, {v(t)}")
        p(f"v_bfe_u32 {v(t+1)}, {v(VL)}, 1, 3\nv_lshrrev_b32 {v(dst4)}, 5, {v(VL)}\nv_xor_b32 {v(t+1)}, {v(t+1)}, {v(dst4)}")
        p(f"v_lshlrev_b32 {v(t+1)}, 4, {v(t+1)}")
        for ks in range(4):
            p(f"v_xor_b32 {v(dst4+ks)}, {32*ks}, {v(t+1)}\nv_add_u32 {v(dst4+ks)}, {v(dst4+ks)}, {v(t)}")
    def plain_dma_addr(self, dst4, rowbytes, t, rowstep=8):
        p = self.p
        p(f"v_lshrrev_b32 {v(t)}, 3, {v(VL)}\nv_mul_u32_u24 {v(t)}, {rowbytes}, {v(t)}")
        self.plain_dma_addr2(dst4, t, t + 1, rowstep * rowbytes)
    def plain_dma_addr2(self, dst4, vrow, t, step):
        p = self.p
        p(f"v_and_b32 {v(t)}, 7, {v(VL)}\nv_lshrrev_b32 {v(dst4)}, 4, {v(VL)}\nv_xor_b32 {v(t)}, {v(t)}, {v(dst4)}\nv_lshlrev_b32 {v(t)}, 4, {v(t)}")
        p(f"v_add_u32 {v(dst4)}, {v(t)}, {v(vrow)}")
        p(f"v_xor_b32 {v(t)}, 64, {v(t)}\nv_add_u32 {v(dst4+1)}, {v(t)}, {v(vrow)}")
        p(f"v_add_u32 {v(dst4+2)}, {2*(step-1024)}, {v(dst4)}\nv_add_u32 {v(dst4+3)}, {3*(step-1024)}, {v(dst4+1)}\nv_add_u32 {v(dst4+1)}, {step-1024}, {v(dst4+1)}")
    def panel_tr_addr(self, dst2, base_sreg, t, perm):
        p = self.p
        p(f"v_lshrrev_b32 {v(t)}, 5, {v(VL)}\nv_lshlrev_b32 {v(t)}, 10, {v(t)}")
        p(f"v_bfe_u32 {v(t+1)}, {v(VL)}, 2, 2\nv_lshl_add_u32 {v(t)}, {v(t+1)}, 7, {v(t)}")
        p(f"v_bfe_u32 {v(t+1)}, {v(VL)}, 4, 1\nv_lshl_add_u32 {v(t)}, {v(t+1)}, 5, {v(t)}")
        if perm:
            p(f"v_and_b32 {v(t+1)}, 1, {v(VL)}\nv_lshl_add_u32 {v(t)}, {v(t+1)}, 4, {v(t)}")
            p(f"v_bfe_u32 {v(t+1)}, {v(VL)}, 1, 1\nv_lshl_add_u32 {v(t)}, {v(t+1)}, 3, {v(t)}")
        else:
            p(f"v_and_b32 {v(t+1)}, 3, {v(VL)}\nv_lshl_add_u32 {v(t)}, {v(t+1)}, 3, {v(t)}")
        p(f"v_bfe_u32 {v(t+1)}, {v(VL)}, 3, 1\nv_lshlrev_b32 {v(t+1)}, 6, {v(t+1)}")
        if base_sreg is not None: p(f"v_add_u32 {v(t)}, s{base_sreg}, {v(t)}")
        p(f"v_add_u32 {v(dst2)}, {v(t)}, {v(t+1)}\nv_xor_b32 {v(t+1)}, 64, {v(t+1)}\nv_add_u32 {v(dst2+1)}, {v(t)}, {v(t+1)}")
    def unit_tr_addr(self, dst2, base_sreg, t, perm, flip_sreg=None):
        p = self.p
        p(f"v_bfe_u32 {v(t)}, {v(VL)}, 4, 1")
        if flip_sreg is not None: p(f"v_xor_b32 {v(t)}, s{flip_sreg}, {v(t)}")
        p(f"v_lshlrev_b32 {v(t)}, 1, {v(t)}")
        p(f"v_bfe_u32 {v(t+1)}, {v(VL)}, {0 if perm else 1}, 1\nv_or_b32 {v(t)}, {v(t)}, {v(t+1)}")
        p(f"v_lshrrev_b32 {v(t+1)}, 5, {v(VL)}\nv_lshlrev_b32 {v(t+1)}, 1, {v(t+1)}\nv_xor_b32 {v(t+1)}, {v(t+1)}, {v(t)}")
        p(f"v_lshlrev_b32 {v(t)}, 9, {v(t)}")
        p(f"v_bfe_u32 {v(t+2)}, {v(VL)}, 2, 2\nv_lshl_add_u32 {v(t)}, {v(t+2)}, 4, {v(t)}")
        p(f"v_bfe_u32 {v(t+2)}, {v(VL)}, {1 if perm else 0}, 1\nv_lshl_add_u32 {v(t)}, {v(t+2)}, 3, {v(t)}")
        if base_sreg is not None: p(f"v_add_u32 {v(t)}, s{base_sreg}, {v(t)}")
        p(f"v_lshl_add_u32 {v(dst2)}, {v(t+1)}, 6, {v(t)}")
        p(f"v_xor_b32 {v(t+1)}, 1, {v(t+1)}\nv_lshl_add_u32 {v(dst2+1)}, {v(t+1)}, 6, {v(t)}")

    def gemm_loop(self, nslot, reads, mfmas, dma, tick, rfront, npro, extra, valu=None):
        p = self.p
        p.wait(vm=tick[0]); p("s_barrier")
        self.stamp(20)
        self.run(reads(0))
        d = []
        for st in range(npro, nslot): d += dma(st)
        q = (len(d) + 2) // 3
        pend = [d[i * q:(i + 1) * q] for i in range(3)]
        for n in range(32):
            rd = []
            if n + 1 < 32:
                if (n + 1) % 4 == 0:
                    st = (n + 1) // 4
                    p.wait(vm=tick[st], lg=p.lg - 1); p("s_barrier")
                    d = dma(st - 1 + nslot) if st - 1 + nslot < 8 else extra.get(st, lambda: [])()
                    q = (len(d) + 3) // 4
                    pend = [d[i * q:(i + 1) * q] for i in range(4)]
                rd = reads(n + 1)
            seq = merge(mfmas(n), rd, 0, rfront)
            if pend: seq = merge(seq, pend.pop(0), len(seq) // 2)
            if valu and n in valu: seq = merge(seq, valu[n])
            self.run(seq)

    def gate(self, GX, GW, GU, GS, GT):
        p = self.p
        for i in range(4):
            for r in range(4):
                p(f"v_dot2_f32_bf16 {v(GS+r)}, {v(GX+4*r+i)}, {v(GW+i)}, {'0' if i == 0 else v(GS+r)}")
        p("s_nop 2")
        for mod in ["quad_perm:[1,0,3,2]", "quad_perm:[2,3,0,1]", "row_half_mirror", "row_mirror"]:
            for r in range(4): p(f"v_add_f32_dpp {v(GS+r)}, {v(GS+r)}, {v(GS+r)} {mod} row_mask:0xf bank_mask:0xf")
        for sw in ["v_permlane16_swap_b32", "v_permlane32_swap_b32"]:
            for r in range(4): p(f"v_mov_b32 {v(GT+r)}, {v(GS+r)}")
            for r in range(4): p(f"{sw} {v(GS+r)}, {v(GT+r)}")
            for r in range(4): p(f"v_add_f32 {v(GS+r)}, {v(GS+r)}, {v(GT+r)}")
        for r in range(4): p(f"v_mul_f32 {v(GS+r)}, {f2u(-LOG2E)}, {v(GS+r)}")
        for r in range(4): p(f"v_exp_f32 {v(GS+r)}, {v(GS+r)}")
        for r in range(4): p(f"v_add_f32 {v(GS+r)}, 1.0, {v(GS+r)}")
        for r in range(4): p(f"v_rcp_f32 {v(GS+r)}, {v(GS+r)}")
        p(f"v_mov_b32 {v(GT)}, {v(VOOB)}\nv_writelane_b32 {v(GT)}, 0, 0")

    def w_dma_addr(self, dst3, t, colbase):
        p = self.p
        for i in range(3):
            p(f"v_add_u32 {v(t)}, {64*i}, {v(VL)}\nv_mul_u32_u24 {v(t+1)}, 171, {v(t)}\nv_lshrrev_b32 {v(t+1)}, 11, {v(t+1)}")
            p(f"v_mul_u32_u24 {v(t+2)}, 12, {v(t+1)}\nv_sub_u32 {v(t)}, {v(t)}, {v(t+2)}\nv_cmp_eq_u32 vcc, 11, {v(t)}")
            p(f"v_mul_u32_u24 {v(t+1)}, 2752, {v(t+1)}\nv_lshl_add_u32 {v(t)}, {v(t)}, 4, {v(t+1)}")
            if colbase - 1024 * i: p(f"v_add_u32 {v(t)}, {colbase-1024*i}, {v(t)}")
            p(f"v_cndmask_b32 {v(dst3+i)}, {v(t)}, {v(VOOB)}, vcc")
    def w_tr_addr(self, dst, base, t):
        p = self.p
        p(f"v_lshrrev_b32 {v(t)}, 5, {v(VL)}\nv_bfe_u32 {v(t+1)}, {v(VL)}, 2, 2\nv_lshl_add_u32 {v(t)}, {v(t)}, 3, {v(t+1)}\nv_mul_u32_u24 {v(t)}, 192, {v(t)}")
        p(f"v_bfe_u32 {v(t+1)}, {v(VL)}, 4, 1\nv_lshl_add_u32 {v(t)}, {v(t+1)}, 5, {v(t)}")
        p(f"v_and_b32 {v(t+1)}, 1, {v(VL)}\nv_lshl_add_u32 {v(t)}, {v(t+1)}, 4, {v(t)}")
        p(f"v_bfe_u32 {v(t+1)}, {v(VL)}, 1, 1\nv_lshl_add_u32 {v(t)}, {v(t+1)}, 3, {v(t)}")
        p(f"v_add_u32 {v(dst)}, {base}, {v(t)}")
    def valid_masks(self):
        MA, MB = SK + 2, SK + 4
        self.p.atom(f"s_cmp_lt_u32 s{SCOL}, 7\ns_mov_b32 s{MA}, -1\ns_cselect_b32 s{MA+1}, -1, 0\ns_cselect_b32 s{MB}, -1, 0\ns_mov_b32 s{MB+1}, 0\n"
                    f"s_mov_b32 s{SK+6}, {f2u(1/72)}\ns_cselect_b32 s{SK+6}, {f2u(1/88)}, s{SK+6}")
        c1 = -2 * LOG2E * 0.7978845608028654
        self.p(f"s_mov_b32 s{SK}, {f2u(c1*0.044715)}\nv_mov_b32 {v(self.VC0)}, {f2u(c1)}")

    def gelu_pair(self, a, t, out_packed=None):
        p = self.p
        p(f"v_pk_mul_f32 {v(t,2)}, {v(a,2)}, {v(a,2)}")
        p(f"v_pk_fma_f32 {v(t,2)}, {v(t,2)}, {sp(SK)}, {v(self.VC0,2)} op_sel_hi:[1,0,0]")
        p(f"v_pk_mul_f32 {v(t,2)}, {v(t,2)}, {v(a,2)}")
        p(f"v_exp_f32 {v(t)}, {v(t)}\nv_exp_f32 {v(t+1)}, {v(t+1)}")
        p(f"v_pk_add_f32 {v(t,2)}, {v(t,2)}, 1.0 op_sel_hi:[1,0]")
        p(f"v_rcp_f32 {v(t)}, {v(t)}\nv_rcp_f32 {v(t+1)}, {v(t+1)}")
        if out_packed is not None:
            p(f"v_pk_mul_f32 {v(t,2)}, {v(t,2)}, {v(a,2)}")
            p(f"v_cvt_pk_bf16_f32 {v(out_packed)}, {v(t)}, {v(t+1)}")
        else:
            p(f"v_pk_mul_f32 {v(a,2)}, {v(t,2)}, {v(a,2)}")
    def gelu_many(self, pairs, temps, outs=None):
        p = self.p; ng = len(temps)
        for g0 in range(0, len(pairs), ng):
            streams = []
            for k, i in enumerate(range(g0, min(g0 + ng, len(pairs)))):
                sub = Prog(); save = self.p; self.p = sub
                self.gelu_pair(pairs[i], temps[k], None if outs is None else outs[i])
                self.p = save
                streams.append(sub.L)
            for j in range(len(streams[0])):
                for s in streams: p(s[j])

    VWD, VWR, VWA, VC0 = 240, 244, 248, 252
    def wsp_setup(self, t):
        p = self.p
        self.plain_dma_addr(self.VWD, 4096, t)
        p(f"s_and_b32 s{SA}, s{SWV}, 1\ns_lshl_b32 s{SA}, s{SA}, 12")
        self.plain_read_addr(self.VWR, SA, t)
        p(f"s_lshl_b32 s{SWB}, s{STB}, 18\ns_lshl_b32 s{SB_}, s{SWV}, 10\ns_add_u32 s{SWB}, s{SWB}, s{SB_}")
        self.wsp_t = {}
    def piece(self, st): return (SPB + st % 5, 0)
    def wsp_dma(self, st):
        if self.o.get("x_nowsp") and st >= 2:
            self.wsp_t[st] = -1
            return [lambda: None] * 9
        items = []; sr, im = self.piece(st)
        for hh in range(2):
            for i in range(4):
                def cb(t): self.wsp_t[st] = t
                items.append(((sr, im + hh * 4096) if i == 0 else None, (SWB, st * 128 + hh * 131072) if i == 0 else None,
                              f"buffer_load_dwordx4 {v(self.VWD+i)}, {srd(SWSP)}, s{SDO} offen offset:{i*1024} lds", cb))
        return self.dseq(items)
    def wsp_read(self, st):
        if self.o.get("x_nord"): return [lambda: None]
        p = self.p; sr, im = self.piece(st)
        def pre():
            for ks in range(4): p(f"v_add_u32 {v(self.VWA+ks)}, s{sr}, {v(self.VWR+ks)}")
            p.wait(vm=self.wsp_t[st], lg=p.lg - 8)
        ops = [pre]
        for nt in range(2):
            for ks in range(4):
                def f(ks=ks, nt=nt):
                    p.lds(f"ds_read_b128 {ar(((st*4+ks)*2+nt)*4,4)}, {v(self.VWA+ks)} offset:{im}")
                    if nt == 0: p(f"v_xor_b32 {v(self.VWA+ks)}, 4096, {v(self.VWA+ks)}")
                ops.append(f)
        return ops

    def prologue(self):
        p = self.p
        self.END = p.label("end")
        p(f"s_cmp_ge_u32 s2, 256\ns_cbranch_scc1 {self.END}")
        p(f"s_load_dwordx2 {sp(SX)}, s[0:1], 0\ns_load_dwordx2 {sp(PWIN)}, s[0:1], 80\ns_load_dwordx4 s[{PBRE}:{PBRE+3}], s[0:1], 24")
        p(f"s_load_dwordx2 {sp(PGW)}, s[0:1], 112\ns_load_dwordx4 s[{PLRE}:{PLRE+3}], s[0:1], 8\ns_load_dwordx2 {sp(PLDT)}, s[0:1], 56\ns_load_dwordx2 {sp(SWS)}, s[0:1], 136")
        p(f"v_lshrrev_b32 v2, 6, v0\nv_and_b32 {v(VL)}, 63, v0\nv_readfirstlane_b32 s{SWV}, v2\nv_lshlrev_b32 {v(VL16)}, 4, {v(VL)}\nv_mov_b32 {v(VOOB)}, {OOB}")
        if self.o.get("stamps"): p("v_mov_b32 v255, 0")
        self.stamp(17)
        p(f"s_and_b32 s{SA}, s2, 7\ns_lshr_b32 s{SB_}, s2, 3")
        p(f"s_and_b32 s{SC}, s{SA}, 1\ns_lshl_b32 s{SC}, s{SC}, 2\ns_and_b32 s{SD}, s{SB_}, 3\ns_add_u32 s{SCOL}, s{SC}, s{SD}")
        p(f"s_lshr_b32 s{SA}, s{SA}, 1")
        p(f"s_lshr_b32 s{SC}, s{SB_}, 2\ns_lshl_b32 s{SD}, s{SA}, 3\ns_add_u32 s{STB}, s{SD}, s{SC}")
        p(f"s_and_b32 s{SC}, s{SC}, 3\ns_lshl_b32 s{SD}, s{SA}, 2\ns_add_u32 s{SRB}, s{SD}, s{SC}")
        if self.o.get("map", 1) == 1:
            p(f"s_and_b32 s{SD}, s2, 7\ns_lshl_b32 s{SD}, s{SD}, 2\ns_lshr_b32 s{STB}, s{SB_}, 3\ns_add_u32 s{STB}, s{STB}, s{SD}\ns_and_b32 s{SJ}, s{SB_}, 7")
        else: p(f"s_mov_b32 s{SJ}, s{SCOL}")
        p(f"s_mov_b32 s{SX+2}, 2097152\ns_mov_b32 s{SX+3}, 0x20000\ns_mov_b32 s{SW1+3}, 0x20000")
        pf = self.o.get("pf", 2)
        if pf == 1:
            p(f"s_lshl_b32 s{SD}, s2, 2\ns_add_u32 s{SD}, s{SD}, s{SWV}\ns_mov_b32 s{SC}, 0\ns_mov_b32 s{SA}, 0")
            for (lo, off) in [(256, 80), (428, 24), (492, 32)]:
                p(f"s_cmp_ge_u32 s{SD}, {lo}\ns_cselect_b32 s{SC}, {off}, s{SC}\ns_cselect_b32 s{SA}, {lo}, s{SA}")
            p(f"s_cmp_lt_u32 s{SD}, 556\ns_cselect_b32 s{SPFE}, 1, 0")
            p(f"s_sub_u32 s{SD}, s{SD}, s{SA}\ns_load_dwordx2 {sp(SPFP)}, s[0:1], s{SC}")
            p(f"s_lshl_b32 s{SD}, s{SD}, 13\nv_lshl_add_u32 {v(4)}, {v(VL)}, 7, s{SD}")
        if pf == 2:
            p(f"s_lshl_b32 s{SD}, s{SWV}, 8\ns_add_u32 s{SD}, s{SD}, s2\ns_mov_b32 s{SC}, 0\ns_mov_b32 s{SA}, 0\ns_mov_b32 s{SE}, 2047")
            for (lo, off, last) in [(171, 24, 511), (214, 32, 511), (257, 80, 0)]:
                p(f"s_cmp_ge_u32 s{SD}, {lo}\ns_cselect_b32 s{SC}, {off}, s{SC}\ns_cselect_b32 s{SA}, {lo}, s{SA}\ns_cselect_b32 s{SE}, {last}, s{SE}")
            p(f"s_cmp_lt_u32 s{SD}, 365\ns_cselect_b32 s{SPFE}, 1, 0")
            p(f"s_sub_u32 s{SD}, s{SD}, s{SA}\ns_load_dwordx2 {sp(SPFP)}, s[0:1], s{SC}")
            p(f"v_mul_u32_u24 {v(4)}, 52, {v(VL)}\nv_lshrrev_b32 {v(4)}, 8, {v(4)}\nv_mul_u32_u24 {v(5)}, 5, {v(4)}\nv_sub_u32 {v(5)}, {v(VL)}, {v(5)}")
            p(f"s_mul_i32 s{SA}, s{SD}, 12\nv_add_u32 {v(4)}, s{SA}, {v(4)}\nv_min_u32 {v(4)}, s{SE}, {v(4)}\nv_lshlrev_b32 {v(4)}, 10, {v(4)}\nv_lshl_add_u32 {v(4)}, {v(5)}, 7, {v(4)}\nv_add_u32 {v(4)}, 384, {v(4)}")
            p(f"s_lshl_b32 s{SD}, s{SD}, 13\ns_add_u32 s{SD}, s{SD}, {192*2752}\nv_lshl_add_u32 {v(5)}, {v(VL)}, 7, s{SD}\nv_min_u32 {v(5)}, {512*2752-4}, {v(5)}")
            p(f"s_cmp_eq_u32 s{SE}, 0\ns_cselect_b64 vcc, -1, 0\nv_cndmask_b32 {v(4)}, {v(4)}, {v(5)}, vcc")
        self.LU = p.label("U"); self.LG = p.label("G")
        p(f"s_cmp_ge_u32 s{SB_}, 16\ns_cbranch_scc1 {self.LU}")
    def code_prefetch(self, va, vd):
        if not self.o.get("cpf", 1): return
        p = self.p
        sk = p.label("cpf"); here = p.label("pc")
        nsl = self.o.get("cpfn", 6)
        p(f"s_lshr_b32 s{SA}, s2, 3\ns_and_b32 s{SA}, s{SA}, 15\ns_lshl_b32 s{SA}, s{SA}, 2\ns_add_u32 s{SA}, s{SA}, s{SWV}")
        p(f"s_cmp_ge_u32 s{SA}, {nsl}\ns_cbranch_scc1 {sk}")
        p(f"s_getpc_b64 s[{SSTMP}:{SSTMP+1}]")
        p.put(here)
        p(f"s_sub_u32 s{SSTMP}, s{SSTMP}, {here}-{NAME}\ns_subb_u32 s{SSTMP+1}, s{SSTMP+1}, 0")
        p(f"s_lshl_b32 s{SA}, s{SA}, 13\nv_lshl_add_u32 {v(va)}, {v(VL)}, 7, s{SA}\nv_min_u32 {v(va)}, {self.END}-{NAME}, {v(va)}")
        p(f"global_load_dword {v(vd)}, {v(va)}, s[{SSTMP}:{SSTMP+1}]")
        p.put(sk)
    def pf1(self, when=1):
        if self.o.get("pf", 2) == when:
            p = self.p; l = p.label("pf")
            p(f"s_cmp_eq_u32 s{SPFE}, 0\ns_cbranch_scc1 {l}\nglobal_load_dword {v(5)}, {v(4)}, {sp(SPFP)}")
            p.put(l)
    def late_args(self):
        p = self.p
        for (r, off) in [(SWSP, 88), (SCRE, 40), (SCIM, 48), (SWOUT, 104), (SOUT, 120), (PDSK, 64), (PBSP, 96)]:
            p(f"s_load_dwordx2 {sp(r)}, s[0:1], {off}")
        p(f"s_load_dword s{ST_T}, {sp(SWS)}, {EPOCH}")
        for (r, n) in [(SWSP, 8388608), (SWS, WS_END), (SCRE, 524288), (SCIM, 524288), (SWOUT, 704512), (SOUT, 4194304)]:
            p(f"s_mov_b32 s{r+2}, {n}\ns_mov_b32 s{r+3}, 0x20000")
    def epoch2(self):
        p = self.p
        p.wait_lg_all()
        p(f"s_mul_i32 s{ST_T}, s{ST_T}, 0x9E3779B1\ns_add_u32 s{ST_T}, s{ST_T}, 0x7F4A7C15")

    def touch_wsp(self, va, vd, k, n):
        p = self.p
        if k == 0:
            p(f"s_lshr_b32 s{SB_}, s2, 3\ns_lshl_b32 s{SB_}, s{SB_}, 2\ns_add_u32 s{SB_}, s{SB_}, s{SWV}\ns_lshl_b32 s{SB_}, s{SB_}, 13")
            p(f"s_and_b32 s{SA}, s2, 7\ns_lshl_b32 s{SA}, s{SA}, 20\ns_add_u32 s{SPFP}, s{SA}, s{SB_}")
            p(f"v_cmp_gt_u32 vcc, {64//n}, {v(VL)}\nv_lshlrev_b32 {v(va)}, 7, {v(VL)}\ns_nop 0\nv_cndmask_b32 {v(va)}, {v(VOOB)}, {v(va)}, vcc")
        else: p(f"s_add_u32 s{SPFP}, s{SPFP}, {8192//n}")
        p.vmem(f"buffer_load_dword {v(vd)}, {v(va)}, {srd(SWSP)}, s{SPFP} offen {self.o.get('tmod', '')}")
    def ctouch(self, va, vd):
        p = self.p; l = p.label("ct")
        p(f"s_lshl_b32 s{SA}, s{SWV}, 8\ns_add_u32 s{SA}, s{SA}, s2\ns_cmp_ge_u32 s{SA}, 856\ns_cbranch_scc1 {l}")
        p(f"s_cmp_lt_u32 s{SA}, 256\ns_cselect_b64 {sp(SSTMP)}, {sp(SCRE)}, {sp(SCIM)}")
        p(f"s_sub_u32 s{SB_}, s{SA}, 512\ns_and_b32 s{SSPIN}, s{SA}, 255\ns_cmp_ge_u32 s{SA}, 512\ns_cselect_b64 {sp(SSTMP)}, {sp(SWOUT)}, {sp(SSTMP)}\ns_cselect_b32 s{SA}, s{SB_}, s{SSPIN}")
        p(f"s_lshl_b32 s{SA}, s{SA}, 11\nv_and_b32 {v(vd)}, 15, {v(VL)}\nv_lshlrev_b32 {v(vd)}, 7, {v(vd)}\nv_add_u32 {v(vd)}, s{SA}, {v(vd)}")
        p(f"global_load_dword {v(vd)}, {v(vd)}, {sp(SSTMP)}")
        p.put(l)
    def paced(self, valu, va, vd, t0, dt):
        if "ct" in self.o: valu.setdefault(self.o["ct"], []).append(lambda: self.ctouch(va, vd + 1 if vd != 205 else 4))
        n = self.o.get("tn", 4)
        if self.o.get("touch", 1) != 1: return
        for k in range(n):
            valu.setdefault(t0 + k * dt, []).append(lambda k=k: self.touch_wsp(va, vd, k, n))
    def touch_c(self, va, vd):
        p = self.p
        p(f"v_lshlrev_b32 {v(va)}, 7, {v(VL)}\ns_lshr_b32 s{SB_}, s2, 3\ns_lshl_b32 s{SB_}, s{SB_}, 2\ns_add_u32 s{SB_}, s{SB_}, s{SWV}\ns_lshl_b32 s{SA}, s{SB_}, 13")
        p.vmem(f"buffer_load_dword {v(vd)}, {v(va)}, {srd(SWOUT)}, s{SA} offen")
        p.vmem(f"buffer_load_dword {v(vd)}, {v(va)}, {srd(SCRE)}, s{SA} offen")
        p.vmem(f"buffer_load_dword {v(vd)}, {v(va)}, {srd(SCIM)}, s{SA} offen")
        p(f"s_add_u32 s{SA}, s{SA}, 524288")
        p.vmem(f"buffer_load_dword {v(vd)}, {v(va)}, {srd(SWOUT)}, s{SA} offen")
    GTR, GPL = 236, 238
    def g_early(self, t):
        p = self.p
        p(f"s_lshr_b32 s{SA}, s{SWV}, 1")
        self.unit_tr_addr(self.GTR, SREG, t, True, flip_sreg=SA)
        p(f"s_lshl_b32 s{SA}, s{SJ}, 13\ns_add_u32 s{SA}, s{SA}, {ZF}\ns_lshl_b32 s{SB_}, s{SWV}, 11\ns_add_u32 s{SB_}, s{SB_}, s{SA}")
        self.poll_addr(self.GPL, [(SB_, 16)])
        p(f"s_lshl_b32 s{SA}, s{STB}, 8\ns_add_u32 s{SA}, s{SA}, {ZF}")
        p(f"v_bfe_u32 {v(t)}, {v(VL)}, 1, 3\nv_lshlrev_b32 {v(t)}, 13, {v(t)}\nv_and_b32 {v(t+1)}, 1, {v(VL)}\nv_lshl_add_u32 {v(t)}, {v(t+1)}, 7, {v(t)}\nv_add_u32 {v(t)}, s{SA}, {v(t)}")
        p(f"s_mov_b32 vcc_lo, 0xffff0000\ns_mov_b32 vcc_hi, 0\nv_cndmask_b32 {v(self.GPL)}, {v(self.GPL)}, {v(t)}, vcc")
        p(f"s_lshl_b32 s{SA}, s{SJ}, 6\ns_lshl_b32 s{SB_}, s{STB}, 1\ns_add_u32 s{SA}, s{SA}, s{SB_}\ns_and_b32 s{SB_}, s{SWV}, 1\ns_add_u32 s{SZI}, s{SA}, s{SB_}")
        p(f"s_lshl_b32 s{SA}, s{SZI}, 7\ns_add_u32 s{SA}, s{SA}, {Z1F}\nv_writelane_b32 {v(self.GPL)}, s{SA}, 32")
        p(f"s_lshl_b32 s{SA}, s{SJ}, 6\ns_lshl_b32 s{SB_}, s{SWV}, 4\ns_add_u32 s{SA}, s{SA}, s{SB_}\ns_mul_i32 s{SGB}, s{SA}, 5632\ns_add_u32 s{SGB}, s{SGB}, {Z2N}")
    def g_poll_issue(self):
        self.gp = self.p.vmem(f"buffer_load_dword {v(self.GPL+1)}, {v(self.GPL)}, {srd(SWS)}, 0 offen sc1")

    def phase_z(self):
        p = self.p; o = self.o
        ACC, FA, FB, XR, WR, XD, WD, T = 16, 64, 88, 96, 100, 104, 108, 112
        p.c("==== phase A: Z ====")
        self.plain_dma_addr(XD, 1024, T)
        p(f"s_lshl_b32 s{SXB}, s{SRB}, 17\ns_lshl_b32 s{SA}, s{SWV}, 15\ns_add_u32 s{SXB}, s{SXB}, s{SA}")
        p(f"s_mul_i32 s{SREG}, s{SWV}, 40960")
        tick = {}
        def xdma(st, cb=None):
            return [((SREG, (st & 3) * 4096) if i == 0 else None, (SXB, st * 128) if i == 0 else None,
                     f"buffer_load_dwordx4 {v(XD+i)}, {srd(SX)}, s{SDO} offen offset:{i*1024} lds", cb) for i in range(4)]
        def wdma(st, cb=None):
            return [((SWL, (st & 3) * 40960) if i == 0 else None, (SW1B, st * 64 * 2752) if i == 0 else None,
                     f"buffer_load_dwordx4 {v(WD+i)}, {srd(SW1)}, s{SDO} offen offset:{i*1024} lds", cb) for i in range(3)]
        def dma(st):
            def cb(t): tick[st] = t
            return self.dseq(wdma(st) + xdma(st, cb))
        self.w_dma_addr(WD, T, 1376)
        p(f"s_mul_i32 s{SW1B}, s{SWV}, {16*2752}\ns_mul_i32 s{SA}, s{SCOL}, 176\ns_add_u32 s{SW1B}, s{SW1B}, s{SA}")
        p(f"s_mul_i32 s{SWL}, s{SWV}, 3072\ns_add_u32 s{SWL}, s{SWL}, 16384\ns_mov_b32 s{SW1+2}, {512*2752}")
        p.wait_lg_all()
        p(f"s_mov_b64 {sp(SW1)}, {sp(PWIN)}")
        npro = o.get("npro", 3)
        self.code_prefetch(170, 171)
        self.pf1()
        self.run(dma(0))
        self.late_args()
        def setup():
            self.plain_read_addr(XR, SREG, T)
            self.w_tr_addr(WR, 16384, T)
            self.p(f"v_add_u32 {v(WR+1)}, 81920, {v(WR)}")
            self.wsp_setup(T)
            self.p(f"s_add_u32 s{SPB}, s{SREG}, 32768\ns_mov_b32 s{SPB+1}, s{SREG}\ns_add_u32 s{SPB+2}, s{SREG}, 8192\ns_add_u32 s{SPB+3}, s{SREG}, 16384\ns_add_u32 s{SPB+4}, s{SREG}, 24576")
            self.valid_masks()
        d = []
        for st in range(1, npro): d += dma(st)
        self.run(merge(self.cap(setup), d))
        self.pf1(2)
        self.epoch2()
        self.stamp(0)
        rt = {}
        def reads(n):
            st, ks = n // 4, n % 4; sl = st & 3; s = n & 1; ops = []
            def rb(): rt[(n, 'b')] = p.lds(f"ds_read_b128 {v(FB+4*s,4)}, {v(XR+ks)} offset:{sl*4096}")
            ops.append(rb)
            for mt in range(3):
                for a in range(2):
                    def ra(mt=mt, a=a):
                        rt[(n, mt)] = p.lds(f"ds_read_b64_tr_b16 {v(FA+12*s+4*mt+2*a,2)}, {v(WR+(sl>>1))} offset:{(sl&1)*40960+ks*3072+a*768+mt*64}")
                    ops.append(ra)
            return ops
        def mfmas(n):
            s = n & 1; ops = []
            for mt in range(3):
                def m(mt=mt):
                    p.wait(lg=rt[(n, mt)])
                    c = "0" if n == 0 else v(ACC + 16 * mt, 16)
                    p(f"{MF} {v(ACC+16*mt,16)}, {v(FA+12*s+4*mt,4)}, {v(FB+4*s,4)}, {c}")
                ops.append(m)
            return ops
        GX, GW, GU, GS, GT = 128, 144, 148, 156, 160
        gt = {}
        def gload():
            p(f"s_lshl_b32 s{SE}, s{SRB}, 2\ns_add_u32 s{SE}, s{SE}, s{SWV}\ns_lshl_b32 s{SE}, s{SE}, 3\ns_add_u32 s{SE}, s{SE}, s{SCOL}\ns_lshl_b32 s{SA}, s{SE}, 12")
            for r in range(4): p.vmem(f"buffer_load_dwordx4 {v(GX+4*r,4)}, {v(VL16)}, {srd(SX)}, s{SA} offen offset:{r*1024}")
            gt['t'] = p.vmem(f"global_load_dwordx4 {v(GW,4)}, {v(VL16)}, {sp(PGW)}")
        def gstore():
            p(f"s_lshl_b32 s{SA}, s{SE}, 4\ns_add_u32 s{SA}, s{SA}, {GATE}")
            p.vmem(f"buffer_store_dwordx4 {v(GS,4)}, {v(GT)}, {srd(SWS)}, s{SA} offen sc1")
        gops = [lambda: p.wait(vm=gt['t'])] + self.cap(lambda: self.gate(GX, GW, GU, GS, GT)) + [gstore]
        valu = {28: [gload]}
        def touch_u():
            p(f"v_lshlrev_b32 {v(170)}, 7, {v(VL)}\ns_lshr_b32 s{SB_}, s2, 3\ns_lshl_b32 s{SB_}, s{SB_}, 2\ns_add_u32 s{SB_}, s{SB_}, s{SWV}\ns_lshl_b32 s{SB_}, s{SB_}, 13")
            p(f"s_and_b32 s{SA}, s2, 7\ns_lshl_b32 s{SA}, s{SA}, 20\ns_add_u32 s{SA}, s{SA}, s{SB_}\ns_add_u32 s{SA}, s{SA}, {1<<19}")
            p.vmem(f"buffer_load_dword {v(171)}, {v(170)}, {srd(SWSP)}, s{SA} offen")
        if o.get("touchu"): valu[o["touchu"]] = [touch_u]
        def warm():
            p(f"v_lshlrev_b32 {v(170)}, 18, {v(VL)}\nv_lshlrev_b32 {v(172)}, 16, {v(VL)}\nv_lshlrev_b32 {v(173)}, 13, {v(VL)}")
            ls = [p.label("wm") for _ in range(4)]
            p(f"s_cmp_eq_u32 s{SWV}, 1\ns_cbranch_scc1 {ls[0]}\ns_cmp_eq_u32 s{SWV}, 2\ns_cbranch_scc1 {ls[1]}\ns_cmp_eq_u32 s{SWV}, 3\ns_cbranch_scc1 {ls[2]}")
            p(f"buffer_load_dword {v(171)}, {v(170)}, {srd(SWS)}, 0 offen sc1\ns_branch {ls[3]}")
            p.put(ls[0]); p(f"buffer_load_dword {v(171)}, {v(172)}, {srd(SOUT)}, 0 offen sc1\ns_branch {ls[3]}")
            p.put(ls[1]); p(f"buffer_load_dword {v(171)}, {v(173)}, {srd(SCRE)}, 0 offen\nbuffer_load_dword {v(171)}, {v(173)}, {srd(SCIM)}, 0 offen\ns_branch {ls[3]}")
            p.put(ls[2]); p(f"v_lshlrev_b32 {v(173)}, 14, {v(VL)}\nbuffer_load_dword {v(171)}, {v(173)}, {srd(SWOUT)}, 0 offen")
            p.put(ls[3])
        if o.get("warm"): valu[31] = [warm]
        def ztouch(part):
            if part == 0:
                p(f"v_lshlrev_b32 {v(174)}, 7, {v(VL)}\ns_lshr_b32 s{SB_}, s2, 3\ns_lshl_b32 s{SB_}, s{SB_}, 2\ns_add_u32 s{SB_}, s{SB_}, s{SWV}")
                p(f"s_and_b32 s{SA}, s2, 7\ns_lshl_b32 s{SPFP+1}, s{SB_}, 3\ns_add_u32 s{SPFP+1}, s{SPFP+1}, s{SA}")
                p(f"s_lshl_b32 s{SA}, s{SA}, 20\ns_lshl_b32 s{SB_}, s{SB_}, 13\ns_add_u32 s{SPFP}, s{SA}, s{SB_}")
                p.vmem(f"buffer_load_dword {v(175)}, {v(174)}, {srd(SWSP)}, s{SPFP} offen")
            if part == 1:
                p(f"s_add_u32 s{SPFP}, s{SPFP}, {1<<19}")
                p.vmem(f"buffer_load_dword {v(175)}, {v(174)}, {srd(SWSP)}, s{SPFP} offen")
            if part == 2:
                l = p.label("zt")
                p(f"s_cmp_ge_u32 s{SPFP+1}, 428\ns_cbranch_scc1 {l}")
                p(f"s_cmp_lt_u32 s{SPFP+1}, 128\ns_cselect_b64 {sp(SSTMP)}, {sp(SCRE)}, {sp(SCIM)}\ns_and_b32 s{SA}, s{SPFP+1}, 127")
                p(f"s_sub_u32 s{SB_}, s{SPFP+1}, 256\ns_cmp_ge_u32 s{SPFP+1}, 256\ns_cselect_b64 {sp(SSTMP)}, {sp(SWOUT)}, {sp(SSTMP)}\ns_cselect_b32 s{SA}, s{SB_}, s{SA}")
                p(f"s_lshl_b32 s{SA}, s{SA}, 12\nv_and_b32 {v(174)}, 4095, {v(174)}\nv_add_u32 {v(174)}, s{SA}, {v(174)}")
                p(f"global_load_dword {v(175)}, {v(174)}, {sp(SSTMP)}")
                p.put(l)
        if o.get("touch", 1) == 2:
            for k in range(3): valu.setdefault(o.get(f"zs{k}", [0, 0, 0][k]), []).append(lambda k=k: ztouch(k))
        else: self.paced(valu, 174, 175, o.get("zt0", 6), o.get("zdt", 6))
        self.gemm_loop(4, reads, mfmas, dma, tick, 2, npro, {o.get('ze0', 5): lambda: self.wsp_dma(0), o.get('ze1', 6): lambda: self.wsp_dma(1)}, valu)
        self.stamp(1)
        MA, MB = SK + 2, SK + 4
        GR, VLO = 72, 80
        def seg1b():
            p = self.p
            S0, S1, MU = 64, 66, 68
            p(f"v_pk_add_f32 {v(S0,2)}, {v(ACC,2)}, {v(ACC+2,2)}\nv_pk_add_f32 {v(S1,2)}, {v(ACC+4,2)}, {v(ACC+6,2)}")
            for i in range(4, 16):
                s = S0 if i % 2 == 0 else S1
                p(f"v_pk_add_f32 {v(s,2)}, {v(s,2)}, {v(ACC+2*i,2)}")
            for (m, b) in [(MA, 16), (MB, 20)]:
                p(f"s_mov_b64 exec, {sp(m)}")
                for i in range(b, b + 4):
                    s = S0 if i % 2 == 0 else S1
                    p(f"v_pk_add_f32 {v(s,2)}, {v(s,2)}, {v(ACC+2*i,2)}")
            p("s_mov_b64 exec, -1")
            p(f"v_pk_add_f32 {v(S0,2)}, {v(S0,2)}, {v(S1,2)}\nv_add_f32 {v(GR)}, {v(S0)}, {v(S0+1)}")
            p(f"v_mov_b32 {v(S0)}, {v(GR)}\nv_mov_b32 {v(GR+1)}, s{ST_T}\nv_mov_b32 {v(GR+3)}, s{ST_T}\nv_permlane32_swap_b32 {v(GR)}, {v(S0)}\nv_add_f32 {v(GR)}, {v(GR)}, {v(S0)}")
            p(f"v_mul_f32 {v(MU)}, s{SK+6}, {v(GR)}")
            D0, D1 = 76, 78
            def m2(i, first=False):
                d = D0 if i % 2 == 0 else D1; s = S0 if i % 2 == 0 else S1
                p(f"v_pk_add_f32 {v(d,2)}, {v(ACC+2*i,2)}, {v(MU,2)} op_sel_hi:[1,0] neg_lo:[0,1] neg_hi:[0,1]")
                if first: p(f"v_pk_mul_f32 {v(s,2)}, {v(d,2)}, {v(d,2)}")
                else: p(f"v_pk_fma_f32 {v(s,2)}, {v(d,2)}, {v(d,2)}, {v(s,2)}")
            for i in range(16): m2(i, i < 2)
            for (m, b) in [(MA, 16), (MB, 20)]:
                p(f"s_mov_b64 exec, {sp(m)}")
                for i in range(b, b + 4): m2(i)
            p("s_mov_b64 exec, -1")
            p(f"v_pk_add_f32 {v(S0,2)}, {v(S0,2)}, {v(S1,2)}\nv_add_f32 {v(GR+2)}, {v(S0)}, {v(S0+1)}")
            p(f"v_mov_b32 {v(S0)}, {v(GR+2)}\nv_cmp_gt_u32 vcc, 32, {v(VL)}")
            p(f"s_lshl_b32 s{SC}, s{SRB}, 2\ns_add_u32 s{SC}, s{SC}, s{SWV}")
            p(f"v_permlane32_swap_b32 {v(GR+2)}, {v(S0)}\nv_cndmask_b32 {v(VLO)}, {v(VOOB)}, {v(VL16)}, vcc\nv_add_f32 {v(GR+2)}, {v(GR+2)}, {v(S0)}")
            p(f"s_lshl_b32 s{SD}, s{SC}, 12\ns_add_u32 s{SD}, s{SD}, {ST}\ns_lshl_b32 s{SA}, s{SCOL}, 9\ns_add_u32 s{SA}, s{SA}, s{SD}")
        seg1 = self.cap(lambda: self.gelu_many([ACC + 2 * i for i in range(24)], [64, 68, 72, 76]))
        h = len(seg1) // 5
        f1 = self.wsp_dma(2) + [lambda: p("s_barrier")]
        f2 = self.wsp_dma(3) + self.wsp_dma(4)
        self.run(merge(seg1[:h], f1) + merge(seg1[h:], f2))
        seg1b()
        p.vmem(f"buffer_store_dwordx4 {v(GR,4)}, {v(VLO)}, {srd(SWS)}, s{SA} offen sc1")
        self.stamp(2)
        lgw = lambda: p.wait(lg=p.lg - 1)
        Q0, Q1, QA, QB = 112, 113, 114, 115
        MN, VR, N3, I3, TM = 80, 81, 82, 83, 84
        def misc():
            p = self.p
            self.g_early(120)
            p(f"v_lshrrev_b32 {v(Q1)}, 5, {v(VL)}\nv_lshlrev_b32 {v(Q1)}, 6, {v(Q1)}\nv_xor_b32 {v(Q0)}, {v(VL16)}, {v(Q1)}\nv_xor_b32 {v(Q1)}, 128, {v(Q0)}")
            p(f"v_cndmask_b32 {v(QA)}, {v(VOOB)}, {v(Q0)}, {sp(MA)}\nv_cndmask_b32 {v(QB)}, {v(VOOB)}, {v(Q1)}, {sp(MB)}")
            p(f"s_lshl_b32 s{SA}, s{SCOL}, 6\ns_add_u32 s{SC}, s{SA}, s{SC}\ns_mul_i32 s{SE}, s{SC}, 5632")
            self.flag_prep(118)
            p(f"v_cmp_gt_u32 vcc, 32, {v(VL)}\nv_mov_b32 {v(N3)}, {f2u(72.0)}\nv_mov_b32 {v(TM)}, {f2u(88.0)}\nv_mov_b32 {v(I3)}, {f2u(1/72)}\nv_mov_b32 {v(TM+1)}, {f2u(1/88)}")
            p(f"v_cndmask_b32 {v(N3)}, {v(N3)}, {v(TM)}, vcc\nv_cndmask_b32 {v(I3)}, {v(I3)}, {v(TM+1)}, vcc")
        za = o.get("za", 1)
        f = self.wsp_read(0) + self.wsp_read(1) + [lgw]
        for st in range(5, 5 + za): f += self.wsp_dma(st)
        self.run(merge(gops + self.cap(misc), f))
        self.stamp(3)
        SG = 64
        for q in range(4):
            ts = p.vmem(f"buffer_load_dwordx4 {v(SG+4*q,4)}, {v(VL16)}, {srd(SWS)}, s{SD} offen offset:{q*1024} sc1")
        for st in range(5 + za, 7): self.run(self.wsp_dma(st))
        l = p.label("sp"); dl = p.label("sd")
        p.wait(vm=ts)
        p(f"s_mov_b32 s{SSPIN}, 0")
        p.put(l)
        X0 = 116
        p(f"v_xor_b32 {v(MN)}, s{ST_T}, {v(SG+1)}\nv_xor_b32 {v(VR)}, s{ST_T}, {v(SG+3)}")
        for r in [5, 9, 13]:
            p(f"v_xor_b32 {v(X0)}, s{ST_T}, {v(SG+r)}\nv_xor_b32 {v(X0+1)}, s{ST_T}, {v(SG+r+2)}\nv_or3_b32 {v(MN)}, {v(MN)}, {v(X0)}, {v(X0+1)}")
        p(f"v_or_b32 {v(MN)}, {v(MN)}, {v(VR)}")
        p(f"v_cmp_ne_u32 vcc, 0, {v(MN)}\ns_cmp_eq_u64 vcc, 0\ns_cbranch_scc1 {dl}")
        for q in range(4):
            p(f"buffer_load_dwordx4 {v(SG+4*q,4)}, {v(VL16)}, {srd(SWS)}, s{SD} offen offset:{q*1024} sc1")
        p("s_waitcnt vmcnt(0)")
        p(f"s_add_u32 s{SSPIN}, s{SSPIN}, 1\ns_cmp_lt_u32 s{SSPIN}, {SPIN}\ns_cbranch_scc1 {l}")
        p.put(dl)
        self.stamp(4)
        p(f"v_add_f32 {v(MN)}, {v(SG)}, {v(SG+4)}\nv_add_f32 {v(TM+2)}, {v(SG+8)}, {v(SG+12)}\nv_add_f32 {v(MN)}, {v(MN)}, {v(TM+2)}")
        p(f"v_mov_b32 {v(TM+3)}, {v(MN)}\nv_add_f32 {v(VR)}, {v(SG+2)}, {v(SG+6)}\nv_add_f32 {v(TM+2)}, {v(SG+10)}, {v(SG+14)}")
        p(f"v_permlane32_swap_b32 {v(MN)}, {v(TM+3)}\nv_add_f32 {v(VR)}, {v(VR)}, {v(TM+2)}\nv_add_f32 {v(MN)}, {v(MN)}, {v(TM+3)}")
        p(f"v_mul_f32 {v(MN)}, {f2u(1/688)}, {v(MN)}")
        for q in range(4):
            n_, i_ = (TM, TM + 1) if q < 3 else (N3, I3)
            p(f"v_fma_f32 {v(TM+2)}, {v(SG+4*q)}, {v(i_)}, -{v(MN)}\nv_mul_f32 {v(TM+2)}, {v(TM+2)}, {v(TM+2)}\nv_fmac_f32 {v(VR)}, {v(TM+2)}, {v(n_)}")
        self.xhalf_sum(VR, TM)
        p(f"v_mov_b32 {v(TM)}, {f2u(1e-5)}\nv_fmac_f32 {v(TM)}, {f2u(1/688)}, {v(VR)}\nv_rsq_f32 {v(VR)}, {v(TM)}")
        p(f"s_add_u32 s{SA}, s{SE}, {Z2N}\ns_add_u32 s{SB_}, s{SA}, 4096")
        p(f"v_mul_f32 {v(MN)}, {v(MN)}, {v(VR)}")
        ZP = 88
        for u in range(6):
            mt, q = u >> 1, u & 1
            R4 = range(4 * u, 4 * u + 4)
            for i in R4: p(f"v_pk_fma_f32 {v(ACC+2*i,2)}, {v(ACC+2*i,2)}, {v(MN,2)}, {v(MN,2)} op_sel:[0,1,0] op_sel_hi:[1,1,0] neg_lo:[0,0,1] neg_hi:[0,0,1]")
            for i in R4: p(f"v_cvt_pk_bf16_f32 {v(ZP+i)}, {v(ACC+2*i)}, {v(ACC+2*i+1)}")
            r = v(ZP + 4 * u, 4)
            if mt < 2: t = p.vmem(f"buffer_store_dwordx4 {r}, {v(Q0+q)}, {srd(SWS)}, s{SA} offen offset:{mt*2048+q*1024} sc1")
            else: t = p.vmem(f"buffer_store_dwordx4 {r}, {v(QA+q)}, {srd(SWS)}, s{SB_} offen offset:{q*1024} sc1")
        p(f"s_lshl_b32 s{SE}, s{SC}, 7\ns_add_u32 s{SE}, s{SE}, {ZF}")
        for st in range(2, 5): self.run(self.wsp_read(st))
        p.wait(vm=t)
        self.flag(SE, 118)
        self.run([lgw] + self.wsp_dma(7))
        if o.get("touchc", 0): self.touch_c(170, 171)
        for st in range(5, 8): self.run(self.wsp_read(st))
        self.g_poll_issue()
        p(f"s_mov_b32 s{SLATE}, 0")
        self.stamp(5)
        p(f"s_branch {self.LG}")

    def phase_u(self):
        p = self.p; o = self.o
        ACC, ZA, FA, FB, FW, FX = 16, 80, 128, 144, 160, 184
        XR, BR, X1R, WR, XD, BD, WD, T = 192, 196, 200, 204, 206, 210, 214, 60
        p.c("==== phase A: U ====")
        p.put(self.LU)
        WT, WP = SK + 8, SK + 9
        p(f"v_lshrrev_b32 {v(T)}, 5, {v(VL)}\nv_lshlrev_b32 {v(T)}, 15, {v(T)}")
        p(f"v_bfe_u32 {v(T+1)}, {v(VL)}, 3, 1\nv_lshl_add_u32 {v(T)}, {v(T+1)}, 14, {v(T)}")
        p(f"v_bfe_u32 {v(T+1)}, {v(VL)}, 4, 1\nv_lshl_add_u32 {v(T)}, {v(T+1)}, 10, {v(T)}")
        self.plain_dma_addr2(XD, T, T + 1, 2048)
        p(f"s_lshr_b32 s{WP}, s{SWV}, 1\ns_and_b32 s{WT}, s{SWV}, 1\ns_lshl_b32 s{SA}, s{WT}, 5")
        for i in range(4): p(f"v_xor_b32 {v(XD+i)}, s{SA}, {v(XD+i)}")
        self.plain_dma_addr(BD, 1024, T)
        self.w_dma_addr(WD, T, 0)
        p(f"s_lshl_b32 s{SXB}, s{SRB}, 17\ns_lshl_b32 s{SD}, s{WP}, 16\ns_add_u32 s{SXB}, s{SXB}, s{SD}\ns_lshl_b32 s{SD}, s{WT}, 13\ns_add_u32 s{SXB}, s{SXB}, s{SD}")
        p(f"s_lshl_b32 s{SW1B}, s{SCOL}, 16\ns_lshl_b32 s{SD}, s{WT}, 15\ns_add_u32 s{SW1B}, s{SW1B}, s{SD}")
        p(f"s_lshl_b32 s{SXL}, s{SWV}, 12\ns_mov_b32 s{SW1+2}, 524288")
        SWIB = SCB
        p(f"s_mul_i32 s{SWIB}, s{SWV}, {16*2752}\ns_mul_i32 s{SA}, s{SCOL}, 176\ns_add_u32 s{SWIB}, s{SWIB}, s{SA}")
        p(f"s_mul_i32 s{SWL}, s{SWV}, 3072\ns_add_u32 s{SWL}, s{SWL}, 98304\ns_mov_b32 s{PWIN+2}, {512*2752}\ns_mov_b32 s{PWIN+3}, 0x20000")
        PR = 228
        p(f"s_lshl_b32 s{SD}, s{SRB}, 1\ns_add_u32 s{SD}, s{SD}, s{WT}")
        p(f"s_lshl_b32 s{SA}, s{SCOL}, 1\ns_add_u32 s{SA}, s{SA}, s{WP}")
        p(f"s_lshl_b32 s{SE}, s{SD}, 4\ns_add_u32 s{SE}, s{SE}, s{SA}")
        p(f"s_lshl_b32 s{SA}, s{SA}, 5\nv_and_b32 {v(T)}, 31, {v(VL)}\nv_add_lshl_u32 {v(T)}, {v(T)}, s{SA}, 1")
        p.wait_lg_all()
        p(f"s_cmp_eq_u32 s{WP}, 0\ns_cselect_b64 {sp(SW1)}, {sp(PBRE)}, {sp(PBIM)}")
        tick = {}
        def dma(st):
            sl = st % 3; items = []
            def cb(t): tick[st] = t
            for i in range(3):
                items.append(((SWL, sl * 12288) if i == 0 else None, (SWIB, st * 64 * 2752) if i == 0 else None,
                              f"buffer_load_dwordx4 {v(WD+i)}, {srd(PWIN)}, s{SDO} offen offset:{i*1024} lds", None))
            for (vd, sr, sb, lb) in [(XD, SX, SXB, 0), (BD, SW1, SW1B, 49152)]:
                for i in range(4):
                    items.append(((SXL, lb + sl * 16384) if i == 0 else None, (sb, st * 128) if i == 0 else None,
                                  f"buffer_load_dwordx4 {v(vd+i)}, {srd(sr)}, s{SDO} offen offset:{i*1024} lds", cb))
            return self.dseq(items)
        self.pf1()
        self.run(dma(0))
        p.vmem(f"global_load_ushort {v(PR)}, {v(T)}, {sp(PLRE)}")
        p.vmem(f"global_load_ushort {v(PR+1)}, {v(T)}, {sp(PLIM)}")
        tp = p.vmem(f"global_load_ushort {v(PR+2)}, {v(T)}, {sp(PLDT)}")
        npro = o.get("npro_u", 2)
        self.late_args()
        def setup():
            p = self.p
            p(f"s_mul_i32 s{SREG}, s{SWV}, 40960\ns_lshl_b32 s{SA}, s{WT}, 13")
            self.plain_read_addr(XR, SA, T)
            p(f"s_lshl_b32 s{SA}, s{WP}, 12\ns_add_u32 s{SA}, s{SA}, 49152")
            self.plain_read_addr(BR, SA, T)
            self.w_tr_addr(WR, 98304, T)
            p(f"v_bfe_u32 {v(T)}, {v(VL)}, 3, 1\nv_lshlrev_b32 {v(T+1)}, 12, {v(T)}\nv_xor_b32 {v(T)}, s{WT}, {v(T)}\nv_lshlrev_b32 {v(T)}, 1, {v(T)}")
            p(f"v_bfe_u32 {v(T+2)}, {v(VL)}, 1, 2\nv_lshl_add_u32 {v(T+1)}, {v(T+2)}, 10, {v(T+1)}")
            p(f"v_and_b32 {v(T+2)}, 1, {v(T+2)}\nv_lshl_add_u32 {v(T)}, {v(T+2)}, 2, {v(T)}")
            p(f"v_and_b32 {v(T+2)}, 1, {v(VL)}\nv_lshl_add_u32 {v(T+1)}, {v(T+2)}, 8, {v(T+1)}\nv_or_b32 {v(T)}, {v(T)}, {v(T+2)}")
            p(f"v_bfe_u32 {v(T+2)}, {v(VL)}, 4, 1\nv_lshl_add_u32 {v(T+1)}, {v(T+2)}, 7, {v(T+1)}")
            p(f"s_lshl_b32 s{SA}, s{WP}, 13\ns_lshl_b32 s{SB_}, s{WT}, 9\ns_add_u32 s{SA}, s{SA}, s{SB_}\nv_add_u32 {v(T+1)}, s{SA}, {v(T+1)}")
            p(f"v_lshrrev_b32 {v(T+2)}, 5, {v(VL)}\nv_xor_b32 {v(T)}, {v(T)}, {v(T+2)}\nv_lshlrev_b32 {v(T)}, 4, {v(T)}")
            for ks in range(4): p(f"v_xor_b32 {v(X1R+ks)}, {32*ks}, {v(T)}\nv_add_u32 {v(X1R+ks)}, {v(X1R+ks)}, {v(T+1)}")
            self.wsp_setup(T)
            p(f"s_lshl_b32 s{SPB+1}, s{WT}, 13\ns_mul_i32 s{SA}, s{WP}, 49152\ns_add_u32 s{SPB+1}, s{SPB+1}, s{SA}\ns_add_u32 s{SPB}, s{SPB+1}, 32768\ns_add_u32 s{SPB+2}, s{SPB+1}, 16384")
            p(f"s_lshl_b32 s{SA}, s{SWV}, 13\ns_add_u32 s{SPB+3}, s{SA}, {13*8192}\ns_add_u32 s{SPB+4}, s{SA}, {17*8192}")
            p.atom(f"s_cmp_eq_u32 s{SWV}, 3\ns_cselect_b32 s{SPB+4}, {12*8192}, s{SPB+4}")
            self.valid_masks()
        self.run(merge(self.cap(setup), dma(1) + (dma(2) if npro > 2 else [])))
        LB, CF, L16, L128, L256, LQ0, LQ1 = 218, 220, 222, 224, 226, 228, 230
        X0, X1, X2, X3 = 232, 233, 234, 235
        L32, L64 = 236, 238
        def csq(d, s):
            p = self.p
            p(f"v_mul_f32 {v(X0)}, {v(s+1)}, {v(s+1)}\nv_add_f32 {v(X1)}, {v(s)}, {v(s)}")
            p(f"v_mul_f32 {v(d+1)}, {v(X1)}, {v(s+1)}\nv_fma_f32 {v(d)}, {v(s)}, {v(s)}, -{v(X0)}")
        def cmul(d, a, b):
            p = self.p
            p(f"v_mul_f32 {v(X0)}, {v(a+1)}, {v(b+1)}\nv_mul_f32 {v(X1)}, {v(a+1)}, {v(b)}")
            p(f"v_fma_f32 {v(X0)}, {v(a)}, {v(b)}, -{v(X0)}\nv_fma_f32 {v(d+1)}, {v(a)}, {v(b+1)}, {v(X1)}\nv_mov_b32 {v(d)}, {v(X0)}")
        def cfma(d, a, b, c):
            p = self.p
            p(f"v_fma_f32 {v(X0)}, {v(a)}, {v(b)}, {v(c)}\nv_fma_f32 {v(X1)}, {v(a)}, {v(b+1)}, {v(c+1)}")
            p(f"v_fma_f32 {v(X0)}, -{v(a+1)}, {v(b+1)}, {v(X0)}\nv_fma_f32 {v(d+1)}, {v(a+1)}, {v(b)}, {v(X1)}\nv_mov_b32 {v(d)}, {v(X0)}")
        def params():
            p = self.p
            p(f"v_lshlrev_b32 {v(PR)}, 16, {v(PR)}\nv_lshlrev_b32 {v(PR+1)}, 16, {v(PR+1)}\nv_lshlrev_b32 {v(PR+2)}, 16, {v(PR+2)}")
            p(f"v_mul_f32 {v(X0)}, {f2u(LOG2E)}, {v(PR+2)}\nv_exp_f32 {v(X0)}, {v(X0)}"); self.rnd(X0, X0)
            p(f"v_mul_f32 {v(X1)}, {v(X0)}, {v(PR)}\nv_mul_f32 {v(X2)}, {v(X0)}, {v(PR+1)}")
            p(f"v_mul_f32 {v(X1)}, {f2u(LOG2E)}, {v(X1)}\nv_exp_f32 {v(X1)}, {v(X1)}")
            p(f"v_mul_f32 {v(X2)}, {f2u(1/(2*math.pi))}, {v(X2)}\nv_fract_f32 {v(X2)}, {v(X2)}")
            p(f"v_cos_f32 {v(X3)}, {v(X2)}\nv_sin_f32 {v(X2)}, {v(X2)}")
            p(f"v_mul_f32 {v(X0)}, {v(PR)}, {v(PR)}")
            p(f"v_mul_f32 {v(LB)}, {v(X1)}, {v(X3)}\nv_mul_f32 {v(LB+1)}, {v(X1)}, {v(X2)}")
            p(f"v_fmac_f32 {v(X0)}, {v(PR+1)}, {v(PR+1)}\nv_rcp_f32 {v(X0)}, {v(X0)}")
            p(f"v_add_f32 {v(X1)}, -1.0, {v(LB)}\nv_add_f32 {v(X0)}, {v(X0)}, {v(X0)}")
            p(f"v_mul_f32 {v(X2)}, {v(X1)}, {v(PR)}\nv_fmac_f32 {v(X2)}, {v(LB+1)}, {v(PR+1)}\nv_mul_f32 {v(CF)}, {v(X2)}, {v(X0)}")
            p(f"v_mul_f32 {v(X2)}, {v(LB+1)}, {v(PR)}\nv_fma_f32 {v(X2)}, -{v(X1)}, {v(PR+1)}, {v(X2)}\nv_mul_f32 {v(CF+1)}, {v(X2)}, {v(X0)}")
            csq(L16, LB); csq(L16, L16); csq(L16, L16); csq(L16, L16)
            csq(L32, L16); csq(L64, L32); csq(L128, L64); csq(L256, L128)
            p.atom(f"s_cmp_eq_u32 s{WT}, 0\ns_cselect_b64 vcc, -1, 0")
            p(f"v_cndmask_b32 {v(L64)}, {v(L64)}, 1.0, vcc\nv_cndmask_b32 {v(L64+1)}, {v(L64+1)}, 0, vcc")
            p(f"v_cmp_gt_u32 vcc, 32, {v(VL)}\nv_cndmask_b32 {v(LQ0)}, {v(L32)}, 1.0, vcc\nv_cndmask_b32 {v(LQ0+1)}, {v(L32+1)}, 0, vcc")
            cmul(LQ0, LQ0, L64); cmul(LQ1, LQ0, L16)
        self.pf1(2)
        self.epoch2()
        self.stamp(0)
        pops = [lambda: p.wait(vm=tp)] + self.cap(params)
        valu = {}
        q = (len(pops) + 15) // 16
        for i in range(16): valu[8 + i] = pops[i * q:(i + 1) * q]
        self.paced(valu, 217, 205, o.get("ut0", 4), o.get("udt", 4))
        rt = {}
        def reads(n):
            st, ks = n // 4, n % 4; sl = st % 3; s = n & 1; ops = []
            for k in range(2):
                def ra(k=k): rt[(n, 'a', k)] = p.lds(f"ds_read_b128 {v(FA+8*s+4*k,4)}, {v(XR+(ks^k))} offset:{sl*16384+k*4096}")
                def rb(k=k): rt[(n, 'b', k)] = p.lds(f"ds_read_b128 {v(FB+8*s+4*k,4)}, {v(BR+ks)} offset:{sl*16384+k*8192}")
                ops += [ra, rb]
            def rx(): p.lds(f"ds_read_b128 {v(FX+4*s,4)}, {v(X1R+ks)} offset:{sl*16384}")
            ops.append(rx)
            for mt in range(3):
                for a in range(2):
                    def rw(mt=mt, a=a):
                        rt[(n, 'w', mt)] = p.lds(f"ds_read_b64_tr_b16 {v(FW+12*s+4*mt+2*a,2)}, {v(WR)} offset:{sl*12288+ks*3072+a*768+mt*64}")
                    ops.append(rw)
            return ops
        def mfmas(n):
            s = n & 1; ops = []
            for (mt, cp) in [(0, 0), (1, 0), (1, 1), (0, 1)]:
                def m(mt=mt, cp=cp):
                    if (mt, cp) == (0, 0): p.wait(lg=rt[(n, 'b', 1)])
                    d = v(ACC + 32 * mt + 16 * cp, 16)
                    p(f"{MF} {d}, {v(FA+8*s+4*mt,4)}, {v(FB+8*s+4*cp,4)}, {'0' if n == 0 else d}")
                ops.append(m)
            for mt in range(3):
                def m(mt=mt):
                    if mt == 0: p.wait(lg=rt[(n, 'w', 2)])
                    d = v(ZA + 16 * mt, 16)
                    p(f"{MF} {d}, {v(FW+12*s+4*mt,4)}, {v(FX+4*s,4)}, {'0' if n == 0 else d}")
                ops.append(m)
            return ops
        self.gemm_loop(3, reads, mfmas, dma, tick, 5, npro, {6: lambda: self.wsp_dma(0), 7: lambda: self.wsp_dma(1)}, valu)
        self.stamp(1)
        def U(sg, cp): return ACC + 32 * (sg >> 3) + 16 * cp + 4 * ((sg & 7) >> 1) + 2 * (sg & 1)
        def step(hr, hi, sg, nr, ni, t0, t1):
            p = self.p; A = v(LB, 2)
            p(f"v_pk_fma_f32 {v(t0,2)}, {A}, {v(hr,2)}, {v(U(sg,0),2)} op_sel_hi:[0,1,1]")
            p(f"v_pk_fma_f32 {v(t1,2)}, {A}, {v(hi,2)}, {v(U(sg,1),2)} op_sel_hi:[0,1,1]")
            p(f"v_pk_fma_f32 {v(nr,2)}, {A}, {v(hi,2)}, {v(t0,2)} op_sel:[1,0,0] op_sel_hi:[1,1,1] neg_lo:[1,0,0] neg_hi:[1,0,0]")
            p(f"v_pk_fma_f32 {v(ni,2)}, {A}, {v(hr,2)}, {v(t1,2)} op_sel:[1,0,0] op_sel_hi:[1,1,1]")
        HA, HBb, T0, EX, E8, AD, GR, CQ = 128, 132, 136, 140, 144, 160, 164, 168
        SCR = 98304
        p(f"s_lshl_b32 s{SA}, s{WP}, 11\ns_add_u32 s{SA}, s{SA}, {SCR}")
        p(f"v_and_b32 {v(AD)}, 31, {v(VL)}\nv_lshlrev_b32 {v(AD)}, 6, {v(AD)}\nv_add_u32 {v(AD)}, s{SA}, {v(AD)}")
        p(f"v_lshrrev_b32 {v(AD+1)}, 5, {v(VL)}\nv_lshl_add_u32 {v(AD+1)}, {v(AD+1)}, 4, {v(AD)}\ns_lshl_b32 s{SA}, s{WT}, 5\nv_add_u32 {v(AD+1)}, s{SA}, {v(AD+1)}")
        Z1P = 192
        SZ0, SZ1 = SXL, SWL
        VA_ = 176
        MA, MB = SK + 2, SK + 4
        def z1st(u):
            mt, q = u >> 1, u & 1
            for i in range(4): p(f"v_cvt_pk_bf16_f32 {v(Z1P+4*u+i)}, {v(ZA+8*u+2*i)}, {v(ZA+8*u+2*i+1)}")
            r = v(Z1P + 4 * u, 4)
            if mt < 2: p.vmem(f"buffer_store_dwordx4 {r}, {v(VL16)}, {srd(SWS)}, s{SZ0} offen offset:{mt*2048+q*1024} sc1")
            else: p.vmem(f"buffer_store_dwordx4 {r}, {v(VA_+q)}, {srd(SWS)}, s{SZ1} offen offset:{q*1024} sc1")
        p(f"s_lshl_b32 s{SA}, s{SCOL}, 6\ns_lshl_b32 s{SB_}, s{SRB}, 2\ns_add_u32 s{SA}, s{SA}, s{SB_}\ns_add_u32 s{SA}, s{SA}, s{SWV}\ns_mul_i32 s{SA}, s{SA}, 5632")
        p(f"s_add_u32 s{SZ0}, s{SA}, {Z1}\ns_add_u32 s{SZ1}, s{SZ0}, 4096")
        p(f"v_cndmask_b32 {v(VA_)}, {v(VOOB)}, {v(VL16)}, {sp(MA)}\nv_cndmask_b32 {v(VA_+1)}, {v(VOOB)}, {v(VL16)}, {sp(MB)}")
        zs = [(lambda u=u: z1st(u)) for u in range(6)]
        self.run(zs[:2])
        p("s_barrier")
        def pass1():
            hr, hi = U(0, 0), U(0, 1)
            for sg in range(1, 16):
                nr, ni = (HA, HA + 2) if sg & 1 else (HBb, HBb + 2)
                step(hr, hi, sg, nr, ni, T0, T0 + 2)
                hr, hi = nr, ni
            self.p(f"v_mov_b32 {v(EX)}, {v(hr)}\nv_mov_b32 {v(EX+1)}, {v(hi)}\nv_mov_b32 {v(EX+2)}, {v(hr+1)}\nv_mov_b32 {v(EX+3)}, {v(hi+1)}")
        d2 = self.wsp_dma(2) + self.wsp_dma(3)
        self.run(merge(merge(self.cap(pass1), zs[2:]), d2[:7]))
        p.lds(f"ds_write_b128 {v(AD+1)}, {v(EX,4)}")
        p.wait_lg_all(); p("s_barrier")
        for i in range(4): p.lds(f"ds_read_b128 {v(E8+4*i,4)}, {v(AD)} offset:{16*i}")
        te = p.lg - 1
        self.run(d2[7:11])
        p(f"s_cmp_eq_u32 s{WT}, 0\ns_cselect_b32 s{SA}, 32, 0")
        p(f"v_cmp_gt_u32 vcc, s{SA}, {v(VL)}\nv_mov_b32 {v(GR+1)}, s{ST_T}\nv_mov_b32 {v(GR+3)}, s{ST_T}\nv_cndmask_b32 {v(T0)}, {v(VOOB)}, {v(VL16)}, vcc")
        p(f"s_lshl_b32 s{SC}, s{SCOL}, 14\ns_lshl_b32 s{SA}, s{WP}, 9\ns_add_u32 s{SC}, s{SC}, s{SA}\ns_add_u32 s{SC}, s{SC}, {EG}")
        p(f"s_lshl_b32 s{SA}, s{SRB}, 10\ns_add_u32 s{SA}, s{SA}, s{SC}")
        p.wait(lg=te); p("s_barrier")
        self.run(merge(self.cap(lambda: [cfma(E8 + 2 * q, L16, E8 + 2 * (q - 1), E8 + 2 * q) for q in range(1, 8)]), d2[11:15]))
        p(f"v_mov_b32 {v(GR)}, {v(E8+14)}\nv_mov_b32 {v(GR+2)}, {v(E8+15)}")
        p.vmem(f"buffer_store_dwordx4 {v(GR,4)}, {v(T0)}, {srd(SWS)}, s{SA} offen sc1")
        self.run(d2[15:])
        self.stamp(2)
        p(f"v_cmp_gt_u32 vcc, 32, {v(VL)}")
        w1 = p.label("w1"); w2 = p.label("w2")
        p(f"s_cmp_eq_u32 s{WT}, 0\ns_cbranch_scc0 {w1}")
        p(f"v_cndmask_b32 {v(CQ)}, {v(E8+2)}, 0, vcc\nv_cndmask_b32 {v(CQ+1)}, {v(E8+3)}, 0, vcc")
        p(f"v_cndmask_b32 {v(CQ+2)}, {v(E8+4)}, {v(E8)}, vcc\nv_cndmask_b32 {v(CQ+3)}, {v(E8+5)}, {v(E8+1)}, vcc")
        p(f"s_branch {w2}")
        p.put(w1)
        for k in range(4): p(f"v_cndmask_b32 {v(CQ+k)}, {v(E8+10+k)}, {v(E8+6+k)}, vcc")
        p.put(w2)
        Z1P = 192
        EGR, EO, EXP, ET = 80, 144, 152, 160
        def eo():
            p = self.p
            p(f"v_lshrrev_b32 {v(ET)}, 5, {v(VL)}\nv_sub_u32 {v(ET)}, s{SRB}, {v(ET)}\nv_add_u32 {v(ET)}, -1, {v(ET)}")
            p(f"v_and_b32 {v(ET+1)}, 31, {v(VL)}\nv_lshlrev_b32 {v(ET+1)}, 4, {v(ET+1)}\nv_mov_b32 {v(ET+3)}, s{ST_T}")
            for q in range(8):
                p(f"v_add_u32 {v(ET+2)}, {-2*q}, {v(ET)}\nv_cmp_le_i32 vcc, 0, {v(ET+2)}\nv_lshl_add_u32 {v(ET+2)}, {v(ET+2)}, 10, {v(ET+1)}")
                p(f"v_cndmask_b32 {v(EO+q)}, {v(VOOB)}, {v(ET+2)}, vcc\nv_cndmask_b32 {v(EXP+q)}, 0, {v(ET+3)}, vcc")
        lgw = lambda: p.wait(lg=p.lg - 1)
        self.run(merge(self.cap(lambda: (eo(), self.g_early(184))), self.wsp_dma(4) + self.wsp_read(0) + self.wsp_read(1)))
        et = {}
        def eload(q):
            et['t'] = p.vmem(f"buffer_load_dwordx4 {v(EGR+4*q,4)}, {v(EO+q)}, {srd(SWS)}, s{SC} offen sc1")
        for q in range(8): eload(q)
        self.run([lgw] + self.wsp_dma(5))
        self.stamp(3)
        l = p.label("ep"); dl = p.label("ed")
        p.wait(vm=et['t'])
        p(f"s_mov_b32 s{SSPIN}, 0")
        p.put(l)
        p(f"v_mov_b32 {v(ET)}, 0")
        for q in range(8):
            p(f"v_xor_b32 {v(ET+1)}, {v(EXP+q)}, {v(EGR+4*q+1)}\nv_xor_b32 {v(ET+2)}, {v(EXP+q)}, {v(EGR+4*q+3)}\nv_or3_b32 {v(ET)}, {v(ET)}, {v(ET+1)}, {v(ET+2)}")
        p(f"v_cmp_ne_u32 vcc, 0, {v(ET)}\ns_cmp_eq_u64 vcc, 0\ns_cbranch_scc1 {dl}")
        for q in range(8): p(f"buffer_load_dwordx4 {v(EGR+4*q,4)}, {v(EO+q)}, {srd(SWS)}, s{SC} offen sc1")
        p("s_waitcnt vmcnt(0)")
        p(f"s_add_u32 s{SSPIN}, s{SSPIN}, 1\ns_cmp_lt_u32 s{SSPIN}, {SPIN}\ns_cbranch_scc1 {l}")
        p.put(dl)
        self.flag_prep(178)
        p(f"s_lshl_b32 s{SA}, s{SCOL}, 6\ns_lshl_b32 s{SB_}, s{SRB}, 2\ns_add_u32 s{SA}, s{SA}, s{SB_}\ns_add_u32 s{SA}, s{SA}, s{SWV}\ns_lshl_b32 s{SA}, s{SA}, 7\ns_add_u32 s{SA}, s{SA}, {Z1F}")
        self.flag(SA, 178)
        self.stamp(4)
        OP, OT, HO = 80, 144, 132
        MA, MB = SK + 2, SK + 4
        SH0, SH1 = SXB, SW1B
        def pass2a():
            p = self.p
            p(f"s_lshl_b32 s{SA}, s{SD}, 3\ns_add_u32 s{SA}, s{SA}, s{SCOL}\ns_lshl_b32 s{SA}, s{SA}, 14\ns_lshl_b32 s{SB_}, s{WP}, 12\ns_add_u32 s{SA}, s{SA}, s{SB_}")
            p(f"s_add_u32 s{SH0}, s{SA}, {HB}\ns_add_u32 s{SH1}, s{SH0}, 8192")
            p(f"v_lshrrev_b32 {v(T0)}, 5, {v(VL)}\nv_lshlrev_b32 {v(T0)}, 11, {v(T0)}\nv_and_b32 {v(T0+1)}, 31, {v(VL)}\nv_lshl_add_u32 {v(HO)}, {v(T0+1)}, 4, {v(T0)}")
            for k in range(1, 4): p(f"v_xor_b32 {v(HO+k)}, {64*k}, {v(HO)}")
            for q in range(8): p(f"v_mov_b32 {v(EGR+4*q+1)}, {v(EGR+4*q+2)}")
            S = EGR + 28
            for q in range(6, -1, -1): cfma(S, L256, S, EGR + 4 * q)
            p(f"v_mov_b32 {v(ET)}, {v(S)}\nv_mov_b32 {v(ET+1)}, {v(S+1)}\nv_permlane32_swap_b32 {v(S)}, {v(ET)}\nv_permlane32_swap_b32 {v(S+1)}, {v(ET+1)}")
            cfma(S, L128, ET, S)
            cfma(CQ, LQ0, S, CQ); cfma(CQ + 2, LQ1, S, CQ + 2)
            p(f"v_mov_b32 {v(HA)}, {v(CQ)}\nv_mov_b32 {v(HA+1)}, {v(CQ+2)}\nv_mov_b32 {v(HA+2)}, {v(CQ+1)}\nv_mov_b32 {v(HA+3)}, {v(CQ+3)}")
        def pass2(s0, s1):
            p = self.p
            Cc = v(CF, 2)
            for sg in range(s0, s1):
                hr, hi = (HA, HA + 2) if sg == 0 else (U(sg - 1, 0), U(sg - 1, 1))
                step(hr, hi, sg, U(sg, 0), U(sg, 1), T0, T0 + 2)
                hr, hi = U(sg, 0), U(sg, 1)
                oo = OT + 4 * (sg & 1) + 8 * ((sg >> 1) & 1)
                p(f"v_pk_mul_f32 {v(oo,2)}, {Cc}, {v(hr,2)} op_sel_hi:[0,1]")
                p(f"v_pk_mul_f32 {v(oo+2,2)}, {Cc}, {v(hi,2)} op_sel_hi:[0,1] neg_lo:[1,0] neg_hi:[1,0]")
                p(f"v_pk_fma_f32 {v(oo,2)}, {Cc}, {v(hi,2)}, {v(oo,2)} op_sel:[1,0,0] op_sel_hi:[1,1,1] neg_lo:[1,0,0] neg_hi:[1,0,0]")
                p(f"v_pk_fma_f32 {v(oo+2,2)}, {Cc}, {v(hr,2)}, {v(oo+2,2)} op_sel:[1,0,0] op_sel_hi:[1,1,1] neg_lo:[1,0,0] neg_hi:[1,0,0]")
                if sg & 1:
                    q, i = sg >> 3, (sg & 7) >> 1
                    for cp in range(2):
                        for e in range(2):
                            p(f"v_cvt_pk_bf16_f32 {v(OP+16*cp+8*e+4*q+i)}, {v(oo-4+2*cp+e)}, {v(oo+2*cp+e)}")
        def hst(cp, k):
            if o.get("x_nost"): return
            p.vmem(f"buffer_store_dwordx4 {v(OP+16*cp+4*k,4)}, {v(HO+k)}, {srd(SWS)}, s{SH0 if cp == 0 else SH1} offen offset:{512*k} sc1")
        self.run(merge(self.cap(pass2a), self.wsp_dma(6) + self.wsp_read(2) + [lgw]))
        self.run(merge(self.cap(lambda: pass2(0, 8)), self.wsp_dma(7) + self.wsp_read(3)))
        self.run(merge(merge(self.cap(lambda: pass2(8, 16)), [(lambda cp=cp, k=k: hst(cp, k)) for k in (0, 2) for cp in range(2)]), self.wsp_read(4) + self.wsp_read(5)))
        self.g_poll_issue()
        h2 = [(lambda cp=cp, k=k: hst(cp, k)) for k in (1, 3) for cp in range(2)]
        self.run(merge(self.wsp_read(6) + self.wsp_read(7), h2))
        p(f"s_lshl_b32 s{SLATE}, s{SE}, 7\ns_add_u32 s{SLATE}, s{SLATE}, {HF}")
        self.stamp(5)

    def phase_g(self):
        p = self.p; o = self.o
        p.c("==== phase B: G ====")
        p.put(self.LG)
        p.vm_done = -1; p.lg_done = -1
        ACC, FA, TR, T = 16, 112, self.GTR, 186
        Z1R, BI, PV, WD, PL, PL2, PL3 = 190, 202, 203, self.WD, self.GPL, 222, 234
        NT, Q = SK + 8, SK + 9
        p(f"s_mov_b32 s{SCOL}, s{SJ}")
        def late_setup():
            p = self.p
            p(f"s_lshl_b32 s{SE}, s{STB}, 11\ns_add_u32 s{SE}, s{SE}, {HF}")
            self.poll_addr(PL3, [(SE, 16)])
            self.flag_prep(220)
            p(f"v_lshrrev_b32 {v(T)}, 3, {v(VL)}\nv_lshlrev_b32 {v(T)}, 10, {v(T)}")
            p(f"v_bfe_u32 {v(T+1)}, {v(VL)}, 4, 1\nv_lshlrev_b32 {v(T+1)}, 2, {v(T+1)}\nv_and_b32 {v(T+2)}, 7, {v(VL)}\nv_xor_b32 {v(T+1)}, {v(T+1)}, {v(T+2)}")
            p(f"v_lshl_add_u32 {v(WD)}, {v(T+1)}, 4, {v(T)}")
            for i in range(1, 4): p(f"v_add_u32 {v(WD+i)}, {i*7168}, {v(WD)}")
            p(f"s_mul_i32 s{SXB}, s{SWV}, {176*1024}\ns_lshl_b32 s{SA}, s{SCOL}, 7\ns_add_u32 s{SXB}, s{SXB}, s{SA}")
            self.c_setup()
            self.panel_tr_addr(228, SREG, 224, False)
        p(f"s_and_b32 s{NT}, s{SWV}, 1\ns_lshr_b32 s{Q}, s{SWV}, 1")
        p(f"s_lshl_b32 s{SC}, s{STB}, 1\ns_add_u32 s{SC}, s{SC}, s{NT}")
        p.atom(f"s_cmp_lt_u32 s{SCOL}, 7\ns_cselect_b32 s{SD}, 64, 32")
        p(f"s_lshl_b32 s{SF}, s{Q}, 5\ns_sub_u32 s{SD}, s{SD}, s{SF}")
        p(f"v_cmp_gt_u32 vcc, s{SD}, {v(VL)}\nv_and_b32 {v(T)}, 31, {v(VL)}\ns_lshl_b32 s{SA}, s{SC}, 5\nv_cndmask_b32 {v(PV)}, {v(VOOB)}, {v(VL16)}, vcc")
        p(f"v_add_lshl_u32 {v(T)}, {v(T)}, s{SA}, 1")
        p.vmem(f"global_load_ushort {v(BI)}, {v(T)}, {sp(PBSP)}")
        p(f"s_mul_i32 s{SD}, s{SZI}, 5632\ns_lshl_b32 s{SB_}, s{Q}, 10\ns_add_u32 s{SD}, s{SD}, s{SB_}\ns_add_u32 s{SD}, s{SD}, {Z1}\ns_add_u32 s{SE}, s{SD}, 4096")
        p(f"v_and_b32 {v(PL2)}, 31, {v(VL)}\nv_lshlrev_b32 {v(PL2)}, 2, {v(PL2)}")
        p.wait_lg_all(); p("s_barrier")
        self.stamp(6)
        l = p.label("gp"); dn = p.label("gd")
        p("s_waitcnt vmcnt(5)")
        p(f"s_cmp_lg_u32 s{SLATE}, 0\ns_cbranch_scc1 {l}\ns_waitcnt vmcnt(0)")
        p.put(l)
        p(f"v_cmp_ne_u32 vcc, s{ST_T}, {v(PL+1)}\ns_and_b32 vcc_hi, vcc_hi, 1\ns_or_b32 s{SF}, vcc_lo, vcc_hi\ns_cbranch_scc0 {dn}")
        self.poll(PL, 33)
        p.put(dn)
        g0 = p.vm
        def late_flag():
            nf = p.label("nf")
            p(f"s_cmp_eq_u32 s{SLATE}, 0\ns_cbranch_scc1 {nf}")
            p(f"s_waitcnt vmcnt({p.vm - g0})")
            p(f"buffer_store_dword {v(220)}, {v(221)}, {srd(SWS)}, s{SLATE} offen sc1")
            p.put(nf)
        p.vm_done = -1
        self.stamp(7)
        tick = {}
        def dma(B):
            sl = B % 3; items = []
            for i in range(11):
                def cb(t, i=i): tick[(B, i)] = t
                g = i // 4
                items.append(((SREG, sl * 11264 + g * 4096) if i % 4 == 0 else None, (SGB, B * 11264 + g * 4096) if i % 4 == 0 else None,
                              f"buffer_load_dwordx4 {v(VL16)}, {srd(SWS)}, s{SDO} offen offset:{(i%4)*1024} {o.get('gmod', 'sc1')} lds", cb))
            return self.dseq(items)
        d0 = dma(0) + dma(1) + dma(2)
        kpro = o.get("gpro", 22)
        p.vmem(f"buffer_load_dwordx4 {v(Z1R,4)}, {v(VL16)}, {srd(SWS)}, s{SD} offen sc1")
        p.vmem(f"buffer_load_dwordx4 {v(Z1R+4,4)}, {v(VL16)}, {srd(SWS)}, s{SD} offen offset:2048 sc1")
        tz1 = p.vmem(f"buffer_load_dwordx4 {v(Z1R+8,4)}, {v(PV)}, {srd(SWS)}, s{SE} offen sc1")
        k0 = o.get("gk0", 10)
        self.run(merge(self.cap(late_setup), d0[:k0], 0, 40))
        p(f"s_lshl_b32 s{SA}, s{STB}, 8\ns_add_u32 s{SA}, s{SA}, {GATE}")
        p.vmem(f"buffer_load_dword {v(self.GY)}, {v(PL2)}, {srd(SWS)}, s{SA} offen sc1")
        p.vmem(f"buffer_load_dword {v(self.GY+2)}, {v(PL2)}, {srd(SWS)}, s{SA} offen offset:128 sc1")
        def z1gelu():
            c1 = -2 * LOG2E * 0.7978845608028654
            self.VC0 = 184
            self.p(f"s_mov_b32 s{SK}, {f2u(c1*0.044715)}\nv_mov_b32 {v(184)}, {f2u(c1)}")
            for i in range(12): self.unpack(self.ZUP[i], Z1R + i)
            self.gelu_many(self.ZUP, [160, 162, 164, 166])
        p.wait(vm=tz1)
        self.run(merge(self.cap(z1gelu), d0[k0:kpro]))
        lt = {}
        def issue(r):
            lt[r] = p.vmem(f"buffer_load_dword {v(r+1)}, {v(r)}, {srd(SWS)}, 0 offen sc1")
        def check(r, mask):
            l = p.label("lp"); d = p.label("ld")
            p.wait(vm=lt[r])
            p(f"s_mov_b32 s{SSPIN}, 0")
            p.put(l)
            p(f"v_cmp_ne_u32 vcc, s{ST_T}, {v(r+1)}\ns_and_b32 s{SF}, vcc_lo, {mask}\ns_cbranch_scc0 {d}")
            p(f"buffer_load_dword {v(r+1)}, {v(r)}, {srd(SWS)}, 0 offen sc1\ns_waitcnt vmcnt(0)")
            p(f"s_add_u32 s{SSPIN}, s{SSPIN}, 1\ns_cmp_lt_u32 s{SSPIN}, {SPIN}\ns_cbranch_scc1 {l}")
            p.put(d)
        rt = {}
        def fset(hb): return FA + 24 * (2 if hb == 15 else hb & 1)
        def reads(hb):
            B, e = hb >> 1, hb & 1; sl = B % 3; ops = []
            for ks in range(2):
                for mt in range(3):
                    for a in range(2):
                        def ra(ks=ks, mt=mt, a=a):
                            if (ks, mt, a) == (0, 0, 0): p.wait(vm=tick[(B, 10 if e else 5)])
                            rt[(hb, ks, mt)] = p.lds(f"ds_read_b64_tr_b16 {v(fset(hb)+12*ks+4*mt+2*a,2)}, {v(TR+a)} offset:{sl*11264+e*5632+mt*2048+ks*256}")
                        ops.append(ra)
            return ops
        def mf(hb, ks, mt, nt):
            def m():
                p.wait(lg=rt[(hb, ks, mt)])
                d = v(ACC + 16 * (2 * mt + nt), 16); kap = 2 * hb + ks
                p(f"{MF} {d}, {v(fset(hb)+12*ks+4*mt,4)}, {ar((kap*2+nt)*4,4)}, {'0' if kap == 0 else d}")
            return m
        y0 = self.y_dma(0)
        hchk = o.get("hchk", 4)
        self.run(reads(0))
        pend = d0[kpro:]
        for hb in range(14):
            if o.get("gstamps") and hb % 2 == 0: self.stamp(21 + hb // 2)
            mm = [mf(hb, ks, mt, nt) for ks in range(2) for mt in range(3) for nt in range(2)]
            rd = reads(hb + 1) + (reads(15) if hb == 13 else [])
            if hb == 13: seq = merge(mm, rd, 0, 12)
            else: seq = merge(mm, rd, 0, 8)
            if hb & 1 and hb <= 11:
                B = hb >> 1
                d = dma(B + 3) if B + 3 < 8 else y0
                d1 = d[1]
                def first(d1=d1, hb=hb):
                    p.wait(lg=rt[(hb, 1, 2)]); d1()
                d = [d[0], first] + d[2:]
                seq = merge(seq, pend + d[:5], len(seq) * 2 // 3 if not pend else len(seq) // 3)
                pend = d[5:]
            elif pend:
                k = 7 if hb else 8
                if hb == 12: k = 6
                seq = merge(seq, pend[:k], len(seq) // 3); pend = pend[k:]
            if hb == o.get("hflag", 3): seq = seq + [late_flag]
            if hb == 10: seq = seq + [lambda: issue(PL3)]
            if hb == 12: seq = [lambda: check(PL3, 0xffff)] + seq
            self.run(seq)
        assert not pend
        VW, VRD = T, T + 1
        p(f"s_add_u32 s{SA}, s{SREG}, 4096\nv_add_u32 {v(VW)}, s{SA}, {v(VL16)}")
        def rw(mt, nt):
            ops = []
            for q in range(2):
                k = nt + 2 * q
                if k == 0: continue
                for hq in range(2):
                    r = ACC + 16 * (2 * mt + nt) + 8 * q + 4 * hq
                    ops.append(lambda r=r, k=k, hq=hq: p.lds(f"ds_write_b128 {v(VW)}, {v(r,4)} offset:{(k-1)*6144+(2*mt+hq)*1024}"))
            return ops
        tiles = [(0, 1), (1, 1), (2, 1), (0, 0), (1, 0), (2, 0)]
        for ti, (mt, nt) in enumerate(tiles):
            mm = [mf(hb, ks, mt, nt) for hb in (14, 15) for ks in range(2)]
            f = rw(*tiles[ti - 2]) if ti >= 2 else []
            self.run(merge(mm, f))
        self.stamp(8)
        for k in range(1, 4):
            p(f"s_xor_b32 s{SA}, s{SWV}, {k}\ns_mul_i32 s{SA}, s{SA}, 40960\ns_add_u32 s{SA}, s{SA}, 4096\nv_add_u32 {v(VRD+k-1)}, s{SA}, {v(VL16)}")
        self.run(rw(*tiles[4]) + rw(*tiles[5]))
        p.wait_lg_all(); p("s_barrier")
        RB = 112
        def own(i): return ACC + 32 * (i >> 1) + 4 * (i & 1)
        tk = {}
        def rr(k, i): tk[(k, i)] = p.lds(f"ds_read_b128 {v(RB+24*(k-1)+4*i,4)}, {v(VRD+k-1)} offset:{(k-1)*6144+i*1024}")
        for k in range(1, 3):
            for i in range(6): rr(k, i)
        yr0 = self.y_read(0)
        for k in range(1, 4):
            for i in range(6):
                p.wait(lg=tk[(k, i)])
                if k == 1: rr(3, i)
                for hh in range(2): p(f"v_pk_add_f32 {v(own(i)+2*hh,2)}, {v(own(i)+2*hh,2)}, {v(RB+24*(k-1)+4*i+2*hh,2)}")
        p("s_barrier")
        self.stamp(9)
        PK = 112
        def ow2(i): return own(i >> 1) + 2 * (i & 1)
        def pepi():
            p = self.p
            OG = 152
            p.atom(f"s_cmp_eq_u32 s{NT}, 0\ns_cselect_b64 vcc, -1, 0")
            p(f"v_lshlrev_b32 {v(BI)}, 16, {v(BI)}\nv_cndmask_b32 {v(OG)}, {v(self.GY+2)}, {v(self.GY)}, vcc\nv_sub_f32 {v(OG)}, 1.0, {v(OG)}\nv_mul_f32 {v(OG+1)}, {v(OG)}, {v(BI)}")
            for i in range(12): p(f"v_pk_fma_f32 {v(ow2(i),2)}, {v(ow2(i),2)}, {v(OG,2)}, {v(OG,2)} op_sel:[0,0,1] op_sel_hi:[1,0,1]")
            for i in range(12): p(f"v_pk_mul_f32 {v(ow2(i),2)}, {v(ow2(i),2)}, {v(self.ZUP[i],2)}")
            for i in range(12): p(f"v_cvt_pk_bf16_f32 {v(PK+i)}, {v(ow2(i))}, {v(ow2(i)+1)}")
            p(f"s_mul_i32 s{SA}, s{SC}, 45056\ns_mul_i32 s{SB_}, s{SCOL}, 5632\ns_add_u32 s{SA}, s{SA}, s{SB_}\ns_lshl_b32 s{SB_}, s{Q}, 10")
            p(f"s_add_u32 s{SA}, s{SA}, s{SB_}\ns_add_u32 s{SA}, s{SA}, {PB}\ns_add_u32 s{SB_}, s{SA}, 4096")
        self.y1 = self.y_dma(1)
        self.run(merge(merge(self.cap(pepi), self.y1[:4]), yr0))
        self.y1 = self.y1[4:]
        p.vmem(f"buffer_store_dwordx4 {v(PK,4)}, {v(VL16)}, {srd(SWS)}, s{SA} offen sc1")
        p.vmem(f"buffer_store_dwordx4 {v(PK+4,4)}, {v(VL16)}, {srd(SWS)}, s{SA} offen offset:2048 sc1")
        self.tp = p.vmem(f"buffer_store_dwordx4 {v(PK+8,4)}, {v(PV)}, {srd(SWS)}, s{SB_} offen sc1")
        p(f"s_lshl_b32 s{SLATE}, s{STB}, 3\ns_add_u32 s{SLATE}, s{SLATE}, s{SCOL}\ns_lshl_b32 s{SLATE}, s{SLATE}, 2\ns_add_u32 s{SLATE}, s{SLATE}, s{SWV}\ns_lshl_b32 s{SLATE}, s{SLATE}, 7\ns_add_u32 s{SLATE}, s{SLATE}, {PF}")
        self.stamp(10)

    CD, CR, HT, GY, WD, WT_ = 210, 214, 218, 240, 244, 228
    ZUP = [4, 6, 8, 10, 12, 14, 204, 206, 208, 248, 250, 252]
    def c_setup(self):
        p = self.p
        self.plain_dma_addr(self.CD, 1024, 224)
        p(f"s_add_u32 s{SA}, s{SREG}, 4096")
        self.plain_read_addr(self.CR, SA, 224)
        p(f"s_add_u32 s{SA}, s{SREG}, {4096+8192}")
        self.unit_tr_addr(self.HT, SA, 224, False)
        p(f"s_lshl_b32 s{SCB}, s{SCOL}, 16\ns_lshl_b32 s{SA}, s{SWV}, 8\ns_add_u32 s{SCB}, s{SCB}, s{SA}")
        p(f"s_lshl_b32 s{SHB}, s{STB}, 17\ns_lshl_b32 s{SA}, s{SWV}, 15\ns_add_u32 s{SHB}, s{SHB}, s{SA}\ns_add_u32 s{SHB}, s{SHB}, {HB}")
        self.yt = {}
    def y_dma(self, s):
        sl = (s & 1) ^ 1; items = []
        def cb(t): self.yt[s] = t
        for hh in range(2):
            for i in range(4):
                items.append(((SREG, 4096 + sl * 18432 + hh * 4096) if i == 0 else None, (SCB, (s >> 1) * 128 + hh * 32768) if i == 0 else None,
                              f"buffer_load_dwordx4 {v(self.CD+i)}, {srd(SCIM if s & 1 else SCRE)}, s{SDO} offen offset:{i*1024} lds", None))
        for hh in range(2):
            for i in range(4):
                items.append(((SREG, 4096 + sl * 18432 + 8192 + hh * 4096) if i == 0 else None, (SHB, s * 8192 + hh * 4096) if i == 0 else None,
                              f"buffer_load_dwordx4 {v(VL16)}, {srd(SWS)}, s{SDO} offen offset:{i*1024} sc1 lds", cb))
        return self.dseq(items)
    def y_read(self, s):
        p = self.p; sl = (s & 1) ^ 1; ops = []
        self.yr = getattr(self, "yr", {})
        for ks in range(4):
            def f(ks=ks):
                p.wait(vm=self.yt[s], lg=p.lg - 10)
                b = 64 * s + 16 * ks
                for k in range(2):
                    p.lds(f"ds_read_b128 {ar(b+4*k,4)}, {v(self.CR+ks)} offset:{sl*18432+k*4096}")
                    for a in range(2):
                        self.yr[(s, ks)] = p.lds(f"ds_read_b64_tr_b16 {ar(b+8+4*k+2*a,2)}, {v(self.HT+a)} offset:{sl*18432+(ks>>1)*4096+k*2048+(ks&1)*256}")
            ops.append(f)
        return ops
    def phase_c(self):
        p = self.p; o = self.o
        p.c("==== phase C ====")
        YA, BA, F = 16, 80, 144
        XE, GE, DE, OV, P10, PL, T = 186, 194, 198, 200, 201, 202, 204
        RW, RX, WA, RA = 176, 177, 180, 230
        ep = {}
        def setup():
            p = self.p
            p(f"v_lshrrev_b32 {v(T)}, 4, {v(VL)}\nv_and_b32 {v(T+1)}, 15, {v(VL)}")
            p(f"v_lshlrev_b32 {v(T+2)}, 10, {v(T)}\nv_lshl_add_u32 {v(T+2)}, {v(T+1)}, 3, {v(T+2)}")
            p(f"v_lshlrev_b32 {v(T+3)}, 2, {v(T)}\nv_lshlrev_b32 {v(T+4)}, 3, {v(T+1)}")
            p(f"v_lshlrev_b32 {v(OV)}, 1, {v(T+2)}")
            p(f"s_lshl_b32 s{SC}, s{STB}, 6\ns_lshl_b32 s{SA}, s{SWV}, 4\ns_add_u32 s{SC}, s{SC}, s{SA}")
            p(f"s_lshl_b32 s{SD}, s{SC}, 10\ns_lshl_b32 s{SA}, s{SCOL}, 7\ns_add_u32 s{SD}, s{SD}, s{SA}\nv_add_u32 {v(T+4)}, s{SA}, {v(T+4)}")
            p(f"s_lshl_b32 s{SA}, s{STB}, 12\ns_lshl_b32 s{SB_}, s{SWV}, 10\ns_add_u32 s{SB_}, s{SB_}, s{SA}\ns_add_u32 s{SB_}, s{SB_}, {PF}")
            self.poll_addr(PL, [(SB_, 8)])
            p.atom(f"s_cmp_eq_u32 s{SWV}, 3\ns_cselect_b64 vcc, -1, 0")
            p(f"v_cndmask_b32 {v(P10)}, {v(VL16)}, {v(VOOB)}, vcc")
            p(f"s_mul_i32 s{SE}, s{STB}, {2*45056}\ns_mul_i32 s{SA}, s{SWV}, {22*512}\ns_add_u32 s{SE}, s{SE}, s{SA}\ns_add_u32 s{SE}, s{SE}, {PB}")
            p(f"s_add_u32 s{SA}, s{SREG}, 4096\nv_and_b32 {v(RW)}, 31, {v(VL)}\nv_lshlrev_b32 {v(RW)}, 8, {v(RW)}\nv_add_u32 {v(RW)}, s{SA}, {v(RW)}")
            p(f"v_lshrrev_b32 {v(RX)}, 5, {v(VL)}\nv_and_b32 {v(RX+1)}, 7, {v(VL)}\nv_xor_b32 {v(RX)}, {v(RX)}, {v(RX+1)}\nv_lshlrev_b32 {v(RX)}, 4, {v(RX)}")
            for i in range(4): p(f"v_xor_b32 {v(WA+i)}, {32*i}, {v(RX)}\nv_add_u32 {v(WA+i)}, {v(WA+i)}, {v(RW)}")
            p(f"v_xor_b32 {v(T+1)}, {v(T+1)}, {v(T)}\nv_lshlrev_b32 {v(T+1)}, 4, {v(T+1)}")
            p(f"v_lshlrev_b32 {v(T)}, 8, {v(T)}\ns_lshl_b32 s{SA}, s{SWV}, 12\ns_add_u32 s{SA}, s{SA}, 4096\nv_add_u32 {v(T)}, s{SA}, {v(T)}")
            p(f"v_add_u32 {v(RA)}, {v(T)}, {v(T+1)}\nv_xor_b32 {v(T+1)}, 64, {v(T+1)}\nv_add_u32 {v(RA+1)}, {v(T)}, {v(T+1)}")
            p(f"v_add_u32 {v(RA+2)}, 81920, {v(RA)}\nv_add_u32 {v(RA+3)}, 81920, {v(RA+1)}")
        def eloads():
            for gi in range(4):
                p(f"s_add_u32 s{SA}, s{SD}, {gi*4096}")
                p.vmem(f"buffer_load_dwordx2 {v(XE+2*gi,2)}, {v(T+2)}, {srd(SX)}, s{SA} offen")
            p(f"s_lshl_b32 s{SA}, s{SC}, 2\ns_add_u32 s{SA}, s{SA}, {GATE}")
            for gi in range(4): p.vmem(f"buffer_load_dword {v(GE+gi)}, {v(T+3)}, {srd(SWS)}, s{SA} offen offset:{gi*16} sc1")
            ep['t'] = p.vmem(f"global_load_dwordx2 {v(DE,2)}, {v(T+4)}, {sp(PDSK)}")
        T4 = [(0, 0), (1, 0), (1, 1), (0, 1)]
        def ym(s):
            ops = []
            for ks in range(4):
                for (mt, nt) in T4:
                    def m(ks=ks, mt=mt, nt=nt):
                        p.wait(lg=self.yr[(s, ks)])
                        d = v(YA + 16 * (2 * mt + nt), 16); b = 64 * s + 16 * ks
                        p(f"{MF} {d}, {ar(b+4*mt,4)}, {ar(b+8+4*nt,4)}, {'0' if (s, ks) == (0, 0) else d}")
                    ops.append(m)
            return ops
        PA = 80
        pt = {}
        def ploads():
            ops = []
            for nt in range(2):
                for kap in range(11):
                    def f(kap=kap, nt=nt):
                        if kap % 4 == 0: p(f"s_add_u32 s{SB_}, s{SE}, {nt*45056+kap*1024}")
                        pt[(kap, nt)] = p.vmem(f"buffer_load_dwordx4 {v(PA+(kap*2+nt)*4,4)}, {v(P10 if kap == 10 else VL16)}, {srd(SWS)}, s{SB_} offen offset:{(kap%4)*1024} sc1")
                    ops.append(f)
            return ops
        wo = {}
        def wo_dma():
            items = []
            for (i0, i1, base) in [(18, 22, 0), (0, 18, 22528)]:
                for i in range(i0, i1):
                    def cb(t, i=i): wo[i] = t
                    k = i - i0
                    items.append(((SREG, base + k * 1024) if k % 4 == 0 else None, (SXB, i * 8192) if k % 4 == 0 else None,
                                  f"buffer_load_dwordx4 {v(self.WD+k%4)}, {srd(SWOUT)}, s{SDO} offen offset:{(k%4)*1024} lds", cb))
            return self.dseq(items)
        def wo_rd(kap):
            def f():
                p.wait(vm=wo[2 * kap + 1], lg=p.lg - 12)
                for mt in range(2):
                    for a in range(2):
                        base = 22528 + kap * 2048 if kap < 9 else (kap - 9) * 2048
                        wo[('r', kap)] = p.lds(f"ds_read_b64_tr_b16 {ar((kap*2+mt)*4+2*a,2)}, {v(self.WT_+mt)} offset:{base+a*512}")
            return f
        def pflag():
            p.wait(vm=self.tp); self.flag(SLATE, 220)
        pl = {}
        def pf_issue(): pl['t'] = p.vmem(f"buffer_load_dword {v(PL+1)}, {v(PL)}, {srd(SWS)}, 0 offen sc1")
        def pf_check():
            l = p.label("pp"); d = p.label("pd")
            p.wait(vm=pl['t'])
            p(f"s_mov_b32 s{SSPIN}, 0")
            p.put(l)
            p(f"v_cmp_ne_u32 vcc, s{ST_T}, {v(PL+1)}\ns_and_b32 s{SF}, vcc_lo, 0xff\ns_cbranch_scc0 {d}")
            p(f"buffer_load_dword {v(PL+1)}, {v(PL)}, {srd(SWS)}, 0 offen sc1\ns_waitcnt vmcnt(0)")
            p(f"s_add_u32 s{SSPIN}, s{SSPIN}, 1\ns_cmp_lt_u32 s{SSPIN}, {SPIN}\ns_cbranch_scc1 {l}")
            p.put(d)
        su = self.cap(setup)
        lgw = lambda: p.wait(lg=p.lg - 1)
        y2, y3, wd, pl_ = self.y_dma(2), self.y_dma(3), wo_dma(), ploads()
        self.run(merge(merge(ym(0), su), self.y1 + [lgw] + y2[:5]))
        self.run([pflag] + y2[5:13])
        self.run(merge(self.y_read(1), y2[13:] + [eloads]))
        self.stamp(11)
        self.run(merge(ym(1), [lgw] + y3))
        self.run(merge(self.y_read(2), wd[:5]))
        self.run(merge(ym(2), [lgw] + wd[5:14] + [pf_issue] + wd[14:]))
        self.run(self.y_read(3))
        pf_check(); self.stamp(12)
        self.run(merge(ym(3), pl_[:12]))
        prest = pl_[12:]
        self.stamp(13)
        def redw(acc, base, tiles):
            return [(lambda mt=mt, nt=nt, i=i: p.lds(f"ds_write_b128 {v(WA+i)}, {v(acc+16*(2*mt+nt)+4*i,4)} offset:{base+nt*8192+mt*128}"))
                    for (mt, nt) in tiles for i in range(4)]
        def bm(kap, mt, nt):
            def m():
                p.wait(vm=pt[(kap, nt)], lg=wo[('r', kap)])
                d = v(YA + 16 * (2 * mt + nt), 16)
                p(f"{MF} {d}, {ar((kap*2+mt)*4,4)}, {v(PA+(kap*2+nt)*4,4)}, {d}")
            return m
        def yscale(mt, nt, pk=True):
            if pk: return [(lambda i=i: p(f"v_pk_mul_f32 {v(YA+16*(2*mt+nt)+2*i,2)}, {v(YA+16*(2*mt+nt)+2*i,2)}, {v(self.GY+2*nt,2)} op_sel_hi:[1,0]")) for i in range(8)]
            return [(lambda i=i: p(f"v_mul_f32 {v(YA+16*(2*mt+nt)+i)}, {v(YA+16*(2*mt+nt)+i)}, {v(self.GY+2*nt)}")) for i in range(16)]
        DU, X = 168, 0
        XP = [4, 8, 12, 172]
        def xpart():
            p = self.p
            self.unpack(DU, DE); self.unpack(DU + 2, DE + 1)
            for gi in range(4):
                x = XP[gi]
                self.unpack(x, XE + 2 * gi); self.unpack(x + 2, XE + 2 * gi + 1)
                for k in range(4): p(f"v_mul_f32 {v(x+k)}, {v(x+k)}, {v(DU+k)}")
                for k in range(4): p(f"v_mul_f32 {v(x+k)}, {v(x+k)}, {v(GE+gi)}")
        self.run(merge(merge(yscale(0, 0) + yscale(1, 0) + yscale(1, 1) + yscale(0, 1), prest), [wo_rd(k) for k in range(11)]))
        mm0 = [bm(kap, mt, 0) for kap in range(11) for mt in range(2)]
        self.run(merge(mm0, [lambda: p.wait(vm=ep['t'])] + self.cap(xpart)))
        mm1 = [bm(kap, 0, 1) for kap in range(11)]
        mm2 = [bm(kap, 1, 1) for kap in range(11)]
        self.run(merge(mm1, redw(YA, 0, [(0, 0), (1, 0)]), 2))
        self.run(merge(mm2, redw(YA, 0, [(0, 1)]), 4))
        self.run(redw(YA, 0, [(1, 1)]))
        p.wait_lg_all(); p("s_barrier")
        self.stamp(14)
        tk = {}
        def R(gi, s): return 16 + 16 * gi + 4 * s
        for gi in range(4):
            p.wait(lg=p.lg - 12)
            for s_ in range(4):
                tk[gi] = p.lds(f"ds_read_b128 {v(R(gi,s_),4)}, {v(RA+2*(s_>>1)+(gi&1))} offset:{(s_&1)*40960+gi*1024}")
        p(f"s_lshl_b32 s{SD}, s{SD}, 1")
        for gi in range(4):
            y = R(gi, 0)
            p.wait(lg=tk[gi])
            for hh in (0, 2):
                p(f"v_pk_add_f32 {v(y+hh,2)}, {v(y+hh,2)}, {v(y+4+hh,2)}\nv_pk_add_f32 {v(y+8+hh,2)}, {v(y+8+hh,2)}, {v(y+12+hh,2)}")
            for hh in (0, 2): p(f"v_pk_add_f32 {v(y+hh,2)}, {v(y+hh,2)}, {v(XP[gi]+hh,2)}")
            for hh in (0, 2): p(f"v_pk_add_f32 {v(y+hh,2)}, {v(y+hh,2)}, {v(y+8+hh,2)}")
            p(f"s_add_u32 s{SA}, s{SD}, {gi*8192}")
            p.vmem(f"buffer_store_dwordx4 {v(y,4)}, {v(OV)}, {srd(SOUT)}, s{SA} offen{' ' + o['outmod'] if 'outmod' in o else ''}")
        ne = p.label("ne")
        p(f"s_lshl_b32 s{SA}, s{STB}, 3\ns_add_u32 s{SA}, s{SA}, s{SCOL}\ns_lshl_b32 s{SA}, s{SA}, 2\ns_add_u32 s{SA}, s{SA}, s{SWV}")
        p(f"s_cmp_eq_u32 s{SA}, {255*4}\ns_cbranch_scc0 {ne}")
        p(f"s_mov_b32 s{SA}, {EPOCH}")
        self.flag(SA, 220)
        p.put(ne)
        if o.get("stamps"):
            self.stamp(15)
            p(f"s_lshl_b32 s{SA}, s2, 2\ns_add_u32 s{SA}, s{SA}, s{SWV}\ns_lshl_b32 s{SA}, s{SA}, 8\ns_add_u32 s{SA}, s{SA}, {DBG}")
            p(f"v_lshlrev_b32 v254, 2, {v(VL)}")
            p.vmem(f"buffer_store_dword v255, v254, {srd(SWS)}, s{SA} offen")
        if "spin_from" in o:
            self.stamp(15)
            sl = p.label("spin")
            p(f"v_readlane_b32 s{SA}, v254, 0")
            p.put(sl)
            p(f"s_memrealtime s[{SSTMP}:{SSTMP+1}]\ns_waitcnt lgkmcnt(0)\ns_sub_u32 s{SB_}, s{SSTMP}, s{SA}\ns_cmp_lt_u32 s{SB_}, 3000\ns_cbranch_scc1 {sl}")
        p.put(self.END)
        p("s_endpgm")

    def build(self):
        self.prologue()
        self.phase_z()
        self.p.vm_done = -1; self.p.lg_done = -1
        self.p("s_nop 15")
        self.phase_u()
        self.phase_g()
        self.phase_c()
        lines, added = hazard_pass([x for l in self.p.L for x in l.split(chr(10))])
        hdr = open("gated_mix__ssm_conv_s5__mixer_gmlp__prompt.s.ref").read().split("; Override")[0]
        s = hdr + "; @launch grid=(256,1,1) block=(256,1,1) lds=163840\n"
        s += '.amdgcn_target "amdgcn-amd-amdhsa--gfx950"\n.text\n'
        s += f".globl {NAME}\n.p2align 8\n.type {NAME},@function\n{NAME}:\n"
        s += "\n".join((l if l.endswith(":") else "    " + l) for l in lines) + "\n"
        s += f""".section .rodata,"a"
.p2align 6
.amdhsa_kernel {NAME}
  .amdhsa_next_free_vgpr 512
  .amdhsa_next_free_sgpr 102
  .amdhsa_accum_offset 256
  .amdhsa_group_segment_fixed_size 0
  .amdhsa_kernarg_size 144
  .amdhsa_user_sgpr_count 2
  .amdhsa_user_sgpr_kernarg_segment_ptr 1
  .amdhsa_system_sgpr_workgroup_id_x 1
  .amdhsa_float_denorm_mode_32 3
.end_amdhsa_kernel
"""
        return s, added

if __name__ == "__main__":
    out = sys.argv[1]
    opt = {}
    for a in sys.argv[2:]:
        k, _, val = a.partition("=")
        try: opt[k] = int(val) if val else 1
        except ValueError: opt[k] = val
    s, added = G(opt).build()
    open(out, "w").write(s)
    print("wrote", out, "nops added", added, "lines", s.count("\n"))
```

```python
import sys, math, struct
from core import *

NAME = "gated_mix__ssm_conv_s5__mixer_gmlp__prompt_kernel"
EPOCH = 0; GATE = 0x4000
ST = 0x10000; EG = 0x50000; DBG = 0x80000
Z2N = 0x100000; Z1 = 0x400000; PB = 0x700000; HB = 0xA00000
ZF = 0xE00000; HF = 0xE10000; PF = 0xE20000; Z1F = 0xE40000; WS_END = 0xE50000
OOB = 0x80000000
SPIN = 200000
SX, SW1, SWSP, SWS, SCRE, SCIM, SWOUT, SOUT = 4, 8, 12, 16, 20, 24, 28, 32
PLRE, PLIM, PLDT, PDSK, PBSP, PGW, PBRE, PBIM, PWIN = 36, 38, 40, 42, 44, 46, 48, 50, 52
ST_T = 100
SWV, SRB, SCOL, STB = 56, 57, 58, 59
SA, SB_, SC, SD = 60, 61, 62, 63
SSTMP = 64
SDO, SWB, SPB0, SPST, SPSP = 68, 69, 70, 71, 72
SXB, SW1B, SXL, SWL = 73, 74, 75, 76
SPC = 77
SCB, SHB = 78, 79
SK = 80
SREG = 96
SE, SF = 97, 98
SSPIN = 99
SLATE = 101
SJ = 3
SGB = 95
SPFP = 70
SPFE = 79
SZI = 72
SPB = 90
def srd(b): return f"s[{b}:{b+3}]"
def v(a, n=1): return f"v{a}" if n == 1 else f"v[{a}:{a+n-1}]"
def ar(a, n=1): return f"a{a}" if n == 1 else f"a[{a}:{a+n-1}]"
def sp(a): return f"s[{a}:{a+1}]"
VL, VL16, VOOB = 1, 2, 3
LOG2E = 1.4426950408889634
def f2u(x): return struct.unpack("<I", struct.pack("<f", x))[0]
MF = "v_mfma_f32_32x32x16_bf16"

class G:
    def __init__(self, opt):
        self.o = opt
        self.p = Prog()

    def stamp(self, k):
        if self.o.get("spin_from") == k:
            p = self.p
            p(f"s_memrealtime s[{SSTMP}:{SSTMP+1}]"); p.wait_lg_all()
            p(f"v_mov_b32 v254, s{SSTMP}")
        if self.o.get("stamps"):
            p = self.p
            p(f"s_memrealtime s[{SSTMP}:{SSTMP+1}]\ns_memtime s[{SSTMP+2}:{SSTMP+3}]"); p.wait_lg_all()
            p(f"v_writelane_b32 v255, s{SSTMP}, {k}\nv_writelane_b32 v255, s{SSTMP+2}, {k+32}")
    def cap(self, fn):
        sub = Prog(); save = self.p; self.p = sub
        fn()
        self.p = save
        assert sub.vm == 0 and sub.lg == 0
        return [(lambda l=l: self.p(l)) for l in sub.L]
    def run(self, ops):
        for op in ops: op()
    def dseq(self, items):
        p = self.p
        def setup(it):
            if it[0] is not None: p(f"s_add_u32 m0, s{it[0][0]}, {it[0][1]}")
            if it[1] is not None: p(f"s_add_u32 s{SDO}, s{it[1][0]}, {it[1][1]}")
        ops = [lambda: setup(items[0])]
        for i, it in enumerate(items):
            def f(i=i, it=it):
                t = p.vmem(it[2])
                if it[3]: it[3](t)
                if i + 1 < len(items): setup(items[i + 1])
            ops.append(f)
        return ops
    def poll_addr(self, vt, groups):
        p = self.p; n0 = 0
        p(f"v_mov_b32 {v(vt)}, {v(VOOB)}")
        for (sr, n) in groups:
            if n == 1: p(f"v_writelane_b32 {v(vt)}, s{sr}, {n0}")
            else:
                p(f"s_sub_u32 s{sr}, s{sr}, {n0*128}\nv_lshl_add_u32 {v(vt+1)}, {v(VL)}, 7, s{sr}")
                m = ((1 << n) - 1) << n0
                p(f"s_mov_b32 vcc_lo, {m & 0xffffffff}\ns_mov_b32 vcc_hi, {m >> 32}\nv_cndmask_b32 {v(vt)}, {v(vt)}, {v(vt+1)}, vcc")
            n0 += n
        return n0
    def poll(self, vt, n):
        p = self.p
        l = p.label("poll"); d = p.label("pd")
        p(f"s_mov_b32 s{SSPIN}, 0")
        p.put(l)
        p.vmem(f"buffer_load_dword {v(vt+1)}, {v(vt)}, {srd(SWS)}, 0 offen sc1")
        p.wait_vm_all()
        p(f"v_cmp_ne_u32 vcc, s{ST_T}, {v(vt+1)}")
        if n <= 32: p(f"s_and_b32 s{SF}, vcc_lo, {(1<<n)-1}")
        else: p(f"s_and_b32 vcc_hi, vcc_hi, {(1<<(n-32))-1}\ns_or_b32 s{SF}, vcc_lo, vcc_hi")
        p(f"s_cbranch_scc0 {d}")
        p(f"s_add_u32 s{SSPIN}, s{SSPIN}, 1\ns_cmp_lt_u32 s{SSPIN}, {SPIN}\ns_cbranch_scc1 {l}")
        p.put(d)
    def flag_prep(self, vt):
        p = self.p
        p(f"v_mov_b32 {v(vt)}, s{ST_T}\nv_mov_b32 {v(vt+1)}, {v(VOOB)}\nv_writelane_b32 {v(vt+1)}, 0, 0")
    def flag(self, off_sreg, vt):
        self.p.vmem(f"buffer_store_dword {v(vt)}, {v(vt+1)}, {srd(SWS)}, s{off_sreg} offen sc1")
    def xhalf_sum(self, a, t):
        self.p(f"v_mov_b32 {v(t)}, {v(a)}\nv_permlane32_swap_b32 {v(a)}, {v(t)}\nv_add_f32 {v(a)}, {v(a)}, {v(t)}")
    def rnd(self, d, s):
        self.p(f"v_cvt_pk_bf16_f32 {v(d)}, {v(s)}, {v(s)}\nv_lshlrev_b32 {v(d)}, 16, {v(d)}")
    def unpack(self, d, s):
        self.p(f"v_and_b32 {v(d+1)}, 0xffff0000, {v(s)}\nv_lshlrev_b32 {v(d)}, 16, {v(s)}")
    def plain_read_addr(self, dst4, base_sreg, t):
        p = self.p
        p(f"v_and_b32 {v(t)}, 31, {v(VL)}\nv_lshlrev_b32 {v(t)}, 7, {v(t)}")
        if base_sreg is not None: p(f"v_add_u32 {v(t)}, s{base_sreg}, {v(t)}")
        p(f"v_bfe_u32 {v(t+1)}, {v(VL)}, 1, 3\nv_lshrrev_b32 {v(dst4)}, 5, {v(VL)}\nv_xor_b32 {v(t+1)}, {v(t+1)}, {v(dst4)}")
        p(f"v_lshlrev_b32 {v(t+1)}, 4, {v(t+1)}")
        for ks in range(4):
            p(f"v_xor_b32 {v(dst4+ks)}, {32*ks}, {v(t+1)}\nv_add_u32 {v(dst4+ks)}, {v(dst4+ks)}, {v(t)}")
    def plain_dma_addr(self, dst4, rowbytes, t, rowstep=8):
        p = self.p
        p(f"v_lshrrev_b32 {v(t)}, 3, {v(VL)}\nv_mul_u32_u24 {v(t)}, {rowbytes}, {v(t)}")
        self.plain_dma_addr2(dst4, t, t + 1, rowstep * rowbytes)
    def plain_dma_addr2(self, dst4, vrow, t, step):
        p = self.p
        p(f"v_and_b32 {v(t)}, 7, {v(VL)}\nv_lshrrev_b32 {v(dst4)}, 4, {v(VL)}\nv_xor_b32 {v(t)}, {v(t)}, {v(dst4)}\nv_lshlrev_b32 {v(t)}, 4, {v(t)}")
        p(f"v_add_u32 {v(dst4)}, {v(t)}, {v(vrow)}")
        p(f"v_xor_b32 {v(t)}, 64, {v(t)}\nv_add_u32 {v(dst4+1)}, {v(t)}, {v(vrow)}")
        p(f"v_add_u32 {v(dst4+2)}, {2*(step-1024)}, {v(dst4)}\nv_add_u32 {v(dst4+3)}, {3*(step-1024)}, {v(dst4+1)}\nv_add_u32 {v(dst4+1)}, {step-1024}, {v(dst4+1)}")
    def panel_tr_addr(self, dst2, base_sreg, t, perm):
        p = self.p
        p(f"v_lshrrev_b32 {v(t)}, 5, {v(VL)}\nv_lshlrev_b32 {v(t)}, 10, {v(t)}")
        p(f"v_bfe_u32 {v(t+1)}, {v(VL)}, 2, 2\nv_lshl_add_u32 {v(t)}, {v(t+1)}, 7, {v(t)}")
        p(f"v_bfe_u32 {v(t+1)}, {v(VL)}, 4, 1\nv_lshl_add_u32 {v(t)}, {v(t+1)}, 5, {v(t)}")
        if perm:
            p(f"v_and_b32 {v(t+1)}, 1, {v(VL)}\nv_lshl_add_u32 {v(t)}, {v(t+1)}, 4, {v(t)}")
            p(f"v_bfe_u32 {v(t+1)}, {v(VL)}, 1, 1\nv_lshl_add_u32 {v(t)}, {v(t+1)}, 3, {v(t)}")
        else:
            p(f"v_and_b32 {v(t+1)}, 3, {v(VL)}\nv_lshl_add_u32 {v(t)}, {v(t+1)}, 3, {v(t)}")
        p(f"v_bfe_u32 {v(t+1)}, {v(VL)}, 3, 1\nv_lshlrev_b32 {v(t+1)}, 6, {v(t+1)}")
        if base_sreg is not None: p(f"v_add_u32 {v(t)}, s{base_sreg}, {v(t)}")
        p(f"v_add_u32 {v(dst2)}, {v(t)}, {v(t+1)}\nv_xor_b32 {v(t+1)}, 64, {v(t+1)}\nv_add_u32 {v(dst2+1)}, {v(t)}, {v(t+1)}")
    def unit_tr_addr(self, dst2, base_sreg, t, perm, flip_sreg=None):
        p = self.p
        p(f"v_bfe_u32 {v(t)}, {v(VL)}, 4, 1")
        if flip_sreg is not None: p(f"v_xor_b32 {v(t)}, s{flip_sreg}, {v(t)}")
        p(f"v_lshlrev_b32 {v(t)}, 1, {v(t)}")
        p(f"v_bfe_u32 {v(t+1)}, {v(VL)}, {0 if perm else 1}, 1\nv_or_b32 {v(t)}, {v(t)}, {v(t+1)}")
        p(f"v_lshrrev_b32 {v(t+1)}, 5, {v(VL)}\nv_lshlrev_b32 {v(t+1)}, 1, {v(t+1)}\nv_xor_b32 {v(t+1)}, {v(t+1)}, {v(t)}")
        p(f"v_lshlrev_b32 {v(t)}, 9, {v(t)}")
        p(f"v_bfe_u32 {v(t+2)}, {v(VL)}, 2, 2\nv_lshl_add_u32 {v(t)}, {v(t+2)}, 4, {v(t)}")
        p(f"v_bfe_u32 {v(t+2)}, {v(VL)}, {1 if perm else 0}, 1\nv_lshl_add_u32 {v(t)}, {v(t+2)}, 3, {v(t)}")
        if base_sreg is not None: p(f"v_add_u32 {v(t)}, s{base_sreg}, {v(t)}")
        p(f"v_lshl_add_u32 {v(dst2)}, {v(t+1)}, 6, {v(t)}")
        p(f"v_xor_b32 {v(t+1)}, 1, {v(t+1)}\nv_lshl_add_u32 {v(dst2+1)}, {v(t+1)}, 6, {v(t)}")

    def gemm_loop(self, nslot, reads, mfmas, dma, tick, rfront, npro, extra, valu=None):
        p = self.p
        p.wait(vm=tick[0]); p("s_barrier")
        self.stamp(20)
        self.run(reads(0))
        d = []
        for st in range(npro, nslot): d += dma(st)
        q = (len(d) + 2) // 3
        pend = [d[i * q:(i + 1) * q] for i in range(3)]
        for n in range(32):
            rd = []
            if n + 1 < 32:
                if (n + 1) % 4 == 0:
                    st = (n + 1) // 4
                    p.wait(vm=tick[st], lg=p.lg - 1); p("s_barrier")
                    d = dma(st - 1 + nslot) if st - 1 + nslot < 8 else extra.get(st, lambda: [])()
                    q = (len(d) + 3) // 4
                    pend = [d[i * q:(i + 1) * q] for i in range(4)]
                rd = reads(n + 1)
            seq = merge(mfmas(n), rd, 0, rfront)
            if pend: seq = merge(seq, pend.pop(0), len(seq) // 2)
            if valu and n in valu: seq = merge(seq, valu[n])
            self.run(seq)

    def gate(self, GX, GW, GU, GS, GT):
        p = self.p
        for i in range(4):
            for r in range(4):
                p(f"v_dot2_f32_bf16 {v(GS+r)}, {v(GX+4*r+i)}, {v(GW+i)}, {'0' if i == 0 else v(GS+r)}")
        p("s_nop 2")
        for mod in ["quad_perm:[1,0,3,2]", "quad_perm:[2,3,0,1]", "row_half_mirror", "row_mirror"]:
            for r in range(4): p(f"v_add_f32_dpp {v(GS+r)}, {v(GS+r)}, {v(GS+r)} {mod} row_mask:0xf bank_mask:0xf")
        for sw in ["v_permlane16_swap_b32", "v_permlane32_swap_b32"]:
            for r in range(4): p(f"v_mov_b32 {v(GT+r)}, {v(GS+r)}")
            for r in range(4): p(f"{sw} {v(GS+r)}, {v(GT+r)}")
            for r in range(4): p(f"v_add_f32 {v(GS+r)}, {v(GS+r)}, {v(GT+r)}")
        for r in range(4): p(f"v_mul_f32 {v(GS+r)}, {f2u(-LOG2E)}, {v(GS+r)}")
        for r in range(4): p(f"v_exp_f32 {v(GS+r)}, {v(GS+r)}")
        for r in range(4): p(f"v_add_f32 {v(GS+r)}, 1.0, {v(GS+r)}")
        for r in range(4): p(f"v_rcp_f32 {v(GS+r)}, {v(GS+r)}")
        p(f"v_mov_b32 {v(GT)}, {v(VOOB)}\nv_writelane_b32 {v(GT)}, 0, 0")

    def w_dma_addr(self, dst3, t, colbase):
        p = self.p
        for i in range(3):
            p(f"v_add_u32 {v(t)}, {64*i}, {v(VL)}\nv_mul_u32_u24 {v(t+1)}, 171, {v(t)}\nv_lshrrev_b32 {v(t+1)}, 11, {v(t+1)}")
            p(f"v_mul_u32_u24 {v(t+2)}, 12, {v(t+1)}\nv_sub_u32 {v(t)}, {v(t)}, {v(t+2)}\nv_cmp_eq_u32 vcc, 11, {v(t)}")
            p(f"v_mul_u32_u24 {v(t+1)}, 2752, {v(t+1)}\nv_lshl_add_u32 {v(t)}, {v(t)}, 4, {v(t+1)}")
            if colbase - 1024 * i: p(f"v_add_u32 {v(t)}, {colbase-1024*i}, {v(t)}")
            p(f"v_cndmask_b32 {v(dst3+i)}, {v(t)}, {v(VOOB)}, vcc")
    def w_tr_addr(self, dst, base, t):
        p = self.p
        p(f"v_lshrrev_b32 {v(t)}, 5, {v(VL)}\nv_bfe_u32 {v(t+1)}, {v(VL)}, 2, 2\nv_lshl_add_u32 {v(t)}, {v(t)}, 3, {v(t+1)}\nv_mul_u32_u24 {v(t)}, 192, {v(t)}")
        p(f"v_bfe_u32 {v(t+1)}, {v(VL)}, 4, 1\nv_lshl_add_u32 {v(t)}, {v(t+1)}, 5, {v(t)}")
        p(f"v_and_b32 {v(t+1)}, 1, {v(VL)}\nv_lshl_add_u32 {v(t)}, {v(t+1)}, 4, {v(t)}")
        p(f"v_bfe_u32 {v(t+1)}, {v(VL)}, 1, 1\nv_lshl_add_u32 {v(t)}, {v(t+1)}, 3, {v(t)}")
        p(f"v_add_u32 {v(dst)}, {base}, {v(t)}")
    def valid_masks(self):
        MA, MB = SK + 2, SK + 4
        self.p.atom(f"s_cmp_lt_u32 s{SCOL}, 7\ns_mov_b32 s{MA}, -1\ns_cselect_b32 s{MA+1}, -1, 0\ns_cselect_b32 s{MB}, -1, 0\ns_mov_b32 s{MB+1}, 0\n"
                    f"s_mov_b32 s{SK+6}, {f2u(1/72)}\ns_cselect_b32 s{SK+6}, {f2u(1/88)}, s{SK+6}")
        c1 = -2 * LOG2E * 0.7978845608028654
        self.p(f"s_mov_b32 s{SK}, {f2u(c1*0.044715)}\nv_mov_b32 {v(self.VC0)}, {f2u(c1)}")

    def gelu_pair(self, a, t, out_packed=None):
        p = self.p
        p(f"v_pk_mul_f32 {v(t,2)}, {v(a,2)}, {v(a,2)}")
        p(f"v_pk_fma_f32 {v(t,2)}, {v(t,2)}, {sp(SK)}, {v(self.VC0,2)} op_sel_hi:[1,0,0]")
        p(f"v_pk_mul_f32 {v(t,2)}, {v(t,2)}, {v(a,2)}")
        p(f"v_exp_f32 {v(t)}, {v(t)}\nv_exp_f32 {v(t+1)}, {v(t+1)}")
        p(f"v_pk_add_f32 {v(t,2)}, {v(t,2)}, 1.0 op_sel_hi:[1,0]")
        p(f"v_rcp_f32 {v(t)}, {v(t)}\nv_rcp_f32 {v(t+1)}, {v(t+1)}")
        if out_packed is not None:
            p(f"v_pk_mul_f32 {v(t,2)}, {v(t,2)}, {v(a,2)}")
            p(f"v_cvt_pk_bf16_f32 {v(out_packed)}, {v(t)}, {v(t+1)}")
        else:
            p(f"v_pk_mul_f32 {v(a,2)}, {v(t,2)}, {v(a,2)}")
    def gelu_many(self, pairs, temps, outs=None):
        p = self.p; ng = len(temps)
        for g0 in range(0, len(pairs), ng):
            streams = []
            for k, i in enumerate(range(g0, min(g0 + ng, len(pairs)))):
                sub = Prog(); save = self.p; self.p = sub
                self.gelu_pair(pairs[i], temps[k], None if outs is None else outs[i])
                self.p = save
                streams.append(sub.L)
            for j in range(len(streams[0])):
                for s in streams: p(s[j])

    VWD, VWR, VWA, VC0 = 240, 244, 248, 252
    def wsp_setup(self, t):
        p = self.p
        self.plain_dma_addr(self.VWD, 4096, t)
        p(f"s_and_b32 s{SA}, s{SWV}, 1\ns_lshl_b32 s{SA}, s{SA}, 12")
        self.plain_read_addr(self.VWR, SA, t)
        p(f"s_lshl_b32 s{SWB}, s{STB}, 18\ns_lshl_b32 s{SB_}, s{SWV}, 10\ns_add_u32 s{SWB}, s{SWB}, s{SB_}")
        self.wsp_t = {}
    def piece(self, st): return (SPB + st % 5, 0)
    def wsp_dma(self, st):
        if self.o.get("x_nowsp") and st >= 2:
            self.wsp_t[st] = -1
            return [lambda: None] * 9
        items = []; sr, im = self.piece(st)
        for hh in range(2):
            for i in range(4):
                def cb(t): self.wsp_t[st] = t
                items.append(((sr, im + hh * 4096) if i == 0 else None, (SWB, st * 128 + hh * 131072) if i == 0 else None,
                              f"buffer_load_dwordx4 {v(self.VWD+i)}, {srd(SWSP)}, s{SDO} offen offset:{i*1024} lds", cb))
        return self.dseq(items)
    def wsp_read(self, st):
        if self.o.get("x_nord"): return [lambda: None]
        p = self.p; sr, im = self.piece(st)
        def pre():
            for ks in range(4): p(f"v_add_u32 {v(self.VWA+ks)}, s{sr}, {v(self.VWR+ks)}")
            p.wait(vm=self.wsp_t[st], lg=p.lg - 8)
        ops = [pre]
        for nt in range(2):
            for ks in range(4):
                def f(ks=ks, nt=nt):
                    p.lds(f"ds_read_b128 {ar(((st*4+ks)*2+nt)*4,4)}, {v(self.VWA+ks)} offset:{im}")
                    if nt == 0: p(f"v_xor_b32 {v(self.VWA+ks)}, 4096, {v(self.VWA+ks)}")
                ops.append(f)
        return ops

    def prologue(self):
        p = self.p
        self.END = p.label("end")
        p(f"s_cmp_ge_u32 s2, 256\ns_cbranch_scc1 {self.END}")
        p(f"s_load_dwordx2 {sp(SX)}, s[0:1], 0\ns_load_dwordx2 {sp(PWIN)}, s[0:1], 80\ns_load_dwordx4 s[{PBRE}:{PBRE+3}], s[0:1], 24")
        p(f"s_load_dwordx2 {sp(PGW)}, s[0:1], 112\ns_load_dwordx4 s[{PLRE}:{PLRE+3}], s[0:1], 8\ns_load_dwordx2 {sp(PLDT)}, s[0:1], 56\ns_load_dwordx2 {sp(SWS)}, s[0:1], 136")
        p(f"v_lshrrev_b32 v2, 6, v0\nv_and_b32 {v(VL)}, 63, v0\nv_readfirstlane_b32 s{SWV}, v2\nv_lshlrev_b32 {v(VL16)}, 4, {v(VL)}\nv_mov_b32 {v(VOOB)}, {OOB}")
        if self.o.get("stamps"): p("v_mov_b32 v255, 0")
        self.stamp(17)
        p(f"s_and_b32 s{SA}, s2, 7\ns_lshr_b32 s{SB_}, s2, 3")
        p(f"s_and_b32 s{SC}, s{SA}, 1\ns_lshl_b32 s{SC}, s{SC}, 2\ns_and_b32 s{SD}, s{SB_}, 3\ns_add_u32 s{SCOL}, s{SC}, s{SD}")
        p(f"s_lshr_b32 s{SA}, s{SA}, 1")
        p(f"s_lshr_b32 s{SC}, s{SB_}, 2\ns_lshl_b32 s{SD}, s{SA}, 3\ns_add_u32 s{STB}, s{SD}, s{SC}")
        p(f"s_and_b32 s{SC}, s{SC}, 3\ns_lshl_b32 s{SD}, s{SA}, 2\ns_add_u32 s{SRB}, s{SD}, s{SC}")
        if self.o.get("map", 1) == 1:
            p(f"s_and_b32 s{SD}, s2, 7\ns_lshl_b32 s{SD}, s{SD}, 2\ns_lshr_b32 s{STB}, s{SB_}, 3\ns_add_u32 s{STB}, s{STB}, s{SD}\ns_and_b32 s{SJ}, s{SB_}, 7")
        else: p(f"s_mov_b32 s{SJ}, s{SCOL}")
        p(f"s_mov_b32 s{SX+2}, 2097152\ns_mov_b32 s{SX+3}, 0x20000\ns_mov_b32 s{SW1+3}, 0x20000")
        if "probe" in self.o:
            off, ls, ws_ = [int(x) for x in self.o["probe"].split(",")]
            p(f"s_load_dwordx2 {sp(SPFP)}, s[0:1], {off}\ns_lshl_b32 s{SD}, s2, 2\ns_add_u32 s{SD}, s{SD}, s{SWV}\ns_mul_i32 s{SD}, s{SD}, {ws_}")
            p(f"v_mul_u32_u24 {v(4)}, {ls}, {v(VL)}\nv_add_u32 {v(4)}, s{SD}, {v(4)}\ns_waitcnt lgkmcnt(0)")
            p(f"global_load_dword {v(5)}, {v(4)}, {sp(SPFP)}\ns_waitcnt vmcnt(0)")
            self.stamp(30)
        pf = self.o.get("pf", 2)
        if pf == 1:
            p(f"s_lshl_b32 s{SD}, s2, 2\ns_add_u32 s{SD}, s{SD}, s{SWV}\ns_mov_b32 s{SC}, 0\ns_mov_b32 s{SA}, 0")
            for (lo, off) in [(256, 80), (428, 24), (492, 32)]:
                p(f"s_cmp_ge_u32 s{SD}, {lo}\ns_cselect_b32 s{SC}, {off}, s{SC}\ns_cselect_b32 s{SA}, {lo}, s{SA}")
            p(f"s_cmp_lt_u32 s{SD}, 556\ns_cselect_b32 s{SPFE}, 1, 0")
            p(f"s_sub_u32 s{SD}, s{SD}, s{SA}\ns_load_dwordx2 {sp(SPFP)}, s[0:1], s{SC}")
            p(f"s_lshl_b32 s{SD}, s{SD}, 13\nv_lshl_add_u32 {v(4)}, {v(VL)}, 7, s{SD}")
        if pf == 2:
            p(f"s_lshl_b32 s{SD}, s{SWV}, 8\ns_add_u32 s{SD}, s{SD}, s2\ns_mov_b32 s{SC}, 0\ns_mov_b32 s{SA}, 0\ns_mov_b32 s{SE}, 2047")
            for (lo, off, last) in [(171, 24, 511), (214, 32, 511), (257, 80, 0)]:
                p(f"s_cmp_ge_u32 s{SD}, {lo}\ns_cselect_b32 s{SC}, {off}, s{SC}\ns_cselect_b32 s{SA}, {lo}, s{SA}\ns_cselect_b32 s{SE}, {last}, s{SE}")
            p(f"s_cmp_lt_u32 s{SD}, 365\ns_cselect_b32 s{SPFE}, 1, 0")
            p(f"s_sub_u32 s{SD}, s{SD}, s{SA}\ns_load_dwordx2 {sp(SPFP)}, s[0:1], s{SC}")
            p(f"v_mul_u32_u24 {v(4)}, 52, {v(VL)}\nv_lshrrev_b32 {v(4)}, 8, {v(4)}\nv_mul_u32_u24 {v(5)}, 5, {v(4)}\nv_sub_u32 {v(5)}, {v(VL)}, {v(5)}")
            p(f"s_mul_i32 s{SA}, s{SD}, 12\nv_add_u32 {v(4)}, s{SA}, {v(4)}\nv_min_u32 {v(4)}, s{SE}, {v(4)}\nv_lshlrev_b32 {v(4)}, 10, {v(4)}\nv_lshl_add_u32 {v(4)}, {v(5)}, 7, {v(4)}\nv_add_u32 {v(4)}, 384, {v(4)}")
            p(f"s_lshl_b32 s{SD}, s{SD}, 13\ns_add_u32 s{SD}, s{SD}, {192*2752}\nv_lshl_add_u32 {v(5)}, {v(VL)}, 7, s{SD}\nv_min_u32 {v(5)}, {512*2752-4}, {v(5)}")
            p(f"s_cmp_eq_u32 s{SE}, 0\ns_cselect_b64 vcc, -1, 0\nv_cndmask_b32 {v(4)}, {v(4)}, {v(5)}, vcc")
        self.LU = p.label("U"); self.LG = p.label("G")
        p(f"s_cmp_ge_u32 s{SB_}, 16\ns_cbranch_scc1 {self.LU}")
    def code_prefetch(self, va, vd):
        if not self.o.get("cpf", 1): return
        p = self.p
        sk = p.label("cpf"); here = p.label("pc")
        nsl = self.o.get("cpfn", 6)
        p(f"s_lshr_b32 s{SA}, s2, 3\ns_and_b32 s{SA}, s{SA}, 15\ns_lshl_b32 s{SA}, s{SA}, 2\ns_add_u32 s{SA}, s{SA}, s{SWV}")
        p(f"s_cmp_ge_u32 s{SA}, {nsl}\ns_cbranch_scc1 {sk}")
        p(f"s_getpc_b64 s[{SSTMP}:{SSTMP+1}]")
        p.put(here)
        p(f"s_sub_u32 s{SSTMP}, s{SSTMP}, {here}-{NAME}\ns_subb_u32 s{SSTMP+1}, s{SSTMP+1}, 0")
        p(f"s_lshl_b32 s{SA}, s{SA}, 13\nv_lshl_add_u32 {v(va)}, {v(VL)}, 7, s{SA}\nv_min_u32 {v(va)}, {self.END}-{NAME}, {v(va)}")
        p(f"global_load_dword {v(vd)}, {v(va)}, s[{SSTMP}:{SSTMP+1}]")
        p.put(sk)
    def pf1(self, when=1):
        if self.o.get("pf", 2) == when:
            p = self.p; l = p.label("pf")
            p(f"s_cmp_eq_u32 s{SPFE}, 0\ns_cbranch_scc1 {l}\nglobal_load_dword {v(5)}, {v(4)}, {sp(SPFP)}")
            p.put(l)
    def late_args(self):
        p = self.p
        for (r, off) in [(SWSP, 88), (SCRE, 40), (SCIM, 48), (SWOUT, 104), (SOUT, 120), (PDSK, 64), (PBSP, 96)]:
            p(f"s_load_dwordx2 {sp(r)}, s[0:1], {off}")
        p(f"s_load_dword s{ST_T}, {sp(SWS)}, {EPOCH}")
        for (r, n) in [(SWSP, 8388608), (SWS, WS_END), (SCRE, 524288), (SCIM, 524288), (SWOUT, 704512), (SOUT, 4194304)]:
            p(f"s_mov_b32 s{r+2}, {n}\ns_mov_b32 s{r+3}, 0x20000")
    def epoch2(self):
        p = self.p
        p.wait_lg_all()
        p(f"s_mul_i32 s{ST_T}, s{ST_T}, 0x9E3779B1\ns_add_u32 s{ST_T}, s{ST_T}, 0x7F4A7C15")

    def touch_wsp(self, va, vd, k, n):
        p = self.p
        if k == 0:
            p(f"s_lshr_b32 s{SB_}, s2, 3\ns_lshl_b32 s{SB_}, s{SB_}, 2\ns_add_u32 s{SB_}, s{SB_}, s{SWV}\ns_lshl_b32 s{SB_}, s{SB_}, 13")
            p(f"s_and_b32 s{SA}, s2, 7\ns_lshl_b32 s{SA}, s{SA}, 20\ns_add_u32 s{SPFP}, s{SA}, s{SB_}")
            p(f"v_cmp_gt_u32 vcc, {64//n}, {v(VL)}\nv_lshlrev_b32 {v(va)}, 7, {v(VL)}\ns_nop 0\nv_cndmask_b32 {v(va)}, {v(VOOB)}, {v(va)}, vcc")
        else: p(f"s_add_u32 s{SPFP}, s{SPFP}, {8192//n}")
        p.vmem(f"buffer_load_dword {v(vd)}, {v(va)}, {srd(SWSP)}, s{SPFP} offen {self.o.get('tmod', '')}")
    def ctouch(self, va, vd):
        p = self.p; l = p.label("ct")
        p(f"s_lshl_b32 s{SA}, s{SWV}, 8\ns_add_u32 s{SA}, s{SA}, s2\ns_cmp_ge_u32 s{SA}, 856\ns_cbranch_scc1 {l}")
        p(f"s_cmp_lt_u32 s{SA}, 256\ns_cselect_b64 {sp(SSTMP)}, {sp(SCRE)}, {sp(SCIM)}")
        p(f"s_sub_u32 s{SB_}, s{SA}, 512\ns_and_b32 s{SSPIN}, s{SA}, 255\ns_cmp_ge_u32 s{SA}, 512\ns_cselect_b64 {sp(SSTMP)}, {sp(SWOUT)}, {sp(SSTMP)}\ns_cselect_b32 s{SA}, s{SB_}, s{SSPIN}")
        p(f"s_lshl_b32 s{SA}, s{SA}, 11\nv_and_b32 {v(vd)}, 15, {v(VL)}\nv_lshlrev_b32 {v(vd)}, 7, {v(vd)}\nv_add_u32 {v(vd)}, s{SA}, {v(vd)}")
        p(f"global_load_dword {v(vd)}, {v(vd)}, {sp(SSTMP)}")
        p.put(l)
    def paced(self, valu, va, vd, t0, dt):
        if "ct" in self.o: valu.setdefault(self.o["ct"], []).append(lambda: self.ctouch(va, vd + 1 if vd != 205 else 4))
        n = self.o.get("tn", 4)
        if self.o.get("touch", 1) != 1: return
        for k in range(n):
            valu.setdefault(t0 + k * dt, []).append(lambda k=k: self.touch_wsp(va, vd, k, n))
    def touch_c(self, va, vd):
        p = self.p
        p(f"v_lshlrev_b32 {v(va)}, 7, {v(VL)}\ns_lshr_b32 s{SB_}, s2, 3\ns_lshl_b32 s{SB_}, s{SB_}, 2\ns_add_u32 s{SB_}, s{SB_}, s{SWV}\ns_lshl_b32 s{SA}, s{SB_}, 13")
        p.vmem(f"buffer_load_dword {v(vd)}, {v(va)}, {srd(SWOUT)}, s{SA} offen")
        p.vmem(f"buffer_load_dword {v(vd)}, {v(va)}, {srd(SCRE)}, s{SA} offen")
        p.vmem(f"buffer_load_dword {v(vd)}, {v(va)}, {srd(SCIM)}, s{SA} offen")
        p(f"s_add_u32 s{SA}, s{SA}, 524288")
        p.vmem(f"buffer_load_dword {v(vd)}, {v(va)}, {srd(SWOUT)}, s{SA} offen")
    GTR, GPL = 236, 238
    def g_early(self, t):
        p = self.p
        p(f"s_lshr_b32 s{SA}, s{SWV}, 1")
        self.unit_tr_addr(self.GTR, SREG, t, True, flip_sreg=SA)
        p(f"s_lshl_b32 s{SA}, s{SJ}, 13\ns_add_u32 s{SA}, s{SA}, {ZF}\ns_lshl_b32 s{SB_}, s{SWV}, 11\ns_add_u32 s{SB_}, s{SB_}, s{SA}")
        self.poll_addr(self.GPL, [(SB_, 16)])
        p(f"s_lshl_b32 s{SA}, s{STB}, 8\ns_add_u32 s{SA}, s{SA}, {ZF}")
        p(f"v_bfe_u32 {v(t)}, {v(VL)}, 1, 3\nv_lshlrev_b32 {v(t)}, 13, {v(t)}\nv_and_b32 {v(t+1)}, 1, {v(VL)}\nv_lshl_add_u32 {v(t)}, {v(t+1)}, 7, {v(t)}\nv_add_u32 {v(t)}, s{SA}, {v(t)}")
        p(f"s_mov_b32 vcc_lo, 0xffff0000\ns_mov_b32 vcc_hi, 0\nv_cndmask_b32 {v(self.GPL)}, {v(self.GPL)}, {v(t)}, vcc")
        p(f"s_lshl_b32 s{SA}, s{SJ}, 6\ns_lshl_b32 s{SB_}, s{STB}, 1\ns_add_u32 s{SA}, s{SA}, s{SB_}\ns_and_b32 s{SB_}, s{SWV}, 1\ns_add_u32 s{SZI}, s{SA}, s{SB_}")
        p(f"s_lshl_b32 s{SA}, s{SZI}, 7\ns_add_u32 s{SA}, s{SA}, {Z1F}\nv_writelane_b32 {v(self.GPL)}, s{SA}, 32")
        p(f"s_lshl_b32 s{SA}, s{SJ}, 6\ns_lshl_b32 s{SB_}, s{SWV}, 4\ns_add_u32 s{SA}, s{SA}, s{SB_}\ns_mul_i32 s{SGB}, s{SA}, 5632\ns_add_u32 s{SGB}, s{SGB}, {Z2N}")
    def g_poll_issue(self):
        self.gp = self.p.vmem(f"buffer_load_dword {v(self.GPL+1)}, {v(self.GPL)}, {srd(SWS)}, 0 offen sc1")

    def phase_z(self):
        p = self.p; o = self.o
        ACC, FA, FB, XR, WR, XD, WD, T = 16, 64, 88, 96, 100, 104, 108, 112
        p.c("==== phase A: Z ====")
        self.plain_dma_addr(XD, 1024, T)
        p(f"s_lshl_b32 s{SXB}, s{SRB}, 17\ns_lshl_b32 s{SA}, s{SWV}, 15\ns_add_u32 s{SXB}, s{SXB}, s{SA}")
        p(f"s_mul_i32 s{SREG}, s{SWV}, 40960")
        tick = {}
        def xdma(st, cb=None):
            return [((SREG, (st & 3) * 4096) if i == 0 else None, (SXB, st * 128) if i == 0 else None,
                     f"buffer_load_dwordx4 {v(XD+i)}, {srd(SX)}, s{SDO} offen offset:{i*1024} lds", cb) for i in range(4)]
        def wdma(st, cb=None):
            return [((SWL, (st & 3) * 40960) if i == 0 else None, (SW1B, st * 64 * 2752) if i == 0 else None,
                     f"buffer_load_dwordx4 {v(WD+i)}, {srd(SW1)}, s{SDO} offen offset:{i*1024} lds", cb) for i in range(3)]
        def dma(st):
            def cb(t): tick[st] = t
            return self.dseq(wdma(st) + xdma(st, cb))
        self.w_dma_addr(WD, T, 1376)
        p(f"s_mul_i32 s{SW1B}, s{SWV}, {16*2752}\ns_mul_i32 s{SA}, s{SCOL}, 176\ns_add_u32 s{SW1B}, s{SW1B}, s{SA}")
        p(f"s_mul_i32 s{SWL}, s{SWV}, 3072\ns_add_u32 s{SWL}, s{SWL}, 16384\ns_mov_b32 s{SW1+2}, {512*2752}")
        p.wait_lg_all()
        p(f"s_mov_b64 {sp(SW1)}, {sp(PWIN)}")
        npro = o.get("npro", 3)
        self.code_prefetch(170, 171)
        self.pf1()
        self.run(dma(0))
        self.late_args()
        def setup():
            self.plain_read_addr(XR, SREG, T)
            self.w_tr_addr(WR, 16384, T)
            self.p(f"v_add_u32 {v(WR+1)}, 81920, {v(WR)}")
            self.wsp_setup(T)
            self.p(f"s_add_u32 s{SPB}, s{SREG}, 32768\ns_mov_b32 s{SPB+1}, s{SREG}\ns_add_u32 s{SPB+2}, s{SREG}, 8192\ns_add_u32 s{SPB+3}, s{SREG}, 16384\ns_add_u32 s{SPB+4}, s{SREG}, 24576")
            self.valid_masks()
        d = []
        for st in range(1, npro): d += dma(st)
        self.run(merge(self.cap(setup), d))
        self.pf1(2)
        self.epoch2()
        self.stamp(0)
        rt = {}
        def reads(n):
            st, ks = n // 4, n % 4; sl = st & 3; s = n & 1; ops = []
            def rb(): rt[(n, 'b')] = p.lds(f"ds_read_b128 {v(FB+4*s,4)}, {v(XR+ks)} offset:{sl*4096}")
            ops.append(rb)
            for mt in range(3):
                for a in range(2):
                    def ra(mt=mt, a=a):
                        rt[(n, mt)] = p.lds(f"ds_read_b64_tr_b16 {v(FA+12*s+4*mt+2*a,2)}, {v(WR+(sl>>1))} offset:{(sl&1)*40960+ks*3072+a*768+mt*64}")
                    ops.append(ra)
            return ops
        def mfmas(n):
            s = n & 1; ops = []
            for mt in range(3):
                def m(mt=mt):
                    p.wait(lg=rt[(n, mt)])
                    c = "0" if n == 0 else v(ACC + 16 * mt, 16)
                    p(f"{MF} {v(ACC+16*mt,16)}, {v(FA+12*s+4*mt,4)}, {v(FB+4*s,4)}, {c}")
                ops.append(m)
            return ops
        GX, GW, GU, GS, GT = 128, 144, 148, 156, 160
        gt = {}
        def gload():
            p(f"s_lshl_b32 s{SE}, s{SRB}, 2\ns_add_u32 s{SE}, s{SE}, s{SWV}\ns_lshl_b32 s{SE}, s{SE}, 3\ns_add_u32 s{SE}, s{SE}, s{SCOL}\ns_lshl_b32 s{SA}, s{SE}, 12")
            for r in range(4): p.vmem(f"buffer_load_dwordx4 {v(GX+4*r,4)}, {v(VL16)}, {srd(SX)}, s{SA} offen offset:{r*1024}")
            gt['t'] = p.vmem(f"global_load_dwordx4 {v(GW,4)}, {v(VL16)}, {sp(PGW)}")
        def gstore():
            p(f"s_lshl_b32 s{SA}, s{SE}, 4\ns_add_u32 s{SA}, s{SA}, {GATE}")
            p.vmem(f"buffer_store_dwordx4 {v(GS,4)}, {v(GT)}, {srd(SWS)}, s{SA} offen sc1")
        gops = [lambda: p.wait(vm=gt['t'])] + self.cap(lambda: self.gate(GX, GW, GU, GS, GT)) + [gstore]
        valu = {28: [gload]}
        def touch_u():
            p(f"v_lshlrev_b32 {v(170)}, 7, {v(VL)}\ns_lshr_b32 s{SB_}, s2, 3\ns_lshl_b32 s{SB_}, s{SB_}, 2\ns_add_u32 s{SB_}, s{SB_}, s{SWV}\ns_lshl_b32 s{SB_}, s{SB_}, 13")
            p(f"s_and_b32 s{SA}, s2, 7\ns_lshl_b32 s{SA}, s{SA}, 20\ns_add_u32 s{SA}, s{SA}, s{SB_}\ns_add_u32 s{SA}, s{SA}, {1<<19}")
            p.vmem(f"buffer_load_dword {v(171)}, {v(170)}, {srd(SWSP)}, s{SA} offen")
        if o.get("touchu"): valu[o["touchu"]] = [touch_u]
        def warm():
            p(f"v_lshlrev_b32 {v(170)}, 18, {v(VL)}\nv_lshlrev_b32 {v(172)}, 16, {v(VL)}\nv_lshlrev_b32 {v(173)}, 13, {v(VL)}")
            ls = [p.label("wm") for _ in range(4)]
            p(f"s_cmp_eq_u32 s{SWV}, 1\ns_cbranch_scc1 {ls[0]}\ns_cmp_eq_u32 s{SWV}, 2\ns_cbranch_scc1 {ls[1]}\ns_cmp_eq_u32 s{SWV}, 3\ns_cbranch_scc1 {ls[2]}")
            p(f"buffer_load_dword {v(171)}, {v(170)}, {srd(SWS)}, 0 offen sc1\ns_branch {ls[3]}")
            p.put(ls[0]); p(f"buffer_load_dword {v(171)}, {v(172)}, {srd(SOUT)}, 0 offen sc1\ns_branch {ls[3]}")
            p.put(ls[1]); p(f"buffer_load_dword {v(171)}, {v(173)}, {srd(SCRE)}, 0 offen\nbuffer_load_dword {v(171)}, {v(173)}, {srd(SCIM)}, 0 offen\ns_branch {ls[3]}")
            p.put(ls[2]); p(f"v_lshlrev_b32 {v(173)}, 14, {v(VL)}\nbuffer_load_dword {v(171)}, {v(173)}, {srd(SWOUT)}, 0 offen")
            p.put(ls[3])
        if o.get("warm"): valu[31] = [warm]
        def ztouch(part):
            if part == 0:
                p(f"v_lshlrev_b32 {v(174)}, 7, {v(VL)}\ns_lshr_b32 s{SB_}, s2, 3\ns_lshl_b32 s{SB_}, s{SB_}, 2\ns_add_u32 s{SB_}, s{SB_}, s{SWV}")
                p(f"s_and_b32 s{SA}, s2, 7\ns_lshl_b32 s{SPFP+1}, s{SB_}, 3\ns_add_u32 s{SPFP+1}, s{SPFP+1}, s{SA}")
                p(f"s_lshl_b32 s{SA}, s{SA}, 20\ns_lshl_b32 s{SB_}, s{SB_}, 13\ns_add_u32 s{SPFP}, s{SA}, s{SB_}")
                p.vmem(f"buffer_load_dword {v(175)}, {v(174)}, {srd(SWSP)}, s{SPFP} offen")
            if part == 1:
                p(f"s_add_u32 s{SPFP}, s{SPFP}, {1<<19}")
                p.vmem(f"buffer_load_dword {v(175)}, {v(174)}, {srd(SWSP)}, s{SPFP} offen")
            if part == 2:
                l = p.label("zt")
                p(f"s_cmp_ge_u32 s{SPFP+1}, 428\ns_cbranch_scc1 {l}")
                p(f"s_cmp_lt_u32 s{SPFP+1}, 128\ns_cselect_b64 {sp(SSTMP)}, {sp(SCRE)}, {sp(SCIM)}\ns_and_b32 s{SA}, s{SPFP+1}, 127")
                p(f"s_sub_u32 s{SB_}, s{SPFP+1}, 256\ns_cmp_ge_u32 s{SPFP+1}, 256\ns_cselect_b64 {sp(SSTMP)}, {sp(SWOUT)}, {sp(SSTMP)}\ns_cselect_b32 s{SA}, s{SB_}, s{SA}")
                p(f"s_lshl_b32 s{SA}, s{SA}, 12\nv_and_b32 {v(174)}, 4095, {v(174)}\nv_add_u32 {v(174)}, s{SA}, {v(174)}")
                p(f"global_load_dword {v(175)}, {v(174)}, {sp(SSTMP)}")
                p.put(l)
        if o.get("touch", 1) == 2:
            for k in range(3): valu.setdefault(o.get(f"zs{k}", [0, 0, 0][k]), []).append(lambda k=k: ztouch(k))
        else: self.paced(valu, 174, 175, o.get("zt0", 6), o.get("zdt", 6))
        self.gemm_loop(4, reads, mfmas, dma, tick, 2, npro, {o.get('ze0', 5): lambda: self.wsp_dma(0), o.get('ze1', 6): lambda: self.wsp_dma(1)}, valu)
        self.stamp(1)
        MA, MB = SK + 2, SK + 4
        GR, VLO = 72, 80
        def seg1b():
            p = self.p
            S0, S1, MU = 64, 66, 68
            p(f"v_pk_add_f32 {v(S0,2)}, {v(ACC,2)}, {v(ACC+2,2)}\nv_pk_add_f32 {v(S1,2)}, {v(ACC+4,2)}, {v(ACC+6,2)}")
            for i in range(4, 16):
                s = S0 if i % 2 == 0 else S1
                p(f"v_pk_add_f32 {v(s,2)}, {v(s,2)}, {v(ACC+2*i,2)}")
            for (m, b) in [(MA, 16), (MB, 20)]:
                p(f"s_mov_b64 exec, {sp(m)}")
                for i in range(b, b + 4):
                    s = S0 if i % 2 == 0 else S1
                    p(f"v_pk_add_f32 {v(s,2)}, {v(s,2)}, {v(ACC+2*i,2)}")
            p("s_mov_b64 exec, -1")
            p(f"v_pk_add_f32 {v(S0,2)}, {v(S0,2)}, {v(S1,2)}\nv_add_f32 {v(GR)}, {v(S0)}, {v(S0+1)}")
            p(f"v_mov_b32 {v(S0)}, {v(GR)}\nv_mov_b32 {v(GR+1)}, s{ST_T}\nv_mov_b32 {v(GR+3)}, s{ST_T}\nv_permlane32_swap_b32 {v(GR)}, {v(S0)}\nv_add_f32 {v(GR)}, {v(GR)}, {v(S0)}")
            p(f"v_mul_f32 {v(MU)}, s{SK+6}, {v(GR)}")
            D0, D1 = 76, 78
            def m2(i, first=False):
                d = D0 if i % 2 == 0 else D1; s = S0 if i % 2 == 0 else S1
                p(f"v_pk_add_f32 {v(d,2)}, {v(ACC+2*i,2)}, {v(MU,2)} op_sel_hi:[1,0] neg_lo:[0,1] neg_hi:[0,1]")
                if first: p(f"v_pk_mul_f32 {v(s,2)}, {v(d,2)}, {v(d,2)}")
                else: p(f"v_pk_fma_f32 {v(s,2)}, {v(d,2)}, {v(d,2)}, {v(s,2)}")
            for i in range(16): m2(i, i < 2)
            for (m, b) in [(MA, 16), (MB, 20)]:
                p(f"s_mov_b64 exec, {sp(m)}")
                for i in range(b, b + 4): m2(i)
            p("s_mov_b64 exec, -1")
            p(f"v_pk_add_f32 {v(S0,2)}, {v(S0,2)}, {v(S1,2)}\nv_add_f32 {v(GR+2)}, {v(S0)}, {v(S0+1)}")
            p(f"v_mov_b32 {v(S0)}, {v(GR+2)}\nv_cmp_gt_u32 vcc, 32, {v(VL)}")
            p(f"s_lshl_b32 s{SC}, s{SRB}, 2\ns_add_u32 s{SC}, s{SC}, s{SWV}")
            p(f"v_permlane32_swap_b32 {v(GR+2)}, {v(S0)}\nv_cndmask_b32 {v(VLO)}, {v(VOOB)}, {v(VL16)}, vcc\nv_add_f32 {v(GR+2)}, {v(GR+2)}, {v(S0)}")
            p(f"s_lshl_b32 s{SD}, s{SC}, 12\ns_add_u32 s{SD}, s{SD}, {ST}\ns_lshl_b32 s{SA}, s{SCOL}, 9\ns_add_u32 s{SA}, s{SA}, s{SD}")
        seg1 = self.cap(lambda: self.gelu_many([ACC + 2 * i for i in range(24)], [64, 68, 72, 76]))
        h = len(seg1) // 5
        f1 = self.wsp_dma(2) + [lambda: p("s_barrier")]
        f2 = self.wsp_dma(3) + self.wsp_dma(4)
        self.run(merge(seg1[:h], f1) + merge(seg1[h:], f2))
        seg1b()
        p.vmem(f"buffer_store_dwordx4 {v(GR,4)}, {v(VLO)}, {srd(SWS)}, s{SA} offen sc1")
        self.stamp(2)
        lgw = lambda: p.wait(lg=p.lg - 1)
        Q0, Q1, QA, QB = 112, 113, 114, 115
        MN, VR, N3, I3, TM = 80, 81, 82, 83, 84
        def misc():
            p = self.p
            self.g_early(120)
            p(f"v_lshrrev_b32 {v(Q1)}, 5, {v(VL)}\nv_lshlrev_b32 {v(Q1)}, 6, {v(Q1)}\nv_xor_b32 {v(Q0)}, {v(VL16)}, {v(Q1)}\nv_xor_b32 {v(Q1)}, 128, {v(Q0)}")
            p(f"v_cndmask_b32 {v(QA)}, {v(VOOB)}, {v(Q0)}, {sp(MA)}\nv_cndmask_b32 {v(QB)}, {v(VOOB)}, {v(Q1)}, {sp(MB)}")
            p(f"s_lshl_b32 s{SA}, s{SCOL}, 6\ns_add_u32 s{SC}, s{SA}, s{SC}\ns_mul_i32 s{SE}, s{SC}, 5632")
            self.flag_prep(118)
            p(f"v_cmp_gt_u32 vcc, 32, {v(VL)}\nv_mov_b32 {v(N3)}, {f2u(72.0)}\nv_mov_b32 {v(TM)}, {f2u(88.0)}\nv_mov_b32 {v(I3)}, {f2u(1/72)}\nv_mov_b32 {v(TM+1)}, {f2u(1/88)}")
            p(f"v_cndmask_b32 {v(N3)}, {v(N3)}, {v(TM)}, vcc\nv_cndmask_b32 {v(I3)}, {v(I3)}, {v(TM+1)}, vcc")
        za = o.get("za", 1)
        f = self.wsp_read(0) + self.wsp_read(1) + [lgw]
        for st in range(5, 5 + za): f += self.wsp_dma(st)
        self.run(merge(gops + self.cap(misc), f))
        self.stamp(3)
        SG = 64
        for q in range(4):
            ts = p.vmem(f"buffer_load_dwordx4 {v(SG+4*q,4)}, {v(VL16)}, {srd(SWS)}, s{SD} offen offset:{q*1024} sc1")
        for st in range(5 + za, 7): self.run(self.wsp_dma(st))
        l = p.label("sp"); dl = p.label("sd")
        p.wait(vm=ts)
        p(f"s_mov_b32 s{SSPIN}, 0")
        p.put(l)
        X0 = 116
        p(f"v_xor_b32 {v(MN)}, s{ST_T}, {v(SG+1)}\nv_xor_b32 {v(VR)}, s{ST_T}, {v(SG+3)}")
        for r in [5, 9, 13]:
            p(f"v_xor_b32 {v(X0)}, s{ST_T}, {v(SG+r)}\nv_xor_b32 {v(X0+1)}, s{ST_T}, {v(SG+r+2)}\nv_or3_b32 {v(MN)}, {v(MN)}, {v(X0)}, {v(X0+1)}")
        p(f"v_or_b32 {v(MN)}, {v(MN)}, {v(VR)}")
        p(f"v_cmp_ne_u32 vcc, 0, {v(MN)}\ns_cmp_eq_u64 vcc, 0\ns_cbranch_scc1 {dl}")
        for q in range(4):
            p(f"buffer_load_dwordx4 {v(SG+4*q,4)}, {v(VL16)}, {srd(SWS)}, s{SD} offen offset:{q*1024} sc1")
        p("s_waitcnt vmcnt(0)")
        p(f"s_add_u32 s{SSPIN}, s{SSPIN}, 1\ns_cmp_lt_u32 s{SSPIN}, {SPIN}\ns_cbranch_scc1 {l}")
        p.put(dl)
        self.stamp(4)
        p(f"v_add_f32 {v(MN)}, {v(SG)}, {v(SG+4)}\nv_add_f32 {v(TM+2)}, {v(SG+8)}, {v(SG+12)}\nv_add_f32 {v(MN)}, {v(MN)}, {v(TM+2)}")
        p(f"v_mov_b32 {v(TM+3)}, {v(MN)}\nv_add_f32 {v(VR)}, {v(SG+2)}, {v(SG+6)}\nv_add_f32 {v(TM+2)}, {v(SG+10)}, {v(SG+14)}")
        p(f"v_permlane32_swap_b32 {v(MN)}, {v(TM+3)}\nv_add_f32 {v(VR)}, {v(VR)}, {v(TM+2)}\nv_add_f32 {v(MN)}, {v(MN)}, {v(TM+3)}")
        p(f"v_mul_f32 {v(MN)}, {f2u(1/688)}, {v(MN)}")
        for q in range(4):
            n_, i_ = (TM, TM + 1) if q < 3 else (N3, I3)
            p(f"v_fma_f32 {v(TM+2)}, {v(SG+4*q)}, {v(i_)}, -{v(MN)}\nv_mul_f32 {v(TM+2)}, {v(TM+2)}, {v(TM+2)}\nv_fmac_f32 {v(VR)}, {v(TM+2)}, {v(n_)}")
        self.xhalf_sum(VR, TM)
        p(f"v_mov_b32 {v(TM)}, {f2u(1e-5)}\nv_fmac_f32 {v(TM)}, {f2u(1/688)}, {v(VR)}\nv_rsq_f32 {v(VR)}, {v(TM)}")
        p(f"s_add_u32 s{SA}, s{SE}, {Z2N}\ns_add_u32 s{SB_}, s{SA}, 4096")
        p(f"v_mul_f32 {v(MN)}, {v(MN)}, {v(VR)}")
        ZP = 88
        for u in range(6):
            mt, q = u >> 1, u & 1
            R4 = range(4 * u, 4 * u + 4)
            for i in R4: p(f"v_pk_fma_f32 {v(ACC+2*i,2)}, {v(ACC+2*i,2)}, {v(MN,2)}, {v(MN,2)} op_sel:[0,1,0] op_sel_hi:[1,1,0] neg_lo:[0,0,1] neg_hi:[0,0,1]")
            for i in R4: p(f"v_cvt_pk_bf16_f32 {v(ZP+i)}, {v(ACC+2*i)}, {v(ACC+2*i+1)}")
            r = v(ZP + 4 * u, 4)
            if mt < 2: t = p.vmem(f"buffer_store_dwordx4 {r}, {v(Q0+q)}, {srd(SWS)}, s{SA} offen offset:{mt*2048+q*1024} sc1")
            else: t = p.vmem(f"buffer_store_dwordx4 {r}, {v(QA+q)}, {srd(SWS)}, s{SB_} offen offset:{q*1024} sc1")
        p(f"s_lshl_b32 s{SE}, s{SC}, 7\ns_add_u32 s{SE}, s{SE}, {ZF}")
        for st in range(2, 5): self.run(self.wsp_read(st))
        p.wait(vm=t)
        self.flag(SE, 118)
        self.run([lgw] + self.wsp_dma(7))
        if o.get("touchc", 0): self.touch_c(170, 171)
        for st in range(5, 8): self.run(self.wsp_read(st))
        self.g_poll_issue()
        p(f"s_mov_b32 s{SLATE}, 0")
        self.stamp(5)
        p(f"s_branch {self.LG}")

    def phase_u(self):
        p = self.p; o = self.o
        ACC, ZA, FA, FB, FW, FX = 16, 80, 128, 144, 160, 184
        XR, BR, X1R, WR, XD, BD, WD, T = 192, 196, 200, 204, 206, 210, 214, 60
        p.c("==== phase A: U ====")
        p.put(self.LU)
        WT, WP = SK + 8, SK + 9
        p(f"v_lshrrev_b32 {v(T)}, 5, {v(VL)}\nv_lshlrev_b32 {v(T)}, 15, {v(T)}")
        p(f"v_bfe_u32 {v(T+1)}, {v(VL)}, 3, 1\nv_lshl_add_u32 {v(T)}, {v(T+1)}, 14, {v(T)}")
        p(f"v_bfe_u32 {v(T+1)}, {v(VL)}, 4, 1\nv_lshl_add_u32 {v(T)}, {v(T+1)}, 10, {v(T)}")
        self.plain_dma_addr2(XD, T, T + 1, 2048)
        p(f"s_lshr_b32 s{WP}, s{SWV}, 1\ns_and_b32 s{WT}, s{SWV}, 1\ns_lshl_b32 s{SA}, s{WT}, 5")
        for i in range(4): p(f"v_xor_b32 {v(XD+i)}, s{SA}, {v(XD+i)}")
        self.plain_dma_addr(BD, 1024, T)
        self.w_dma_addr(WD, T, 0)
        p(f"s_lshl_b32 s{SXB}, s{SRB}, 17\ns_lshl_b32 s{SD}, s{WP}, 16\ns_add_u32 s{SXB}, s{SXB}, s{SD}\ns_lshl_b32 s{SD}, s{WT}, 13\ns_add_u32 s{SXB}, s{SXB}, s{SD}")
        p(f"s_lshl_b32 s{SW1B}, s{SCOL}, 16\ns_lshl_b32 s{SD}, s{WT}, 15\ns_add_u32 s{SW1B}, s{SW1B}, s{SD}")
        p(f"s_lshl_b32 s{SXL}, s{SWV}, 12\ns_mov_b32 s{SW1+2}, 524288")
        SWIB = SCB
        p(f"s_mul_i32 s{SWIB}, s{SWV}, {16*2752}\ns_mul_i32 s{SA}, s{SCOL}, 176\ns_add_u32 s{SWIB}, s{SWIB}, s{SA}")
        p(f"s_mul_i32 s{SWL}, s{SWV}, 3072\ns_add_u32 s{SWL}, s{SWL}, 98304\ns_mov_b32 s{PWIN+2}, {512*2752}\ns_mov_b32 s{PWIN+3}, 0x20000")
        PR = 228
        p(f"s_lshl_b32 s{SD}, s{SRB}, 1\ns_add_u32 s{SD}, s{SD}, s{WT}")
        p(f"s_lshl_b32 s{SA}, s{SCOL}, 1\ns_add_u32 s{SA}, s{SA}, s{WP}")
        p(f"s_lshl_b32 s{SE}, s{SD}, 4\ns_add_u32 s{SE}, s{SE}, s{SA}")
        p(f"s_lshl_b32 s{SA}, s{SA}, 5\nv_and_b32 {v(T)}, 31, {v(VL)}\nv_add_lshl_u32 {v(T)}, {v(T)}, s{SA}, 1")
        p.wait_lg_all()
        p(f"s_cmp_eq_u32 s{WP}, 0\ns_cselect_b64 {sp(SW1)}, {sp(PBRE)}, {sp(PBIM)}")
        tick = {}
        def dma(st):
            sl = st % 3; items = []
            def cb(t): tick[st] = t
            for i in range(3):
                items.append(((SWL, sl * 12288) if i == 0 else None, (SWIB, st * 64 * 2752) if i == 0 else None,
                              f"buffer_load_dwordx4 {v(WD+i)}, {srd(PWIN)}, s{SDO} offen offset:{i*1024} lds", None))
            for (vd, sr, sb, lb) in [(XD, SX, SXB, 0), (BD, SW1, SW1B, 49152)]:
                for i in range(4):
                    items.append(((SXL, lb + sl * 16384) if i == 0 else None, (sb, st * 128) if i == 0 else None,
                                  f"buffer_load_dwordx4 {v(vd+i)}, {srd(sr)}, s{SDO} offen offset:{i*1024} lds", cb))
            return self.dseq(items)
        self.pf1()
        self.run(dma(0))
        p.vmem(f"global_load_ushort {v(PR)}, {v(T)}, {sp(PLRE)}")
        p.vmem(f"global_load_ushort {v(PR+1)}, {v(T)}, {sp(PLIM)}")
        tp = p.vmem(f"global_load_ushort {v(PR+2)}, {v(T)}, {sp(PLDT)}")
        npro = o.get("npro_u", 2)
        self.late_args()
        def setup():
            p = self.p
            p(f"s_mul_i32 s{SREG}, s{SWV}, 40960\ns_lshl_b32 s{SA}, s{WT}, 13")
            self.plain_read_addr(XR, SA, T)
            p(f"s_lshl_b32 s{SA}, s{WP}, 12\ns_add_u32 s{SA}, s{SA}, 49152")
            self.plain_read_addr(BR, SA, T)
            self.w_tr_addr(WR, 98304, T)
            p(f"v_bfe_u32 {v(T)}, {v(VL)}, 3, 1\nv_lshlrev_b32 {v(T+1)}, 12, {v(T)}\nv_xor_b32 {v(T)}, s{WT}, {v(T)}\nv_lshlrev_b32 {v(T)}, 1, {v(T)}")
            p(f"v_bfe_u32 {v(T+2)}, {v(VL)}, 1, 2\nv_lshl_add_u32 {v(T+1)}, {v(T+2)}, 10, {v(T+1)}")
            p(f"v_and_b32 {v(T+2)}, 1, {v(T+2)}\nv_lshl_add_u32 {v(T)}, {v(T+2)}, 2, {v(T)}")
            p(f"v_and_b32 {v(T+2)}, 1, {v(VL)}\nv_lshl_add_u32 {v(T+1)}, {v(T+2)}, 8, {v(T+1)}\nv_or_b32 {v(T)}, {v(T)}, {v(T+2)}")
            p(f"v_bfe_u32 {v(T+2)}, {v(VL)}, 4, 1\nv_lshl_add_u32 {v(T+1)}, {v(T+2)}, 7, {v(T+1)}")
            p(f"s_lshl_b32 s{SA}, s{WP}, 13\ns_lshl_b32 s{SB_}, s{WT}, 9\ns_add_u32 s{SA}, s{SA}, s{SB_}\nv_add_u32 {v(T+1)}, s{SA}, {v(T+1)}")
            p(f"v_lshrrev_b32 {v(T+2)}, 5, {v(VL)}\nv_xor_b32 {v(T)}, {v(T)}, {v(T+2)}\nv_lshlrev_b32 {v(T)}, 4, {v(T)}")
            for ks in range(4): p(f"v_xor_b32 {v(X1R+ks)}, {32*ks}, {v(T)}\nv_add_u32 {v(X1R+ks)}, {v(X1R+ks)}, {v(T+1)}")
            self.wsp_setup(T)
            p(f"s_lshl_b32 s{SPB+1}, s{WT}, 13\ns_mul_i32 s{SA}, s{WP}, 49152\ns_add_u32 s{SPB+1}, s{SPB+1}, s{SA}\ns_add_u32 s{SPB}, s{SPB+1}, 32768\ns_add_u32 s{SPB+2}, s{SPB+1}, 16384")
            p(f"s_lshl_b32 s{SA}, s{SWV}, 13\ns_add_u32 s{SPB+3}, s{SA}, {13*8192}\ns_add_u32 s{SPB+4}, s{SA}, {17*8192}")
            p.atom(f"s_cmp_eq_u32 s{SWV}, 3\ns_cselect_b32 s{SPB+4}, {12*8192}, s{SPB+4}")
            self.valid_masks()
        self.run(merge(self.cap(setup), dma(1) + (dma(2) if npro > 2 else [])))
        LB, CF, L16, L128, L256, LQ0, LQ1 = 218, 220, 222, 224, 226, 228, 230
        X0, X1, X2, X3 = 232, 233, 234, 235
        L32, L64 = 236, 238
        def csq(d, s):
            p = self.p
            p(f"v_mul_f32 {v(X0)}, {v(s+1)}, {v(s+1)}\nv_add_f32 {v(X1)}, {v(s)}, {v(s)}")
            p(f"v_mul_f32 {v(d+1)}, {v(X1)}, {v(s+1)}\nv_fma_f32 {v(d)}, {v(s)}, {v(s)}, -{v(X0)}")
        def cmul(d, a, b):
            p = self.p
            p(f"v_mul_f32 {v(X0)}, {v(a+1)}, {v(b+1)}\nv_mul_f32 {v(X1)}, {v(a+1)}, {v(b)}")
            p(f"v_fma_f32 {v(X0)}, {v(a)}, {v(b)}, -{v(X0)}\nv_fma_f32 {v(d+1)}, {v(a)}, {v(b+1)}, {v(X1)}\nv_mov_b32 {v(d)}, {v(X0)}")
        def cfma(d, a, b, c):
            p = self.p
            p(f"v_fma_f32 {v(X0)}, {v(a)}, {v(b)}, {v(c)}\nv_fma_f32 {v(X1)}, {v(a)}, {v(b+1)}, {v(c+1)}")
            p(f"v_fma_f32 {v(X0)}, -{v(a+1)}, {v(b+1)}, {v(X0)}\nv_fma_f32 {v(d+1)}, {v(a+1)}, {v(b)}, {v(X1)}\nv_mov_b32 {v(d)}, {v(X0)}")
        def params():
            p = self.p
            p(f"v_lshlrev_b32 {v(PR)}, 16, {v(PR)}\nv_lshlrev_b32 {v(PR+1)}, 16, {v(PR+1)}\nv_lshlrev_b32 {v(PR+2)}, 16, {v(PR+2)}")
            p(f"v_mul_f32 {v(X0)}, {f2u(LOG2E)}, {v(PR+2)}\nv_exp_f32 {v(X0)}, {v(X0)}"); self.rnd(X0, X0)
            p(f"v_mul_f32 {v(X1)}, {v(X0)}, {v(PR)}\nv_mul_f32 {v(X2)}, {v(X0)}, {v(PR+1)}")
            p(f"v_mul_f32 {v(X1)}, {f2u(LOG2E)}, {v(X1)}\nv_exp_f32 {v(X1)}, {v(X1)}")
            p(f"v_mul_f32 {v(X2)}, {f2u(1/(2*math.pi))}, {v(X2)}\nv_fract_f32 {v(X2)}, {v(X2)}")
            p(f"v_cos_f32 {v(X3)}, {v(X2)}\nv_sin_f32 {v(X2)}, {v(X2)}")
            p(f"v_mul_f32 {v(X0)}, {v(PR)}, {v(PR)}")
            p(f"v_mul_f32 {v(LB)}, {v(X1)}, {v(X3)}\nv_mul_f32 {v(LB+1)}, {v(X1)}, {v(X2)}")
            p(f"v_fmac_f32 {v(X0)}, {v(PR+1)}, {v(PR+1)}\nv_rcp_f32 {v(X0)}, {v(X0)}")
            p(f"v_add_f32 {v(X1)}, -1.0, {v(LB)}\nv_add_f32 {v(X0)}, {v(X0)}, {v(X0)}")
            p(f"v_mul_f32 {v(X2)}, {v(X1)}, {v(PR)}\nv_fmac_f32 {v(X2)}, {v(LB+1)}, {v(PR+1)}\nv_mul_f32 {v(CF)}, {v(X2)}, {v(X0)}")
            p(f"v_mul_f32 {v(X2)}, {v(LB+1)}, {v(PR)}\nv_fma_f32 {v(X2)}, -{v(X1)}, {v(PR+1)}, {v(X2)}\nv_mul_f32 {v(CF+1)}, {v(X2)}, {v(X0)}")
            csq(L16, LB); csq(L16, L16); csq(L16, L16); csq(L16, L16)
            csq(L32, L16); csq(L64, L32); csq(L128, L64); csq(L256, L128)
            p.atom(f"s_cmp_eq_u32 s{WT}, 0\ns_cselect_b64 vcc, -1, 0")
            p(f"v_cndmask_b32 {v(L64)}, {v(L64)}, 1.0, vcc\nv_cndmask_b32 {v(L64+1)}, {v(L64+1)}, 0, vcc")
            p(f"v_cmp_gt_u32 vcc, 32, {v(VL)}\nv_cndmask_b32 {v(LQ0)}, {v(L32)}, 1.0, vcc\nv_cndmask_b32 {v(LQ0+1)}, {v(L32+1)}, 0, vcc")
            cmul(LQ0, LQ0, L64); cmul(LQ1, LQ0, L16)
        self.pf1(2)
        self.epoch2()
        self.stamp(0)
        pops = [lambda: p.wait(vm=tp)] + self.cap(params)
        valu = {}
        q = (len(pops) + 15) // 16
        for i in range(16): valu[8 + i] = pops[i * q:(i + 1) * q]
        self.paced(valu, 217, 205, o.get("ut0", 4), o.get("udt", 4))
        rt = {}
        def reads(n):
            st, ks = n // 4, n % 4; sl = st % 3; s = n & 1; ops = []
            for k in range(2):
                def ra(k=k): rt[(n, 'a', k)] = p.lds(f"ds_read_b128 {v(FA+8*s+4*k,4)}, {v(XR+(ks^k))} offset:{sl*16384+k*4096}")
                def rb(k=k): rt[(n, 'b', k)] = p.lds(f"ds_read_b128 {v(FB+8*s+4*k,4)}, {v(BR+ks)} offset:{sl*16384+k*8192}")
                ops += [ra, rb]
            def rx(): p.lds(f"ds_read_b128 {v(FX+4*s,4)}, {v(X1R+ks)} offset:{sl*16384}")
            ops.append(rx)
            for mt in range(3):
                for a in range(2):
                    def rw(mt=mt, a=a):
                        rt[(n, 'w', mt)] = p.lds(f"ds_read_b64_tr_b16 {v(FW+12*s+4*mt+2*a,2)}, {v(WR)} offset:{sl*12288+ks*3072+a*768+mt*64}")
                    ops.append(rw)
            return ops
        def mfmas(n):
            s = n & 1; ops = []
            for (mt, cp) in [(0, 0), (1, 0), (1, 1), (0, 1)]:
                def m(mt=mt, cp=cp):
                    if (mt, cp) == (0, 0): p.wait(lg=rt[(n, 'b', 1)])
                    d = v(ACC + 32 * mt + 16 * cp, 16)
                    p(f"{MF} {d}, {v(FA+8*s+4*mt,4)}, {v(FB+8*s+4*cp,4)}, {'0' if n == 0 else d}")
                ops.append(m)
            for mt in range(3):
                def m(mt=mt):
                    if mt == 0: p.wait(lg=rt[(n, 'w', 2)])
                    d = v(ZA + 16 * mt, 16)
                    p(f"{MF} {d}, {v(FW+12*s+4*mt,4)}, {v(FX+4*s,4)}, {'0' if n == 0 else d}")
                ops.append(m)
            return ops
        self.gemm_loop(3, reads, mfmas, dma, tick, 5, npro, {6: lambda: self.wsp_dma(0), 7: lambda: self.wsp_dma(1)}, valu)
        self.stamp(1)
        def U(sg, cp): return ACC + 32 * (sg >> 3) + 16 * cp + 4 * ((sg & 7) >> 1) + 2 * (sg & 1)
        def step(hr, hi, sg, nr, ni, t0, t1):
            p = self.p; A = v(LB, 2)
            p(f"v_pk_fma_f32 {v(t0,2)}, {A}, {v(hr,2)}, {v(U(sg,0),2)} op_sel_hi:[0,1,1]")
            p(f"v_pk_fma_f32 {v(t1,2)}, {A}, {v(hi,2)}, {v(U(sg,1),2)} op_sel_hi:[0,1,1]")
            p(f"v_pk_fma_f32 {v(nr,2)}, {A}, {v(hi,2)}, {v(t0,2)} op_sel:[1,0,0] op_sel_hi:[1,1,1] neg_lo:[1,0,0] neg_hi:[1,0,0]")
            p(f"v_pk_fma_f32 {v(ni,2)}, {A}, {v(hr,2)}, {v(t1,2)} op_sel:[1,0,0] op_sel_hi:[1,1,1]")
        HA, HBb, T0, EX, E8, AD, GR, CQ = 128, 132, 136, 140, 144, 160, 164, 168
        SCR = 98304
        p(f"s_lshl_b32 s{SA}, s{WP}, 11\ns_add_u32 s{SA}, s{SA}, {SCR}")
        p(f"v_and_b32 {v(AD)}, 31, {v(VL)}\nv_lshlrev_b32 {v(AD)}, 6, {v(AD)}\nv_add_u32 {v(AD)}, s{SA}, {v(AD)}")
        p(f"v_lshrrev_b32 {v(AD+1)}, 5, {v(VL)}\nv_lshl_add_u32 {v(AD+1)}, {v(AD+1)}, 4, {v(AD)}\ns_lshl_b32 s{SA}, s{WT}, 5\nv_add_u32 {v(AD+1)}, s{SA}, {v(AD+1)}")
        Z1P = 192
        SZ0, SZ1 = SXL, SWL
        VA_ = 176
        MA, MB = SK + 2, SK + 4
        def z1st(u):
            mt, q = u >> 1, u & 1
            for i in range(4): p(f"v_cvt_pk_bf16_f32 {v(Z1P+4*u+i)}, {v(ZA+8*u+2*i)}, {v(ZA+8*u+2*i+1)}")
            r = v(Z1P + 4 * u, 4)
            if mt < 2: p.vmem(f"buffer_store_dwordx4 {r}, {v(VL16)}, {srd(SWS)}, s{SZ0} offen offset:{mt*2048+q*1024} sc1")
            else: p.vmem(f"buffer_store_dwordx4 {r}, {v(VA_+q)}, {srd(SWS)}, s{SZ1} offen offset:{q*1024} sc1")
        p(f"s_lshl_b32 s{SA}, s{SCOL}, 6\ns_lshl_b32 s{SB_}, s{SRB}, 2\ns_add_u32 s{SA}, s{SA}, s{SB_}\ns_add_u32 s{SA}, s{SA}, s{SWV}\ns_mul_i32 s{SA}, s{SA}, 5632")
        p(f"s_add_u32 s{SZ0}, s{SA}, {Z1}\ns_add_u32 s{SZ1}, s{SZ0}, 4096")
        p(f"v_cndmask_b32 {v(VA_)}, {v(VOOB)}, {v(VL16)}, {sp(MA)}\nv_cndmask_b32 {v(VA_+1)}, {v(VOOB)}, {v(VL16)}, {sp(MB)}")
        zs = [(lambda u=u: z1st(u)) for u in range(6)]
        self.run(zs[:2])
        p("s_barrier")
        def pass1():
            hr, hi = U(0, 0), U(0, 1)
            for sg in range(1, 16):
                nr, ni = (HA, HA + 2) if sg & 1 else (HBb, HBb + 2)
                step(hr, hi, sg, nr, ni, T0, T0 + 2)
                hr, hi = nr, ni
            self.p(f"v_mov_b32 {v(EX)}, {v(hr)}\nv_mov_b32 {v(EX+1)}, {v(hi)}\nv_mov_b32 {v(EX+2)}, {v(hr+1)}\nv_mov_b32 {v(EX+3)}, {v(hi+1)}")
        d2 = self.wsp_dma(2) + self.wsp_dma(3)
        self.run(merge(merge(self.cap(pass1), zs[2:]), d2[:7]))
        p.lds(f"ds_write_b128 {v(AD+1)}, {v(EX,4)}")
        p.wait_lg_all(); p("s_barrier")
        for i in range(4): p.lds(f"ds_read_b128 {v(E8+4*i,4)}, {v(AD)} offset:{16*i}")
        te = p.lg - 1
        self.run(d2[7:11])
        p(f"s_cmp_eq_u32 s{WT}, 0\ns_cselect_b32 s{SA}, 32, 0")
        p(f"v_cmp_gt_u32 vcc, s{SA}, {v(VL)}\nv_mov_b32 {v(GR+1)}, s{ST_T}\nv_mov_b32 {v(GR+3)}, s{ST_T}\nv_cndmask_b32 {v(T0)}, {v(VOOB)}, {v(VL16)}, vcc")
        p(f"s_lshl_b32 s{SC}, s{SCOL}, 14\ns_lshl_b32 s{SA}, s{WP}, 9\ns_add_u32 s{SC}, s{SC}, s{SA}\ns_add_u32 s{SC}, s{SC}, {EG}")
        p(f"s_lshl_b32 s{SA}, s{SRB}, 10\ns_add_u32 s{SA}, s{SA}, s{SC}")
        p.wait(lg=te); p("s_barrier")
        self.run(merge(self.cap(lambda: [cfma(E8 + 2 * q, L16, E8 + 2 * (q - 1), E8 + 2 * q) for q in range(1, 8)]), d2[11:15]))
        p(f"v_mov_b32 {v(GR)}, {v(E8+14)}\nv_mov_b32 {v(GR+2)}, {v(E8+15)}")
        p.vmem(f"buffer_store_dwordx4 {v(GR,4)}, {v(T0)}, {srd(SWS)}, s{SA} offen sc1")
        self.run(d2[15:])
        self.stamp(2)
        p(f"v_cmp_gt_u32 vcc, 32, {v(VL)}")
        w1 = p.label("w1"); w2 = p.label("w2")
        p(f"s_cmp_eq_u32 s{WT}, 0\ns_cbranch_scc0 {w1}")
        p(f"v_cndmask_b32 {v(CQ)}, {v(E8+2)}, 0, vcc\nv_cndmask_b32 {v(CQ+1)}, {v(E8+3)}, 0, vcc")
        p(f"v_cndmask_b32 {v(CQ+2)}, {v(E8+4)}, {v(E8)}, vcc\nv_cndmask_b32 {v(CQ+3)}, {v(E8+5)}, {v(E8+1)}, vcc")
        p(f"s_branch {w2}")
        p.put(w1)
        for k in range(4): p(f"v_cndmask_b32 {v(CQ+k)}, {v(E8+10+k)}, {v(E8+6+k)}, vcc")
        p.put(w2)
        Z1P = 192
        EGR, EO, EXP, ET = 80, 144, 152, 160
        def eo():
            p = self.p
            p(f"v_lshrrev_b32 {v(ET)}, 5, {v(VL)}\nv_sub_u32 {v(ET)}, s{SRB}, {v(ET)}\nv_add_u32 {v(ET)}, -1, {v(ET)}")
            p(f"v_and_b32 {v(ET+1)}, 31, {v(VL)}\nv_lshlrev_b32 {v(ET+1)}, 4, {v(ET+1)}\nv_mov_b32 {v(ET+3)}, s{ST_T}")
            for q in range(8):
                p(f"v_add_u32 {v(ET+2)}, {-2*q}, {v(ET)}\nv_cmp_le_i32 vcc, 0, {v(ET+2)}\nv_lshl_add_u32 {v(ET+2)}, {v(ET+2)}, 10, {v(ET+1)}")
                p(f"v_cndmask_b32 {v(EO+q)}, {v(VOOB)}, {v(ET+2)}, vcc\nv_cndmask_b32 {v(EXP+q)}, 0, {v(ET+3)}, vcc")
        lgw = lambda: p.wait(lg=p.lg - 1)
        self.run(merge(self.cap(lambda: (eo(), self.g_early(184))), self.wsp_dma(4) + self.wsp_read(0) + self.wsp_read(1)))
        et = {}
        def eload(q):
            et['t'] = p.vmem(f"buffer_load_dwordx4 {v(EGR+4*q,4)}, {v(EO+q)}, {srd(SWS)}, s{SC} offen sc1")
        for q in range(8): eload(q)
        self.run([lgw] + self.wsp_dma(5))
        self.stamp(3)
        l = p.label("ep"); dl = p.label("ed")
        p.wait(vm=et['t'])
        p(f"s_mov_b32 s{SSPIN}, 0")
        p.put(l)
        p(f"v_mov_b32 {v(ET)}, 0")
        for q in range(8):
            p(f"v_xor_b32 {v(ET+1)}, {v(EXP+q)}, {v(EGR+4*q+1)}\nv_xor_b32 {v(ET+2)}, {v(EXP+q)}, {v(EGR+4*q+3)}\nv_or3_b32 {v(ET)}, {v(ET)}, {v(ET+1)}, {v(ET+2)}")
        p(f"v_cmp_ne_u32 vcc, 0, {v(ET)}\ns_cmp_eq_u64 vcc, 0\ns_cbranch_scc1 {dl}")
        for q in range(8): p(f"buffer_load_dwordx4 {v(EGR+4*q,4)}, {v(EO+q)}, {srd(SWS)}, s{SC} offen sc1")
        p("s_waitcnt vmcnt(0)")
        p(f"s_add_u32 s{SSPIN}, s{SSPIN}, 1\ns_cmp_lt_u32 s{SSPIN}, {SPIN}\ns_cbranch_scc1 {l}")
        p.put(dl)
        self.flag_prep(178)
        p(f"s_lshl_b32 s{SA}, s{SCOL}, 6\ns_lshl_b32 s{SB_}, s{SRB}, 2\ns_add_u32 s{SA}, s{SA}, s{SB_}\ns_add_u32 s{SA}, s{SA}, s{SWV}\ns_lshl_b32 s{SA}, s{SA}, 7\ns_add_u32 s{SA}, s{SA}, {Z1F}")
        self.flag(SA, 178)
        self.stamp(4)
        OP, OT, HO = 80, 144, 132
        MA, MB = SK + 2, SK + 4
        SH0, SH1 = SXB, SW1B
        def pass2a():
            p = self.p
            p(f"s_lshl_b32 s{SA}, s{SD}, 3\ns_add_u32 s{SA}, s{SA}, s{SCOL}\ns_lshl_b32 s{SA}, s{SA}, 14\ns_lshl_b32 s{SB_}, s{WP}, 12\ns_add_u32 s{SA}, s{SA}, s{SB_}")
            p(f"s_add_u32 s{SH0}, s{SA}, {HB}\ns_add_u32 s{SH1}, s{SH0}, 8192")
            p(f"v_lshrrev_b32 {v(T0)}, 5, {v(VL)}\nv_lshlrev_b32 {v(T0)}, 11, {v(T0)}\nv_and_b32 {v(T0+1)}, 31, {v(VL)}\nv_lshl_add_u32 {v(HO)}, {v(T0+1)}, 4, {v(T0)}")
            for k in range(1, 4): p(f"v_xor_b32 {v(HO+k)}, {64*k}, {v(HO)}")
            for q in range(8): p(f"v_mov_b32 {v(EGR+4*q+1)}, {v(EGR+4*q+2)}")
            S = EGR + 28
            for q in range(6, -1, -1): cfma(S, L256, S, EGR + 4 * q)
            p(f"v_mov_b32 {v(ET)}, {v(S)}\nv_mov_b32 {v(ET+1)}, {v(S+1)}\nv_permlane32_swap_b32 {v(S)}, {v(ET)}\nv_permlane32_swap_b32 {v(S+1)}, {v(ET+1)}")
            cfma(S, L128, ET, S)
            cfma(CQ, LQ0, S, CQ); cfma(CQ + 2, LQ1, S, CQ + 2)
            p(f"v_mov_b32 {v(HA)}, {v(CQ)}\nv_mov_b32 {v(HA+1)}, {v(CQ+2)}\nv_mov_b32 {v(HA+2)}, {v(CQ+1)}\nv_mov_b32 {v(HA+3)}, {v(CQ+3)}")
        def pass2(s0, s1):
            p = self.p
            Cc = v(CF, 2)
            for sg in range(s0, s1):
                hr, hi = (HA, HA + 2) if sg == 0 else (U(sg - 1, 0), U(sg - 1, 1))
                step(hr, hi, sg, U(sg, 0), U(sg, 1), T0, T0 + 2)
                hr, hi = U(sg, 0), U(sg, 1)
                oo = OT + 4 * (sg & 1) + 8 * ((sg >> 1) & 1)
                p(f"v_pk_mul_f32 {v(oo,2)}, {Cc}, {v(hr,2)} op_sel_hi:[0,1]")
                p(f"v_pk_mul_f32 {v(oo+2,2)}, {Cc}, {v(hi,2)} op_sel_hi:[0,1] neg_lo:[1,0] neg_hi:[1,0]")
                p(f"v_pk_fma_f32 {v(oo,2)}, {Cc}, {v(hi,2)}, {v(oo,2)} op_sel:[1,0,0] op_sel_hi:[1,1,1] neg_lo:[1,0,0] neg_hi:[1,0,0]")
                p(f"v_pk_fma_f32 {v(oo+2,2)}, {Cc}, {v(hr,2)}, {v(oo+2,2)} op_sel:[1,0,0] op_sel_hi:[1,1,1] neg_lo:[1,0,0] neg_hi:[1,0,0]")
                if sg & 1:
                    q, i = sg >> 3, (sg & 7) >> 1
                    for cp in range(2):
                        for e in range(2):
                            p(f"v_cvt_pk_bf16_f32 {v(OP+16*cp+8*e+4*q+i)}, {v(oo-4+2*cp+e)}, {v(oo+2*cp+e)}")
        def hst(cp, k):
            if o.get("x_nost"): return
            p.vmem(f"buffer_store_dwordx4 {v(OP+16*cp+4*k,4)}, {v(HO+k)}, {srd(SWS)}, s{SH0 if cp == 0 else SH1} offen offset:{512*k} sc1")
        self.run(merge(self.cap(pass2a), self.wsp_dma(6) + self.wsp_read(2) + [lgw]))
        self.run(merge(self.cap(lambda: pass2(0, 8)), self.wsp_dma(7) + self.wsp_read(3)))
        self.run(merge(merge(self.cap(lambda: pass2(8, 16)), [(lambda cp=cp, k=k: hst(cp, k)) for k in (0, 2) for cp in range(2)]), self.wsp_read(4) + self.wsp_read(5)))
        self.g_poll_issue()
        h2 = [(lambda cp=cp, k=k: hst(cp, k)) for k in (1, 3) for cp in range(2)]
        self.run(merge(self.wsp_read(6) + self.wsp_read(7), h2))
        p(f"s_lshl_b32 s{SLATE}, s{SE}, 7\ns_add_u32 s{SLATE}, s{SLATE}, {HF}")
        self.stamp(5)

    def phase_g(self):
        p = self.p; o = self.o
        p.c("==== phase B: G ====")
        p.put(self.LG)
        p.vm_done = -1; p.lg_done = -1
        ACC, FA, TR, T = 16, 112, self.GTR, 186
        Z1R, BI, PV, WD, PL, PL2, PL3 = 190, 202, 203, self.WD, self.GPL, 222, 234
        NT, Q = SK + 8, SK + 9
        p(f"s_mov_b32 s{SCOL}, s{SJ}")
        def late_setup():
            p = self.p
            p(f"s_lshl_b32 s{SE}, s{STB}, 11\ns_add_u32 s{SE}, s{SE}, {HF}")
            self.poll_addr(PL3, [(SE, 16)])
            self.flag_prep(220)
            p(f"v_lshrrev_b32 {v(T)}, 3, {v(VL)}\nv_lshlrev_b32 {v(T)}, 10, {v(T)}")
            p(f"v_bfe_u32 {v(T+1)}, {v(VL)}, 4, 1\nv_lshlrev_b32 {v(T+1)}, 2, {v(T+1)}\nv_and_b32 {v(T+2)}, 7, {v(VL)}\nv_xor_b32 {v(T+1)}, {v(T+1)}, {v(T+2)}")
            p(f"v_lshl_add_u32 {v(WD)}, {v(T+1)}, 4, {v(T)}")
            for i in range(1, 4): p(f"v_add_u32 {v(WD+i)}, {i*7168}, {v(WD)}")
            p(f"s_mul_i32 s{SXB}, s{SWV}, {176*1024}\ns_lshl_b32 s{SA}, s{SCOL}, 7\ns_add_u32 s{SXB}, s{SXB}, s{SA}")
            self.c_setup()
            self.panel_tr_addr(228, SREG, 224, False)
        p(f"s_and_b32 s{NT}, s{SWV}, 1\ns_lshr_b32 s{Q}, s{SWV}, 1")
        p(f"s_lshl_b32 s{SC}, s{STB}, 1\ns_add_u32 s{SC}, s{SC}, s{NT}")
        p.atom(f"s_cmp_lt_u32 s{SCOL}, 7\ns_cselect_b32 s{SD}, 64, 32")
        p(f"s_lshl_b32 s{SF}, s{Q}, 5\ns_sub_u32 s{SD}, s{SD}, s{SF}")
        p(f"v_cmp_gt_u32 vcc, s{SD}, {v(VL)}\nv_and_b32 {v(T)}, 31, {v(VL)}\ns_lshl_b32 s{SA}, s{SC}, 5\nv_cndmask_b32 {v(PV)}, {v(VOOB)}, {v(VL16)}, vcc")
        p(f"v_add_lshl_u32 {v(T)}, {v(T)}, s{SA}, 1")
        p.vmem(f"global_load_ushort {v(BI)}, {v(T)}, {sp(PBSP)}")
        p(f"s_mul_i32 s{SD}, s{SZI}, 5632\ns_lshl_b32 s{SB_}, s{Q}, 10\ns_add_u32 s{SD}, s{SD}, s{SB_}\ns_add_u32 s{SD}, s{SD}, {Z1}\ns_add_u32 s{SE}, s{SD}, 4096")
        p(f"v_and_b32 {v(PL2)}, 31, {v(VL)}\nv_lshlrev_b32 {v(PL2)}, 2, {v(PL2)}")
        p.wait_lg_all(); p("s_barrier")
        self.stamp(6)
        l = p.label("gp"); dn = p.label("gd")
        p("s_waitcnt vmcnt(5)")
        p(f"s_cmp_lg_u32 s{SLATE}, 0\ns_cbranch_scc1 {l}\ns_waitcnt vmcnt(0)")
        p.put(l)
        p(f"v_cmp_ne_u32 vcc, s{ST_T}, {v(PL+1)}\ns_and_b32 vcc_hi, vcc_hi, 1\ns_or_b32 s{SF}, vcc_lo, vcc_hi\ns_cbranch_scc0 {dn}")
        self.poll(PL, 33)
        p.put(dn)
        g0 = p.vm
        def late_flag():
            nf = p.label("nf")
            p(f"s_cmp_eq_u32 s{SLATE}, 0\ns_cbranch_scc1 {nf}")
            p(f"s_waitcnt vmcnt({p.vm - g0})")
            p(f"buffer_store_dword {v(220)}, {v(221)}, {srd(SWS)}, s{SLATE} offen sc1")
            p.put(nf)
        p.vm_done = -1
        self.stamp(7)
        tick = {}
        def dma(B):
            sl = B % 3; items = []
            for i in range(11):
                def cb(t, i=i): tick[(B, i)] = t
                g = i // 4
                items.append(((SREG, sl * 11264 + g * 4096) if i % 4 == 0 else None, (SGB, B * 11264 + g * 4096) if i % 4 == 0 else None,
                              f"buffer_load_dwordx4 {v(VL16)}, {srd(SWS)}, s{SDO} offen offset:{(i%4)*1024} {o.get('gmod', 'sc1')} lds", cb))
            return self.dseq(items)
        d0 = dma(0) + dma(1) + dma(2)
        kpro = o.get("gpro", 22)
        p.vmem(f"buffer_load_dwordx4 {v(Z1R,4)}, {v(VL16)}, {srd(SWS)}, s{SD} offen sc1")
        p.vmem(f"buffer_load_dwordx4 {v(Z1R+4,4)}, {v(VL16)}, {srd(SWS)}, s{SD} offen offset:2048 sc1")
        tz1 = p.vmem(f"buffer_load_dwordx4 {v(Z1R+8,4)}, {v(PV)}, {srd(SWS)}, s{SE} offen sc1")
        k0 = o.get("gk0", 10)
        self.run(merge(self.cap(late_setup), d0[:k0], 0, 40))
        p(f"s_lshl_b32 s{SA}, s{STB}, 8\ns_add_u32 s{SA}, s{SA}, {GATE}")
        p.vmem(f"buffer_load_dword {v(self.GY)}, {v(PL2)}, {srd(SWS)}, s{SA} offen sc1")
        p.vmem(f"buffer_load_dword {v(self.GY+2)}, {v(PL2)}, {srd(SWS)}, s{SA} offen offset:128 sc1")
        def z1gelu():
            c1 = -2 * LOG2E * 0.7978845608028654
            self.VC0 = 184
            self.p(f"s_mov_b32 s{SK}, {f2u(c1*0.044715)}\nv_mov_b32 {v(184)}, {f2u(c1)}")
            for i in range(12): self.unpack(self.ZUP[i], Z1R + i)
            self.gelu_many(self.ZUP, [160, 162, 164, 166])
        p.wait(vm=tz1)
        self.run(merge(self.cap(z1gelu), d0[k0:kpro]))
        lt = {}
        def issue(r):
            lt[r] = p.vmem(f"buffer_load_dword {v(r+1)}, {v(r)}, {srd(SWS)}, 0 offen sc1")
        def check(r, mask):
            l = p.label("lp"); d = p.label("ld")
            p.wait(vm=lt[r])
            p(f"s_mov_b32 s{SSPIN}, 0")
            p.put(l)
            p(f"v_cmp_ne_u32 vcc, s{ST_T}, {v(r+1)}\ns_and_b32 s{SF}, vcc_lo, {mask}\ns_cbranch_scc0 {d}")
            p(f"buffer_load_dword {v(r+1)}, {v(r)}, {srd(SWS)}, 0 offen sc1\ns_waitcnt vmcnt(0)")
            p(f"s_add_u32 s{SSPIN}, s{SSPIN}, 1\ns_cmp_lt_u32 s{SSPIN}, {SPIN}\ns_cbranch_scc1 {l}")
            p.put(d)
        rt = {}
        def fset(hb): return FA + 24 * (2 if hb == 15 else hb & 1)
        def reads(hb):
            B, e = hb >> 1, hb & 1; sl = B % 3; ops = []
            for ks in range(2):
                for mt in range(3):
                    for a in range(2):
                        def ra(ks=ks, mt=mt, a=a):
                            if (ks, mt, a) == (0, 0, 0): p.wait(vm=tick[(B, 10 if e else 5)])
                            rt[(hb, ks, mt)] = p.lds(f"ds_read_b64_tr_b16 {v(fset(hb)+12*ks+4*mt+2*a,2)}, {v(TR+a)} offset:{sl*11264+e*5632+mt*2048+ks*256}")
                        ops.append(ra)
            return ops
        def mf(hb, ks, mt, nt):
            def m():
                p.wait(lg=rt[(hb, ks, mt)])
                d = v(ACC + 16 * (2 * mt + nt), 16); kap = 2 * hb + ks
                p(f"{MF} {d}, {v(fset(hb)+12*ks+4*mt,4)}, {ar((kap*2+nt)*4,4)}, {'0' if kap == 0 else d}")
            return m
        y0 = self.y_dma(0)
        hchk = o.get("hchk", 4)
        self.run(reads(0))
        pend = d0[kpro:]
        for hb in range(14):
            if o.get("gstamps") and hb % 2 == 0: self.stamp(21 + hb // 2)
            mm = [mf(hb, ks, mt, nt) for ks in range(2) for mt in range(3) for nt in range(2)]
            rd = reads(hb + 1) + (reads(15) if hb == 13 else [])
            if hb == 13: seq = merge(mm, rd, 0, 12)
            else: seq = merge(mm, rd, 0, 8)
            if hb & 1 and hb <= 11:
                B = hb >> 1
                d = dma(B + 3) if B + 3 < 8 else y0
                d1 = d[1]
                def first(d1=d1, hb=hb):
                    p.wait(lg=rt[(hb, 1, 2)]); d1()
                d = [d[0], first] + d[2:]
                seq = merge(seq, pend + d[:5], len(seq) * 2 // 3 if not pend else len(seq) // 3)
                pend = d[5:]
            elif pend:
                k = 7 if hb else 8
                if hb == 12: k = 6
                seq = merge(seq, pend[:k], len(seq) // 3); pend = pend[k:]
            if hb == o.get("hflag", 3): seq = seq + [late_flag]
            if hb == 10: seq = seq + [lambda: issue(PL3)]
            if hb == 12: seq = [lambda: check(PL3, 0xffff)] + seq
            self.run(seq)
        assert not pend
        VW, VRD = T, T + 1
        p(f"s_add_u32 s{SA}, s{SREG}, 4096\nv_add_u32 {v(VW)}, s{SA}, {v(VL16)}")
        def rw(mt, nt):
            ops = []
            for q in range(2):
                k = nt + 2 * q
                if k == 0: continue
                for hq in range(2):
                    r = ACC + 16 * (2 * mt + nt) + 8 * q + 4 * hq
                    ops.append(lambda r=r, k=k, hq=hq: p.lds(f"ds_write_b128 {v(VW)}, {v(r,4)} offset:{(k-1)*6144+(2*mt+hq)*1024}"))
            return ops
        tiles = [(0, 1), (1, 1), (2, 1), (0, 0), (1, 0), (2, 0)]
        for ti, (mt, nt) in enumerate(tiles):
            mm = [mf(hb, ks, mt, nt) for hb in (14, 15) for ks in range(2)]
            f = rw(*tiles[ti - 2]) if ti >= 2 else []
            self.run(merge(mm, f))
        self.stamp(8)
        for k in range(1, 4):
            p(f"s_xor_b32 s{SA}, s{SWV}, {k}\ns_mul_i32 s{SA}, s{SA}, 40960\ns_add_u32 s{SA}, s{SA}, 4096\nv_add_u32 {v(VRD+k-1)}, s{SA}, {v(VL16)}")
        self.run(rw(*tiles[4]) + rw(*tiles[5]))
        p.wait_lg_all(); p("s_barrier")
        RB = 112
        def own(i): return ACC + 32 * (i >> 1) + 4 * (i & 1)
        tk = {}
        def rr(k, i): tk[(k, i)] = p.lds(f"ds_read_b128 {v(RB+24*(k-1)+4*i,4)}, {v(VRD+k-1)} offset:{(k-1)*6144+i*1024}")
        for k in range(1, 3):
            for i in range(6): rr(k, i)
        yr0 = self.y_read(0)
        for k in range(1, 4):
            for i in range(6):
                p.wait(lg=tk[(k, i)])
                if k == 1: rr(3, i)
                for hh in range(2): p(f"v_pk_add_f32 {v(own(i)+2*hh,2)}, {v(own(i)+2*hh,2)}, {v(RB+24*(k-1)+4*i+2*hh,2)}")
        p("s_barrier")
        self.stamp(9)
        PK = 112
        def ow2(i): return own(i >> 1) + 2 * (i & 1)
        def pepi():
            p = self.p
            OG = 152
            p.atom(f"s_cmp_eq_u32 s{NT}, 0\ns_cselect_b64 vcc, -1, 0")
            p(f"v_lshlrev_b32 {v(BI)}, 16, {v(BI)}\nv_cndmask_b32 {v(OG)}, {v(self.GY+2)}, {v(self.GY)}, vcc\nv_sub_f32 {v(OG)}, 1.0, {v(OG)}\nv_mul_f32 {v(OG+1)}, {v(OG)}, {v(BI)}")
            for i in range(12): p(f"v_pk_fma_f32 {v(ow2(i),2)}, {v(ow2(i),2)}, {v(OG,2)}, {v(OG,2)} op_sel:[0,0,1] op_sel_hi:[1,0,1]")
            for i in range(12): p(f"v_pk_mul_f32 {v(ow2(i),2)}, {v(ow2(i),2)}, {v(self.ZUP[i],2)}")
            for i in range(12): p(f"v_cvt_pk_bf16_f32 {v(PK+i)}, {v(ow2(i))}, {v(ow2(i)+1)}")
            p(f"s_mul_i32 s{SA}, s{SC}, 45056\ns_mul_i32 s{SB_}, s{SCOL}, 5632\ns_add_u32 s{SA}, s{SA}, s{SB_}\ns_lshl_b32 s{SB_}, s{Q}, 10")
            p(f"s_add_u32 s{SA}, s{SA}, s{SB_}\ns_add_u32 s{SA}, s{SA}, {PB}\ns_add_u32 s{SB_}, s{SA}, 4096")
        self.y1 = self.y_dma(1)
        self.run(merge(merge(self.cap(pepi), self.y1[:4]), yr0))
        self.y1 = self.y1[4:]
        p.vmem(f"buffer_store_dwordx4 {v(PK,4)}, {v(VL16)}, {srd(SWS)}, s{SA} offen sc1")
        p.vmem(f"buffer_store_dwordx4 {v(PK+4,4)}, {v(VL16)}, {srd(SWS)}, s{SA} offen offset:2048 sc1")
        self.tp = p.vmem(f"buffer_store_dwordx4 {v(PK+8,4)}, {v(PV)}, {srd(SWS)}, s{SB_} offen sc1")
        p(f"s_lshl_b32 s{SLATE}, s{STB}, 3\ns_add_u32 s{SLATE}, s{SLATE}, s{SCOL}\ns_lshl_b32 s{SLATE}, s{SLATE}, 2\ns_add_u32 s{SLATE}, s{SLATE}, s{SWV}\ns_lshl_b32 s{SLATE}, s{SLATE}, 7\ns_add_u32 s{SLATE}, s{SLATE}, {PF}")
        self.stamp(10)

    CD, CR, HT, GY, WD, WT_ = 210, 214, 218, 240, 244, 228
    ZUP = [4, 6, 8, 10, 12, 14, 204, 206, 208, 248, 250, 252]
    def c_setup(self):
        p = self.p
        self.plain_dma_addr(self.CD, 1024, 224)
        p(f"s_add_u32 s{SA}, s{SREG}, 4096")
        self.plain_read_addr(self.CR, SA, 224)
        p(f"s_add_u32 s{SA}, s{SREG}, {4096+8192}")
        self.unit_tr_addr(self.HT, SA, 224, False)
        p(f"s_lshl_b32 s{SCB}, s{SCOL}, 16\ns_lshl_b32 s{SA}, s{SWV}, 8\ns_add_u32 s{SCB}, s{SCB}, s{SA}")
        p(f"s_lshl_b32 s{SHB}, s{STB}, 17\ns_lshl_b32 s{SA}, s{SWV}, 15\ns_add_u32 s{SHB}, s{SHB}, s{SA}\ns_add_u32 s{SHB}, s{SHB}, {HB}")
        self.yt = {}
    def y_dma(self, s):
        sl = (s & 1) ^ 1; items = []
        def cb(t): self.yt[s] = t
        for hh in range(2):
            for i in range(4):
                items.append(((SREG, 4096 + sl * 18432 + hh * 4096) if i == 0 else None, (SCB, (s >> 1) * 128 + hh * 32768) if i == 0 else None,
                              f"buffer_load_dwordx4 {v(self.CD+i)}, {srd(SCIM if s & 1 else SCRE)}, s{SDO} offen offset:{i*1024} lds", None))
        for hh in range(2):
            for i in range(4):
                items.append(((SREG, 4096 + sl * 18432 + 8192 + hh * 4096) if i == 0 else None, (SHB, s * 8192 + hh * 4096) if i == 0 else None,
                              f"buffer_load_dwordx4 {v(VL16)}, {srd(SWS)}, s{SDO} offen offset:{i*1024} sc1 lds", cb))
        return self.dseq(items)
    def y_read(self, s):
        p = self.p; sl = (s & 1) ^ 1; ops = []
        self.yr = getattr(self, "yr", {})
        for ks in range(4):
            def f(ks=ks):
                p.wait(vm=self.yt[s], lg=p.lg - 10)
                b = 64 * s + 16 * ks
                for k in range(2):
                    p.lds(f"ds_read_b128 {ar(b+4*k,4)}, {v(self.CR+ks)} offset:{sl*18432+k*4096}")
                    for a in range(2):
                        self.yr[(s, ks)] = p.lds(f"ds_read_b64_tr_b16 {ar(b+8+4*k+2*a,2)}, {v(self.HT+a)} offset:{sl*18432+(ks>>1)*4096+k*2048+(ks&1)*256}")
            ops.append(f)
        return ops
    def phase_c(self):
        p = self.p; o = self.o
        p.c("==== phase C ====")
        YA, BA, F = 16, 80, 144
        XE, GE, DE, OV, P10, PL, T = 186, 194, 198, 200, 201, 202, 204
        RW, RX, WA, RA = 176, 177, 180, 230
        ep = {}
        def setup():
            p = self.p
            p(f"v_lshrrev_b32 {v(T)}, 4, {v(VL)}\nv_and_b32 {v(T+1)}, 15, {v(VL)}")
            p(f"v_lshlrev_b32 {v(T+2)}, 10, {v(T)}\nv_lshl_add_u32 {v(T+2)}, {v(T+1)}, 3, {v(T+2)}")
            p(f"v_lshlrev_b32 {v(T+3)}, 2, {v(T)}\nv_lshlrev_b32 {v(T+4)}, 3, {v(T+1)}")
            p(f"v_lshlrev_b32 {v(OV)}, 1, {v(T+2)}")
            p(f"s_lshl_b32 s{SC}, s{STB}, 6\ns_lshl_b32 s{SA}, s{SWV}, 4\ns_add_u32 s{SC}, s{SC}, s{SA}")
            p(f"s_lshl_b32 s{SD}, s{SC}, 10\ns_lshl_b32 s{SA}, s{SCOL}, 7\ns_add_u32 s{SD}, s{SD}, s{SA}\nv_add_u32 {v(T+4)}, s{SA}, {v(T+4)}")
            p(f"s_lshl_b32 s{SA}, s{STB}, 12\ns_lshl_b32 s{SB_}, s{SWV}, 10\ns_add_u32 s{SB_}, s{SB_}, s{SA}\ns_add_u32 s{SB_}, s{SB_}, {PF}")
            self.poll_addr(PL, [(SB_, 8)])
            p.atom(f"s_cmp_eq_u32 s{SWV}, 3\ns_cselect_b64 vcc, -1, 0")
            p(f"v_cndmask_b32 {v(P10)}, {v(VL16)}, {v(VOOB)}, vcc")
            p(f"s_mul_i32 s{SE}, s{STB}, {2*45056}\ns_mul_i32 s{SA}, s{SWV}, {22*512}\ns_add_u32 s{SE}, s{SE}, s{SA}\ns_add_u32 s{SE}, s{SE}, {PB}")
            p(f"s_add_u32 s{SA}, s{SREG}, 4096\nv_and_b32 {v(RW)}, 31, {v(VL)}\nv_lshlrev_b32 {v(RW)}, 8, {v(RW)}\nv_add_u32 {v(RW)}, s{SA}, {v(RW)}")
            p(f"v_lshrrev_b32 {v(RX)}, 5, {v(VL)}\nv_and_b32 {v(RX+1)}, 7, {v(VL)}\nv_xor_b32 {v(RX)}, {v(RX)}, {v(RX+1)}\nv_lshlrev_b32 {v(RX)}, 4, {v(RX)}")
            for i in range(4): p(f"v_xor_b32 {v(WA+i)}, {32*i}, {v(RX)}\nv_add_u32 {v(WA+i)}, {v(WA+i)}, {v(RW)}")
            p(f"v_xor_b32 {v(T+1)}, {v(T+1)}, {v(T)}\nv_lshlrev_b32 {v(T+1)}, 4, {v(T+1)}")
            p(f"v_lshlrev_b32 {v(T)}, 8, {v(T)}\ns_lshl_b32 s{SA}, s{SWV}, 12\ns_add_u32 s{SA}, s{SA}, 4096\nv_add_u32 {v(T)}, s{SA}, {v(T)}")
            p(f"v_add_u32 {v(RA)}, {v(T)}, {v(T+1)}\nv_xor_b32 {v(T+1)}, 64, {v(T+1)}\nv_add_u32 {v(RA+1)}, {v(T)}, {v(T+1)}")
            p(f"v_add_u32 {v(RA+2)}, 81920, {v(RA)}\nv_add_u32 {v(RA+3)}, 81920, {v(RA+1)}")
        def eloads():
            for gi in range(4):
                p(f"s_add_u32 s{SA}, s{SD}, {gi*4096}")
                p.vmem(f"buffer_load_dwordx2 {v(XE+2*gi,2)}, {v(T+2)}, {srd(SX)}, s{SA} offen")
            p(f"s_lshl_b32 s{SA}, s{SC}, 2\ns_add_u32 s{SA}, s{SA}, {GATE}")
            for gi in range(4): p.vmem(f"buffer_load_dword {v(GE+gi)}, {v(T+3)}, {srd(SWS)}, s{SA} offen offset:{gi*16} sc1")
            ep['t'] = p.vmem(f"global_load_dwordx2 {v(DE,2)}, {v(T+4)}, {sp(PDSK)}")
        T4 = [(0, 0), (1, 0), (1, 1), (0, 1)]
        def ym(s):
            ops = []
            for ks in range(4):
                for (mt, nt) in T4:
                    def m(ks=ks, mt=mt, nt=nt):
                        p.wait(lg=self.yr[(s, ks)])
                        d = v(YA + 16 * (2 * mt + nt), 16); b = 64 * s + 16 * ks
                        p(f"{MF} {d}, {ar(b+4*mt,4)}, {ar(b+8+4*nt,4)}, {'0' if (s, ks) == (0, 0) else d}")
                    ops.append(m)
            return ops
        PA = 80
        pt = {}
        def ploads():
            ops = []
            for nt in range(2):
                for kap in range(11):
                    def f(kap=kap, nt=nt):
                        if kap % 4 == 0: p(f"s_add_u32 s{SB_}, s{SE}, {nt*45056+kap*1024}")
                        pt[(kap, nt)] = p.vmem(f"buffer_load_dwordx4 {v(PA+(kap*2+nt)*4,4)}, {v(P10 if kap == 10 else VL16)}, {srd(SWS)}, s{SB_} offen offset:{(kap%4)*1024} sc1")
                    ops.append(f)
            return ops
        wo = {}
        def wo_dma():
            items = []
            for (i0, i1, base) in [(18, 22, 0), (0, 18, 22528)]:
                for i in range(i0, i1):
                    def cb(t, i=i): wo[i] = t
                    k = i - i0
                    items.append(((SREG, base + k * 1024) if k % 4 == 0 else None, (SXB, i * 8192) if k % 4 == 0 else None,
                                  f"buffer_load_dwordx4 {v(self.WD+k%4)}, {srd(SWOUT)}, s{SDO} offen offset:{(k%4)*1024} lds", cb))
            return self.dseq(items)
        def wo_rd(kap):
            def f():
                p.wait(vm=wo[2 * kap + 1], lg=p.lg - 12)
                for mt in range(2):
                    for a in range(2):
                        base = 22528 + kap * 2048 if kap < 9 else (kap - 9) * 2048
                        wo[('r', kap)] = p.lds(f"ds_read_b64_tr_b16 {ar((kap*2+mt)*4+2*a,2)}, {v(self.WT_+mt)} offset:{base+a*512}")
            return f
        def pflag():
            p.wait(vm=self.tp); self.flag(SLATE, 220)
        pl = {}
        def pf_issue(): pl['t'] = p.vmem(f"buffer_load_dword {v(PL+1)}, {v(PL)}, {srd(SWS)}, 0 offen sc1")
        def pf_check():
            l = p.label("pp"); d = p.label("pd")
            p.wait(vm=pl['t'])
            p(f"s_mov_b32 s{SSPIN}, 0")
            p.put(l)
            p(f"v_cmp_ne_u32 vcc, s{ST_T}, {v(PL+1)}\ns_and_b32 s{SF}, vcc_lo, 0xff\ns_cbranch_scc0 {d}")
            p(f"buffer_load_dword {v(PL+1)}, {v(PL)}, {srd(SWS)}, 0 offen sc1\ns_waitcnt vmcnt(0)")
            p(f"s_add_u32 s{SSPIN}, s{SSPIN}, 1\ns_cmp_lt_u32 s{SSPIN}, {SPIN}\ns_cbranch_scc1 {l}")
            p.put(d)
        su = self.cap(setup)
        lgw = lambda: p.wait(lg=p.lg - 1)
        y2, y3, wd, pl_ = self.y_dma(2), self.y_dma(3), wo_dma(), ploads()
        self.run(merge(merge(ym(0), su), self.y1 + [lgw] + y2[:5]))
        self.run([pflag] + y2[5:13])
        self.run(merge(self.y_read(1), y2[13:] + [eloads]))
        self.stamp(11)
        self.run(merge(ym(1), [lgw] + y3))
        self.run(merge(self.y_read(2), wd[:5]))
        self.run(merge(ym(2), [lgw] + wd[5:14] + [pf_issue] + wd[14:]))
        self.run(self.y_read(3))
        pf_check(); self.stamp(12)
        self.run(merge(ym(3), pl_[:12]))
        prest = pl_[12:]
        self.stamp(13)
        def redw(acc, base, tiles):
            return [(lambda mt=mt, nt=nt, i=i: p.lds(f"ds_write_b128 {v(WA+i)}, {v(acc+16*(2*mt+nt)+4*i,4)} offset:{base+nt*8192+mt*128}"))
                    for (mt, nt) in tiles for i in range(4)]
        def bm(kap, mt, nt):
            def m():
                p.wait(vm=pt[(kap, nt)], lg=wo[('r', kap)])
                d = v(YA + 16 * (2 * mt + nt), 16)
                p(f"{MF} {d}, {ar((kap*2+mt)*4,4)}, {v(PA+(kap*2+nt)*4,4)}, {d}")
            return m
        def yscale(mt, nt, pk=True):
            if pk: return [(lambda i=i: p(f"v_pk_mul_f32 {v(YA+16*(2*mt+nt)+2*i,2)}, {v(YA+16*(2*mt+nt)+2*i,2)}, {v(self.GY+2*nt,2)} op_sel_hi:[1,0]")) for i in range(8)]
            return [(lambda i=i: p(f"v_mul_f32 {v(YA+16*(2*mt+nt)+i)}, {v(YA+16*(2*mt+nt)+i)}, {v(self.GY+2*nt)}")) for i in range(16)]
        DU, X = 168, 0
        XP = [4, 8, 12, 172]
        def xpart():
            p = self.p
            self.unpack(DU, DE); self.unpack(DU + 2, DE + 1)
            for gi in range(4):
                x = XP[gi]
                self.unpack(x, XE + 2 * gi); self.unpack(x + 2, XE + 2 * gi + 1)
                for k in range(4): p(f"v_mul_f32 {v(x+k)}, {v(x+k)}, {v(DU+k)}")
                for k in range(4): p(f"v_mul_f32 {v(x+k)}, {v(x+k)}, {v(GE+gi)}")
        self.run(merge(merge(yscale(0, 0) + yscale(1, 0) + yscale(1, 1) + yscale(0, 1), prest), [wo_rd(k) for k in range(11)]))
        mm0 = [bm(kap, mt, 0) for kap in range(11) for mt in range(2)]
        self.run(merge(mm0, [lambda: p.wait(vm=ep['t'])] + self.cap(xpart)))
        mm1 = [bm(kap, 0, 1) for kap in range(11)]
        mm2 = [bm(kap, 1, 1) for kap in range(11)]
        self.run(merge(mm1, redw(YA, 0, [(0, 0), (1, 0)]), 2))
        self.run(merge(mm2, redw(YA, 0, [(0, 1)]), 4))
        self.run(redw(YA, 0, [(1, 1)]))
        p.wait_lg_all(); p("s_barrier")
        self.stamp(14)
        tk = {}
        def R(gi, s): return 16 + 16 * gi + 4 * s
        for gi in range(4):
            p.wait(lg=p.lg - 12)
            for s_ in range(4):
                tk[gi] = p.lds(f"ds_read_b128 {v(R(gi,s_),4)}, {v(RA+2*(s_>>1)+(gi&1))} offset:{(s_&1)*40960+gi*1024}")
        p(f"s_lshl_b32 s{SD}, s{SD}, 1")
        for gi in range(4):
            y = R(gi, 0)
            p.wait(lg=tk[gi])
            for hh in (0, 2):
                p(f"v_pk_add_f32 {v(y+hh,2)}, {v(y+hh,2)}, {v(y+4+hh,2)}\nv_pk_add_f32 {v(y+8+hh,2)}, {v(y+8+hh,2)}, {v(y+12+hh,2)}")
            for hh in (0, 2): p(f"v_pk_add_f32 {v(y+hh,2)}, {v(y+hh,2)}, {v(XP[gi]+hh,2)}")
            for hh in (0, 2): p(f"v_pk_add_f32 {v(y+hh,2)}, {v(y+hh,2)}, {v(y+8+hh,2)}")
            p(f"s_add_u32 s{SA}, s{SD}, {gi*8192}")
            p.vmem(f"buffer_store_dwordx4 {v(y,4)}, {v(OV)}, {srd(SOUT)}, s{SA} offen{' ' + o['outmod'] if 'outmod' in o else ''}")
        ne = p.label("ne")
        p(f"s_lshl_b32 s{SA}, s{STB}, 3\ns_add_u32 s{SA}, s{SA}, s{SCOL}\ns_lshl_b32 s{SA}, s{SA}, 2\ns_add_u32 s{SA}, s{SA}, s{SWV}")
        p(f"s_cmp_eq_u32 s{SA}, {255*4}\ns_cbranch_scc0 {ne}")
        p(f"s_mov_b32 s{SA}, {EPOCH}")
        self.flag(SA, 220)
        p.put(ne)
        if o.get("stamps"):
            self.stamp(15)
            p(f"s_lshl_b32 s{SA}, s2, 2\ns_add_u32 s{SA}, s{SA}, s{SWV}\ns_lshl_b32 s{SA}, s{SA}, 8\ns_add_u32 s{SA}, s{SA}, {DBG}")
            p(f"v_lshlrev_b32 v254, 2, {v(VL)}")
            p.vmem(f"buffer_store_dword v255, v254, {srd(SWS)}, s{SA} offen")
        if "spin_from" in o:
            self.stamp(15)
            sl = p.label("spin")
            p(f"v_readlane_b32 s{SA}, v254, 0")
            p.put(sl)
            p(f"s_memrealtime s[{SSTMP}:{SSTMP+1}]\ns_waitcnt lgkmcnt(0)\ns_sub_u32 s{SB_}, s{SSTMP}, s{SA}\ns_cmp_lt_u32 s{SB_}, 3000\ns_cbranch_scc1 {sl}")
        p.put(self.END)
        p("s_endpgm")

    def build(self):
        self.prologue()
        self.phase_z()
        self.p.vm_done = -1; self.p.lg_done = -1
        self.p("s_nop 15")
        self.phase_u()
        self.phase_g()
        self.phase_c()
        lines, added = hazard_pass([x for l in self.p.L for x in l.split(chr(10))])
        hdr = open("gated_mix__ssm_conv_s5__mixer_gmlp__prompt.s.ref").read().split("; Override")[0]
        s = hdr + "; @launch grid=(256,1,1) block=(256,1,1) lds=163840\n"
        s += '.amdgcn_target "amdgcn-amd-amdhsa--gfx950"\n.text\n'
        s += f".globl {NAME}\n.p2align 8\n.type {NAME},@function\n{NAME}:\n"
        s += "\n".join((l if l.endswith(":") else "    " + l) for l in lines) + "\n"
        s += f""".section .rodata,"a"
.p2align 6
.amdhsa_kernel {NAME}
  .amdhsa_next_free_vgpr 512
  .amdhsa_next_free_sgpr 102
  .amdhsa_accum_offset 256
  .amdhsa_group_segment_fixed_size 0
  .amdhsa_kernarg_size 144
  .amdhsa_user_sgpr_count 2
  .amdhsa_user_sgpr_kernarg_segment_ptr 1
  .amdhsa_system_sgpr_workgroup_id_x 1
  .amdhsa_float_denorm_mode_32 3
.end_amdhsa_kernel
"""
        return s, added

if __name__ == "__main__":
    out = sys.argv[1]
    opt = {}
    for a in sys.argv[2:]:
        k, _, val = a.partition("=")
        try: opt[k] = int(val) if val else 1
        except ValueError: opt[k] = val
    s, added = G(opt).build()
    open(out, "w").write(s)
    print("wrote", out, "nops added", added, "lines", s.count("\n"))
```

```python
import sys, math, struct
from core import *

NAME = "gated_mix__ssm_conv_s5__mixer_gmlp__prompt_kernel"
EPOCH = 0; GATE = 0x4000
ST = 0x10000; EG = 0x50000; DBG = 0x80000
Z2N = 0x100000; Z1 = 0x400000; PB = 0x700000; HB = 0xA00000
ZF = 0xE00000; HF = 0xE10000; PF = 0xE20000; Z1F = 0xE40000; WS_END = 0xE50000
OOB = 0x80000000
SPIN = 200000
SX, SW1, SWSP, SWS, SCRE, SCIM, SWOUT, SOUT = 4, 8, 12, 16, 20, 24, 28, 32
PLRE, PLIM, PLDT, PDSK, PBSP, PGW, PBRE, PBIM, PWIN = 36, 38, 40, 42, 44, 46, 48, 50, 52
ST_T = 100
SWV, SRB, SCOL, STB = 56, 57, 58, 59
SA, SB_, SC, SD = 60, 61, 62, 63
SSTMP = 64
SDO, SWB, SPB0, SPST, SPSP = 68, 69, 70, 71, 72
SXB, SW1B, SXL, SWL = 73, 74, 75, 76
SPC = 77
SCB, SHB = 78, 79
SK = 80
SREG = 96
SE, SF = 97, 98
SSPIN = 99
SLATE = 101
SJ = 3
SGB = 95
SPFP = 70
SPFE = 79
SZI = 72
SPB = 90
def srd(b): return f"s[{b}:{b+3}]"
def v(a, n=1): return f"v{a}" if n == 1 else f"v[{a}:{a+n-1}]"
def ar(a, n=1): return f"a{a}" if n == 1 else f"a[{a}:{a+n-1}]"
def sp(a): return f"s[{a}:{a+1}]"
VL, VL16, VOOB = 1, 2, 3
LOG2E = 1.4426950408889634
def f2u(x): return struct.unpack("<I", struct.pack("<f", x))[0]
MF = "v_mfma_f32_32x32x16_bf16"

class G:
    def __init__(self, opt):
        self.o = opt
        self.p = Prog()

    def stamp(self, k):
        if self.o.get("spin_from") == k:
            p = self.p
            p(f"s_memrealtime s[{SSTMP}:{SSTMP+1}]"); p.wait_lg_all()
            p(f"v_mov_b32 v254, s{SSTMP}")
        if self.o.get("stamps"):
            p = self.p
            p(f"s_memrealtime s[{SSTMP}:{SSTMP+1}]\ns_memtime s[{SSTMP+2}:{SSTMP+3}]"); p.wait_lg_all()
            p(f"v_writelane_b32 v255, s{SSTMP}, {k}\nv_writelane_b32 v255, s{SSTMP+2}, {k+32}")
    def cap(self, fn):
        sub = Prog(); save = self.p; self.p = sub
        fn()
        self.p = save
        assert sub.vm == 0 and sub.lg == 0
        return [(lambda l=l: self.p(l)) for l in sub.L]
    def run(self, ops):
        for op in ops: op()
    def dseq(self, items):
        p = self.p
        def setup(it):
            if it[0] is not None: p(f"s_add_u32 m0, s{it[0][0]}, {it[0][1]}")
            if it[1] is not None: p(f"s_add_u32 s{SDO}, s{it[1][0]}, {it[1][1]}")
        ops = [lambda: setup(items[0])]
        for i, it in enumerate(items):
            def f(i=i, it=it):
                t = p.vmem(it[2])
                if it[3]: it[3](t)
                if i + 1 < len(items): setup(items[i + 1])
            ops.append(f)
        return ops
    def poll_addr(self, vt, groups):
        p = self.p; n0 = 0
        p(f"v_mov_b32 {v(vt)}, {v(VOOB)}")
        for (sr, n) in groups:
            if n == 1: p(f"v_writelane_b32 {v(vt)}, s{sr}, {n0}")
            else:
                p(f"s_sub_u32 s{sr}, s{sr}, {n0*128}\nv_lshl_add_u32 {v(vt+1)}, {v(VL)}, 7, s{sr}")
                m = ((1 << n) - 1) << n0
                p(f"s_mov_b32 vcc_lo, {m & 0xffffffff}\ns_mov_b32 vcc_hi, {m >> 32}\nv_cndmask_b32 {v(vt)}, {v(vt)}, {v(vt+1)}, vcc")
            n0 += n
        return n0
    def poll(self, vt, n):
        p = self.p
        l = p.label("poll"); d = p.label("pd")
        p(f"s_mov_b32 s{SSPIN}, 0")
        p.put(l)
        p.vmem(f"buffer_load_dword {v(vt+1)}, {v(vt)}, {srd(SWS)}, 0 offen sc1")
        p.wait_vm_all()
        p(f"v_cmp_ne_u32 vcc, s{ST_T}, {v(vt+1)}")
        if n <= 32: p(f"s_and_b32 s{SF}, vcc_lo, {(1<<n)-1}")
        else: p(f"s_and_b32 vcc_hi, vcc_hi, {(1<<(n-32))-1}\ns_or_b32 s{SF}, vcc_lo, vcc_hi")
        p(f"s_cbranch_scc0 {d}")
        p(f"s_add_u32 s{SSPIN}, s{SSPIN}, 1\ns_cmp_lt_u32 s{SSPIN}, {SPIN}\ns_cbranch_scc1 {l}")
        p.put(d)
    def flag_prep(self, vt):
        p = self.p
        p(f"v_mov_b32 {v(vt)}, s{ST_T}\nv_mov_b32 {v(vt+1)}, {v(VOOB)}\nv_writelane_b32 {v(vt+1)}, 0, 0")
    def flag(self, off_sreg, vt):
        self.p.vmem(f"buffer_store_dword {v(vt)}, {v(vt+1)}, {srd(SWS)}, s{off_sreg} offen sc1")
    def xhalf_sum(self, a, t):
        self.p(f"v_mov_b32 {v(t)}, {v(a)}\nv_permlane32_swap_b32 {v(a)}, {v(t)}\nv_add_f32 {v(a)}, {v(a)}, {v(t)}")
    def rnd(self, d, s):
        self.p(f"v_cvt_pk_bf16_f32 {v(d)}, {v(s)}, {v(s)}\nv_lshlrev_b32 {v(d)}, 16, {v(d)}")
    def unpack(self, d, s):
        self.p(f"v_and_b32 {v(d+1)}, 0xffff0000, {v(s)}\nv_lshlrev_b32 {v(d)}, 16, {v(s)}")
    def plain_read_addr(self, dst4, base_sreg, t):
        p = self.p
        p(f"v_and_b32 {v(t)}, 31, {v(VL)}\nv_lshlrev_b32 {v(t)}, 7, {v(t)}")
        if base_sreg is not None: p(f"v_add_u32 {v(t)}, s{base_sreg}, {v(t)}")
        p(f"v_bfe_u32 {v(t+1)}, {v(VL)}, 1, 3\nv_lshrrev_b32 {v(dst4)}, 5, {v(VL)}\nv_xor_b32 {v(t+1)}, {v(t+1)}, {v(dst4)}")
        p(f"v_lshlrev_b32 {v(t+1)}, 4, {v(t+1)}")
        for ks in range(4):
            p(f"v_xor_b32 {v(dst4+ks)}, {32*ks}, {v(t+1)}\nv_add_u32 {v(dst4+ks)}, {v(dst4+ks)}, {v(t)}")
    def plain_dma_addr(self, dst4, rowbytes, t, rowstep=8):
        p = self.p
        p(f"v_lshrrev_b32 {v(t)}, 3, {v(VL)}\nv_mul_u32_u24 {v(t)}, {rowbytes}, {v(t)}")
        self.plain_dma_addr2(dst4, t, t + 1, rowstep * rowbytes)
    def plain_dma_addr2(self, dst4, vrow, t, step):
        p = self.p
        p(f"v_and_b32 {v(t)}, 7, {v(VL)}\nv_lshrrev_b32 {v(dst4)}, 4, {v(VL)}\nv_xor_b32 {v(t)}, {v(t)}, {v(dst4)}\nv_lshlrev_b32 {v(t)}, 4, {v(t)}")
        p(f"v_add_u32 {v(dst4)}, {v(t)}, {v(vrow)}")
        p(f"v_xor_b32 {v(t)}, 64, {v(t)}\nv_add_u32 {v(dst4+1)}, {v(t)}, {v(vrow)}")
        p(f"v_add_u32 {v(dst4+2)}, {2*(step-1024)}, {v(dst4)}\nv_add_u32 {v(dst4+3)}, {3*(step-1024)}, {v(dst4+1)}\nv_add_u32 {v(dst4+1)}, {step-1024}, {v(dst4+1)}")
    def panel_tr_addr(self, dst2, base_sreg, t, perm):
        p = self.p
        p(f"v_lshrrev_b32 {v(t)}, 5, {v(VL)}\nv_lshlrev_b32 {v(t)}, 10, {v(t)}")
        p(f"v_bfe_u32 {v(t+1)}, {v(VL)}, 2, 2\nv_lshl_add_u32 {v(t)}, {v(t+1)}, 7, {v(t)}")
        p(f"v_bfe_u32 {v(t+1)}, {v(VL)}, 4, 1\nv_lshl_add_u32 {v(t)}, {v(t+1)}, 5, {v(t)}")
        if perm:
            p(f"v_and_b32 {v(t+1)}, 1, {v(VL)}\nv_lshl_add_u32 {v(t)}, {v(t+1)}, 4, {v(t)}")
            p(f"v_bfe_u32 {v(t+1)}, {v(VL)}, 1, 1\nv_lshl_add_u32 {v(t)}, {v(t+1)}, 3, {v(t)}")
        else:
            p(f"v_and_b32 {v(t+1)}, 3, {v(VL)}\nv_lshl_add_u32 {v(t)}, {v(t+1)}, 3, {v(t)}")
        p(f"v_bfe_u32 {v(t+1)}, {v(VL)}, 3, 1\nv_lshlrev_b32 {v(t+1)}, 6, {v(t+1)}")
        if base_sreg is not None: p(f"v_add_u32 {v(t)}, s{base_sreg}, {v(t)}")
        p(f"v_add_u32 {v(dst2)}, {v(t)}, {v(t+1)}\nv_xor_b32 {v(t+1)}, 64, {v(t+1)}\nv_add_u32 {v(dst2+1)}, {v(t)}, {v(t+1)}")
    def unit_tr_addr(self, dst2, base_sreg, t, perm, flip_sreg=None):
        p = self.p
        p(f"v_bfe_u32 {v(t)}, {v(VL)}, 4, 1")
        if flip_sreg is not None: p(f"v_xor_b32 {v(t)}, s{flip_sreg}, {v(t)}")
        p(f"v_lshlrev_b32 {v(t)}, 1, {v(t)}")
        p(f"v_bfe_u32 {v(t+1)}, {v(VL)}, {0 if perm else 1}, 1\nv_or_b32 {v(t)}, {v(t)}, {v(t+1)}")
        p(f"v_lshrrev_b32 {v(t+1)}, 5, {v(VL)}\nv_lshlrev_b32 {v(t+1)}, 1, {v(t+1)}\nv_xor_b32 {v(t+1)}, {v(t+1)}, {v(t)}")
        p(f"v_lshlrev_b32 {v(t)}, 9, {v(t)}")
        p(f"v_bfe_u32 {v(t+2)}, {v(VL)}, 2, 2\nv_lshl_add_u32 {v(t)}, {v(t+2)}, 4, {v(t)}")
        p(f"v_bfe_u32 {v(t+2)}, {v(VL)}, {1 if perm else 0}, 1\nv_lshl_add_u32 {v(t)}, {v(t+2)}, 3, {v(t)}")
        if base_sreg is not None: p(f"v_add_u32 {v(t)}, s{base_sreg}, {v(t)}")
        p(f"v_lshl_add_u32 {v(dst2)}, {v(t+1)}, 6, {v(t)}")
        p(f"v_xor_b32 {v(t+1)}, 1, {v(t+1)}\nv_lshl_add_u32 {v(dst2+1)}, {v(t+1)}, 6, {v(t)}")

    def gemm_loop(self, nslot, reads, mfmas, dma, tick, rfront, npro, extra, valu=None):
        p = self.p
        p.wait(vm=tick[0]); p("s_barrier")
        self.stamp(20)
        self.run(reads(0))
        d = []
        for st in range(npro, nslot): d += dma(st)
        q = (len(d) + 2) // 3
        pend = [d[i * q:(i + 1) * q] for i in range(3)]
        for n in range(32):
            rd = []
            if n + 1 < 32:
                if (n + 1) % 4 == 0:
                    st = (n + 1) // 4
                    p.wait(vm=tick[st], lg=p.lg - 1); p("s_barrier")
                    d = dma(st - 1 + nslot) if st - 1 + nslot < 8 else extra.get(st, lambda: [])()
                    q = (len(d) + 3) // 4
                    pend = [d[i * q:(i + 1) * q] for i in range(4)]
                rd = reads(n + 1)
            seq = merge(mfmas(n), rd, 0, rfront)
            if pend: seq = merge(seq, pend.pop(0), len(seq) // 2)
            if valu and n in valu: seq = merge(seq, valu[n])
            self.run(seq)

    def gate(self, GX, GW, GU, GS, GT):
        p = self.p
        for i in range(4):
            for r in range(4):
                p(f"v_dot2_f32_bf16 {v(GS+r)}, {v(GX+4*r+i)}, {v(GW+i)}, {'0' if i == 0 else v(GS+r)}")
        p("s_nop 2")
        for mod in ["quad_perm:[1,0,3,2]", "quad_perm:[2,3,0,1]", "row_half_mirror", "row_mirror"]:
            for r in range(4): p(f"v_add_f32_dpp {v(GS+r)}, {v(GS+r)}, {v(GS+r)} {mod} row_mask:0xf bank_mask:0xf")
        for sw in ["v_permlane16_swap_b32", "v_permlane32_swap_b32"]:
            for r in range(4): p(f"v_mov_b32 {v(GT+r)}, {v(GS+r)}")
            for r in range(4): p(f"{sw} {v(GS+r)}, {v(GT+r)}")
            for r in range(4): p(f"v_add_f32 {v(GS+r)}, {v(GS+r)}, {v(GT+r)}")
        for r in range(4): p(f"v_mul_f32 {v(GS+r)}, {f2u(-LOG2E)}, {v(GS+r)}")
        for r in range(4): p(f"v_exp_f32 {v(GS+r)}, {v(GS+r)}")
        for r in range(4): p(f"v_add_f32 {v(GS+r)}, 1.0, {v(GS+r)}")
        for r in range(4): p(f"v_rcp_f32 {v(GS+r)}, {v(GS+r)}")
        p(f"v_mov_b32 {v(GT)}, {v(VOOB)}\nv_writelane_b32 {v(GT)}, 0, 0")

    def w_dma_addr(self, dst3, t, colbase):
        p = self.p
        for i in range(3):
            p(f"v_add_u32 {v(t)}, {64*i}, {v(VL)}\nv_mul_u32_u24 {v(t+1)}, 171, {v(t)}\nv_lshrrev_b32 {v(t+1)}, 11, {v(t+1)}")
            p(f"v_mul_u32_u24 {v(t+2)}, 12, {v(t+1)}\nv_sub_u32 {v(t)}, {v(t)}, {v(t+2)}\nv_cmp_eq_u32 vcc, 11, {v(t)}")
            p(f"v_mul_u32_u24 {v(t+1)}, 2752, {v(t+1)}\nv_lshl_add_u32 {v(t)}, {v(t)}, 4, {v(t+1)}")
            if colbase - 1024 * i: p(f"v_add_u32 {v(t)}, {colbase-1024*i}, {v(t)}")
            p(f"v_cndmask_b32 {v(dst3+i)}, {v(t)}, {v(VOOB)}, vcc")
    def w_tr_addr(self, dst, base, t):
        p = self.p
        p(f"v_lshrrev_b32 {v(t)}, 5, {v(VL)}\nv_bfe_u32 {v(t+1)}, {v(VL)}, 2, 2\nv_lshl_add_u32 {v(t)}, {v(t)}, 3, {v(t+1)}\nv_mul_u32_u24 {v(t)}, 192, {v(t)}")
        p(f"v_bfe_u32 {v(t+1)}, {v(VL)}, 4, 1\nv_lshl_add_u32 {v(t)}, {v(t+1)}, 5, {v(t)}")
        p(f"v_and_b32 {v(t+1)}, 1, {v(VL)}\nv_lshl_add_u32 {v(t)}, {v(t+1)}, 4, {v(t)}")
        p(f"v_bfe_u32 {v(t+1)}, {v(VL)}, 1, 1\nv_lshl_add_u32 {v(t)}, {v(t+1)}, 3, {v(t)}")
        p(f"v_add_u32 {v(dst)}, {base}, {v(t)}")
    def valid_masks(self):
        MA, MB = SK + 2, SK + 4
        self.p.atom(f"s_cmp_lt_u32 s{SCOL}, 7\ns_mov_b32 s{MA}, -1\ns_cselect_b32 s{MA+1}, -1, 0\ns_cselect_b32 s{MB}, -1, 0\ns_mov_b32 s{MB+1}, 0\n"
                    f"s_mov_b32 s{SK+6}, {f2u(1/72)}\ns_cselect_b32 s{SK+6}, {f2u(1/88)}, s{SK+6}")
        c1 = -2 * LOG2E * 0.7978845608028654
        self.p(f"s_mov_b32 s{SK}, {f2u(c1*0.044715)}\nv_mov_b32 {v(self.VC0)}, {f2u(c1)}")

    def gelu_pair(self, a, t, out_packed=None):
        p = self.p
        p(f"v_pk_mul_f32 {v(t,2)}, {v(a,2)}, {v(a,2)}")
        p(f"v_pk_fma_f32 {v(t,2)}, {v(t,2)}, {sp(SK)}, {v(self.VC0,2)} op_sel_hi:[1,0,0]")
        p(f"v_pk_mul_f32 {v(t,2)}, {v(t,2)}, {v(a,2)}")
        p(f"v_exp_f32 {v(t)}, {v(t)}\nv_exp_f32 {v(t+1)}, {v(t+1)}")
        p(f"v_pk_add_f32 {v(t,2)}, {v(t,2)}, 1.0 op_sel_hi:[1,0]")
        p(f"v_rcp_f32 {v(t)}, {v(t)}\nv_rcp_f32 {v(t+1)}, {v(t+1)}")
        if out_packed is not None:
            p(f"v_pk_mul_f32 {v(t,2)}, {v(t,2)}, {v(a,2)}")
            p(f"v_cvt_pk_bf16_f32 {v(out_packed)}, {v(t)}, {v(t+1)}")
        else:
            p(f"v_pk_mul_f32 {v(a,2)}, {v(t,2)}, {v(a,2)}")
    def gelu_many(self, pairs, temps, outs=None):
        p = self.p; ng = len(temps)
        for g0 in range(0, len(pairs), ng):
            streams = []
            for k, i in enumerate(range(g0, min(g0 + ng, len(pairs)))):
                sub = Prog(); save = self.p; self.p = sub
                self.gelu_pair(pairs[i], temps[k], None if outs is None else outs[i])
                self.p = save
                streams.append(sub.L)
            for j in range(len(streams[0])):
                for s in streams: p(s[j])

    VWD, VWR, VWA, VC0 = 240, 244, 248, 252
    def wsp_setup(self, t):
        p = self.p
        self.plain_dma_addr(self.VWD, 4096, t)
        p(f"s_and_b32 s{SA}, s{SWV}, 1\ns_lshl_b32 s{SA}, s{SA}, 12")
        self.plain_read_addr(self.VWR, SA, t)
        p(f"s_lshl_b32 s{SWB}, s{STB}, 18\ns_lshl_b32 s{SB_}, s{SWV}, 10\ns_add_u32 s{SWB}, s{SWB}, s{SB_}")
        self.wsp_t = {}
    def piece(self, st): return (SPB + st % 5, 0)
    def wsp_dma(self, st):
        if self.o.get("x_nowsp") and st >= 2:
            self.wsp_t[st] = -1
            return [lambda: None] * 9
        items = []; sr, im = self.piece(st)
        for hh in range(2):
            for i in range(4):
                def cb(t): self.wsp_t[st] = t
                items.append(((sr, im + hh * 4096) if i == 0 else None, (SWB, st * 128 + hh * 131072) if i == 0 else None,
                              f"buffer_load_dwordx4 {v(self.VWD+i)}, {srd(SWSP)}, s{SDO} offen offset:{i*1024} lds", cb))
        return self.dseq(items)
    def wsp_read(self, st):
        if self.o.get("x_nord"): return [lambda: None]
        p = self.p; sr, im = self.piece(st)
        def pre():
            for ks in range(4): p(f"v_add_u32 {v(self.VWA+ks)}, s{sr}, {v(self.VWR+ks)}")
            p.wait(vm=self.wsp_t[st], lg=p.lg - 8)
        ops = [pre]
        for nt in range(2):
            for ks in range(4):
                def f(ks=ks, nt=nt):
                    p.lds(f"ds_read_b128 {ar(((st*4+ks)*2+nt)*4,4)}, {v(self.VWA+ks)} offset:{im}")
                    if nt == 0: p(f"v_xor_b32 {v(self.VWA+ks)}, 4096, {v(self.VWA+ks)}")
                ops.append(f)
        return ops

    def prologue(self):
        p = self.p
        self.END = p.label("end")
        p(f"s_cmp_ge_u32 s2, 256\ns_cbranch_scc1 {self.END}")
        p(f"s_load_dwordx2 {sp(SX)}, s[0:1], 0\ns_load_dwordx2 {sp(PWIN)}, s[0:1], 80\ns_load_dwordx4 s[{PBRE}:{PBRE+3}], s[0:1], 24")
        p(f"s_load_dwordx2 {sp(PGW)}, s[0:1], 112\ns_load_dwordx4 s[{PLRE}:{PLRE+3}], s[0:1], 8\ns_load_dwordx2 {sp(PLDT)}, s[0:1], 56\ns_load_dwordx2 {sp(SWS)}, s[0:1], 136")
        if self.o.get("tlb", 1):
            for (r, off) in [(SWSP, 88), (SCRE, 40), (SCIM, 48), (SWOUT, 104), (SOUT, 120), (PDSK, 64), (PBSP, 96)]:
                p(f"s_load_dwordx2 {sp(r)}, s[0:1], {off}")
            for (r, n) in [(SWSP, 8388608), (SWS, WS_END), (SCRE, 524288), (SCIM, 524288), (SWOUT, 704512), (SOUT, 4194304)]:
                p(f"s_mov_b32 s{r+2}, {n}\ns_mov_b32 s{r+3}, 0x20000")
        p(f"v_lshrrev_b32 v2, 6, v0\nv_and_b32 {v(VL)}, 63, v0\nv_readfirstlane_b32 s{SWV}, v2\nv_lshlrev_b32 {v(VL16)}, 4, {v(VL)}\nv_mov_b32 {v(VOOB)}, {OOB}")
        if self.o.get("stamps"): p("v_mov_b32 v255, 0")
        self.stamp(17)
        p(f"s_and_b32 s{SA}, s2, 7\ns_lshr_b32 s{SB_}, s2, 3")
        p(f"s_and_b32 s{SC}, s{SA}, 1\ns_lshl_b32 s{SC}, s{SC}, 2\ns_and_b32 s{SD}, s{SB_}, 3\ns_add_u32 s{SCOL}, s{SC}, s{SD}")
        p(f"s_lshr_b32 s{SA}, s{SA}, 1")
        p(f"s_lshr_b32 s{SC}, s{SB_}, 2\ns_lshl_b32 s{SD}, s{SA}, 3\ns_add_u32 s{STB}, s{SD}, s{SC}")
        p(f"s_and_b32 s{SC}, s{SC}, 3\ns_lshl_b32 s{SD}, s{SA}, 2\ns_add_u32 s{SRB}, s{SD}, s{SC}")
        if self.o.get("map", 1) == 1:
            p(f"s_and_b32 s{SD}, s2, 7\ns_lshl_b32 s{SD}, s{SD}, 2\ns_lshr_b32 s{STB}, s{SB_}, 3\ns_add_u32 s{STB}, s{STB}, s{SD}\ns_and_b32 s{SJ}, s{SB_}, 7")
        else: p(f"s_mov_b32 s{SJ}, s{SCOL}")
        p(f"s_mov_b32 s{SX+2}, 2097152\ns_mov_b32 s{SX+3}, 0x20000\ns_mov_b32 s{SW1+3}, 0x20000")
        if "probe" in self.o:
            off, ls, ws_ = [int(x) for x in self.o["probe"].split(",")]
            p(f"s_load_dwordx2 {sp(SPFP)}, s[0:1], {off}\ns_lshl_b32 s{SD}, s2, 2\ns_add_u32 s{SD}, s{SD}, s{SWV}\ns_mul_i32 s{SD}, s{SD}, {ws_}")
            p(f"v_mul_u32_u24 {v(4)}, {ls}, {v(VL)}\nv_add_u32 {v(4)}, s{SD}, {v(4)}\ns_waitcnt lgkmcnt(0)")
            p(f"global_load_dword {v(5)}, {v(4)}, {sp(SPFP)}\ns_waitcnt vmcnt(0)")
            self.stamp(30)
        pf = self.o.get("pf", 2)
        if pf == 1:
            p(f"s_lshl_b32 s{SD}, s2, 2\ns_add_u32 s{SD}, s{SD}, s{SWV}\ns_mov_b32 s{SC}, 0\ns_mov_b32 s{SA}, 0")
            for (lo, off) in [(256, 80), (428, 24), (492, 32)]:
                p(f"s_cmp_ge_u32 s{SD}, {lo}\ns_cselect_b32 s{SC}, {off}, s{SC}\ns_cselect_b32 s{SA}, {lo}, s{SA}")
            p(f"s_cmp_lt_u32 s{SD}, 556\ns_cselect_b32 s{SPFE}, 1, 0")
            p(f"s_sub_u32 s{SD}, s{SD}, s{SA}\ns_load_dwordx2 {sp(SPFP)}, s[0:1], s{SC}")
            p(f"s_lshl_b32 s{SD}, s{SD}, 13\nv_lshl_add_u32 {v(4)}, {v(VL)}, 7, s{SD}")
        if pf == 2:
            p(f"s_lshl_b32 s{SD}, s{SWV}, 8\ns_add_u32 s{SD}, s{SD}, s2\ns_mov_b32 s{SC}, 0\ns_mov_b32 s{SA}, 0\ns_mov_b32 s{SE}, 2047")
            for (lo, off, last) in [(171, 24, 511), (214, 32, 511), (257, 80, 0)]:
                p(f"s_cmp_ge_u32 s{SD}, {lo}\ns_cselect_b32 s{SC}, {off}, s{SC}\ns_cselect_b32 s{SA}, {lo}, s{SA}\ns_cselect_b32 s{SE}, {last}, s{SE}")
            p(f"s_cmp_lt_u32 s{SD}, 365\ns_cselect_b32 s{SPFE}, 1, 0")
            p(f"s_sub_u32 s{SD}, s{SD}, s{SA}\ns_load_dwordx2 {sp(SPFP)}, s[0:1], s{SC}")
            p(f"v_mul_u32_u24 {v(4)}, 52, {v(VL)}\nv_lshrrev_b32 {v(4)}, 8, {v(4)}\nv_mul_u32_u24 {v(5)}, 5, {v(4)}\nv_sub_u32 {v(5)}, {v(VL)}, {v(5)}")
            p(f"s_mul_i32 s{SA}, s{SD}, 12\nv_add_u32 {v(4)}, s{SA}, {v(4)}\nv_min_u32 {v(4)}, s{SE}, {v(4)}\nv_lshlrev_b32 {v(4)}, 10, {v(4)}\nv_lshl_add_u32 {v(4)}, {v(5)}, 7, {v(4)}\nv_add_u32 {v(4)}, 384, {v(4)}")
            p(f"s_lshl_b32 s{SD}, s{SD}, 13\ns_add_u32 s{SD}, s{SD}, {192*2752}\nv_lshl_add_u32 {v(5)}, {v(VL)}, 7, s{SD}\nv_min_u32 {v(5)}, {512*2752-4}, {v(5)}")
            p(f"s_cmp_eq_u32 s{SE}, 0\ns_cselect_b64 vcc, -1, 0\nv_cndmask_b32 {v(4)}, {v(4)}, {v(5)}, vcc")
        self.LU = p.label("U"); self.LG = p.label("G")
        p(f"s_cmp_ge_u32 s{SB_}, 16\ns_cbranch_scc1 {self.LU}")
    def code_prefetch(self, va, vd):
        if not self.o.get("cpf", 1): return
        p = self.p
        sk = p.label("cpf"); here = p.label("pc")
        nsl = self.o.get("cpfn", 6)
        p(f"s_lshr_b32 s{SA}, s2, 3\ns_and_b32 s{SA}, s{SA}, 15\ns_lshl_b32 s{SA}, s{SA}, 2\ns_add_u32 s{SA}, s{SA}, s{SWV}")
        p(f"s_cmp_ge_u32 s{SA}, {nsl}\ns_cbranch_scc1 {sk}")
        p(f"s_getpc_b64 s[{SSTMP}:{SSTMP+1}]")
        p.put(here)
        p(f"s_sub_u32 s{SSTMP}, s{SSTMP}, {here}-{NAME}\ns_subb_u32 s{SSTMP+1}, s{SSTMP+1}, 0")
        p(f"s_lshl_b32 s{SA}, s{SA}, 13\nv_lshl_add_u32 {v(va)}, {v(VL)}, 7, s{SA}\nv_min_u32 {v(va)}, {self.END}-{NAME}, {v(va)}")
        p(f"global_load_dword {v(vd)}, {v(va)}, s[{SSTMP}:{SSTMP+1}]")
        p.put(sk)
    def pf1(self, when=1):
        if self.o.get("pf", 2) == when:
            p = self.p; l = p.label("pf")
            p(f"s_cmp_eq_u32 s{SPFE}, 0\ns_cbranch_scc1 {l}\nglobal_load_dword {v(5)}, {v(4)}, {sp(SPFP)}")
            p.put(l)
    def tlb_warm(self):
        p = self.p
        ls = [p.label("tw") for _ in range(4)]
        p(f"v_lshlrev_b32 {v(6)}, 19, {v(VL)}\nv_mov_b32 {v(7)}, 0")
        p(f"s_cmp_eq_u32 s{SWV}, 1\ns_cbranch_scc1 {ls[0]}\ns_cmp_eq_u32 s{SWV}, 2\ns_cbranch_scc1 {ls[1]}\ns_cmp_eq_u32 s{SWV}, 3\ns_cbranch_scc1 {ls[2]}")
        p(f"buffer_load_dword {v(8)}, {v(6)}, {srd(SWS)}, 0 offen sc1\nglobal_load_ushort {v(9)}, {v(7)}, {sp(PGW)}\ns_branch {ls[3]}")
        p.put(ls[0]); p(f"buffer_load_dword {v(8)}, {v(6)}, {srd(SWSP)}, 0 offen\nglobal_load_ushort {v(9)}, {v(7)}, {sp(PBSP)}\nglobal_load_ushort {v(10)}, {v(7)}, {sp(PDSK)}\ns_branch {ls[3]}")
        p.put(ls[1]); p(f"buffer_load_dword {v(8)}, {v(6)}, {srd(SOUT)}, 0 offen sc1\nbuffer_load_dword {v(9)}, {v(6)}, {srd(SWOUT)}, 0 offen\ns_branch {ls[3]}")
        p.put(ls[2]); p(f"buffer_load_dword {v(8)}, {v(6)}, {srd(SCRE)}, 0 offen\nbuffer_load_dword {v(9)}, {v(6)}, {srd(SCIM)}, 0 offen")
        p.put(ls[3])
    def late_args(self):
        p = self.p
        if self.o.get("tlb", 1):
            self.tlb_warm()
            p(f"s_load_dword s{ST_T}, {sp(SWS)}, {EPOCH}")
            return
        for (r, off) in [(SWSP, 88), (SCRE, 40), (SCIM, 48), (SWOUT, 104), (SOUT, 120), (PDSK, 64), (PBSP, 96)]:
            p(f"s_load_dwordx2 {sp(r)}, s[0:1], {off}")
        p(f"s_load_dword s{ST_T}, {sp(SWS)}, {EPOCH}")
        for (r, n) in [(SWSP, 8388608), (SWS, WS_END), (SCRE, 524288), (SCIM, 524288), (SWOUT, 704512), (SOUT, 4194304)]:
            p(f"s_mov_b32 s{r+2}, {n}\ns_mov_b32 s{r+3}, 0x20000")
    def epoch2(self):
        p = self.p
        p.wait_lg_all()
        p(f"s_mul_i32 s{ST_T}, s{ST_T}, 0x9E3779B1\ns_add_u32 s{ST_T}, s{ST_T}, 0x7F4A7C15")

    def touch_wsp(self, va, vd, k, n):
        p = self.p
        if k == 0:
            p(f"s_lshr_b32 s{SB_}, s2, 3\ns_lshl_b32 s{SB_}, s{SB_}, 2\ns_add_u32 s{SB_}, s{SB_}, s{SWV}\ns_lshl_b32 s{SB_}, s{SB_}, 13")
            p(f"s_and_b32 s{SA}, s2, 7\ns_lshl_b32 s{SA}, s{SA}, 20\ns_add_u32 s{SPFP}, s{SA}, s{SB_}")
            p(f"v_cmp_gt_u32 vcc, {64//n}, {v(VL)}\nv_lshlrev_b32 {v(va)}, 7, {v(VL)}\ns_nop 0\nv_cndmask_b32 {v(va)}, {v(VOOB)}, {v(va)}, vcc")
        else: p(f"s_add_u32 s{SPFP}, s{SPFP}, {8192//n}")
        p.vmem(f"buffer_load_dword {v(vd)}, {v(va)}, {srd(SWSP)}, s{SPFP} offen {self.o.get('tmod', '')}")
    def ctouch(self, va, vd):
        p = self.p; l = p.label("ct")
        p(f"s_lshl_b32 s{SA}, s{SWV}, 8\ns_add_u32 s{SA}, s{SA}, s2\ns_cmp_ge_u32 s{SA}, 856\ns_cbranch_scc1 {l}")
        p(f"s_cmp_lt_u32 s{SA}, 256\ns_cselect_b64 {sp(SSTMP)}, {sp(SCRE)}, {sp(SCIM)}")
        p(f"s_sub_u32 s{SB_}, s{SA}, 512\ns_and_b32 s{SSPIN}, s{SA}, 255\ns_cmp_ge_u32 s{SA}, 512\ns_cselect_b64 {sp(SSTMP)}, {sp(SWOUT)}, {sp(SSTMP)}\ns_cselect_b32 s{SA}, s{SB_}, s{SSPIN}")
        p(f"s_lshl_b32 s{SA}, s{SA}, 11\nv_and_b32 {v(vd)}, 15, {v(VL)}\nv_lshlrev_b32 {v(vd)}, 7, {v(vd)}\nv_add_u32 {v(vd)}, s{SA}, {v(vd)}")
        p(f"global_load_dword {v(vd)}, {v(vd)}, {sp(SSTMP)}")
        p.put(l)
    def paced(self, valu, va, vd, t0, dt):
        if "ct" in self.o: valu.setdefault(self.o["ct"], []).append(lambda: self.ctouch(va, vd + 1 if vd != 205 else 4))
        n = self.o.get("tn", 4)
        if self.o.get("touch", 1) != 1: return
        for k in range(n):
            valu.setdefault(t0 + k * dt, []).append(lambda k=k: self.touch_wsp(va, vd, k, n))
    def touch_c(self, va, vd):
        p = self.p
        p(f"v_lshlrev_b32 {v(va)}, 7, {v(VL)}\ns_lshr_b32 s{SB_}, s2, 3\ns_lshl_b32 s{SB_}, s{SB_}, 2\ns_add_u32 s{SB_}, s{SB_}, s{SWV}\ns_lshl_b32 s{SA}, s{SB_}, 13")
        p.vmem(f"buffer_load_dword {v(vd)}, {v(va)}, {srd(SWOUT)}, s{SA} offen")
        p.vmem(f"buffer_load_dword {v(vd)}, {v(va)}, {srd(SCRE)}, s{SA} offen")
        p.vmem(f"buffer_load_dword {v(vd)}, {v(va)}, {srd(SCIM)}, s{SA} offen")
        p(f"s_add_u32 s{SA}, s{SA}, 524288")
        p.vmem(f"buffer_load_dword {v(vd)}, {v(va)}, {srd(SWOUT)}, s{SA} offen")
    GTR, GPL = 236, 238
    def g_early(self, t):
        p = self.p
        p(f"s_lshr_b32 s{SA}, s{SWV}, 1")
        self.unit_tr_addr(self.GTR, SREG, t, True, flip_sreg=SA)
        p(f"s_lshl_b32 s{SA}, s{SJ}, 13\ns_add_u32 s{SA}, s{SA}, {ZF}\ns_lshl_b32 s{SB_}, s{SWV}, 11\ns_add_u32 s{SB_}, s{SB_}, s{SA}")
        self.poll_addr(self.GPL, [(SB_, 16)])
        p(f"s_lshl_b32 s{SA}, s{STB}, 8\ns_add_u32 s{SA}, s{SA}, {ZF}")
        p(f"v_bfe_u32 {v(t)}, {v(VL)}, 1, 3\nv_lshlrev_b32 {v(t)}, 13, {v(t)}\nv_and_b32 {v(t+1)}, 1, {v(VL)}\nv_lshl_add_u32 {v(t)}, {v(t+1)}, 7, {v(t)}\nv_add_u32 {v(t)}, s{SA}, {v(t)}")
        p(f"s_mov_b32 vcc_lo, 0xffff0000\ns_mov_b32 vcc_hi, 0\nv_cndmask_b32 {v(self.GPL)}, {v(self.GPL)}, {v(t)}, vcc")
        p(f"s_lshl_b32 s{SA}, s{SJ}, 6\ns_lshl_b32 s{SB_}, s{STB}, 1\ns_add_u32 s{SA}, s{SA}, s{SB_}\ns_and_b32 s{SB_}, s{SWV}, 1\ns_add_u32 s{SZI}, s{SA}, s{SB_}")
        p(f"s_lshl_b32 s{SA}, s{SZI}, 7\ns_add_u32 s{SA}, s{SA}, {Z1F}\nv_writelane_b32 {v(self.GPL)}, s{SA}, 32")
        p(f"s_lshl_b32 s{SA}, s{SJ}, 6\ns_lshl_b32 s{SB_}, s{SWV}, 4\ns_add_u32 s{SA}, s{SA}, s{SB_}\ns_mul_i32 s{SGB}, s{SA}, 5632\ns_add_u32 s{SGB}, s{SGB}, {Z2N}")
    def g_poll_issue(self):
        self.gp = self.p.vmem(f"buffer_load_dword {v(self.GPL+1)}, {v(self.GPL)}, {srd(SWS)}, 0 offen sc1")

    def phase_z(self):
        p = self.p; o = self.o
        ACC, FA, FB, XR, WR, XD, WD, T = 16, 64, 88, 96, 100, 104, 108, 112
        p.c("==== phase A: Z ====")
        self.plain_dma_addr(XD, 1024, T)
        p(f"s_lshl_b32 s{SXB}, s{SRB}, 17\ns_lshl_b32 s{SA}, s{SWV}, 15\ns_add_u32 s{SXB}, s{SXB}, s{SA}")
        p(f"s_mul_i32 s{SREG}, s{SWV}, 40960")
        tick = {}
        def xdma(st, cb=None):
            return [((SREG, (st & 3) * 4096) if i == 0 else None, (SXB, st * 128) if i == 0 else None,
                     f"buffer_load_dwordx4 {v(XD+i)}, {srd(SX)}, s{SDO} offen offset:{i*1024} lds", cb) for i in range(4)]
        def wdma(st, cb=None):
            return [((SWL, (st & 3) * 40960) if i == 0 else None, (SW1B, st * 64 * 2752) if i == 0 else None,
                     f"buffer_load_dwordx4 {v(WD+i)}, {srd(SW1)}, s{SDO} offen offset:{i*1024} lds", cb) for i in range(3)]
        def dma(st):
            def cb(t): tick[st] = t
            return self.dseq(wdma(st) + xdma(st, cb))
        self.w_dma_addr(WD, T, 1376)
        p(f"s_mul_i32 s{SW1B}, s{SWV}, {16*2752}\ns_mul_i32 s{SA}, s{SCOL}, 176\ns_add_u32 s{SW1B}, s{SW1B}, s{SA}")
        p(f"s_mul_i32 s{SWL}, s{SWV}, 3072\ns_add_u32 s{SWL}, s{SWL}, 16384\ns_mov_b32 s{SW1+2}, {512*2752}")
        p.wait_lg_all()
        p(f"s_mov_b64 {sp(SW1)}, {sp(PWIN)}")
        npro = o.get("npro", 3)
        self.code_prefetch(170, 171)
        self.pf1()
        self.run(dma(0))
        self.late_args()
        def setup():
            self.plain_read_addr(XR, SREG, T)
            self.w_tr_addr(WR, 16384, T)
            self.p(f"v_add_u32 {v(WR+1)}, 81920, {v(WR)}")
            self.wsp_setup(T)
            self.p(f"s_add_u32 s{SPB}, s{SREG}, 32768\ns_mov_b32 s{SPB+1}, s{SREG}\ns_add_u32 s{SPB+2}, s{SREG}, 8192\ns_add_u32 s{SPB+3}, s{SREG}, 16384\ns_add_u32 s{SPB+4}, s{SREG}, 24576")
            self.valid_masks()
        d = []
        for st in range(1, npro): d += dma(st)
        self.run(merge(self.cap(setup), d))
        self.pf1(2)
        self.epoch2()
        self.stamp(0)
        rt = {}
        def reads(n):
            st, ks = n // 4, n % 4; sl = st & 3; s = n & 1; ops = []
            def rb(): rt[(n, 'b')] = p.lds(f"ds_read_b128 {v(FB+4*s,4)}, {v(XR+ks)} offset:{sl*4096}")
            ops.append(rb)
            for mt in range(3):
                for a in range(2):
                    def ra(mt=mt, a=a):
                        rt[(n, mt)] = p.lds(f"ds_read_b64_tr_b16 {v(FA+12*s+4*mt+2*a,2)}, {v(WR+(sl>>1))} offset:{(sl&1)*40960+ks*3072+a*768+mt*64}")
                    ops.append(ra)
            return ops
        def mfmas(n):
            s = n & 1; ops = []
            for mt in range(3):
                def m(mt=mt):
                    p.wait(lg=rt[(n, mt)])
                    c = "0" if n == 0 else v(ACC + 16 * mt, 16)
                    p(f"{MF} {v(ACC+16*mt,16)}, {v(FA+12*s+4*mt,4)}, {v(FB+4*s,4)}, {c}")
                ops.append(m)
            return ops
        GX, GW, GU, GS, GT = 128, 144, 148, 156, 160
        gt = {}
        def gload():
            p(f"s_lshl_b32 s{SE}, s{SRB}, 2\ns_add_u32 s{SE}, s{SE}, s{SWV}\ns_lshl_b32 s{SE}, s{SE}, 3\ns_add_u32 s{SE}, s{SE}, s{SCOL}\ns_lshl_b32 s{SA}, s{SE}, 12")
            for r in range(4): p.vmem(f"buffer_load_dwordx4 {v(GX+4*r,4)}, {v(VL16)}, {srd(SX)}, s{SA} offen offset:{r*1024}")
            gt['t'] = p.vmem(f"global_load_dwordx4 {v(GW,4)}, {v(VL16)}, {sp(PGW)}")
        def gstore():
            p(f"s_lshl_b32 s{SA}, s{SE}, 4\ns_add_u32 s{SA}, s{SA}, {GATE}")
            p.vmem(f"buffer_store_dwordx4 {v(GS,4)}, {v(GT)}, {srd(SWS)}, s{SA} offen sc1")
        gops = [lambda: p.wait(vm=gt['t'])] + self.cap(lambda: self.gate(GX, GW, GU, GS, GT)) + [gstore]
        valu = {28: [gload]}
        def touch_u():
            p(f"v_lshlrev_b32 {v(170)}, 7, {v(VL)}\ns_lshr_b32 s{SB_}, s2, 3\ns_lshl_b32 s{SB_}, s{SB_}, 2\ns_add_u32 s{SB_}, s{SB_}, s{SWV}\ns_lshl_b32 s{SB_}, s{SB_}, 13")
            p(f"s_and_b32 s{SA}, s2, 7\ns_lshl_b32 s{SA}, s{SA}, 20\ns_add_u32 s{SA}, s{SA}, s{SB_}\ns_add_u32 s{SA}, s{SA}, {1<<19}")
            p.vmem(f"buffer_load_dword {v(171)}, {v(170)}, {srd(SWSP)}, s{SA} offen")
        if o.get("touchu"): valu[o["touchu"]] = [touch_u]
        def warm():
            p(f"v_lshlrev_b32 {v(170)}, 18, {v(VL)}\nv_lshlrev_b32 {v(172)}, 16, {v(VL)}\nv_lshlrev_b32 {v(173)}, 13, {v(VL)}")
            ls = [p.label("wm") for _ in range(4)]
            p(f"s_cmp_eq_u32 s{SWV}, 1\ns_cbranch_scc1 {ls[0]}\ns_cmp_eq_u32 s{SWV}, 2\ns_cbranch_scc1 {ls[1]}\ns_cmp_eq_u32 s{SWV}, 3\ns_cbranch_scc1 {ls[2]}")
            p(f"buffer_load_dword {v(171)}, {v(170)}, {srd(SWS)}, 0 offen sc1\ns_branch {ls[3]}")
            p.put(ls[0]); p(f"buffer_load_dword {v(171)}, {v(172)}, {srd(SOUT)}, 0 offen sc1\ns_branch {ls[3]}")
            p.put(ls[1]); p(f"buffer_load_dword {v(171)}, {v(173)}, {srd(SCRE)}, 0 offen\nbuffer_load_dword {v(171)}, {v(173)}, {srd(SCIM)}, 0 offen\ns_branch {ls[3]}")
            p.put(ls[2]); p(f"v_lshlrev_b32 {v(173)}, 14, {v(VL)}\nbuffer_load_dword {v(171)}, {v(173)}, {srd(SWOUT)}, 0 offen")
            p.put(ls[3])
        if o.get("warm"): valu[31] = [warm]
        def ztouch(part):
            if part == 0:
                p(f"v_lshlrev_b32 {v(174)}, 7, {v(VL)}\ns_lshr_b32 s{SB_}, s2, 3\ns_lshl_b32 s{SB_}, s{SB_}, 2\ns_add_u32 s{SB_}, s{SB_}, s{SWV}")
                p(f"s_and_b32 s{SA}, s2, 7\ns_lshl_b32 s{SPFP+1}, s{SB_}, 3\ns_add_u32 s{SPFP+1}, s{SPFP+1}, s{SA}")
                p(f"s_lshl_b32 s{SA}, s{SA}, 20\ns_lshl_b32 s{SB_}, s{SB_}, 13\ns_add_u32 s{SPFP}, s{SA}, s{SB_}")
                p.vmem(f"buffer_load_dword {v(175)}, {v(174)}, {srd(SWSP)}, s{SPFP} offen")
            if part == 1:
                p(f"s_add_u32 s{SPFP}, s{SPFP}, {1<<19}")
                p.vmem(f"buffer_load_dword {v(175)}, {v(174)}, {srd(SWSP)}, s{SPFP} offen")
            if part == 2:
                l = p.label("zt")
                p(f"s_cmp_ge_u32 s{SPFP+1}, 428\ns_cbranch_scc1 {l}")
                p(f"s_cmp_lt_u32 s{SPFP+1}, 128\ns_cselect_b64 {sp(SSTMP)}, {sp(SCRE)}, {sp(SCIM)}\ns_and_b32 s{SA}, s{SPFP+1}, 127")
                p(f"s_sub_u32 s{SB_}, s{SPFP+1}, 256\ns_cmp_ge_u32 s{SPFP+1}, 256\ns_cselect_b64 {sp(SSTMP)}, {sp(SWOUT)}, {sp(SSTMP)}\ns_cselect_b32 s{SA}, s{SB_}, s{SA}")
                p(f"s_lshl_b32 s{SA}, s{SA}, 12\nv_and_b32 {v(174)}, 4095, {v(174)}\nv_add_u32 {v(174)}, s{SA}, {v(174)}")
                p(f"global_load_dword {v(175)}, {v(174)}, {sp(SSTMP)}")
                p.put(l)
        if o.get("touch", 1) == 2:
            for k in range(3): valu.setdefault(o.get(f"zs{k}", [0, 0, 0][k]), []).append(lambda k=k: ztouch(k))
        else: self.paced(valu, 174, 175, o.get("zt0", 6), o.get("zdt", 6))
        self.gemm_loop(4, reads, mfmas, dma, tick, 2, npro, {o.get('ze0', 5): lambda: self.wsp_dma(0), o.get('ze1', 6): lambda: self.wsp_dma(1)}, valu)
        self.stamp(1)
        MA, MB = SK + 2, SK + 4
        GR, VLO = 72, 80
        def seg1b():
            p = self.p
            S0, S1, MU = 64, 66, 68
            p(f"v_pk_add_f32 {v(S0,2)}, {v(ACC,2)}, {v(ACC+2,2)}\nv_pk_add_f32 {v(S1,2)}, {v(ACC+4,2)}, {v(ACC+6,2)}")
            for i in range(4, 16):
                s = S0 if i % 2 == 0 else S1
                p(f"v_pk_add_f32 {v(s,2)}, {v(s,2)}, {v(ACC+2*i,2)}")
            for (m, b) in [(MA, 16), (MB, 20)]:
                p(f"s_mov_b64 exec, {sp(m)}")
                for i in range(b, b + 4):
                    s = S0 if i % 2 == 0 else S1
                    p(f"v_pk_add_f32 {v(s,2)}, {v(s,2)}, {v(ACC+2*i,2)}")
            p("s_mov_b64 exec, -1")
            p(f"v_pk_add_f32 {v(S0,2)}, {v(S0,2)}, {v(S1,2)}\nv_add_f32 {v(GR)}, {v(S0)}, {v(S0+1)}")
            p(f"v_mov_b32 {v(S0)}, {v(GR)}\nv_mov_b32 {v(GR+1)}, s{ST_T}\nv_mov_b32 {v(GR+3)}, s{ST_T}\nv_permlane32_swap_b32 {v(GR)}, {v(S0)}\nv_add_f32 {v(GR)}, {v(GR)}, {v(S0)}")
            p(f"v_mul_f32 {v(MU)}, s{SK+6}, {v(GR)}")
            D0, D1 = 76, 78
            def m2(i, first=False):
                d = D0 if i % 2 == 0 else D1; s = S0 if i % 2 == 0 else S1
                p(f"v_pk_add_f32 {v(d,2)}, {v(ACC+2*i,2)}, {v(MU,2)} op_sel_hi:[1,0] neg_lo:[0,1] neg_hi:[0,1]")
                if first: p(f"v_pk_mul_f32 {v(s,2)}, {v(d,2)}, {v(d,2)}")
                else: p(f"v_pk_fma_f32 {v(s,2)}, {v(d,2)}, {v(d,2)}, {v(s,2)}")
            for i in range(16): m2(i, i < 2)
            for (m, b) in [(MA, 16), (MB, 20)]:
                p(f"s_mov_b64 exec, {sp(m)}")
                for i in range(b, b + 4): m2(i)
            p("s_mov_b64 exec, -1")
            p(f"v_pk_add_f32 {v(S0,2)}, {v(S0,2)}, {v(S1,2)}\nv_add_f32 {v(GR+2)}, {v(S0)}, {v(S0+1)}")
            p(f"v_mov_b32 {v(S0)}, {v(GR+2)}\nv_cmp_gt_u32 vcc, 32, {v(VL)}")
            p(f"s_lshl_b32 s{SC}, s{SRB}, 2\ns_add_u32 s{SC}, s{SC}, s{SWV}")
            p(f"v_permlane32_swap_b32 {v(GR+2)}, {v(S0)}\nv_cndmask_b32 {v(VLO)}, {v(VOOB)}, {v(VL16)}, vcc\nv_add_f32 {v(GR+2)}, {v(GR+2)}, {v(S0)}")
            p(f"s_lshl_b32 s{SD}, s{SC}, 12\ns_add_u32 s{SD}, s{SD}, {ST}\ns_lshl_b32 s{SA}, s{SCOL}, 9\ns_add_u32 s{SA}, s{SA}, s{SD}")
        seg1 = self.cap(lambda: self.gelu_many([ACC + 2 * i for i in range(24)], [64, 68, 72, 76]))
        h = len(seg1) // 5
        f1 = self.wsp_dma(2) + [lambda: p("s_barrier")]
        f2 = self.wsp_dma(3) + self.wsp_dma(4)
        self.run(merge(seg1[:h], f1) + merge(seg1[h:], f2))
        seg1b()
        p.vmem(f"buffer_store_dwordx4 {v(GR,4)}, {v(VLO)}, {srd(SWS)}, s{SA} offen sc1")
        self.stamp(2)
        lgw = lambda: p.wait(lg=p.lg - 1)
        Q0, Q1, QA, QB = 112, 113, 114, 115
        MN, VR, N3, I3, TM = 80, 81, 82, 83, 84
        def misc():
            p = self.p
            self.g_early(120)
            p(f"v_lshrrev_b32 {v(Q1)}, 5, {v(VL)}\nv_lshlrev_b32 {v(Q1)}, 6, {v(Q1)}\nv_xor_b32 {v(Q0)}, {v(VL16)}, {v(Q1)}\nv_xor_b32 {v(Q1)}, 128, {v(Q0)}")
            p(f"v_cndmask_b32 {v(QA)}, {v(VOOB)}, {v(Q0)}, {sp(MA)}\nv_cndmask_b32 {v(QB)}, {v(VOOB)}, {v(Q1)}, {sp(MB)}")
            p(f"s_lshl_b32 s{SA}, s{SCOL}, 6\ns_add_u32 s{SC}, s{SA}, s{SC}\ns_mul_i32 s{SE}, s{SC}, 5632")
            self.flag_prep(118)
            p(f"v_cmp_gt_u32 vcc, 32, {v(VL)}\nv_mov_b32 {v(N3)}, {f2u(72.0)}\nv_mov_b32 {v(TM)}, {f2u(88.0)}\nv_mov_b32 {v(I3)}, {f2u(1/72)}\nv_mov_b32 {v(TM+1)}, {f2u(1/88)}")
            p(f"v_cndmask_b32 {v(N3)}, {v(N3)}, {v(TM)}, vcc\nv_cndmask_b32 {v(I3)}, {v(I3)}, {v(TM+1)}, vcc")
        za = o.get("za", 1)
        f = self.wsp_read(0) + self.wsp_read(1) + [lgw]
        for st in range(5, 5 + za): f += self.wsp_dma(st)
        self.run(merge(gops + self.cap(misc), f))
        self.stamp(3)
        SG = 64
        for q in range(4):
            ts = p.vmem(f"buffer_load_dwordx4 {v(SG+4*q,4)}, {v(VL16)}, {srd(SWS)}, s{SD} offen offset:{q*1024} sc1")
        for st in range(5 + za, 7): self.run(self.wsp_dma(st))
        l = p.label("sp"); dl = p.label("sd")
        p.wait(vm=ts)
        p(f"s_mov_b32 s{SSPIN}, 0")
        p.put(l)
        X0 = 116
        p(f"v_xor_b32 {v(MN)}, s{ST_T}, {v(SG+1)}\nv_xor_b32 {v(VR)}, s{ST_T}, {v(SG+3)}")
        for r in [5, 9, 13]:
            p(f"v_xor_b32 {v(X0)}, s{ST_T}, {v(SG+r)}\nv_xor_b32 {v(X0+1)}, s{ST_T}, {v(SG+r+2)}\nv_or3_b32 {v(MN)}, {v(MN)}, {v(X0)}, {v(X0+1)}")
        p(f"v_or_b32 {v(MN)}, {v(MN)}, {v(VR)}")
        p(f"v_cmp_ne_u32 vcc, 0, {v(MN)}\ns_cmp_eq_u64 vcc, 0\ns_cbranch_scc1 {dl}")
        for q in range(4):
            p(f"buffer_load_dwordx4 {v(SG+4*q,4)}, {v(VL16)}, {srd(SWS)}, s{SD} offen offset:{q*1024} sc1")
        p("s_waitcnt vmcnt(0)")
        p(f"s_add_u32 s{SSPIN}, s{SSPIN}, 1\ns_cmp_lt_u32 s{SSPIN}, {SPIN}\ns_cbranch_scc1 {l}")
        p.put(dl)
        self.stamp(4)
        p(f"v_add_f32 {v(MN)}, {v(SG)}, {v(SG+4)}\nv_add_f32 {v(TM+2)}, {v(SG+8)}, {v(SG+12)}\nv_add_f32 {v(MN)}, {v(MN)}, {v(TM+2)}")
        p(f"v_mov_b32 {v(TM+3)}, {v(MN)}\nv_add_f32 {v(VR)}, {v(SG+2)}, {v(SG+6)}\nv_add_f32 {v(TM+2)}, {v(SG+10)}, {v(SG+14)}")
        p(f"v_permlane32_swap_b32 {v(MN)}, {v(TM+3)}\nv_add_f32 {v(VR)}, {v(VR)}, {v(TM+2)}\nv_add_f32 {v(MN)}, {v(MN)}, {v(TM+3)}")
        p(f"v_mul_f32 {v(MN)}, {f2u(1/688)}, {v(MN)}")
        for q in range(4):
            n_, i_ = (TM, TM + 1) if q < 3 else (N3, I3)
            p(f"v_fma_f32 {v(TM+2)}, {v(SG+4*q)}, {v(i_)}, -{v(MN)}\nv_mul_f32 {v(TM+2)}, {v(TM+2)}, {v(TM+2)}\nv_fmac_f32 {v(VR)}, {v(TM+2)}, {v(n_)}")
        self.xhalf_sum(VR, TM)
        p(f"v_mov_b32 {v(TM)}, {f2u(1e-5)}\nv_fmac_f32 {v(TM)}, {f2u(1/688)}, {v(VR)}\nv_rsq_f32 {v(VR)}, {v(TM)}")
        p(f"s_add_u32 s{SA}, s{SE}, {Z2N}\ns_add_u32 s{SB_}, s{SA}, 4096")
        p(f"v_mul_f32 {v(MN)}, {v(MN)}, {v(VR)}")
        ZP = 88
        for u in range(6):
            mt, q = u >> 1, u & 1
            R4 = range(4 * u, 4 * u + 4)
            for i in R4: p(f"v_pk_fma_f32 {v(ACC+2*i,2)}, {v(ACC+2*i,2)}, {v(MN,2)}, {v(MN,2)} op_sel:[0,1,0] op_sel_hi:[1,1,0] neg_lo:[0,0,1] neg_hi:[0,0,1]")
            for i in R4: p(f"v_cvt_pk_bf16_f32 {v(ZP+i)}, {v(ACC+2*i)}, {v(ACC+2*i+1)}")
            r = v(ZP + 4 * u, 4)
            if mt < 2: t = p.vmem(f"buffer_store_dwordx4 {r}, {v(Q0+q)}, {srd(SWS)}, s{SA} offen offset:{mt*2048+q*1024} sc1")
            else: t = p.vmem(f"buffer_store_dwordx4 {r}, {v(QA+q)}, {srd(SWS)}, s{SB_} offen offset:{q*1024} sc1")
        p(f"s_lshl_b32 s{SE}, s{SC}, 7\ns_add_u32 s{SE}, s{SE}, {ZF}")
        for st in range(2, 5): self.run(self.wsp_read(st))
        p.wait(vm=t)
        self.flag(SE, 118)
        self.run([lgw] + self.wsp_dma(7))
        if o.get("touchc", 0): self.touch_c(170, 171)
        for st in range(5, 8): self.run(self.wsp_read(st))
        self.g_poll_issue()
        p(f"s_mov_b32 s{SLATE}, 0")
        self.stamp(5)
        p(f"s_branch {self.LG}")

    def phase_u(self):
        p = self.p; o = self.o
        ACC, ZA, FA, FB, FW, FX = 16, 80, 128, 144, 160, 184
        XR, BR, X1R, WR, XD, BD, WD, T = 192, 196, 200, 204, 206, 210, 214, 60
        p.c("==== phase A: U ====")
        p.put(self.LU)
        WT, WP = SK + 8, SK + 9
        p(f"v_lshrrev_b32 {v(T)}, 5, {v(VL)}\nv_lshlrev_b32 {v(T)}, 15, {v(T)}")
        p(f"v_bfe_u32 {v(T+1)}, {v(VL)}, 3, 1\nv_lshl_add_u32 {v(T)}, {v(T+1)}, 14, {v(T)}")
        p(f"v_bfe_u32 {v(T+1)}, {v(VL)}, 4, 1\nv_lshl_add_u32 {v(T)}, {v(T+1)}, 10, {v(T)}")
        self.plain_dma_addr2(XD, T, T + 1, 2048)
        p(f"s_lshr_b32 s{WP}, s{SWV}, 1\ns_and_b32 s{WT}, s{SWV}, 1\ns_lshl_b32 s{SA}, s{WT}, 5")
        for i in range(4): p(f"v_xor_b32 {v(XD+i)}, s{SA}, {v(XD+i)}")
        self.plain_dma_addr(BD, 1024, T)
        self.w_dma_addr(WD, T, 0)
        p(f"s_lshl_b32 s{SXB}, s{SRB}, 17\ns_lshl_b32 s{SD}, s{WP}, 16\ns_add_u32 s{SXB}, s{SXB}, s{SD}\ns_lshl_b32 s{SD}, s{WT}, 13\ns_add_u32 s{SXB}, s{SXB}, s{SD}")
        p(f"s_lshl_b32 s{SW1B}, s{SCOL}, 16\ns_lshl_b32 s{SD}, s{WT}, 15\ns_add_u32 s{SW1B}, s{SW1B}, s{SD}")
        p(f"s_lshl_b32 s{SXL}, s{SWV}, 12\ns_mov_b32 s{SW1+2}, 524288")
        SWIB = SCB
        p(f"s_mul_i32 s{SWIB}, s{SWV}, {16*2752}\ns_mul_i32 s{SA}, s{SCOL}, 176\ns_add_u32 s{SWIB}, s{SWIB}, s{SA}")
        p(f"s_mul_i32 s{SWL}, s{SWV}, 3072\ns_add_u32 s{SWL}, s{SWL}, 98304\ns_mov_b32 s{PWIN+2}, {512*2752}\ns_mov_b32 s{PWIN+3}, 0x20000")
        PR = 228
        p(f"s_lshl_b32 s{SD}, s{SRB}, 1\ns_add_u32 s{SD}, s{SD}, s{WT}")
        p(f"s_lshl_b32 s{SA}, s{SCOL}, 1\ns_add_u32 s{SA}, s{SA}, s{WP}")
        p(f"s_lshl_b32 s{SE}, s{SD}, 4\ns_add_u32 s{SE}, s{SE}, s{SA}")
        p(f"s_lshl_b32 s{SA}, s{SA}, 5\nv_and_b32 {v(T)}, 31, {v(VL)}\nv_add_lshl_u32 {v(T)}, {v(T)}, s{SA}, 1")
        p.wait_lg_all()
        p(f"s_cmp_eq_u32 s{WP}, 0\ns_cselect_b64 {sp(SW1)}, {sp(PBRE)}, {sp(PBIM)}")
        tick = {}
        def dma(st):
            sl = st % 3; items = []
            def cb(t): tick[st] = t
            for i in range(3):
                items.append(((SWL, sl * 12288) if i == 0 else None, (SWIB, st * 64 * 2752) if i == 0 else None,
                              f"buffer_load_dwordx4 {v(WD+i)}, {srd(PWIN)}, s{SDO} offen offset:{i*1024} lds", None))
            for (vd, sr, sb, lb) in [(XD, SX, SXB, 0), (BD, SW1, SW1B, 49152)]:
                for i in range(4):
                    items.append(((SXL, lb + sl * 16384) if i == 0 else None, (sb, st * 128) if i == 0 else None,
                                  f"buffer_load_dwordx4 {v(vd+i)}, {srd(sr)}, s{SDO} offen offset:{i*1024} lds", cb))
            return self.dseq(items)
        self.pf1()
        self.run(dma(0))
        p.vmem(f"global_load_ushort {v(PR)}, {v(T)}, {sp(PLRE)}")
        p.vmem(f"global_load_ushort {v(PR+1)}, {v(T)}, {sp(PLIM)}")
        tp = p.vmem(f"global_load_ushort {v(PR+2)}, {v(T)}, {sp(PLDT)}")
        npro = o.get("npro_u", 2)
        self.late_args()
        def setup():
            p = self.p
            p(f"s_mul_i32 s{SREG}, s{SWV}, 40960\ns_lshl_b32 s{SA}, s{WT}, 13")
            self.plain_read_addr(XR, SA, T)
            p(f"s_lshl_b32 s{SA}, s{WP}, 12\ns_add_u32 s{SA}, s{SA}, 49152")
            self.plain_read_addr(BR, SA, T)
            self.w_tr_addr(WR, 98304, T)
            p(f"v_bfe_u32 {v(T)}, {v(VL)}, 3, 1\nv_lshlrev_b32 {v(T+1)}, 12, {v(T)}\nv_xor_b32 {v(T)}, s{WT}, {v(T)}\nv_lshlrev_b32 {v(T)}, 1, {v(T)}")
            p(f"v_bfe_u32 {v(T+2)}, {v(VL)}, 1, 2\nv_lshl_add_u32 {v(T+1)}, {v(T+2)}, 10, {v(T+1)}")
            p(f"v_and_b32 {v(T+2)}, 1, {v(T+2)}\nv_lshl_add_u32 {v(T)}, {v(T+2)}, 2, {v(T)}")
            p(f"v_and_b32 {v(T+2)}, 1, {v(VL)}\nv_lshl_add_u32 {v(T+1)}, {v(T+2)}, 8, {v(T+1)}\nv_or_b32 {v(T)}, {v(T)}, {v(T+2)}")
            p(f"v_bfe_u32 {v(T+2)}, {v(VL)}, 4, 1\nv_lshl_add_u32 {v(T+1)}, {v(T+2)}, 7, {v(T+1)}")
            p(f"s_lshl_b32 s{SA}, s{WP}, 13\ns_lshl_b32 s{SB_}, s{WT}, 9\ns_add_u32 s{SA}, s{SA}, s{SB_}\nv_add_u32 {v(T+1)}, s{SA}, {v(T+1)}")
            p(f"v_lshrrev_b32 {v(T+2)}, 5, {v(VL)}\nv_xor_b32 {v(T)}, {v(T)}, {v(T+2)}\nv_lshlrev_b32 {v(T)}, 4, {v(T)}")
            for ks in range(4): p(f"v_xor_b32 {v(X1R+ks)}, {32*ks}, {v(T)}\nv_add_u32 {v(X1R+ks)}, {v(X1R+ks)}, {v(T+1)}")
            self.wsp_setup(T)
            p(f"s_lshl_b32 s{SPB+1}, s{WT}, 13\ns_mul_i32 s{SA}, s{WP}, 49152\ns_add_u32 s{SPB+1}, s{SPB+1}, s{SA}\ns_add_u32 s{SPB}, s{SPB+1}, 32768\ns_add_u32 s{SPB+2}, s{SPB+1}, 16384")
            p(f"s_lshl_b32 s{SA}, s{SWV}, 13\ns_add_u32 s{SPB+3}, s{SA}, {13*8192}\ns_add_u32 s{SPB+4}, s{SA}, {17*8192}")
            p.atom(f"s_cmp_eq_u32 s{SWV}, 3\ns_cselect_b32 s{SPB+4}, {12*8192}, s{SPB+4}")
            self.valid_masks()
        self.run(merge(self.cap(setup), dma(1) + (dma(2) if npro > 2 else [])))
        LB, CF, L16, L128, L256, LQ0, LQ1 = 218, 220, 222, 224, 226, 228, 230
        X0, X1, X2, X3 = 232, 233, 234, 235
        L32, L64 = 236, 238
        def csq(d, s):
            p = self.p
            p(f"v_mul_f32 {v(X0)}, {v(s+1)}, {v(s+1)}\nv_add_f32 {v(X1)}, {v(s)}, {v(s)}")
            p(f"v_mul_f32 {v(d+1)}, {v(X1)}, {v(s+1)}\nv_fma_f32 {v(d)}, {v(s)}, {v(s)}, -{v(X0)}")
        def cmul(d, a, b):
            p = self.p
            p(f"v_mul_f32 {v(X0)}, {v(a+1)}, {v(b+1)}\nv_mul_f32 {v(X1)}, {v(a+1)}, {v(b)}")
            p(f"v_fma_f32 {v(X0)}, {v(a)}, {v(b)}, -{v(X0)}\nv_fma_f32 {v(d+1)}, {v(a)}, {v(b+1)}, {v(X1)}\nv_mov_b32 {v(d)}, {v(X0)}")
        def cfma(d, a, b, c):
            p = self.p
            p(f"v_fma_f32 {v(X0)}, {v(a)}, {v(b)}, {v(c)}\nv_fma_f32 {v(X1)}, {v(a)}, {v(b+1)}, {v(c+1)}")
            p(f"v_fma_f32 {v(X0)}, -{v(a+1)}, {v(b+1)}, {v(X0)}\nv_fma_f32 {v(d+1)}, {v(a+1)}, {v(b)}, {v(X1)}\nv_mov_b32 {v(d)}, {v(X0)}")
        def params():
            p = self.p
            p(f"v_lshlrev_b32 {v(PR)}, 16, {v(PR)}\nv_lshlrev_b32 {v(PR+1)}, 16, {v(PR+1)}\nv_lshlrev_b32 {v(PR+2)}, 16, {v(PR+2)}")
            p(f"v_mul_f32 {v(X0)}, {f2u(LOG2E)}, {v(PR+2)}\nv_exp_f32 {v(X0)}, {v(X0)}"); self.rnd(X0, X0)
            p(f"v_mul_f32 {v(X1)}, {v(X0)}, {v(PR)}\nv_mul_f32 {v(X2)}, {v(X0)}, {v(PR+1)}")
            p(f"v_mul_f32 {v(X1)}, {f2u(LOG2E)}, {v(X1)}\nv_exp_f32 {v(X1)}, {v(X1)}")
            p(f"v_mul_f32 {v(X2)}, {f2u(1/(2*math.pi))}, {v(X2)}\nv_fract_f32 {v(X2)}, {v(X2)}")
            p(f"v_cos_f32 {v(X3)}, {v(X2)}\nv_sin_f32 {v(X2)}, {v(X2)}")
            p(f"v_mul_f32 {v(X0)}, {v(PR)}, {v(PR)}")
            p(f"v_mul_f32 {v(LB)}, {v(X1)}, {v(X3)}\nv_mul_f32 {v(LB+1)}, {v(X1)}, {v(X2)}")
            p(f"v_fmac_f32 {v(X0)}, {v(PR+1)}, {v(PR+1)}\nv_rcp_f32 {v(X0)}, {v(X0)}")
            p(f"v_add_f32 {v(X1)}, -1.0, {v(LB)}\nv_add_f32 {v(X0)}, {v(X0)}, {v(X0)}")
            p(f"v_mul_f32 {v(X2)}, {v(X1)}, {v(PR)}\nv_fmac_f32 {v(X2)}, {v(LB+1)}, {v(PR+1)}\nv_mul_f32 {v(CF)}, {v(X2)}, {v(X0)}")
            p(f"v_mul_f32 {v(X2)}, {v(LB+1)}, {v(PR)}\nv_fma_f32 {v(X2)}, -{v(X1)}, {v(PR+1)}, {v(X2)}\nv_mul_f32 {v(CF+1)}, {v(X2)}, {v(X0)}")
            csq(L16, LB); csq(L16, L16); csq(L16, L16); csq(L16, L16)
            csq(L32, L16); csq(L64, L32); csq(L128, L64); csq(L256, L128)
            p.atom(f"s_cmp_eq_u32 s{WT}, 0\ns_cselect_b64 vcc, -1, 0")
            p(f"v_cndmask_b32 {v(L64)}, {v(L64)}, 1.0, vcc\nv_cndmask_b32 {v(L64+1)}, {v(L64+1)}, 0, vcc")
            p(f"v_cmp_gt_u32 vcc, 32, {v(VL)}\nv_cndmask_b32 {v(LQ0)}, {v(L32)}, 1.0, vcc\nv_cndmask_b32 {v(LQ0+1)}, {v(L32+1)}, 0, vcc")
            cmul(LQ0, LQ0, L64); cmul(LQ1, LQ0, L16)
        self.pf1(2)
        self.epoch2()
        self.stamp(0)
        pops = [lambda: p.wait(vm=tp)] + self.cap(params)
        valu = {}
        q = (len(pops) + 15) // 16
        for i in range(16): valu[8 + i] = pops[i * q:(i + 1) * q]
        self.paced(valu, 217, 205, o.get("ut0", 4), o.get("udt", 4))
        rt = {}
        def reads(n):
            st, ks = n // 4, n % 4; sl = st % 3; s = n & 1; ops = []
            for k in range(2):
                def ra(k=k): rt[(n, 'a', k)] = p.lds(f"ds_read_b128 {v(FA+8*s+4*k,4)}, {v(XR+(ks^k))} offset:{sl*16384+k*4096}")
                def rb(k=k): rt[(n, 'b', k)] = p.lds(f"ds_read_b128 {v(FB+8*s+4*k,4)}, {v(BR+ks)} offset:{sl*16384+k*8192}")
                ops += [ra, rb]
            def rx(): p.lds(f"ds_read_b128 {v(FX+4*s,4)}, {v(X1R+ks)} offset:{sl*16384}")
            ops.append(rx)
            for mt in range(3):
                for a in range(2):
                    def rw(mt=mt, a=a):
                        rt[(n, 'w', mt)] = p.lds(f"ds_read_b64_tr_b16 {v(FW+12*s+4*mt+2*a,2)}, {v(WR)} offset:{sl*12288+ks*3072+a*768+mt*64}")
                    ops.append(rw)
            return ops
        def mfmas(n):
            s = n & 1; ops = []
            for (mt, cp) in [(0, 0), (1, 0), (1, 1), (0, 1)]:
                def m(mt=mt, cp=cp):
                    if (mt, cp) == (0, 0): p.wait(lg=rt[(n, 'b', 1)])
                    d = v(ACC + 32 * mt + 16 * cp, 16)
                    p(f"{MF} {d}, {v(FA+8*s+4*mt,4)}, {v(FB+8*s+4*cp,4)}, {'0' if n == 0 else d}")
                ops.append(m)
            for mt in range(3):
                def m(mt=mt):
                    if mt == 0: p.wait(lg=rt[(n, 'w', 2)])
                    d = v(ZA + 16 * mt, 16)
                    p(f"{MF} {d}, {v(FW+12*s+4*mt,4)}, {v(FX+4*s,4)}, {'0' if n == 0 else d}")
                ops.append(m)
            return ops
        self.gemm_loop(3, reads, mfmas, dma, tick, 5, npro, {6: lambda: self.wsp_dma(0), 7: lambda: self.wsp_dma(1)}, valu)
        self.stamp(1)
        def U(sg, cp): return ACC + 32 * (sg >> 3) + 16 * cp + 4 * ((sg & 7) >> 1) + 2 * (sg & 1)
        def step(hr, hi, sg, nr, ni, t0, t1):
            p = self.p; A = v(LB, 2)
            p(f"v_pk_fma_f32 {v(t0,2)}, {A}, {v(hr,2)}, {v(U(sg,0),2)} op_sel_hi:[0,1,1]")
            p(f"v_pk_fma_f32 {v(t1,2)}, {A}, {v(hi,2)}, {v(U(sg,1),2)} op_sel_hi:[0,1,1]")
            p(f"v_pk_fma_f32 {v(nr,2)}, {A}, {v(hi,2)}, {v(t0,2)} op_sel:[1,0,0] op_sel_hi:[1,1,1] neg_lo:[1,0,0] neg_hi:[1,0,0]")
            p(f"v_pk_fma_f32 {v(ni,2)}, {A}, {v(hr,2)}, {v(t1,2)} op_sel:[1,0,0] op_sel_hi:[1,1,1]")
        HA, HBb, T0, EX, E8, AD, GR, CQ = 128, 132, 136, 140, 144, 160, 164, 168
        SCR = 98304
        p(f"s_lshl_b32 s{SA}, s{WP}, 11\ns_add_u32 s{SA}, s{SA}, {SCR}")
        p(f"v_and_b32 {v(AD)}, 31, {v(VL)}\nv_lshlrev_b32 {v(AD)}, 6, {v(AD)}\nv_add_u32 {v(AD)}, s{SA}, {v(AD)}")
        p(f"v_lshrrev_b32 {v(AD+1)}, 5, {v(VL)}\nv_lshl_add_u32 {v(AD+1)}, {v(AD+1)}, 4, {v(AD)}\ns_lshl_b32 s{SA}, s{WT}, 5\nv_add_u32 {v(AD+1)}, s{SA}, {v(AD+1)}")
        Z1P = 192
        SZ0, SZ1 = SXL, SWL
        VA_ = 176
        MA, MB = SK + 2, SK + 4
        def z1st(u):
            mt, q = u >> 1, u & 1
            for i in range(4): p(f"v_cvt_pk_bf16_f32 {v(Z1P+4*u+i)}, {v(ZA+8*u+2*i)}, {v(ZA+8*u+2*i+1)}")
            r = v(Z1P + 4 * u, 4)
            if mt < 2: p.vmem(f"buffer_store_dwordx4 {r}, {v(VL16)}, {srd(SWS)}, s{SZ0} offen offset:{mt*2048+q*1024} sc1")
            else: p.vmem(f"buffer_store_dwordx4 {r}, {v(VA_+q)}, {srd(SWS)}, s{SZ1} offen offset:{q*1024} sc1")
        p(f"s_lshl_b32 s{SA}, s{SCOL}, 6\ns_lshl_b32 s{SB_}, s{SRB}, 2\ns_add_u32 s{SA}, s{SA}, s{SB_}\ns_add_u32 s{SA}, s{SA}, s{SWV}\ns_mul_i32 s{SA}, s{SA}, 5632")
        p(f"s_add_u32 s{SZ0}, s{SA}, {Z1}\ns_add_u32 s{SZ1}, s{SZ0}, 4096")
        p(f"v_cndmask_b32 {v(VA_)}, {v(VOOB)}, {v(VL16)}, {sp(MA)}\nv_cndmask_b32 {v(VA_+1)}, {v(VOOB)}, {v(VL16)}, {sp(MB)}")
        zs = [(lambda u=u: z1st(u)) for u in range(6)]
        self.run(zs[:2])
        p("s_barrier")
        def pass1():
            hr, hi = U(0, 0), U(0, 1)
            for sg in range(1, 16):
                nr, ni = (HA, HA + 2) if sg & 1 else (HBb, HBb + 2)
                step(hr, hi, sg, nr, ni, T0, T0 + 2)
                hr, hi = nr, ni
            self.p(f"v_mov_b32 {v(EX)}, {v(hr)}\nv_mov_b32 {v(EX+1)}, {v(hi)}\nv_mov_b32 {v(EX+2)}, {v(hr+1)}\nv_mov_b32 {v(EX+3)}, {v(hi+1)}")
        d2 = self.wsp_dma(2) + self.wsp_dma(3)
        self.run(merge(merge(self.cap(pass1), zs[2:]), d2[:7]))
        p.lds(f"ds_write_b128 {v(AD+1)}, {v(EX,4)}")
        p.wait_lg_all(); p("s_barrier")
        for i in range(4): p.lds(f"ds_read_b128 {v(E8+4*i,4)}, {v(AD)} offset:{16*i}")
        te = p.lg - 1
        self.run(d2[7:11])
        p(f"s_cmp_eq_u32 s{WT}, 0\ns_cselect_b32 s{SA}, 32, 0")
        p(f"v_cmp_gt_u32 vcc, s{SA}, {v(VL)}\nv_mov_b32 {v(GR+1)}, s{ST_T}\nv_mov_b32 {v(GR+3)}, s{ST_T}\nv_cndmask_b32 {v(T0)}, {v(VOOB)}, {v(VL16)}, vcc")
        p(f"s_lshl_b32 s{SC}, s{SCOL}, 14\ns_lshl_b32 s{SA}, s{WP}, 9\ns_add_u32 s{SC}, s{SC}, s{SA}\ns_add_u32 s{SC}, s{SC}, {EG}")
        p(f"s_lshl_b32 s{SA}, s{SRB}, 10\ns_add_u32 s{SA}, s{SA}, s{SC}")
        p.wait(lg=te); p("s_barrier")
        self.run(merge(self.cap(lambda: [cfma(E8 + 2 * q, L16, E8 + 2 * (q - 1), E8 + 2 * q) for q in range(1, 8)]), d2[11:15]))
        p(f"v_mov_b32 {v(GR)}, {v(E8+14)}\nv_mov_b32 {v(GR+2)}, {v(E8+15)}")
        p.vmem(f"buffer_store_dwordx4 {v(GR,4)}, {v(T0)}, {srd(SWS)}, s{SA} offen sc1")
        self.run(d2[15:])
        self.stamp(2)
        p(f"v_cmp_gt_u32 vcc, 32, {v(VL)}")
        w1 = p.label("w1"); w2 = p.label("w2")
        p(f"s_cmp_eq_u32 s{WT}, 0\ns_cbranch_scc0 {w1}")
        p(f"v_cndmask_b32 {v(CQ)}, {v(E8+2)}, 0, vcc\nv_cndmask_b32 {v(CQ+1)}, {v(E8+3)}, 0, vcc")
        p(f"v_cndmask_b32 {v(CQ+2)}, {v(E8+4)}, {v(E8)}, vcc\nv_cndmask_b32 {v(CQ+3)}, {v(E8+5)}, {v(E8+1)}, vcc")
        p(f"s_branch {w2}")
        p.put(w1)
        for k in range(4): p(f"v_cndmask_b32 {v(CQ+k)}, {v(E8+10+k)}, {v(E8+6+k)}, vcc")
        p.put(w2)
        Z1P = 192
        EGR, EO, EXP, ET = 80, 144, 152, 160
        def eo():
            p = self.p
            p(f"v_lshrrev_b32 {v(ET)}, 5, {v(VL)}\nv_sub_u32 {v(ET)}, s{SRB}, {v(ET)}\nv_add_u32 {v(ET)}, -1, {v(ET)}")
            p(f"v_and_b32 {v(ET+1)}, 31, {v(VL)}\nv_lshlrev_b32 {v(ET+1)}, 4, {v(ET+1)}\nv_mov_b32 {v(ET+3)}, s{ST_T}")
            for q in range(8):
                p(f"v_add_u32 {v(ET+2)}, {-2*q}, {v(ET)}\nv_cmp_le_i32 vcc, 0, {v(ET+2)}\nv_lshl_add_u32 {v(ET+2)}, {v(ET+2)}, 10, {v(ET+1)}")
                p(f"v_cndmask_b32 {v(EO+q)}, {v(VOOB)}, {v(ET+2)}, vcc\nv_cndmask_b32 {v(EXP+q)}, 0, {v(ET+3)}, vcc")
        lgw = lambda: p.wait(lg=p.lg - 1)
        self.run(merge(self.cap(lambda: (eo(), self.g_early(184))), self.wsp_dma(4) + self.wsp_read(0) + self.wsp_read(1)))
        et = {}
        def eload(q):
            et['t'] = p.vmem(f"buffer_load_dwordx4 {v(EGR+4*q,4)}, {v(EO+q)}, {srd(SWS)}, s{SC} offen sc1")
        for q in range(8): eload(q)
        self.run([lgw] + self.wsp_dma(5))
        self.stamp(3)
        l = p.label("ep"); dl = p.label("ed")
        p.wait(vm=et['t'])
        p(f"s_mov_b32 s{SSPIN}, 0")
        p.put(l)
        p(f"v_mov_b32 {v(ET)}, 0")
        for q in range(8):
            p(f"v_xor_b32 {v(ET+1)}, {v(EXP+q)}, {v(EGR+4*q+1)}\nv_xor_b32 {v(ET+2)}, {v(EXP+q)}, {v(EGR+4*q+3)}\nv_or3_b32 {v(ET)}, {v(ET)}, {v(ET+1)}, {v(ET+2)}")
        p(f"v_cmp_ne_u32 vcc, 0, {v(ET)}\ns_cmp_eq_u64 vcc, 0\ns_cbranch_scc1 {dl}")
        for q in range(8): p(f"buffer_load_dwordx4 {v(EGR+4*q,4)}, {v(EO+q)}, {srd(SWS)}, s{SC} offen sc1")
        p("s_waitcnt vmcnt(0)")
        p(f"s_add_u32 s{SSPIN}, s{SSPIN}, 1\ns_cmp_lt_u32 s{SSPIN}, {SPIN}\ns_cbranch_scc1 {l}")
        p.put(dl)
        self.flag_prep(178)
        p(f"s_lshl_b32 s{SA}, s{SCOL}, 6\ns_lshl_b32 s{SB_}, s{SRB}, 2\ns_add_u32 s{SA}, s{SA}, s{SB_}\ns_add_u32 s{SA}, s{SA}, s{SWV}\ns_lshl_b32 s{SA}, s{SA}, 7\ns_add_u32 s{SA}, s{SA}, {Z1F}")
        self.flag(SA, 178)
        self.stamp(4)
        OP, OT, HO = 80, 144, 132
        MA, MB = SK + 2, SK + 4
        SH0, SH1 = SXB, SW1B
        def pass2a():
            p = self.p
            p(f"s_lshl_b32 s{SA}, s{SD}, 3\ns_add_u32 s{SA}, s{SA}, s{SCOL}\ns_lshl_b32 s{SA}, s{SA}, 14\ns_lshl_b32 s{SB_}, s{WP}, 12\ns_add_u32 s{SA}, s{SA}, s{SB_}")
            p(f"s_add_u32 s{SH0}, s{SA}, {HB}\ns_add_u32 s{SH1}, s{SH0}, 8192")
            p(f"v_lshrrev_b32 {v(T0)}, 5, {v(VL)}\nv_lshlrev_b32 {v(T0)}, 11, {v(T0)}\nv_and_b32 {v(T0+1)}, 31, {v(VL)}\nv_lshl_add_u32 {v(HO)}, {v(T0+1)}, 4, {v(T0)}")
            for k in range(1, 4): p(f"v_xor_b32 {v(HO+k)}, {64*k}, {v(HO)}")
            for q in range(8): p(f"v_mov_b32 {v(EGR+4*q+1)}, {v(EGR+4*q+2)}")
            S = EGR + 28
            for q in range(6, -1, -1): cfma(S, L256, S, EGR + 4 * q)
            p(f"v_mov_b32 {v(ET)}, {v(S)}\nv_mov_b32 {v(ET+1)}, {v(S+1)}\nv_permlane32_swap_b32 {v(S)}, {v(ET)}\nv_permlane32_swap_b32 {v(S+1)}, {v(ET+1)}")
            cfma(S, L128, ET, S)
            cfma(CQ, LQ0, S, CQ); cfma(CQ + 2, LQ1, S, CQ + 2)
            p(f"v_mov_b32 {v(HA)}, {v(CQ)}\nv_mov_b32 {v(HA+1)}, {v(CQ+2)}\nv_mov_b32 {v(HA+2)}, {v(CQ+1)}\nv_mov_b32 {v(HA+3)}, {v(CQ+3)}")
        def pass2(s0, s1):
            p = self.p
            Cc = v(CF, 2)
            for sg in range(s0, s1):
                hr, hi = (HA, HA + 2) if sg == 0 else (U(sg - 1, 0), U(sg - 1, 1))
                step(hr, hi, sg, U(sg, 0), U(sg, 1), T0, T0 + 2)
                hr, hi = U(sg, 0), U(sg, 1)
                oo = OT + 4 * (sg & 1) + 8 * ((sg >> 1) & 1)
                p(f"v_pk_mul_f32 {v(oo,2)}, {Cc}, {v(hr,2)} op_sel_hi:[0,1]")
                p(f"v_pk_mul_f32 {v(oo+2,2)}, {Cc}, {v(hi,2)} op_sel_hi:[0,1] neg_lo:[1,0] neg_hi:[1,0]")
                p(f"v_pk_fma_f32 {v(oo,2)}, {Cc}, {v(hi,2)}, {v(oo,2)} op_sel:[1,0,0] op_sel_hi:[1,1,1] neg_lo:[1,0,0] neg_hi:[1,0,0]")
                p(f"v_pk_fma_f32 {v(oo+2,2)}, {Cc}, {v(hr,2)}, {v(oo+2,2)} op_sel:[1,0,0] op_sel_hi:[1,1,1] neg_lo:[1,0,0] neg_hi:[1,0,0]")
                if sg & 1:
                    q, i = sg >> 3, (sg & 7) >> 1
                    for cp in range(2):
                        for e in range(2):
                            p(f"v_cvt_pk_bf16_f32 {v(OP+16*cp+8*e+4*q+i)}, {v(oo-4+2*cp+e)}, {v(oo+2*cp+e)}")
        def hst(cp, k):
            if o.get("x_nost"): return
            p.vmem(f"buffer_store_dwordx4 {v(OP+16*cp+4*k,4)}, {v(HO+k)}, {srd(SWS)}, s{SH0 if cp == 0 else SH1} offen offset:{512*k} sc1")
        self.run(merge(self.cap(pass2a), self.wsp_dma(6) + self.wsp_read(2) + [lgw]))
        self.run(merge(self.cap(lambda: pass2(0, 8)), self.wsp_dma(7) + self.wsp_read(3)))
        self.run(merge(merge(self.cap(lambda: pass2(8, 16)), [(lambda cp=cp, k=k: hst(cp, k)) for k in (0, 2) for cp in range(2)]), self.wsp_read(4) + self.wsp_read(5)))
        self.g_poll_issue()
        h2 = [(lambda cp=cp, k=k: hst(cp, k)) for k in (1, 3) for cp in range(2)]
        self.run(merge(self.wsp_read(6) + self.wsp_read(7), h2))
        p(f"s_lshl_b32 s{SLATE}, s{SE}, 7\ns_add_u32 s{SLATE}, s{SLATE}, {HF}")
        self.stamp(5)

    def phase_g(self):
        p = self.p; o = self.o
        p.c("==== phase B: G ====")
        p.put(self.LG)
        p.vm_done = -1; p.lg_done = -1
        ACC, FA, TR, T = 16, 112, self.GTR, 186
        Z1R, BI, PV, WD, PL, PL2, PL3 = 190, 202, 203, self.WD, self.GPL, 222, 234
        NT, Q = SK + 8, SK + 9
        p(f"s_mov_b32 s{SCOL}, s{SJ}")
        def late_setup():
            p = self.p
            p(f"s_lshl_b32 s{SE}, s{STB}, 11\ns_add_u32 s{SE}, s{SE}, {HF}")
            self.poll_addr(PL3, [(SE, 16)])
            self.flag_prep(220)
            p(f"v_lshrrev_b32 {v(T)}, 3, {v(VL)}\nv_lshlrev_b32 {v(T)}, 10, {v(T)}")
            p(f"v_bfe_u32 {v(T+1)}, {v(VL)}, 4, 1\nv_lshlrev_b32 {v(T+1)}, 2, {v(T+1)}\nv_and_b32 {v(T+2)}, 7, {v(VL)}\nv_xor_b32 {v(T+1)}, {v(T+1)}, {v(T+2)}")
            p(f"v_lshl_add_u32 {v(WD)}, {v(T+1)}, 4, {v(T)}")
            for i in range(1, 4): p(f"v_add_u32 {v(WD+i)}, {i*7168}, {v(WD)}")
            p(f"s_mul_i32 s{SXB}, s{SWV}, {176*1024}\ns_lshl_b32 s{SA}, s{SCOL}, 7\ns_add_u32 s{SXB}, s{SXB}, s{SA}")
            self.c_setup()
            self.panel_tr_addr(228, SREG, 224, False)
        p(f"s_and_b32 s{NT}, s{SWV}, 1\ns_lshr_b32 s{Q}, s{SWV}, 1")
        p(f"s_lshl_b32 s{SC}, s{STB}, 1\ns_add_u32 s{SC}, s{SC}, s{NT}")
        p.atom(f"s_cmp_lt_u32 s{SCOL}, 7\ns_cselect_b32 s{SD}, 64, 32")
        p(f"s_lshl_b32 s{SF}, s{Q}, 5\ns_sub_u32 s{SD}, s{SD}, s{SF}")
        p(f"v_cmp_gt_u32 vcc, s{SD}, {v(VL)}\nv_and_b32 {v(T)}, 31, {v(VL)}\ns_lshl_b32 s{SA}, s{SC}, 5\nv_cndmask_b32 {v(PV)}, {v(VOOB)}, {v(VL16)}, vcc")
        p(f"v_add_lshl_u32 {v(T)}, {v(T)}, s{SA}, 1")
        p.vmem(f"global_load_ushort {v(BI)}, {v(T)}, {sp(PBSP)}")
        p(f"s_mul_i32 s{SD}, s{SZI}, 5632\ns_lshl_b32 s{SB_}, s{Q}, 10\ns_add_u32 s{SD}, s{SD}, s{SB_}\ns_add_u32 s{SD}, s{SD}, {Z1}\ns_add_u32 s{SE}, s{SD}, 4096")
        p(f"v_and_b32 {v(PL2)}, 31, {v(VL)}\nv_lshlrev_b32 {v(PL2)}, 2, {v(PL2)}")
        p.wait_lg_all(); p("s_barrier")
        self.stamp(6)
        l = p.label("gp"); dn = p.label("gd")
        p("s_waitcnt vmcnt(5)")
        p(f"s_cmp_lg_u32 s{SLATE}, 0\ns_cbranch_scc1 {l}\ns_waitcnt vmcnt(0)")
        p.put(l)
        p(f"v_cmp_ne_u32 vcc, s{ST_T}, {v(PL+1)}\ns_and_b32 vcc_hi, vcc_hi, 1\ns_or_b32 s{SF}, vcc_lo, vcc_hi\ns_cbranch_scc0 {dn}")
        self.poll(PL, 33)
        p.put(dn)
        g0 = p.vm
        def late_flag():
            nf = p.label("nf")
            p(f"s_cmp_eq_u32 s{SLATE}, 0\ns_cbranch_scc1 {nf}")
            p(f"s_waitcnt vmcnt({p.vm - g0})")
            p(f"buffer_store_dword {v(220)}, {v(221)}, {srd(SWS)}, s{SLATE} offen sc1")
            p.put(nf)
        p.vm_done = -1
        self.stamp(7)
        tick = {}
        def dma(B):
            sl = B % 3; items = []
            for i in range(11):
                def cb(t, i=i): tick[(B, i)] = t
                g = i // 4
                items.append(((SREG, sl * 11264 + g * 4096) if i % 4 == 0 else None, (SGB, B * 11264 + g * 4096) if i % 4 == 0 else None,
                              f"buffer_load_dwordx4 {v(VL16)}, {srd(SWS)}, s{SDO} offen offset:{(i%4)*1024} {o.get('gmod', 'sc1')} lds", cb))
            return self.dseq(items)
        d0 = dma(0) + dma(1) + dma(2)
        kpro = o.get("gpro", 22)
        p.vmem(f"buffer_load_dwordx4 {v(Z1R,4)}, {v(VL16)}, {srd(SWS)}, s{SD} offen sc1")
        p.vmem(f"buffer_load_dwordx4 {v(Z1R+4,4)}, {v(VL16)}, {srd(SWS)}, s{SD} offen offset:2048 sc1")
        tz1 = p.vmem(f"buffer_load_dwordx4 {v(Z1R+8,4)}, {v(PV)}, {srd(SWS)}, s{SE} offen sc1")
        k0 = o.get("gk0", 10)
        self.run(merge(self.cap(late_setup), d0[:k0], 0, 40))
        p(f"s_lshl_b32 s{SA}, s{STB}, 8\ns_add_u32 s{SA}, s{SA}, {GATE}")
        p.vmem(f"buffer_load_dword {v(self.GY)}, {v(PL2)}, {srd(SWS)}, s{SA} offen sc1")
        p.vmem(f"buffer_load_dword {v(self.GY+2)}, {v(PL2)}, {srd(SWS)}, s{SA} offen offset:128 sc1")
        def z1gelu():
            c1 = -2 * LOG2E * 0.7978845608028654
            self.VC0 = 184
            self.p(f"s_mov_b32 s{SK}, {f2u(c1*0.044715)}\nv_mov_b32 {v(184)}, {f2u(c1)}")
            for i in range(12): self.unpack(self.ZUP[i], Z1R + i)
            self.gelu_many(self.ZUP, [160, 162, 164, 166])
        p.wait(vm=tz1)
        self.run(merge(self.cap(z1gelu), d0[k0:kpro]))
        lt = {}
        def issue(r):
            lt[r] = p.vmem(f"buffer_load_dword {v(r+1)}, {v(r)}, {srd(SWS)}, 0 offen sc1")
        def check(r, mask):
            l = p.label("lp"); d = p.label("ld")
            p.wait(vm=lt[r])
            p(f"s_mov_b32 s{SSPIN}, 0")
            p.put(l)
            p(f"v_cmp_ne_u32 vcc, s{ST_T}, {v(r+1)}\ns_and_b32 s{SF}, vcc_lo, {mask}\ns_cbranch_scc0 {d}")
            p(f"buffer_load_dword {v(r+1)}, {v(r)}, {srd(SWS)}, 0 offen sc1\ns_waitcnt vmcnt(0)")
            p(f"s_add_u32 s{SSPIN}, s{SSPIN}, 1\ns_cmp_lt_u32 s{SSPIN}, {SPIN}\ns_cbranch_scc1 {l}")
            p.put(d)
        rt = {}
        def fset(hb): return FA + 24 * (2 if hb == 15 else hb & 1)
        def reads(hb):
            B, e = hb >> 1, hb & 1; sl = B % 3; ops = []
            for ks in range(2):
                for mt in range(3):
                    for a in range(2):
                        def ra(ks=ks, mt=mt, a=a):
                            if (ks, mt, a) == (0, 0, 0): p.wait(vm=tick[(B, 10 if e else 5)])
                            rt[(hb, ks, mt)] = p.lds(f"ds_read_b64_tr_b16 {v(fset(hb)+12*ks+4*mt+2*a,2)}, {v(TR+a)} offset:{sl*11264+e*5632+mt*2048+ks*256}")
                        ops.append(ra)
            return ops
        def mf(hb, ks, mt, nt):
            def m():
                p.wait(lg=rt[(hb, ks, mt)])
                d = v(ACC + 16 * (2 * mt + nt), 16); kap = 2 * hb + ks
                p(f"{MF} {d}, {v(fset(hb)+12*ks+4*mt,4)}, {ar((kap*2+nt)*4,4)}, {'0' if kap == 0 else d}")
            return m
        y0 = self.y_dma(0)
        hchk = o.get("hchk", 4)
        self.run(reads(0))
        pend = d0[kpro:]
        for hb in range(14):
            if o.get("gstamps") and hb % 2 == 0: self.stamp(21 + hb // 2)
            mm = [mf(hb, ks, mt, nt) for ks in range(2) for mt in range(3) for nt in range(2)]
            rd = reads(hb + 1) + (reads(15) if hb == 13 else [])
            if hb == 13: seq = merge(mm, rd, 0, 12)
            else: seq = merge(mm, rd, 0, 8)
            if hb & 1 and hb <= 11:
                B = hb >> 1
                d = dma(B + 3) if B + 3 < 8 else y0
                d1 = d[1]
                def first(d1=d1, hb=hb):
                    p.wait(lg=rt[(hb, 1, 2)]); d1()
                d = [d[0], first] + d[2:]
                seq = merge(seq, pend + d[:5], len(seq) * 2 // 3 if not pend else len(seq) // 3)
                pend = d[5:]
            elif pend:
                k = 7 if hb else 8
                if hb == 12: k = 6
                seq = merge(seq, pend[:k], len(seq) // 3); pend = pend[k:]
            if hb == o.get("hflag", 3): seq = seq + [late_flag]
            if hb == 10: seq = seq + [lambda: issue(PL3)]
            if hb == 12: seq = [lambda: check(PL3, 0xffff)] + seq
            self.run(seq)
        assert not pend
        VW, VRD = T, T + 1
        p(f"s_add_u32 s{SA}, s{SREG}, 4096\nv_add_u32 {v(VW)}, s{SA}, {v(VL16)}")
        def rw(mt, nt):
            ops = []
            for q in range(2):
                k = nt + 2 * q
                if k == 0: continue
                for hq in range(2):
                    r = ACC + 16 * (2 * mt + nt) + 8 * q + 4 * hq
                    ops.append(lambda r=r, k=k, hq=hq: p.lds(f"ds_write_b128 {v(VW)}, {v(r,4)} offset:{(k-1)*6144+(2*mt+hq)*1024}"))
            return ops
        tiles = [(0, 1), (1, 1), (2, 1), (0, 0), (1, 0), (2, 0)]
        for ti, (mt, nt) in enumerate(tiles):
            mm = [mf(hb, ks, mt, nt) for hb in (14, 15) for ks in range(2)]
            f = rw(*tiles[ti - 2]) if ti >= 2 else []
            self.run(merge(mm, f))
        self.stamp(8)
        for k in range(1, 4):
            p(f"s_xor_b32 s{SA}, s{SWV}, {k}\ns_mul_i32 s{SA}, s{SA}, 40960\ns_add_u32 s{SA}, s{SA}, 4096\nv_add_u32 {v(VRD+k-1)}, s{SA}, {v(VL16)}")
        self.run(rw(*tiles[4]) + rw(*tiles[5]))
        p.wait_lg_all(); p("s_barrier")
        RB = 112
        def own(i): return ACC + 32 * (i >> 1) + 4 * (i & 1)
        tk = {}
        def rr(k, i): tk[(k, i)] = p.lds(f"ds_read_b128 {v(RB+24*(k-1)+4*i,4)}, {v(VRD+k-1)} offset:{(k-1)*6144+i*1024}")
        for k in range(1, 3):
            for i in range(6): rr(k, i)
        yr0 = self.y_read(0)
        for k in range(1, 4):
            for i in range(6):
                p.wait(lg=tk[(k, i)])
                if k == 1: rr(3, i)
                for hh in range(2): p(f"v_pk_add_f32 {v(own(i)+2*hh,2)}, {v(own(i)+2*hh,2)}, {v(RB+24*(k-1)+4*i+2*hh,2)}")
        p("s_barrier")
        self.stamp(9)
        PK = 112
        def ow2(i): return own(i >> 1) + 2 * (i & 1)
        def pepi():
            p = self.p
            OG = 152
            p.atom(f"s_cmp_eq_u32 s{NT}, 0\ns_cselect_b64 vcc, -1, 0")
            p(f"v_lshlrev_b32 {v(BI)}, 16, {v(BI)}\nv_cndmask_b32 {v(OG)}, {v(self.GY+2)}, {v(self.GY)}, vcc\nv_sub_f32 {v(OG)}, 1.0, {v(OG)}\nv_mul_f32 {v(OG+1)}, {v(OG)}, {v(BI)}")
            for i in range(12): p(f"v_pk_fma_f32 {v(ow2(i),2)}, {v(ow2(i),2)}, {v(OG,2)}, {v(OG,2)} op_sel:[0,0,1] op_sel_hi:[1,0,1]")
            for i in range(12): p(f"v_pk_mul_f32 {v(ow2(i),2)}, {v(ow2(i),2)}, {v(self.ZUP[i],2)}")
            for i in range(12): p(f"v_cvt_pk_bf16_f32 {v(PK+i)}, {v(ow2(i))}, {v(ow2(i)+1)}")
            p(f"s_mul_i32 s{SA}, s{SC}, 45056\ns_mul_i32 s{SB_}, s{SCOL}, 5632\ns_add_u32 s{SA}, s{SA}, s{SB_}\ns_lshl_b32 s{SB_}, s{Q}, 10")
            p(f"s_add_u32 s{SA}, s{SA}, s{SB_}\ns_add_u32 s{SA}, s{SA}, {PB}\ns_add_u32 s{SB_}, s{SA}, 4096")
        self.y1 = self.y_dma(1)
        self.run(merge(merge(self.cap(pepi), self.y1[:4]), yr0))
        self.y1 = self.y1[4:]
        p.vmem(f"buffer_store_dwordx4 {v(PK,4)}, {v(VL16)}, {srd(SWS)}, s{SA} offen sc1")
        p.vmem(f"buffer_store_dwordx4 {v(PK+4,4)}, {v(VL16)}, {srd(SWS)}, s{SA} offen offset:2048 sc1")
        self.tp = p.vmem(f"buffer_store_dwordx4 {v(PK+8,4)}, {v(PV)}, {srd(SWS)}, s{SB_} offen sc1")
        p(f"s_lshl_b32 s{SLATE}, s{STB}, 3\ns_add_u32 s{SLATE}, s{SLATE}, s{SCOL}\ns_lshl_b32 s{SLATE}, s{SLATE}, 2\ns_add_u32 s{SLATE}, s{SLATE}, s{SWV}\ns_lshl_b32 s{SLATE}, s{SLATE}, 7\ns_add_u32 s{SLATE}, s{SLATE}, {PF}")
        self.stamp(10)

    CD, CR, HT, GY, WD, WT_ = 210, 214, 218, 240, 244, 228
    ZUP = [4, 6, 8, 10, 12, 14, 204, 206, 208, 248, 250, 252]
    def c_setup(self):
        p = self.p
        self.plain_dma_addr(self.CD, 1024, 224)
        p(f"s_add_u32 s{SA}, s{SREG}, 4096")
        self.plain_read_addr(self.CR, SA, 224)
        p(f"s_add_u32 s{SA}, s{SREG}, {4096+8192}")
        self.unit_tr_addr(self.HT, SA, 224, False)
        p(f"s_lshl_b32 s{SCB}, s{SCOL}, 16\ns_lshl_b32 s{SA}, s{SWV}, 8\ns_add_u32 s{SCB}, s{SCB}, s{SA}")
        p(f"s_lshl_b32 s{SHB}, s{STB}, 17\ns_lshl_b32 s{SA}, s{SWV}, 15\ns_add_u32 s{SHB}, s{SHB}, s{SA}\ns_add_u32 s{SHB}, s{SHB}, {HB}")
        self.yt = {}
    def y_dma(self, s):
        sl = (s & 1) ^ 1; items = []
        def cb(t): self.yt[s] = t
        for hh in range(2):
            for i in range(4):
                items.append(((SREG, 4096 + sl * 18432 + hh * 4096) if i == 0 else None, (SCB, (s >> 1) * 128 + hh * 32768) if i == 0 else None,
                              f"buffer_load_dwordx4 {v(self.CD+i)}, {srd(SCIM if s & 1 else SCRE)}, s{SDO} offen offset:{i*1024} lds", None))
        for hh in range(2):
            for i in range(4):
                items.append(((SREG, 4096 + sl * 18432 + 8192 + hh * 4096) if i == 0 else None, (SHB, s * 8192 + hh * 4096) if i == 0 else None,
                              f"buffer_load_dwordx4 {v(VL16)}, {srd(SWS)}, s{SDO} offen offset:{i*1024} sc1 lds", cb))
        return self.dseq(items)
    def y_read(self, s):
        p = self.p; sl = (s & 1) ^ 1; ops = []
        self.yr = getattr(self, "yr", {})
        for ks in range(4):
            def f(ks=ks):
                p.wait(vm=self.yt[s], lg=p.lg - 10)
                b = 64 * s + 16 * ks
                for k in range(2):
                    p.lds(f"ds_read_b128 {ar(b+4*k,4)}, {v(self.CR+ks)} offset:{sl*18432+k*4096}")
                    for a in range(2):
                        self.yr[(s, ks)] = p.lds(f"ds_read_b64_tr_b16 {ar(b+8+4*k+2*a,2)}, {v(self.HT+a)} offset:{sl*18432+(ks>>1)*4096+k*2048+(ks&1)*256}")
            ops.append(f)
        return ops
    def phase_c(self):
        p = self.p; o = self.o
        p.c("==== phase C ====")
        YA, BA, F = 16, 80, 144
        XE, GE, DE, OV, P10, PL, T = 186, 194, 198, 200, 201, 202, 204
        RW, RX, WA, RA = 176, 177, 180, 230
        ep = {}
        def setup():
            p = self.p
            p(f"v_lshrrev_b32 {v(T)}, 4, {v(VL)}\nv_and_b32 {v(T+1)}, 15, {v(VL)}")
            p(f"v_lshlrev_b32 {v(T+2)}, 10, {v(T)}\nv_lshl_add_u32 {v(T+2)}, {v(T+1)}, 3, {v(T+2)}")
            p(f"v_lshlrev_b32 {v(T+3)}, 2, {v(T)}\nv_lshlrev_b32 {v(T+4)}, 3, {v(T+1)}")
            p(f"v_lshlrev_b32 {v(OV)}, 1, {v(T+2)}")
            p(f"s_lshl_b32 s{SC}, s{STB}, 6\ns_lshl_b32 s{SA}, s{SWV}, 4\ns_add_u32 s{SC}, s{SC}, s{SA}")
            p(f"s_lshl_b32 s{SD}, s{SC}, 10\ns_lshl_b32 s{SA}, s{SCOL}, 7\ns_add_u32 s{SD}, s{SD}, s{SA}\nv_add_u32 {v(T+4)}, s{SA}, {v(T+4)}")
            p(f"s_lshl_b32 s{SA}, s{STB}, 12\ns_lshl_b32 s{SB_}, s{SWV}, 10\ns_add_u32 s{SB_}, s{SB_}, s{SA}\ns_add_u32 s{SB_}, s{SB_}, {PF}")
            self.poll_addr(PL, [(SB_, 8)])
            p.atom(f"s_cmp_eq_u32 s{SWV}, 3\ns_cselect_b64 vcc, -1, 0")
            p(f"v_cndmask_b32 {v(P10)}, {v(VL16)}, {v(VOOB)}, vcc")
            p(f"s_mul_i32 s{SE}, s{STB}, {2*45056}\ns_mul_i32 s{SA}, s{SWV}, {22*512}\ns_add_u32 s{SE}, s{SE}, s{SA}\ns_add_u32 s{SE}, s{SE}, {PB}")
            p(f"s_add_u32 s{SA}, s{SREG}, 4096\nv_and_b32 {v(RW)}, 31, {v(VL)}\nv_lshlrev_b32 {v(RW)}, 8, {v(RW)}\nv_add_u32 {v(RW)}, s{SA}, {v(RW)}")
            p(f"v_lshrrev_b32 {v(RX)}, 5, {v(VL)}\nv_and_b32 {v(RX+1)}, 7, {v(VL)}\nv_xor_b32 {v(RX)}, {v(RX)}, {v(RX+1)}\nv_lshlrev_b32 {v(RX)}, 4, {v(RX)}")
            for i in range(4): p(f"v_xor_b32 {v(WA+i)}, {32*i}, {v(RX)}\nv_add_u32 {v(WA+i)}, {v(WA+i)}, {v(RW)}")
            p(f"v_xor_b32 {v(T+1)}, {v(T+1)}, {v(T)}\nv_lshlrev_b32 {v(T+1)}, 4, {v(T+1)}")
            p(f"v_lshlrev_b32 {v(T)}, 8, {v(T)}\ns_lshl_b32 s{SA}, s{SWV}, 12\ns_add_u32 s{SA}, s{SA}, 4096\nv_add_u32 {v(T)}, s{SA}, {v(T)}")
            p(f"v_add_u32 {v(RA)}, {v(T)}, {v(T+1)}\nv_xor_b32 {v(T+1)}, 64, {v(T+1)}\nv_add_u32 {v(RA+1)}, {v(T)}, {v(T+1)}")
            p(f"v_add_u32 {v(RA+2)}, 81920, {v(RA)}\nv_add_u32 {v(RA+3)}, 81920, {v(RA+1)}")
        def eloads():
            for gi in range(4):
                p(f"s_add_u32 s{SA}, s{SD}, {gi*4096}")
                p.vmem(f"buffer_load_dwordx2 {v(XE+2*gi,2)}, {v(T+2)}, {srd(SX)}, s{SA} offen")
            p(f"s_lshl_b32 s{SA}, s{SC}, 2\ns_add_u32 s{SA}, s{SA}, {GATE}")
            for gi in range(4): p.vmem(f"buffer_load_dword {v(GE+gi)}, {v(T+3)}, {srd(SWS)}, s{SA} offen offset:{gi*16} sc1")
            ep['t'] = p.vmem(f"global_load_dwordx2 {v(DE,2)}, {v(T+4)}, {sp(PDSK)}")
        T4 = [(0, 0), (1, 0), (1, 1), (0, 1)]
        def ym(s):
            ops = []
            for ks in range(4):
                for (mt, nt) in T4:
                    def m(ks=ks, mt=mt, nt=nt):
                        p.wait(lg=self.yr[(s, ks)])
                        d = v(YA + 16 * (2 * mt + nt), 16); b = 64 * s + 16 * ks
                        p(f"{MF} {d}, {ar(b+4*mt,4)}, {ar(b+8+4*nt,4)}, {'0' if (s, ks) == (0, 0) else d}")
                    ops.append(m)
            return ops
        PA = 80
        pt = {}
        def ploads():
            ops = []
            for nt in range(2):
                for kap in range(11):
                    def f(kap=kap, nt=nt):
                        if kap % 4 == 0: p(f"s_add_u32 s{SB_}, s{SE}, {nt*45056+kap*1024}")
                        pt[(kap, nt)] = p.vmem(f"buffer_load_dwordx4 {v(PA+(kap*2+nt)*4,4)}, {v(P10 if kap == 10 else VL16)}, {srd(SWS)}, s{SB_} offen offset:{(kap%4)*1024} sc1")
                    ops.append(f)
            return ops
        wo = {}
        def wo_dma():
            items = []
            for (i0, i1, base) in [(18, 22, 0), (0, 18, 22528)]:
                for i in range(i0, i1):
                    def cb(t, i=i): wo[i] = t
                    k = i - i0
                    items.append(((SREG, base + k * 1024) if k % 4 == 0 else None, (SXB, i * 8192) if k % 4 == 0 else None,
                                  f"buffer_load_dwordx4 {v(self.WD+k%4)}, {srd(SWOUT)}, s{SDO} offen offset:{(k%4)*1024} lds", cb))
            return self.dseq(items)
        def wo_rd(kap):
            def f():
                p.wait(vm=wo[2 * kap + 1], lg=p.lg - 12)
                for mt in range(2):
                    for a in range(2):
                        base = 22528 + kap * 2048 if kap < 9 else (kap - 9) * 2048
                        wo[('r', kap)] = p.lds(f"ds_read_b64_tr_b16 {ar((kap*2+mt)*4+2*a,2)}, {v(self.WT_+mt)} offset:{base+a*512}")
            return f
        def pflag():
            p.wait(vm=self.tp); self.flag(SLATE, 220)
        pl = {}
        def pf_issue(): pl['t'] = p.vmem(f"buffer_load_dword {v(PL+1)}, {v(PL)}, {srd(SWS)}, 0 offen sc1")
        def pf_check():
            l = p.label("pp"); d = p.label("pd")
            p.wait(vm=pl['t'])
            p(f"s_mov_b32 s{SSPIN}, 0")
            p.put(l)
            p(f"v_cmp_ne_u32 vcc, s{ST_T}, {v(PL+1)}\ns_and_b32 s{SF}, vcc_lo, 0xff\ns_cbranch_scc0 {d}")
            p(f"buffer_load_dword {v(PL+1)}, {v(PL)}, {srd(SWS)}, 0 offen sc1\ns_waitcnt vmcnt(0)")
            p(f"s_add_u32 s{SSPIN}, s{SSPIN}, 1\ns_cmp_lt_u32 s{SSPIN}, {SPIN}\ns_cbranch_scc1 {l}")
            p.put(d)
        su = self.cap(setup)
        lgw = lambda: p.wait(lg=p.lg - 1)
        y2, y3, wd, pl_ = self.y_dma(2), self.y_dma(3), wo_dma(), ploads()
        self.run(merge(merge(ym(0), su), self.y1 + [lgw] + y2[:5]))
        self.run([pflag] + y2[5:13])
        self.run(merge(self.y_read(1), y2[13:] + [eloads]))
        self.stamp(11)
        self.run(merge(ym(1), [lgw] + y3))
        self.run(merge(self.y_read(2), wd[:5]))
        self.run(merge(ym(2), [lgw] + wd[5:14] + [pf_issue] + wd[14:]))
        self.run(self.y_read(3))
        pf_check(); self.stamp(12)
        self.run(merge(ym(3), pl_[:12]))
        prest = pl_[12:]
        self.stamp(13)
        def redw(acc, base, tiles):
            return [(lambda mt=mt, nt=nt, i=i: p.lds(f"ds_write_b128 {v(WA+i)}, {v(acc+16*(2*mt+nt)+4*i,4)} offset:{base+nt*8192+mt*128}"))
                    for (mt, nt) in tiles for i in range(4)]
        def bm(kap, mt, nt):
            def m():
                p.wait(vm=pt[(kap, nt)], lg=wo[('r', kap)])
                d = v(YA + 16 * (2 * mt + nt), 16)
                p(f"{MF} {d}, {ar((kap*2+mt)*4,4)}, {v(PA+(kap*2+nt)*4,4)}, {d}")
            return m
        def yscale(mt, nt, pk=True):
            if pk: return [(lambda i=i: p(f"v_pk_mul_f32 {v(YA+16*(2*mt+nt)+2*i,2)}, {v(YA+16*(2*mt+nt)+2*i,2)}, {v(self.GY+2*nt,2)} op_sel_hi:[1,0]")) for i in range(8)]
            return [(lambda i=i: p(f"v_mul_f32 {v(YA+16*(2*mt+nt)+i)}, {v(YA+16*(2*mt+nt)+i)}, {v(self.GY+2*nt)}")) for i in range(16)]
        DU, X = 168, 0
        XP = [4, 8, 12, 172]
        def xpart():
            p = self.p
            self.unpack(DU, DE); self.unpack(DU + 2, DE + 1)
            for gi in range(4):
                x = XP[gi]
                self.unpack(x, XE + 2 * gi); self.unpack(x + 2, XE + 2 * gi + 1)
                for k in range(4): p(f"v_mul_f32 {v(x+k)}, {v(x+k)}, {v(DU+k)}")
                for k in range(4): p(f"v_mul_f32 {v(x+k)}, {v(x+k)}, {v(GE+gi)}")
        self.run(merge(merge(yscale(0, 0) + yscale(1, 0) + yscale(1, 1) + yscale(0, 1), prest), [wo_rd(k) for k in range(11)]))
        mm0 = [bm(kap, mt, 0) for kap in range(11) for mt in range(2)]
        self.run(merge(mm0, [lambda: p.wait(vm=ep['t'])] + self.cap(xpart)))
        mm1 = [bm(kap, 0, 1) for kap in range(11)]
        mm2 = [bm(kap, 1, 1) for kap in range(11)]
        self.run(merge(mm1, redw(YA, 0, [(0, 0), (1, 0)]), 2))
        self.run(merge(mm2, redw(YA, 0, [(0, 1)]), 4))
        self.run(redw(YA, 0, [(1, 1)]))
        p.wait_lg_all(); p("s_barrier")
        self.stamp(14)
        tk = {}
        def R(gi, s): return 16 + 16 * gi + 4 * s
        for gi in range(4):
            p.wait(lg=p.lg - 12)
            for s_ in range(4):
                tk[gi] = p.lds(f"ds_read_b128 {v(R(gi,s_),4)}, {v(RA+2*(s_>>1)+(gi&1))} offset:{(s_&1)*40960+gi*1024}")
        p(f"s_lshl_b32 s{SD}, s{SD}, 1")
        for gi in range(4):
            y = R(gi, 0)
            p.wait(lg=tk[gi])
            for hh in (0, 2):
                p(f"v_pk_add_f32 {v(y+hh,2)}, {v(y+hh,2)}, {v(y+4+hh,2)}\nv_pk_add_f32 {v(y+8+hh,2)}, {v(y+8+hh,2)}, {v(y+12+hh,2)}")
            for hh in (0, 2): p(f"v_pk_add_f32 {v(y+hh,2)}, {v(y+hh,2)}, {v(XP[gi]+hh,2)}")
            for hh in (0, 2): p(f"v_pk_add_f32 {v(y+hh,2)}, {v(y+hh,2)}, {v(y+8+hh,2)}")
            p(f"s_add_u32 s{SA}, s{SD}, {gi*8192}")
            p.vmem(f"buffer_store_dwordx4 {v(y,4)}, {v(OV)}, {srd(SOUT)}, s{SA} offen{' ' + o['outmod'] if 'outmod' in o else ''}")
        ne = p.label("ne")
        p(f"s_lshl_b32 s{SA}, s{STB}, 3\ns_add_u32 s{SA}, s{SA}, s{SCOL}\ns_lshl_b32 s{SA}, s{SA}, 2\ns_add_u32 s{SA}, s{SA}, s{SWV}")
        p(f"s_cmp_eq_u32 s{SA}, {255*4}\ns_cbranch_scc0 {ne}")
        p(f"s_mov_b32 s{SA}, {EPOCH}")
        self.flag(SA, 220)
        p.put(ne)
        if o.get("stamps"):
            self.stamp(15)
            p(f"s_lshl_b32 s{SA}, s2, 2\ns_add_u32 s{SA}, s{SA}, s{SWV}\ns_lshl_b32 s{SA}, s{SA}, 8\ns_add_u32 s{SA}, s{SA}, {DBG}")
            p(f"v_lshlrev_b32 v254, 2, {v(VL)}")
            p.vmem(f"buffer_store_dword v255, v254, {srd(SWS)}, s{SA} offen")
        if "spin_from" in o:
            self.stamp(15)
            sl = p.label("spin")
            p(f"v_readlane_b32 s{SA}, v254, 0")
            p.put(sl)
            p(f"s_memrealtime s[{SSTMP}:{SSTMP+1}]\ns_waitcnt lgkmcnt(0)\ns_sub_u32 s{SB_}, s{SSTMP}, s{SA}\ns_cmp_lt_u32 s{SB_}, 3000\ns_cbranch_scc1 {sl}")
        p.put(self.END)
        p("s_endpgm")

    def build(self):
        self.prologue()
        self.phase_z()
        self.p.vm_done = -1; self.p.lg_done = -1
        self.p("s_nop 15")
        self.phase_u()
        self.phase_g()
        self.phase_c()
        lines, added = hazard_pass([x for l in self.p.L for x in l.split(chr(10))])
        hdr = open("gated_mix__ssm_conv_s5__mixer_gmlp__prompt.s.ref").read().split("; Override")[0]
        s = hdr + "; @launch grid=(256,1,1) block=(256,1,1) lds=163840\n"
        s += '.amdgcn_target "amdgcn-amd-amdhsa--gfx950"\n.text\n'
        s += f".globl {NAME}\n.p2align 8\n.type {NAME},@function\n{NAME}:\n"
        s += "\n".join((l if l.endswith(":") else "    " + l) for l in lines) + "\n"
        s += f""".section .rodata,"a"
.p2align 6
.amdhsa_kernel {NAME}
  .amdhsa_next_free_vgpr 512
  .amdhsa_next_free_sgpr 102
  .amdhsa_accum_offset 256
  .amdhsa_group_segment_fixed_size 0
  .amdhsa_kernarg_size 144
  .amdhsa_user_sgpr_count 2
  .amdhsa_user_sgpr_kernarg_segment_ptr 1
  .amdhsa_system_sgpr_workgroup_id_x 1
  .amdhsa_float_denorm_mode_32 3
.end_amdhsa_kernel
"""
        return s, added

if __name__ == "__main__":
    out = sys.argv[1]
    opt = {}
    for a in sys.argv[2:]:
        k, _, val = a.partition("=")
        try: opt[k] = int(val) if val else 1
        except ValueError: opt[k] = val
    s, added = G(opt).build()
    open(out, "w").write(s)
    print("wrote", out, "nops added", added, "lines", s.count("\n"))
```

```python
import sys, math, struct
from core import *

NAME = "gated_mix__ssm_conv_s5__mixer_gmlp__prompt_kernel"
EPOCH = 0; GATE = 0x4000
ST = 0x10000; EG = 0x50000; DBG = 0x80000
Z2N = 0x100000; Z1 = 0x400000; PB = 0x700000; HB = 0xA00000
ZF = 0xE00000; HF = 0xE10000; PF = 0xE20000; Z1F = 0xE40000; WS_END = 0xE50000
OOB = 0x80000000
SPIN = 200000
SX, SW1, SWSP, SWS, SCRE, SCIM, SWOUT, SOUT = 4, 8, 12, 16, 20, 24, 28, 32
PLRE, PLIM, PLDT, PDSK, PBSP, PGW, PBRE, PBIM, PWIN = 36, 38, 40, 42, 44, 46, 48, 50, 52
ST_T = 100
SWV, SRB, SCOL, STB = 56, 57, 58, 59
SA, SB_, SC, SD = 60, 61, 62, 63
SSTMP = 64
SDO, SWB, SPB0, SPST, SPSP = 68, 69, 70, 71, 72
SXB, SW1B, SXL, SWL = 73, 74, 75, 76
SPC = 77
SCB, SHB = 78, 79
SK = 80
SREG = 96
SE, SF = 97, 98
SSPIN = 99
SLATE = 101
SJ = 3
SGB = 95
SPFP = 70
SPFE = 79
SZI = 72
SPB = 90
def srd(b): return f"s[{b}:{b+3}]"
def v(a, n=1): return f"v{a}" if n == 1 else f"v[{a}:{a+n-1}]"
def ar(a, n=1): return f"a{a}" if n == 1 else f"a[{a}:{a+n-1}]"
def sp(a): return f"s[{a}:{a+1}]"
VL, VL16, VOOB = 1, 2, 3
LOG2E = 1.4426950408889634
def f2u(x): return struct.unpack("<I", struct.pack("<f", x))[0]
MF = "v_mfma_f32_32x32x16_bf16"

class G:
    def __init__(self, opt):
        self.o = opt
        self.p = Prog()

    def stamp(self, k):
        if self.o.get("spin_from") == k:
            p = self.p
            p(f"s_memrealtime s[{SSTMP}:{SSTMP+1}]"); p.wait_lg_all()
            p(f"v_mov_b32 v254, s{SSTMP}")
        if self.o.get("stamps"):
            p = self.p
            p(f"s_memrealtime s[{SSTMP}:{SSTMP+1}]\ns_memtime s[{SSTMP+2}:{SSTMP+3}]"); p.wait_lg_all()
            p(f"v_writelane_b32 v255, s{SSTMP}, {k}\nv_writelane_b32 v255, s{SSTMP+2}, {k+32}")
    def cap(self, fn):
        sub = Prog(); save = self.p; self.p = sub
        fn()
        self.p = save
        assert sub.vm == 0 and sub.lg == 0
        return [(lambda l=l: self.p(l)) for l in sub.L]
    def run(self, ops):
        for op in ops: op()
    def dseq(self, items):
        p = self.p
        def setup(it):
            if it[0] is not None: p(f"s_add_u32 m0, s{it[0][0]}, {it[0][1]}")
            if it[1] is not None: p(f"s_add_u32 s{SDO}, s{it[1][0]}, {it[1][1]}")
        ops = [lambda: setup(items[0])]
        for i, it in enumerate(items):
            def f(i=i, it=it):
                t = p.vmem(it[2])
                if it[3]: it[3](t)
                if i + 1 < len(items): setup(items[i + 1])
            ops.append(f)
        return ops
    def poll_addr(self, vt, groups):
        p = self.p; n0 = 0
        p(f"v_mov_b32 {v(vt)}, {v(VOOB)}")
        for (sr, n) in groups:
            if n == 1: p(f"v_writelane_b32 {v(vt)}, s{sr}, {n0}")
            else:
                p(f"s_sub_u32 s{sr}, s{sr}, {n0*128}\nv_lshl_add_u32 {v(vt+1)}, {v(VL)}, 7, s{sr}")
                m = ((1 << n) - 1) << n0
                p(f"s_mov_b32 vcc_lo, {m & 0xffffffff}\ns_mov_b32 vcc_hi, {m >> 32}\nv_cndmask_b32 {v(vt)}, {v(vt)}, {v(vt+1)}, vcc")
            n0 += n
        return n0
    def poll(self, vt, n):
        p = self.p
        l = p.label("poll"); d = p.label("pd")
        p(f"s_mov_b32 s{SSPIN}, 0")
        p.put(l)
        p.vmem(f"buffer_load_dword {v(vt+1)}, {v(vt)}, {srd(SWS)}, 0 offen sc1")
        p.wait_vm_all()
        p(f"v_cmp_ne_u32 vcc, s{ST_T}, {v(vt+1)}")
        if n <= 32: p(f"s_and_b32 s{SF}, vcc_lo, {(1<<n)-1}")
        else: p(f"s_and_b32 vcc_hi, vcc_hi, {(1<<(n-32))-1}\ns_or_b32 s{SF}, vcc_lo, vcc_hi")
        p(f"s_cbranch_scc0 {d}")
        p(f"s_add_u32 s{SSPIN}, s{SSPIN}, 1\ns_cmp_lt_u32 s{SSPIN}, {SPIN}\ns_cbranch_scc1 {l}")
        p.put(d)
    def flag_prep(self, vt):
        p = self.p
        p(f"v_mov_b32 {v(vt)}, s{ST_T}\nv_mov_b32 {v(vt+1)}, {v(VOOB)}\nv_writelane_b32 {v(vt+1)}, 0, 0")
    def flag(self, off_sreg, vt):
        self.p.vmem(f"buffer_store_dword {v(vt)}, {v(vt+1)}, {srd(SWS)}, s{off_sreg} offen sc1")
    def xhalf_sum(self, a, t):
        self.p(f"v_mov_b32 {v(t)}, {v(a)}\nv_permlane32_swap_b32 {v(a)}, {v(t)}\nv_add_f32 {v(a)}, {v(a)}, {v(t)}")
    def rnd(self, d, s):
        self.p(f"v_cvt_pk_bf16_f32 {v(d)}, {v(s)}, {v(s)}\nv_lshlrev_b32 {v(d)}, 16, {v(d)}")
    def unpack(self, d, s):
        self.p(f"v_and_b32 {v(d+1)}, 0xffff0000, {v(s)}\nv_lshlrev_b32 {v(d)}, 16, {v(s)}")
    def plain_read_addr(self, dst4, base_sreg, t):
        p = self.p
        p(f"v_and_b32 {v(t)}, 31, {v(VL)}\nv_lshlrev_b32 {v(t)}, 7, {v(t)}")
        if base_sreg is not None: p(f"v_add_u32 {v(t)}, s{base_sreg}, {v(t)}")
        p(f"v_bfe_u32 {v(t+1)}, {v(VL)}, 1, 3\nv_lshrrev_b32 {v(dst4)}, 5, {v(VL)}\nv_xor_b32 {v(t+1)}, {v(t+1)}, {v(dst4)}")
        p(f"v_lshlrev_b32 {v(t+1)}, 4, {v(t+1)}")
        for ks in range(4):
            p(f"v_xor_b32 {v(dst4+ks)}, {32*ks}, {v(t+1)}\nv_add_u32 {v(dst4+ks)}, {v(dst4+ks)}, {v(t)}")
    def plain_dma_addr(self, dst4, rowbytes, t, rowstep=8):
        p = self.p
        p(f"v_lshrrev_b32 {v(t)}, 3, {v(VL)}\nv_mul_u32_u24 {v(t)}, {rowbytes}, {v(t)}")
        self.plain_dma_addr2(dst4, t, t + 1, rowstep * rowbytes)
    def plain_dma_addr2(self, dst4, vrow, t, step):
        p = self.p
        p(f"v_and_b32 {v(t)}, 7, {v(VL)}\nv_lshrrev_b32 {v(dst4)}, 4, {v(VL)}\nv_xor_b32 {v(t)}, {v(t)}, {v(dst4)}\nv_lshlrev_b32 {v(t)}, 4, {v(t)}")
        p(f"v_add_u32 {v(dst4)}, {v(t)}, {v(vrow)}")
        p(f"v_xor_b32 {v(t)}, 64, {v(t)}\nv_add_u32 {v(dst4+1)}, {v(t)}, {v(vrow)}")
        p(f"v_add_u32 {v(dst4+2)}, {2*(step-1024)}, {v(dst4)}\nv_add_u32 {v(dst4+3)}, {3*(step-1024)}, {v(dst4+1)}\nv_add_u32 {v(dst4+1)}, {step-1024}, {v(dst4+1)}")
    def panel_tr_addr(self, dst2, base_sreg, t, perm):
        p = self.p
        p(f"v_lshrrev_b32 {v(t)}, 5, {v(VL)}\nv_lshlrev_b32 {v(t)}, 10, {v(t)}")
        p(f"v_bfe_u32 {v(t+1)}, {v(VL)}, 2, 2\nv_lshl_add_u32 {v(t)}, {v(t+1)}, 7, {v(t)}")
        p(f"v_bfe_u32 {v(t+1)}, {v(VL)}, 4, 1\nv_lshl_add_u32 {v(t)}, {v(t+1)}, 5, {v(t)}")
        if perm:
            p(f"v_and_b32 {v(t+1)}, 1, {v(VL)}\nv_lshl_add_u32 {v(t)}, {v(t+1)}, 4, {v(t)}")
            p(f"v_bfe_u32 {v(t+1)}, {v(VL)}, 1, 1\nv_lshl_add_u32 {v(t)}, {v(t+1)}, 3, {v(t)}")
        else:
            p(f"v_and_b32 {v(t+1)}, 3, {v(VL)}\nv_lshl_add_u32 {v(t)}, {v(t+1)}, 3, {v(t)}")
        p(f"v_bfe_u32 {v(t+1)}, {v(VL)}, 3, 1\nv_lshlrev_b32 {v(t+1)}, 6, {v(t+1)}")
        if base_sreg is not None: p(f"v_add_u32 {v(t)}, s{base_sreg}, {v(t)}")
        p(f"v_add_u32 {v(dst2)}, {v(t)}, {v(t+1)}\nv_xor_b32 {v(t+1)}, 64, {v(t+1)}\nv_add_u32 {v(dst2+1)}, {v(t)}, {v(t+1)}")
    def unit_tr_addr(self, dst2, base_sreg, t, perm, flip_sreg=None):
        p = self.p
        p(f"v_bfe_u32 {v(t)}, {v(VL)}, 4, 1")
        if flip_sreg is not None: p(f"v_xor_b32 {v(t)}, s{flip_sreg}, {v(t)}")
        p(f"v_lshlrev_b32 {v(t)}, 1, {v(t)}")
        p(f"v_bfe_u32 {v(t+1)}, {v(VL)}, {0 if perm else 1}, 1\nv_or_b32 {v(t)}, {v(t)}, {v(t+1)}")
        p(f"v_lshrrev_b32 {v(t+1)}, 5, {v(VL)}\nv_lshlrev_b32 {v(t+1)}, 1, {v(t+1)}\nv_xor_b32 {v(t+1)}, {v(t+1)}, {v(t)}")
        p(f"v_lshlrev_b32 {v(t)}, 9, {v(t)}")
        p(f"v_bfe_u32 {v(t+2)}, {v(VL)}, 2, 2\nv_lshl_add_u32 {v(t)}, {v(t+2)}, 4, {v(t)}")
        p(f"v_bfe_u32 {v(t+2)}, {v(VL)}, {1 if perm else 0}, 1\nv_lshl_add_u32 {v(t)}, {v(t+2)}, 3, {v(t)}")
        if base_sreg is not None: p(f"v_add_u32 {v(t)}, s{base_sreg}, {v(t)}")
        p(f"v_lshl_add_u32 {v(dst2)}, {v(t+1)}, 6, {v(t)}")
        p(f"v_xor_b32 {v(t+1)}, 1, {v(t+1)}\nv_lshl_add_u32 {v(dst2+1)}, {v(t+1)}, 6, {v(t)}")

    def gemm_loop(self, nslot, reads, mfmas, dma, tick, rfront, npro, extra, valu=None):
        p = self.p
        p.wait(vm=tick[0]); p("s_barrier")
        self.stamp(20)
        self.run(reads(0))
        d = []
        for st in range(npro, nslot): d += dma(st)
        q = (len(d) + 2) // 3
        pend = [d[i * q:(i + 1) * q] for i in range(3)]
        for n in range(32):
            rd = []
            if n + 1 < 32:
                if (n + 1) % 4 == 0:
                    st = (n + 1) // 4
                    p.wait(vm=tick[st], lg=p.lg - 1); p("s_barrier")
                    d = dma(st - 1 + nslot) if st - 1 + nslot < 8 else extra.get(st, lambda: [])()
                    q = (len(d) + 3) // 4
                    pend = [d[i * q:(i + 1) * q] for i in range(4)]
                rd = reads(n + 1)
            seq = merge(mfmas(n), rd, 0, rfront)
            if pend: seq = merge(seq, pend.pop(0), len(seq) // 2)
            if valu and n in valu: seq = merge(seq, valu[n])
            self.run(seq)

    def gate(self, GX, GW, GU, GS, GT):
        p = self.p
        for i in range(4):
            for r in range(4):
                p(f"v_dot2_f32_bf16 {v(GS+r)}, {v(GX+4*r+i)}, {v(GW+i)}, {'0' if i == 0 else v(GS+r)}")
        p("s_nop 2")
        for mod in ["quad_perm:[1,0,3,2]", "quad_perm:[2,3,0,1]", "row_half_mirror", "row_mirror"]:
            for r in range(4): p(f"v_add_f32_dpp {v(GS+r)}, {v(GS+r)}, {v(GS+r)} {mod} row_mask:0xf bank_mask:0xf")
        for sw in ["v_permlane16_swap_b32", "v_permlane32_swap_b32"]:
            for r in range(4): p(f"v_mov_b32 {v(GT+r)}, {v(GS+r)}")
            for r in range(4): p(f"{sw} {v(GS+r)}, {v(GT+r)}")
            for r in range(4): p(f"v_add_f32 {v(GS+r)}, {v(GS+r)}, {v(GT+r)}")
        for r in range(4): p(f"v_mul_f32 {v(GS+r)}, {f2u(-LOG2E)}, {v(GS+r)}")
        for r in range(4): p(f"v_exp_f32 {v(GS+r)}, {v(GS+r)}")
        for r in range(4): p(f"v_add_f32 {v(GS+r)}, 1.0, {v(GS+r)}")
        for r in range(4): p(f"v_rcp_f32 {v(GS+r)}, {v(GS+r)}")
        p(f"v_mov_b32 {v(GT)}, {v(VOOB)}\nv_writelane_b32 {v(GT)}, 0, 0")

    def w_dma_addr(self, dst3, t, colbase):
        p = self.p
        for i in range(3):
            p(f"v_add_u32 {v(t)}, {64*i}, {v(VL)}\nv_mul_u32_u24 {v(t+1)}, 171, {v(t)}\nv_lshrrev_b32 {v(t+1)}, 11, {v(t+1)}")
            p(f"v_mul_u32_u24 {v(t+2)}, 12, {v(t+1)}\nv_sub_u32 {v(t)}, {v(t)}, {v(t+2)}\nv_cmp_eq_u32 vcc, 11, {v(t)}")
            p(f"v_mul_u32_u24 {v(t+1)}, 2752, {v(t+1)}\nv_lshl_add_u32 {v(t)}, {v(t)}, 4, {v(t+1)}")
            if colbase - 1024 * i: p(f"v_add_u32 {v(t)}, {colbase-1024*i}, {v(t)}")
            p(f"v_cndmask_b32 {v(dst3+i)}, {v(t)}, {v(VOOB)}, vcc")
    def w_tr_addr(self, dst, base, t):
        p = self.p
        p(f"v_lshrrev_b32 {v(t)}, 5, {v(VL)}\nv_bfe_u32 {v(t+1)}, {v(VL)}, 2, 2\nv_lshl_add_u32 {v(t)}, {v(t)}, 3, {v(t+1)}\nv_mul_u32_u24 {v(t)}, 192, {v(t)}")
        p(f"v_bfe_u32 {v(t+1)}, {v(VL)}, 4, 1\nv_lshl_add_u32 {v(t)}, {v(t+1)}, 5, {v(t)}")
        p(f"v_and_b32 {v(t+1)}, 1, {v(VL)}\nv_lshl_add_u32 {v(t)}, {v(t+1)}, 4, {v(t)}")
        p(f"v_bfe_u32 {v(t+1)}, {v(VL)}, 1, 1\nv_lshl_add_u32 {v(t)}, {v(t+1)}, 3, {v(t)}")
        p(f"v_add_u32 {v(dst)}, {base}, {v(t)}")
    def valid_masks(self):
        MA, MB = SK + 2, SK + 4
        self.p.atom(f"s_cmp_lt_u32 s{SCOL}, 7\ns_mov_b32 s{MA}, -1\ns_cselect_b32 s{MA+1}, -1, 0\ns_cselect_b32 s{MB}, -1, 0\ns_mov_b32 s{MB+1}, 0\n"
                    f"s_mov_b32 s{SK+6}, {f2u(1/72)}\ns_cselect_b32 s{SK+6}, {f2u(1/88)}, s{SK+6}")
        c1 = -2 * LOG2E * 0.7978845608028654
        self.p(f"s_mov_b32 s{SK}, {f2u(c1*0.044715)}\nv_mov_b32 {v(self.VC0)}, {f2u(c1)}")

    def gelu_pair(self, a, t, out_packed=None):
        p = self.p
        p(f"v_pk_mul_f32 {v(t,2)}, {v(a,2)}, {v(a,2)}")
        p(f"v_pk_fma_f32 {v(t,2)}, {v(t,2)}, {sp(SK)}, {v(self.VC0,2)} op_sel_hi:[1,0,0]")
        p(f"v_pk_mul_f32 {v(t,2)}, {v(t,2)}, {v(a,2)}")
        p(f"v_exp_f32 {v(t)}, {v(t)}\nv_exp_f32 {v(t+1)}, {v(t+1)}")
        p(f"v_pk_add_f32 {v(t,2)}, {v(t,2)}, 1.0 op_sel_hi:[1,0]")
        p(f"v_rcp_f32 {v(t)}, {v(t)}\nv_rcp_f32 {v(t+1)}, {v(t+1)}")
        if out_packed is not None:
            p(f"v_pk_mul_f32 {v(t,2)}, {v(t,2)}, {v(a,2)}")
            p(f"v_cvt_pk_bf16_f32 {v(out_packed)}, {v(t)}, {v(t+1)}")
        else:
            p(f"v_pk_mul_f32 {v(a,2)}, {v(t,2)}, {v(a,2)}")
    def gelu_many(self, pairs, temps, outs=None):
        p = self.p; ng = len(temps)
        for g0 in range(0, len(pairs), ng):
            streams = []
            for k, i in enumerate(range(g0, min(g0 + ng, len(pairs)))):
                sub = Prog(); save = self.p; self.p = sub
                self.gelu_pair(pairs[i], temps[k], None if outs is None else outs[i])
                self.p = save
                streams.append(sub.L)
            for j in range(len(streams[0])):
                for s in streams: p(s[j])

    VWD, VWR, VWA, VC0 = 240, 244, 248, 252
    def wsp_setup(self, t):
        p = self.p
        self.plain_dma_addr(self.VWD, 4096, t)
        p(f"s_and_b32 s{SA}, s{SWV}, 1\ns_lshl_b32 s{SA}, s{SA}, 12")
        self.plain_read_addr(self.VWR, SA, t)
        p(f"s_lshl_b32 s{SWB}, s{STB}, 18\ns_lshl_b32 s{SB_}, s{SWV}, 10\ns_add_u32 s{SWB}, s{SWB}, s{SB_}")
        self.wsp_t = {}
    def piece(self, st): return (SPB + st % 5, 0)
    def wsp_dma(self, st):
        if self.o.get("x_nowsp") and st >= 2:
            self.wsp_t[st] = -1
            return [lambda: None] * 9
        items = []; sr, im = self.piece(st)
        for hh in range(2):
            for i in range(4):
                def cb(t): self.wsp_t[st] = t
                items.append(((sr, im + hh * 4096) if i == 0 else None, (SWB, st * 128 + hh * 131072) if i == 0 else None,
                              f"buffer_load_dwordx4 {v(self.VWD+i)}, {srd(SWSP)}, s{SDO} offen offset:{i*1024} lds", cb))
        return self.dseq(items)
    def wsp_read(self, st):
        if self.o.get("x_nord"): return [lambda: None]
        p = self.p; sr, im = self.piece(st)
        def pre():
            for ks in range(4): p(f"v_add_u32 {v(self.VWA+ks)}, s{sr}, {v(self.VWR+ks)}")
            p.wait(vm=self.wsp_t[st], lg=p.lg - 8)
        ops = [pre]
        for nt in range(2):
            for ks in range(4):
                def f(ks=ks, nt=nt):
                    p.lds(f"ds_read_b128 {ar(((st*4+ks)*2+nt)*4,4)}, {v(self.VWA+ks)} offset:{im}")
                    if nt == 0: p(f"v_xor_b32 {v(self.VWA+ks)}, 4096, {v(self.VWA+ks)}")
                ops.append(f)
        return ops

    def prologue(self):
        p = self.p
        self.END = p.label("end")
        p(f"s_cmp_ge_u32 s2, 256\ns_cbranch_scc1 {self.END}")
        p(f"s_load_dwordx2 {sp(SX)}, s[0:1], 0\ns_load_dwordx2 {sp(PWIN)}, s[0:1], 80\ns_load_dwordx4 s[{PBRE}:{PBRE+3}], s[0:1], 24")
        p(f"s_load_dwordx2 {sp(PGW)}, s[0:1], 112\ns_load_dwordx4 s[{PLRE}:{PLRE+3}], s[0:1], 8\ns_load_dwordx2 {sp(PLDT)}, s[0:1], 56\ns_load_dwordx2 {sp(SWS)}, s[0:1], 136")
        if self.o.get("tlb", 1):
            for (r, off) in [(SWSP, 88), (SCRE, 40), (SCIM, 48), (SWOUT, 104), (SOUT, 120), (PDSK, 64), (PBSP, 96)]:
                p(f"s_load_dwordx2 {sp(r)}, s[0:1], {off}")
            for (r, n) in [(SWSP, 8388608), (SWS, WS_END), (SCRE, 524288), (SCIM, 524288), (SWOUT, 704512), (SOUT, 4194304)]:
                p(f"s_mov_b32 s{r+2}, {n}\ns_mov_b32 s{r+3}, 0x20000")
        p(f"v_lshrrev_b32 v2, 6, v0\nv_and_b32 {v(VL)}, 63, v0\nv_readfirstlane_b32 s{SWV}, v2\nv_lshlrev_b32 {v(VL16)}, 4, {v(VL)}\nv_mov_b32 {v(VOOB)}, {OOB}")
        if self.o.get("stamps"): p("v_mov_b32 v255, 0")
        self.stamp(17)
        p(f"s_and_b32 s{SA}, s2, 7\ns_lshr_b32 s{SB_}, s2, 3")
        p(f"s_and_b32 s{SC}, s{SA}, 1\ns_lshl_b32 s{SC}, s{SC}, 2\ns_and_b32 s{SD}, s{SB_}, 3\ns_add_u32 s{SCOL}, s{SC}, s{SD}")
        p(f"s_lshr_b32 s{SA}, s{SA}, 1")
        p(f"s_lshr_b32 s{SC}, s{SB_}, 2\ns_lshl_b32 s{SD}, s{SA}, 3\ns_add_u32 s{STB}, s{SD}, s{SC}")
        p(f"s_and_b32 s{SC}, s{SC}, 3\ns_lshl_b32 s{SD}, s{SA}, 2\ns_add_u32 s{SRB}, s{SD}, s{SC}")
        if self.o.get("map", 1) == 1:
            p(f"s_and_b32 s{SD}, s2, 7\ns_lshl_b32 s{SD}, s{SD}, 2\ns_lshr_b32 s{STB}, s{SB_}, 3\ns_add_u32 s{STB}, s{STB}, s{SD}\ns_and_b32 s{SJ}, s{SB_}, 7")
        else: p(f"s_mov_b32 s{SJ}, s{SCOL}")
        p(f"s_mov_b32 s{SX+2}, 2097152\ns_mov_b32 s{SX+3}, 0x20000\ns_mov_b32 s{SW1+3}, 0x20000")
        if "probe" in self.o:
            off, ls, ws_ = [int(x) for x in self.o["probe"].split(",")]
            p(f"s_load_dwordx2 {sp(SPFP)}, s[0:1], {off}\ns_lshl_b32 s{SD}, s2, 2\ns_add_u32 s{SD}, s{SD}, s{SWV}\ns_mul_i32 s{SD}, s{SD}, {ws_}")
            p(f"v_mul_u32_u24 {v(4)}, {ls}, {v(VL)}\nv_add_u32 {v(4)}, s{SD}, {v(4)}\ns_waitcnt lgkmcnt(0)")
            p(f"global_load_dword {v(5)}, {v(4)}, {sp(SPFP)}\ns_waitcnt vmcnt(0)")
            self.stamp(30)
        pf = self.o.get("pf", 2)
        if pf == 1:
            p(f"s_lshl_b32 s{SD}, s2, 2\ns_add_u32 s{SD}, s{SD}, s{SWV}\ns_mov_b32 s{SC}, 0\ns_mov_b32 s{SA}, 0")
            for (lo, off) in [(256, 80), (428, 24), (492, 32)]:
                p(f"s_cmp_ge_u32 s{SD}, {lo}\ns_cselect_b32 s{SC}, {off}, s{SC}\ns_cselect_b32 s{SA}, {lo}, s{SA}")
            p(f"s_cmp_lt_u32 s{SD}, 556\ns_cselect_b32 s{SPFE}, 1, 0")
            p(f"s_sub_u32 s{SD}, s{SD}, s{SA}\ns_load_dwordx2 {sp(SPFP)}, s[0:1], s{SC}")
            p(f"s_lshl_b32 s{SD}, s{SD}, 13\nv_lshl_add_u32 {v(4)}, {v(VL)}, 7, s{SD}")
        if pf == 2:
            p(f"s_lshl_b32 s{SD}, s{SWV}, 8\ns_add_u32 s{SD}, s{SD}, s2\ns_mov_b32 s{SC}, 0\ns_mov_b32 s{SA}, 0\ns_mov_b32 s{SE}, 2047")
            for (lo, off, last) in [(171, 24, 511), (214, 32, 511), (257, 80, 0)]:
                p(f"s_cmp_ge_u32 s{SD}, {lo}\ns_cselect_b32 s{SC}, {off}, s{SC}\ns_cselect_b32 s{SA}, {lo}, s{SA}\ns_cselect_b32 s{SE}, {last}, s{SE}")
            p(f"s_cmp_lt_u32 s{SD}, 365\ns_cselect_b32 s{SPFE}, 1, 0")
            p(f"s_sub_u32 s{SD}, s{SD}, s{SA}\ns_load_dwordx2 {sp(SPFP)}, s[0:1], s{SC}")
            p(f"v_mul_u32_u24 {v(4)}, 52, {v(VL)}\nv_lshrrev_b32 {v(4)}, 8, {v(4)}\nv_mul_u32_u24 {v(5)}, 5, {v(4)}\nv_sub_u32 {v(5)}, {v(VL)}, {v(5)}")
            p(f"s_mul_i32 s{SA}, s{SD}, 12\nv_add_u32 {v(4)}, s{SA}, {v(4)}\nv_min_u32 {v(4)}, s{SE}, {v(4)}\nv_lshlrev_b32 {v(4)}, 10, {v(4)}\nv_lshl_add_u32 {v(4)}, {v(5)}, 7, {v(4)}\nv_add_u32 {v(4)}, 384, {v(4)}")
            p(f"s_lshl_b32 s{SD}, s{SD}, 13\ns_add_u32 s{SD}, s{SD}, {192*2752}\nv_lshl_add_u32 {v(5)}, {v(VL)}, 7, s{SD}\nv_min_u32 {v(5)}, {512*2752-4}, {v(5)}")
            p(f"s_cmp_eq_u32 s{SE}, 0\ns_cselect_b64 vcc, -1, 0\nv_cndmask_b32 {v(4)}, {v(4)}, {v(5)}, vcc")
        self.LU = p.label("U"); self.LG = p.label("G")
        p(f"s_cmp_ge_u32 s{SB_}, 16\ns_cbranch_scc1 {self.LU}")
    def code_prefetch(self, va, vd):
        if not self.o.get("cpf", 1): return
        p = self.p
        sk = p.label("cpf"); here = p.label("pc")
        nsl = self.o.get("cpfn", 6)
        p(f"s_lshr_b32 s{SA}, s2, 3\ns_and_b32 s{SA}, s{SA}, 15\ns_lshl_b32 s{SA}, s{SA}, 2\ns_add_u32 s{SA}, s{SA}, s{SWV}")
        p(f"s_cmp_ge_u32 s{SA}, {nsl}\ns_cbranch_scc1 {sk}")
        p(f"s_getpc_b64 s[{SSTMP}:{SSTMP+1}]")
        p.put(here)
        p(f"s_sub_u32 s{SSTMP}, s{SSTMP}, {here}-{NAME}\ns_subb_u32 s{SSTMP+1}, s{SSTMP+1}, 0")
        p(f"s_lshl_b32 s{SA}, s{SA}, 13\nv_lshl_add_u32 {v(va)}, {v(VL)}, 7, s{SA}\nv_min_u32 {v(va)}, {self.END}-{NAME}, {v(va)}")
        p(f"global_load_dword {v(vd)}, {v(va)}, s[{SSTMP}:{SSTMP+1}]")
        p.put(sk)
    def pf1(self, when=1):
        if self.o.get("pf", 2) == when:
            p = self.p; l = p.label("pf")
            p(f"s_cmp_eq_u32 s{SPFE}, 0\ns_cbranch_scc1 {l}\nglobal_load_dword {v(5)}, {v(4)}, {sp(SPFP)}")
            p.put(l)
    def tlb_warm(self):
        p = self.p
        ls = [p.label("tw") for _ in range(4)]
        p(f"v_lshlrev_b32 {v(6)}, 19, {v(VL)}\nv_mov_b32 {v(7)}, 0")
        p(f"s_cmp_eq_u32 s{SWV}, 1\ns_cbranch_scc1 {ls[0]}\ns_cmp_eq_u32 s{SWV}, 2\ns_cbranch_scc1 {ls[1]}\ns_cmp_eq_u32 s{SWV}, 3\ns_cbranch_scc1 {ls[2]}")
        p(f"buffer_load_dword {v(8)}, {v(6)}, {srd(SWS)}, 0 offen sc1\nglobal_load_ushort {v(9)}, {v(7)}, {sp(PGW)}\ns_branch {ls[3]}")
        p.put(ls[0]); p(f"buffer_load_dword {v(8)}, {v(6)}, {srd(SWSP)}, 0 offen\nglobal_load_ushort {v(9)}, {v(7)}, {sp(PBSP)}\nglobal_load_ushort {v(10)}, {v(7)}, {sp(PDSK)}\ns_branch {ls[3]}")
        p.put(ls[1]); p(f"buffer_load_dword {v(8)}, {v(6)}, {srd(SOUT)}, 0 offen sc1\nbuffer_load_dword {v(9)}, {v(6)}, {srd(SWOUT)}, 0 offen\ns_branch {ls[3]}")
        p.put(ls[2]); p(f"buffer_load_dword {v(8)}, {v(6)}, {srd(SCRE)}, 0 offen\nbuffer_load_dword {v(9)}, {v(6)}, {srd(SCIM)}, 0 offen")
        p.put(ls[3])
    def late_args(self):
        p = self.p
        if self.o.get("tlb", 1):
            self.tlb_warm()
            p(f"s_load_dword s{ST_T}, {sp(SWS)}, {EPOCH}")
            return
        for (r, off) in [(SWSP, 88), (SCRE, 40), (SCIM, 48), (SWOUT, 104), (SOUT, 120), (PDSK, 64), (PBSP, 96)]:
            p(f"s_load_dwordx2 {sp(r)}, s[0:1], {off}")
        p(f"s_load_dword s{ST_T}, {sp(SWS)}, {EPOCH}")
        for (r, n) in [(SWSP, 8388608), (SWS, WS_END), (SCRE, 524288), (SCIM, 524288), (SWOUT, 704512), (SOUT, 4194304)]:
            p(f"s_mov_b32 s{r+2}, {n}\ns_mov_b32 s{r+3}, 0x20000")
    def epoch2(self):
        p = self.p
        p.wait_lg_all()
        p(f"s_mul_i32 s{ST_T}, s{ST_T}, 0x9E3779B1\ns_add_u32 s{ST_T}, s{ST_T}, 0x7F4A7C15")

    def touch_wsp(self, va, vd, k, n):
        p = self.p
        if k == 0:
            p(f"s_lshr_b32 s{SB_}, s2, 3\ns_lshl_b32 s{SB_}, s{SB_}, 2\ns_add_u32 s{SB_}, s{SB_}, s{SWV}\ns_lshl_b32 s{SB_}, s{SB_}, 13")
            p(f"s_and_b32 s{SA}, s2, 7\ns_lshl_b32 s{SA}, s{SA}, 20\ns_add_u32 s{SPFP}, s{SA}, s{SB_}")
            p(f"v_cmp_gt_u32 vcc, {64//n}, {v(VL)}\nv_lshlrev_b32 {v(va)}, 7, {v(VL)}\ns_nop 0\nv_cndmask_b32 {v(va)}, {v(VOOB)}, {v(va)}, vcc")
        else: p(f"s_add_u32 s{SPFP}, s{SPFP}, {8192//n}")
        p.vmem(f"buffer_load_dword {v(vd)}, {v(va)}, {srd(SWSP)}, s{SPFP} offen {self.o.get('tmod', '')}")
    def ctouch(self, va, vd):
        p = self.p; l = p.label("ct")
        p(f"s_lshl_b32 s{SA}, s{SWV}, 8\ns_add_u32 s{SA}, s{SA}, s2\ns_cmp_ge_u32 s{SA}, 856\ns_cbranch_scc1 {l}")
        p(f"s_cmp_lt_u32 s{SA}, 256\ns_cselect_b64 {sp(SSTMP)}, {sp(SCRE)}, {sp(SCIM)}")
        p(f"s_sub_u32 s{SB_}, s{SA}, 512\ns_and_b32 s{SSPIN}, s{SA}, 255\ns_cmp_ge_u32 s{SA}, 512\ns_cselect_b64 {sp(SSTMP)}, {sp(SWOUT)}, {sp(SSTMP)}\ns_cselect_b32 s{SA}, s{SB_}, s{SSPIN}")
        p(f"s_lshl_b32 s{SA}, s{SA}, 11\nv_and_b32 {v(vd)}, 15, {v(VL)}\nv_lshlrev_b32 {v(vd)}, 7, {v(vd)}\nv_add_u32 {v(vd)}, s{SA}, {v(vd)}")
        p(f"global_load_dword {v(vd)}, {v(vd)}, {sp(SSTMP)}")
        p.put(l)
    def paced(self, valu, va, vd, t0, dt):
        if "ct" in self.o: valu.setdefault(self.o["ct"], []).append(lambda: self.ctouch(va, vd + 1 if vd != 205 else 4))
        n = self.o.get("tn", 4)
        if self.o.get("touch", 1) != 1: return
        for k in range(n):
            valu.setdefault(t0 + k * dt, []).append(lambda k=k: self.touch_wsp(va, vd, k, n))
    def touch_c(self, va, vd):
        p = self.p
        p(f"v_lshlrev_b32 {v(va)}, 7, {v(VL)}\ns_lshr_b32 s{SB_}, s2, 3\ns_lshl_b32 s{SB_}, s{SB_}, 2\ns_add_u32 s{SB_}, s{SB_}, s{SWV}\ns_lshl_b32 s{SA}, s{SB_}, 13")
        p.vmem(f"buffer_load_dword {v(vd)}, {v(va)}, {srd(SWOUT)}, s{SA} offen")
        p.vmem(f"buffer_load_dword {v(vd)}, {v(va)}, {srd(SCRE)}, s{SA} offen")
        p.vmem(f"buffer_load_dword {v(vd)}, {v(va)}, {srd(SCIM)}, s{SA} offen")
        p(f"s_add_u32 s{SA}, s{SA}, 524288")
        p.vmem(f"buffer_load_dword {v(vd)}, {v(va)}, {srd(SWOUT)}, s{SA} offen")
    GTR, GPL = 236, 238
    def g_early(self, t):
        p = self.p
        p(f"s_lshr_b32 s{SA}, s{SWV}, 1")
        self.unit_tr_addr(self.GTR, SREG, t, True, flip_sreg=SA)
        p(f"s_lshl_b32 s{SA}, s{SJ}, 13\ns_add_u32 s{SA}, s{SA}, {ZF}\ns_lshl_b32 s{SB_}, s{SWV}, 11\ns_add_u32 s{SB_}, s{SB_}, s{SA}")
        self.poll_addr(self.GPL, [(SB_, 16)])
        p(f"s_lshl_b32 s{SA}, s{STB}, 8\ns_add_u32 s{SA}, s{SA}, {ZF}")
        p(f"v_bfe_u32 {v(t)}, {v(VL)}, 1, 3\nv_lshlrev_b32 {v(t)}, 13, {v(t)}\nv_and_b32 {v(t+1)}, 1, {v(VL)}\nv_lshl_add_u32 {v(t)}, {v(t+1)}, 7, {v(t)}\nv_add_u32 {v(t)}, s{SA}, {v(t)}")
        p(f"s_mov_b32 vcc_lo, 0xffff0000\ns_mov_b32 vcc_hi, 0\nv_cndmask_b32 {v(self.GPL)}, {v(self.GPL)}, {v(t)}, vcc")
        p(f"s_lshl_b32 s{SA}, s{SJ}, 6\ns_lshl_b32 s{SB_}, s{STB}, 1\ns_add_u32 s{SA}, s{SA}, s{SB_}\ns_and_b32 s{SB_}, s{SWV}, 1\ns_add_u32 s{SZI}, s{SA}, s{SB_}")
        p(f"s_lshl_b32 s{SA}, s{SZI}, 7\ns_add_u32 s{SA}, s{SA}, {Z1F}\nv_writelane_b32 {v(self.GPL)}, s{SA}, 32")
        p(f"s_lshl_b32 s{SA}, s{SJ}, 6\ns_lshl_b32 s{SB_}, s{SWV}, 4\ns_add_u32 s{SA}, s{SA}, s{SB_}\ns_mul_i32 s{SGB}, s{SA}, 5632\ns_add_u32 s{SGB}, s{SGB}, {Z2N}")
    def g_poll_issue(self):
        self.gp = self.p.vmem(f"buffer_load_dword {v(self.GPL+1)}, {v(self.GPL)}, {srd(SWS)}, 0 offen sc1")

    def phase_z(self):
        p = self.p; o = self.o
        ACC, FA, FB, XR, WR, XD, WD, T = 16, 64, 88, 96, 100, 104, 108, 112
        p.c("==== phase A: Z ====")
        self.plain_dma_addr(XD, 1024, T)
        p(f"s_lshl_b32 s{SXB}, s{SRB}, 17\ns_lshl_b32 s{SA}, s{SWV}, 15\ns_add_u32 s{SXB}, s{SXB}, s{SA}")
        p(f"s_mul_i32 s{SREG}, s{SWV}, 40960")
        tick = {}
        def xdma(st, cb=None):
            return [((SREG, (st & 3) * 4096) if i == 0 else None, (SXB, st * 128) if i == 0 else None,
                     f"buffer_load_dwordx4 {v(XD+i)}, {srd(SX)}, s{SDO} offen offset:{i*1024} lds", cb) for i in range(4)]
        def wdma(st, cb=None):
            return [((SWL, (st & 3) * 40960) if i == 0 else None, (SW1B, st * 64 * 2752) if i == 0 else None,
                     f"buffer_load_dwordx4 {v(WD+i)}, {srd(SW1)}, s{SDO} offen offset:{i*1024} lds", cb) for i in range(3)]
        def dma(st):
            def cb(t): tick[st] = t
            return self.dseq(wdma(st) + xdma(st, cb))
        self.w_dma_addr(WD, T, 1376)
        p(f"s_mul_i32 s{SW1B}, s{SWV}, {16*2752}\ns_mul_i32 s{SA}, s{SCOL}, 176\ns_add_u32 s{SW1B}, s{SW1B}, s{SA}")
        p(f"s_mul_i32 s{SWL}, s{SWV}, 3072\ns_add_u32 s{SWL}, s{SWL}, 16384\ns_mov_b32 s{SW1+2}, {512*2752}")
        p.wait_lg_all()
        p(f"s_mov_b64 {sp(SW1)}, {sp(PWIN)}")
        npro = o.get("npro", 3)
        self.code_prefetch(170, 171)
        self.pf1()
        self.run(dma(0))
        self.late_args()
        def setup():
            self.plain_read_addr(XR, SREG, T)
            self.w_tr_addr(WR, 16384, T)
            self.p(f"v_add_u32 {v(WR+1)}, 81920, {v(WR)}")
            self.wsp_setup(T)
            self.p(f"s_add_u32 s{SPB}, s{SREG}, 32768\ns_mov_b32 s{SPB+1}, s{SREG}\ns_add_u32 s{SPB+2}, s{SREG}, 8192\ns_add_u32 s{SPB+3}, s{SREG}, 16384\ns_add_u32 s{SPB+4}, s{SREG}, 24576")
            self.valid_masks()
        d = []
        for st in range(1, npro): d += dma(st)
        self.run(merge(self.cap(setup), d))
        self.pf1(2)
        self.epoch2()
        self.stamp(0)
        rt = {}
        def reads(n):
            st, ks = n // 4, n % 4; sl = st & 3; s = n & 1; ops = []
            def rb(): rt[(n, 'b')] = p.lds(f"ds_read_b128 {v(FB+4*s,4)}, {v(XR+ks)} offset:{sl*4096}")
            ops.append(rb)
            for mt in range(3):
                for a in range(2):
                    def ra(mt=mt, a=a):
                        rt[(n, mt)] = p.lds(f"ds_read_b64_tr_b16 {v(FA+12*s+4*mt+2*a,2)}, {v(WR+(sl>>1))} offset:{(sl&1)*40960+ks*3072+a*768+mt*64}")
                    ops.append(ra)
            return ops
        def mfmas(n):
            s = n & 1; ops = []
            for mt in range(3):
                def m(mt=mt):
                    p.wait(lg=rt[(n, mt)])
                    c = "0" if n == 0 else v(ACC + 16 * mt, 16)
                    p(f"{MF} {v(ACC+16*mt,16)}, {v(FA+12*s+4*mt,4)}, {v(FB+4*s,4)}, {c}")
                ops.append(m)
            return ops
        GX, GW, GU, GS, GT = 128, 144, 148, 156, 160
        gt = {}
        def gload():
            p(f"s_lshl_b32 s{SE}, s{SRB}, 2\ns_add_u32 s{SE}, s{SE}, s{SWV}\ns_lshl_b32 s{SE}, s{SE}, 3\ns_add_u32 s{SE}, s{SE}, s{SCOL}\ns_lshl_b32 s{SA}, s{SE}, 12")
            for r in range(4): p.vmem(f"buffer_load_dwordx4 {v(GX+4*r,4)}, {v(VL16)}, {srd(SX)}, s{SA} offen offset:{r*1024}")
            gt['t'] = p.vmem(f"global_load_dwordx4 {v(GW,4)}, {v(VL16)}, {sp(PGW)}")
        def gstore():
            p(f"s_lshl_b32 s{SA}, s{SE}, 4\ns_add_u32 s{SA}, s{SA}, {GATE}")
            p.vmem(f"buffer_store_dwordx4 {v(GS,4)}, {v(GT)}, {srd(SWS)}, s{SA} offen sc1")
        gops = [lambda: p.wait(vm=gt['t'])] + self.cap(lambda: self.gate(GX, GW, GU, GS, GT)) + [gstore]
        valu = {28: [gload]}
        def touch_u():
            p(f"v_lshlrev_b32 {v(170)}, 7, {v(VL)}\ns_lshr_b32 s{SB_}, s2, 3\ns_lshl_b32 s{SB_}, s{SB_}, 2\ns_add_u32 s{SB_}, s{SB_}, s{SWV}\ns_lshl_b32 s{SB_}, s{SB_}, 13")
            p(f"s_and_b32 s{SA}, s2, 7\ns_lshl_b32 s{SA}, s{SA}, 20\ns_add_u32 s{SA}, s{SA}, s{SB_}\ns_add_u32 s{SA}, s{SA}, {1<<19}")
            p.vmem(f"buffer_load_dword {v(171)}, {v(170)}, {srd(SWSP)}, s{SA} offen")
        if o.get("touchu"): valu[o["touchu"]] = [touch_u]
        def warm():
            p(f"v_lshlrev_b32 {v(170)}, 18, {v(VL)}\nv_lshlrev_b32 {v(172)}, 16, {v(VL)}\nv_lshlrev_b32 {v(173)}, 13, {v(VL)}")
            ls = [p.label("wm") for _ in range(4)]
            p(f"s_cmp_eq_u32 s{SWV}, 1\ns_cbranch_scc1 {ls[0]}\ns_cmp_eq_u32 s{SWV}, 2\ns_cbranch_scc1 {ls[1]}\ns_cmp_eq_u32 s{SWV}, 3\ns_cbranch_scc1 {ls[2]}")
            p(f"buffer_load_dword {v(171)}, {v(170)}, {srd(SWS)}, 0 offen sc1\ns_branch {ls[3]}")
            p.put(ls[0]); p(f"buffer_load_dword {v(171)}, {v(172)}, {srd(SOUT)}, 0 offen sc1\ns_branch {ls[3]}")
            p.put(ls[1]); p(f"buffer_load_dword {v(171)}, {v(173)}, {srd(SCRE)}, 0 offen\nbuffer_load_dword {v(171)}, {v(173)}, {srd(SCIM)}, 0 offen\ns_branch {ls[3]}")
            p.put(ls[2]); p(f"v_lshlrev_b32 {v(173)}, 14, {v(VL)}\nbuffer_load_dword {v(171)}, {v(173)}, {srd(SWOUT)}, 0 offen")
            p.put(ls[3])
        if o.get("warm"): valu[31] = [warm]
        def ztouch(part):
            if part == 0:
                p(f"v_lshlrev_b32 {v(174)}, 7, {v(VL)}\ns_lshr_b32 s{SB_}, s2, 3\ns_lshl_b32 s{SB_}, s{SB_}, 2\ns_add_u32 s{SB_}, s{SB_}, s{SWV}")
                p(f"s_and_b32 s{SA}, s2, 7\ns_lshl_b32 s{SPFP+1}, s{SB_}, 3\ns_add_u32 s{SPFP+1}, s{SPFP+1}, s{SA}")
                p(f"s_lshl_b32 s{SA}, s{SA}, 20\ns_lshl_b32 s{SB_}, s{SB_}, 13\ns_add_u32 s{SPFP}, s{SA}, s{SB_}")
                p.vmem(f"buffer_load_dword {v(175)}, {v(174)}, {srd(SWSP)}, s{SPFP} offen")
            if part == 1:
                p(f"s_add_u32 s{SPFP}, s{SPFP}, {1<<19}")
                p.vmem(f"buffer_load_dword {v(175)}, {v(174)}, {srd(SWSP)}, s{SPFP} offen")
            if part == 2:
                l = p.label("zt")
                p(f"s_cmp_ge_u32 s{SPFP+1}, 428\ns_cbranch_scc1 {l}")
                p(f"s_cmp_lt_u32 s{SPFP+1}, 128\ns_cselect_b64 {sp(SSTMP)}, {sp(SCRE)}, {sp(SCIM)}\ns_and_b32 s{SA}, s{SPFP+1}, 127")
                p(f"s_sub_u32 s{SB_}, s{SPFP+1}, 256\ns_cmp_ge_u32 s{SPFP+1}, 256\ns_cselect_b64 {sp(SSTMP)}, {sp(SWOUT)}, {sp(SSTMP)}\ns_cselect_b32 s{SA}, s{SB_}, s{SA}")
                p(f"s_lshl_b32 s{SA}, s{SA}, 12\nv_and_b32 {v(174)}, 4095, {v(174)}\nv_add_u32 {v(174)}, s{SA}, {v(174)}")
                p(f"global_load_dword {v(175)}, {v(174)}, {sp(SSTMP)}")
                p.put(l)
        if o.get("touch", 1) == 2:
            for k in range(3): valu.setdefault(o.get(f"zs{k}", [0, 0, 0][k]), []).append(lambda k=k: ztouch(k))
        else: self.paced(valu, 174, 175, o.get("zt0", 6), o.get("zdt", 6))
        self.gemm_loop(4, reads, mfmas, dma, tick, 2, npro, {o.get('ze0', 5): lambda: self.wsp_dma(0), o.get('ze1', 6): lambda: self.wsp_dma(1)}, valu)
        self.stamp(1)
        MA, MB = SK + 2, SK + 4
        GR, VLO = 72, 80
        def seg1b():
            p = self.p
            S0, S1, MU = 64, 66, 68
            p(f"v_pk_add_f32 {v(S0,2)}, {v(ACC,2)}, {v(ACC+2,2)}\nv_pk_add_f32 {v(S1,2)}, {v(ACC+4,2)}, {v(ACC+6,2)}")
            for i in range(4, 16):
                s = S0 if i % 2 == 0 else S1
                p(f"v_pk_add_f32 {v(s,2)}, {v(s,2)}, {v(ACC+2*i,2)}")
            for (m, b) in [(MA, 16), (MB, 20)]:
                p(f"s_mov_b64 exec, {sp(m)}")
                for i in range(b, b + 4):
                    s = S0 if i % 2 == 0 else S1
                    p(f"v_pk_add_f32 {v(s,2)}, {v(s,2)}, {v(ACC+2*i,2)}")
            p("s_mov_b64 exec, -1")
            p(f"v_pk_add_f32 {v(S0,2)}, {v(S0,2)}, {v(S1,2)}\nv_add_f32 {v(GR)}, {v(S0)}, {v(S0+1)}")
            p(f"v_mov_b32 {v(S0)}, {v(GR)}\nv_mov_b32 {v(GR+1)}, s{ST_T}\nv_mov_b32 {v(GR+3)}, s{ST_T}\nv_permlane32_swap_b32 {v(GR)}, {v(S0)}\nv_add_f32 {v(GR)}, {v(GR)}, {v(S0)}")
            p(f"v_mul_f32 {v(MU)}, s{SK+6}, {v(GR)}")
            D0, D1 = 76, 78
            def m2(i, first=False):
                d = D0 if i % 2 == 0 else D1; s = S0 if i % 2 == 0 else S1
                p(f"v_pk_add_f32 {v(d,2)}, {v(ACC+2*i,2)}, {v(MU,2)} op_sel_hi:[1,0] neg_lo:[0,1] neg_hi:[0,1]")
                if first: p(f"v_pk_mul_f32 {v(s,2)}, {v(d,2)}, {v(d,2)}")
                else: p(f"v_pk_fma_f32 {v(s,2)}, {v(d,2)}, {v(d,2)}, {v(s,2)}")
            for i in range(16): m2(i, i < 2)
            for (m, b) in [(MA, 16), (MB, 20)]:
                p(f"s_mov_b64 exec, {sp(m)}")
                for i in range(b, b + 4): m2(i)
            p("s_mov_b64 exec, -1")
            p(f"v_pk_add_f32 {v(S0,2)}, {v(S0,2)}, {v(S1,2)}\nv_add_f32 {v(GR+2)}, {v(S0)}, {v(S0+1)}")
            p(f"v_mov_b32 {v(S0)}, {v(GR+2)}\nv_cmp_gt_u32 vcc, 32, {v(VL)}")
            p(f"s_lshl_b32 s{SC}, s{SRB}, 2\ns_add_u32 s{SC}, s{SC}, s{SWV}")
            p(f"v_permlane32_swap_b32 {v(GR+2)}, {v(S0)}\nv_cndmask_b32 {v(VLO)}, {v(VOOB)}, {v(VL16)}, vcc\nv_add_f32 {v(GR+2)}, {v(GR+2)}, {v(S0)}")
            p(f"s_lshl_b32 s{SD}, s{SC}, 12\ns_add_u32 s{SD}, s{SD}, {ST}\ns_lshl_b32 s{SA}, s{SCOL}, 9\ns_add_u32 s{SA}, s{SA}, s{SD}")
        seg1 = self.cap(lambda: self.gelu_many([ACC + 2 * i for i in range(24)], [64, 68, 72, 76]))
        h = len(seg1) // 5
        f1 = self.wsp_dma(2) + [lambda: p("s_barrier")]
        f2 = self.wsp_dma(3) + self.wsp_dma(4)
        self.run(merge(seg1[:h], f1) + merge(seg1[h:], f2))
        seg1b()
        p.vmem(f"buffer_store_dwordx4 {v(GR,4)}, {v(VLO)}, {srd(SWS)}, s{SA} offen sc1")
        self.stamp(2)
        lgw = lambda: p.wait(lg=p.lg - 1)
        Q0, Q1, QA, QB = 112, 113, 114, 115
        MN, VR, N3, I3, TM = 80, 81, 82, 83, 84
        def misc():
            p = self.p
            self.g_early(120)
            p(f"v_lshrrev_b32 {v(Q1)}, 5, {v(VL)}\nv_lshlrev_b32 {v(Q1)}, 6, {v(Q1)}\nv_xor_b32 {v(Q0)}, {v(VL16)}, {v(Q1)}\nv_xor_b32 {v(Q1)}, 128, {v(Q0)}")
            p(f"v_cndmask_b32 {v(QA)}, {v(VOOB)}, {v(Q0)}, {sp(MA)}\nv_cndmask_b32 {v(QB)}, {v(VOOB)}, {v(Q1)}, {sp(MB)}")
            p(f"s_lshl_b32 s{SA}, s{SCOL}, 6\ns_add_u32 s{SC}, s{SA}, s{SC}\ns_mul_i32 s{SE}, s{SC}, 5632")
            self.flag_prep(118)
            p(f"v_cmp_gt_u32 vcc, 32, {v(VL)}\nv_mov_b32 {v(N3)}, {f2u(72.0)}\nv_mov_b32 {v(TM)}, {f2u(88.0)}\nv_mov_b32 {v(I3)}, {f2u(1/72)}\nv_mov_b32 {v(TM+1)}, {f2u(1/88)}")
            p(f"v_cndmask_b32 {v(N3)}, {v(N3)}, {v(TM)}, vcc\nv_cndmask_b32 {v(I3)}, {v(I3)}, {v(TM+1)}, vcc")
        za = o.get("za", 1)
        f = self.wsp_read(0) + self.wsp_read(1) + [lgw]
        for st in range(5, 5 + za): f += self.wsp_dma(st)
        self.run(merge(gops + self.cap(misc), f))
        self.stamp(3)
        SG = 64
        for q in range(4):
            ts = p.vmem(f"buffer_load_dwordx4 {v(SG+4*q,4)}, {v(VL16)}, {srd(SWS)}, s{SD} offen offset:{q*1024} sc1")
        for st in range(5 + za, 7): self.run(self.wsp_dma(st))
        l = p.label("sp"); dl = p.label("sd")
        p.wait(vm=ts)
        p(f"s_mov_b32 s{SSPIN}, 0")
        p.put(l)
        X0 = 116
        p(f"v_xor_b32 {v(MN)}, s{ST_T}, {v(SG+1)}\nv_xor_b32 {v(VR)}, s{ST_T}, {v(SG+3)}")
        for r in [5, 9, 13]:
            p(f"v_xor_b32 {v(X0)}, s{ST_T}, {v(SG+r)}\nv_xor_b32 {v(X0+1)}, s{ST_T}, {v(SG+r+2)}\nv_or3_b32 {v(MN)}, {v(MN)}, {v(X0)}, {v(X0+1)}")
        p(f"v_or_b32 {v(MN)}, {v(MN)}, {v(VR)}")
        p(f"v_cmp_ne_u32 vcc, 0, {v(MN)}\ns_cmp_eq_u64 vcc, 0\ns_cbranch_scc1 {dl}")
        for q in range(4):
            p(f"buffer_load_dwordx4 {v(SG+4*q,4)}, {v(VL16)}, {srd(SWS)}, s{SD} offen offset:{q*1024} sc1")
        p("s_waitcnt vmcnt(0)")
        p(f"s_add_u32 s{SSPIN}, s{SSPIN}, 1\ns_cmp_lt_u32 s{SSPIN}, {SPIN}\ns_cbranch_scc1 {l}")
        p.put(dl)
        self.stamp(4)
        p(f"v_add_f32 {v(MN)}, {v(SG)}, {v(SG+4)}\nv_add_f32 {v(TM+2)}, {v(SG+8)}, {v(SG+12)}\nv_add_f32 {v(MN)}, {v(MN)}, {v(TM+2)}")
        p(f"v_mov_b32 {v(TM+3)}, {v(MN)}\nv_add_f32 {v(VR)}, {v(SG+2)}, {v(SG+6)}\nv_add_f32 {v(TM+2)}, {v(SG+10)}, {v(SG+14)}")
        p(f"v_permlane32_swap_b32 {v(MN)}, {v(TM+3)}\nv_add_f32 {v(VR)}, {v(VR)}, {v(TM+2)}\nv_add_f32 {v(MN)}, {v(MN)}, {v(TM+3)}")
        p(f"v_mul_f32 {v(MN)}, {f2u(1/688)}, {v(MN)}")
        for q in range(4):
            n_, i_ = (TM, TM + 1) if q < 3 else (N3, I3)
            p(f"v_fma_f32 {v(TM+2)}, {v(SG+4*q)}, {v(i_)}, -{v(MN)}\nv_mul_f32 {v(TM+2)}, {v(TM+2)}, {v(TM+2)}\nv_fmac_f32 {v(VR)}, {v(TM+2)}, {v(n_)}")
        self.xhalf_sum(VR, TM)
        p(f"v_mov_b32 {v(TM)}, {f2u(1e-5)}\nv_fmac_f32 {v(TM)}, {f2u(1/688)}, {v(VR)}\nv_rsq_f32 {v(VR)}, {v(TM)}")
        p(f"s_add_u32 s{SA}, s{SE}, {Z2N}\ns_add_u32 s{SB_}, s{SA}, 4096")
        p(f"v_mul_f32 {v(MN)}, {v(MN)}, {v(VR)}")
        ZP = 88
        for u in range(6):
            mt, q = u >> 1, u & 1
            R4 = range(4 * u, 4 * u + 4)
            for i in R4: p(f"v_pk_fma_f32 {v(ACC+2*i,2)}, {v(ACC+2*i,2)}, {v(MN,2)}, {v(MN,2)} op_sel:[0,1,0] op_sel_hi:[1,1,0] neg_lo:[0,0,1] neg_hi:[0,0,1]")
            for i in R4: p(f"v_cvt_pk_bf16_f32 {v(ZP+i)}, {v(ACC+2*i)}, {v(ACC+2*i+1)}")
            r = v(ZP + 4 * u, 4)
            if mt < 2: t = p.vmem(f"buffer_store_dwordx4 {r}, {v(Q0+q)}, {srd(SWS)}, s{SA} offen offset:{mt*2048+q*1024} sc1")
            else: t = p.vmem(f"buffer_store_dwordx4 {r}, {v(QA+q)}, {srd(SWS)}, s{SB_} offen offset:{q*1024} sc1")
        p(f"s_lshl_b32 s{SE}, s{SC}, 7\ns_add_u32 s{SE}, s{SE}, {ZF}")
        for st in range(2, 5): self.run(self.wsp_read(st))
        p.wait(vm=t)
        self.flag(SE, 118)
        self.run([lgw] + self.wsp_dma(7))
        if o.get("touchc", 0): self.touch_c(170, 171)
        for st in range(5, 8): self.run(self.wsp_read(st))
        self.g_poll_issue()
        p(f"s_mov_b32 s{SLATE}, 0")
        self.stamp(5)
        p(f"s_branch {self.LG}")

    def phase_u(self):
        p = self.p; o = self.o
        ACC, ZA, FA, FB, FW, FX = 16, 80, 128, 144, 160, 184
        XR, BR, X1R, WR, XD, BD, WD, T = 192, 196, 200, 204, 206, 210, 214, 60
        p.c("==== phase A: U ====")
        p.put(self.LU)
        WT, WP = SK + 8, SK + 9
        p(f"v_lshrrev_b32 {v(T)}, 5, {v(VL)}\nv_lshlrev_b32 {v(T)}, 15, {v(T)}")
        p(f"v_bfe_u32 {v(T+1)}, {v(VL)}, 3, 1\nv_lshl_add_u32 {v(T)}, {v(T+1)}, 14, {v(T)}")
        p(f"v_bfe_u32 {v(T+1)}, {v(VL)}, 4, 1\nv_lshl_add_u32 {v(T)}, {v(T+1)}, 10, {v(T)}")
        self.plain_dma_addr2(XD, T, T + 1, 2048)
        p(f"s_lshr_b32 s{WP}, s{SWV}, 1\ns_and_b32 s{WT}, s{SWV}, 1\ns_lshl_b32 s{SA}, s{WT}, 5")
        for i in range(4): p(f"v_xor_b32 {v(XD+i)}, s{SA}, {v(XD+i)}")
        self.plain_dma_addr(BD, 1024, T)
        self.w_dma_addr(WD, T, 0)
        p(f"s_lshl_b32 s{SXB}, s{SRB}, 17\ns_lshl_b32 s{SD}, s{WP}, 16\ns_add_u32 s{SXB}, s{SXB}, s{SD}\ns_lshl_b32 s{SD}, s{WT}, 13\ns_add_u32 s{SXB}, s{SXB}, s{SD}")
        p(f"s_lshl_b32 s{SW1B}, s{SCOL}, 16\ns_lshl_b32 s{SD}, s{WT}, 15\ns_add_u32 s{SW1B}, s{SW1B}, s{SD}")
        p(f"s_lshl_b32 s{SXL}, s{SWV}, 12\ns_mov_b32 s{SW1+2}, 524288")
        SWIB = SCB
        p(f"s_mul_i32 s{SWIB}, s{SWV}, {16*2752}\ns_mul_i32 s{SA}, s{SCOL}, 176\ns_add_u32 s{SWIB}, s{SWIB}, s{SA}")
        p(f"s_mul_i32 s{SWL}, s{SWV}, 3072\ns_add_u32 s{SWL}, s{SWL}, 98304\ns_mov_b32 s{PWIN+2}, {512*2752}\ns_mov_b32 s{PWIN+3}, 0x20000")
        PR = 228
        p(f"s_lshl_b32 s{SD}, s{SRB}, 1\ns_add_u32 s{SD}, s{SD}, s{WT}")
        p(f"s_lshl_b32 s{SA}, s{SCOL}, 1\ns_add_u32 s{SA}, s{SA}, s{WP}")
        p(f"s_lshl_b32 s{SE}, s{SD}, 4\ns_add_u32 s{SE}, s{SE}, s{SA}")
        p(f"s_lshl_b32 s{SA}, s{SA}, 5\nv_and_b32 {v(T)}, 31, {v(VL)}\nv_add_lshl_u32 {v(T)}, {v(T)}, s{SA}, 1")
        p.wait_lg_all()
        p(f"s_cmp_eq_u32 s{WP}, 0\ns_cselect_b64 {sp(SW1)}, {sp(PBRE)}, {sp(PBIM)}")
        tick = {}
        def dma(st):
            sl = st % 3; items = []
            def cb(t): tick[st] = t
            for i in range(3):
                items.append(((SWL, sl * 12288) if i == 0 else None, (SWIB, st * 64 * 2752) if i == 0 else None,
                              f"buffer_load_dwordx4 {v(WD+i)}, {srd(PWIN)}, s{SDO} offen offset:{i*1024} lds", None))
            for (vd, sr, sb, lb) in [(XD, SX, SXB, 0), (BD, SW1, SW1B, 49152)]:
                for i in range(4):
                    items.append(((SXL, lb + sl * 16384) if i == 0 else None, (sb, st * 128) if i == 0 else None,
                                  f"buffer_load_dwordx4 {v(vd+i)}, {srd(sr)}, s{SDO} offen offset:{i*1024} lds", cb))
            return self.dseq(items)
        self.pf1()
        self.run(dma(0))
        p.vmem(f"global_load_ushort {v(PR)}, {v(T)}, {sp(PLRE)}")
        p.vmem(f"global_load_ushort {v(PR+1)}, {v(T)}, {sp(PLIM)}")
        tp = p.vmem(f"global_load_ushort {v(PR+2)}, {v(T)}, {sp(PLDT)}")
        npro = o.get("npro_u", 2)
        self.late_args()
        def setup():
            p = self.p
            p(f"s_mul_i32 s{SREG}, s{SWV}, 40960\ns_lshl_b32 s{SA}, s{WT}, 13")
            self.plain_read_addr(XR, SA, T)
            p(f"s_lshl_b32 s{SA}, s{WP}, 12\ns_add_u32 s{SA}, s{SA}, 49152")
            self.plain_read_addr(BR, SA, T)
            self.w_tr_addr(WR, 98304, T)
            p(f"v_bfe_u32 {v(T)}, {v(VL)}, 3, 1\nv_lshlrev_b32 {v(T+1)}, 12, {v(T)}\nv_xor_b32 {v(T)}, s{WT}, {v(T)}\nv_lshlrev_b32 {v(T)}, 1, {v(T)}")
            p(f"v_bfe_u32 {v(T+2)}, {v(VL)}, 1, 2\nv_lshl_add_u32 {v(T+1)}, {v(T+2)}, 10, {v(T+1)}")
            p(f"v_and_b32 {v(T+2)}, 1, {v(T+2)}\nv_lshl_add_u32 {v(T)}, {v(T+2)}, 2, {v(T)}")
            p(f"v_and_b32 {v(T+2)}, 1, {v(VL)}\nv_lshl_add_u32 {v(T+1)}, {v(T+2)}, 8, {v(T+1)}\nv_or_b32 {v(T)}, {v(T)}, {v(T+2)}")
            p(f"v_bfe_u32 {v(T+2)}, {v(VL)}, 4, 1\nv_lshl_add_u32 {v(T+1)}, {v(T+2)}, 7, {v(T+1)}")
            p(f"s_lshl_b32 s{SA}, s{WP}, 13\ns_lshl_b32 s{SB_}, s{WT}, 9\ns_add_u32 s{SA}, s{SA}, s{SB_}\nv_add_u32 {v(T+1)}, s{SA}, {v(T+1)}")
            p(f"v_lshrrev_b32 {v(T+2)}, 5, {v(VL)}\nv_xor_b32 {v(T)}, {v(T)}, {v(T+2)}\nv_lshlrev_b32 {v(T)}, 4, {v(T)}")
            for ks in range(4): p(f"v_xor_b32 {v(X1R+ks)}, {32*ks}, {v(T)}\nv_add_u32 {v(X1R+ks)}, {v(X1R+ks)}, {v(T+1)}")
            self.wsp_setup(T)
            p(f"s_lshl_b32 s{SPB+1}, s{WT}, 13\ns_mul_i32 s{SA}, s{WP}, 49152\ns_add_u32 s{SPB+1}, s{SPB+1}, s{SA}\ns_add_u32 s{SPB}, s{SPB+1}, 32768\ns_add_u32 s{SPB+2}, s{SPB+1}, 16384")
            p(f"s_lshl_b32 s{SA}, s{SWV}, 13\ns_add_u32 s{SPB+3}, s{SA}, {13*8192}\ns_add_u32 s{SPB+4}, s{SA}, {17*8192}")
            p.atom(f"s_cmp_eq_u32 s{SWV}, 3\ns_cselect_b32 s{SPB+4}, {12*8192}, s{SPB+4}")
            self.valid_masks()
        self.run(merge(self.cap(setup), dma(1) + (dma(2) if npro > 2 else [])))
        LB, CF, L16, L128, L256, LQ0, LQ1 = 218, 220, 222, 224, 226, 228, 230
        X0, X1, X2, X3 = 232, 233, 234, 235
        L32, L64 = 236, 238
        def csq(d, s):
            p = self.p
            p(f"v_mul_f32 {v(X0)}, {v(s+1)}, {v(s+1)}\nv_add_f32 {v(X1)}, {v(s)}, {v(s)}")
            p(f"v_mul_f32 {v(d+1)}, {v(X1)}, {v(s+1)}\nv_fma_f32 {v(d)}, {v(s)}, {v(s)}, -{v(X0)}")
        def cmul(d, a, b):
            p = self.p
            p(f"v_mul_f32 {v(X0)}, {v(a+1)}, {v(b+1)}\nv_mul_f32 {v(X1)}, {v(a+1)}, {v(b)}")
            p(f"v_fma_f32 {v(X0)}, {v(a)}, {v(b)}, -{v(X0)}\nv_fma_f32 {v(d+1)}, {v(a)}, {v(b+1)}, {v(X1)}\nv_mov_b32 {v(d)}, {v(X0)}")
        def cfma(d, a, b, c):
            p = self.p
            p(f"v_fma_f32 {v(X0)}, {v(a)}, {v(b)}, {v(c)}\nv_fma_f32 {v(X1)}, {v(a)}, {v(b+1)}, {v(c+1)}")
            p(f"v_fma_f32 {v(X0)}, -{v(a+1)}, {v(b+1)}, {v(X0)}\nv_fma_f32 {v(d+1)}, {v(a+1)}, {v(b)}, {v(X1)}\nv_mov_b32 {v(d)}, {v(X0)}")
        def params():
            p = self.p
            p(f"v_lshlrev_b32 {v(PR)}, 16, {v(PR)}\nv_lshlrev_b32 {v(PR+1)}, 16, {v(PR+1)}\nv_lshlrev_b32 {v(PR+2)}, 16, {v(PR+2)}")
            p(f"v_mul_f32 {v(X0)}, {f2u(LOG2E)}, {v(PR+2)}\nv_exp_f32 {v(X0)}, {v(X0)}"); self.rnd(X0, X0)
            p(f"v_mul_f32 {v(X1)}, {v(X0)}, {v(PR)}\nv_mul_f32 {v(X2)}, {v(X0)}, {v(PR+1)}")
            p(f"v_mul_f32 {v(X1)}, {f2u(LOG2E)}, {v(X1)}\nv_exp_f32 {v(X1)}, {v(X1)}")
            p(f"v_mul_f32 {v(X2)}, {f2u(1/(2*math.pi))}, {v(X2)}\nv_fract_f32 {v(X2)}, {v(X2)}")
            p(f"v_cos_f32 {v(X3)}, {v(X2)}\nv_sin_f32 {v(X2)}, {v(X2)}")
            p(f"v_mul_f32 {v(X0)}, {v(PR)}, {v(PR)}")
            p(f"v_mul_f32 {v(LB)}, {v(X1)}, {v(X3)}\nv_mul_f32 {v(LB+1)}, {v(X1)}, {v(X2)}")
            p(f"v_fmac_f32 {v(X0)}, {v(PR+1)}, {v(PR+1)}\nv_rcp_f32 {v(X0)}, {v(X0)}")
            p(f"v_add_f32 {v(X1)}, -1.0, {v(LB)}\nv_add_f32 {v(X0)}, {v(X0)}, {v(X0)}")
            p(f"v_mul_f32 {v(X2)}, {v(X1)}, {v(PR)}\nv_fmac_f32 {v(X2)}, {v(LB+1)}, {v(PR+1)}\nv_mul_f32 {v(CF)}, {v(X2)}, {v(X0)}")
            p(f"v_mul_f32 {v(X2)}, {v(LB+1)}, {v(PR)}\nv_fma_f32 {v(X2)}, -{v(X1)}, {v(PR+1)}, {v(X2)}\nv_mul_f32 {v(CF+1)}, {v(X2)}, {v(X0)}")
            csq(L16, LB); csq(L16, L16); csq(L16, L16); csq(L16, L16)
            csq(L32, L16); csq(L64, L32); csq(L128, L64); csq(L256, L128)
            p.atom(f"s_cmp_eq_u32 s{WT}, 0\ns_cselect_b64 vcc, -1, 0")
            p(f"v_cndmask_b32 {v(L64)}, {v(L64)}, 1.0, vcc\nv_cndmask_b32 {v(L64+1)}, {v(L64+1)}, 0, vcc")
            p(f"v_cmp_gt_u32 vcc, 32, {v(VL)}\nv_cndmask_b32 {v(LQ0)}, {v(L32)}, 1.0, vcc\nv_cndmask_b32 {v(LQ0+1)}, {v(L32+1)}, 0, vcc")
            cmul(LQ0, LQ0, L64); cmul(LQ1, LQ0, L16)
        self.pf1(2)
        self.epoch2()
        self.stamp(0)
        pops = [lambda: p.wait(vm=tp)] + self.cap(params)
        valu = {}
        q = (len(pops) + 15) // 16
        for i in range(16): valu[8 + i] = pops[i * q:(i + 1) * q]
        self.paced(valu, 217, 205, o.get("ut0", 4), o.get("udt", 4))
        rt = {}
        def reads(n):
            st, ks = n // 4, n % 4; sl = st % 3; s = n & 1; ops = []
            for k in range(2):
                def ra(k=k): rt[(n, 'a', k)] = p.lds(f"ds_read_b128 {v(FA+8*s+4*k,4)}, {v(XR+(ks^k))} offset:{sl*16384+k*4096}")
                def rb(k=k): rt[(n, 'b', k)] = p.lds(f"ds_read_b128 {v(FB+8*s+4*k,4)}, {v(BR+ks)} offset:{sl*16384+k*8192}")
                ops += [ra, rb]
            def rx(): p.lds(f"ds_read_b128 {v(FX+4*s,4)}, {v(X1R+ks)} offset:{sl*16384}")
            ops.append(rx)
            for mt in range(3):
                for a in range(2):
                    def rw(mt=mt, a=a):
                        rt[(n, 'w', mt)] = p.lds(f"ds_read_b64_tr_b16 {v(FW+12*s+4*mt+2*a,2)}, {v(WR)} offset:{sl*12288+ks*3072+a*768+mt*64}")
                    ops.append(rw)
            return ops
        def mfmas(n):
            s = n & 1; ops = []
            for (mt, cp) in [(0, 0), (1, 0), (1, 1), (0, 1)]:
                def m(mt=mt, cp=cp):
                    if (mt, cp) == (0, 0): p.wait(lg=rt[(n, 'b', 1)])
                    d = v(ACC + 32 * mt + 16 * cp, 16)
                    p(f"{MF} {d}, {v(FA+8*s+4*mt,4)}, {v(FB+8*s+4*cp,4)}, {'0' if n == 0 else d}")
                ops.append(m)
            for mt in range(3):
                def m(mt=mt):
                    if mt == 0: p.wait(lg=rt[(n, 'w', 2)])
                    d = v(ZA + 16 * mt, 16)
                    p(f"{MF} {d}, {v(FW+12*s+4*mt,4)}, {v(FX+4*s,4)}, {'0' if n == 0 else d}")
                ops.append(m)
            return ops
        self.gemm_loop(3, reads, mfmas, dma, tick, 5, npro, {6: lambda: self.wsp_dma(0), 7: lambda: self.wsp_dma(1)}, valu)
        self.stamp(1)
        def U(sg, cp): return ACC + 32 * (sg >> 3) + 16 * cp + 4 * ((sg & 7) >> 1) + 2 * (sg & 1)
        def step(hr, hi, sg, nr, ni, t0, t1):
            p = self.p; A = v(LB, 2)
            p(f"v_pk_fma_f32 {v(t0,2)}, {A}, {v(hr,2)}, {v(U(sg,0),2)} op_sel_hi:[0,1,1]")
            p(f"v_pk_fma_f32 {v(t1,2)}, {A}, {v(hi,2)}, {v(U(sg,1),2)} op_sel_hi:[0,1,1]")
            p(f"v_pk_fma_f32 {v(nr,2)}, {A}, {v(hi,2)}, {v(t0,2)} op_sel:[1,0,0] op_sel_hi:[1,1,1] neg_lo:[1,0,0] neg_hi:[1,0,0]")
            p(f"v_pk_fma_f32 {v(ni,2)}, {A}, {v(hr,2)}, {v(t1,2)} op_sel:[1,0,0] op_sel_hi:[1,1,1]")
        HA, HBb, T0, EX, E8, AD, GR, CQ = 128, 132, 136, 140, 144, 160, 164, 168
        SCR = 98304
        p(f"s_lshl_b32 s{SA}, s{WP}, 11\ns_add_u32 s{SA}, s{SA}, {SCR}")
        p(f"v_and_b32 {v(AD)}, 31, {v(VL)}\nv_lshlrev_b32 {v(AD)}, 6, {v(AD)}\nv_add_u32 {v(AD)}, s{SA}, {v(AD)}")
        p(f"v_lshrrev_b32 {v(AD+1)}, 5, {v(VL)}\nv_lshl_add_u32 {v(AD+1)}, {v(AD+1)}, 4, {v(AD)}\ns_lshl_b32 s{SA}, s{WT}, 5\nv_add_u32 {v(AD+1)}, s{SA}, {v(AD+1)}")
        Z1P = 192
        SZ0, SZ1 = SXL, SWL
        VA_ = 176
        MA, MB = SK + 2, SK + 4
        def z1st(u):
            mt, q = u >> 1, u & 1
            for i in range(4): p(f"v_cvt_pk_bf16_f32 {v(Z1P+4*u+i)}, {v(ZA+8*u+2*i)}, {v(ZA+8*u+2*i+1)}")
            r = v(Z1P + 4 * u, 4)
            if mt < 2: p.vmem(f"buffer_store_dwordx4 {r}, {v(VL16)}, {srd(SWS)}, s{SZ0} offen offset:{mt*2048+q*1024} sc1")
            else: p.vmem(f"buffer_store_dwordx4 {r}, {v(VA_+q)}, {srd(SWS)}, s{SZ1} offen offset:{q*1024} sc1")
        p(f"s_lshl_b32 s{SA}, s{SCOL}, 6\ns_lshl_b32 s{SB_}, s{SRB}, 2\ns_add_u32 s{SA}, s{SA}, s{SB_}\ns_add_u32 s{SA}, s{SA}, s{SWV}\ns_mul_i32 s{SA}, s{SA}, 5632")
        p(f"s_add_u32 s{SZ0}, s{SA}, {Z1}\ns_add_u32 s{SZ1}, s{SZ0}, 4096")
        p(f"v_cndmask_b32 {v(VA_)}, {v(VOOB)}, {v(VL16)}, {sp(MA)}\nv_cndmask_b32 {v(VA_+1)}, {v(VOOB)}, {v(VL16)}, {sp(MB)}")
        zs = [(lambda u=u: z1st(u)) for u in range(6)]
        self.run(zs[:2])
        p("s_barrier")
        def pass1():
            hr, hi = U(0, 0), U(0, 1)
            for sg in range(1, 16):
                nr, ni = (HA, HA + 2) if sg & 1 else (HBb, HBb + 2)
                step(hr, hi, sg, nr, ni, T0, T0 + 2)
                hr, hi = nr, ni
            self.p(f"v_mov_b32 {v(EX)}, {v(hr)}\nv_mov_b32 {v(EX+1)}, {v(hi)}\nv_mov_b32 {v(EX+2)}, {v(hr+1)}\nv_mov_b32 {v(EX+3)}, {v(hi+1)}")
        d2 = self.wsp_dma(2) + self.wsp_dma(3)
        self.run(merge(merge(self.cap(pass1), zs[2:]), d2[:7]))
        p.lds(f"ds_write_b128 {v(AD+1)}, {v(EX,4)}")
        p.wait_lg_all(); p("s_barrier")
        for i in range(4): p.lds(f"ds_read_b128 {v(E8+4*i,4)}, {v(AD)} offset:{16*i}")
        te = p.lg - 1
        self.run(d2[7:11])
        p(f"s_cmp_eq_u32 s{WT}, 0\ns_cselect_b32 s{SA}, 32, 0")
        p(f"v_cmp_gt_u32 vcc, s{SA}, {v(VL)}\nv_mov_b32 {v(GR+1)}, s{ST_T}\nv_mov_b32 {v(GR+3)}, s{ST_T}\nv_cndmask_b32 {v(T0)}, {v(VOOB)}, {v(VL16)}, vcc")
        p(f"s_lshl_b32 s{SC}, s{SCOL}, 14\ns_lshl_b32 s{SA}, s{WP}, 9\ns_add_u32 s{SC}, s{SC}, s{SA}\ns_add_u32 s{SC}, s{SC}, {EG}")
        p(f"s_lshl_b32 s{SA}, s{SRB}, 10\ns_add_u32 s{SA}, s{SA}, s{SC}")
        p.wait(lg=te); p("s_barrier")
        self.run(merge(self.cap(lambda: [cfma(E8 + 2 * q, L16, E8 + 2 * (q - 1), E8 + 2 * q) for q in range(1, 8)]), d2[11:15]))
        p(f"v_mov_b32 {v(GR)}, {v(E8+14)}\nv_mov_b32 {v(GR+2)}, {v(E8+15)}")
        p.vmem(f"buffer_store_dwordx4 {v(GR,4)}, {v(T0)}, {srd(SWS)}, s{SA} offen sc1")
        self.run(d2[15:])
        self.stamp(2)
        p(f"v_cmp_gt_u32 vcc, 32, {v(VL)}")
        w1 = p.label("w1"); w2 = p.label("w2")
        p(f"s_cmp_eq_u32 s{WT}, 0\ns_cbranch_scc0 {w1}")
        p(f"v_cndmask_b32 {v(CQ)}, {v(E8+2)}, 0, vcc\nv_cndmask_b32 {v(CQ+1)}, {v(E8+3)}, 0, vcc")
        p(f"v_cndmask_b32 {v(CQ+2)}, {v(E8+4)}, {v(E8)}, vcc\nv_cndmask_b32 {v(CQ+3)}, {v(E8+5)}, {v(E8+1)}, vcc")
        p(f"s_branch {w2}")
        p.put(w1)
        for k in range(4): p(f"v_cndmask_b32 {v(CQ+k)}, {v(E8+10+k)}, {v(E8+6+k)}, vcc")
        p.put(w2)
        Z1P = 192
        EGR, EO, EXP, ET = 80, 144, 152, 160
        def eo():
            p = self.p
            p(f"v_lshrrev_b32 {v(ET)}, 5, {v(VL)}\nv_sub_u32 {v(ET)}, s{SRB}, {v(ET)}\nv_add_u32 {v(ET)}, -1, {v(ET)}")
            p(f"v_and_b32 {v(ET+1)}, 31, {v(VL)}\nv_lshlrev_b32 {v(ET+1)}, 4, {v(ET+1)}\nv_mov_b32 {v(ET+3)}, s{ST_T}")
            for q in range(8):
                p(f"v_add_u32 {v(ET+2)}, {-2*q}, {v(ET)}\nv_cmp_le_i32 vcc, 0, {v(ET+2)}\nv_lshl_add_u32 {v(ET+2)}, {v(ET+2)}, 10, {v(ET+1)}")
                p(f"v_cndmask_b32 {v(EO+q)}, {v(VOOB)}, {v(ET+2)}, vcc\nv_cndmask_b32 {v(EXP+q)}, 0, {v(ET+3)}, vcc")
        lgw = lambda: p.wait(lg=p.lg - 1)
        self.run(merge(self.cap(lambda: (eo(), self.g_early(184))), self.wsp_dma(4) + self.wsp_read(0) + self.wsp_read(1)))
        et = {}
        def eload(q):
            et['t'] = p.vmem(f"buffer_load_dwordx4 {v(EGR+4*q,4)}, {v(EO+q)}, {srd(SWS)}, s{SC} offen sc1")
        for q in range(8): eload(q)
        self.run([lgw] + self.wsp_dma(5))
        self.stamp(3)
        l = p.label("ep"); dl = p.label("ed")
        p.wait(vm=et['t'])
        p(f"s_mov_b32 s{SSPIN}, 0")
        p.put(l)
        p(f"v_mov_b32 {v(ET)}, 0")
        for q in range(8):
            p(f"v_xor_b32 {v(ET+1)}, {v(EXP+q)}, {v(EGR+4*q+1)}\nv_xor_b32 {v(ET+2)}, {v(EXP+q)}, {v(EGR+4*q+3)}\nv_or3_b32 {v(ET)}, {v(ET)}, {v(ET+1)}, {v(ET+2)}")
        p(f"v_cmp_ne_u32 vcc, 0, {v(ET)}\ns_cmp_eq_u64 vcc, 0\ns_cbranch_scc1 {dl}")
        for q in range(8): p(f"buffer_load_dwordx4 {v(EGR+4*q,4)}, {v(EO+q)}, {srd(SWS)}, s{SC} offen sc1")
        p("s_waitcnt vmcnt(0)")
        p(f"s_add_u32 s{SSPIN}, s{SSPIN}, 1\ns_cmp_lt_u32 s{SSPIN}, {SPIN}\ns_cbranch_scc1 {l}")
        p.put(dl)
        self.flag_prep(178)
        p(f"s_lshl_b32 s{SA}, s{SCOL}, 6\ns_lshl_b32 s{SB_}, s{SRB}, 2\ns_add_u32 s{SA}, s{SA}, s{SB_}\ns_add_u32 s{SA}, s{SA}, s{SWV}\ns_lshl_b32 s{SA}, s{SA}, 7\ns_add_u32 s{SA}, s{SA}, {Z1F}")
        self.flag(SA, 178)
        self.stamp(4)
        OP, OT, HO = 80, 144, 132
        MA, MB = SK + 2, SK + 4
        SH0, SH1 = SXB, SW1B
        def pass2a():
            p = self.p
            p(f"s_lshl_b32 s{SA}, s{SD}, 3\ns_add_u32 s{SA}, s{SA}, s{SCOL}\ns_lshl_b32 s{SA}, s{SA}, 14\ns_lshl_b32 s{SB_}, s{WP}, 12\ns_add_u32 s{SA}, s{SA}, s{SB_}")
            p(f"s_add_u32 s{SH0}, s{SA}, {HB}\ns_add_u32 s{SH1}, s{SH0}, 8192")
            p(f"v_lshrrev_b32 {v(T0)}, 5, {v(VL)}\nv_lshlrev_b32 {v(T0)}, 11, {v(T0)}\nv_and_b32 {v(T0+1)}, 31, {v(VL)}\nv_lshl_add_u32 {v(HO)}, {v(T0+1)}, 4, {v(T0)}")
            for k in range(1, 4): p(f"v_xor_b32 {v(HO+k)}, {64*k}, {v(HO)}")
            for q in range(8): p(f"v_mov_b32 {v(EGR+4*q+1)}, {v(EGR+4*q+2)}")
            S = EGR + 28
            for q in range(6, -1, -1): cfma(S, L256, S, EGR + 4 * q)
            p(f"v_mov_b32 {v(ET)}, {v(S)}\nv_mov_b32 {v(ET+1)}, {v(S+1)}\nv_permlane32_swap_b32 {v(S)}, {v(ET)}\nv_permlane32_swap_b32 {v(S+1)}, {v(ET+1)}")
            cfma(S, L128, ET, S)
            cfma(CQ, LQ0, S, CQ); cfma(CQ + 2, LQ1, S, CQ + 2)
            p(f"v_mov_b32 {v(HA)}, {v(CQ)}\nv_mov_b32 {v(HA+1)}, {v(CQ+2)}\nv_mov_b32 {v(HA+2)}, {v(CQ+1)}\nv_mov_b32 {v(HA+3)}, {v(CQ+3)}")
        def pass2(s0, s1):
            p = self.p
            Cc = v(CF, 2)
            for sg in range(s0, s1):
                hr, hi = (HA, HA + 2) if sg == 0 else (U(sg - 1, 0), U(sg - 1, 1))
                step(hr, hi, sg, U(sg, 0), U(sg, 1), T0, T0 + 2)
                hr, hi = U(sg, 0), U(sg, 1)
                oo = OT + 4 * (sg & 1) + 8 * ((sg >> 1) & 1)
                p(f"v_pk_mul_f32 {v(oo,2)}, {Cc}, {v(hr,2)} op_sel_hi:[0,1]")
                p(f"v_pk_mul_f32 {v(oo+2,2)}, {Cc}, {v(hi,2)} op_sel_hi:[0,1] neg_lo:[1,0] neg_hi:[1,0]")
                p(f"v_pk_fma_f32 {v(oo,2)}, {Cc}, {v(hi,2)}, {v(oo,2)} op_sel:[1,0,0] op_sel_hi:[1,1,1] neg_lo:[1,0,0] neg_hi:[1,0,0]")
                p(f"v_pk_fma_f32 {v(oo+2,2)}, {Cc}, {v(hr,2)}, {v(oo+2,2)} op_sel:[1,0,0] op_sel_hi:[1,1,1] neg_lo:[1,0,0] neg_hi:[1,0,0]")
                if sg & 1:
                    q, i = sg >> 3, (sg & 7) >> 1
                    for cp in range(2):
                        for e in range(2):
                            p(f"v_cvt_pk_bf16_f32 {v(OP+16*cp+8*e+4*q+i)}, {v(oo-4+2*cp+e)}, {v(oo+2*cp+e)}")
        def hst(cp, k):
            if o.get("x_nost"): return
            p.vmem(f"buffer_store_dwordx4 {v(OP+16*cp+4*k,4)}, {v(HO+k)}, {srd(SWS)}, s{SH0 if cp == 0 else SH1} offen offset:{512*k} sc1")
        self.run(merge(self.cap(pass2a), self.wsp_dma(6) + self.wsp_read(2) + [lgw]))
        self.run(merge(self.cap(lambda: pass2(0, 8)), self.wsp_dma(7) + self.wsp_read(3)))
        self.run(merge(merge(self.cap(lambda: pass2(8, 16)), [(lambda cp=cp, k=k: hst(cp, k)) for k in (0, 2) for cp in range(2)]), self.wsp_read(4) + self.wsp_read(5)))
        self.g_poll_issue()
        h2 = [(lambda cp=cp, k=k: hst(cp, k)) for k in (1, 3) for cp in range(2)]
        self.run(merge(self.wsp_read(6) + self.wsp_read(7), h2))
        p(f"s_lshl_b32 s{SLATE}, s{SE}, 7\ns_add_u32 s{SLATE}, s{SLATE}, {HF}")
        self.stamp(5)

    def phase_g(self):
        p = self.p; o = self.o
        p.c("==== phase B: G ====")
        p.put(self.LG)
        p.vm_done = -1; p.lg_done = -1
        ACC, FA, TR, T = 16, 112, self.GTR, 186
        Z1R, BI, PV, WD, PL, PL2, PL3 = 190, 202, 203, self.WD, self.GPL, 222, 234
        NT, Q = SK + 8, SK + 9
        p(f"s_mov_b32 s{SCOL}, s{SJ}")
        def late_setup():
            p = self.p
            p(f"s_lshl_b32 s{SE}, s{STB}, 11\ns_add_u32 s{SE}, s{SE}, {HF}")
            self.poll_addr(PL3, [(SE, 16)])
            self.flag_prep(220)
            p(f"v_lshrrev_b32 {v(T)}, 3, {v(VL)}\nv_lshlrev_b32 {v(T)}, 10, {v(T)}")
            p(f"v_bfe_u32 {v(T+1)}, {v(VL)}, 4, 1\nv_lshlrev_b32 {v(T+1)}, 2, {v(T+1)}\nv_and_b32 {v(T+2)}, 7, {v(VL)}\nv_xor_b32 {v(T+1)}, {v(T+1)}, {v(T+2)}")
            p(f"v_lshl_add_u32 {v(WD)}, {v(T+1)}, 4, {v(T)}")
            for i in range(1, 4): p(f"v_add_u32 {v(WD+i)}, {i*7168}, {v(WD)}")
            p(f"s_mul_i32 s{SXB}, s{SWV}, {176*1024}\ns_lshl_b32 s{SA}, s{SCOL}, 7\ns_add_u32 s{SXB}, s{SXB}, s{SA}")
            self.c_setup()
            self.panel_tr_addr(228, SREG, 224, False)
        p(f"s_and_b32 s{NT}, s{SWV}, 1\ns_lshr_b32 s{Q}, s{SWV}, 1")
        p(f"s_lshl_b32 s{SC}, s{STB}, 1\ns_add_u32 s{SC}, s{SC}, s{NT}")
        p.atom(f"s_cmp_lt_u32 s{SCOL}, 7\ns_cselect_b32 s{SD}, 64, 32")
        p(f"s_lshl_b32 s{SF}, s{Q}, 5\ns_sub_u32 s{SD}, s{SD}, s{SF}")
        p(f"v_cmp_gt_u32 vcc, s{SD}, {v(VL)}\nv_and_b32 {v(T)}, 31, {v(VL)}\ns_lshl_b32 s{SA}, s{SC}, 5\nv_cndmask_b32 {v(PV)}, {v(VOOB)}, {v(VL16)}, vcc")
        p(f"v_add_lshl_u32 {v(T)}, {v(T)}, s{SA}, 1")
        p.vmem(f"global_load_ushort {v(BI)}, {v(T)}, {sp(PBSP)}")
        p(f"s_mul_i32 s{SD}, s{SZI}, 5632\ns_lshl_b32 s{SB_}, s{Q}, 10\ns_add_u32 s{SD}, s{SD}, s{SB_}\ns_add_u32 s{SD}, s{SD}, {Z1}\ns_add_u32 s{SE}, s{SD}, 4096")
        p(f"v_and_b32 {v(PL2)}, 31, {v(VL)}\nv_lshlrev_b32 {v(PL2)}, 2, {v(PL2)}")
        p.wait_lg_all(); p("s_barrier")
        self.stamp(6)
        l = p.label("gp"); dn = p.label("gd")
        p("s_waitcnt vmcnt(5)")
        p(f"s_cmp_lg_u32 s{SLATE}, 0\ns_cbranch_scc1 {l}\ns_waitcnt vmcnt(0)")
        p.put(l)
        p(f"v_cmp_ne_u32 vcc, s{ST_T}, {v(PL+1)}\ns_and_b32 vcc_hi, vcc_hi, 1\ns_or_b32 s{SF}, vcc_lo, vcc_hi\ns_cbranch_scc0 {dn}")
        self.poll(PL, 33)
        p.put(dn)
        g0 = p.vm
        def late_flag():
            nf = p.label("nf")
            p(f"s_cmp_eq_u32 s{SLATE}, 0\ns_cbranch_scc1 {nf}")
            p(f"s_waitcnt vmcnt({p.vm - g0})")
            p(f"buffer_store_dword {v(220)}, {v(221)}, {srd(SWS)}, s{SLATE} offen sc1")
            p.put(nf)
        p.vm_done = -1
        self.stamp(7)
        tick = {}
        def dma(B):
            sl = B % 3; items = []
            for i in range(11):
                def cb(t, i=i): tick[(B, i)] = t
                g = i // 4
                items.append(((SREG, sl * 11264 + g * 4096) if i % 4 == 0 else None, (SGB, B * 11264 + g * 4096) if i % 4 == 0 else None,
                              f"buffer_load_dwordx4 {v(VL16)}, {srd(SWS)}, s{SDO} offen offset:{(i%4)*1024} {o.get('gmod', 'sc1')} lds", cb))
            return self.dseq(items)
        d0 = dma(0) + dma(1) + dma(2)
        kpro = o.get("gpro", 22)
        p.vmem(f"buffer_load_dwordx4 {v(Z1R,4)}, {v(VL16)}, {srd(SWS)}, s{SD} offen sc1")
        p.vmem(f"buffer_load_dwordx4 {v(Z1R+4,4)}, {v(VL16)}, {srd(SWS)}, s{SD} offen offset:2048 sc1")
        tz1 = p.vmem(f"buffer_load_dwordx4 {v(Z1R+8,4)}, {v(PV)}, {srd(SWS)}, s{SE} offen sc1")
        k0 = o.get("gk0", 10)
        self.run(merge(self.cap(late_setup), d0[:k0], 0, 40))
        p(f"s_lshl_b32 s{SA}, s{STB}, 8\ns_add_u32 s{SA}, s{SA}, {GATE}")
        p.vmem(f"buffer_load_dword {v(self.GY)}, {v(PL2)}, {srd(SWS)}, s{SA} offen sc1")
        p.vmem(f"buffer_load_dword {v(self.GY+2)}, {v(PL2)}, {srd(SWS)}, s{SA} offen offset:128 sc1")
        def z1gelu():
            c1 = -2 * LOG2E * 0.7978845608028654
            self.VC0 = 184
            self.p(f"s_mov_b32 s{SK}, {f2u(c1*0.044715)}\nv_mov_b32 {v(184)}, {f2u(c1)}")
            for i in range(12): self.unpack(self.ZUP[i], Z1R + i)
            self.gelu_many(self.ZUP, [160, 162, 164, 166])
        p.wait(vm=tz1)
        self.run(merge(self.cap(z1gelu), d0[k0:kpro]))
        lt = {}
        def issue(r):
            lt[r] = p.vmem(f"buffer_load_dword {v(r+1)}, {v(r)}, {srd(SWS)}, 0 offen sc1")
        def check(r, mask):
            l = p.label("lp"); d = p.label("ld")
            p.wait(vm=lt[r])
            p(f"s_mov_b32 s{SSPIN}, 0")
            p.put(l)
            p(f"v_cmp_ne_u32 vcc, s{ST_T}, {v(r+1)}\ns_and_b32 s{SF}, vcc_lo, {mask}\ns_cbranch_scc0 {d}")
            p(f"buffer_load_dword {v(r+1)}, {v(r)}, {srd(SWS)}, 0 offen sc1\ns_waitcnt vmcnt(0)")
            p(f"s_add_u32 s{SSPIN}, s{SSPIN}, 1\ns_cmp_lt_u32 s{SSPIN}, {SPIN}\ns_cbranch_scc1 {l}")
            p.put(d)
        rt = {}
        def fset(hb): return FA + 24 * (2 if hb == 15 else hb & 1)
        def reads(hb):
            B, e = hb >> 1, hb & 1; sl = B % 3; ops = []
            for ks in range(2):
                for mt in range(3):
                    for a in range(2):
                        def ra(ks=ks, mt=mt, a=a):
                            if (ks, mt, a) == (0, 0, 0): p.wait(vm=tick[(B, 10 if e else 5)])
                            rt[(hb, ks, mt)] = p.lds(f"ds_read_b64_tr_b16 {v(fset(hb)+12*ks+4*mt+2*a,2)}, {v(TR+a)} offset:{sl*11264+e*5632+mt*2048+ks*256}")
                        ops.append(ra)
            return ops
        def mf(hb, ks, mt, nt):
            def m():
                p.wait(lg=rt[(hb, ks, mt)])
                d = v(ACC + 16 * (2 * mt + nt), 16); kap = 2 * hb + ks
                p(f"{MF} {d}, {v(fset(hb)+12*ks+4*mt,4)}, {ar((kap*2+nt)*4,4)}, {'0' if kap == 0 else d}")
            return m
        y0 = self.y_dma(0)
        hchk = o.get("hchk", 4)
        self.run(reads(0))
        pend = d0[kpro:]
        for hb in range(14):
            if o.get("gstamps") and hb % 2 == 0: self.stamp(21 + hb // 2)
            mm = [mf(hb, ks, mt, nt) for ks in range(2) for mt in range(3) for nt in range(2)]
            rd = reads(hb + 1) + (reads(15) if hb == 13 else [])
            if hb == 13: seq = merge(mm, rd, 0, 12)
            else: seq = merge(mm, rd, 0, 8)
            if hb & 1 and hb <= 11:
                B = hb >> 1
                d = dma(B + 3) if B + 3 < 8 else y0
                d1 = d[1]
                def first(d1=d1, hb=hb):
                    p.wait(lg=rt[(hb, 1, 2)]); d1()
                d = [d[0], first] + d[2:]
                seq = merge(seq, pend + d[:5], len(seq) * 2 // 3 if not pend else len(seq) // 3)
                pend = d[5:]
            elif pend:
                k = 7 if hb else 8
                if hb == 12: k = 6
                seq = merge(seq, pend[:k], len(seq) // 3); pend = pend[k:]
            if hb == o.get("hflag", 3): seq = seq + [late_flag]
            if hb == 10: seq = seq + [lambda: issue(PL3)]
            if hb == 12: seq = [lambda: check(PL3, 0xffff)] + seq
            self.run(seq)
        assert not pend
        VW, VRD = T, T + 1
        p(f"s_add_u32 s{SA}, s{SREG}, 4096\nv_add_u32 {v(VW)}, s{SA}, {v(VL16)}")
        def rw(mt, nt):
            ops = []
            for q in range(2):
                k = nt + 2 * q
                if k == 0: continue
                for hq in range(2):
                    r = ACC + 16 * (2 * mt + nt) + 8 * q + 4 * hq
                    ops.append(lambda r=r, k=k, hq=hq: p.lds(f"ds_write_b128 {v(VW)}, {v(r,4)} offset:{(k-1)*6144+(2*mt+hq)*1024}"))
            return ops
        tiles = [(0, 1), (1, 1), (2, 1), (0, 0), (1, 0), (2, 0)]
        for ti, (mt, nt) in enumerate(tiles):
            mm = [mf(hb, ks, mt, nt) for hb in (14, 15) for ks in range(2)]
            f = rw(*tiles[ti - 2]) if ti >= 2 else []
            self.run(merge(mm, f))
        self.stamp(8)
        for k in range(1, 4):
            p(f"s_xor_b32 s{SA}, s{SWV}, {k}\ns_mul_i32 s{SA}, s{SA}, 40960\ns_add_u32 s{SA}, s{SA}, 4096\nv_add_u32 {v(VRD+k-1)}, s{SA}, {v(VL16)}")
        self.run(rw(*tiles[4]) + rw(*tiles[5]))
        p.wait_lg_all(); p("s_barrier")
        RB = 112
        def own(i): return ACC + 32 * (i >> 1) + 4 * (i & 1)
        tk = {}
        def rr(k, i): tk[(k, i)] = p.lds(f"ds_read_b128 {v(RB+24*(k-1)+4*i,4)}, {v(VRD+k-1)} offset:{(k-1)*6144+i*1024}")
        for k in range(1, 3):
            for i in range(6): rr(k, i)
        yr0 = self.y_read(0)
        for k in range(1, 4):
            for i in range(6):
                p.wait(lg=tk[(k, i)])
                if k == 1: rr(3, i)
                for hh in range(2): p(f"v_pk_add_f32 {v(own(i)+2*hh,2)}, {v(own(i)+2*hh,2)}, {v(RB+24*(k-1)+4*i+2*hh,2)}")
        p("s_barrier")
        self.stamp(9)
        PK = 112
        def ow2(i): return own(i >> 1) + 2 * (i & 1)
        def pepi():
            p = self.p
            OG = 152
            p.atom(f"s_cmp_eq_u32 s{NT}, 0\ns_cselect_b64 vcc, -1, 0")
            p(f"v_lshlrev_b32 {v(BI)}, 16, {v(BI)}\nv_cndmask_b32 {v(OG)}, {v(self.GY+2)}, {v(self.GY)}, vcc\nv_sub_f32 {v(OG)}, 1.0, {v(OG)}\nv_mul_f32 {v(OG+1)}, {v(OG)}, {v(BI)}")
            for i in range(12): p(f"v_pk_fma_f32 {v(ow2(i),2)}, {v(ow2(i),2)}, {v(OG,2)}, {v(OG,2)} op_sel:[0,0,1] op_sel_hi:[1,0,1]")
            for i in range(12): p(f"v_pk_mul_f32 {v(ow2(i),2)}, {v(ow2(i),2)}, {v(self.ZUP[i],2)}")
            for i in range(12): p(f"v_cvt_pk_bf16_f32 {v(PK+i)}, {v(ow2(i))}, {v(ow2(i)+1)}")
            p(f"s_mul_i32 s{SA}, s{SC}, 45056\ns_mul_i32 s{SB_}, s{SCOL}, 5632\ns_add_u32 s{SA}, s{SA}, s{SB_}\ns_lshl_b32 s{SB_}, s{Q}, 10")
            p(f"s_add_u32 s{SA}, s{SA}, s{SB_}\ns_add_u32 s{SA}, s{SA}, {PB}\ns_add_u32 s{SB_}, s{SA}, 4096")
        self.y1 = self.y_dma(1)
        self.run(merge(merge(self.cap(pepi), self.y1[:4]), yr0))
        self.y1 = self.y1[4:]
        p.vmem(f"buffer_store_dwordx4 {v(PK,4)}, {v(VL16)}, {srd(SWS)}, s{SA} offen sc1")
        p.vmem(f"buffer_store_dwordx4 {v(PK+4,4)}, {v(VL16)}, {srd(SWS)}, s{SA} offen offset:2048 sc1")
        self.tp = p.vmem(f"buffer_store_dwordx4 {v(PK+8,4)}, {v(PV)}, {srd(SWS)}, s{SB_} offen sc1")
        p(f"s_lshl_b32 s{SLATE}, s{STB}, 3\ns_add_u32 s{SLATE}, s{SLATE}, s{SCOL}\ns_lshl_b32 s{SLATE}, s{SLATE}, 2\ns_add_u32 s{SLATE}, s{SLATE}, s{SWV}\ns_lshl_b32 s{SLATE}, s{SLATE}, 7\ns_add_u32 s{SLATE}, s{SLATE}, {PF}")
        self.stamp(10)

    CD, CR, HT, GY, WD, WT_ = 210, 214, 218, 240, 244, 228
    ZUP = [4, 6, 8, 10, 12, 14, 204, 206, 208, 248, 250, 252]
    def c_setup(self):
        p = self.p
        self.plain_dma_addr(self.CD, 1024, 224)
        p(f"s_add_u32 s{SA}, s{SREG}, 4096")
        self.plain_read_addr(self.CR, SA, 224)
        p(f"s_add_u32 s{SA}, s{SREG}, {4096+8192}")
        self.unit_tr_addr(self.HT, SA, 224, False)
        p(f"s_lshl_b32 s{SCB}, s{SCOL}, 16\ns_lshl_b32 s{SA}, s{SWV}, 8\ns_add_u32 s{SCB}, s{SCB}, s{SA}")
        p(f"s_lshl_b32 s{SHB}, s{STB}, 17\ns_lshl_b32 s{SA}, s{SWV}, 15\ns_add_u32 s{SHB}, s{SHB}, s{SA}\ns_add_u32 s{SHB}, s{SHB}, {HB}")
        self.yt = {}
    def y_dma(self, s):
        sl = (s & 1) ^ 1; items = []
        def cb(t): self.yt[s] = t
        for hh in range(2):
            for i in range(4):
                items.append(((SREG, 4096 + sl * 18432 + hh * 4096) if i == 0 else None, (SCB, (s >> 1) * 128 + hh * 32768) if i == 0 else None,
                              f"buffer_load_dwordx4 {v(self.CD+i)}, {srd(SCIM if s & 1 else SCRE)}, s{SDO} offen offset:{i*1024} lds", None))
        for hh in range(2):
            for i in range(4):
                items.append(((SREG, 4096 + sl * 18432 + 8192 + hh * 4096) if i == 0 else None, (SHB, s * 8192 + hh * 4096) if i == 0 else None,
                              f"buffer_load_dwordx4 {v(VL16)}, {srd(SWS)}, s{SDO} offen offset:{i*1024} sc1 lds", cb))
        return self.dseq(items)
    def y_read(self, s):
        p = self.p; sl = (s & 1) ^ 1; ops = []
        self.yr = getattr(self, "yr", {})
        for ks in range(4):
            def f(ks=ks):
                p.wait(vm=self.yt[s], lg=p.lg - 10)
                b = 64 * s + 16 * ks
                for k in range(2):
                    p.lds(f"ds_read_b128 {ar(b+4*k,4)}, {v(self.CR+ks)} offset:{sl*18432+k*4096}")
                    for a in range(2):
                        self.yr[(s, ks)] = p.lds(f"ds_read_b64_tr_b16 {ar(b+8+4*k+2*a,2)}, {v(self.HT+a)} offset:{sl*18432+(ks>>1)*4096+k*2048+(ks&1)*256}")
            ops.append(f)
        return ops
    def phase_c(self):
        p = self.p; o = self.o
        p.c("==== phase C ====")
        YA, BA, F = 16, 80, 144
        XE, GE, DE, OV, P10, PL, T = 186, 194, 198, 200, 201, 202, 204
        RW, RX, WA, RA = 176, 177, 180, 230
        ep = {}
        def setup():
            p = self.p
            p(f"v_lshrrev_b32 {v(T)}, 4, {v(VL)}\nv_and_b32 {v(T+1)}, 15, {v(VL)}")
            p(f"v_lshlrev_b32 {v(T+2)}, 10, {v(T)}\nv_lshl_add_u32 {v(T+2)}, {v(T+1)}, 3, {v(T+2)}")
            p(f"v_lshlrev_b32 {v(T+3)}, 2, {v(T)}\nv_lshlrev_b32 {v(T+4)}, 3, {v(T+1)}")
            p(f"v_lshlrev_b32 {v(OV)}, 1, {v(T+2)}")
            p(f"s_lshl_b32 s{SC}, s{STB}, 6\ns_lshl_b32 s{SA}, s{SWV}, 4\ns_add_u32 s{SC}, s{SC}, s{SA}")
            p(f"s_lshl_b32 s{SD}, s{SC}, 10\ns_lshl_b32 s{SA}, s{SCOL}, 7\ns_add_u32 s{SD}, s{SD}, s{SA}\nv_add_u32 {v(T+4)}, s{SA}, {v(T+4)}")
            p(f"s_lshl_b32 s{SA}, s{STB}, 12\ns_lshl_b32 s{SB_}, s{SWV}, 10\ns_add_u32 s{SB_}, s{SB_}, s{SA}\ns_add_u32 s{SB_}, s{SB_}, {PF}")
            self.poll_addr(PL, [(SB_, 8)])
            p.atom(f"s_cmp_eq_u32 s{SWV}, 3\ns_cselect_b64 vcc, -1, 0")
            p(f"v_cndmask_b32 {v(P10)}, {v(VL16)}, {v(VOOB)}, vcc")
            p(f"s_mul_i32 s{SE}, s{STB}, {2*45056}\ns_mul_i32 s{SA}, s{SWV}, {22*512}\ns_add_u32 s{SE}, s{SE}, s{SA}\ns_add_u32 s{SE}, s{SE}, {PB}")
            p(f"s_add_u32 s{SA}, s{SREG}, 4096\nv_and_b32 {v(RW)}, 31, {v(VL)}\nv_lshlrev_b32 {v(RW)}, 8, {v(RW)}\nv_add_u32 {v(RW)}, s{SA}, {v(RW)}")
            p(f"v_lshrrev_b32 {v(RX)}, 5, {v(VL)}\nv_and_b32 {v(RX+1)}, 7, {v(VL)}\nv_xor_b32 {v(RX)}, {v(RX)}, {v(RX+1)}\nv_lshlrev_b32 {v(RX)}, 4, {v(RX)}")
            for i in range(4): p(f"v_xor_b32 {v(WA+i)}, {32*i}, {v(RX)}\nv_add_u32 {v(WA+i)}, {v(WA+i)}, {v(RW)}")
            p(f"v_xor_b32 {v(T+1)}, {v(T+1)}, {v(T)}\nv_lshlrev_b32 {v(T+1)}, 4, {v(T+1)}")
            p(f"v_lshlrev_b32 {v(T)}, 8, {v(T)}\ns_lshl_b32 s{SA}, s{SWV}, 12\ns_add_u32 s{SA}, s{SA}, 4096\nv_add_u32 {v(T)}, s{SA}, {v(T)}")
            p(f"v_add_u32 {v(RA)}, {v(T)}, {v(T+1)}\nv_xor_b32 {v(T+1)}, 64, {v(T+1)}\nv_add_u32 {v(RA+1)}, {v(T)}, {v(T+1)}")
            p(f"v_add_u32 {v(RA+2)}, 81920, {v(RA)}\nv_add_u32 {v(RA+3)}, 81920, {v(RA+1)}")
        def eloads():
            for gi in range(4):
                p(f"s_add_u32 s{SA}, s{SD}, {gi*4096}")
                p.vmem(f"buffer_load_dwordx2 {v(XE+2*gi,2)}, {v(T+2)}, {srd(SX)}, s{SA} offen")
            p(f"s_lshl_b32 s{SA}, s{SC}, 2\ns_add_u32 s{SA}, s{SA}, {GATE}")
            for gi in range(4): p.vmem(f"buffer_load_dword {v(GE+gi)}, {v(T+3)}, {srd(SWS)}, s{SA} offen offset:{gi*16} sc1")
            ep['t'] = p.vmem(f"global_load_dwordx2 {v(DE,2)}, {v(T+4)}, {sp(PDSK)}")
        T4 = [(0, 0), (1, 0), (1, 1), (0, 1)]
        def ym(s):
            ops = []
            for ks in range(4):
                for (mt, nt) in T4:
                    def m(ks=ks, mt=mt, nt=nt):
                        p.wait(lg=self.yr[(s, ks)])
                        d = v(YA + 16 * (2 * mt + nt), 16); b = 64 * s + 16 * ks
                        p(f"{MF} {d}, {ar(b+4*mt,4)}, {ar(b+8+4*nt,4)}, {'0' if (s, ks) == (0, 0) else d}")
                    ops.append(m)
            return ops
        PA = 80
        pt = {}
        def ploads():
            ops = []
            for nt in range(2):
                for kap in range(11):
                    def f(kap=kap, nt=nt):
                        if kap % 4 == 0: p(f"s_add_u32 s{SB_}, s{SE}, {nt*45056+kap*1024}")
                        pt[(kap, nt)] = p.vmem(f"buffer_load_dwordx4 {v(PA+(kap*2+nt)*4,4)}, {v(P10 if kap == 10 else VL16)}, {srd(SWS)}, s{SB_} offen offset:{(kap%4)*1024} sc1")
                    ops.append(f)
            return ops
        wo = {}
        def wo_dma():
            items = []
            for (i0, i1, base) in [(18, 22, 0), (0, 18, 22528)]:
                for i in range(i0, i1):
                    def cb(t, i=i): wo[i] = t
                    k = i - i0
                    items.append(((SREG, base + k * 1024) if k % 4 == 0 else None, (SXB, i * 8192) if k % 4 == 0 else None,
                                  f"buffer_load_dwordx4 {v(self.WD+k%4)}, {srd(SWOUT)}, s{SDO} offen offset:{(k%4)*1024} lds", cb))
            return self.dseq(items)
        def wo_rd(kap):
            def f():
                p.wait(vm=wo[2 * kap + 1], lg=p.lg - 12)
                for mt in range(2):
                    for a in range(2):
                        base = 22528 + kap * 2048 if kap < 9 else (kap - 9) * 2048
                        wo[('r', kap)] = p.lds(f"ds_read_b64_tr_b16 {ar((kap*2+mt)*4+2*a,2)}, {v(self.WT_+mt)} offset:{base+a*512}")
            return f
        def pflag():
            p.wait(vm=self.tp); self.flag(SLATE, 220)
        pl = {}
        def pf_issue(): pl['t'] = p.vmem(f"buffer_load_dword {v(PL+1)}, {v(PL)}, {srd(SWS)}, 0 offen sc1")
        def pf_check():
            l = p.label("pp"); d = p.label("pd")
            p.wait(vm=pl['t'])
            p(f"s_mov_b32 s{SSPIN}, 0")
            p.put(l)
            p(f"v_cmp_ne_u32 vcc, s{ST_T}, {v(PL+1)}\ns_and_b32 s{SF}, vcc_lo, 0xff\ns_cbranch_scc0 {d}")
            p(f"buffer_load_dword {v(PL+1)}, {v(PL)}, {srd(SWS)}, 0 offen sc1\ns_waitcnt vmcnt(0)")
            p(f"s_add_u32 s{SSPIN}, s{SSPIN}, 1\ns_cmp_lt_u32 s{SSPIN}, {SPIN}\ns_cbranch_scc1 {l}")
            p.put(d)
        su = self.cap(setup)
        lgw = lambda: p.wait(lg=p.lg - 1)
        y2, y3, wd, pl_ = self.y_dma(2), self.y_dma(3), wo_dma(), ploads()
        self.run(merge(merge(ym(0), su), self.y1 + [lgw] + y2[:5]))
        self.run([pflag] + y2[5:13])
        self.run(merge(self.y_read(1), y2[13:] + [eloads]))
        self.stamp(11)
        self.run(merge(ym(1), [lgw] + y3))
        self.run(merge(self.y_read(2), wd[:5]))
        self.run(merge(ym(2), [lgw] + wd[5:14] + [pf_issue] + wd[14:]))
        self.run(self.y_read(3))
        pf_check(); self.stamp(12)
        self.run(merge(ym(3), pl_[:12]))
        prest = pl_[12:]
        self.stamp(13)
        def redw(acc, base, tiles):
            return [(lambda mt=mt, nt=nt, i=i: p.lds(f"ds_write_b128 {v(WA+i)}, {v(acc+16*(2*mt+nt)+4*i,4)} offset:{base+nt*8192+mt*128}"))
                    for (mt, nt) in tiles for i in range(4)]
        def bm(kap, mt, nt):
            def m():
                p.wait(vm=pt[(kap, nt)], lg=wo[('r', kap)])
                d = v(YA + 16 * (2 * mt + nt), 16)
                p(f"{MF} {d}, {ar((kap*2+mt)*4,4)}, {v(PA+(kap*2+nt)*4,4)}, {d}")
            return m
        def yscale(mt, nt, pk=True):
            if pk: return [(lambda i=i: p(f"v_pk_mul_f32 {v(YA+16*(2*mt+nt)+2*i,2)}, {v(YA+16*(2*mt+nt)+2*i,2)}, {v(self.GY+2*nt,2)} op_sel_hi:[1,0]")) for i in range(8)]
            return [(lambda i=i: p(f"v_mul_f32 {v(YA+16*(2*mt+nt)+i)}, {v(YA+16*(2*mt+nt)+i)}, {v(self.GY+2*nt)}")) for i in range(16)]
        DU, X = 168, 0
        XP = [4, 8, 12, 172]
        def xpart():
            p = self.p
            self.unpack(DU, DE); self.unpack(DU + 2, DE + 1)
            for gi in range(4):
                x = XP[gi]
                self.unpack(x, XE + 2 * gi); self.unpack(x + 2, XE + 2 * gi + 1)
                for k in range(4): p(f"v_mul_f32 {v(x+k)}, {v(x+k)}, {v(DU+k)}")
                for k in range(4): p(f"v_mul_f32 {v(x+k)}, {v(x+k)}, {v(GE+gi)}")
        self.run(merge(merge(yscale(0, 0) + yscale(1, 0) + yscale(1, 1) + yscale(0, 1), prest), [wo_rd(k) for k in range(11)]))
        mm0 = [bm(kap, mt, 0) for kap in range(11) for mt in range(2)]
        self.run(merge(mm0, [lambda: p.wait(vm=ep['t'])] + self.cap(xpart)))
        mm1 = [bm(kap, 0, 1) for kap in range(11)]
        mm2 = [bm(kap, 1, 1) for kap in range(11)]
        self.run(merge(mm1, redw(YA, 0, [(0, 0), (1, 0)]), 2))
        self.run(merge(mm2, redw(YA, 0, [(0, 1)]), 4))
        self.run(redw(YA, 0, [(1, 1)]))
        p.wait_lg_all(); p("s_barrier")
        self.stamp(14)
        tk = {}
        def R(gi, s): return 16 + 16 * gi + 4 * s
        for gi in range(4):
            p.wait(lg=p.lg - 12)
            for s_ in range(4):
                tk[gi] = p.lds(f"ds_read_b128 {v(R(gi,s_),4)}, {v(RA+2*(s_>>1)+(gi&1))} offset:{(s_&1)*40960+gi*1024}")
        p(f"s_lshl_b32 s{SD}, s{SD}, 1")
        for gi in range(4):
            y = R(gi, 0)
            p.wait(lg=tk[gi])
            for hh in (0, 2):
                p(f"v_pk_add_f32 {v(y+hh,2)}, {v(y+hh,2)}, {v(y+4+hh,2)}\nv_pk_add_f32 {v(y+8+hh,2)}, {v(y+8+hh,2)}, {v(y+12+hh,2)}")
            for hh in (0, 2): p(f"v_pk_add_f32 {v(y+hh,2)}, {v(y+hh,2)}, {v(XP[gi]+hh,2)}")
            for hh in (0, 2): p(f"v_pk_add_f32 {v(y+hh,2)}, {v(y+hh,2)}, {v(y+8+hh,2)}")
            p(f"s_add_u32 s{SA}, s{SD}, {gi*8192}")
            p.vmem(f"buffer_store_dwordx4 {v(y,4)}, {v(OV)}, {srd(SOUT)}, s{SA} offen{' ' + o['outmod'] if 'outmod' in o else ''}")
        ne = p.label("ne")
        p(f"s_lshl_b32 s{SA}, s{STB}, 3\ns_add_u32 s{SA}, s{SA}, s{SCOL}\ns_lshl_b32 s{SA}, s{SA}, 2\ns_add_u32 s{SA}, s{SA}, s{SWV}")
        p(f"s_cmp_eq_u32 s{SA}, {255*4}\ns_cbranch_scc0 {ne}")
        p(f"s_mov_b32 s{SA}, {EPOCH}")
        self.flag(SA, 220)
        p.put(ne)
        if o.get("stamps"):
            self.stamp(15)
            p(f"s_lshl_b32 s{SA}, s2, 2\ns_add_u32 s{SA}, s{SA}, s{SWV}\ns_lshl_b32 s{SA}, s{SA}, 8\ns_add_u32 s{SA}, s{SA}, {DBG}")
            p(f"v_lshlrev_b32 v254, 2, {v(VL)}")
            p.vmem(f"buffer_store_dword v255, v254, {srd(SWS)}, s{SA} offen")
            if o.get("dbgmax"):
                ty = o["dbgmax"]
                nd = p.label("nd")
                if ty > 1: p(f"s_cmp_{'ge' if ty == 2 else 'lt'}_u32 s2, 128\ns_cbranch_scc1 {nd}")
                p(f"s_load_dwordx2 s[{SX}:{SX+1}], s[0:1], 128\ns_waitcnt lgkmcnt(0)\ns_mov_b32 s{SX+2}, 64")
                p(f"v_readlane_b32 s{SA}, v255, 17\nv_readlane_b32 s{SB_}, v255, 20\ns_not_b32 s{SA}, s{SA}\ns_nop 3\nv_writelane_b32 v255, s{SA}, 0\nv_writelane_b32 v255, s{SB_}, 6")
                p.vmem(f"buffer_atomic_umax v255, v254, {srd(SX)}, 0 offen")
                p.put(nd)
        if "spin_from" in o:
            self.stamp(15)
            sl = p.label("spin")
            p(f"v_readlane_b32 s{SA}, v254, 0")
            p.put(sl)
            p(f"s_memrealtime s[{SSTMP}:{SSTMP+1}]\ns_waitcnt lgkmcnt(0)\ns_sub_u32 s{SB_}, s{SSTMP}, s{SA}\ns_cmp_lt_u32 s{SB_}, 3000\ns_cbranch_scc1 {sl}")
        p.put(self.END)
        p("s_endpgm")

    def build(self):
        self.prologue()
        self.phase_z()
        self.p.vm_done = -1; self.p.lg_done = -1
        self.p("s_nop 15")
        self.phase_u()
        self.phase_g()
        self.phase_c()
        lines, added = hazard_pass([x for l in self.p.L for x in l.split(chr(10))])
        hdr = open("gated_mix__ssm_conv_s5__mixer_gmlp__prompt.s.ref").read().split("; Override")[0]
        s = hdr + "; @launch grid=(256,1,1) block=(256,1,1) lds=163840\n"
        s += '.amdgcn_target "amdgcn-amd-amdhsa--gfx950"\n.text\n'
        s += f".globl {NAME}\n.p2align 8\n.type {NAME},@function\n{NAME}:\n"
        s += "\n".join((l if l.endswith(":") else "    " + l) for l in lines) + "\n"
        s += f""".section .rodata,"a"
.p2align 6
.amdhsa_kernel {NAME}
  .amdhsa_next_free_vgpr 512
  .amdhsa_next_free_sgpr 102
  .amdhsa_accum_offset 256
  .amdhsa_group_segment_fixed_size 0
  .amdhsa_kernarg_size 144
  .amdhsa_user_sgpr_count 2
  .amdhsa_user_sgpr_kernarg_segment_ptr 1
  .amdhsa_system_sgpr_workgroup_id_x 1
  .amdhsa_float_denorm_mode_32 3
.end_amdhsa_kernel
"""
        return s, added

if __name__ == "__main__":
    out = sys.argv[1]
    opt = {}
    for a in sys.argv[2:]:
        k, _, val = a.partition("=")
        try: opt[k] = int(val) if val else 1
        except ValueError: opt[k] = val
    s, added = G(opt).build()
    open(out, "w").write(s)
    print("wrote", out, "nops added", added, "lines", s.count("\n"))
```

```python
import sys, math, struct
from core import *

NAME = "gated_mix__ssm_conv_s5__mixer_gmlp__prompt_kernel"
EPOCH = 0; GATE = 0x4000
ST = 0x10000; EG = 0x50000; DBG = 0x80000
Z2N = 0x100000; Z1 = 0x400000; PB = 0x700000; HB = 0xA00000
ZF = 0xE00000; HF = 0xE10000; PF = 0xE20000; Z1F = 0xE40000; WS_END = 0xE50000
OOB = 0x80000000
SPIN = 200000
SX, SW1, SWSP, SWS, SCRE, SCIM, SWOUT, SOUT = 4, 8, 12, 16, 20, 24, 28, 32
PLRE, PLIM, PLDT, PDSK, PBSP, PGW, PBRE, PBIM, PWIN = 36, 38, 40, 42, 44, 46, 48, 50, 52
ST_T = 100
SWV, SRB, SCOL, STB = 56, 57, 58, 59
SA, SB_, SC, SD = 60, 61, 62, 63
SSTMP = 64
SDO, SWB, SPB0, SPST, SPSP = 68, 69, 70, 71, 72
SXB, SW1B, SXL, SWL = 73, 74, 75, 76
SPC = 77
SCB, SHB = 78, 79
SK = 80
SREG = 96
SE, SF = 97, 98
SSPIN = 99
SLATE = 101
SJ = 3
SGB = 95
SPFP = 70
SPFE = 79
SZI = 72
SPB = 90
def srd(b): return f"s[{b}:{b+3}]"
def v(a, n=1): return f"v{a}" if n == 1 else f"v[{a}:{a+n-1}]"
def ar(a, n=1): return f"a{a}" if n == 1 else f"a[{a}:{a+n-1}]"
def sp(a): return f"s[{a}:{a+1}]"
VL, VL16, VOOB = 1, 2, 3
LOG2E = 1.4426950408889634
def f2u(x): return struct.unpack("<I", struct.pack("<f", x))[0]
MF = "v_mfma_f32_32x32x16_bf16"

class G:
    def __init__(self, opt):
        self.o = opt
        self.p = Prog()

    def stamp(self, k):
        if self.o.get("spin_from") == k:
            p = self.p
            p(f"s_memrealtime s[{SSTMP}:{SSTMP+1}]"); p.wait_lg_all()
            p(f"v_mov_b32 v254, s{SSTMP}")
        if self.o.get("stamps"):
            p = self.p
            p(f"s_memrealtime s[{SSTMP}:{SSTMP+1}]\ns_memtime s[{SSTMP+2}:{SSTMP+3}]"); p.wait_lg_all()
            p(f"v_writelane_b32 v255, s{SSTMP}, {k}\nv_writelane_b32 v255, s{SSTMP+2}, {k+32}")
    def cap(self, fn):
        sub = Prog(); save = self.p; self.p = sub
        fn()
        self.p = save
        assert sub.vm == 0 and sub.lg == 0
        return [(lambda l=l: self.p(l)) for l in sub.L]
    def run(self, ops):
        for op in ops: op()
    def dseq(self, items):
        p = self.p
        def setup(it):
            if it[0] is not None: p(f"s_add_u32 m0, s{it[0][0]}, {it[0][1]}")
            if it[1] is not None: p(f"s_add_u32 s{SDO}, s{it[1][0]}, {it[1][1]}")
        ops = [lambda: setup(items[0])]
        for i, it in enumerate(items):
            def f(i=i, it=it):
                t = p.vmem(it[2])
                if it[3]: it[3](t)
                if i + 1 < len(items): setup(items[i + 1])
            ops.append(f)
        return ops
    def poll_addr(self, vt, groups):
        p = self.p; n0 = 0
        p(f"v_mov_b32 {v(vt)}, {v(VOOB)}")
        for (sr, n) in groups:
            if n == 1: p(f"v_writelane_b32 {v(vt)}, s{sr}, {n0}")
            else:
                p(f"s_sub_u32 s{sr}, s{sr}, {n0*128}\nv_lshl_add_u32 {v(vt+1)}, {v(VL)}, 7, s{sr}")
                m = ((1 << n) - 1) << n0
                p(f"s_mov_b32 vcc_lo, {m & 0xffffffff}\ns_mov_b32 vcc_hi, {m >> 32}\nv_cndmask_b32 {v(vt)}, {v(vt)}, {v(vt+1)}, vcc")
            n0 += n
        return n0
    def poll(self, vt, n):
        p = self.p
        l = p.label("poll"); d = p.label("pd")
        p(f"s_mov_b32 s{SSPIN}, 0")
        p.put(l)
        p.vmem(f"buffer_load_dword {v(vt+1)}, {v(vt)}, {srd(SWS)}, 0 offen sc1")
        p.wait_vm_all()
        p(f"v_cmp_ne_u32 vcc, s{ST_T}, {v(vt+1)}")
        if n <= 32: p(f"s_and_b32 s{SF}, vcc_lo, {(1<<n)-1}")
        else: p(f"s_and_b32 vcc_hi, vcc_hi, {(1<<(n-32))-1}\ns_or_b32 s{SF}, vcc_lo, vcc_hi")
        p(f"s_cbranch_scc0 {d}")
        p(f"s_add_u32 s{SSPIN}, s{SSPIN}, 1\ns_cmp_lt_u32 s{SSPIN}, {SPIN}\ns_cbranch_scc1 {l}")
        p.put(d)
    def flag_prep(self, vt):
        p = self.p
        p(f"v_mov_b32 {v(vt)}, s{ST_T}\nv_mov_b32 {v(vt+1)}, {v(VOOB)}\nv_writelane_b32 {v(vt+1)}, 0, 0")
    def flag(self, off_sreg, vt):
        self.p.vmem(f"buffer_store_dword {v(vt)}, {v(vt+1)}, {srd(SWS)}, s{off_sreg} offen sc1")
    def xhalf_sum(self, a, t):
        self.p(f"v_mov_b32 {v(t)}, {v(a)}\nv_permlane32_swap_b32 {v(a)}, {v(t)}\nv_add_f32 {v(a)}, {v(a)}, {v(t)}")
    def rnd(self, d, s):
        self.p(f"v_cvt_pk_bf16_f32 {v(d)}, {v(s)}, {v(s)}\nv_lshlrev_b32 {v(d)}, 16, {v(d)}")
    def unpack(self, d, s):
        self.p(f"v_and_b32 {v(d+1)}, 0xffff0000, {v(s)}\nv_lshlrev_b32 {v(d)}, 16, {v(s)}")
    def plain_read_addr(self, dst4, base_sreg, t):
        p = self.p
        p(f"v_and_b32 {v(t)}, 31, {v(VL)}\nv_lshlrev_b32 {v(t)}, 7, {v(t)}")
        if base_sreg is not None: p(f"v_add_u32 {v(t)}, s{base_sreg}, {v(t)}")
        p(f"v_bfe_u32 {v(t+1)}, {v(VL)}, 1, 3\nv_lshrrev_b32 {v(dst4)}, 5, {v(VL)}\nv_xor_b32 {v(t+1)}, {v(t+1)}, {v(dst4)}")
        p(f"v_lshlrev_b32 {v(t+1)}, 4, {v(t+1)}")
        for ks in range(4):
            p(f"v_xor_b32 {v(dst4+ks)}, {32*ks}, {v(t+1)}\nv_add_u32 {v(dst4+ks)}, {v(dst4+ks)}, {v(t)}")
    def plain_dma_addr(self, dst4, rowbytes, t, rowstep=8):
        p = self.p
        p(f"v_lshrrev_b32 {v(t)}, 3, {v(VL)}\nv_mul_u32_u24 {v(t)}, {rowbytes}, {v(t)}")
        self.plain_dma_addr2(dst4, t, t + 1, rowstep * rowbytes)
    def plain_dma_addr2(self, dst4, vrow, t, step):
        p = self.p
        p(f"v_and_b32 {v(t)}, 7, {v(VL)}\nv_lshrrev_b32 {v(dst4)}, 4, {v(VL)}\nv_xor_b32 {v(t)}, {v(t)}, {v(dst4)}\nv_lshlrev_b32 {v(t)}, 4, {v(t)}")
        p(f"v_add_u32 {v(dst4)}, {v(t)}, {v(vrow)}")
        p(f"v_xor_b32 {v(t)}, 64, {v(t)}\nv_add_u32 {v(dst4+1)}, {v(t)}, {v(vrow)}")
        p(f"v_add_u32 {v(dst4+2)}, {2*(step-1024)}, {v(dst4)}\nv_add_u32 {v(dst4+3)}, {3*(step-1024)}, {v(dst4+1)}\nv_add_u32 {v(dst4+1)}, {step-1024}, {v(dst4+1)}")
    def panel_tr_addr(self, dst2, base_sreg, t, perm):
        p = self.p
        p(f"v_lshrrev_b32 {v(t)}, 5, {v(VL)}\nv_lshlrev_b32 {v(t)}, 10, {v(t)}")
        p(f"v_bfe_u32 {v(t+1)}, {v(VL)}, 2, 2\nv_lshl_add_u32 {v(t)}, {v(t+1)}, 7, {v(t)}")
        p(f"v_bfe_u32 {v(t+1)}, {v(VL)}, 4, 1\nv_lshl_add_u32 {v(t)}, {v(t+1)}, 5, {v(t)}")
        if perm:
            p(f"v_and_b32 {v(t+1)}, 1, {v(VL)}\nv_lshl_add_u32 {v(t)}, {v(t+1)}, 4, {v(t)}")
            p(f"v_bfe_u32 {v(t+1)}, {v(VL)}, 1, 1\nv_lshl_add_u32 {v(t)}, {v(t+1)}, 3, {v(t)}")
        else:
            p(f"v_and_b32 {v(t+1)}, 3, {v(VL)}\nv_lshl_add_u32 {v(t)}, {v(t+1)}, 3, {v(t)}")
        p(f"v_bfe_u32 {v(t+1)}, {v(VL)}, 3, 1\nv_lshlrev_b32 {v(t+1)}, 6, {v(t+1)}")
        if base_sreg is not None: p(f"v_add_u32 {v(t)}, s{base_sreg}, {v(t)}")
        p(f"v_add_u32 {v(dst2)}, {v(t)}, {v(t+1)}\nv_xor_b32 {v(t+1)}, 64, {v(t+1)}\nv_add_u32 {v(dst2+1)}, {v(t)}, {v(t+1)}")
    def unit_tr_addr(self, dst2, base_sreg, t, perm, flip_sreg=None):
        p = self.p
        p(f"v_bfe_u32 {v(t)}, {v(VL)}, 4, 1")
        if flip_sreg is not None: p(f"v_xor_b32 {v(t)}, s{flip_sreg}, {v(t)}")
        p(f"v_lshlrev_b32 {v(t)}, 1, {v(t)}")
        p(f"v_bfe_u32 {v(t+1)}, {v(VL)}, {0 if perm else 1}, 1\nv_or_b32 {v(t)}, {v(t)}, {v(t+1)}")
        p(f"v_lshrrev_b32 {v(t+1)}, 5, {v(VL)}\nv_lshlrev_b32 {v(t+1)}, 1, {v(t+1)}\nv_xor_b32 {v(t+1)}, {v(t+1)}, {v(t)}")
        p(f"v_lshlrev_b32 {v(t)}, 9, {v(t)}")
        p(f"v_bfe_u32 {v(t+2)}, {v(VL)}, 2, 2\nv_lshl_add_u32 {v(t)}, {v(t+2)}, 4, {v(t)}")
        p(f"v_bfe_u32 {v(t+2)}, {v(VL)}, {1 if perm else 0}, 1\nv_lshl_add_u32 {v(t)}, {v(t+2)}, 3, {v(t)}")
        if base_sreg is not None: p(f"v_add_u32 {v(t)}, s{base_sreg}, {v(t)}")
        p(f"v_lshl_add_u32 {v(dst2)}, {v(t+1)}, 6, {v(t)}")
        p(f"v_xor_b32 {v(t+1)}, 1, {v(t+1)}\nv_lshl_add_u32 {v(dst2+1)}, {v(t+1)}, 6, {v(t)}")

    def gemm_loop(self, nslot, reads, mfmas, dma, tick, rfront, npro, extra, valu=None):
        p = self.p
        p.wait(vm=tick[0]); p("s_barrier")
        self.stamp(20)
        self.run(reads(0))
        d = []
        for st in range(npro, nslot): d += dma(st)
        q = (len(d) + 2) // 3
        pend = [d[i * q:(i + 1) * q] for i in range(3)]
        for n in range(32):
            rd = []
            if n + 1 < 32:
                if (n + 1) % 4 == 0:
                    st = (n + 1) // 4
                    p.wait(vm=tick[st], lg=p.lg - 1); p("s_barrier")
                    d = dma(st - 1 + nslot) if st - 1 + nslot < 8 else extra.get(st, lambda: [])()
                    q = (len(d) + 3) // 4
                    pend = [d[i * q:(i + 1) * q] for i in range(4)]
                rd = reads(n + 1)
            seq = merge(mfmas(n), rd, 0, rfront)
            if pend: seq = merge(seq, pend.pop(0), len(seq) // 2)
            if valu and n in valu: seq = merge(seq, valu[n])
            self.run(seq)

    def gate(self, GX, GW, GU, GS, GT):
        p = self.p
        for i in range(4):
            for r in range(4):
                p(f"v_dot2_f32_bf16 {v(GS+r)}, {v(GX+4*r+i)}, {v(GW+i)}, {'0' if i == 0 else v(GS+r)}")
        p("s_nop 2")
        for mod in ["quad_perm:[1,0,3,2]", "quad_perm:[2,3,0,1]", "row_half_mirror", "row_mirror"]:
            for r in range(4): p(f"v_add_f32_dpp {v(GS+r)}, {v(GS+r)}, {v(GS+r)} {mod} row_mask:0xf bank_mask:0xf")
        for sw in ["v_permlane16_swap_b32", "v_permlane32_swap_b32"]:
            for r in range(4): p(f"v_mov_b32 {v(GT+r)}, {v(GS+r)}")
            for r in range(4): p(f"{sw} {v(GS+r)}, {v(GT+r)}")
            for r in range(4): p(f"v_add_f32 {v(GS+r)}, {v(GS+r)}, {v(GT+r)}")
        for r in range(4): p(f"v_mul_f32 {v(GS+r)}, {f2u(-LOG2E)}, {v(GS+r)}")
        for r in range(4): p(f"v_exp_f32 {v(GS+r)}, {v(GS+r)}")
        for r in range(4): p(f"v_add_f32 {v(GS+r)}, 1.0, {v(GS+r)}")
        for r in range(4): p(f"v_rcp_f32 {v(GS+r)}, {v(GS+r)}")
        p(f"v_mov_b32 {v(GT)}, {v(VOOB)}\nv_writelane_b32 {v(GT)}, 0, 0")

    def w_dma_addr(self, dst3, t, colbase):
        p = self.p
        for i in range(3):
            p(f"v_add_u32 {v(t)}, {64*i}, {v(VL)}\nv_mul_u32_u24 {v(t+1)}, 171, {v(t)}\nv_lshrrev_b32 {v(t+1)}, 11, {v(t+1)}")
            p(f"v_mul_u32_u24 {v(t+2)}, 12, {v(t+1)}\nv_sub_u32 {v(t)}, {v(t)}, {v(t+2)}\nv_cmp_eq_u32 vcc, 11, {v(t)}")
            p(f"v_mul_u32_u24 {v(t+1)}, 2752, {v(t+1)}\nv_lshl_add_u32 {v(t)}, {v(t)}, 4, {v(t+1)}")
            if colbase - 1024 * i: p(f"v_add_u32 {v(t)}, {colbase-1024*i}, {v(t)}")
            p(f"v_cndmask_b32 {v(dst3+i)}, {v(t)}, {v(VOOB)}, vcc")
    def w_tr_addr(self, dst, base, t):
        p = self.p
        p(f"v_lshrrev_b32 {v(t)}, 5, {v(VL)}\nv_bfe_u32 {v(t+1)}, {v(VL)}, 2, 2\nv_lshl_add_u32 {v(t)}, {v(t)}, 3, {v(t+1)}\nv_mul_u32_u24 {v(t)}, 192, {v(t)}")
        p(f"v_bfe_u32 {v(t+1)}, {v(VL)}, 4, 1\nv_lshl_add_u32 {v(t)}, {v(t+1)}, 5, {v(t)}")
        p(f"v_and_b32 {v(t+1)}, 1, {v(VL)}\nv_lshl_add_u32 {v(t)}, {v(t+1)}, 4, {v(t)}")
        p(f"v_bfe_u32 {v(t+1)}, {v(VL)}, 1, 1\nv_lshl_add_u32 {v(t)}, {v(t+1)}, 3, {v(t)}")
        p(f"v_add_u32 {v(dst)}, {base}, {v(t)}")
    def valid_masks(self):
        MA, MB = SK + 2, SK + 4
        self.p.atom(f"s_cmp_lt_u32 s{SCOL}, 7\ns_mov_b32 s{MA}, -1\ns_cselect_b32 s{MA+1}, -1, 0\ns_cselect_b32 s{MB}, -1, 0\ns_mov_b32 s{MB+1}, 0\n"
                    f"s_mov_b32 s{SK+6}, {f2u(1/72)}\ns_cselect_b32 s{SK+6}, {f2u(1/88)}, s{SK+6}")
        c1 = -2 * LOG2E * 0.7978845608028654
        self.p(f"s_mov_b32 s{SK}, {f2u(c1*0.044715)}\nv_mov_b32 {v(self.VC0)}, {f2u(c1)}")

    def gelu_pair(self, a, t, out_packed=None):
        p = self.p
        p(f"v_pk_mul_f32 {v(t,2)}, {v(a,2)}, {v(a,2)}")
        p(f"v_pk_fma_f32 {v(t,2)}, {v(t,2)}, {sp(SK)}, {v(self.VC0,2)} op_sel_hi:[1,0,0]")
        p(f"v_pk_mul_f32 {v(t,2)}, {v(t,2)}, {v(a,2)}")
        p(f"v_exp_f32 {v(t)}, {v(t)}\nv_exp_f32 {v(t+1)}, {v(t+1)}")
        p(f"v_pk_add_f32 {v(t,2)}, {v(t,2)}, 1.0 op_sel_hi:[1,0]")
        p(f"v_rcp_f32 {v(t)}, {v(t)}\nv_rcp_f32 {v(t+1)}, {v(t+1)}")
        if out_packed is not None:
            p(f"v_pk_mul_f32 {v(t,2)}, {v(t,2)}, {v(a,2)}")
            p(f"v_cvt_pk_bf16_f32 {v(out_packed)}, {v(t)}, {v(t+1)}")
        else:
            p(f"v_pk_mul_f32 {v(a,2)}, {v(t,2)}, {v(a,2)}")
    def gelu_many(self, pairs, temps, outs=None):
        p = self.p; ng = len(temps)
        for g0 in range(0, len(pairs), ng):
            streams = []
            for k, i in enumerate(range(g0, min(g0 + ng, len(pairs)))):
                sub = Prog(); save = self.p; self.p = sub
                self.gelu_pair(pairs[i], temps[k], None if outs is None else outs[i])
                self.p = save
                streams.append(sub.L)
            for j in range(len(streams[0])):
                for s in streams: p(s[j])

    VWD, VWR, VWA, VC0 = 240, 244, 248, 252
    def wsp_setup(self, t):
        p = self.p
        self.plain_dma_addr(self.VWD, 4096, t)
        p(f"s_and_b32 s{SA}, s{SWV}, 1\ns_lshl_b32 s{SA}, s{SA}, 12")
        self.plain_read_addr(self.VWR, SA, t)
        p(f"s_lshl_b32 s{SWB}, s{STB}, 18\ns_lshl_b32 s{SB_}, s{SWV}, 10\ns_add_u32 s{SWB}, s{SWB}, s{SB_}")
        self.wsp_t = {}
    def piece(self, st): return (SPB + st % 5, 0)
    def wsp_dma(self, st):
        if self.o.get("x_nowsp") and st >= 2:
            self.wsp_t[st] = -1
            return [lambda: None] * 9
        items = []; sr, im = self.piece(st)
        for hh in range(2):
            for i in range(4):
                def cb(t): self.wsp_t[st] = t
                items.append(((sr, im + hh * 4096) if i == 0 else None, (SWB, st * 128 + hh * 131072) if i == 0 else None,
                              f"buffer_load_dwordx4 {v(self.VWD+i)}, {srd(SWSP)}, s{SDO} offen offset:{i*1024} {self.o.get('wmod', '')} lds", cb))
        return self.dseq(items)
    def wsp_read(self, st):
        if self.o.get("x_nord"): return [lambda: None]
        p = self.p; sr, im = self.piece(st)
        def pre():
            for ks in range(4): p(f"v_add_u32 {v(self.VWA+ks)}, s{sr}, {v(self.VWR+ks)}")
            p.wait(vm=self.wsp_t[st], lg=p.lg - 8)
        ops = [pre]
        for nt in range(2):
            for ks in range(4):
                def f(ks=ks, nt=nt):
                    p.lds(f"ds_read_b128 {ar(((st*4+ks)*2+nt)*4,4)}, {v(self.VWA+ks)} offset:{im}")
                    if nt == 0: p(f"v_xor_b32 {v(self.VWA+ks)}, 4096, {v(self.VWA+ks)}")
                ops.append(f)
        return ops

    def prologue(self):
        p = self.p
        self.END = p.label("end")
        p(f"s_cmp_ge_u32 s2, 256\ns_cbranch_scc1 {self.END}")
        p(f"s_load_dwordx2 {sp(SX)}, s[0:1], 0\ns_load_dwordx2 {sp(PWIN)}, s[0:1], 80\ns_load_dwordx4 s[{PBRE}:{PBRE+3}], s[0:1], 24")
        p(f"s_load_dwordx2 {sp(PGW)}, s[0:1], 112\ns_load_dwordx4 s[{PLRE}:{PLRE+3}], s[0:1], 8\ns_load_dwordx2 {sp(PLDT)}, s[0:1], 56\ns_load_dwordx2 {sp(SWS)}, s[0:1], 136")
        if self.o.get("tlb", 1):
            for (r, off) in [(SWSP, 88), (SCRE, 40), (SCIM, 48), (SWOUT, 104), (SOUT, 120), (PDSK, 64), (PBSP, 96)]:
                p(f"s_load_dwordx2 {sp(r)}, s[0:1], {off}")
            for (r, n) in [(SWSP, 8388608), (SWS, WS_END), (SCRE, 524288), (SCIM, 524288), (SWOUT, 704512), (SOUT, 4194304)]:
                p(f"s_mov_b32 s{r+2}, {n}\ns_mov_b32 s{r+3}, 0x20000")
        p(f"v_lshrrev_b32 v2, 6, v0\nv_and_b32 {v(VL)}, 63, v0\nv_readfirstlane_b32 s{SWV}, v2\nv_lshlrev_b32 {v(VL16)}, 4, {v(VL)}\nv_mov_b32 {v(VOOB)}, {OOB}")
        if self.o.get("stamps"): p("v_mov_b32 v255, 0")
        self.stamp(17)
        p(f"s_and_b32 s{SA}, s2, 7\ns_lshr_b32 s{SB_}, s2, 3")
        p(f"s_and_b32 s{SC}, s{SA}, 1\ns_lshl_b32 s{SC}, s{SC}, 2\ns_and_b32 s{SD}, s{SB_}, 3\ns_add_u32 s{SCOL}, s{SC}, s{SD}")
        p(f"s_lshr_b32 s{SA}, s{SA}, 1")
        p(f"s_lshr_b32 s{SC}, s{SB_}, 2\ns_lshl_b32 s{SD}, s{SA}, 3\ns_add_u32 s{STB}, s{SD}, s{SC}")
        p(f"s_and_b32 s{SC}, s{SC}, 3\ns_lshl_b32 s{SD}, s{SA}, 2\ns_add_u32 s{SRB}, s{SD}, s{SC}")
        if self.o.get("map", 1) == 1:
            p(f"s_and_b32 s{SD}, s2, 7\ns_lshl_b32 s{SD}, s{SD}, 2\ns_lshr_b32 s{STB}, s{SB_}, 3\ns_add_u32 s{STB}, s{STB}, s{SD}\ns_and_b32 s{SJ}, s{SB_}, 7")
        else: p(f"s_mov_b32 s{SJ}, s{SCOL}")
        p(f"s_mov_b32 s{SX+2}, 2097152\ns_mov_b32 s{SX+3}, 0x20000\ns_mov_b32 s{SW1+3}, 0x20000")
        if "probe" in self.o:
            off, ls, ws_ = [int(x) for x in self.o["probe"].split(",")]
            p(f"s_load_dwordx2 {sp(SPFP)}, s[0:1], {off}\ns_lshl_b32 s{SD}, s2, 2\ns_add_u32 s{SD}, s{SD}, s{SWV}\ns_mul_i32 s{SD}, s{SD}, {ws_}")
            p(f"v_mul_u32_u24 {v(4)}, {ls}, {v(VL)}\nv_add_u32 {v(4)}, s{SD}, {v(4)}\ns_waitcnt lgkmcnt(0)")
            p(f"global_load_dword {v(5)}, {v(4)}, {sp(SPFP)}\ns_waitcnt vmcnt(0)")
            self.stamp(30)
        pf = self.o.get("pf", 2)
        if pf == 3:
            p(f"s_lshl_b32 s{SD}, s{SWV}, 8\ns_add_u32 s{SD}, s{SD}, s2\ns_mov_b32 s{SC}, 0\ns_mov_b32 s{SA}, 0")
            for (lo, off) in [(256, 80), (428, 24), (492, 32), (556, 40), (620, 48), (684, 104)]:
                p(f"s_cmp_ge_u32 s{SD}, {lo}\ns_cselect_b32 s{SC}, {off}, s{SC}\ns_cselect_b32 s{SA}, {lo}, s{SA}")
            p(f"s_cmp_lt_u32 s{SD}, 770\ns_cselect_b32 s{SPFE}, 1, 0")
            p(f"s_sub_u32 s{SD}, s{SD}, s{SA}\ns_load_dwordx2 {sp(SPFP)}, s[0:1], s{SC}")
            p(f"s_lshl_b32 s{SD}, s{SD}, 13\nv_lshl_add_u32 {v(4)}, {v(VL)}, 7, s{SD}")
        if pf == 1:
            p(f"s_lshl_b32 s{SD}, s2, 2\ns_add_u32 s{SD}, s{SD}, s{SWV}\ns_mov_b32 s{SC}, 0\ns_mov_b32 s{SA}, 0")
            for (lo, off) in [(256, 80), (428, 24), (492, 32)]:
                p(f"s_cmp_ge_u32 s{SD}, {lo}\ns_cselect_b32 s{SC}, {off}, s{SC}\ns_cselect_b32 s{SA}, {lo}, s{SA}")
            p(f"s_cmp_lt_u32 s{SD}, 556\ns_cselect_b32 s{SPFE}, 1, 0")
            p(f"s_sub_u32 s{SD}, s{SD}, s{SA}\ns_load_dwordx2 {sp(SPFP)}, s[0:1], s{SC}")
            p(f"s_lshl_b32 s{SD}, s{SD}, 13\nv_lshl_add_u32 {v(4)}, {v(VL)}, 7, s{SD}")
        if pf == 2:
            p(f"s_lshl_b32 s{SD}, s{SWV}, 8\ns_add_u32 s{SD}, s{SD}, s2\ns_mov_b32 s{SC}, 0\ns_mov_b32 s{SA}, 0\ns_mov_b32 s{SE}, 2047")
            for (lo, off, last) in [(171, 24, 511), (214, 32, 511), (257, 80, 0)]:
                p(f"s_cmp_ge_u32 s{SD}, {lo}\ns_cselect_b32 s{SC}, {off}, s{SC}\ns_cselect_b32 s{SA}, {lo}, s{SA}\ns_cselect_b32 s{SE}, {last}, s{SE}")
            p(f"s_cmp_lt_u32 s{SD}, 365\ns_cselect_b32 s{SPFE}, 1, 0")
            p(f"s_sub_u32 s{SD}, s{SD}, s{SA}\ns_load_dwordx2 {sp(SPFP)}, s[0:1], s{SC}")
            p(f"v_mul_u32_u24 {v(4)}, 52, {v(VL)}\nv_lshrrev_b32 {v(4)}, 8, {v(4)}\nv_mul_u32_u24 {v(5)}, 5, {v(4)}\nv_sub_u32 {v(5)}, {v(VL)}, {v(5)}")
            p(f"s_mul_i32 s{SA}, s{SD}, 12\nv_add_u32 {v(4)}, s{SA}, {v(4)}\nv_min_u32 {v(4)}, s{SE}, {v(4)}\nv_lshlrev_b32 {v(4)}, 10, {v(4)}\nv_lshl_add_u32 {v(4)}, {v(5)}, 7, {v(4)}\nv_add_u32 {v(4)}, 384, {v(4)}")
            p(f"s_lshl_b32 s{SD}, s{SD}, 13\ns_add_u32 s{SD}, s{SD}, {192*2752}\nv_lshl_add_u32 {v(5)}, {v(VL)}, 7, s{SD}\nv_min_u32 {v(5)}, {512*2752-4}, {v(5)}")
            p(f"s_cmp_eq_u32 s{SE}, 0\ns_cselect_b64 vcc, -1, 0\nv_cndmask_b32 {v(4)}, {v(4)}, {v(5)}, vcc")
        self.LU = p.label("U"); self.LG = p.label("G")
        p(f"s_cmp_ge_u32 s{SB_}, 16\ns_cbranch_scc1 {self.LU}")
    def code_prefetch(self, va, vd):
        if not self.o.get("cpf", 1): return
        p = self.p
        sk = p.label("cpf"); here = p.label("pc")
        nsl = self.o.get("cpfn", 6)
        p(f"s_lshr_b32 s{SA}, s2, 3\ns_and_b32 s{SA}, s{SA}, 15\ns_lshl_b32 s{SA}, s{SA}, 2\ns_add_u32 s{SA}, s{SA}, s{SWV}")
        p(f"s_cmp_ge_u32 s{SA}, {nsl}\ns_cbranch_scc1 {sk}")
        p(f"s_getpc_b64 s[{SSTMP}:{SSTMP+1}]")
        p.put(here)
        p(f"s_sub_u32 s{SSTMP}, s{SSTMP}, {here}-{NAME}\ns_subb_u32 s{SSTMP+1}, s{SSTMP+1}, 0")
        p(f"s_lshl_b32 s{SA}, s{SA}, 13\nv_lshl_add_u32 {v(va)}, {v(VL)}, 7, s{SA}\nv_min_u32 {v(va)}, {self.END}-{NAME}, {v(va)}")
        p(f"global_load_dword {v(vd)}, {v(va)}, s[{SSTMP}:{SSTMP+1}]")
        p.put(sk)
    def pf1(self, when=1):
        if {3: 1}.get(self.o.get("pf", 2), self.o.get("pf", 2)) == when:
            p = self.p; l = p.label("pf")
            p(f"s_cmp_eq_u32 s{SPFE}, 0\ns_cbranch_scc1 {l}\nglobal_load_dword {v(5)}, {v(4)}, {sp(SPFP)}")
            p.put(l)
        if self.o.get("wfirst") == when: self.touch_wsp(11, 12, 0, 1)
    def tlb_warm(self):
        p = self.p
        ls = [p.label("tw") for _ in range(4)]
        p(f"v_lshlrev_b32 {v(6)}, 19, {v(VL)}\nv_mov_b32 {v(7)}, 0")
        p(f"s_cmp_eq_u32 s{SWV}, 1\ns_cbranch_scc1 {ls[0]}\ns_cmp_eq_u32 s{SWV}, 2\ns_cbranch_scc1 {ls[1]}\ns_cmp_eq_u32 s{SWV}, 3\ns_cbranch_scc1 {ls[2]}")
        p(f"buffer_load_dword {v(8)}, {v(6)}, {srd(SWS)}, 0 offen sc1\nglobal_load_ushort {v(9)}, {v(7)}, {sp(PGW)}\ns_branch {ls[3]}")
        p.put(ls[0]); p(f"buffer_load_dword {v(8)}, {v(6)}, {srd(SWSP)}, 0 offen\nglobal_load_ushort {v(9)}, {v(7)}, {sp(PBSP)}\nglobal_load_ushort {v(10)}, {v(7)}, {sp(PDSK)}\ns_branch {ls[3]}")
        p.put(ls[1]); p(f"buffer_load_dword {v(8)}, {v(6)}, {srd(SOUT)}, 0 offen sc1\nbuffer_load_dword {v(9)}, {v(6)}, {srd(SWOUT)}, 0 offen\ns_branch {ls[3]}")
        p.put(ls[2]); p(f"buffer_load_dword {v(8)}, {v(6)}, {srd(SCRE)}, 0 offen\nbuffer_load_dword {v(9)}, {v(6)}, {srd(SCIM)}, 0 offen")
        p.put(ls[3])
    def late_args(self):
        p = self.p
        if self.o.get("tlb", 1):
            if self.o.get("tlb", 1) == 1: self.tlb_warm()
            self.pf1(5)
            p(f"s_load_dword s{ST_T}, {sp(SWS)}, {EPOCH}")
            return
        for (r, off) in [(SWSP, 88), (SCRE, 40), (SCIM, 48), (SWOUT, 104), (SOUT, 120), (PDSK, 64), (PBSP, 96)]:
            p(f"s_load_dwordx2 {sp(r)}, s[0:1], {off}")
        p(f"s_load_dword s{ST_T}, {sp(SWS)}, {EPOCH}")
        for (r, n) in [(SWSP, 8388608), (SWS, WS_END), (SCRE, 524288), (SCIM, 524288), (SWOUT, 704512), (SOUT, 4194304)]:
            p(f"s_mov_b32 s{r+2}, {n}\ns_mov_b32 s{r+3}, 0x20000")
    def epoch2(self):
        p = self.p
        p.wait_lg_all()
        p(f"s_mul_i32 s{ST_T}, s{ST_T}, 0x9E3779B1\ns_add_u32 s{ST_T}, s{ST_T}, 0x7F4A7C15")

    def touch_wsp(self, va, vd, k, n):
        p = self.p
        if k == 0:
            p(f"s_lshr_b32 s{SB_}, s2, 3\ns_lshl_b32 s{SB_}, s{SB_}, 2\ns_add_u32 s{SB_}, s{SB_}, s{SWV}\ns_lshl_b32 s{SB_}, s{SB_}, 13")
            p(f"s_and_b32 s{SA}, s2, 7\ns_lshl_b32 s{SA}, s{SA}, 20\ns_add_u32 s87, s{SA}, s{SB_}")
            p(f"v_cmp_gt_u32 vcc, {64//n}, {v(VL)}\nv_lshlrev_b32 {v(va)}, 7, {v(VL)}\ns_nop 0\nv_cndmask_b32 {v(va)}, {v(VOOB)}, {v(va)}, vcc")
        else: p(f"s_add_u32 s87, s87, {8192//n}")
        p.vmem(f"buffer_load_dword {v(vd)}, {v(va)}, {srd(SWSP)}, s87 offen {self.o.get('tmod', '')}")
    def ctouch(self, va, vd):
        p = self.p; l = p.label("ct")
        p(f"s_lshl_b32 s{SA}, s{SWV}, 8\ns_add_u32 s{SA}, s{SA}, s2\ns_cmp_ge_u32 s{SA}, 856\ns_cbranch_scc1 {l}")
        p(f"s_cmp_lt_u32 s{SA}, 256\ns_cselect_b64 {sp(SSTMP)}, {sp(SCRE)}, {sp(SCIM)}")
        p(f"s_sub_u32 s{SB_}, s{SA}, 512\ns_and_b32 s{SSPIN}, s{SA}, 255\ns_cmp_ge_u32 s{SA}, 512\ns_cselect_b64 {sp(SSTMP)}, {sp(SWOUT)}, {sp(SSTMP)}\ns_cselect_b32 s{SA}, s{SB_}, s{SSPIN}")
        p(f"s_lshl_b32 s{SA}, s{SA}, 11\nv_and_b32 {v(vd)}, 15, {v(VL)}\nv_lshlrev_b32 {v(vd)}, 7, {v(vd)}\nv_add_u32 {v(vd)}, s{SA}, {v(vd)}")
        p(f"global_load_dword {v(vd)}, {v(vd)}, {sp(SSTMP)}")
        p.put(l)
    def paced(self, valu, va, vd, t0, dt):
        if "ct" in self.o: valu.setdefault(self.o["ct"], []).append(lambda: self.ctouch(va, vd + 1 if vd != 205 else 4))
        n = self.o.get("tn", 4)
        if self.o.get("touch", 1) != 1: return
        for k in range(n):
            valu.setdefault(t0 + k * dt, []).append(lambda k=k: self.touch_wsp(va, vd, k, n))
    def touch_c(self, va, vd):
        p = self.p
        p(f"v_lshlrev_b32 {v(va)}, 7, {v(VL)}\ns_lshr_b32 s{SB_}, s2, 3\ns_lshl_b32 s{SB_}, s{SB_}, 2\ns_add_u32 s{SB_}, s{SB_}, s{SWV}\ns_lshl_b32 s{SA}, s{SB_}, 13")
        p.vmem(f"buffer_load_dword {v(vd)}, {v(va)}, {srd(SWOUT)}, s{SA} offen")
        p.vmem(f"buffer_load_dword {v(vd)}, {v(va)}, {srd(SCRE)}, s{SA} offen")
        p.vmem(f"buffer_load_dword {v(vd)}, {v(va)}, {srd(SCIM)}, s{SA} offen")
        p(f"s_add_u32 s{SA}, s{SA}, 524288")
        p.vmem(f"buffer_load_dword {v(vd)}, {v(va)}, {srd(SWOUT)}, s{SA} offen")
    GTR, GPL = 236, 238
    def g_early(self, t):
        p = self.p
        p(f"s_lshr_b32 s{SA}, s{SWV}, 1")
        self.unit_tr_addr(self.GTR, SREG, t, True, flip_sreg=SA)
        p(f"s_lshl_b32 s{SA}, s{SJ}, 13\ns_add_u32 s{SA}, s{SA}, {ZF}\ns_lshl_b32 s{SB_}, s{SWV}, 11\ns_add_u32 s{SB_}, s{SB_}, s{SA}")
        self.poll_addr(self.GPL, [(SB_, 16)])
        p(f"s_lshl_b32 s{SA}, s{STB}, 8\ns_add_u32 s{SA}, s{SA}, {ZF}")
        p(f"v_bfe_u32 {v(t)}, {v(VL)}, 1, 3\nv_lshlrev_b32 {v(t)}, 13, {v(t)}\nv_and_b32 {v(t+1)}, 1, {v(VL)}\nv_lshl_add_u32 {v(t)}, {v(t+1)}, 7, {v(t)}\nv_add_u32 {v(t)}, s{SA}, {v(t)}")
        p(f"s_mov_b32 vcc_lo, 0xffff0000\ns_mov_b32 vcc_hi, 0\nv_cndmask_b32 {v(self.GPL)}, {v(self.GPL)}, {v(t)}, vcc")
        p(f"s_lshl_b32 s{SA}, s{SJ}, 6\ns_lshl_b32 s{SB_}, s{STB}, 1\ns_add_u32 s{SA}, s{SA}, s{SB_}\ns_and_b32 s{SB_}, s{SWV}, 1\ns_add_u32 s{SZI}, s{SA}, s{SB_}")
        p(f"s_lshl_b32 s{SA}, s{SZI}, 7\ns_add_u32 s{SA}, s{SA}, {Z1F}\nv_writelane_b32 {v(self.GPL)}, s{SA}, 32")
        p(f"s_lshl_b32 s{SA}, s{SJ}, 6\ns_lshl_b32 s{SB_}, s{SWV}, 4\ns_add_u32 s{SA}, s{SA}, s{SB_}\ns_mul_i32 s{SGB}, s{SA}, 5632\ns_add_u32 s{SGB}, s{SGB}, {Z2N}")
    def g_poll_issue(self):
        self.gp = self.p.vmem(f"buffer_load_dword {v(self.GPL+1)}, {v(self.GPL)}, {srd(SWS)}, 0 offen sc1")

    def phase_z(self):
        p = self.p; o = self.o
        ACC, FA, FB, XR, WR, XD, WD, T = 16, 64, 88, 96, 100, 104, 108, 112
        p.c("==== phase A: Z ====")
        self.plain_dma_addr(XD, 1024, T)
        p(f"s_lshl_b32 s{SXB}, s{SRB}, 17\ns_lshl_b32 s{SA}, s{SWV}, 15\ns_add_u32 s{SXB}, s{SXB}, s{SA}")
        p(f"s_mul_i32 s{SREG}, s{SWV}, 40960")
        tick = {}
        def xdma(st, cb=None):
            return [((SREG, (st & 3) * 4096) if i == 0 else None, (SXB, st * 128) if i == 0 else None,
                     f"buffer_load_dwordx4 {v(XD+i)}, {srd(SX)}, s{SDO} offen offset:{i*1024} lds", cb) for i in range(4)]
        def wdma(st, cb=None):
            return [((SWL, (st & 3) * 40960) if i == 0 else None, (SW1B, st * 64 * 2752) if i == 0 else None,
                     f"buffer_load_dwordx4 {v(WD+i)}, {srd(SW1)}, s{SDO} offen offset:{i*1024} lds", cb) for i in range(3)]
        def dma(st):
            def cb(t): tick[st] = t
            return self.dseq(wdma(st) + xdma(st, cb))
        self.w_dma_addr(WD, T, 1376)
        p(f"s_mul_i32 s{SW1B}, s{SWV}, {16*2752}\ns_mul_i32 s{SA}, s{SCOL}, 176\ns_add_u32 s{SW1B}, s{SW1B}, s{SA}")
        p(f"s_mul_i32 s{SWL}, s{SWV}, 3072\ns_add_u32 s{SWL}, s{SWL}, 16384\ns_mov_b32 s{SW1+2}, {512*2752}")
        p.wait_lg_all()
        p(f"s_mov_b64 {sp(SW1)}, {sp(PWIN)}")
        npro = o.get("npro", 3)
        self.code_prefetch(170, 171)
        self.pf1()
        self.run(dma(0))
        self.late_args()
        def setup():
            self.plain_read_addr(XR, SREG, T)
            self.w_tr_addr(WR, 16384, T)
            self.p(f"v_add_u32 {v(WR+1)}, 81920, {v(WR)}")
            self.wsp_setup(T)
            self.p(f"s_add_u32 s{SPB}, s{SREG}, 32768\ns_mov_b32 s{SPB+1}, s{SREG}\ns_add_u32 s{SPB+2}, s{SREG}, 8192\ns_add_u32 s{SPB+3}, s{SREG}, 16384\ns_add_u32 s{SPB+4}, s{SREG}, 24576")
            self.valid_masks()
        d = []
        for st in range(1, npro): d += dma(st)
        self.run(merge(self.cap(setup), d))
        self.pf1(2)
        self.epoch2()
        self.stamp(0)
        rt = {}
        def reads(n):
            st, ks = n // 4, n % 4; sl = st & 3; s = n & 1; ops = []
            def rb(): rt[(n, 'b')] = p.lds(f"ds_read_b128 {v(FB+4*s,4)}, {v(XR+ks)} offset:{sl*4096}")
            ops.append(rb)
            for mt in range(3):
                for a in range(2):
                    def ra(mt=mt, a=a):
                        rt[(n, mt)] = p.lds(f"ds_read_b64_tr_b16 {v(FA+12*s+4*mt+2*a,2)}, {v(WR+(sl>>1))} offset:{(sl&1)*40960+ks*3072+a*768+mt*64}")
                    ops.append(ra)
            return ops
        def mfmas(n):
            s = n & 1; ops = []
            for mt in range(3):
                def m(mt=mt):
                    p.wait(lg=rt[(n, mt)])
                    c = "0" if n == 0 else v(ACC + 16 * mt, 16)
                    p(f"{MF} {v(ACC+16*mt,16)}, {v(FA+12*s+4*mt,4)}, {v(FB+4*s,4)}, {c}")
                ops.append(m)
            return ops
        GX, GW, GU, GS, GT = 128, 144, 148, 156, 160
        gt = {}
        def gload():
            p(f"s_lshl_b32 s{SE}, s{SRB}, 2\ns_add_u32 s{SE}, s{SE}, s{SWV}\ns_lshl_b32 s{SE}, s{SE}, 3\ns_add_u32 s{SE}, s{SE}, s{SCOL}\ns_lshl_b32 s{SA}, s{SE}, 12")
            for r in range(4): p.vmem(f"buffer_load_dwordx4 {v(GX+4*r,4)}, {v(VL16)}, {srd(SX)}, s{SA} offen offset:{r*1024}")
            gt['t'] = p.vmem(f"global_load_dwordx4 {v(GW,4)}, {v(VL16)}, {sp(PGW)}")
        def gstore():
            p(f"s_lshl_b32 s{SA}, s{SE}, 4\ns_add_u32 s{SA}, s{SA}, {GATE}")
            p.vmem(f"buffer_store_dwordx4 {v(GS,4)}, {v(GT)}, {srd(SWS)}, s{SA} offen sc1")
        gops = [lambda: p.wait(vm=gt['t'])] + self.cap(lambda: self.gate(GX, GW, GU, GS, GT)) + [gstore]
        valu = {28: [gload]}
        def touch_u():
            p(f"v_lshlrev_b32 {v(170)}, 7, {v(VL)}\ns_lshr_b32 s{SB_}, s2, 3\ns_lshl_b32 s{SB_}, s{SB_}, 2\ns_add_u32 s{SB_}, s{SB_}, s{SWV}\ns_lshl_b32 s{SB_}, s{SB_}, 13")
            p(f"s_and_b32 s{SA}, s2, 7\ns_lshl_b32 s{SA}, s{SA}, 20\ns_add_u32 s{SA}, s{SA}, s{SB_}\ns_add_u32 s{SA}, s{SA}, {1<<19}")
            p.vmem(f"buffer_load_dword {v(171)}, {v(170)}, {srd(SWSP)}, s{SA} offen")
        if o.get("touchu"): valu[o["touchu"]] = [touch_u]
        def warm():
            p(f"v_lshlrev_b32 {v(170)}, 18, {v(VL)}\nv_lshlrev_b32 {v(172)}, 16, {v(VL)}\nv_lshlrev_b32 {v(173)}, 13, {v(VL)}")
            ls = [p.label("wm") for _ in range(4)]
            p(f"s_cmp_eq_u32 s{SWV}, 1\ns_cbranch_scc1 {ls[0]}\ns_cmp_eq_u32 s{SWV}, 2\ns_cbranch_scc1 {ls[1]}\ns_cmp_eq_u32 s{SWV}, 3\ns_cbranch_scc1 {ls[2]}")
            p(f"buffer_load_dword {v(171)}, {v(170)}, {srd(SWS)}, 0 offen sc1\ns_branch {ls[3]}")
            p.put(ls[0]); p(f"buffer_load_dword {v(171)}, {v(172)}, {srd(SOUT)}, 0 offen sc1\ns_branch {ls[3]}")
            p.put(ls[1]); p(f"buffer_load_dword {v(171)}, {v(173)}, {srd(SCRE)}, 0 offen\nbuffer_load_dword {v(171)}, {v(173)}, {srd(SCIM)}, 0 offen\ns_branch {ls[3]}")
            p.put(ls[2]); p(f"v_lshlrev_b32 {v(173)}, 14, {v(VL)}\nbuffer_load_dword {v(171)}, {v(173)}, {srd(SWOUT)}, 0 offen")
            p.put(ls[3])
        if o.get("warm"): valu[31] = [warm]
        def ztouch(part):
            if part == 0:
                p(f"v_lshlrev_b32 {v(174)}, 7, {v(VL)}\ns_lshr_b32 s{SB_}, s2, 3\ns_lshl_b32 s{SB_}, s{SB_}, 2\ns_add_u32 s{SB_}, s{SB_}, s{SWV}")
                p(f"s_and_b32 s{SA}, s2, 7\ns_lshl_b32 s{SPFP+1}, s{SB_}, 3\ns_add_u32 s{SPFP+1}, s{SPFP+1}, s{SA}")
                p(f"s_lshl_b32 s{SA}, s{SA}, 20\ns_lshl_b32 s{SB_}, s{SB_}, 13\ns_add_u32 s{SPFP}, s{SA}, s{SB_}")
                p.vmem(f"buffer_load_dword {v(175)}, {v(174)}, {srd(SWSP)}, s{SPFP} offen")
            if part == 1:
                p(f"s_add_u32 s{SPFP}, s{SPFP}, {1<<19}")
                p.vmem(f"buffer_load_dword {v(175)}, {v(174)}, {srd(SWSP)}, s{SPFP} offen")
            if part == 2:
                l = p.label("zt")
                p(f"s_cmp_ge_u32 s{SPFP+1}, 428\ns_cbranch_scc1 {l}")
                p(f"s_cmp_lt_u32 s{SPFP+1}, 128\ns_cselect_b64 {sp(SSTMP)}, {sp(SCRE)}, {sp(SCIM)}\ns_and_b32 s{SA}, s{SPFP+1}, 127")
                p(f"s_sub_u32 s{SB_}, s{SPFP+1}, 256\ns_cmp_ge_u32 s{SPFP+1}, 256\ns_cselect_b64 {sp(SSTMP)}, {sp(SWOUT)}, {sp(SSTMP)}\ns_cselect_b32 s{SA}, s{SB_}, s{SA}")
                p(f"s_lshl_b32 s{SA}, s{SA}, 12\nv_and_b32 {v(174)}, 4095, {v(174)}\nv_add_u32 {v(174)}, s{SA}, {v(174)}")
                p(f"global_load_dword {v(175)}, {v(174)}, {sp(SSTMP)}")
                p.put(l)
        if o.get("touch", 1) == 2:
            for k in range(3): valu.setdefault(o.get(f"zs{k}", [0, 0, 0][k]), []).append(lambda k=k: ztouch(k))
        else: self.paced(valu, 174, 175, o.get("zt0", 6), o.get("zdt", 6))
        self.gemm_loop(4, reads, mfmas, dma, tick, 2, npro, {o.get('ze0', 5): lambda: self.wsp_dma(0), o.get('ze1', 6): lambda: self.wsp_dma(1)}, valu)
        self.stamp(1)
        MA, MB = SK + 2, SK + 4
        GR, VLO = 72, 80
        def seg1b():
            p = self.p
            S0, S1, MU = 64, 66, 68
            p(f"v_pk_add_f32 {v(S0,2)}, {v(ACC,2)}, {v(ACC+2,2)}\nv_pk_add_f32 {v(S1,2)}, {v(ACC+4,2)}, {v(ACC+6,2)}")
            for i in range(4, 16):
                s = S0 if i % 2 == 0 else S1
                p(f"v_pk_add_f32 {v(s,2)}, {v(s,2)}, {v(ACC+2*i,2)}")
            for (m, b) in [(MA, 16), (MB, 20)]:
                p(f"s_mov_b64 exec, {sp(m)}")
                for i in range(b, b + 4):
                    s = S0 if i % 2 == 0 else S1
                    p(f"v_pk_add_f32 {v(s,2)}, {v(s,2)}, {v(ACC+2*i,2)}")
            p("s_mov_b64 exec, -1")
            p(f"v_pk_add_f32 {v(S0,2)}, {v(S0,2)}, {v(S1,2)}\nv_add_f32 {v(GR)}, {v(S0)}, {v(S0+1)}")
            p(f"v_mov_b32 {v(S0)}, {v(GR)}\nv_mov_b32 {v(GR+1)}, s{ST_T}\nv_mov_b32 {v(GR+3)}, s{ST_T}\nv_permlane32_swap_b32 {v(GR)}, {v(S0)}\nv_add_f32 {v(GR)}, {v(GR)}, {v(S0)}")
            p(f"v_mul_f32 {v(MU)}, s{SK+6}, {v(GR)}")
            D0, D1 = 76, 78
            def m2(i, first=False):
                d = D0 if i % 2 == 0 else D1; s = S0 if i % 2 == 0 else S1
                p(f"v_pk_add_f32 {v(d,2)}, {v(ACC+2*i,2)}, {v(MU,2)} op_sel_hi:[1,0] neg_lo:[0,1] neg_hi:[0,1]")
                if first: p(f"v_pk_mul_f32 {v(s,2)}, {v(d,2)}, {v(d,2)}")
                else: p(f"v_pk_fma_f32 {v(s,2)}, {v(d,2)}, {v(d,2)}, {v(s,2)}")
            for i in range(16): m2(i, i < 2)
            for (m, b) in [(MA, 16), (MB, 20)]:
                p(f"s_mov_b64 exec, {sp(m)}")
                for i in range(b, b + 4): m2(i)
            p("s_mov_b64 exec, -1")
            p(f"v_pk_add_f32 {v(S0,2)}, {v(S0,2)}, {v(S1,2)}\nv_add_f32 {v(GR+2)}, {v(S0)}, {v(S0+1)}")
            p(f"v_mov_b32 {v(S0)}, {v(GR+2)}\nv_cmp_gt_u32 vcc, 32, {v(VL)}")
            p(f"s_lshl_b32 s{SC}, s{SRB}, 2\ns_add_u32 s{SC}, s{SC}, s{SWV}")
            p(f"v_permlane32_swap_b32 {v(GR+2)}, {v(S0)}\nv_cndmask_b32 {v(VLO)}, {v(VOOB)}, {v(VL16)}, vcc\nv_add_f32 {v(GR+2)}, {v(GR+2)}, {v(S0)}")
            p(f"s_lshl_b32 s{SD}, s{SC}, 12\ns_add_u32 s{SD}, s{SD}, {ST}\ns_lshl_b32 s{SA}, s{SCOL}, 9\ns_add_u32 s{SA}, s{SA}, s{SD}")
        seg1 = self.cap(lambda: self.gelu_many([ACC + 2 * i for i in range(24)], [64, 68, 72, 76]))
        h = len(seg1) // 5
        f1 = self.wsp_dma(2) + [lambda: p("s_barrier")]
        f2 = self.wsp_dma(3) + self.wsp_dma(4)
        self.run(merge(seg1[:h], f1) + merge(seg1[h:], f2))
        seg1b()
        p.vmem(f"buffer_store_dwordx4 {v(GR,4)}, {v(VLO)}, {srd(SWS)}, s{SA} offen sc1")
        self.stamp(2)
        lgw = lambda: p.wait(lg=p.lg - 1)
        Q0, Q1, QA, QB = 112, 113, 114, 115
        MN, VR, N3, I3, TM = 80, 81, 82, 83, 84
        def misc():
            p = self.p
            self.g_early(120)
            p(f"v_lshrrev_b32 {v(Q1)}, 5, {v(VL)}\nv_lshlrev_b32 {v(Q1)}, 6, {v(Q1)}\nv_xor_b32 {v(Q0)}, {v(VL16)}, {v(Q1)}\nv_xor_b32 {v(Q1)}, 128, {v(Q0)}")
            p(f"v_cndmask_b32 {v(QA)}, {v(VOOB)}, {v(Q0)}, {sp(MA)}\nv_cndmask_b32 {v(QB)}, {v(VOOB)}, {v(Q1)}, {sp(MB)}")
            p(f"s_lshl_b32 s{SA}, s{SCOL}, 6\ns_add_u32 s{SC}, s{SA}, s{SC}\ns_mul_i32 s{SE}, s{SC}, 5632")
            self.flag_prep(118)
            p(f"v_cmp_gt_u32 vcc, 32, {v(VL)}\nv_mov_b32 {v(N3)}, {f2u(72.0)}\nv_mov_b32 {v(TM)}, {f2u(88.0)}\nv_mov_b32 {v(I3)}, {f2u(1/72)}\nv_mov_b32 {v(TM+1)}, {f2u(1/88)}")
            p(f"v_cndmask_b32 {v(N3)}, {v(N3)}, {v(TM)}, vcc\nv_cndmask_b32 {v(I3)}, {v(I3)}, {v(TM+1)}, vcc")
        za = o.get("za", 1)
        f = self.wsp_read(0) + self.wsp_read(1) + [lgw]
        for st in range(5, 5 + za): f += self.wsp_dma(st)
        self.run(merge(gops + self.cap(misc), f))
        self.stamp(3)
        SG = 64
        for q in range(4):
            ts = p.vmem(f"buffer_load_dwordx4 {v(SG+4*q,4)}, {v(VL16)}, {srd(SWS)}, s{SD} offen offset:{q*1024} sc1")
        for st in range(5 + za, 7): self.run(self.wsp_dma(st))
        l = p.label("sp"); dl = p.label("sd")
        p.wait(vm=ts)
        p(f"s_mov_b32 s{SSPIN}, 0")
        p.put(l)
        X0 = 116
        p(f"v_xor_b32 {v(MN)}, s{ST_T}, {v(SG+1)}\nv_xor_b32 {v(VR)}, s{ST_T}, {v(SG+3)}")
        for r in [5, 9, 13]:
            p(f"v_xor_b32 {v(X0)}, s{ST_T}, {v(SG+r)}\nv_xor_b32 {v(X0+1)}, s{ST_T}, {v(SG+r+2)}\nv_or3_b32 {v(MN)}, {v(MN)}, {v(X0)}, {v(X0+1)}")
        p(f"v_or_b32 {v(MN)}, {v(MN)}, {v(VR)}")
        p(f"v_cmp_ne_u32 vcc, 0, {v(MN)}\ns_cmp_eq_u64 vcc, 0\ns_cbranch_scc1 {dl}")
        for q in range(4):
            p(f"buffer_load_dwordx4 {v(SG+4*q,4)}, {v(VL16)}, {srd(SWS)}, s{SD} offen offset:{q*1024} sc1")
        p("s_waitcnt vmcnt(0)")
        p(f"s_add_u32 s{SSPIN}, s{SSPIN}, 1\ns_cmp_lt_u32 s{SSPIN}, {SPIN}\ns_cbranch_scc1 {l}")
        p.put(dl)
        self.stamp(4)
        p(f"v_add_f32 {v(MN)}, {v(SG)}, {v(SG+4)}\nv_add_f32 {v(TM+2)}, {v(SG+8)}, {v(SG+12)}\nv_add_f32 {v(MN)}, {v(MN)}, {v(TM+2)}")
        p(f"v_mov_b32 {v(TM+3)}, {v(MN)}\nv_add_f32 {v(VR)}, {v(SG+2)}, {v(SG+6)}\nv_add_f32 {v(TM+2)}, {v(SG+10)}, {v(SG+14)}")
        p(f"v_permlane32_swap_b32 {v(MN)}, {v(TM+3)}\nv_add_f32 {v(VR)}, {v(VR)}, {v(TM+2)}\nv_add_f32 {v(MN)}, {v(MN)}, {v(TM+3)}")
        p(f"v_mul_f32 {v(MN)}, {f2u(1/688)}, {v(MN)}")
        for q in range(4):
            n_, i_ = (TM, TM + 1) if q < 3 else (N3, I3)
            p(f"v_fma_f32 {v(TM+2)}, {v(SG+4*q)}, {v(i_)}, -{v(MN)}\nv_mul_f32 {v(TM+2)}, {v(TM+2)}, {v(TM+2)}\nv_fmac_f32 {v(VR)}, {v(TM+2)}, {v(n_)}")
        self.xhalf_sum(VR, TM)
        p(f"v_mov_b32 {v(TM)}, {f2u(1e-5)}\nv_fmac_f32 {v(TM)}, {f2u(1/688)}, {v(VR)}\nv_rsq_f32 {v(VR)}, {v(TM)}")
        p(f"s_add_u32 s{SA}, s{SE}, {Z2N}\ns_add_u32 s{SB_}, s{SA}, 4096")
        p(f"v_mul_f32 {v(MN)}, {v(MN)}, {v(VR)}")
        ZP = 88
        for u in range(6):
            mt, q = u >> 1, u & 1
            R4 = range(4 * u, 4 * u + 4)
            for i in R4: p(f"v_pk_fma_f32 {v(ACC+2*i,2)}, {v(ACC+2*i,2)}, {v(MN,2)}, {v(MN,2)} op_sel:[0,1,0] op_sel_hi:[1,1,0] neg_lo:[0,0,1] neg_hi:[0,0,1]")
            for i in R4: p(f"v_cvt_pk_bf16_f32 {v(ZP+i)}, {v(ACC+2*i)}, {v(ACC+2*i+1)}")
            r = v(ZP + 4 * u, 4)
            if mt < 2: t = p.vmem(f"buffer_store_dwordx4 {r}, {v(Q0+q)}, {srd(SWS)}, s{SA} offen offset:{mt*2048+q*1024} sc1")
            else: t = p.vmem(f"buffer_store_dwordx4 {r}, {v(QA+q)}, {srd(SWS)}, s{SB_} offen offset:{q*1024} sc1")
        p(f"s_lshl_b32 s{SE}, s{SC}, 7\ns_add_u32 s{SE}, s{SE}, {ZF}")
        for st in range(2, 5): self.run(self.wsp_read(st))
        p.wait(vm=t)
        self.flag(SE, 118)
        self.run([lgw] + self.wsp_dma(7))
        if o.get("touchc", 0): self.touch_c(170, 171)
        for st in range(5, 8): self.run(self.wsp_read(st))
        self.g_poll_issue()
        p(f"s_mov_b32 s{SLATE}, 0")
        self.stamp(5)
        p(f"s_branch {self.LG}")

    def phase_u(self):
        p = self.p; o = self.o
        ACC, ZA, FA, FB, FW, FX = 16, 80, 128, 144, 160, 184
        XR, BR, X1R, WR, XD, BD, WD, T = 192, 196, 200, 204, 206, 210, 214, 60
        p.c("==== phase A: U ====")
        p.put(self.LU)
        WT, WP = SK + 8, SK + 9
        p(f"v_lshrrev_b32 {v(T)}, 5, {v(VL)}\nv_lshlrev_b32 {v(T)}, 15, {v(T)}")
        p(f"v_bfe_u32 {v(T+1)}, {v(VL)}, 3, 1\nv_lshl_add_u32 {v(T)}, {v(T+1)}, 14, {v(T)}")
        p(f"v_bfe_u32 {v(T+1)}, {v(VL)}, 4, 1\nv_lshl_add_u32 {v(T)}, {v(T+1)}, 10, {v(T)}")
        self.plain_dma_addr2(XD, T, T + 1, 2048)
        p(f"s_lshr_b32 s{WP}, s{SWV}, 1\ns_and_b32 s{WT}, s{SWV}, 1\ns_lshl_b32 s{SA}, s{WT}, 5")
        for i in range(4): p(f"v_xor_b32 {v(XD+i)}, s{SA}, {v(XD+i)}")
        self.plain_dma_addr(BD, 1024, T)
        self.w_dma_addr(WD, T, 0)
        p(f"s_lshl_b32 s{SXB}, s{SRB}, 17\ns_lshl_b32 s{SD}, s{WP}, 16\ns_add_u32 s{SXB}, s{SXB}, s{SD}\ns_lshl_b32 s{SD}, s{WT}, 13\ns_add_u32 s{SXB}, s{SXB}, s{SD}")
        p(f"s_lshl_b32 s{SW1B}, s{SCOL}, 16\ns_lshl_b32 s{SD}, s{WT}, 15\ns_add_u32 s{SW1B}, s{SW1B}, s{SD}")
        p(f"s_lshl_b32 s{SXL}, s{SWV}, 12\ns_mov_b32 s{SW1+2}, 524288")
        SWIB = SCB
        p(f"s_mul_i32 s{SWIB}, s{SWV}, {16*2752}\ns_mul_i32 s{SA}, s{SCOL}, 176\ns_add_u32 s{SWIB}, s{SWIB}, s{SA}")
        p(f"s_mul_i32 s{SWL}, s{SWV}, 3072\ns_add_u32 s{SWL}, s{SWL}, 98304\ns_mov_b32 s{PWIN+2}, {512*2752}\ns_mov_b32 s{PWIN+3}, 0x20000")
        PR = 228
        p(f"s_lshl_b32 s{SD}, s{SRB}, 1\ns_add_u32 s{SD}, s{SD}, s{WT}")
        p(f"s_lshl_b32 s{SA}, s{SCOL}, 1\ns_add_u32 s{SA}, s{SA}, s{WP}")
        p(f"s_lshl_b32 s{SE}, s{SD}, 4\ns_add_u32 s{SE}, s{SE}, s{SA}")
        p(f"s_lshl_b32 s{SA}, s{SA}, 5\nv_and_b32 {v(T)}, 31, {v(VL)}\nv_add_lshl_u32 {v(T)}, {v(T)}, s{SA}, 1")
        p.wait_lg_all()
        p(f"s_cmp_eq_u32 s{WP}, 0\ns_cselect_b64 {sp(SW1)}, {sp(PBRE)}, {sp(PBIM)}")
        tick = {}
        def dma(st):
            sl = st % 3; items = []
            def cb(t): tick[st] = t
            for i in range(3):
                items.append(((SWL, sl * 12288) if i == 0 else None, (SWIB, st * 64 * 2752) if i == 0 else None,
                              f"buffer_load_dwordx4 {v(WD+i)}, {srd(PWIN)}, s{SDO} offen offset:{i*1024} lds", None))
            for (vd, sr, sb, lb) in [(XD, SX, SXB, 0), (BD, SW1, SW1B, 49152)]:
                for i in range(4):
                    items.append(((SXL, lb + sl * 16384) if i == 0 else None, (sb, st * 128) if i == 0 else None,
                                  f"buffer_load_dwordx4 {v(vd+i)}, {srd(sr)}, s{SDO} offen offset:{i*1024} lds", cb))
            return self.dseq(items)
        self.pf1()
        self.run(dma(0))
        p.vmem(f"global_load_ushort {v(PR)}, {v(T)}, {sp(PLRE)}")
        p.vmem(f"global_load_ushort {v(PR+1)}, {v(T)}, {sp(PLIM)}")
        tp = p.vmem(f"global_load_ushort {v(PR+2)}, {v(T)}, {sp(PLDT)}")
        npro = o.get("npro_u", 2)
        self.late_args()
        def setup():
            p = self.p
            p(f"s_mul_i32 s{SREG}, s{SWV}, 40960\ns_lshl_b32 s{SA}, s{WT}, 13")
            self.plain_read_addr(XR, SA, T)
            p(f"s_lshl_b32 s{SA}, s{WP}, 12\ns_add_u32 s{SA}, s{SA}, 49152")
            self.plain_read_addr(BR, SA, T)
            self.w_tr_addr(WR, 98304, T)
            p(f"v_bfe_u32 {v(T)}, {v(VL)}, 3, 1\nv_lshlrev_b32 {v(T+1)}, 12, {v(T)}\nv_xor_b32 {v(T)}, s{WT}, {v(T)}\nv_lshlrev_b32 {v(T)}, 1, {v(T)}")
            p(f"v_bfe_u32 {v(T+2)}, {v(VL)}, 1, 2\nv_lshl_add_u32 {v(T+1)}, {v(T+2)}, 10, {v(T+1)}")
            p(f"v_and_b32 {v(T+2)}, 1, {v(T+2)}\nv_lshl_add_u32 {v(T)}, {v(T+2)}, 2, {v(T)}")
            p(f"v_and_b32 {v(T+2)}, 1, {v(VL)}\nv_lshl_add_u32 {v(T+1)}, {v(T+2)}, 8, {v(T+1)}\nv_or_b32 {v(T)}, {v(T)}, {v(T+2)}")
            p(f"v_bfe_u32 {v(T+2)}, {v(VL)}, 4, 1\nv_lshl_add_u32 {v(T+1)}, {v(T+2)}, 7, {v(T+1)}")
            p(f"s_lshl_b32 s{SA}, s{WP}, 13\ns_lshl_b32 s{SB_}, s{WT}, 9\ns_add_u32 s{SA}, s{SA}, s{SB_}\nv_add_u32 {v(T+1)}, s{SA}, {v(T+1)}")
            p(f"v_lshrrev_b32 {v(T+2)}, 5, {v(VL)}\nv_xor_b32 {v(T)}, {v(T)}, {v(T+2)}\nv_lshlrev_b32 {v(T)}, 4, {v(T)}")
            for ks in range(4): p(f"v_xor_b32 {v(X1R+ks)}, {32*ks}, {v(T)}\nv_add_u32 {v(X1R+ks)}, {v(X1R+ks)}, {v(T+1)}")
            self.wsp_setup(T)
            p(f"s_lshl_b32 s{SPB+1}, s{WT}, 13\ns_mul_i32 s{SA}, s{WP}, 49152\ns_add_u32 s{SPB+1}, s{SPB+1}, s{SA}\ns_add_u32 s{SPB}, s{SPB+1}, 32768\ns_add_u32 s{SPB+2}, s{SPB+1}, 16384")
            p(f"s_lshl_b32 s{SA}, s{SWV}, 13\ns_add_u32 s{SPB+3}, s{SA}, {13*8192}\ns_add_u32 s{SPB+4}, s{SA}, {17*8192}")
            p.atom(f"s_cmp_eq_u32 s{SWV}, 3\ns_cselect_b32 s{SPB+4}, {12*8192}, s{SPB+4}")
            self.valid_masks()
        self.run(merge(self.cap(setup), dma(1) + (dma(2) if npro > 2 else [])))
        LB, CF, L16, L128, L256, LQ0, LQ1 = 218, 220, 222, 224, 226, 228, 230
        X0, X1, X2, X3 = 232, 233, 234, 235
        L32, L64 = 236, 238
        def csq(d, s):
            p = self.p
            p(f"v_mul_f32 {v(X0)}, {v(s+1)}, {v(s+1)}\nv_add_f32 {v(X1)}, {v(s)}, {v(s)}")
            p(f"v_mul_f32 {v(d+1)}, {v(X1)}, {v(s+1)}\nv_fma_f32 {v(d)}, {v(s)}, {v(s)}, -{v(X0)}")
        def cmul(d, a, b):
            p = self.p
            p(f"v_mul_f32 {v(X0)}, {v(a+1)}, {v(b+1)}\nv_mul_f32 {v(X1)}, {v(a+1)}, {v(b)}")
            p(f"v_fma_f32 {v(X0)}, {v(a)}, {v(b)}, -{v(X0)}\nv_fma_f32 {v(d+1)}, {v(a)}, {v(b+1)}, {v(X1)}\nv_mov_b32 {v(d)}, {v(X0)}")
        def cfma(d, a, b, c):
            p = self.p
            p(f"v_fma_f32 {v(X0)}, {v(a)}, {v(b)}, {v(c)}\nv_fma_f32 {v(X1)}, {v(a)}, {v(b+1)}, {v(c+1)}")
            p(f"v_fma_f32 {v(X0)}, -{v(a+1)}, {v(b+1)}, {v(X0)}\nv_fma_f32 {v(d+1)}, {v(a+1)}, {v(b)}, {v(X1)}\nv_mov_b32 {v(d)}, {v(X0)}")
        def params():
            p = self.p
            p(f"v_lshlrev_b32 {v(PR)}, 16, {v(PR)}\nv_lshlrev_b32 {v(PR+1)}, 16, {v(PR+1)}\nv_lshlrev_b32 {v(PR+2)}, 16, {v(PR+2)}")
            p(f"v_mul_f32 {v(X0)}, {f2u(LOG2E)}, {v(PR+2)}\nv_exp_f32 {v(X0)}, {v(X0)}"); self.rnd(X0, X0)
            p(f"v_mul_f32 {v(X1)}, {v(X0)}, {v(PR)}\nv_mul_f32 {v(X2)}, {v(X0)}, {v(PR+1)}")
            p(f"v_mul_f32 {v(X1)}, {f2u(LOG2E)}, {v(X1)}\nv_exp_f32 {v(X1)}, {v(X1)}")
            p(f"v_mul_f32 {v(X2)}, {f2u(1/(2*math.pi))}, {v(X2)}\nv_fract_f32 {v(X2)}, {v(X2)}")
            p(f"v_cos_f32 {v(X3)}, {v(X2)}\nv_sin_f32 {v(X2)}, {v(X2)}")
            p(f"v_mul_f32 {v(X0)}, {v(PR)}, {v(PR)}")
            p(f"v_mul_f32 {v(LB)}, {v(X1)}, {v(X3)}\nv_mul_f32 {v(LB+1)}, {v(X1)}, {v(X2)}")
            p(f"v_fmac_f32 {v(X0)}, {v(PR+1)}, {v(PR+1)}\nv_rcp_f32 {v(X0)}, {v(X0)}")
            p(f"v_add_f32 {v(X1)}, -1.0, {v(LB)}\nv_add_f32 {v(X0)}, {v(X0)}, {v(X0)}")
            p(f"v_mul_f32 {v(X2)}, {v(X1)}, {v(PR)}\nv_fmac_f32 {v(X2)}, {v(LB+1)}, {v(PR+1)}\nv_mul_f32 {v(CF)}, {v(X2)}, {v(X0)}")
            p(f"v_mul_f32 {v(X2)}, {v(LB+1)}, {v(PR)}\nv_fma_f32 {v(X2)}, -{v(X1)}, {v(PR+1)}, {v(X2)}\nv_mul_f32 {v(CF+1)}, {v(X2)}, {v(X0)}")
            csq(L16, LB); csq(L16, L16); csq(L16, L16); csq(L16, L16)
            csq(L32, L16); csq(L64, L32); csq(L128, L64); csq(L256, L128)
            p.atom(f"s_cmp_eq_u32 s{WT}, 0\ns_cselect_b64 vcc, -1, 0")
            p(f"v_cndmask_b32 {v(L64)}, {v(L64)}, 1.0, vcc\nv_cndmask_b32 {v(L64+1)}, {v(L64+1)}, 0, vcc")
            p(f"v_cmp_gt_u32 vcc, 32, {v(VL)}\nv_cndmask_b32 {v(LQ0)}, {v(L32)}, 1.0, vcc\nv_cndmask_b32 {v(LQ0+1)}, {v(L32+1)}, 0, vcc")
            cmul(LQ0, LQ0, L64); cmul(LQ1, LQ0, L16)
        self.pf1(2)
        self.epoch2()
        self.stamp(0)
        pops = [lambda: p.wait(vm=tp)] + self.cap(params)
        valu = {}
        q = (len(pops) + 15) // 16
        for i in range(16): valu[8 + i] = pops[i * q:(i + 1) * q]
        self.paced(valu, 217, 205, o.get("ut0", 4), o.get("udt", 4))
        rt = {}
        def reads(n):
            st, ks = n // 4, n % 4; sl = st % 3; s = n & 1; ops = []
            for k in range(2):
                def ra(k=k): rt[(n, 'a', k)] = p.lds(f"ds_read_b128 {v(FA+8*s+4*k,4)}, {v(XR+(ks^k))} offset:{sl*16384+k*4096}")
                def rb(k=k): rt[(n, 'b', k)] = p.lds(f"ds_read_b128 {v(FB+8*s+4*k,4)}, {v(BR+ks)} offset:{sl*16384+k*8192}")
                ops += [ra, rb]
            def rx(): p.lds(f"ds_read_b128 {v(FX+4*s,4)}, {v(X1R+ks)} offset:{sl*16384}")
            ops.append(rx)
            for mt in range(3):
                for a in range(2):
                    def rw(mt=mt, a=a):
                        rt[(n, 'w', mt)] = p.lds(f"ds_read_b64_tr_b16 {v(FW+12*s+4*mt+2*a,2)}, {v(WR)} offset:{sl*12288+ks*3072+a*768+mt*64}")
                    ops.append(rw)
            return ops
        def mfmas(n):
            s = n & 1; ops = []
            for (mt, cp) in [(0, 0), (1, 0), (1, 1), (0, 1)]:
                def m(mt=mt, cp=cp):
                    if (mt, cp) == (0, 0): p.wait(lg=rt[(n, 'b', 1)])
                    d = v(ACC + 32 * mt + 16 * cp, 16)
                    p(f"{MF} {d}, {v(FA+8*s+4*mt,4)}, {v(FB+8*s+4*cp,4)}, {'0' if n == 0 else d}")
                ops.append(m)
            for mt in range(3):
                def m(mt=mt):
                    if mt == 0: p.wait(lg=rt[(n, 'w', 2)])
                    d = v(ZA + 16 * mt, 16)
                    p(f"{MF} {d}, {v(FW+12*s+4*mt,4)}, {v(FX+4*s,4)}, {'0' if n == 0 else d}")
                ops.append(m)
            return ops
        self.gemm_loop(3, reads, mfmas, dma, tick, 5, npro, {6: lambda: self.wsp_dma(0), 7: lambda: self.wsp_dma(1)}, valu)
        self.stamp(1)
        def U(sg, cp): return ACC + 32 * (sg >> 3) + 16 * cp + 4 * ((sg & 7) >> 1) + 2 * (sg & 1)
        def step(hr, hi, sg, nr, ni, t0, t1):
            p = self.p; A = v(LB, 2)
            p(f"v_pk_fma_f32 {v(t0,2)}, {A}, {v(hr,2)}, {v(U(sg,0),2)} op_sel_hi:[0,1,1]")
            p(f"v_pk_fma_f32 {v(t1,2)}, {A}, {v(hi,2)}, {v(U(sg,1),2)} op_sel_hi:[0,1,1]")
            p(f"v_pk_fma_f32 {v(nr,2)}, {A}, {v(hi,2)}, {v(t0,2)} op_sel:[1,0,0] op_sel_hi:[1,1,1] neg_lo:[1,0,0] neg_hi:[1,0,0]")
            p(f"v_pk_fma_f32 {v(ni,2)}, {A}, {v(hr,2)}, {v(t1,2)} op_sel:[1,0,0] op_sel_hi:[1,1,1]")
        HA, HBb, T0, EX, E8, AD, GR, CQ = 128, 132, 136, 140, 144, 160, 164, 168
        SCR = 98304
        p(f"s_lshl_b32 s{SA}, s{WP}, 11\ns_add_u32 s{SA}, s{SA}, {SCR}")
        p(f"v_and_b32 {v(AD)}, 31, {v(VL)}\nv_lshlrev_b32 {v(AD)}, 6, {v(AD)}\nv_add_u32 {v(AD)}, s{SA}, {v(AD)}")
        p(f"v_lshrrev_b32 {v(AD+1)}, 5, {v(VL)}\nv_lshl_add_u32 {v(AD+1)}, {v(AD+1)}, 4, {v(AD)}\ns_lshl_b32 s{SA}, s{WT}, 5\nv_add_u32 {v(AD+1)}, s{SA}, {v(AD+1)}")
        Z1P = 192
        SZ0, SZ1 = SXL, SWL
        VA_ = 176
        MA, MB = SK + 2, SK + 4
        def z1st(u):
            mt, q = u >> 1, u & 1
            for i in range(4): p(f"v_cvt_pk_bf16_f32 {v(Z1P+4*u+i)}, {v(ZA+8*u+2*i)}, {v(ZA+8*u+2*i+1)}")
            r = v(Z1P + 4 * u, 4)
            if mt < 2: p.vmem(f"buffer_store_dwordx4 {r}, {v(VL16)}, {srd(SWS)}, s{SZ0} offen offset:{mt*2048+q*1024} sc1")
            else: p.vmem(f"buffer_store_dwordx4 {r}, {v(VA_+q)}, {srd(SWS)}, s{SZ1} offen offset:{q*1024} sc1")
        p(f"s_lshl_b32 s{SA}, s{SCOL}, 6\ns_lshl_b32 s{SB_}, s{SRB}, 2\ns_add_u32 s{SA}, s{SA}, s{SB_}\ns_add_u32 s{SA}, s{SA}, s{SWV}\ns_mul_i32 s{SA}, s{SA}, 5632")
        p(f"s_add_u32 s{SZ0}, s{SA}, {Z1}\ns_add_u32 s{SZ1}, s{SZ0}, 4096")
        p(f"v_cndmask_b32 {v(VA_)}, {v(VOOB)}, {v(VL16)}, {sp(MA)}\nv_cndmask_b32 {v(VA_+1)}, {v(VOOB)}, {v(VL16)}, {sp(MB)}")
        zs = [(lambda u=u: z1st(u)) for u in range(6)]
        self.run(zs[:2])
        p("s_barrier")
        def pass1():
            hr, hi = U(0, 0), U(0, 1)
            for sg in range(1, 16):
                nr, ni = (HA, HA + 2) if sg & 1 else (HBb, HBb + 2)
                step(hr, hi, sg, nr, ni, T0, T0 + 2)
                hr, hi = nr, ni
            self.p(f"v_mov_b32 {v(EX)}, {v(hr)}\nv_mov_b32 {v(EX+1)}, {v(hi)}\nv_mov_b32 {v(EX+2)}, {v(hr+1)}\nv_mov_b32 {v(EX+3)}, {v(hi+1)}")
        d2 = self.wsp_dma(2) + self.wsp_dma(3)
        self.run(merge(merge(self.cap(pass1), zs[2:]), d2[:7]))
        p.lds(f"ds_write_b128 {v(AD+1)}, {v(EX,4)}")
        p.wait_lg_all(); p("s_barrier")
        for i in range(4): p.lds(f"ds_read_b128 {v(E8+4*i,4)}, {v(AD)} offset:{16*i}")
        te = p.lg - 1
        self.run(d2[7:11])
        p(f"s_cmp_eq_u32 s{WT}, 0\ns_cselect_b32 s{SA}, 32, 0")
        p(f"v_cmp_gt_u32 vcc, s{SA}, {v(VL)}\nv_mov_b32 {v(GR+1)}, s{ST_T}\nv_mov_b32 {v(GR+3)}, s{ST_T}\nv_cndmask_b32 {v(T0)}, {v(VOOB)}, {v(VL16)}, vcc")
        p(f"s_lshl_b32 s{SC}, s{SCOL}, 14\ns_lshl_b32 s{SA}, s{WP}, 9\ns_add_u32 s{SC}, s{SC}, s{SA}\ns_add_u32 s{SC}, s{SC}, {EG}")
        p(f"s_lshl_b32 s{SA}, s{SRB}, 10\ns_add_u32 s{SA}, s{SA}, s{SC}")
        p.wait(lg=te); p("s_barrier")
        self.run(merge(self.cap(lambda: [cfma(E8 + 2 * q, L16, E8 + 2 * (q - 1), E8 + 2 * q) for q in range(1, 8)]), d2[11:15]))
        p(f"v_mov_b32 {v(GR)}, {v(E8+14)}\nv_mov_b32 {v(GR+2)}, {v(E8+15)}")
        p.vmem(f"buffer_store_dwordx4 {v(GR,4)}, {v(T0)}, {srd(SWS)}, s{SA} offen sc1")
        self.run(d2[15:])
        self.stamp(2)
        p(f"v_cmp_gt_u32 vcc, 32, {v(VL)}")
        w1 = p.label("w1"); w2 = p.label("w2")
        p(f"s_cmp_eq_u32 s{WT}, 0\ns_cbranch_scc0 {w1}")
        p(f"v_cndmask_b32 {v(CQ)}, {v(E8+2)}, 0, vcc\nv_cndmask_b32 {v(CQ+1)}, {v(E8+3)}, 0, vcc")
        p(f"v_cndmask_b32 {v(CQ+2)}, {v(E8+4)}, {v(E8)}, vcc\nv_cndmask_b32 {v(CQ+3)}, {v(E8+5)}, {v(E8+1)}, vcc")
        p(f"s_branch {w2}")
        p.put(w1)
        for k in range(4): p(f"v_cndmask_b32 {v(CQ+k)}, {v(E8+10+k)}, {v(E8+6+k)}, vcc")
        p.put(w2)
        Z1P = 192
        EGR, EO, EXP, ET = 80, 144, 152, 160
        def eo():
            p = self.p
            p(f"v_lshrrev_b32 {v(ET)}, 5, {v(VL)}\nv_sub_u32 {v(ET)}, s{SRB}, {v(ET)}\nv_add_u32 {v(ET)}, -1, {v(ET)}")
            p(f"v_and_b32 {v(ET+1)}, 31, {v(VL)}\nv_lshlrev_b32 {v(ET+1)}, 4, {v(ET+1)}\nv_mov_b32 {v(ET+3)}, s{ST_T}")
            for q in range(8):
                p(f"v_add_u32 {v(ET+2)}, {-2*q}, {v(ET)}\nv_cmp_le_i32 vcc, 0, {v(ET+2)}\nv_lshl_add_u32 {v(ET+2)}, {v(ET+2)}, 10, {v(ET+1)}")
                p(f"v_cndmask_b32 {v(EO+q)}, {v(VOOB)}, {v(ET+2)}, vcc\nv_cndmask_b32 {v(EXP+q)}, 0, {v(ET+3)}, vcc")
        lgw = lambda: p.wait(lg=p.lg - 1)
        self.run(merge(self.cap(lambda: (eo(), self.g_early(184))), self.wsp_dma(4) + self.wsp_read(0) + self.wsp_read(1)))
        et = {}
        def eload(q):
            et['t'] = p.vmem(f"buffer_load_dwordx4 {v(EGR+4*q,4)}, {v(EO+q)}, {srd(SWS)}, s{SC} offen sc1")
        for q in range(8): eload(q)
        self.run([lgw] + self.wsp_dma(5))
        self.stamp(3)
        l = p.label("ep"); dl = p.label("ed")
        p.wait(vm=et['t'])
        p(f"s_mov_b32 s{SSPIN}, 0")
        p.put(l)
        p(f"v_mov_b32 {v(ET)}, 0")
        for q in range(8):
            p(f"v_xor_b32 {v(ET+1)}, {v(EXP+q)}, {v(EGR+4*q+1)}\nv_xor_b32 {v(ET+2)}, {v(EXP+q)}, {v(EGR+4*q+3)}\nv_or3_b32 {v(ET)}, {v(ET)}, {v(ET+1)}, {v(ET+2)}")
        p(f"v_cmp_ne_u32 vcc, 0, {v(ET)}\ns_cmp_eq_u64 vcc, 0\ns_cbranch_scc1 {dl}")
        for q in range(8): p(f"buffer_load_dwordx4 {v(EGR+4*q,4)}, {v(EO+q)}, {srd(SWS)}, s{SC} offen sc1")
        p("s_waitcnt vmcnt(0)")
        p(f"s_add_u32 s{SSPIN}, s{SSPIN}, 1\ns_cmp_lt_u32 s{SSPIN}, {SPIN}\ns_cbranch_scc1 {l}")
        p.put(dl)
        self.flag_prep(178)
        p(f"s_lshl_b32 s{SA}, s{SCOL}, 6\ns_lshl_b32 s{SB_}, s{SRB}, 2\ns_add_u32 s{SA}, s{SA}, s{SB_}\ns_add_u32 s{SA}, s{SA}, s{SWV}\ns_lshl_b32 s{SA}, s{SA}, 7\ns_add_u32 s{SA}, s{SA}, {Z1F}")
        self.flag(SA, 178)
        self.stamp(4)
        OP, OT, HO = 80, 144, 132
        MA, MB = SK + 2, SK + 4
        SH0, SH1 = SXB, SW1B
        def pass2a():
            p = self.p
            p(f"s_lshl_b32 s{SA}, s{SD}, 3\ns_add_u32 s{SA}, s{SA}, s{SCOL}\ns_lshl_b32 s{SA}, s{SA}, 14\ns_lshl_b32 s{SB_}, s{WP}, 12\ns_add_u32 s{SA}, s{SA}, s{SB_}")
            p(f"s_add_u32 s{SH0}, s{SA}, {HB}\ns_add_u32 s{SH1}, s{SH0}, 8192")
            p(f"v_lshrrev_b32 {v(T0)}, 5, {v(VL)}\nv_lshlrev_b32 {v(T0)}, 11, {v(T0)}\nv_and_b32 {v(T0+1)}, 31, {v(VL)}\nv_lshl_add_u32 {v(HO)}, {v(T0+1)}, 4, {v(T0)}")
            for k in range(1, 4): p(f"v_xor_b32 {v(HO+k)}, {64*k}, {v(HO)}")
            for q in range(8): p(f"v_mov_b32 {v(EGR+4*q+1)}, {v(EGR+4*q+2)}")
            S = EGR + 28
            for q in range(6, -1, -1): cfma(S, L256, S, EGR + 4 * q)
            p(f"v_mov_b32 {v(ET)}, {v(S)}\nv_mov_b32 {v(ET+1)}, {v(S+1)}\nv_permlane32_swap_b32 {v(S)}, {v(ET)}\nv_permlane32_swap_b32 {v(S+1)}, {v(ET+1)}")
            cfma(S, L128, ET, S)
            cfma(CQ, LQ0, S, CQ); cfma(CQ + 2, LQ1, S, CQ + 2)
            p(f"v_mov_b32 {v(HA)}, {v(CQ)}\nv_mov_b32 {v(HA+1)}, {v(CQ+2)}\nv_mov_b32 {v(HA+2)}, {v(CQ+1)}\nv_mov_b32 {v(HA+3)}, {v(CQ+3)}")
        def pass2(s0, s1):
            p = self.p
            Cc = v(CF, 2)
            for sg in range(s0, s1):
                hr, hi = (HA, HA + 2) if sg == 0 else (U(sg - 1, 0), U(sg - 1, 1))
                step(hr, hi, sg, U(sg, 0), U(sg, 1), T0, T0 + 2)
                hr, hi = U(sg, 0), U(sg, 1)
                oo = OT + 4 * (sg & 1) + 8 * ((sg >> 1) & 1)
                p(f"v_pk_mul_f32 {v(oo,2)}, {Cc}, {v(hr,2)} op_sel_hi:[0,1]")
                p(f"v_pk_mul_f32 {v(oo+2,2)}, {Cc}, {v(hi,2)} op_sel_hi:[0,1] neg_lo:[1,0] neg_hi:[1,0]")
                p(f"v_pk_fma_f32 {v(oo,2)}, {Cc}, {v(hi,2)}, {v(oo,2)} op_sel:[1,0,0] op_sel_hi:[1,1,1] neg_lo:[1,0,0] neg_hi:[1,0,0]")
                p(f"v_pk_fma_f32 {v(oo+2,2)}, {Cc}, {v(hr,2)}, {v(oo+2,2)} op_sel:[1,0,0] op_sel_hi:[1,1,1] neg_lo:[1,0,0] neg_hi:[1,0,0]")
                if sg & 1:
                    q, i = sg >> 3, (sg & 7) >> 1
                    for cp in range(2):
                        for e in range(2):
                            p(f"v_cvt_pk_bf16_f32 {v(OP+16*cp+8*e+4*q+i)}, {v(oo-4+2*cp+e)}, {v(oo+2*cp+e)}")
        def hst(cp, k):
            if o.get("x_nost"): return
            p.vmem(f"buffer_store_dwordx4 {v(OP+16*cp+4*k,4)}, {v(HO+k)}, {srd(SWS)}, s{SH0 if cp == 0 else SH1} offen offset:{512*k} sc1")
        self.run(merge(self.cap(pass2a), self.wsp_dma(6) + self.wsp_read(2) + [lgw]))
        self.run(merge(self.cap(lambda: pass2(0, 8)), self.wsp_dma(7) + self.wsp_read(3)))
        self.run(merge(merge(self.cap(lambda: pass2(8, 16)), [(lambda cp=cp, k=k: hst(cp, k)) for k in (0, 2) for cp in range(2)]), self.wsp_read(4) + self.wsp_read(5)))
        self.g_poll_issue()
        h2 = [(lambda cp=cp, k=k: hst(cp, k)) for k in (1, 3) for cp in range(2)]
        self.run(merge(self.wsp_read(6) + self.wsp_read(7), h2))
        p(f"s_lshl_b32 s{SLATE}, s{SE}, 7\ns_add_u32 s{SLATE}, s{SLATE}, {HF}")
        self.stamp(5)

    def phase_g(self):
        p = self.p; o = self.o
        p.c("==== phase B: G ====")
        p.put(self.LG)
        p.vm_done = -1; p.lg_done = -1
        ACC, FA, TR, T = 16, 112, self.GTR, 186
        Z1R, BI, PV, WD, PL, PL2, PL3 = 190, 202, 203, self.WD, self.GPL, 222, 234
        NT, Q = SK + 8, SK + 9
        p(f"s_mov_b32 s{SCOL}, s{SJ}")
        def late_setup():
            p = self.p
            p(f"s_lshl_b32 s{SE}, s{STB}, 11\ns_add_u32 s{SE}, s{SE}, {HF}")
            self.poll_addr(PL3, [(SE, 16)])
            self.flag_prep(220)
            p(f"v_lshrrev_b32 {v(T)}, 3, {v(VL)}\nv_lshlrev_b32 {v(T)}, 10, {v(T)}")
            p(f"v_bfe_u32 {v(T+1)}, {v(VL)}, 4, 1\nv_lshlrev_b32 {v(T+1)}, 2, {v(T+1)}\nv_and_b32 {v(T+2)}, 7, {v(VL)}\nv_xor_b32 {v(T+1)}, {v(T+1)}, {v(T+2)}")
            p(f"v_lshl_add_u32 {v(WD)}, {v(T+1)}, 4, {v(T)}")
            for i in range(1, 4): p(f"v_add_u32 {v(WD+i)}, {i*7168}, {v(WD)}")
            p(f"s_mul_i32 s{SXB}, s{SWV}, {176*1024}\ns_lshl_b32 s{SA}, s{SCOL}, 7\ns_add_u32 s{SXB}, s{SXB}, s{SA}")
            self.c_setup()
            self.panel_tr_addr(228, SREG, 224, False)
        p(f"s_and_b32 s{NT}, s{SWV}, 1\ns_lshr_b32 s{Q}, s{SWV}, 1")
        p(f"s_lshl_b32 s{SC}, s{STB}, 1\ns_add_u32 s{SC}, s{SC}, s{NT}")
        p.atom(f"s_cmp_lt_u32 s{SCOL}, 7\ns_cselect_b32 s{SD}, 64, 32")
        p(f"s_lshl_b32 s{SF}, s{Q}, 5\ns_sub_u32 s{SD}, s{SD}, s{SF}")
        p(f"v_cmp_gt_u32 vcc, s{SD}, {v(VL)}\nv_and_b32 {v(T)}, 31, {v(VL)}\ns_lshl_b32 s{SA}, s{SC}, 5\nv_cndmask_b32 {v(PV)}, {v(VOOB)}, {v(VL16)}, vcc")
        p(f"v_add_lshl_u32 {v(T)}, {v(T)}, s{SA}, 1")
        p.vmem(f"global_load_ushort {v(BI)}, {v(T)}, {sp(PBSP)}")
        p(f"s_mul_i32 s{SD}, s{SZI}, 5632\ns_lshl_b32 s{SB_}, s{Q}, 10\ns_add_u32 s{SD}, s{SD}, s{SB_}\ns_add_u32 s{SD}, s{SD}, {Z1}\ns_add_u32 s{SE}, s{SD}, 4096")
        p(f"v_and_b32 {v(PL2)}, 31, {v(VL)}\nv_lshlrev_b32 {v(PL2)}, 2, {v(PL2)}")
        p.wait_lg_all(); p("s_barrier")
        self.stamp(6)
        l = p.label("gp"); dn = p.label("gd")
        p("s_waitcnt vmcnt(5)")
        p(f"s_cmp_lg_u32 s{SLATE}, 0\ns_cbranch_scc1 {l}\ns_waitcnt vmcnt(0)")
        p.put(l)
        p(f"v_cmp_ne_u32 vcc, s{ST_T}, {v(PL+1)}\ns_and_b32 vcc_hi, vcc_hi, 1\ns_or_b32 s{SF}, vcc_lo, vcc_hi\ns_cbranch_scc0 {dn}")
        self.poll(PL, 33)
        p.put(dn)
        g0 = p.vm
        def late_flag():
            nf = p.label("nf")
            p(f"s_cmp_eq_u32 s{SLATE}, 0\ns_cbranch_scc1 {nf}")
            p(f"s_waitcnt vmcnt({p.vm - g0})")
            p(f"buffer_store_dword {v(220)}, {v(221)}, {srd(SWS)}, s{SLATE} offen sc1")
            p.put(nf)
        p.vm_done = -1
        self.stamp(7)
        tick = {}
        def dma(B):
            sl = B % 3; items = []
            for i in range(11):
                def cb(t, i=i): tick[(B, i)] = t
                g = i // 4
                items.append(((SREG, sl * 11264 + g * 4096) if i % 4 == 0 else None, (SGB, B * 11264 + g * 4096) if i % 4 == 0 else None,
                              f"buffer_load_dwordx4 {v(VL16)}, {srd(SWS)}, s{SDO} offen offset:{(i%4)*1024} {o.get('gmod', 'sc1')} lds", cb))
            return self.dseq(items)
        d0 = dma(0) + dma(1) + dma(2)
        kpro = o.get("gpro", 22)
        p.vmem(f"buffer_load_dwordx4 {v(Z1R,4)}, {v(VL16)}, {srd(SWS)}, s{SD} offen sc1")
        p.vmem(f"buffer_load_dwordx4 {v(Z1R+4,4)}, {v(VL16)}, {srd(SWS)}, s{SD} offen offset:2048 sc1")
        tz1 = p.vmem(f"buffer_load_dwordx4 {v(Z1R+8,4)}, {v(PV)}, {srd(SWS)}, s{SE} offen sc1")
        k0 = o.get("gk0", 10)
        self.run(merge(self.cap(late_setup), d0[:k0], 0, 40))
        p(f"s_lshl_b32 s{SA}, s{STB}, 8\ns_add_u32 s{SA}, s{SA}, {GATE}")
        p.vmem(f"buffer_load_dword {v(self.GY)}, {v(PL2)}, {srd(SWS)}, s{SA} offen sc1")
        p.vmem(f"buffer_load_dword {v(self.GY+2)}, {v(PL2)}, {srd(SWS)}, s{SA} offen offset:128 sc1")
        def z1gelu():
            c1 = -2 * LOG2E * 0.7978845608028654
            self.VC0 = 184
            self.p(f"s_mov_b32 s{SK}, {f2u(c1*0.044715)}\nv_mov_b32 {v(184)}, {f2u(c1)}")
            for i in range(12): self.unpack(self.ZUP[i], Z1R + i)
            self.gelu_many(self.ZUP, [160, 162, 164, 166])
        p.wait(vm=tz1)
        self.run(merge(self.cap(z1gelu), d0[k0:kpro]))
        lt = {}
        def issue(r):
            lt[r] = p.vmem(f"buffer_load_dword {v(r+1)}, {v(r)}, {srd(SWS)}, 0 offen sc1")
        def check(r, mask):
            l = p.label("lp"); d = p.label("ld")
            p.wait(vm=lt[r])
            p(f"s_mov_b32 s{SSPIN}, 0")
            p.put(l)
            p(f"v_cmp_ne_u32 vcc, s{ST_T}, {v(r+1)}\ns_and_b32 s{SF}, vcc_lo, {mask}\ns_cbranch_scc0 {d}")
            p(f"buffer_load_dword {v(r+1)}, {v(r)}, {srd(SWS)}, 0 offen sc1\ns_waitcnt vmcnt(0)")
            p(f"s_add_u32 s{SSPIN}, s{SSPIN}, 1\ns_cmp_lt_u32 s{SSPIN}, {SPIN}\ns_cbranch_scc1 {l}")
            p.put(d)
        rt = {}
        def fset(hb): return FA + 24 * (2 if hb == 15 else hb & 1)
        def reads(hb):
            B, e = hb >> 1, hb & 1; sl = B % 3; ops = []
            for ks in range(2):
                for mt in range(3):
                    for a in range(2):
                        def ra(ks=ks, mt=mt, a=a):
                            if (ks, mt, a) == (0, 0, 0): p.wait(vm=tick[(B, 10 if e else 5)])
                            rt[(hb, ks, mt)] = p.lds(f"ds_read_b64_tr_b16 {v(fset(hb)+12*ks+4*mt+2*a,2)}, {v(TR+a)} offset:{sl*11264+e*5632+mt*2048+ks*256}")
                        ops.append(ra)
            return ops
        def mf(hb, ks, mt, nt):
            def m():
                p.wait(lg=rt[(hb, ks, mt)])
                d = v(ACC + 16 * (2 * mt + nt), 16); kap = 2 * hb + ks
                p(f"{MF} {d}, {v(fset(hb)+12*ks+4*mt,4)}, {ar((kap*2+nt)*4,4)}, {'0' if kap == 0 else d}")
            return m
        y0 = self.y_dma(0)
        hchk = o.get("hchk", 4)
        self.run(reads(0))
        pend = d0[kpro:]
        for hb in range(14):
            if o.get("gstamps") and hb % 2 == 0: self.stamp(21 + hb // 2)
            mm = [mf(hb, ks, mt, nt) for ks in range(2) for mt in range(3) for nt in range(2)]
            rd = reads(hb + 1) + (reads(15) if hb == 13 else [])
            if hb == 13: seq = merge(mm, rd, 0, 12)
            else: seq = merge(mm, rd, 0, 8)
            if hb & 1 and hb <= 11:
                B = hb >> 1
                d = dma(B + 3) if B + 3 < 8 else y0
                d1 = d[1]
                def first(d1=d1, hb=hb):
                    p.wait(lg=rt[(hb, 1, 2)]); d1()
                d = [d[0], first] + d[2:]
                seq = merge(seq, pend + d[:5], len(seq) * 2 // 3 if not pend else len(seq) // 3)
                pend = d[5:]
            elif pend:
                k = 7 if hb else 8
                if hb == 12: k = 6
                seq = merge(seq, pend[:k], len(seq) // 3); pend = pend[k:]
            if hb == o.get("hflag", 3): seq = seq + [late_flag]
            if hb == 10: seq = seq + [lambda: issue(PL3)]
            if hb == 12: seq = [lambda: check(PL3, 0xffff)] + seq
            self.run(seq)
        assert not pend
        VW, VRD = T, T + 1
        p(f"s_add_u32 s{SA}, s{SREG}, 4096\nv_add_u32 {v(VW)}, s{SA}, {v(VL16)}")
        def rw(mt, nt):
            ops = []
            for q in range(2):
                k = nt + 2 * q
                if k == 0: continue
                for hq in range(2):
                    r = ACC + 16 * (2 * mt + nt) + 8 * q + 4 * hq
                    ops.append(lambda r=r, k=k, hq=hq: p.lds(f"ds_write_b128 {v(VW)}, {v(r,4)} offset:{(k-1)*6144+(2*mt+hq)*1024}"))
            return ops
        tiles = [(0, 1), (1, 1), (2, 1), (0, 0), (1, 0), (2, 0)]
        for ti, (mt, nt) in enumerate(tiles):
            mm = [mf(hb, ks, mt, nt) for hb in (14, 15) for ks in range(2)]
            f = rw(*tiles[ti - 2]) if ti >= 2 else []
            self.run(merge(mm, f))
        self.stamp(8)
        for k in range(1, 4):
            p(f"s_xor_b32 s{SA}, s{SWV}, {k}\ns_mul_i32 s{SA}, s{SA}, 40960\ns_add_u32 s{SA}, s{SA}, 4096\nv_add_u32 {v(VRD+k-1)}, s{SA}, {v(VL16)}")
        self.run(rw(*tiles[4]) + rw(*tiles[5]))
        p.wait_lg_all(); p("s_barrier")
        RB = 112
        def own(i): return ACC + 32 * (i >> 1) + 4 * (i & 1)
        tk = {}
        def rr(k, i): tk[(k, i)] = p.lds(f"ds_read_b128 {v(RB+24*(k-1)+4*i,4)}, {v(VRD+k-1)} offset:{(k-1)*6144+i*1024}")
        for k in range(1, 3):
            for i in range(6): rr(k, i)
        yr0 = self.y_read(0)
        for k in range(1, 4):
            for i in range(6):
                p.wait(lg=tk[(k, i)])
                if k == 1: rr(3, i)
                for hh in range(2): p(f"v_pk_add_f32 {v(own(i)+2*hh,2)}, {v(own(i)+2*hh,2)}, {v(RB+24*(k-1)+4*i+2*hh,2)}")
        p("s_barrier")
        self.stamp(9)
        PK = 112
        def ow2(i): return own(i >> 1) + 2 * (i & 1)
        def pepi():
            p = self.p
            OG = 152
            p.atom(f"s_cmp_eq_u32 s{NT}, 0\ns_cselect_b64 vcc, -1, 0")
            p(f"v_lshlrev_b32 {v(BI)}, 16, {v(BI)}\nv_cndmask_b32 {v(OG)}, {v(self.GY+2)}, {v(self.GY)}, vcc\nv_sub_f32 {v(OG)}, 1.0, {v(OG)}\nv_mul_f32 {v(OG+1)}, {v(OG)}, {v(BI)}")
            for i in range(12): p(f"v_pk_fma_f32 {v(ow2(i),2)}, {v(ow2(i),2)}, {v(OG,2)}, {v(OG,2)} op_sel:[0,0,1] op_sel_hi:[1,0,1]")
            for i in range(12): p(f"v_pk_mul_f32 {v(ow2(i),2)}, {v(ow2(i),2)}, {v(self.ZUP[i],2)}")
            for i in range(12): p(f"v_cvt_pk_bf16_f32 {v(PK+i)}, {v(ow2(i))}, {v(ow2(i)+1)}")
            p(f"s_mul_i32 s{SA}, s{SC}, 45056\ns_mul_i32 s{SB_}, s{SCOL}, 5632\ns_add_u32 s{SA}, s{SA}, s{SB_}\ns_lshl_b32 s{SB_}, s{Q}, 10")
            p(f"s_add_u32 s{SA}, s{SA}, s{SB_}\ns_add_u32 s{SA}, s{SA}, {PB}\ns_add_u32 s{SB_}, s{SA}, 4096")
        self.y1 = self.y_dma(1)
        self.run(merge(merge(self.cap(pepi), self.y1[:4]), yr0))
        self.y1 = self.y1[4:]
        p.vmem(f"buffer_store_dwordx4 {v(PK,4)}, {v(VL16)}, {srd(SWS)}, s{SA} offen sc1")
        p.vmem(f"buffer_store_dwordx4 {v(PK+4,4)}, {v(VL16)}, {srd(SWS)}, s{SA} offen offset:2048 sc1")
        self.tp = p.vmem(f"buffer_store_dwordx4 {v(PK+8,4)}, {v(PV)}, {srd(SWS)}, s{SB_} offen sc1")
        p(f"s_lshl_b32 s{SLATE}, s{STB}, 3\ns_add_u32 s{SLATE}, s{SLATE}, s{SCOL}\ns_lshl_b32 s{SLATE}, s{SLATE}, 2\ns_add_u32 s{SLATE}, s{SLATE}, s{SWV}\ns_lshl_b32 s{SLATE}, s{SLATE}, 7\ns_add_u32 s{SLATE}, s{SLATE}, {PF}")
        self.stamp(10)

    CD, CR, HT, GY, WD, WT_ = 210, 214, 218, 240, 244, 228
    ZUP = [4, 6, 8, 10, 12, 14, 204, 206, 208, 248, 250, 252]
    def c_setup(self):
        p = self.p
        self.plain_dma_addr(self.CD, 1024, 224)
        p(f"s_add_u32 s{SA}, s{SREG}, 4096")
        self.plain_read_addr(self.CR, SA, 224)
        p(f"s_add_u32 s{SA}, s{SREG}, {4096+8192}")
        self.unit_tr_addr(self.HT, SA, 224, False)
        p(f"s_lshl_b32 s{SCB}, s{SCOL}, 16\ns_lshl_b32 s{SA}, s{SWV}, 8\ns_add_u32 s{SCB}, s{SCB}, s{SA}")
        p(f"s_lshl_b32 s{SHB}, s{STB}, 17\ns_lshl_b32 s{SA}, s{SWV}, 15\ns_add_u32 s{SHB}, s{SHB}, s{SA}\ns_add_u32 s{SHB}, s{SHB}, {HB}")
        self.yt = {}
    def y_dma(self, s):
        sl = (s & 1) ^ 1; items = []
        def cb(t): self.yt[s] = t
        for hh in range(2):
            for i in range(4):
                items.append(((SREG, 4096 + sl * 18432 + hh * 4096) if i == 0 else None, (SCB, (s >> 1) * 128 + hh * 32768) if i == 0 else None,
                              f"buffer_load_dwordx4 {v(self.CD+i)}, {srd(SCIM if s & 1 else SCRE)}, s{SDO} offen offset:{i*1024} lds", None))
        for hh in range(2):
            for i in range(4):
                items.append(((SREG, 4096 + sl * 18432 + 8192 + hh * 4096) if i == 0 else None, (SHB, s * 8192 + hh * 4096) if i == 0 else None,
                              f"buffer_load_dwordx4 {v(VL16)}, {srd(SWS)}, s{SDO} offen offset:{i*1024} sc1 lds", cb))
        return self.dseq(items)
    def y_read(self, s):
        p = self.p; sl = (s & 1) ^ 1; ops = []
        self.yr = getattr(self, "yr", {})
        for ks in range(4):
            def f(ks=ks):
                p.wait(vm=self.yt[s], lg=p.lg - 10)
                b = 64 * s + 16 * ks
                for k in range(2):
                    p.lds(f"ds_read_b128 {ar(b+4*k,4)}, {v(self.CR+ks)} offset:{sl*18432+k*4096}")
                    for a in range(2):
                        self.yr[(s, ks)] = p.lds(f"ds_read_b64_tr_b16 {ar(b+8+4*k+2*a,2)}, {v(self.HT+a)} offset:{sl*18432+(ks>>1)*4096+k*2048+(ks&1)*256}")
            ops.append(f)
        return ops
    def phase_c(self):
        p = self.p; o = self.o
        p.c("==== phase C ====")
        YA, BA, F = 16, 80, 144
        XE, GE, DE, OV, P10, PL, T = 186, 194, 198, 200, 201, 202, 204
        RW, RX, WA, RA = 176, 177, 180, 230
        ep = {}
        def setup():
            p = self.p
            p(f"v_lshrrev_b32 {v(T)}, 4, {v(VL)}\nv_and_b32 {v(T+1)}, 15, {v(VL)}")
            p(f"v_lshlrev_b32 {v(T+2)}, 10, {v(T)}\nv_lshl_add_u32 {v(T+2)}, {v(T+1)}, 3, {v(T+2)}")
            p(f"v_lshlrev_b32 {v(T+3)}, 2, {v(T)}\nv_lshlrev_b32 {v(T+4)}, 3, {v(T+1)}")
            p(f"v_lshlrev_b32 {v(OV)}, 1, {v(T+2)}")
            p(f"s_lshl_b32 s{SC}, s{STB}, 6\ns_lshl_b32 s{SA}, s{SWV}, 4\ns_add_u32 s{SC}, s{SC}, s{SA}")
            p(f"s_lshl_b32 s{SD}, s{SC}, 10\ns_lshl_b32 s{SA}, s{SCOL}, 7\ns_add_u32 s{SD}, s{SD}, s{SA}\nv_add_u32 {v(T+4)}, s{SA}, {v(T+4)}")
            p(f"s_lshl_b32 s{SA}, s{STB}, 12\ns_lshl_b32 s{SB_}, s{SWV}, 10\ns_add_u32 s{SB_}, s{SB_}, s{SA}\ns_add_u32 s{SB_}, s{SB_}, {PF}")
            self.poll_addr(PL, [(SB_, 8)])
            p.atom(f"s_cmp_eq_u32 s{SWV}, 3\ns_cselect_b64 vcc, -1, 0")
            p(f"v_cndmask_b32 {v(P10)}, {v(VL16)}, {v(VOOB)}, vcc")
            p(f"s_mul_i32 s{SE}, s{STB}, {2*45056}\ns_mul_i32 s{SA}, s{SWV}, {22*512}\ns_add_u32 s{SE}, s{SE}, s{SA}\ns_add_u32 s{SE}, s{SE}, {PB}")
            p(f"s_add_u32 s{SA}, s{SREG}, 4096\nv_and_b32 {v(RW)}, 31, {v(VL)}\nv_lshlrev_b32 {v(RW)}, 8, {v(RW)}\nv_add_u32 {v(RW)}, s{SA}, {v(RW)}")
            p(f"v_lshrrev_b32 {v(RX)}, 5, {v(VL)}\nv_and_b32 {v(RX+1)}, 7, {v(VL)}\nv_xor_b32 {v(RX)}, {v(RX)}, {v(RX+1)}\nv_lshlrev_b32 {v(RX)}, 4, {v(RX)}")
            for i in range(4): p(f"v_xor_b32 {v(WA+i)}, {32*i}, {v(RX)}\nv_add_u32 {v(WA+i)}, {v(WA+i)}, {v(RW)}")
            p(f"v_xor_b32 {v(T+1)}, {v(T+1)}, {v(T)}\nv_lshlrev_b32 {v(T+1)}, 4, {v(T+1)}")
            p(f"v_lshlrev_b32 {v(T)}, 8, {v(T)}\ns_lshl_b32 s{SA}, s{SWV}, 12\ns_add_u32 s{SA}, s{SA}, 4096\nv_add_u32 {v(T)}, s{SA}, {v(T)}")
            p(f"v_add_u32 {v(RA)}, {v(T)}, {v(T+1)}\nv_xor_b32 {v(T+1)}, 64, {v(T+1)}\nv_add_u32 {v(RA+1)}, {v(T)}, {v(T+1)}")
            p(f"v_add_u32 {v(RA+2)}, 81920, {v(RA)}\nv_add_u32 {v(RA+3)}, 81920, {v(RA+1)}")
        def eloads():
            for gi in range(4):
                p(f"s_add_u32 s{SA}, s{SD}, {gi*4096}")
                p.vmem(f"buffer_load_dwordx2 {v(XE+2*gi,2)}, {v(T+2)}, {srd(SX)}, s{SA} offen")
            p(f"s_lshl_b32 s{SA}, s{SC}, 2\ns_add_u32 s{SA}, s{SA}, {GATE}")
            for gi in range(4): p.vmem(f"buffer_load_dword {v(GE+gi)}, {v(T+3)}, {srd(SWS)}, s{SA} offen offset:{gi*16} sc1")
            ep['t'] = p.vmem(f"global_load_dwordx2 {v(DE,2)}, {v(T+4)}, {sp(PDSK)}")
        T4 = [(0, 0), (1, 0), (1, 1), (0, 1)]
        def ym(s):
            ops = []
            for ks in range(4):
                for (mt, nt) in T4:
                    def m(ks=ks, mt=mt, nt=nt):
                        p.wait(lg=self.yr[(s, ks)])
                        d = v(YA + 16 * (2 * mt + nt), 16); b = 64 * s + 16 * ks
                        p(f"{MF} {d}, {ar(b+4*mt,4)}, {ar(b+8+4*nt,4)}, {'0' if (s, ks) == (0, 0) else d}")
                    ops.append(m)
            return ops
        PA = 80
        pt = {}
        def ploads():
            ops = []
            for nt in range(2):
                for kap in range(11):
                    def f(kap=kap, nt=nt):
                        if kap % 4 == 0: p(f"s_add_u32 s{SB_}, s{SE}, {nt*45056+kap*1024}")
                        pt[(kap, nt)] = p.vmem(f"buffer_load_dwordx4 {v(PA+(kap*2+nt)*4,4)}, {v(P10 if kap == 10 else VL16)}, {srd(SWS)}, s{SB_} offen offset:{(kap%4)*1024} sc1")
                    ops.append(f)
            return ops
        wo = {}
        def wo_dma():
            items = []
            for (i0, i1, base) in [(18, 22, 0), (0, 18, 22528)]:
                for i in range(i0, i1):
                    def cb(t, i=i): wo[i] = t
                    k = i - i0
                    items.append(((SREG, base + k * 1024) if k % 4 == 0 else None, (SXB, i * 8192) if k % 4 == 0 else None,
                                  f"buffer_load_dwordx4 {v(self.WD+k%4)}, {srd(SWOUT)}, s{SDO} offen offset:{(k%4)*1024} lds", cb))
            return self.dseq(items)
        def wo_rd(kap):
            def f():
                p.wait(vm=wo[2 * kap + 1], lg=p.lg - 12)
                for mt in range(2):
                    for a in range(2):
                        base = 22528 + kap * 2048 if kap < 9 else (kap - 9) * 2048
                        wo[('r', kap)] = p.lds(f"ds_read_b64_tr_b16 {ar((kap*2+mt)*4+2*a,2)}, {v(self.WT_+mt)} offset:{base+a*512}")
            return f
        def pflag():
            p.wait(vm=self.tp); self.flag(SLATE, 220)
        pl = {}
        def pf_issue(): pl['t'] = p.vmem(f"buffer_load_dword {v(PL+1)}, {v(PL)}, {srd(SWS)}, 0 offen sc1")
        def pf_check():
            l = p.label("pp"); d = p.label("pd")
            p.wait(vm=pl['t'])
            p(f"s_mov_b32 s{SSPIN}, 0")
            p.put(l)
            p(f"v_cmp_ne_u32 vcc, s{ST_T}, {v(PL+1)}\ns_and_b32 s{SF}, vcc_lo, 0xff\ns_cbranch_scc0 {d}")
            p(f"buffer_load_dword {v(PL+1)}, {v(PL)}, {srd(SWS)}, 0 offen sc1\ns_waitcnt vmcnt(0)")
            p(f"s_add_u32 s{SSPIN}, s{SSPIN}, 1\ns_cmp_lt_u32 s{SSPIN}, {SPIN}\ns_cbranch_scc1 {l}")
            p.put(d)
        su = self.cap(setup)
        lgw = lambda: p.wait(lg=p.lg - 1)
        y2, y3, wd, pl_ = self.y_dma(2), self.y_dma(3), wo_dma(), ploads()
        self.run(merge(merge(ym(0), su), self.y1 + [lgw] + y2[:5]))
        self.run([pflag] + y2[5:13])
        self.run(merge(self.y_read(1), y2[13:] + [eloads]))
        self.stamp(11)
        self.run(merge(ym(1), [lgw] + y3))
        self.run(merge(self.y_read(2), wd[:5]))
        self.run(merge(ym(2), [lgw] + wd[5:14] + [pf_issue] + wd[14:]))
        self.run(self.y_read(3))
        pf_check(); self.stamp(12)
        self.run(merge(ym(3), pl_[:12]))
        prest = pl_[12:]
        self.stamp(13)
        def redw(acc, base, tiles):
            return [(lambda mt=mt, nt=nt, i=i: p.lds(f"ds_write_b128 {v(WA+i)}, {v(acc+16*(2*mt+nt)+4*i,4)} offset:{base+nt*8192+mt*128}"))
                    for (mt, nt) in tiles for i in range(4)]
        def bm(kap, mt, nt):
            def m():
                p.wait(vm=pt[(kap, nt)], lg=wo[('r', kap)])
                d = v(YA + 16 * (2 * mt + nt), 16)
                p(f"{MF} {d}, {ar((kap*2+mt)*4,4)}, {v(PA+(kap*2+nt)*4,4)}, {d}")
            return m
        def yscale(mt, nt, pk=True):
            if pk: return [(lambda i=i: p(f"v_pk_mul_f32 {v(YA+16*(2*mt+nt)+2*i,2)}, {v(YA+16*(2*mt+nt)+2*i,2)}, {v(self.GY+2*nt,2)} op_sel_hi:[1,0]")) for i in range(8)]
            return [(lambda i=i: p(f"v_mul_f32 {v(YA+16*(2*mt+nt)+i)}, {v(YA+16*(2*mt+nt)+i)}, {v(self.GY+2*nt)}")) for i in range(16)]
        DU, X = 168, 0
        XP = [4, 8, 12, 172]
        def xpart():
            p = self.p
            self.unpack(DU, DE); self.unpack(DU + 2, DE + 1)
            for gi in range(4):
                x = XP[gi]
                self.unpack(x, XE + 2 * gi); self.unpack(x + 2, XE + 2 * gi + 1)
                for k in range(4): p(f"v_mul_f32 {v(x+k)}, {v(x+k)}, {v(DU+k)}")
                for k in range(4): p(f"v_mul_f32 {v(x+k)}, {v(x+k)}, {v(GE+gi)}")
        self.run(merge(merge(yscale(0, 0) + yscale(1, 0) + yscale(1, 1) + yscale(0, 1), prest), [wo_rd(k) for k in range(11)]))
        mm0 = [bm(kap, mt, 0) for kap in range(11) for mt in range(2)]
        self.run(merge(mm0, [lambda: p.wait(vm=ep['t'])] + self.cap(xpart)))
        mm1 = [bm(kap, 0, 1) for kap in range(11)]
        mm2 = [bm(kap, 1, 1) for kap in range(11)]
        self.run(merge(mm1, redw(YA, 0, [(0, 0), (1, 0)]), 2))
        self.run(merge(mm2, redw(YA, 0, [(0, 1)]), 4))
        self.run(redw(YA, 0, [(1, 1)]))
        p.wait_lg_all(); p("s_barrier")
        self.stamp(14)
        tk = {}
        def R(gi, s): return 16 + 16 * gi + 4 * s
        for gi in range(4):
            p.wait(lg=p.lg - 12)
            for s_ in range(4):
                tk[gi] = p.lds(f"ds_read_b128 {v(R(gi,s_),4)}, {v(RA+2*(s_>>1)+(gi&1))} offset:{(s_&1)*40960+gi*1024}")
        p(f"s_lshl_b32 s{SD}, s{SD}, 1")
        for gi in range(4):
            y = R(gi, 0)
            p.wait(lg=tk[gi])
            for hh in (0, 2):
                p(f"v_pk_add_f32 {v(y+hh,2)}, {v(y+hh,2)}, {v(y+4+hh,2)}\nv_pk_add_f32 {v(y+8+hh,2)}, {v(y+8+hh,2)}, {v(y+12+hh,2)}")
            for hh in (0, 2): p(f"v_pk_add_f32 {v(y+hh,2)}, {v(y+hh,2)}, {v(XP[gi]+hh,2)}")
            for hh in (0, 2): p(f"v_pk_add_f32 {v(y+hh,2)}, {v(y+hh,2)}, {v(y+8+hh,2)}")
            p(f"s_add_u32 s{SA}, s{SD}, {gi*8192}")
            p.vmem(f"buffer_store_dwordx4 {v(y,4)}, {v(OV)}, {srd(SOUT)}, s{SA} offen{' ' + o['outmod'] if 'outmod' in o else ''}")
        ne = p.label("ne")
        p(f"s_lshl_b32 s{SA}, s{STB}, 3\ns_add_u32 s{SA}, s{SA}, s{SCOL}\ns_lshl_b32 s{SA}, s{SA}, 2\ns_add_u32 s{SA}, s{SA}, s{SWV}")
        p(f"s_cmp_eq_u32 s{SA}, {255*4}\ns_cbranch_scc0 {ne}")
        p(f"s_mov_b32 s{SA}, {EPOCH}")
        self.flag(SA, 220)
        p.put(ne)
        if o.get("stamps"):
            self.stamp(15)
            p(f"s_lshl_b32 s{SA}, s2, 2\ns_add_u32 s{SA}, s{SA}, s{SWV}\ns_lshl_b32 s{SA}, s{SA}, 8\ns_add_u32 s{SA}, s{SA}, {DBG}")
            p(f"v_lshlrev_b32 v254, 2, {v(VL)}")
            p.vmem(f"buffer_store_dword v255, v254, {srd(SWS)}, s{SA} offen")
            if o.get("dbgmax"):
                ty = o["dbgmax"]
                nd = p.label("nd")
                if ty > 1: p(f"s_cmp_{'ge' if ty == 2 else 'lt'}_u32 s2, 128\ns_cbranch_scc1 {nd}")
                p(f"s_load_dwordx2 s[{SX}:{SX+1}], s[0:1], 128\ns_waitcnt lgkmcnt(0)\ns_mov_b32 s{SX+2}, 64")
                p(f"v_readlane_b32 s{SA}, v255, 17\nv_readlane_b32 s{SB_}, v255, 20\ns_not_b32 s{SA}, s{SA}\ns_nop 3\nv_writelane_b32 v255, s{SA}, 0\nv_writelane_b32 v255, s{SB_}, 6")
                p.vmem(f"buffer_atomic_umax v255, v254, {srd(SX)}, 0 offen")
                p.put(nd)
        if "spin_from" in o:
            self.stamp(15)
            sl = p.label("spin")
            p(f"v_readlane_b32 s{SA}, v254, 0")
            p.put(sl)
            p(f"s_memrealtime s[{SSTMP}:{SSTMP+1}]\ns_waitcnt lgkmcnt(0)\ns_sub_u32 s{SB_}, s{SSTMP}, s{SA}\ns_cmp_lt_u32 s{SB_}, 3000\ns_cbranch_scc1 {sl}")
        p.put(self.END)
        p("s_endpgm")

    def build(self):
        self.prologue()
        self.phase_z()
        self.p.vm_done = -1; self.p.lg_done = -1
        self.p("s_nop 15")
        self.phase_u()
        self.phase_g()
        self.phase_c()
        lines, added = hazard_pass([x for l in self.p.L for x in l.split(chr(10))])
        hdr = open("gated_mix__ssm_conv_s5__mixer_gmlp__prompt.s.ref").read().split("; Override")[0]
        s = hdr + "; @launch grid=(256,1,1) block=(256,1,1) lds=163840\n"
        s += '.amdgcn_target "amdgcn-amd-amdhsa--gfx950"\n.text\n'
        s += f".globl {NAME}\n.p2align 8\n.type {NAME},@function\n{NAME}:\n"
        s += "\n".join((l if l.endswith(":") else "    " + l) for l in lines) + "\n"
        s += f""".section .rodata,"a"
.p2align 6
.amdhsa_kernel {NAME}
  .amdhsa_next_free_vgpr 512
  .amdhsa_next_free_sgpr 102
  .amdhsa_accum_offset 256
  .amdhsa_group_segment_fixed_size 0
  .amdhsa_kernarg_size 144
  .amdhsa_user_sgpr_count 2
  .amdhsa_user_sgpr_kernarg_segment_ptr 1
  .amdhsa_system_sgpr_workgroup_id_x 1
  .amdhsa_float_denorm_mode_32 3
.end_amdhsa_kernel
"""
        return s, added

if __name__ == "__main__":
    out = sys.argv[1]
    opt = {}
    for a in sys.argv[2:]:
        k, _, val = a.partition("=")
        try: opt[k] = int(val) if val else 1
        except ValueError: opt[k] = val
    s, added = G(opt).build()
    open(out, "w").write(s)
    print("wrote", out, "nops added", added, "lines", s.count("\n"))
```

```python
import sys, math, struct
from core import *

NAME = "gated_mix__ssm_conv_s5__mixer_gmlp__prompt_kernel"
EPOCH = 0; GATE = 0x4000
ST = 0x10000; EG = 0x50000; DBG = 0x80000
Z2N = 0x100000; Z1 = 0x400000; PB = 0x700000; HB = 0xA00000
ZF = 0xE00000; HF = 0xE10000; PF = 0xE20000; Z1F = 0xE40000; WS_END = 0xE50000
OOB = 0x80000000
SPIN = 200000
SX, SW1, SWSP, SWS, SCRE, SCIM, SWOUT, SOUT = 4, 8, 12, 16, 20, 24, 28, 32
PLRE, PLIM, PLDT, PDSK, PBSP, PGW, PBRE, PBIM, PWIN = 36, 38, 40, 42, 44, 46, 48, 50, 52
ST_T = 100
SWV, SRB, SCOL, STB = 56, 57, 58, 59
SA, SB_, SC, SD = 60, 61, 62, 63
SSTMP = 64
SDO, SWB, SPB0, SPST, SPSP = 68, 69, 70, 71, 72
SXB, SW1B, SXL, SWL = 73, 74, 75, 76
SPC = 77
SCB, SHB = 78, 79
SK = 80
SREG = 96
SE, SF = 97, 98
SSPIN = 99
SLATE = 101
SJ = 3
SGB = 95
SPFP = 70
SPFE = 79
SZI = 72
SPB = 90
def srd(b): return f"s[{b}:{b+3}]"
def v(a, n=1): return f"v{a}" if n == 1 else f"v[{a}:{a+n-1}]"
def ar(a, n=1): return f"a{a}" if n == 1 else f"a[{a}:{a+n-1}]"
def sp(a): return f"s[{a}:{a+1}]"
VL, VL16, VOOB = 1, 2, 3
LOG2E = 1.4426950408889634
def f2u(x): return struct.unpack("<I", struct.pack("<f", x))[0]
MF = "v_mfma_f32_32x32x16_bf16"

class G:
    def __init__(self, opt):
        self.o = opt
        self.p = Prog()

    def stamp(self, k):
        if self.o.get("spin_from") == k:
            p = self.p
            p(f"s_memrealtime s[{SSTMP}:{SSTMP+1}]"); p.wait_lg_all()
            p(f"v_mov_b32 v254, s{SSTMP}")
        if self.o.get("stamps"):
            p = self.p
            p(f"s_memrealtime s[{SSTMP}:{SSTMP+1}]\ns_memtime s[{SSTMP+2}:{SSTMP+3}]"); p.wait_lg_all()
            p(f"v_writelane_b32 v255, s{SSTMP}, {k}\nv_writelane_b32 v255, s{SSTMP+2}, {k+32}")
    def cap(self, fn):
        sub = Prog(); save = self.p; self.p = sub
        fn()
        self.p = save
        assert sub.vm == 0 and sub.lg == 0
        return [(lambda l=l: self.p(l)) for l in sub.L]
    def run(self, ops):
        for op in ops: op()
    def dseq(self, items):
        p = self.p
        def setup(it):
            if it[0] is not None: p(f"s_add_u32 m0, s{it[0][0]}, {it[0][1]}")
            if it[1] is not None: p(f"s_add_u32 s{SDO}, s{it[1][0]}, {it[1][1]}")
        ops = [lambda: setup(items[0])]
        for i, it in enumerate(items):
            def f(i=i, it=it):
                t = p.vmem(it[2])
                if it[3]: it[3](t)
                if i + 1 < len(items): setup(items[i + 1])
            ops.append(f)
        return ops
    def poll_addr(self, vt, groups):
        p = self.p; n0 = 0
        p(f"v_mov_b32 {v(vt)}, {v(VOOB)}")
        for (sr, n) in groups:
            if n == 1: p(f"v_writelane_b32 {v(vt)}, s{sr}, {n0}")
            else:
                p(f"s_sub_u32 s{sr}, s{sr}, {n0*128}\nv_lshl_add_u32 {v(vt+1)}, {v(VL)}, 7, s{sr}")
                m = ((1 << n) - 1) << n0
                p(f"s_mov_b32 vcc_lo, {m & 0xffffffff}\ns_mov_b32 vcc_hi, {m >> 32}\nv_cndmask_b32 {v(vt)}, {v(vt)}, {v(vt+1)}, vcc")
            n0 += n
        return n0
    def poll(self, vt, n):
        p = self.p
        l = p.label("poll"); d = p.label("pd")
        p(f"s_mov_b32 s{SSPIN}, 0")
        p.put(l)
        p.vmem(f"buffer_load_dword {v(vt+1)}, {v(vt)}, {srd(SWS)}, 0 offen sc1")
        p.wait_vm_all()
        p(f"v_cmp_ne_u32 vcc, s{ST_T}, {v(vt+1)}")
        if n <= 32: p(f"s_and_b32 s{SF}, vcc_lo, {(1<<n)-1}")
        else: p(f"s_and_b32 vcc_hi, vcc_hi, {(1<<(n-32))-1}\ns_or_b32 s{SF}, vcc_lo, vcc_hi")
        p(f"s_cbranch_scc0 {d}")
        p(f"s_add_u32 s{SSPIN}, s{SSPIN}, 1\ns_cmp_lt_u32 s{SSPIN}, {SPIN}\ns_cbranch_scc1 {l}")
        p.put(d)
    def flag_prep(self, vt):
        p = self.p
        p(f"v_mov_b32 {v(vt)}, s{ST_T}\nv_mov_b32 {v(vt+1)}, {v(VOOB)}\nv_writelane_b32 {v(vt+1)}, 0, 0")
    def flag(self, off_sreg, vt):
        self.p.vmem(f"buffer_store_dword {v(vt)}, {v(vt+1)}, {srd(SWS)}, s{off_sreg} offen sc1")
    def xhalf_sum(self, a, t):
        self.p(f"v_mov_b32 {v(t)}, {v(a)}\nv_permlane32_swap_b32 {v(a)}, {v(t)}\nv_add_f32 {v(a)}, {v(a)}, {v(t)}")
    def rnd(self, d, s):
        self.p(f"v_cvt_pk_bf16_f32 {v(d)}, {v(s)}, {v(s)}\nv_lshlrev_b32 {v(d)}, 16, {v(d)}")
    def unpack(self, d, s):
        self.p(f"v_and_b32 {v(d+1)}, 0xffff0000, {v(s)}\nv_lshlrev_b32 {v(d)}, 16, {v(s)}")
    def plain_read_addr(self, dst4, base_sreg, t):
        p = self.p
        p(f"v_and_b32 {v(t)}, 31, {v(VL)}\nv_lshlrev_b32 {v(t)}, 7, {v(t)}")
        if base_sreg is not None: p(f"v_add_u32 {v(t)}, s{base_sreg}, {v(t)}")
        p(f"v_bfe_u32 {v(t+1)}, {v(VL)}, 1, 3\nv_lshrrev_b32 {v(dst4)}, 5, {v(VL)}\nv_xor_b32 {v(t+1)}, {v(t+1)}, {v(dst4)}")
        p(f"v_lshlrev_b32 {v(t+1)}, 4, {v(t+1)}")
        for ks in range(4):
            p(f"v_xor_b32 {v(dst4+ks)}, {32*ks}, {v(t+1)}\nv_add_u32 {v(dst4+ks)}, {v(dst4+ks)}, {v(t)}")
    def plain_dma_addr(self, dst4, rowbytes, t, rowstep=8):
        p = self.p
        p(f"v_lshrrev_b32 {v(t)}, 3, {v(VL)}\nv_mul_u32_u24 {v(t)}, {rowbytes}, {v(t)}")
        self.plain_dma_addr2(dst4, t, t + 1, rowstep * rowbytes)
    def plain_dma_addr2(self, dst4, vrow, t, step):
        p = self.p
        p(f"v_and_b32 {v(t)}, 7, {v(VL)}\nv_lshrrev_b32 {v(dst4)}, 4, {v(VL)}\nv_xor_b32 {v(t)}, {v(t)}, {v(dst4)}\nv_lshlrev_b32 {v(t)}, 4, {v(t)}")
        p(f"v_add_u32 {v(dst4)}, {v(t)}, {v(vrow)}")
        p(f"v_xor_b32 {v(t)}, 64, {v(t)}\nv_add_u32 {v(dst4+1)}, {v(t)}, {v(vrow)}")
        p(f"v_add_u32 {v(dst4+2)}, {2*(step-1024)}, {v(dst4)}\nv_add_u32 {v(dst4+3)}, {3*(step-1024)}, {v(dst4+1)}\nv_add_u32 {v(dst4+1)}, {step-1024}, {v(dst4+1)}")
    def panel_tr_addr(self, dst2, base_sreg, t, perm):
        p = self.p
        p(f"v_lshrrev_b32 {v(t)}, 5, {v(VL)}\nv_lshlrev_b32 {v(t)}, 10, {v(t)}")
        p(f"v_bfe_u32 {v(t+1)}, {v(VL)}, 2, 2\nv_lshl_add_u32 {v(t)}, {v(t+1)}, 7, {v(t)}")
        p(f"v_bfe_u32 {v(t+1)}, {v(VL)}, 4, 1\nv_lshl_add_u32 {v(t)}, {v(t+1)}, 5, {v(t)}")
        if perm:
            p(f"v_and_b32 {v(t+1)}, 1, {v(VL)}\nv_lshl_add_u32 {v(t)}, {v(t+1)}, 4, {v(t)}")
            p(f"v_bfe_u32 {v(t+1)}, {v(VL)}, 1, 1\nv_lshl_add_u32 {v(t)}, {v(t+1)}, 3, {v(t)}")
        else:
            p(f"v_and_b32 {v(t+1)}, 3, {v(VL)}\nv_lshl_add_u32 {v(t)}, {v(t+1)}, 3, {v(t)}")
        p(f"v_bfe_u32 {v(t+1)}, {v(VL)}, 3, 1\nv_lshlrev_b32 {v(t+1)}, 6, {v(t+1)}")
        if base_sreg is not None: p(f"v_add_u32 {v(t)}, s{base_sreg}, {v(t)}")
        p(f"v_add_u32 {v(dst2)}, {v(t)}, {v(t+1)}\nv_xor_b32 {v(t+1)}, 64, {v(t+1)}\nv_add_u32 {v(dst2+1)}, {v(t)}, {v(t+1)}")
    def unit_tr_addr(self, dst2, base_sreg, t, perm, flip_sreg=None):
        p = self.p
        p(f"v_bfe_u32 {v(t)}, {v(VL)}, 4, 1")
        if flip_sreg is not None: p(f"v_xor_b32 {v(t)}, s{flip_sreg}, {v(t)}")
        p(f"v_lshlrev_b32 {v(t)}, 1, {v(t)}")
        p(f"v_bfe_u32 {v(t+1)}, {v(VL)}, {0 if perm else 1}, 1\nv_or_b32 {v(t)}, {v(t)}, {v(t+1)}")
        p(f"v_lshrrev_b32 {v(t+1)}, 5, {v(VL)}\nv_lshlrev_b32 {v(t+1)}, 1, {v(t+1)}\nv_xor_b32 {v(t+1)}, {v(t+1)}, {v(t)}")
        p(f"v_lshlrev_b32 {v(t)}, 9, {v(t)}")
        p(f"v_bfe_u32 {v(t+2)}, {v(VL)}, 2, 2\nv_lshl_add_u32 {v(t)}, {v(t+2)}, 4, {v(t)}")
        p(f"v_bfe_u32 {v(t+2)}, {v(VL)}, {1 if perm else 0}, 1\nv_lshl_add_u32 {v(t)}, {v(t+2)}, 3, {v(t)}")
        if base_sreg is not None: p(f"v_add_u32 {v(t)}, s{base_sreg}, {v(t)}")
        p(f"v_lshl_add_u32 {v(dst2)}, {v(t+1)}, 6, {v(t)}")
        p(f"v_xor_b32 {v(t+1)}, 1, {v(t+1)}\nv_lshl_add_u32 {v(dst2+1)}, {v(t+1)}, 6, {v(t)}")

    def gemm_loop(self, nslot, reads, mfmas, dma, tick, rfront, npro, extra, valu=None):
        p = self.p
        p.wait(vm=tick[0]); p("s_barrier")
        self.stamp(20)
        self.run(reads(0))
        d = []
        for st in range(npro, nslot): d += dma(st)
        q = (len(d) + 2) // 3
        pend = [d[i * q:(i + 1) * q] for i in range(3)]
        for n in range(32):
            rd = []
            if n + 1 < 32:
                if (n + 1) % 4 == 0:
                    st = (n + 1) // 4
                    p.wait(vm=tick[st], lg=p.lg - 1); p("s_barrier")
                    d = dma(st - 1 + nslot) if st - 1 + nslot < 8 else extra.get(st, lambda: [])()
                    q = (len(d) + 3) // 4
                    pend = [d[i * q:(i + 1) * q] for i in range(4)]
                rd = reads(n + 1)
            seq = merge(mfmas(n), rd, 0, rfront)
            if pend: seq = merge(seq, pend.pop(0), len(seq) // 2)
            if valu and n in valu: seq = merge(seq, valu[n])
            self.run(seq)

    def gate(self, GX, GW, GU, GS, GT):
        p = self.p
        for i in range(4):
            for r in range(4):
                p(f"v_dot2_f32_bf16 {v(GS+r)}, {v(GX+4*r+i)}, {v(GW+i)}, {'0' if i == 0 else v(GS+r)}")
        p("s_nop 2")
        for mod in ["quad_perm:[1,0,3,2]", "quad_perm:[2,3,0,1]", "row_half_mirror", "row_mirror"]:
            for r in range(4): p(f"v_add_f32_dpp {v(GS+r)}, {v(GS+r)}, {v(GS+r)} {mod} row_mask:0xf bank_mask:0xf")
        for sw in ["v_permlane16_swap_b32", "v_permlane32_swap_b32"]:
            for r in range(4): p(f"v_mov_b32 {v(GT+r)}, {v(GS+r)}")
            for r in range(4): p(f"{sw} {v(GS+r)}, {v(GT+r)}")
            for r in range(4): p(f"v_add_f32 {v(GS+r)}, {v(GS+r)}, {v(GT+r)}")
        for r in range(4): p(f"v_mul_f32 {v(GS+r)}, {f2u(-LOG2E)}, {v(GS+r)}")
        for r in range(4): p(f"v_exp_f32 {v(GS+r)}, {v(GS+r)}")
        for r in range(4): p(f"v_add_f32 {v(GS+r)}, 1.0, {v(GS+r)}")
        for r in range(4): p(f"v_rcp_f32 {v(GS+r)}, {v(GS+r)}")
        p(f"v_mov_b32 {v(GT)}, {v(VOOB)}\nv_writelane_b32 {v(GT)}, 0, 0")

    def w_dma_addr(self, dst3, t, colbase):
        p = self.p
        for i in range(3):
            p(f"v_add_u32 {v(t)}, {64*i}, {v(VL)}\nv_mul_u32_u24 {v(t+1)}, 171, {v(t)}\nv_lshrrev_b32 {v(t+1)}, 11, {v(t+1)}")
            p(f"v_mul_u32_u24 {v(t+2)}, 12, {v(t+1)}\nv_sub_u32 {v(t)}, {v(t)}, {v(t+2)}\nv_cmp_eq_u32 vcc, 11, {v(t)}")
            p(f"v_mul_u32_u24 {v(t+1)}, 2752, {v(t+1)}\nv_lshl_add_u32 {v(t)}, {v(t)}, 4, {v(t+1)}")
            if colbase - 1024 * i: p(f"v_add_u32 {v(t)}, {colbase-1024*i}, {v(t)}")
            p(f"v_cndmask_b32 {v(dst3+i)}, {v(t)}, {v(VOOB)}, vcc")
    def w_tr_addr(self, dst, base, t):
        p = self.p
        p(f"v_lshrrev_b32 {v(t)}, 5, {v(VL)}\nv_bfe_u32 {v(t+1)}, {v(VL)}, 2, 2\nv_lshl_add_u32 {v(t)}, {v(t)}, 3, {v(t+1)}\nv_mul_u32_u24 {v(t)}, 192, {v(t)}")
        p(f"v_bfe_u32 {v(t+1)}, {v(VL)}, 4, 1\nv_lshl_add_u32 {v(t)}, {v(t+1)}, 5, {v(t)}")
        p(f"v_and_b32 {v(t+1)}, 1, {v(VL)}\nv_lshl_add_u32 {v(t)}, {v(t+1)}, 4, {v(t)}")
        p(f"v_bfe_u32 {v(t+1)}, {v(VL)}, 1, 1\nv_lshl_add_u32 {v(t)}, {v(t+1)}, 3, {v(t)}")
        p(f"v_add_u32 {v(dst)}, {base}, {v(t)}")
    def valid_masks(self):
        MA, MB = SK + 2, SK + 4
        self.p.atom(f"s_cmp_lt_u32 s{SCOL}, 7\ns_mov_b32 s{MA}, -1\ns_cselect_b32 s{MA+1}, -1, 0\ns_cselect_b32 s{MB}, -1, 0\ns_mov_b32 s{MB+1}, 0\n"
                    f"s_mov_b32 s{SK+6}, {f2u(1/72)}\ns_cselect_b32 s{SK+6}, {f2u(1/88)}, s{SK+6}")
        c1 = -2 * LOG2E * 0.7978845608028654
        self.p(f"s_mov_b32 s{SK}, {f2u(c1*0.044715)}\nv_mov_b32 {v(self.VC0)}, {f2u(c1)}")

    def gelu_pair(self, a, t, out_packed=None):
        p = self.p
        p(f"v_pk_mul_f32 {v(t,2)}, {v(a,2)}, {v(a,2)}")
        p(f"v_pk_fma_f32 {v(t,2)}, {v(t,2)}, {sp(SK)}, {v(self.VC0,2)} op_sel_hi:[1,0,0]")
        p(f"v_pk_mul_f32 {v(t,2)}, {v(t,2)}, {v(a,2)}")
        p(f"v_exp_f32 {v(t)}, {v(t)}\nv_exp_f32 {v(t+1)}, {v(t+1)}")
        p(f"v_pk_add_f32 {v(t,2)}, {v(t,2)}, 1.0 op_sel_hi:[1,0]")
        p(f"v_rcp_f32 {v(t)}, {v(t)}\nv_rcp_f32 {v(t+1)}, {v(t+1)}")
        if out_packed is not None:
            p(f"v_pk_mul_f32 {v(t,2)}, {v(t,2)}, {v(a,2)}")
            p(f"v_cvt_pk_bf16_f32 {v(out_packed)}, {v(t)}, {v(t+1)}")
        else:
            p(f"v_pk_mul_f32 {v(a,2)}, {v(t,2)}, {v(a,2)}")
    def gelu_many(self, pairs, temps, outs=None):
        p = self.p; ng = len(temps)
        for g0 in range(0, len(pairs), ng):
            streams = []
            for k, i in enumerate(range(g0, min(g0 + ng, len(pairs)))):
                sub = Prog(); save = self.p; self.p = sub
                self.gelu_pair(pairs[i], temps[k], None if outs is None else outs[i])
                self.p = save
                streams.append(sub.L)
            for j in range(len(streams[0])):
                for s in streams: p(s[j])

    VWD, VWR, VWA, VC0 = 240, 244, 248, 252
    def wsp_setup(self, t):
        p = self.p
        self.plain_dma_addr(self.VWD, 4096, t)
        p(f"s_and_b32 s{SA}, s{SWV}, 1\ns_lshl_b32 s{SA}, s{SA}, 12")
        self.plain_read_addr(self.VWR, SA, t)
        p(f"s_lshl_b32 s{SWB}, s{STB}, 18\ns_lshl_b32 s{SB_}, s{SWV}, 10\ns_add_u32 s{SWB}, s{SWB}, s{SB_}")
        self.wsp_t = {}
    def piece(self, st): return (SPB + st % 5, 0)
    def wsp_dma(self, st):
        if self.o.get("x_nowsp") and st >= 2:
            self.wsp_t[st] = -1
            return [lambda: None] * 9
        items = []; sr, im = self.piece(st)
        for hh in range(2):
            for i in range(4):
                def cb(t): self.wsp_t[st] = t
                items.append(((sr, im + hh * 4096) if i == 0 else None, (SWB, st * 128 + hh * 131072) if i == 0 else None,
                              f"buffer_load_dwordx4 {v(self.VWD+i)}, {srd(SWSP)}, s{SDO} offen offset:{i*1024} {self.o.get('wmod', '')} lds", cb))
        return self.dseq(items)
    def wsp_read(self, st):
        if self.o.get("x_nord"): return [lambda: None]
        p = self.p; sr, im = self.piece(st)
        def pre():
            for ks in range(4): p(f"v_add_u32 {v(self.VWA+ks)}, s{sr}, {v(self.VWR+ks)}")
            p.wait(vm=self.wsp_t[st], lg=p.lg - 8)
        ops = [pre]
        for nt in range(2):
            for ks in range(4):
                def f(ks=ks, nt=nt):
                    p.lds(f"ds_read_b128 {ar(((st*4+ks)*2+nt)*4,4)}, {v(self.VWA+ks)} offset:{im}")
                    if nt == 0: p(f"v_xor_b32 {v(self.VWA+ks)}, 4096, {v(self.VWA+ks)}")
                ops.append(f)
        return ops

    def prologue(self):
        p = self.p
        self.END = p.label("end")
        p(f"s_cmp_ge_u32 s2, 256\ns_cbranch_scc1 {self.END}")
        p(f"s_load_dwordx2 {sp(SX)}, s[0:1], 0\ns_load_dwordx2 {sp(PWIN)}, s[0:1], 80\ns_load_dwordx4 s[{PBRE}:{PBRE+3}], s[0:1], 24")
        p(f"s_load_dwordx2 {sp(PGW)}, s[0:1], 112\ns_load_dwordx4 s[{PLRE}:{PLRE+3}], s[0:1], 8\ns_load_dwordx2 {sp(PLDT)}, s[0:1], 56\ns_load_dwordx2 {sp(SWS)}, s[0:1], 136")
        if self.o.get("tlb", 1):
            for (r, off) in [(SWSP, 88), (SCRE, 40), (SCIM, 48), (SWOUT, 104), (SOUT, 120), (PDSK, 64), (PBSP, 96)]:
                p(f"s_load_dwordx2 {sp(r)}, s[0:1], {off}")
            for (r, n) in [(SWSP, 8388608), (SWS, WS_END), (SCRE, 524288), (SCIM, 524288), (SWOUT, 704512), (SOUT, 4194304)]:
                p(f"s_mov_b32 s{r+2}, {n}\ns_mov_b32 s{r+3}, 0x20000")
        p(f"v_lshrrev_b32 v2, 6, v0\nv_and_b32 {v(VL)}, 63, v0\nv_readfirstlane_b32 s{SWV}, v2\nv_lshlrev_b32 {v(VL16)}, 4, {v(VL)}\nv_mov_b32 {v(VOOB)}, {OOB}")
        if self.o.get("stamps"): p("v_mov_b32 v255, 0")
        self.stamp(17)
        p(f"s_and_b32 s{SA}, s2, 7\ns_lshr_b32 s{SB_}, s2, 3")
        p(f"s_and_b32 s{SC}, s{SA}, 1\ns_lshl_b32 s{SC}, s{SC}, 2\ns_and_b32 s{SD}, s{SB_}, 3\ns_add_u32 s{SCOL}, s{SC}, s{SD}")
        p(f"s_lshr_b32 s{SA}, s{SA}, 1")
        p(f"s_lshr_b32 s{SC}, s{SB_}, 2\ns_lshl_b32 s{SD}, s{SA}, 3\ns_add_u32 s{STB}, s{SD}, s{SC}")
        p(f"s_and_b32 s{SC}, s{SC}, 3\ns_lshl_b32 s{SD}, s{SA}, 2\ns_add_u32 s{SRB}, s{SD}, s{SC}")
        if self.o.get("map", 1) == 1:
            p(f"s_and_b32 s{SD}, s2, 7\ns_lshl_b32 s{SD}, s{SD}, 2\ns_lshr_b32 s{STB}, s{SB_}, 3\ns_add_u32 s{STB}, s{STB}, s{SD}\ns_and_b32 s{SJ}, s{SB_}, 7")
        else: p(f"s_mov_b32 s{SJ}, s{SCOL}")
        p(f"s_mov_b32 s{SX+2}, 2097152\ns_mov_b32 s{SX+3}, 0x20000\ns_mov_b32 s{SW1+3}, 0x20000")
        if "probe" in self.o:
            off, ls, ws_ = [int(x) for x in self.o["probe"].split(",")]
            p(f"s_load_dwordx2 {sp(SPFP)}, s[0:1], {off}\ns_lshl_b32 s{SD}, s2, 2\ns_add_u32 s{SD}, s{SD}, s{SWV}\ns_mul_i32 s{SD}, s{SD}, {ws_}")
            p(f"v_mul_u32_u24 {v(4)}, {ls}, {v(VL)}\nv_add_u32 {v(4)}, s{SD}, {v(4)}\ns_waitcnt lgkmcnt(0)")
            p(f"global_load_dword {v(5)}, {v(4)}, {sp(SPFP)}\ns_waitcnt vmcnt(0)")
            self.stamp(30)
        pf = self.o.get("pf", 2)
        if pf == 4:
            p(f"s_lshl_b32 s{SD}, s{SB_}, 2\ns_add_u32 s{SD}, s{SD}, s{SWV}\ns_and_b32 s{SE}, s2, 7")
            p(f"s_lshr_b32 s{SA}, s{SE}, 1\ns_lshl_b32 s{SA}, s{SA}, 6\ns_add_u32 s{SA}, s{SA}, s{SD}")
            p(f"s_and_b32 s{SC}, s{SE}, 1\ns_lshl_b32 s{SC}, s{SC}, 5\ns_and_b32 s{SPFE}, s{SD}, 31\ns_add_u32 s{SC}, s{SC}, s{SPFE}")
            p(f"s_cmp_ge_u32 s{SD}, 64\ns_cselect_b32 s{SA}, s{SC}, s{SA}\ns_cselect_b32 s{SC}, 24, 0\ns_cmp_ge_u32 s{SD}, 96\ns_cselect_b32 s{SC}, 32, s{SC}")
            p(f"s_load_dwordx2 {sp(SPFP)}, s[0:1], s{SC}\ns_lshl_b32 s{SA}, s{SA}, 13\nv_lshl_add_u32 {v(4)}, {v(VL)}, 7, s{SA}")
            p(f"v_mul_u32_u24 {v(6)}, 37, {v(VL)}\nv_lshrrev_b32 {v(6)}, 8, {v(6)}")
            p(f"v_mul_u32_u24 {v(7)}, 7, {v(6)}\nv_sub_u32 {v(7)}, {v(VL)}, {v(7)}\nv_lshlrev_b32 {v(7)}, 7, {v(7)}\nv_min_u32 {v(7)}, 700, {v(7)}")
            p(f"v_min_u32 {v(6)}, 7, {v(6)}\nv_mul_u32_u24 {v(6)}, 1376, {v(6)}\nv_add_u32 {v(6)}, {v(6)}, {v(7)}")
            p(f"s_mul_i32 s{SA}, s{SD}, {4*2752}\ns_and_b32 s{SE}, s{SE}, 1\ns_mul_i32 s{SE}, s{SE}, 704\ns_add_u32 s{SA}, s{SA}, s{SE}\nv_add_u32 {v(6)}, s{SA}, {v(6)}\nv_min_u32 {v(6)}, {512*2752-4}, {v(6)}")
        if pf == 3:
            p(f"s_lshl_b32 s{SD}, s{SWV}, 8\ns_add_u32 s{SD}, s{SD}, s2\ns_mov_b32 s{SC}, 0\ns_mov_b32 s{SA}, 0")
            for (lo, off) in [(256, 80), (428, 24), (492, 32), (556, 40), (620, 48), (684, 104)]:
                p(f"s_cmp_ge_u32 s{SD}, {lo}\ns_cselect_b32 s{SC}, {off}, s{SC}\ns_cselect_b32 s{SA}, {lo}, s{SA}")
            p(f"s_cmp_lt_u32 s{SD}, 770\ns_cselect_b32 s{SPFE}, 1, 0")
            p(f"s_sub_u32 s{SD}, s{SD}, s{SA}\ns_load_dwordx2 {sp(SPFP)}, s[0:1], s{SC}")
            p(f"s_lshl_b32 s{SD}, s{SD}, 13\nv_lshl_add_u32 {v(4)}, {v(VL)}, 7, s{SD}")
        if pf == 1:
            p(f"s_lshl_b32 s{SD}, s2, 2\ns_add_u32 s{SD}, s{SD}, s{SWV}\ns_mov_b32 s{SC}, 0\ns_mov_b32 s{SA}, 0")
            for (lo, off) in [(256, 80), (428, 24), (492, 32)]:
                p(f"s_cmp_ge_u32 s{SD}, {lo}\ns_cselect_b32 s{SC}, {off}, s{SC}\ns_cselect_b32 s{SA}, {lo}, s{SA}")
            p(f"s_cmp_lt_u32 s{SD}, 556\ns_cselect_b32 s{SPFE}, 1, 0")
            p(f"s_sub_u32 s{SD}, s{SD}, s{SA}\ns_load_dwordx2 {sp(SPFP)}, s[0:1], s{SC}")
            p(f"s_lshl_b32 s{SD}, s{SD}, 13\nv_lshl_add_u32 {v(4)}, {v(VL)}, 7, s{SD}")
        if pf == 2:
            p(f"s_lshl_b32 s{SD}, s{SWV}, 8\ns_add_u32 s{SD}, s{SD}, s2\ns_mov_b32 s{SC}, 0\ns_mov_b32 s{SA}, 0\ns_mov_b32 s{SE}, 2047")
            for (lo, off, last) in [(171, 24, 511), (214, 32, 511), (257, 80, 0)]:
                p(f"s_cmp_ge_u32 s{SD}, {lo}\ns_cselect_b32 s{SC}, {off}, s{SC}\ns_cselect_b32 s{SA}, {lo}, s{SA}\ns_cselect_b32 s{SE}, {last}, s{SE}")
            p(f"s_cmp_lt_u32 s{SD}, 365\ns_cselect_b32 s{SPFE}, 1, 0")
            p(f"s_sub_u32 s{SD}, s{SD}, s{SA}\ns_load_dwordx2 {sp(SPFP)}, s[0:1], s{SC}")
            p(f"v_mul_u32_u24 {v(4)}, 52, {v(VL)}\nv_lshrrev_b32 {v(4)}, 8, {v(4)}\nv_mul_u32_u24 {v(5)}, 5, {v(4)}\nv_sub_u32 {v(5)}, {v(VL)}, {v(5)}")
            p(f"s_mul_i32 s{SA}, s{SD}, 12\nv_add_u32 {v(4)}, s{SA}, {v(4)}\nv_min_u32 {v(4)}, s{SE}, {v(4)}\nv_lshlrev_b32 {v(4)}, 10, {v(4)}\nv_lshl_add_u32 {v(4)}, {v(5)}, 7, {v(4)}\nv_add_u32 {v(4)}, 384, {v(4)}")
            p(f"s_lshl_b32 s{SD}, s{SD}, 13\ns_add_u32 s{SD}, s{SD}, {192*2752}\nv_lshl_add_u32 {v(5)}, {v(VL)}, 7, s{SD}\nv_min_u32 {v(5)}, {512*2752-4}, {v(5)}")
            p(f"s_cmp_eq_u32 s{SE}, 0\ns_cselect_b64 vcc, -1, 0\nv_cndmask_b32 {v(4)}, {v(4)}, {v(5)}, vcc")
        self.LU = p.label("U"); self.LG = p.label("G")
        p(f"s_cmp_ge_u32 s{SB_}, 16\ns_cbranch_scc1 {self.LU}")
    def code_prefetch(self, va, vd):
        if not self.o.get("cpf", 1): return
        p = self.p
        sk = p.label("cpf"); here = p.label("pc")
        nsl = self.o.get("cpfn", 6)
        p(f"s_lshr_b32 s{SA}, s2, 3\ns_and_b32 s{SA}, s{SA}, 15\ns_lshl_b32 s{SA}, s{SA}, 2\ns_add_u32 s{SA}, s{SA}, s{SWV}")
        p(f"s_cmp_ge_u32 s{SA}, {nsl}\ns_cbranch_scc1 {sk}")
        p(f"s_getpc_b64 s[{SSTMP}:{SSTMP+1}]")
        p.put(here)
        p(f"s_sub_u32 s{SSTMP}, s{SSTMP}, {here}-{NAME}\ns_subb_u32 s{SSTMP+1}, s{SSTMP+1}, 0")
        p(f"s_lshl_b32 s{SA}, s{SA}, 13\nv_lshl_add_u32 {v(va)}, {v(VL)}, 7, s{SA}\nv_min_u32 {v(va)}, {self.END}-{NAME}, {v(va)}")
        p(f"global_load_dword {v(vd)}, {v(va)}, s[{SSTMP}:{SSTMP+1}]")
        p.put(sk)
    def pf1(self, when=1):
        if self.o.get("pf", 2) == 4 and self.o.get("pfw", 5) == when:
            self.p.vmem(f"global_load_dword {v(7)}, {v(6)}, {sp(PWIN)}")
            self.p.vmem(f"global_load_dword {v(5)}, {v(4)}, {sp(SPFP)}")
        if {3: 1}.get(self.o.get("pf", 2), self.o.get("pf", 2)) == when:
            p = self.p; l = p.label("pf")
            p(f"s_cmp_eq_u32 s{SPFE}, 0\ns_cbranch_scc1 {l}\nglobal_load_dword {v(5)}, {v(4)}, {sp(SPFP)}")
            p.put(l)
        if self.o.get("wfirst") == when: self.touch_wsp(11, 12, 0, 1)
    def tlb_warm(self):
        p = self.p
        ls = [p.label("tw") for _ in range(4)]
        p(f"v_lshlrev_b32 {v(6)}, 19, {v(VL)}\nv_mov_b32 {v(7)}, 0")
        p(f"s_cmp_eq_u32 s{SWV}, 1\ns_cbranch_scc1 {ls[0]}\ns_cmp_eq_u32 s{SWV}, 2\ns_cbranch_scc1 {ls[1]}\ns_cmp_eq_u32 s{SWV}, 3\ns_cbranch_scc1 {ls[2]}")
        p(f"buffer_load_dword {v(8)}, {v(6)}, {srd(SWS)}, 0 offen sc1\nglobal_load_ushort {v(9)}, {v(7)}, {sp(PGW)}\ns_branch {ls[3]}")
        p.put(ls[0]); p(f"buffer_load_dword {v(8)}, {v(6)}, {srd(SWSP)}, 0 offen\nglobal_load_ushort {v(9)}, {v(7)}, {sp(PBSP)}\nglobal_load_ushort {v(10)}, {v(7)}, {sp(PDSK)}\ns_branch {ls[3]}")
        p.put(ls[1]); p(f"buffer_load_dword {v(8)}, {v(6)}, {srd(SOUT)}, 0 offen sc1\nbuffer_load_dword {v(9)}, {v(6)}, {srd(SWOUT)}, 0 offen\ns_branch {ls[3]}")
        p.put(ls[2]); p(f"buffer_load_dword {v(8)}, {v(6)}, {srd(SCRE)}, 0 offen\nbuffer_load_dword {v(9)}, {v(6)}, {srd(SCIM)}, 0 offen")
        p.put(ls[3])
    def late_args(self):
        p = self.p
        if self.o.get("tlb", 1):
            if self.o.get("tlb", 1) == 1: self.tlb_warm()
            self.pf1(5)
            p(f"s_load_dword s{ST_T}, {sp(SWS)}, {EPOCH}")
            return
        for (r, off) in [(SWSP, 88), (SCRE, 40), (SCIM, 48), (SWOUT, 104), (SOUT, 120), (PDSK, 64), (PBSP, 96)]:
            p(f"s_load_dwordx2 {sp(r)}, s[0:1], {off}")
        p(f"s_load_dword s{ST_T}, {sp(SWS)}, {EPOCH}")
        for (r, n) in [(SWSP, 8388608), (SWS, WS_END), (SCRE, 524288), (SCIM, 524288), (SWOUT, 704512), (SOUT, 4194304)]:
            p(f"s_mov_b32 s{r+2}, {n}\ns_mov_b32 s{r+3}, 0x20000")
    def epoch2(self):
        p = self.p
        p.wait_lg_all()
        p(f"s_mul_i32 s{ST_T}, s{ST_T}, 0x9E3779B1\ns_add_u32 s{ST_T}, s{ST_T}, 0x7F4A7C15")

    def touch_wsp(self, va, vd, k, n):
        p = self.p
        if k == 0:
            p(f"s_lshr_b32 s{SB_}, s2, 3\ns_lshl_b32 s{SB_}, s{SB_}, 2\ns_add_u32 s{SB_}, s{SB_}, s{SWV}\ns_lshl_b32 s{SB_}, s{SB_}, 13")
            p(f"s_and_b32 s{SA}, s2, 7\ns_lshl_b32 s{SA}, s{SA}, 20\ns_add_u32 s87, s{SA}, s{SB_}")
            p(f"v_cmp_gt_u32 vcc, {64//n}, {v(VL)}\nv_lshlrev_b32 {v(va)}, 7, {v(VL)}\ns_nop 0\nv_cndmask_b32 {v(va)}, {v(VOOB)}, {v(va)}, vcc")
        else: p(f"s_add_u32 s87, s87, {8192//n}")
        p.vmem(f"buffer_load_dword {v(vd)}, {v(va)}, {srd(SWSP)}, s87 offen {self.o.get('tmod', '')}")
    def ctouch(self, va, vd):
        p = self.p; l = p.label("ct")
        p(f"s_lshl_b32 s{SA}, s{SWV}, 8\ns_add_u32 s{SA}, s{SA}, s2\ns_cmp_ge_u32 s{SA}, 856\ns_cbranch_scc1 {l}")
        p(f"s_cmp_lt_u32 s{SA}, 256\ns_cselect_b64 {sp(SSTMP)}, {sp(SCRE)}, {sp(SCIM)}")
        p(f"s_sub_u32 s{SB_}, s{SA}, 512\ns_and_b32 s{SSPIN}, s{SA}, 255\ns_cmp_ge_u32 s{SA}, 512\ns_cselect_b64 {sp(SSTMP)}, {sp(SWOUT)}, {sp(SSTMP)}\ns_cselect_b32 s{SA}, s{SB_}, s{SSPIN}")
        p(f"s_lshl_b32 s{SA}, s{SA}, 11\nv_and_b32 {v(vd)}, 15, {v(VL)}\nv_lshlrev_b32 {v(vd)}, 7, {v(vd)}\nv_add_u32 {v(vd)}, s{SA}, {v(vd)}")
        p(f"global_load_dword {v(vd)}, {v(vd)}, {sp(SSTMP)}")
        p.put(l)
    def paced(self, valu, va, vd, t0, dt):
        if "ct" in self.o: valu.setdefault(self.o["ct"], []).append(lambda: self.ctouch(va, vd + 1 if vd != 205 else 4))
        n = self.o.get("tn", 4)
        if self.o.get("touch", 1) != 1: return
        for k in range(n):
            valu.setdefault(t0 + k * dt, []).append(lambda k=k: self.touch_wsp(va, vd, k, n))
    def touch_c(self, va, vd):
        p = self.p
        p(f"v_lshlrev_b32 {v(va)}, 7, {v(VL)}\ns_lshr_b32 s{SB_}, s2, 3\ns_lshl_b32 s{SB_}, s{SB_}, 2\ns_add_u32 s{SB_}, s{SB_}, s{SWV}\ns_lshl_b32 s{SA}, s{SB_}, 13")
        p.vmem(f"buffer_load_dword {v(vd)}, {v(va)}, {srd(SWOUT)}, s{SA} offen")
        p.vmem(f"buffer_load_dword {v(vd)}, {v(va)}, {srd(SCRE)}, s{SA} offen")
        p.vmem(f"buffer_load_dword {v(vd)}, {v(va)}, {srd(SCIM)}, s{SA} offen")
        p(f"s_add_u32 s{SA}, s{SA}, 524288")
        p.vmem(f"buffer_load_dword {v(vd)}, {v(va)}, {srd(SWOUT)}, s{SA} offen")
    GTR, GPL = 236, 238
    def g_early(self, t):
        p = self.p
        p(f"s_lshr_b32 s{SA}, s{SWV}, 1")
        self.unit_tr_addr(self.GTR, SREG, t, True, flip_sreg=SA)
        p(f"s_lshl_b32 s{SA}, s{SJ}, 13\ns_add_u32 s{SA}, s{SA}, {ZF}\ns_lshl_b32 s{SB_}, s{SWV}, 11\ns_add_u32 s{SB_}, s{SB_}, s{SA}")
        self.poll_addr(self.GPL, [(SB_, 16)])
        p(f"s_lshl_b32 s{SA}, s{STB}, 8\ns_add_u32 s{SA}, s{SA}, {ZF}")
        p(f"v_bfe_u32 {v(t)}, {v(VL)}, 1, 3\nv_lshlrev_b32 {v(t)}, 13, {v(t)}\nv_and_b32 {v(t+1)}, 1, {v(VL)}\nv_lshl_add_u32 {v(t)}, {v(t+1)}, 7, {v(t)}\nv_add_u32 {v(t)}, s{SA}, {v(t)}")
        p(f"s_mov_b32 vcc_lo, 0xffff0000\ns_mov_b32 vcc_hi, 0\nv_cndmask_b32 {v(self.GPL)}, {v(self.GPL)}, {v(t)}, vcc")
        p(f"s_lshl_b32 s{SA}, s{SJ}, 6\ns_lshl_b32 s{SB_}, s{STB}, 1\ns_add_u32 s{SA}, s{SA}, s{SB_}\ns_and_b32 s{SB_}, s{SWV}, 1\ns_add_u32 s{SZI}, s{SA}, s{SB_}")
        p(f"s_lshl_b32 s{SA}, s{SZI}, 7\ns_add_u32 s{SA}, s{SA}, {Z1F}\nv_writelane_b32 {v(self.GPL)}, s{SA}, 32")
        p(f"s_lshl_b32 s{SA}, s{SJ}, 6\ns_lshl_b32 s{SB_}, s{SWV}, 4\ns_add_u32 s{SA}, s{SA}, s{SB_}\ns_mul_i32 s{SGB}, s{SA}, 5632\ns_add_u32 s{SGB}, s{SGB}, {Z2N}")
    def g_poll_issue(self):
        self.gp = self.p.vmem(f"buffer_load_dword {v(self.GPL+1)}, {v(self.GPL)}, {srd(SWS)}, 0 offen sc1")

    def phase_z(self):
        p = self.p; o = self.o
        ACC, FA, FB, XR, WR, XD, WD, T = 16, 64, 88, 96, 100, 104, 108, 112
        p.c("==== phase A: Z ====")
        self.plain_dma_addr(XD, 1024, T)
        p(f"s_lshl_b32 s{SXB}, s{SRB}, 17\ns_lshl_b32 s{SA}, s{SWV}, 15\ns_add_u32 s{SXB}, s{SXB}, s{SA}")
        p(f"s_mul_i32 s{SREG}, s{SWV}, 40960")
        tick = {}
        def xdma(st, cb=None):
            return [((SREG, (st & 3) * 4096) if i == 0 else None, (SXB, st * 128) if i == 0 else None,
                     f"buffer_load_dwordx4 {v(XD+i)}, {srd(SX)}, s{SDO} offen offset:{i*1024} lds", cb) for i in range(4)]
        def wdma(st, cb=None):
            return [((SWL, (st & 3) * 40960) if i == 0 else None, (SW1B, st * 64 * 2752) if i == 0 else None,
                     f"buffer_load_dwordx4 {v(WD+i)}, {srd(SW1)}, s{SDO} offen offset:{i*1024} lds", cb) for i in range(3)]
        def dma(st):
            def cb(t): tick[st] = t
            return self.dseq(wdma(st) + xdma(st, cb))
        self.w_dma_addr(WD, T, 1376)
        p(f"s_mul_i32 s{SW1B}, s{SWV}, {16*2752}\ns_mul_i32 s{SA}, s{SCOL}, 176\ns_add_u32 s{SW1B}, s{SW1B}, s{SA}")
        p(f"s_mul_i32 s{SWL}, s{SWV}, 3072\ns_add_u32 s{SWL}, s{SWL}, 16384\ns_mov_b32 s{SW1+2}, {512*2752}")
        p.wait_lg_all()
        p(f"s_mov_b64 {sp(SW1)}, {sp(PWIN)}")
        npro = o.get("npro", 3)
        self.code_prefetch(170, 171)
        self.pf1()
        self.run(dma(0))
        self.late_args()
        def setup():
            self.plain_read_addr(XR, SREG, T)
            self.w_tr_addr(WR, 16384, T)
            self.p(f"v_add_u32 {v(WR+1)}, 81920, {v(WR)}")
            self.wsp_setup(T)
            self.p(f"s_add_u32 s{SPB}, s{SREG}, 32768\ns_mov_b32 s{SPB+1}, s{SREG}\ns_add_u32 s{SPB+2}, s{SREG}, 8192\ns_add_u32 s{SPB+3}, s{SREG}, 16384\ns_add_u32 s{SPB+4}, s{SREG}, 24576")
            self.valid_masks()
        d = []
        for st in range(1, npro): d += dma(st)
        self.run(merge(self.cap(setup), d))
        self.pf1(2)
        self.epoch2()
        self.stamp(0)
        rt = {}
        def reads(n):
            st, ks = n // 4, n % 4; sl = st & 3; s = n & 1; ops = []
            def rb(): rt[(n, 'b')] = p.lds(f"ds_read_b128 {v(FB+4*s,4)}, {v(XR+ks)} offset:{sl*4096}")
            ops.append(rb)
            for mt in range(3):
                for a in range(2):
                    def ra(mt=mt, a=a):
                        rt[(n, mt)] = p.lds(f"ds_read_b64_tr_b16 {v(FA+12*s+4*mt+2*a,2)}, {v(WR+(sl>>1))} offset:{(sl&1)*40960+ks*3072+a*768+mt*64}")
                    ops.append(ra)
            return ops
        def mfmas(n):
            s = n & 1; ops = []
            for mt in range(3):
                def m(mt=mt):
                    p.wait(lg=rt[(n, mt)])
                    c = "0" if n == 0 else v(ACC + 16 * mt, 16)
                    p(f"{MF} {v(ACC+16*mt,16)}, {v(FA+12*s+4*mt,4)}, {v(FB+4*s,4)}, {c}")
                ops.append(m)
            return ops
        GX, GW, GU, GS, GT = 128, 144, 148, 156, 160
        gt = {}
        def gload():
            p(f"s_lshl_b32 s{SE}, s{SRB}, 2\ns_add_u32 s{SE}, s{SE}, s{SWV}\ns_lshl_b32 s{SE}, s{SE}, 3\ns_add_u32 s{SE}, s{SE}, s{SCOL}\ns_lshl_b32 s{SA}, s{SE}, 12")
            for r in range(4): p.vmem(f"buffer_load_dwordx4 {v(GX+4*r,4)}, {v(VL16)}, {srd(SX)}, s{SA} offen offset:{r*1024}")
            gt['t'] = p.vmem(f"global_load_dwordx4 {v(GW,4)}, {v(VL16)}, {sp(PGW)}")
        def gstore():
            p(f"s_lshl_b32 s{SA}, s{SE}, 4\ns_add_u32 s{SA}, s{SA}, {GATE}")
            p.vmem(f"buffer_store_dwordx4 {v(GS,4)}, {v(GT)}, {srd(SWS)}, s{SA} offen sc1")
        gops = [lambda: p.wait(vm=gt['t'])] + self.cap(lambda: self.gate(GX, GW, GU, GS, GT)) + [gstore]
        zm = o.get('zmode', 1)
        valu = {(28 if zm == 1 else 13): [gload]}
        def touch_u():
            p(f"v_lshlrev_b32 {v(170)}, 7, {v(VL)}\ns_lshr_b32 s{SB_}, s2, 3\ns_lshl_b32 s{SB_}, s{SB_}, 2\ns_add_u32 s{SB_}, s{SB_}, s{SWV}\ns_lshl_b32 s{SB_}, s{SB_}, 13")
            p(f"s_and_b32 s{SA}, s2, 7\ns_lshl_b32 s{SA}, s{SA}, 20\ns_add_u32 s{SA}, s{SA}, s{SB_}\ns_add_u32 s{SA}, s{SA}, {1<<19}")
            p.vmem(f"buffer_load_dword {v(171)}, {v(170)}, {srd(SWSP)}, s{SA} offen")
        if o.get("touchu"): valu[o["touchu"]] = [touch_u]
        def warm():
            p(f"v_lshlrev_b32 {v(170)}, 18, {v(VL)}\nv_lshlrev_b32 {v(172)}, 16, {v(VL)}\nv_lshlrev_b32 {v(173)}, 13, {v(VL)}")
            ls = [p.label("wm") for _ in range(4)]
            p(f"s_cmp_eq_u32 s{SWV}, 1\ns_cbranch_scc1 {ls[0]}\ns_cmp_eq_u32 s{SWV}, 2\ns_cbranch_scc1 {ls[1]}\ns_cmp_eq_u32 s{SWV}, 3\ns_cbranch_scc1 {ls[2]}")
            p(f"buffer_load_dword {v(171)}, {v(170)}, {srd(SWS)}, 0 offen sc1\ns_branch {ls[3]}")
            p.put(ls[0]); p(f"buffer_load_dword {v(171)}, {v(172)}, {srd(SOUT)}, 0 offen sc1\ns_branch {ls[3]}")
            p.put(ls[1]); p(f"buffer_load_dword {v(171)}, {v(173)}, {srd(SCRE)}, 0 offen\nbuffer_load_dword {v(171)}, {v(173)}, {srd(SCIM)}, 0 offen\ns_branch {ls[3]}")
            p.put(ls[2]); p(f"v_lshlrev_b32 {v(173)}, 14, {v(VL)}\nbuffer_load_dword {v(171)}, {v(173)}, {srd(SWOUT)}, 0 offen")
            p.put(ls[3])
        if o.get("warm"): valu[31] = [warm]
        def ztouch(part):
            if part == 0:
                p(f"v_lshlrev_b32 {v(174)}, 7, {v(VL)}\ns_lshr_b32 s{SB_}, s2, 3\ns_lshl_b32 s{SB_}, s{SB_}, 2\ns_add_u32 s{SB_}, s{SB_}, s{SWV}")
                p(f"s_and_b32 s{SA}, s2, 7\ns_lshl_b32 s{SPFP+1}, s{SB_}, 3\ns_add_u32 s{SPFP+1}, s{SPFP+1}, s{SA}")
                if o.get("map", 1) == 0: p(f"s_lshr_b32 s{SA}, s{SA}, 1\ns_lshl_b32 s{SA}, s{SA}, 1")
                p(f"s_lshl_b32 s{SA}, s{SA}, 20\ns_lshl_b32 s{SB_}, s{SB_}, 13\ns_add_u32 s{SPFP}, s{SA}, s{SB_}")
                p.vmem(f"buffer_load_dword {v(175)}, {v(174)}, {srd(SWSP)}, s{SPFP} offen")
            for _ in range({(0, 0): 1, (1, 0): 2, (1, 1): 1}.get((part, o.get("map", 1)), 0)):
                p(f"s_add_u32 s{SPFP}, s{SPFP}, {1<<19}")
                p.vmem(f"buffer_load_dword {v(175)}, {v(174)}, {srd(SWSP)}, s{SPFP} offen")
            if part == 2:
                l = p.label("zt")
                p(f"s_cmp_ge_u32 s{SPFP+1}, 428\ns_cbranch_scc1 {l}")
                p(f"s_cmp_lt_u32 s{SPFP+1}, 128\ns_cselect_b64 {sp(SSTMP)}, {sp(SCRE)}, {sp(SCIM)}\ns_and_b32 s{SA}, s{SPFP+1}, 127")
                p(f"s_sub_u32 s{SB_}, s{SPFP+1}, 256\ns_cmp_ge_u32 s{SPFP+1}, 256\ns_cselect_b64 {sp(SSTMP)}, {sp(SWOUT)}, {sp(SSTMP)}\ns_cselect_b32 s{SA}, s{SB_}, s{SA}")
                p(f"s_lshl_b32 s{SA}, s{SA}, 12\nv_and_b32 {v(174)}, 4095, {v(174)}\nv_add_u32 {v(174)}, s{SA}, {v(174)}")
                p(f"global_load_dword {v(175)}, {v(174)}, {sp(SSTMP)}")
                p.put(l)
        if o.get("touch", 1) == 2:
            for k in range(3): valu.setdefault(o.get(f"zs{k}", [0, 0, 0][k]), []).append(lambda k=k: ztouch(k))
        else: self.paced(valu, 174, 175, o.get("zt0", 6), o.get("zdt", 6))
        self.gemm_loop(4, reads, mfmas, dma, tick, 2, npro, {o.get('ze0', 5): lambda: self.wsp_dma(0), o.get('ze1', 6): lambda: self.wsp_dma(1)} if zm == 1 else {}, valu)
        self.stamp(1)
        MA, MB = SK + 2, SK + 4
        GR, VLO = 72, 80
        def seg1b():
            p = self.p
            S0, S1, MU = 64, 66, 68
            p(f"v_pk_add_f32 {v(S0,2)}, {v(ACC,2)}, {v(ACC+2,2)}\nv_pk_add_f32 {v(S1,2)}, {v(ACC+4,2)}, {v(ACC+6,2)}")
            for i in range(4, 16):
                s = S0 if i % 2 == 0 else S1
                p(f"v_pk_add_f32 {v(s,2)}, {v(s,2)}, {v(ACC+2*i,2)}")
            for (m, b) in [(MA, 16), (MB, 20)]:
                p(f"s_mov_b64 exec, {sp(m)}")
                for i in range(b, b + 4):
                    s = S0 if i % 2 == 0 else S1
                    p(f"v_pk_add_f32 {v(s,2)}, {v(s,2)}, {v(ACC+2*i,2)}")
            p("s_mov_b64 exec, -1")
            p(f"v_pk_add_f32 {v(S0,2)}, {v(S0,2)}, {v(S1,2)}\nv_add_f32 {v(GR)}, {v(S0)}, {v(S0+1)}")
            p(f"v_mov_b32 {v(S0)}, {v(GR)}\nv_mov_b32 {v(GR+1)}, s{ST_T}\nv_mov_b32 {v(GR+3)}, s{ST_T}\nv_permlane32_swap_b32 {v(GR)}, {v(S0)}\nv_add_f32 {v(GR)}, {v(GR)}, {v(S0)}")
            p(f"v_mul_f32 {v(MU)}, s{SK+6}, {v(GR)}")
            D0, D1 = 76, 78
            def m2(i, first=False):
                d = D0 if i % 2 == 0 else D1; s = S0 if i % 2 == 0 else S1
                p(f"v_pk_add_f32 {v(d,2)}, {v(ACC+2*i,2)}, {v(MU,2)} op_sel_hi:[1,0] neg_lo:[0,1] neg_hi:[0,1]")
                if first: p(f"v_pk_mul_f32 {v(s,2)}, {v(d,2)}, {v(d,2)}")
                else: p(f"v_pk_fma_f32 {v(s,2)}, {v(d,2)}, {v(d,2)}, {v(s,2)}")
            for i in range(16): m2(i, i < 2)
            for (m, b) in [(MA, 16), (MB, 20)]:
                p(f"s_mov_b64 exec, {sp(m)}")
                for i in range(b, b + 4): m2(i)
            p("s_mov_b64 exec, -1")
            p(f"v_pk_add_f32 {v(S0,2)}, {v(S0,2)}, {v(S1,2)}\nv_add_f32 {v(GR+2)}, {v(S0)}, {v(S0+1)}")
            p(f"v_mov_b32 {v(S0)}, {v(GR+2)}\nv_cmp_gt_u32 vcc, 32, {v(VL)}")
            p(f"s_lshl_b32 s{SC}, s{SRB}, 2\ns_add_u32 s{SC}, s{SC}, s{SWV}")
            p(f"v_permlane32_swap_b32 {v(GR+2)}, {v(S0)}\nv_cndmask_b32 {v(VLO)}, {v(VOOB)}, {v(VL16)}, vcc\nv_add_f32 {v(GR+2)}, {v(GR+2)}, {v(S0)}")
            p(f"s_lshl_b32 s{SD}, s{SC}, 12\ns_add_u32 s{SD}, s{SD}, {ST}\ns_lshl_b32 s{SA}, s{SCOL}, 9\ns_add_u32 s{SA}, s{SA}, s{SD}")
        seg1 = self.cap(lambda: self.gelu_many([ACC + 2 * i for i in range(24)], [64, 68, 72, 76]))
        h = len(seg1) // 5
        f1 = self.wsp_dma(2) + [lambda: p("s_barrier")]
        f2 = self.wsp_dma(3) + self.wsp_dma(4)
        if zm == 1: self.run(merge(seg1[:h], f1) + merge(seg1[h:], f2))
        else: self.run(seg1[:h] + [lambda: p("s_barrier")] + seg1[h:])
        seg1b()
        p.vmem(f"buffer_store_dwordx4 {v(GR,4)}, {v(VLO)}, {srd(SWS)}, s{SA} offen sc1")
        self.stamp(2)
        lgw = lambda: p.wait(lg=p.lg - 1)
        Q0, Q1, QA, QB = 112, 113, 114, 115
        MN, VR, N3, I3, TM = 80, 81, 82, 83, 84
        def misc():
            p = self.p
            self.g_early(120)
            p(f"v_lshrrev_b32 {v(Q1)}, 5, {v(VL)}\nv_lshlrev_b32 {v(Q1)}, 6, {v(Q1)}\nv_xor_b32 {v(Q0)}, {v(VL16)}, {v(Q1)}\nv_xor_b32 {v(Q1)}, 128, {v(Q0)}")
            p(f"v_cndmask_b32 {v(QA)}, {v(VOOB)}, {v(Q0)}, {sp(MA)}\nv_cndmask_b32 {v(QB)}, {v(VOOB)}, {v(Q1)}, {sp(MB)}")
            p(f"s_lshl_b32 s{SA}, s{SCOL}, 6\ns_add_u32 s{SC}, s{SA}, s{SC}\ns_mul_i32 s{SE}, s{SC}, 5632")
            self.flag_prep(118)
            p(f"v_cmp_gt_u32 vcc, 32, {v(VL)}\nv_mov_b32 {v(N3)}, {f2u(72.0)}\nv_mov_b32 {v(TM)}, {f2u(88.0)}\nv_mov_b32 {v(I3)}, {f2u(1/72)}\nv_mov_b32 {v(TM+1)}, {f2u(1/88)}")
            p(f"v_cndmask_b32 {v(N3)}, {v(N3)}, {v(TM)}, vcc\nv_cndmask_b32 {v(I3)}, {v(I3)}, {v(TM+1)}, vcc")
        za = o.get("za", 1)
        f = self.wsp_read(0) + self.wsp_read(1) + [lgw]
        for st in range(5, 5 + za): f += self.wsp_dma(st)
        if zm == 2: f = self.wsp_dma(0) + self.wsp_dma(1)
        self.run(merge(gops + self.cap(misc), f))
        self.stamp(3)
        SG = 64
        for q in range(4):
            ts = p.vmem(f"buffer_load_dwordx4 {v(SG+4*q,4)}, {v(VL16)}, {srd(SWS)}, s{SD} offen offset:{q*1024} sc1")
        if zm == 1:
            for st in range(5 + za, 7): self.run(self.wsp_dma(st))
        else: self.run(self.wsp_dma(2))
        l = p.label("sp"); dl = p.label("sd")
        p.wait(vm=ts)
        p(f"s_mov_b32 s{SSPIN}, 0")
        p.put(l)
        X0 = 116
        p(f"v_xor_b32 {v(MN)}, s{ST_T}, {v(SG+1)}\nv_xor_b32 {v(VR)}, s{ST_T}, {v(SG+3)}")
        for r in [5, 9, 13]:
            p(f"v_xor_b32 {v(X0)}, s{ST_T}, {v(SG+r)}\nv_xor_b32 {v(X0+1)}, s{ST_T}, {v(SG+r+2)}\nv_or3_b32 {v(MN)}, {v(MN)}, {v(X0)}, {v(X0+1)}")
        p(f"v_or_b32 {v(MN)}, {v(MN)}, {v(VR)}")
        p(f"v_cmp_ne_u32 vcc, 0, {v(MN)}\ns_cmp_eq_u64 vcc, 0\ns_cbranch_scc1 {dl}")
        for q in range(4):
            p(f"buffer_load_dwordx4 {v(SG+4*q,4)}, {v(VL16)}, {srd(SWS)}, s{SD} offen offset:{q*1024} sc1")
        p("s_waitcnt vmcnt(0)")
        p(f"s_add_u32 s{SSPIN}, s{SSPIN}, 1\ns_cmp_lt_u32 s{SSPIN}, {SPIN}\ns_cbranch_scc1 {l}")
        p.put(dl)
        self.stamp(4)
        p(f"v_add_f32 {v(MN)}, {v(SG)}, {v(SG+4)}\nv_add_f32 {v(TM+2)}, {v(SG+8)}, {v(SG+12)}\nv_add_f32 {v(MN)}, {v(MN)}, {v(TM+2)}")
        p(f"v_mov_b32 {v(TM+3)}, {v(MN)}\nv_add_f32 {v(VR)}, {v(SG+2)}, {v(SG+6)}\nv_add_f32 {v(TM+2)}, {v(SG+10)}, {v(SG+14)}")
        p(f"v_permlane32_swap_b32 {v(MN)}, {v(TM+3)}\nv_add_f32 {v(VR)}, {v(VR)}, {v(TM+2)}\nv_add_f32 {v(MN)}, {v(MN)}, {v(TM+3)}")
        p(f"v_mul_f32 {v(MN)}, {f2u(1/688)}, {v(MN)}")
        for q in range(4):
            n_, i_ = (TM, TM + 1) if q < 3 else (N3, I3)
            p(f"v_fma_f32 {v(TM+2)}, {v(SG+4*q)}, {v(i_)}, -{v(MN)}\nv_mul_f32 {v(TM+2)}, {v(TM+2)}, {v(TM+2)}\nv_fmac_f32 {v(VR)}, {v(TM+2)}, {v(n_)}")
        self.xhalf_sum(VR, TM)
        p(f"v_mov_b32 {v(TM)}, {f2u(1e-5)}\nv_fmac_f32 {v(TM)}, {f2u(1/688)}, {v(VR)}\nv_rsq_f32 {v(VR)}, {v(TM)}")
        p(f"s_add_u32 s{SA}, s{SE}, {Z2N}\ns_add_u32 s{SB_}, s{SA}, 4096")
        p(f"v_mul_f32 {v(MN)}, {v(MN)}, {v(VR)}")
        ZP = 88
        for u in range(6):
            mt, q = u >> 1, u & 1
            R4 = range(4 * u, 4 * u + 4)
            for i in R4: p(f"v_pk_fma_f32 {v(ACC+2*i,2)}, {v(ACC+2*i,2)}, {v(MN,2)}, {v(MN,2)} op_sel:[0,1,0] op_sel_hi:[1,1,0] neg_lo:[0,0,1] neg_hi:[0,0,1]")
            for i in R4: p(f"v_cvt_pk_bf16_f32 {v(ZP+i)}, {v(ACC+2*i)}, {v(ACC+2*i+1)}")
            r = v(ZP + 4 * u, 4)
            if mt < 2: t = p.vmem(f"buffer_store_dwordx4 {r}, {v(Q0+q)}, {srd(SWS)}, s{SA} offen offset:{mt*2048+q*1024} sc1")
            else: t = p.vmem(f"buffer_store_dwordx4 {r}, {v(QA+q)}, {srd(SWS)}, s{SB_} offen offset:{q*1024} sc1")
        p(f"s_lshl_b32 s{SE}, s{SC}, 7\ns_add_u32 s{SE}, s{SE}, {ZF}")
        if zm == 1:
            for st in range(2, 5): self.run(self.wsp_read(st))
            p.wait(vm=t)
            self.flag(SE, 118)
            self.run([lgw] + self.wsp_dma(7))
            for st in range(5, 8): self.run(self.wsp_read(st))
        else:
            self.run(merge(self.wsp_dma(3), self.wsp_read(0) + self.wsp_read(1) + self.wsp_read(2)))
            p.wait(vm=t)
            self.flag(SE, 118)
            self.run(self.wsp_dma(4) + [lgw] + self.wsp_dma(5) + self.wsp_dma(6) + self.wsp_dma(7))
            for st in range(3, 8): self.run(self.wsp_read(st))
        self.g_poll_issue()
        p(f"s_mov_b32 s{SLATE}, 0")
        self.stamp(5)
        p(f"s_branch {self.LG}")

    def phase_u(self):
        p = self.p; o = self.o
        ACC, ZA, FA, FB, FW, FX = 16, 80, 128, 144, 160, 184
        XR, BR, X1R, WR, XD, BD, WD, T = 192, 196, 200, 204, 206, 210, 214, 60
        p.c("==== phase A: U ====")
        p.put(self.LU)
        WT, WP = SK + 8, SK + 9
        p(f"v_lshrrev_b32 {v(T)}, 5, {v(VL)}\nv_lshlrev_b32 {v(T)}, 15, {v(T)}")
        p(f"v_bfe_u32 {v(T+1)}, {v(VL)}, 3, 1\nv_lshl_add_u32 {v(T)}, {v(T+1)}, 14, {v(T)}")
        p(f"v_bfe_u32 {v(T+1)}, {v(VL)}, 4, 1\nv_lshl_add_u32 {v(T)}, {v(T+1)}, 10, {v(T)}")
        self.plain_dma_addr2(XD, T, T + 1, 2048)
        p(f"s_lshr_b32 s{WP}, s{SWV}, 1\ns_and_b32 s{WT}, s{SWV}, 1\ns_lshl_b32 s{SA}, s{WT}, 5")
        for i in range(4): p(f"v_xor_b32 {v(XD+i)}, s{SA}, {v(XD+i)}")
        self.plain_dma_addr(BD, 1024, T)
        self.w_dma_addr(WD, T, 0)
        p(f"s_lshl_b32 s{SXB}, s{SRB}, 17\ns_lshl_b32 s{SD}, s{WP}, 16\ns_add_u32 s{SXB}, s{SXB}, s{SD}\ns_lshl_b32 s{SD}, s{WT}, 13\ns_add_u32 s{SXB}, s{SXB}, s{SD}")
        p(f"s_lshl_b32 s{SW1B}, s{SCOL}, 16\ns_lshl_b32 s{SD}, s{WT}, 15\ns_add_u32 s{SW1B}, s{SW1B}, s{SD}")
        p(f"s_lshl_b32 s{SXL}, s{SWV}, 12\ns_mov_b32 s{SW1+2}, 524288")
        SWIB = SCB
        p(f"s_mul_i32 s{SWIB}, s{SWV}, {16*2752}\ns_mul_i32 s{SA}, s{SCOL}, 176\ns_add_u32 s{SWIB}, s{SWIB}, s{SA}")
        p(f"s_mul_i32 s{SWL}, s{SWV}, 3072\ns_add_u32 s{SWL}, s{SWL}, 98304\ns_mov_b32 s{PWIN+2}, {512*2752}\ns_mov_b32 s{PWIN+3}, 0x20000")
        PR = 228
        p(f"s_lshl_b32 s{SD}, s{SRB}, 1\ns_add_u32 s{SD}, s{SD}, s{WT}")
        p(f"s_lshl_b32 s{SA}, s{SCOL}, 1\ns_add_u32 s{SA}, s{SA}, s{WP}")
        p(f"s_lshl_b32 s{SE}, s{SD}, 4\ns_add_u32 s{SE}, s{SE}, s{SA}")
        p(f"s_lshl_b32 s{SA}, s{SA}, 5\nv_and_b32 {v(T)}, 31, {v(VL)}\nv_add_lshl_u32 {v(T)}, {v(T)}, s{SA}, 1")
        p.wait_lg_all()
        p(f"s_cmp_eq_u32 s{WP}, 0\ns_cselect_b64 {sp(SW1)}, {sp(PBRE)}, {sp(PBIM)}")
        tick = {}
        def dma(st):
            sl = st % 3; items = []
            def cb(t): tick[st] = t
            for i in range(3):
                items.append(((SWL, sl * 12288) if i == 0 else None, (SWIB, st * 64 * 2752) if i == 0 else None,
                              f"buffer_load_dwordx4 {v(WD+i)}, {srd(PWIN)}, s{SDO} offen offset:{i*1024} lds", None))
            for (vd, sr, sb, lb) in [(XD, SX, SXB, 0), (BD, SW1, SW1B, 49152)]:
                for i in range(4):
                    items.append(((SXL, lb + sl * 16384) if i == 0 else None, (sb, st * 128) if i == 0 else None,
                                  f"buffer_load_dwordx4 {v(vd+i)}, {srd(sr)}, s{SDO} offen offset:{i*1024} lds", cb))
            return self.dseq(items)
        self.pf1()
        self.run(dma(0))
        p.vmem(f"global_load_ushort {v(PR)}, {v(T)}, {sp(PLRE)}")
        p.vmem(f"global_load_ushort {v(PR+1)}, {v(T)}, {sp(PLIM)}")
        tp = p.vmem(f"global_load_ushort {v(PR+2)}, {v(T)}, {sp(PLDT)}")
        npro = o.get("npro_u", 2)
        self.late_args()
        def setup():
            p = self.p
            p(f"s_mul_i32 s{SREG}, s{SWV}, 40960\ns_lshl_b32 s{SA}, s{WT}, 13")
            self.plain_read_addr(XR, SA, T)
            p(f"s_lshl_b32 s{SA}, s{WP}, 12\ns_add_u32 s{SA}, s{SA}, 49152")
            self.plain_read_addr(BR, SA, T)
            self.w_tr_addr(WR, 98304, T)
            p(f"v_bfe_u32 {v(T)}, {v(VL)}, 3, 1\nv_lshlrev_b32 {v(T+1)}, 12, {v(T)}\nv_xor_b32 {v(T)}, s{WT}, {v(T)}\nv_lshlrev_b32 {v(T)}, 1, {v(T)}")
            p(f"v_bfe_u32 {v(T+2)}, {v(VL)}, 1, 2\nv_lshl_add_u32 {v(T+1)}, {v(T+2)}, 10, {v(T+1)}")
            p(f"v_and_b32 {v(T+2)}, 1, {v(T+2)}\nv_lshl_add_u32 {v(T)}, {v(T+2)}, 2, {v(T)}")
            p(f"v_and_b32 {v(T+2)}, 1, {v(VL)}\nv_lshl_add_u32 {v(T+1)}, {v(T+2)}, 8, {v(T+1)}\nv_or_b32 {v(T)}, {v(T)}, {v(T+2)}")
            p(f"v_bfe_u32 {v(T+2)}, {v(VL)}, 4, 1\nv_lshl_add_u32 {v(T+1)}, {v(T+2)}, 7, {v(T+1)}")
            p(f"s_lshl_b32 s{SA}, s{WP}, 13\ns_lshl_b32 s{SB_}, s{WT}, 9\ns_add_u32 s{SA}, s{SA}, s{SB_}\nv_add_u32 {v(T+1)}, s{SA}, {v(T+1)}")
            p(f"v_lshrrev_b32 {v(T+2)}, 5, {v(VL)}\nv_xor_b32 {v(T)}, {v(T)}, {v(T+2)}\nv_lshlrev_b32 {v(T)}, 4, {v(T)}")
            for ks in range(4): p(f"v_xor_b32 {v(X1R+ks)}, {32*ks}, {v(T)}\nv_add_u32 {v(X1R+ks)}, {v(X1R+ks)}, {v(T+1)}")
            self.wsp_setup(T)
            p(f"s_lshl_b32 s{SPB+1}, s{WT}, 13\ns_mul_i32 s{SA}, s{WP}, 49152\ns_add_u32 s{SPB+1}, s{SPB+1}, s{SA}\ns_add_u32 s{SPB}, s{SPB+1}, 32768\ns_add_u32 s{SPB+2}, s{SPB+1}, 16384")
            p(f"s_lshl_b32 s{SA}, s{SWV}, 13\ns_add_u32 s{SPB+3}, s{SA}, {13*8192}\ns_add_u32 s{SPB+4}, s{SA}, {17*8192}")
            p.atom(f"s_cmp_eq_u32 s{SWV}, 3\ns_cselect_b32 s{SPB+4}, {12*8192}, s{SPB+4}")
            self.valid_masks()
        self.run(merge(self.cap(setup), (dma(1) if npro > 1 else []) + (dma(2) if npro > 2 else [])))
        LB, CF, L16, L128, L256, LQ0, LQ1 = 218, 220, 222, 224, 226, 228, 230
        X0, X1, X2, X3 = 232, 233, 234, 235
        L32, L64 = 236, 238
        def csq(d, s):
            p = self.p
            p(f"v_mul_f32 {v(X0)}, {v(s+1)}, {v(s+1)}\nv_add_f32 {v(X1)}, {v(s)}, {v(s)}")
            p(f"v_mul_f32 {v(d+1)}, {v(X1)}, {v(s+1)}\nv_fma_f32 {v(d)}, {v(s)}, {v(s)}, -{v(X0)}")
        def cmul(d, a, b):
            p = self.p
            p(f"v_mul_f32 {v(X0)}, {v(a+1)}, {v(b+1)}\nv_mul_f32 {v(X1)}, {v(a+1)}, {v(b)}")
            p(f"v_fma_f32 {v(X0)}, {v(a)}, {v(b)}, -{v(X0)}\nv_fma_f32 {v(d+1)}, {v(a)}, {v(b+1)}, {v(X1)}\nv_mov_b32 {v(d)}, {v(X0)}")
        def cfma(d, a, b, c):
            p = self.p
            p(f"v_fma_f32 {v(X0)}, {v(a)}, {v(b)}, {v(c)}\nv_fma_f32 {v(X1)}, {v(a)}, {v(b+1)}, {v(c+1)}")
            p(f"v_fma_f32 {v(X0)}, -{v(a+1)}, {v(b+1)}, {v(X0)}\nv_fma_f32 {v(d+1)}, {v(a+1)}, {v(b)}, {v(X1)}\nv_mov_b32 {v(d)}, {v(X0)}")
        def params():
            p = self.p
            p(f"v_lshlrev_b32 {v(PR)}, 16, {v(PR)}\nv_lshlrev_b32 {v(PR+1)}, 16, {v(PR+1)}\nv_lshlrev_b32 {v(PR+2)}, 16, {v(PR+2)}")
            p(f"v_mul_f32 {v(X0)}, {f2u(LOG2E)}, {v(PR+2)}\nv_exp_f32 {v(X0)}, {v(X0)}"); self.rnd(X0, X0)
            p(f"v_mul_f32 {v(X1)}, {v(X0)}, {v(PR)}\nv_mul_f32 {v(X2)}, {v(X0)}, {v(PR+1)}")
            p(f"v_mul_f32 {v(X1)}, {f2u(LOG2E)}, {v(X1)}\nv_exp_f32 {v(X1)}, {v(X1)}")
            p(f"v_mul_f32 {v(X2)}, {f2u(1/(2*math.pi))}, {v(X2)}\nv_fract_f32 {v(X2)}, {v(X2)}")
            p(f"v_cos_f32 {v(X3)}, {v(X2)}\nv_sin_f32 {v(X2)}, {v(X2)}")
            p(f"v_mul_f32 {v(X0)}, {v(PR)}, {v(PR)}")
            p(f"v_mul_f32 {v(LB)}, {v(X1)}, {v(X3)}\nv_mul_f32 {v(LB+1)}, {v(X1)}, {v(X2)}")
            p(f"v_fmac_f32 {v(X0)}, {v(PR+1)}, {v(PR+1)}\nv_rcp_f32 {v(X0)}, {v(X0)}")
            p(f"v_add_f32 {v(X1)}, -1.0, {v(LB)}\nv_add_f32 {v(X0)}, {v(X0)}, {v(X0)}")
            p(f"v_mul_f32 {v(X2)}, {v(X1)}, {v(PR)}\nv_fmac_f32 {v(X2)}, {v(LB+1)}, {v(PR+1)}\nv_mul_f32 {v(CF)}, {v(X2)}, {v(X0)}")
            p(f"v_mul_f32 {v(X2)}, {v(LB+1)}, {v(PR)}\nv_fma_f32 {v(X2)}, -{v(X1)}, {v(PR+1)}, {v(X2)}\nv_mul_f32 {v(CF+1)}, {v(X2)}, {v(X0)}")
            csq(L16, LB); csq(L16, L16); csq(L16, L16); csq(L16, L16)
            csq(L32, L16); csq(L64, L32); csq(L128, L64); csq(L256, L128)
            p.atom(f"s_cmp_eq_u32 s{WT}, 0\ns_cselect_b64 vcc, -1, 0")
            p(f"v_cndmask_b32 {v(L64)}, {v(L64)}, 1.0, vcc\nv_cndmask_b32 {v(L64+1)}, {v(L64+1)}, 0, vcc")
            p(f"v_cmp_gt_u32 vcc, 32, {v(VL)}\nv_cndmask_b32 {v(LQ0)}, {v(L32)}, 1.0, vcc\nv_cndmask_b32 {v(LQ0+1)}, {v(L32+1)}, 0, vcc")
            cmul(LQ0, LQ0, L64); cmul(LQ1, LQ0, L16)
        self.pf1(2)
        self.epoch2()
        self.stamp(0)
        pops = [lambda: p.wait(vm=tp)] + self.cap(params)
        valu = {}
        q = (len(pops) + 15) // 16
        for i in range(16): valu[8 + i] = pops[i * q:(i + 1) * q]
        self.paced(valu, 217, 205, o.get("ut0", 4), o.get("udt", 4))
        rt = {}
        def reads(n):
            st, ks = n // 4, n % 4; sl = st % 3; s = n & 1; ops = []
            for k in range(2):
                def ra(k=k): rt[(n, 'a', k)] = p.lds(f"ds_read_b128 {v(FA+8*s+4*k,4)}, {v(XR+(ks^k))} offset:{sl*16384+k*4096}")
                def rb(k=k): rt[(n, 'b', k)] = p.lds(f"ds_read_b128 {v(FB+8*s+4*k,4)}, {v(BR+ks)} offset:{sl*16384+k*8192}")
                ops += [ra, rb]
            def rx(): p.lds(f"ds_read_b128 {v(FX+4*s,4)}, {v(X1R+ks)} offset:{sl*16384}")
            ops.append(rx)
            for mt in range(3):
                for a in range(2):
                    def rw(mt=mt, a=a):
                        rt[(n, 'w', mt)] = p.lds(f"ds_read_b64_tr_b16 {v(FW+12*s+4*mt+2*a,2)}, {v(WR)} offset:{sl*12288+ks*3072+a*768+mt*64}")
                    ops.append(rw)
            return ops
        def mfmas(n):
            s = n & 1; ops = []
            for (mt, cp) in [(0, 0), (1, 0), (1, 1), (0, 1)]:
                def m(mt=mt, cp=cp):
                    if (mt, cp) == (0, 0): p.wait(lg=rt[(n, 'b', 1)])
                    d = v(ACC + 32 * mt + 16 * cp, 16)
                    p(f"{MF} {d}, {v(FA+8*s+4*mt,4)}, {v(FB+8*s+4*cp,4)}, {'0' if n == 0 else d}")
                ops.append(m)
            for mt in range(3):
                def m(mt=mt):
                    if mt == 0: p.wait(lg=rt[(n, 'w', 2)])
                    d = v(ZA + 16 * mt, 16)
                    p(f"{MF} {d}, {v(FW+12*s+4*mt,4)}, {v(FX+4*s,4)}, {'0' if n == 0 else d}")
                ops.append(m)
            return ops
        self.gemm_loop(3, reads, mfmas, dma, tick, 5, npro, {6: lambda: self.wsp_dma(0), 7: lambda: self.wsp_dma(1)}, valu)
        self.stamp(1)
        def U(sg, cp): return ACC + 32 * (sg >> 3) + 16 * cp + 4 * ((sg & 7) >> 1) + 2 * (sg & 1)
        def step(hr, hi, sg, nr, ni, t0, t1):
            p = self.p; A = v(LB, 2)
            p(f"v_pk_fma_f32 {v(t0,2)}, {A}, {v(hr,2)}, {v(U(sg,0),2)} op_sel_hi:[0,1,1]")
            p(f"v_pk_fma_f32 {v(t1,2)}, {A}, {v(hi,2)}, {v(U(sg,1),2)} op_sel_hi:[0,1,1]")
            p(f"v_pk_fma_f32 {v(nr,2)}, {A}, {v(hi,2)}, {v(t0,2)} op_sel:[1,0,0] op_sel_hi:[1,1,1] neg_lo:[1,0,0] neg_hi:[1,0,0]")
            p(f"v_pk_fma_f32 {v(ni,2)}, {A}, {v(hr,2)}, {v(t1,2)} op_sel:[1,0,0] op_sel_hi:[1,1,1]")
        HA, HBb, T0, EX, E8, AD, GR, CQ = 128, 132, 136, 140, 144, 160, 164, 168
        SCR = 98304
        p(f"s_lshl_b32 s{SA}, s{WP}, 11\ns_add_u32 s{SA}, s{SA}, {SCR}")
        p(f"v_and_b32 {v(AD)}, 31, {v(VL)}\nv_lshlrev_b32 {v(AD)}, 6, {v(AD)}\nv_add_u32 {v(AD)}, s{SA}, {v(AD)}")
        p(f"v_lshrrev_b32 {v(AD+1)}, 5, {v(VL)}\nv_lshl_add_u32 {v(AD+1)}, {v(AD+1)}, 4, {v(AD)}\ns_lshl_b32 s{SA}, s{WT}, 5\nv_add_u32 {v(AD+1)}, s{SA}, {v(AD+1)}")
        Z1P = 192
        SZ0, SZ1 = SXL, SWL
        VA_ = 176
        MA, MB = SK + 2, SK + 4
        def z1st(u):
            mt, q = u >> 1, u & 1
            for i in range(4): p(f"v_cvt_pk_bf16_f32 {v(Z1P+4*u+i)}, {v(ZA+8*u+2*i)}, {v(ZA+8*u+2*i+1)}")
            r = v(Z1P + 4 * u, 4)
            if mt < 2: p.vmem(f"buffer_store_dwordx4 {r}, {v(VL16)}, {srd(SWS)}, s{SZ0} offen offset:{mt*2048+q*1024} sc1")
            else: p.vmem(f"buffer_store_dwordx4 {r}, {v(VA_+q)}, {srd(SWS)}, s{SZ1} offen offset:{q*1024} sc1")
        p(f"s_lshl_b32 s{SA}, s{SCOL}, 6\ns_lshl_b32 s{SB_}, s{SRB}, 2\ns_add_u32 s{SA}, s{SA}, s{SB_}\ns_add_u32 s{SA}, s{SA}, s{SWV}\ns_mul_i32 s{SA}, s{SA}, 5632")
        p(f"s_add_u32 s{SZ0}, s{SA}, {Z1}\ns_add_u32 s{SZ1}, s{SZ0}, 4096")
        p(f"v_cndmask_b32 {v(VA_)}, {v(VOOB)}, {v(VL16)}, {sp(MA)}\nv_cndmask_b32 {v(VA_+1)}, {v(VOOB)}, {v(VL16)}, {sp(MB)}")
        zs = [(lambda u=u: z1st(u)) for u in range(6)]
        self.run(zs[:2])
        p("s_barrier")
        def pass1():
            hr, hi = U(0, 0), U(0, 1)
            for sg in range(1, 16):
                nr, ni = (HA, HA + 2) if sg & 1 else (HBb, HBb + 2)
                step(hr, hi, sg, nr, ni, T0, T0 + 2)
                hr, hi = nr, ni
            self.p(f"v_mov_b32 {v(EX)}, {v(hr)}\nv_mov_b32 {v(EX+1)}, {v(hi)}\nv_mov_b32 {v(EX+2)}, {v(hr+1)}\nv_mov_b32 {v(EX+3)}, {v(hi+1)}")
        d2 = self.wsp_dma(2) + self.wsp_dma(3)
        self.run(merge(merge(self.cap(pass1), zs[2:]), d2[:7]))
        p.lds(f"ds_write_b128 {v(AD+1)}, {v(EX,4)}")
        p.wait_lg_all(); p("s_barrier")
        for i in range(4): p.lds(f"ds_read_b128 {v(E8+4*i,4)}, {v(AD)} offset:{16*i}")
        te = p.lg - 1
        self.run(d2[7:11])
        p(f"s_cmp_eq_u32 s{WT}, 0\ns_cselect_b32 s{SA}, 32, 0")
        p(f"v_cmp_gt_u32 vcc, s{SA}, {v(VL)}\nv_mov_b32 {v(GR+1)}, s{ST_T}\nv_mov_b32 {v(GR+3)}, s{ST_T}\nv_cndmask_b32 {v(T0)}, {v(VOOB)}, {v(VL16)}, vcc")
        p(f"s_lshl_b32 s{SC}, s{SCOL}, 14\ns_lshl_b32 s{SA}, s{WP}, 9\ns_add_u32 s{SC}, s{SC}, s{SA}\ns_add_u32 s{SC}, s{SC}, {EG}")
        p(f"s_lshl_b32 s{SA}, s{SRB}, 10\ns_add_u32 s{SA}, s{SA}, s{SC}")
        p.wait(lg=te); p("s_barrier")
        self.run(merge(self.cap(lambda: [cfma(E8 + 2 * q, L16, E8 + 2 * (q - 1), E8 + 2 * q) for q in range(1, 8)]), d2[11:15]))
        p(f"v_mov_b32 {v(GR)}, {v(E8+14)}\nv_mov_b32 {v(GR+2)}, {v(E8+15)}")
        p.vmem(f"buffer_store_dwordx4 {v(GR,4)}, {v(T0)}, {srd(SWS)}, s{SA} offen sc1")
        self.run(d2[15:])
        self.stamp(2)
        p(f"v_cmp_gt_u32 vcc, 32, {v(VL)}")
        w1 = p.label("w1"); w2 = p.label("w2")
        p(f"s_cmp_eq_u32 s{WT}, 0\ns_cbranch_scc0 {w1}")
        p(f"v_cndmask_b32 {v(CQ)}, {v(E8+2)}, 0, vcc\nv_cndmask_b32 {v(CQ+1)}, {v(E8+3)}, 0, vcc")
        p(f"v_cndmask_b32 {v(CQ+2)}, {v(E8+4)}, {v(E8)}, vcc\nv_cndmask_b32 {v(CQ+3)}, {v(E8+5)}, {v(E8+1)}, vcc")
        p(f"s_branch {w2}")
        p.put(w1)
        for k in range(4): p(f"v_cndmask_b32 {v(CQ+k)}, {v(E8+10+k)}, {v(E8+6+k)}, vcc")
        p.put(w2)
        Z1P = 192
        EGR, EO, EXP, ET = 80, 144, 152, 160
        def eo():
            p = self.p
            p(f"v_lshrrev_b32 {v(ET)}, 5, {v(VL)}\nv_sub_u32 {v(ET)}, s{SRB}, {v(ET)}\nv_add_u32 {v(ET)}, -1, {v(ET)}")
            p(f"v_and_b32 {v(ET+1)}, 31, {v(VL)}\nv_lshlrev_b32 {v(ET+1)}, 4, {v(ET+1)}\nv_mov_b32 {v(ET+3)}, s{ST_T}")
            for q in range(8):
                p(f"v_add_u32 {v(ET+2)}, {-2*q}, {v(ET)}\nv_cmp_le_i32 vcc, 0, {v(ET+2)}\nv_lshl_add_u32 {v(ET+2)}, {v(ET+2)}, 10, {v(ET+1)}")
                p(f"v_cndmask_b32 {v(EO+q)}, {v(VOOB)}, {v(ET+2)}, vcc\nv_cndmask_b32 {v(EXP+q)}, 0, {v(ET+3)}, vcc")
        lgw = lambda: p.wait(lg=p.lg - 1)
        self.run(merge(self.cap(lambda: (eo(), self.g_early(184))), self.wsp_dma(4) + self.wsp_read(0) + self.wsp_read(1)))
        et = {}
        def eload(q):
            et['t'] = p.vmem(f"buffer_load_dwordx4 {v(EGR+4*q,4)}, {v(EO+q)}, {srd(SWS)}, s{SC} offen sc1")
        for q in range(8): eload(q)
        self.run([lgw] + self.wsp_dma(5))
        self.stamp(3)
        l = p.label("ep"); dl = p.label("ed")
        p.wait(vm=et['t'])
        p(f"s_mov_b32 s{SSPIN}, 0")
        p.put(l)
        p(f"v_mov_b32 {v(ET)}, 0")
        for q in range(8):
            p(f"v_xor_b32 {v(ET+1)}, {v(EXP+q)}, {v(EGR+4*q+1)}\nv_xor_b32 {v(ET+2)}, {v(EXP+q)}, {v(EGR+4*q+3)}\nv_or3_b32 {v(ET)}, {v(ET)}, {v(ET+1)}, {v(ET+2)}")
        p(f"v_cmp_ne_u32 vcc, 0, {v(ET)}\ns_cmp_eq_u64 vcc, 0\ns_cbranch_scc1 {dl}")
        for q in range(8): p(f"buffer_load_dwordx4 {v(EGR+4*q,4)}, {v(EO+q)}, {srd(SWS)}, s{SC} offen sc1")
        p("s_waitcnt vmcnt(0)")
        p(f"s_add_u32 s{SSPIN}, s{SSPIN}, 1\ns_cmp_lt_u32 s{SSPIN}, {SPIN}\ns_cbranch_scc1 {l}")
        p.put(dl)
        self.flag_prep(178)
        p(f"s_lshl_b32 s{SA}, s{SCOL}, 6\ns_lshl_b32 s{SB_}, s{SRB}, 2\ns_add_u32 s{SA}, s{SA}, s{SB_}\ns_add_u32 s{SA}, s{SA}, s{SWV}\ns_lshl_b32 s{SA}, s{SA}, 7\ns_add_u32 s{SA}, s{SA}, {Z1F}")
        self.flag(SA, 178)
        self.stamp(4)
        OP, OT, HO = 80, 144, 132
        MA, MB = SK + 2, SK + 4
        SH0, SH1 = SXB, SW1B
        def pass2a():
            p = self.p
            p(f"s_lshl_b32 s{SA}, s{SD}, 3\ns_add_u32 s{SA}, s{SA}, s{SCOL}\ns_lshl_b32 s{SA}, s{SA}, 14\ns_lshl_b32 s{SB_}, s{WP}, 12\ns_add_u32 s{SA}, s{SA}, s{SB_}")
            p(f"s_add_u32 s{SH0}, s{SA}, {HB}\ns_add_u32 s{SH1}, s{SH0}, 8192")
            p(f"v_lshrrev_b32 {v(T0)}, 5, {v(VL)}\nv_lshlrev_b32 {v(T0)}, 11, {v(T0)}\nv_and_b32 {v(T0+1)}, 31, {v(VL)}\nv_lshl_add_u32 {v(HO)}, {v(T0+1)}, 4, {v(T0)}")
            for k in range(1, 4): p(f"v_xor_b32 {v(HO+k)}, {64*k}, {v(HO)}")
            for q in range(8): p(f"v_mov_b32 {v(EGR+4*q+1)}, {v(EGR+4*q+2)}")
            S = EGR + 28
            for q in range(6, -1, -1): cfma(S, L256, S, EGR + 4 * q)
            p(f"v_mov_b32 {v(ET)}, {v(S)}\nv_mov_b32 {v(ET+1)}, {v(S+1)}\nv_permlane32_swap_b32 {v(S)}, {v(ET)}\nv_permlane32_swap_b32 {v(S+1)}, {v(ET+1)}")
            cfma(S, L128, ET, S)
            cfma(CQ, LQ0, S, CQ); cfma(CQ + 2, LQ1, S, CQ + 2)
            p(f"v_mov_b32 {v(HA)}, {v(CQ)}\nv_mov_b32 {v(HA+1)}, {v(CQ+2)}\nv_mov_b32 {v(HA+2)}, {v(CQ+1)}\nv_mov_b32 {v(HA+3)}, {v(CQ+3)}")
        def pass2(s0, s1):
            p = self.p
            Cc = v(CF, 2)
            for sg in range(s0, s1):
                hr, hi = (HA, HA + 2) if sg == 0 else (U(sg - 1, 0), U(sg - 1, 1))
                step(hr, hi, sg, U(sg, 0), U(sg, 1), T0, T0 + 2)
                hr, hi = U(sg, 0), U(sg, 1)
                oo = OT + 4 * (sg & 1) + 8 * ((sg >> 1) & 1)
                p(f"v_pk_mul_f32 {v(oo,2)}, {Cc}, {v(hr,2)} op_sel_hi:[0,1]")
                p(f"v_pk_mul_f32 {v(oo+2,2)}, {Cc}, {v(hi,2)} op_sel_hi:[0,1] neg_lo:[1,0] neg_hi:[1,0]")
                p(f"v_pk_fma_f32 {v(oo,2)}, {Cc}, {v(hi,2)}, {v(oo,2)} op_sel:[1,0,0] op_sel_hi:[1,1,1] neg_lo:[1,0,0] neg_hi:[1,0,0]")
                p(f"v_pk_fma_f32 {v(oo+2,2)}, {Cc}, {v(hr,2)}, {v(oo+2,2)} op_sel:[1,0,0] op_sel_hi:[1,1,1] neg_lo:[1,0,0] neg_hi:[1,0,0]")
                if sg & 1:
                    q, i = sg >> 3, (sg & 7) >> 1
                    for cp in range(2):
                        for e in range(2):
                            p(f"v_cvt_pk_bf16_f32 {v(OP+16*cp+8*e+4*q+i)}, {v(oo-4+2*cp+e)}, {v(oo+2*cp+e)}")
        def hst(cp, k):
            if o.get("x_nost"): return
            p.vmem(f"buffer_store_dwordx4 {v(OP+16*cp+4*k,4)}, {v(HO+k)}, {srd(SWS)}, s{SH0 if cp == 0 else SH1} offen offset:{512*k} sc1")
        self.run(merge(self.cap(pass2a), self.wsp_dma(6) + self.wsp_read(2) + [lgw]))
        self.run(merge(self.cap(lambda: pass2(0, 8)), self.wsp_dma(7) + self.wsp_read(3)))
        self.run(merge(merge(self.cap(lambda: pass2(8, 16)), [(lambda cp=cp, k=k: hst(cp, k)) for k in (0, 2) for cp in range(2)]), self.wsp_read(4) + self.wsp_read(5)))
        self.g_poll_issue()
        h2 = [(lambda cp=cp, k=k: hst(cp, k)) for k in (1, 3) for cp in range(2)]
        self.run(merge(self.wsp_read(6) + self.wsp_read(7), h2))
        p(f"s_lshl_b32 s{SLATE}, s{SE}, 7\ns_add_u32 s{SLATE}, s{SLATE}, {HF}")
        self.stamp(5)

    def phase_g(self):
        p = self.p; o = self.o
        p.c("==== phase B: G ====")
        p.put(self.LG)
        p.vm_done = -1; p.lg_done = -1
        ACC, FA, TR, T = 16, 112, self.GTR, 186
        Z1R, BI, PV, WD, PL, PL2, PL3 = 190, 202, 203, self.WD, self.GPL, 222, 234
        NT, Q = SK + 8, SK + 9
        p(f"s_mov_b32 s{SCOL}, s{SJ}")
        def late_setup():
            p = self.p
            p(f"s_lshl_b32 s{SE}, s{STB}, 11\ns_add_u32 s{SE}, s{SE}, {HF}")
            self.poll_addr(PL3, [(SE, 16)])
            self.flag_prep(220)
            p(f"v_lshrrev_b32 {v(T)}, 3, {v(VL)}\nv_lshlrev_b32 {v(T)}, 10, {v(T)}")
            p(f"v_bfe_u32 {v(T+1)}, {v(VL)}, 4, 1\nv_lshlrev_b32 {v(T+1)}, 2, {v(T+1)}\nv_and_b32 {v(T+2)}, 7, {v(VL)}\nv_xor_b32 {v(T+1)}, {v(T+1)}, {v(T+2)}")
            p(f"v_lshl_add_u32 {v(WD)}, {v(T+1)}, 4, {v(T)}")
            for i in range(1, 4): p(f"v_add_u32 {v(WD+i)}, {i*7168}, {v(WD)}")
            p(f"s_mul_i32 s{SXB}, s{SWV}, {176*1024}\ns_lshl_b32 s{SA}, s{SCOL}, 7\ns_add_u32 s{SXB}, s{SXB}, s{SA}")
            self.c_setup()
            self.panel_tr_addr(228, SREG, 224, False)
        p(f"s_and_b32 s{NT}, s{SWV}, 1\ns_lshr_b32 s{Q}, s{SWV}, 1")
        p(f"s_lshl_b32 s{SC}, s{STB}, 1\ns_add_u32 s{SC}, s{SC}, s{NT}")
        p.atom(f"s_cmp_lt_u32 s{SCOL}, 7\ns_cselect_b32 s{SD}, 64, 32")
        p(f"s_lshl_b32 s{SF}, s{Q}, 5\ns_sub_u32 s{SD}, s{SD}, s{SF}")
        p(f"v_cmp_gt_u32 vcc, s{SD}, {v(VL)}\nv_and_b32 {v(T)}, 31, {v(VL)}\ns_lshl_b32 s{SA}, s{SC}, 5\nv_cndmask_b32 {v(PV)}, {v(VOOB)}, {v(VL16)}, vcc")
        p(f"v_add_lshl_u32 {v(T)}, {v(T)}, s{SA}, 1")
        p.vmem(f"global_load_ushort {v(BI)}, {v(T)}, {sp(PBSP)}")
        p(f"s_mul_i32 s{SD}, s{SZI}, 5632\ns_lshl_b32 s{SB_}, s{Q}, 10\ns_add_u32 s{SD}, s{SD}, s{SB_}\ns_add_u32 s{SD}, s{SD}, {Z1}\ns_add_u32 s{SE}, s{SD}, 4096")
        p(f"v_and_b32 {v(PL2)}, 31, {v(VL)}\nv_lshlrev_b32 {v(PL2)}, 2, {v(PL2)}")
        p.wait_lg_all(); p("s_barrier")
        self.stamp(6)
        l = p.label("gp"); dn = p.label("gd")
        p("s_waitcnt vmcnt(5)")
        p(f"s_cmp_lg_u32 s{SLATE}, 0\ns_cbranch_scc1 {l}\ns_waitcnt vmcnt(0)")
        p.put(l)
        p(f"v_cmp_ne_u32 vcc, s{ST_T}, {v(PL+1)}\ns_and_b32 vcc_hi, vcc_hi, 1\ns_or_b32 s{SF}, vcc_lo, vcc_hi\ns_cbranch_scc0 {dn}")
        self.poll(PL, 33)
        p.put(dn)
        g0 = p.vm
        def late_flag():
            nf = p.label("nf")
            p(f"s_cmp_eq_u32 s{SLATE}, 0\ns_cbranch_scc1 {nf}")
            p(f"s_waitcnt vmcnt({p.vm - g0})")
            p(f"buffer_store_dword {v(220)}, {v(221)}, {srd(SWS)}, s{SLATE} offen sc1")
            p.put(nf)
        p.vm_done = -1
        self.stamp(7)
        tick = {}
        def dma(B):
            sl = B % 3; items = []
            for i in range(11):
                def cb(t, i=i): tick[(B, i)] = t
                g = i // 4
                items.append(((SREG, sl * 11264 + g * 4096) if i % 4 == 0 else None, (SGB, B * 11264 + g * 4096) if i % 4 == 0 else None,
                              f"buffer_load_dwordx4 {v(VL16)}, {srd(SWS)}, s{SDO} offen offset:{(i%4)*1024} {o.get('gmod', 'sc1')} lds", cb))
            return self.dseq(items)
        d0 = dma(0) + dma(1) + dma(2)
        kpro = o.get("gpro", 22)
        p.vmem(f"buffer_load_dwordx4 {v(Z1R,4)}, {v(VL16)}, {srd(SWS)}, s{SD} offen sc1")
        p.vmem(f"buffer_load_dwordx4 {v(Z1R+4,4)}, {v(VL16)}, {srd(SWS)}, s{SD} offen offset:2048 sc1")
        tz1 = p.vmem(f"buffer_load_dwordx4 {v(Z1R+8,4)}, {v(PV)}, {srd(SWS)}, s{SE} offen sc1")
        k0 = o.get("gk0", 10)
        self.run(merge(self.cap(late_setup), d0[:k0], 0, 40))
        p(f"s_lshl_b32 s{SA}, s{STB}, 8\ns_add_u32 s{SA}, s{SA}, {GATE}")
        p.vmem(f"buffer_load_dword {v(self.GY)}, {v(PL2)}, {srd(SWS)}, s{SA} offen sc1")
        p.vmem(f"buffer_load_dword {v(self.GY+2)}, {v(PL2)}, {srd(SWS)}, s{SA} offen offset:128 sc1")
        def z1gelu():
            c1 = -2 * LOG2E * 0.7978845608028654
            self.VC0 = 184
            self.p(f"s_mov_b32 s{SK}, {f2u(c1*0.044715)}\nv_mov_b32 {v(184)}, {f2u(c1)}")
            for i in range(12): self.unpack(self.ZUP[i], Z1R + i)
            self.gelu_many(self.ZUP, [160, 162, 164, 166])
        p.wait(vm=tz1)
        self.run(merge(self.cap(z1gelu), d0[k0:kpro]))
        lt = {}
        def issue(r):
            lt[r] = p.vmem(f"buffer_load_dword {v(r+1)}, {v(r)}, {srd(SWS)}, 0 offen sc1")
        def check(r, mask):
            l = p.label("lp"); d = p.label("ld")
            p.wait(vm=lt[r])
            p(f"s_mov_b32 s{SSPIN}, 0")
            p.put(l)
            p(f"v_cmp_ne_u32 vcc, s{ST_T}, {v(r+1)}\ns_and_b32 s{SF}, vcc_lo, {mask}\ns_cbranch_scc0 {d}")
            p(f"buffer_load_dword {v(r+1)}, {v(r)}, {srd(SWS)}, 0 offen sc1\ns_waitcnt vmcnt(0)")
            p(f"s_add_u32 s{SSPIN}, s{SSPIN}, 1\ns_cmp_lt_u32 s{SSPIN}, {SPIN}\ns_cbranch_scc1 {l}")
            p.put(d)
        rt = {}
        def fset(hb): return FA + 24 * (2 if hb == 15 else hb & 1)
        def reads(hb):
            B, e = hb >> 1, hb & 1; sl = B % 3; ops = []
            for ks in range(2):
                for mt in range(3):
                    for a in range(2):
                        def ra(ks=ks, mt=mt, a=a):
                            if (ks, mt, a) == (0, 0, 0): p.wait(vm=tick[(B, 10 if e else 5)])
                            rt[(hb, ks, mt)] = p.lds(f"ds_read_b64_tr_b16 {v(fset(hb)+12*ks+4*mt+2*a,2)}, {v(TR+a)} offset:{sl*11264+e*5632+mt*2048+ks*256}")
                        ops.append(ra)
            return ops
        def mf(hb, ks, mt, nt):
            def m():
                p.wait(lg=rt[(hb, ks, mt)])
                d = v(ACC + 16 * (2 * mt + nt), 16); kap = 2 * hb + ks
                p(f"{MF} {d}, {v(fset(hb)+12*ks+4*mt,4)}, {ar((kap*2+nt)*4,4)}, {'0' if kap == 0 else d}")
            return m
        def gctouch():
            m0_ = o.get("map", 1) == 0
            p(f"s_lshr_b32 s{SA}, s2, 3\ns_lshl_b32 s{SA}, s{SA}, 2\ns_add_u32 s{SA}, s{SA}, s{SWV}")
            if m0_:
                p(f"s_and_b32 s{SB_}, s{SA}, 31\ns_lshl_b32 s{SB_}, s{SB_}, 13\ns_and_b32 s{SF}, s2, 1\ns_lshl_b32 s{SSPIN}, s{SF}, 18\ns_add_u32 s{SB_}, s{SB_}, s{SSPIN}\nv_lshl_add_u32 {v(224)}, {v(VL)}, 7, s{SB_}")
                p(f"s_sub_u32 s{SB_}, s{SA}, 64\ns_mul_i32 s{SB_}, s{SB_}, {11*1024}\ns_lshl_b32 s{SF}, s{SF}, 9\ns_add_u32 s{SB_}, s{SB_}, s{SF}")
                p(f"v_lshrrev_b32 {v(225)}, 2, {v(VL)}\nv_lshlrev_b32 {v(225)}, 10, {v(225)}\nv_and_b32 {v(226)}, 3, {v(VL)}\nv_lshl_add_u32 {v(225)}, {v(226)}, 7, {v(225)}\nv_add_u32 {v(225)}, s{SB_}, {v(225)}\nv_min_u32 {v(225)}, {704512-4}, {v(225)}")
                p(f"s_cmp_lt_u32 s{SA}, 32\ns_cselect_b64 {sp(SSTMP)}, {sp(SCRE)}, {sp(SCIM)}\ns_cmp_ge_u32 s{SA}, 64\ns_cselect_b64 {sp(SSTMP)}, {sp(SWOUT)}, {sp(SSTMP)}\ns_cselect_b64 vcc, -1, 0")
                p(f"v_cndmask_b32 {v(224)}, {v(224)}, {v(225)}, vcc")
                p.vmem(f"global_load_dword {v(225)}, {v(224)}, {sp(SSTMP)}")
            else:
                p(f"s_and_b32 s{SB_}, s{SA}, 63\ns_lshl_b32 s{SB_}, s{SB_}, 13\nv_lshl_add_u32 {v(224)}, {v(VL)}, 7, s{SB_}")
                p(f"s_cmp_lt_u32 s{SA}, 64\ns_cselect_b64 {sp(SSTMP)}, {sp(SCRE)}, {sp(SCIM)}")
                p.vmem(f"global_load_dword {v(225)}, {v(224)}, {sp(SSTMP)}")
                p(f"s_mul_i32 s{SB_}, s{SA}, 5504\nv_lshl_add_u32 {v(224)}, {v(VL)}, 7, s{SB_}\nv_cmp_gt_u32 vcc, 43, {v(VL)}\ns_nop 1\nv_cndmask_b32 {v(224)}, {v(VOOB)}, {v(224)}, vcc")
                p.vmem(f"buffer_load_dword {v(226)}, {v(224)}, {srd(SWOUT)}, 0 offen")
        y0 = self.y_dma(0)
        hchk = o.get("hchk", 4)
        self.run(reads(0))
        pend = d0[kpro:]
        for hb in range(14):
            if o.get("gstamps") and hb % 2 == 0: self.stamp(21 + hb // 2)
            mm = [mf(hb, ks, mt, nt) for ks in range(2) for mt in range(3) for nt in range(2)]
            rd = reads(hb + 1) + (reads(15) if hb == 13 else [])
            if hb == 13: seq = merge(mm, rd, 0, 12)
            else: seq = merge(mm, rd, 0, 8)
            if hb & 1 and hb <= 11:
                B = hb >> 1
                d = dma(B + 3) if B + 3 < 8 else y0
                d1 = d[1]
                def first(d1=d1, hb=hb):
                    p.wait(lg=rt[(hb, 1, 2)]); d1()
                d = [d[0], first] + d[2:]
                seq = merge(seq, pend + d[:5], len(seq) * 2 // 3 if not pend else len(seq) // 3)
                pend = d[5:]
            elif pend:
                k = 7 if hb else 8
                if hb == 12: k = 6
                seq = merge(seq, pend[:k], len(seq) // 3); pend = pend[k:]
            if hb == o.get("hflag", 3): seq = seq + [late_flag]
            if hb == o.get("gct", -1): seq = seq + [gctouch]
            if hb == 10: seq = seq + [lambda: issue(PL3)]
            if hb == 12: seq = [lambda: check(PL3, 0xffff)] + seq
            self.run(seq)
        assert not pend
        VW, VRD = T, T + 1
        p(f"s_add_u32 s{SA}, s{SREG}, 4096\nv_add_u32 {v(VW)}, s{SA}, {v(VL16)}")
        def rw(mt, nt):
            ops = []
            for q in range(2):
                k = nt + 2 * q
                if k == 0: continue
                for hq in range(2):
                    r = ACC + 16 * (2 * mt + nt) + 8 * q + 4 * hq
                    ops.append(lambda r=r, k=k, hq=hq: p.lds(f"ds_write_b128 {v(VW)}, {v(r,4)} offset:{(k-1)*6144+(2*mt+hq)*1024}"))
            return ops
        tiles = [(0, 1), (1, 1), (2, 1), (0, 0), (1, 0), (2, 0)]
        for ti, (mt, nt) in enumerate(tiles):
            mm = [mf(hb, ks, mt, nt) for hb in (14, 15) for ks in range(2)]
            f = rw(*tiles[ti - 2]) if ti >= 2 else []
            self.run(merge(mm, f))
        self.stamp(8)
        for k in range(1, 4):
            p(f"s_xor_b32 s{SA}, s{SWV}, {k}\ns_mul_i32 s{SA}, s{SA}, 40960\ns_add_u32 s{SA}, s{SA}, 4096\nv_add_u32 {v(VRD+k-1)}, s{SA}, {v(VL16)}")
        self.run(rw(*tiles[4]) + rw(*tiles[5]))
        p.wait_lg_all(); p("s_barrier")
        RB = 112
        def own(i): return ACC + 32 * (i >> 1) + 4 * (i & 1)
        tk = {}
        def rr(k, i): tk[(k, i)] = p.lds(f"ds_read_b128 {v(RB+24*(k-1)+4*i,4)}, {v(VRD+k-1)} offset:{(k-1)*6144+i*1024}")
        for k in range(1, 3):
            for i in range(6): rr(k, i)
        yr0 = self.y_read(0)
        for k in range(1, 4):
            for i in range(6):
                p.wait(lg=tk[(k, i)])
                if k == 1: rr(3, i)
                for hh in range(2): p(f"v_pk_add_f32 {v(own(i)+2*hh,2)}, {v(own(i)+2*hh,2)}, {v(RB+24*(k-1)+4*i+2*hh,2)}")
        p("s_barrier")
        self.stamp(9)
        PK = 112
        def ow2(i): return own(i >> 1) + 2 * (i & 1)
        def pepi():
            p = self.p
            OG = 152
            p.atom(f"s_cmp_eq_u32 s{NT}, 0\ns_cselect_b64 vcc, -1, 0")
            p(f"v_lshlrev_b32 {v(BI)}, 16, {v(BI)}\nv_cndmask_b32 {v(OG)}, {v(self.GY+2)}, {v(self.GY)}, vcc\nv_sub_f32 {v(OG)}, 1.0, {v(OG)}\nv_mul_f32 {v(OG+1)}, {v(OG)}, {v(BI)}")
            for i in range(12): p(f"v_pk_fma_f32 {v(ow2(i),2)}, {v(ow2(i),2)}, {v(OG,2)}, {v(OG,2)} op_sel:[0,0,1] op_sel_hi:[1,0,1]")
            for i in range(12): p(f"v_pk_mul_f32 {v(ow2(i),2)}, {v(ow2(i),2)}, {v(self.ZUP[i],2)}")
            for i in range(12): p(f"v_cvt_pk_bf16_f32 {v(PK+i)}, {v(ow2(i))}, {v(ow2(i)+1)}")
            p(f"s_mul_i32 s{SA}, s{SC}, 45056\ns_mul_i32 s{SB_}, s{SCOL}, 5632\ns_add_u32 s{SA}, s{SA}, s{SB_}\ns_lshl_b32 s{SB_}, s{Q}, 10")
            p(f"s_add_u32 s{SA}, s{SA}, s{SB_}\ns_add_u32 s{SA}, s{SA}, {PB}\ns_add_u32 s{SB_}, s{SA}, 4096")
        self.y1 = self.y_dma(1)
        self.run(merge(merge(self.cap(pepi), self.y1[:4]), yr0))
        self.y1 = self.y1[4:]
        p.vmem(f"buffer_store_dwordx4 {v(PK,4)}, {v(VL16)}, {srd(SWS)}, s{SA} offen sc1")
        p.vmem(f"buffer_store_dwordx4 {v(PK+4,4)}, {v(VL16)}, {srd(SWS)}, s{SA} offen offset:2048 sc1")
        self.tp = p.vmem(f"buffer_store_dwordx4 {v(PK+8,4)}, {v(PV)}, {srd(SWS)}, s{SB_} offen sc1")
        p(f"s_lshl_b32 s{SLATE}, s{STB}, 3\ns_add_u32 s{SLATE}, s{SLATE}, s{SCOL}\ns_lshl_b32 s{SLATE}, s{SLATE}, 2\ns_add_u32 s{SLATE}, s{SLATE}, s{SWV}\ns_lshl_b32 s{SLATE}, s{SLATE}, 7\ns_add_u32 s{SLATE}, s{SLATE}, {PF}")
        self.stamp(10)

    CD, CR, HT, GY, WD, WT_ = 210, 214, 218, 240, 244, 228
    ZUP = [4, 6, 8, 10, 12, 14, 204, 206, 208, 248, 250, 252]
    def c_setup(self):
        p = self.p
        self.plain_dma_addr(self.CD, 1024, 224)
        p(f"s_add_u32 s{SA}, s{SREG}, 4096")
        self.plain_read_addr(self.CR, SA, 224)
        p(f"s_add_u32 s{SA}, s{SREG}, {4096+8192}")
        self.unit_tr_addr(self.HT, SA, 224, False)
        p(f"s_lshl_b32 s{SCB}, s{SCOL}, 16\ns_lshl_b32 s{SA}, s{SWV}, 8\ns_add_u32 s{SCB}, s{SCB}, s{SA}")
        p(f"s_lshl_b32 s{SHB}, s{STB}, 17\ns_lshl_b32 s{SA}, s{SWV}, 15\ns_add_u32 s{SHB}, s{SHB}, s{SA}\ns_add_u32 s{SHB}, s{SHB}, {HB}")
        self.yt = {}
    def y_dma(self, s):
        sl = (s & 1) ^ 1; items = []
        def cb(t): self.yt[s] = t
        for hh in range(2):
            for i in range(4):
                items.append(((SREG, 4096 + sl * 18432 + hh * 4096) if i == 0 else None, (SCB, (s >> 1) * 128 + hh * 32768) if i == 0 else None,
                              f"buffer_load_dwordx4 {v(self.CD+i)}, {srd(SCIM if s & 1 else SCRE)}, s{SDO} offen offset:{i*1024} lds", None))
        for hh in range(2):
            for i in range(4):
                items.append(((SREG, 4096 + sl * 18432 + 8192 + hh * 4096) if i == 0 else None, (SHB, s * 8192 + hh * 4096) if i == 0 else None,
                              f"buffer_load_dwordx4 {v(VL16)}, {srd(SWS)}, s{SDO} offen offset:{i*1024} sc1 lds", cb))
        return self.dseq(items)
    def y_read(self, s):
        p = self.p; sl = (s & 1) ^ 1; ops = []
        self.yr = getattr(self, "yr", {})
        for ks in range(4):
            def f(ks=ks):
                p.wait(vm=self.yt[s], lg=p.lg - 10)
                b = 64 * s + 16 * ks
                for k in range(2):
                    p.lds(f"ds_read_b128 {ar(b+4*k,4)}, {v(self.CR+ks)} offset:{sl*18432+k*4096}")
                    for a in range(2):
                        self.yr[(s, ks)] = p.lds(f"ds_read_b64_tr_b16 {ar(b+8+4*k+2*a,2)}, {v(self.HT+a)} offset:{sl*18432+(ks>>1)*4096+k*2048+(ks&1)*256}")
            ops.append(f)
        return ops
    def phase_c(self):
        p = self.p; o = self.o
        p.c("==== phase C ====")
        YA, BA, F = 16, 80, 144
        XE, GE, DE, OV, P10, PL, T = 186, 194, 198, 200, 201, 202, 204
        RW, RX, WA, RA = 176, 177, 180, 230
        ep = {}
        def setup():
            p = self.p
            p(f"v_lshrrev_b32 {v(T)}, 4, {v(VL)}\nv_and_b32 {v(T+1)}, 15, {v(VL)}")
            p(f"v_lshlrev_b32 {v(T+2)}, 10, {v(T)}\nv_lshl_add_u32 {v(T+2)}, {v(T+1)}, 3, {v(T+2)}")
            p(f"v_lshlrev_b32 {v(T+3)}, 2, {v(T)}\nv_lshlrev_b32 {v(T+4)}, 3, {v(T+1)}")
            p(f"v_lshlrev_b32 {v(OV)}, 1, {v(T+2)}")
            p(f"s_lshl_b32 s{SC}, s{STB}, 6\ns_lshl_b32 s{SA}, s{SWV}, 4\ns_add_u32 s{SC}, s{SC}, s{SA}")
            p(f"s_lshl_b32 s{SD}, s{SC}, 10\ns_lshl_b32 s{SA}, s{SCOL}, 7\ns_add_u32 s{SD}, s{SD}, s{SA}\nv_add_u32 {v(T+4)}, s{SA}, {v(T+4)}")
            p(f"s_lshl_b32 s{SA}, s{STB}, 12\ns_lshl_b32 s{SB_}, s{SWV}, 10\ns_add_u32 s{SB_}, s{SB_}, s{SA}\ns_add_u32 s{SB_}, s{SB_}, {PF}")
            self.poll_addr(PL, [(SB_, 8)])
            p.atom(f"s_cmp_eq_u32 s{SWV}, 3\ns_cselect_b64 vcc, -1, 0")
            p(f"v_cndmask_b32 {v(P10)}, {v(VL16)}, {v(VOOB)}, vcc")
            p(f"s_mul_i32 s{SE}, s{STB}, {2*45056}\ns_mul_i32 s{SA}, s{SWV}, {22*512}\ns_add_u32 s{SE}, s{SE}, s{SA}\ns_add_u32 s{SE}, s{SE}, {PB}")
            p(f"s_add_u32 s{SA}, s{SREG}, 4096\nv_and_b32 {v(RW)}, 31, {v(VL)}\nv_lshlrev_b32 {v(RW)}, 8, {v(RW)}\nv_add_u32 {v(RW)}, s{SA}, {v(RW)}")
            p(f"v_lshrrev_b32 {v(RX)}, 5, {v(VL)}\nv_and_b32 {v(RX+1)}, 7, {v(VL)}\nv_xor_b32 {v(RX)}, {v(RX)}, {v(RX+1)}\nv_lshlrev_b32 {v(RX)}, 4, {v(RX)}")
            for i in range(4): p(f"v_xor_b32 {v(WA+i)}, {32*i}, {v(RX)}\nv_add_u32 {v(WA+i)}, {v(WA+i)}, {v(RW)}")
            p(f"v_xor_b32 {v(T+1)}, {v(T+1)}, {v(T)}\nv_lshlrev_b32 {v(T+1)}, 4, {v(T+1)}")
            p(f"v_lshlrev_b32 {v(T)}, 8, {v(T)}\ns_lshl_b32 s{SA}, s{SWV}, 12\ns_add_u32 s{SA}, s{SA}, 4096\nv_add_u32 {v(T)}, s{SA}, {v(T)}")
            p(f"v_add_u32 {v(RA)}, {v(T)}, {v(T+1)}\nv_xor_b32 {v(T+1)}, 64, {v(T+1)}\nv_add_u32 {v(RA+1)}, {v(T)}, {v(T+1)}")
            p(f"v_add_u32 {v(RA+2)}, 81920, {v(RA)}\nv_add_u32 {v(RA+3)}, 81920, {v(RA+1)}")
        def eloads():
            for gi in range(4):
                p(f"s_add_u32 s{SA}, s{SD}, {gi*4096}")
                p.vmem(f"buffer_load_dwordx2 {v(XE+2*gi,2)}, {v(T+2)}, {srd(SX)}, s{SA} offen")
            p(f"s_lshl_b32 s{SA}, s{SC}, 2\ns_add_u32 s{SA}, s{SA}, {GATE}")
            for gi in range(4): p.vmem(f"buffer_load_dword {v(GE+gi)}, {v(T+3)}, {srd(SWS)}, s{SA} offen offset:{gi*16} sc1")
            ep['t'] = p.vmem(f"global_load_dwordx2 {v(DE,2)}, {v(T+4)}, {sp(PDSK)}")
        T4 = [(0, 0), (1, 0), (1, 1), (0, 1)]
        def ym(s):
            ops = []
            for ks in range(4):
                for (mt, nt) in T4:
                    def m(ks=ks, mt=mt, nt=nt):
                        p.wait(lg=self.yr[(s, ks)])
                        d = v(YA + 16 * (2 * mt + nt), 16); b = 64 * s + 16 * ks
                        p(f"{MF} {d}, {ar(b+4*mt,4)}, {ar(b+8+4*nt,4)}, {'0' if (s, ks) == (0, 0) else d}")
                    ops.append(m)
            return ops
        PA = 80
        pt = {}
        def ploads():
            ops = []
            for nt in range(2):
                for kap in range(11):
                    def f(kap=kap, nt=nt):
                        if kap % 4 == 0: p(f"s_add_u32 s{SB_}, s{SE}, {nt*45056+kap*1024}")
                        pt[(kap, nt)] = p.vmem(f"buffer_load_dwordx4 {v(PA+(kap*2+nt)*4,4)}, {v(P10 if kap == 10 else VL16)}, {srd(SWS)}, s{SB_} offen offset:{(kap%4)*1024} sc1")
                    ops.append(f)
            return ops
        wo = {}
        def wo_dma():
            items = []
            for (i0, i1, base) in [(18, 22, 0), (0, 18, 22528)]:
                for i in range(i0, i1):
                    def cb(t, i=i): wo[i] = t
                    k = i - i0
                    items.append(((SREG, base + k * 1024) if k % 4 == 0 else None, (SXB, i * 8192) if k % 4 == 0 else None,
                                  f"buffer_load_dwordx4 {v(self.WD+k%4)}, {srd(SWOUT)}, s{SDO} offen offset:{(k%4)*1024} lds", cb))
            return self.dseq(items)
        def wo_rd(kap):
            def f():
                p.wait(vm=wo[2 * kap + 1], lg=p.lg - 12)
                for mt in range(2):
                    for a in range(2):
                        base = 22528 + kap * 2048 if kap < 9 else (kap - 9) * 2048
                        wo[('r', kap)] = p.lds(f"ds_read_b64_tr_b16 {ar((kap*2+mt)*4+2*a,2)}, {v(self.WT_+mt)} offset:{base+a*512}")
            return f
        def pflag():
            p.wait(vm=self.tp); self.flag(SLATE, 220)
        pl = {}
        def pf_issue(): pl['t'] = p.vmem(f"buffer_load_dword {v(PL+1)}, {v(PL)}, {srd(SWS)}, 0 offen sc1")
        def pf_check():
            l = p.label("pp"); d = p.label("pd")
            p.wait(vm=pl['t'])
            p(f"s_mov_b32 s{SSPIN}, 0")
            p.put(l)
            p(f"v_cmp_ne_u32 vcc, s{ST_T}, {v(PL+1)}\ns_and_b32 s{SF}, vcc_lo, 0xff\ns_cbranch_scc0 {d}")
            p(f"buffer_load_dword {v(PL+1)}, {v(PL)}, {srd(SWS)}, 0 offen sc1\ns_waitcnt vmcnt(0)")
            p(f"s_add_u32 s{SSPIN}, s{SSPIN}, 1\ns_cmp_lt_u32 s{SSPIN}, {SPIN}\ns_cbranch_scc1 {l}")
            p.put(d)
        su = self.cap(setup)
        lgw = lambda: p.wait(lg=p.lg - 1)
        y2, y3, wd, pl_ = self.y_dma(2), self.y_dma(3), wo_dma(), ploads()
        self.run(merge(merge(ym(0), su), self.y1 + [lgw] + y2[:5]))
        self.run([pflag] + y2[5:13])
        self.run(merge(self.y_read(1), y2[13:] + [eloads]))
        self.stamp(11)
        self.run(merge(ym(1), [lgw] + y3))
        self.run(merge(self.y_read(2), wd[:5]))
        self.run(merge(ym(2), [lgw] + wd[5:14] + [pf_issue] + wd[14:]))
        self.run(self.y_read(3))
        pf_check(); self.stamp(12)
        self.run(merge(ym(3), pl_[:12]))
        prest = pl_[12:]
        self.stamp(13)
        def redw(acc, base, tiles):
            return [(lambda mt=mt, nt=nt, i=i: p.lds(f"ds_write_b128 {v(WA+i)}, {v(acc+16*(2*mt+nt)+4*i,4)} offset:{base+nt*8192+mt*128}"))
                    for (mt, nt) in tiles for i in range(4)]
        def bm(kap, mt, nt):
            def m():
                p.wait(vm=pt[(kap, nt)], lg=wo[('r', kap)])
                d = v(YA + 16 * (2 * mt + nt), 16)
                p(f"{MF} {d}, {ar((kap*2+mt)*4,4)}, {v(PA+(kap*2+nt)*4,4)}, {d}")
            return m
        def yscale(mt, nt, pk=True):
            if pk: return [(lambda i=i: p(f"v_pk_mul_f32 {v(YA+16*(2*mt+nt)+2*i,2)}, {v(YA+16*(2*mt+nt)+2*i,2)}, {v(self.GY+2*nt,2)} op_sel_hi:[1,0]")) for i in range(8)]
            return [(lambda i=i: p(f"v_mul_f32 {v(YA+16*(2*mt+nt)+i)}, {v(YA+16*(2*mt+nt)+i)}, {v(self.GY+2*nt)}")) for i in range(16)]
        DU, X = 168, 0
        XP = [4, 8, 12, 172]
        def xpart():
            p = self.p
            self.unpack(DU, DE); self.unpack(DU + 2, DE + 1)
            for gi in range(4):
                x = XP[gi]
                self.unpack(x, XE + 2 * gi); self.unpack(x + 2, XE + 2 * gi + 1)
                for k in range(4): p(f"v_mul_f32 {v(x+k)}, {v(x+k)}, {v(DU+k)}")
                for k in range(4): p(f"v_mul_f32 {v(x+k)}, {v(x+k)}, {v(GE+gi)}")
        self.run(merge(merge(yscale(0, 0) + yscale(1, 0) + yscale(1, 1) + yscale(0, 1), prest), [wo_rd(k) for k in range(11)]))
        mm0 = [bm(kap, mt, 0) for kap in range(11) for mt in range(2)]
        self.run(merge(mm0, [lambda: p.wait(vm=ep['t'])] + self.cap(xpart)))
        mm1 = [bm(kap, 0, 1) for kap in range(11)]
        mm2 = [bm(kap, 1, 1) for kap in range(11)]
        self.run(merge(mm1, redw(YA, 0, [(0, 0), (1, 0)]), 2))
        self.run(merge(mm2, redw(YA, 0, [(0, 1)]), 4))
        self.run(redw(YA, 0, [(1, 1)]))
        p.wait_lg_all(); p("s_barrier")
        self.stamp(14)
        tk = {}
        def R(gi, s): return 16 + 16 * gi + 4 * s
        for gi in range(4):
            p.wait(lg=p.lg - 12)
            for s_ in range(4):
                tk[gi] = p.lds(f"ds_read_b128 {v(R(gi,s_),4)}, {v(RA+2*(s_>>1)+(gi&1))} offset:{(s_&1)*40960+gi*1024}")
        p(f"s_lshl_b32 s{SD}, s{SD}, 1")
        for gi in range(4):
            y = R(gi, 0)
            p.wait(lg=tk[gi])
            for hh in (0, 2):
                p(f"v_pk_add_f32 {v(y+hh,2)}, {v(y+hh,2)}, {v(y+4+hh,2)}\nv_pk_add_f32 {v(y+8+hh,2)}, {v(y+8+hh,2)}, {v(y+12+hh,2)}")
            for hh in (0, 2): p(f"v_pk_add_f32 {v(y+hh,2)}, {v(y+hh,2)}, {v(XP[gi]+hh,2)}")
            for hh in (0, 2): p(f"v_pk_add_f32 {v(y+hh,2)}, {v(y+hh,2)}, {v(y+8+hh,2)}")
            p(f"s_add_u32 s{SA}, s{SD}, {gi*8192}")
            p.vmem(f"buffer_store_dwordx4 {v(y,4)}, {v(OV)}, {srd(SOUT)}, s{SA} offen{' ' + o['outmod'] if 'outmod' in o else ''}")
        ne = p.label("ne")
        p(f"s_lshl_b32 s{SA}, s{STB}, 3\ns_add_u32 s{SA}, s{SA}, s{SCOL}\ns_lshl_b32 s{SA}, s{SA}, 2\ns_add_u32 s{SA}, s{SA}, s{SWV}")
        p(f"s_cmp_eq_u32 s{SA}, {255*4}\ns_cbranch_scc0 {ne}")
        p(f"s_mov_b32 s{SA}, {EPOCH}")
        self.flag(SA, 220)
        p.put(ne)
        if o.get("stamps"):
            self.stamp(15)
            p(f"s_lshl_b32 s{SA}, s2, 2\ns_add_u32 s{SA}, s{SA}, s{SWV}\ns_lshl_b32 s{SA}, s{SA}, 8\ns_add_u32 s{SA}, s{SA}, {DBG}")
            p(f"v_lshlrev_b32 v254, 2, {v(VL)}")
            p.vmem(f"buffer_store_dword v255, v254, {srd(SWS)}, s{SA} offen")
            if o.get("dbgmax"):
                ty = o["dbgmax"]
                nd = p.label("nd")
                if ty > 1: p(f"s_cmp_{'ge' if ty == 2 else 'lt'}_u32 s2, 128\ns_cbranch_scc1 {nd}")
                p(f"s_load_dwordx2 s[{SX}:{SX+1}], s[0:1], 128\ns_waitcnt lgkmcnt(0)\ns_mov_b32 s{SX+2}, 64")
                p(f"v_readlane_b32 s{SA}, v255, 17\nv_readlane_b32 s{SB_}, v255, 20\ns_not_b32 s{SA}, s{SA}\ns_nop 3\nv_writelane_b32 v255, s{SA}, 0\nv_writelane_b32 v255, s{SB_}, 6")
                p.vmem(f"buffer_atomic_umax v255, v254, {srd(SX)}, 0 offen")
                p.put(nd)
        if "spin_from" in o:
            self.stamp(15)
            sl = p.label("spin")
            p(f"v_readlane_b32 s{SA}, v254, 0")
            p.put(sl)
            p(f"s_memrealtime s[{SSTMP}:{SSTMP+1}]\ns_waitcnt lgkmcnt(0)\ns_sub_u32 s{SB_}, s{SSTMP}, s{SA}\ns_cmp_lt_u32 s{SB_}, 3000\ns_cbranch_scc1 {sl}")
        p.put(self.END)
        p("s_endpgm")

    def build(self):
        self.prologue()
        self.phase_z()
        self.p.vm_done = -1; self.p.lg_done = -1
        self.p("s_nop 15")
        self.phase_u()
        self.phase_g()
        self.phase_c()
        lines, added = hazard_pass([x for l in self.p.L for x in l.split(chr(10))])
        hdr = open("gated_mix__ssm_conv_s5__mixer_gmlp__prompt.s.ref").read().split("; Override")[0]
        s = hdr + "; @launch grid=(256,1,1) block=(256,1,1) lds=163840\n"
        s += '.amdgcn_target "amdgcn-amd-amdhsa--gfx950"\n.text\n'
        s += f".globl {NAME}\n.p2align 8\n.type {NAME},@function\n{NAME}:\n"
        s += "\n".join((l if l.endswith(":") else "    " + l) for l in lines) + "\n"
        s += f""".section .rodata,"a"
.p2align 6
.amdhsa_kernel {NAME}
  .amdhsa_next_free_vgpr 512
  .amdhsa_next_free_sgpr 102
  .amdhsa_accum_offset 256
  .amdhsa_group_segment_fixed_size 0
  .amdhsa_kernarg_size 144
  .amdhsa_user_sgpr_count 2
  .amdhsa_user_sgpr_kernarg_segment_ptr 1
  .amdhsa_system_sgpr_workgroup_id_x 1
  .amdhsa_float_denorm_mode_32 3
.end_amdhsa_kernel
"""
        return s, added

if __name__ == "__main__":
    out = sys.argv[1]
    opt = dict(touch=2, zs0=19, zs1=20, zs2=21, zmode=2, pf=2, tlb=2, map=1)
    for a in sys.argv[2:]:
        k, _, val = a.partition("=")
        try: opt[k] = int(val) if val else 1
        except ValueError: opt[k] = val
    s, added = G(opt).build()
    open(out, "w").write(s)
    print("wrote", out, "nops added", added, "lines", s.count("\n"))
```

```python
import sys, math, struct
from core import *

NAME = "gated_mix__ssm_conv_s5__mixer_gmlp__prompt_kernel"
EPOCH = 0; GATE = 0x4000
ST = 0x10000; EG = 0x50000; DBG = 0x80000
Z2N = 0x100000; Z1 = 0x400000; PB = 0x700000; HB = 0xA00000
ZF = 0xE00000; HF = 0xE10000; PF = 0xE20000; Z1F = 0xE40000; ZF2 = 0xE50000; XB = 0x1000000; WS_END = 0x1400000
OOB = 0x80000000
SPIN = 200000
SX, SW1, SWSP, SWS, SCRE, SCIM, SWOUT, SOUT = 4, 8, 12, 16, 20, 24, 28, 32
PLRE, PLIM, PLDT, PDSK, PBSP, PGW, PBRE, PBIM, PWIN = 36, 38, 40, 42, 44, 46, 48, 50, 52
ST_T = 100
SWV, SRB, SCOL, STB = 56, 57, 58, 59
SA, SB_, SC, SD = 60, 61, 62, 63
SSTMP = 64
SDO, SWB, SPB0, SPST, SPSP = 68, 69, 70, 71, 72
SXB, SW1B, SXL, SWL = 73, 74, 75, 76
SPC = 77
SCB, SHB = 78, 79
SK = 80
SREG = 96
SE, SF = 97, 98
SSPIN = 99
SLATE = 101
SJ = 3
SGB = 95
SPFP = 70
SPFE = 79
SKH = 81
SGL = 77
SZI = 72
SPB = 90
def srd(b): return f"s[{b}:{b+3}]"
def v(a, n=1): return f"v{a}" if n == 1 else f"v[{a}:{a+n-1}]"
def ar(a, n=1): return f"a{a}" if n == 1 else f"a[{a}:{a+n-1}]"
def sp(a): return f"s[{a}:{a+1}]"
VL, VL16, VOOB = 1, 2, 3
LOG2E = 1.4426950408889634
def f2u(x): return struct.unpack("<I", struct.pack("<f", x))[0]
MF = "v_mfma_f32_32x32x16_bf16"

class G:
    def __init__(self, opt):
        self.o = opt
        self.p = Prog()

    def stamp(self, k):
        if self.o.get("spin_from") == k:
            p = self.p
            p(f"s_memrealtime s[{SSTMP}:{SSTMP+1}]"); p.wait_lg_all()
            p(f"v_mov_b32 v254, s{SSTMP}")
        if self.o.get("stamps"):
            p = self.p
            p(f"s_memrealtime s[{SSTMP}:{SSTMP+1}]\ns_memtime s[{SSTMP+2}:{SSTMP+3}]"); p.wait_lg_all()
            p(f"v_writelane_b32 v255, s{SSTMP}, {k}\nv_writelane_b32 v255, s{SSTMP+2}, {k+32}")
    def cap(self, fn):
        sub = Prog(); save = self.p; self.p = sub
        fn()
        self.p = save
        assert sub.vm == 0 and sub.lg == 0
        return [(lambda l=l: self.p(l)) for l in sub.L]
    def run(self, ops):
        for op in ops: op()
    def dseq(self, items):
        p = self.p
        def setup(it):
            if it[0] is not None: p(f"s_add_u32 m0, s{it[0][0]}, {it[0][1]}")
            if it[1] is not None: p(f"s_add_u32 s{SDO}, s{it[1][0]}, {it[1][1]}")
        ops = [lambda: setup(items[0])]
        for i, it in enumerate(items):
            def f(i=i, it=it):
                t = p.vmem(it[2])
                if it[3]: it[3](t)
                if i + 1 < len(items) and items[i + 1][:2] != it[:2]: setup(items[i + 1])
            ops.append(f)
        return ops
    def poll_addr(self, vt, groups):
        p = self.p; n0 = 0
        p(f"v_mov_b32 {v(vt)}, {v(VOOB)}")
        for (sr, n) in groups:
            if n == 1: p(f"v_writelane_b32 {v(vt)}, s{sr}, {n0}")
            else:
                p(f"s_sub_u32 s{sr}, s{sr}, {n0*128}\nv_lshl_add_u32 {v(vt+1)}, {v(VL)}, 7, s{sr}")
                m = ((1 << n) - 1) << n0
                p(f"s_mov_b32 vcc_lo, {m & 0xffffffff}\ns_mov_b32 vcc_hi, {m >> 32}\nv_cndmask_b32 {v(vt)}, {v(vt)}, {v(vt+1)}, vcc")
            n0 += n
        return n0
    def poll(self, vt, n):
        p = self.p
        l = p.label("poll"); d = p.label("pd")
        p(f"s_mov_b32 s{SSPIN}, 0")
        p.put(l)
        p.vmem(f"buffer_load_dword {v(vt+1)}, {v(vt)}, {srd(SWS)}, 0 offen sc1")
        p.wait_vm_all()
        p(f"v_cmp_ne_u32 vcc, s{ST_T}, {v(vt+1)}")
        if n <= 32: p(f"s_and_b32 s{SF}, vcc_lo, {(1<<n)-1}")
        else: p(f"s_and_b32 vcc_hi, vcc_hi, {(1<<(n-32))-1}\ns_or_b32 s{SF}, vcc_lo, vcc_hi")
        p(f"s_cbranch_scc0 {d}")
        p(f"s_add_u32 s{SSPIN}, s{SSPIN}, 1\ns_cmp_lt_u32 s{SSPIN}, {SPIN}\ns_cbranch_scc1 {l}")
        p.put(d)
    def flag_prep(self, vt):
        p = self.p
        p(f"v_mov_b32 {v(vt)}, s{ST_T}\nv_mov_b32 {v(vt+1)}, {v(VOOB)}\nv_writelane_b32 {v(vt+1)}, 0, 0")
    def flag(self, off_sreg, vt):
        self.p.vmem(f"buffer_store_dword {v(vt)}, {v(vt+1)}, {srd(SWS)}, s{off_sreg} offen sc1")
    def xhalf_sum(self, a, t):
        self.p(f"v_mov_b32 {v(t)}, {v(a)}\nv_permlane32_swap_b32 {v(a)}, {v(t)}\nv_add_f32 {v(a)}, {v(a)}, {v(t)}")
    def rnd(self, d, s):
        self.p(f"v_cvt_pk_bf16_f32 {v(d)}, {v(s)}, {v(s)}\nv_lshlrev_b32 {v(d)}, 16, {v(d)}")
    def unpack(self, d, s):
        self.p(f"v_and_b32 {v(d+1)}, 0xffff0000, {v(s)}\nv_lshlrev_b32 {v(d)}, 16, {v(s)}")
    def plain_read_addr(self, dst4, base_sreg, t):
        p = self.p
        p(f"v_and_b32 {v(t)}, 31, {v(VL)}\nv_lshlrev_b32 {v(t)}, 7, {v(t)}")
        if base_sreg is not None: p(f"v_add_u32 {v(t)}, s{base_sreg}, {v(t)}")
        p(f"v_bfe_u32 {v(t+1)}, {v(VL)}, 1, 3\nv_lshrrev_b32 {v(dst4)}, 5, {v(VL)}\nv_xor_b32 {v(t+1)}, {v(t+1)}, {v(dst4)}")
        p(f"v_lshlrev_b32 {v(t+1)}, 4, {v(t+1)}")
        for ks in range(4):
            p(f"v_xor_b32 {v(dst4+ks)}, {32*ks}, {v(t+1)}\nv_add_u32 {v(dst4+ks)}, {v(dst4+ks)}, {v(t)}")
    def plain_dma_addr(self, dst4, rowbytes, t, rowstep=8):
        p = self.p
        p(f"v_lshrrev_b32 {v(t)}, 3, {v(VL)}\nv_mul_u32_u24 {v(t)}, {rowbytes}, {v(t)}")
        self.plain_dma_addr2(dst4, t, t + 1, rowstep * rowbytes)
    def plain_dma_addr2(self, dst4, vrow, t, step):
        p = self.p
        p(f"v_and_b32 {v(t)}, 7, {v(VL)}\nv_lshrrev_b32 {v(dst4)}, 4, {v(VL)}\nv_xor_b32 {v(t)}, {v(t)}, {v(dst4)}\nv_lshlrev_b32 {v(t)}, 4, {v(t)}")
        p(f"v_add_u32 {v(dst4)}, {v(t)}, {v(vrow)}")
        p(f"v_xor_b32 {v(t)}, 64, {v(t)}\nv_add_u32 {v(dst4+1)}, {v(t)}, {v(vrow)}")
        p(f"v_add_u32 {v(dst4+2)}, {2*(step-1024)}, {v(dst4)}\nv_add_u32 {v(dst4+3)}, {3*(step-1024)}, {v(dst4+1)}\nv_add_u32 {v(dst4+1)}, {step-1024}, {v(dst4+1)}")
    def panel_tr_addr(self, dst2, base_sreg, t, perm):
        p = self.p
        p(f"v_lshrrev_b32 {v(t)}, 5, {v(VL)}\nv_lshlrev_b32 {v(t)}, 10, {v(t)}")
        p(f"v_bfe_u32 {v(t+1)}, {v(VL)}, 2, 2\nv_lshl_add_u32 {v(t)}, {v(t+1)}, 7, {v(t)}")
        p(f"v_bfe_u32 {v(t+1)}, {v(VL)}, 4, 1\nv_lshl_add_u32 {v(t)}, {v(t+1)}, 5, {v(t)}")
        if perm:
            p(f"v_and_b32 {v(t+1)}, 1, {v(VL)}\nv_lshl_add_u32 {v(t)}, {v(t+1)}, 4, {v(t)}")
            p(f"v_bfe_u32 {v(t+1)}, {v(VL)}, 1, 1\nv_lshl_add_u32 {v(t)}, {v(t+1)}, 3, {v(t)}")
        else:
            p(f"v_and_b32 {v(t+1)}, 3, {v(VL)}\nv_lshl_add_u32 {v(t)}, {v(t+1)}, 3, {v(t)}")
        p(f"v_bfe_u32 {v(t+1)}, {v(VL)}, 3, 1\nv_lshlrev_b32 {v(t+1)}, 6, {v(t+1)}")
        if base_sreg is not None: p(f"v_add_u32 {v(t)}, s{base_sreg}, {v(t)}")
        p(f"v_add_u32 {v(dst2)}, {v(t)}, {v(t+1)}\nv_xor_b32 {v(t+1)}, 64, {v(t+1)}\nv_add_u32 {v(dst2+1)}, {v(t)}, {v(t+1)}")
    def unit_tr_addr(self, dst2, base_sreg, t, perm, flip_sreg=None):
        p = self.p
        p(f"v_bfe_u32 {v(t)}, {v(VL)}, 4, 1")
        if flip_sreg is not None: p(f"v_xor_b32 {v(t)}, s{flip_sreg}, {v(t)}")
        p(f"v_lshlrev_b32 {v(t)}, 1, {v(t)}")
        p(f"v_bfe_u32 {v(t+1)}, {v(VL)}, {0 if perm else 1}, 1\nv_or_b32 {v(t)}, {v(t)}, {v(t+1)}")
        p(f"v_lshrrev_b32 {v(t+1)}, 5, {v(VL)}\nv_lshlrev_b32 {v(t+1)}, 1, {v(t+1)}\nv_xor_b32 {v(t+1)}, {v(t+1)}, {v(t)}")
        p(f"v_lshlrev_b32 {v(t)}, 9, {v(t)}")
        p(f"v_bfe_u32 {v(t+2)}, {v(VL)}, 2, 2\nv_lshl_add_u32 {v(t)}, {v(t+2)}, 4, {v(t)}")
        p(f"v_bfe_u32 {v(t+2)}, {v(VL)}, {1 if perm else 0}, 1\nv_lshl_add_u32 {v(t)}, {v(t+2)}, 3, {v(t)}")
        if base_sreg is not None: p(f"v_add_u32 {v(t)}, s{base_sreg}, {v(t)}")
        p(f"v_lshl_add_u32 {v(dst2)}, {v(t+1)}, 6, {v(t)}")
        p(f"v_xor_b32 {v(t+1)}, 1, {v(t+1)}\nv_lshl_add_u32 {v(dst2+1)}, {v(t+1)}, 6, {v(t)}")

    def gemm_loop(self, nslot, reads, mfmas, dma, tick, rfront, npro, extra, valu=None):
        p = self.p
        p.wait(vm=tick[0]); p("s_barrier")
        self.stamp(20)
        self.run(reads(0))
        d = []
        for st in range(npro, nslot): d += dma(st)
        q = (len(d) + 2) // 3
        pend = [d[i * q:(i + 1) * q] for i in range(3)]
        for n in range(32):
            rd = []
            if n + 1 < 32:
                if (n + 1) % 4 == 0:
                    st = (n + 1) // 4
                    p.wait(vm=tick[st], lg=p.lg - 1); p("s_barrier")
                    if self.o.get("astamps"): self.stamp(20 + st)
                    d = dma(st - 1 + nslot) if st - 1 + nslot < 8 else extra.get(st, lambda: [])()
                    q = (len(d) + 3) // 4
                    pend = [d[i * q:(i + 1) * q] for i in range(4)]
                rd = reads(n + 1)
            seq = merge(mfmas(n), rd, 0, rfront)
            if pend: seq = merge(seq, pend.pop(0), len(seq) // 2)
            if valu and n in valu: seq = merge(seq, valu[n])
            self.run(seq)

    def gate(self, GX, GW, GU, GS, GT):
        p = self.p
        for i in range(4):
            for r in range(4):
                p(f"v_dot2_f32_bf16 {v(GS+r)}, {v(GX+4*r+i)}, {v(GW+i)}, {'0' if i == 0 else v(GS+r)}")
        p("s_nop 2")
        for mod in ["quad_perm:[1,0,3,2]", "quad_perm:[2,3,0,1]", "row_half_mirror", "row_mirror"]:
            for r in range(4): p(f"v_add_f32_dpp {v(GS+r)}, {v(GS+r)}, {v(GS+r)} {mod} row_mask:0xf bank_mask:0xf")
        for sw in ["v_permlane16_swap_b32", "v_permlane32_swap_b32"]:
            for r in range(4): p(f"v_mov_b32 {v(GT+r)}, {v(GS+r)}")
            for r in range(4): p(f"{sw} {v(GS+r)}, {v(GT+r)}")
            for r in range(4): p(f"v_add_f32 {v(GS+r)}, {v(GS+r)}, {v(GT+r)}")
        for r in range(4): p(f"v_mul_f32 {v(GS+r)}, {f2u(-LOG2E)}, {v(GS+r)}")
        for r in range(4): p(f"v_exp_f32 {v(GS+r)}, {v(GS+r)}")
        for r in range(4): p(f"v_add_f32 {v(GS+r)}, 1.0, {v(GS+r)}")
        for r in range(4): p(f"v_rcp_f32 {v(GS+r)}, {v(GS+r)}")
        p(f"v_mov_b32 {v(GT)}, {v(VOOB)}\nv_writelane_b32 {v(GT)}, 0, 0")

    def w_dma_addr(self, dst3, t, colbase):
        p = self.p
        for i in range(3):
            p(f"v_add_u32 {v(t)}, {64*i}, {v(VL)}\nv_mul_u32_u24 {v(t+1)}, 171, {v(t)}\nv_lshrrev_b32 {v(t+1)}, 11, {v(t+1)}")
            p(f"v_mul_u32_u24 {v(t+2)}, 12, {v(t+1)}\nv_sub_u32 {v(t)}, {v(t)}, {v(t+2)}\nv_cmp_eq_u32 vcc, 11, {v(t)}")
            p(f"v_mul_u32_u24 {v(t+1)}, 2752, {v(t+1)}\nv_lshl_add_u32 {v(t)}, {v(t)}, 4, {v(t+1)}")
            if colbase - 1024 * i: p(f"v_add_u32 {v(t)}, {colbase-1024*i}, {v(t)}")
            p(f"v_cndmask_b32 {v(dst3+i)}, {v(t)}, {v(VOOB)}, vcc")
    def w_tr_addr(self, dst, base, t):
        p = self.p
        p(f"v_lshrrev_b32 {v(t)}, 5, {v(VL)}\nv_bfe_u32 {v(t+1)}, {v(VL)}, 2, 2\nv_lshl_add_u32 {v(t)}, {v(t)}, 3, {v(t+1)}\nv_mul_u32_u24 {v(t)}, 192, {v(t)}")
        p(f"v_bfe_u32 {v(t+1)}, {v(VL)}, 4, 1\nv_lshl_add_u32 {v(t)}, {v(t+1)}, 5, {v(t)}")
        p(f"v_and_b32 {v(t+1)}, 1, {v(VL)}\nv_lshl_add_u32 {v(t)}, {v(t+1)}, 4, {v(t)}")
        p(f"v_bfe_u32 {v(t+1)}, {v(VL)}, 1, 1\nv_lshl_add_u32 {v(t)}, {v(t+1)}, 3, {v(t)}")
        p(f"v_add_u32 {v(dst)}, {base}, {v(t)}")
    def valid_masks(self):
        MA, MB = SK + 2, SK + 4
        self.p.atom(f"s_cmp_lt_u32 s{SCOL}, 7\ns_mov_b32 s{MA}, -1\ns_cselect_b32 s{MA+1}, -1, 0\ns_cselect_b32 s{MB}, -1, 0\ns_mov_b32 s{MB+1}, 0\n"
                    f"s_mov_b32 s{SK+6}, {f2u(1/72)}\ns_cselect_b32 s{SK+6}, {f2u(1/88)}, s{SK+6}")
        c1 = -2 * LOG2E * 0.7978845608028654
        self.p(f"s_mov_b32 s{SK}, {f2u(c1*0.044715)}\nv_mov_b32 {v(self.VC0)}, {f2u(c1)}")

    def gelu_pair(self, a, t, out_packed=None):
        p = self.p
        p(f"v_pk_mul_f32 {v(t,2)}, {v(a,2)}, {v(a,2)}")
        p(f"v_pk_fma_f32 {v(t,2)}, {v(t,2)}, {sp(SK)}, {v(self.VC0,2)} op_sel_hi:[1,0,0]")
        p(f"v_pk_mul_f32 {v(t,2)}, {v(t,2)}, {v(a,2)}")
        p(f"v_exp_f32 {v(t)}, {v(t)}\nv_exp_f32 {v(t+1)}, {v(t+1)}")
        p(f"v_pk_add_f32 {v(t,2)}, {v(t,2)}, 1.0 op_sel_hi:[1,0]")
        p(f"v_rcp_f32 {v(t)}, {v(t)}\nv_rcp_f32 {v(t+1)}, {v(t+1)}")
        if out_packed is not None:
            p(f"v_pk_mul_f32 {v(t,2)}, {v(t,2)}, {v(a,2)}")
            p(f"v_cvt_pk_bf16_f32 {v(out_packed)}, {v(t)}, {v(t+1)}")
        else:
            p(f"v_pk_mul_f32 {v(a,2)}, {v(t,2)}, {v(a,2)}")
    def gelu_many(self, pairs, temps, outs=None):
        p = self.p; ng = len(temps)
        for g0 in range(0, len(pairs), ng):
            streams = []
            for k, i in enumerate(range(g0, min(g0 + ng, len(pairs)))):
                sub = Prog(); save = self.p; self.p = sub
                self.gelu_pair(pairs[i], temps[k], None if outs is None else outs[i])
                self.p = save
                streams.append(sub.L)
            for j in range(len(streams[0])):
                for s in streams: p(s[j])

    VWD, VWR, VWA, VC0 = 240, 244, 248, 252
    def wsp_setup(self, t):
        p = self.p
        self.plain_dma_addr(self.VWD, 4096, t)
        p(f"s_lshl_b32 s{SA}, s{SKH}, 12")
        self.plain_read_addr(self.VWR, SA, t)
        p(f"s_lshr_b32 s{SWB}, s{STB}, 1\ns_lshl_b32 s{SWB}, s{SWB}, 19\ns_and_b32 s{SB_}, s{SWV}, 1\ns_lshl_b32 s{SB_}, s{SB_}, 18\ns_add_u32 s{SWB}, s{SWB}, s{SB_}")
        p(f"s_lshl_b32 s{SB_}, s{SKH}, 11\ns_add_u32 s{SWB}, s{SWB}, s{SB_}\ns_lshr_b32 s{SB_}, s{SWV}, 1\ns_lshl_b32 s{SB_}, s{SB_}, 10\ns_add_u32 s{SWB}, s{SWB}, s{SB_}")
        self.wsp_t = {}
    def piece(self, st): return (SPB + st % 5, 0)
    def wsp_dma(self, st):
        if self.o.get("x_nowsp") and st >= 2:
            self.wsp_t[st] = -1
            return [lambda: None] * 9
        items = []; sr, im = self.piece(st)
        for hh in range(2):
            for i in range(4):
                def cb(t): self.wsp_t[st] = t
                items.append(((sr, im + hh * 4096) if i == 0 else None, (SWB, st * 128 + hh * 131072) if i == 0 else None,
                              f"buffer_load_dwordx4 {v(self.VWD+i)}, {srd(SWSP)}, s{SDO} offen offset:{i*1024} {self.o.get('wmod', '')} lds", cb))
        return self.dseq(items)
    def wsp_read(self, st):
        if self.o.get("x_nord"): return [lambda: None]
        p = self.p; sr, im = self.piece(st)
        def pre():
            for ks in range(4): p(f"v_add_u32 {v(self.VWA+ks)}, s{sr}, {v(self.VWR+ks)}")
            p.wait(vm=self.wsp_t[st], lg=p.lg - 8)
        ops = [pre]
        for nt in range(2):
            for ks in range(4):
                def f(ks=ks, nt=nt):
                    p.lds(f"ds_read_b128 {ar(((st*4+ks)*2+nt)*4,4)}, {v(self.VWA+ks)} offset:{im}")
                    if nt == 0: p(f"v_xor_b32 {v(self.VWA+ks)}, 4096, {v(self.VWA+ks)}")
                ops.append(f)
        return ops

    def prologue(self):
        p = self.p
        self.END = p.label("end")
        p(f"s_cmp_ge_u32 s2, 256\ns_cbranch_scc1 {self.END}")
        p(f"s_load_dwordx2 {sp(SX)}, s[0:1], 0\ns_load_dwordx2 {sp(PWIN)}, s[0:1], 80\ns_load_dwordx4 s[{PBRE}:{PBRE+3}], s[0:1], 24")
        p(f"s_load_dwordx2 {sp(PGW)}, s[0:1], 112\ns_load_dwordx4 s[{PLRE}:{PLRE+3}], s[0:1], 8\ns_load_dwordx2 {sp(PLDT)}, s[0:1], 56\ns_load_dwordx2 {sp(SWS)}, s[0:1], 136")
        if self.o.get("tlb", 1):
            for (r, off) in [(SWSP, 88), (SCRE, 40), (SCIM, 48), (SWOUT, 104), (SOUT, 120), (PDSK, 64), (PBSP, 96)]:
                p(f"s_load_dwordx2 {sp(r)}, s[0:1], {off}")
            for (r, n) in [(SWSP, 8388608), (SWS, WS_END), (SCRE, 524288), (SCIM, 524288), (SWOUT, 704512), (SOUT, 4194304)]:
                p(f"s_mov_b32 s{r+2}, {n}\ns_mov_b32 s{r+3}, 0x20000")
        p(f"v_lshrrev_b32 v2, 6, v0\nv_and_b32 {v(VL)}, 63, v0\nv_readfirstlane_b32 s{SWV}, v2\nv_lshlrev_b32 {v(VL16)}, 4, {v(VL)}\nv_mov_b32 {v(VOOB)}, {OOB}")
        if self.o.get("stamps"): p("v_mov_b32 v255, 0")
        self.stamp(17)
        p(f"s_and_b32 s{SA}, s2, 7\ns_lshr_b32 s{SB_}, s2, 3")
        p(f"s_and_b32 s{SC}, s{SA}, 1\ns_lshl_b32 s{SC}, s{SC}, 2\ns_and_b32 s{SD}, s{SB_}, 3\ns_add_u32 s{SCOL}, s{SC}, s{SD}")
        p(f"s_lshr_b32 s{SA}, s{SA}, 1")
        p(f"s_lshr_b32 s{SC}, s{SB_}, 2\ns_lshl_b32 s{SD}, s{SA}, 3\ns_add_u32 s{STB}, s{SD}, s{SC}")
        p(f"s_and_b32 s{SC}, s{SC}, 3\ns_lshl_b32 s{SD}, s{SA}, 2\ns_add_u32 s{SRB}, s{SD}, s{SC}")
        p(f"s_and_b32 s{SD}, s2, 6\ns_lshl_b32 s{SD}, s{SD}, 1\ns_lshr_b32 s{STB}, s{SB_}, 3\ns_add_u32 s{STB}, s{STB}, s{SD}\ns_lshl_b32 s{STB}, s{STB}, 1\ns_and_b32 s{SKH}, s2, 1\ns_add_u32 s{STB}, s{STB}, s{SKH}\ns_and_b32 s{SJ}, s{SB_}, 7")
        p(f"s_mov_b32 s{SX+2}, 2097152\ns_mov_b32 s{SX+3}, 0x20000\ns_mov_b32 s{SW1+3}, 0x20000")
        if "probe" in self.o:
            off, ls, ws_ = [int(x) for x in self.o["probe"].split(",")]
            p(f"s_load_dwordx2 {sp(SPFP)}, s[0:1], {off}\ns_lshl_b32 s{SD}, s2, 2\ns_add_u32 s{SD}, s{SD}, s{SWV}\ns_mul_i32 s{SD}, s{SD}, {ws_}")
            p(f"v_mul_u32_u24 {v(4)}, {ls}, {v(VL)}\nv_add_u32 {v(4)}, s{SD}, {v(4)}\ns_waitcnt lgkmcnt(0)")
            p(f"global_load_dword {v(5)}, {v(4)}, {sp(SPFP)}\ns_waitcnt vmcnt(0)")
            self.stamp(30)
        pf = self.o.get("pf", 2)
        if pf == 4:
            p(f"s_lshl_b32 s{SD}, s{SB_}, 2\ns_add_u32 s{SD}, s{SD}, s{SWV}\ns_and_b32 s{SE}, s2, 7")
            p(f"s_lshr_b32 s{SA}, s{SE}, 1\ns_lshl_b32 s{SA}, s{SA}, 6\ns_add_u32 s{SA}, s{SA}, s{SD}")
            p(f"s_and_b32 s{SC}, s{SE}, 1\ns_lshl_b32 s{SC}, s{SC}, 5\ns_and_b32 s{SPFE}, s{SD}, 31\ns_add_u32 s{SC}, s{SC}, s{SPFE}")
            p(f"s_cmp_ge_u32 s{SD}, 64\ns_cselect_b32 s{SA}, s{SC}, s{SA}\ns_cselect_b32 s{SC}, 24, 0\ns_cmp_ge_u32 s{SD}, 96\ns_cselect_b32 s{SC}, 32, s{SC}")
            p(f"s_load_dwordx2 {sp(SPFP)}, s[0:1], s{SC}\ns_lshl_b32 s{SA}, s{SA}, 13\nv_lshl_add_u32 {v(4)}, {v(VL)}, 7, s{SA}")
            p(f"v_mul_u32_u24 {v(6)}, 37, {v(VL)}\nv_lshrrev_b32 {v(6)}, 8, {v(6)}")
            p(f"v_mul_u32_u24 {v(7)}, 7, {v(6)}\nv_sub_u32 {v(7)}, {v(VL)}, {v(7)}\nv_lshlrev_b32 {v(7)}, 7, {v(7)}\nv_min_u32 {v(7)}, 700, {v(7)}")
            p(f"v_min_u32 {v(6)}, 7, {v(6)}\nv_mul_u32_u24 {v(6)}, 1376, {v(6)}\nv_add_u32 {v(6)}, {v(6)}, {v(7)}")
            p(f"s_mul_i32 s{SA}, s{SD}, {4*2752}\ns_and_b32 s{SE}, s{SE}, 1\ns_mul_i32 s{SE}, s{SE}, 704\ns_add_u32 s{SA}, s{SA}, s{SE}\nv_add_u32 {v(6)}, s{SA}, {v(6)}\nv_min_u32 {v(6)}, {512*2752-4}, {v(6)}")
        if pf == 3:
            p(f"s_lshl_b32 s{SD}, s{SWV}, 8\ns_add_u32 s{SD}, s{SD}, s2\ns_mov_b32 s{SC}, 0\ns_mov_b32 s{SA}, 0")
            for (lo, off) in [(256, 80), (428, 24), (492, 32), (556, 40), (620, 48), (684, 104)]:
                p(f"s_cmp_ge_u32 s{SD}, {lo}\ns_cselect_b32 s{SC}, {off}, s{SC}\ns_cselect_b32 s{SA}, {lo}, s{SA}")
            p(f"s_cmp_lt_u32 s{SD}, 770\ns_cselect_b32 s{SPFE}, 1, 0")
            p(f"s_sub_u32 s{SD}, s{SD}, s{SA}\ns_load_dwordx2 {sp(SPFP)}, s[0:1], s{SC}")
            p(f"s_lshl_b32 s{SD}, s{SD}, 13\nv_lshl_add_u32 {v(4)}, {v(VL)}, 7, s{SD}")
        if pf == 1:
            p(f"s_lshl_b32 s{SD}, s2, 2\ns_add_u32 s{SD}, s{SD}, s{SWV}\ns_mov_b32 s{SC}, 0\ns_mov_b32 s{SA}, 0")
            for (lo, off) in [(256, 80), (428, 24), (492, 32)]:
                p(f"s_cmp_ge_u32 s{SD}, {lo}\ns_cselect_b32 s{SC}, {off}, s{SC}\ns_cselect_b32 s{SA}, {lo}, s{SA}")
            p(f"s_cmp_lt_u32 s{SD}, 556\ns_cselect_b32 s{SPFE}, 1, 0")
            p(f"s_sub_u32 s{SD}, s{SD}, s{SA}\ns_load_dwordx2 {sp(SPFP)}, s[0:1], s{SC}")
            p(f"s_lshl_b32 s{SD}, s{SD}, 13\nv_lshl_add_u32 {v(4)}, {v(VL)}, 7, s{SD}")
        if pf == 2:
            p(f"s_lshl_b32 s{SD}, s{SWV}, 8\ns_add_u32 s{SD}, s{SD}, s2\ns_mov_b32 s{SC}, 0\ns_mov_b32 s{SA}, 0\ns_mov_b32 s{SE}, 2047")
            for (lo, off, last) in [(171, 24, 511), (214, 32, 511), (257, 80, 0)]:
                p(f"s_cmp_ge_u32 s{SD}, {lo}\ns_cselect_b32 s{SC}, {off}, s{SC}\ns_cselect_b32 s{SA}, {lo}, s{SA}\ns_cselect_b32 s{SE}, {last}, s{SE}")
            p(f"s_cmp_lt_u32 s{SD}, 365\ns_cselect_b32 s{SPFE}, 1, 0")
            p(f"s_sub_u32 s{SD}, s{SD}, s{SA}\ns_load_dwordx2 {sp(SPFP)}, s[0:1], s{SC}")
            p(f"v_mul_u32_u24 {v(4)}, 52, {v(VL)}\nv_lshrrev_b32 {v(4)}, 8, {v(4)}\nv_mul_u32_u24 {v(5)}, 5, {v(4)}\nv_sub_u32 {v(5)}, {v(VL)}, {v(5)}")
            p(f"s_mul_i32 s{SA}, s{SD}, 12\nv_add_u32 {v(4)}, s{SA}, {v(4)}\nv_min_u32 {v(4)}, s{SE}, {v(4)}\nv_lshlrev_b32 {v(4)}, 10, {v(4)}\nv_lshl_add_u32 {v(4)}, {v(5)}, 7, {v(4)}\nv_add_u32 {v(4)}, 384, {v(4)}")
            p(f"s_lshl_b32 s{SD}, s{SD}, 13\ns_add_u32 s{SD}, s{SD}, {192*2752}\nv_lshl_add_u32 {v(5)}, {v(VL)}, 7, s{SD}\nv_min_u32 {v(5)}, {512*2752-4}, {v(5)}")
            p(f"s_cmp_eq_u32 s{SE}, 0\ns_cselect_b64 vcc, -1, 0\nv_cndmask_b32 {v(4)}, {v(4)}, {v(5)}, vcc")
        self.LU = p.label("U"); self.LG = p.label("G")
        p(f"s_cmp_ge_u32 s{SB_}, 16\ns_cbranch_scc1 {self.LU}")
    def code_prefetch(self, va, vd):
        if not self.o.get("cpf", 1): return
        p = self.p
        sk = p.label("cpf"); here = p.label("pc")
        nsl = self.o.get("cpfn", 6)
        p(f"s_lshr_b32 s{SA}, s2, 3\ns_and_b32 s{SA}, s{SA}, 15\ns_lshl_b32 s{SA}, s{SA}, 2\ns_add_u32 s{SA}, s{SA}, s{SWV}")
        p(f"s_cmp_ge_u32 s{SA}, {nsl}\ns_cbranch_scc1 {sk}")
        p(f"s_getpc_b64 s[{SSTMP}:{SSTMP+1}]")
        p.put(here)
        p(f"s_sub_u32 s{SSTMP}, s{SSTMP}, {here}-{NAME}\ns_subb_u32 s{SSTMP+1}, s{SSTMP+1}, 0")
        p(f"s_lshl_b32 s{SA}, s{SA}, 13\nv_lshl_add_u32 {v(va)}, {v(VL)}, 7, s{SA}\nv_min_u32 {v(va)}, {self.END}-{NAME}, {v(va)}")
        p(f"global_load_dword {v(vd)}, {v(va)}, s[{SSTMP}:{SSTMP+1}]")
        p.put(sk)
    def pf1(self, when=1):
        if self.o.get("pf", 2) == 4 and self.o.get("pfw", 5) == when:
            self.p.vmem(f"global_load_dword {v(7)}, {v(6)}, {sp(PWIN)}")
            self.p.vmem(f"global_load_dword {v(5)}, {v(4)}, {sp(SPFP)}")
        if {3: 1, 2: self.o.get("pfw2", 2)}.get(self.o.get("pf", 2), self.o.get("pf", 2)) == when:
            p = self.p; l = p.label("pf")
            p(f"s_cmp_eq_u32 s{SPFE}, 0\ns_cbranch_scc1 {l}\nglobal_load_dword {v(5)}, {v(4)}, {sp(SPFP)}")
            p.put(l)
        if self.o.get("wfirst") == when: self.touch_wsp(11, 12, 0, 1)
    def tlb_warm(self):
        p = self.p
        ls = [p.label("tw") for _ in range(4)]
        p(f"v_lshlrev_b32 {v(6)}, 19, {v(VL)}\nv_mov_b32 {v(7)}, 0")
        p(f"s_cmp_eq_u32 s{SWV}, 1\ns_cbranch_scc1 {ls[0]}\ns_cmp_eq_u32 s{SWV}, 2\ns_cbranch_scc1 {ls[1]}\ns_cmp_eq_u32 s{SWV}, 3\ns_cbranch_scc1 {ls[2]}")
        p(f"buffer_load_dword {v(8)}, {v(6)}, {srd(SWS)}, 0 offen sc1\nglobal_load_ushort {v(9)}, {v(7)}, {sp(PGW)}\ns_branch {ls[3]}")
        p.put(ls[0]); p(f"buffer_load_dword {v(8)}, {v(6)}, {srd(SWSP)}, 0 offen\nglobal_load_ushort {v(9)}, {v(7)}, {sp(PBSP)}\nglobal_load_ushort {v(10)}, {v(7)}, {sp(PDSK)}\ns_branch {ls[3]}")
        p.put(ls[1]); p(f"buffer_load_dword {v(8)}, {v(6)}, {srd(SOUT)}, 0 offen sc1\nbuffer_load_dword {v(9)}, {v(6)}, {srd(SWOUT)}, 0 offen\ns_branch {ls[3]}")
        p.put(ls[2]); p(f"buffer_load_dword {v(8)}, {v(6)}, {srd(SCRE)}, 0 offen\nbuffer_load_dword {v(9)}, {v(6)}, {srd(SCIM)}, 0 offen")
        p.put(ls[3])
    def late_args(self):
        p = self.p
        if self.o.get("tlb", 1):
            if self.o.get("tlb", 1) == 1: self.tlb_warm()
            self.pf1(5)
            p(f"s_load_dword s{ST_T}, {sp(SWS)}, {EPOCH}")
            return
        for (r, off) in [(SWSP, 88), (SCRE, 40), (SCIM, 48), (SWOUT, 104), (SOUT, 120), (PDSK, 64), (PBSP, 96)]:
            p(f"s_load_dwordx2 {sp(r)}, s[0:1], {off}")
        p(f"s_load_dword s{ST_T}, {sp(SWS)}, {EPOCH}")
        for (r, n) in [(SWSP, 8388608), (SWS, WS_END), (SCRE, 524288), (SCIM, 524288), (SWOUT, 704512), (SOUT, 4194304)]:
            p(f"s_mov_b32 s{r+2}, {n}\ns_mov_b32 s{r+3}, 0x20000")
    def epoch2(self):
        p = self.p
        p.wait_lg_all()
        p(f"s_mul_i32 s{ST_T}, s{ST_T}, 0x9E3779B1\ns_add_u32 s{ST_T}, s{ST_T}, 0x7F4A7C15")

    def touch_wsp(self, va, vd, k, n):
        p = self.p
        if k == 0:
            p(f"s_lshr_b32 s{SB_}, s2, 3\ns_lshl_b32 s{SB_}, s{SB_}, 2\ns_add_u32 s{SB_}, s{SB_}, s{SWV}\ns_lshl_b32 s{SB_}, s{SB_}, 13")
            p(f"s_and_b32 s{SA}, s2, 7\ns_lshl_b32 s{SA}, s{SA}, 20\ns_add_u32 s87, s{SA}, s{SB_}")
            p(f"v_cmp_gt_u32 vcc, {64//n}, {v(VL)}\nv_lshlrev_b32 {v(va)}, 7, {v(VL)}\ns_nop 0\nv_cndmask_b32 {v(va)}, {v(VOOB)}, {v(va)}, vcc")
        else: p(f"s_add_u32 s87, s87, {8192//n}")
        p.vmem(f"buffer_load_dword {v(vd)}, {v(va)}, {srd(SWSP)}, s87 offen {self.o.get('tmod', '')}")
    def ctouch(self, va, vd):
        p = self.p; l = p.label("ct")
        p(f"s_lshl_b32 s{SA}, s{SWV}, 8\ns_add_u32 s{SA}, s{SA}, s2\ns_cmp_ge_u32 s{SA}, 856\ns_cbranch_scc1 {l}")
        p(f"s_cmp_lt_u32 s{SA}, 256\ns_cselect_b64 {sp(SSTMP)}, {sp(SCRE)}, {sp(SCIM)}")
        p(f"s_sub_u32 s{SB_}, s{SA}, 512\ns_and_b32 s{SSPIN}, s{SA}, 255\ns_cmp_ge_u32 s{SA}, 512\ns_cselect_b64 {sp(SSTMP)}, {sp(SWOUT)}, {sp(SSTMP)}\ns_cselect_b32 s{SA}, s{SB_}, s{SSPIN}")
        p(f"s_lshl_b32 s{SA}, s{SA}, 11\nv_and_b32 {v(vd)}, 15, {v(VL)}\nv_lshlrev_b32 {v(vd)}, 7, {v(vd)}\nv_add_u32 {v(vd)}, s{SA}, {v(vd)}")
        p(f"global_load_dword {v(vd)}, {v(vd)}, {sp(SSTMP)}")
        p.put(l)
    def paced(self, valu, va, vd, t0, dt):
        if "ct" in self.o: valu.setdefault(self.o["ct"], []).append(lambda: self.ctouch(va, vd + 1 if vd != 205 else 4))
        n = self.o.get("tn", 4)
        if self.o.get("touch", 1) != 1: return
        for k in range(n):
            valu.setdefault(t0 + k * dt, []).append(lambda k=k: self.touch_wsp(va, vd, k, n))
    def touch_c(self, va, vd):
        p = self.p
        p(f"v_lshlrev_b32 {v(va)}, 7, {v(VL)}\ns_lshr_b32 s{SB_}, s2, 3\ns_lshl_b32 s{SB_}, s{SB_}, 2\ns_add_u32 s{SB_}, s{SB_}, s{SWV}\ns_lshl_b32 s{SA}, s{SB_}, 13")
        p.vmem(f"buffer_load_dword {v(vd)}, {v(va)}, {srd(SWOUT)}, s{SA} offen")
        p.vmem(f"buffer_load_dword {v(vd)}, {v(va)}, {srd(SCRE)}, s{SA} offen")
        p.vmem(f"buffer_load_dword {v(vd)}, {v(va)}, {srd(SCIM)}, s{SA} offen")
        p(f"s_add_u32 s{SA}, s{SA}, 524288")
        p.vmem(f"buffer_load_dword {v(vd)}, {v(va)}, {srd(SWOUT)}, s{SA} offen")
    GTR, GPL = 236, 238
    def g_early(self, t):
        p = self.p
        p(f"s_lshr_b32 s{SA}, s{SWV}, 1\ns_mul_i32 s{SGL}, s{SA}, 81920")
        p(f"v_bfe_u32 {v(t)}, {v(VL)}, 4, 1\nv_xor_b32 {v(t)}, s{SA}, {v(t)}\nv_lshlrev_b32 {v(t)}, 4, {v(t)}")
        p(f"v_bfe_u32 {v(t+1)}, {v(VL)}, 2, 1\nv_lshl_add_u32 {v(t)}, {v(t+1)}, 3, {v(t)}\nv_bfe_u32 {v(t+1)}, {v(VL)}, 3, 1\nv_lshl_add_u32 {v(t)}, {v(t+1)}, 2, {v(t)}")
        p(f"v_and_b32 {v(t+1)}, 35, {v(VL)}\nv_add_lshl_u32 {v(t)}, {v(t)}, {v(t+1)}, 4\nv_add_u32 {v(self.GTR)}, s{SGL}, {v(t)}")
        p.atom(f"s_cmp_lt_u32 s{SJ}, 7\ns_cselect_b32 s{SB_}, 24, 8")
        p(f"v_and_b32 {v(t)}, 31, {v(VL)}\nv_cmp_gt_u32 vcc, s{SB_}, {v(t)}\ns_nop 1\nv_cndmask_b32 {v(self.GTR+1)}, {v(VOOB)}, {v(VL16)}, vcc")
        p(f"s_lshl_b32 s{SB_}, s{SJ}, 2\ns_add_u32 s{SB_}, s{SB_}, s{SA}\ns_lshl_b32 s{SA}, s{SKH}, 1\ns_add_u32 s{SB_}, s{SB_}, s{SA}\ns_lshl_b32 s{SB_}, s{SB_}, 4")
        p(f"s_and_b32 s{SA}, s{SWV}, 1\ns_add_u32 s{SGB}, s{SB_}, s{SA}\ns_mul_i32 s{SGB}, s{SGB}, 6144\ns_add_u32 s{SGB}, s{SGB}, {Z2N}\ns_mul_i32 s{SA}, s{SA}, 6144\ns_add_u32 s{SGL}, s{SGL}, s{SA}")
        p(f"s_lshl_b32 s{SB_}, s{SB_}, 7\ns_add_u32 s{SB_}, s{SB_}, {ZF}")
        self.poll_addr(self.GPL, [(SB_, 16)])
        p(f"s_lshr_b32 s{SA}, s{STB}, 1\ns_lshl_b32 s{SA}, s{SA}, 9\ns_add_u32 s{SA}, s{SA}, {ZF}")
        p(f"v_add_u32 {v(t)}, 16, {v(VL)}\nv_bfe_u32 {v(t)}, {v(t)}, 2, 3\nv_lshlrev_b32 {v(t)}, 13, {v(t)}\nv_and_b32 {v(t+1)}, 3, {v(VL)}\nv_lshl_add_u32 {v(t)}, {v(t+1)}, 7, {v(t)}\nv_add_u32 {v(t)}, s{SA}, {v(t)}")
        p(f"s_mov_b32 vcc_lo, 0xffff0000\ns_mov_b32 vcc_hi, 0xffff\nv_cndmask_b32 {v(self.GPL)}, {v(self.GPL)}, {v(t)}, vcc")
        p(f"s_lshr_b32 s{SA}, s{STB}, 1\ns_lshl_b32 s{SA}, s{SA}, 1\ns_and_b32 s{SB_}, s{SWV}, 1\ns_add_u32 s{SA}, s{SA}, s{SB_}\ns_lshl_b32 s{SA}, s{SA}, 1\ns_add_u32 s{SA}, s{SA}, s{SKH}")
        p(f"s_lshl_b32 s{SB_}, s{SJ}, 6\ns_add_u32 s{SZI}, s{SA}, s{SB_}")
    def g_poll_issue(self):
        self.gp = self.p.vmem(f"buffer_load_dword {v(self.GPL+1)}, {v(self.GPL)}, {srd(SWS)}, 0 offen sc1")

    def phase_z(self):
        p = self.p; o = self.o
        ACC, FA, FB, XR, WR, XD, WD, T = 16, 64, 88, 96, 100, 104, 108, 112
        p.c("==== phase A: Z ====")
        self.plain_dma_addr(XD, 1024, T)
        p(f"s_lshl_b32 s{SXB}, s{SRB}, 17\ns_lshl_b32 s{SA}, s{SWV}, 15\ns_add_u32 s{SXB}, s{SXB}, s{SA}")
        p(f"s_mul_i32 s{SREG}, s{SWV}, 40960")
        tick = {}
        def xdma(st, cb=None):
            return [((SREG, (st & 3) * 4096) if i == 0 else None, (SXB, st * 128) if i == 0 else None,
                     f"buffer_load_dwordx4 {v(XD+i)}, {srd(SX)}, s{SDO} offen offset:{i*1024} lds", cb) for i in range(4)]
        def wdma(st, cb=None):
            return [((SWL, (st & 3) * 40960) if i == 0 else None, (SW1B, st * 64 * 2752) if i == 0 else None,
                     f"buffer_load_dwordx4 {v(WD+i)}, {srd(SW1)}, s{SDO} offen offset:{i*1024} lds", cb) for i in range(3)]
        def dma(st):
            def cb(t): tick[st] = t
            return self.dseq(wdma(st) + xdma(st, cb))
        self.w_dma_addr(WD, T, 1376)
        p(f"s_mul_i32 s{SW1B}, s{SWV}, {16*2752}\ns_mul_i32 s{SA}, s{SCOL}, 176\ns_add_u32 s{SW1B}, s{SW1B}, s{SA}")
        p(f"s_mul_i32 s{SWL}, s{SWV}, 3072\ns_add_u32 s{SWL}, s{SWL}, 16384\ns_mov_b32 s{SW1+2}, {512*2752}")
        p.wait_lg_all()
        p(f"s_mov_b64 {sp(SW1)}, {sp(PWIN)}")
        npro = o.get("npro", 3)
        self.code_prefetch(170, 171)
        self.pf1()
        self.run(dma(0))
        self.late_args()
        def setup():
            self.plain_read_addr(XR, SREG, T)
            self.w_tr_addr(WR, 16384, T)
            self.p(f"v_add_u32 {v(WR+1)}, 81920, {v(WR)}")
            self.wsp_setup(T)
            self.p(f"s_add_u32 s{SPB}, s{SREG}, 32768\ns_mov_b32 s{SPB+1}, s{SREG}\ns_add_u32 s{SPB+2}, s{SREG}, 8192\ns_add_u32 s{SPB+3}, s{SREG}, 16384\ns_add_u32 s{SPB+4}, s{SREG}, 24576")
            self.valid_masks()
        d = []
        for st in range(1, npro): d += dma(st)
        self.run(merge(self.cap(setup), d))
        def prefill(u0, u1):
            if u0 == 0:
                p(f"s_lshl_b32 s{SCB}, s{SRB}, 2\ns_add_u32 s{SCB}, s{SCB}, s{SWV}\ns_mul_i32 s{SCB}, s{SCB}, 45056\ns_mul_i32 s{SA}, s{SCOL}, 5632\ns_add_u32 s{SCB}, s{SCB}, s{SA}\ns_add_u32 s{SCB}, s{SCB}, {PB}")
                for k in range(4): p(f"v_mov_b32 {v(176+k)}, -1")
            for u in range(u0, u1):
                if u == 4: p(f"s_add_u32 s{SCB}, s{SCB}, 4096")
                if u == 5: p("s_mov_b32 exec_hi, 0")
                p.vmem(f"buffer_store_dwordx4 {v(176,4)}, {v(VL16)}, {srd(SWS)}, s{SCB} offen offset:{(u%4)*1024} sc1")
                if u == 5: p("s_mov_b32 exec_hi, -1")
        self.pf1(2)
        self.epoch2()
        self.stamp(0)
        rt = {}
        def reads(n):
            st, ks = n // 4, n % 4; sl = st & 3; s = n & 1; ops = []
            def rb(): rt[(n, 'b')] = p.lds(f"ds_read_b128 {v(FB+4*s,4)}, {v(XR+ks)} offset:{sl*4096}")
            ops.append(rb)
            for mt in range(3):
                for a in range(2):
                    def ra(mt=mt, a=a):
                        rt[(n, mt)] = p.lds(f"ds_read_b64_tr_b16 {v(FA+12*s+4*mt+2*a,2)}, {v(WR+(sl>>1))} offset:{(sl&1)*40960+ks*3072+a*768+mt*64}")
                    ops.append(ra)
            return ops
        def mfmas(n):
            s = n & 1; ops = []
            for mt in range(3):
                def m(mt=mt):
                    p.wait(lg=rt[(n, mt)])
                    c = "0" if n == 0 else v(ACC + 16 * mt, 16)
                    p(f"{MF} {v(ACC+16*mt,16)}, {v(FA+12*s+4*mt,4)}, {v(FB+4*s,4)}, {c}")
                ops.append(m)
            return ops
        GX, GW, GU, GS, GT = 128, 144, 148, 156, 160
        gt = {}
        def gload():
            p(f"s_lshl_b32 s{SE}, s{SRB}, 2\ns_add_u32 s{SE}, s{SE}, s{SWV}\ns_lshl_b32 s{SE}, s{SE}, 3\ns_add_u32 s{SE}, s{SE}, s{SCOL}\ns_lshl_b32 s{SA}, s{SE}, 12")
            for r in range(4): p.vmem(f"buffer_load_dwordx4 {v(GX+4*r,4)}, {v(VL16)}, {srd(SX)}, s{SA} offen offset:{r*1024}")
            gt['t'] = p.vmem(f"global_load_dwordx4 {v(GW,4)}, {v(VL16)}, {sp(PGW)}")
        def gstore():
            p(f"s_lshl_b32 s{SA}, s{SE}, 4\ns_add_u32 s{SA}, s{SA}, {GATE}")
            p.vmem(f"buffer_store_dwordx4 {v(GS,4)}, {v(GT)}, {srd(SWS)}, s{SA} offen sc1")
        gops = [lambda: p.wait(vm=gt['t'])] + self.cap(lambda: self.gate(GX, GW, GU, GS, GT)) + [gstore]
        zm = o.get('zmode', 1)
        valu = {(28 if zm == 1 else 13): [gload]}
        def touch_u():
            p(f"v_lshlrev_b32 {v(170)}, 7, {v(VL)}\ns_lshr_b32 s{SB_}, s2, 3\ns_lshl_b32 s{SB_}, s{SB_}, 2\ns_add_u32 s{SB_}, s{SB_}, s{SWV}\ns_lshl_b32 s{SB_}, s{SB_}, 13")
            p(f"s_and_b32 s{SA}, s2, 7\ns_lshl_b32 s{SA}, s{SA}, 20\ns_add_u32 s{SA}, s{SA}, s{SB_}\ns_add_u32 s{SA}, s{SA}, {1<<19}")
            p.vmem(f"buffer_load_dword {v(171)}, {v(170)}, {srd(SWSP)}, s{SA} offen")
        def warm():
            p(f"v_lshlrev_b32 {v(170)}, 18, {v(VL)}\nv_lshlrev_b32 {v(172)}, 16, {v(VL)}\nv_lshlrev_b32 {v(173)}, 13, {v(VL)}")
            ls = [p.label("wm") for _ in range(4)]
            p(f"s_cmp_eq_u32 s{SWV}, 1\ns_cbranch_scc1 {ls[0]}\ns_cmp_eq_u32 s{SWV}, 2\ns_cbranch_scc1 {ls[1]}\ns_cmp_eq_u32 s{SWV}, 3\ns_cbranch_scc1 {ls[2]}")
            p(f"buffer_load_dword {v(171)}, {v(170)}, {srd(SWS)}, 0 offen sc1\ns_branch {ls[3]}")
            p.put(ls[0]); p(f"buffer_load_dword {v(171)}, {v(172)}, {srd(SOUT)}, 0 offen sc1\ns_branch {ls[3]}")
            p.put(ls[1]); p(f"buffer_load_dword {v(171)}, {v(173)}, {srd(SCRE)}, 0 offen\nbuffer_load_dword {v(171)}, {v(173)}, {srd(SCIM)}, 0 offen\ns_branch {ls[3]}")
            p.put(ls[2]); p(f"v_lshlrev_b32 {v(173)}, 14, {v(VL)}\nbuffer_load_dword {v(171)}, {v(173)}, {srd(SWOUT)}, 0 offen")
            p.put(ls[3])
        if o.get("warm"): valu[31] = [warm]
        def ztouch(part):
            if part == 0:
                p(f"s_lshr_b32 s{SB_}, s2, 3\ns_lshl_b32 s{SB_}, s{SB_}, 2\ns_add_u32 s{SB_}, s{SB_}, s{SWV}")
                p(f"s_and_b32 s{SA}, s2, 7\ns_lshl_b32 s{SPFP+1}, s{SB_}, 3\ns_add_u32 s{SPFP+1}, s{SPFP+1}, s{SA}")
                p(f"s_lshr_b32 s{SA}, s{SA}, 1\ns_lshl_b32 s{SA}, s{SA}, 21\ns_lshl_b32 s{SB_}, s{SB_}, 14\ns_add_u32 s{SPFP}, s{SA}, s{SB_}\ns_lshl_b32 s{SA}, s{SKH}, 11\ns_add_u32 s{SPFP}, s{SPFP}, s{SA}")
                p(f"v_lshrrev_b32 {v(173)}, 4, {v(VL)}\nv_lshlrev_b32 {v(173)}, 12, {v(173)}\nv_and_b32 {v(174)}, 15, {v(VL)}\nv_lshl_add_u32 {v(173)}, {v(174)}, 7, {v(173)}\nv_lshlrev_b32 {v(174)}, 7, {v(VL)}")
                p.vmem(f"buffer_load_dword {v(175)}, {v(173)}, {srd(SWSP)}, s{SPFP} offen")
            if part == 1:
                p(f"s_add_u32 s{SPFP}, s{SPFP}, {1<<20}")
                p.vmem(f"buffer_load_dword {v(175)}, {v(173)}, {srd(SWSP)}, s{SPFP} offen")
            if part == 2:
                l = p.label("zt")
                p(f"s_cmp_ge_u32 s{SPFP+1}, 428\ns_cbranch_scc1 {l}")
                p(f"s_cmp_lt_u32 s{SPFP+1}, 128\ns_cselect_b64 {sp(SSTMP)}, {sp(SCRE)}, {sp(SCIM)}\ns_and_b32 s{SA}, s{SPFP+1}, 127")
                p(f"s_sub_u32 s{SB_}, s{SPFP+1}, 256\ns_cmp_ge_u32 s{SPFP+1}, 256\ns_cselect_b64 {sp(SSTMP)}, {sp(SWOUT)}, {sp(SSTMP)}\ns_cselect_b32 s{SA}, s{SB_}, s{SA}")
                p(f"s_lshl_b32 s{SA}, s{SA}, 12\nv_and_b32 {v(174)}, 4095, {v(174)}\nv_add_u32 {v(174)}, s{SA}, {v(174)}")
                p(f"global_load_dword {v(175)}, {v(174)}, {sp(SSTMP)}")
                p.put(l)
        if o.get("touch", 1) == 2:
            for k in range(3): valu.setdefault(o.get(f"zs{k}", [0, 0, 0][k]), []).append(lambda k=k: ztouch(k))
        else: self.paced(valu, 174, 175, o.get("zt0", 6), o.get("zdt", 6))
        self.gemm_loop(4, reads, mfmas, dma, tick, 2, npro, {o.get('ze0', 5): lambda: self.wsp_dma(0), o.get('ze1', 6): lambda: self.wsp_dma(1)} if zm == 1 else {}, valu)
        self.stamp(1)
        MA, MB = SK + 2, SK + 4
        GR, VLO = 72, 80
        def seg1b():
            p = self.p
            S0, S1, MU = 64, 66, 68
            p(f"v_pk_add_f32 {v(S0,2)}, {v(ACC,2)}, {v(ACC+2,2)}\nv_pk_add_f32 {v(S1,2)}, {v(ACC+4,2)}, {v(ACC+6,2)}")
            for i in range(4, 16):
                s = S0 if i % 2 == 0 else S1
                p(f"v_pk_add_f32 {v(s,2)}, {v(s,2)}, {v(ACC+2*i,2)}")
            for (m, b) in [(MA, 16), (MB, 20)]:
                p(f"s_mov_b64 exec, {sp(m)}")
                for i in range(b, b + 4):
                    s = S0 if i % 2 == 0 else S1
                    p(f"v_pk_add_f32 {v(s,2)}, {v(s,2)}, {v(ACC+2*i,2)}")
            p("s_mov_b64 exec, -1")
            p(f"v_pk_add_f32 {v(S0,2)}, {v(S0,2)}, {v(S1,2)}\nv_add_f32 {v(GR)}, {v(S0)}, {v(S0+1)}")
            p(f"v_mov_b32 {v(S0)}, {v(GR)}\nv_mov_b32 {v(GR+1)}, s{ST_T}\nv_mov_b32 {v(GR+3)}, s{ST_T}\nv_permlane32_swap_b32 {v(GR)}, {v(S0)}\nv_add_f32 {v(GR)}, {v(GR)}, {v(S0)}")
            p(f"v_mul_f32 {v(MU)}, s{SK+6}, {v(GR)}")
            D0, D1 = 76, 78
            def m2(i, first=False):
                d = D0 if i % 2 == 0 else D1; s = S0 if i % 2 == 0 else S1
                p(f"v_pk_add_f32 {v(d,2)}, {v(ACC+2*i,2)}, {v(MU,2)} op_sel_hi:[1,0] neg_lo:[0,1] neg_hi:[0,1]")
                if first: p(f"v_pk_mul_f32 {v(s,2)}, {v(d,2)}, {v(d,2)}")
                else: p(f"v_pk_fma_f32 {v(s,2)}, {v(d,2)}, {v(d,2)}, {v(s,2)}")
            for i in range(16): m2(i, i < 2)
            for (m, b) in [(MA, 16), (MB, 20)]:
                p(f"s_mov_b64 exec, {sp(m)}")
                for i in range(b, b + 4): m2(i)
            p("s_mov_b64 exec, -1")
            p(f"v_pk_add_f32 {v(S0,2)}, {v(S0,2)}, {v(S1,2)}\nv_add_f32 {v(GR+2)}, {v(S0)}, {v(S0+1)}")
            p(f"v_mov_b32 {v(S0)}, {v(GR+2)}\nv_cmp_gt_u32 vcc, 32, {v(VL)}")
            p(f"s_lshl_b32 s{SC}, s{SRB}, 2\ns_add_u32 s{SC}, s{SC}, s{SWV}")
            p(f"v_permlane32_swap_b32 {v(GR+2)}, {v(S0)}\nv_cndmask_b32 {v(VLO)}, {v(VOOB)}, {v(VL16)}, vcc\nv_add_f32 {v(GR+2)}, {v(GR+2)}, {v(S0)}")
            p(f"s_lshl_b32 s{SD}, s{SC}, 12\ns_add_u32 s{SD}, s{SD}, {ST}\ns_lshl_b32 s{SA}, s{SCOL}, 9\ns_add_u32 s{SA}, s{SA}, s{SD}")
        seg1 = self.cap(lambda: self.gelu_many([ACC + 2 * i for i in range(24)], [64, 68, 72, 76]))
        h = len(seg1) // 5
        f1 = self.wsp_dma(2) + [lambda: p("s_barrier")]
        f2 = self.wsp_dma(3) + self.wsp_dma(4)
        if zm == 1: self.run(merge(seg1[:h], f1) + merge(seg1[h:], f2))
        else: self.run(seg1[:h] + [lambda: p("s_barrier")] + seg1[h:])
        seg1b()
        p.vmem(f"buffer_store_dwordx4 {v(GR,4)}, {v(VLO)}, {srd(SWS)}, s{SA} offen sc1")
        self.stamp(2)
        lgw = lambda: p.wait(lg=p.lg - 1)
        Q0, Q1, QA, QB = 112, 113, 114, 115
        MN, VR, N3, I3, TM = 80, 81, 82, 83, 84
        def misc():
            p = self.p
            self.g_early(120)
            p(f"v_lshrrev_b32 {v(Q1)}, 5, {v(VL)}\nv_lshlrev_b32 {v(Q1)}, 6, {v(Q1)}\nv_xor_b32 {v(Q0)}, {v(VL16)}, {v(Q1)}\nv_xor_b32 {v(Q1)}, 128, {v(Q0)}")
            p(f"v_add_u32 {v(Q0)}, s{SPB+4}, {v(Q0)}\nv_add_u32 {v(Q1)}, s{SPB+4}, {v(Q1)}")
            self.unit_tr_addr(124, SPB + 4, 120, False)
            p.atom(f"s_cmp_lt_u32 s{SCOL}, 7\ns_cselect_b32 s{SA}, 24, 8")
            p(f"v_and_b32 {v(QB)}, 31, {v(VL)}\nv_cmp_gt_u32 vcc, s{SA}, {v(QB)}\nv_add_u32 {v(QB)}, 4096, {v(VL16)}\nv_cndmask_b32 {v(QA)}, {v(VOOB)}, {v(QB)}, vcc")
            p(f"s_lshl_b32 s{SA}, s{SCOL}, 6\ns_add_u32 s{SC}, s{SA}, s{SC}\ns_mul_i32 s{SE}, s{SC}, 6144")
            self.flag_prep(118)
            p(f"v_cmp_gt_u32 vcc, 32, {v(VL)}\nv_mov_b32 {v(N3)}, {f2u(72.0)}\nv_mov_b32 {v(TM)}, {f2u(88.0)}\nv_mov_b32 {v(I3)}, {f2u(1/72)}\nv_mov_b32 {v(TM+1)}, {f2u(1/88)}")
            p(f"v_cndmask_b32 {v(N3)}, {v(N3)}, {v(TM)}, vcc\nv_cndmask_b32 {v(I3)}, {v(I3)}, {v(TM+1)}, vcc")
        za = o.get("za", 1)
        f = self.wsp_read(0) + self.wsp_read(1) + [lgw]
        for st in range(5, 5 + za): f += self.wsp_dma(st)
        zs = o.get('zsched', 0)
        if zm == 2: f = self.wsp_dma(0) + self.wsp_dma(1) + (self.wsp_dma(2) if zs else [])
        self.run(merge(gops + self.cap(misc), f))
        self.stamp(3)
        SG = 64
        for q in range(4):
            ts = p.vmem(f"buffer_load_dwordx4 {v(SG+4*q,4)}, {v(VL16)}, {srd(SWS)}, s{SD} offen offset:{q*1024} sc1")
        if zm == 1:
            for st in range(5 + za, 7): self.run(self.wsp_dma(st))
        else: self.run(self.wsp_dma(3) + self.wsp_read(0) if zs else self.wsp_dma(2))
        l = p.label("sp"); dl = p.label("sd")
        p.wait(vm=ts)
        p(f"s_mov_b32 s{SSPIN}, 0")
        p.put(l)
        X0 = 116
        p(f"v_xor_b32 {v(MN)}, s{ST_T}, {v(SG+1)}\nv_xor_b32 {v(VR)}, s{ST_T}, {v(SG+3)}")
        for r in [5, 9, 13]:
            p(f"v_xor_b32 {v(X0)}, s{ST_T}, {v(SG+r)}\nv_xor_b32 {v(X0+1)}, s{ST_T}, {v(SG+r+2)}\nv_or3_b32 {v(MN)}, {v(MN)}, {v(X0)}, {v(X0+1)}")
        p(f"v_or_b32 {v(MN)}, {v(MN)}, {v(VR)}")
        p(f"v_cmp_ne_u32 vcc, 0, {v(MN)}\ns_cmp_eq_u64 vcc, 0\ns_cbranch_scc1 {dl}")
        for q in range(4):
            p(f"buffer_load_dwordx4 {v(SG+4*q,4)}, {v(VL16)}, {srd(SWS)}, s{SD} offen offset:{q*1024} sc1")
        p("s_waitcnt vmcnt(0)")
        p(f"s_add_u32 s{SSPIN}, s{SSPIN}, 1\ns_cmp_lt_u32 s{SSPIN}, {SPIN}\ns_cbranch_scc1 {l}")
        p.put(dl)
        self.stamp(4)
        p(f"v_add_f32 {v(MN)}, {v(SG)}, {v(SG+4)}\nv_add_f32 {v(TM+2)}, {v(SG+8)}, {v(SG+12)}\nv_add_f32 {v(MN)}, {v(MN)}, {v(TM+2)}")
        p(f"v_mov_b32 {v(TM+3)}, {v(MN)}\nv_add_f32 {v(VR)}, {v(SG+2)}, {v(SG+6)}\nv_add_f32 {v(TM+2)}, {v(SG+10)}, {v(SG+14)}")
        p(f"v_permlane32_swap_b32 {v(MN)}, {v(TM+3)}\nv_add_f32 {v(VR)}, {v(VR)}, {v(TM+2)}\nv_add_f32 {v(MN)}, {v(MN)}, {v(TM+3)}")
        p(f"v_mul_f32 {v(MN)}, {f2u(1/688)}, {v(MN)}")
        for q in range(4):
            n_, i_ = (TM, TM + 1) if q < 3 else (N3, I3)
            p(f"v_fma_f32 {v(TM+2)}, {v(SG+4*q)}, {v(i_)}, -{v(MN)}\nv_mul_f32 {v(TM+2)}, {v(TM+2)}, {v(TM+2)}\nv_fmac_f32 {v(VR)}, {v(TM+2)}, {v(n_)}")
        self.xhalf_sum(VR, TM)
        p(f"v_mov_b32 {v(TM)}, {f2u(1e-5)}\nv_fmac_f32 {v(TM)}, {f2u(1/688)}, {v(VR)}\nv_rsq_f32 {v(VR)}, {v(TM)}")
        p(f"s_add_u32 s{SA}, s{SE}, {Z2N}\ns_add_u32 s{SB_}, s{SA}, 4096")
        p(f"v_mul_f32 {v(MN)}, {v(MN)}, {v(VR)}")
        ZP = 88
        for u in range(6):
            mt, q = u >> 1, u & 1
            R4 = range(4 * u, 4 * u + 4)
            for i in R4: p(f"v_pk_fma_f32 {v(ACC+2*i,2)}, {v(ACC+2*i,2)}, {v(MN,2)}, {v(MN,2)} op_sel:[0,1,0] op_sel_hi:[1,1,0] neg_lo:[0,0,1] neg_hi:[0,0,1]")
            for i in R4: p(f"v_cvt_pk_bf16_f32 {v(ZP+i)}, {v(ACC+2*i)}, {v(ACC+2*i+1)}")
            p.lds(f"ds_write_b128 {v(Q0+q)}, {v(ZP+4*u,4)} offset:{mt*2048+q*1024}")
        FO = [(0, 0), (0, 1), (1, 0), (1, 1), (0, 2), (1, 2)]
        zr = {}
        for fi, (ks, mt) in enumerate(FO):
            for a in range(2): zr[fi] = p.lds(f"ds_read_b64_tr_b16 {v(128+4*fi+2*a,2)}, {v(124+a)} offset:{mt*2048+ks*256}")
        p(f"s_lshl_b32 s{SE}, s{SC}, 7\ns_add_u32 s{SE}, s{SE}, {ZF}")
        for fi in range(6):
            p.wait(lg=zr[fi])
            t = p.vmem(f"buffer_store_dwordx4 {v(128+4*fi,4)}, {v(VL16 if fi < 4 else QA)}, {srd(SWS)}, s{SA} offen offset:{(fi%4)*1024} sc1")
        if zs:
            self.run(merge(self.wsp_dma(4) + (self.wsp_dma(5) if zs > 1 else []), self.wsp_read(1) + self.wsp_read(2)))
            p.wait(vm=t)
            self.flag(SE, 118)
            self.run([lgw] + ([] if zs > 1 else self.wsp_dma(5)) + self.wsp_dma(6) + self.wsp_dma(7))
            for st in range(3, 6): self.run(self.wsp_read(st))
            self.g_poll_issue()
            prefill(0, 6)
            for st in range(6, 8): self.run(self.wsp_read(st))
            p(f"s_add_u32 s{SLATE}, s{SE}, {ZF2-ZF}")
            self.stamp(5)
            p(f"s_branch {self.LG}")
            return
        self.run(merge(self.wsp_dma(3), self.wsp_read(0) + self.wsp_read(1) + self.wsp_read(2)))
        p.wait(vm=t)
        self.flag(SE, 118)
        prefill(0, 6); tpf = p.vm - 1
        self.run(self.wsp_dma(4) + [lgw] + self.wsp_dma(5) + self.wsp_dma(6))
        p.wait(vm=tpf)
        p(f"s_add_u32 s{SE}, s{SE}, {ZF2-ZF}")
        self.flag(SE, 118)
        self.run(self.wsp_dma(7))
        for st in range(3, 8): self.run(self.wsp_read(st))
        self.g_poll_issue()
        p(f"s_mov_b32 s{SLATE}, 0")
        self.stamp(5)
        p(f"s_branch {self.LG}")

    def phase_u(self):
        p = self.p; o = self.o
        ACC, ZA, FA, FB, FW, FX = 16, 80, 128, 144, 160, 184
        XR, BR, X1R, WR, XD, BD, WD, T = 192, 196, 200, 204, 206, 210, 214, 60
        p.c("==== phase A: U ====")
        p.put(self.LU)
        WT, WP = SK + 8, SK + 9
        p(f"v_lshrrev_b32 {v(T)}, 5, {v(VL)}\nv_lshlrev_b32 {v(T)}, 15, {v(T)}")
        p(f"v_bfe_u32 {v(T+1)}, {v(VL)}, 3, 1\nv_lshl_add_u32 {v(T)}, {v(T+1)}, 14, {v(T)}")
        p(f"v_bfe_u32 {v(T+1)}, {v(VL)}, 4, 1\nv_lshl_add_u32 {v(T)}, {v(T+1)}, 10, {v(T)}")
        self.plain_dma_addr2(XD, T, T + 1, 2048)
        p(f"s_lshr_b32 s{WP}, s{SWV}, 1\ns_and_b32 s{WT}, s{SWV}, 1\ns_lshl_b32 s{SA}, s{WT}, 5")
        for i in range(4): p(f"v_xor_b32 {v(XD+i)}, s{SA}, {v(XD+i)}")
        self.plain_dma_addr(BD, 1024, T)
        self.w_dma_addr(WD, T, 0)
        p(f"s_lshl_b32 s{SXB}, s{SRB}, 17\ns_lshl_b32 s{SD}, s{WP}, 16\ns_add_u32 s{SXB}, s{SXB}, s{SD}\ns_lshl_b32 s{SD}, s{WT}, 13\ns_add_u32 s{SXB}, s{SXB}, s{SD}")
        p(f"s_lshl_b32 s{SW1B}, s{SCOL}, 16\ns_lshl_b32 s{SD}, s{WT}, 15\ns_add_u32 s{SW1B}, s{SW1B}, s{SD}")
        p(f"s_lshl_b32 s{SXL}, s{SWV}, 12\ns_mov_b32 s{SW1+2}, 524288")
        SWIB = SCB
        p(f"s_mul_i32 s{SWIB}, s{SWV}, {16*2752}\ns_mul_i32 s{SA}, s{SCOL}, 176\ns_add_u32 s{SWIB}, s{SWIB}, s{SA}")
        p(f"s_mul_i32 s{SWL}, s{SWV}, 3072\ns_add_u32 s{SWL}, s{SWL}, 98304\ns_mov_b32 s{PWIN+2}, {512*2752}\ns_mov_b32 s{PWIN+3}, 0x20000")
        PR = 228
        p(f"s_lshl_b32 s{SD}, s{SRB}, 1\ns_add_u32 s{SD}, s{SD}, s{WT}")
        p(f"s_lshl_b32 s{SA}, s{SCOL}, 1\ns_add_u32 s{SA}, s{SA}, s{WP}")
        p(f"s_lshl_b32 s{SE}, s{SD}, 4\ns_add_u32 s{SE}, s{SE}, s{SA}")
        p(f"s_lshl_b32 s{SA}, s{SA}, 5\nv_and_b32 {v(T)}, 31, {v(VL)}\nv_add_lshl_u32 {v(T)}, {v(T)}, s{SA}, 1")
        p.wait_lg_all()
        p(f"s_cmp_eq_u32 s{WP}, 0\ns_cselect_b64 {sp(SW1)}, {sp(PBRE)}, {sp(PBIM)}")
        tick = {}
        def dma(st):
            sl = st % 3; items = []
            def cb(t): tick[st] = t
            for i in range(3):
                items.append(((SWL, sl * 12288) if i == 0 else None, (SWIB, st * 64 * 2752) if i == 0 else None,
                              f"buffer_load_dwordx4 {v(WD+i)}, {srd(PWIN)}, s{SDO} offen offset:{i*1024} lds", None))
            for (vd, sr, sb, lb) in [(XD, SX, SXB, 0), (BD, SW1, SW1B, 49152)]:
                for i in range(4):
                    items.append(((SXL, lb + sl * 16384) if i == 0 else None, (sb, st * 128) if i == 0 else None,
                                  f"buffer_load_dwordx4 {v(vd+i)}, {srd(sr)}, s{SDO} offen offset:{i*1024} lds", cb))
            return self.dseq(items)
        self.pf1()
        self.run(dma(0))
        p.vmem(f"global_load_ushort {v(PR)}, {v(T)}, {sp(PLRE)}")
        p.vmem(f"global_load_ushort {v(PR+1)}, {v(T)}, {sp(PLIM)}")
        tp = p.vmem(f"global_load_ushort {v(PR+2)}, {v(T)}, {sp(PLDT)}")
        npro = o.get("npro_u", 2)
        self.late_args()
        def setup():
            p = self.p
            p(f"s_mul_i32 s{SREG}, s{SWV}, 40960\ns_lshl_b32 s{SA}, s{WT}, 13")
            self.plain_read_addr(XR, SA, T)
            p(f"s_lshl_b32 s{SA}, s{WP}, 12\ns_add_u32 s{SA}, s{SA}, 49152")
            self.plain_read_addr(BR, SA, T)
            self.w_tr_addr(WR, 98304, T)
            p(f"v_bfe_u32 {v(T)}, {v(VL)}, 3, 1\nv_lshlrev_b32 {v(T+1)}, 12, {v(T)}\nv_xor_b32 {v(T)}, s{WT}, {v(T)}\nv_lshlrev_b32 {v(T)}, 1, {v(T)}")
            p(f"v_bfe_u32 {v(T+2)}, {v(VL)}, 1, 2\nv_lshl_add_u32 {v(T+1)}, {v(T+2)}, 10, {v(T+1)}")
            p(f"v_and_b32 {v(T+2)}, 1, {v(T+2)}\nv_lshl_add_u32 {v(T)}, {v(T+2)}, 2, {v(T)}")
            p(f"v_and_b32 {v(T+2)}, 1, {v(VL)}\nv_lshl_add_u32 {v(T+1)}, {v(T+2)}, 8, {v(T+1)}\nv_or_b32 {v(T)}, {v(T)}, {v(T+2)}")
            p(f"v_bfe_u32 {v(T+2)}, {v(VL)}, 4, 1\nv_lshl_add_u32 {v(T+1)}, {v(T+2)}, 7, {v(T+1)}")
            p(f"s_lshl_b32 s{SA}, s{WP}, 13\ns_lshl_b32 s{SB_}, s{WT}, 9\ns_add_u32 s{SA}, s{SA}, s{SB_}\nv_add_u32 {v(T+1)}, s{SA}, {v(T+1)}")
            p(f"v_lshrrev_b32 {v(T+2)}, 5, {v(VL)}\nv_xor_b32 {v(T)}, {v(T)}, {v(T+2)}\nv_lshlrev_b32 {v(T)}, 4, {v(T)}")
            for ks in range(4): p(f"v_xor_b32 {v(X1R+ks)}, {32*ks}, {v(T)}\nv_add_u32 {v(X1R+ks)}, {v(X1R+ks)}, {v(T+1)}")
            self.wsp_setup(T)
            p(f"s_lshl_b32 s{SPB+1}, s{WT}, 13\ns_mul_i32 s{SA}, s{WP}, 49152\ns_add_u32 s{SPB+1}, s{SPB+1}, s{SA}\ns_add_u32 s{SPB}, s{SPB+1}, 32768\ns_add_u32 s{SPB+2}, s{SPB+1}, 16384")
            p(f"s_lshl_b32 s{SA}, s{SWV}, 13\ns_add_u32 s{SPB+3}, s{SA}, {13*8192}\ns_add_u32 s{SPB+4}, s{SA}, {17*8192}")
            p.atom(f"s_cmp_eq_u32 s{SWV}, 3\ns_cselect_b32 s{SPB+4}, {12*8192}, s{SPB+4}")
            self.valid_masks()
        self.run(merge(self.cap(setup), (dma(1) if npro > 1 else []) + (dma(2) if npro > 2 else [])))
        LB, CF, L16, L128, L256, LQ0, LQ1 = 218, 220, 222, 224, 226, 228, 230
        X0, X1, X2, X3 = 232, 233, 234, 235
        L32, L64 = 236, 238
        def csq(d, s):
            p = self.p
            p(f"v_mul_f32 {v(X0)}, {v(s+1)}, {v(s+1)}\nv_add_f32 {v(X1)}, {v(s)}, {v(s)}")
            p(f"v_mul_f32 {v(d+1)}, {v(X1)}, {v(s+1)}\nv_fma_f32 {v(d)}, {v(s)}, {v(s)}, -{v(X0)}")
        def cmul(d, a, b):
            p = self.p
            p(f"v_mul_f32 {v(X0)}, {v(a+1)}, {v(b+1)}\nv_mul_f32 {v(X1)}, {v(a+1)}, {v(b)}")
            p(f"v_fma_f32 {v(X0)}, {v(a)}, {v(b)}, -{v(X0)}\nv_fma_f32 {v(d+1)}, {v(a)}, {v(b+1)}, {v(X1)}\nv_mov_b32 {v(d)}, {v(X0)}")
        def cfma(d, a, b, c):
            p = self.p
            p(f"v_fma_f32 {v(X0)}, {v(a)}, {v(b)}, {v(c)}\nv_fma_f32 {v(X1)}, {v(a)}, {v(b+1)}, {v(c+1)}")
            p(f"v_fma_f32 {v(X0)}, -{v(a+1)}, {v(b+1)}, {v(X0)}\nv_fma_f32 {v(d+1)}, {v(a+1)}, {v(b)}, {v(X1)}\nv_mov_b32 {v(d)}, {v(X0)}")
        def params():
            p = self.p
            p(f"v_lshlrev_b32 {v(PR)}, 16, {v(PR)}\nv_lshlrev_b32 {v(PR+1)}, 16, {v(PR+1)}\nv_lshlrev_b32 {v(PR+2)}, 16, {v(PR+2)}")
            p(f"v_mul_f32 {v(X0)}, {f2u(LOG2E)}, {v(PR+2)}\nv_exp_f32 {v(X0)}, {v(X0)}"); self.rnd(X0, X0)
            p(f"v_mul_f32 {v(X1)}, {v(X0)}, {v(PR)}\nv_mul_f32 {v(X2)}, {v(X0)}, {v(PR+1)}")
            p(f"v_mul_f32 {v(X1)}, {f2u(LOG2E)}, {v(X1)}\nv_exp_f32 {v(X1)}, {v(X1)}")
            p(f"v_mul_f32 {v(X2)}, {f2u(1/(2*math.pi))}, {v(X2)}\nv_fract_f32 {v(X2)}, {v(X2)}")
            p(f"v_cos_f32 {v(X3)}, {v(X2)}\nv_sin_f32 {v(X2)}, {v(X2)}")
            p(f"v_mul_f32 {v(X0)}, {v(PR)}, {v(PR)}")
            p(f"v_mul_f32 {v(LB)}, {v(X1)}, {v(X3)}\nv_mul_f32 {v(LB+1)}, {v(X1)}, {v(X2)}")
            p(f"v_fmac_f32 {v(X0)}, {v(PR+1)}, {v(PR+1)}\nv_rcp_f32 {v(X0)}, {v(X0)}")
            p(f"v_add_f32 {v(X1)}, -1.0, {v(LB)}\nv_add_f32 {v(X0)}, {v(X0)}, {v(X0)}")
            p(f"v_mul_f32 {v(X2)}, {v(X1)}, {v(PR)}\nv_fmac_f32 {v(X2)}, {v(LB+1)}, {v(PR+1)}\nv_mul_f32 {v(CF)}, {v(X2)}, {v(X0)}")
            p(f"v_mul_f32 {v(X2)}, {v(LB+1)}, {v(PR)}\nv_fma_f32 {v(X2)}, -{v(X1)}, {v(PR+1)}, {v(X2)}\nv_mul_f32 {v(CF+1)}, {v(X2)}, {v(X0)}")
            csq(L16, LB); csq(L16, L16); csq(L16, L16); csq(L16, L16)
            csq(L32, L16); csq(L64, L32); csq(L128, L64); csq(L256, L128)
            p.atom(f"s_cmp_eq_u32 s{WT}, 0\ns_cselect_b64 vcc, -1, 0")
            p(f"v_cndmask_b32 {v(L64)}, {v(L64)}, 1.0, vcc\nv_cndmask_b32 {v(L64+1)}, {v(L64+1)}, 0, vcc")
            p(f"v_cmp_gt_u32 vcc, 32, {v(VL)}\nv_cndmask_b32 {v(LQ0)}, {v(L32)}, 1.0, vcc\nv_cndmask_b32 {v(LQ0+1)}, {v(L32+1)}, 0, vcc")
            cmul(LQ0, LQ0, L64); cmul(LQ1, LQ0, L16)
        self.pf1(2)
        self.epoch2()
        self.stamp(0)
        pops = [lambda: p.wait(vm=tp)] + self.cap(params)
        valu = {}
        q = (len(pops) + 15) // 16
        for i in range(16): valu[8 + i] = pops[i * q:(i + 1) * q]
        self.paced(valu, 217, 205, o.get("ut0", 4), o.get("udt", 4))
        rt = {}
        def reads(n):
            st, ks = n // 4, n % 4; sl = st % 3; s = n & 1; ops = []
            for k in range(2):
                def ra(k=k): rt[(n, 'a', k)] = p.lds(f"ds_read_b128 {v(FA+8*s+4*k,4)}, {v(XR+(ks^k))} offset:{sl*16384+k*4096}")
                def rb(k=k): rt[(n, 'b', k)] = p.lds(f"ds_read_b128 {v(FB+8*s+4*k,4)}, {v(BR+ks)} offset:{sl*16384+k*8192}")
                ops += [ra, rb]
            def rx(): p.lds(f"ds_read_b128 {v(FX+4*s,4)}, {v(X1R+ks)} offset:{sl*16384}")
            ops.append(rx)
            for mt in range(3):
                for a in range(2):
                    def rw(mt=mt, a=a):
                        rt[(n, 'w', mt)] = p.lds(f"ds_read_b64_tr_b16 {v(FW+12*s+4*mt+2*a,2)}, {v(WR)} offset:{sl*12288+ks*3072+a*768+mt*64}")
                    ops.append(rw)
            return ops
        def mfmas(n):
            s = n & 1; ops = []
            for (mt, cp) in [(0, 0), (1, 0), (1, 1), (0, 1)]:
                def m(mt=mt, cp=cp):
                    if (mt, cp) == (0, 0): p.wait(lg=rt[(n, 'b', 1)])
                    d = v(ACC + 32 * mt + 16 * cp, 16)
                    p(f"{MF} {d}, {v(FA+8*s+4*mt,4)}, {v(FB+8*s+4*cp,4)}, {'0' if n == 0 else d}")
                ops.append(m)
            for mt in range(3):
                def m(mt=mt):
                    if mt == 0: p.wait(lg=rt[(n, 'w', 2)])
                    d = v(ZA + 16 * mt, 16)
                    p(f"{MF} {d}, {v(FW+12*s+4*mt,4)}, {v(FX+4*s,4)}, {'0' if n == 0 else d}")
                ops.append(m)
            return ops
        self.gemm_loop(3, reads, mfmas, dma, tick, 5, npro, {6: lambda: self.wsp_dma(0), 7: lambda: self.wsp_dma(1)}, valu)
        self.stamp(1)
        def U(sg, cp): return ACC + 32 * (sg >> 3) + 16 * cp + 4 * ((sg & 7) >> 1) + 2 * (sg & 1)
        def step(hr, hi, sg, nr, ni, t0, t1):
            p = self.p; A = v(LB, 2)
            p(f"v_pk_fma_f32 {v(t0,2)}, {A}, {v(hr,2)}, {v(U(sg,0),2)} op_sel_hi:[0,1,1]")
            p(f"v_pk_fma_f32 {v(t1,2)}, {A}, {v(hi,2)}, {v(U(sg,1),2)} op_sel_hi:[0,1,1]")
            p(f"v_pk_fma_f32 {v(nr,2)}, {A}, {v(hi,2)}, {v(t0,2)} op_sel:[1,0,0] op_sel_hi:[1,1,1] neg_lo:[1,0,0] neg_hi:[1,0,0]")
            p(f"v_pk_fma_f32 {v(ni,2)}, {A}, {v(hr,2)}, {v(t1,2)} op_sel:[1,0,0] op_sel_hi:[1,1,1]")
        HA, HBb, T0, EX, E8, AD, GR, CQ = 128, 132, 136, 140, 144, 160, 164, 168
        SCR = 98304
        p(f"s_lshl_b32 s{SA}, s{WP}, 11\ns_add_u32 s{SA}, s{SA}, {SCR}")
        p(f"v_and_b32 {v(AD)}, 31, {v(VL)}\nv_lshlrev_b32 {v(AD)}, 6, {v(AD)}\nv_add_u32 {v(AD)}, s{SA}, {v(AD)}")
        p(f"v_lshrrev_b32 {v(AD+1)}, 5, {v(VL)}\nv_lshl_add_u32 {v(AD+1)}, {v(AD+1)}, 4, {v(AD)}\ns_lshl_b32 s{SA}, s{WT}, 5\nv_add_u32 {v(AD+1)}, s{SA}, {v(AD+1)}")
        Z1P = 192
        SZ0, SZ1 = SXL, SWL
        VA_ = 176
        MA, MB = SK + 2, SK + 4
        def z1st(u):
            mt, q = u >> 1, u & 1
            for i in range(4): p(f"v_cvt_pk_bf16_f32 {v(Z1P+4*u+i)}, {v(ZA+8*u+2*i)}, {v(ZA+8*u+2*i+1)}")
            r = v(Z1P + 4 * u, 4)
            if mt < 2: p.vmem(f"buffer_store_dwordx4 {r}, {v(VL16)}, {srd(SWS)}, s{SZ0} offen offset:{mt*2048+q*1024} sc1")
            else: p.vmem(f"buffer_store_dwordx4 {r}, {v(VA_+q)}, {srd(SWS)}, s{SZ1} offen offset:{q*1024} sc1")
        p(f"s_lshl_b32 s{SA}, s{SCOL}, 6\ns_lshl_b32 s{SB_}, s{SRB}, 2\ns_add_u32 s{SA}, s{SA}, s{SB_}\ns_add_u32 s{SA}, s{SA}, s{SWV}\ns_mul_i32 s{SA}, s{SA}, 5632")
        p(f"s_add_u32 s{SZ0}, s{SA}, {Z1}\ns_add_u32 s{SZ1}, s{SZ0}, 4096")
        p(f"v_cndmask_b32 {v(VA_)}, {v(VOOB)}, {v(VL16)}, {sp(MA)}\nv_cndmask_b32 {v(VA_+1)}, {v(VOOB)}, {v(VL16)}, {sp(MB)}")
        zs = [(lambda u=u: z1st(u)) for u in range(6)]
        self.run(zs[:2])
        p("s_barrier")
        def pass1():
            hr, hi = U(0, 0), U(0, 1)
            for sg in range(1, 16):
                nr, ni = (HA, HA + 2) if sg & 1 else (HBb, HBb + 2)
                step(hr, hi, sg, nr, ni, T0, T0 + 2)
                hr, hi = nr, ni
            self.p(f"v_mov_b32 {v(EX)}, {v(hr)}\nv_mov_b32 {v(EX+1)}, {v(hi)}\nv_mov_b32 {v(EX+2)}, {v(hr+1)}\nv_mov_b32 {v(EX+3)}, {v(hi+1)}")
        d2 = self.wsp_dma(2) + self.wsp_dma(3)
        self.run(merge(merge(self.cap(pass1), zs[2:]), d2[:7]))
        p.lds(f"ds_write_b128 {v(AD+1)}, {v(EX,4)}")
        p.wait_lg_all(); p("s_barrier")
        for i in range(4): p.lds(f"ds_read_b128 {v(E8+4*i,4)}, {v(AD)} offset:{16*i}")
        te = p.lg - 1
        self.run(d2[7:11])
        p(f"s_cmp_eq_u32 s{WT}, 0\ns_cselect_b32 s{SA}, 32, 0")
        p(f"v_cmp_gt_u32 vcc, s{SA}, {v(VL)}\nv_mov_b32 {v(GR+1)}, s{ST_T}\nv_mov_b32 {v(GR+3)}, s{ST_T}\nv_cndmask_b32 {v(T0)}, {v(VOOB)}, {v(VL16)}, vcc")
        p(f"s_lshl_b32 s{SC}, s{SCOL}, 14\ns_lshl_b32 s{SA}, s{WP}, 9\ns_add_u32 s{SC}, s{SC}, s{SA}\ns_add_u32 s{SC}, s{SC}, {EG}")
        p(f"s_lshl_b32 s{SA}, s{SRB}, 10\ns_add_u32 s{SA}, s{SA}, s{SC}")
        p.wait(lg=te); p("s_barrier")
        self.run(merge(self.cap(lambda: [cfma(E8 + 2 * q, L16, E8 + 2 * (q - 1), E8 + 2 * q) for q in range(1, 8)]), d2[11:15]))
        p(f"v_mov_b32 {v(GR)}, {v(E8+14)}\nv_mov_b32 {v(GR+2)}, {v(E8+15)}")
        p.vmem(f"buffer_store_dwordx4 {v(GR,4)}, {v(T0)}, {srd(SWS)}, s{SA} offen sc1")
        self.run(d2[15:])
        self.stamp(2)
        p(f"v_cmp_gt_u32 vcc, 32, {v(VL)}")
        w1 = p.label("w1"); w2 = p.label("w2")
        p(f"s_cmp_eq_u32 s{WT}, 0\ns_cbranch_scc0 {w1}")
        p(f"v_cndmask_b32 {v(CQ)}, {v(E8+2)}, 0, vcc\nv_cndmask_b32 {v(CQ+1)}, {v(E8+3)}, 0, vcc")
        p(f"v_cndmask_b32 {v(CQ+2)}, {v(E8+4)}, {v(E8)}, vcc\nv_cndmask_b32 {v(CQ+3)}, {v(E8+5)}, {v(E8+1)}, vcc")
        p(f"s_branch {w2}")
        p.put(w1)
        for k in range(4): p(f"v_cndmask_b32 {v(CQ+k)}, {v(E8+10+k)}, {v(E8+6+k)}, vcc")
        p.put(w2)
        Z1P = 192
        EGR, EO, EXP, ET = 80, 144, 152, 160
        def eo():
            p = self.p
            p(f"v_lshrrev_b32 {v(ET)}, 5, {v(VL)}\nv_sub_u32 {v(ET)}, s{SRB}, {v(ET)}\nv_add_u32 {v(ET)}, -1, {v(ET)}")
            p(f"v_and_b32 {v(ET+1)}, 31, {v(VL)}\nv_lshlrev_b32 {v(ET+1)}, 4, {v(ET+1)}\nv_mov_b32 {v(ET+3)}, s{ST_T}")
            for q in range(8):
                p(f"v_add_u32 {v(ET+2)}, {-2*q}, {v(ET)}\nv_cmp_le_i32 vcc, 0, {v(ET+2)}\nv_lshl_add_u32 {v(ET+2)}, {v(ET+2)}, 10, {v(ET+1)}")
                p(f"v_cndmask_b32 {v(EO+q)}, {v(VOOB)}, {v(ET+2)}, vcc\nv_cndmask_b32 {v(EXP+q)}, 0, {v(ET+3)}, vcc")
        lgw = lambda: p.wait(lg=p.lg - 1)
        self.run(merge(self.cap(lambda: (eo(), self.g_early(184))), self.wsp_dma(4) + self.wsp_read(0) + self.wsp_read(1)))
        et = {}
        def eload(q):
            et['t'] = p.vmem(f"buffer_load_dwordx4 {v(EGR+4*q,4)}, {v(EO+q)}, {srd(SWS)}, s{SC} offen sc1")
        for q in range(8): eload(q)
        self.run([lgw] + self.wsp_dma(5))
        self.stamp(3)
        l = p.label("ep"); dl = p.label("ed")
        p.wait(vm=et['t'])
        p(f"s_mov_b32 s{SSPIN}, 0")
        p.put(l)
        p(f"v_mov_b32 {v(ET)}, 0")
        for q in range(8):
            p(f"v_xor_b32 {v(ET+1)}, {v(EXP+q)}, {v(EGR+4*q+1)}\nv_xor_b32 {v(ET+2)}, {v(EXP+q)}, {v(EGR+4*q+3)}\nv_or3_b32 {v(ET)}, {v(ET)}, {v(ET+1)}, {v(ET+2)}")
        p(f"v_cmp_ne_u32 vcc, 0, {v(ET)}\ns_cmp_eq_u64 vcc, 0\ns_cbranch_scc1 {dl}")
        for q in range(8): p(f"buffer_load_dwordx4 {v(EGR+4*q,4)}, {v(EO+q)}, {srd(SWS)}, s{SC} offen sc1")
        p("s_waitcnt vmcnt(0)")
        p(f"s_add_u32 s{SSPIN}, s{SSPIN}, 1\ns_cmp_lt_u32 s{SSPIN}, {SPIN}\ns_cbranch_scc1 {l}")
        p.put(dl)
        self.flag_prep(178)
        p(f"s_lshl_b32 s{SA}, s{SCOL}, 6\ns_lshl_b32 s{SB_}, s{SRB}, 2\ns_add_u32 s{SA}, s{SA}, s{SB_}\ns_add_u32 s{SA}, s{SA}, s{SWV}\ns_lshl_b32 s{SA}, s{SA}, 7\ns_add_u32 s{SA}, s{SA}, {Z1F}")
        self.flag(SA, 178)
        self.stamp(4)
        OP, OT, HO = 80, 144, 132
        MA, MB = SK + 2, SK + 4
        SH0, SH1 = SXB, SW1B
        def pass2a():
            p = self.p
            p(f"s_lshl_b32 s{SA}, s{SD}, 3\ns_add_u32 s{SA}, s{SA}, s{SCOL}\ns_lshl_b32 s{SA}, s{SA}, 14\ns_lshl_b32 s{SB_}, s{WP}, 12\ns_add_u32 s{SA}, s{SA}, s{SB_}")
            p(f"s_add_u32 s{SH0}, s{SA}, {HB}\ns_add_u32 s{SH1}, s{SH0}, 8192")
            p(f"v_lshrrev_b32 {v(T0)}, 5, {v(VL)}\nv_lshlrev_b32 {v(T0)}, 11, {v(T0)}\nv_and_b32 {v(T0+1)}, 31, {v(VL)}\nv_lshl_add_u32 {v(HO)}, {v(T0+1)}, 4, {v(T0)}")
            for k in range(1, 4): p(f"v_xor_b32 {v(HO+k)}, {64*k}, {v(HO)}")
            for q in range(8): p(f"v_mov_b32 {v(EGR+4*q+1)}, {v(EGR+4*q+2)}")
            S = EGR + 28
            for q in range(6, -1, -1): cfma(S, L256, S, EGR + 4 * q)
            p(f"v_mov_b32 {v(ET)}, {v(S)}\nv_mov_b32 {v(ET+1)}, {v(S+1)}\nv_permlane32_swap_b32 {v(S)}, {v(ET)}\nv_permlane32_swap_b32 {v(S+1)}, {v(ET+1)}")
            cfma(S, L128, ET, S)
            cfma(CQ, LQ0, S, CQ); cfma(CQ + 2, LQ1, S, CQ + 2)
            p(f"v_mov_b32 {v(HA)}, {v(CQ)}\nv_mov_b32 {v(HA+1)}, {v(CQ+2)}\nv_mov_b32 {v(HA+2)}, {v(CQ+1)}\nv_mov_b32 {v(HA+3)}, {v(CQ+3)}")
        def pass2(s0, s1):
            p = self.p
            Cc = v(CF, 2)
            for sg in range(s0, s1):
                hr, hi = (HA, HA + 2) if sg == 0 else (U(sg - 1, 0), U(sg - 1, 1))
                step(hr, hi, sg, U(sg, 0), U(sg, 1), T0, T0 + 2)
                hr, hi = U(sg, 0), U(sg, 1)
                oo = OT + 4 * (sg & 1) + 8 * ((sg >> 1) & 1)
                p(f"v_pk_mul_f32 {v(oo,2)}, {Cc}, {v(hr,2)} op_sel_hi:[0,1]")
                p(f"v_pk_mul_f32 {v(oo+2,2)}, {Cc}, {v(hi,2)} op_sel_hi:[0,1] neg_lo:[1,0] neg_hi:[1,0]")
                p(f"v_pk_fma_f32 {v(oo,2)}, {Cc}, {v(hi,2)}, {v(oo,2)} op_sel:[1,0,0] op_sel_hi:[1,1,1] neg_lo:[1,0,0] neg_hi:[1,0,0]")
                p(f"v_pk_fma_f32 {v(oo+2,2)}, {Cc}, {v(hr,2)}, {v(oo+2,2)} op_sel:[1,0,0] op_sel_hi:[1,1,1] neg_lo:[1,0,0] neg_hi:[1,0,0]")
                if sg & 1:
                    q, i = sg >> 3, (sg & 7) >> 1
                    for cp in range(2):
                        for e in range(2):
                            p(f"v_cvt_pk_bf16_f32 {v(OP+16*cp+8*e+4*q+i)}, {v(oo-4+2*cp+e)}, {v(oo+2*cp+e)}")
        def hst(cp, k):
            if o.get("x_nost"): return
            p.vmem(f"buffer_store_dwordx4 {v(OP+16*cp+4*k,4)}, {v(HO+k)}, {srd(SWS)}, s{SH0 if cp == 0 else SH1} offen offset:{512*k} sc1")
        self.run(merge(self.cap(pass2a), self.wsp_dma(6) + self.wsp_read(2) + [lgw]))
        self.run(merge(self.cap(lambda: pass2(0, 8)), self.wsp_dma(7) + self.wsp_read(3)))
        self.g_poll_issue()
        self.run(merge(merge(self.cap(lambda: pass2(8, 16)), [(lambda cp=cp, k=k: hst(cp, k)) for k in (0, 2) for cp in range(2)]), self.wsp_read(4) + self.wsp_read(5)))
        h2 = [(lambda cp=cp, k=k: hst(cp, k)) for k in (1, 3) for cp in range(2)]
        self.run(merge(self.wsp_read(6) + self.wsp_read(7), h2))
        p(f"s_lshl_b32 s{SLATE}, s{SE}, 7\ns_add_u32 s{SLATE}, s{SLATE}, {HF}")
        self.stamp(5)

    CD, CR, HT, GY, WD, WT_ = 210, 214, 218, 240, 244, 228
    ZUP = [4, 6, 8, 10, 12, 14, 204, 206, 208, 248, 250, 252]
    YSL = [1, 1, 0, 1]
    YB = [96, 160, 96, 160]
    def wo_dma(self, parts):
        items = []
        for (i0, i1, base) in parts:
            for i in range(i0, i1):
                def cb(t, i=i): self.wo[i] = t
                k = i - i0
                items.append(((SREG, base + k * 1024) if k % 4 == 0 else None, (SXB, i * 8192) if k % 4 == 0 else None,
                              f"buffer_load_dwordx4 {v(self.WD+k%4)}, {srd(SWOUT)}, s{SDO} offen offset:{(k%4)*1024} lds", cb))
        return self.dseq(items)
    def c_setup(self):
        p = self.p
        self.plain_dma_addr(self.CD, 1024, 224)
        p(f"s_add_u32 s{SA}, s{SREG}, 4096")
        self.plain_read_addr(self.CR, SA, 224)
        p(f"s_add_u32 s{SA}, s{SREG}, {4096+8192}")
        self.unit_tr_addr(self.HT, SA, 224, False)
        p(f"s_lshl_b32 s{SCB}, s{SCOL}, 16\ns_lshl_b32 s{SA}, s{SWV}, 8\ns_add_u32 s{SCB}, s{SCB}, s{SA}")
        p(f"s_lshl_b32 s{SHB}, s{STB}, 17\ns_lshl_b32 s{SA}, s{SWV}, 15\ns_add_u32 s{SHB}, s{SHB}, s{SA}\ns_add_u32 s{SHB}, s{SHB}, {HB}")
        self.yt = {}
    def y_items(self, s):
        sl = self.YSL[s]; items = []
        def cb(t): self.yt[s] = t
        for hh in range(2):
            for i in range(4):
                items.append(((SREG, 4096 + sl * 20480 + hh * 4096), (SCB, (s >> 1) * 128 + hh * 32768),
                              f"buffer_load_dwordx4 {v(self.CD+i)}, {srd(SCIM if s & 1 else SCRE)}, s{SDO} offen offset:{i*1024} lds", cb))
        for hh in range(2):
            for i in range(4):
                items.append(((SREG, 4096 + sl * 20480 + 8192 + hh * 4096), (SHB, s * 8192 + hh * 4096),
                              f"buffer_load_dwordx4 {v(VL16)}, {srd(SWS)}, s{SDO} offen offset:{i*1024} sc1 lds", cb))
        return items
    def y_dma(self, s): return self.dseq(self.y_items(s))
    def y_read(self, s):
        p = self.p; sl = self.YSL[s]; ops = []
        self.yr = getattr(self, "yr", {})
        for ks in range(4):
            def f(ks=ks):
                p.wait(vm=self.yt[s], lg=p.lg - 10)
                b = self.YB[s] + 16 * ks
                for k in range(2):
                    p.lds(f"ds_read_b128 {ar(b+4*k,4)}, {v(self.CR+ks)} offset:{sl*20480+k*4096}")
                    for a in range(2):
                        self.yr[(s, ks)] = p.lds(f"ds_read_b64_tr_b16 {ar(b+8+4*k+2*a,2)}, {v(self.HT+a)} offset:{sl*20480+(ks>>1)*4096+k*2048+(ks&1)*256}")
            ops.append(f)
        return ops
    def phase_g(self):
        p = self.p; o = self.o
        p.c("==== phase B: G ====")
        p.put(self.LG)
        p.vm_done = -1; p.lg_done = -1
        ACC, FA, TR, T = 16, 112, self.GTR, 186
        Z1R, BI, PV, WD, PL, PL2, PL3, OGV = 190, 202, 203, self.WD, self.GPL, 222, 234, 241
        Q = SK + 9
        AOFF = 24576
        lgw = lambda: p.wait(lg=p.lg - 1)
        p(f"s_mov_b32 s{SCOL}, s{SJ}")
        def late_setup():
            p = self.p
            p(f"s_lshl_b32 s{SE}, s{STB}, 11\ns_add_u32 s{SE}, s{SE}, {HF}")
            p(f"s_lshl_b32 s{SA}, s{SZI}, 7\ns_add_u32 s{SA}, s{SA}, {Z1F}")
            self.poll_addr(PL3, [(SE, 16), (SA, 1)])
            p(f"s_lshr_b32 s{SA}, s{STB}, 1\ns_lshl_b32 s{SA}, s{SA}, 9\ns_add_u32 s{SA}, s{SA}, {ZF2}")
            p(f"v_bfe_u32 {v(T)}, {v(VL)}, 2, 3\nv_lshlrev_b32 {v(T)}, 13, {v(T)}\nv_and_b32 {v(T+1)}, 3, {v(VL)}\nv_lshl_add_u32 {v(T)}, {v(T+1)}, 7, {v(T)}\nv_add_u32 {v(T)}, s{SA}, {v(T)}")
            p(f"s_mov_b32 vcc_lo, 0\ns_mov_b32 vcc_hi, -1\nv_cndmask_b32 {v(PL3)}, {v(PL3)}, {v(T)}, vcc")
            self.flag_prep(220)
            p(f"v_lshrrev_b32 {v(T)}, 3, {v(VL)}\nv_lshlrev_b32 {v(T)}, 10, {v(T)}")
            p(f"v_bfe_u32 {v(T+1)}, {v(VL)}, 4, 1\nv_lshlrev_b32 {v(T+1)}, 2, {v(T+1)}\nv_and_b32 {v(T+2)}, 7, {v(VL)}\nv_xor_b32 {v(T+1)}, {v(T+1)}, {v(T+2)}")
            p(f"v_lshl_add_u32 {v(WD)}, {v(T+1)}, 4, {v(T)}")
            for i in range(1, 4): p(f"v_add_u32 {v(WD+i)}, {i*7168}, {v(WD)}")
            p(f"s_mul_i32 s{SXB}, s{SWV}, {176*1024}\ns_lshl_b32 s{SA}, s{SCOL}, 7\ns_add_u32 s{SXB}, s{SXB}, s{SA}")
            self.panel_tr_addr(self.WT_, SREG, 224, False)
        p(f"s_lshr_b32 s{Q}, s{SWV}, 1\ns_and_b32 s{SC}, s{SZI}, 63")
        p.atom(f"s_cmp_lt_u32 s{SCOL}, 7\ns_cselect_b32 s{SD}, 64, 32")
        p(f"s_lshl_b32 s{SF}, s{Q}, 5\ns_sub_u32 s{SD}, s{SD}, s{SF}")
        p(f"v_cmp_gt_u32 vcc, s{SD}, {v(VL)}\nv_and_b32 {v(T)}, 31, {v(VL)}\ns_lshl_b32 s{SA}, s{SC}, 5\nv_cndmask_b32 {v(PV)}, {v(VOOB)}, {v(VL16)}, vcc")
        p(f"v_add_lshl_u32 {v(T)}, {v(T)}, s{SA}, 1")
        p.vmem(f"global_load_ushort {v(BI)}, {v(T)}, {sp(PBSP)}")
        p(f"s_mul_i32 s{SD}, s{SZI}, 5632\ns_lshl_b32 s{SB_}, s{Q}, 10\ns_add_u32 s{SD}, s{SD}, s{SB_}\ns_add_u32 s{SD}, s{SD}, {Z1}\ns_add_u32 s{SE}, s{SD}, 4096")
        p(f"v_and_b32 {v(PL2)}, 31, {v(VL)}\nv_lshlrev_b32 {v(PL2)}, 2, {v(PL2)}")
        p.wait_lg_all()
        self.stamp(6)
        l = p.label("gp"); dn = p.label("gd")
        p("s_waitcnt vmcnt(9)")
        p(f"s_cmp_ge_u32 s2, 128\ns_cbranch_scc1 {l}\ns_waitcnt vmcnt({7 if o.get('zsched', 0) else 0})")
        p.put(l)
        p(f"v_cmp_ne_u32 vcc, s{ST_T}, {v(PL+1)}\ns_and_b32 vcc_hi, vcc_hi, 0xffff\ns_or_b32 s{SF}, vcc_lo, vcc_hi\ns_cbranch_scc0 {dn}")
        self.poll(PL, 48)
        p.put(dn)
        p("s_barrier")
        g0 = p.vm
        def late_flag():
            nf = p.label("nf")
            p(f"s_cmp_eq_u32 s{SLATE}, 0\ns_cbranch_scc1 {nf}")
            p(f"s_waitcnt vmcnt({p.vm - g0})")
            p(f"buffer_store_dword {v(220)}, {v(221)}, {srd(SWS)}, s{SLATE} offen sc1")
            p.put(nf)
        p.vm_done = -1
        self.stamp(7)
        def soff(B): return ((B & 3) >> 1) * 40960 + (B & 1) * 12288
        tick = {}
        def dma(B):
            items = []
            for i in range(6):
                def cb(t): tick[B] = t
                g = i // 4
                txt = f"buffer_load_dwordx4 {v(VL16 if i < 4 else TR + 1)}, {srd(SWS)}, s{SDO} offen offset:{(i%4)*1024} sc1 lds"
                items.append(((SGL, soff(B) + g * 4096) if i % 4 == 0 else None, (SGB, B * 12288 + g * 4096) if i % 4 == 0 else None, txt, cb))
            return self.dseq(items)
        z1t = {}
        def z1load():
            p.vmem(f"buffer_load_dwordx4 {v(Z1R,4)}, {v(VL16)}, {srd(SWS)}, s{SD} offen sc1")
            p.vmem(f"buffer_load_dwordx4 {v(Z1R+4,4)}, {v(VL16)}, {srd(SWS)}, s{SD} offen offset:2048 sc1")
            p(f"s_add_u32 s{SD}, s{SD}, 4096")
            z1t['t'] = p.vmem(f"buffer_load_dwordx4 {v(Z1R+8,4)}, {v(PV)}, {srd(SWS)}, s{SD} offen sc1")
        self.run(dma(0))
        self.run(merge(self.cap(lambda: (late_setup(), self.c_setup())), dma(1)))
        def gyl():
            p(f"s_lshl_b32 s{SA}, s{STB}, 8\ns_add_u32 s{SA}, s{SA}, {GATE}")
            p.vmem(f"buffer_load_dword {v(self.GY)}, {v(PL2)}, {srd(SWS)}, s{SA} offen sc1")
            p.vmem(f"buffer_load_dword {v(self.GY+2)}, {v(PL2)}, {srd(SWS)}, s{SA} offen offset:128 sc1")
            p(f"s_lshl_b32 s{SA}, s{SC}, 7\ns_add_u32 s{SA}, s{SA}, {GATE}")
            p.vmem(f"buffer_load_dword {v(OGV)}, {v(PL2)}, {srd(SWS)}, s{SA} offen sc1")
        def z1gelu():
            c1 = -2 * LOG2E * 0.7978845608028654
            self.VC0 = 188
            self.p(f"s_mov_b32 s{SK}, {f2u(c1*0.044715)}\nv_mov_b32 {v(188)}, {f2u(c1)}")
            for i in range(12): self.unpack(self.ZUP[i], Z1R + i)
            self.gelu_many(self.ZUP, [24, 26, 28, 30])
        lt = {}
        def issue(r):
            lt[r] = p.vmem(f"buffer_load_dword {v(r+1)}, {v(r)}, {srd(SWS)}, 0 offen sc1")
        def check(r, mask):
            l = p.label("lp"); d = p.label("ld")
            p.wait(vm=lt[r])
            p(f"s_mov_b32 s{SSPIN}, 0")
            p.put(l)
            p(f"v_cmp_ne_u32 vcc, s{ST_T}, {v(r+1)}\ns_and_b32 s{SF}, vcc_lo, {mask}\ns_or_b32 s{SF}, s{SF}, vcc_hi\ns_cbranch_scc0 {d}")
            p(f"buffer_load_dword {v(r+1)}, {v(r)}, {srd(SWS)}, 0 offen sc1\ns_waitcnt vmcnt(0)")
            p(f"s_add_u32 s{SSPIN}, s{SSPIN}, 1\ns_cmp_lt_u32 s{SSPIN}, {SPIN}\ns_cbranch_scc1 {l}")
            p.put(d)
        rt = {}
        def fset(hb): return FA + 24 * (2 if hb == 15 else hb & 1)
        FO = [(0, 0), (0, 1), (0, 2), (1, 0), (1, 1), (1, 2)]; FP = {(0, 0): 0, (0, 1): 1, (1, 0): 2, (1, 1): 3, (0, 2): 4, (1, 2): 5}
        def reads(hb):
            B, e = hb >> 1, hb & 1; ops = []
            for (ks, mt) in FO:
                def ra(ks=ks, mt=mt):
                    rt[(hb, ks, mt)] = p.lds(f"ds_read_b128 {v(fset(hb)+12*ks+4*mt,4)}, {v(TR)} offset:{soff(B)+e*6144+FP[(ks,mt)]*1024}")
                ops.append(ra)
            return ops
        def mf(hb, ks, mt, nt):
            def m():
                p.wait(lg=rt[(hb, ks, 2 if hb < 14 else mt)])
                d = v(ACC + 16 * (2 * mt + nt), 16); kap = 2 * hb + ks
                p(f"{MF} {d}, {v(fset(hb)+12*ks+4*mt,4)}, {ar((kap*2+nt)*4,4)}, {'0' if kap == 0 else d}")
            return m
        self.wo = wo = {}
        def WOA(kap): return (kap - 8) * 8 if kap >= 8 else 24 + kap * 8
        def wo_rd(kap):
            def f():
                p.wait(vm=wo[2 * kap + 1], lg=p.lg - 12)
                for mt in range(2):
                    for a in range(2):
                        base = AOFF + (kap if kap < 8 else kap - 8) * 2048
                        p.lds(f"ds_read_b64_tr_b16 {ar(WOA(kap)+4*mt+2*a,2)}, {v(self.WT_+mt)} offset:{base+a*512}")
            return f
        p.wait(vm=tick[0]); p("s_barrier")
        self.run(reads(0))
        wa = self.wo_dma([(16, 22, AOFF)])
        def wb(i0, i1): return self.wo_dma([(i0, i1, AOFF + i0 * 1024)])
        y0 = self.y_dma(0)
        y1 = self.y_dma(1)
        yc0 = self.dseq(self.y_items(0)[:8]); yc0b = self.dseq(self.y_items(0)[:4]);
        def ypart(s_, a, b): return self.dseq(self.y_items(s_)[a:b])
        extra = {0: dma(2), 1: dma(3), 2: wa, 4: [wo_rd(8), wo_rd(9), wo_rd(10), lgw] + wb(0, 3), 5: wb(3, 4), 6: wb(4, 9) + [gyl], 7: wb(9, 10), 8: wb(10, 16) + [lambda: issue(PL3)],
                 10: [wo_rd(k) for k in range(8)] + [lgw] + ypart(0, 0, 2), 11: ypart(0, 2, 8) + [z1load], 12: ypart(0, 8, 13), 13: ypart(0, 13, 16)}
        gel = {}
        for hb in range(14):
            if o.get("gstamps") and hb % 2 == 0: self.stamp(21 + hb // 2)
            B = hb >> 1
            if hb & 1:
                p.wait(vm=tick[B + 1], lg=p.lg - 1); p("s_barrier")
            if hb == 11: check(PL3, 0x1ffff)
            mm = [mf(hb, ks, mt, nt) for ks in range(2) for mt in range(3) for nt in range(2)]
            rd = reads(hb + 1) + (reads(15) if hb == 13 else [])
            seq = merge(mm, rd, 0, 8 if hb == 13 else 6)
            f = list(extra.get(hb, []))
            if hb & 1 and B + 4 < 8: f = f + dma(B + 4)
            if f: seq = merge(seq, f, len(seq) // 4)
            if hb in gel: seq = merge(seq, gel[hb])
            if hb == o.get("hflag", 3): seq = seq + [late_flag]
            self.run(seq)
        VW, VRD = T, T + 1
        p(f"s_xor_b32 s{SA}, s{SWV}, 2\ns_mul_i32 s{SA}, s{SA}, 40960\nv_add_u32 {v(VW)}, s{SREG}, {v(VL16)}\nv_add_u32 {v(VRD)}, s{SA}, {v(VL16)}")
        def roff(i): return i * 1024
        def rw(ti):
            return [(lambda hq=hq: p.lds(f"ds_write_b128 {v(VW)}, {v(ACC+16*ti+8+4*hq,4)} offset:{roff(2*ti+hq)}")) for hq in range(2)]
        tiles = [1, 3, 5, 0, 2, 4]
        for n_, ti in enumerate(tiles):
            mm = [mf(hb, ks, ti >> 1, ti & 1) for hb in (14, 15) for ks in range(2)]
            f = (rw(tiles[n_ - 2]) if n_ >= 2 else [])
            self.run(merge(mm, f))
        self.stamp(8)
        yl = o.get('y0late', 0)
        self.run(merge([] if yl else self.y_read(0), rw(tiles[4]) + rw(tiles[5])) if not yl else rw(tiles[4]) + rw(tiles[5]))
        p.wait_lg_all(); p("s_barrier")
        RB = 112
        tk = {}
        for n_, ti in enumerate(tiles):
            for hq in range(2): tk[(ti, hq)] = p.lds(f"ds_read_b128 {v(RB+8*ti+4*hq,4)}, {v(VRD)} offset:{roff(2*ti+hq)}")
        if not yl: self.run(y1[:3])
        def radd(ti):
            for hq in range(2):
                p.wait(lg=tk[(ti, hq)])
                for hh in range(2): p(f"v_pk_add_f32 {v(ACC+16*ti+4*hq+2*hh,2)}, {v(ACC+16*ti+4*hq+2*hh,2)}, {v(RB+8*ti+4*hq+2*hh,2)}")
        XS = [40, 44, 56, 60]; XR = [72, 76, 88, 92]
        p(f"s_lshl_b32 s{SA}, s2, 2\ns_add_u32 s{SA}, s{SA}, s{SWV}\ns_lshl_b32 s{SA}, s{SA}, 12\ns_add_u32 s{SA}, s{SA}, {XB}\ns_xor_b32 s{SE}, s{SA}, 16384")
        for g in range(4): p(f"v_mov_b32 {v(XS[g]+3)}, s{ST_T}")
        for ti in (1, 3, 5): radd(ti)
        for i in range(12):
            src = ACC + 16 * (2 * (i >> 2) + 1) + 2 * (i & 3)
            p(f"v_cvt_pk_bf16_f32 {v(XS[i//3]+i%3)}, {v(src)}, {v(src+1)}")
            if i % 3 == 2: p.vmem(f"buffer_store_dwordx4 {v(XS[i//3],4)}, {v(VL16)}, {srd(SWS)}, s{SA} offen offset:{(i//3)*1024} sc1")
        if yl: self.run(self.y_read(0))
        for ti in (0, 2, 4): radd(ti)
        if yl: self.run([lgw] + y1[:3])
        p("s_barrier")
        self.stamp(9)

        p.c("==== phase C ====")
        YA, PA = 112, 16
        XE, GE, DE, OV, P10, PLP, TC = 186, 194, 198, 184, 185, 222, 224
        RW, RX, WA, RA = 176, 177, 180, 230
        SROW, SXO, SPB_ = SXL, SWL, SW1B
        ep = {}
        def setup():
            p = self.p; T = TC
            p(f"v_lshrrev_b32 {v(T)}, 4, {v(VL)}\nv_and_b32 {v(T+1)}, 15, {v(VL)}")
            p(f"v_lshlrev_b32 {v(T+2)}, 10, {v(T)}\nv_lshl_add_u32 {v(T+2)}, {v(T+1)}, 3, {v(T+2)}")
            p(f"v_lshlrev_b32 {v(T+3)}, 2, {v(T)}\nv_lshlrev_b32 {v(T+4)}, 3, {v(T+1)}")
            p(f"v_lshlrev_b32 {v(OV)}, 1, {v(T+2)}")
            p(f"s_lshl_b32 s{SROW}, s{STB}, 6\ns_lshl_b32 s{SA}, s{SWV}, 4\ns_add_u32 s{SROW}, s{SROW}, s{SA}")
            p(f"s_lshl_b32 s{SXO}, s{SROW}, 10\ns_lshl_b32 s{SA}, s{SCOL}, 7\ns_add_u32 s{SXO}, s{SXO}, s{SA}\nv_add_u32 {v(T+4)}, s{SA}, {v(T+4)}")
            p(f"s_lshl_b32 s{SA}, s{STB}, 12\ns_lshl_b32 s{SB_}, s{SWV}, 10\ns_add_u32 s{SB_}, s{SB_}, s{SA}\ns_add_u32 s{SB_}, s{SB_}, {PF}")
            self.poll_addr(PLP, [(SB_, 8)])
            p.atom(f"s_cmp_eq_u32 s{SWV}, 3\ns_cselect_b64 vcc, -1, 0")
            p(f"v_cndmask_b32 {v(P10)}, {v(VL16)}, {v(VOOB)}, vcc")
            p(f"s_mul_i32 s{SPB_}, s{STB}, {2*45056}\ns_mul_i32 s{SA}, s{SWV}, {22*512}\ns_add_u32 s{SPB_}, s{SPB_}, s{SA}\ns_add_u32 s{SPB_}, s{SPB_}, {PB}")
            p(f"s_add_u32 s{SA}, s{SREG}, 4096\nv_and_b32 {v(RW)}, 31, {v(VL)}\nv_lshlrev_b32 {v(RW)}, 8, {v(RW)}\nv_add_u32 {v(RW)}, s{SA}, {v(RW)}")
            p(f"v_lshrrev_b32 {v(RX)}, 5, {v(VL)}\nv_and_b32 {v(RX+1)}, 7, {v(VL)}\nv_xor_b32 {v(RX)}, {v(RX)}, {v(RX+1)}\nv_lshlrev_b32 {v(RX)}, 4, {v(RX)}")
            for i in range(4): p(f"v_xor_b32 {v(WA+i)}, {32*i}, {v(RX)}\nv_add_u32 {v(WA+i)}, {v(WA+i)}, {v(RW)}")
            p(f"v_xor_b32 {v(T+1)}, {v(T+1)}, {v(T)}\nv_lshlrev_b32 {v(T+1)}, 4, {v(T+1)}")
            p(f"v_lshlrev_b32 {v(T)}, 8, {v(T)}\ns_lshl_b32 s{SA}, s{SWV}, 12\ns_add_u32 s{SA}, s{SA}, 4096\nv_add_u32 {v(T)}, s{SA}, {v(T)}")
            p(f"v_add_u32 {v(RA)}, {v(T)}, {v(T+1)}\nv_xor_b32 {v(T+1)}, 64, {v(T+1)}\nv_add_u32 {v(RA+1)}, {v(T)}, {v(T+1)}")
            p(f"v_add_u32 {v(RA+2)}, 81920, {v(RA)}\nv_add_u32 {v(RA+3)}, 81920, {v(RA+1)}")
            p(f"s_lshr_b32 s{SLATE}, s{SC}, 1\ns_lshl_b32 s{SLATE}, s{SLATE}, 3\ns_add_u32 s{SLATE}, s{SLATE}, s{SCOL}\ns_lshl_b32 s{SLATE}, s{SLATE}, 1\ns_add_u32 s{SLATE}, s{SLATE}, s{SKH}")
            p(f"s_lshl_b32 s{SLATE}, s{SLATE}, 1\ns_add_u32 s{SLATE}, s{SLATE}, s{Q}\ns_lshl_b32 s{SLATE}, s{SLATE}, 7\ns_add_u32 s{SLATE}, s{SLATE}, {PF}")
            p(f"s_mul_i32 s{SD}, s{SC}, 45056\ns_mul_i32 s{SB_}, s{SCOL}, 5632\ns_add_u32 s{SD}, s{SD}, s{SB_}\ns_lshl_b32 s{SB_}, s{Q}, 10\ns_add_u32 s{SD}, s{SD}, s{SB_}\ns_add_u32 s{SD}, s{SD}, {PB}")
            p(f"v_lshlrev_b32 {v(BI)}, 16, {v(BI)}\nv_sub_f32 {v(178)}, 1.0, {v(OGV)}\nv_mul_f32 {v(179)}, {v(178)}, {v(BI)}")
        def eloads():
            T = TC
            for gi in range(4):
                p(f"s_add_u32 s{SA}, s{SXO}, {gi*4096}")
                p.vmem(f"buffer_load_dwordx2 {v(XE+2*gi,2)}, {v(T+2)}, {srd(SX)}, s{SA} offen")
            p(f"s_lshl_b32 s{SA}, s{SROW}, 2\ns_add_u32 s{SA}, s{SA}, {GATE}")
            for gi in range(4): p.vmem(f"buffer_load_dword {v(GE+gi)}, {v(T+3)}, {srd(SWS)}, s{SA} offen offset:{gi*16} sc1")
            ep['t'] = p.vmem(f"global_load_dwordx2 {v(DE,2)}, {v(T+4)}, {sp(PDSK)}")
        T4 = [(0, 0), (1, 0), (1, 1), (0, 1)]
        def ym(s):
            ops = []
            for ks in range(4):
                for (mt, nt) in T4:
                    def m(ks=ks, mt=mt, nt=nt):
                        p.wait(lg=self.yr[(s, ks)])
                        d = v(YA + 16 * (2 * mt + nt), 16); b = self.YB[s] + 16 * ks
                        p(f"{MF} {d}, {ar(b+4*mt,4)}, {ar(b+8+4*nt,4)}, {'0' if (s, ks) == (0, 0) else d}")
                    ops.append(m)
            return ops
        pt = {}
        def ploads():
            ops = []
            for nt in range(2):
                for kap in range(11):
                    def f(kap=kap, nt=nt):
                        if kap % 4 == 0: p(f"s_add_u32 s{SB_}, s{SPB_}, {nt*45056+kap*1024}")
                        pt[(kap, nt)] = p.vmem(f"buffer_load_dwordx4 {v(PA+(kap*2+nt)*4,4)}, {v(P10 if kap == 10 else VL16)}, {srd(SWS)}, s{SB_} offen offset:{(kap%4)*1024} sc1")
                    ops.append(f)
            return ops
        xt = {}
        def xload():
            for g in range(4): xt['t'] = p.vmem(f"buffer_load_dwordx4 {v(XR[g],4)}, {v(VL16)}, {srd(SWS)}, s{SE} offen offset:{g*1024} sc1")
        def xcheck():
            l = p.label("xp"); d = p.label("xd")
            p.wait(vm=xt['t'])
            p(f"s_mov_b32 s{SSPIN}, 0")
            p.put(l)
            p(f"v_xor_b32 {v(32)}, s{ST_T}, {v(XR[0]+3)}\nv_xor_b32 {v(33)}, s{ST_T}, {v(XR[1]+3)}\nv_xor_b32 {v(34)}, s{ST_T}, {v(XR[2]+3)}\nv_xor_b32 {v(35)}, s{ST_T}, {v(XR[3]+3)}")
            p(f"v_or3_b32 {v(32)}, {v(32)}, {v(33)}, {v(34)}\nv_or_b32 {v(32)}, {v(32)}, {v(35)}")
            p(f"v_cmp_ne_u32 vcc, 0, {v(32)}\ns_cmp_eq_u64 vcc, 0\ns_cbranch_scc1 {d}")
            for g in range(4): p(f"buffer_load_dwordx4 {v(XR[g],4)}, {v(VL16)}, {srd(SWS)}, s{SE} offen offset:{g*1024} sc1")
            p("s_waitcnt vmcnt(0)")
            p(f"s_add_u32 s{SSPIN}, s{SSPIN}, 1\ns_cmp_lt_u32 s{SSPIN}, {SPIN}\ns_cbranch_scc1 {l}")
            p.put(d)
        PK = [24, 28, 104]
        def pepi(mt):
            p = self.p
            for i in range(4 * mt, 4 * mt + 4): self.unpack(32 + 2 * (i & 3), XR[i // 3] + i % 3)
            for i in range(4):
                a = ACC + 32 * mt + 2 * i
                p(f"v_pk_add_f32 {v(a,2)}, {v(a,2)}, {v(32+2*i,2)}")
            for i in range(4):
                a = ACC + 32 * mt + 2 * i
                p(f"v_pk_fma_f32 {v(a,2)}, {v(a,2)}, {v(178,2)}, {v(178,2)} op_sel:[0,0,1] op_sel_hi:[1,0,1]")
            for i in range(4):
                a = ACC + 32 * mt + 2 * i
                p(f"v_pk_mul_f32 {v(a,2)}, {v(a,2)}, {v(self.ZUP[4*mt+i],2)}")
            for i in range(4):
                a = ACC + 32 * mt + 2 * i
                p(f"v_cvt_pk_bf16_f32 {v(PK[mt]+i)}, {v(a)}, {v(a+1)}")
        def pflag():
            p.wait(vm=ep['p']); self.flag(SLATE, 220)
        su = self.cap(setup)
        y2, y3, pl_ = self.y_dma(2), self.y_dma(3), ploads()
        sent = 1
        zg = [lambda: p.wait(vm=z1t['t'])] + self.cap(z1gelu)
        c1_ = o.get("c1", 9); c2_ = o.get("c2", 16)
        nx = y1[3:] + y2
        self.run(merge(zg, nx[:c1_]))
        xload()
        self.run(merge(merge(ym(0), su), nx[c1_:c2_]))
        xcheck()
        self.stamp(10)
        pepi(0); p.vmem(f"buffer_store_dwordx4 {v(PK[0],4)}, {v(VL16)}, {srd(SWS)}, s{SD} offen sc1")
        pepi(1); p.vmem(f"buffer_store_dwordx4 {v(PK[1],4)}, {v(VL16)}, {srd(SWS)}, s{SD} offen offset:2048 sc1")
        p(f"s_add_u32 s{SD}, s{SD}, 4096")
        pepi(2); ep['p'] = p.vmem(f"buffer_store_dwordx4 {v(PK[2],4)}, {v(PV)}, {srd(SWS)}, s{SD} offen sc1")
        c3_ = max(c2_, 18)
        self.run(nx[c2_:c3_])
        self.run(merge(self.y_read(1), nx[c3_:c3_ + 4]))
        y3a = o.get('y3a', 3)
        self.run(merge(ym(1), nx[c3_ + 4:] + [lgw] + y3[:y3a]))
        self.stamp(11)
        self.run(y3[y3a:9])
        self.run(merge(self.y_read(2), y3[9:13]))
        self.run(merge(ym(2), y3[13:] + [eloads]))
        self.stamp(12)
        pa_ = o.get("pa", 4)
        self.run(merge(self.y_read(3), pl_[:pa_]))
        self.run(merge(ym(3), pl_[pa_:pa_ + 8]))
        prest = pl_[pa_ + 8:]
        self.stamp(13)
        def pcheck(nt):
            l = p.label("sp"); d = p.label("sd")
            p.wait(vm=pt[(10, nt)])
            p(f"s_mov_b32 s{SSPIN}, 0")
            p.put(l)
            r = [PA + (kap * 2 + nt) * 4 for kap in range(11)]
            p(f"v_max3_u32 {v(178)}, {v(r[0])}, {v(r[1])}, {v(r[2])}")
            for k in range(3, 11, 2): p(f"v_max3_u32 {v(178)}, {v(178)}, {v(r[k])}, {v(r[k+1])}")
            p(f"v_cmp_eq_u32 vcc, -1, {v(178)}\ns_cmp_eq_u64 vcc, 0\ns_cbranch_scc1 {d}")
            for kap in range(11):
                if kap % 4 == 0: p(f"s_add_u32 s{SF}, s{SPB_}, {nt*45056+kap*1024}")
                p(f"buffer_load_dwordx4 {v(PA+(kap*2+nt)*4,4)}, {v(P10 if kap == 10 else VL16)}, {srd(SWS)}, s{SF} offen offset:{(kap%4)*1024} sc1")
            p("s_waitcnt vmcnt(0)")
            p(f"s_add_u32 s{SSPIN}, s{SSPIN}, 1\ns_cmp_lt_u32 s{SSPIN}, {SPIN}\ns_cbranch_scc1 {l}")
            p.put(d)
        def redw(tiles):
            return [(lambda mt=mt, nt=nt, i=i: p.lds(f"ds_write_b128 {v(WA+i)}, {v(YA+16*(2*mt+nt)+4*i,4)} offset:{nt*8192+mt*128}"))
                    for (mt, nt) in tiles for i in range(4)]
        def bm(kap, mt, nt):
            def m():
                p.wait(vm=pt[(kap, nt)])
                d = v(YA + 16 * (2 * mt + nt), 16)
                p(f"{MF} {d}, {ar(WOA(kap)+4*mt,4)}, {v(PA+(kap*2+nt)*4,4)}, {d}")
            return m
        def yscale(mt, nt):
            return [(lambda i=i: p(f"v_pk_mul_f32 {v(YA+16*(2*mt+nt)+2*i,2)}, {v(YA+16*(2*mt+nt)+2*i,2)}, {v(self.GY+2*nt,2)} op_sel_hi:[1,0]")) for i in range(8)]
        DU = 104; XP = [4, 8, 12, 108]
        def xpart():
            p = self.p
            self.unpack(DU, DE); self.unpack(DU + 2, DE + 1)
            for gi in range(4):
                x = XP[gi]
                self.unpack(x, XE + 2 * gi); self.unpack(x + 2, XE + 2 * gi + 1)
                for k in range(4): p(f"v_mul_f32 {v(x+k)}, {v(x+k)}, {v(DU+k)}")
                for k in range(4): p(f"v_mul_f32 {v(x+k)}, {v(x+k)}, {v(GE+gi)}")
        def yscale1(mt, nt):
            return [(lambda i=i: p(f"v_mul_f32 {v(YA+16*(2*mt+nt)+i)}, {v(YA+16*(2*mt+nt)+i)}, {v(self.GY+2*nt)}")) for i in range(16)]
        self.run(merge(yscale(0, 0) + yscale(1, 0), prest[:2]))
        pcheck(0)
        mm0 = [bm(kap, mt, 0) for kap in range(11) for mt in range(2)]
        self.run(merge(merge(mm0, prest[2:], 0, 12), yscale1(1, 1) + yscale1(0, 1) + [lambda: p.wait(vm=ep['t'])] + self.cap(xpart)))
        if sent: pcheck(1)
        mm1 = [bm(kap, 0, 1) for kap in range(11)]
        mm2 = [bm(kap, 1, 1) for kap in range(11)]
        self.run(merge(mm1, redw([(0, 0), (1, 0)]), 2))
        self.run(merge(mm2, redw([(0, 1)]), 4))
        self.run(redw([(1, 1)]))
        p.wait_lg_all(); p("s_barrier")
        self.stamp(14)
        tk = {}
        def R(gi, s): return 16 + 16 * gi + 4 * s
        for gi in range(4):
            p.wait(lg=p.lg - 12)
            for s_ in range(4):
                tk[gi] = p.lds(f"ds_read_b128 {v(R(gi,s_),4)}, {v(RA+2*(s_>>1)+(gi&1))} offset:{(s_&1)*40960+gi*1024}")
        p(f"s_lshl_b32 s{SXO}, s{SXO}, 1")
        for gi in range(4):
            y = R(gi, 0)
            p.wait(lg=tk[gi])
            for hh in (0, 2):
                p(f"v_pk_add_f32 {v(y+hh,2)}, {v(y+hh,2)}, {v(y+4+hh,2)}\nv_pk_add_f32 {v(y+8+hh,2)}, {v(y+8+hh,2)}, {v(y+12+hh,2)}")
            for hh in (0, 2): p(f"v_pk_add_f32 {v(y+hh,2)}, {v(y+hh,2)}, {v(XP[gi]+hh,2)}")
            for hh in (0, 2): p(f"v_pk_add_f32 {v(y+hh,2)}, {v(y+hh,2)}, {v(y+8+hh,2)}")
            p(f"s_add_u32 s{SA}, s{SXO}, {gi*8192}")
            p.vmem(f"buffer_store_dwordx4 {v(y,4)}, {v(OV)}, {srd(SOUT)}, s{SA} offen{' ' + o['outmod'] if 'outmod' in o else ''}")
        ne = p.label("ne")
        p(f"s_lshl_b32 s{SA}, s{STB}, 3\ns_add_u32 s{SA}, s{SA}, s{SCOL}\ns_lshl_b32 s{SA}, s{SA}, 2\ns_add_u32 s{SA}, s{SA}, s{SWV}")
        p(f"s_cmp_eq_u32 s{SA}, {255*4}\ns_cbranch_scc0 {ne}")
        p(f"s_mov_b32 s{SA}, {EPOCH}")
        self.flag(SA, 220)
        p.put(ne)
        if o.get("stamps"):
            self.stamp(15)
            p(f"s_lshl_b32 s{SA}, s2, 2\ns_add_u32 s{SA}, s{SA}, s{SWV}\ns_lshl_b32 s{SA}, s{SA}, 8\ns_add_u32 s{SA}, s{SA}, {DBG}")
            p(f"v_lshlrev_b32 v254, 2, {v(VL)}")
            p.vmem(f"buffer_store_dword v255, v254, {srd(SWS)}, s{SA} offen")
            if o.get("dbgmax"):
                ty = o["dbgmax"]
                nd = p.label("nd")
                if ty > 1: p(f"s_cmp_{'ge' if ty == 2 else 'lt'}_u32 s2, 128\ns_cbranch_scc1 {nd}")
                p(f"s_load_dwordx2 s[{SX}:{SX+1}], s[0:1], 128\ns_waitcnt lgkmcnt(0)\ns_mov_b32 s{SX+2}, 64")
                p(f"v_readlane_b32 s{SA}, v255, 17\nv_readlane_b32 s{SB_}, v255, 20\ns_not_b32 s{SA}, s{SA}\ns_nop 3\nv_writelane_b32 v255, s{SA}, 0\nv_writelane_b32 v255, s{SB_}, 6")
                p.vmem(f"buffer_atomic_umax v255, v254, {srd(SX)}, 0 offen")
                p.put(nd)
        if "spin_from" in o:
            self.stamp(15)
            sl = p.label("spin")
            p(f"v_readlane_b32 s{SA}, v254, 0")
            p.put(sl)
            p(f"s_memrealtime s[{SSTMP}:{SSTMP+1}]\ns_waitcnt lgkmcnt(0)\ns_sub_u32 s{SB_}, s{SSTMP}, s{SA}\ns_cmp_lt_u32 s{SB_}, 3000\ns_cbranch_scc1 {sl}")
        p.put(self.END)
        p("s_endpgm")

    def build(self):
        self.prologue()
        self.phase_z()
        self.p.vm_done = -1; self.p.lg_done = -1
        self.p("s_nop 15")
        self.phase_u()
        self.phase_g()
        lines, added = hazard_pass([x for l in self.p.L for x in l.split(chr(10))])
        hdr = open("gated_mix__ssm_conv_s5__mixer_gmlp__prompt.s.ref").read().split("; Override")[0]
        s = hdr + "; @launch grid=(256,1,1) block=(256,1,1) lds=163840\n"
        s += '.amdgcn_target "amdgcn-amd-amdhsa--gfx950"\n.text\n'
        s += f".globl {NAME}\n.p2align 8\n.type {NAME},@function\n{NAME}:\n"
        s += "\n".join((l if l.endswith(":") else "    " + l) for l in lines) + "\n"
        s += f""".section .rodata,"a"
.p2align 6
.amdhsa_kernel {NAME}
  .amdhsa_next_free_vgpr 512
  .amdhsa_next_free_sgpr 102
  .amdhsa_accum_offset 256
  .amdhsa_group_segment_fixed_size 0
  .amdhsa_kernarg_size 144
  .amdhsa_user_sgpr_count 2
  .amdhsa_user_sgpr_kernarg_segment_ptr 1
  .amdhsa_system_sgpr_workgroup_id_x 1
  .amdhsa_float_denorm_mode_32 3
.end_amdhsa_kernel
"""
        return s, added

if __name__ == "__main__":
    out = sys.argv[1]
    opt = dict(touch=2, zs0=19, zs1=20, zs2=21, zmode=2, pf=2, tlb=2, map=1)
    for a in sys.argv[2:]:
        k, _, val = a.partition("=")
        try: opt[k] = int(val) if val else 1
        except ValueError: opt[k] = val
    s, added = G(opt).build()
    open(out, "w").write(s)
    print("wrote", out, "nops added", added, "lines", s.count("\n"))
```

```python
import sys, math, struct
from core import *

NAME = "gated_mix__ssm_conv_s5__mixer_gmlp__prompt_kernel"
EPOCH = 0; GATE = 0x4000
ST = 0x10000; EG = 0x50000; DBG = 0x80000
Z2N = 0x100000; Z1 = 0x400000; PB = 0x700000; HB = 0xA00000
ZF = 0xE00000; HF = 0xE10000; PF = 0xE20000; Z1F = 0xE40000; ZF2 = 0xE50000; XB = 0x1000000; WS_END = 0x1400000
OOB = 0x80000000
SPIN = 200000
SX, SW1, SWSP, SWS, SCRE, SCIM, SWOUT, SOUT = 4, 8, 12, 16, 20, 24, 28, 32
PLRE, PLIM, PLDT, PDSK, PBSP, PGW, PBRE, PBIM, PWIN = 36, 38, 40, 42, 44, 46, 48, 50, 52
ST_T = 100
SWV, SRB, SCOL, STB = 56, 57, 58, 59
SA, SB_, SC, SD = 60, 61, 62, 63
SSTMP = 64
SDO, SWB, SPB0, SPST, SPSP = 68, 69, 70, 71, 72
SXB, SW1B, SXL, SWL = 73, 74, 75, 76
SPC = 77
SCB, SHB = 78, 79
SK = 80
SREG = 96
SE, SF = 97, 98
SSPIN = 99
SLATE = 101
SJ = 3
SGB = 95
SPFP = 70
SPFE = 79
SKH = 81
SGL = 77
SZI = 72
SPB = 90
def srd(b): return f"s[{b}:{b+3}]"
def v(a, n=1): return f"v{a}" if n == 1 else f"v[{a}:{a+n-1}]"
def ar(a, n=1): return f"a{a}" if n == 1 else f"a[{a}:{a+n-1}]"
def sp(a): return f"s[{a}:{a+1}]"
VL, VL16, VOOB = 1, 2, 3
LOG2E = 1.4426950408889634
def f2u(x): return struct.unpack("<I", struct.pack("<f", x))[0]
MF = "v_mfma_f32_32x32x16_bf16"

class G:
    def __init__(self, opt):
        self.o = opt
        self.p = Prog()

    def stamp(self, k):
        if self.o.get("spin_from") == k:
            p = self.p
            p(f"s_memrealtime s[{SSTMP}:{SSTMP+1}]"); p.wait_lg_all()
            p(f"v_mov_b32 v254, s{SSTMP}")
        if self.o.get("stamps"):
            p = self.p
            p(f"s_memrealtime s[{SSTMP}:{SSTMP+1}]\ns_memtime s[{SSTMP+2}:{SSTMP+3}]"); p.wait_lg_all()
            p(f"v_writelane_b32 v255, s{SSTMP}, {k}\nv_writelane_b32 v255, s{SSTMP+2}, {k+32}")
    def cap(self, fn):
        sub = Prog(); save = self.p; self.p = sub
        fn()
        self.p = save
        assert sub.vm == 0 and sub.lg == 0
        return [(lambda l=l: self.p(l)) for l in sub.L]
    def run(self, ops):
        for op in ops: op()
    def dseq(self, items):
        p = self.p
        def setup(it):
            if it[0] is not None: p(f"s_add_u32 m0, s{it[0][0]}, {it[0][1]}")
            if it[1] is not None: p(f"s_add_u32 s{SDO}, s{it[1][0]}, {it[1][1]}")
        ops = [lambda: setup(items[0])]
        for i, it in enumerate(items):
            def f(i=i, it=it):
                t = p.vmem(it[2])
                if it[3]: it[3](t)
                if i + 1 < len(items) and items[i + 1][:2] != it[:2]: setup(items[i + 1])
            ops.append(f)
        return ops
    def poll_addr(self, vt, groups):
        p = self.p; n0 = 0
        p(f"v_mov_b32 {v(vt)}, {v(VOOB)}")
        for (sr, n) in groups:
            if n == 1: p(f"v_writelane_b32 {v(vt)}, s{sr}, {n0}")
            else:
                p(f"s_sub_u32 s{sr}, s{sr}, {n0*128}\nv_lshl_add_u32 {v(vt+1)}, {v(VL)}, 7, s{sr}")
                m = ((1 << n) - 1) << n0
                p(f"s_mov_b32 vcc_lo, {m & 0xffffffff}\ns_mov_b32 vcc_hi, {m >> 32}\nv_cndmask_b32 {v(vt)}, {v(vt)}, {v(vt+1)}, vcc")
            n0 += n
        return n0
    def poll(self, vt, n):
        p = self.p
        l = p.label("poll"); d = p.label("pd")
        p(f"s_mov_b32 s{SSPIN}, 0")
        p.put(l)
        p.vmem(f"buffer_load_dword {v(vt+1)}, {v(vt)}, {srd(SWS)}, 0 offen sc1")
        p.wait_vm_all()
        p(f"v_cmp_ne_u32 vcc, s{ST_T}, {v(vt+1)}")
        if n <= 32: p(f"s_and_b32 s{SF}, vcc_lo, {(1<<n)-1}")
        else: p(f"s_and_b32 vcc_hi, vcc_hi, {(1<<(n-32))-1}\ns_or_b32 s{SF}, vcc_lo, vcc_hi")
        p(f"s_cbranch_scc0 {d}")
        p(f"s_add_u32 s{SSPIN}, s{SSPIN}, 1\ns_cmp_lt_u32 s{SSPIN}, {SPIN}\ns_cbranch_scc1 {l}")
        p.put(d)
    def flag_prep(self, vt):
        p = self.p
        p(f"v_mov_b32 {v(vt)}, s{ST_T}\nv_mov_b32 {v(vt+1)}, {v(VOOB)}\nv_writelane_b32 {v(vt+1)}, 0, 0")
    def flag(self, off_sreg, vt):
        self.p.vmem(f"buffer_store_dword {v(vt)}, {v(vt+1)}, {srd(SWS)}, s{off_sreg} offen sc1")
    def xhalf_sum(self, a, t):
        self.p(f"v_mov_b32 {v(t)}, {v(a)}\nv_permlane32_swap_b32 {v(a)}, {v(t)}\nv_add_f32 {v(a)}, {v(a)}, {v(t)}")
    def rnd(self, d, s):
        self.p(f"v_cvt_pk_bf16_f32 {v(d)}, {v(s)}, {v(s)}\nv_lshlrev_b32 {v(d)}, 16, {v(d)}")
    def unpack(self, d, s):
        self.p(f"v_and_b32 {v(d+1)}, 0xffff0000, {v(s)}\nv_lshlrev_b32 {v(d)}, 16, {v(s)}")
    def plain_read_addr(self, dst4, base_sreg, t):
        p = self.p
        p(f"v_and_b32 {v(t)}, 31, {v(VL)}\nv_lshlrev_b32 {v(t)}, 7, {v(t)}")
        if base_sreg is not None: p(f"v_add_u32 {v(t)}, s{base_sreg}, {v(t)}")
        p(f"v_bfe_u32 {v(t+1)}, {v(VL)}, 1, 3\nv_lshrrev_b32 {v(dst4)}, 5, {v(VL)}\nv_xor_b32 {v(t+1)}, {v(t+1)}, {v(dst4)}")
        p(f"v_lshlrev_b32 {v(t+1)}, 4, {v(t+1)}")
        for ks in range(4):
            p(f"v_xor_b32 {v(dst4+ks)}, {32*ks}, {v(t+1)}\nv_add_u32 {v(dst4+ks)}, {v(dst4+ks)}, {v(t)}")
    def plain_dma_addr(self, dst4, rowbytes, t, rowstep=8):
        p = self.p
        p(f"v_lshrrev_b32 {v(t)}, 3, {v(VL)}\nv_mul_u32_u24 {v(t)}, {rowbytes}, {v(t)}")
        self.plain_dma_addr2(dst4, t, t + 1, rowstep * rowbytes)
    def plain_dma_addr2(self, dst4, vrow, t, step):
        p = self.p
        p(f"v_and_b32 {v(t)}, 7, {v(VL)}\nv_lshrrev_b32 {v(dst4)}, 4, {v(VL)}\nv_xor_b32 {v(t)}, {v(t)}, {v(dst4)}\nv_lshlrev_b32 {v(t)}, 4, {v(t)}")
        p(f"v_add_u32 {v(dst4)}, {v(t)}, {v(vrow)}")
        p(f"v_xor_b32 {v(t)}, 64, {v(t)}\nv_add_u32 {v(dst4+1)}, {v(t)}, {v(vrow)}")
        p(f"v_add_u32 {v(dst4+2)}, {2*(step-1024)}, {v(dst4)}\nv_add_u32 {v(dst4+3)}, {3*(step-1024)}, {v(dst4+1)}\nv_add_u32 {v(dst4+1)}, {step-1024}, {v(dst4+1)}")
    def panel_tr_addr(self, dst2, base_sreg, t, perm):
        p = self.p
        p(f"v_lshrrev_b32 {v(t)}, 5, {v(VL)}\nv_lshlrev_b32 {v(t)}, 10, {v(t)}")
        p(f"v_bfe_u32 {v(t+1)}, {v(VL)}, 2, 2\nv_lshl_add_u32 {v(t)}, {v(t+1)}, 7, {v(t)}")
        p(f"v_bfe_u32 {v(t+1)}, {v(VL)}, 4, 1\nv_lshl_add_u32 {v(t)}, {v(t+1)}, 5, {v(t)}")
        if perm:
            p(f"v_and_b32 {v(t+1)}, 1, {v(VL)}\nv_lshl_add_u32 {v(t)}, {v(t+1)}, 4, {v(t)}")
            p(f"v_bfe_u32 {v(t+1)}, {v(VL)}, 1, 1\nv_lshl_add_u32 {v(t)}, {v(t+1)}, 3, {v(t)}")
        else:
            p(f"v_and_b32 {v(t+1)}, 3, {v(VL)}\nv_lshl_add_u32 {v(t)}, {v(t+1)}, 3, {v(t)}")
        p(f"v_bfe_u32 {v(t+1)}, {v(VL)}, 3, 1\nv_lshlrev_b32 {v(t+1)}, 6, {v(t+1)}")
        if base_sreg is not None: p(f"v_add_u32 {v(t)}, s{base_sreg}, {v(t)}")
        p(f"v_add_u32 {v(dst2)}, {v(t)}, {v(t+1)}\nv_xor_b32 {v(t+1)}, 64, {v(t+1)}\nv_add_u32 {v(dst2+1)}, {v(t)}, {v(t+1)}")
    def unit_tr_addr(self, dst2, base_sreg, t, perm, flip_sreg=None):
        p = self.p
        p(f"v_bfe_u32 {v(t)}, {v(VL)}, 4, 1")
        if flip_sreg is not None: p(f"v_xor_b32 {v(t)}, s{flip_sreg}, {v(t)}")
        p(f"v_lshlrev_b32 {v(t)}, 1, {v(t)}")
        p(f"v_bfe_u32 {v(t+1)}, {v(VL)}, {0 if perm else 1}, 1\nv_or_b32 {v(t)}, {v(t)}, {v(t+1)}")
        p(f"v_lshrrev_b32 {v(t+1)}, 5, {v(VL)}\nv_lshlrev_b32 {v(t+1)}, 1, {v(t+1)}\nv_xor_b32 {v(t+1)}, {v(t+1)}, {v(t)}")
        p(f"v_lshlrev_b32 {v(t)}, 9, {v(t)}")
        p(f"v_bfe_u32 {v(t+2)}, {v(VL)}, 2, 2\nv_lshl_add_u32 {v(t)}, {v(t+2)}, 4, {v(t)}")
        p(f"v_bfe_u32 {v(t+2)}, {v(VL)}, {1 if perm else 0}, 1\nv_lshl_add_u32 {v(t)}, {v(t+2)}, 3, {v(t)}")
        if base_sreg is not None: p(f"v_add_u32 {v(t)}, s{base_sreg}, {v(t)}")
        p(f"v_lshl_add_u32 {v(dst2)}, {v(t+1)}, 6, {v(t)}")
        p(f"v_xor_b32 {v(t+1)}, 1, {v(t+1)}\nv_lshl_add_u32 {v(dst2+1)}, {v(t+1)}, 6, {v(t)}")

    def gemm_loop(self, nslot, reads, mfmas, dma, tick, rfront, npro, extra, valu=None):
        p = self.p
        p.wait(vm=tick[0]); p("s_barrier")
        self.stamp(20)
        self.run(reads(0))
        d = []
        for st in range(npro, nslot): d += dma(st)
        q = (len(d) + 2) // 3
        pend = [d[i * q:(i + 1) * q] for i in range(3)]
        for n in range(32):
            rd = []
            if n + 1 < 32:
                if (n + 1) % 4 == 0:
                    st = (n + 1) // 4
                    p.wait(vm=tick[st], lg=p.lg - 1); p("s_barrier")
                    if self.o.get("astamps"): self.stamp(20 + st)
                    d = dma(st - 1 + nslot) if st - 1 + nslot < 8 else extra.get(st, lambda: [])()
                    q = (len(d) + 3) // 4
                    pend = [d[i * q:(i + 1) * q] for i in range(4)]
                rd = reads(n + 1)
            seq = merge(mfmas(n), rd, 0, rfront)
            if pend: seq = merge(seq, pend.pop(0), len(seq) // 2)
            if valu and n in valu: seq = merge(seq, valu[n])
            self.run(seq)

    def gate(self, GX, GW, GU, GS, GT):
        p = self.p
        for i in range(4):
            for r in range(4):
                p(f"v_dot2_f32_bf16 {v(GS+r)}, {v(GX+4*r+i)}, {v(GW+i)}, {'0' if i == 0 else v(GS+r)}")
        p("s_nop 2")
        for mod in ["quad_perm:[1,0,3,2]", "quad_perm:[2,3,0,1]", "row_half_mirror", "row_mirror"]:
            for r in range(4): p(f"v_add_f32_dpp {v(GS+r)}, {v(GS+r)}, {v(GS+r)} {mod} row_mask:0xf bank_mask:0xf")
        for sw in ["v_permlane16_swap_b32", "v_permlane32_swap_b32"]:
            for r in range(4): p(f"v_mov_b32 {v(GT+r)}, {v(GS+r)}")
            for r in range(4): p(f"{sw} {v(GS+r)}, {v(GT+r)}")
            for r in range(4): p(f"v_add_f32 {v(GS+r)}, {v(GS+r)}, {v(GT+r)}")
        for r in range(4): p(f"v_mul_f32 {v(GS+r)}, {f2u(-LOG2E)}, {v(GS+r)}")
        for r in range(4): p(f"v_exp_f32 {v(GS+r)}, {v(GS+r)}")
        for r in range(4): p(f"v_add_f32 {v(GS+r)}, 1.0, {v(GS+r)}")
        for r in range(4): p(f"v_rcp_f32 {v(GS+r)}, {v(GS+r)}")
        p(f"v_mov_b32 {v(GT)}, {v(VOOB)}\nv_writelane_b32 {v(GT)}, 0, 0")

    def w_dma_addr(self, dst3, t, colbase):
        p = self.p
        for i in range(3):
            p(f"v_add_u32 {v(t)}, {64*i}, {v(VL)}\nv_mul_u32_u24 {v(t+1)}, 171, {v(t)}\nv_lshrrev_b32 {v(t+1)}, 11, {v(t+1)}")
            p(f"v_mul_u32_u24 {v(t+2)}, 12, {v(t+1)}\nv_sub_u32 {v(t)}, {v(t)}, {v(t+2)}\nv_cmp_eq_u32 vcc, 11, {v(t)}")
            p(f"v_mul_u32_u24 {v(t+1)}, 2752, {v(t+1)}\nv_lshl_add_u32 {v(t)}, {v(t)}, 4, {v(t+1)}")
            if colbase - 1024 * i: p(f"v_add_u32 {v(t)}, {colbase-1024*i}, {v(t)}")
            p(f"v_cndmask_b32 {v(dst3+i)}, {v(t)}, {v(VOOB)}, vcc")
    def w_tr_addr(self, dst, base, t):
        p = self.p
        p(f"v_lshrrev_b32 {v(t)}, 5, {v(VL)}\nv_bfe_u32 {v(t+1)}, {v(VL)}, 2, 2\nv_lshl_add_u32 {v(t)}, {v(t)}, 3, {v(t+1)}\nv_mul_u32_u24 {v(t)}, 192, {v(t)}")
        p(f"v_bfe_u32 {v(t+1)}, {v(VL)}, 4, 1\nv_lshl_add_u32 {v(t)}, {v(t+1)}, 5, {v(t)}")
        p(f"v_and_b32 {v(t+1)}, 1, {v(VL)}\nv_lshl_add_u32 {v(t)}, {v(t+1)}, 4, {v(t)}")
        p(f"v_bfe_u32 {v(t+1)}, {v(VL)}, 1, 1\nv_lshl_add_u32 {v(t)}, {v(t+1)}, 3, {v(t)}")
        p(f"v_add_u32 {v(dst)}, {base}, {v(t)}")
    def valid_masks(self):
        MA, MB = SK + 2, SK + 4
        self.p.atom(f"s_cmp_lt_u32 s{SCOL}, 7\ns_mov_b32 s{MA}, -1\ns_cselect_b32 s{MA+1}, -1, 0\ns_cselect_b32 s{MB}, -1, 0\ns_mov_b32 s{MB+1}, 0\n"
                    f"s_mov_b32 s{SK+6}, {f2u(1/72)}\ns_cselect_b32 s{SK+6}, {f2u(1/88)}, s{SK+6}")
        c1 = -2 * LOG2E * 0.7978845608028654
        self.p(f"s_mov_b32 s{SK}, {f2u(c1*0.044715)}\nv_mov_b32 {v(self.VC0)}, {f2u(c1)}")

    def gelu_pair(self, a, t, out_packed=None):
        p = self.p
        p(f"v_pk_mul_f32 {v(t,2)}, {v(a,2)}, {v(a,2)}")
        p(f"v_pk_fma_f32 {v(t,2)}, {v(t,2)}, {sp(SK)}, {v(self.VC0,2)} op_sel_hi:[1,0,0]")
        p(f"v_pk_mul_f32 {v(t,2)}, {v(t,2)}, {v(a,2)}")
        p(f"v_exp_f32 {v(t)}, {v(t)}\nv_exp_f32 {v(t+1)}, {v(t+1)}")
        p(f"v_pk_add_f32 {v(t,2)}, {v(t,2)}, 1.0 op_sel_hi:[1,0]")
        p(f"v_rcp_f32 {v(t)}, {v(t)}\nv_rcp_f32 {v(t+1)}, {v(t+1)}")
        if out_packed is not None:
            p(f"v_pk_mul_f32 {v(t,2)}, {v(t,2)}, {v(a,2)}")
            p(f"v_cvt_pk_bf16_f32 {v(out_packed)}, {v(t)}, {v(t+1)}")
        else:
            p(f"v_pk_mul_f32 {v(a,2)}, {v(t,2)}, {v(a,2)}")
    def gelu_many(self, pairs, temps, outs=None):
        p = self.p; ng = len(temps)
        for g0 in range(0, len(pairs), ng):
            streams = []
            for k, i in enumerate(range(g0, min(g0 + ng, len(pairs)))):
                sub = Prog(); save = self.p; self.p = sub
                self.gelu_pair(pairs[i], temps[k], None if outs is None else outs[i])
                self.p = save
                streams.append(sub.L)
            for j in range(len(streams[0])):
                for s in streams: p(s[j])

    VWD, VWR, VWA, VC0 = 240, 244, 248, 252
    def wsp_setup(self, t):
        p = self.p
        self.plain_dma_addr(self.VWD, 4096, t)
        p(f"s_lshl_b32 s{SA}, s{SKH}, 12")
        self.plain_read_addr(self.VWR, SA, t)
        p(f"s_lshr_b32 s{SWB}, s{STB}, 1\ns_lshl_b32 s{SWB}, s{SWB}, 19\ns_and_b32 s{SB_}, s{SWV}, 1\ns_lshl_b32 s{SB_}, s{SB_}, 18\ns_add_u32 s{SWB}, s{SWB}, s{SB_}")
        p(f"s_lshl_b32 s{SB_}, s{SKH}, 11\ns_add_u32 s{SWB}, s{SWB}, s{SB_}\ns_lshr_b32 s{SB_}, s{SWV}, 1\ns_lshl_b32 s{SB_}, s{SB_}, 10\ns_add_u32 s{SWB}, s{SWB}, s{SB_}")
        self.wsp_t = {}
    def piece(self, st): return (SPB + st % 5, 0)
    def wsp_dma(self, st):
        if self.o.get("x_nowsp") and st >= 2:
            self.wsp_t[st] = -1
            return [lambda: None] * 9
        items = []; sr, im = self.piece(st)
        for hh in range(2):
            for i in range(4):
                def cb(t): self.wsp_t[st] = t
                items.append(((sr, im + hh * 4096) if i == 0 else None, (SWB, st * 128 + hh * 131072) if i == 0 else None,
                              f"buffer_load_dwordx4 {v(self.VWD+i)}, {srd(SWSP)}, s{SDO} offen offset:{i*1024} {self.o.get('wmod', '')} lds", cb))
        return self.dseq(items)
    def wsp_read(self, st):
        if self.o.get("x_nord"): return [lambda: None]
        p = self.p; sr, im = self.piece(st)
        def pre():
            for ks in range(4): p(f"v_add_u32 {v(self.VWA+ks)}, s{sr}, {v(self.VWR+ks)}")
            p.wait(vm=self.wsp_t[st], lg=p.lg - 8)
        ops = [pre]
        for nt in range(2):
            for ks in range(4):
                def f(ks=ks, nt=nt):
                    p.lds(f"ds_read_b128 {ar(((st*4+ks)*2+nt)*4,4)}, {v(self.VWA+ks)} offset:{im}")
                    if nt == 0: p(f"v_xor_b32 {v(self.VWA+ks)}, 4096, {v(self.VWA+ks)}")
                ops.append(f)
        return ops

    def prologue(self):
        p = self.p
        self.END = p.label("end")
        p(f"s_cmp_ge_u32 s2, 256\ns_cbranch_scc1 {self.END}")
        if self.o.get("sst"): p("s_memrealtime s[84:85]\ns_waitcnt lgkmcnt(0)")
        p(f"s_load_dwordx2 {sp(SX)}, s[0:1], 0\ns_load_dwordx2 {sp(PWIN)}, s[0:1], 80\ns_load_dwordx4 s[{PBRE}:{PBRE+3}], s[0:1], 24")
        p(f"s_load_dwordx2 {sp(PGW)}, s[0:1], 112\ns_load_dwordx4 s[{PLRE}:{PLRE+3}], s[0:1], 8\ns_load_dwordx2 {sp(PLDT)}, s[0:1], 56\ns_load_dwordx2 {sp(SWS)}, s[0:1], 136")
        if self.o.get("tlb", 1):
            for (r, off) in [(SWSP, 88), (SCRE, 40), (SCIM, 48), (SWOUT, 104), (SOUT, 120), (PDSK, 64), (PBSP, 96)]:
                p(f"s_load_dwordx2 {sp(r)}, s[0:1], {off}")
            for (r, n) in [(SWSP, 8388608), (SWS, WS_END), (SCRE, 524288), (SCIM, 524288), (SWOUT, 704512), (SOUT, 4194304)]:
                p(f"s_mov_b32 s{r+2}, {n}\ns_mov_b32 s{r+3}, 0x20000")
        p(f"v_lshrrev_b32 v2, 6, v0\nv_and_b32 {v(VL)}, 63, v0\nv_readfirstlane_b32 s{SWV}, v2\nv_lshlrev_b32 {v(VL16)}, 4, {v(VL)}\nv_mov_b32 {v(VOOB)}, {OOB}")
        if self.o.get("stamps"): p("v_mov_b32 v255, 0")
        if self.o.get("sst"): p("v_writelane_b32 v255, s84, 17")
        else: self.stamp(17)
        p(f"s_and_b32 s{SA}, s2, 7\ns_lshr_b32 s{SB_}, s2, 3")
        p(f"s_and_b32 s{SC}, s{SA}, 1\ns_lshl_b32 s{SC}, s{SC}, 2\ns_and_b32 s{SD}, s{SB_}, 3\ns_add_u32 s{SCOL}, s{SC}, s{SD}")
        p(f"s_lshr_b32 s{SA}, s{SA}, 1")
        p(f"s_lshr_b32 s{SC}, s{SB_}, 2\ns_lshl_b32 s{SD}, s{SA}, 3\ns_add_u32 s{STB}, s{SD}, s{SC}")
        p(f"s_and_b32 s{SC}, s{SC}, 3\ns_lshl_b32 s{SD}, s{SA}, 2\ns_add_u32 s{SRB}, s{SD}, s{SC}")
        p(f"s_and_b32 s{SD}, s2, 6\ns_lshl_b32 s{SD}, s{SD}, 1\ns_lshr_b32 s{STB}, s{SB_}, 3\ns_add_u32 s{STB}, s{STB}, s{SD}\ns_lshl_b32 s{STB}, s{STB}, 1\ns_and_b32 s{SKH}, s2, 1\ns_add_u32 s{STB}, s{STB}, s{SKH}\ns_add_u32 s{SJ}, s{SB_}, {self.o.get('jrot', 0)}\ns_and_b32 s{SJ}, s{SJ}, 7")
        p(f"s_mov_b32 s{SX+2}, 2097152\ns_mov_b32 s{SX+3}, 0x20000\ns_mov_b32 s{SW1+3}, 0x20000")
        if "probe" in self.o:
            off, ls, ws_ = [int(x) for x in self.o["probe"].split(",")]
            p(f"s_load_dwordx2 {sp(SPFP)}, s[0:1], {off}\ns_lshl_b32 s{SD}, s2, 2\ns_add_u32 s{SD}, s{SD}, s{SWV}\ns_mul_i32 s{SD}, s{SD}, {ws_}")
            p(f"v_mul_u32_u24 {v(4)}, {ls}, {v(VL)}\nv_add_u32 {v(4)}, s{SD}, {v(4)}\ns_waitcnt lgkmcnt(0)")
            p(f"global_load_dword {v(5)}, {v(4)}, {sp(SPFP)}\ns_waitcnt vmcnt(0)")
            self.stamp(30)
        pf = self.o.get("pf", 2)
        if pf == 4:
            p(f"s_lshl_b32 s{SD}, s{SB_}, 2\ns_add_u32 s{SD}, s{SD}, s{SWV}\ns_and_b32 s{SE}, s2, 7")
            p(f"s_lshr_b32 s{SA}, s{SE}, 1\ns_lshl_b32 s{SA}, s{SA}, 6\ns_add_u32 s{SA}, s{SA}, s{SD}")
            p(f"s_and_b32 s{SC}, s{SE}, 1\ns_lshl_b32 s{SC}, s{SC}, 5\ns_and_b32 s{SPFE}, s{SD}, 31\ns_add_u32 s{SC}, s{SC}, s{SPFE}")
            p(f"s_cmp_ge_u32 s{SD}, 64\ns_cselect_b32 s{SA}, s{SC}, s{SA}\ns_cselect_b32 s{SC}, 24, 0\ns_cmp_ge_u32 s{SD}, 96\ns_cselect_b32 s{SC}, 32, s{SC}")
            p(f"s_load_dwordx2 {sp(SPFP)}, s[0:1], s{SC}\ns_lshl_b32 s{SA}, s{SA}, 13\nv_lshl_add_u32 {v(4)}, {v(VL)}, 7, s{SA}")
            p(f"v_mul_u32_u24 {v(6)}, 37, {v(VL)}\nv_lshrrev_b32 {v(6)}, 8, {v(6)}")
            p(f"v_mul_u32_u24 {v(7)}, 7, {v(6)}\nv_sub_u32 {v(7)}, {v(VL)}, {v(7)}\nv_lshlrev_b32 {v(7)}, 7, {v(7)}\nv_min_u32 {v(7)}, 700, {v(7)}")
            p(f"v_min_u32 {v(6)}, 7, {v(6)}\nv_mul_u32_u24 {v(6)}, 1376, {v(6)}\nv_add_u32 {v(6)}, {v(6)}, {v(7)}")
            p(f"s_mul_i32 s{SA}, s{SD}, {4*2752}\ns_and_b32 s{SE}, s{SE}, 1\ns_mul_i32 s{SE}, s{SE}, 704\ns_add_u32 s{SA}, s{SA}, s{SE}\nv_add_u32 {v(6)}, s{SA}, {v(6)}\nv_min_u32 {v(6)}, {512*2752-4}, {v(6)}")
        if pf == 3:
            p(f"s_lshl_b32 s{SD}, s{SWV}, 8\ns_add_u32 s{SD}, s{SD}, s2\ns_mov_b32 s{SC}, 0\ns_mov_b32 s{SA}, 0")
            for (lo, off) in [(256, 80), (428, 24), (492, 32), (556, 40), (620, 48), (684, 104)]:
                p(f"s_cmp_ge_u32 s{SD}, {lo}\ns_cselect_b32 s{SC}, {off}, s{SC}\ns_cselect_b32 s{SA}, {lo}, s{SA}")
            p(f"s_cmp_lt_u32 s{SD}, 770\ns_cselect_b32 s{SPFE}, 1, 0")
            p(f"s_sub_u32 s{SD}, s{SD}, s{SA}\ns_load_dwordx2 {sp(SPFP)}, s[0:1], s{SC}")
            p(f"s_lshl_b32 s{SD}, s{SD}, 13\nv_lshl_add_u32 {v(4)}, {v(VL)}, 7, s{SD}")
        if pf == 1:
            p(f"s_lshl_b32 s{SD}, s2, 2\ns_add_u32 s{SD}, s{SD}, s{SWV}\ns_mov_b32 s{SC}, 0\ns_mov_b32 s{SA}, 0")
            for (lo, off) in [(256, 80), (428, 24), (492, 32)]:
                p(f"s_cmp_ge_u32 s{SD}, {lo}\ns_cselect_b32 s{SC}, {off}, s{SC}\ns_cselect_b32 s{SA}, {lo}, s{SA}")
            p(f"s_cmp_lt_u32 s{SD}, 556\ns_cselect_b32 s{SPFE}, 1, 0")
            p(f"s_sub_u32 s{SD}, s{SD}, s{SA}\ns_load_dwordx2 {sp(SPFP)}, s[0:1], s{SC}")
            p(f"s_lshl_b32 s{SD}, s{SD}, 13\nv_lshl_add_u32 {v(4)}, {v(VL)}, 7, s{SD}")
        if pf == 2:
            p(f"s_lshl_b32 s{SD}, s{SWV}, 8\ns_add_u32 s{SD}, s{SD}, s2\ns_mov_b32 s{SC}, 0\ns_mov_b32 s{SA}, 0\ns_mov_b32 s{SE}, 2047")
            for (lo, off, last) in [(171, 24, 511), (214, 32, 511), (257, 80, 0)]:
                p(f"s_cmp_ge_u32 s{SD}, {lo}\ns_cselect_b32 s{SC}, {off}, s{SC}\ns_cselect_b32 s{SA}, {lo}, s{SA}\ns_cselect_b32 s{SE}, {last}, s{SE}")
            p(f"s_cmp_lt_u32 s{SD}, 365\ns_cselect_b32 s{SPFE}, 1, 0")
            p(f"s_sub_u32 s{SD}, s{SD}, s{SA}\ns_load_dwordx2 {sp(SPFP)}, s[0:1], s{SC}")
            p(f"v_mul_u32_u24 {v(4)}, 52, {v(VL)}\nv_lshrrev_b32 {v(4)}, 8, {v(4)}\nv_mul_u32_u24 {v(5)}, 5, {v(4)}\nv_sub_u32 {v(5)}, {v(VL)}, {v(5)}")
            p(f"s_mul_i32 s{SA}, s{SD}, 12\nv_add_u32 {v(4)}, s{SA}, {v(4)}\nv_min_u32 {v(4)}, s{SE}, {v(4)}\nv_lshlrev_b32 {v(4)}, 10, {v(4)}\nv_lshl_add_u32 {v(4)}, {v(5)}, 7, {v(4)}\nv_add_u32 {v(4)}, 384, {v(4)}")
            p(f"s_lshl_b32 s{SD}, s{SD}, 13\ns_add_u32 s{SD}, s{SD}, {192*2752}\nv_lshl_add_u32 {v(5)}, {v(VL)}, 7, s{SD}\nv_min_u32 {v(5)}, {512*2752-4}, {v(5)}")
            p(f"s_cmp_eq_u32 s{SE}, 0\ns_cselect_b64 vcc, -1, 0\nv_cndmask_b32 {v(4)}, {v(4)}, {v(5)}, vcc")
        self.LU = p.label("U"); self.LG = p.label("G")
        p(f"s_cmp_ge_u32 s{SB_}, 16\ns_cbranch_scc1 {self.LU}")
    def code_prefetch(self, va, vd):
        if not self.o.get("cpf", 1): return
        p = self.p
        sk = p.label("cpf"); here = p.label("pc")
        nsl = self.o.get("cpfn", 6)
        p(f"s_lshr_b32 s{SA}, s2, 3\ns_and_b32 s{SA}, s{SA}, 15\ns_lshl_b32 s{SA}, s{SA}, 2\ns_add_u32 s{SA}, s{SA}, s{SWV}")
        p(f"s_cmp_ge_u32 s{SA}, {nsl}\ns_cbranch_scc1 {sk}")
        p(f"s_getpc_b64 s[{SSTMP}:{SSTMP+1}]")
        p.put(here)
        p(f"s_sub_u32 s{SSTMP}, s{SSTMP}, {here}-{NAME}\ns_subb_u32 s{SSTMP+1}, s{SSTMP+1}, 0")
        p(f"s_lshl_b32 s{SA}, s{SA}, 13\nv_lshl_add_u32 {v(va)}, {v(VL)}, 7, s{SA}\nv_min_u32 {v(va)}, {self.END}-{NAME}, {v(va)}")
        p(f"global_load_dword {v(vd)}, {v(va)}, s[{SSTMP}:{SSTMP+1}]")
        p.put(sk)
    def pf1(self, when=1):
        if self.o.get("pf", 2) == 4 and self.o.get("pfw", 5) == when:
            self.p.vmem(f"global_load_dword {v(7)}, {v(6)}, {sp(PWIN)}")
            self.p.vmem(f"global_load_dword {v(5)}, {v(4)}, {sp(SPFP)}")
        if {3: 1, 2: self.o.get("pfw2", 2)}.get(self.o.get("pf", 2), self.o.get("pf", 2)) == when:
            p = self.p; l = p.label("pf")
            p(f"s_cmp_eq_u32 s{SPFE}, 0\ns_cbranch_scc1 {l}\nglobal_load_dword {v(5)}, {v(4)}, {sp(SPFP)}")
            p.put(l)
        if self.o.get("wfirst") == when: self.touch_wsp(11, 12, 0, 1)
    def tlb_warm(self):
        p = self.p
        ls = [p.label("tw") for _ in range(4)]
        p(f"v_lshlrev_b32 {v(6)}, 19, {v(VL)}\nv_mov_b32 {v(7)}, 0")
        p(f"s_cmp_eq_u32 s{SWV}, 1\ns_cbranch_scc1 {ls[0]}\ns_cmp_eq_u32 s{SWV}, 2\ns_cbranch_scc1 {ls[1]}\ns_cmp_eq_u32 s{SWV}, 3\ns_cbranch_scc1 {ls[2]}")
        p(f"buffer_load_dword {v(8)}, {v(6)}, {srd(SWS)}, 0 offen sc1\nglobal_load_ushort {v(9)}, {v(7)}, {sp(PGW)}\ns_branch {ls[3]}")
        p.put(ls[0]); p(f"buffer_load_dword {v(8)}, {v(6)}, {srd(SWSP)}, 0 offen\nglobal_load_ushort {v(9)}, {v(7)}, {sp(PBSP)}\nglobal_load_ushort {v(10)}, {v(7)}, {sp(PDSK)}\ns_branch {ls[3]}")
        p.put(ls[1]); p(f"buffer_load_dword {v(8)}, {v(6)}, {srd(SOUT)}, 0 offen sc1\nbuffer_load_dword {v(9)}, {v(6)}, {srd(SWOUT)}, 0 offen\ns_branch {ls[3]}")
        p.put(ls[2]); p(f"buffer_load_dword {v(8)}, {v(6)}, {srd(SCRE)}, 0 offen\nbuffer_load_dword {v(9)}, {v(6)}, {srd(SCIM)}, 0 offen")
        p.put(ls[3])
    def late_args(self):
        p = self.p
        if self.o.get("tlb", 1):
            if self.o.get("tlb", 1) == 1: self.tlb_warm()
            self.pf1(5)
            p(f"s_load_dword s{ST_T}, {sp(SWS)}, {EPOCH}")
            return
        for (r, off) in [(SWSP, 88), (SCRE, 40), (SCIM, 48), (SWOUT, 104), (SOUT, 120), (PDSK, 64), (PBSP, 96)]:
            p(f"s_load_dwordx2 {sp(r)}, s[0:1], {off}")
        p(f"s_load_dword s{ST_T}, {sp(SWS)}, {EPOCH}")
        for (r, n) in [(SWSP, 8388608), (SWS, WS_END), (SCRE, 524288), (SCIM, 524288), (SWOUT, 704512), (SOUT, 4194304)]:
            p(f"s_mov_b32 s{r+2}, {n}\ns_mov_b32 s{r+3}, 0x20000")
    def epoch2(self):
        p = self.p
        p.wait_lg_all()
        p(f"s_mul_i32 s{ST_T}, s{ST_T}, 0x9E3779B1\ns_add_u32 s{ST_T}, s{ST_T}, 0x7F4A7C15")

    def touch_wsp(self, va, vd, k, n):
        p = self.p
        if k == 0:
            p(f"s_lshr_b32 s{SB_}, s2, 3\ns_lshl_b32 s{SB_}, s{SB_}, 2\ns_add_u32 s{SB_}, s{SB_}, s{SWV}\ns_lshl_b32 s{SB_}, s{SB_}, 13")
            p(f"s_and_b32 s{SA}, s2, 7\ns_lshl_b32 s{SA}, s{SA}, 20\ns_add_u32 s87, s{SA}, s{SB_}")
            p(f"v_cmp_gt_u32 vcc, {64//n}, {v(VL)}\nv_lshlrev_b32 {v(va)}, 7, {v(VL)}\ns_nop 0\nv_cndmask_b32 {v(va)}, {v(VOOB)}, {v(va)}, vcc")
        else: p(f"s_add_u32 s87, s87, {8192//n}")
        p.vmem(f"buffer_load_dword {v(vd)}, {v(va)}, {srd(SWSP)}, s87 offen {self.o.get('tmod', '')}")
    def ctouch(self, va, vd):
        p = self.p; l = p.label("ct")
        p(f"s_lshl_b32 s{SA}, s{SWV}, 8\ns_add_u32 s{SA}, s{SA}, s2\ns_cmp_ge_u32 s{SA}, 856\ns_cbranch_scc1 {l}")
        p(f"s_cmp_lt_u32 s{SA}, 256\ns_cselect_b64 {sp(SSTMP)}, {sp(SCRE)}, {sp(SCIM)}")
        p(f"s_sub_u32 s{SB_}, s{SA}, 512\ns_and_b32 s{SSPIN}, s{SA}, 255\ns_cmp_ge_u32 s{SA}, 512\ns_cselect_b64 {sp(SSTMP)}, {sp(SWOUT)}, {sp(SSTMP)}\ns_cselect_b32 s{SA}, s{SB_}, s{SSPIN}")
        p(f"s_lshl_b32 s{SA}, s{SA}, 11\nv_and_b32 {v(vd)}, 15, {v(VL)}\nv_lshlrev_b32 {v(vd)}, 7, {v(vd)}\nv_add_u32 {v(vd)}, s{SA}, {v(vd)}")
        p(f"global_load_dword {v(vd)}, {v(vd)}, {sp(SSTMP)}")
        p.put(l)
    def paced(self, valu, va, vd, t0, dt):
        if "ct" in self.o: valu.setdefault(self.o["ct"], []).append(lambda: self.ctouch(va, vd + 1 if vd != 205 else 4))
        n = self.o.get("tn", 4)
        if self.o.get("touch", 1) != 1: return
        for k in range(n):
            valu.setdefault(t0 + k * dt, []).append(lambda k=k: self.touch_wsp(va, vd, k, n))
    def touch_c(self, va, vd):
        p = self.p
        p(f"v_lshlrev_b32 {v(va)}, 7, {v(VL)}\ns_lshr_b32 s{SB_}, s2, 3\ns_lshl_b32 s{SB_}, s{SB_}, 2\ns_add_u32 s{SB_}, s{SB_}, s{SWV}\ns_lshl_b32 s{SA}, s{SB_}, 13")
        p.vmem(f"buffer_load_dword {v(vd)}, {v(va)}, {srd(SWOUT)}, s{SA} offen")
        p.vmem(f"buffer_load_dword {v(vd)}, {v(va)}, {srd(SCRE)}, s{SA} offen")
        p.vmem(f"buffer_load_dword {v(vd)}, {v(va)}, {srd(SCIM)}, s{SA} offen")
        p(f"s_add_u32 s{SA}, s{SA}, 524288")
        p.vmem(f"buffer_load_dword {v(vd)}, {v(va)}, {srd(SWOUT)}, s{SA} offen")
    GTR, GPL = 236, 238
    def g_early(self, t):
        p = self.p
        p(f"s_lshr_b32 s{SA}, s{SWV}, 1\ns_mul_i32 s{SGL}, s{SA}, 81920")
        p(f"v_bfe_u32 {v(t)}, {v(VL)}, 4, 1\nv_xor_b32 {v(t)}, s{SA}, {v(t)}\nv_lshlrev_b32 {v(t)}, 4, {v(t)}")
        p(f"v_bfe_u32 {v(t+1)}, {v(VL)}, 2, 1\nv_lshl_add_u32 {v(t)}, {v(t+1)}, 3, {v(t)}\nv_bfe_u32 {v(t+1)}, {v(VL)}, 3, 1\nv_lshl_add_u32 {v(t)}, {v(t+1)}, 2, {v(t)}")
        p(f"v_and_b32 {v(t+1)}, 35, {v(VL)}\nv_add_lshl_u32 {v(t)}, {v(t)}, {v(t+1)}, 4\nv_add_u32 {v(self.GTR)}, s{SGL}, {v(t)}")
        p.atom(f"s_cmp_lt_u32 s{SJ}, 7\ns_cselect_b32 s{SB_}, 24, 8")
        p(f"v_and_b32 {v(t)}, 31, {v(VL)}\nv_cmp_gt_u32 vcc, s{SB_}, {v(t)}\ns_nop 1\nv_cndmask_b32 {v(self.GTR+1)}, {v(VOOB)}, {v(VL16)}, vcc")
        p(f"s_lshl_b32 s{SB_}, s{SJ}, 2\ns_add_u32 s{SB_}, s{SB_}, s{SA}\ns_lshl_b32 s{SA}, s{SKH}, 1\ns_add_u32 s{SB_}, s{SB_}, s{SA}\ns_lshl_b32 s{SB_}, s{SB_}, 4")
        p(f"s_and_b32 s{SA}, s{SWV}, 1\ns_add_u32 s{SGB}, s{SB_}, s{SA}\ns_mul_i32 s{SGB}, s{SGB}, 6144\ns_add_u32 s{SGB}, s{SGB}, {Z2N}\ns_mul_i32 s{SA}, s{SA}, 6144\ns_add_u32 s{SGL}, s{SGL}, s{SA}")
        p(f"s_lshl_b32 s{SB_}, s{SB_}, 7\ns_add_u32 s{SB_}, s{SB_}, {ZF}")
        self.poll_addr(self.GPL, [(SB_, 16)])
        p(f"s_lshr_b32 s{SA}, s{STB}, 1\ns_lshl_b32 s{SA}, s{SA}, 9\ns_add_u32 s{SA}, s{SA}, {ZF}")
        p(f"v_add_u32 {v(t)}, 16, {v(VL)}\nv_bfe_u32 {v(t)}, {v(t)}, 2, 3\nv_lshlrev_b32 {v(t)}, 13, {v(t)}\nv_and_b32 {v(t+1)}, 3, {v(VL)}\nv_lshl_add_u32 {v(t)}, {v(t+1)}, 7, {v(t)}\nv_add_u32 {v(t)}, s{SA}, {v(t)}")
        p(f"s_mov_b32 vcc_lo, 0xffff0000\ns_mov_b32 vcc_hi, 0xffff\nv_cndmask_b32 {v(self.GPL)}, {v(self.GPL)}, {v(t)}, vcc")
        p(f"s_lshr_b32 s{SA}, s{STB}, 1\ns_lshl_b32 s{SA}, s{SA}, 1\ns_and_b32 s{SB_}, s{SWV}, 1\ns_add_u32 s{SA}, s{SA}, s{SB_}\ns_lshl_b32 s{SA}, s{SA}, 1\ns_add_u32 s{SA}, s{SA}, s{SKH}")
        p(f"s_lshl_b32 s{SB_}, s{SJ}, 6\ns_add_u32 s{SZI}, s{SA}, s{SB_}")
    def g_poll_issue(self):
        self.gp = self.p.vmem(f"buffer_load_dword {v(self.GPL+1)}, {v(self.GPL)}, {srd(SWS)}, 0 offen sc1")

    def phase_z(self):
        p = self.p; o = self.o
        ACC, FA, FB, XR, WR, XD, WD, T = 16, 64, 88, 96, 100, 104, 108, 112
        p.c("==== phase A: Z ====")
        self.plain_dma_addr(XD, 1024, T)
        p(f"s_lshl_b32 s{SXB}, s{SRB}, 17\ns_lshl_b32 s{SA}, s{SWV}, 15\ns_add_u32 s{SXB}, s{SXB}, s{SA}")
        p(f"s_mul_i32 s{SREG}, s{SWV}, 40960")
        tick = {}
        def xdma(st, cb=None):
            return [((SREG, (st & 3) * 4096) if i == 0 else None, (SXB, st * 128) if i == 0 else None,
                     f"buffer_load_dwordx4 {v(XD+i)}, {srd(SX)}, s{SDO} offen offset:{i*1024} lds", cb) for i in range(4)]
        def wdma(st, cb=None):
            return [((SWL, (st & 3) * 40960) if i == 0 else None, (SW1B, st * 64 * 2752) if i == 0 else None,
                     f"buffer_load_dwordx4 {v(WD+i)}, {srd(SW1)}, s{SDO} offen offset:{i*1024} lds", cb) for i in range(3)]
        def dma(st):
            def cb(t): tick[st] = t
            return self.dseq(wdma(st) + xdma(st, cb))
        self.w_dma_addr(WD, T, 1376)
        p(f"s_mul_i32 s{SW1B}, s{SWV}, {16*2752}\ns_mul_i32 s{SA}, s{SCOL}, 176\ns_add_u32 s{SW1B}, s{SW1B}, s{SA}")
        p(f"s_mul_i32 s{SWL}, s{SWV}, 3072\ns_add_u32 s{SWL}, s{SWL}, 16384\ns_mov_b32 s{SW1+2}, {512*2752}")
        if o.get("sst"): p(f"s_memrealtime s[82:83]")
        p.wait_lg_all()
        if o.get("sst"): p("v_writelane_b32 v255, s82, 21"); self.stamp(22)
        p(f"s_mov_b64 {sp(SW1)}, {sp(PWIN)}")
        npro = o.get("npro", 3)
        self.code_prefetch(170, 171)
        self.pf1()
        self.run(dma(0))
        if o.get("sst"): self.stamp(23)
        self.late_args()
        def setup():
            self.plain_read_addr(XR, SREG, T)
            self.w_tr_addr(WR, 16384, T)
            self.p(f"v_add_u32 {v(WR+1)}, 81920, {v(WR)}")
            self.wsp_setup(T)
            self.p(f"s_add_u32 s{SPB}, s{SREG}, 32768\ns_mov_b32 s{SPB+1}, s{SREG}\ns_add_u32 s{SPB+2}, s{SREG}, 8192\ns_add_u32 s{SPB+3}, s{SREG}, 16384\ns_add_u32 s{SPB+4}, s{SREG}, 24576")
            self.valid_masks()
        d = []
        for st in range(1, npro): d += dma(st)
        self.run(merge(self.cap(setup), d))
        def prefill(u0, u1):
            if u0 == 0:
                p(f"s_lshl_b32 s{SCB}, s{SRB}, 2\ns_add_u32 s{SCB}, s{SCB}, s{SWV}\ns_mul_i32 s{SCB}, s{SCB}, 45056\ns_mul_i32 s{SA}, s{SCOL}, 5632\ns_add_u32 s{SCB}, s{SCB}, s{SA}\ns_add_u32 s{SCB}, s{SCB}, {PB}")
                for k in range(4): p(f"v_mov_b32 {v(176+k)}, -1")
            for u in range(u0, u1):
                if u == 4: p(f"s_add_u32 s{SCB}, s{SCB}, 4096")
                if u == 5: p("s_mov_b32 exec_hi, 0")
                p.vmem(f"buffer_store_dwordx4 {v(176,4)}, {v(VL16)}, {srd(SWS)}, s{SCB} offen offset:{(u%4)*1024} sc1")
                if u == 5: p("s_mov_b32 exec_hi, -1")
        self.pf1(2)
        self.epoch2()
        self.stamp(0)
        rt = {}
        def reads(n):
            st, ks = n // 4, n % 4; sl = st & 3; s = n & 1; ops = []
            def rb(): rt[(n, 'b')] = p.lds(f"ds_read_b128 {v(FB+4*s,4)}, {v(XR+ks)} offset:{sl*4096}")
            ops.append(rb)
            for mt in range(3):
                for a in range(2):
                    def ra(mt=mt, a=a):
                        rt[(n, mt)] = p.lds(f"ds_read_b64_tr_b16 {v(FA+12*s+4*mt+2*a,2)}, {v(WR+(sl>>1))} offset:{(sl&1)*40960+ks*3072+a*768+mt*64}")
                    ops.append(ra)
            return ops
        def mfmas(n):
            s = n & 1; ops = []
            for mt in range(3):
                def m(mt=mt):
                    p.wait(lg=rt[(n, mt)])
                    c = "0" if n == 0 else v(ACC + 16 * mt, 16)
                    p(f"{MF} {v(ACC+16*mt,16)}, {v(FA+12*s+4*mt,4)}, {v(FB+4*s,4)}, {c}")
                ops.append(m)
            return ops
        GX, GW, GU, GS, GT = 128, 144, 148, 156, 160
        gt = {}
        def gload():
            p(f"s_lshl_b32 s{SE}, s{SRB}, 2\ns_add_u32 s{SE}, s{SE}, s{SWV}\ns_lshl_b32 s{SE}, s{SE}, 3\ns_add_u32 s{SE}, s{SE}, s{SCOL}\ns_lshl_b32 s{SA}, s{SE}, 12")
            for r in range(4): p.vmem(f"buffer_load_dwordx4 {v(GX+4*r,4)}, {v(VL16)}, {srd(SX)}, s{SA} offen offset:{r*1024}")
            gt['t'] = p.vmem(f"global_load_dwordx4 {v(GW,4)}, {v(VL16)}, {sp(PGW)}")
        def gstore():
            p(f"s_lshl_b32 s{SA}, s{SE}, 4\ns_add_u32 s{SA}, s{SA}, {GATE}")
            p.vmem(f"buffer_store_dwordx4 {v(GS,4)}, {v(GT)}, {srd(SWS)}, s{SA} offen sc1")
        gops = [lambda: p.wait(vm=gt['t'])] + self.cap(lambda: self.gate(GX, GW, GU, GS, GT)) + [gstore]
        zm = o.get('zmode', 1)
        valu = {(28 if zm == 1 else 13): [gload]}
        def touch_u():
            p(f"v_lshlrev_b32 {v(170)}, 7, {v(VL)}\ns_lshr_b32 s{SB_}, s2, 3\ns_lshl_b32 s{SB_}, s{SB_}, 2\ns_add_u32 s{SB_}, s{SB_}, s{SWV}\ns_lshl_b32 s{SB_}, s{SB_}, 13")
            p(f"s_and_b32 s{SA}, s2, 7\ns_lshl_b32 s{SA}, s{SA}, 20\ns_add_u32 s{SA}, s{SA}, s{SB_}\ns_add_u32 s{SA}, s{SA}, {1<<19}")
            p.vmem(f"buffer_load_dword {v(171)}, {v(170)}, {srd(SWSP)}, s{SA} offen")
        def warm():
            p(f"v_lshlrev_b32 {v(170)}, 18, {v(VL)}\nv_lshlrev_b32 {v(172)}, 16, {v(VL)}\nv_lshlrev_b32 {v(173)}, 13, {v(VL)}")
            ls = [p.label("wm") for _ in range(4)]
            p(f"s_cmp_eq_u32 s{SWV}, 1\ns_cbranch_scc1 {ls[0]}\ns_cmp_eq_u32 s{SWV}, 2\ns_cbranch_scc1 {ls[1]}\ns_cmp_eq_u32 s{SWV}, 3\ns_cbranch_scc1 {ls[2]}")
            p(f"buffer_load_dword {v(171)}, {v(170)}, {srd(SWS)}, 0 offen sc1\ns_branch {ls[3]}")
            p.put(ls[0]); p(f"buffer_load_dword {v(171)}, {v(172)}, {srd(SOUT)}, 0 offen sc1\ns_branch {ls[3]}")
            p.put(ls[1]); p(f"buffer_load_dword {v(171)}, {v(173)}, {srd(SCRE)}, 0 offen\nbuffer_load_dword {v(171)}, {v(173)}, {srd(SCIM)}, 0 offen\ns_branch {ls[3]}")
            p.put(ls[2]); p(f"v_lshlrev_b32 {v(173)}, 14, {v(VL)}\nbuffer_load_dword {v(171)}, {v(173)}, {srd(SWOUT)}, 0 offen")
            p.put(ls[3])
        if o.get("warm"): valu[31] = [warm]
        def ztouch(part):
            if part == 0:
                p(f"s_lshr_b32 s{SB_}, s2, 3\ns_lshl_b32 s{SB_}, s{SB_}, 2\ns_add_u32 s{SB_}, s{SB_}, s{SWV}")
                p(f"s_and_b32 s{SA}, s2, 7\ns_lshl_b32 s{SPFP+1}, s{SB_}, 3\ns_add_u32 s{SPFP+1}, s{SPFP+1}, s{SA}")
                p(f"s_lshr_b32 s{SA}, s{SA}, 1\ns_lshl_b32 s{SA}, s{SA}, 21\ns_lshl_b32 s{SB_}, s{SB_}, 14\ns_add_u32 s{SPFP}, s{SA}, s{SB_}\ns_lshl_b32 s{SA}, s{SKH}, 11\ns_add_u32 s{SPFP}, s{SPFP}, s{SA}")
                p(f"v_lshrrev_b32 {v(173)}, 4, {v(VL)}\nv_lshlrev_b32 {v(173)}, 12, {v(173)}\nv_and_b32 {v(174)}, 15, {v(VL)}\nv_lshl_add_u32 {v(173)}, {v(174)}, 7, {v(173)}\nv_lshlrev_b32 {v(174)}, 7, {v(VL)}")
                p.vmem(f"buffer_load_dword {v(175)}, {v(173)}, {srd(SWSP)}, s{SPFP} offen")
            if part == 1:
                p(f"s_add_u32 s{SPFP}, s{SPFP}, {1<<20}")
                p.vmem(f"buffer_load_dword {v(175)}, {v(173)}, {srd(SWSP)}, s{SPFP} offen")
            if part == 2:
                l = p.label("zt")
                p(f"s_cmp_ge_u32 s{SPFP+1}, 428\ns_cbranch_scc1 {l}")
                p(f"s_cmp_lt_u32 s{SPFP+1}, 128\ns_cselect_b64 {sp(SSTMP)}, {sp(SCRE)}, {sp(SCIM)}\ns_and_b32 s{SA}, s{SPFP+1}, 127")
                p(f"s_sub_u32 s{SB_}, s{SPFP+1}, 256\ns_cmp_ge_u32 s{SPFP+1}, 256\ns_cselect_b64 {sp(SSTMP)}, {sp(SWOUT)}, {sp(SSTMP)}\ns_cselect_b32 s{SA}, s{SB_}, s{SA}")
                p(f"s_lshl_b32 s{SA}, s{SA}, 12\nv_and_b32 {v(174)}, 4095, {v(174)}\nv_add_u32 {v(174)}, s{SA}, {v(174)}")
                p(f"global_load_dword {v(175)}, {v(174)}, {sp(SSTMP)}")
                p.put(l)
        if o.get("touch", 1) == 2:
            for k in range(3): valu.setdefault(o.get(f"zs{k}", [0, 0, 0][k]), []).append(lambda k=k: ztouch(k))
        else: self.paced(valu, 174, 175, o.get("zt0", 6), o.get("zdt", 6))
        self.gemm_loop(4, reads, mfmas, dma, tick, 2, npro, {o.get('ze0', 5): lambda: self.wsp_dma(0), o.get('ze1', 6): lambda: self.wsp_dma(1)} if zm == 1 else {}, valu)
        self.stamp(1)
        MA, MB = SK + 2, SK + 4
        GR, VLO = 72, 80
        def seg1b():
            p = self.p
            S0, S1, MU = 64, 66, 68
            p(f"v_pk_add_f32 {v(S0,2)}, {v(ACC,2)}, {v(ACC+2,2)}\nv_pk_add_f32 {v(S1,2)}, {v(ACC+4,2)}, {v(ACC+6,2)}")
            for i in range(4, 16):
                s = S0 if i % 2 == 0 else S1
                p(f"v_pk_add_f32 {v(s,2)}, {v(s,2)}, {v(ACC+2*i,2)}")
            for (m, b) in [(MA, 16), (MB, 20)]:
                p(f"s_mov_b64 exec, {sp(m)}")
                for i in range(b, b + 4):
                    s = S0 if i % 2 == 0 else S1
                    p(f"v_pk_add_f32 {v(s,2)}, {v(s,2)}, {v(ACC+2*i,2)}")
            p("s_mov_b64 exec, -1")
            p(f"v_pk_add_f32 {v(S0,2)}, {v(S0,2)}, {v(S1,2)}\nv_add_f32 {v(GR)}, {v(S0)}, {v(S0+1)}")
            p(f"v_mov_b32 {v(S0)}, {v(GR)}\nv_mov_b32 {v(GR+1)}, s{ST_T}\nv_mov_b32 {v(GR+3)}, s{ST_T}\nv_permlane32_swap_b32 {v(GR)}, {v(S0)}\nv_add_f32 {v(GR)}, {v(GR)}, {v(S0)}")
            p(f"v_mul_f32 {v(MU)}, s{SK+6}, {v(GR)}")
            D0, D1 = 76, 78
            def m2(i, first=False):
                d = D0 if i % 2 == 0 else D1; s = S0 if i % 2 == 0 else S1
                p(f"v_pk_add_f32 {v(d,2)}, {v(ACC+2*i,2)}, {v(MU,2)} op_sel_hi:[1,0] neg_lo:[0,1] neg_hi:[0,1]")
                if first: p(f"v_pk_mul_f32 {v(s,2)}, {v(d,2)}, {v(d,2)}")
                else: p(f"v_pk_fma_f32 {v(s,2)}, {v(d,2)}, {v(d,2)}, {v(s,2)}")
            for i in range(16): m2(i, i < 2)
            for (m, b) in [(MA, 16), (MB, 20)]:
                p(f"s_mov_b64 exec, {sp(m)}")
                for i in range(b, b + 4): m2(i)
            p("s_mov_b64 exec, -1")
            p(f"v_pk_add_f32 {v(S0,2)}, {v(S0,2)}, {v(S1,2)}\nv_add_f32 {v(GR+2)}, {v(S0)}, {v(S0+1)}")
            p(f"v_mov_b32 {v(S0)}, {v(GR+2)}\nv_cmp_gt_u32 vcc, 32, {v(VL)}")
            p(f"s_lshl_b32 s{SC}, s{SRB}, 2\ns_add_u32 s{SC}, s{SC}, s{SWV}")
            p(f"v_permlane32_swap_b32 {v(GR+2)}, {v(S0)}\nv_cndmask_b32 {v(VLO)}, {v(VOOB)}, {v(VL16)}, vcc\nv_add_f32 {v(GR+2)}, {v(GR+2)}, {v(S0)}")
            p(f"s_lshl_b32 s{SD}, s{SC}, 12\ns_add_u32 s{SD}, s{SD}, {ST}\ns_lshl_b32 s{SA}, s{SCOL}, 9\ns_add_u32 s{SA}, s{SA}, s{SD}")
        seg1 = self.cap(lambda: self.gelu_many([ACC + 2 * i for i in range(24)], [64, 68, 72, 76]))
        h = len(seg1) // 5
        f1 = self.wsp_dma(2) + [lambda: p("s_barrier")]
        f2 = self.wsp_dma(3) + self.wsp_dma(4)
        if zm == 1: self.run(merge(seg1[:h], f1) + merge(seg1[h:], f2))
        else: self.run(seg1[:h] + [lambda: p("s_barrier")] + seg1[h:])
        seg1b()
        p.vmem(f"buffer_store_dwordx4 {v(GR,4)}, {v(VLO)}, {srd(SWS)}, s{SA} offen sc1")
        self.stamp(2)
        lgw = lambda: p.wait(lg=p.lg - 1)
        Q0, Q1, QA, QB = 112, 113, 114, 115
        MN, VR, N3, I3, TM = 80, 81, 82, 83, 84
        def misc():
            p = self.p
            self.g_early(120)
            p(f"v_lshrrev_b32 {v(Q1)}, 5, {v(VL)}\nv_lshlrev_b32 {v(Q1)}, 6, {v(Q1)}\nv_xor_b32 {v(Q0)}, {v(VL16)}, {v(Q1)}\nv_xor_b32 {v(Q1)}, 128, {v(Q0)}")
            p(f"v_add_u32 {v(Q0)}, s{SPB+4}, {v(Q0)}\nv_add_u32 {v(Q1)}, s{SPB+4}, {v(Q1)}")
            self.unit_tr_addr(124, SPB + 4, 120, False)
            p.atom(f"s_cmp_lt_u32 s{SCOL}, 7\ns_cselect_b32 s{SA}, 24, 8")
            p(f"v_and_b32 {v(QB)}, 31, {v(VL)}\nv_cmp_gt_u32 vcc, s{SA}, {v(QB)}\nv_add_u32 {v(QB)}, 4096, {v(VL16)}\nv_cndmask_b32 {v(QA)}, {v(VOOB)}, {v(QB)}, vcc")
            p(f"s_lshl_b32 s{SA}, s{SCOL}, 6\ns_add_u32 s{SC}, s{SA}, s{SC}\ns_mul_i32 s{SE}, s{SC}, 6144")
            self.flag_prep(118)
            p(f"v_cmp_gt_u32 vcc, 32, {v(VL)}\nv_mov_b32 {v(N3)}, {f2u(72.0)}\nv_mov_b32 {v(TM)}, {f2u(88.0)}\nv_mov_b32 {v(I3)}, {f2u(1/72)}\nv_mov_b32 {v(TM+1)}, {f2u(1/88)}")
            p(f"v_cndmask_b32 {v(N3)}, {v(N3)}, {v(TM)}, vcc\nv_cndmask_b32 {v(I3)}, {v(I3)}, {v(TM+1)}, vcc")
        za = o.get("za", 1)
        f = self.wsp_read(0) + self.wsp_read(1) + [lgw]
        for st in range(5, 5 + za): f += self.wsp_dma(st)
        zs = o.get('zsched', 0)
        if zm == 2: f = self.wsp_dma(0) + self.wsp_dma(1) + (self.wsp_dma(2) if zs else [])
        self.run(merge(gops + self.cap(misc), f))
        self.stamp(3)
        SG = 64
        for q in range(4):
            ts = p.vmem(f"buffer_load_dwordx4 {v(SG+4*q,4)}, {v(VL16)}, {srd(SWS)}, s{SD} offen offset:{q*1024} sc1")
        if zm == 1:
            for st in range(5 + za, 7): self.run(self.wsp_dma(st))
        else: self.run(self.wsp_dma(3) + self.wsp_read(0) if zs else self.wsp_dma(2))
        l = p.label("sp"); dl = p.label("sd")
        p.wait(vm=ts)
        p(f"s_mov_b32 s{SSPIN}, 0")
        p.put(l)
        X0 = 116
        p(f"v_xor_b32 {v(MN)}, s{ST_T}, {v(SG+1)}\nv_xor_b32 {v(VR)}, s{ST_T}, {v(SG+3)}")
        for r in [5, 9, 13]:
            p(f"v_xor_b32 {v(X0)}, s{ST_T}, {v(SG+r)}\nv_xor_b32 {v(X0+1)}, s{ST_T}, {v(SG+r+2)}\nv_or3_b32 {v(MN)}, {v(MN)}, {v(X0)}, {v(X0+1)}")
        p(f"v_or_b32 {v(MN)}, {v(MN)}, {v(VR)}")
        p(f"v_cmp_ne_u32 vcc, 0, {v(MN)}\ns_cmp_eq_u64 vcc, 0\ns_cbranch_scc1 {dl}")
        for q in range(4):
            p(f"buffer_load_dwordx4 {v(SG+4*q,4)}, {v(VL16)}, {srd(SWS)}, s{SD} offen offset:{q*1024} sc1")
        p("s_waitcnt vmcnt(0)")
        p(f"s_add_u32 s{SSPIN}, s{SSPIN}, 1\ns_cmp_lt_u32 s{SSPIN}, {SPIN}\ns_cbranch_scc1 {l}")
        p.put(dl)
        self.stamp(4)
        p(f"v_add_f32 {v(MN)}, {v(SG)}, {v(SG+4)}\nv_add_f32 {v(TM+2)}, {v(SG+8)}, {v(SG+12)}\nv_add_f32 {v(MN)}, {v(MN)}, {v(TM+2)}")
        p(f"v_mov_b32 {v(TM+3)}, {v(MN)}\nv_add_f32 {v(VR)}, {v(SG+2)}, {v(SG+6)}\nv_add_f32 {v(TM+2)}, {v(SG+10)}, {v(SG+14)}")
        p(f"v_permlane32_swap_b32 {v(MN)}, {v(TM+3)}\nv_add_f32 {v(VR)}, {v(VR)}, {v(TM+2)}\nv_add_f32 {v(MN)}, {v(MN)}, {v(TM+3)}")
        p(f"v_mul_f32 {v(MN)}, {f2u(1/688)}, {v(MN)}")
        for q in range(4):
            n_, i_ = (TM, TM + 1) if q < 3 else (N3, I3)
            p(f"v_fma_f32 {v(TM+2)}, {v(SG+4*q)}, {v(i_)}, -{v(MN)}\nv_mul_f32 {v(TM+2)}, {v(TM+2)}, {v(TM+2)}\nv_fmac_f32 {v(VR)}, {v(TM+2)}, {v(n_)}")
        self.xhalf_sum(VR, TM)
        p(f"v_mov_b32 {v(TM)}, {f2u(1e-5)}\nv_fmac_f32 {v(TM)}, {f2u(1/688)}, {v(VR)}\nv_rsq_f32 {v(VR)}, {v(TM)}")
        p(f"s_add_u32 s{SA}, s{SE}, {Z2N}\ns_add_u32 s{SB_}, s{SA}, 4096")
        p(f"v_mul_f32 {v(MN)}, {v(MN)}, {v(VR)}")
        ZP = 88
        for u in range(6):
            mt, q = u >> 1, u & 1
            R4 = range(4 * u, 4 * u + 4)
            for i in R4: p(f"v_pk_fma_f32 {v(ACC+2*i,2)}, {v(ACC+2*i,2)}, {v(MN,2)}, {v(MN,2)} op_sel:[0,1,0] op_sel_hi:[1,1,0] neg_lo:[0,0,1] neg_hi:[0,0,1]")
            for i in R4: p(f"v_cvt_pk_bf16_f32 {v(ZP+i)}, {v(ACC+2*i)}, {v(ACC+2*i+1)}")
            p.lds(f"ds_write_b128 {v(Q0+q)}, {v(ZP+4*u,4)} offset:{mt*2048+q*1024}")
        FO = [(0, 0), (0, 1), (1, 0), (1, 1), (0, 2), (1, 2)]
        zr = {}
        for fi, (ks, mt) in enumerate(FO):
            for a in range(2): zr[fi] = p.lds(f"ds_read_b64_tr_b16 {v(128+4*fi+2*a,2)}, {v(124+a)} offset:{mt*2048+ks*256}")
        p(f"s_lshl_b32 s{SE}, s{SC}, 7\ns_add_u32 s{SE}, s{SE}, {ZF}")
        for fi in range(6):
            p.wait(lg=zr[fi])
            t = p.vmem(f"buffer_store_dwordx4 {v(128+4*fi,4)}, {v(VL16 if fi < 4 else QA)}, {srd(SWS)}, s{SA} offen offset:{(fi%4)*1024} sc1")
        if zs:
            self.run(merge(self.wsp_dma(4) + (self.wsp_dma(5) if zs > 1 else []), self.wsp_read(1) + self.wsp_read(2)))
            p.wait(vm=t)
            self.flag(SE, 118)
            self.run([lgw] + ([] if zs > 1 else self.wsp_dma(5)) + self.wsp_dma(6) + self.wsp_dma(7))
            for st in range(3, 6): self.run(self.wsp_read(st))
            self.g_poll_issue()
            prefill(0, 6)
            for st in range(6, 8): self.run(self.wsp_read(st))
            p(f"s_add_u32 s{SLATE}, s{SE}, {ZF2-ZF}")
            self.stamp(5)
            p(f"s_branch {self.LG}")
            return
        self.run(merge(self.wsp_dma(3), self.wsp_read(0) + self.wsp_read(1) + self.wsp_read(2)))
        p.wait(vm=t)
        self.flag(SE, 118)
        prefill(0, 6); tpf = p.vm - 1
        self.run(self.wsp_dma(4) + [lgw] + self.wsp_dma(5) + self.wsp_dma(6))
        p.wait(vm=tpf)
        p(f"s_add_u32 s{SE}, s{SE}, {ZF2-ZF}")
        self.flag(SE, 118)
        self.run(self.wsp_dma(7))
        for st in range(3, 8): self.run(self.wsp_read(st))
        self.g_poll_issue()
        p(f"s_mov_b32 s{SLATE}, 0")
        self.stamp(5)
        p(f"s_branch {self.LG}")

    def phase_u(self):
        p = self.p; o = self.o
        ACC, ZA, FA, FB, FW, FX = 16, 80, 128, 144, 160, 184
        XR, BR, X1R, WR, XD, BD, WD, T = 192, 196, 200, 204, 206, 210, 214, 60
        p.c("==== phase A: U ====")
        p.put(self.LU)
        WT, WP = SK + 8, SK + 9
        p(f"v_lshrrev_b32 {v(T)}, 5, {v(VL)}\nv_lshlrev_b32 {v(T)}, 15, {v(T)}")
        p(f"v_bfe_u32 {v(T+1)}, {v(VL)}, 3, 1\nv_lshl_add_u32 {v(T)}, {v(T+1)}, 14, {v(T)}")
        p(f"v_bfe_u32 {v(T+1)}, {v(VL)}, 4, 1\nv_lshl_add_u32 {v(T)}, {v(T+1)}, 10, {v(T)}")
        self.plain_dma_addr2(XD, T, T + 1, 2048)
        p(f"s_lshr_b32 s{WP}, s{SWV}, 1\ns_and_b32 s{WT}, s{SWV}, 1\ns_lshl_b32 s{SA}, s{WT}, 5")
        for i in range(4): p(f"v_xor_b32 {v(XD+i)}, s{SA}, {v(XD+i)}")
        self.plain_dma_addr(BD, 1024, T)
        self.w_dma_addr(WD, T, 0)
        p(f"s_lshl_b32 s{SXB}, s{SRB}, 17\ns_lshl_b32 s{SD}, s{WP}, 16\ns_add_u32 s{SXB}, s{SXB}, s{SD}\ns_lshl_b32 s{SD}, s{WT}, 13\ns_add_u32 s{SXB}, s{SXB}, s{SD}")
        p(f"s_lshl_b32 s{SW1B}, s{SCOL}, 16\ns_lshl_b32 s{SD}, s{WT}, 15\ns_add_u32 s{SW1B}, s{SW1B}, s{SD}")
        p(f"s_lshl_b32 s{SXL}, s{SWV}, 12\ns_mov_b32 s{SW1+2}, 524288")
        SWIB = SCB
        p(f"s_mul_i32 s{SWIB}, s{SWV}, {16*2752}\ns_mul_i32 s{SA}, s{SCOL}, 176\ns_add_u32 s{SWIB}, s{SWIB}, s{SA}")
        p(f"s_mul_i32 s{SWL}, s{SWV}, 3072\ns_add_u32 s{SWL}, s{SWL}, 98304\ns_mov_b32 s{PWIN+2}, {512*2752}\ns_mov_b32 s{PWIN+3}, 0x20000")
        PR = 228
        p(f"s_lshl_b32 s{SD}, s{SRB}, 1\ns_add_u32 s{SD}, s{SD}, s{WT}")
        p(f"s_lshl_b32 s{SA}, s{SCOL}, 1\ns_add_u32 s{SA}, s{SA}, s{WP}")
        p(f"s_lshl_b32 s{SE}, s{SD}, 4\ns_add_u32 s{SE}, s{SE}, s{SA}")
        p(f"s_lshl_b32 s{SA}, s{SA}, 5\nv_and_b32 {v(T)}, 31, {v(VL)}\nv_add_lshl_u32 {v(T)}, {v(T)}, s{SA}, 1")
        if o.get("sst"): p(f"s_memrealtime s[82:83]")
        p.wait_lg_all()
        if o.get("sst"): p("v_writelane_b32 v255, s82, 21"); self.stamp(22)
        p(f"s_cmp_eq_u32 s{WP}, 0\ns_cselect_b64 {sp(SW1)}, {sp(PBRE)}, {sp(PBIM)}")
        tick = {}
        def dma(st):
            sl = st % 3; items = []
            def cb(t): tick[st] = t
            for i in range(3):
                items.append(((SWL, sl * 12288) if i == 0 else None, (SWIB, st * 64 * 2752) if i == 0 else None,
                              f"buffer_load_dwordx4 {v(WD+i)}, {srd(PWIN)}, s{SDO} offen offset:{i*1024} lds", None))
            for (vd, sr, sb, lb) in [(XD, SX, SXB, 0), (BD, SW1, SW1B, 49152)]:
                for i in range(4):
                    items.append(((SXL, lb + sl * 16384) if i == 0 else None, (sb, st * 128) if i == 0 else None,
                                  f"buffer_load_dwordx4 {v(vd+i)}, {srd(sr)}, s{SDO} offen offset:{i*1024} lds", cb))
            return self.dseq(items)
        self.pf1()
        self.run(dma(0))
        if o.get("sst"): self.stamp(23)
        p.vmem(f"global_load_ushort {v(PR)}, {v(T)}, {sp(PLRE)}")
        p.vmem(f"global_load_ushort {v(PR+1)}, {v(T)}, {sp(PLIM)}")
        tp = p.vmem(f"global_load_ushort {v(PR+2)}, {v(T)}, {sp(PLDT)}")
        npro = o.get("npro_u", 2)
        self.late_args()
        def setup():
            p = self.p
            p(f"s_mul_i32 s{SREG}, s{SWV}, 40960\ns_lshl_b32 s{SA}, s{WT}, 13")
            self.plain_read_addr(XR, SA, T)
            p(f"s_lshl_b32 s{SA}, s{WP}, 12\ns_add_u32 s{SA}, s{SA}, 49152")
            self.plain_read_addr(BR, SA, T)
            self.w_tr_addr(WR, 98304, T)
            p(f"v_bfe_u32 {v(T)}, {v(VL)}, 3, 1\nv_lshlrev_b32 {v(T+1)}, 12, {v(T)}\nv_xor_b32 {v(T)}, s{WT}, {v(T)}\nv_lshlrev_b32 {v(T)}, 1, {v(T)}")
            p(f"v_bfe_u32 {v(T+2)}, {v(VL)}, 1, 2\nv_lshl_add_u32 {v(T+1)}, {v(T+2)}, 10, {v(T+1)}")
            p(f"v_and_b32 {v(T+2)}, 1, {v(T+2)}\nv_lshl_add_u32 {v(T)}, {v(T+2)}, 2, {v(T)}")
            p(f"v_and_b32 {v(T+2)}, 1, {v(VL)}\nv_lshl_add_u32 {v(T+1)}, {v(T+2)}, 8, {v(T+1)}\nv_or_b32 {v(T)}, {v(T)}, {v(T+2)}")
            p(f"v_bfe_u32 {v(T+2)}, {v(VL)}, 4, 1\nv_lshl_add_u32 {v(T+1)}, {v(T+2)}, 7, {v(T+1)}")
            p(f"s_lshl_b32 s{SA}, s{WP}, 13\ns_lshl_b32 s{SB_}, s{WT}, 9\ns_add_u32 s{SA}, s{SA}, s{SB_}\nv_add_u32 {v(T+1)}, s{SA}, {v(T+1)}")
            p(f"v_lshrrev_b32 {v(T+2)}, 5, {v(VL)}\nv_xor_b32 {v(T)}, {v(T)}, {v(T+2)}\nv_lshlrev_b32 {v(T)}, 4, {v(T)}")
            for ks in range(4): p(f"v_xor_b32 {v(X1R+ks)}, {32*ks}, {v(T)}\nv_add_u32 {v(X1R+ks)}, {v(X1R+ks)}, {v(T+1)}")
            self.wsp_setup(T)
            p(f"s_lshl_b32 s{SPB+1}, s{WT}, 13\ns_mul_i32 s{SA}, s{WP}, 49152\ns_add_u32 s{SPB+1}, s{SPB+1}, s{SA}\ns_add_u32 s{SPB}, s{SPB+1}, 32768\ns_add_u32 s{SPB+2}, s{SPB+1}, 16384")
            p(f"s_lshl_b32 s{SA}, s{SWV}, 13\ns_add_u32 s{SPB+3}, s{SA}, {13*8192}\ns_add_u32 s{SPB+4}, s{SA}, {17*8192}")
            p.atom(f"s_cmp_eq_u32 s{SWV}, 3\ns_cselect_b32 s{SPB+4}, {12*8192}, s{SPB+4}")
            self.valid_masks()
        self.run(merge(self.cap(setup), (dma(1) if npro > 1 else []) + (dma(2) if npro > 2 else [])))
        LB, CF, L16, L128, L256, LQ0, LQ1 = 218, 220, 222, 224, 226, 228, 230
        X0, X1, X2, X3 = 232, 233, 234, 235
        L32, L64 = 236, 238
        def csq(d, s):
            p = self.p
            p(f"v_mul_f32 {v(X0)}, {v(s+1)}, {v(s+1)}\nv_add_f32 {v(X1)}, {v(s)}, {v(s)}")
            p(f"v_mul_f32 {v(d+1)}, {v(X1)}, {v(s+1)}\nv_fma_f32 {v(d)}, {v(s)}, {v(s)}, -{v(X0)}")
        def cmul(d, a, b):
            p = self.p
            p(f"v_mul_f32 {v(X0)}, {v(a+1)}, {v(b+1)}\nv_mul_f32 {v(X1)}, {v(a+1)}, {v(b)}")
            p(f"v_fma_f32 {v(X0)}, {v(a)}, {v(b)}, -{v(X0)}\nv_fma_f32 {v(d+1)}, {v(a)}, {v(b+1)}, {v(X1)}\nv_mov_b32 {v(d)}, {v(X0)}")
        def cfma(d, a, b, c):
            p = self.p
            p(f"v_fma_f32 {v(X0)}, {v(a)}, {v(b)}, {v(c)}\nv_fma_f32 {v(X1)}, {v(a)}, {v(b+1)}, {v(c+1)}")
            p(f"v_fma_f32 {v(X0)}, -{v(a+1)}, {v(b+1)}, {v(X0)}\nv_fma_f32 {v(d+1)}, {v(a+1)}, {v(b)}, {v(X1)}\nv_mov_b32 {v(d)}, {v(X0)}")
        def params():
            p = self.p
            p(f"v_lshlrev_b32 {v(PR)}, 16, {v(PR)}\nv_lshlrev_b32 {v(PR+1)}, 16, {v(PR+1)}\nv_lshlrev_b32 {v(PR+2)}, 16, {v(PR+2)}")
            p(f"v_mul_f32 {v(X0)}, {f2u(LOG2E)}, {v(PR+2)}\nv_exp_f32 {v(X0)}, {v(X0)}"); self.rnd(X0, X0)
            p(f"v_mul_f32 {v(X1)}, {v(X0)}, {v(PR)}\nv_mul_f32 {v(X2)}, {v(X0)}, {v(PR+1)}")
            p(f"v_mul_f32 {v(X1)}, {f2u(LOG2E)}, {v(X1)}\nv_exp_f32 {v(X1)}, {v(X1)}")
            p(f"v_mul_f32 {v(X2)}, {f2u(1/(2*math.pi))}, {v(X2)}\nv_fract_f32 {v(X2)}, {v(X2)}")
            p(f"v_cos_f32 {v(X3)}, {v(X2)}\nv_sin_f32 {v(X2)}, {v(X2)}")
            p(f"v_mul_f32 {v(X0)}, {v(PR)}, {v(PR)}")
            p(f"v_mul_f32 {v(LB)}, {v(X1)}, {v(X3)}\nv_mul_f32 {v(LB+1)}, {v(X1)}, {v(X2)}")
            p(f"v_fmac_f32 {v(X0)}, {v(PR+1)}, {v(PR+1)}\nv_rcp_f32 {v(X0)}, {v(X0)}")
            p(f"v_add_f32 {v(X1)}, -1.0, {v(LB)}\nv_add_f32 {v(X0)}, {v(X0)}, {v(X0)}")
            p(f"v_mul_f32 {v(X2)}, {v(X1)}, {v(PR)}\nv_fmac_f32 {v(X2)}, {v(LB+1)}, {v(PR+1)}\nv_mul_f32 {v(CF)}, {v(X2)}, {v(X0)}")
            p(f"v_mul_f32 {v(X2)}, {v(LB+1)}, {v(PR)}\nv_fma_f32 {v(X2)}, -{v(X1)}, {v(PR+1)}, {v(X2)}\nv_mul_f32 {v(CF+1)}, {v(X2)}, {v(X0)}")
            csq(L16, LB); csq(L16, L16); csq(L16, L16); csq(L16, L16)
            csq(L32, L16); csq(L64, L32); csq(L128, L64); csq(L256, L128)
            p.atom(f"s_cmp_eq_u32 s{WT}, 0\ns_cselect_b64 vcc, -1, 0")
            p(f"v_cndmask_b32 {v(L64)}, {v(L64)}, 1.0, vcc\nv_cndmask_b32 {v(L64+1)}, {v(L64+1)}, 0, vcc")
            p(f"v_cmp_gt_u32 vcc, 32, {v(VL)}\nv_cndmask_b32 {v(LQ0)}, {v(L32)}, 1.0, vcc\nv_cndmask_b32 {v(LQ0+1)}, {v(L32+1)}, 0, vcc")
            cmul(LQ0, LQ0, L64); cmul(LQ1, LQ0, L16)
        self.pf1(2)
        self.epoch2()
        self.stamp(0)
        pops = [lambda: p.wait(vm=tp)] + self.cap(params)
        valu = {}
        q = (len(pops) + 15) // 16
        for i in range(16): valu[8 + i] = pops[i * q:(i + 1) * q]
        self.paced(valu, 217, 205, o.get("ut0", 4), o.get("udt", 4))
        rt = {}
        def reads(n):
            st, ks = n // 4, n % 4; sl = st % 3; s = n & 1; ops = []
            for k in range(2):
                def ra(k=k): rt[(n, 'a', k)] = p.lds(f"ds_read_b128 {v(FA+8*s+4*k,4)}, {v(XR+(ks^k))} offset:{sl*16384+k*4096}")
                def rb(k=k): rt[(n, 'b', k)] = p.lds(f"ds_read_b128 {v(FB+8*s+4*k,4)}, {v(BR+ks)} offset:{sl*16384+k*8192}")
                ops += [ra, rb]
            def rx(): p.lds(f"ds_read_b128 {v(FX+4*s,4)}, {v(X1R+ks)} offset:{sl*16384}")
            ops.append(rx)
            for mt in range(3):
                for a in range(2):
                    def rw(mt=mt, a=a):
                        rt[(n, 'w', mt)] = p.lds(f"ds_read_b64_tr_b16 {v(FW+12*s+4*mt+2*a,2)}, {v(WR)} offset:{sl*12288+ks*3072+a*768+mt*64}")
                    ops.append(rw)
            return ops
        def mfmas(n):
            s = n & 1; ops = []
            for (mt, cp) in [(0, 0), (1, 0), (1, 1), (0, 1)]:
                def m(mt=mt, cp=cp):
                    if (mt, cp) == (0, 0): p.wait(lg=rt[(n, 'b', 1)])
                    d = v(ACC + 32 * mt + 16 * cp, 16)
                    p(f"{MF} {d}, {v(FA+8*s+4*mt,4)}, {v(FB+8*s+4*cp,4)}, {'0' if n == 0 else d}")
                ops.append(m)
            for mt in range(3):
                def m(mt=mt):
                    if mt == 0: p.wait(lg=rt[(n, 'w', 2)])
                    d = v(ZA + 16 * mt, 16)
                    p(f"{MF} {d}, {v(FW+12*s+4*mt,4)}, {v(FX+4*s,4)}, {'0' if n == 0 else d}")
                ops.append(m)
            return ops
        self.gemm_loop(3, reads, mfmas, dma, tick, 5, npro, {6: lambda: self.wsp_dma(0), 7: lambda: self.wsp_dma(1)}, valu)
        self.stamp(1)
        def U(sg, cp): return ACC + 32 * (sg >> 3) + 16 * cp + 4 * ((sg & 7) >> 1) + 2 * (sg & 1)
        def step(hr, hi, sg, nr, ni, t0, t1):
            p = self.p; A = v(LB, 2)
            p(f"v_pk_fma_f32 {v(t0,2)}, {A}, {v(hr,2)}, {v(U(sg,0),2)} op_sel_hi:[0,1,1]")
            p(f"v_pk_fma_f32 {v(t1,2)}, {A}, {v(hi,2)}, {v(U(sg,1),2)} op_sel_hi:[0,1,1]")
            p(f"v_pk_fma_f32 {v(nr,2)}, {A}, {v(hi,2)}, {v(t0,2)} op_sel:[1,0,0] op_sel_hi:[1,1,1] neg_lo:[1,0,0] neg_hi:[1,0,0]")
            p(f"v_pk_fma_f32 {v(ni,2)}, {A}, {v(hr,2)}, {v(t1,2)} op_sel:[1,0,0] op_sel_hi:[1,1,1]")
        HA, HBb, T0, EX, E8, AD, GR, CQ = 128, 132, 136, 140, 144, 160, 164, 168
        SCR = 98304
        p(f"s_lshl_b32 s{SA}, s{WP}, 11\ns_add_u32 s{SA}, s{SA}, {SCR}")
        p(f"v_and_b32 {v(AD)}, 31, {v(VL)}\nv_lshlrev_b32 {v(AD)}, 6, {v(AD)}\nv_add_u32 {v(AD)}, s{SA}, {v(AD)}")
        p(f"v_lshrrev_b32 {v(AD+1)}, 5, {v(VL)}\nv_lshl_add_u32 {v(AD+1)}, {v(AD+1)}, 4, {v(AD)}\ns_lshl_b32 s{SA}, s{WT}, 5\nv_add_u32 {v(AD+1)}, s{SA}, {v(AD+1)}")
        Z1P = 192
        SZ0, SZ1 = SXL, SWL
        VA_ = 176
        MA, MB = SK + 2, SK + 4
        def z1st(u):
            mt, q = u >> 1, u & 1
            for i in range(4): p(f"v_cvt_pk_bf16_f32 {v(Z1P+4*u+i)}, {v(ZA+8*u+2*i)}, {v(ZA+8*u+2*i+1)}")
            r = v(Z1P + 4 * u, 4)
            if mt < 2: p.vmem(f"buffer_store_dwordx4 {r}, {v(VL16)}, {srd(SWS)}, s{SZ0} offen offset:{mt*2048+q*1024} sc1")
            else: p.vmem(f"buffer_store_dwordx4 {r}, {v(VA_+q)}, {srd(SWS)}, s{SZ1} offen offset:{q*1024} sc1")
        p(f"s_lshl_b32 s{SA}, s{SCOL}, 6\ns_lshl_b32 s{SB_}, s{SRB}, 2\ns_add_u32 s{SA}, s{SA}, s{SB_}\ns_add_u32 s{SA}, s{SA}, s{SWV}\ns_mul_i32 s{SA}, s{SA}, 5632")
        p(f"s_add_u32 s{SZ0}, s{SA}, {Z1}\ns_add_u32 s{SZ1}, s{SZ0}, 4096")
        p(f"v_cndmask_b32 {v(VA_)}, {v(VOOB)}, {v(VL16)}, {sp(MA)}\nv_cndmask_b32 {v(VA_+1)}, {v(VOOB)}, {v(VL16)}, {sp(MB)}")
        zs = [(lambda u=u: z1st(u)) for u in range(6)]
        self.run(zs[:2])
        p("s_barrier")
        def pass1():
            hr, hi = U(0, 0), U(0, 1)
            for sg in range(1, 16):
                nr, ni = (HA, HA + 2) if sg & 1 else (HBb, HBb + 2)
                step(hr, hi, sg, nr, ni, T0, T0 + 2)
                hr, hi = nr, ni
            self.p(f"v_mov_b32 {v(EX)}, {v(hr)}\nv_mov_b32 {v(EX+1)}, {v(hi)}\nv_mov_b32 {v(EX+2)}, {v(hr+1)}\nv_mov_b32 {v(EX+3)}, {v(hi+1)}")
        d2 = self.wsp_dma(2) + self.wsp_dma(3)
        self.run(merge(merge(self.cap(pass1), zs[2:]), d2[:7]))
        p.lds(f"ds_write_b128 {v(AD+1)}, {v(EX,4)}")
        p.wait_lg_all(); p("s_barrier")
        for i in range(4): p.lds(f"ds_read_b128 {v(E8+4*i,4)}, {v(AD)} offset:{16*i}")
        te = p.lg - 1
        self.run(d2[7:11])
        p(f"s_cmp_eq_u32 s{WT}, 0\ns_cselect_b32 s{SA}, 32, 0")
        p(f"v_cmp_gt_u32 vcc, s{SA}, {v(VL)}\nv_mov_b32 {v(GR+1)}, s{ST_T}\nv_mov_b32 {v(GR+3)}, s{ST_T}\nv_cndmask_b32 {v(T0)}, {v(VOOB)}, {v(VL16)}, vcc")
        p(f"s_lshl_b32 s{SC}, s{SCOL}, 14\ns_lshl_b32 s{SA}, s{WP}, 9\ns_add_u32 s{SC}, s{SC}, s{SA}\ns_add_u32 s{SC}, s{SC}, {EG}")
        p(f"s_lshl_b32 s{SA}, s{SRB}, 10\ns_add_u32 s{SA}, s{SA}, s{SC}")
        p.wait(lg=te); p("s_barrier")
        self.run(merge(self.cap(lambda: [cfma(E8 + 2 * q, L16, E8 + 2 * (q - 1), E8 + 2 * q) for q in range(1, 8)]), d2[11:15]))
        p(f"v_mov_b32 {v(GR)}, {v(E8+14)}\nv_mov_b32 {v(GR+2)}, {v(E8+15)}")
        p.vmem(f"buffer_store_dwordx4 {v(GR,4)}, {v(T0)}, {srd(SWS)}, s{SA} offen sc1")
        self.run(d2[15:])
        self.stamp(2)
        p(f"v_cmp_gt_u32 vcc, 32, {v(VL)}")
        w1 = p.label("w1"); w2 = p.label("w2")
        p(f"s_cmp_eq_u32 s{WT}, 0\ns_cbranch_scc0 {w1}")
        p(f"v_cndmask_b32 {v(CQ)}, {v(E8+2)}, 0, vcc\nv_cndmask_b32 {v(CQ+1)}, {v(E8+3)}, 0, vcc")
        p(f"v_cndmask_b32 {v(CQ+2)}, {v(E8+4)}, {v(E8)}, vcc\nv_cndmask_b32 {v(CQ+3)}, {v(E8+5)}, {v(E8+1)}, vcc")
        p(f"s_branch {w2}")
        p.put(w1)
        for k in range(4): p(f"v_cndmask_b32 {v(CQ+k)}, {v(E8+10+k)}, {v(E8+6+k)}, vcc")
        p.put(w2)
        Z1P = 192
        EGR, EO, EXP, ET = 80, 144, 152, 160
        def eo():
            p = self.p
            p(f"v_lshrrev_b32 {v(ET)}, 5, {v(VL)}\nv_sub_u32 {v(ET)}, s{SRB}, {v(ET)}\nv_add_u32 {v(ET)}, -1, {v(ET)}")
            p(f"v_and_b32 {v(ET+1)}, 31, {v(VL)}\nv_lshlrev_b32 {v(ET+1)}, 4, {v(ET+1)}\nv_mov_b32 {v(ET+3)}, s{ST_T}")
            for q in range(8):
                p(f"v_add_u32 {v(ET+2)}, {-2*q}, {v(ET)}\nv_cmp_le_i32 vcc, 0, {v(ET+2)}\nv_lshl_add_u32 {v(ET+2)}, {v(ET+2)}, 10, {v(ET+1)}")
                p(f"v_cndmask_b32 {v(EO+q)}, {v(VOOB)}, {v(ET+2)}, vcc\nv_cndmask_b32 {v(EXP+q)}, 0, {v(ET+3)}, vcc")
        lgw = lambda: p.wait(lg=p.lg - 1)
        self.run(merge(self.cap(lambda: (eo(), self.g_early(184))), self.wsp_dma(4) + self.wsp_read(0) + self.wsp_read(1)))
        et = {}
        def eload(q):
            et['t'] = p.vmem(f"buffer_load_dwordx4 {v(EGR+4*q,4)}, {v(EO+q)}, {srd(SWS)}, s{SC} offen sc1")
        for q in range(8): eload(q)
        self.run([lgw] + self.wsp_dma(5))
        self.stamp(3)
        l = p.label("ep"); dl = p.label("ed")
        p.wait(vm=et['t'])
        p(f"s_mov_b32 s{SSPIN}, 0")
        p.put(l)
        p(f"v_mov_b32 {v(ET)}, 0")
        for q in range(8):
            p(f"v_xor_b32 {v(ET+1)}, {v(EXP+q)}, {v(EGR+4*q+1)}\nv_xor_b32 {v(ET+2)}, {v(EXP+q)}, {v(EGR+4*q+3)}\nv_or3_b32 {v(ET)}, {v(ET)}, {v(ET+1)}, {v(ET+2)}")
        p(f"v_cmp_ne_u32 vcc, 0, {v(ET)}\ns_cmp_eq_u64 vcc, 0\ns_cbranch_scc1 {dl}")
        for q in range(8): p(f"buffer_load_dwordx4 {v(EGR+4*q,4)}, {v(EO+q)}, {srd(SWS)}, s{SC} offen sc1")
        p("s_waitcnt vmcnt(0)")
        p(f"s_add_u32 s{SSPIN}, s{SSPIN}, 1\ns_cmp_lt_u32 s{SSPIN}, {SPIN}\ns_cbranch_scc1 {l}")
        p.put(dl)
        self.flag_prep(178)
        p(f"s_lshl_b32 s{SA}, s{SCOL}, 6\ns_lshl_b32 s{SB_}, s{SRB}, 2\ns_add_u32 s{SA}, s{SA}, s{SB_}\ns_add_u32 s{SA}, s{SA}, s{SWV}\ns_lshl_b32 s{SA}, s{SA}, 7\ns_add_u32 s{SA}, s{SA}, {Z1F}")
        self.flag(SA, 178)
        self.stamp(4)
        OP, OT, HO = 80, 144, 132
        MA, MB = SK + 2, SK + 4
        SH0, SH1 = SXB, SW1B
        def pass2a():
            p = self.p
            p(f"s_lshl_b32 s{SA}, s{SD}, 3\ns_add_u32 s{SA}, s{SA}, s{SCOL}\ns_lshl_b32 s{SA}, s{SA}, 14\ns_lshl_b32 s{SB_}, s{WP}, 12\ns_add_u32 s{SA}, s{SA}, s{SB_}")
            p(f"s_add_u32 s{SH0}, s{SA}, {HB}\ns_add_u32 s{SH1}, s{SH0}, 8192")
            p(f"v_lshrrev_b32 {v(T0)}, 5, {v(VL)}\nv_lshlrev_b32 {v(T0)}, 11, {v(T0)}\nv_and_b32 {v(T0+1)}, 31, {v(VL)}\nv_lshl_add_u32 {v(HO)}, {v(T0+1)}, 4, {v(T0)}")
            for k in range(1, 4): p(f"v_xor_b32 {v(HO+k)}, {64*k}, {v(HO)}")
            for q in range(8): p(f"v_mov_b32 {v(EGR+4*q+1)}, {v(EGR+4*q+2)}")
            S = EGR + 28
            for q in range(6, -1, -1): cfma(S, L256, S, EGR + 4 * q)
            p(f"v_mov_b32 {v(ET)}, {v(S)}\nv_mov_b32 {v(ET+1)}, {v(S+1)}\nv_permlane32_swap_b32 {v(S)}, {v(ET)}\nv_permlane32_swap_b32 {v(S+1)}, {v(ET+1)}")
            cfma(S, L128, ET, S)
            cfma(CQ, LQ0, S, CQ); cfma(CQ + 2, LQ1, S, CQ + 2)
            p(f"v_mov_b32 {v(HA)}, {v(CQ)}\nv_mov_b32 {v(HA+1)}, {v(CQ+2)}\nv_mov_b32 {v(HA+2)}, {v(CQ+1)}\nv_mov_b32 {v(HA+3)}, {v(CQ+3)}")
        def pass2(s0, s1):
            p = self.p
            Cc = v(CF, 2)
            for sg in range(s0, s1):
                hr, hi = (HA, HA + 2) if sg == 0 else (U(sg - 1, 0), U(sg - 1, 1))
                step(hr, hi, sg, U(sg, 0), U(sg, 1), T0, T0 + 2)
                hr, hi = U(sg, 0), U(sg, 1)
                oo = OT + 4 * (sg & 1) + 8 * ((sg >> 1) & 1)
                p(f"v_pk_mul_f32 {v(oo,2)}, {Cc}, {v(hr,2)} op_sel_hi:[0,1]")
                p(f"v_pk_mul_f32 {v(oo+2,2)}, {Cc}, {v(hi,2)} op_sel_hi:[0,1] neg_lo:[1,0] neg_hi:[1,0]")
                p(f"v_pk_fma_f32 {v(oo,2)}, {Cc}, {v(hi,2)}, {v(oo,2)} op_sel:[1,0,0] op_sel_hi:[1,1,1] neg_lo:[1,0,0] neg_hi:[1,0,0]")
                p(f"v_pk_fma_f32 {v(oo+2,2)}, {Cc}, {v(hr,2)}, {v(oo+2,2)} op_sel:[1,0,0] op_sel_hi:[1,1,1] neg_lo:[1,0,0] neg_hi:[1,0,0]")
                if sg & 1:
                    q, i = sg >> 3, (sg & 7) >> 1
                    for cp in range(2):
                        for e in range(2):
                            p(f"v_cvt_pk_bf16_f32 {v(OP+16*cp+8*e+4*q+i)}, {v(oo-4+2*cp+e)}, {v(oo+2*cp+e)}")
        def hst(cp, k):
            if o.get("x_nost"): return
            p.vmem(f"buffer_store_dwordx4 {v(OP+16*cp+4*k,4)}, {v(HO+k)}, {srd(SWS)}, s{SH0 if cp == 0 else SH1} offen offset:{512*k} sc1")
        self.run(merge(self.cap(pass2a), self.wsp_dma(6) + self.wsp_read(2) + [lgw]))
        self.run(merge(self.cap(lambda: pass2(0, 8)), self.wsp_dma(7) + self.wsp_read(3)))
        self.g_poll_issue()
        self.run(merge(merge(self.cap(lambda: pass2(8, 16)), [(lambda cp=cp, k=k: hst(cp, k)) for k in (0, 2) for cp in range(2)]), self.wsp_read(4) + self.wsp_read(5)))
        h2 = [(lambda cp=cp, k=k: hst(cp, k)) for k in (1, 3) for cp in range(2)]
        self.run(merge(self.wsp_read(6) + self.wsp_read(7), h2))
        p(f"s_lshl_b32 s{SLATE}, s{SE}, 7\ns_add_u32 s{SLATE}, s{SLATE}, {HF}")
        self.stamp(5)

    CD, CR, HT, GY, WD, WT_ = 210, 214, 218, 240, 244, 228
    ZUP = [4, 6, 8, 10, 12, 14, 204, 206, 208, 248, 250, 252]
    YSL = [1, 1, 0, 1]
    YB = [96, 160, 96, 160]
    def wo_dma(self, parts):
        items = []
        for (i0, i1, base) in parts:
            for i in range(i0, i1):
                def cb(t, i=i): self.wo[i] = t
                k = i - i0
                items.append(((SREG, base + k * 1024) if k % 4 == 0 else None, (SXB, i * 8192) if k % 4 == 0 else None,
                              f"buffer_load_dwordx4 {v(self.WD+k%4)}, {srd(SWOUT)}, s{SDO} offen offset:{(k%4)*1024} lds", cb))
        return self.dseq(items)
    def c_setup(self):
        p = self.p
        self.plain_dma_addr(self.CD, 1024, 224)
        p(f"s_add_u32 s{SA}, s{SREG}, 4096")
        self.plain_read_addr(self.CR, SA, 224)
        p(f"s_add_u32 s{SA}, s{SREG}, {4096+8192}")
        self.unit_tr_addr(self.HT, SA, 224, False)
        p(f"s_lshl_b32 s{SCB}, s{SCOL}, 16\ns_lshl_b32 s{SA}, s{SWV}, 8\ns_add_u32 s{SCB}, s{SCB}, s{SA}")
        p(f"s_lshl_b32 s{SHB}, s{STB}, 17\ns_lshl_b32 s{SA}, s{SWV}, 15\ns_add_u32 s{SHB}, s{SHB}, s{SA}\ns_add_u32 s{SHB}, s{SHB}, {HB}")
        self.yt = {}
    def y_items(self, s):
        sl = self.YSL[s]; items = []
        def cb(t): self.yt[s] = t
        for hh in range(2):
            for i in range(4):
                items.append(((SREG, 4096 + sl * 20480 + hh * 4096), (SCB, (s >> 1) * 128 + hh * 32768),
                              f"buffer_load_dwordx4 {v(self.CD+i)}, {srd(SCIM if s & 1 else SCRE)}, s{SDO} offen offset:{i*1024} lds", cb))
        for hh in range(2):
            for i in range(4):
                items.append(((SREG, 4096 + sl * 20480 + 8192 + hh * 4096), (SHB, s * 8192 + hh * 4096),
                              f"buffer_load_dwordx4 {v(VL16)}, {srd(SWS)}, s{SDO} offen offset:{i*1024} sc1 lds", cb))
        return items
    def y_dma(self, s): return self.dseq(self.y_items(s))
    def y_read(self, s):
        p = self.p; sl = self.YSL[s]; ops = []
        self.yr = getattr(self, "yr", {})
        for ks in range(4):
            def f(ks=ks):
                p.wait(vm=self.yt[s], lg=p.lg - 10)
                b = self.YB[s] + 16 * ks
                for k in range(2):
                    p.lds(f"ds_read_b128 {ar(b+4*k,4)}, {v(self.CR+ks)} offset:{sl*20480+k*4096}")
                    for a in range(2):
                        self.yr[(s, ks)] = p.lds(f"ds_read_b64_tr_b16 {ar(b+8+4*k+2*a,2)}, {v(self.HT+a)} offset:{sl*20480+(ks>>1)*4096+k*2048+(ks&1)*256}")
            ops.append(f)
        return ops
    def phase_g(self):
        p = self.p; o = self.o
        p.c("==== phase B: G ====")
        p.put(self.LG)
        p.vm_done = -1; p.lg_done = -1
        ACC, FA, TR, T = 16, 112, self.GTR, 186
        Z1R, BI, PV, WD, PL, PL2, PL3, OGV = 190, 202, 203, self.WD, self.GPL, 222, 234, 241
        Q = SK + 9
        AOFF = 24576
        lgw = lambda: p.wait(lg=p.lg - 1)
        p(f"s_mov_b32 s{SCOL}, s{SJ}")
        def late_setup():
            p = self.p
            p(f"s_lshl_b32 s{SE}, s{STB}, 11\ns_add_u32 s{SE}, s{SE}, {HF}")
            p(f"s_lshl_b32 s{SA}, s{SZI}, 7\ns_add_u32 s{SA}, s{SA}, {Z1F}")
            self.poll_addr(PL3, [(SE, 16), (SA, 1)])
            p(f"s_lshr_b32 s{SA}, s{STB}, 1\ns_lshl_b32 s{SA}, s{SA}, 9\ns_add_u32 s{SA}, s{SA}, {ZF2}")
            p(f"v_bfe_u32 {v(T)}, {v(VL)}, 2, 3\nv_lshlrev_b32 {v(T)}, 13, {v(T)}\nv_and_b32 {v(T+1)}, 3, {v(VL)}\nv_lshl_add_u32 {v(T)}, {v(T+1)}, 7, {v(T)}\nv_add_u32 {v(T)}, s{SA}, {v(T)}")
            p(f"s_mov_b32 vcc_lo, 0\ns_mov_b32 vcc_hi, -1\nv_cndmask_b32 {v(PL3)}, {v(PL3)}, {v(T)}, vcc")
            self.flag_prep(220)
            p(f"v_lshrrev_b32 {v(T)}, 3, {v(VL)}\nv_lshlrev_b32 {v(T)}, 10, {v(T)}")
            p(f"v_bfe_u32 {v(T+1)}, {v(VL)}, 4, 1\nv_lshlrev_b32 {v(T+1)}, 2, {v(T+1)}\nv_and_b32 {v(T+2)}, 7, {v(VL)}\nv_xor_b32 {v(T+1)}, {v(T+1)}, {v(T+2)}")
            p(f"v_lshl_add_u32 {v(WD)}, {v(T+1)}, 4, {v(T)}")
            for i in range(1, 4): p(f"v_add_u32 {v(WD+i)}, {i*7168}, {v(WD)}")
            p(f"s_mul_i32 s{SXB}, s{SWV}, {176*1024}\ns_lshl_b32 s{SA}, s{SCOL}, 7\ns_add_u32 s{SXB}, s{SXB}, s{SA}")
            self.panel_tr_addr(self.WT_, SREG, 224, False)
        p(f"s_lshr_b32 s{Q}, s{SWV}, 1\ns_and_b32 s{SC}, s{SZI}, 63")
        p.atom(f"s_cmp_lt_u32 s{SCOL}, 7\ns_cselect_b32 s{SD}, 64, 32")
        p(f"s_lshl_b32 s{SF}, s{Q}, 5\ns_sub_u32 s{SD}, s{SD}, s{SF}")
        p(f"v_cmp_gt_u32 vcc, s{SD}, {v(VL)}\nv_and_b32 {v(T)}, 31, {v(VL)}\ns_lshl_b32 s{SA}, s{SC}, 5\nv_cndmask_b32 {v(PV)}, {v(VOOB)}, {v(VL16)}, vcc")
        p(f"v_add_lshl_u32 {v(T)}, {v(T)}, s{SA}, 1")
        p.vmem(f"global_load_ushort {v(BI)}, {v(T)}, {sp(PBSP)}")
        p(f"s_mul_i32 s{SD}, s{SZI}, 5632\ns_lshl_b32 s{SB_}, s{Q}, 10\ns_add_u32 s{SD}, s{SD}, s{SB_}\ns_add_u32 s{SD}, s{SD}, {Z1}\ns_add_u32 s{SE}, s{SD}, 4096")
        p(f"v_and_b32 {v(PL2)}, 31, {v(VL)}\nv_lshlrev_b32 {v(PL2)}, 2, {v(PL2)}")
        p.wait_lg_all()
        self.stamp(6)
        l = p.label("gp"); dn = p.label("gd")
        p("s_waitcnt vmcnt(9)")
        p(f"s_cmp_ge_u32 s2, 128\ns_cbranch_scc1 {l}\ns_waitcnt vmcnt({7 if o.get('zsched', 0) else 0})")
        p.put(l)
        p(f"v_cmp_ne_u32 vcc, s{ST_T}, {v(PL+1)}\ns_and_b32 vcc_hi, vcc_hi, 0xffff\ns_or_b32 s{SF}, vcc_lo, vcc_hi\ns_cbranch_scc0 {dn}")
        self.poll(PL, 48)
        p.put(dn)
        p("s_barrier")
        g0 = p.vm
        def late_flag():
            nf = p.label("nf")
            p(f"s_cmp_eq_u32 s{SLATE}, 0\ns_cbranch_scc1 {nf}")
            p(f"s_waitcnt vmcnt({p.vm - g0})")
            p(f"buffer_store_dword {v(220)}, {v(221)}, {srd(SWS)}, s{SLATE} offen sc1")
            p.put(nf)
        p.vm_done = -1
        self.stamp(7)
        def soff(B): return ((B & 3) >> 1) * 40960 + (B & 1) * 12288
        tick = {}
        def dma(B):
            items = []
            for i in range(6):
                def cb(t): tick[B] = t
                g = i // 4
                txt = f"buffer_load_dwordx4 {v(VL16 if i < 4 else TR + 1)}, {srd(SWS)}, s{SDO} offen offset:{(i%4)*1024} sc1 lds"
                items.append(((SGL, soff(B) + g * 4096) if i % 4 == 0 else None, (SGB, B * 12288 + g * 4096) if i % 4 == 0 else None, txt, cb))
            return self.dseq(items)
        z1t = {}
        def z1load():
            p.vmem(f"buffer_load_dwordx4 {v(Z1R,4)}, {v(VL16)}, {srd(SWS)}, s{SD} offen sc1")
            p.vmem(f"buffer_load_dwordx4 {v(Z1R+4,4)}, {v(VL16)}, {srd(SWS)}, s{SD} offen offset:2048 sc1")
            p(f"s_add_u32 s{SD}, s{SD}, 4096")
            z1t['t'] = p.vmem(f"buffer_load_dwordx4 {v(Z1R+8,4)}, {v(PV)}, {srd(SWS)}, s{SD} offen sc1")
        self.run(dma(0))
        self.run(merge(self.cap(lambda: (late_setup(), self.c_setup())), dma(1)))
        def gyl():
            p(f"s_lshl_b32 s{SA}, s{STB}, 8\ns_add_u32 s{SA}, s{SA}, {GATE}")
            p.vmem(f"buffer_load_dword {v(self.GY)}, {v(PL2)}, {srd(SWS)}, s{SA} offen sc1")
            p.vmem(f"buffer_load_dword {v(self.GY+2)}, {v(PL2)}, {srd(SWS)}, s{SA} offen offset:128 sc1")
            p(f"s_lshl_b32 s{SA}, s{SC}, 7\ns_add_u32 s{SA}, s{SA}, {GATE}")
            p.vmem(f"buffer_load_dword {v(OGV)}, {v(PL2)}, {srd(SWS)}, s{SA} offen sc1")
        def z1gelu():
            c1 = -2 * LOG2E * 0.7978845608028654
            self.VC0 = 188
            self.p(f"s_mov_b32 s{SK}, {f2u(c1*0.044715)}\nv_mov_b32 {v(188)}, {f2u(c1)}")
            for i in range(12): self.unpack(self.ZUP[i], Z1R + i)
            self.gelu_many(self.ZUP, [24, 26, 28, 30])
        lt = {}
        def issue(r):
            lt[r] = p.vmem(f"buffer_load_dword {v(r+1)}, {v(r)}, {srd(SWS)}, 0 offen sc1")
        def check(r, mask):
            l = p.label("lp"); d = p.label("ld")
            p.wait(vm=lt[r])
            p(f"s_mov_b32 s{SSPIN}, 0")
            p.put(l)
            p(f"v_cmp_ne_u32 vcc, s{ST_T}, {v(r+1)}\ns_and_b32 s{SF}, vcc_lo, {mask}\ns_or_b32 s{SF}, s{SF}, vcc_hi\ns_cbranch_scc0 {d}")
            p(f"buffer_load_dword {v(r+1)}, {v(r)}, {srd(SWS)}, 0 offen sc1\ns_waitcnt vmcnt(0)")
            p(f"s_add_u32 s{SSPIN}, s{SSPIN}, 1\ns_cmp_lt_u32 s{SSPIN}, {SPIN}\ns_cbranch_scc1 {l}")
            p.put(d)
        rt = {}
        def fset(hb): return FA + 24 * (2 if hb == 15 else hb & 1)
        FO = [(0, 0), (0, 1), (0, 2), (1, 0), (1, 1), (1, 2)]; FP = {(0, 0): 0, (0, 1): 1, (1, 0): 2, (1, 1): 3, (0, 2): 4, (1, 2): 5}
        def reads(hb):
            B, e = hb >> 1, hb & 1; ops = []
            for (ks, mt) in FO:
                def ra(ks=ks, mt=mt):
                    rt[(hb, ks, mt)] = p.lds(f"ds_read_b128 {v(fset(hb)+12*ks+4*mt,4)}, {v(TR)} offset:{soff(B)+e*6144+FP[(ks,mt)]*1024}")
                ops.append(ra)
            return ops
        def mf(hb, ks, mt, nt):
            def m():
                p.wait(lg=rt[(hb, ks, 2 if hb < 14 else mt)])
                d = v(ACC + 16 * (2 * mt + nt), 16); kap = 2 * hb + ks
                p(f"{MF} {d}, {v(fset(hb)+12*ks+4*mt,4)}, {ar((kap*2+nt)*4,4)}, {'0' if kap == 0 else d}")
            return m
        self.wo = wo = {}
        def WOA(kap): return (kap - 8) * 8 if kap >= 8 else 24 + kap * 8
        def wo_rd(kap):
            def f():
                p.wait(vm=wo[2 * kap + 1], lg=p.lg - 12)
                for mt in range(2):
                    for a in range(2):
                        base = AOFF + (kap if kap < 8 else kap - 8) * 2048
                        p.lds(f"ds_read_b64_tr_b16 {ar(WOA(kap)+4*mt+2*a,2)}, {v(self.WT_+mt)} offset:{base+a*512}")
            return f
        p.wait(vm=tick[0]); p("s_barrier")
        self.run(reads(0))
        wa = self.wo_dma([(16, 22, AOFF)])
        def wb(i0, i1): return self.wo_dma([(i0, i1, AOFF + i0 * 1024)])
        y0 = self.y_dma(0)
        y1 = self.y_dma(1)
        yc0 = self.dseq(self.y_items(0)[:8]); yc0b = self.dseq(self.y_items(0)[:4]);
        def ypart(s_, a, b): return self.dseq(self.y_items(s_)[a:b])
        extra = {0: dma(2), 1: dma(3), 2: wa, 4: [wo_rd(8), wo_rd(9), wo_rd(10), lgw] + wb(0, 3), 5: wb(3, 4), 6: wb(4, 9) + [gyl], 7: wb(9, 10), 8: wb(10, 16) + [lambda: issue(PL3)],
                 10: [wo_rd(k) for k in range(8)] + [lgw] + ypart(0, 0, 2), 11: ypart(0, 2, 8) + [z1load], 12: ypart(0, 8, 13), 13: ypart(0, 13, 16)}
        gel = {}
        for hb in range(14):
            if o.get("gstamps") and hb % 2 == 0: self.stamp(21 + hb // 2)
            B = hb >> 1
            if hb & 1:
                p.wait(vm=tick[B + 1], lg=p.lg - 1); p("s_barrier")
            if hb == 11: check(PL3, 0x1ffff)
            mm = [mf(hb, ks, mt, nt) for ks in range(2) for mt in range(3) for nt in range(2)]
            rd = reads(hb + 1) + (reads(15) if hb == 13 else [])
            seq = merge(mm, rd, 0, 8 if hb == 13 else 6)
            f = list(extra.get(hb, []))
            if hb & 1 and B + 4 < 8: f = f + dma(B + 4)
            if f: seq = merge(seq, f, len(seq) // 4)
            if hb in gel: seq = merge(seq, gel[hb])
            if hb == o.get("hflag", 3): seq = seq + [late_flag]
            self.run(seq)
        VW, VRD = T, T + 1
        p(f"s_xor_b32 s{SA}, s{SWV}, 2\ns_mul_i32 s{SA}, s{SA}, 40960\nv_add_u32 {v(VW)}, s{SREG}, {v(VL16)}\nv_add_u32 {v(VRD)}, s{SA}, {v(VL16)}")
        def roff(i): return i * 1024
        def rw(ti):
            return [(lambda hq=hq: p.lds(f"ds_write_b128 {v(VW)}, {v(ACC+16*ti+8+4*hq,4)} offset:{roff(2*ti+hq)}")) for hq in range(2)]
        tiles = [1, 3, 5, 0, 2, 4]
        for n_, ti in enumerate(tiles):
            mm = [mf(hb, ks, ti >> 1, ti & 1) for hb in (14, 15) for ks in range(2)]
            f = (rw(tiles[n_ - 2]) if n_ >= 2 else [])
            self.run(merge(mm, f))
        self.stamp(8)
        yl = o.get('y0late', 0)
        self.run(merge([] if yl else self.y_read(0), rw(tiles[4]) + rw(tiles[5])) if not yl else rw(tiles[4]) + rw(tiles[5]))
        p.wait_lg_all(); p("s_barrier")
        RB = 112
        tk = {}
        for n_, ti in enumerate(tiles):
            for hq in range(2): tk[(ti, hq)] = p.lds(f"ds_read_b128 {v(RB+8*ti+4*hq,4)}, {v(VRD)} offset:{roff(2*ti+hq)}")
        if not yl: self.run(y1[:3])
        def radd(ti):
            for hq in range(2):
                p.wait(lg=tk[(ti, hq)])
                for hh in range(2): p(f"v_pk_add_f32 {v(ACC+16*ti+4*hq+2*hh,2)}, {v(ACC+16*ti+4*hq+2*hh,2)}, {v(RB+8*ti+4*hq+2*hh,2)}")
        XS = [40, 44, 56, 60]; XR = [72, 76, 88, 92]
        p(f"s_lshl_b32 s{SA}, s2, 2\ns_add_u32 s{SA}, s{SA}, s{SWV}\ns_lshl_b32 s{SA}, s{SA}, 12\ns_add_u32 s{SA}, s{SA}, {XB}\ns_xor_b32 s{SE}, s{SA}, 16384")
        for g in range(4): p(f"v_mov_b32 {v(XS[g]+3)}, s{ST_T}")
        for ti in (1, 3, 5): radd(ti)
        for i in range(12):
            src = ACC + 16 * (2 * (i >> 2) + 1) + 2 * (i & 3)
            p(f"v_cvt_pk_bf16_f32 {v(XS[i//3]+i%3)}, {v(src)}, {v(src+1)}")
            if i % 3 == 2: p.vmem(f"buffer_store_dwordx4 {v(XS[i//3],4)}, {v(VL16)}, {srd(SWS)}, s{SA} offen offset:{(i//3)*1024} sc1")
        if yl: self.run(self.y_read(0))
        for ti in (0, 2, 4): radd(ti)
        if yl: self.run([lgw] + y1[:3])
        p("s_barrier")
        self.stamp(9)

        p.c("==== phase C ====")
        YA, PA = 112, 16
        XE, GE, DE, OV, P10, PLP, TC = 186, 194, 198, 184, 185, 222, 224
        RW, RX, WA, RA = 176, 177, 180, 230
        SROW, SXO, SPB_ = SXL, SWL, SW1B
        ep = {}
        def setup():
            p = self.p; T = TC
            p(f"v_lshrrev_b32 {v(T)}, 4, {v(VL)}\nv_and_b32 {v(T+1)}, 15, {v(VL)}")
            p(f"v_lshlrev_b32 {v(T+2)}, 10, {v(T)}\nv_lshl_add_u32 {v(T+2)}, {v(T+1)}, 3, {v(T+2)}")
            p(f"v_lshlrev_b32 {v(T+3)}, 2, {v(T)}\nv_lshlrev_b32 {v(T+4)}, 3, {v(T+1)}")
            p(f"v_lshlrev_b32 {v(OV)}, 1, {v(T+2)}")
            p(f"s_lshl_b32 s{SROW}, s{STB}, 6\ns_lshl_b32 s{SA}, s{SWV}, 4\ns_add_u32 s{SROW}, s{SROW}, s{SA}")
            p(f"s_lshl_b32 s{SXO}, s{SROW}, 10\ns_lshl_b32 s{SA}, s{SCOL}, 7\ns_add_u32 s{SXO}, s{SXO}, s{SA}\nv_add_u32 {v(T+4)}, s{SA}, {v(T+4)}")
            p(f"s_lshl_b32 s{SA}, s{STB}, 12\ns_lshl_b32 s{SB_}, s{SWV}, 10\ns_add_u32 s{SB_}, s{SB_}, s{SA}\ns_add_u32 s{SB_}, s{SB_}, {PF}")
            self.poll_addr(PLP, [(SB_, 8)])
            p.atom(f"s_cmp_eq_u32 s{SWV}, 3\ns_cselect_b64 vcc, -1, 0")
            p(f"v_cndmask_b32 {v(P10)}, {v(VL16)}, {v(VOOB)}, vcc")
            p(f"s_mul_i32 s{SPB_}, s{STB}, {2*45056}\ns_mul_i32 s{SA}, s{SWV}, {22*512}\ns_add_u32 s{SPB_}, s{SPB_}, s{SA}\ns_add_u32 s{SPB_}, s{SPB_}, {PB}")
            p(f"s_add_u32 s{SA}, s{SREG}, 4096\nv_and_b32 {v(RW)}, 31, {v(VL)}\nv_lshlrev_b32 {v(RW)}, 8, {v(RW)}\nv_add_u32 {v(RW)}, s{SA}, {v(RW)}")
            p(f"v_lshrrev_b32 {v(RX)}, 5, {v(VL)}\nv_and_b32 {v(RX+1)}, 7, {v(VL)}\nv_xor_b32 {v(RX)}, {v(RX)}, {v(RX+1)}\nv_lshlrev_b32 {v(RX)}, 4, {v(RX)}")
            for i in range(4): p(f"v_xor_b32 {v(WA+i)}, {32*i}, {v(RX)}\nv_add_u32 {v(WA+i)}, {v(WA+i)}, {v(RW)}")
            p(f"v_xor_b32 {v(T+1)}, {v(T+1)}, {v(T)}\nv_lshlrev_b32 {v(T+1)}, 4, {v(T+1)}")
            p(f"v_lshlrev_b32 {v(T)}, 8, {v(T)}\ns_lshl_b32 s{SA}, s{SWV}, 12\ns_add_u32 s{SA}, s{SA}, 4096\nv_add_u32 {v(T)}, s{SA}, {v(T)}")
            p(f"v_add_u32 {v(RA)}, {v(T)}, {v(T+1)}\nv_xor_b32 {v(T+1)}, 64, {v(T+1)}\nv_add_u32 {v(RA+1)}, {v(T)}, {v(T+1)}")
            p(f"v_add_u32 {v(RA+2)}, 81920, {v(RA)}\nv_add_u32 {v(RA+3)}, 81920, {v(RA+1)}")
            p(f"s_lshr_b32 s{SLATE}, s{SC}, 1\ns_lshl_b32 s{SLATE}, s{SLATE}, 3\ns_add_u32 s{SLATE}, s{SLATE}, s{SCOL}\ns_lshl_b32 s{SLATE}, s{SLATE}, 1\ns_add_u32 s{SLATE}, s{SLATE}, s{SKH}")
            p(f"s_lshl_b32 s{SLATE}, s{SLATE}, 1\ns_add_u32 s{SLATE}, s{SLATE}, s{Q}\ns_lshl_b32 s{SLATE}, s{SLATE}, 7\ns_add_u32 s{SLATE}, s{SLATE}, {PF}")
            p(f"s_mul_i32 s{SD}, s{SC}, 45056\ns_mul_i32 s{SB_}, s{SCOL}, 5632\ns_add_u32 s{SD}, s{SD}, s{SB_}\ns_lshl_b32 s{SB_}, s{Q}, 10\ns_add_u32 s{SD}, s{SD}, s{SB_}\ns_add_u32 s{SD}, s{SD}, {PB}")
            p(f"v_lshlrev_b32 {v(BI)}, 16, {v(BI)}\nv_sub_f32 {v(178)}, 1.0, {v(OGV)}\nv_mul_f32 {v(179)}, {v(178)}, {v(BI)}")
        def eloads():
            T = TC
            for gi in range(4):
                p(f"s_add_u32 s{SA}, s{SXO}, {gi*4096}")
                p.vmem(f"buffer_load_dwordx2 {v(XE+2*gi,2)}, {v(T+2)}, {srd(SX)}, s{SA} offen")
            p(f"s_lshl_b32 s{SA}, s{SROW}, 2\ns_add_u32 s{SA}, s{SA}, {GATE}")
            for gi in range(4): p.vmem(f"buffer_load_dword {v(GE+gi)}, {v(T+3)}, {srd(SWS)}, s{SA} offen offset:{gi*16} sc1")
            ep['t'] = p.vmem(f"global_load_dwordx2 {v(DE,2)}, {v(T+4)}, {sp(PDSK)}")
        T4 = [(0, 0), (1, 0), (1, 1), (0, 1)]
        def ym(s):
            ops = []
            for ks in range(4):
                for (mt, nt) in T4:
                    def m(ks=ks, mt=mt, nt=nt):
                        p.wait(lg=self.yr[(s, ks)])
                        d = v(YA + 16 * (2 * mt + nt), 16); b = self.YB[s] + 16 * ks
                        p(f"{MF} {d}, {ar(b+4*mt,4)}, {ar(b+8+4*nt,4)}, {'0' if (s, ks) == (0, 0) else d}")
                    ops.append(m)
            return ops
        pt = {}
        def ploads():
            ops = []
            for nt in range(2):
                for kap in range(11):
                    def f(kap=kap, nt=nt):
                        if kap % 4 == 0: p(f"s_add_u32 s{SB_}, s{SPB_}, {nt*45056+kap*1024}")
                        pt[(kap, nt)] = p.vmem(f"buffer_load_dwordx4 {v(PA+(kap*2+nt)*4,4)}, {v(P10 if kap == 10 else VL16)}, {srd(SWS)}, s{SB_} offen offset:{(kap%4)*1024} sc1")
                    ops.append(f)
            return ops
        xt = {}
        def xload():
            for g in range(4): xt['t'] = p.vmem(f"buffer_load_dwordx4 {v(XR[g],4)}, {v(VL16)}, {srd(SWS)}, s{SE} offen offset:{g*1024} sc1")
        def xcheck():
            l = p.label("xp"); d = p.label("xd")
            p.wait(vm=xt['t'])
            p(f"s_mov_b32 s{SSPIN}, 0")
            p.put(l)
            p(f"v_xor_b32 {v(32)}, s{ST_T}, {v(XR[0]+3)}\nv_xor_b32 {v(33)}, s{ST_T}, {v(XR[1]+3)}\nv_xor_b32 {v(34)}, s{ST_T}, {v(XR[2]+3)}\nv_xor_b32 {v(35)}, s{ST_T}, {v(XR[3]+3)}")
            p(f"v_or3_b32 {v(32)}, {v(32)}, {v(33)}, {v(34)}\nv_or_b32 {v(32)}, {v(32)}, {v(35)}")
            p(f"v_cmp_ne_u32 vcc, 0, {v(32)}\ns_cmp_eq_u64 vcc, 0\ns_cbranch_scc1 {d}")
            for g in range(4): p(f"buffer_load_dwordx4 {v(XR[g],4)}, {v(VL16)}, {srd(SWS)}, s{SE} offen offset:{g*1024} sc1")
            p("s_waitcnt vmcnt(0)")
            p(f"s_add_u32 s{SSPIN}, s{SSPIN}, 1\ns_cmp_lt_u32 s{SSPIN}, {SPIN}\ns_cbranch_scc1 {l}")
            p.put(d)
        PK = [24, 28, 104]
        def pepi(mt):
            p = self.p
            for i in range(4 * mt, 4 * mt + 4): self.unpack(32 + 2 * (i & 3), XR[i // 3] + i % 3)
            for i in range(4):
                a = ACC + 32 * mt + 2 * i
                p(f"v_pk_add_f32 {v(a,2)}, {v(a,2)}, {v(32+2*i,2)}")
            for i in range(4):
                a = ACC + 32 * mt + 2 * i
                p(f"v_pk_fma_f32 {v(a,2)}, {v(a,2)}, {v(178,2)}, {v(178,2)} op_sel:[0,0,1] op_sel_hi:[1,0,1]")
            for i in range(4):
                a = ACC + 32 * mt + 2 * i
                p(f"v_pk_mul_f32 {v(a,2)}, {v(a,2)}, {v(self.ZUP[4*mt+i],2)}")
            for i in range(4):
                a = ACC + 32 * mt + 2 * i
                p(f"v_cvt_pk_bf16_f32 {v(PK[mt]+i)}, {v(a)}, {v(a+1)}")
        def pflag():
            p.wait(vm=ep['p']); self.flag(SLATE, 220)
        su = self.cap(setup)
        y2, y3, pl_ = self.y_dma(2), self.y_dma(3), ploads()
        sent = 1
        zg = [lambda: p.wait(vm=z1t['t'])] + self.cap(z1gelu)
        c1_ = o.get("c1", 9); c2_ = o.get("c2", 16)
        nx = y1[3:] + y2
        self.run(merge(zg, nx[:c1_]))
        xload()
        self.run(merge(merge(ym(0), su), nx[c1_:c2_]))
        xcheck()
        self.stamp(10)
        pepi(0); p.vmem(f"buffer_store_dwordx4 {v(PK[0],4)}, {v(VL16)}, {srd(SWS)}, s{SD} offen sc1")
        pepi(1); p.vmem(f"buffer_store_dwordx4 {v(PK[1],4)}, {v(VL16)}, {srd(SWS)}, s{SD} offen offset:2048 sc1")
        p(f"s_add_u32 s{SD}, s{SD}, 4096")
        pepi(2); ep['p'] = p.vmem(f"buffer_store_dwordx4 {v(PK[2],4)}, {v(PV)}, {srd(SWS)}, s{SD} offen sc1")
        c3_ = max(c2_, 18)
        self.run(nx[c2_:c3_])
        self.run(merge(self.y_read(1), nx[c3_:c3_ + 4]))
        y3a = o.get('y3a', 3)
        self.run(merge(ym(1), nx[c3_ + 4:] + [lgw] + y3[:y3a]))
        self.stamp(11)
        self.run(y3[y3a:9])
        self.run(merge(self.y_read(2), y3[9:13]))
        self.run(merge(ym(2), y3[13:] + [eloads]))
        self.stamp(12)
        pa_ = o.get("pa", 4)
        self.run(merge(self.y_read(3), pl_[:pa_]))
        self.run(merge(ym(3), pl_[pa_:pa_ + 8]))
        prest = pl_[pa_ + 8:]
        self.stamp(13)
        def pcheck(nt):
            l = p.label("sp"); d = p.label("sd")
            p.wait(vm=pt[(10, nt)])
            p(f"s_mov_b32 s{SSPIN}, 0")
            p.put(l)
            r = [PA + (kap * 2 + nt) * 4 for kap in range(11)]
            p(f"v_max3_u32 {v(178)}, {v(r[0])}, {v(r[1])}, {v(r[2])}")
            for k in range(3, 11, 2): p(f"v_max3_u32 {v(178)}, {v(178)}, {v(r[k])}, {v(r[k+1])}")
            p(f"v_cmp_eq_u32 vcc, -1, {v(178)}\ns_cmp_eq_u64 vcc, 0\ns_cbranch_scc1 {d}")
            for kap in range(11):
                if kap % 4 == 0: p(f"s_add_u32 s{SF}, s{SPB_}, {nt*45056+kap*1024}")
                p(f"buffer_load_dwordx4 {v(PA+(kap*2+nt)*4,4)}, {v(P10 if kap == 10 else VL16)}, {srd(SWS)}, s{SF} offen offset:{(kap%4)*1024} sc1")
            p("s_waitcnt vmcnt(0)")
            p(f"s_add_u32 s{SSPIN}, s{SSPIN}, 1\ns_cmp_lt_u32 s{SSPIN}, {SPIN}\ns_cbranch_scc1 {l}")
            p.put(d)
        def redw(tiles):
            return [(lambda mt=mt, nt=nt, i=i: p.lds(f"ds_write_b128 {v(WA+i)}, {v(YA+16*(2*mt+nt)+4*i,4)} offset:{nt*8192+mt*128}"))
                    for (mt, nt) in tiles for i in range(4)]
        def bm(kap, mt, nt):
            def m():
                p.wait(vm=pt[(kap, nt)])
                d = v(YA + 16 * (2 * mt + nt), 16)
                p(f"{MF} {d}, {ar(WOA(kap)+4*mt,4)}, {v(PA+(kap*2+nt)*4,4)}, {d}")
            return m
        def yscale(mt, nt):
            return [(lambda i=i: p(f"v_pk_mul_f32 {v(YA+16*(2*mt+nt)+2*i,2)}, {v(YA+16*(2*mt+nt)+2*i,2)}, {v(self.GY+2*nt,2)} op_sel_hi:[1,0]")) for i in range(8)]
        DU = 104; XP = [4, 8, 12, 108]
        def xpart():
            p = self.p
            self.unpack(DU, DE); self.unpack(DU + 2, DE + 1)
            for gi in range(4):
                x = XP[gi]
                self.unpack(x, XE + 2 * gi); self.unpack(x + 2, XE + 2 * gi + 1)
                for k in range(4): p(f"v_mul_f32 {v(x+k)}, {v(x+k)}, {v(DU+k)}")
                for k in range(4): p(f"v_mul_f32 {v(x+k)}, {v(x+k)}, {v(GE+gi)}")
        def yscale1(mt, nt):
            return [(lambda i=i: p(f"v_mul_f32 {v(YA+16*(2*mt+nt)+i)}, {v(YA+16*(2*mt+nt)+i)}, {v(self.GY+2*nt)}")) for i in range(16)]
        self.run(merge(yscale(0, 0) + yscale(1, 0), prest[:2]))
        pcheck(0)
        mm0 = [bm(kap, mt, 0) for kap in range(11) for mt in range(2)]
        self.run(merge(merge(mm0, prest[2:], 0, 12), yscale1(1, 1) + yscale1(0, 1) + [lambda: p.wait(vm=ep['t'])] + self.cap(xpart)))
        if sent: pcheck(1)
        mm1 = [bm(kap, 0, 1) for kap in range(11)]
        mm2 = [bm(kap, 1, 1) for kap in range(11)]
        self.run(merge(mm1, redw([(0, 0), (1, 0)]), 2))
        self.run(merge(mm2, redw([(0, 1)]), 4))
        self.run(redw([(1, 1)]))
        p.wait_lg_all(); p("s_barrier")
        self.stamp(14)
        tk = {}
        def R(gi, s): return 16 + 16 * gi + 4 * s
        for gi in range(4):
            p.wait(lg=p.lg - 12)
            for s_ in range(4):
                tk[gi] = p.lds(f"ds_read_b128 {v(R(gi,s_),4)}, {v(RA+2*(s_>>1)+(gi&1))} offset:{(s_&1)*40960+gi*1024}")
        p(f"s_lshl_b32 s{SXO}, s{SXO}, 1")
        for gi in range(4):
            y = R(gi, 0)
            p.wait(lg=tk[gi])
            for hh in (0, 2):
                p(f"v_pk_add_f32 {v(y+hh,2)}, {v(y+hh,2)}, {v(y+4+hh,2)}\nv_pk_add_f32 {v(y+8+hh,2)}, {v(y+8+hh,2)}, {v(y+12+hh,2)}")
            for hh in (0, 2): p(f"v_pk_add_f32 {v(y+hh,2)}, {v(y+hh,2)}, {v(XP[gi]+hh,2)}")
            for hh in (0, 2): p(f"v_pk_add_f32 {v(y+hh,2)}, {v(y+hh,2)}, {v(y+8+hh,2)}")
            p(f"s_add_u32 s{SA}, s{SXO}, {gi*8192}")
            p.vmem(f"buffer_store_dwordx4 {v(y,4)}, {v(OV)}, {srd(SOUT)}, s{SA} offen{' ' + o['outmod'] if 'outmod' in o else ''}")
        ne = p.label("ne")
        p(f"s_lshl_b32 s{SA}, s{STB}, 3\ns_add_u32 s{SA}, s{SA}, s{SCOL}\ns_lshl_b32 s{SA}, s{SA}, 2\ns_add_u32 s{SA}, s{SA}, s{SWV}")
        p(f"s_cmp_eq_u32 s{SA}, {255*4}\ns_cbranch_scc0 {ne}")
        p(f"s_mov_b32 s{SA}, {EPOCH}")
        self.flag(SA, 220)
        p.put(ne)
        if o.get("stamps"):
            self.stamp(15)
            p(f"s_lshl_b32 s{SA}, s2, 2\ns_add_u32 s{SA}, s{SA}, s{SWV}\ns_lshl_b32 s{SA}, s{SA}, 8\ns_add_u32 s{SA}, s{SA}, {DBG}")
            p(f"v_lshlrev_b32 v254, 2, {v(VL)}")
            p.vmem(f"buffer_store_dword v255, v254, {srd(SWS)}, s{SA} offen")
            if o.get("dbgmax"):
                ty = o["dbgmax"]
                nd = p.label("nd")
                if ty > 1: p(f"s_cmp_{'ge' if ty == 2 else 'lt'}_u32 s2, 128\ns_cbranch_scc1 {nd}")
                p(f"s_load_dwordx2 s[{SX}:{SX+1}], s[0:1], 128\ns_waitcnt lgkmcnt(0)\ns_mov_b32 s{SX+2}, 64")
                p(f"v_readlane_b32 s{SA}, v255, 17\nv_readlane_b32 s{SB_}, v255, 20\ns_not_b32 s{SA}, s{SA}\ns_nop 3\nv_writelane_b32 v255, s{SA}, 0\nv_writelane_b32 v255, s{SB_}, 6")
                p.vmem(f"buffer_atomic_umax v255, v254, {srd(SX)}, 0 offen")
                p.put(nd)
        if "spin_from" in o:
            self.stamp(15)
            sl = p.label("spin")
            p(f"v_readlane_b32 s{SA}, v254, 0")
            p.put(sl)
            p(f"s_memrealtime s[{SSTMP}:{SSTMP+1}]\ns_waitcnt lgkmcnt(0)\ns_sub_u32 s{SB_}, s{SSTMP}, s{SA}\ns_cmp_lt_u32 s{SB_}, 3000\ns_cbranch_scc1 {sl}")
        p.put(self.END)
        p("s_endpgm")

    def build(self):
        self.prologue()
        self.phase_z()
        self.p.vm_done = -1; self.p.lg_done = -1
        self.p("s_nop 15")
        self.phase_u()
        self.phase_g()
        lines, added = hazard_pass([x for l in self.p.L for x in l.split(chr(10))])
        hdr = open("gated_mix__ssm_conv_s5__mixer_gmlp__prompt.s.ref").read().split("; Override")[0]
        s = hdr + "; @launch grid=(256,1,1) block=(256,1,1) lds=163840\n"
        s += '.amdgcn_target "amdgcn-amd-amdhsa--gfx950"\n.text\n'
        s += f".globl {NAME}\n.p2align 8\n.type {NAME},@function\n{NAME}:\n"
        s += "\n".join((l if l.endswith(":") else "    " + l) for l in lines) + "\n"
        s += f""".section .rodata,"a"
.p2align 6
.amdhsa_kernel {NAME}
  .amdhsa_next_free_vgpr 512
  .amdhsa_next_free_sgpr 102
  .amdhsa_accum_offset 256
  .amdhsa_group_segment_fixed_size 0
  .amdhsa_kernarg_size 144
  .amdhsa_user_sgpr_count 2
  .amdhsa_user_sgpr_kernarg_segment_ptr 1
  .amdhsa_system_sgpr_workgroup_id_x 1
  .amdhsa_float_denorm_mode_32 3
.end_amdhsa_kernel
"""
        return s, added

if __name__ == "__main__":
    out = sys.argv[1]
    opt = dict(c1=12, c2=22, y3a=8, touch=2, zs0=19, zs1=20, zs2=21, zmode=2, pf=2, tlb=2, map=1)
    for a in sys.argv[2:]:
        k, _, val = a.partition("=")
        try: opt[k] = int(val) if val else 1
        except ValueError: opt[k] = val
    s, added = G(opt).build()
    open(out, "w").write(s)
    print("wrote", out, "nops added", added, "lines", s.count("\n"))
```

```python
import sys, math, struct
from core import *

NAME = "gated_mix__ssm_conv_s5__mixer_gmlp__prompt_kernel"
EPOCH = 0; GATE = 0x4000
ST = 0x10000; EG = 0x50000; DBG = 0x80000
Z2N = 0x100000; Z1 = 0x400000; PB = 0x700000; HB = 0xA00000
ZF = 0xE00000; HF = 0xE10000; PF = 0xE20000; Z1F = 0xE40000; ZF2 = 0xE50000; XB = 0x1000000; WS_END = 0x1400000
OOB = 0x80000000
SPIN = 200000
SX, SW1, SWSP, SWS, SCRE, SCIM, SWOUT, SOUT = 4, 8, 12, 16, 20, 24, 28, 32
PLRE, PLIM, PLDT, PDSK, PBSP, PGW, PBRE, PBIM, PWIN = 36, 38, 40, 42, 44, 46, 48, 50, 52
ST_T = 100
SWV, SRB, SCOL, STB = 56, 57, 58, 59
SA, SB_, SC, SD = 60, 61, 62, 63
SSTMP = 64
SDO, SWB, SPB0, SPST, SPSP = 68, 69, 70, 71, 72
SXB, SW1B, SXL, SWL = 73, 74, 75, 76
SPC = 77
SCB, SHB = 78, 79
SK = 80
SREG = 96
SE, SF = 97, 98
SSPIN = 99
SLATE = 101
SJ = 3
SGB = 95
SPFP = 70
SPFE = 79
SKH = 81
SGL = 77
SZI = 72
SPB = 90
def srd(b): return f"s[{b}:{b+3}]"
def v(a, n=1): return f"v{a}" if n == 1 else f"v[{a}:{a+n-1}]"
def ar(a, n=1): return f"a{a}" if n == 1 else f"a[{a}:{a+n-1}]"
def sp(a): return f"s[{a}:{a+1}]"
VL, VL16, VOOB = 1, 2, 3
LOG2E = 1.4426950408889634
def f2u(x): return struct.unpack("<I", struct.pack("<f", x))[0]
MF = "v_mfma_f32_32x32x16_bf16"

class G:
    def __init__(self, opt):
        self.o = opt
        self.p = Prog()

    def stamp(self, k):
        if self.o.get("spin_from") == k:
            p = self.p
            p(f"s_memrealtime s[{SSTMP}:{SSTMP+1}]"); p.wait_lg_all()
            p(f"v_mov_b32 v254, s{SSTMP}")
        if self.o.get("stamps"):
            p = self.p
            p(f"s_memrealtime s[{SSTMP}:{SSTMP+1}]\ns_memtime s[{SSTMP+2}:{SSTMP+3}]"); p.wait_lg_all()
            p(f"v_writelane_b32 v255, s{SSTMP}, {k}\nv_writelane_b32 v255, s{SSTMP+2}, {k+32}")
    def cap(self, fn):
        sub = Prog(); save = self.p; self.p = sub
        fn()
        self.p = save
        assert sub.vm == 0 and sub.lg == 0
        return [(lambda l=l: self.p(l)) for l in sub.L]
    def run(self, ops):
        for op in ops: op()
    def dseq(self, items):
        p = self.p
        def setup(it):
            if it[0] is not None: p(f"s_add_u32 m0, s{it[0][0]}, {it[0][1]}")
            if it[1] is not None: p(f"s_add_u32 s{SDO}, s{it[1][0]}, {it[1][1]}")
        ops = [lambda: setup(items[0])]
        for i, it in enumerate(items):
            def f(i=i, it=it):
                t = p.vmem(it[2])
                if it[3]: it[3](t)
                if i + 1 < len(items) and items[i + 1][:2] != it[:2]: setup(items[i + 1])
            ops.append(f)
        return ops
    def poll_addr(self, vt, groups):
        p = self.p; n0 = 0
        p(f"v_mov_b32 {v(vt)}, {v(VOOB)}")
        for (sr, n) in groups:
            if n == 1: p(f"v_writelane_b32 {v(vt)}, s{sr}, {n0}")
            else:
                p(f"s_sub_u32 s{sr}, s{sr}, {n0*128}\nv_lshl_add_u32 {v(vt+1)}, {v(VL)}, 7, s{sr}")
                m = ((1 << n) - 1) << n0
                p(f"s_mov_b32 vcc_lo, {m & 0xffffffff}\ns_mov_b32 vcc_hi, {m >> 32}\nv_cndmask_b32 {v(vt)}, {v(vt)}, {v(vt+1)}, vcc")
            n0 += n
        return n0
    def poll(self, vt, n):
        p = self.p
        l = p.label("poll"); d = p.label("pd")
        p(f"s_mov_b32 s{SSPIN}, 0")
        p.put(l)
        p.vmem(f"buffer_load_dword {v(vt+1)}, {v(vt)}, {srd(SWS)}, 0 offen sc1")
        p.wait_vm_all()
        p(f"v_cmp_ne_u32 vcc, s{ST_T}, {v(vt+1)}")
        if n <= 32: p(f"s_and_b32 s{SF}, vcc_lo, {(1<<n)-1}")
        else: p(f"s_and_b32 vcc_hi, vcc_hi, {(1<<(n-32))-1}\ns_or_b32 s{SF}, vcc_lo, vcc_hi")
        p(f"s_cbranch_scc0 {d}")
        p(f"s_add_u32 s{SSPIN}, s{SSPIN}, 1\ns_cmp_lt_u32 s{SSPIN}, {SPIN}\ns_cbranch_scc1 {l}")
        p.put(d)
    def flag_prep(self, vt):
        p = self.p
        p(f"v_mov_b32 {v(vt)}, s{ST_T}\nv_mov_b32 {v(vt+1)}, {v(VOOB)}\nv_writelane_b32 {v(vt+1)}, 0, 0")
    def flag(self, off_sreg, vt):
        self.p.vmem(f"buffer_store_dword {v(vt)}, {v(vt+1)}, {srd(SWS)}, s{off_sreg} offen sc1")
    def xhalf_sum(self, a, t):
        self.p(f"v_mov_b32 {v(t)}, {v(a)}\nv_permlane32_swap_b32 {v(a)}, {v(t)}\nv_add_f32 {v(a)}, {v(a)}, {v(t)}")
    def rnd(self, d, s):
        self.p(f"v_cvt_pk_bf16_f32 {v(d)}, {v(s)}, {v(s)}\nv_lshlrev_b32 {v(d)}, 16, {v(d)}")
    def unpack(self, d, s):
        self.p(f"v_and_b32 {v(d+1)}, 0xffff0000, {v(s)}\nv_lshlrev_b32 {v(d)}, 16, {v(s)}")
    def plain_read_addr(self, dst4, base_sreg, t):
        p = self.p
        p(f"v_and_b32 {v(t)}, 31, {v(VL)}\nv_lshlrev_b32 {v(t)}, 7, {v(t)}")
        if base_sreg is not None: p(f"v_add_u32 {v(t)}, s{base_sreg}, {v(t)}")
        p(f"v_bfe_u32 {v(t+1)}, {v(VL)}, 1, 3\nv_lshrrev_b32 {v(dst4)}, 5, {v(VL)}\nv_xor_b32 {v(t+1)}, {v(t+1)}, {v(dst4)}")
        p(f"v_lshlrev_b32 {v(t+1)}, 4, {v(t+1)}")
        for ks in range(4):
            p(f"v_xor_b32 {v(dst4+ks)}, {32*ks}, {v(t+1)}\nv_add_u32 {v(dst4+ks)}, {v(dst4+ks)}, {v(t)}")
    def plain_dma_addr(self, dst4, rowbytes, t, rowstep=8):
        p = self.p
        p(f"v_lshrrev_b32 {v(t)}, 3, {v(VL)}\nv_mul_u32_u24 {v(t)}, {rowbytes}, {v(t)}")
        self.plain_dma_addr2(dst4, t, t + 1, rowstep * rowbytes)
    def plain_dma_addr2(self, dst4, vrow, t, step):
        p = self.p
        p(f"v_and_b32 {v(t)}, 7, {v(VL)}\nv_lshrrev_b32 {v(dst4)}, 4, {v(VL)}\nv_xor_b32 {v(t)}, {v(t)}, {v(dst4)}\nv_lshlrev_b32 {v(t)}, 4, {v(t)}")
        p(f"v_add_u32 {v(dst4)}, {v(t)}, {v(vrow)}")
        p(f"v_xor_b32 {v(t)}, 64, {v(t)}\nv_add_u32 {v(dst4+1)}, {v(t)}, {v(vrow)}")
        p(f"v_add_u32 {v(dst4+2)}, {2*(step-1024)}, {v(dst4)}\nv_add_u32 {v(dst4+3)}, {3*(step-1024)}, {v(dst4+1)}\nv_add_u32 {v(dst4+1)}, {step-1024}, {v(dst4+1)}")
    def panel_tr_addr(self, dst2, base_sreg, t, perm):
        p = self.p
        p(f"v_lshrrev_b32 {v(t)}, 5, {v(VL)}\nv_lshlrev_b32 {v(t)}, 10, {v(t)}")
        p(f"v_bfe_u32 {v(t+1)}, {v(VL)}, 2, 2\nv_lshl_add_u32 {v(t)}, {v(t+1)}, 7, {v(t)}")
        p(f"v_bfe_u32 {v(t+1)}, {v(VL)}, 4, 1\nv_lshl_add_u32 {v(t)}, {v(t+1)}, 5, {v(t)}")
        if perm:
            p(f"v_and_b32 {v(t+1)}, 1, {v(VL)}\nv_lshl_add_u32 {v(t)}, {v(t+1)}, 4, {v(t)}")
            p(f"v_bfe_u32 {v(t+1)}, {v(VL)}, 1, 1\nv_lshl_add_u32 {v(t)}, {v(t+1)}, 3, {v(t)}")
        else:
            p(f"v_and_b32 {v(t+1)}, 3, {v(VL)}\nv_lshl_add_u32 {v(t)}, {v(t+1)}, 3, {v(t)}")
        p(f"v_bfe_u32 {v(t+1)}, {v(VL)}, 3, 1\nv_lshlrev_b32 {v(t+1)}, 6, {v(t+1)}")
        if base_sreg is not None: p(f"v_add_u32 {v(t)}, s{base_sreg}, {v(t)}")
        p(f"v_add_u32 {v(dst2)}, {v(t)}, {v(t+1)}\nv_xor_b32 {v(t+1)}, 64, {v(t+1)}\nv_add_u32 {v(dst2+1)}, {v(t)}, {v(t+1)}")
    def unit_tr_addr(self, dst2, base_sreg, t, perm, flip_sreg=None):
        p = self.p
        p(f"v_bfe_u32 {v(t)}, {v(VL)}, 4, 1")
        if flip_sreg is not None: p(f"v_xor_b32 {v(t)}, s{flip_sreg}, {v(t)}")
        p(f"v_lshlrev_b32 {v(t)}, 1, {v(t)}")
        p(f"v_bfe_u32 {v(t+1)}, {v(VL)}, {0 if perm else 1}, 1\nv_or_b32 {v(t)}, {v(t)}, {v(t+1)}")
        p(f"v_lshrrev_b32 {v(t+1)}, 5, {v(VL)}\nv_lshlrev_b32 {v(t+1)}, 1, {v(t+1)}\nv_xor_b32 {v(t+1)}, {v(t+1)}, {v(t)}")
        p(f"v_lshlrev_b32 {v(t)}, 9, {v(t)}")
        p(f"v_bfe_u32 {v(t+2)}, {v(VL)}, 2, 2\nv_lshl_add_u32 {v(t)}, {v(t+2)}, 4, {v(t)}")
        p(f"v_bfe_u32 {v(t+2)}, {v(VL)}, {1 if perm else 0}, 1\nv_lshl_add_u32 {v(t)}, {v(t+2)}, 3, {v(t)}")
        if base_sreg is not None: p(f"v_add_u32 {v(t)}, s{base_sreg}, {v(t)}")
        p(f"v_lshl_add_u32 {v(dst2)}, {v(t+1)}, 6, {v(t)}")
        p(f"v_xor_b32 {v(t+1)}, 1, {v(t+1)}\nv_lshl_add_u32 {v(dst2+1)}, {v(t+1)}, 6, {v(t)}")

    def gemm_loop(self, nslot, reads, mfmas, dma, tick, rfront, npro, extra, valu=None):
        p = self.p
        p.wait(vm=tick[0]); p("s_barrier")
        self.stamp(20)
        self.run(reads(0))
        d = []
        for st in range(npro, nslot): d += dma(st)
        q = (len(d) + 2) // 3
        pend = [d[i * q:(i + 1) * q] for i in range(3)]
        for n in range(32):
            rd = []
            if n + 1 < 32:
                if (n + 1) % 4 == 0:
                    st = (n + 1) // 4
                    p.wait(vm=tick[st], lg=p.lg - 1); p("s_barrier")
                    if self.o.get("astamps"): self.stamp(20 + st)
                    d = dma(st - 1 + nslot) if st - 1 + nslot < 8 else extra.get(st, lambda: [])()
                    q = (len(d) + 3) // 4
                    pend = [d[i * q:(i + 1) * q] for i in range(4)]
                rd = reads(n + 1)
            seq = merge(mfmas(n), rd, 0, rfront)
            if pend: seq = merge(seq, pend.pop(0), len(seq) // 2)
            if valu and n in valu: seq = merge(seq, valu[n])
            self.run(seq)

    def gate(self, GX, GW, GU, GS, GT):
        p = self.p
        for i in range(4):
            for r in range(4):
                p(f"v_dot2_f32_bf16 {v(GS+r)}, {v(GX+4*r+i)}, {v(GW+i)}, {'0' if i == 0 else v(GS+r)}")
        p("s_nop 2")
        for mod in ["quad_perm:[1,0,3,2]", "quad_perm:[2,3,0,1]", "row_half_mirror", "row_mirror"]:
            for r in range(4): p(f"v_add_f32_dpp {v(GS+r)}, {v(GS+r)}, {v(GS+r)} {mod} row_mask:0xf bank_mask:0xf")
        for sw in ["v_permlane16_swap_b32", "v_permlane32_swap_b32"]:
            for r in range(4): p(f"v_mov_b32 {v(GT+r)}, {v(GS+r)}")
            for r in range(4): p(f"{sw} {v(GS+r)}, {v(GT+r)}")
            for r in range(4): p(f"v_add_f32 {v(GS+r)}, {v(GS+r)}, {v(GT+r)}")
        for r in range(4): p(f"v_mul_f32 {v(GS+r)}, {f2u(-LOG2E)}, {v(GS+r)}")
        for r in range(4): p(f"v_exp_f32 {v(GS+r)}, {v(GS+r)}")
        for r in range(4): p(f"v_add_f32 {v(GS+r)}, 1.0, {v(GS+r)}")
        for r in range(4): p(f"v_rcp_f32 {v(GS+r)}, {v(GS+r)}")
        p(f"v_mov_b32 {v(GT)}, {v(VOOB)}\nv_writelane_b32 {v(GT)}, 0, 0")

    def w_dma_addr(self, dst3, t, colbase):
        p = self.p
        for i in range(3):
            p(f"v_add_u32 {v(t)}, {64*i}, {v(VL)}\nv_mul_u32_u24 {v(t+1)}, 171, {v(t)}\nv_lshrrev_b32 {v(t+1)}, 11, {v(t+1)}")
            p(f"v_mul_u32_u24 {v(t+2)}, 12, {v(t+1)}\nv_sub_u32 {v(t)}, {v(t)}, {v(t+2)}\nv_cmp_eq_u32 vcc, 11, {v(t)}")
            p(f"v_mul_u32_u24 {v(t+1)}, 2752, {v(t+1)}\nv_lshl_add_u32 {v(t)}, {v(t)}, 4, {v(t+1)}")
            if colbase - 1024 * i: p(f"v_add_u32 {v(t)}, {colbase-1024*i}, {v(t)}")
            p(f"v_cndmask_b32 {v(dst3+i)}, {v(t)}, {v(VOOB)}, vcc")
    def w_tr_addr(self, dst, base, t):
        p = self.p
        p(f"v_lshrrev_b32 {v(t)}, 5, {v(VL)}\nv_bfe_u32 {v(t+1)}, {v(VL)}, 2, 2\nv_lshl_add_u32 {v(t)}, {v(t)}, 3, {v(t+1)}\nv_mul_u32_u24 {v(t)}, 192, {v(t)}")
        p(f"v_bfe_u32 {v(t+1)}, {v(VL)}, 4, 1\nv_lshl_add_u32 {v(t)}, {v(t+1)}, 5, {v(t)}")
        p(f"v_and_b32 {v(t+1)}, 1, {v(VL)}\nv_lshl_add_u32 {v(t)}, {v(t+1)}, 4, {v(t)}")
        p(f"v_bfe_u32 {v(t+1)}, {v(VL)}, 1, 1\nv_lshl_add_u32 {v(t)}, {v(t+1)}, 3, {v(t)}")
        p(f"v_add_u32 {v(dst)}, {base}, {v(t)}")
    def valid_masks(self):
        MA, MB = SK + 2, SK + 4
        self.p.atom(f"s_cmp_lt_u32 s{SCOL}, 7\ns_mov_b32 s{MA}, -1\ns_cselect_b32 s{MA+1}, -1, 0\ns_cselect_b32 s{MB}, -1, 0\ns_mov_b32 s{MB+1}, 0\n"
                    f"s_mov_b32 s{SK+6}, {f2u(1/72)}\ns_cselect_b32 s{SK+6}, {f2u(1/88)}, s{SK+6}")
        c1 = -2 * LOG2E * 0.7978845608028654
        self.p(f"s_mov_b32 s{SK}, {f2u(c1*0.044715)}\nv_mov_b32 {v(self.VC0)}, {f2u(c1)}")

    def gelu_pair(self, a, t, out_packed=None):
        p = self.p
        p(f"v_pk_mul_f32 {v(t,2)}, {v(a,2)}, {v(a,2)}")
        p(f"v_pk_fma_f32 {v(t,2)}, {v(t,2)}, {sp(SK)}, {v(self.VC0,2)} op_sel_hi:[1,0,0]")
        p(f"v_pk_mul_f32 {v(t,2)}, {v(t,2)}, {v(a,2)}")
        p(f"v_exp_f32 {v(t)}, {v(t)}\nv_exp_f32 {v(t+1)}, {v(t+1)}")
        p(f"v_pk_add_f32 {v(t,2)}, {v(t,2)}, 1.0 op_sel_hi:[1,0]")
        p(f"v_rcp_f32 {v(t)}, {v(t)}\nv_rcp_f32 {v(t+1)}, {v(t+1)}")
        if out_packed is not None:
            p(f"v_pk_mul_f32 {v(t,2)}, {v(t,2)}, {v(a,2)}")
            p(f"v_cvt_pk_bf16_f32 {v(out_packed)}, {v(t)}, {v(t+1)}")
        else:
            p(f"v_pk_mul_f32 {v(a,2)}, {v(t,2)}, {v(a,2)}")
    def gelu_many(self, pairs, temps, outs=None):
        p = self.p; ng = len(temps)
        for g0 in range(0, len(pairs), ng):
            streams = []
            for k, i in enumerate(range(g0, min(g0 + ng, len(pairs)))):
                sub = Prog(); save = self.p; self.p = sub
                self.gelu_pair(pairs[i], temps[k], None if outs is None else outs[i])
                self.p = save
                streams.append(sub.L)
            for j in range(len(streams[0])):
                for s in streams: p(s[j])

    VWD, VWR, VWA, VC0 = 240, 244, 248, 252
    def wsp_setup(self, t):
        p = self.p
        self.plain_dma_addr(self.VWD, 4096, t)
        p(f"s_lshl_b32 s{SA}, s{SKH}, 12")
        self.plain_read_addr(self.VWR, SA, t)
        p(f"s_lshr_b32 s{SWB}, s{STB}, 1\ns_lshl_b32 s{SWB}, s{SWB}, 19\ns_and_b32 s{SB_}, s{SWV}, 1\ns_lshl_b32 s{SB_}, s{SB_}, 18\ns_add_u32 s{SWB}, s{SWB}, s{SB_}")
        p(f"s_lshl_b32 s{SB_}, s{SKH}, 11\ns_add_u32 s{SWB}, s{SWB}, s{SB_}\ns_lshr_b32 s{SB_}, s{SWV}, 1\ns_lshl_b32 s{SB_}, s{SB_}, 10\ns_add_u32 s{SWB}, s{SWB}, s{SB_}")
        self.wsp_t = {}
    def piece(self, st): return (SPB + st % 5, 0)
    def wsp_dma(self, st):
        if self.o.get("x_nowsp") and st >= 2:
            self.wsp_t[st] = -1
            return [lambda: None] * 9
        items = []; sr, im = self.piece(st)
        for hh in range(2):
            for i in range(4):
                def cb(t): self.wsp_t[st] = t
                items.append(((sr, im + hh * 4096) if i == 0 else None, (SWB, st * 128 + hh * 131072) if i == 0 else None,
                              f"buffer_load_dwordx4 {v(self.VWD+i)}, {srd(SWSP)}, s{SDO} offen offset:{i*1024} {self.o.get('wmod', '')} lds", cb))
        return self.dseq(items)
    def wsp_read(self, st):
        if self.o.get("x_nord"): return [lambda: None]
        p = self.p; sr, im = self.piece(st)
        def pre():
            for ks in range(4): p(f"v_add_u32 {v(self.VWA+ks)}, s{sr}, {v(self.VWR+ks)}")
            p.wait(vm=self.wsp_t[st], lg=p.lg - 8)
        ops = [pre]
        for nt in range(2):
            for ks in range(4):
                def f(ks=ks, nt=nt):
                    p.lds(f"ds_read_b128 {ar(((st*4+ks)*2+nt)*4,4)}, {v(self.VWA+ks)} offset:{im}")
                    if nt == 0: p(f"v_xor_b32 {v(self.VWA+ks)}, 4096, {v(self.VWA+ks)}")
                ops.append(f)
        return ops

    ZXD = 104
    def prologue(self):
        p = self.p
        self.END = p.label("end"); self.LU = p.label("U"); self.LG = p.label("G"); self.LZ = p.label("Z")
        p(f"s_cmp_ge_u32 s2, 256\ns_cbranch_scc1 {self.END}")
        if self.o.get("sst"): p("s_memrealtime s[84:85]\ns_waitcnt lgkmcnt(0)")
        if self.o.get("cpf", 1):
            p(f"s_getpc_b64 {sp(SSTMP)}\nv_lshlrev_b32 v4, 7, v0\nglobal_load_dword v5, v4, {sp(SSTMP)}")
        p(f"s_load_dwordx2 {sp(SX)}, s[0:1], 0\ns_load_dwordx2 {sp(PWIN)}, s[0:1], 80\ns_load_dwordx4 s[{PBRE}:{PBRE+3}], s[0:1], 24")
        p(f"v_lshrrev_b32 v2, 6, v0\nv_and_b32 {v(VL)}, 63, v0\nv_readfirstlane_b32 s{SWV}, v2")
        p(f"s_and_b32 s{SA}, s2, 6\ns_lshl_b32 s{SA}, s{SA}, 1\ns_bfe_u32 s{SRB}, s2, 0x20005\ns_add_u32 s{SRB}, s{SRB}, s{SA}")
        p(f"s_mov_b32 s{SX+2}, 2097152\ns_mov_b32 s{SX+3}, 0x20000\ns_lshl_b32 s{SXB}, s{SRB}, 17")
        p(f"s_cmp_ge_u32 s2, 128\ns_cbranch_scc1 {self.LU}")
        self.plain_dma_addr(self.ZXD, 1024, 112)
        p(f"s_lshl_b32 s{SA}, s{SWV}, 15\ns_add_u32 s{SXB}, s{SXB}, s{SA}\ns_mul_i32 s{SREG}, s{SWV}, 40960\ns_mov_b32 m0, s{SREG}")
        p.wait_lg_all()
        for i in range(4): p.vmem(f"buffer_load_dwordx4 {v(self.ZXD+i)}, {srd(SX)}, s{SXB} offen offset:{i*1024} lds")
        p(f"s_branch {self.LZ}")
    def common2(self):
        p = self.p
        p(f"v_lshlrev_b32 {v(VL16)}, 4, {v(VL)}\nv_mov_b32 {v(VOOB)}, {OOB}")
        if self.o.get("stamps"):
            p("v_mov_b32 v255, 0")
            if self.o.get("sst"): p("v_writelane_b32 v255, s84, 17"); self.stamp(22)
            else: self.stamp(17)
        elif "spin_from" in self.o: self.stamp(17)
        p(f"s_and_b32 s{SKH}, s2, 1\ns_lshl_b32 s{SC}, s{SKH}, 2\ns_bfe_u32 s{SD}, s2, 0x20003\ns_add_u32 s{SCOL}, s{SC}, s{SD}\ns_mov_b32 s{SW1+3}, 0x20000")
    def common3(self):
        p = self.p
        p(f"s_load_dwordx2 {sp(SWS)}, s[0:1], 136\ns_load_dwordx2 {sp(PGW)}, s[0:1], 112\ns_load_dwordx4 s[{PLRE}:{PLRE+3}], s[0:1], 8\ns_load_dwordx2 {sp(PLDT)}, s[0:1], 56")
        for (r, off) in [(SWSP, 88), (SCRE, 40), (SCIM, 48), (SWOUT, 104), (SOUT, 120), (PDSK, 64), (PBSP, 96)]:
            p(f"s_load_dwordx2 {sp(r)}, s[0:1], {off}")
        for (r, n) in [(SWSP, 8388608), (SWS, WS_END), (SCRE, 524288), (SCIM, 524288), (SWOUT, 704512), (SOUT, 4194304)]:
            p(f"s_mov_b32 s{r+2}, {n}\ns_mov_b32 s{r+3}, 0x20000")
        p(f"s_and_b32 s{SC}, s2, 6\ns_lshl_b32 s{SC}, s{SC}, 1\ns_lshr_b32 s{STB}, s2, 6\ns_add_u32 s{STB}, s{STB}, s{SC}\ns_lshl_b32 s{STB}, s{STB}, 1\ns_add_u32 s{STB}, s{STB}, s{SKH}\ns_bfe_u32 s{SJ}, s2, 0x30003")
        if self.o.get("pf", 2) == 2:
            A_, C_, D_, E_ = SA, SC, SB_, SF
            p(f"s_lshl_b32 s{D_}, s{SWV}, 8\ns_add_u32 s{D_}, s{D_}, s2\ns_mov_b32 s{C_}, 0\ns_mov_b32 s{A_}, 0\ns_mov_b32 s{E_}, 2047")
            for (lo, off, last) in [(171, 24, 511), (214, 32, 511), (257, 80, 0)]:
                p.atom(f"s_cmp_ge_u32 s{D_}, {lo}\ns_cselect_b32 s{C_}, {off}, s{C_}\ns_cselect_b32 s{A_}, {lo}, s{A_}\ns_cselect_b32 s{E_}, {last}, s{E_}")
            p.atom(f"s_cmp_lt_u32 s{D_}, 365\ns_cselect_b32 s{SPFE}, 1, 0")
            p(f"s_sub_u32 s{D_}, s{D_}, s{A_}\ns_load_dwordx2 {sp(SPFP)}, s[0:1], s{C_}")
            p(f"v_mul_u32_u24 {v(6)}, 52, {v(VL)}\nv_lshrrev_b32 {v(6)}, 8, {v(6)}\nv_mul_u32_u24 {v(7)}, 5, {v(6)}\nv_sub_u32 {v(7)}, {v(VL)}, {v(7)}")
            p(f"s_mul_i32 s{A_}, s{D_}, 12\nv_add_u32 {v(6)}, s{A_}, {v(6)}\nv_min_u32 {v(6)}, s{E_}, {v(6)}\nv_lshlrev_b32 {v(6)}, 10, {v(6)}\nv_lshl_add_u32 {v(6)}, {v(7)}, 7, {v(6)}\nv_add_u32 {v(6)}, 384, {v(6)}")
            p(f"s_lshl_b32 s{D_}, s{D_}, 13\ns_add_u32 s{D_}, s{D_}, {192*2752}\nv_lshl_add_u32 {v(7)}, {v(VL)}, 7, s{D_}\nv_min_u32 {v(7)}, {512*2752-4}, {v(7)}")
            p.atom(f"s_cmp_eq_u32 s{E_}, 0\ns_cselect_b64 vcc, -1, 0")
            p(f"v_cndmask_b32 {v(6)}, {v(6)}, {v(7)}, vcc")
    def pf2(self):
        p = self.p
        p.wait_lg_all()
        if self.o.get("pf", 2) == 2:
            l = p.label("pf")
            p(f"s_cmp_eq_u32 s{SPFE}, 0\ns_cbranch_scc1 {l}\nglobal_load_dword {v(7)}, {v(6)}, {sp(SPFP)}")
            p.put(l)
        if self.o.get("cpf", 1):
            l = p.label("c2")
            here = p.label("pc")
            p(f"s_cmp_lg_u32 s{SWV}, 0\ns_cbranch_scc1 {l}\ns_getpc_b64 {sp(SSTMP)}")
            p.put(here)
            p(f"s_sub_u32 s{SSTMP}, s{SSTMP}, {here}-{NAME}\ns_subb_u32 s{SSTMP+1}, s{SSTMP+1}, 0")
            p(f"v_add_u32 v4, 32768, v4\nv_min_u32 v4, {self.END}-{NAME}, v4\nglobal_load_dword v5, v4, {sp(SSTMP)}")
            p.put(l)
        p(f"s_load_dword s{ST_T}, {sp(SWS)}, {EPOCH}")
    def code_prefetch(self, va, vd):
        if not self.o.get("cpf", 1): return
        p = self.p
        sk = p.label("cpf"); here = p.label("pc")
        nsl = self.o.get("cpfn", 6)
        p(f"s_lshr_b32 s{SA}, s2, 3\ns_and_b32 s{SA}, s{SA}, 15\ns_lshl_b32 s{SA}, s{SA}, 2\ns_add_u32 s{SA}, s{SA}, s{SWV}")
        p(f"s_cmp_ge_u32 s{SA}, {nsl}\ns_cbranch_scc1 {sk}")
        p(f"s_getpc_b64 s[{SSTMP}:{SSTMP+1}]")
        p.put(here)
        p(f"s_sub_u32 s{SSTMP}, s{SSTMP}, {here}-{NAME}\ns_subb_u32 s{SSTMP+1}, s{SSTMP+1}, 0")
        p(f"s_lshl_b32 s{SA}, s{SA}, 13\nv_lshl_add_u32 {v(va)}, {v(VL)}, 7, s{SA}\nv_min_u32 {v(va)}, {self.END}-{NAME}, {v(va)}")
        p(f"global_load_dword {v(vd)}, {v(va)}, s[{SSTMP}:{SSTMP+1}]")
        p.put(sk)
    def pf1(self, when=1):
        if self.o.get("pf", 2) == 4 and self.o.get("pfw", 5) == when:
            self.p.vmem(f"global_load_dword {v(7)}, {v(6)}, {sp(PWIN)}")
            self.p.vmem(f"global_load_dword {v(5)}, {v(4)}, {sp(SPFP)}")
        if {3: 1, 2: self.o.get("pfw2", 2)}.get(self.o.get("pf", 2), self.o.get("pf", 2)) == when:
            p = self.p; l = p.label("pf")
            p(f"s_cmp_eq_u32 s{SPFE}, 0\ns_cbranch_scc1 {l}\nglobal_load_dword {v(5)}, {v(4)}, {sp(SPFP)}")
            p.put(l)
        if self.o.get("wfirst") == when: self.touch_wsp(11, 12, 0, 1)
    def tlb_warm(self):
        p = self.p
        ls = [p.label("tw") for _ in range(4)]
        p(f"v_lshlrev_b32 {v(6)}, 19, {v(VL)}\nv_mov_b32 {v(7)}, 0")
        p(f"s_cmp_eq_u32 s{SWV}, 1\ns_cbranch_scc1 {ls[0]}\ns_cmp_eq_u32 s{SWV}, 2\ns_cbranch_scc1 {ls[1]}\ns_cmp_eq_u32 s{SWV}, 3\ns_cbranch_scc1 {ls[2]}")
        p(f"buffer_load_dword {v(8)}, {v(6)}, {srd(SWS)}, 0 offen sc1\nglobal_load_ushort {v(9)}, {v(7)}, {sp(PGW)}\ns_branch {ls[3]}")
        p.put(ls[0]); p(f"buffer_load_dword {v(8)}, {v(6)}, {srd(SWSP)}, 0 offen\nglobal_load_ushort {v(9)}, {v(7)}, {sp(PBSP)}\nglobal_load_ushort {v(10)}, {v(7)}, {sp(PDSK)}\ns_branch {ls[3]}")
        p.put(ls[1]); p(f"buffer_load_dword {v(8)}, {v(6)}, {srd(SOUT)}, 0 offen sc1\nbuffer_load_dword {v(9)}, {v(6)}, {srd(SWOUT)}, 0 offen\ns_branch {ls[3]}")
        p.put(ls[2]); p(f"buffer_load_dword {v(8)}, {v(6)}, {srd(SCRE)}, 0 offen\nbuffer_load_dword {v(9)}, {v(6)}, {srd(SCIM)}, 0 offen")
        p.put(ls[3])
    def late_args(self):
        p = self.p
        if self.o.get("tlb", 1):
            if self.o.get("tlb", 1) == 1: self.tlb_warm()
            self.pf1(5)
            p(f"s_load_dword s{ST_T}, {sp(SWS)}, {EPOCH}")
            return
        for (r, off) in [(SWSP, 88), (SCRE, 40), (SCIM, 48), (SWOUT, 104), (SOUT, 120), (PDSK, 64), (PBSP, 96)]:
            p(f"s_load_dwordx2 {sp(r)}, s[0:1], {off}")
        p(f"s_load_dword s{ST_T}, {sp(SWS)}, {EPOCH}")
        for (r, n) in [(SWSP, 8388608), (SWS, WS_END), (SCRE, 524288), (SCIM, 524288), (SWOUT, 704512), (SOUT, 4194304)]:
            p(f"s_mov_b32 s{r+2}, {n}\ns_mov_b32 s{r+3}, 0x20000")
    def epoch2(self):
        p = self.p
        p.wait_lg_all()
        p(f"s_mul_i32 s{ST_T}, s{ST_T}, 0x9E3779B1\ns_add_u32 s{ST_T}, s{ST_T}, 0x7F4A7C15")

    def touch_wsp(self, va, vd, k, n):
        p = self.p
        if k == 0:
            p(f"s_lshr_b32 s{SB_}, s2, 3\ns_lshl_b32 s{SB_}, s{SB_}, 2\ns_add_u32 s{SB_}, s{SB_}, s{SWV}\ns_lshl_b32 s{SB_}, s{SB_}, 13")
            p(f"s_and_b32 s{SA}, s2, 7\ns_lshl_b32 s{SA}, s{SA}, 20\ns_add_u32 s87, s{SA}, s{SB_}")
            p(f"v_cmp_gt_u32 vcc, {64//n}, {v(VL)}\nv_lshlrev_b32 {v(va)}, 7, {v(VL)}\ns_nop 0\nv_cndmask_b32 {v(va)}, {v(VOOB)}, {v(va)}, vcc")
        else: p(f"s_add_u32 s87, s87, {8192//n}")
        p.vmem(f"buffer_load_dword {v(vd)}, {v(va)}, {srd(SWSP)}, s87 offen {self.o.get('tmod', '')}")
    def ctouch(self, va, vd):
        p = self.p; l = p.label("ct")
        p(f"s_lshl_b32 s{SA}, s{SWV}, 8\ns_add_u32 s{SA}, s{SA}, s2\ns_cmp_ge_u32 s{SA}, 856\ns_cbranch_scc1 {l}")
        p(f"s_cmp_lt_u32 s{SA}, 256\ns_cselect_b64 {sp(SSTMP)}, {sp(SCRE)}, {sp(SCIM)}")
        p(f"s_sub_u32 s{SB_}, s{SA}, 512\ns_and_b32 s{SSPIN}, s{SA}, 255\ns_cmp_ge_u32 s{SA}, 512\ns_cselect_b64 {sp(SSTMP)}, {sp(SWOUT)}, {sp(SSTMP)}\ns_cselect_b32 s{SA}, s{SB_}, s{SSPIN}")
        p(f"s_lshl_b32 s{SA}, s{SA}, 11\nv_and_b32 {v(vd)}, 15, {v(VL)}\nv_lshlrev_b32 {v(vd)}, 7, {v(vd)}\nv_add_u32 {v(vd)}, s{SA}, {v(vd)}")
        p(f"global_load_dword {v(vd)}, {v(vd)}, {sp(SSTMP)}")
        p.put(l)
    def paced(self, valu, va, vd, t0, dt):
        if "ct" in self.o: valu.setdefault(self.o["ct"], []).append(lambda: self.ctouch(va, vd + 1 if vd != 205 else 4))
        n = self.o.get("tn", 4)
        if self.o.get("touch", 1) != 1: return
        for k in range(n):
            valu.setdefault(t0 + k * dt, []).append(lambda k=k: self.touch_wsp(va, vd, k, n))
    def touch_c(self, va, vd):
        p = self.p
        p(f"v_lshlrev_b32 {v(va)}, 7, {v(VL)}\ns_lshr_b32 s{SB_}, s2, 3\ns_lshl_b32 s{SB_}, s{SB_}, 2\ns_add_u32 s{SB_}, s{SB_}, s{SWV}\ns_lshl_b32 s{SA}, s{SB_}, 13")
        p.vmem(f"buffer_load_dword {v(vd)}, {v(va)}, {srd(SWOUT)}, s{SA} offen")
        p.vmem(f"buffer_load_dword {v(vd)}, {v(va)}, {srd(SCRE)}, s{SA} offen")
        p.vmem(f"buffer_load_dword {v(vd)}, {v(va)}, {srd(SCIM)}, s{SA} offen")
        p(f"s_add_u32 s{SA}, s{SA}, 524288")
        p.vmem(f"buffer_load_dword {v(vd)}, {v(va)}, {srd(SWOUT)}, s{SA} offen")
    GTR, GPL = 236, 238
    def g_early(self, t):
        p = self.p
        p(f"s_lshr_b32 s{SA}, s{SWV}, 1\ns_mul_i32 s{SGL}, s{SA}, 81920")
        p(f"v_bfe_u32 {v(t)}, {v(VL)}, 4, 1\nv_xor_b32 {v(t)}, s{SA}, {v(t)}\nv_lshlrev_b32 {v(t)}, 4, {v(t)}")
        p(f"v_bfe_u32 {v(t+1)}, {v(VL)}, 2, 1\nv_lshl_add_u32 {v(t)}, {v(t+1)}, 3, {v(t)}\nv_bfe_u32 {v(t+1)}, {v(VL)}, 3, 1\nv_lshl_add_u32 {v(t)}, {v(t+1)}, 2, {v(t)}")
        p(f"v_and_b32 {v(t+1)}, 35, {v(VL)}\nv_add_lshl_u32 {v(t)}, {v(t)}, {v(t+1)}, 4\nv_add_u32 {v(self.GTR)}, s{SGL}, {v(t)}")
        p.atom(f"s_cmp_lt_u32 s{SJ}, 7\ns_cselect_b32 s{SB_}, 24, 8")
        p(f"v_and_b32 {v(t)}, 31, {v(VL)}\nv_cmp_gt_u32 vcc, s{SB_}, {v(t)}\ns_nop 1\nv_cndmask_b32 {v(self.GTR+1)}, {v(VOOB)}, {v(VL16)}, vcc")
        p(f"s_lshl_b32 s{SB_}, s{SJ}, 2\ns_add_u32 s{SB_}, s{SB_}, s{SA}\ns_lshl_b32 s{SA}, s{SKH}, 1\ns_add_u32 s{SB_}, s{SB_}, s{SA}\ns_lshl_b32 s{SB_}, s{SB_}, 4")
        p(f"s_and_b32 s{SA}, s{SWV}, 1\ns_add_u32 s{SGB}, s{SB_}, s{SA}\ns_mul_i32 s{SGB}, s{SGB}, 6144\ns_add_u32 s{SGB}, s{SGB}, {Z2N}\ns_mul_i32 s{SA}, s{SA}, 6144\ns_add_u32 s{SGL}, s{SGL}, s{SA}")
        p(f"s_lshl_b32 s{SB_}, s{SB_}, 7\ns_add_u32 s{SB_}, s{SB_}, {ZF}")
        self.poll_addr(self.GPL, [(SB_, 16)])
        p(f"s_lshr_b32 s{SA}, s{STB}, 1\ns_lshl_b32 s{SA}, s{SA}, 9\ns_add_u32 s{SA}, s{SA}, {ZF}")
        p(f"v_add_u32 {v(t)}, 16, {v(VL)}\nv_bfe_u32 {v(t)}, {v(t)}, 2, 3\nv_lshlrev_b32 {v(t)}, 13, {v(t)}\nv_and_b32 {v(t+1)}, 3, {v(VL)}\nv_lshl_add_u32 {v(t)}, {v(t+1)}, 7, {v(t)}\nv_add_u32 {v(t)}, s{SA}, {v(t)}")
        p(f"s_mov_b32 vcc_lo, 0xffff0000\ns_mov_b32 vcc_hi, 0xffff\nv_cndmask_b32 {v(self.GPL)}, {v(self.GPL)}, {v(t)}, vcc")
        p(f"s_lshr_b32 s{SA}, s{STB}, 1\ns_lshl_b32 s{SA}, s{SA}, 1\ns_and_b32 s{SB_}, s{SWV}, 1\ns_add_u32 s{SA}, s{SA}, s{SB_}\ns_lshl_b32 s{SA}, s{SA}, 1\ns_add_u32 s{SA}, s{SA}, s{SKH}")
        p(f"s_lshl_b32 s{SB_}, s{SJ}, 6\ns_add_u32 s{SZI}, s{SA}, s{SB_}")
    def g_poll_issue(self):
        self.gp = self.p.vmem(f"buffer_load_dword {v(self.GPL+1)}, {v(self.GPL)}, {srd(SWS)}, 0 offen sc1")

    def phase_z(self):
        p = self.p; o = self.o
        ACC, FA, FB, XR, WR, XD, WD, T = 16, 64, 88, 96, 100, 104, 108, 112
        p.c("==== phase A: Z ====")
        p.put(self.LZ)
        self.common2()
        tick = {}
        def xdma(st, cb=None):
            return [((SREG, (st & 3) * 4096) if i == 0 else None, (SXB, st * 128) if i == 0 else None,
                     f"buffer_load_dwordx4 {v(XD+i)}, {srd(SX)}, s{SDO} offen offset:{i*1024} lds", cb) for i in range(4)]
        def wdma(st, cb=None):
            return [((SWL, (st & 3) * 40960) if i == 0 else None, (SW1B, st * 64 * 2752) if i == 0 else None,
                     f"buffer_load_dwordx4 {v(WD+i)}, {srd(SW1)}, s{SDO} offen offset:{i*1024} lds", cb) for i in range(3)]
        def dma(st):
            def cb(t): tick[st] = t
            return self.dseq(wdma(st) + xdma(st, cb))
        self.w_dma_addr(WD, T, 1376)
        p(f"s_mul_i32 s{SW1B}, s{SWV}, {16*2752}\ns_mul_i32 s{SA}, s{SCOL}, 176\ns_add_u32 s{SW1B}, s{SW1B}, s{SA}")
        p(f"s_mul_i32 s{SWL}, s{SWV}, 3072\ns_add_u32 s{SWL}, s{SWL}, 16384\ns_mov_b32 s{SW1+2}, {512*2752}")
        p(f"s_mov_b64 {sp(SW1)}, {sp(PWIN)}")
        npro = o.get("npro", 3)
        def cb0(t): tick[0] = t
        self.run(self.dseq(wdma(0, cb0)))
        if o.get("sst"): self.stamp(23)
        def setup():
            self.plain_read_addr(XR, SREG, T)
            self.w_tr_addr(WR, 16384, T)
            self.p(f"v_add_u32 {v(WR+1)}, 81920, {v(WR)}")
            self.wsp_setup(T)
            self.p(f"s_add_u32 s{SPB}, s{SREG}, 32768\ns_mov_b32 s{SPB+1}, s{SREG}\ns_add_u32 s{SPB+2}, s{SREG}, 8192\ns_add_u32 s{SPB+3}, s{SREG}, 16384\ns_add_u32 s{SPB+4}, s{SREG}, 24576")
            self.valid_masks()
        d = []
        for st in range(1, npro): d += dma(st)
        self.run(merge(self.cap(lambda: (self.common3(), setup())), d))
        def prefill(u0, u1):
            if u0 == 0:
                p(f"s_lshl_b32 s{SCB}, s{SRB}, 2\ns_add_u32 s{SCB}, s{SCB}, s{SWV}\ns_mul_i32 s{SCB}, s{SCB}, 45056\ns_mul_i32 s{SA}, s{SCOL}, 5632\ns_add_u32 s{SCB}, s{SCB}, s{SA}\ns_add_u32 s{SCB}, s{SCB}, {PB}")
                for k in range(4): p(f"v_mov_b32 {v(176+k)}, -1")
            for u in range(u0, u1):
                if u == 4: p(f"s_add_u32 s{SCB}, s{SCB}, 4096")
                if u == 5: p("s_mov_b32 exec_hi, 0")
                p.vmem(f"buffer_store_dwordx4 {v(176,4)}, {v(VL16)}, {srd(SWS)}, s{SCB} offen offset:{(u%4)*1024} sc1")
                if u == 5: p("s_mov_b32 exec_hi, -1")
        self.pf2()
        self.epoch2()
        self.stamp(0)
        rt = {}
        def reads(n):
            st, ks = n // 4, n % 4; sl = st & 3; s = n & 1; ops = []
            def rb(): rt[(n, 'b')] = p.lds(f"ds_read_b128 {v(FB+4*s,4)}, {v(XR+ks)} offset:{sl*4096}")
            ops.append(rb)
            for mt in range(3):
                for a in range(2):
                    def ra(mt=mt, a=a):
                        rt[(n, mt)] = p.lds(f"ds_read_b64_tr_b16 {v(FA+12*s+4*mt+2*a,2)}, {v(WR+(sl>>1))} offset:{(sl&1)*40960+ks*3072+a*768+mt*64}")
                    ops.append(ra)
            return ops
        def mfmas(n):
            s = n & 1; ops = []
            for mt in range(3):
                def m(mt=mt):
                    p.wait(lg=rt[(n, mt)])
                    c = "0" if n == 0 else v(ACC + 16 * mt, 16)
                    p(f"{MF} {v(ACC+16*mt,16)}, {v(FA+12*s+4*mt,4)}, {v(FB+4*s,4)}, {c}")
                ops.append(m)
            return ops
        GX, GW, GU, GS, GT = 128, 144, 148, 156, 160
        gt = {}
        def gload():
            p(f"s_lshl_b32 s{SE}, s{SRB}, 2\ns_add_u32 s{SE}, s{SE}, s{SWV}\ns_lshl_b32 s{SE}, s{SE}, 3\ns_add_u32 s{SE}, s{SE}, s{SCOL}\ns_lshl_b32 s{SA}, s{SE}, 12")
            for r in range(4): p.vmem(f"buffer_load_dwordx4 {v(GX+4*r,4)}, {v(VL16)}, {srd(SX)}, s{SA} offen offset:{r*1024}")
            gt['t'] = p.vmem(f"global_load_dwordx4 {v(GW,4)}, {v(VL16)}, {sp(PGW)}")
        def gstore():
            p(f"s_lshl_b32 s{SA}, s{SE}, 4\ns_add_u32 s{SA}, s{SA}, {GATE}")
            p.vmem(f"buffer_store_dwordx4 {v(GS,4)}, {v(GT)}, {srd(SWS)}, s{SA} offen sc1")
        gops = [lambda: p.wait(vm=gt['t'])] + self.cap(lambda: self.gate(GX, GW, GU, GS, GT)) + [gstore]
        zm = o.get('zmode', 1)
        valu = {(28 if zm == 1 else 13): [gload]}
        def touch_u():
            p(f"v_lshlrev_b32 {v(170)}, 7, {v(VL)}\ns_lshr_b32 s{SB_}, s2, 3\ns_lshl_b32 s{SB_}, s{SB_}, 2\ns_add_u32 s{SB_}, s{SB_}, s{SWV}\ns_lshl_b32 s{SB_}, s{SB_}, 13")
            p(f"s_and_b32 s{SA}, s2, 7\ns_lshl_b32 s{SA}, s{SA}, 20\ns_add_u32 s{SA}, s{SA}, s{SB_}\ns_add_u32 s{SA}, s{SA}, {1<<19}")
            p.vmem(f"buffer_load_dword {v(171)}, {v(170)}, {srd(SWSP)}, s{SA} offen")
        def warm():
            p(f"v_lshlrev_b32 {v(170)}, 18, {v(VL)}\nv_lshlrev_b32 {v(172)}, 16, {v(VL)}\nv_lshlrev_b32 {v(173)}, 13, {v(VL)}")
            ls = [p.label("wm") for _ in range(4)]
            p(f"s_cmp_eq_u32 s{SWV}, 1\ns_cbranch_scc1 {ls[0]}\ns_cmp_eq_u32 s{SWV}, 2\ns_cbranch_scc1 {ls[1]}\ns_cmp_eq_u32 s{SWV}, 3\ns_cbranch_scc1 {ls[2]}")
            p(f"buffer_load_dword {v(171)}, {v(170)}, {srd(SWS)}, 0 offen sc1\ns_branch {ls[3]}")
            p.put(ls[0]); p(f"buffer_load_dword {v(171)}, {v(172)}, {srd(SOUT)}, 0 offen sc1\ns_branch {ls[3]}")
            p.put(ls[1]); p(f"buffer_load_dword {v(171)}, {v(173)}, {srd(SCRE)}, 0 offen\nbuffer_load_dword {v(171)}, {v(173)}, {srd(SCIM)}, 0 offen\ns_branch {ls[3]}")
            p.put(ls[2]); p(f"v_lshlrev_b32 {v(173)}, 14, {v(VL)}\nbuffer_load_dword {v(171)}, {v(173)}, {srd(SWOUT)}, 0 offen")
            p.put(ls[3])
        if o.get("warm"): valu[31] = [warm]
        def ztouch(part):
            if part == 0:
                p(f"s_lshr_b32 s{SB_}, s2, 3\ns_lshl_b32 s{SB_}, s{SB_}, 2\ns_add_u32 s{SB_}, s{SB_}, s{SWV}")
                p(f"s_and_b32 s{SA}, s2, 7\ns_lshl_b32 s{SPFP+1}, s{SB_}, 3\ns_add_u32 s{SPFP+1}, s{SPFP+1}, s{SA}")
                p(f"s_lshr_b32 s{SA}, s{SA}, 1\ns_lshl_b32 s{SA}, s{SA}, 21\ns_lshl_b32 s{SB_}, s{SB_}, 14\ns_add_u32 s{SPFP}, s{SA}, s{SB_}\ns_lshl_b32 s{SA}, s{SKH}, 11\ns_add_u32 s{SPFP}, s{SPFP}, s{SA}")
                p(f"v_lshrrev_b32 {v(173)}, 4, {v(VL)}\nv_lshlrev_b32 {v(173)}, 12, {v(173)}\nv_and_b32 {v(174)}, 15, {v(VL)}\nv_lshl_add_u32 {v(173)}, {v(174)}, 7, {v(173)}\nv_lshlrev_b32 {v(174)}, 7, {v(VL)}")
                p.vmem(f"buffer_load_dword {v(175)}, {v(173)}, {srd(SWSP)}, s{SPFP} offen")
            if part == 1:
                p(f"s_add_u32 s{SPFP}, s{SPFP}, {1<<20}")
                p.vmem(f"buffer_load_dword {v(175)}, {v(173)}, {srd(SWSP)}, s{SPFP} offen")
            if part == 2:
                l = p.label("zt")
                p(f"s_cmp_ge_u32 s{SPFP+1}, 428\ns_cbranch_scc1 {l}")
                p(f"s_cmp_lt_u32 s{SPFP+1}, 128\ns_cselect_b64 {sp(SSTMP)}, {sp(SCRE)}, {sp(SCIM)}\ns_and_b32 s{SA}, s{SPFP+1}, 127")
                p(f"s_sub_u32 s{SB_}, s{SPFP+1}, 256\ns_cmp_ge_u32 s{SPFP+1}, 256\ns_cselect_b64 {sp(SSTMP)}, {sp(SWOUT)}, {sp(SSTMP)}\ns_cselect_b32 s{SA}, s{SB_}, s{SA}")
                p(f"s_lshl_b32 s{SA}, s{SA}, 12\nv_and_b32 {v(174)}, 4095, {v(174)}\nv_add_u32 {v(174)}, s{SA}, {v(174)}")
                p(f"global_load_dword {v(175)}, {v(174)}, {sp(SSTMP)}")
                p.put(l)
        if o.get("touch", 1) == 2:
            for k in range(3): valu.setdefault(o.get(f"zs{k}", [0, 0, 0][k]), []).append(lambda k=k: ztouch(k))
        else: self.paced(valu, 174, 175, o.get("zt0", 6), o.get("zdt", 6))
        self.gemm_loop(4, reads, mfmas, dma, tick, 2, npro, {o.get('ze0', 5): lambda: self.wsp_dma(0), o.get('ze1', 6): lambda: self.wsp_dma(1)} if zm == 1 else {}, valu)
        self.stamp(1)
        MA, MB = SK + 2, SK + 4
        GR, VLO = 72, 80
        def seg1b():
            p = self.p
            S0, S1, MU = 64, 66, 68
            p(f"v_pk_add_f32 {v(S0,2)}, {v(ACC,2)}, {v(ACC+2,2)}\nv_pk_add_f32 {v(S1,2)}, {v(ACC+4,2)}, {v(ACC+6,2)}")
            for i in range(4, 16):
                s = S0 if i % 2 == 0 else S1
                p(f"v_pk_add_f32 {v(s,2)}, {v(s,2)}, {v(ACC+2*i,2)}")
            for (m, b) in [(MA, 16), (MB, 20)]:
                p(f"s_mov_b64 exec, {sp(m)}")
                for i in range(b, b + 4):
                    s = S0 if i % 2 == 0 else S1
                    p(f"v_pk_add_f32 {v(s,2)}, {v(s,2)}, {v(ACC+2*i,2)}")
            p("s_mov_b64 exec, -1")
            p(f"v_pk_add_f32 {v(S0,2)}, {v(S0,2)}, {v(S1,2)}\nv_add_f32 {v(GR)}, {v(S0)}, {v(S0+1)}")
            p(f"v_mov_b32 {v(S0)}, {v(GR)}\nv_mov_b32 {v(GR+1)}, s{ST_T}\nv_mov_b32 {v(GR+3)}, s{ST_T}\nv_permlane32_swap_b32 {v(GR)}, {v(S0)}\nv_add_f32 {v(GR)}, {v(GR)}, {v(S0)}")
            p(f"v_mul_f32 {v(MU)}, s{SK+6}, {v(GR)}")
            D0, D1 = 76, 78
            def m2(i, first=False):
                d = D0 if i % 2 == 0 else D1; s = S0 if i % 2 == 0 else S1
                p(f"v_pk_add_f32 {v(d,2)}, {v(ACC+2*i,2)}, {v(MU,2)} op_sel_hi:[1,0] neg_lo:[0,1] neg_hi:[0,1]")
                if first: p(f"v_pk_mul_f32 {v(s,2)}, {v(d,2)}, {v(d,2)}")
                else: p(f"v_pk_fma_f32 {v(s,2)}, {v(d,2)}, {v(d,2)}, {v(s,2)}")
            for i in range(16): m2(i, i < 2)
            for (m, b) in [(MA, 16), (MB, 20)]:
                p(f"s_mov_b64 exec, {sp(m)}")
                for i in range(b, b + 4): m2(i)
            p("s_mov_b64 exec, -1")
            p(f"v_pk_add_f32 {v(S0,2)}, {v(S0,2)}, {v(S1,2)}\nv_add_f32 {v(GR+2)}, {v(S0)}, {v(S0+1)}")
            p(f"v_mov_b32 {v(S0)}, {v(GR+2)}\nv_cmp_gt_u32 vcc, 32, {v(VL)}")
            p(f"s_lshl_b32 s{SC}, s{SRB}, 2\ns_add_u32 s{SC}, s{SC}, s{SWV}")
            p(f"v_permlane32_swap_b32 {v(GR+2)}, {v(S0)}\nv_cndmask_b32 {v(VLO)}, {v(VOOB)}, {v(VL16)}, vcc\nv_add_f32 {v(GR+2)}, {v(GR+2)}, {v(S0)}")
            p(f"s_lshl_b32 s{SD}, s{SC}, 12\ns_add_u32 s{SD}, s{SD}, {ST}\ns_lshl_b32 s{SA}, s{SCOL}, 9\ns_add_u32 s{SA}, s{SA}, s{SD}")
        seg1 = self.cap(lambda: self.gelu_many([ACC + 2 * i for i in range(24)], [64, 68, 72, 76]))
        h = len(seg1) // 5
        f1 = self.wsp_dma(2) + [lambda: p("s_barrier")]
        f2 = self.wsp_dma(3) + self.wsp_dma(4)
        if zm == 1: self.run(merge(seg1[:h], f1) + merge(seg1[h:], f2))
        else: self.run(seg1[:h] + [lambda: p("s_barrier")] + seg1[h:])
        seg1b()
        p.vmem(f"buffer_store_dwordx4 {v(GR,4)}, {v(VLO)}, {srd(SWS)}, s{SA} offen sc1")
        self.stamp(2)
        lgw = lambda: p.wait(lg=p.lg - 1)
        Q0, Q1, QA, QB = 112, 113, 114, 115
        MN, VR, N3, I3, TM = 80, 81, 82, 83, 84
        def misc():
            p = self.p
            self.g_early(120)
            p(f"v_lshrrev_b32 {v(Q1)}, 5, {v(VL)}\nv_lshlrev_b32 {v(Q1)}, 6, {v(Q1)}\nv_xor_b32 {v(Q0)}, {v(VL16)}, {v(Q1)}\nv_xor_b32 {v(Q1)}, 128, {v(Q0)}")
            p(f"v_add_u32 {v(Q0)}, s{SPB+4}, {v(Q0)}\nv_add_u32 {v(Q1)}, s{SPB+4}, {v(Q1)}")
            self.unit_tr_addr(124, SPB + 4, 120, False)
            p.atom(f"s_cmp_lt_u32 s{SCOL}, 7\ns_cselect_b32 s{SA}, 24, 8")
            p(f"v_and_b32 {v(QB)}, 31, {v(VL)}\nv_cmp_gt_u32 vcc, s{SA}, {v(QB)}\nv_add_u32 {v(QB)}, 4096, {v(VL16)}\nv_cndmask_b32 {v(QA)}, {v(VOOB)}, {v(QB)}, vcc")
            p(f"s_lshl_b32 s{SA}, s{SCOL}, 6\ns_add_u32 s{SC}, s{SA}, s{SC}\ns_mul_i32 s{SE}, s{SC}, 6144")
            self.flag_prep(118)
            p(f"v_cmp_gt_u32 vcc, 32, {v(VL)}\nv_mov_b32 {v(N3)}, {f2u(72.0)}\nv_mov_b32 {v(TM)}, {f2u(88.0)}\nv_mov_b32 {v(I3)}, {f2u(1/72)}\nv_mov_b32 {v(TM+1)}, {f2u(1/88)}")
            p(f"v_cndmask_b32 {v(N3)}, {v(N3)}, {v(TM)}, vcc\nv_cndmask_b32 {v(I3)}, {v(I3)}, {v(TM+1)}, vcc")
        za = o.get("za", 1)
        f = self.wsp_read(0) + self.wsp_read(1) + [lgw]
        for st in range(5, 5 + za): f += self.wsp_dma(st)
        zs = o.get('zsched', 0)
        if zm == 2: f = self.wsp_dma(0) + self.wsp_dma(1) + (self.wsp_dma(2) if zs else [])
        self.run(merge(gops + self.cap(misc), f))
        self.stamp(3)
        SG = 64
        for q in range(4):
            ts = p.vmem(f"buffer_load_dwordx4 {v(SG+4*q,4)}, {v(VL16)}, {srd(SWS)}, s{SD} offen offset:{q*1024} sc1")
        if zm == 1:
            for st in range(5 + za, 7): self.run(self.wsp_dma(st))
        else: self.run(self.wsp_dma(3) + self.wsp_read(0) if zs else self.wsp_dma(2))
        l = p.label("sp"); dl = p.label("sd")
        p.wait(vm=ts)
        p(f"s_mov_b32 s{SSPIN}, 0")
        p.put(l)
        X0 = 116
        p(f"v_xor_b32 {v(MN)}, s{ST_T}, {v(SG+1)}\nv_xor_b32 {v(VR)}, s{ST_T}, {v(SG+3)}")
        for r in [5, 9, 13]:
            p(f"v_xor_b32 {v(X0)}, s{ST_T}, {v(SG+r)}\nv_xor_b32 {v(X0+1)}, s{ST_T}, {v(SG+r+2)}\nv_or3_b32 {v(MN)}, {v(MN)}, {v(X0)}, {v(X0+1)}")
        p(f"v_or_b32 {v(MN)}, {v(MN)}, {v(VR)}")
        p(f"v_cmp_ne_u32 vcc, 0, {v(MN)}\ns_cmp_eq_u64 vcc, 0\ns_cbranch_scc1 {dl}")
        for q in range(4):
            p(f"buffer_load_dwordx4 {v(SG+4*q,4)}, {v(VL16)}, {srd(SWS)}, s{SD} offen offset:{q*1024} sc1")
        p("s_waitcnt vmcnt(0)")
        p(f"s_add_u32 s{SSPIN}, s{SSPIN}, 1\ns_cmp_lt_u32 s{SSPIN}, {SPIN}\ns_cbranch_scc1 {l}")
        p.put(dl)
        self.stamp(4)
        p(f"v_add_f32 {v(MN)}, {v(SG)}, {v(SG+4)}\nv_add_f32 {v(TM+2)}, {v(SG+8)}, {v(SG+12)}\nv_add_f32 {v(MN)}, {v(MN)}, {v(TM+2)}")
        p(f"v_mov_b32 {v(TM+3)}, {v(MN)}\nv_add_f32 {v(VR)}, {v(SG+2)}, {v(SG+6)}\nv_add_f32 {v(TM+2)}, {v(SG+10)}, {v(SG+14)}")
        p(f"v_permlane32_swap_b32 {v(MN)}, {v(TM+3)}\nv_add_f32 {v(VR)}, {v(VR)}, {v(TM+2)}\nv_add_f32 {v(MN)}, {v(MN)}, {v(TM+3)}")
        p(f"v_mul_f32 {v(MN)}, {f2u(1/688)}, {v(MN)}")
        for q in range(4):
            n_, i_ = (TM, TM + 1) if q < 3 else (N3, I3)
            p(f"v_fma_f32 {v(TM+2)}, {v(SG+4*q)}, {v(i_)}, -{v(MN)}\nv_mul_f32 {v(TM+2)}, {v(TM+2)}, {v(TM+2)}\nv_fmac_f32 {v(VR)}, {v(TM+2)}, {v(n_)}")
        self.xhalf_sum(VR, TM)
        p(f"v_mov_b32 {v(TM)}, {f2u(1e-5)}\nv_fmac_f32 {v(TM)}, {f2u(1/688)}, {v(VR)}\nv_rsq_f32 {v(VR)}, {v(TM)}")
        p(f"s_add_u32 s{SA}, s{SE}, {Z2N}\ns_add_u32 s{SB_}, s{SA}, 4096")
        p(f"v_mul_f32 {v(MN)}, {v(MN)}, {v(VR)}")
        ZP = 88
        for u in range(6):
            mt, q = u >> 1, u & 1
            R4 = range(4 * u, 4 * u + 4)
            for i in R4: p(f"v_pk_fma_f32 {v(ACC+2*i,2)}, {v(ACC+2*i,2)}, {v(MN,2)}, {v(MN,2)} op_sel:[0,1,0] op_sel_hi:[1,1,0] neg_lo:[0,0,1] neg_hi:[0,0,1]")
            for i in R4: p(f"v_cvt_pk_bf16_f32 {v(ZP+i)}, {v(ACC+2*i)}, {v(ACC+2*i+1)}")
            p.lds(f"ds_write_b128 {v(Q0+q)}, {v(ZP+4*u,4)} offset:{mt*2048+q*1024}")
        FO = [(0, 0), (0, 1), (1, 0), (1, 1), (0, 2), (1, 2)]
        zr = {}
        for fi, (ks, mt) in enumerate(FO):
            for a in range(2): zr[fi] = p.lds(f"ds_read_b64_tr_b16 {v(128+4*fi+2*a,2)}, {v(124+a)} offset:{mt*2048+ks*256}")
        p(f"s_lshl_b32 s{SE}, s{SC}, 7\ns_add_u32 s{SE}, s{SE}, {ZF}")
        for fi in range(6):
            p.wait(lg=zr[fi])
            t = p.vmem(f"buffer_store_dwordx4 {v(128+4*fi,4)}, {v(VL16 if fi < 4 else QA)}, {srd(SWS)}, s{SA} offen offset:{(fi%4)*1024} sc1")
        if zs:
            self.run(merge(self.wsp_dma(4) + (self.wsp_dma(5) if zs > 1 else []), self.wsp_read(1) + self.wsp_read(2)))
            p.wait(vm=t)
            self.flag(SE, 118)
            self.run([lgw] + ([] if zs > 1 else self.wsp_dma(5)) + self.wsp_dma(6) + self.wsp_dma(7))
            for st in range(3, 6): self.run(self.wsp_read(st))
            self.g_poll_issue()
            prefill(0, 6)
            for st in range(6, 8): self.run(self.wsp_read(st))
            p(f"s_add_u32 s{SLATE}, s{SE}, {ZF2-ZF}")
            self.stamp(5)
            return
        self.run(merge(self.wsp_dma(3), self.wsp_read(0) + self.wsp_read(1) + self.wsp_read(2)))
        p.wait(vm=t)
        self.flag(SE, 118)
        prefill(0, 6); tpf = p.vm - 1
        self.run(self.wsp_dma(4) + [lgw] + self.wsp_dma(5) + self.wsp_dma(6))
        p.wait(vm=tpf)
        p(f"s_add_u32 s{SE}, s{SE}, {ZF2-ZF}")
        self.flag(SE, 118)
        self.run(self.wsp_dma(7))
        for st in range(3, 8): self.run(self.wsp_read(st))
        self.g_poll_issue()
        p(f"s_mov_b32 s{SLATE}, 0")
        self.stamp(5)

    def phase_u(self):
        p = self.p; o = self.o
        ACC, ZA, FA, FB, FW, FX = 16, 80, 128, 144, 160, 184
        XR, BR, X1R, WR, XD, BD, WD, T = 192, 196, 200, 204, 206, 210, 214, 60
        p.c("==== phase A: U ====")
        p.put(self.LU)
        WT, WP = SK + 8, SK + 9
        p(f"v_lshrrev_b32 {v(T)}, 5, {v(VL)}\nv_lshlrev_b32 {v(T)}, 15, {v(T)}")
        p(f"v_bfe_u32 {v(T+1)}, {v(VL)}, 3, 1\nv_lshl_add_u32 {v(T)}, {v(T+1)}, 14, {v(T)}")
        p(f"v_bfe_u32 {v(T+1)}, {v(VL)}, 4, 1\nv_lshl_add_u32 {v(T)}, {v(T+1)}, 10, {v(T)}")
        self.plain_dma_addr2(XD, T, T + 1, 2048)
        p(f"s_lshr_b32 s{WP}, s{SWV}, 1\ns_and_b32 s{WT}, s{SWV}, 1\ns_lshl_b32 s{SA}, s{WT}, 5")
        for i in range(4): p(f"v_xor_b32 {v(XD+i)}, s{SA}, {v(XD+i)}")
        p(f"s_lshl_b32 s{SD}, s{WP}, 16\ns_add_u32 s{SXB}, s{SXB}, s{SD}\ns_lshl_b32 s{SD}, s{WT}, 13\ns_add_u32 s{SXB}, s{SXB}, s{SD}\ns_lshl_b32 s{SXL}, s{SWV}, 12\ns_mov_b32 m0, s{SXL}")
        p.wait_lg_all()
        for i in range(4): p.vmem(f"buffer_load_dwordx4 {v(XD+i)}, {srd(SX)}, s{SXB} offen offset:{i*1024} lds")
        self.common2()
        self.plain_dma_addr(BD, 1024, T)
        p(f"s_lshl_b32 s{SW1B}, s{SCOL}, 16\ns_lshl_b32 s{SD}, s{WT}, 15\ns_add_u32 s{SW1B}, s{SW1B}, s{SD}\ns_mov_b32 s{SW1+2}, 524288\ns_add_u32 m0, s{SXL}, 49152")
        p(f"s_cmp_eq_u32 s{WP}, 0\ns_cselect_b64 {sp(SW1)}, {sp(PBRE)}, {sp(PBIM)}")
        for i in range(4): p.vmem(f"buffer_load_dwordx4 {v(BD+i)}, {srd(SW1)}, s{SW1B} offen offset:{i*1024} lds")
        self.w_dma_addr(WD, T, 0)
        SWIB = SCB
        p(f"s_mul_i32 s{SWIB}, s{SWV}, {16*2752}\ns_mul_i32 s{SA}, s{SCOL}, 176\ns_add_u32 s{SWIB}, s{SWIB}, s{SA}")
        p(f"s_mul_i32 s{SWL}, s{SWV}, 3072\ns_add_u32 s{SWL}, s{SWL}, 98304\ns_mov_b32 m0, s{SWL}\ns_mov_b32 s{PWIN+2}, {512*2752}\ns_mov_b32 s{PWIN+3}, 0x20000")
        for i in range(3): t0_ = p.vmem(f"buffer_load_dwordx4 {v(WD+i)}, {srd(PWIN)}, s{SWIB} offen offset:{i*1024} lds")
        if o.get("sst"): self.stamp(23)
        PR = 228
        tick = {}
        def dma(st):
            sl = st % 3; items = []
            def cb(t): tick[st] = t
            for i in range(3):
                items.append(((SWL, sl * 12288) if i == 0 else None, (SWIB, st * 64 * 2752) if i == 0 else None,
                              f"buffer_load_dwordx4 {v(WD+i)}, {srd(PWIN)}, s{SDO} offen offset:{i*1024} lds", None))
            for (vd, sr, sb, lb) in [(XD, SX, SXB, 0), (BD, SW1, SW1B, 49152)]:
                for i in range(4):
                    items.append(((SXL, lb + sl * 16384) if i == 0 else None, (sb, st * 128) if i == 0 else None,
                                  f"buffer_load_dwordx4 {v(vd+i)}, {srd(sr)}, s{SDO} offen offset:{i*1024} lds", cb))
            return self.dseq(items)
        tick[0] = t0_
        npro = o.get("npro_u", 2)
        def setup():
            p = self.p
            p(f"s_mul_i32 s{SREG}, s{SWV}, 40960\ns_lshl_b32 s{SA}, s{WT}, 13")
            self.plain_read_addr(XR, SA, T)
            p(f"s_lshl_b32 s{SA}, s{WP}, 12\ns_add_u32 s{SA}, s{SA}, 49152")
            self.plain_read_addr(BR, SA, T)
            self.w_tr_addr(WR, 98304, T)
            p(f"v_bfe_u32 {v(T)}, {v(VL)}, 3, 1\nv_lshlrev_b32 {v(T+1)}, 12, {v(T)}\nv_xor_b32 {v(T)}, s{WT}, {v(T)}\nv_lshlrev_b32 {v(T)}, 1, {v(T)}")
            p(f"v_bfe_u32 {v(T+2)}, {v(VL)}, 1, 2\nv_lshl_add_u32 {v(T+1)}, {v(T+2)}, 10, {v(T+1)}")
            p(f"v_and_b32 {v(T+2)}, 1, {v(T+2)}\nv_lshl_add_u32 {v(T)}, {v(T+2)}, 2, {v(T)}")
            p(f"v_and_b32 {v(T+2)}, 1, {v(VL)}\nv_lshl_add_u32 {v(T+1)}, {v(T+2)}, 8, {v(T+1)}\nv_or_b32 {v(T)}, {v(T)}, {v(T+2)}")
            p(f"v_bfe_u32 {v(T+2)}, {v(VL)}, 4, 1\nv_lshl_add_u32 {v(T+1)}, {v(T+2)}, 7, {v(T+1)}")
            p(f"s_lshl_b32 s{SA}, s{WP}, 13\ns_lshl_b32 s{SB_}, s{WT}, 9\ns_add_u32 s{SA}, s{SA}, s{SB_}\nv_add_u32 {v(T+1)}, s{SA}, {v(T+1)}")
            p(f"v_lshrrev_b32 {v(T+2)}, 5, {v(VL)}\nv_xor_b32 {v(T)}, {v(T)}, {v(T+2)}\nv_lshlrev_b32 {v(T)}, 4, {v(T)}")
            for ks in range(4): p(f"v_xor_b32 {v(X1R+ks)}, {32*ks}, {v(T)}\nv_add_u32 {v(X1R+ks)}, {v(X1R+ks)}, {v(T+1)}")
            self.wsp_setup(T)
            p(f"s_lshl_b32 s{SPB+1}, s{WT}, 13\ns_mul_i32 s{SA}, s{WP}, 49152\ns_add_u32 s{SPB+1}, s{SPB+1}, s{SA}\ns_add_u32 s{SPB}, s{SPB+1}, 32768\ns_add_u32 s{SPB+2}, s{SPB+1}, 16384")
            p(f"s_lshl_b32 s{SA}, s{SWV}, 13\ns_add_u32 s{SPB+3}, s{SA}, {13*8192}\ns_add_u32 s{SPB+4}, s{SA}, {17*8192}")
            p.atom(f"s_cmp_eq_u32 s{SWV}, 3\ns_cselect_b32 s{SPB+4}, {12*8192}, s{SPB+4}")
            self.valid_masks()
        self.run(merge(self.cap(lambda: (self.common3(), setup())), (dma(1) if npro > 1 else []) + (dma(2) if npro > 2 else [])))
        p(f"s_lshl_b32 s{SD}, s{SRB}, 1\ns_add_u32 s{SD}, s{SD}, s{WT}")
        p(f"s_lshl_b32 s{SA}, s{SCOL}, 1\ns_add_u32 s{SA}, s{SA}, s{WP}")
        p(f"s_lshl_b32 s{SE}, s{SD}, 4\ns_add_u32 s{SE}, s{SE}, s{SA}")
        p(f"s_lshl_b32 s{SA}, s{SA}, 5\nv_and_b32 {v(T)}, 31, {v(VL)}\nv_add_lshl_u32 {v(T)}, {v(T)}, s{SA}, 1")
        p.wait_lg_all()
        p.vmem(f"global_load_ushort {v(PR)}, {v(T)}, {sp(PLRE)}")
        p.vmem(f"global_load_ushort {v(PR+1)}, {v(T)}, {sp(PLIM)}")
        tp = p.vmem(f"global_load_ushort {v(PR+2)}, {v(T)}, {sp(PLDT)}")
        LB, CF, L16, L128, L256, LQ0, LQ1 = 218, 220, 222, 224, 226, 228, 230
        X0, X1, X2, X3 = 232, 233, 234, 235
        L32, L64 = 236, 238
        def csq(d, s):
            p = self.p
            p(f"v_mul_f32 {v(X0)}, {v(s+1)}, {v(s+1)}\nv_add_f32 {v(X1)}, {v(s)}, {v(s)}")
            p(f"v_mul_f32 {v(d+1)}, {v(X1)}, {v(s+1)}\nv_fma_f32 {v(d)}, {v(s)}, {v(s)}, -{v(X0)}")
        def cmul(d, a, b):
            p = self.p
            p(f"v_mul_f32 {v(X0)}, {v(a+1)}, {v(b+1)}\nv_mul_f32 {v(X1)}, {v(a+1)}, {v(b)}")
            p(f"v_fma_f32 {v(X0)}, {v(a)}, {v(b)}, -{v(X0)}\nv_fma_f32 {v(d+1)}, {v(a)}, {v(b+1)}, {v(X1)}\nv_mov_b32 {v(d)}, {v(X0)}")
        def cfma(d, a, b, c):
            p = self.p
            p(f"v_fma_f32 {v(X0)}, {v(a)}, {v(b)}, {v(c)}\nv_fma_f32 {v(X1)}, {v(a)}, {v(b+1)}, {v(c+1)}")
            p(f"v_fma_f32 {v(X0)}, -{v(a+1)}, {v(b+1)}, {v(X0)}\nv_fma_f32 {v(d+1)}, {v(a+1)}, {v(b)}, {v(X1)}\nv_mov_b32 {v(d)}, {v(X0)}")
        def params():
            p = self.p
            p(f"v_lshlrev_b32 {v(PR)}, 16, {v(PR)}\nv_lshlrev_b32 {v(PR+1)}, 16, {v(PR+1)}\nv_lshlrev_b32 {v(PR+2)}, 16, {v(PR+2)}")
            p(f"v_mul_f32 {v(X0)}, {f2u(LOG2E)}, {v(PR+2)}\nv_exp_f32 {v(X0)}, {v(X0)}"); self.rnd(X0, X0)
            p(f"v_mul_f32 {v(X1)}, {v(X0)}, {v(PR)}\nv_mul_f32 {v(X2)}, {v(X0)}, {v(PR+1)}")
            p(f"v_mul_f32 {v(X1)}, {f2u(LOG2E)}, {v(X1)}\nv_exp_f32 {v(X1)}, {v(X1)}")
            p(f"v_mul_f32 {v(X2)}, {f2u(1/(2*math.pi))}, {v(X2)}\nv_fract_f32 {v(X2)}, {v(X2)}")
            p(f"v_cos_f32 {v(X3)}, {v(X2)}\nv_sin_f32 {v(X2)}, {v(X2)}")
            p(f"v_mul_f32 {v(X0)}, {v(PR)}, {v(PR)}")
            p(f"v_mul_f32 {v(LB)}, {v(X1)}, {v(X3)}\nv_mul_f32 {v(LB+1)}, {v(X1)}, {v(X2)}")
            p(f"v_fmac_f32 {v(X0)}, {v(PR+1)}, {v(PR+1)}\nv_rcp_f32 {v(X0)}, {v(X0)}")
            p(f"v_add_f32 {v(X1)}, -1.0, {v(LB)}\nv_add_f32 {v(X0)}, {v(X0)}, {v(X0)}")
            p(f"v_mul_f32 {v(X2)}, {v(X1)}, {v(PR)}\nv_fmac_f32 {v(X2)}, {v(LB+1)}, {v(PR+1)}\nv_mul_f32 {v(CF)}, {v(X2)}, {v(X0)}")
            p(f"v_mul_f32 {v(X2)}, {v(LB+1)}, {v(PR)}\nv_fma_f32 {v(X2)}, -{v(X1)}, {v(PR+1)}, {v(X2)}\nv_mul_f32 {v(CF+1)}, {v(X2)}, {v(X0)}")
            csq(L16, LB); csq(L16, L16); csq(L16, L16); csq(L16, L16)
            csq(L32, L16); csq(L64, L32); csq(L128, L64); csq(L256, L128)
            p.atom(f"s_cmp_eq_u32 s{WT}, 0\ns_cselect_b64 vcc, -1, 0")
            p(f"v_cndmask_b32 {v(L64)}, {v(L64)}, 1.0, vcc\nv_cndmask_b32 {v(L64+1)}, {v(L64+1)}, 0, vcc")
            p(f"v_cmp_gt_u32 vcc, 32, {v(VL)}\nv_cndmask_b32 {v(LQ0)}, {v(L32)}, 1.0, vcc\nv_cndmask_b32 {v(LQ0+1)}, {v(L32+1)}, 0, vcc")
            cmul(LQ0, LQ0, L64); cmul(LQ1, LQ0, L16)
        self.pf2()
        self.epoch2()
        self.stamp(0)
        pops = [lambda: p.wait(vm=tp)] + self.cap(params)
        valu = {}
        q = (len(pops) + 15) // 16
        for i in range(16): valu[8 + i] = pops[i * q:(i + 1) * q]
        self.paced(valu, 217, 205, o.get("ut0", 4), o.get("udt", 4))
        rt = {}
        def reads(n):
            st, ks = n // 4, n % 4; sl = st % 3; s = n & 1; ops = []
            for k in range(2):
                def ra(k=k): rt[(n, 'a', k)] = p.lds(f"ds_read_b128 {v(FA+8*s+4*k,4)}, {v(XR+(ks^k))} offset:{sl*16384+k*4096}")
                def rb(k=k): rt[(n, 'b', k)] = p.lds(f"ds_read_b128 {v(FB+8*s+4*k,4)}, {v(BR+ks)} offset:{sl*16384+k*8192}")
                ops += [ra, rb]
            def rx(): p.lds(f"ds_read_b128 {v(FX+4*s,4)}, {v(X1R+ks)} offset:{sl*16384}")
            ops.append(rx)
            for mt in range(3):
                for a in range(2):
                    def rw(mt=mt, a=a):
                        rt[(n, 'w', mt)] = p.lds(f"ds_read_b64_tr_b16 {v(FW+12*s+4*mt+2*a,2)}, {v(WR)} offset:{sl*12288+ks*3072+a*768+mt*64}")
                    ops.append(rw)
            return ops
        def mfmas(n):
            s = n & 1; ops = []
            for (mt, cp) in [(0, 0), (1, 0), (1, 1), (0, 1)]:
                def m(mt=mt, cp=cp):
                    if (mt, cp) == (0, 0): p.wait(lg=rt[(n, 'b', 1)])
                    d = v(ACC + 32 * mt + 16 * cp, 16)
                    p(f"{MF} {d}, {v(FA+8*s+4*mt,4)}, {v(FB+8*s+4*cp,4)}, {'0' if n == 0 else d}")
                ops.append(m)
            for mt in range(3):
                def m(mt=mt):
                    if mt == 0: p.wait(lg=rt[(n, 'w', 2)])
                    d = v(ZA + 16 * mt, 16)
                    p(f"{MF} {d}, {v(FW+12*s+4*mt,4)}, {v(FX+4*s,4)}, {'0' if n == 0 else d}")
                ops.append(m)
            return ops
        self.gemm_loop(3, reads, mfmas, dma, tick, 5, npro, {6: lambda: self.wsp_dma(0), 7: lambda: self.wsp_dma(1)}, valu)
        self.stamp(1)
        def U(sg, cp): return ACC + 32 * (sg >> 3) + 16 * cp + 4 * ((sg & 7) >> 1) + 2 * (sg & 1)
        def step(hr, hi, sg, nr, ni, t0, t1):
            p = self.p; A = v(LB, 2)
            p(f"v_pk_fma_f32 {v(t0,2)}, {A}, {v(hr,2)}, {v(U(sg,0),2)} op_sel_hi:[0,1,1]")
            p(f"v_pk_fma_f32 {v(t1,2)}, {A}, {v(hi,2)}, {v(U(sg,1),2)} op_sel_hi:[0,1,1]")
            p(f"v_pk_fma_f32 {v(nr,2)}, {A}, {v(hi,2)}, {v(t0,2)} op_sel:[1,0,0] op_sel_hi:[1,1,1] neg_lo:[1,0,0] neg_hi:[1,0,0]")
            p(f"v_pk_fma_f32 {v(ni,2)}, {A}, {v(hr,2)}, {v(t1,2)} op_sel:[1,0,0] op_sel_hi:[1,1,1]")
        HA, HBb, T0, EX, E8, AD, GR, CQ = 128, 132, 136, 140, 144, 160, 164, 168
        SCR = 98304
        p(f"s_lshl_b32 s{SA}, s{WP}, 11\ns_add_u32 s{SA}, s{SA}, {SCR}")
        p(f"v_and_b32 {v(AD)}, 31, {v(VL)}\nv_lshlrev_b32 {v(AD)}, 6, {v(AD)}\nv_add_u32 {v(AD)}, s{SA}, {v(AD)}")
        p(f"v_lshrrev_b32 {v(AD+1)}, 5, {v(VL)}\nv_lshl_add_u32 {v(AD+1)}, {v(AD+1)}, 4, {v(AD)}\ns_lshl_b32 s{SA}, s{WT}, 5\nv_add_u32 {v(AD+1)}, s{SA}, {v(AD+1)}")
        Z1P = 192
        SZ0, SZ1 = SXL, SWL
        VA_ = 176
        MA, MB = SK + 2, SK + 4
        def z1st(u):
            mt, q = u >> 1, u & 1
            for i in range(4): p(f"v_cvt_pk_bf16_f32 {v(Z1P+4*u+i)}, {v(ZA+8*u+2*i)}, {v(ZA+8*u+2*i+1)}")
            r = v(Z1P + 4 * u, 4)
            if mt < 2: p.vmem(f"buffer_store_dwordx4 {r}, {v(VL16)}, {srd(SWS)}, s{SZ0} offen offset:{mt*2048+q*1024} sc1")
            else: p.vmem(f"buffer_store_dwordx4 {r}, {v(VA_+q)}, {srd(SWS)}, s{SZ1} offen offset:{q*1024} sc1")
        p(f"s_lshl_b32 s{SA}, s{SCOL}, 6\ns_lshl_b32 s{SB_}, s{SRB}, 2\ns_add_u32 s{SA}, s{SA}, s{SB_}\ns_add_u32 s{SA}, s{SA}, s{SWV}\ns_mul_i32 s{SA}, s{SA}, 5632")
        p(f"s_add_u32 s{SZ0}, s{SA}, {Z1}\ns_add_u32 s{SZ1}, s{SZ0}, 4096")
        p(f"v_cndmask_b32 {v(VA_)}, {v(VOOB)}, {v(VL16)}, {sp(MA)}\nv_cndmask_b32 {v(VA_+1)}, {v(VOOB)}, {v(VL16)}, {sp(MB)}")
        zs = [(lambda u=u: z1st(u)) for u in range(6)]
        self.run(zs[:2])
        p("s_barrier")
        def pass1():
            hr, hi = U(0, 0), U(0, 1)
            for sg in range(1, 16):
                nr, ni = (HA, HA + 2) if sg & 1 else (HBb, HBb + 2)
                step(hr, hi, sg, nr, ni, T0, T0 + 2)
                hr, hi = nr, ni
            self.p(f"v_mov_b32 {v(EX)}, {v(hr)}\nv_mov_b32 {v(EX+1)}, {v(hi)}\nv_mov_b32 {v(EX+2)}, {v(hr+1)}\nv_mov_b32 {v(EX+3)}, {v(hi+1)}")
        d2 = self.wsp_dma(2) + self.wsp_dma(3)
        self.run(merge(merge(self.cap(pass1), zs[2:]), d2[:7]))
        p.lds(f"ds_write_b128 {v(AD+1)}, {v(EX,4)}")
        p.wait_lg_all(); p("s_barrier")
        for i in range(4): p.lds(f"ds_read_b128 {v(E8+4*i,4)}, {v(AD)} offset:{16*i}")
        te = p.lg - 1
        self.run(d2[7:11])
        p(f"s_cmp_eq_u32 s{WT}, 0\ns_cselect_b32 s{SA}, 32, 0")
        p(f"v_cmp_gt_u32 vcc, s{SA}, {v(VL)}\nv_mov_b32 {v(GR+1)}, s{ST_T}\nv_mov_b32 {v(GR+3)}, s{ST_T}\nv_cndmask_b32 {v(T0)}, {v(VOOB)}, {v(VL16)}, vcc")
        p(f"s_lshl_b32 s{SC}, s{SCOL}, 14\ns_lshl_b32 s{SA}, s{WP}, 9\ns_add_u32 s{SC}, s{SC}, s{SA}\ns_add_u32 s{SC}, s{SC}, {EG}")
        p(f"s_lshl_b32 s{SA}, s{SRB}, 10\ns_add_u32 s{SA}, s{SA}, s{SC}")
        p.wait(lg=te); p("s_barrier")
        self.run(merge(self.cap(lambda: [cfma(E8 + 2 * q, L16, E8 + 2 * (q - 1), E8 + 2 * q) for q in range(1, 8)]), d2[11:15]))
        p(f"v_mov_b32 {v(GR)}, {v(E8+14)}\nv_mov_b32 {v(GR+2)}, {v(E8+15)}")
        p.vmem(f"buffer_store_dwordx4 {v(GR,4)}, {v(T0)}, {srd(SWS)}, s{SA} offen sc1")
        self.run(d2[15:])
        self.stamp(2)
        p(f"v_cmp_gt_u32 vcc, 32, {v(VL)}")
        w1 = p.label("w1"); w2 = p.label("w2")
        p(f"s_cmp_eq_u32 s{WT}, 0\ns_cbranch_scc0 {w1}")
        p(f"v_cndmask_b32 {v(CQ)}, {v(E8+2)}, 0, vcc\nv_cndmask_b32 {v(CQ+1)}, {v(E8+3)}, 0, vcc")
        p(f"v_cndmask_b32 {v(CQ+2)}, {v(E8+4)}, {v(E8)}, vcc\nv_cndmask_b32 {v(CQ+3)}, {v(E8+5)}, {v(E8+1)}, vcc")
        p(f"s_branch {w2}")
        p.put(w1)
        for k in range(4): p(f"v_cndmask_b32 {v(CQ+k)}, {v(E8+10+k)}, {v(E8+6+k)}, vcc")
        p.put(w2)
        Z1P = 192
        EGR, EO, EXP, ET = 80, 144, 152, 160
        def eo():
            p = self.p
            p(f"v_lshrrev_b32 {v(ET)}, 5, {v(VL)}\nv_sub_u32 {v(ET)}, s{SRB}, {v(ET)}\nv_add_u32 {v(ET)}, -1, {v(ET)}")
            p(f"v_and_b32 {v(ET+1)}, 31, {v(VL)}\nv_lshlrev_b32 {v(ET+1)}, 4, {v(ET+1)}\nv_mov_b32 {v(ET+3)}, s{ST_T}")
            for q in range(8):
                p(f"v_add_u32 {v(ET+2)}, {-2*q}, {v(ET)}\nv_cmp_le_i32 vcc, 0, {v(ET+2)}\nv_lshl_add_u32 {v(ET+2)}, {v(ET+2)}, 10, {v(ET+1)}")
                p(f"v_cndmask_b32 {v(EO+q)}, {v(VOOB)}, {v(ET+2)}, vcc\nv_cndmask_b32 {v(EXP+q)}, 0, {v(ET+3)}, vcc")
        lgw = lambda: p.wait(lg=p.lg - 1)
        self.run(merge(self.cap(lambda: (eo(), self.g_early(184))), self.wsp_dma(4) + self.wsp_read(0) + self.wsp_read(1)))
        et = {}
        def eload(q):
            et['t'] = p.vmem(f"buffer_load_dwordx4 {v(EGR+4*q,4)}, {v(EO+q)}, {srd(SWS)}, s{SC} offen sc1")
        for q in range(8): eload(q)
        self.run([lgw] + self.wsp_dma(5))
        self.stamp(3)
        l = p.label("ep"); dl = p.label("ed")
        p.wait(vm=et['t'])
        p(f"s_mov_b32 s{SSPIN}, 0")
        p.put(l)
        p(f"v_mov_b32 {v(ET)}, 0")
        for q in range(8):
            p(f"v_xor_b32 {v(ET+1)}, {v(EXP+q)}, {v(EGR+4*q+1)}\nv_xor_b32 {v(ET+2)}, {v(EXP+q)}, {v(EGR+4*q+3)}\nv_or3_b32 {v(ET)}, {v(ET)}, {v(ET+1)}, {v(ET+2)}")
        p(f"v_cmp_ne_u32 vcc, 0, {v(ET)}\ns_cmp_eq_u64 vcc, 0\ns_cbranch_scc1 {dl}")
        for q in range(8): p(f"buffer_load_dwordx4 {v(EGR+4*q,4)}, {v(EO+q)}, {srd(SWS)}, s{SC} offen sc1")
        p("s_waitcnt vmcnt(0)")
        p(f"s_add_u32 s{SSPIN}, s{SSPIN}, 1\ns_cmp_lt_u32 s{SSPIN}, {SPIN}\ns_cbranch_scc1 {l}")
        p.put(dl)
        self.flag_prep(178)
        p(f"s_lshl_b32 s{SA}, s{SCOL}, 6\ns_lshl_b32 s{SB_}, s{SRB}, 2\ns_add_u32 s{SA}, s{SA}, s{SB_}\ns_add_u32 s{SA}, s{SA}, s{SWV}\ns_lshl_b32 s{SA}, s{SA}, 7\ns_add_u32 s{SA}, s{SA}, {Z1F}")
        self.flag(SA, 178)
        self.stamp(4)
        OP, OT, HO = 80, 144, 132
        MA, MB = SK + 2, SK + 4
        SH0, SH1 = SXB, SW1B
        def pass2a():
            p = self.p
            p(f"s_lshl_b32 s{SA}, s{SD}, 3\ns_add_u32 s{SA}, s{SA}, s{SCOL}\ns_lshl_b32 s{SA}, s{SA}, 14\ns_lshl_b32 s{SB_}, s{WP}, 12\ns_add_u32 s{SA}, s{SA}, s{SB_}")
            p(f"s_add_u32 s{SH0}, s{SA}, {HB}\ns_add_u32 s{SH1}, s{SH0}, 8192")
            p(f"v_lshrrev_b32 {v(T0)}, 5, {v(VL)}\nv_lshlrev_b32 {v(T0)}, 11, {v(T0)}\nv_and_b32 {v(T0+1)}, 31, {v(VL)}\nv_lshl_add_u32 {v(HO)}, {v(T0+1)}, 4, {v(T0)}")
            for k in range(1, 4): p(f"v_xor_b32 {v(HO+k)}, {64*k}, {v(HO)}")
            for q in range(8): p(f"v_mov_b32 {v(EGR+4*q+1)}, {v(EGR+4*q+2)}")
            S = EGR + 28
            for q in range(6, -1, -1): cfma(S, L256, S, EGR + 4 * q)
            p(f"v_mov_b32 {v(ET)}, {v(S)}\nv_mov_b32 {v(ET+1)}, {v(S+1)}\nv_permlane32_swap_b32 {v(S)}, {v(ET)}\nv_permlane32_swap_b32 {v(S+1)}, {v(ET+1)}")
            cfma(S, L128, ET, S)
            cfma(CQ, LQ0, S, CQ); cfma(CQ + 2, LQ1, S, CQ + 2)
            p(f"v_mov_b32 {v(HA)}, {v(CQ)}\nv_mov_b32 {v(HA+1)}, {v(CQ+2)}\nv_mov_b32 {v(HA+2)}, {v(CQ+1)}\nv_mov_b32 {v(HA+3)}, {v(CQ+3)}")
        def pass2(s0, s1):
            p = self.p
            Cc = v(CF, 2)
            for sg in range(s0, s1):
                hr, hi = (HA, HA + 2) if sg == 0 else (U(sg - 1, 0), U(sg - 1, 1))
                step(hr, hi, sg, U(sg, 0), U(sg, 1), T0, T0 + 2)
                hr, hi = U(sg, 0), U(sg, 1)
                oo = OT + 4 * (sg & 1) + 8 * ((sg >> 1) & 1)
                p(f"v_pk_mul_f32 {v(oo,2)}, {Cc}, {v(hr,2)} op_sel_hi:[0,1]")
                p(f"v_pk_mul_f32 {v(oo+2,2)}, {Cc}, {v(hi,2)} op_sel_hi:[0,1] neg_lo:[1,0] neg_hi:[1,0]")
                p(f"v_pk_fma_f32 {v(oo,2)}, {Cc}, {v(hi,2)}, {v(oo,2)} op_sel:[1,0,0] op_sel_hi:[1,1,1] neg_lo:[1,0,0] neg_hi:[1,0,0]")
                p(f"v_pk_fma_f32 {v(oo+2,2)}, {Cc}, {v(hr,2)}, {v(oo+2,2)} op_sel:[1,0,0] op_sel_hi:[1,1,1] neg_lo:[1,0,0] neg_hi:[1,0,0]")
                if sg & 1:
                    q, i = sg >> 3, (sg & 7) >> 1
                    for cp in range(2):
                        for e in range(2):
                            p(f"v_cvt_pk_bf16_f32 {v(OP+16*cp+8*e+4*q+i)}, {v(oo-4+2*cp+e)}, {v(oo+2*cp+e)}")
        def hst(cp, k):
            if o.get("x_nost"): return
            p.vmem(f"buffer_store_dwordx4 {v(OP+16*cp+4*k,4)}, {v(HO+k)}, {srd(SWS)}, s{SH0 if cp == 0 else SH1} offen offset:{512*k} sc1")
        self.run(merge(self.cap(pass2a), self.wsp_dma(6) + self.wsp_read(2) + [lgw]))
        self.run(merge(self.cap(lambda: pass2(0, 8)), self.wsp_dma(7) + self.wsp_read(3)))
        self.g_poll_issue()
        self.run(merge(merge(self.cap(lambda: pass2(8, 16)), [(lambda cp=cp, k=k: hst(cp, k)) for k in (0, 2) for cp in range(2)]), self.wsp_read(4) + self.wsp_read(5)))
        h2 = [(lambda cp=cp, k=k: hst(cp, k)) for k in (1, 3) for cp in range(2)]
        self.run(merge(self.wsp_read(6) + self.wsp_read(7), h2))
        p(f"s_lshl_b32 s{SLATE}, s{SE}, 7\ns_add_u32 s{SLATE}, s{SLATE}, {HF}")
        self.stamp(5)
        p(f"s_branch {self.LG}")

    CD, CR, HT, GY, WD, WT_ = 210, 214, 218, 240, 244, 228
    ZUP = [4, 6, 8, 10, 12, 14, 204, 206, 208, 248, 250, 252]
    YSL = [1, 1, 0, 1]
    YB = [96, 160, 96, 160]
    def wo_dma(self, parts):
        items = []
        for (i0, i1, base) in parts:
            for i in range(i0, i1):
                def cb(t, i=i): self.wo[i] = t
                k = i - i0
                items.append(((SREG, base + k * 1024) if k % 4 == 0 else None, (SXB, i * 8192) if k % 4 == 0 else None,
                              f"buffer_load_dwordx4 {v(self.WD+k%4)}, {srd(SWOUT)}, s{SDO} offen offset:{(k%4)*1024} lds", cb))
        return self.dseq(items)
    def c_setup(self):
        p = self.p
        self.plain_dma_addr(self.CD, 1024, 224)
        p(f"s_add_u32 s{SA}, s{SREG}, 4096")
        self.plain_read_addr(self.CR, SA, 224)
        p(f"s_add_u32 s{SA}, s{SREG}, {4096+8192}")
        self.unit_tr_addr(self.HT, SA, 224, False)
        p(f"s_lshl_b32 s{SCB}, s{SCOL}, 16\ns_lshl_b32 s{SA}, s{SWV}, 8\ns_add_u32 s{SCB}, s{SCB}, s{SA}")
        p(f"s_lshl_b32 s{SHB}, s{STB}, 17\ns_lshl_b32 s{SA}, s{SWV}, 15\ns_add_u32 s{SHB}, s{SHB}, s{SA}\ns_add_u32 s{SHB}, s{SHB}, {HB}")
        self.yt = {}
    def y_items(self, s):
        sl = self.YSL[s]; items = []
        def cb(t): self.yt[s] = t
        for hh in range(2):
            for i in range(4):
                items.append(((SREG, 4096 + sl * 20480 + hh * 4096), (SCB, (s >> 1) * 128 + hh * 32768),
                              f"buffer_load_dwordx4 {v(self.CD+i)}, {srd(SCIM if s & 1 else SCRE)}, s{SDO} offen offset:{i*1024} lds", cb))
        for hh in range(2):
            for i in range(4):
                items.append(((SREG, 4096 + sl * 20480 + 8192 + hh * 4096), (SHB, s * 8192 + hh * 4096),
                              f"buffer_load_dwordx4 {v(VL16)}, {srd(SWS)}, s{SDO} offen offset:{i*1024} sc1 lds", cb))
        return items
    def y_dma(self, s): return self.dseq(self.y_items(s))
    def y_read(self, s):
        p = self.p; sl = self.YSL[s]; ops = []
        self.yr = getattr(self, "yr", {})
        for ks in range(4):
            def f(ks=ks):
                p.wait(vm=self.yt[s], lg=p.lg - 10)
                b = self.YB[s] + 16 * ks
                for k in range(2):
                    p.lds(f"ds_read_b128 {ar(b+4*k,4)}, {v(self.CR+ks)} offset:{sl*20480+k*4096}")
                    for a in range(2):
                        self.yr[(s, ks)] = p.lds(f"ds_read_b64_tr_b16 {ar(b+8+4*k+2*a,2)}, {v(self.HT+a)} offset:{sl*20480+(ks>>1)*4096+k*2048+(ks&1)*256}")
            ops.append(f)
        return ops
    def phase_g(self):
        p = self.p; o = self.o
        p.c("==== phase B: G ====")
        p.put(self.LG)
        p.vm_done = -1; p.lg_done = -1
        ACC, FA, TR, T = 16, 112, self.GTR, 186
        Z1R, BI, PV, WD, PL, PL2, PL3, OGV = 190, 202, 203, self.WD, self.GPL, 222, 234, 241
        Q = SK + 9
        AOFF = 24576
        lgw = lambda: p.wait(lg=p.lg - 1)
        p(f"s_mov_b32 s{SCOL}, s{SJ}")
        def late_setup():
            p = self.p
            p(f"s_lshl_b32 s{SE}, s{STB}, 11\ns_add_u32 s{SE}, s{SE}, {HF}")
            p(f"s_lshl_b32 s{SA}, s{SZI}, 7\ns_add_u32 s{SA}, s{SA}, {Z1F}")
            self.poll_addr(PL3, [(SE, 16), (SA, 1)])
            p(f"s_lshr_b32 s{SA}, s{STB}, 1\ns_lshl_b32 s{SA}, s{SA}, 9\ns_add_u32 s{SA}, s{SA}, {ZF2}")
            p(f"v_bfe_u32 {v(T)}, {v(VL)}, 2, 3\nv_lshlrev_b32 {v(T)}, 13, {v(T)}\nv_and_b32 {v(T+1)}, 3, {v(VL)}\nv_lshl_add_u32 {v(T)}, {v(T+1)}, 7, {v(T)}\nv_add_u32 {v(T)}, s{SA}, {v(T)}")
            p(f"s_mov_b32 vcc_lo, 0\ns_mov_b32 vcc_hi, -1\nv_cndmask_b32 {v(PL3)}, {v(PL3)}, {v(T)}, vcc")
            self.flag_prep(220)
            p(f"v_lshrrev_b32 {v(T)}, 3, {v(VL)}\nv_lshlrev_b32 {v(T)}, 10, {v(T)}")
            p(f"v_bfe_u32 {v(T+1)}, {v(VL)}, 4, 1\nv_lshlrev_b32 {v(T+1)}, 2, {v(T+1)}\nv_and_b32 {v(T+2)}, 7, {v(VL)}\nv_xor_b32 {v(T+1)}, {v(T+1)}, {v(T+2)}")
            p(f"v_lshl_add_u32 {v(WD)}, {v(T+1)}, 4, {v(T)}")
            for i in range(1, 4): p(f"v_add_u32 {v(WD+i)}, {i*7168}, {v(WD)}")
            p(f"s_mul_i32 s{SXB}, s{SWV}, {176*1024}\ns_lshl_b32 s{SA}, s{SCOL}, 7\ns_add_u32 s{SXB}, s{SXB}, s{SA}")
            self.panel_tr_addr(self.WT_, SREG, 224, False)
        p(f"s_lshr_b32 s{Q}, s{SWV}, 1\ns_and_b32 s{SC}, s{SZI}, 63")
        p.atom(f"s_cmp_lt_u32 s{SCOL}, 7\ns_cselect_b32 s{SD}, 64, 32")
        p(f"s_lshl_b32 s{SF}, s{Q}, 5\ns_sub_u32 s{SD}, s{SD}, s{SF}")
        p(f"v_cmp_gt_u32 vcc, s{SD}, {v(VL)}\nv_and_b32 {v(T)}, 31, {v(VL)}\ns_lshl_b32 s{SA}, s{SC}, 5\nv_cndmask_b32 {v(PV)}, {v(VOOB)}, {v(VL16)}, vcc")
        p(f"v_add_lshl_u32 {v(T)}, {v(T)}, s{SA}, 1")
        p.vmem(f"global_load_ushort {v(BI)}, {v(T)}, {sp(PBSP)}")
        p(f"s_mul_i32 s{SD}, s{SZI}, 5632\ns_lshl_b32 s{SB_}, s{Q}, 10\ns_add_u32 s{SD}, s{SD}, s{SB_}\ns_add_u32 s{SD}, s{SD}, {Z1}\ns_add_u32 s{SE}, s{SD}, 4096")
        p(f"v_and_b32 {v(PL2)}, 31, {v(VL)}\nv_lshlrev_b32 {v(PL2)}, 2, {v(PL2)}")
        p.wait_lg_all()
        self.stamp(6)
        l = p.label("gp"); dn = p.label("gd")
        p("s_waitcnt vmcnt(9)")
        p(f"s_cmp_ge_u32 s2, 128\ns_cbranch_scc1 {l}\ns_waitcnt vmcnt({7 if o.get('zsched', 0) else 0})")
        p.put(l)
        p(f"v_cmp_ne_u32 vcc, s{ST_T}, {v(PL+1)}\ns_and_b32 vcc_hi, vcc_hi, 0xffff\ns_or_b32 s{SF}, vcc_lo, vcc_hi\ns_cbranch_scc0 {dn}")
        self.poll(PL, 48)
        p.put(dn)
        p("s_barrier")
        g0 = p.vm
        def late_flag():
            nf = p.label("nf")
            p(f"s_cmp_eq_u32 s{SLATE}, 0\ns_cbranch_scc1 {nf}")
            p(f"s_waitcnt vmcnt({p.vm - g0})")
            p(f"buffer_store_dword {v(220)}, {v(221)}, {srd(SWS)}, s{SLATE} offen sc1")
            p.put(nf)
        p.vm_done = -1
        self.stamp(7)
        def soff(B): return ((B & 3) >> 1) * 40960 + (B & 1) * 12288
        tick = {}
        def dma(B):
            items = []
            for i in range(6):
                def cb(t): tick[B] = t
                g = i // 4
                txt = f"buffer_load_dwordx4 {v(VL16 if i < 4 else TR + 1)}, {srd(SWS)}, s{SDO} offen offset:{(i%4)*1024} sc1 lds"
                items.append(((SGL, soff(B) + g * 4096) if i % 4 == 0 else None, (SGB, B * 12288 + g * 4096) if i % 4 == 0 else None, txt, cb))
            return self.dseq(items)
        z1t = {}
        def z1load():
            p.vmem(f"buffer_load_dwordx4 {v(Z1R,4)}, {v(VL16)}, {srd(SWS)}, s{SD} offen sc1")
            p.vmem(f"buffer_load_dwordx4 {v(Z1R+4,4)}, {v(VL16)}, {srd(SWS)}, s{SD} offen offset:2048 sc1")
            p(f"s_add_u32 s{SD}, s{SD}, 4096")
            z1t['t'] = p.vmem(f"buffer_load_dwordx4 {v(Z1R+8,4)}, {v(PV)}, {srd(SWS)}, s{SD} offen sc1")
        self.run(dma(0))
        self.run(merge(self.cap(lambda: (late_setup(), self.c_setup())), dma(1)))
        def gyl():
            p(f"s_lshl_b32 s{SA}, s{STB}, 8\ns_add_u32 s{SA}, s{SA}, {GATE}")
            p.vmem(f"buffer_load_dword {v(self.GY)}, {v(PL2)}, {srd(SWS)}, s{SA} offen sc1")
            p.vmem(f"buffer_load_dword {v(self.GY+2)}, {v(PL2)}, {srd(SWS)}, s{SA} offen offset:128 sc1")
            p(f"s_lshl_b32 s{SA}, s{SC}, 7\ns_add_u32 s{SA}, s{SA}, {GATE}")
            p.vmem(f"buffer_load_dword {v(OGV)}, {v(PL2)}, {srd(SWS)}, s{SA} offen sc1")
        def z1gelu():
            c1 = -2 * LOG2E * 0.7978845608028654
            self.VC0 = 188
            self.p(f"s_mov_b32 s{SK}, {f2u(c1*0.044715)}\nv_mov_b32 {v(188)}, {f2u(c1)}")
            for i in range(12): self.unpack(self.ZUP[i], Z1R + i)
            self.gelu_many(self.ZUP, [24, 26, 28, 30])
        lt = {}
        def issue(r):
            lt[r] = p.vmem(f"buffer_load_dword {v(r+1)}, {v(r)}, {srd(SWS)}, 0 offen sc1")
        def check(r, mask):
            l = p.label("lp"); d = p.label("ld")
            p.wait(vm=lt[r])
            p(f"s_mov_b32 s{SSPIN}, 0")
            p.put(l)
            p(f"v_cmp_ne_u32 vcc, s{ST_T}, {v(r+1)}\ns_and_b32 s{SF}, vcc_lo, {mask}\ns_or_b32 s{SF}, s{SF}, vcc_hi\ns_cbranch_scc0 {d}")
            p(f"buffer_load_dword {v(r+1)}, {v(r)}, {srd(SWS)}, 0 offen sc1\ns_waitcnt vmcnt(0)")
            p(f"s_add_u32 s{SSPIN}, s{SSPIN}, 1\ns_cmp_lt_u32 s{SSPIN}, {SPIN}\ns_cbranch_scc1 {l}")
            p.put(d)
        rt = {}
        def fset(hb): return FA + 24 * (2 if hb == 15 else hb & 1)
        FO = [(0, 0), (0, 1), (0, 2), (1, 0), (1, 1), (1, 2)]; FP = {(0, 0): 0, (0, 1): 1, (1, 0): 2, (1, 1): 3, (0, 2): 4, (1, 2): 5}
        def reads(hb):
            B, e = hb >> 1, hb & 1; ops = []
            for (ks, mt) in FO:
                def ra(ks=ks, mt=mt):
                    rt[(hb, ks, mt)] = p.lds(f"ds_read_b128 {v(fset(hb)+12*ks+4*mt,4)}, {v(TR)} offset:{soff(B)+e*6144+FP[(ks,mt)]*1024}")
                ops.append(ra)
            return ops
        def mf(hb, ks, mt, nt):
            def m():
                p.wait(lg=rt[(hb, ks, 2 if hb < 14 else mt)])
                d = v(ACC + 16 * (2 * mt + nt), 16); kap = 2 * hb + ks
                p(f"{MF} {d}, {v(fset(hb)+12*ks+4*mt,4)}, {ar((kap*2+nt)*4,4)}, {'0' if kap == 0 else d}")
            return m
        self.wo = wo = {}
        def WOA(kap): return (kap - 8) * 8 if kap >= 8 else 24 + kap * 8
        def wo_rd(kap):
            def f():
                p.wait(vm=wo[2 * kap + 1], lg=p.lg - 12)
                for mt in range(2):
                    for a in range(2):
                        base = AOFF + (kap if kap < 8 else kap - 8) * 2048
                        p.lds(f"ds_read_b64_tr_b16 {ar(WOA(kap)+4*mt+2*a,2)}, {v(self.WT_+mt)} offset:{base+a*512}")
            return f
        p.wait(vm=tick[0]); p("s_barrier")
        self.run(reads(0))
        wa = self.wo_dma([(16, 22, AOFF)])
        def wb(i0, i1): return self.wo_dma([(i0, i1, AOFF + i0 * 1024)])
        y0 = self.y_dma(0)
        y1 = self.y_dma(1)
        yc0 = self.dseq(self.y_items(0)[:8]); yc0b = self.dseq(self.y_items(0)[:4]);
        def ypart(s_, a, b): return self.dseq(self.y_items(s_)[a:b])
        extra = {0: dma(2), 1: dma(3), 2: wa, 4: [wo_rd(8), wo_rd(9), wo_rd(10), lgw] + wb(0, 3), 5: wb(3, 4), 6: wb(4, 9) + [gyl], 7: wb(9, 10), 8: wb(10, 16) + [lambda: issue(PL3)],
                 10: [wo_rd(k) for k in range(8)] + [lgw] + ypart(0, 0, 2), 11: ypart(0, 2, 8) + [z1load], 12: ypart(0, 8, 13), 13: ypart(0, 13, 16)}
        gel = {}
        for hb in range(14):
            if o.get("gstamps") and hb % 2 == 0: self.stamp(21 + hb // 2)
            B = hb >> 1
            if hb & 1:
                p.wait(vm=tick[B + 1], lg=p.lg - 1); p("s_barrier")
            if hb == 11: check(PL3, 0x1ffff)
            mm = [mf(hb, ks, mt, nt) for ks in range(2) for mt in range(3) for nt in range(2)]
            rd = reads(hb + 1) + (reads(15) if hb == 13 else [])
            seq = merge(mm, rd, 0, 8 if hb == 13 else 6)
            f = list(extra.get(hb, []))
            if hb & 1 and B + 4 < 8: f = f + dma(B + 4)
            if f: seq = merge(seq, f, len(seq) // 4)
            if hb in gel: seq = merge(seq, gel[hb])
            if hb == o.get("hflag", 3): seq = seq + [late_flag]
            self.run(seq)
        VW, VRD = T, T + 1
        p(f"s_xor_b32 s{SA}, s{SWV}, 2\ns_mul_i32 s{SA}, s{SA}, 40960\nv_add_u32 {v(VW)}, s{SREG}, {v(VL16)}\nv_add_u32 {v(VRD)}, s{SA}, {v(VL16)}")
        def roff(i): return i * 1024
        def rw(ti):
            return [(lambda hq=hq: p.lds(f"ds_write_b128 {v(VW)}, {v(ACC+16*ti+8+4*hq,4)} offset:{roff(2*ti+hq)}")) for hq in range(2)]
        tiles = [1, 3, 5, 0, 2, 4]
        for n_, ti in enumerate(tiles):
            mm = [mf(hb, ks, ti >> 1, ti & 1) for hb in (14, 15) for ks in range(2)]
            f = (rw(tiles[n_ - 2]) if n_ >= 2 else [])
            self.run(merge(mm, f))
        self.stamp(8)
        yl = o.get('y0late', 0)
        self.run(merge([] if yl else self.y_read(0), rw(tiles[4]) + rw(tiles[5])) if not yl else rw(tiles[4]) + rw(tiles[5]))
        p.wait_lg_all(); p("s_barrier")
        RB = 112
        tk = {}
        for n_, ti in enumerate(tiles):
            for hq in range(2): tk[(ti, hq)] = p.lds(f"ds_read_b128 {v(RB+8*ti+4*hq,4)}, {v(VRD)} offset:{roff(2*ti+hq)}")
        if not yl: self.run(y1[:3])
        def radd(ti):
            for hq in range(2):
                p.wait(lg=tk[(ti, hq)])
                for hh in range(2): p(f"v_pk_add_f32 {v(ACC+16*ti+4*hq+2*hh,2)}, {v(ACC+16*ti+4*hq+2*hh,2)}, {v(RB+8*ti+4*hq+2*hh,2)}")
        XS = [40, 44, 56, 60]; XR = [72, 76, 88, 92]
        p(f"s_lshl_b32 s{SA}, s2, 2\ns_add_u32 s{SA}, s{SA}, s{SWV}\ns_lshl_b32 s{SA}, s{SA}, 12\ns_add_u32 s{SA}, s{SA}, {XB}\ns_xor_b32 s{SE}, s{SA}, 16384")
        for g in range(4): p(f"v_mov_b32 {v(XS[g]+3)}, s{ST_T}")
        for ti in (1, 3, 5): radd(ti)
        for i in range(12):
            src = ACC + 16 * (2 * (i >> 2) + 1) + 2 * (i & 3)
            p(f"v_cvt_pk_bf16_f32 {v(XS[i//3]+i%3)}, {v(src)}, {v(src+1)}")
            if i % 3 == 2: p.vmem(f"buffer_store_dwordx4 {v(XS[i//3],4)}, {v(VL16)}, {srd(SWS)}, s{SA} offen offset:{(i//3)*1024} sc1")
        if yl: self.run(self.y_read(0))
        for ti in (0, 2, 4): radd(ti)
        if yl: self.run([lgw] + y1[:3])
        p("s_barrier")
        self.stamp(9)

        p.c("==== phase C ====")
        YA, PA = 112, 16
        XE, GE, DE, OV, P10, PLP, TC = 186, 194, 198, 184, 185, 222, 224
        RW, RX, WA, RA = 176, 177, 180, 230
        SROW, SXO, SPB_ = SXL, SWL, SW1B
        ep = {}
        def setup():
            p = self.p; T = TC
            p(f"v_lshrrev_b32 {v(T)}, 4, {v(VL)}\nv_and_b32 {v(T+1)}, 15, {v(VL)}")
            p(f"v_lshlrev_b32 {v(T+2)}, 10, {v(T)}\nv_lshl_add_u32 {v(T+2)}, {v(T+1)}, 3, {v(T+2)}")
            p(f"v_lshlrev_b32 {v(T+3)}, 2, {v(T)}\nv_lshlrev_b32 {v(T+4)}, 3, {v(T+1)}")
            p(f"v_lshlrev_b32 {v(OV)}, 1, {v(T+2)}")
            p(f"s_lshl_b32 s{SROW}, s{STB}, 6\ns_lshl_b32 s{SA}, s{SWV}, 4\ns_add_u32 s{SROW}, s{SROW}, s{SA}")
            p(f"s_lshl_b32 s{SXO}, s{SROW}, 10\ns_lshl_b32 s{SA}, s{SCOL}, 7\ns_add_u32 s{SXO}, s{SXO}, s{SA}\nv_add_u32 {v(T+4)}, s{SA}, {v(T+4)}")
            p(f"s_lshl_b32 s{SA}, s{STB}, 12\ns_lshl_b32 s{SB_}, s{SWV}, 10\ns_add_u32 s{SB_}, s{SB_}, s{SA}\ns_add_u32 s{SB_}, s{SB_}, {PF}")
            self.poll_addr(PLP, [(SB_, 8)])
            p.atom(f"s_cmp_eq_u32 s{SWV}, 3\ns_cselect_b64 vcc, -1, 0")
            p(f"v_cndmask_b32 {v(P10)}, {v(VL16)}, {v(VOOB)}, vcc")
            p(f"s_mul_i32 s{SPB_}, s{STB}, {2*45056}\ns_mul_i32 s{SA}, s{SWV}, {22*512}\ns_add_u32 s{SPB_}, s{SPB_}, s{SA}\ns_add_u32 s{SPB_}, s{SPB_}, {PB}")
            p(f"s_add_u32 s{SA}, s{SREG}, 4096\nv_and_b32 {v(RW)}, 31, {v(VL)}\nv_lshlrev_b32 {v(RW)}, 8, {v(RW)}\nv_add_u32 {v(RW)}, s{SA}, {v(RW)}")
            p(f"v_lshrrev_b32 {v(RX)}, 5, {v(VL)}\nv_and_b32 {v(RX+1)}, 7, {v(VL)}\nv_xor_b32 {v(RX)}, {v(RX)}, {v(RX+1)}\nv_lshlrev_b32 {v(RX)}, 4, {v(RX)}")
            for i in range(4): p(f"v_xor_b32 {v(WA+i)}, {32*i}, {v(RX)}\nv_add_u32 {v(WA+i)}, {v(WA+i)}, {v(RW)}")
            p(f"v_xor_b32 {v(T+1)}, {v(T+1)}, {v(T)}\nv_lshlrev_b32 {v(T+1)}, 4, {v(T+1)}")
            p(f"v_lshlrev_b32 {v(T)}, 8, {v(T)}\ns_lshl_b32 s{SA}, s{SWV}, 12\ns_add_u32 s{SA}, s{SA}, 4096\nv_add_u32 {v(T)}, s{SA}, {v(T)}")
            p(f"v_add_u32 {v(RA)}, {v(T)}, {v(T+1)}\nv_xor_b32 {v(T+1)}, 64, {v(T+1)}\nv_add_u32 {v(RA+1)}, {v(T)}, {v(T+1)}")
            p(f"v_add_u32 {v(RA+2)}, 81920, {v(RA)}\nv_add_u32 {v(RA+3)}, 81920, {v(RA+1)}")
            p(f"s_lshr_b32 s{SLATE}, s{SC}, 1\ns_lshl_b32 s{SLATE}, s{SLATE}, 3\ns_add_u32 s{SLATE}, s{SLATE}, s{SCOL}\ns_lshl_b32 s{SLATE}, s{SLATE}, 1\ns_add_u32 s{SLATE}, s{SLATE}, s{SKH}")
            p(f"s_lshl_b32 s{SLATE}, s{SLATE}, 1\ns_add_u32 s{SLATE}, s{SLATE}, s{Q}\ns_lshl_b32 s{SLATE}, s{SLATE}, 7\ns_add_u32 s{SLATE}, s{SLATE}, {PF}")
            p(f"s_mul_i32 s{SD}, s{SC}, 45056\ns_mul_i32 s{SB_}, s{SCOL}, 5632\ns_add_u32 s{SD}, s{SD}, s{SB_}\ns_lshl_b32 s{SB_}, s{Q}, 10\ns_add_u32 s{SD}, s{SD}, s{SB_}\ns_add_u32 s{SD}, s{SD}, {PB}")
            p(f"v_lshlrev_b32 {v(BI)}, 16, {v(BI)}\nv_sub_f32 {v(178)}, 1.0, {v(OGV)}\nv_mul_f32 {v(179)}, {v(178)}, {v(BI)}")
        def eloads():
            T = TC
            for gi in range(4):
                p(f"s_add_u32 s{SA}, s{SXO}, {gi*4096}")
                p.vmem(f"buffer_load_dwordx2 {v(XE+2*gi,2)}, {v(T+2)}, {srd(SX)}, s{SA} offen")
            p(f"s_lshl_b32 s{SA}, s{SROW}, 2\ns_add_u32 s{SA}, s{SA}, {GATE}")
            for gi in range(4): p.vmem(f"buffer_load_dword {v(GE+gi)}, {v(T+3)}, {srd(SWS)}, s{SA} offen offset:{gi*16} sc1")
            ep['t'] = p.vmem(f"global_load_dwordx2 {v(DE,2)}, {v(T+4)}, {sp(PDSK)}")
        T4 = [(0, 0), (1, 0), (1, 1), (0, 1)]
        def ym(s):
            ops = []
            for ks in range(4):
                for (mt, nt) in T4:
                    def m(ks=ks, mt=mt, nt=nt):
                        p.wait(lg=self.yr[(s, ks)])
                        d = v(YA + 16 * (2 * mt + nt), 16); b = self.YB[s] + 16 * ks
                        p(f"{MF} {d}, {ar(b+4*mt,4)}, {ar(b+8+4*nt,4)}, {'0' if (s, ks) == (0, 0) else d}")
                    ops.append(m)
            return ops
        pt = {}
        def ploads():
            ops = []
            for nt in range(2):
                for kap in range(11):
                    def f(kap=kap, nt=nt):
                        if kap % 4 == 0: p(f"s_add_u32 s{SB_}, s{SPB_}, {nt*45056+kap*1024}")
                        pt[(kap, nt)] = p.vmem(f"buffer_load_dwordx4 {v(PA+(kap*2+nt)*4,4)}, {v(P10 if kap == 10 else VL16)}, {srd(SWS)}, s{SB_} offen offset:{(kap%4)*1024} sc1")
                    ops.append(f)
            return ops
        xt = {}
        def xload():
            for g in range(4): xt['t'] = p.vmem(f"buffer_load_dwordx4 {v(XR[g],4)}, {v(VL16)}, {srd(SWS)}, s{SE} offen offset:{g*1024} sc1")
        def xcheck():
            l = p.label("xp"); d = p.label("xd")
            p.wait(vm=xt['t'])
            p(f"s_mov_b32 s{SSPIN}, 0")
            p.put(l)
            p(f"v_xor_b32 {v(32)}, s{ST_T}, {v(XR[0]+3)}\nv_xor_b32 {v(33)}, s{ST_T}, {v(XR[1]+3)}\nv_xor_b32 {v(34)}, s{ST_T}, {v(XR[2]+3)}\nv_xor_b32 {v(35)}, s{ST_T}, {v(XR[3]+3)}")
            p(f"v_or3_b32 {v(32)}, {v(32)}, {v(33)}, {v(34)}\nv_or_b32 {v(32)}, {v(32)}, {v(35)}")
            p(f"v_cmp_ne_u32 vcc, 0, {v(32)}\ns_cmp_eq_u64 vcc, 0\ns_cbranch_scc1 {d}")
            for g in range(4): p(f"buffer_load_dwordx4 {v(XR[g],4)}, {v(VL16)}, {srd(SWS)}, s{SE} offen offset:{g*1024} sc1")
            p("s_waitcnt vmcnt(0)")
            p(f"s_add_u32 s{SSPIN}, s{SSPIN}, 1\ns_cmp_lt_u32 s{SSPIN}, {SPIN}\ns_cbranch_scc1 {l}")
            p.put(d)
        PK = [24, 28, 104]
        def pepi(mt):
            p = self.p
            for i in range(4 * mt, 4 * mt + 4): self.unpack(32 + 2 * (i & 3), XR[i // 3] + i % 3)
            for i in range(4):
                a = ACC + 32 * mt + 2 * i
                p(f"v_pk_add_f32 {v(a,2)}, {v(a,2)}, {v(32+2*i,2)}")
            for i in range(4):
                a = ACC + 32 * mt + 2 * i
                p(f"v_pk_fma_f32 {v(a,2)}, {v(a,2)}, {v(178,2)}, {v(178,2)} op_sel:[0,0,1] op_sel_hi:[1,0,1]")
            for i in range(4):
                a = ACC + 32 * mt + 2 * i
                p(f"v_pk_mul_f32 {v(a,2)}, {v(a,2)}, {v(self.ZUP[4*mt+i],2)}")
            for i in range(4):
                a = ACC + 32 * mt + 2 * i
                p(f"v_cvt_pk_bf16_f32 {v(PK[mt]+i)}, {v(a)}, {v(a+1)}")
        def pflag():
            p.wait(vm=ep['p']); self.flag(SLATE, 220)
        su = self.cap(setup)
        y2, y3, pl_ = self.y_dma(2), self.y_dma(3), ploads()
        sent = 1
        zg = [lambda: p.wait(vm=z1t['t'])] + self.cap(z1gelu)
        c1_ = o.get("c1", 9); c2_ = o.get("c2", 16)
        nx = y1[3:] + y2
        self.run(merge(zg, nx[:c1_]))
        xload()
        self.run(merge(merge(ym(0), su), nx[c1_:c2_]))
        xcheck()
        self.stamp(10)
        pepi(0); p.vmem(f"buffer_store_dwordx4 {v(PK[0],4)}, {v(VL16)}, {srd(SWS)}, s{SD} offen sc1")
        pepi(1); p.vmem(f"buffer_store_dwordx4 {v(PK[1],4)}, {v(VL16)}, {srd(SWS)}, s{SD} offen offset:2048 sc1")
        p(f"s_add_u32 s{SD}, s{SD}, 4096")
        pepi(2); ep['p'] = p.vmem(f"buffer_store_dwordx4 {v(PK[2],4)}, {v(PV)}, {srd(SWS)}, s{SD} offen sc1")
        c3_ = max(c2_, 18)
        self.run(nx[c2_:c3_])
        self.run(merge(self.y_read(1), nx[c3_:c3_ + 4]))
        y3a = o.get('y3a', 3)
        self.run(merge(ym(1), nx[c3_ + 4:] + [lgw] + y3[:y3a]))
        self.stamp(11)
        self.run(y3[y3a:9])
        self.run(merge(self.y_read(2), y3[9:13]))
        self.run(merge(ym(2), y3[13:] + [eloads]))
        self.stamp(12)
        pa_ = o.get("pa", 4)
        self.run(merge(self.y_read(3), pl_[:pa_]))
        self.run(merge(ym(3), pl_[pa_:pa_ + 8]))
        prest = pl_[pa_ + 8:]
        self.stamp(13)
        def pcheck(nt):
            l = p.label("sp"); d = p.label("sd")
            p.wait(vm=pt[(10, nt)])
            p(f"s_mov_b32 s{SSPIN}, 0")
            p.put(l)
            r = [PA + (kap * 2 + nt) * 4 for kap in range(11)]
            p(f"v_max3_u32 {v(178)}, {v(r[0])}, {v(r[1])}, {v(r[2])}")
            for k in range(3, 11, 2): p(f"v_max3_u32 {v(178)}, {v(178)}, {v(r[k])}, {v(r[k+1])}")
            p(f"v_cmp_eq_u32 vcc, -1, {v(178)}\ns_cmp_eq_u64 vcc, 0\ns_cbranch_scc1 {d}")
            for kap in range(11):
                if kap % 4 == 0: p(f"s_add_u32 s{SF}, s{SPB_}, {nt*45056+kap*1024}")
                p(f"buffer_load_dwordx4 {v(PA+(kap*2+nt)*4,4)}, {v(P10 if kap == 10 else VL16)}, {srd(SWS)}, s{SF} offen offset:{(kap%4)*1024} sc1")
            p("s_waitcnt vmcnt(0)")
            p(f"s_add_u32 s{SSPIN}, s{SSPIN}, 1\ns_cmp_lt_u32 s{SSPIN}, {SPIN}\ns_cbranch_scc1 {l}")
            p.put(d)
        def redw(tiles):
            return [(lambda mt=mt, nt=nt, i=i: p.lds(f"ds_write_b128 {v(WA+i)}, {v(YA+16*(2*mt+nt)+4*i,4)} offset:{nt*8192+mt*128}"))
                    for (mt, nt) in tiles for i in range(4)]
        def bm(kap, mt, nt):
            def m():
                p.wait(vm=pt[(kap, nt)])
                d = v(YA + 16 * (2 * mt + nt), 16)
                p(f"{MF} {d}, {ar(WOA(kap)+4*mt,4)}, {v(PA+(kap*2+nt)*4,4)}, {d}")
            return m
        def yscale(mt, nt):
            return [(lambda i=i: p(f"v_pk_mul_f32 {v(YA+16*(2*mt+nt)+2*i,2)}, {v(YA+16*(2*mt+nt)+2*i,2)}, {v(self.GY+2*nt,2)} op_sel_hi:[1,0]")) for i in range(8)]
        DU = 104; XP = [4, 8, 12, 108]
        def xpart():
            p = self.p
            self.unpack(DU, DE); self.unpack(DU + 2, DE + 1)
            for gi in range(4):
                x = XP[gi]
                self.unpack(x, XE + 2 * gi); self.unpack(x + 2, XE + 2 * gi + 1)
                for k in range(4): p(f"v_mul_f32 {v(x+k)}, {v(x+k)}, {v(DU+k)}")
                for k in range(4): p(f"v_mul_f32 {v(x+k)}, {v(x+k)}, {v(GE+gi)}")
        def yscale1(mt, nt):
            return [(lambda i=i: p(f"v_mul_f32 {v(YA+16*(2*mt+nt)+i)}, {v(YA+16*(2*mt+nt)+i)}, {v(self.GY+2*nt)}")) for i in range(16)]
        self.run(merge(yscale(0, 0) + yscale(1, 0), prest[:2]))
        pcheck(0)
        mm0 = [bm(kap, mt, 0) for kap in range(11) for mt in range(2)]
        self.run(merge(merge(mm0, prest[2:], 0, 12), yscale1(1, 1) + yscale1(0, 1) + [lambda: p.wait(vm=ep['t'])] + self.cap(xpart)))
        if sent: pcheck(1)
        mm1 = [bm(kap, 0, 1) for kap in range(11)]
        mm2 = [bm(kap, 1, 1) for kap in range(11)]
        self.run(merge(mm1, redw([(0, 0), (1, 0)]), 2))
        self.run(merge(mm2, redw([(0, 1)]), 4))
        self.run(redw([(1, 1)]))
        p.wait_lg_all(); p("s_barrier")
        self.stamp(14)
        tk = {}
        def R(gi, s): return 16 + 16 * gi + 4 * s
        for gi in range(4):
            p.wait(lg=p.lg - 12)
            for s_ in range(4):
                tk[gi] = p.lds(f"ds_read_b128 {v(R(gi,s_),4)}, {v(RA+2*(s_>>1)+(gi&1))} offset:{(s_&1)*40960+gi*1024}")
        p(f"s_lshl_b32 s{SXO}, s{SXO}, 1")
        for gi in range(4):
            y = R(gi, 0)
            p.wait(lg=tk[gi])
            for hh in (0, 2):
                p(f"v_pk_add_f32 {v(y+hh,2)}, {v(y+hh,2)}, {v(y+4+hh,2)}\nv_pk_add_f32 {v(y+8+hh,2)}, {v(y+8+hh,2)}, {v(y+12+hh,2)}")
            for hh in (0, 2): p(f"v_pk_add_f32 {v(y+hh,2)}, {v(y+hh,2)}, {v(XP[gi]+hh,2)}")
            for hh in (0, 2): p(f"v_pk_add_f32 {v(y+hh,2)}, {v(y+hh,2)}, {v(y+8+hh,2)}")
            p(f"s_add_u32 s{SA}, s{SXO}, {gi*8192}")
            p.vmem(f"buffer_store_dwordx4 {v(y,4)}, {v(OV)}, {srd(SOUT)}, s{SA} offen{' ' + o['outmod'] if 'outmod' in o else ''}")
        ne = p.label("ne")
        p(f"s_lshl_b32 s{SA}, s{STB}, 3\ns_add_u32 s{SA}, s{SA}, s{SCOL}\ns_lshl_b32 s{SA}, s{SA}, 2\ns_add_u32 s{SA}, s{SA}, s{SWV}")
        p(f"s_cmp_eq_u32 s{SA}, {255*4}\ns_cbranch_scc0 {ne}")
        p(f"s_mov_b32 s{SA}, {EPOCH}")
        self.flag(SA, 220)
        p.put(ne)
        if o.get("stamps"):
            self.stamp(15)
            p(f"s_lshl_b32 s{SA}, s2, 2\ns_add_u32 s{SA}, s{SA}, s{SWV}\ns_lshl_b32 s{SA}, s{SA}, 8\ns_add_u32 s{SA}, s{SA}, {DBG}")
            p(f"v_lshlrev_b32 v254, 2, {v(VL)}")
            p.vmem(f"buffer_store_dword v255, v254, {srd(SWS)}, s{SA} offen")
            if o.get("dbgmax"):
                ty = o["dbgmax"]
                nd = p.label("nd")
                if ty > 1: p(f"s_cmp_{'ge' if ty == 2 else 'lt'}_u32 s2, 128\ns_cbranch_scc1 {nd}")
                p(f"s_load_dwordx2 s[{SX}:{SX+1}], s[0:1], 128\ns_waitcnt lgkmcnt(0)\ns_mov_b32 s{SX+2}, 64")
                p(f"v_readlane_b32 s{SA}, v255, 17\nv_readlane_b32 s{SB_}, v255, 20\ns_not_b32 s{SA}, s{SA}\ns_nop 3\nv_writelane_b32 v255, s{SA}, 0\nv_writelane_b32 v255, s{SB_}, 6")
                p.vmem(f"buffer_atomic_umax v255, v254, {srd(SX)}, 0 offen")
                p.put(nd)
        if "spin_from" in o:
            self.stamp(15)
            sl = p.label("spin")
            p(f"v_readlane_b32 s{SA}, v254, 0")
            p.put(sl)
            p(f"s_memrealtime s[{SSTMP}:{SSTMP+1}]\ns_waitcnt lgkmcnt(0)\ns_sub_u32 s{SB_}, s{SSTMP}, s{SA}\ns_cmp_lt_u32 s{SB_}, 3000\ns_cbranch_scc1 {sl}")
        p.put(self.END)
        p("s_endpgm")

    def build(self):
        self.prologue()
        self.p.vm_done = -1; self.p.lg_done = -1
        self.phase_u()
        self.p.vm_done = -1; self.p.lg_done = -1
        self.p("s_nop 15")
        self.phase_z()
        self.phase_g()
        lines, added = hazard_pass([x for l in self.p.L for x in l.split(chr(10))])
        hdr = open("gated_mix__ssm_conv_s5__mixer_gmlp__prompt.s.ref").read().split("; Override")[0]
        s = hdr + "; @launch grid=(256,1,1) block=(256,1,1) lds=163840\n"
        s += '.amdgcn_target "amdgcn-amd-amdhsa--gfx950"\n.text\n'
        s += f".globl {NAME}\n.p2align 8\n.type {NAME},@function\n{NAME}:\n"
        s += "\n".join((l if l.endswith(":") else "    " + l) for l in lines) + "\n"
        s += f""".section .rodata,"a"
.p2align 6
.amdhsa_kernel {NAME}
  .amdhsa_next_free_vgpr 512
  .amdhsa_next_free_sgpr 102
  .amdhsa_accum_offset 256
  .amdhsa_group_segment_fixed_size 0
  .amdhsa_kernarg_size 144
  .amdhsa_user_sgpr_count 2
  .amdhsa_user_sgpr_kernarg_segment_ptr 1
  .amdhsa_system_sgpr_workgroup_id_x 1
  .amdhsa_float_denorm_mode_32 3
.end_amdhsa_kernel
"""
        return s, added

if __name__ == "__main__":
    out = sys.argv[1]
    opt = dict(c1=12, c2=22, y3a=8, touch=2, zs0=19, zs1=20, zs2=21, zmode=2, pf=2, tlb=2, map=1)
    for a in sys.argv[2:]:
        k, _, val = a.partition("=")
        try: opt[k] = int(val) if val else 1
        except ValueError: opt[k] = val
    s, added = G(opt).build()
    open(out, "w").write(s)
    print("wrote", out, "nops added", added, "lines", s.count("\n"))
```

```python
import sys, math, struct
from core import *

NAME = "gated_mix__ssm_conv_s5__mixer_gmlp__prompt_kernel"
EPOCH = 0; GATE = 0x4000
ST = 0x10000; EG = 0x50000; DBG = 0x80000
Z2N = 0x100000; Z1 = 0x400000; PB = 0x700000; HB = 0xA00000
ZF = 0xE00000; HF = 0xE10000; PF = 0xE20000; Z1F = 0xE40000; ZF2 = 0xE50000; XB = 0x1000000; WS_END = 0x1400000
OOB = 0x80000000
SPIN = 200000
SX, SW1, SWSP, SWS, SCRE, SCIM, SWOUT, SOUT = 4, 8, 12, 16, 20, 24, 28, 32
PLRE, PLIM, PLDT, PDSK, PBSP, PGW, PBRE, PBIM, PWIN = 36, 38, 40, 42, 44, 46, 48, 50, 52
ST_T = 100
SWV, SRB, SCOL, STB = 56, 57, 58, 59
SA, SB_, SC, SD = 60, 61, 62, 63
SSTMP = 64
SDO, SWB, SPB0, SPST, SPSP = 68, 69, 70, 71, 72
SXB, SW1B, SXL, SWL = 73, 74, 75, 76
SPC = 77
SCB, SHB = 78, 79
SK = 80
SREG = 96
SE, SF = 97, 98
SSPIN = 99
SLATE = 101
SJ = 3
SGB = 95
SPFP = 70
SPFE = 79
SKH = 81
SGL = 77
SZI = 72
SPB = 90
def srd(b): return f"s[{b}:{b+3}]"
def v(a, n=1): return f"v{a}" if n == 1 else f"v[{a}:{a+n-1}]"
def ar(a, n=1): return f"a{a}" if n == 1 else f"a[{a}:{a+n-1}]"
def sp(a): return f"s[{a}:{a+1}]"
VL, VL16, VOOB = 1, 2, 3
LOG2E = 1.4426950408889634
def f2u(x): return struct.unpack("<I", struct.pack("<f", x))[0]
MF = "v_mfma_f32_32x32x16_bf16"

class G:
    def __init__(self, opt):
        self.o = opt
        self.p = Prog()

    def stamp(self, k):
        if self.o.get("spin_from") == k:
            p = self.p
            p(f"s_memrealtime s[{SSTMP}:{SSTMP+1}]"); p.wait_lg_all()
            p(f"v_mov_b32 v254, s{SSTMP}")
        if self.o.get("stamps"):
            p = self.p
            p(f"s_memrealtime s[{SSTMP}:{SSTMP+1}]\ns_memtime s[{SSTMP+2}:{SSTMP+3}]"); p.wait_lg_all()
            p(f"v_writelane_b32 v255, s{SSTMP}, {k}\nv_writelane_b32 v255, s{SSTMP+2}, {k+32}")
    def cap(self, fn):
        sub = Prog(); save = self.p; self.p = sub
        fn()
        self.p = save
        assert sub.vm == 0 and sub.lg == 0
        return [(lambda l=l: self.p(l)) for l in sub.L]
    def run(self, ops):
        for op in ops: op()
    def dseq(self, items):
        p = self.p
        def setup(it):
            if it[0] is not None: p(f"s_add_u32 m0, s{it[0][0]}, {it[0][1]}")
            if it[1] is not None: p(f"s_add_u32 s{SDO}, s{it[1][0]}, {it[1][1]}")
        ops = [lambda: setup(items[0])]
        for i, it in enumerate(items):
            def f(i=i, it=it):
                t = p.vmem(it[2])
                if it[3]: it[3](t)
                if i + 1 < len(items) and items[i + 1][:2] != it[:2]: setup(items[i + 1])
            ops.append(f)
        return ops
    def poll_addr(self, vt, groups):
        p = self.p; n0 = 0
        p(f"v_mov_b32 {v(vt)}, {v(VOOB)}")
        for (sr, n) in groups:
            if n == 1: p(f"v_writelane_b32 {v(vt)}, s{sr}, {n0}")
            else:
                p(f"s_sub_u32 s{sr}, s{sr}, {n0*128}\nv_lshl_add_u32 {v(vt+1)}, {v(VL)}, 7, s{sr}")
                m = ((1 << n) - 1) << n0
                p(f"s_mov_b32 vcc_lo, {m & 0xffffffff}\ns_mov_b32 vcc_hi, {m >> 32}\nv_cndmask_b32 {v(vt)}, {v(vt)}, {v(vt+1)}, vcc")
            n0 += n
        return n0
    def poll(self, vt, n):
        p = self.p
        l = p.label("poll"); d = p.label("pd")
        p(f"s_mov_b32 s{SSPIN}, 0")
        p.put(l)
        p.vmem(f"buffer_load_dword {v(vt+1)}, {v(vt)}, {srd(SWS)}, 0 offen sc1")
        p.wait_vm_all()
        p(f"v_cmp_ne_u32 vcc, s{ST_T}, {v(vt+1)}")
        if n <= 32: p(f"s_and_b32 s{SF}, vcc_lo, {(1<<n)-1}")
        else: p(f"s_and_b32 vcc_hi, vcc_hi, {(1<<(n-32))-1}\ns_or_b32 s{SF}, vcc_lo, vcc_hi")
        p(f"s_cbranch_scc0 {d}")
        p(f"s_add_u32 s{SSPIN}, s{SSPIN}, 1\ns_cmp_lt_u32 s{SSPIN}, {SPIN}\ns_cbranch_scc1 {l}")
        p.put(d)
    def flag_prep(self, vt):
        p = self.p
        p(f"v_mov_b32 {v(vt)}, s{ST_T}\nv_mov_b32 {v(vt+1)}, {v(VOOB)}\nv_writelane_b32 {v(vt+1)}, 0, 0")
    def flag(self, off_sreg, vt):
        self.p.vmem(f"buffer_store_dword {v(vt)}, {v(vt+1)}, {srd(SWS)}, s{off_sreg} offen sc1")
    def xhalf_sum(self, a, t):
        self.p(f"v_mov_b32 {v(t)}, {v(a)}\nv_permlane32_swap_b32 {v(a)}, {v(t)}\nv_add_f32 {v(a)}, {v(a)}, {v(t)}")
    def rnd(self, d, s):
        self.p(f"v_cvt_pk_bf16_f32 {v(d)}, {v(s)}, {v(s)}\nv_lshlrev_b32 {v(d)}, 16, {v(d)}")
    def unpack(self, d, s):
        self.p(f"v_and_b32 {v(d+1)}, 0xffff0000, {v(s)}\nv_lshlrev_b32 {v(d)}, 16, {v(s)}")
    def plain_read_addr(self, dst4, base_sreg, t):
        p = self.p
        p(f"v_and_b32 {v(t)}, 31, {v(VL)}\nv_lshlrev_b32 {v(t)}, 7, {v(t)}")
        if base_sreg is not None: p(f"v_add_u32 {v(t)}, s{base_sreg}, {v(t)}")
        p(f"v_bfe_u32 {v(t+1)}, {v(VL)}, 1, 3\nv_lshrrev_b32 {v(dst4)}, 5, {v(VL)}\nv_xor_b32 {v(t+1)}, {v(t+1)}, {v(dst4)}")
        p(f"v_lshlrev_b32 {v(t+1)}, 4, {v(t+1)}")
        for ks in range(4):
            p(f"v_xor_b32 {v(dst4+ks)}, {32*ks}, {v(t+1)}\nv_add_u32 {v(dst4+ks)}, {v(dst4+ks)}, {v(t)}")
    def plain_dma_addr(self, dst4, rowbytes, t, rowstep=8):
        p = self.p
        p(f"v_lshrrev_b32 {v(t)}, 3, {v(VL)}\nv_mul_u32_u24 {v(t)}, {rowbytes}, {v(t)}")
        self.plain_dma_addr2(dst4, t, t + 1, rowstep * rowbytes)
    def plain_dma_addr2(self, dst4, vrow, t, step):
        p = self.p
        p(f"v_and_b32 {v(t)}, 7, {v(VL)}\nv_lshrrev_b32 {v(dst4)}, 4, {v(VL)}\nv_xor_b32 {v(t)}, {v(t)}, {v(dst4)}\nv_lshlrev_b32 {v(t)}, 4, {v(t)}")
        p(f"v_add_u32 {v(dst4)}, {v(t)}, {v(vrow)}")
        p(f"v_xor_b32 {v(t)}, 64, {v(t)}\nv_add_u32 {v(dst4+1)}, {v(t)}, {v(vrow)}")
        p(f"v_add_u32 {v(dst4+2)}, {2*(step-1024)}, {v(dst4)}\nv_add_u32 {v(dst4+3)}, {3*(step-1024)}, {v(dst4+1)}\nv_add_u32 {v(dst4+1)}, {step-1024}, {v(dst4+1)}")
    def panel_tr_addr(self, dst2, base_sreg, t, perm):
        p = self.p
        p(f"v_lshrrev_b32 {v(t)}, 5, {v(VL)}\nv_lshlrev_b32 {v(t)}, 10, {v(t)}")
        p(f"v_bfe_u32 {v(t+1)}, {v(VL)}, 2, 2\nv_lshl_add_u32 {v(t)}, {v(t+1)}, 7, {v(t)}")
        p(f"v_bfe_u32 {v(t+1)}, {v(VL)}, 4, 1\nv_lshl_add_u32 {v(t)}, {v(t+1)}, 5, {v(t)}")
        if perm:
            p(f"v_and_b32 {v(t+1)}, 1, {v(VL)}\nv_lshl_add_u32 {v(t)}, {v(t+1)}, 4, {v(t)}")
            p(f"v_bfe_u32 {v(t+1)}, {v(VL)}, 1, 1\nv_lshl_add_u32 {v(t)}, {v(t+1)}, 3, {v(t)}")
        else:
            p(f"v_and_b32 {v(t+1)}, 3, {v(VL)}\nv_lshl_add_u32 {v(t)}, {v(t+1)}, 3, {v(t)}")
        p(f"v_bfe_u32 {v(t+1)}, {v(VL)}, 3, 1\nv_lshlrev_b32 {v(t+1)}, 6, {v(t+1)}")
        if base_sreg is not None: p(f"v_add_u32 {v(t)}, s{base_sreg}, {v(t)}")
        p(f"v_add_u32 {v(dst2)}, {v(t)}, {v(t+1)}\nv_xor_b32 {v(t+1)}, 64, {v(t+1)}\nv_add_u32 {v(dst2+1)}, {v(t)}, {v(t+1)}")
    def unit_tr_addr(self, dst2, base_sreg, t, perm, flip_sreg=None):
        p = self.p
        p(f"v_bfe_u32 {v(t)}, {v(VL)}, 4, 1")
        if flip_sreg is not None: p(f"v_xor_b32 {v(t)}, s{flip_sreg}, {v(t)}")
        p(f"v_lshlrev_b32 {v(t)}, 1, {v(t)}")
        p(f"v_bfe_u32 {v(t+1)}, {v(VL)}, {0 if perm else 1}, 1\nv_or_b32 {v(t)}, {v(t)}, {v(t+1)}")
        p(f"v_lshrrev_b32 {v(t+1)}, 5, {v(VL)}\nv_lshlrev_b32 {v(t+1)}, 1, {v(t+1)}\nv_xor_b32 {v(t+1)}, {v(t+1)}, {v(t)}")
        p(f"v_lshlrev_b32 {v(t)}, 9, {v(t)}")
        p(f"v_bfe_u32 {v(t+2)}, {v(VL)}, 2, 2\nv_lshl_add_u32 {v(t)}, {v(t+2)}, 4, {v(t)}")
        p(f"v_bfe_u32 {v(t+2)}, {v(VL)}, {1 if perm else 0}, 1\nv_lshl_add_u32 {v(t)}, {v(t+2)}, 3, {v(t)}")
        if base_sreg is not None: p(f"v_add_u32 {v(t)}, s{base_sreg}, {v(t)}")
        p(f"v_lshl_add_u32 {v(dst2)}, {v(t+1)}, 6, {v(t)}")
        p(f"v_xor_b32 {v(t+1)}, 1, {v(t+1)}\nv_lshl_add_u32 {v(dst2+1)}, {v(t+1)}, 6, {v(t)}")

    def gemm_loop(self, nslot, reads, mfmas, dma, tick, rfront, npro, extra, valu=None):
        p = self.p
        p.wait(vm=tick[0]); p("s_barrier")
        self.stamp(20)
        self.run(reads(0))
        d = []
        for st in range(npro, nslot): d += dma(st)
        q = (len(d) + 2) // 3
        pend = [d[i * q:(i + 1) * q] for i in range(3)]
        for n in range(32):
            rd = []
            if n + 1 < 32:
                if (n + 1) % 4 == 0:
                    st = (n + 1) // 4
                    p.wait(vm=tick[st], lg=p.lg - 1); p("s_barrier")
                    if self.o.get("astamps"): self.stamp(20 + st)
                    d = dma(st - 1 + nslot) if st - 1 + nslot < 8 else extra.get(st, lambda: [])()
                    q = (len(d) + 3) // 4
                    pend = [d[i * q:(i + 1) * q] for i in range(4)]
                rd = reads(n + 1)
            seq = merge(mfmas(n), rd, 0, rfront)
            if pend: seq = merge(seq, pend.pop(0), len(seq) // 2)
            if valu and n in valu: seq = merge(seq, valu[n])
            self.run(seq)

    def gate(self, GX, GW, GU, GS, GT):
        p = self.p
        for i in range(4):
            for r in range(4):
                p(f"v_dot2_f32_bf16 {v(GS+r)}, {v(GX+4*r+i)}, {v(GW+i)}, {'0' if i == 0 else v(GS+r)}")
        p("s_nop 2")
        for mod in ["quad_perm:[1,0,3,2]", "quad_perm:[2,3,0,1]", "row_half_mirror", "row_mirror"]:
            for r in range(4): p(f"v_add_f32_dpp {v(GS+r)}, {v(GS+r)}, {v(GS+r)} {mod} row_mask:0xf bank_mask:0xf")
        for sw in ["v_permlane16_swap_b32", "v_permlane32_swap_b32"]:
            for r in range(4): p(f"v_mov_b32 {v(GT+r)}, {v(GS+r)}")
            for r in range(4): p(f"{sw} {v(GS+r)}, {v(GT+r)}")
            for r in range(4): p(f"v_add_f32 {v(GS+r)}, {v(GS+r)}, {v(GT+r)}")
        for r in range(4): p(f"v_mul_f32 {v(GS+r)}, {f2u(-LOG2E)}, {v(GS+r)}")
        for r in range(4): p(f"v_exp_f32 {v(GS+r)}, {v(GS+r)}")
        for r in range(4): p(f"v_add_f32 {v(GS+r)}, 1.0, {v(GS+r)}")
        for r in range(4): p(f"v_rcp_f32 {v(GS+r)}, {v(GS+r)}")
        p(f"v_mov_b32 {v(GT)}, {v(VOOB)}\nv_writelane_b32 {v(GT)}, 0, 0")

    def w_dma_addr(self, dst3, t, colbase):
        p = self.p
        for i in range(3):
            p(f"v_add_u32 {v(t)}, {64*i}, {v(VL)}\nv_mul_u32_u24 {v(t+1)}, 171, {v(t)}\nv_lshrrev_b32 {v(t+1)}, 11, {v(t+1)}")
            p(f"v_mul_u32_u24 {v(t+2)}, 12, {v(t+1)}\nv_sub_u32 {v(t)}, {v(t)}, {v(t+2)}\nv_cmp_eq_u32 vcc, 11, {v(t)}")
            p(f"v_mul_u32_u24 {v(t+1)}, 2752, {v(t+1)}\nv_lshl_add_u32 {v(t)}, {v(t)}, 4, {v(t+1)}")
            if colbase - 1024 * i: p(f"v_add_u32 {v(t)}, {colbase-1024*i}, {v(t)}")
            p(f"v_cndmask_b32 {v(dst3+i)}, {v(t)}, {v(VOOB)}, vcc")
    def w_tr_addr(self, dst, base, t):
        p = self.p
        p(f"v_lshrrev_b32 {v(t)}, 5, {v(VL)}\nv_bfe_u32 {v(t+1)}, {v(VL)}, 2, 2\nv_lshl_add_u32 {v(t)}, {v(t)}, 3, {v(t+1)}\nv_mul_u32_u24 {v(t)}, 192, {v(t)}")
        p(f"v_bfe_u32 {v(t+1)}, {v(VL)}, 4, 1\nv_lshl_add_u32 {v(t)}, {v(t+1)}, 5, {v(t)}")
        p(f"v_and_b32 {v(t+1)}, 1, {v(VL)}\nv_lshl_add_u32 {v(t)}, {v(t+1)}, 4, {v(t)}")
        p(f"v_bfe_u32 {v(t+1)}, {v(VL)}, 1, 1\nv_lshl_add_u32 {v(t)}, {v(t+1)}, 3, {v(t)}")
        p(f"v_add_u32 {v(dst)}, {base}, {v(t)}")
    def valid_masks(self):
        MA, MB = SK + 2, SK + 4
        self.p.atom(f"s_cmp_lt_u32 s{SCOL}, 7\ns_mov_b32 s{MA}, -1\ns_cselect_b32 s{MA+1}, -1, 0\ns_cselect_b32 s{MB}, -1, 0\ns_mov_b32 s{MB+1}, 0\n"
                    f"s_mov_b32 s{SK+6}, {f2u(1/72)}\ns_cselect_b32 s{SK+6}, {f2u(1/88)}, s{SK+6}")
        c1 = -2 * LOG2E * 0.7978845608028654
        self.p(f"s_mov_b32 s{SK}, {f2u(c1*0.044715)}\nv_mov_b32 {v(self.VC0)}, {f2u(c1)}")

    def gelu_pair(self, a, t, out_packed=None):
        p = self.p
        p(f"v_pk_mul_f32 {v(t,2)}, {v(a,2)}, {v(a,2)}")
        p(f"v_pk_fma_f32 {v(t,2)}, {v(t,2)}, {sp(SK)}, {v(self.VC0,2)} op_sel_hi:[1,0,0]")
        p(f"v_pk_mul_f32 {v(t,2)}, {v(t,2)}, {v(a,2)}")
        p(f"v_exp_f32 {v(t)}, {v(t)}\nv_exp_f32 {v(t+1)}, {v(t+1)}")
        p(f"v_pk_add_f32 {v(t,2)}, {v(t,2)}, 1.0 op_sel_hi:[1,0]")
        p(f"v_rcp_f32 {v(t)}, {v(t)}\nv_rcp_f32 {v(t+1)}, {v(t+1)}")
        if out_packed is not None:
            p(f"v_pk_mul_f32 {v(t,2)}, {v(t,2)}, {v(a,2)}")
            p(f"v_cvt_pk_bf16_f32 {v(out_packed)}, {v(t)}, {v(t+1)}")
        else:
            p(f"v_pk_mul_f32 {v(a,2)}, {v(t,2)}, {v(a,2)}")
    def gelu_many(self, pairs, temps, outs=None):
        p = self.p; ng = len(temps)
        for g0 in range(0, len(pairs), ng):
            streams = []
            for k, i in enumerate(range(g0, min(g0 + ng, len(pairs)))):
                sub = Prog(); save = self.p; self.p = sub
                self.gelu_pair(pairs[i], temps[k], None if outs is None else outs[i])
                self.p = save
                streams.append(sub.L)
            for j in range(len(streams[0])):
                for s in streams: p(s[j])

    VWD, VWR, VWA, VC0 = 240, 244, 248, 252
    def wsp_setup(self, t):
        p = self.p
        self.plain_dma_addr(self.VWD, 4096, t)
        p(f"s_lshl_b32 s{SA}, s{SKH}, 12")
        self.plain_read_addr(self.VWR, SA, t)
        p(f"s_lshr_b32 s{SWB}, s{STB}, 1\ns_lshl_b32 s{SWB}, s{SWB}, 19\ns_and_b32 s{SB_}, s{SWV}, 1\ns_lshl_b32 s{SB_}, s{SB_}, 18\ns_add_u32 s{SWB}, s{SWB}, s{SB_}")
        p(f"s_lshl_b32 s{SB_}, s{SKH}, 11\ns_add_u32 s{SWB}, s{SWB}, s{SB_}\ns_lshr_b32 s{SB_}, s{SWV}, 1\ns_lshl_b32 s{SB_}, s{SB_}, 10\ns_add_u32 s{SWB}, s{SWB}, s{SB_}")
        self.wsp_t = {}
    def piece(self, st): return (SPB + st % 5, 0)
    def wsp_dma(self, st):
        if self.o.get("x_nowsp") and st >= 2:
            self.wsp_t[st] = -1
            return [lambda: None] * 9
        items = []; sr, im = self.piece(st)
        for hh in range(2):
            for i in range(4):
                def cb(t): self.wsp_t[st] = t
                items.append(((sr, im + hh * 4096) if i == 0 else None, (SWB, st * 128 + hh * 131072) if i == 0 else None,
                              f"buffer_load_dwordx4 {v(self.VWD+i)}, {srd(SWSP)}, s{SDO} offen offset:{i*1024} {self.o.get('wmod', '')} lds", cb))
        return self.dseq(items)
    def wsp_read(self, st):
        if self.o.get("x_nord"): return [lambda: None]
        p = self.p; sr, im = self.piece(st)
        def pre():
            for ks in range(4): p(f"v_add_u32 {v(self.VWA+ks)}, s{sr}, {v(self.VWR+ks)}")
            p.wait(vm=self.wsp_t[st], lg=p.lg - 8)
        ops = [pre]
        for nt in range(2):
            for ks in range(4):
                def f(ks=ks, nt=nt):
                    p.lds(f"ds_read_b128 {ar(((st*4+ks)*2+nt)*4,4)}, {v(self.VWA+ks)} offset:{im}")
                    if nt == 0: p(f"v_xor_b32 {v(self.VWA+ks)}, 4096, {v(self.VWA+ks)}")
                ops.append(f)
        return ops

    ZXD = 104
    def prologue(self):
        p = self.p
        self.END = p.label("end"); self.LU = p.label("U"); self.LG = p.label("G"); self.LZ = p.label("Z")
        p(f"s_cmp_ge_u32 s2, 256\ns_cbranch_scc1 {self.END}")
        if self.o.get("sst"): p("s_memrealtime s[84:85]\ns_waitcnt lgkmcnt(0)")
        if self.o.get("cpf", 1):
            p(f"s_getpc_b64 {sp(SSTMP)}\nv_lshlrev_b32 v4, 7, v0\nglobal_load_dword v5, v4, {sp(SSTMP)}")
        p(f"s_load_dwordx2 {sp(SX)}, s[0:1], 0\ns_load_dwordx2 {sp(PWIN)}, s[0:1], 80\ns_load_dwordx4 s[{PBRE}:{PBRE+3}], s[0:1], 24")
        p(f"v_lshrrev_b32 v2, 6, v0\nv_and_b32 {v(VL)}, 63, v0\nv_readfirstlane_b32 s{SWV}, v2")
        p(f"s_and_b32 s{SA}, s2, 6\ns_lshl_b32 s{SA}, s{SA}, 1\ns_bfe_u32 s{SRB}, s2, 0x20005\ns_add_u32 s{SRB}, s{SRB}, s{SA}")
        p(f"s_mov_b32 s{SX+2}, 2097152\ns_mov_b32 s{SX+3}, 0x20000\ns_lshl_b32 s{SXB}, s{SRB}, 17")
        if self.o.get("pf", 2) == 5:
            p(f"s_lshl_b32 s{SA}, s2, 1\ns_add_u32 s{SA}, s{SA}, s{SWV}\ns_and_b32 s{SB_}, s2, 127\ns_cmp_eq_u32 s{SWV}, 3\ns_cselect_b32 s{SA}, s{SB_}, s{SA}\ns_lshl_b32 s{SA}, s{SA}, 12")
            p(f"s_mul_i32 s{SB_}, s2, 5504\ns_cmp_eq_u32 s{SWV}, 2\ns_cselect_b32 s{SA}, s{SB_}, s{SA}\ns_cselect_b32 s{SB_}, 42, 31\nv_min_u32 v6, s{SB_}, {v(VL)}\nv_lshl_add_u32 v6, v6, 7, s{SA}")
            p.wait_lg_all()
            p(f"s_cselect_b64 {sp(SPFP)}, {sp(PWIN)}, {sp(SX)}\ns_cmp_ge_u32 s2, 128\ns_cselect_b64 {sp(SC)}, {sp(PBIM)}, {sp(PBRE)}\ns_cmp_eq_u32 s{SWV}, 3\ns_cselect_b64 {sp(SPFP)}, {sp(SC)}, {sp(SPFP)}")
            p(f"global_load_dword v7, v6, {sp(SPFP)}")
        p(f"s_cmp_ge_u32 s2, 128\ns_cbranch_scc1 {self.LU}")
        self.plain_dma_addr(self.ZXD, 1024, 112)
        p(f"s_lshl_b32 s{SA}, s{SWV}, 15\ns_add_u32 s{SXB}, s{SXB}, s{SA}\ns_mul_i32 s{SREG}, s{SWV}, 40960\ns_mov_b32 m0, s{SREG}")
        p.wait_lg_all()
        for i in range(4): p.vmem(f"buffer_load_dwordx4 {v(self.ZXD+i)}, {srd(SX)}, s{SXB} offen offset:{i*1024} lds")
        p(f"s_branch {self.LZ}")
    def common2(self):
        p = self.p
        p(f"v_lshlrev_b32 {v(VL16)}, 4, {v(VL)}\nv_mov_b32 {v(VOOB)}, {OOB}")
        if self.o.get("stamps"):
            p("v_mov_b32 v255, 0")
            if self.o.get("sst"): p("v_writelane_b32 v255, s84, 17"); self.stamp(22)
            else: self.stamp(17)
        elif "spin_from" in self.o: self.stamp(17)
        p(f"s_and_b32 s{SKH}, s2, 1\ns_lshl_b32 s{SC}, s{SKH}, 2\ns_bfe_u32 s{SD}, s2, 0x20003\ns_add_u32 s{SCOL}, s{SC}, s{SD}\ns_mov_b32 s{SW1+3}, 0x20000")
    def common3(self):
        p = self.p
        p(f"s_load_dwordx2 {sp(SWS)}, s[0:1], 136\ns_load_dwordx2 {sp(PGW)}, s[0:1], 112\ns_load_dwordx4 s[{PLRE}:{PLRE+3}], s[0:1], 8\ns_load_dwordx2 {sp(PLDT)}, s[0:1], 56")
        for (r, off) in [(SWSP, 88), (SCRE, 40), (SCIM, 48), (SWOUT, 104), (SOUT, 120), (PDSK, 64), (PBSP, 96)]:
            p(f"s_load_dwordx2 {sp(r)}, s[0:1], {off}")
        for (r, n) in [(SWSP, 8388608), (SWS, WS_END), (SCRE, 524288), (SCIM, 524288), (SWOUT, 704512), (SOUT, 4194304)]:
            p(f"s_mov_b32 s{r+2}, {n}\ns_mov_b32 s{r+3}, 0x20000")
        p(f"s_and_b32 s{SC}, s2, 6\ns_lshl_b32 s{SC}, s{SC}, 1\ns_lshr_b32 s{STB}, s2, 6\ns_add_u32 s{STB}, s{STB}, s{SC}\ns_lshl_b32 s{STB}, s{STB}, 1\ns_add_u32 s{STB}, s{STB}, s{SKH}\ns_bfe_u32 s{SJ}, s2, 0x30003")
        if self.o.get("pf", 2) == 2:
            A_, C_, D_, E_ = SA, SC, SB_, SF
            p(f"s_lshl_b32 s{D_}, s{SWV}, 8\ns_add_u32 s{D_}, s{D_}, s2\ns_mov_b32 s{C_}, 0\ns_mov_b32 s{A_}, 0\ns_mov_b32 s{E_}, 2047")
            for (lo, off, last) in [(171, 24, 511), (214, 32, 511), (257, 80, 0)]:
                p.atom(f"s_cmp_ge_u32 s{D_}, {lo}\ns_cselect_b32 s{C_}, {off}, s{C_}\ns_cselect_b32 s{A_}, {lo}, s{A_}\ns_cselect_b32 s{E_}, {last}, s{E_}")
            p.atom(f"s_cmp_lt_u32 s{D_}, 365\ns_cselect_b32 s{SPFE}, 1, 0")
            p(f"s_sub_u32 s{D_}, s{D_}, s{A_}\ns_load_dwordx2 {sp(SPFP)}, s[0:1], s{C_}")
            p(f"v_mul_u32_u24 {v(6)}, 52, {v(VL)}\nv_lshrrev_b32 {v(6)}, 8, {v(6)}\nv_mul_u32_u24 {v(7)}, 5, {v(6)}\nv_sub_u32 {v(7)}, {v(VL)}, {v(7)}")
            p(f"s_mul_i32 s{A_}, s{D_}, 12\nv_add_u32 {v(6)}, s{A_}, {v(6)}\nv_min_u32 {v(6)}, s{E_}, {v(6)}\nv_lshlrev_b32 {v(6)}, 10, {v(6)}\nv_lshl_add_u32 {v(6)}, {v(7)}, 7, {v(6)}\nv_add_u32 {v(6)}, 384, {v(6)}")
            p(f"s_lshl_b32 s{D_}, s{D_}, 13\ns_add_u32 s{D_}, s{D_}, {192*2752}\nv_lshl_add_u32 {v(7)}, {v(VL)}, 7, s{D_}\nv_min_u32 {v(7)}, {512*2752-4}, {v(7)}")
            p.atom(f"s_cmp_eq_u32 s{E_}, 0\ns_cselect_b64 vcc, -1, 0")
            p(f"v_cndmask_b32 {v(6)}, {v(6)}, {v(7)}, vcc")
    def pf2(self):
        p = self.p
        p.wait_lg_all()
        if self.o.get("pf", 2) == 2:
            l = p.label("pf")
            p(f"s_cmp_eq_u32 s{SPFE}, 0\ns_cbranch_scc1 {l}\nglobal_load_dword {v(7)}, {v(6)}, {sp(SPFP)}")
            p.put(l)
        if self.o.get("cpf", 1):
            l = p.label("c2")
            here = p.label("pc")
            p(f"s_cmp_lg_u32 s{SWV}, 0\ns_cbranch_scc1 {l}\ns_getpc_b64 {sp(SSTMP)}")
            p.put(here)
            p(f"s_sub_u32 s{SSTMP}, s{SSTMP}, {here}-{NAME}\ns_subb_u32 s{SSTMP+1}, s{SSTMP+1}, 0")
            p(f"v_add_u32 v4, 32768, v4\nv_min_u32 v4, {self.END}-{NAME}, v4\nglobal_load_dword v5, v4, {sp(SSTMP)}")
            p.put(l)
        if self.o.get("tw", 0):
            ls = [p.label("tw") for _ in range(3)]
            p(f"v_lshlrev_b32 v8, 19, {v(VL)}\nv_mov_b32 v9, 0")
            p(f"s_cmp_eq_u32 s{SWV}, 1\ns_cbranch_scc1 {ls[0]}\ns_cmp_eq_u32 s{SWV}, 2\ns_cbranch_scc1 {ls[1]}\ns_cmp_eq_u32 s{SWV}, 3\ns_cbranch_scc0 {ls[2]}")
            p(f"buffer_load_dword v10, v8, {srd(SWS)}, 0 offen sc1\ns_branch {ls[2]}")
            p.put(ls[0]); p(f"buffer_load_dword v10, v8, {srd(SWSP)}, 0 offen\nbuffer_load_dword v11, v8, {srd(SOUT)}, 0 offen sc1\nglobal_load_ushort v12, v9, {sp(PBSP)}\nglobal_load_ushort v13, v9, {sp(PDSK)}\ns_branch {ls[2]}")
            p.put(ls[1]); p(f"buffer_load_dword v10, v8, {srd(SCRE)}, 0 offen\nbuffer_load_dword v11, v8, {srd(SCIM)}, 0 offen\nbuffer_load_dword v12, v8, {srd(SWOUT)}, 0 offen\nglobal_load_ushort v13, v9, {sp(PGW)}")
            p.put(ls[2])
        p(f"s_load_dword s{ST_T}, {sp(SWS)}, {EPOCH}")
    def code_prefetch(self, va, vd):
        if not self.o.get("cpf", 1): return
        p = self.p
        sk = p.label("cpf"); here = p.label("pc")
        nsl = self.o.get("cpfn", 6)
        p(f"s_lshr_b32 s{SA}, s2, 3\ns_and_b32 s{SA}, s{SA}, 15\ns_lshl_b32 s{SA}, s{SA}, 2\ns_add_u32 s{SA}, s{SA}, s{SWV}")
        p(f"s_cmp_ge_u32 s{SA}, {nsl}\ns_cbranch_scc1 {sk}")
        p(f"s_getpc_b64 s[{SSTMP}:{SSTMP+1}]")
        p.put(here)
        p(f"s_sub_u32 s{SSTMP}, s{SSTMP}, {here}-{NAME}\ns_subb_u32 s{SSTMP+1}, s{SSTMP+1}, 0")
        p(f"s_lshl_b32 s{SA}, s{SA}, 13\nv_lshl_add_u32 {v(va)}, {v(VL)}, 7, s{SA}\nv_min_u32 {v(va)}, {self.END}-{NAME}, {v(va)}")
        p(f"global_load_dword {v(vd)}, {v(va)}, s[{SSTMP}:{SSTMP+1}]")
        p.put(sk)
    def pf1(self, when=1):
        if self.o.get("pf", 2) == 4 and self.o.get("pfw", 5) == when:
            self.p.vmem(f"global_load_dword {v(7)}, {v(6)}, {sp(PWIN)}")
            self.p.vmem(f"global_load_dword {v(5)}, {v(4)}, {sp(SPFP)}")
        if {3: 1, 2: self.o.get("pfw2", 2)}.get(self.o.get("pf", 2), self.o.get("pf", 2)) == when:
            p = self.p; l = p.label("pf")
            p(f"s_cmp_eq_u32 s{SPFE}, 0\ns_cbranch_scc1 {l}\nglobal_load_dword {v(5)}, {v(4)}, {sp(SPFP)}")
            p.put(l)
        if self.o.get("wfirst") == when: self.touch_wsp(11, 12, 0, 1)
    def tlb_warm(self):
        p = self.p
        ls = [p.label("tw") for _ in range(4)]
        p(f"v_lshlrev_b32 {v(6)}, 19, {v(VL)}\nv_mov_b32 {v(7)}, 0")
        p(f"s_cmp_eq_u32 s{SWV}, 1\ns_cbranch_scc1 {ls[0]}\ns_cmp_eq_u32 s{SWV}, 2\ns_cbranch_scc1 {ls[1]}\ns_cmp_eq_u32 s{SWV}, 3\ns_cbranch_scc1 {ls[2]}")
        p(f"buffer_load_dword {v(8)}, {v(6)}, {srd(SWS)}, 0 offen sc1\nglobal_load_ushort {v(9)}, {v(7)}, {sp(PGW)}\ns_branch {ls[3]}")
        p.put(ls[0]); p(f"buffer_load_dword {v(8)}, {v(6)}, {srd(SWSP)}, 0 offen\nglobal_load_ushort {v(9)}, {v(7)}, {sp(PBSP)}\nglobal_load_ushort {v(10)}, {v(7)}, {sp(PDSK)}\ns_branch {ls[3]}")
        p.put(ls[1]); p(f"buffer_load_dword {v(8)}, {v(6)}, {srd(SOUT)}, 0 offen sc1\nbuffer_load_dword {v(9)}, {v(6)}, {srd(SWOUT)}, 0 offen\ns_branch {ls[3]}")
        p.put(ls[2]); p(f"buffer_load_dword {v(8)}, {v(6)}, {srd(SCRE)}, 0 offen\nbuffer_load_dword {v(9)}, {v(6)}, {srd(SCIM)}, 0 offen")
        p.put(ls[3])
    def late_args(self):
        p = self.p
        if self.o.get("tlb", 1):
            if self.o.get("tlb", 1) == 1: self.tlb_warm()
            self.pf1(5)
            p(f"s_load_dword s{ST_T}, {sp(SWS)}, {EPOCH}")
            return
        for (r, off) in [(SWSP, 88), (SCRE, 40), (SCIM, 48), (SWOUT, 104), (SOUT, 120), (PDSK, 64), (PBSP, 96)]:
            p(f"s_load_dwordx2 {sp(r)}, s[0:1], {off}")
        p(f"s_load_dword s{ST_T}, {sp(SWS)}, {EPOCH}")
        for (r, n) in [(SWSP, 8388608), (SWS, WS_END), (SCRE, 524288), (SCIM, 524288), (SWOUT, 704512), (SOUT, 4194304)]:
            p(f"s_mov_b32 s{r+2}, {n}\ns_mov_b32 s{r+3}, 0x20000")
    def epoch2(self):
        p = self.p
        p.wait_lg_all()
        p(f"s_mul_i32 s{ST_T}, s{ST_T}, 0x9E3779B1\ns_add_u32 s{ST_T}, s{ST_T}, 0x7F4A7C15")

    def touch_wsp(self, va, vd, k, n):
        p = self.p
        if k == 0:
            p(f"s_lshr_b32 s{SB_}, s2, 3\ns_lshl_b32 s{SB_}, s{SB_}, 2\ns_add_u32 s{SB_}, s{SB_}, s{SWV}\ns_lshl_b32 s{SB_}, s{SB_}, 13")
            p(f"s_and_b32 s{SA}, s2, 7\ns_lshl_b32 s{SA}, s{SA}, 20\ns_add_u32 s87, s{SA}, s{SB_}")
            p(f"v_cmp_gt_u32 vcc, {64//n}, {v(VL)}\nv_lshlrev_b32 {v(va)}, 7, {v(VL)}\ns_nop 0\nv_cndmask_b32 {v(va)}, {v(VOOB)}, {v(va)}, vcc")
        else: p(f"s_add_u32 s87, s87, {8192//n}")
        p.vmem(f"buffer_load_dword {v(vd)}, {v(va)}, {srd(SWSP)}, s87 offen {self.o.get('tmod', '')}")
    def ctouch(self, va, vd):
        p = self.p; l = p.label("ct")
        p(f"s_lshl_b32 s{SA}, s{SWV}, 8\ns_add_u32 s{SA}, s{SA}, s2\ns_cmp_ge_u32 s{SA}, 856\ns_cbranch_scc1 {l}")
        p(f"s_cmp_lt_u32 s{SA}, 256\ns_cselect_b64 {sp(SSTMP)}, {sp(SCRE)}, {sp(SCIM)}")
        p(f"s_sub_u32 s{SB_}, s{SA}, 512\ns_and_b32 s{SSPIN}, s{SA}, 255\ns_cmp_ge_u32 s{SA}, 512\ns_cselect_b64 {sp(SSTMP)}, {sp(SWOUT)}, {sp(SSTMP)}\ns_cselect_b32 s{SA}, s{SB_}, s{SSPIN}")
        p(f"s_lshl_b32 s{SA}, s{SA}, 11\nv_and_b32 {v(vd)}, 15, {v(VL)}\nv_lshlrev_b32 {v(vd)}, 7, {v(vd)}\nv_add_u32 {v(vd)}, s{SA}, {v(vd)}")
        p(f"global_load_dword {v(vd)}, {v(vd)}, {sp(SSTMP)}")
        p.put(l)
    def paced(self, valu, va, vd, t0, dt):
        if "ct" in self.o: valu.setdefault(self.o["ct"], []).append(lambda: self.ctouch(va, vd + 1 if vd != 205 else 4))
        n = self.o.get("tn", 4)
        if self.o.get("touch", 1) != 1: return
        for k in range(n):
            valu.setdefault(t0 + k * dt, []).append(lambda k=k: self.touch_wsp(va, vd, k, n))
    def touch_c(self, va, vd):
        p = self.p
        p(f"v_lshlrev_b32 {v(va)}, 7, {v(VL)}\ns_lshr_b32 s{SB_}, s2, 3\ns_lshl_b32 s{SB_}, s{SB_}, 2\ns_add_u32 s{SB_}, s{SB_}, s{SWV}\ns_lshl_b32 s{SA}, s{SB_}, 13")
        p.vmem(f"buffer_load_dword {v(vd)}, {v(va)}, {srd(SWOUT)}, s{SA} offen")
        p.vmem(f"buffer_load_dword {v(vd)}, {v(va)}, {srd(SCRE)}, s{SA} offen")
        p.vmem(f"buffer_load_dword {v(vd)}, {v(va)}, {srd(SCIM)}, s{SA} offen")
        p(f"s_add_u32 s{SA}, s{SA}, 524288")
        p.vmem(f"buffer_load_dword {v(vd)}, {v(va)}, {srd(SWOUT)}, s{SA} offen")
    GTR, GPL = 236, 238
    def g_early(self, t):
        p = self.p
        p(f"s_lshr_b32 s{SA}, s{SWV}, 1\ns_mul_i32 s{SGL}, s{SA}, 81920")
        p(f"v_bfe_u32 {v(t)}, {v(VL)}, 4, 1\nv_xor_b32 {v(t)}, s{SA}, {v(t)}\nv_lshlrev_b32 {v(t)}, 4, {v(t)}")
        p(f"v_bfe_u32 {v(t+1)}, {v(VL)}, 2, 1\nv_lshl_add_u32 {v(t)}, {v(t+1)}, 3, {v(t)}\nv_bfe_u32 {v(t+1)}, {v(VL)}, 3, 1\nv_lshl_add_u32 {v(t)}, {v(t+1)}, 2, {v(t)}")
        p(f"v_and_b32 {v(t+1)}, 35, {v(VL)}\nv_add_lshl_u32 {v(t)}, {v(t)}, {v(t+1)}, 4\nv_add_u32 {v(self.GTR)}, s{SGL}, {v(t)}")
        p.atom(f"s_cmp_lt_u32 s{SJ}, 7\ns_cselect_b32 s{SB_}, 24, 8")
        p(f"v_and_b32 {v(t)}, 31, {v(VL)}\nv_cmp_gt_u32 vcc, s{SB_}, {v(t)}\ns_nop 1\nv_cndmask_b32 {v(self.GTR+1)}, {v(VOOB)}, {v(VL16)}, vcc")
        p(f"s_lshl_b32 s{SB_}, s{SJ}, 2\ns_add_u32 s{SB_}, s{SB_}, s{SA}\ns_lshl_b32 s{SA}, s{SKH}, 1\ns_add_u32 s{SB_}, s{SB_}, s{SA}\ns_lshl_b32 s{SB_}, s{SB_}, 4")
        p(f"s_and_b32 s{SA}, s{SWV}, 1\ns_add_u32 s{SGB}, s{SB_}, s{SA}\ns_mul_i32 s{SGB}, s{SGB}, 6144\ns_add_u32 s{SGB}, s{SGB}, {Z2N}\ns_mul_i32 s{SA}, s{SA}, 6144\ns_add_u32 s{SGL}, s{SGL}, s{SA}")
        p(f"s_lshl_b32 s{SB_}, s{SB_}, 7\ns_add_u32 s{SB_}, s{SB_}, {ZF}")
        self.poll_addr(self.GPL, [(SB_, 16)])
        p(f"s_lshr_b32 s{SA}, s{STB}, 1\ns_lshl_b32 s{SA}, s{SA}, 9\ns_add_u32 s{SA}, s{SA}, {ZF}")
        p(f"v_add_u32 {v(t)}, 16, {v(VL)}\nv_bfe_u32 {v(t)}, {v(t)}, 2, 3\nv_lshlrev_b32 {v(t)}, 13, {v(t)}\nv_and_b32 {v(t+1)}, 3, {v(VL)}\nv_lshl_add_u32 {v(t)}, {v(t+1)}, 7, {v(t)}\nv_add_u32 {v(t)}, s{SA}, {v(t)}")
        p(f"s_mov_b32 vcc_lo, 0xffff0000\ns_mov_b32 vcc_hi, 0xffff\nv_cndmask_b32 {v(self.GPL)}, {v(self.GPL)}, {v(t)}, vcc")
        p(f"s_lshr_b32 s{SA}, s{STB}, 1\ns_lshl_b32 s{SA}, s{SA}, 1\ns_and_b32 s{SB_}, s{SWV}, 1\ns_add_u32 s{SA}, s{SA}, s{SB_}\ns_lshl_b32 s{SA}, s{SA}, 1\ns_add_u32 s{SA}, s{SA}, s{SKH}")
        p(f"s_lshl_b32 s{SB_}, s{SJ}, 6\ns_add_u32 s{SZI}, s{SA}, s{SB_}")
    def g_poll_issue(self):
        self.gp = self.p.vmem(f"buffer_load_dword {v(self.GPL+1)}, {v(self.GPL)}, {srd(SWS)}, 0 offen sc1")

    def phase_z(self):
        p = self.p; o = self.o
        ACC, FA, FB, XR, WR, XD, WD, T = 16, 64, 88, 96, 100, 104, 108, 112
        p.c("==== phase A: Z ====")
        p.put(self.LZ)
        self.common2()
        tick = {}
        def xdma(st, cb=None):
            return [((SREG, (st & 3) * 4096) if i == 0 else None, (SXB, st * 128) if i == 0 else None,
                     f"buffer_load_dwordx4 {v(XD+i)}, {srd(SX)}, s{SDO} offen offset:{i*1024} lds", cb) for i in range(4)]
        def wdma(st, cb=None):
            return [((SWL, (st & 3) * 40960) if i == 0 else None, (SW1B, st * 64 * 2752) if i == 0 else None,
                     f"buffer_load_dwordx4 {v(WD+i)}, {srd(SW1)}, s{SDO} offen offset:{i*1024} lds", cb) for i in range(3)]
        def dma(st):
            def cb(t): tick[st] = t
            return self.dseq(wdma(st) + xdma(st, cb))
        self.w_dma_addr(WD, T, 1376)
        p(f"s_mul_i32 s{SW1B}, s{SWV}, {16*2752}\ns_mul_i32 s{SA}, s{SCOL}, 176\ns_add_u32 s{SW1B}, s{SW1B}, s{SA}")
        p(f"s_mul_i32 s{SWL}, s{SWV}, 3072\ns_add_u32 s{SWL}, s{SWL}, 16384\ns_mov_b32 s{SW1+2}, {512*2752}")
        p(f"s_mov_b64 {sp(SW1)}, {sp(PWIN)}")
        npro = o.get("npro", 3)
        def cb0(t): tick[0] = t
        self.run(self.dseq(wdma(0, cb0)))
        if o.get("sst"): self.stamp(23)
        def setup():
            self.plain_read_addr(XR, SREG, T)
            self.w_tr_addr(WR, 16384, T)
            self.p(f"v_add_u32 {v(WR+1)}, 81920, {v(WR)}")
            self.wsp_setup(T)
            self.p(f"s_add_u32 s{SPB}, s{SREG}, 32768\ns_mov_b32 s{SPB+1}, s{SREG}\ns_add_u32 s{SPB+2}, s{SREG}, 8192\ns_add_u32 s{SPB+3}, s{SREG}, 16384\ns_add_u32 s{SPB+4}, s{SREG}, 24576")
            self.valid_masks()
        d = []
        for st in range(1, npro): d += dma(st)
        self.run(merge(self.cap(lambda: (self.common3(), setup())), d))
        def prefill(u0, u1):
            if u0 == 0:
                p(f"s_lshl_b32 s{SCB}, s{SRB}, 2\ns_add_u32 s{SCB}, s{SCB}, s{SWV}\ns_mul_i32 s{SCB}, s{SCB}, 45056\ns_mul_i32 s{SA}, s{SCOL}, 5632\ns_add_u32 s{SCB}, s{SCB}, s{SA}\ns_add_u32 s{SCB}, s{SCB}, {PB}")
                for k in range(4): p(f"v_mov_b32 {v(176+k)}, -1")
            for u in range(u0, u1):
                if u == 4: p(f"s_add_u32 s{SCB}, s{SCB}, 4096")
                if u == 5: p("s_mov_b32 exec_hi, 0")
                p.vmem(f"buffer_store_dwordx4 {v(176,4)}, {v(VL16)}, {srd(SWS)}, s{SCB} offen offset:{(u%4)*1024} sc1")
                if u == 5: p("s_mov_b32 exec_hi, -1")
        self.pf2()
        self.epoch2()
        self.stamp(0)
        rt = {}
        def reads(n):
            st, ks = n // 4, n % 4; sl = st & 3; s = n & 1; ops = []
            def rb(): rt[(n, 'b')] = p.lds(f"ds_read_b128 {v(FB+4*s,4)}, {v(XR+ks)} offset:{sl*4096}")
            ops.append(rb)
            for mt in range(3):
                for a in range(2):
                    def ra(mt=mt, a=a):
                        rt[(n, mt)] = p.lds(f"ds_read_b64_tr_b16 {v(FA+12*s+4*mt+2*a,2)}, {v(WR+(sl>>1))} offset:{(sl&1)*40960+ks*3072+a*768+mt*64}")
                    ops.append(ra)
            return ops
        def mfmas(n):
            s = n & 1; ops = []
            for mt in range(3):
                def m(mt=mt):
                    p.wait(lg=rt[(n, mt)])
                    c = "0" if n == 0 else v(ACC + 16 * mt, 16)
                    p(f"{MF} {v(ACC+16*mt,16)}, {v(FA+12*s+4*mt,4)}, {v(FB+4*s,4)}, {c}")
                ops.append(m)
            return ops
        GX, GW, GU, GS, GT = 128, 144, 148, 156, 160
        gt = {}
        def gload():
            p(f"s_lshl_b32 s{SE}, s{SRB}, 2\ns_add_u32 s{SE}, s{SE}, s{SWV}\ns_lshl_b32 s{SE}, s{SE}, 3\ns_add_u32 s{SE}, s{SE}, s{SCOL}\ns_lshl_b32 s{SA}, s{SE}, 12")
            for r in range(4): p.vmem(f"buffer_load_dwordx4 {v(GX+4*r,4)}, {v(VL16)}, {srd(SX)}, s{SA} offen offset:{r*1024}")
            gt['t'] = p.vmem(f"global_load_dwordx4 {v(GW,4)}, {v(VL16)}, {sp(PGW)}")
        def gstore():
            p(f"s_lshl_b32 s{SA}, s{SE}, 4\ns_add_u32 s{SA}, s{SA}, {GATE}")
            p.vmem(f"buffer_store_dwordx4 {v(GS,4)}, {v(GT)}, {srd(SWS)}, s{SA} offen sc1")
        gops = [lambda: p.wait(vm=gt['t'])] + self.cap(lambda: self.gate(GX, GW, GU, GS, GT)) + [gstore]
        zm = o.get('zmode', 1)
        valu = {(28 if zm == 1 else 13): [gload]}
        def touch_u():
            p(f"v_lshlrev_b32 {v(170)}, 7, {v(VL)}\ns_lshr_b32 s{SB_}, s2, 3\ns_lshl_b32 s{SB_}, s{SB_}, 2\ns_add_u32 s{SB_}, s{SB_}, s{SWV}\ns_lshl_b32 s{SB_}, s{SB_}, 13")
            p(f"s_and_b32 s{SA}, s2, 7\ns_lshl_b32 s{SA}, s{SA}, 20\ns_add_u32 s{SA}, s{SA}, s{SB_}\ns_add_u32 s{SA}, s{SA}, {1<<19}")
            p.vmem(f"buffer_load_dword {v(171)}, {v(170)}, {srd(SWSP)}, s{SA} offen")
        def warm():
            p(f"v_lshlrev_b32 {v(170)}, 18, {v(VL)}\nv_lshlrev_b32 {v(172)}, 16, {v(VL)}\nv_lshlrev_b32 {v(173)}, 13, {v(VL)}")
            ls = [p.label("wm") for _ in range(4)]
            p(f"s_cmp_eq_u32 s{SWV}, 1\ns_cbranch_scc1 {ls[0]}\ns_cmp_eq_u32 s{SWV}, 2\ns_cbranch_scc1 {ls[1]}\ns_cmp_eq_u32 s{SWV}, 3\ns_cbranch_scc1 {ls[2]}")
            p(f"buffer_load_dword {v(171)}, {v(170)}, {srd(SWS)}, 0 offen sc1\ns_branch {ls[3]}")
            p.put(ls[0]); p(f"buffer_load_dword {v(171)}, {v(172)}, {srd(SOUT)}, 0 offen sc1\ns_branch {ls[3]}")
            p.put(ls[1]); p(f"buffer_load_dword {v(171)}, {v(173)}, {srd(SCRE)}, 0 offen\nbuffer_load_dword {v(171)}, {v(173)}, {srd(SCIM)}, 0 offen\ns_branch {ls[3]}")
            p.put(ls[2]); p(f"v_lshlrev_b32 {v(173)}, 14, {v(VL)}\nbuffer_load_dword {v(171)}, {v(173)}, {srd(SWOUT)}, 0 offen")
            p.put(ls[3])
        if o.get("warm"): valu[31] = [warm]
        def ztouch(part):
            if part == 0:
                p(f"s_lshr_b32 s{SB_}, s2, 3\ns_lshl_b32 s{SB_}, s{SB_}, 2\ns_add_u32 s{SB_}, s{SB_}, s{SWV}")
                p(f"s_and_b32 s{SA}, s2, 7\ns_lshl_b32 s{SPFP+1}, s{SB_}, 3\ns_add_u32 s{SPFP+1}, s{SPFP+1}, s{SA}")
                p(f"s_lshr_b32 s{SA}, s{SA}, 1\ns_lshl_b32 s{SA}, s{SA}, 21\ns_lshl_b32 s{SB_}, s{SB_}, 14\ns_add_u32 s{SPFP}, s{SA}, s{SB_}\ns_lshl_b32 s{SA}, s{SKH}, 11\ns_add_u32 s{SPFP}, s{SPFP}, s{SA}")
                p(f"v_lshrrev_b32 {v(173)}, 4, {v(VL)}\nv_lshlrev_b32 {v(173)}, 12, {v(173)}\nv_and_b32 {v(174)}, 15, {v(VL)}\nv_lshl_add_u32 {v(173)}, {v(174)}, 7, {v(173)}\nv_lshlrev_b32 {v(174)}, 7, {v(VL)}")
                p.vmem(f"buffer_load_dword {v(175)}, {v(173)}, {srd(SWSP)}, s{SPFP} offen")
            if part == 1:
                p(f"s_add_u32 s{SPFP}, s{SPFP}, {1<<20}")
                p.vmem(f"buffer_load_dword {v(175)}, {v(173)}, {srd(SWSP)}, s{SPFP} offen")
            if part == 2:
                l = p.label("zt")
                p(f"s_cmp_ge_u32 s{SPFP+1}, 428\ns_cbranch_scc1 {l}")
                p(f"s_cmp_lt_u32 s{SPFP+1}, 128\ns_cselect_b64 {sp(SSTMP)}, {sp(SCRE)}, {sp(SCIM)}\ns_and_b32 s{SA}, s{SPFP+1}, 127")
                p(f"s_sub_u32 s{SB_}, s{SPFP+1}, 256\ns_cmp_ge_u32 s{SPFP+1}, 256\ns_cselect_b64 {sp(SSTMP)}, {sp(SWOUT)}, {sp(SSTMP)}\ns_cselect_b32 s{SA}, s{SB_}, s{SA}")
                p(f"s_lshl_b32 s{SA}, s{SA}, 12\nv_and_b32 {v(174)}, 4095, {v(174)}\nv_add_u32 {v(174)}, s{SA}, {v(174)}")
                p(f"global_load_dword {v(175)}, {v(174)}, {sp(SSTMP)}")
                p.put(l)
        if o.get("touch", 1) == 2:
            for k in range(3): valu.setdefault(o.get(f"zs{k}", [0, 0, 0][k]), []).append(lambda k=k: ztouch(k))
        else: self.paced(valu, 174, 175, o.get("zt0", 6), o.get("zdt", 6))
        self.gemm_loop(4, reads, mfmas, dma, tick, 2, npro, {o.get('ze0', 5): lambda: self.wsp_dma(0), o.get('ze1', 6): lambda: self.wsp_dma(1)} if zm == 1 else {}, valu)
        self.stamp(1)
        MA, MB = SK + 2, SK + 4
        GR, VLO = 72, 80
        def seg1b():
            p = self.p
            S0, S1, MU = 64, 66, 68
            p(f"v_pk_add_f32 {v(S0,2)}, {v(ACC,2)}, {v(ACC+2,2)}\nv_pk_add_f32 {v(S1,2)}, {v(ACC+4,2)}, {v(ACC+6,2)}")
            for i in range(4, 16):
                s = S0 if i % 2 == 0 else S1
                p(f"v_pk_add_f32 {v(s,2)}, {v(s,2)}, {v(ACC+2*i,2)}")
            for (m, b) in [(MA, 16), (MB, 20)]:
                p(f"s_mov_b64 exec, {sp(m)}")
                for i in range(b, b + 4):
                    s = S0 if i % 2 == 0 else S1
                    p(f"v_pk_add_f32 {v(s,2)}, {v(s,2)}, {v(ACC+2*i,2)}")
            p("s_mov_b64 exec, -1")
            p(f"v_pk_add_f32 {v(S0,2)}, {v(S0,2)}, {v(S1,2)}\nv_add_f32 {v(GR)}, {v(S0)}, {v(S0+1)}")
            p(f"v_mov_b32 {v(S0)}, {v(GR)}\nv_mov_b32 {v(GR+1)}, s{ST_T}\nv_mov_b32 {v(GR+3)}, s{ST_T}\nv_permlane32_swap_b32 {v(GR)}, {v(S0)}\nv_add_f32 {v(GR)}, {v(GR)}, {v(S0)}")
            p(f"v_mul_f32 {v(MU)}, s{SK+6}, {v(GR)}")
            D0, D1 = 76, 78
            def m2(i, first=False):
                d = D0 if i % 2 == 0 else D1; s = S0 if i % 2 == 0 else S1
                p(f"v_pk_add_f32 {v(d,2)}, {v(ACC+2*i,2)}, {v(MU,2)} op_sel_hi:[1,0] neg_lo:[0,1] neg_hi:[0,1]")
                if first: p(f"v_pk_mul_f32 {v(s,2)}, {v(d,2)}, {v(d,2)}")
                else: p(f"v_pk_fma_f32 {v(s,2)}, {v(d,2)}, {v(d,2)}, {v(s,2)}")
            for i in range(16): m2(i, i < 2)
            for (m, b) in [(MA, 16), (MB, 20)]:
                p(f"s_mov_b64 exec, {sp(m)}")
                for i in range(b, b + 4): m2(i)
            p("s_mov_b64 exec, -1")
            p(f"v_pk_add_f32 {v(S0,2)}, {v(S0,2)}, {v(S1,2)}\nv_add_f32 {v(GR+2)}, {v(S0)}, {v(S0+1)}")
            p(f"v_mov_b32 {v(S0)}, {v(GR+2)}\nv_cmp_gt_u32 vcc, 32, {v(VL)}")
            p(f"s_lshl_b32 s{SC}, s{SRB}, 2\ns_add_u32 s{SC}, s{SC}, s{SWV}")
            p(f"v_permlane32_swap_b32 {v(GR+2)}, {v(S0)}\nv_cndmask_b32 {v(VLO)}, {v(VOOB)}, {v(VL16)}, vcc\nv_add_f32 {v(GR+2)}, {v(GR+2)}, {v(S0)}")
            p(f"s_lshl_b32 s{SD}, s{SC}, 12\ns_add_u32 s{SD}, s{SD}, {ST}\ns_lshl_b32 s{SA}, s{SCOL}, 9\ns_add_u32 s{SA}, s{SA}, s{SD}")
        seg1 = self.cap(lambda: self.gelu_many([ACC + 2 * i for i in range(24)], [64, 68, 72, 76]))
        h = len(seg1) // 5
        f1 = self.wsp_dma(2) + [lambda: p("s_barrier")]
        f2 = self.wsp_dma(3) + self.wsp_dma(4)
        if zm == 1: self.run(merge(seg1[:h], f1) + merge(seg1[h:], f2))
        else: self.run(seg1[:h] + [lambda: p("s_barrier")] + seg1[h:])
        seg1b()
        p.vmem(f"buffer_store_dwordx4 {v(GR,4)}, {v(VLO)}, {srd(SWS)}, s{SA} offen sc1")
        self.stamp(2)
        lgw = lambda: p.wait(lg=p.lg - 1)
        Q0, Q1, QA, QB = 112, 113, 114, 115
        MN, VR, N3, I3, TM = 80, 81, 82, 83, 84
        def misc():
            p = self.p
            self.g_early(120)
            p(f"v_lshrrev_b32 {v(Q1)}, 5, {v(VL)}\nv_lshlrev_b32 {v(Q1)}, 6, {v(Q1)}\nv_xor_b32 {v(Q0)}, {v(VL16)}, {v(Q1)}\nv_xor_b32 {v(Q1)}, 128, {v(Q0)}")
            p(f"v_add_u32 {v(Q0)}, s{SPB+4}, {v(Q0)}\nv_add_u32 {v(Q1)}, s{SPB+4}, {v(Q1)}")
            self.unit_tr_addr(124, SPB + 4, 120, False)
            p.atom(f"s_cmp_lt_u32 s{SCOL}, 7\ns_cselect_b32 s{SA}, 24, 8")
            p(f"v_and_b32 {v(QB)}, 31, {v(VL)}\nv_cmp_gt_u32 vcc, s{SA}, {v(QB)}\nv_add_u32 {v(QB)}, 4096, {v(VL16)}\nv_cndmask_b32 {v(QA)}, {v(VOOB)}, {v(QB)}, vcc")
            p(f"s_lshl_b32 s{SA}, s{SCOL}, 6\ns_add_u32 s{SC}, s{SA}, s{SC}\ns_mul_i32 s{SE}, s{SC}, 6144")
            self.flag_prep(118)
            p(f"v_cmp_gt_u32 vcc, 32, {v(VL)}\nv_mov_b32 {v(N3)}, {f2u(72.0)}\nv_mov_b32 {v(TM)}, {f2u(88.0)}\nv_mov_b32 {v(I3)}, {f2u(1/72)}\nv_mov_b32 {v(TM+1)}, {f2u(1/88)}")
            p(f"v_cndmask_b32 {v(N3)}, {v(N3)}, {v(TM)}, vcc\nv_cndmask_b32 {v(I3)}, {v(I3)}, {v(TM+1)}, vcc")
        za = o.get("za", 1)
        f = self.wsp_read(0) + self.wsp_read(1) + [lgw]
        for st in range(5, 5 + za): f += self.wsp_dma(st)
        zs = o.get('zsched', 0)
        if zm == 2: f = self.wsp_dma(0) + self.wsp_dma(1) + (self.wsp_dma(2) if zs in (1, 2) else [])
        self.run(merge(gops + self.cap(misc), f))
        self.stamp(3)
        SG = 64
        for q in range(4):
            ts = p.vmem(f"buffer_load_dwordx4 {v(SG+4*q,4)}, {v(VL16)}, {srd(SWS)}, s{SD} offen offset:{q*1024} sc1")
        if zm == 1:
            for st in range(5 + za, 7): self.run(self.wsp_dma(st))
        else: self.run(self.wsp_dma(3) + self.wsp_read(0) if zs in (1, 2) else self.wsp_dma(2))
        l = p.label("sp"); dl = p.label("sd")
        p.wait(vm=ts)
        p(f"s_mov_b32 s{SSPIN}, 0")
        p.put(l)
        X0 = 116
        p(f"v_xor_b32 {v(MN)}, s{ST_T}, {v(SG+1)}\nv_xor_b32 {v(VR)}, s{ST_T}, {v(SG+3)}")
        for r in [5, 9, 13]:
            p(f"v_xor_b32 {v(X0)}, s{ST_T}, {v(SG+r)}\nv_xor_b32 {v(X0+1)}, s{ST_T}, {v(SG+r+2)}\nv_or3_b32 {v(MN)}, {v(MN)}, {v(X0)}, {v(X0+1)}")
        p(f"v_or_b32 {v(MN)}, {v(MN)}, {v(VR)}")
        p(f"v_cmp_ne_u32 vcc, 0, {v(MN)}\ns_cmp_eq_u64 vcc, 0\ns_cbranch_scc1 {dl}")
        for q in range(4):
            p(f"buffer_load_dwordx4 {v(SG+4*q,4)}, {v(VL16)}, {srd(SWS)}, s{SD} offen offset:{q*1024} sc1")
        p("s_waitcnt vmcnt(0)")
        p(f"s_add_u32 s{SSPIN}, s{SSPIN}, 1\ns_cmp_lt_u32 s{SSPIN}, {SPIN}\ns_cbranch_scc1 {l}")
        p.put(dl)
        self.stamp(4)
        p(f"v_add_f32 {v(MN)}, {v(SG)}, {v(SG+4)}\nv_add_f32 {v(TM+2)}, {v(SG+8)}, {v(SG+12)}\nv_add_f32 {v(MN)}, {v(MN)}, {v(TM+2)}")
        p(f"v_mov_b32 {v(TM+3)}, {v(MN)}\nv_add_f32 {v(VR)}, {v(SG+2)}, {v(SG+6)}\nv_add_f32 {v(TM+2)}, {v(SG+10)}, {v(SG+14)}")
        p(f"v_permlane32_swap_b32 {v(MN)}, {v(TM+3)}\nv_add_f32 {v(VR)}, {v(VR)}, {v(TM+2)}\nv_add_f32 {v(MN)}, {v(MN)}, {v(TM+3)}")
        p(f"v_mul_f32 {v(MN)}, {f2u(1/688)}, {v(MN)}")
        for q in range(4):
            n_, i_ = (TM, TM + 1) if q < 3 else (N3, I3)
            p(f"v_fma_f32 {v(TM+2)}, {v(SG+4*q)}, {v(i_)}, -{v(MN)}\nv_mul_f32 {v(TM+2)}, {v(TM+2)}, {v(TM+2)}\nv_fmac_f32 {v(VR)}, {v(TM+2)}, {v(n_)}")
        self.xhalf_sum(VR, TM)
        p(f"v_mov_b32 {v(TM)}, {f2u(1e-5)}\nv_fmac_f32 {v(TM)}, {f2u(1/688)}, {v(VR)}\nv_rsq_f32 {v(VR)}, {v(TM)}")
        p(f"s_add_u32 s{SA}, s{SE}, {Z2N}\ns_add_u32 s{SB_}, s{SA}, 4096")
        p(f"v_mul_f32 {v(MN)}, {v(MN)}, {v(VR)}")
        ZP = 88
        for u in range(6):
            mt, q = u >> 1, u & 1
            R4 = range(4 * u, 4 * u + 4)
            for i in R4: p(f"v_pk_fma_f32 {v(ACC+2*i,2)}, {v(ACC+2*i,2)}, {v(MN,2)}, {v(MN,2)} op_sel:[0,1,0] op_sel_hi:[1,1,0] neg_lo:[0,0,1] neg_hi:[0,0,1]")
            for i in R4: p(f"v_cvt_pk_bf16_f32 {v(ZP+i)}, {v(ACC+2*i)}, {v(ACC+2*i+1)}")
            p.lds(f"ds_write_b128 {v(Q0+q)}, {v(ZP+4*u,4)} offset:{mt*2048+q*1024}")
        FO = [(0, 0), (0, 1), (1, 0), (1, 1), (0, 2), (1, 2)]
        zr = {}
        for fi, (ks, mt) in enumerate(FO):
            for a in range(2): zr[fi] = p.lds(f"ds_read_b64_tr_b16 {v(128+4*fi+2*a,2)}, {v(124+a)} offset:{mt*2048+ks*256}")
        p(f"s_lshl_b32 s{SE}, s{SC}, 7\ns_add_u32 s{SE}, s{SE}, {ZF}")
        for fi in range(6):
            p.wait(lg=zr[fi])
            t = p.vmem(f"buffer_store_dwordx4 {v(128+4*fi,4)}, {v(VL16 if fi < 4 else QA)}, {srd(SWS)}, s{SA} offen offset:{(fi%4)*1024} sc1")
        if zs:
            if zs >= 3:
                self.run(merge(self.wsp_dma(3) + (self.wsp_dma(4) if zs == 4 else []), self.wsp_read(0) + self.wsp_read(1) + self.wsp_read(2)))
                p.wait(vm=t)
                self.flag(SE, 118)
                self.run(([] if zs == 4 else self.wsp_dma(4)) + [lgw] + self.wsp_dma(5) + self.wsp_dma(6) + self.wsp_dma(7))
            else:
                self.run(merge(self.wsp_dma(4) + (self.wsp_dma(5) if zs > 1 else []), self.wsp_read(1) + self.wsp_read(2)))
                p.wait(vm=t)
                self.flag(SE, 118)
                self.run([lgw] + ([] if zs > 1 else self.wsp_dma(5)) + self.wsp_dma(6) + self.wsp_dma(7))
            for st in range(3, 6): self.run(self.wsp_read(st))
            self.g_poll_issue()
            prefill(0, 6)
            for st in range(6, 8): self.run(self.wsp_read(st))
            p(f"s_add_u32 s{SLATE}, s{SE}, {ZF2-ZF}")
            self.stamp(5)
            return
        self.run(merge(self.wsp_dma(3), self.wsp_read(0) + self.wsp_read(1) + self.wsp_read(2)))
        p.wait(vm=t)
        self.flag(SE, 118)
        prefill(0, 6); tpf = p.vm - 1
        self.run(self.wsp_dma(4) + [lgw] + self.wsp_dma(5) + self.wsp_dma(6))
        p.wait(vm=tpf)
        p(f"s_add_u32 s{SE}, s{SE}, {ZF2-ZF}")
        self.flag(SE, 118)
        self.run(self.wsp_dma(7))
        for st in range(3, 8): self.run(self.wsp_read(st))
        self.g_poll_issue()
        p(f"s_mov_b32 s{SLATE}, 0")
        self.stamp(5)

    def phase_u(self):
        p = self.p; o = self.o
        ACC, ZA, FA, FB, FW, FX = 16, 80, 128, 144, 160, 184
        XR, BR, X1R, WR, XD, BD, WD, T = 192, 196, 200, 204, 206, 210, 214, 60
        p.c("==== phase A: U ====")
        p.put(self.LU)
        WT, WP = SK + 8, SK + 9
        p(f"v_lshrrev_b32 {v(T)}, 5, {v(VL)}\nv_lshlrev_b32 {v(T)}, 15, {v(T)}")
        p(f"v_bfe_u32 {v(T+1)}, {v(VL)}, 3, 1\nv_lshl_add_u32 {v(T)}, {v(T+1)}, 14, {v(T)}")
        p(f"v_bfe_u32 {v(T+1)}, {v(VL)}, 4, 1\nv_lshl_add_u32 {v(T)}, {v(T+1)}, 10, {v(T)}")
        self.plain_dma_addr2(XD, T, T + 1, 2048)
        p(f"s_lshr_b32 s{WP}, s{SWV}, 1\ns_and_b32 s{WT}, s{SWV}, 1\ns_lshl_b32 s{SA}, s{WT}, 5")
        for i in range(4): p(f"v_xor_b32 {v(XD+i)}, s{SA}, {v(XD+i)}")
        p(f"s_lshl_b32 s{SD}, s{WP}, 16\ns_add_u32 s{SXB}, s{SXB}, s{SD}\ns_lshl_b32 s{SD}, s{WT}, 13\ns_add_u32 s{SXB}, s{SXB}, s{SD}\ns_lshl_b32 s{SXL}, s{SWV}, 12\ns_mov_b32 m0, s{SXL}")
        p.wait_lg_all()
        for i in range(4): p.vmem(f"buffer_load_dwordx4 {v(XD+i)}, {srd(SX)}, s{SXB} offen offset:{i*1024} lds")
        self.common2()
        self.plain_dma_addr(BD, 1024, T)
        p(f"s_lshl_b32 s{SW1B}, s{SCOL}, 16\ns_lshl_b32 s{SD}, s{WT}, 15\ns_add_u32 s{SW1B}, s{SW1B}, s{SD}\ns_mov_b32 s{SW1+2}, 524288\ns_add_u32 m0, s{SXL}, 49152")
        p(f"s_cmp_eq_u32 s{WP}, 0\ns_cselect_b64 {sp(SW1)}, {sp(PBRE)}, {sp(PBIM)}")
        for i in range(4): p.vmem(f"buffer_load_dwordx4 {v(BD+i)}, {srd(SW1)}, s{SW1B} offen offset:{i*1024} lds")
        self.w_dma_addr(WD, T, 0)
        SWIB = SCB
        p(f"s_mul_i32 s{SWIB}, s{SWV}, {16*2752}\ns_mul_i32 s{SA}, s{SCOL}, 176\ns_add_u32 s{SWIB}, s{SWIB}, s{SA}")
        p(f"s_mul_i32 s{SWL}, s{SWV}, 3072\ns_add_u32 s{SWL}, s{SWL}, 98304\ns_mov_b32 m0, s{SWL}\ns_mov_b32 s{PWIN+2}, {512*2752}\ns_mov_b32 s{PWIN+3}, 0x20000")
        for i in range(3): t0_ = p.vmem(f"buffer_load_dwordx4 {v(WD+i)}, {srd(PWIN)}, s{SWIB} offen offset:{i*1024} lds")
        if o.get("sst"): self.stamp(23)
        PR = 228
        tick = {}
        def dma(st):
            sl = st % 3; items = []
            def cb(t): tick[st] = t
            for i in range(3):
                items.append(((SWL, sl * 12288) if i == 0 else None, (SWIB, st * 64 * 2752) if i == 0 else None,
                              f"buffer_load_dwordx4 {v(WD+i)}, {srd(PWIN)}, s{SDO} offen offset:{i*1024} lds", None))
            for (vd, sr, sb, lb) in [(XD, SX, SXB, 0), (BD, SW1, SW1B, 49152)]:
                for i in range(4):
                    items.append(((SXL, lb + sl * 16384) if i == 0 else None, (sb, st * 128) if i == 0 else None,
                                  f"buffer_load_dwordx4 {v(vd+i)}, {srd(sr)}, s{SDO} offen offset:{i*1024} lds", cb))
            return self.dseq(items)
        tick[0] = t0_
        npro = o.get("npro_u", 2)
        def setup():
            p = self.p
            p(f"s_mul_i32 s{SREG}, s{SWV}, 40960\ns_lshl_b32 s{SA}, s{WT}, 13")
            self.plain_read_addr(XR, SA, T)
            p(f"s_lshl_b32 s{SA}, s{WP}, 12\ns_add_u32 s{SA}, s{SA}, 49152")
            self.plain_read_addr(BR, SA, T)
            self.w_tr_addr(WR, 98304, T)
            p(f"v_bfe_u32 {v(T)}, {v(VL)}, 3, 1\nv_lshlrev_b32 {v(T+1)}, 12, {v(T)}\nv_xor_b32 {v(T)}, s{WT}, {v(T)}\nv_lshlrev_b32 {v(T)}, 1, {v(T)}")
            p(f"v_bfe_u32 {v(T+2)}, {v(VL)}, 1, 2\nv_lshl_add_u32 {v(T+1)}, {v(T+2)}, 10, {v(T+1)}")
            p(f"v_and_b32 {v(T+2)}, 1, {v(T+2)}\nv_lshl_add_u32 {v(T)}, {v(T+2)}, 2, {v(T)}")
            p(f"v_and_b32 {v(T+2)}, 1, {v(VL)}\nv_lshl_add_u32 {v(T+1)}, {v(T+2)}, 8, {v(T+1)}\nv_or_b32 {v(T)}, {v(T)}, {v(T+2)}")
            p(f"v_bfe_u32 {v(T+2)}, {v(VL)}, 4, 1\nv_lshl_add_u32 {v(T+1)}, {v(T+2)}, 7, {v(T+1)}")
            p(f"s_lshl_b32 s{SA}, s{WP}, 13\ns_lshl_b32 s{SB_}, s{WT}, 9\ns_add_u32 s{SA}, s{SA}, s{SB_}\nv_add_u32 {v(T+1)}, s{SA}, {v(T+1)}")
            p(f"v_lshrrev_b32 {v(T+2)}, 5, {v(VL)}\nv_xor_b32 {v(T)}, {v(T)}, {v(T+2)}\nv_lshlrev_b32 {v(T)}, 4, {v(T)}")
            for ks in range(4): p(f"v_xor_b32 {v(X1R+ks)}, {32*ks}, {v(T)}\nv_add_u32 {v(X1R+ks)}, {v(X1R+ks)}, {v(T+1)}")
            self.wsp_setup(T)
            p(f"s_lshl_b32 s{SPB+1}, s{WT}, 13\ns_mul_i32 s{SA}, s{WP}, 49152\ns_add_u32 s{SPB+1}, s{SPB+1}, s{SA}\ns_add_u32 s{SPB}, s{SPB+1}, 32768\ns_add_u32 s{SPB+2}, s{SPB+1}, 16384")
            p(f"s_lshl_b32 s{SA}, s{SWV}, 13\ns_add_u32 s{SPB+3}, s{SA}, {13*8192}\ns_add_u32 s{SPB+4}, s{SA}, {17*8192}")
            p.atom(f"s_cmp_eq_u32 s{SWV}, 3\ns_cselect_b32 s{SPB+4}, {12*8192}, s{SPB+4}")
            self.valid_masks()
        self.run(merge(self.cap(lambda: (self.common3(), setup())), (dma(1) if npro > 1 else []) + (dma(2) if npro > 2 else [])))
        p(f"s_lshl_b32 s{SD}, s{SRB}, 1\ns_add_u32 s{SD}, s{SD}, s{WT}")
        p(f"s_lshl_b32 s{SA}, s{SCOL}, 1\ns_add_u32 s{SA}, s{SA}, s{WP}")
        p(f"s_lshl_b32 s{SE}, s{SD}, 4\ns_add_u32 s{SE}, s{SE}, s{SA}")
        p(f"s_lshl_b32 s{SA}, s{SA}, 5\nv_and_b32 {v(T)}, 31, {v(VL)}\nv_add_lshl_u32 {v(T)}, {v(T)}, s{SA}, 1")
        p.wait_lg_all()
        p.vmem(f"global_load_ushort {v(PR)}, {v(T)}, {sp(PLRE)}")
        p.vmem(f"global_load_ushort {v(PR+1)}, {v(T)}, {sp(PLIM)}")
        tp = p.vmem(f"global_load_ushort {v(PR+2)}, {v(T)}, {sp(PLDT)}")
        LB, CF, L16, L128, L256, LQ0, LQ1 = 218, 220, 222, 224, 226, 228, 230
        X0, X1, X2, X3 = 232, 233, 234, 235
        L32, L64 = 236, 238
        def csq(d, s):
            p = self.p
            p(f"v_mul_f32 {v(X0)}, {v(s+1)}, {v(s+1)}\nv_add_f32 {v(X1)}, {v(s)}, {v(s)}")
            p(f"v_mul_f32 {v(d+1)}, {v(X1)}, {v(s+1)}\nv_fma_f32 {v(d)}, {v(s)}, {v(s)}, -{v(X0)}")
        def cmul(d, a, b):
            p = self.p
            p(f"v_mul_f32 {v(X0)}, {v(a+1)}, {v(b+1)}\nv_mul_f32 {v(X1)}, {v(a+1)}, {v(b)}")
            p(f"v_fma_f32 {v(X0)}, {v(a)}, {v(b)}, -{v(X0)}\nv_fma_f32 {v(d+1)}, {v(a)}, {v(b+1)}, {v(X1)}\nv_mov_b32 {v(d)}, {v(X0)}")
        def cfma(d, a, b, c):
            p = self.p
            p(f"v_fma_f32 {v(X0)}, {v(a)}, {v(b)}, {v(c)}\nv_fma_f32 {v(X1)}, {v(a)}, {v(b+1)}, {v(c+1)}")
            p(f"v_fma_f32 {v(X0)}, -{v(a+1)}, {v(b+1)}, {v(X0)}\nv_fma_f32 {v(d+1)}, {v(a+1)}, {v(b)}, {v(X1)}\nv_mov_b32 {v(d)}, {v(X0)}")
        def params():
            p = self.p
            p(f"v_lshlrev_b32 {v(PR)}, 16, {v(PR)}\nv_lshlrev_b32 {v(PR+1)}, 16, {v(PR+1)}\nv_lshlrev_b32 {v(PR+2)}, 16, {v(PR+2)}")
            p(f"v_mul_f32 {v(X0)}, {f2u(LOG2E)}, {v(PR+2)}\nv_exp_f32 {v(X0)}, {v(X0)}"); self.rnd(X0, X0)
            p(f"v_mul_f32 {v(X1)}, {v(X0)}, {v(PR)}\nv_mul_f32 {v(X2)}, {v(X0)}, {v(PR+1)}")
            p(f"v_mul_f32 {v(X1)}, {f2u(LOG2E)}, {v(X1)}\nv_exp_f32 {v(X1)}, {v(X1)}")
            p(f"v_mul_f32 {v(X2)}, {f2u(1/(2*math.pi))}, {v(X2)}\nv_fract_f32 {v(X2)}, {v(X2)}")
            p(f"v_cos_f32 {v(X3)}, {v(X2)}\nv_sin_f32 {v(X2)}, {v(X2)}")
            p(f"v_mul_f32 {v(X0)}, {v(PR)}, {v(PR)}")
            p(f"v_mul_f32 {v(LB)}, {v(X1)}, {v(X3)}\nv_mul_f32 {v(LB+1)}, {v(X1)}, {v(X2)}")
            p(f"v_fmac_f32 {v(X0)}, {v(PR+1)}, {v(PR+1)}\nv_rcp_f32 {v(X0)}, {v(X0)}")
            p(f"v_add_f32 {v(X1)}, -1.0, {v(LB)}\nv_add_f32 {v(X0)}, {v(X0)}, {v(X0)}")
            p(f"v_mul_f32 {v(X2)}, {v(X1)}, {v(PR)}\nv_fmac_f32 {v(X2)}, {v(LB+1)}, {v(PR+1)}\nv_mul_f32 {v(CF)}, {v(X2)}, {v(X0)}")
            p(f"v_mul_f32 {v(X2)}, {v(LB+1)}, {v(PR)}\nv_fma_f32 {v(X2)}, -{v(X1)}, {v(PR+1)}, {v(X2)}\nv_mul_f32 {v(CF+1)}, {v(X2)}, {v(X0)}")
            csq(L16, LB); csq(L16, L16); csq(L16, L16); csq(L16, L16)
            csq(L32, L16); csq(L64, L32); csq(L128, L64); csq(L256, L128)
            p.atom(f"s_cmp_eq_u32 s{WT}, 0\ns_cselect_b64 vcc, -1, 0")
            p(f"v_cndmask_b32 {v(L64)}, {v(L64)}, 1.0, vcc\nv_cndmask_b32 {v(L64+1)}, {v(L64+1)}, 0, vcc")
            p(f"v_cmp_gt_u32 vcc, 32, {v(VL)}\nv_cndmask_b32 {v(LQ0)}, {v(L32)}, 1.0, vcc\nv_cndmask_b32 {v(LQ0+1)}, {v(L32+1)}, 0, vcc")
            cmul(LQ0, LQ0, L64); cmul(LQ1, LQ0, L16)
        self.pf2()
        self.epoch2()
        self.stamp(0)
        pops = [lambda: p.wait(vm=tp)] + self.cap(params)
        valu = {}
        q = (len(pops) + 15) // 16
        for i in range(16): valu[8 + i] = pops[i * q:(i + 1) * q]
        self.paced(valu, 217, 205, o.get("ut0", 4), o.get("udt", 4))
        rt = {}
        def reads(n):
            st, ks = n // 4, n % 4; sl = st % 3; s = n & 1; ops = []
            for k in range(2):
                def ra(k=k): rt[(n, 'a', k)] = p.lds(f"ds_read_b128 {v(FA+8*s+4*k,4)}, {v(XR+(ks^k))} offset:{sl*16384+k*4096}")
                def rb(k=k): rt[(n, 'b', k)] = p.lds(f"ds_read_b128 {v(FB+8*s+4*k,4)}, {v(BR+ks)} offset:{sl*16384+k*8192}")
                ops += [ra, rb]
            def rx(): p.lds(f"ds_read_b128 {v(FX+4*s,4)}, {v(X1R+ks)} offset:{sl*16384}")
            ops.append(rx)
            for mt in range(3):
                for a in range(2):
                    def rw(mt=mt, a=a):
                        rt[(n, 'w', mt)] = p.lds(f"ds_read_b64_tr_b16 {v(FW+12*s+4*mt+2*a,2)}, {v(WR)} offset:{sl*12288+ks*3072+a*768+mt*64}")
                    ops.append(rw)
            return ops
        def mfmas(n):
            s = n & 1; ops = []
            for (mt, cp) in [(0, 0), (1, 0), (1, 1), (0, 1)]:
                def m(mt=mt, cp=cp):
                    if (mt, cp) == (0, 0): p.wait(lg=rt[(n, 'b', 1)])
                    d = v(ACC + 32 * mt + 16 * cp, 16)
                    p(f"{MF} {d}, {v(FA+8*s+4*mt,4)}, {v(FB+8*s+4*cp,4)}, {'0' if n == 0 else d}")
                ops.append(m)
            for mt in range(3):
                def m(mt=mt):
                    if mt == 0: p.wait(lg=rt[(n, 'w', 2)])
                    d = v(ZA + 16 * mt, 16)
                    p(f"{MF} {d}, {v(FW+12*s+4*mt,4)}, {v(FX+4*s,4)}, {'0' if n == 0 else d}")
                ops.append(m)
            return ops
        self.gemm_loop(3, reads, mfmas, dma, tick, 5, npro, {6: lambda: self.wsp_dma(0), 7: lambda: self.wsp_dma(1)}, valu)
        self.stamp(1)
        def U(sg, cp): return ACC + 32 * (sg >> 3) + 16 * cp + 4 * ((sg & 7) >> 1) + 2 * (sg & 1)
        def step(hr, hi, sg, nr, ni, t0, t1):
            p = self.p; A = v(LB, 2)
            p(f"v_pk_fma_f32 {v(t0,2)}, {A}, {v(hr,2)}, {v(U(sg,0),2)} op_sel_hi:[0,1,1]")
            p(f"v_pk_fma_f32 {v(t1,2)}, {A}, {v(hi,2)}, {v(U(sg,1),2)} op_sel_hi:[0,1,1]")
            p(f"v_pk_fma_f32 {v(nr,2)}, {A}, {v(hi,2)}, {v(t0,2)} op_sel:[1,0,0] op_sel_hi:[1,1,1] neg_lo:[1,0,0] neg_hi:[1,0,0]")
            p(f"v_pk_fma_f32 {v(ni,2)}, {A}, {v(hr,2)}, {v(t1,2)} op_sel:[1,0,0] op_sel_hi:[1,1,1]")
        HA, HBb, T0, EX, E8, AD, GR, CQ = 128, 132, 136, 140, 144, 160, 164, 168
        SCR = 98304
        p(f"s_lshl_b32 s{SA}, s{WP}, 11\ns_add_u32 s{SA}, s{SA}, {SCR}")
        p(f"v_and_b32 {v(AD)}, 31, {v(VL)}\nv_lshlrev_b32 {v(AD)}, 6, {v(AD)}\nv_add_u32 {v(AD)}, s{SA}, {v(AD)}")
        p(f"v_lshrrev_b32 {v(AD+1)}, 5, {v(VL)}\nv_lshl_add_u32 {v(AD+1)}, {v(AD+1)}, 4, {v(AD)}\ns_lshl_b32 s{SA}, s{WT}, 5\nv_add_u32 {v(AD+1)}, s{SA}, {v(AD+1)}")
        Z1P = 192
        SZ0, SZ1 = SXL, SWL
        VA_ = 176
        MA, MB = SK + 2, SK + 4
        def z1st(u):
            mt, q = u >> 1, u & 1
            for i in range(4): p(f"v_cvt_pk_bf16_f32 {v(Z1P+4*u+i)}, {v(ZA+8*u+2*i)}, {v(ZA+8*u+2*i+1)}")
            r = v(Z1P + 4 * u, 4)
            if mt < 2: p.vmem(f"buffer_store_dwordx4 {r}, {v(VL16)}, {srd(SWS)}, s{SZ0} offen offset:{mt*2048+q*1024} sc1")
            else: p.vmem(f"buffer_store_dwordx4 {r}, {v(VA_+q)}, {srd(SWS)}, s{SZ1} offen offset:{q*1024} sc1")
        p(f"s_lshl_b32 s{SA}, s{SCOL}, 6\ns_lshl_b32 s{SB_}, s{SRB}, 2\ns_add_u32 s{SA}, s{SA}, s{SB_}\ns_add_u32 s{SA}, s{SA}, s{SWV}\ns_mul_i32 s{SA}, s{SA}, 5632")
        p(f"s_add_u32 s{SZ0}, s{SA}, {Z1}\ns_add_u32 s{SZ1}, s{SZ0}, 4096")
        p(f"v_cndmask_b32 {v(VA_)}, {v(VOOB)}, {v(VL16)}, {sp(MA)}\nv_cndmask_b32 {v(VA_+1)}, {v(VOOB)}, {v(VL16)}, {sp(MB)}")
        zs = [(lambda u=u: z1st(u)) for u in range(6)]
        self.run(zs[:2])
        p("s_barrier")
        def pass1():
            hr, hi = U(0, 0), U(0, 1)
            for sg in range(1, 16):
                nr, ni = (HA, HA + 2) if sg & 1 else (HBb, HBb + 2)
                step(hr, hi, sg, nr, ni, T0, T0 + 2)
                hr, hi = nr, ni
            self.p(f"v_mov_b32 {v(EX)}, {v(hr)}\nv_mov_b32 {v(EX+1)}, {v(hi)}\nv_mov_b32 {v(EX+2)}, {v(hr+1)}\nv_mov_b32 {v(EX+3)}, {v(hi+1)}")
        d2 = self.wsp_dma(2) + self.wsp_dma(3)
        self.run(merge(merge(self.cap(pass1), zs[2:]), d2[:7]))
        p.lds(f"ds_write_b128 {v(AD+1)}, {v(EX,4)}")
        p.wait_lg_all(); p("s_barrier")
        for i in range(4): p.lds(f"ds_read_b128 {v(E8+4*i,4)}, {v(AD)} offset:{16*i}")
        te = p.lg - 1
        self.run(d2[7:11])
        p(f"s_cmp_eq_u32 s{WT}, 0\ns_cselect_b32 s{SA}, 32, 0")
        p(f"v_cmp_gt_u32 vcc, s{SA}, {v(VL)}\nv_mov_b32 {v(GR+1)}, s{ST_T}\nv_mov_b32 {v(GR+3)}, s{ST_T}\nv_cndmask_b32 {v(T0)}, {v(VOOB)}, {v(VL16)}, vcc")
        p(f"s_lshl_b32 s{SC}, s{SCOL}, 14\ns_lshl_b32 s{SA}, s{WP}, 9\ns_add_u32 s{SC}, s{SC}, s{SA}\ns_add_u32 s{SC}, s{SC}, {EG}")
        p(f"s_lshl_b32 s{SA}, s{SRB}, 10\ns_add_u32 s{SA}, s{SA}, s{SC}")
        p.wait(lg=te); p("s_barrier")
        self.run(merge(self.cap(lambda: [cfma(E8 + 2 * q, L16, E8 + 2 * (q - 1), E8 + 2 * q) for q in range(1, 8)]), d2[11:15]))
        p(f"v_mov_b32 {v(GR)}, {v(E8+14)}\nv_mov_b32 {v(GR+2)}, {v(E8+15)}")
        p.vmem(f"buffer_store_dwordx4 {v(GR,4)}, {v(T0)}, {srd(SWS)}, s{SA} offen sc1")
        self.run(d2[15:])
        self.stamp(2)
        p(f"v_cmp_gt_u32 vcc, 32, {v(VL)}")
        w1 = p.label("w1"); w2 = p.label("w2")
        p(f"s_cmp_eq_u32 s{WT}, 0\ns_cbranch_scc0 {w1}")
        p(f"v_cndmask_b32 {v(CQ)}, {v(E8+2)}, 0, vcc\nv_cndmask_b32 {v(CQ+1)}, {v(E8+3)}, 0, vcc")
        p(f"v_cndmask_b32 {v(CQ+2)}, {v(E8+4)}, {v(E8)}, vcc\nv_cndmask_b32 {v(CQ+3)}, {v(E8+5)}, {v(E8+1)}, vcc")
        p(f"s_branch {w2}")
        p.put(w1)
        for k in range(4): p(f"v_cndmask_b32 {v(CQ+k)}, {v(E8+10+k)}, {v(E8+6+k)}, vcc")
        p.put(w2)
        Z1P = 192
        EGR, EO, EXP, ET = 80, 144, 152, 160
        def eo():
            p = self.p
            p(f"v_lshrrev_b32 {v(ET)}, 5, {v(VL)}\nv_sub_u32 {v(ET)}, s{SRB}, {v(ET)}\nv_add_u32 {v(ET)}, -1, {v(ET)}")
            p(f"v_and_b32 {v(ET+1)}, 31, {v(VL)}\nv_lshlrev_b32 {v(ET+1)}, 4, {v(ET+1)}\nv_mov_b32 {v(ET+3)}, s{ST_T}")
            for q in range(8):
                p(f"v_add_u32 {v(ET+2)}, {-2*q}, {v(ET)}\nv_cmp_le_i32 vcc, 0, {v(ET+2)}\nv_lshl_add_u32 {v(ET+2)}, {v(ET+2)}, 10, {v(ET+1)}")
                p(f"v_cndmask_b32 {v(EO+q)}, {v(VOOB)}, {v(ET+2)}, vcc\nv_cndmask_b32 {v(EXP+q)}, 0, {v(ET+3)}, vcc")
        lgw = lambda: p.wait(lg=p.lg - 1)
        self.run(merge(self.cap(lambda: (eo(), self.g_early(184))), self.wsp_dma(4) + self.wsp_read(0) + self.wsp_read(1)))
        et = {}
        def eload(q):
            et['t'] = p.vmem(f"buffer_load_dwordx4 {v(EGR+4*q,4)}, {v(EO+q)}, {srd(SWS)}, s{SC} offen sc1")
        for q in range(8): eload(q)
        self.run([lgw] + self.wsp_dma(5))
        self.stamp(3)
        l = p.label("ep"); dl = p.label("ed")
        p.wait(vm=et['t'])
        p(f"s_mov_b32 s{SSPIN}, 0")
        p.put(l)
        p(f"v_mov_b32 {v(ET)}, 0")
        for q in range(8):
            p(f"v_xor_b32 {v(ET+1)}, {v(EXP+q)}, {v(EGR+4*q+1)}\nv_xor_b32 {v(ET+2)}, {v(EXP+q)}, {v(EGR+4*q+3)}\nv_or3_b32 {v(ET)}, {v(ET)}, {v(ET+1)}, {v(ET+2)}")
        p(f"v_cmp_ne_u32 vcc, 0, {v(ET)}\ns_cmp_eq_u64 vcc, 0\ns_cbranch_scc1 {dl}")
        for q in range(8): p(f"buffer_load_dwordx4 {v(EGR+4*q,4)}, {v(EO+q)}, {srd(SWS)}, s{SC} offen sc1")
        p("s_waitcnt vmcnt(0)")
        p(f"s_add_u32 s{SSPIN}, s{SSPIN}, 1\ns_cmp_lt_u32 s{SSPIN}, {SPIN}\ns_cbranch_scc1 {l}")
        p.put(dl)
        self.flag_prep(178)
        p(f"s_lshl_b32 s{SA}, s{SCOL}, 6\ns_lshl_b32 s{SB_}, s{SRB}, 2\ns_add_u32 s{SA}, s{SA}, s{SB_}\ns_add_u32 s{SA}, s{SA}, s{SWV}\ns_lshl_b32 s{SA}, s{SA}, 7\ns_add_u32 s{SA}, s{SA}, {Z1F}")
        self.flag(SA, 178)
        self.stamp(4)
        OP, OT, HO = 80, 144, 132
        MA, MB = SK + 2, SK + 4
        SH0, SH1 = SXB, SW1B
        def pass2a():
            p = self.p
            p(f"s_lshl_b32 s{SA}, s{SD}, 3\ns_add_u32 s{SA}, s{SA}, s{SCOL}\ns_lshl_b32 s{SA}, s{SA}, 14\ns_lshl_b32 s{SB_}, s{WP}, 12\ns_add_u32 s{SA}, s{SA}, s{SB_}")
            p(f"s_add_u32 s{SH0}, s{SA}, {HB}\ns_add_u32 s{SH1}, s{SH0}, 8192")
            p(f"v_lshrrev_b32 {v(T0)}, 5, {v(VL)}\nv_lshlrev_b32 {v(T0)}, 11, {v(T0)}\nv_and_b32 {v(T0+1)}, 31, {v(VL)}\nv_lshl_add_u32 {v(HO)}, {v(T0+1)}, 4, {v(T0)}")
            for k in range(1, 4): p(f"v_xor_b32 {v(HO+k)}, {64*k}, {v(HO)}")
            for q in range(8): p(f"v_mov_b32 {v(EGR+4*q+1)}, {v(EGR+4*q+2)}")
            S = EGR + 28
            for q in range(6, -1, -1): cfma(S, L256, S, EGR + 4 * q)
            p(f"v_mov_b32 {v(ET)}, {v(S)}\nv_mov_b32 {v(ET+1)}, {v(S+1)}\nv_permlane32_swap_b32 {v(S)}, {v(ET)}\nv_permlane32_swap_b32 {v(S+1)}, {v(ET+1)}")
            cfma(S, L128, ET, S)
            cfma(CQ, LQ0, S, CQ); cfma(CQ + 2, LQ1, S, CQ + 2)
            p(f"v_mov_b32 {v(HA)}, {v(CQ)}\nv_mov_b32 {v(HA+1)}, {v(CQ+2)}\nv_mov_b32 {v(HA+2)}, {v(CQ+1)}\nv_mov_b32 {v(HA+3)}, {v(CQ+3)}")
        def pass2(s0, s1):
            p = self.p
            Cc = v(CF, 2)
            for sg in range(s0, s1):
                hr, hi = (HA, HA + 2) if sg == 0 else (U(sg - 1, 0), U(sg - 1, 1))
                step(hr, hi, sg, U(sg, 0), U(sg, 1), T0, T0 + 2)
                hr, hi = U(sg, 0), U(sg, 1)
                oo = OT + 4 * (sg & 1) + 8 * ((sg >> 1) & 1)
                p(f"v_pk_mul_f32 {v(oo,2)}, {Cc}, {v(hr,2)} op_sel_hi:[0,1]")
                p(f"v_pk_mul_f32 {v(oo+2,2)}, {Cc}, {v(hi,2)} op_sel_hi:[0,1] neg_lo:[1,0] neg_hi:[1,0]")
                p(f"v_pk_fma_f32 {v(oo,2)}, {Cc}, {v(hi,2)}, {v(oo,2)} op_sel:[1,0,0] op_sel_hi:[1,1,1] neg_lo:[1,0,0] neg_hi:[1,0,0]")
                p(f"v_pk_fma_f32 {v(oo+2,2)}, {Cc}, {v(hr,2)}, {v(oo+2,2)} op_sel:[1,0,0] op_sel_hi:[1,1,1] neg_lo:[1,0,0] neg_hi:[1,0,0]")
                if sg & 1:
                    q, i = sg >> 3, (sg & 7) >> 1
                    for cp in range(2):
                        for e in range(2):
                            p(f"v_cvt_pk_bf16_f32 {v(OP+16*cp+8*e+4*q+i)}, {v(oo-4+2*cp+e)}, {v(oo+2*cp+e)}")
        def hst(cp, k):
            if o.get("x_nost"): return
            p.vmem(f"buffer_store_dwordx4 {v(OP+16*cp+4*k,4)}, {v(HO+k)}, {srd(SWS)}, s{SH0 if cp == 0 else SH1} offen offset:{512*k} sc1")
        self.run(merge(self.cap(pass2a), self.wsp_dma(6) + self.wsp_read(2) + [lgw]))
        self.run(merge(self.cap(lambda: pass2(0, 8)), self.wsp_dma(7) + self.wsp_read(3)))
        self.g_poll_issue()
        self.run(merge(merge(self.cap(lambda: pass2(8, 16)), [(lambda cp=cp, k=k: hst(cp, k)) for k in (0, 2) for cp in range(2)]), self.wsp_read(4) + self.wsp_read(5)))
        h2 = [(lambda cp=cp, k=k: hst(cp, k)) for k in (1, 3) for cp in range(2)]
        self.run(merge(self.wsp_read(6) + self.wsp_read(7), h2))
        p(f"s_lshl_b32 s{SLATE}, s{SE}, 7\ns_add_u32 s{SLATE}, s{SLATE}, {HF}")
        self.stamp(5)
        p(f"s_branch {self.LG}")

    CD, CR, HT, GY, WD, WT_ = 210, 214, 218, 240, 244, 228
    ZUP = [4, 6, 8, 10, 12, 14, 204, 206, 208, 248, 250, 252]
    YSL = [1, 1, 0, 1]
    YB = [96, 160, 96, 160]
    def wo_dma(self, parts):
        items = []
        for (i0, i1, base) in parts:
            for i in range(i0, i1):
                def cb(t, i=i): self.wo[i] = t
                k = i - i0
                items.append(((SREG, base + k * 1024) if k % 4 == 0 else None, (SXB, i * 8192) if k % 4 == 0 else None,
                              f"buffer_load_dwordx4 {v(self.WD+k%4)}, {srd(SWOUT)}, s{SDO} offen offset:{(k%4)*1024} lds", cb))
        return self.dseq(items)
    def c_setup(self):
        p = self.p
        self.plain_dma_addr(self.CD, 1024, 224)
        p(f"s_add_u32 s{SA}, s{SREG}, 4096")
        self.plain_read_addr(self.CR, SA, 224)
        p(f"s_add_u32 s{SA}, s{SREG}, {4096+8192}")
        self.unit_tr_addr(self.HT, SA, 224, False)
        p(f"s_lshl_b32 s{SCB}, s{SCOL}, 16\ns_lshl_b32 s{SA}, s{SWV}, 8\ns_add_u32 s{SCB}, s{SCB}, s{SA}")
        p(f"s_lshl_b32 s{SHB}, s{STB}, 17\ns_lshl_b32 s{SA}, s{SWV}, 15\ns_add_u32 s{SHB}, s{SHB}, s{SA}\ns_add_u32 s{SHB}, s{SHB}, {HB}")
        self.yt = {}
    def y_items(self, s):
        sl = self.YSL[s]; items = []
        def cb(t): self.yt[s] = t
        for hh in range(2):
            for i in range(4):
                items.append(((SREG, 4096 + sl * 20480 + hh * 4096), (SCB, (s >> 1) * 128 + hh * 32768),
                              f"buffer_load_dwordx4 {v(self.CD+i)}, {srd(SCIM if s & 1 else SCRE)}, s{SDO} offen offset:{i*1024} lds", cb))
        for hh in range(2):
            for i in range(4):
                items.append(((SREG, 4096 + sl * 20480 + 8192 + hh * 4096), (SHB, s * 8192 + hh * 4096),
                              f"buffer_load_dwordx4 {v(VL16)}, {srd(SWS)}, s{SDO} offen offset:{i*1024} sc1 lds", cb))
        return items
    def y_dma(self, s): return self.dseq(self.y_items(s))
    def y_read(self, s):
        p = self.p; sl = self.YSL[s]; ops = []
        self.yr = getattr(self, "yr", {})
        for ks in range(4):
            def f(ks=ks):
                p.wait(vm=self.yt[s], lg=p.lg - 10)
                b = self.YB[s] + 16 * ks
                for k in range(2):
                    p.lds(f"ds_read_b128 {ar(b+4*k,4)}, {v(self.CR+ks)} offset:{sl*20480+k*4096}")
                    for a in range(2):
                        self.yr[(s, ks)] = p.lds(f"ds_read_b64_tr_b16 {ar(b+8+4*k+2*a,2)}, {v(self.HT+a)} offset:{sl*20480+(ks>>1)*4096+k*2048+(ks&1)*256}")
            ops.append(f)
        return ops
    def phase_g(self):
        p = self.p; o = self.o
        p.c("==== phase B: G ====")
        p.put(self.LG)
        p.vm_done = -1; p.lg_done = -1
        ACC, FA, TR, T = 16, 112, self.GTR, 186
        Z1R, BI, PV, WD, PL, PL2, PL3, OGV = 190, 202, 203, self.WD, self.GPL, 222, 234, 241
        Q = SK + 9
        AOFF = 24576
        lgw = lambda: p.wait(lg=p.lg - 1)
        p(f"s_mov_b32 s{SCOL}, s{SJ}")
        def late_setup():
            p = self.p
            p(f"s_lshl_b32 s{SE}, s{STB}, 11\ns_add_u32 s{SE}, s{SE}, {HF}")
            p(f"s_lshl_b32 s{SA}, s{SZI}, 7\ns_add_u32 s{SA}, s{SA}, {Z1F}")
            self.poll_addr(PL3, [(SE, 16), (SA, 1)])
            p(f"s_lshr_b32 s{SA}, s{STB}, 1\ns_lshl_b32 s{SA}, s{SA}, 9\ns_add_u32 s{SA}, s{SA}, {ZF2}")
            p(f"v_bfe_u32 {v(T)}, {v(VL)}, 2, 3\nv_lshlrev_b32 {v(T)}, 13, {v(T)}\nv_and_b32 {v(T+1)}, 3, {v(VL)}\nv_lshl_add_u32 {v(T)}, {v(T+1)}, 7, {v(T)}\nv_add_u32 {v(T)}, s{SA}, {v(T)}")
            p(f"s_mov_b32 vcc_lo, 0\ns_mov_b32 vcc_hi, -1\nv_cndmask_b32 {v(PL3)}, {v(PL3)}, {v(T)}, vcc")
            self.flag_prep(220)
            p(f"v_lshrrev_b32 {v(T)}, 3, {v(VL)}\nv_lshlrev_b32 {v(T)}, 10, {v(T)}")
            p(f"v_bfe_u32 {v(T+1)}, {v(VL)}, 4, 1\nv_lshlrev_b32 {v(T+1)}, 2, {v(T+1)}\nv_and_b32 {v(T+2)}, 7, {v(VL)}\nv_xor_b32 {v(T+1)}, {v(T+1)}, {v(T+2)}")
            p(f"v_lshl_add_u32 {v(WD)}, {v(T+1)}, 4, {v(T)}")
            for i in range(1, 4): p(f"v_add_u32 {v(WD+i)}, {i*7168}, {v(WD)}")
            p(f"s_mul_i32 s{SXB}, s{SWV}, {176*1024}\ns_lshl_b32 s{SA}, s{SCOL}, 7\ns_add_u32 s{SXB}, s{SXB}, s{SA}")
            self.panel_tr_addr(self.WT_, SREG, 224, False)
        p(f"s_lshr_b32 s{Q}, s{SWV}, 1\ns_and_b32 s{SC}, s{SZI}, 63")
        p.atom(f"s_cmp_lt_u32 s{SCOL}, 7\ns_cselect_b32 s{SD}, 64, 32")
        p(f"s_lshl_b32 s{SF}, s{Q}, 5\ns_sub_u32 s{SD}, s{SD}, s{SF}")
        p(f"v_cmp_gt_u32 vcc, s{SD}, {v(VL)}\nv_and_b32 {v(T)}, 31, {v(VL)}\ns_lshl_b32 s{SA}, s{SC}, 5\nv_cndmask_b32 {v(PV)}, {v(VOOB)}, {v(VL16)}, vcc")
        p(f"v_add_lshl_u32 {v(T)}, {v(T)}, s{SA}, 1")
        p.vmem(f"global_load_ushort {v(BI)}, {v(T)}, {sp(PBSP)}")
        p(f"s_mul_i32 s{SD}, s{SZI}, 5632\ns_lshl_b32 s{SB_}, s{Q}, 10\ns_add_u32 s{SD}, s{SD}, s{SB_}\ns_add_u32 s{SD}, s{SD}, {Z1}\ns_add_u32 s{SE}, s{SD}, 4096")
        p(f"v_and_b32 {v(PL2)}, 31, {v(VL)}\nv_lshlrev_b32 {v(PL2)}, 2, {v(PL2)}")
        p.wait_lg_all()
        self.stamp(6)
        l = p.label("gp"); dn = p.label("gd")
        p("s_waitcnt vmcnt(9)")
        p(f"s_cmp_ge_u32 s2, 128\ns_cbranch_scc1 {l}\ns_waitcnt vmcnt({7 if o.get('zsched', 0) else 0})")
        p.put(l)
        p(f"v_cmp_ne_u32 vcc, s{ST_T}, {v(PL+1)}\ns_and_b32 vcc_hi, vcc_hi, 0xffff\ns_or_b32 s{SF}, vcc_lo, vcc_hi\ns_cbranch_scc0 {dn}")
        self.poll(PL, 48)
        p.put(dn)
        p("s_barrier")
        g0 = p.vm
        def late_flag():
            nf = p.label("nf")
            p(f"s_cmp_eq_u32 s{SLATE}, 0\ns_cbranch_scc1 {nf}")
            p(f"s_waitcnt vmcnt({p.vm - g0})")
            p(f"buffer_store_dword {v(220)}, {v(221)}, {srd(SWS)}, s{SLATE} offen sc1")
            p.put(nf)
        p.vm_done = -1
        self.stamp(7)
        def soff(B): return ((B & 3) >> 1) * 40960 + (B & 1) * 12288
        tick = {}
        def dma(B):
            items = []
            for i in range(6):
                def cb(t): tick[B] = t
                g = i // 4
                txt = f"buffer_load_dwordx4 {v(VL16 if i < 4 else TR + 1)}, {srd(SWS)}, s{SDO} offen offset:{(i%4)*1024} sc1 lds"
                items.append(((SGL, soff(B) + g * 4096) if i % 4 == 0 else None, (SGB, B * 12288 + g * 4096) if i % 4 == 0 else None, txt, cb))
            return self.dseq(items)
        z1t = {}
        def z1load():
            p.vmem(f"buffer_load_dwordx4 {v(Z1R,4)}, {v(VL16)}, {srd(SWS)}, s{SD} offen sc1")
            p.vmem(f"buffer_load_dwordx4 {v(Z1R+4,4)}, {v(VL16)}, {srd(SWS)}, s{SD} offen offset:2048 sc1")
            p(f"s_add_u32 s{SD}, s{SD}, 4096")
            z1t['t'] = p.vmem(f"buffer_load_dwordx4 {v(Z1R+8,4)}, {v(PV)}, {srd(SWS)}, s{SD} offen sc1")
        self.run(dma(0))
        self.run(merge(self.cap(lambda: (late_setup(), self.c_setup())), dma(1)))
        def gyl():
            p(f"s_lshl_b32 s{SA}, s{STB}, 8\ns_add_u32 s{SA}, s{SA}, {GATE}")
            p.vmem(f"buffer_load_dword {v(self.GY)}, {v(PL2)}, {srd(SWS)}, s{SA} offen sc1")
            p.vmem(f"buffer_load_dword {v(self.GY+2)}, {v(PL2)}, {srd(SWS)}, s{SA} offen offset:128 sc1")
            p(f"s_lshl_b32 s{SA}, s{SC}, 7\ns_add_u32 s{SA}, s{SA}, {GATE}")
            p.vmem(f"buffer_load_dword {v(OGV)}, {v(PL2)}, {srd(SWS)}, s{SA} offen sc1")
        def z1gelu():
            c1 = -2 * LOG2E * 0.7978845608028654
            self.VC0 = 188
            self.p(f"s_mov_b32 s{SK}, {f2u(c1*0.044715)}\nv_mov_b32 {v(188)}, {f2u(c1)}")
            for i in range(12): self.unpack(self.ZUP[i], Z1R + i)
            self.gelu_many(self.ZUP, [24, 26, 28, 30])
        lt = {}
        def issue(r):
            lt[r] = p.vmem(f"buffer_load_dword {v(r+1)}, {v(r)}, {srd(SWS)}, 0 offen sc1")
        def check(r, mask):
            l = p.label("lp"); d = p.label("ld")
            p.wait(vm=lt[r])
            p(f"s_mov_b32 s{SSPIN}, 0")
            p.put(l)
            p(f"v_cmp_ne_u32 vcc, s{ST_T}, {v(r+1)}\ns_and_b32 s{SF}, vcc_lo, {mask}\ns_or_b32 s{SF}, s{SF}, vcc_hi\ns_cbranch_scc0 {d}")
            p(f"buffer_load_dword {v(r+1)}, {v(r)}, {srd(SWS)}, 0 offen sc1\ns_waitcnt vmcnt(0)")
            p(f"s_add_u32 s{SSPIN}, s{SSPIN}, 1\ns_cmp_lt_u32 s{SSPIN}, {SPIN}\ns_cbranch_scc1 {l}")
            p.put(d)
        rt = {}
        def fset(hb): return FA + 24 * (2 if hb == 15 else hb & 1)
        FO = [(0, 0), (0, 1), (0, 2), (1, 0), (1, 1), (1, 2)]; FP = {(0, 0): 0, (0, 1): 1, (1, 0): 2, (1, 1): 3, (0, 2): 4, (1, 2): 5}
        def reads(hb):
            B, e = hb >> 1, hb & 1; ops = []
            for (ks, mt) in FO:
                def ra(ks=ks, mt=mt):
                    rt[(hb, ks, mt)] = p.lds(f"ds_read_b128 {v(fset(hb)+12*ks+4*mt,4)}, {v(TR)} offset:{soff(B)+e*6144+FP[(ks,mt)]*1024}")
                ops.append(ra)
            return ops
        def mf(hb, ks, mt, nt):
            def m():
                p.wait(lg=rt[(hb, ks, 2 if hb < 14 else mt)])
                d = v(ACC + 16 * (2 * mt + nt), 16); kap = 2 * hb + ks
                p(f"{MF} {d}, {v(fset(hb)+12*ks+4*mt,4)}, {ar((kap*2+nt)*4,4)}, {'0' if kap == 0 else d}")
            return m
        self.wo = wo = {}
        def WOA(kap): return (kap - 8) * 8 if kap >= 8 else 24 + kap * 8
        def wo_rd(kap):
            def f():
                p.wait(vm=wo[2 * kap + 1], lg=p.lg - 12)
                for mt in range(2):
                    for a in range(2):
                        base = AOFF + (kap if kap < 8 else kap - 8) * 2048
                        p.lds(f"ds_read_b64_tr_b16 {ar(WOA(kap)+4*mt+2*a,2)}, {v(self.WT_+mt)} offset:{base+a*512}")
            return f
        p.wait(vm=tick[0]); p("s_barrier")
        self.run(reads(0))
        wa = self.wo_dma([(16, 22, AOFF)])
        def wb(i0, i1): return self.wo_dma([(i0, i1, AOFF + i0 * 1024)])
        y0 = self.y_dma(0)
        y1 = self.y_dma(1)
        yc0 = self.dseq(self.y_items(0)[:8]); yc0b = self.dseq(self.y_items(0)[:4]);
        def ypart(s_, a, b): return self.dseq(self.y_items(s_)[a:b])
        extra = {0: dma(2), 1: dma(3), 2: wa, 4: [wo_rd(8), wo_rd(9), wo_rd(10), lgw] + wb(0, 3), 5: wb(3, 4), 6: wb(4, 9) + [gyl], 7: wb(9, 10), 8: wb(10, 16) + [lambda: issue(PL3)],
                 10: [wo_rd(k) for k in range(8)] + [lgw] + ypart(0, 0, 2), 11: ypart(0, 2, 8) + [z1load], 12: ypart(0, 8, 13), 13: ypart(0, 13, 16)}
        gel = {}
        for hb in range(14):
            if o.get("gstamps") and hb % 2 == 0: self.stamp(21 + hb // 2)
            B = hb >> 1
            if hb & 1:
                p.wait(vm=tick[B + 1], lg=p.lg - 1); p("s_barrier")
            if hb == 11: check(PL3, 0x1ffff)
            mm = [mf(hb, ks, mt, nt) for ks in range(2) for mt in range(3) for nt in range(2)]
            rd = reads(hb + 1) + (reads(15) if hb == 13 else [])
            seq = merge(mm, rd, 0, 8 if hb == 13 else 6)
            f = list(extra.get(hb, []))
            if hb & 1 and B + 4 < 8: f = f + dma(B + 4)
            if f: seq = merge(seq, f, len(seq) // 4)
            if hb in gel: seq = merge(seq, gel[hb])
            if hb == o.get("hflag", 3): seq = seq + [late_flag]
            self.run(seq)
        VW, VRD = T, T + 1
        p(f"s_xor_b32 s{SA}, s{SWV}, 2\ns_mul_i32 s{SA}, s{SA}, 40960\nv_add_u32 {v(VW)}, s{SREG}, {v(VL16)}\nv_add_u32 {v(VRD)}, s{SA}, {v(VL16)}")
        def roff(i): return i * 1024
        def rw(ti):
            return [(lambda hq=hq: p.lds(f"ds_write_b128 {v(VW)}, {v(ACC+16*ti+8+4*hq,4)} offset:{roff(2*ti+hq)}")) for hq in range(2)]
        tiles = [1, 3, 5, 0, 2, 4]
        for n_, ti in enumerate(tiles):
            mm = [mf(hb, ks, ti >> 1, ti & 1) for hb in (14, 15) for ks in range(2)]
            f = (rw(tiles[n_ - 2]) if n_ >= 2 else [])
            self.run(merge(mm, f))
        self.stamp(8)
        yl = o.get('y0late', 0)
        self.run(merge([] if yl else self.y_read(0), rw(tiles[4]) + rw(tiles[5])) if not yl else rw(tiles[4]) + rw(tiles[5]))
        p.wait_lg_all(); p("s_barrier")
        RB = 112
        tk = {}
        for n_, ti in enumerate(tiles):
            for hq in range(2): tk[(ti, hq)] = p.lds(f"ds_read_b128 {v(RB+8*ti+4*hq,4)}, {v(VRD)} offset:{roff(2*ti+hq)}")
        if not yl: self.run(y1[:3])
        def radd(ti):
            for hq in range(2):
                p.wait(lg=tk[(ti, hq)])
                for hh in range(2): p(f"v_pk_add_f32 {v(ACC+16*ti+4*hq+2*hh,2)}, {v(ACC+16*ti+4*hq+2*hh,2)}, {v(RB+8*ti+4*hq+2*hh,2)}")
        XS = [40, 44, 56, 60]; XR = [72, 76, 88, 92]
        p(f"s_lshl_b32 s{SA}, s2, 2\ns_add_u32 s{SA}, s{SA}, s{SWV}\ns_lshl_b32 s{SA}, s{SA}, 12\ns_add_u32 s{SA}, s{SA}, {XB}\ns_xor_b32 s{SE}, s{SA}, 16384")
        for g in range(4): p(f"v_mov_b32 {v(XS[g]+3)}, s{ST_T}")
        for ti in (1, 3, 5): radd(ti)
        for i in range(12):
            src = ACC + 16 * (2 * (i >> 2) + 1) + 2 * (i & 3)
            p(f"v_cvt_pk_bf16_f32 {v(XS[i//3]+i%3)}, {v(src)}, {v(src+1)}")
            if i % 3 == 2: p.vmem(f"buffer_store_dwordx4 {v(XS[i//3],4)}, {v(VL16)}, {srd(SWS)}, s{SA} offen offset:{(i//3)*1024} sc1")
        if yl: self.run(self.y_read(0))
        for ti in (0, 2, 4): radd(ti)
        if yl: self.run([lgw] + y1[:3])
        p("s_barrier")
        self.stamp(9)

        p.c("==== phase C ====")
        YA, PA = 112, 16
        XE, GE, DE, OV, P10, PLP, TC = 186, 194, 198, 184, 185, 222, 224
        RW, RX, WA, RA = 176, 177, 180, 230
        SROW, SXO, SPB_ = SXL, SWL, SW1B
        ep = {}
        def setup():
            p = self.p; T = TC
            p(f"v_lshrrev_b32 {v(T)}, 4, {v(VL)}\nv_and_b32 {v(T+1)}, 15, {v(VL)}")
            p(f"v_lshlrev_b32 {v(T+2)}, 10, {v(T)}\nv_lshl_add_u32 {v(T+2)}, {v(T+1)}, 3, {v(T+2)}")
            p(f"v_lshlrev_b32 {v(T+3)}, 2, {v(T)}\nv_lshlrev_b32 {v(T+4)}, 3, {v(T+1)}")
            p(f"v_lshlrev_b32 {v(OV)}, 1, {v(T+2)}")
            p(f"s_lshl_b32 s{SROW}, s{STB}, 6\ns_lshl_b32 s{SA}, s{SWV}, 4\ns_add_u32 s{SROW}, s{SROW}, s{SA}")
            p(f"s_lshl_b32 s{SXO}, s{SROW}, 10\ns_lshl_b32 s{SA}, s{SCOL}, 7\ns_add_u32 s{SXO}, s{SXO}, s{SA}\nv_add_u32 {v(T+4)}, s{SA}, {v(T+4)}")
            p(f"s_lshl_b32 s{SA}, s{STB}, 12\ns_lshl_b32 s{SB_}, s{SWV}, 10\ns_add_u32 s{SB_}, s{SB_}, s{SA}\ns_add_u32 s{SB_}, s{SB_}, {PF}")
            self.poll_addr(PLP, [(SB_, 8)])
            p.atom(f"s_cmp_eq_u32 s{SWV}, 3\ns_cselect_b64 vcc, -1, 0")
            p(f"v_cndmask_b32 {v(P10)}, {v(VL16)}, {v(VOOB)}, vcc")
            p(f"s_mul_i32 s{SPB_}, s{STB}, {2*45056}\ns_mul_i32 s{SA}, s{SWV}, {22*512}\ns_add_u32 s{SPB_}, s{SPB_}, s{SA}\ns_add_u32 s{SPB_}, s{SPB_}, {PB}")
            p(f"s_add_u32 s{SA}, s{SREG}, 4096\nv_and_b32 {v(RW)}, 31, {v(VL)}\nv_lshlrev_b32 {v(RW)}, 8, {v(RW)}\nv_add_u32 {v(RW)}, s{SA}, {v(RW)}")
            p(f"v_lshrrev_b32 {v(RX)}, 5, {v(VL)}\nv_and_b32 {v(RX+1)}, 7, {v(VL)}\nv_xor_b32 {v(RX)}, {v(RX)}, {v(RX+1)}\nv_lshlrev_b32 {v(RX)}, 4, {v(RX)}")
            for i in range(4): p(f"v_xor_b32 {v(WA+i)}, {32*i}, {v(RX)}\nv_add_u32 {v(WA+i)}, {v(WA+i)}, {v(RW)}")
            p(f"v_xor_b32 {v(T+1)}, {v(T+1)}, {v(T)}\nv_lshlrev_b32 {v(T+1)}, 4, {v(T+1)}")
            p(f"v_lshlrev_b32 {v(T)}, 8, {v(T)}\ns_lshl_b32 s{SA}, s{SWV}, 12\ns_add_u32 s{SA}, s{SA}, 4096\nv_add_u32 {v(T)}, s{SA}, {v(T)}")
            p(f"v_add_u32 {v(RA)}, {v(T)}, {v(T+1)}\nv_xor_b32 {v(T+1)}, 64, {v(T+1)}\nv_add_u32 {v(RA+1)}, {v(T)}, {v(T+1)}")
            p(f"v_add_u32 {v(RA+2)}, 81920, {v(RA)}\nv_add_u32 {v(RA+3)}, 81920, {v(RA+1)}")
            p(f"s_lshr_b32 s{SLATE}, s{SC}, 1\ns_lshl_b32 s{SLATE}, s{SLATE}, 3\ns_add_u32 s{SLATE}, s{SLATE}, s{SCOL}\ns_lshl_b32 s{SLATE}, s{SLATE}, 1\ns_add_u32 s{SLATE}, s{SLATE}, s{SKH}")
            p(f"s_lshl_b32 s{SLATE}, s{SLATE}, 1\ns_add_u32 s{SLATE}, s{SLATE}, s{Q}\ns_lshl_b32 s{SLATE}, s{SLATE}, 7\ns_add_u32 s{SLATE}, s{SLATE}, {PF}")
            p(f"s_mul_i32 s{SD}, s{SC}, 45056\ns_mul_i32 s{SB_}, s{SCOL}, 5632\ns_add_u32 s{SD}, s{SD}, s{SB_}\ns_lshl_b32 s{SB_}, s{Q}, 10\ns_add_u32 s{SD}, s{SD}, s{SB_}\ns_add_u32 s{SD}, s{SD}, {PB}")
            p(f"v_lshlrev_b32 {v(BI)}, 16, {v(BI)}\nv_sub_f32 {v(178)}, 1.0, {v(OGV)}\nv_mul_f32 {v(179)}, {v(178)}, {v(BI)}")
        def eloads():
            T = TC
            for gi in range(4):
                p(f"s_add_u32 s{SA}, s{SXO}, {gi*4096}")
                p.vmem(f"buffer_load_dwordx2 {v(XE+2*gi,2)}, {v(T+2)}, {srd(SX)}, s{SA} offen")
            p(f"s_lshl_b32 s{SA}, s{SROW}, 2\ns_add_u32 s{SA}, s{SA}, {GATE}")
            for gi in range(4): p.vmem(f"buffer_load_dword {v(GE+gi)}, {v(T+3)}, {srd(SWS)}, s{SA} offen offset:{gi*16} sc1")
            ep['t'] = p.vmem(f"global_load_dwordx2 {v(DE,2)}, {v(T+4)}, {sp(PDSK)}")
        T4 = [(0, 0), (1, 0), (1, 1), (0, 1)]
        def ym(s):
            ops = []
            for ks in range(4):
                for (mt, nt) in T4:
                    def m(ks=ks, mt=mt, nt=nt):
                        p.wait(lg=self.yr[(s, ks)])
                        d = v(YA + 16 * (2 * mt + nt), 16); b = self.YB[s] + 16 * ks
                        p(f"{MF} {d}, {ar(b+4*mt,4)}, {ar(b+8+4*nt,4)}, {'0' if (s, ks) == (0, 0) else d}")
                    ops.append(m)
            return ops
        pt = {}
        def ploads():
            ops = []
            for nt in range(2):
                for kap in range(11):
                    def f(kap=kap, nt=nt):
                        if kap % 4 == 0: p(f"s_add_u32 s{SB_}, s{SPB_}, {nt*45056+kap*1024}")
                        pt[(kap, nt)] = p.vmem(f"buffer_load_dwordx4 {v(PA+(kap*2+nt)*4,4)}, {v(P10 if kap == 10 else VL16)}, {srd(SWS)}, s{SB_} offen offset:{(kap%4)*1024} sc1")
                    ops.append(f)
            return ops
        xt = {}
        def xload():
            for g in range(4): xt['t'] = p.vmem(f"buffer_load_dwordx4 {v(XR[g],4)}, {v(VL16)}, {srd(SWS)}, s{SE} offen offset:{g*1024} sc1")
        def xcheck():
            l = p.label("xp"); d = p.label("xd")
            p.wait(vm=xt['t'])
            p(f"s_mov_b32 s{SSPIN}, 0")
            p.put(l)
            p(f"v_xor_b32 {v(32)}, s{ST_T}, {v(XR[0]+3)}\nv_xor_b32 {v(33)}, s{ST_T}, {v(XR[1]+3)}\nv_xor_b32 {v(34)}, s{ST_T}, {v(XR[2]+3)}\nv_xor_b32 {v(35)}, s{ST_T}, {v(XR[3]+3)}")
            p(f"v_or3_b32 {v(32)}, {v(32)}, {v(33)}, {v(34)}\nv_or_b32 {v(32)}, {v(32)}, {v(35)}")
            p(f"v_cmp_ne_u32 vcc, 0, {v(32)}\ns_cmp_eq_u64 vcc, 0\ns_cbranch_scc1 {d}")
            for g in range(4): p(f"buffer_load_dwordx4 {v(XR[g],4)}, {v(VL16)}, {srd(SWS)}, s{SE} offen offset:{g*1024} sc1")
            p("s_waitcnt vmcnt(0)")
            p(f"s_add_u32 s{SSPIN}, s{SSPIN}, 1\ns_cmp_lt_u32 s{SSPIN}, {SPIN}\ns_cbranch_scc1 {l}")
            p.put(d)
        PK = [24, 28, 104]
        def pepi(mt):
            p = self.p
            for i in range(4 * mt, 4 * mt + 4): self.unpack(32 + 2 * (i & 3), XR[i // 3] + i % 3)
            for i in range(4):
                a = ACC + 32 * mt + 2 * i
                p(f"v_pk_add_f32 {v(a,2)}, {v(a,2)}, {v(32+2*i,2)}")
            for i in range(4):
                a = ACC + 32 * mt + 2 * i
                p(f"v_pk_fma_f32 {v(a,2)}, {v(a,2)}, {v(178,2)}, {v(178,2)} op_sel:[0,0,1] op_sel_hi:[1,0,1]")
            for i in range(4):
                a = ACC + 32 * mt + 2 * i
                p(f"v_pk_mul_f32 {v(a,2)}, {v(a,2)}, {v(self.ZUP[4*mt+i],2)}")
            for i in range(4):
                a = ACC + 32 * mt + 2 * i
                p(f"v_cvt_pk_bf16_f32 {v(PK[mt]+i)}, {v(a)}, {v(a+1)}")
        def pflag():
            p.wait(vm=ep['p']); self.flag(SLATE, 220)
        su = self.cap(setup)
        y2, y3, pl_ = self.y_dma(2), self.y_dma(3), ploads()
        sent = 1
        zg = [lambda: p.wait(vm=z1t['t'])] + self.cap(z1gelu)
        c1_ = o.get("c1", 9); c2_ = o.get("c2", 16)
        nx = y1[3:] + y2
        self.run(merge(zg, nx[:c1_]))
        xload()
        self.run(merge(merge(ym(0), su), nx[c1_:c2_]))
        xcheck()
        self.stamp(10)
        pepi(0); p.vmem(f"buffer_store_dwordx4 {v(PK[0],4)}, {v(VL16)}, {srd(SWS)}, s{SD} offen sc1")
        pepi(1); p.vmem(f"buffer_store_dwordx4 {v(PK[1],4)}, {v(VL16)}, {srd(SWS)}, s{SD} offen offset:2048 sc1")
        p(f"s_add_u32 s{SD}, s{SD}, 4096")
        pepi(2); ep['p'] = p.vmem(f"buffer_store_dwordx4 {v(PK[2],4)}, {v(PV)}, {srd(SWS)}, s{SD} offen sc1")
        c3_ = max(c2_, 18)
        self.run(nx[c2_:c3_])
        self.run(merge(self.y_read(1), nx[c3_:c3_ + 4]))
        y3a = o.get('y3a', 3)
        self.run(merge(ym(1), nx[c3_ + 4:] + [lgw] + y3[:y3a]))
        self.stamp(11)
        self.run(y3[y3a:9])
        self.run(merge(self.y_read(2), y3[9:13]))
        self.run(merge(ym(2), y3[13:] + [eloads]))
        self.stamp(12)
        pa_ = o.get("pa", 4)
        self.run(merge(self.y_read(3), pl_[:pa_]))
        self.run(merge(ym(3), pl_[pa_:pa_ + 8]))
        prest = pl_[pa_ + 8:]
        self.stamp(13)
        def pcheck(nt):
            l = p.label("sp"); d = p.label("sd")
            p.wait(vm=pt[(10, nt)])
            p(f"s_mov_b32 s{SSPIN}, 0")
            p.put(l)
            r = [PA + (kap * 2 + nt) * 4 for kap in range(11)]
            p(f"v_max3_u32 {v(178)}, {v(r[0])}, {v(r[1])}, {v(r[2])}")
            for k in range(3, 11, 2): p(f"v_max3_u32 {v(178)}, {v(178)}, {v(r[k])}, {v(r[k+1])}")
            p(f"v_cmp_eq_u32 vcc, -1, {v(178)}\ns_cmp_eq_u64 vcc, 0\ns_cbranch_scc1 {d}")
            for kap in range(11):
                if kap % 4 == 0: p(f"s_add_u32 s{SF}, s{SPB_}, {nt*45056+kap*1024}")
                p(f"buffer_load_dwordx4 {v(PA+(kap*2+nt)*4,4)}, {v(P10 if kap == 10 else VL16)}, {srd(SWS)}, s{SF} offen offset:{(kap%4)*1024} sc1")
            p("s_waitcnt vmcnt(0)")
            p(f"s_add_u32 s{SSPIN}, s{SSPIN}, 1\ns_cmp_lt_u32 s{SSPIN}, {SPIN}\ns_cbranch_scc1 {l}")
            p.put(d)
        def redw(tiles):
            return [(lambda mt=mt, nt=nt, i=i: p.lds(f"ds_write_b128 {v(WA+i)}, {v(YA+16*(2*mt+nt)+4*i,4)} offset:{nt*8192+mt*128}"))
                    for (mt, nt) in tiles for i in range(4)]
        def bm(kap, mt, nt):
            def m():
                p.wait(vm=pt[(kap, nt)])
                d = v(YA + 16 * (2 * mt + nt), 16)
                p(f"{MF} {d}, {ar(WOA(kap)+4*mt,4)}, {v(PA+(kap*2+nt)*4,4)}, {d}")
            return m
        def yscale(mt, nt):
            return [(lambda i=i: p(f"v_pk_mul_f32 {v(YA+16*(2*mt+nt)+2*i,2)}, {v(YA+16*(2*mt+nt)+2*i,2)}, {v(self.GY+2*nt,2)} op_sel_hi:[1,0]")) for i in range(8)]
        DU = 104; XP = [4, 8, 12, 108]
        def xpart():
            p = self.p
            self.unpack(DU, DE); self.unpack(DU + 2, DE + 1)
            for gi in range(4):
                x = XP[gi]
                self.unpack(x, XE + 2 * gi); self.unpack(x + 2, XE + 2 * gi + 1)
                for k in range(4): p(f"v_mul_f32 {v(x+k)}, {v(x+k)}, {v(DU+k)}")
                for k in range(4): p(f"v_mul_f32 {v(x+k)}, {v(x+k)}, {v(GE+gi)}")
        def yscale1(mt, nt):
            return [(lambda i=i: p(f"v_mul_f32 {v(YA+16*(2*mt+nt)+i)}, {v(YA+16*(2*mt+nt)+i)}, {v(self.GY+2*nt)}")) for i in range(16)]
        self.run(merge(yscale(0, 0) + yscale(1, 0), prest[:2]))
        pcheck(0)
        mm0 = [bm(kap, mt, 0) for kap in range(11) for mt in range(2)]
        self.run(merge(merge(mm0, prest[2:], 0, 12), yscale1(1, 1) + yscale1(0, 1) + [lambda: p.wait(vm=ep['t'])] + self.cap(xpart)))
        if sent: pcheck(1)
        mm1 = [bm(kap, 0, 1) for kap in range(11)]
        mm2 = [bm(kap, 1, 1) for kap in range(11)]
        self.run(merge(mm1, redw([(0, 0), (1, 0)]), 2))
        self.run(merge(mm2, redw([(0, 1)]), 4))
        self.run(redw([(1, 1)]))
        p.wait_lg_all(); p("s_barrier")
        self.stamp(14)
        tk = {}
        def R(gi, s): return 16 + 16 * gi + 4 * s
        for gi in range(4):
            p.wait(lg=p.lg - 12)
            for s_ in range(4):
                tk[gi] = p.lds(f"ds_read_b128 {v(R(gi,s_),4)}, {v(RA+2*(s_>>1)+(gi&1))} offset:{(s_&1)*40960+gi*1024}")
        p(f"s_lshl_b32 s{SXO}, s{SXO}, 1")
        for gi in range(4):
            y = R(gi, 0)
            p.wait(lg=tk[gi])
            for hh in (0, 2):
                p(f"v_pk_add_f32 {v(y+hh,2)}, {v(y+hh,2)}, {v(y+4+hh,2)}\nv_pk_add_f32 {v(y+8+hh,2)}, {v(y+8+hh,2)}, {v(y+12+hh,2)}")
            for hh in (0, 2): p(f"v_pk_add_f32 {v(y+hh,2)}, {v(y+hh,2)}, {v(XP[gi]+hh,2)}")
            for hh in (0, 2): p(f"v_pk_add_f32 {v(y+hh,2)}, {v(y+hh,2)}, {v(y+8+hh,2)}")
            p(f"s_add_u32 s{SA}, s{SXO}, {gi*8192}")
            p.vmem(f"buffer_store_dwordx4 {v(y,4)}, {v(OV)}, {srd(SOUT)}, s{SA} offen{' ' + o['outmod'] if 'outmod' in o else ''}")
        ne = p.label("ne")
        p(f"s_lshl_b32 s{SA}, s{STB}, 3\ns_add_u32 s{SA}, s{SA}, s{SCOL}\ns_lshl_b32 s{SA}, s{SA}, 2\ns_add_u32 s{SA}, s{SA}, s{SWV}")
        p(f"s_cmp_eq_u32 s{SA}, {255*4}\ns_cbranch_scc0 {ne}")
        p(f"s_mov_b32 s{SA}, {EPOCH}")
        self.flag(SA, 220)
        p.put(ne)
        if o.get("stamps"):
            self.stamp(15)
            p(f"s_lshl_b32 s{SA}, s2, 2\ns_add_u32 s{SA}, s{SA}, s{SWV}\ns_lshl_b32 s{SA}, s{SA}, 8\ns_add_u32 s{SA}, s{SA}, {DBG}")
            p(f"v_lshlrev_b32 v254, 2, {v(VL)}")
            p.vmem(f"buffer_store_dword v255, v254, {srd(SWS)}, s{SA} offen")
            if o.get("dbgmax"):
                ty = o["dbgmax"]
                nd = p.label("nd")
                if ty > 1: p(f"s_cmp_{'ge' if ty == 2 else 'lt'}_u32 s2, 128\ns_cbranch_scc1 {nd}")
                p(f"s_load_dwordx2 s[{SX}:{SX+1}], s[0:1], 128\ns_waitcnt lgkmcnt(0)\ns_mov_b32 s{SX+2}, 64")
                p(f"v_readlane_b32 s{SA}, v255, 17\nv_readlane_b32 s{SB_}, v255, 20\ns_not_b32 s{SA}, s{SA}\ns_nop 3\nv_writelane_b32 v255, s{SA}, 0\nv_writelane_b32 v255, s{SB_}, 6")
                p.vmem(f"buffer_atomic_umax v255, v254, {srd(SX)}, 0 offen")
                p.put(nd)
        if "spin_from" in o:
            self.stamp(15)
            sl = p.label("spin")
            p(f"v_readlane_b32 s{SA}, v254, 0")
            p.put(sl)
            p(f"s_memrealtime s[{SSTMP}:{SSTMP+1}]\ns_waitcnt lgkmcnt(0)\ns_sub_u32 s{SB_}, s{SSTMP}, s{SA}\ns_cmp_lt_u32 s{SB_}, 3000\ns_cbranch_scc1 {sl}")
        p.put(self.END)
        p("s_endpgm")

    def build(self):
        self.prologue()
        self.p.vm_done = -1; self.p.lg_done = -1
        self.phase_u()
        self.p.vm_done = -1; self.p.lg_done = -1
        self.p("s_nop 15")
        self.phase_z()
        self.phase_g()
        lines, added = hazard_pass([x for l in self.p.L for x in l.split(chr(10))])
        hdr = open("gated_mix__ssm_conv_s5__mixer_gmlp__prompt.s.ref").read().split("; Override")[0]
        s = hdr + "; @launch grid=(256,1,1) block=(256,1,1) lds=163840\n"
        s += '.amdgcn_target "amdgcn-amd-amdhsa--gfx950"\n.text\n'
        s += f".globl {NAME}\n.p2align 8\n.type {NAME},@function\n{NAME}:\n"
        s += "\n".join((l if l.endswith(":") else "    " + l) for l in lines) + "\n"
        s += f""".section .rodata,"a"
.p2align 6
.amdhsa_kernel {NAME}
  .amdhsa_next_free_vgpr 512
  .amdhsa_next_free_sgpr 102
  .amdhsa_accum_offset 256
  .amdhsa_group_segment_fixed_size 0
  .amdhsa_kernarg_size 144
  .amdhsa_user_sgpr_count 2
  .amdhsa_user_sgpr_kernarg_segment_ptr 1
  .amdhsa_system_sgpr_workgroup_id_x 1
  .amdhsa_float_denorm_mode_32 3
.end_amdhsa_kernel
"""
        return s, added

if __name__ == "__main__":
    out = sys.argv[1]
    opt = dict(outmod="sc1", npro=3, npro_u=3, c1=16, c2=26, y3a=9, touch=2, zs0=19, zs1=20, zs2=21, zmode=2, pf=5, tlb=2, map=1)
    for a in sys.argv[2:]:
        k, _, val = a.partition("=")
        try: opt[k] = int(val) if val else 1
        except ValueError: opt[k] = val
    s, added = G(opt).build()
    open(out, "w").write(s)
    print("wrote", out, "nops added", added, "lines", s.count("\n"))
```

```python
import sys, math, struct
from core import *

NAME = "gated_mix__ssm_conv_s5__mixer_gmlp__prompt_kernel"
EPOCH = 0; GATE = 0x4000
ST = 0x10000; EG = 0x50000; DBG = 0x80000
Z2N = 0x100000; Z1 = 0x400000; PB = 0x700000; HB = 0xA00000
ZF = 0xE00000; HF = 0xE10000; PF = 0xE20000; Z1F = 0xE40000; ZF2 = 0xE50000; XB = 0x1000000; WS_END = 0x1400000
OOB = 0x80000000
SPIN = 200000
SX, SW1, SWSP, SWS, SCRE, SCIM, SWOUT, SOUT = 4, 8, 12, 16, 20, 24, 28, 32
PLRE, PLIM, PLDT, PDSK, PBSP, PGW, PBRE, PBIM, PWIN = 36, 38, 40, 42, 44, 46, 48, 50, 52
ST_T = 100
SWV, SRB, SCOL, STB = 56, 57, 58, 59
SA, SB_, SC, SD = 60, 61, 62, 63
SSTMP = 64
SDO, SWB, SPB0, SPST, SPSP = 68, 69, 70, 71, 72
SXB, SW1B, SXL, SWL = 73, 74, 75, 76
SPC = 77
SCB, SHB = 78, 79
SK = 80
SREG = 96
SE, SF = 97, 98
SSPIN = 99
SLATE = 101
SJ = 3
SGB = 95
SPFP = 70
SPFE = 79
SKH = 81
SGL = 77
SZI = 72
SPB = 90
def srd(b): return f"s[{b}:{b+3}]"
def v(a, n=1): return f"v{a}" if n == 1 else f"v[{a}:{a+n-1}]"
def ar(a, n=1): return f"a{a}" if n == 1 else f"a[{a}:{a+n-1}]"
def sp(a): return f"s[{a}:{a+1}]"
VL, VL16, VOOB = 1, 2, 3
LOG2E = 1.4426950408889634
def f2u(x): return struct.unpack("<I", struct.pack("<f", x))[0]
MF = "v_mfma_f32_32x32x16_bf16"

class G:
    def __init__(self, opt):
        self.o = opt
        self.p = Prog()

    def stamp(self, k):
        if self.o.get("spin_from") == k:
            p = self.p
            p(f"s_memrealtime s[{SSTMP}:{SSTMP+1}]"); p.wait_lg_all()
            p(f"v_mov_b32 v254, s{SSTMP}")
        if self.o.get("stamps"):
            p = self.p
            p(f"s_memrealtime s[{SSTMP}:{SSTMP+1}]\ns_memtime s[{SSTMP+2}:{SSTMP+3}]"); p.wait_lg_all()
            p(f"v_writelane_b32 v255, s{SSTMP}, {k}\nv_writelane_b32 v255, s{SSTMP+2}, {k+32}")
    def cap(self, fn):
        sub = Prog(); save = self.p; self.p = sub
        fn()
        self.p = save
        assert sub.vm == 0 and sub.lg == 0
        return [(lambda l=l: self.p(l)) for l in sub.L]
    def run(self, ops):
        for op in ops: op()
    def dseq(self, items):
        p = self.p
        def setup(it):
            if it[0] is not None: p(f"s_add_u32 m0, s{it[0][0]}, {it[0][1]}")
            if it[1] is not None: p(f"s_add_u32 s{SDO}, s{it[1][0]}, {it[1][1]}")
        ops = [lambda: setup(items[0])]
        for i, it in enumerate(items):
            def f(i=i, it=it):
                t = p.vmem(it[2])
                if it[3]: it[3](t)
                if i + 1 < len(items) and items[i + 1][:2] != it[:2]: setup(items[i + 1])
            ops.append(f)
        return ops
    def poll_addr(self, vt, groups):
        p = self.p; n0 = 0
        p(f"v_mov_b32 {v(vt)}, {v(VOOB)}")
        for (sr, n) in groups:
            if n == 1: p(f"v_writelane_b32 {v(vt)}, s{sr}, {n0}")
            else:
                p(f"s_sub_u32 s{sr}, s{sr}, {n0*128}\nv_lshl_add_u32 {v(vt+1)}, {v(VL)}, 7, s{sr}")
                m = ((1 << n) - 1) << n0
                p(f"s_mov_b32 vcc_lo, {m & 0xffffffff}\ns_mov_b32 vcc_hi, {m >> 32}\nv_cndmask_b32 {v(vt)}, {v(vt)}, {v(vt+1)}, vcc")
            n0 += n
        return n0
    def poll(self, vt, n):
        p = self.p
        l = p.label("poll"); d = p.label("pd")
        p(f"s_mov_b32 s{SSPIN}, 0")
        p.put(l)
        p.vmem(f"buffer_load_dword {v(vt+1)}, {v(vt)}, {srd(SWS)}, 0 offen sc1")
        p.wait_vm_all()
        p(f"v_cmp_ne_u32 vcc, s{ST_T}, {v(vt+1)}")
        if n <= 32: p(f"s_and_b32 s{SF}, vcc_lo, {(1<<n)-1}")
        else: p(f"s_and_b32 vcc_hi, vcc_hi, {(1<<(n-32))-1}\ns_or_b32 s{SF}, vcc_lo, vcc_hi")
        p(f"s_cbranch_scc0 {d}")
        p(f"s_add_u32 s{SSPIN}, s{SSPIN}, 1\ns_cmp_lt_u32 s{SSPIN}, {SPIN}\ns_cbranch_scc1 {l}")
        p.put(d)
    def flag_prep(self, vt):
        p = self.p
        p(f"v_mov_b32 {v(vt)}, s{ST_T}\nv_mov_b32 {v(vt+1)}, {v(VOOB)}\nv_writelane_b32 {v(vt+1)}, 0, 0")
    def flag(self, off_sreg, vt):
        self.p.vmem(f"buffer_store_dword {v(vt)}, {v(vt+1)}, {srd(SWS)}, s{off_sreg} offen sc1")
    def xhalf_sum(self, a, t):
        self.p(f"v_mov_b32 {v(t)}, {v(a)}\nv_permlane32_swap_b32 {v(a)}, {v(t)}\nv_add_f32 {v(a)}, {v(a)}, {v(t)}")
    def rnd(self, d, s):
        self.p(f"v_cvt_pk_bf16_f32 {v(d)}, {v(s)}, {v(s)}\nv_lshlrev_b32 {v(d)}, 16, {v(d)}")
    def unpack(self, d, s):
        self.p(f"v_and_b32 {v(d+1)}, 0xffff0000, {v(s)}\nv_lshlrev_b32 {v(d)}, 16, {v(s)}")
    def plain_read_addr(self, dst4, base_sreg, t):
        p = self.p
        p(f"v_and_b32 {v(t)}, 31, {v(VL)}\nv_lshlrev_b32 {v(t)}, 7, {v(t)}")
        if base_sreg is not None: p(f"v_add_u32 {v(t)}, s{base_sreg}, {v(t)}")
        p(f"v_bfe_u32 {v(t+1)}, {v(VL)}, 1, 3\nv_lshrrev_b32 {v(dst4)}, 5, {v(VL)}\nv_xor_b32 {v(t+1)}, {v(t+1)}, {v(dst4)}")
        p(f"v_lshlrev_b32 {v(t+1)}, 4, {v(t+1)}")
        for ks in range(4):
            p(f"v_xor_b32 {v(dst4+ks)}, {32*ks}, {v(t+1)}\nv_add_u32 {v(dst4+ks)}, {v(dst4+ks)}, {v(t)}")
    def plain_dma_addr(self, dst4, rowbytes, t, rowstep=8):
        p = self.p
        p(f"v_lshrrev_b32 {v(t)}, 3, {v(VL)}\nv_mul_u32_u24 {v(t)}, {rowbytes}, {v(t)}")
        self.plain_dma_addr2(dst4, t, t + 1, rowstep * rowbytes)
    def plain_dma_addr2(self, dst4, vrow, t, step):
        p = self.p
        p(f"v_and_b32 {v(t)}, 7, {v(VL)}\nv_lshrrev_b32 {v(dst4)}, 4, {v(VL)}\nv_xor_b32 {v(t)}, {v(t)}, {v(dst4)}\nv_lshlrev_b32 {v(t)}, 4, {v(t)}")
        p(f"v_add_u32 {v(dst4)}, {v(t)}, {v(vrow)}")
        p(f"v_xor_b32 {v(t)}, 64, {v(t)}\nv_add_u32 {v(dst4+1)}, {v(t)}, {v(vrow)}")
        p(f"v_add_u32 {v(dst4+2)}, {2*(step-1024)}, {v(dst4)}\nv_add_u32 {v(dst4+3)}, {3*(step-1024)}, {v(dst4+1)}\nv_add_u32 {v(dst4+1)}, {step-1024}, {v(dst4+1)}")
    def panel_tr_addr(self, dst2, base_sreg, t, perm):
        p = self.p
        p(f"v_lshrrev_b32 {v(t)}, 5, {v(VL)}\nv_lshlrev_b32 {v(t)}, 10, {v(t)}")
        p(f"v_bfe_u32 {v(t+1)}, {v(VL)}, 2, 2\nv_lshl_add_u32 {v(t)}, {v(t+1)}, 7, {v(t)}")
        p(f"v_bfe_u32 {v(t+1)}, {v(VL)}, 4, 1\nv_lshl_add_u32 {v(t)}, {v(t+1)}, 5, {v(t)}")
        if perm:
            p(f"v_and_b32 {v(t+1)}, 1, {v(VL)}\nv_lshl_add_u32 {v(t)}, {v(t+1)}, 4, {v(t)}")
            p(f"v_bfe_u32 {v(t+1)}, {v(VL)}, 1, 1\nv_lshl_add_u32 {v(t)}, {v(t+1)}, 3, {v(t)}")
        else:
            p(f"v_and_b32 {v(t+1)}, 3, {v(VL)}\nv_lshl_add_u32 {v(t)}, {v(t+1)}, 3, {v(t)}")
        p(f"v_bfe_u32 {v(t+1)}, {v(VL)}, 3, 1\nv_lshlrev_b32 {v(t+1)}, 6, {v(t+1)}")
        if base_sreg is not None: p(f"v_add_u32 {v(t)}, s{base_sreg}, {v(t)}")
        p(f"v_add_u32 {v(dst2)}, {v(t)}, {v(t+1)}\nv_xor_b32 {v(t+1)}, 64, {v(t+1)}\nv_add_u32 {v(dst2+1)}, {v(t)}, {v(t+1)}")
    def unit_tr_addr(self, dst2, base_sreg, t, perm, flip_sreg=None):
        p = self.p
        p(f"v_bfe_u32 {v(t)}, {v(VL)}, 4, 1")
        if flip_sreg is not None: p(f"v_xor_b32 {v(t)}, s{flip_sreg}, {v(t)}")
        p(f"v_lshlrev_b32 {v(t)}, 1, {v(t)}")
        p(f"v_bfe_u32 {v(t+1)}, {v(VL)}, {0 if perm else 1}, 1\nv_or_b32 {v(t)}, {v(t)}, {v(t+1)}")
        p(f"v_lshrrev_b32 {v(t+1)}, 5, {v(VL)}\nv_lshlrev_b32 {v(t+1)}, 1, {v(t+1)}\nv_xor_b32 {v(t+1)}, {v(t+1)}, {v(t)}")
        p(f"v_lshlrev_b32 {v(t)}, 9, {v(t)}")
        p(f"v_bfe_u32 {v(t+2)}, {v(VL)}, 2, 2\nv_lshl_add_u32 {v(t)}, {v(t+2)}, 4, {v(t)}")
        p(f"v_bfe_u32 {v(t+2)}, {v(VL)}, {1 if perm else 0}, 1\nv_lshl_add_u32 {v(t)}, {v(t+2)}, 3, {v(t)}")
        if base_sreg is not None: p(f"v_add_u32 {v(t)}, s{base_sreg}, {v(t)}")
        p(f"v_lshl_add_u32 {v(dst2)}, {v(t+1)}, 6, {v(t)}")
        p(f"v_xor_b32 {v(t+1)}, 1, {v(t+1)}\nv_lshl_add_u32 {v(dst2+1)}, {v(t+1)}, 6, {v(t)}")

    def gemm_loop(self, nslot, reads, mfmas, dma, tick, rfront, npro, extra, valu=None):
        p = self.p
        p.wait(vm=tick[0]); p("s_barrier")
        self.stamp(20)
        self.run(reads(0))
        d = []
        for st in range(npro, nslot): d += dma(st)
        q = (len(d) + 2) // 3
        pend = [d[i * q:(i + 1) * q] for i in range(3)]
        for n in range(32):
            rd = []
            if n + 1 < 32:
                if (n + 1) % 4 == 0:
                    st = (n + 1) // 4
                    p.wait(vm=tick[st], lg=p.lg - 1); p("s_barrier")
                    if self.o.get("astamps"): self.stamp(20 + st)
                    d = dma(st - 1 + nslot) if st - 1 + nslot < 8 else extra.get(st, lambda: [])()
                    q = (len(d) + 3) // 4
                    pend = [d[i * q:(i + 1) * q] for i in range(4)]
                rd = reads(n + 1)
            seq = merge(mfmas(n), rd, 0, rfront)
            if pend: seq = merge(seq, pend.pop(0), len(seq) // 2)
            if valu and n in valu: seq = merge(seq, valu[n])
            self.run(seq)

    def gate(self, GX, GW, GU, GS, GT):
        p = self.p
        for i in range(4):
            for r in range(4):
                p(f"v_dot2_f32_bf16 {v(GS+r)}, {v(GX+4*r+i)}, {v(GW+i)}, {'0' if i == 0 else v(GS+r)}")
        p("s_nop 2")
        for mod in ["quad_perm:[1,0,3,2]", "quad_perm:[2,3,0,1]", "row_half_mirror", "row_mirror"]:
            for r in range(4): p(f"v_add_f32_dpp {v(GS+r)}, {v(GS+r)}, {v(GS+r)} {mod} row_mask:0xf bank_mask:0xf")
        for sw in ["v_permlane16_swap_b32", "v_permlane32_swap_b32"]:
            for r in range(4): p(f"v_mov_b32 {v(GT+r)}, {v(GS+r)}")
            for r in range(4): p(f"{sw} {v(GS+r)}, {v(GT+r)}")
            for r in range(4): p(f"v_add_f32 {v(GS+r)}, {v(GS+r)}, {v(GT+r)}")
        for r in range(4): p(f"v_mul_f32 {v(GS+r)}, {f2u(-LOG2E)}, {v(GS+r)}")
        for r in range(4): p(f"v_exp_f32 {v(GS+r)}, {v(GS+r)}")
        for r in range(4): p(f"v_add_f32 {v(GS+r)}, 1.0, {v(GS+r)}")
        for r in range(4): p(f"v_rcp_f32 {v(GS+r)}, {v(GS+r)}")
        p(f"v_mov_b32 {v(GT)}, {v(VOOB)}\nv_writelane_b32 {v(GT)}, 0, 0")

    def w_dma_addr(self, dst3, t, colbase):
        p = self.p
        for i in range(3):
            p(f"v_add_u32 {v(t)}, {64*i}, {v(VL)}\nv_mul_u32_u24 {v(t+1)}, 171, {v(t)}\nv_lshrrev_b32 {v(t+1)}, 11, {v(t+1)}")
            p(f"v_mul_u32_u24 {v(t+2)}, 12, {v(t+1)}\nv_sub_u32 {v(t)}, {v(t)}, {v(t+2)}\nv_cmp_eq_u32 vcc, 11, {v(t)}")
            p(f"v_mul_u32_u24 {v(t+1)}, 2752, {v(t+1)}\nv_lshl_add_u32 {v(t)}, {v(t)}, 4, {v(t+1)}")
            if colbase - 1024 * i: p(f"v_add_u32 {v(t)}, {colbase-1024*i}, {v(t)}")
            p(f"v_cndmask_b32 {v(dst3+i)}, {v(t)}, {v(VOOB)}, vcc")
    def w_tr_addr(self, dst, base, t):
        p = self.p
        p(f"v_lshrrev_b32 {v(t)}, 5, {v(VL)}\nv_bfe_u32 {v(t+1)}, {v(VL)}, 2, 2\nv_lshl_add_u32 {v(t)}, {v(t)}, 3, {v(t+1)}\nv_mul_u32_u24 {v(t)}, 192, {v(t)}")
        p(f"v_bfe_u32 {v(t+1)}, {v(VL)}, 4, 1\nv_lshl_add_u32 {v(t)}, {v(t+1)}, 5, {v(t)}")
        p(f"v_and_b32 {v(t+1)}, 1, {v(VL)}\nv_lshl_add_u32 {v(t)}, {v(t+1)}, 4, {v(t)}")
        p(f"v_bfe_u32 {v(t+1)}, {v(VL)}, 1, 1\nv_lshl_add_u32 {v(t)}, {v(t+1)}, 3, {v(t)}")
        p(f"v_add_u32 {v(dst)}, {base}, {v(t)}")
    def valid_masks(self):
        MA, MB = SK + 2, SK + 4
        self.p.atom(f"s_cmp_lt_u32 s{SCOL}, 7\ns_mov_b32 s{MA}, -1\ns_cselect_b32 s{MA+1}, -1, 0\ns_cselect_b32 s{MB}, -1, 0\ns_mov_b32 s{MB+1}, 0\n"
                    f"s_mov_b32 s{SK+6}, {f2u(1/72)}\ns_cselect_b32 s{SK+6}, {f2u(1/88)}, s{SK+6}")
        c1 = -2 * LOG2E * 0.7978845608028654
        self.p(f"s_mov_b32 s{SK}, {f2u(c1*0.044715)}\nv_mov_b32 {v(self.VC0)}, {f2u(c1)}")

    def gelu_pair(self, a, t, out_packed=None):
        p = self.p
        p(f"v_pk_mul_f32 {v(t,2)}, {v(a,2)}, {v(a,2)}")
        p(f"v_pk_fma_f32 {v(t,2)}, {v(t,2)}, {sp(SK)}, {v(self.VC0,2)} op_sel_hi:[1,0,0]")
        p(f"v_pk_mul_f32 {v(t,2)}, {v(t,2)}, {v(a,2)}")
        p(f"v_exp_f32 {v(t)}, {v(t)}\nv_exp_f32 {v(t+1)}, {v(t+1)}")
        p(f"v_pk_add_f32 {v(t,2)}, {v(t,2)}, 1.0 op_sel_hi:[1,0]")
        p(f"v_rcp_f32 {v(t)}, {v(t)}\nv_rcp_f32 {v(t+1)}, {v(t+1)}")
        if out_packed is not None:
            p(f"v_pk_mul_f32 {v(t,2)}, {v(t,2)}, {v(a,2)}")
            p(f"v_cvt_pk_bf16_f32 {v(out_packed)}, {v(t)}, {v(t+1)}")
        else:
            p(f"v_pk_mul_f32 {v(a,2)}, {v(t,2)}, {v(a,2)}")
    def gelu_many(self, pairs, temps, outs=None):
        p = self.p; ng = len(temps)
        for g0 in range(0, len(pairs), ng):
            streams = []
            for k, i in enumerate(range(g0, min(g0 + ng, len(pairs)))):
                sub = Prog(); save = self.p; self.p = sub
                self.gelu_pair(pairs[i], temps[k], None if outs is None else outs[i])
                self.p = save
                streams.append(sub.L)
            for j in range(len(streams[0])):
                for s in streams: p(s[j])

    VWD, VWR, VWA, VC0 = 240, 244, 248, 252
    def wsp_setup(self, t):
        p = self.p
        self.plain_dma_addr(self.VWD, 4096, t)
        p(f"s_lshl_b32 s{SA}, s{SKH}, 12")
        self.plain_read_addr(self.VWR, SA, t)
        p(f"s_lshr_b32 s{SWB}, s{STB}, 1\ns_lshl_b32 s{SWB}, s{SWB}, 19\ns_and_b32 s{SB_}, s{SWV}, 1\ns_lshl_b32 s{SB_}, s{SB_}, 18\ns_add_u32 s{SWB}, s{SWB}, s{SB_}")
        p(f"s_lshl_b32 s{SB_}, s{SKH}, 11\ns_add_u32 s{SWB}, s{SWB}, s{SB_}\ns_lshr_b32 s{SB_}, s{SWV}, 1\ns_lshl_b32 s{SB_}, s{SB_}, 10\ns_add_u32 s{SWB}, s{SWB}, s{SB_}")
        self.wsp_t = {}
    def piece(self, st): return (SPB + st % 5, 0)
    def wsp_dma(self, st):
        if self.o.get("x_nowsp") and st >= 2:
            self.wsp_t[st] = -1
            return [lambda: None] * 9
        items = []; sr, im = self.piece(st)
        for hh in range(2):
            for i in range(4):
                def cb(t): self.wsp_t[st] = t
                items.append(((sr, im + hh * 4096) if i == 0 else None, (SWB, st * 128 + hh * 131072) if i == 0 else None,
                              f"buffer_load_dwordx4 {v(self.VWD+i)}, {srd(SWSP)}, s{SDO} offen offset:{i*1024} {self.o.get('wmod', '')} lds", cb))
        return self.dseq(items)
    def wsp_read(self, st):
        if self.o.get("x_nord"): return [lambda: None]
        p = self.p; sr, im = self.piece(st)
        def pre():
            for ks in range(4): p(f"v_add_u32 {v(self.VWA+ks)}, s{sr}, {v(self.VWR+ks)}")
            p.wait(vm=self.wsp_t[st], lg=p.lg - 8)
        ops = [pre]
        for nt in range(2):
            for ks in range(4):
                def f(ks=ks, nt=nt):
                    p.lds(f"ds_read_b128 {ar(((st*4+ks)*2+nt)*4,4)}, {v(self.VWA+ks)} offset:{im}")
                    if nt == 0: p(f"v_xor_b32 {v(self.VWA+ks)}, 4096, {v(self.VWA+ks)}")
                ops.append(f)
        return ops

    ZXD = 104
    def prologue(self):
        p = self.p
        self.END = p.label("end"); self.LU = p.label("U"); self.LG = p.label("G"); self.LZ = p.label("Z")
        p(f"s_cmp_ge_u32 s2, 256\ns_cbranch_scc1 {self.END}")
        if self.o.get("sst"): p("s_memrealtime s[84:85]\ns_waitcnt lgkmcnt(0)")
        if self.o.get("cpf", 1):
            p(f"s_getpc_b64 {sp(SSTMP)}\nv_lshlrev_b32 v4, 7, v0\nglobal_load_dword v5, v4, {sp(SSTMP)}")
        p(f"s_load_dwordx2 {sp(SX)}, s[0:1], 0\ns_load_dwordx2 {sp(PWIN)}, s[0:1], 80\ns_load_dwordx4 s[{PBRE}:{PBRE+3}], s[0:1], 24")
        p(f"v_lshrrev_b32 v2, 6, v0\nv_and_b32 {v(VL)}, 63, v0\nv_readfirstlane_b32 s{SWV}, v2")
        p(f"s_and_b32 s{SA}, s2, 6\ns_lshl_b32 s{SA}, s{SA}, 1\ns_bfe_u32 s{SRB}, s2, 0x20005\ns_add_u32 s{SRB}, s{SRB}, s{SA}")
        p(f"s_mov_b32 s{SX+2}, 2097152\ns_mov_b32 s{SX+3}, 0x20000\ns_lshl_b32 s{SXB}, s{SRB}, 17")
        if self.o.get("pf", 2) == 5:
            p(f"s_lshl_b32 s{SA}, s2, 1\ns_add_u32 s{SA}, s{SA}, s{SWV}\ns_and_b32 s{SB_}, s2, 127\ns_cmp_eq_u32 s{SWV}, 3\ns_cselect_b32 s{SA}, s{SB_}, s{SA}\ns_lshl_b32 s{SA}, s{SA}, 12")
            p(f"s_mul_i32 s{SB_}, s2, 5504\ns_cmp_eq_u32 s{SWV}, 2\ns_cselect_b32 s{SA}, s{SB_}, s{SA}\ns_cselect_b32 s{SB_}, 42, 31\nv_min_u32 v6, s{SB_}, {v(VL)}\nv_lshl_add_u32 v6, v6, 7, s{SA}")
            p.wait_lg_all()
            p(f"s_cselect_b64 {sp(SPFP)}, {sp(PWIN)}, {sp(SX)}\ns_cmp_ge_u32 s2, 128\ns_cselect_b64 {sp(SC)}, {sp(PBIM)}, {sp(PBRE)}\ns_cmp_eq_u32 s{SWV}, 3\ns_cselect_b64 {sp(SPFP)}, {sp(SC)}, {sp(SPFP)}")
            p(f"global_load_dword v7, v6, {sp(SPFP)}")
        p(f"s_cmp_ge_u32 s2, 128\ns_cbranch_scc1 {self.LU}")
        self.plain_dma_addr(self.ZXD, 1024, 112)
        p(f"s_lshl_b32 s{SA}, s{SWV}, 15\ns_add_u32 s{SXB}, s{SXB}, s{SA}\ns_mul_i32 s{SREG}, s{SWV}, 40960\ns_mov_b32 m0, s{SREG}")
        p.wait_lg_all()
        for i in range(4): p.vmem(f"buffer_load_dwordx4 {v(self.ZXD+i)}, {srd(SX)}, s{SXB} offen offset:{i*1024} lds")
        p(f"s_branch {self.LZ}")
    def common2(self):
        p = self.p
        p(f"v_lshlrev_b32 {v(VL16)}, 4, {v(VL)}\nv_mov_b32 {v(VOOB)}, {OOB}")
        if self.o.get("stamps"):
            p("v_mov_b32 v255, 0")
            if self.o.get("sst"): p("v_writelane_b32 v255, s84, 17"); self.stamp(22)
            else: self.stamp(17)
        elif "spin_from" in self.o: self.stamp(17)
        p(f"s_and_b32 s{SKH}, s2, 1\ns_lshl_b32 s{SC}, s{SKH}, 2\ns_bfe_u32 s{SD}, s2, 0x20003\ns_add_u32 s{SCOL}, s{SC}, s{SD}\ns_mov_b32 s{SW1+3}, 0x20000")
    def common3(self):
        p = self.p
        p(f"s_load_dwordx2 {sp(SWS)}, s[0:1], 136\ns_load_dwordx2 {sp(PGW)}, s[0:1], 112\ns_load_dwordx4 s[{PLRE}:{PLRE+3}], s[0:1], 8\ns_load_dwordx2 {sp(PLDT)}, s[0:1], 56")
        for (r, off) in [(SWSP, 88), (SCRE, 40), (SCIM, 48), (SWOUT, 104), (SOUT, 120), (PDSK, 64), (PBSP, 96)]:
            p(f"s_load_dwordx2 {sp(r)}, s[0:1], {off}")
        for (r, n) in [(SWSP, 8388608), (SWS, WS_END), (SCRE, 524288), (SCIM, 524288), (SWOUT, 704512), (SOUT, 4194304)]:
            p(f"s_mov_b32 s{r+2}, {n}\ns_mov_b32 s{r+3}, 0x20000")
        if self.o.get("xl"):
            p(f"s_bfe_u32 s{SKH}, s2, 0x10006\ns_and_b32 s{STB}, s2, 7\ns_lshl_b32 s{STB}, s{STB}, 2\ns_lshr_b32 s{SC}, s2, 6\ns_add_u32 s{STB}, s{STB}, s{SC}\ns_bfe_u32 s{SJ}, s2, 0x30003")
        else:
            p(f"s_and_b32 s{SC}, s2, 6\ns_lshl_b32 s{SC}, s{SC}, 1\ns_lshr_b32 s{STB}, s2, 6\ns_add_u32 s{STB}, s{STB}, s{SC}\ns_lshl_b32 s{STB}, s{STB}, 1\ns_add_u32 s{STB}, s{STB}, s{SKH}\ns_bfe_u32 s{SJ}, s2, 0x30003")
        if self.o.get("pf", 2) == 2:
            A_, C_, D_, E_ = SA, SC, SB_, SF
            p(f"s_lshl_b32 s{D_}, s{SWV}, 8\ns_add_u32 s{D_}, s{D_}, s2\ns_mov_b32 s{C_}, 0\ns_mov_b32 s{A_}, 0\ns_mov_b32 s{E_}, 2047")
            for (lo, off, last) in [(171, 24, 511), (214, 32, 511), (257, 80, 0)]:
                p.atom(f"s_cmp_ge_u32 s{D_}, {lo}\ns_cselect_b32 s{C_}, {off}, s{C_}\ns_cselect_b32 s{A_}, {lo}, s{A_}\ns_cselect_b32 s{E_}, {last}, s{E_}")
            p.atom(f"s_cmp_lt_u32 s{D_}, 365\ns_cselect_b32 s{SPFE}, 1, 0")
            p(f"s_sub_u32 s{D_}, s{D_}, s{A_}\ns_load_dwordx2 {sp(SPFP)}, s[0:1], s{C_}")
            p(f"v_mul_u32_u24 {v(6)}, 52, {v(VL)}\nv_lshrrev_b32 {v(6)}, 8, {v(6)}\nv_mul_u32_u24 {v(7)}, 5, {v(6)}\nv_sub_u32 {v(7)}, {v(VL)}, {v(7)}")
            p(f"s_mul_i32 s{A_}, s{D_}, 12\nv_add_u32 {v(6)}, s{A_}, {v(6)}\nv_min_u32 {v(6)}, s{E_}, {v(6)}\nv_lshlrev_b32 {v(6)}, 10, {v(6)}\nv_lshl_add_u32 {v(6)}, {v(7)}, 7, {v(6)}\nv_add_u32 {v(6)}, 384, {v(6)}")
            p(f"s_lshl_b32 s{D_}, s{D_}, 13\ns_add_u32 s{D_}, s{D_}, {192*2752}\nv_lshl_add_u32 {v(7)}, {v(VL)}, 7, s{D_}\nv_min_u32 {v(7)}, {512*2752-4}, {v(7)}")
            p.atom(f"s_cmp_eq_u32 s{E_}, 0\ns_cselect_b64 vcc, -1, 0")
            p(f"v_cndmask_b32 {v(6)}, {v(6)}, {v(7)}, vcc")
    def pf2(self):
        p = self.p
        p.wait_lg_all()
        if self.o.get("pf", 2) == 2:
            l = p.label("pf")
            p(f"s_cmp_eq_u32 s{SPFE}, 0\ns_cbranch_scc1 {l}\nglobal_load_dword {v(7)}, {v(6)}, {sp(SPFP)}")
            p.put(l)
        if self.o.get("cpf", 1):
            l = p.label("c2")
            here = p.label("pc")
            p(f"s_cmp_lg_u32 s{SWV}, 0\ns_cbranch_scc1 {l}\ns_getpc_b64 {sp(SSTMP)}")
            p.put(here)
            p(f"s_sub_u32 s{SSTMP}, s{SSTMP}, {here}-{NAME}\ns_subb_u32 s{SSTMP+1}, s{SSTMP+1}, 0")
            p(f"v_add_u32 v4, 32768, v4\nv_min_u32 v4, {self.END}-{NAME}, v4\nglobal_load_dword v5, v4, {sp(SSTMP)}")
            p.put(l)
        if self.o.get("tw", 0):
            ls = [p.label("tw") for _ in range(3)]
            p(f"v_lshlrev_b32 v8, 19, {v(VL)}\nv_mov_b32 v9, 0")
            p(f"s_cmp_eq_u32 s{SWV}, 1\ns_cbranch_scc1 {ls[0]}\ns_cmp_eq_u32 s{SWV}, 2\ns_cbranch_scc1 {ls[1]}\ns_cmp_eq_u32 s{SWV}, 3\ns_cbranch_scc0 {ls[2]}")
            p(f"buffer_load_dword v10, v8, {srd(SWS)}, 0 offen sc1\ns_branch {ls[2]}")
            p.put(ls[0]); p(f"buffer_load_dword v10, v8, {srd(SWSP)}, 0 offen\nbuffer_load_dword v11, v8, {srd(SOUT)}, 0 offen sc1\nglobal_load_ushort v12, v9, {sp(PBSP)}\nglobal_load_ushort v13, v9, {sp(PDSK)}\ns_branch {ls[2]}")
            p.put(ls[1]); p(f"buffer_load_dword v10, v8, {srd(SCRE)}, 0 offen\nbuffer_load_dword v11, v8, {srd(SCIM)}, 0 offen\nbuffer_load_dword v12, v8, {srd(SWOUT)}, 0 offen\nglobal_load_ushort v13, v9, {sp(PGW)}")
            p.put(ls[2])
        p(f"s_load_dword s{ST_T}, {sp(SWS)}, {EPOCH}")
    def code_prefetch(self, va, vd):
        if not self.o.get("cpf", 1): return
        p = self.p
        sk = p.label("cpf"); here = p.label("pc")
        nsl = self.o.get("cpfn", 6)
        p(f"s_lshr_b32 s{SA}, s2, 3\ns_and_b32 s{SA}, s{SA}, 15\ns_lshl_b32 s{SA}, s{SA}, 2\ns_add_u32 s{SA}, s{SA}, s{SWV}")
        p(f"s_cmp_ge_u32 s{SA}, {nsl}\ns_cbranch_scc1 {sk}")
        p(f"s_getpc_b64 s[{SSTMP}:{SSTMP+1}]")
        p.put(here)
        p(f"s_sub_u32 s{SSTMP}, s{SSTMP}, {here}-{NAME}\ns_subb_u32 s{SSTMP+1}, s{SSTMP+1}, 0")
        p(f"s_lshl_b32 s{SA}, s{SA}, 13\nv_lshl_add_u32 {v(va)}, {v(VL)}, 7, s{SA}\nv_min_u32 {v(va)}, {self.END}-{NAME}, {v(va)}")
        p(f"global_load_dword {v(vd)}, {v(va)}, s[{SSTMP}:{SSTMP+1}]")
        p.put(sk)
    def pf1(self, when=1):
        if self.o.get("pf", 2) == 4 and self.o.get("pfw", 5) == when:
            self.p.vmem(f"global_load_dword {v(7)}, {v(6)}, {sp(PWIN)}")
            self.p.vmem(f"global_load_dword {v(5)}, {v(4)}, {sp(SPFP)}")
        if {3: 1, 2: self.o.get("pfw2", 2)}.get(self.o.get("pf", 2), self.o.get("pf", 2)) == when:
            p = self.p; l = p.label("pf")
            p(f"s_cmp_eq_u32 s{SPFE}, 0\ns_cbranch_scc1 {l}\nglobal_load_dword {v(5)}, {v(4)}, {sp(SPFP)}")
            p.put(l)
        if self.o.get("wfirst") == when: self.touch_wsp(11, 12, 0, 1)
    def tlb_warm(self):
        p = self.p
        ls = [p.label("tw") for _ in range(4)]
        p(f"v_lshlrev_b32 {v(6)}, 19, {v(VL)}\nv_mov_b32 {v(7)}, 0")
        p(f"s_cmp_eq_u32 s{SWV}, 1\ns_cbranch_scc1 {ls[0]}\ns_cmp_eq_u32 s{SWV}, 2\ns_cbranch_scc1 {ls[1]}\ns_cmp_eq_u32 s{SWV}, 3\ns_cbranch_scc1 {ls[2]}")
        p(f"buffer_load_dword {v(8)}, {v(6)}, {srd(SWS)}, 0 offen sc1\nglobal_load_ushort {v(9)}, {v(7)}, {sp(PGW)}\ns_branch {ls[3]}")
        p.put(ls[0]); p(f"buffer_load_dword {v(8)}, {v(6)}, {srd(SWSP)}, 0 offen\nglobal_load_ushort {v(9)}, {v(7)}, {sp(PBSP)}\nglobal_load_ushort {v(10)}, {v(7)}, {sp(PDSK)}\ns_branch {ls[3]}")
        p.put(ls[1]); p(f"buffer_load_dword {v(8)}, {v(6)}, {srd(SOUT)}, 0 offen sc1\nbuffer_load_dword {v(9)}, {v(6)}, {srd(SWOUT)}, 0 offen\ns_branch {ls[3]}")
        p.put(ls[2]); p(f"buffer_load_dword {v(8)}, {v(6)}, {srd(SCRE)}, 0 offen\nbuffer_load_dword {v(9)}, {v(6)}, {srd(SCIM)}, 0 offen")
        p.put(ls[3])
    def late_args(self):
        p = self.p
        if self.o.get("tlb", 1):
            if self.o.get("tlb", 1) == 1: self.tlb_warm()
            self.pf1(5)
            p(f"s_load_dword s{ST_T}, {sp(SWS)}, {EPOCH}")
            return
        for (r, off) in [(SWSP, 88), (SCRE, 40), (SCIM, 48), (SWOUT, 104), (SOUT, 120), (PDSK, 64), (PBSP, 96)]:
            p(f"s_load_dwordx2 {sp(r)}, s[0:1], {off}")
        p(f"s_load_dword s{ST_T}, {sp(SWS)}, {EPOCH}")
        for (r, n) in [(SWSP, 8388608), (SWS, WS_END), (SCRE, 524288), (SCIM, 524288), (SWOUT, 704512), (SOUT, 4194304)]:
            p(f"s_mov_b32 s{r+2}, {n}\ns_mov_b32 s{r+3}, 0x20000")
    def epoch2(self):
        p = self.p
        p.wait_lg_all()
        p(f"s_mul_i32 s{ST_T}, s{ST_T}, 0x9E3779B1\ns_add_u32 s{ST_T}, s{ST_T}, 0x7F4A7C15")

    def touch_wsp(self, va, vd, k, n):
        p = self.p
        if k == 0:
            p(f"s_lshr_b32 s{SB_}, s2, 3\ns_lshl_b32 s{SB_}, s{SB_}, 2\ns_add_u32 s{SB_}, s{SB_}, s{SWV}\ns_lshl_b32 s{SB_}, s{SB_}, 13")
            p(f"s_and_b32 s{SA}, s2, 7\ns_lshl_b32 s{SA}, s{SA}, 20\ns_add_u32 s87, s{SA}, s{SB_}")
            p(f"v_cmp_gt_u32 vcc, {64//n}, {v(VL)}\nv_lshlrev_b32 {v(va)}, 7, {v(VL)}\ns_nop 0\nv_cndmask_b32 {v(va)}, {v(VOOB)}, {v(va)}, vcc")
        else: p(f"s_add_u32 s87, s87, {8192//n}")
        p.vmem(f"buffer_load_dword {v(vd)}, {v(va)}, {srd(SWSP)}, s87 offen {self.o.get('tmod', '')}")
    def ctouch(self, va, vd):
        p = self.p; l = p.label("ct")
        p(f"s_lshl_b32 s{SA}, s{SWV}, 8\ns_add_u32 s{SA}, s{SA}, s2\ns_cmp_ge_u32 s{SA}, 856\ns_cbranch_scc1 {l}")
        p(f"s_cmp_lt_u32 s{SA}, 256\ns_cselect_b64 {sp(SSTMP)}, {sp(SCRE)}, {sp(SCIM)}")
        p(f"s_sub_u32 s{SB_}, s{SA}, 512\ns_and_b32 s{SSPIN}, s{SA}, 255\ns_cmp_ge_u32 s{SA}, 512\ns_cselect_b64 {sp(SSTMP)}, {sp(SWOUT)}, {sp(SSTMP)}\ns_cselect_b32 s{SA}, s{SB_}, s{SSPIN}")
        p(f"s_lshl_b32 s{SA}, s{SA}, 11\nv_and_b32 {v(vd)}, 15, {v(VL)}\nv_lshlrev_b32 {v(vd)}, 7, {v(vd)}\nv_add_u32 {v(vd)}, s{SA}, {v(vd)}")
        p(f"global_load_dword {v(vd)}, {v(vd)}, {sp(SSTMP)}")
        p.put(l)
    def paced(self, valu, va, vd, t0, dt):
        if "ct" in self.o: valu.setdefault(self.o["ct"], []).append(lambda: self.ctouch(va, vd + 1 if vd != 205 else 4))
        n = self.o.get("tn", 4)
        if self.o.get("touch", 1) != 1: return
        for k in range(n):
            valu.setdefault(t0 + k * dt, []).append(lambda k=k: self.touch_wsp(va, vd, k, n))
    def touch_c(self, va, vd):
        p = self.p
        p(f"v_lshlrev_b32 {v(va)}, 7, {v(VL)}\ns_lshr_b32 s{SB_}, s2, 3\ns_lshl_b32 s{SB_}, s{SB_}, 2\ns_add_u32 s{SB_}, s{SB_}, s{SWV}\ns_lshl_b32 s{SA}, s{SB_}, 13")
        p.vmem(f"buffer_load_dword {v(vd)}, {v(va)}, {srd(SWOUT)}, s{SA} offen")
        p.vmem(f"buffer_load_dword {v(vd)}, {v(va)}, {srd(SCRE)}, s{SA} offen")
        p.vmem(f"buffer_load_dword {v(vd)}, {v(va)}, {srd(SCIM)}, s{SA} offen")
        p(f"s_add_u32 s{SA}, s{SA}, 524288")
        p.vmem(f"buffer_load_dword {v(vd)}, {v(va)}, {srd(SWOUT)}, s{SA} offen")
    GTR, GPL = 236, 238
    def g_early(self, t):
        p = self.p
        p(f"s_lshr_b32 s{SA}, s{SWV}, 1\ns_mul_i32 s{SGL}, s{SA}, 81920")
        p(f"v_bfe_u32 {v(t)}, {v(VL)}, 4, 1\nv_xor_b32 {v(t)}, s{SA}, {v(t)}\nv_lshlrev_b32 {v(t)}, 4, {v(t)}")
        p(f"v_bfe_u32 {v(t+1)}, {v(VL)}, 2, 1\nv_lshl_add_u32 {v(t)}, {v(t+1)}, 3, {v(t)}\nv_bfe_u32 {v(t+1)}, {v(VL)}, 3, 1\nv_lshl_add_u32 {v(t)}, {v(t+1)}, 2, {v(t)}")
        p(f"v_and_b32 {v(t+1)}, 35, {v(VL)}\nv_add_lshl_u32 {v(t)}, {v(t)}, {v(t+1)}, 4\nv_add_u32 {v(self.GTR)}, s{SGL}, {v(t)}")
        p.atom(f"s_cmp_lt_u32 s{SJ}, 7\ns_cselect_b32 s{SB_}, 24, 8")
        p(f"v_and_b32 {v(t)}, 31, {v(VL)}\nv_cmp_gt_u32 vcc, s{SB_}, {v(t)}\ns_nop 1\nv_cndmask_b32 {v(self.GTR+1)}, {v(VOOB)}, {v(VL16)}, vcc")
        p(f"s_lshl_b32 s{SB_}, s{SJ}, 2\ns_add_u32 s{SB_}, s{SB_}, s{SA}\ns_lshl_b32 s{SA}, s{SKH}, 1\ns_add_u32 s{SB_}, s{SB_}, s{SA}\ns_lshl_b32 s{SB_}, s{SB_}, 4")
        p(f"s_and_b32 s{SA}, s{SWV}, 1\ns_add_u32 s{SGB}, s{SB_}, s{SA}\ns_mul_i32 s{SGB}, s{SGB}, 6144\ns_add_u32 s{SGB}, s{SGB}, {Z2N}\ns_mul_i32 s{SA}, s{SA}, 6144\ns_add_u32 s{SGL}, s{SGL}, s{SA}")
        p(f"s_lshl_b32 s{SB_}, s{SB_}, 7\ns_add_u32 s{SB_}, s{SB_}, {ZF}")
        self.poll_addr(self.GPL, [(SB_, 16)])
        p(f"s_lshr_b32 s{SA}, s{STB}, 1\ns_lshl_b32 s{SA}, s{SA}, 9\ns_add_u32 s{SA}, s{SA}, {ZF}")
        p(f"v_add_u32 {v(t)}, 16, {v(VL)}\nv_bfe_u32 {v(t)}, {v(t)}, 2, 3\nv_lshlrev_b32 {v(t)}, 13, {v(t)}\nv_and_b32 {v(t+1)}, 3, {v(VL)}\nv_lshl_add_u32 {v(t)}, {v(t+1)}, 7, {v(t)}\nv_add_u32 {v(t)}, s{SA}, {v(t)}")
        p(f"s_mov_b32 vcc_lo, 0xffff0000\ns_mov_b32 vcc_hi, 0xffff\nv_cndmask_b32 {v(self.GPL)}, {v(self.GPL)}, {v(t)}, vcc")
        p(f"s_lshr_b32 s{SA}, s{STB}, 1\ns_lshl_b32 s{SA}, s{SA}, 1\ns_and_b32 s{SB_}, s{SWV}, 1\ns_add_u32 s{SA}, s{SA}, s{SB_}\ns_lshl_b32 s{SA}, s{SA}, 1\ns_add_u32 s{SA}, s{SA}, s{SKH}")
        p(f"s_lshl_b32 s{SB_}, s{SJ}, 6\ns_add_u32 s{SZI}, s{SA}, s{SB_}")
    def g_poll_issue(self):
        self.gp = self.p.vmem(f"buffer_load_dword {v(self.GPL+1)}, {v(self.GPL)}, {srd(SWS)}, 0 offen sc1")

    def phase_z(self):
        p = self.p; o = self.o
        ACC, FA, FB, XR, WR, XD, WD, T = 16, 64, 88, 96, 100, 104, 108, 112
        p.c("==== phase A: Z ====")
        p.put(self.LZ)
        self.common2()
        tick = {}
        def xdma(st, cb=None):
            return [((SREG, (st & 3) * 4096) if i == 0 else None, (SXB, st * 128) if i == 0 else None,
                     f"buffer_load_dwordx4 {v(XD+i)}, {srd(SX)}, s{SDO} offen offset:{i*1024} lds", cb) for i in range(4)]
        def wdma(st, cb=None):
            return [((SWL, (st & 3) * 40960) if i == 0 else None, (SW1B, st * 64 * 2752) if i == 0 else None,
                     f"buffer_load_dwordx4 {v(WD+i)}, {srd(SW1)}, s{SDO} offen offset:{i*1024} lds", cb) for i in range(3)]
        def dma(st):
            def cb(t): tick[st] = t
            return self.dseq(wdma(st) + xdma(st, cb))
        self.w_dma_addr(WD, T, 1376)
        p(f"s_mul_i32 s{SW1B}, s{SWV}, {16*2752}\ns_mul_i32 s{SA}, s{SCOL}, 176\ns_add_u32 s{SW1B}, s{SW1B}, s{SA}")
        p(f"s_mul_i32 s{SWL}, s{SWV}, 3072\ns_add_u32 s{SWL}, s{SWL}, 16384\ns_mov_b32 s{SW1+2}, {512*2752}")
        p(f"s_mov_b64 {sp(SW1)}, {sp(PWIN)}")
        npro = o.get("npro", 3)
        def cb0(t): tick[0] = t
        self.run(self.dseq(wdma(0, cb0)))
        if o.get("sst"): self.stamp(23)
        def setup():
            self.plain_read_addr(XR, SREG, T)
            self.w_tr_addr(WR, 16384, T)
            self.p(f"v_add_u32 {v(WR+1)}, 81920, {v(WR)}")
            self.wsp_setup(T)
            self.p(f"s_add_u32 s{SPB}, s{SREG}, 32768\ns_mov_b32 s{SPB+1}, s{SREG}\ns_add_u32 s{SPB+2}, s{SREG}, 8192\ns_add_u32 s{SPB+3}, s{SREG}, 16384\ns_add_u32 s{SPB+4}, s{SREG}, 24576")
            self.valid_masks()
        d = []
        for st in range(1, npro): d += dma(st)
        self.run(merge(self.cap(lambda: (self.common3(), setup())), d))
        def prefill(u0, u1):
            if u0 == 0:
                p(f"s_lshl_b32 s{SCB}, s{SRB}, 2\ns_add_u32 s{SCB}, s{SCB}, s{SWV}\ns_mul_i32 s{SCB}, s{SCB}, 45056\ns_mul_i32 s{SA}, s{SCOL}, 5632\ns_add_u32 s{SCB}, s{SCB}, s{SA}\ns_add_u32 s{SCB}, s{SCB}, {PB}")
                for k in range(4): p(f"v_mov_b32 {v(176+k)}, -1")
            for u in range(u0, u1):
                if u == 4: p(f"s_add_u32 s{SCB}, s{SCB}, 4096")
                if u == 5: p("s_mov_b32 exec_hi, 0")
                p.vmem(f"buffer_store_dwordx4 {v(176,4)}, {v(VL16)}, {srd(SWS)}, s{SCB} offen offset:{(u%4)*1024} sc1")
                if u == 5: p("s_mov_b32 exec_hi, -1")
        self.pf2()
        self.epoch2()
        self.stamp(0)
        rt = {}
        def reads(n):
            st, ks = n // 4, n % 4; sl = st & 3; s = n & 1; ops = []
            def rb(): rt[(n, 'b')] = p.lds(f"ds_read_b128 {v(FB+4*s,4)}, {v(XR+ks)} offset:{sl*4096}")
            ops.append(rb)
            for mt in range(3):
                for a in range(2):
                    def ra(mt=mt, a=a):
                        rt[(n, mt)] = p.lds(f"ds_read_b64_tr_b16 {v(FA+12*s+4*mt+2*a,2)}, {v(WR+(sl>>1))} offset:{(sl&1)*40960+ks*3072+a*768+mt*64}")
                    ops.append(ra)
            return ops
        def mfmas(n):
            s = n & 1; ops = []
            for mt in range(3):
                def m(mt=mt):
                    p.wait(lg=rt[(n, mt)])
                    c = "0" if n == 0 else v(ACC + 16 * mt, 16)
                    p(f"{MF} {v(ACC+16*mt,16)}, {v(FA+12*s+4*mt,4)}, {v(FB+4*s,4)}, {c}")
                ops.append(m)
            return ops
        GX, GW, GU, GS, GT = 128, 144, 148, 156, 160
        gt = {}
        def gload():
            p(f"s_lshl_b32 s{SE}, s{SRB}, 2\ns_add_u32 s{SE}, s{SE}, s{SWV}\ns_lshl_b32 s{SE}, s{SE}, 3\ns_add_u32 s{SE}, s{SE}, s{SCOL}\ns_lshl_b32 s{SA}, s{SE}, 12")
            for r in range(4): p.vmem(f"buffer_load_dwordx4 {v(GX+4*r,4)}, {v(VL16)}, {srd(SX)}, s{SA} offen offset:{r*1024}")
            gt['t'] = p.vmem(f"global_load_dwordx4 {v(GW,4)}, {v(VL16)}, {sp(PGW)}")
        def gstore():
            p(f"s_lshl_b32 s{SA}, s{SE}, 4\ns_add_u32 s{SA}, s{SA}, {GATE}")
            p.vmem(f"buffer_store_dwordx4 {v(GS,4)}, {v(GT)}, {srd(SWS)}, s{SA} offen sc1")
        gops = [lambda: p.wait(vm=gt['t'])] + self.cap(lambda: self.gate(GX, GW, GU, GS, GT)) + [gstore]
        zm = o.get('zmode', 1)
        valu = {(28 if zm == 1 else 13): [gload]}
        def touch_u():
            p(f"v_lshlrev_b32 {v(170)}, 7, {v(VL)}\ns_lshr_b32 s{SB_}, s2, 3\ns_lshl_b32 s{SB_}, s{SB_}, 2\ns_add_u32 s{SB_}, s{SB_}, s{SWV}\ns_lshl_b32 s{SB_}, s{SB_}, 13")
            p(f"s_and_b32 s{SA}, s2, 7\ns_lshl_b32 s{SA}, s{SA}, 20\ns_add_u32 s{SA}, s{SA}, s{SB_}\ns_add_u32 s{SA}, s{SA}, {1<<19}")
            p.vmem(f"buffer_load_dword {v(171)}, {v(170)}, {srd(SWSP)}, s{SA} offen")
        def warm():
            p(f"v_lshlrev_b32 {v(170)}, 18, {v(VL)}\nv_lshlrev_b32 {v(172)}, 16, {v(VL)}\nv_lshlrev_b32 {v(173)}, 13, {v(VL)}")
            ls = [p.label("wm") for _ in range(4)]
            p(f"s_cmp_eq_u32 s{SWV}, 1\ns_cbranch_scc1 {ls[0]}\ns_cmp_eq_u32 s{SWV}, 2\ns_cbranch_scc1 {ls[1]}\ns_cmp_eq_u32 s{SWV}, 3\ns_cbranch_scc1 {ls[2]}")
            p(f"buffer_load_dword {v(171)}, {v(170)}, {srd(SWS)}, 0 offen sc1\ns_branch {ls[3]}")
            p.put(ls[0]); p(f"buffer_load_dword {v(171)}, {v(172)}, {srd(SOUT)}, 0 offen sc1\ns_branch {ls[3]}")
            p.put(ls[1]); p(f"buffer_load_dword {v(171)}, {v(173)}, {srd(SCRE)}, 0 offen\nbuffer_load_dword {v(171)}, {v(173)}, {srd(SCIM)}, 0 offen\ns_branch {ls[3]}")
            p.put(ls[2]); p(f"v_lshlrev_b32 {v(173)}, 14, {v(VL)}\nbuffer_load_dword {v(171)}, {v(173)}, {srd(SWOUT)}, 0 offen")
            p.put(ls[3])
        if o.get("warm"): valu[31] = [warm]
        def ztouch(part):
            if part == 0:
                p(f"s_lshr_b32 s{SB_}, s2, 3\ns_lshl_b32 s{SB_}, s{SB_}, 2\ns_add_u32 s{SB_}, s{SB_}, s{SWV}")
                p(f"s_and_b32 s{SA}, s2, 7\ns_lshl_b32 s{SPFP+1}, s{SB_}, 3\ns_add_u32 s{SPFP+1}, s{SPFP+1}, s{SA}")
                p(f"s_lshr_b32 s{SA}, s{SA}, 1\ns_lshl_b32 s{SA}, s{SA}, 21\ns_lshl_b32 s{SB_}, s{SB_}, 14\ns_add_u32 s{SPFP}, s{SA}, s{SB_}\ns_lshl_b32 s{SA}, s{SKH}, 11\ns_add_u32 s{SPFP}, s{SPFP}, s{SA}")
                p(f"v_lshrrev_b32 {v(173)}, 4, {v(VL)}\nv_lshlrev_b32 {v(173)}, 12, {v(173)}\nv_and_b32 {v(174)}, 15, {v(VL)}\nv_lshl_add_u32 {v(173)}, {v(174)}, 7, {v(173)}\nv_lshlrev_b32 {v(174)}, 7, {v(VL)}")
                if o.get("xl"):
                    p(f"s_and_b32 s{SA}, s2, 7\ns_lshl_b32 s{SA}, s{SA}, 20\ns_lshr_b32 s{SB_}, s{SB_}, 1\ns_add_u32 s{SPFP}, s{SA}, s{SB_}\nv_mov_b32 {v(173)}, {v(174)}")
                p.vmem(f"buffer_load_dword {v(175)}, {v(173)}, {srd(SWSP)}, s{SPFP} offen")
            if part == 1:
                p(f"s_add_u32 s{SPFP}, s{SPFP}, {1<<(19 if o.get('xl') else 20)}")
                p.vmem(f"buffer_load_dword {v(175)}, {v(173)}, {srd(SWSP)}, s{SPFP} offen")
            if part == 2:
                l = p.label("zt")
                p(f"s_lshr_b32 s{SB_}, s2, 3\ns_lshl_b32 s{SB_}, s{SB_}, 2\ns_add_u32 s{SB_}, s{SB_}, s{SWV}\ns_and_b32 s{SA}, s2, 7\ns_lshl_b32 s{SF}, s{SB_}, 3\ns_add_u32 s{SF}, s{SF}, s{SA}")
                p(f"s_cmp_ge_u32 s{SF}, 428\ns_cbranch_scc1 {l}")
                p(f"s_cmp_lt_u32 s{SF}, 128\ns_cselect_b64 {sp(SSTMP)}, {sp(SCRE)}, {sp(SCIM)}\ns_and_b32 s{SA}, s{SF}, 127")
                p(f"s_sub_u32 s{SB_}, s{SF}, 256\ns_cmp_ge_u32 s{SF}, 256\ns_cselect_b64 {sp(SSTMP)}, {sp(SWOUT)}, {sp(SSTMP)}\ns_cselect_b32 s{SA}, s{SB_}, s{SA}")
                p(f"s_lshl_b32 s{SA}, s{SA}, 12\nv_and_b32 {v(172)}, 31, {v(VL)}\nv_lshl_add_u32 {v(172)}, {v(172)}, 7, s{SA}")
                p(f"global_load_dword {v(171)}, {v(172)}, {sp(SSTMP)}")
                p.put(l)
            if part == 3:
                p(f"s_lshr_b32 s{SB_}, s2, 3\ns_lshl_b32 s{SB_}, s{SB_}, 2\ns_add_u32 s{SB_}, s{SB_}, s{SWV}\ns_lshl_b32 s{SA}, s{SB_}, 13\nv_lshlrev_b32 {v(172)}, 7, {v(VL)}\ns_mul_i32 s{SB_}, s{SB_}, 11008")
                p.vmem(f"buffer_load_dword {v(171)}, {v(172)}, {srd(SWOUT)}, s{SB_} offen")
                p(f"s_add_u32 s{SB_}, s{SB_}, 2816")
                p.vmem(f"buffer_load_dword {v(171)}, {v(172)}, {srd(SWOUT)}, s{SB_} offen")
                p.vmem(f"buffer_load_dword {v(171)}, {v(172)}, {srd(SCRE)}, s{SA} offen")
                p.vmem(f"buffer_load_dword {v(171)}, {v(172)}, {srd(SCIM)}, s{SA} offen")
        if o.get("touch", 1) == 2:
            for k in range(3): valu.setdefault(o.get(f"zs{k}", [0, 0, 0][k]), []).append(lambda k=k: ztouch(k))
        else: self.paced(valu, 174, 175, o.get("zt0", 6), o.get("zdt", 6))
        self.gemm_loop(4, reads, mfmas, dma, tick, 2, npro, {o.get('ze0', 5): lambda: self.wsp_dma(0), o.get('ze1', 6): lambda: self.wsp_dma(1)} if zm == 1 else {}, valu)
        self.stamp(1)
        MA, MB = SK + 2, SK + 4
        GR, VLO = 72, 80
        def seg1b():
            p = self.p
            S0, S1, MU = 64, 66, 68
            p(f"v_pk_add_f32 {v(S0,2)}, {v(ACC,2)}, {v(ACC+2,2)}\nv_pk_add_f32 {v(S1,2)}, {v(ACC+4,2)}, {v(ACC+6,2)}")
            for i in range(4, 16):
                s = S0 if i % 2 == 0 else S1
                p(f"v_pk_add_f32 {v(s,2)}, {v(s,2)}, {v(ACC+2*i,2)}")
            for (m, b) in [(MA, 16), (MB, 20)]:
                p(f"s_mov_b64 exec, {sp(m)}")
                for i in range(b, b + 4):
                    s = S0 if i % 2 == 0 else S1
                    p(f"v_pk_add_f32 {v(s,2)}, {v(s,2)}, {v(ACC+2*i,2)}")
            p("s_mov_b64 exec, -1")
            p(f"v_pk_add_f32 {v(S0,2)}, {v(S0,2)}, {v(S1,2)}\nv_add_f32 {v(GR)}, {v(S0)}, {v(S0+1)}")
            p(f"v_mov_b32 {v(S0)}, {v(GR)}\nv_mov_b32 {v(GR+1)}, s{ST_T}\nv_mov_b32 {v(GR+3)}, s{ST_T}\nv_permlane32_swap_b32 {v(GR)}, {v(S0)}\nv_add_f32 {v(GR)}, {v(GR)}, {v(S0)}")
            p(f"v_mul_f32 {v(MU)}, s{SK+6}, {v(GR)}")
            D0, D1 = 76, 78
            def m2(i, first=False):
                d = D0 if i % 2 == 0 else D1; s = S0 if i % 2 == 0 else S1
                p(f"v_pk_add_f32 {v(d,2)}, {v(ACC+2*i,2)}, {v(MU,2)} op_sel_hi:[1,0] neg_lo:[0,1] neg_hi:[0,1]")
                if first: p(f"v_pk_mul_f32 {v(s,2)}, {v(d,2)}, {v(d,2)}")
                else: p(f"v_pk_fma_f32 {v(s,2)}, {v(d,2)}, {v(d,2)}, {v(s,2)}")
            for i in range(16): m2(i, i < 2)
            for (m, b) in [(MA, 16), (MB, 20)]:
                p(f"s_mov_b64 exec, {sp(m)}")
                for i in range(b, b + 4): m2(i)
            p("s_mov_b64 exec, -1")
            p(f"v_pk_add_f32 {v(S0,2)}, {v(S0,2)}, {v(S1,2)}\nv_add_f32 {v(GR+2)}, {v(S0)}, {v(S0+1)}")
            p(f"v_mov_b32 {v(S0)}, {v(GR+2)}\nv_cmp_gt_u32 vcc, 32, {v(VL)}")
            p(f"s_lshl_b32 s{SC}, s{SRB}, 2\ns_add_u32 s{SC}, s{SC}, s{SWV}")
            p(f"v_permlane32_swap_b32 {v(GR+2)}, {v(S0)}\nv_cndmask_b32 {v(VLO)}, {v(VOOB)}, {v(VL16)}, vcc\nv_add_f32 {v(GR+2)}, {v(GR+2)}, {v(S0)}")
            p(f"s_lshl_b32 s{SD}, s{SC}, 12\ns_add_u32 s{SD}, s{SD}, {ST}\ns_lshl_b32 s{SA}, s{SCOL}, 9\ns_add_u32 s{SA}, s{SA}, s{SD}")
        seg1 = self.cap(lambda: self.gelu_many([ACC + 2 * i for i in range(24)], [64, 68, 72, 76]))
        h = len(seg1) // 5
        f1 = self.wsp_dma(2) + [lambda: p("s_barrier")]
        f2 = self.wsp_dma(3) + self.wsp_dma(4)
        if zm == 1: self.run(merge(seg1[:h], f1) + merge(seg1[h:], f2))
        else: self.run(seg1[:h] + [lambda: p("s_barrier")] + seg1[h:])
        seg1b()
        p.vmem(f"buffer_store_dwordx4 {v(GR,4)}, {v(VLO)}, {srd(SWS)}, s{SA} offen sc1")
        self.stamp(2)
        lgw = lambda: p.wait(lg=p.lg - 1)
        Q0, Q1, QA, QB = 112, 113, 114, 115
        MN, VR, N3, I3, TM = 80, 81, 82, 83, 84
        def misc():
            p = self.p
            self.g_early(120)
            p(f"v_lshrrev_b32 {v(Q1)}, 5, {v(VL)}\nv_lshlrev_b32 {v(Q1)}, 6, {v(Q1)}\nv_xor_b32 {v(Q0)}, {v(VL16)}, {v(Q1)}\nv_xor_b32 {v(Q1)}, 128, {v(Q0)}")
            p(f"v_add_u32 {v(Q0)}, s{SPB+4}, {v(Q0)}\nv_add_u32 {v(Q1)}, s{SPB+4}, {v(Q1)}")
            self.unit_tr_addr(124, SPB + 4, 120, False)
            p.atom(f"s_cmp_lt_u32 s{SCOL}, 7\ns_cselect_b32 s{SA}, 24, 8")
            p(f"v_and_b32 {v(QB)}, 31, {v(VL)}\nv_cmp_gt_u32 vcc, s{SA}, {v(QB)}\nv_add_u32 {v(QB)}, 4096, {v(VL16)}\nv_cndmask_b32 {v(QA)}, {v(VOOB)}, {v(QB)}, vcc")
            p(f"s_lshl_b32 s{SA}, s{SCOL}, 6\ns_add_u32 s{SC}, s{SA}, s{SC}\ns_mul_i32 s{SE}, s{SC}, 6144")
            self.flag_prep(118)
            p(f"v_cmp_gt_u32 vcc, 32, {v(VL)}\nv_mov_b32 {v(N3)}, {f2u(72.0)}\nv_mov_b32 {v(TM)}, {f2u(88.0)}\nv_mov_b32 {v(I3)}, {f2u(1/72)}\nv_mov_b32 {v(TM+1)}, {f2u(1/88)}")
            p(f"v_cndmask_b32 {v(N3)}, {v(N3)}, {v(TM)}, vcc\nv_cndmask_b32 {v(I3)}, {v(I3)}, {v(TM+1)}, vcc")
        za = o.get("za", 1)
        f = self.wsp_read(0) + self.wsp_read(1) + [lgw]
        for st in range(5, 5 + za): f += self.wsp_dma(st)
        zs = o.get('zsched', 0)
        if zm == 2: f = self.wsp_dma(0) + self.wsp_dma(1) + (self.wsp_dma(2) if zs in (1, 2) else [])
        self.run(merge(gops + self.cap(misc), f))
        self.stamp(3)
        SG = 64
        for q in range(4):
            ts = p.vmem(f"buffer_load_dwordx4 {v(SG+4*q,4)}, {v(VL16)}, {srd(SWS)}, s{SD} offen offset:{q*1024} sc1")
        if zm == 1:
            for st in range(5 + za, 7): self.run(self.wsp_dma(st))
        else: self.run(self.wsp_dma(3) + self.wsp_read(0) if zs in (1, 2) else self.wsp_dma(2))
        l = p.label("sp"); dl = p.label("sd")
        p.wait(vm=ts)
        p(f"s_mov_b32 s{SSPIN}, 0")
        p.put(l)
        X0 = 116
        p(f"v_xor_b32 {v(MN)}, s{ST_T}, {v(SG+1)}\nv_xor_b32 {v(VR)}, s{ST_T}, {v(SG+3)}")
        for r in [5, 9, 13]:
            p(f"v_xor_b32 {v(X0)}, s{ST_T}, {v(SG+r)}\nv_xor_b32 {v(X0+1)}, s{ST_T}, {v(SG+r+2)}\nv_or3_b32 {v(MN)}, {v(MN)}, {v(X0)}, {v(X0+1)}")
        p(f"v_or_b32 {v(MN)}, {v(MN)}, {v(VR)}")
        p(f"v_cmp_ne_u32 vcc, 0, {v(MN)}\ns_cmp_eq_u64 vcc, 0\ns_cbranch_scc1 {dl}")
        for q in range(4):
            p(f"buffer_load_dwordx4 {v(SG+4*q,4)}, {v(VL16)}, {srd(SWS)}, s{SD} offen offset:{q*1024} sc1")
        p("s_waitcnt vmcnt(0)")
        p(f"s_add_u32 s{SSPIN}, s{SSPIN}, 1\ns_cmp_lt_u32 s{SSPIN}, {SPIN}\ns_cbranch_scc1 {l}")
        p.put(dl)
        self.stamp(4)
        p(f"v_add_f32 {v(MN)}, {v(SG)}, {v(SG+4)}\nv_add_f32 {v(TM+2)}, {v(SG+8)}, {v(SG+12)}\nv_add_f32 {v(MN)}, {v(MN)}, {v(TM+2)}")
        p(f"v_mov_b32 {v(TM+3)}, {v(MN)}\nv_add_f32 {v(VR)}, {v(SG+2)}, {v(SG+6)}\nv_add_f32 {v(TM+2)}, {v(SG+10)}, {v(SG+14)}")
        p(f"v_permlane32_swap_b32 {v(MN)}, {v(TM+3)}\nv_add_f32 {v(VR)}, {v(VR)}, {v(TM+2)}\nv_add_f32 {v(MN)}, {v(MN)}, {v(TM+3)}")
        p(f"v_mul_f32 {v(MN)}, {f2u(1/688)}, {v(MN)}")
        for q in range(4):
            n_, i_ = (TM, TM + 1) if q < 3 else (N3, I3)
            p(f"v_fma_f32 {v(TM+2)}, {v(SG+4*q)}, {v(i_)}, -{v(MN)}\nv_mul_f32 {v(TM+2)}, {v(TM+2)}, {v(TM+2)}\nv_fmac_f32 {v(VR)}, {v(TM+2)}, {v(n_)}")
        self.xhalf_sum(VR, TM)
        p(f"v_mov_b32 {v(TM)}, {f2u(1e-5)}\nv_fmac_f32 {v(TM)}, {f2u(1/688)}, {v(VR)}\nv_rsq_f32 {v(VR)}, {v(TM)}")
        p(f"s_add_u32 s{SA}, s{SE}, {Z2N}\ns_add_u32 s{SB_}, s{SA}, 4096")
        p(f"v_mul_f32 {v(MN)}, {v(MN)}, {v(VR)}")
        ZP = 88
        for u in range(6):
            mt, q = u >> 1, u & 1
            R4 = range(4 * u, 4 * u + 4)
            for i in R4: p(f"v_pk_fma_f32 {v(ACC+2*i,2)}, {v(ACC+2*i,2)}, {v(MN,2)}, {v(MN,2)} op_sel:[0,1,0] op_sel_hi:[1,1,0] neg_lo:[0,0,1] neg_hi:[0,0,1]")
            for i in R4: p(f"v_cvt_pk_bf16_f32 {v(ZP+i)}, {v(ACC+2*i)}, {v(ACC+2*i+1)}")
            p.lds(f"ds_write_b128 {v(Q0+q)}, {v(ZP+4*u,4)} offset:{mt*2048+q*1024}")
        FO = [(0, 0), (0, 1), (1, 0), (1, 1), (0, 2), (1, 2)]
        zr = {}
        for fi, (ks, mt) in enumerate(FO):
            for a in range(2): zr[fi] = p.lds(f"ds_read_b64_tr_b16 {v(128+4*fi+2*a,2)}, {v(124+a)} offset:{mt*2048+ks*256}")
        p(f"s_lshl_b32 s{SE}, s{SC}, 7\ns_add_u32 s{SE}, s{SE}, {ZF}")
        for fi in range(6):
            p.wait(lg=zr[fi])
            t = p.vmem(f"buffer_store_dwordx4 {v(128+4*fi,4)}, {v(VL16 if fi < 4 else QA)}, {srd(SWS)}, s{SA} offen offset:{(fi%4)*1024} sc1")
        if zs:
            if zs >= 3:
                self.run(merge(self.wsp_dma(3) + (self.wsp_dma(4) if zs == 4 else []), self.wsp_read(0) + self.wsp_read(1) + self.wsp_read(2)))
                p.wait(vm=t)
                self.flag(SE, 118)
                self.run(([] if zs == 4 else self.wsp_dma(4)) + [lgw] + self.wsp_dma(5) + self.wsp_dma(6) + self.wsp_dma(7))
            else:
                self.run(merge(self.wsp_dma(4) + (self.wsp_dma(5) if zs > 1 else []), self.wsp_read(1) + self.wsp_read(2)))
                p.wait(vm=t)
                self.flag(SE, 118)
                self.run([lgw] + ([] if zs > 1 else self.wsp_dma(5)) + self.wsp_dma(6) + self.wsp_dma(7))
            for st in range(3, 6): self.run(self.wsp_read(st))
            self.g_poll_issue()
            prefill(0, 6)
            for st in range(6, 8): self.run(self.wsp_read(st))
            p(f"s_add_u32 s{SLATE}, s{SE}, {ZF2-ZF}")
            self.stamp(5)
            return
        self.run(merge(self.wsp_dma(3), self.wsp_read(0) + self.wsp_read(1) + self.wsp_read(2)))
        p.wait(vm=t)
        self.flag(SE, 118)
        if o.get("ct2") == 1: ztouch(2)
        prefill(0, 6); tpf = p.vm - 1
        self.run(self.wsp_dma(4) + [lgw] + self.wsp_dma(5) + self.wsp_dma(6))
        p.wait(vm=tpf)
        p(f"s_add_u32 s{SE}, s{SE}, {ZF2-ZF}")
        self.flag(SE, 118)
        self.run(self.wsp_dma(7))
        if o.get("ct2") == 2: ztouch(3)
        for st in range(3, 8): self.run(self.wsp_read(st))
        self.g_poll_issue()
        p(f"s_mov_b32 s{SLATE}, 0")
        self.stamp(5)

    def phase_u(self):
        p = self.p; o = self.o
        ACC, ZA, FA, FB, FW, FX = 16, 80, 128, 144, 160, 184
        XR, BR, X1R, WR, XD, BD, WD, T = 192, 196, 200, 204, 206, 210, 214, 60
        p.c("==== phase A: U ====")
        p.put(self.LU)
        WT, WP = SK + 8, SK + 9
        p(f"v_lshrrev_b32 {v(T)}, 5, {v(VL)}\nv_lshlrev_b32 {v(T)}, 15, {v(T)}")
        p(f"v_bfe_u32 {v(T+1)}, {v(VL)}, 3, 1\nv_lshl_add_u32 {v(T)}, {v(T+1)}, 14, {v(T)}")
        p(f"v_bfe_u32 {v(T+1)}, {v(VL)}, 4, 1\nv_lshl_add_u32 {v(T)}, {v(T+1)}, 10, {v(T)}")
        self.plain_dma_addr2(XD, T, T + 1, 2048)
        p(f"s_lshr_b32 s{WP}, s{SWV}, 1\ns_and_b32 s{WT}, s{SWV}, 1\ns_lshl_b32 s{SA}, s{WT}, 5")
        for i in range(4): p(f"v_xor_b32 {v(XD+i)}, s{SA}, {v(XD+i)}")
        p(f"s_lshl_b32 s{SD}, s{WP}, 16\ns_add_u32 s{SXB}, s{SXB}, s{SD}\ns_lshl_b32 s{SD}, s{WT}, 13\ns_add_u32 s{SXB}, s{SXB}, s{SD}\ns_lshl_b32 s{SXL}, s{SWV}, 12\ns_mov_b32 m0, s{SXL}")
        p.wait_lg_all()
        for i in range(4): p.vmem(f"buffer_load_dwordx4 {v(XD+i)}, {srd(SX)}, s{SXB} offen offset:{i*1024} lds")
        self.common2()
        self.plain_dma_addr(BD, 1024, T)
        p(f"s_lshl_b32 s{SW1B}, s{SCOL}, 16\ns_lshl_b32 s{SD}, s{WT}, 15\ns_add_u32 s{SW1B}, s{SW1B}, s{SD}\ns_mov_b32 s{SW1+2}, 524288\ns_add_u32 m0, s{SXL}, 49152")
        p(f"s_cmp_eq_u32 s{WP}, 0\ns_cselect_b64 {sp(SW1)}, {sp(PBRE)}, {sp(PBIM)}")
        for i in range(4): p.vmem(f"buffer_load_dwordx4 {v(BD+i)}, {srd(SW1)}, s{SW1B} offen offset:{i*1024} lds")
        self.w_dma_addr(WD, T, 0)
        SWIB = SCB
        p(f"s_mul_i32 s{SWIB}, s{SWV}, {16*2752}\ns_mul_i32 s{SA}, s{SCOL}, 176\ns_add_u32 s{SWIB}, s{SWIB}, s{SA}")
        p(f"s_mul_i32 s{SWL}, s{SWV}, 3072\ns_add_u32 s{SWL}, s{SWL}, 98304\ns_mov_b32 m0, s{SWL}\ns_mov_b32 s{PWIN+2}, {512*2752}\ns_mov_b32 s{PWIN+3}, 0x20000")
        for i in range(3): t0_ = p.vmem(f"buffer_load_dwordx4 {v(WD+i)}, {srd(PWIN)}, s{SWIB} offen offset:{i*1024} lds")
        if o.get("sst"): self.stamp(23)
        PR = 228
        tick = {}
        def dma(st):
            sl = st % 3; items = []
            def cb(t): tick[st] = t
            for i in range(3):
                items.append(((SWL, sl * 12288) if i == 0 else None, (SWIB, st * 64 * 2752) if i == 0 else None,
                              f"buffer_load_dwordx4 {v(WD+i)}, {srd(PWIN)}, s{SDO} offen offset:{i*1024} lds", None))
            for (vd, sr, sb, lb) in [(XD, SX, SXB, 0), (BD, SW1, SW1B, 49152)]:
                for i in range(4):
                    items.append(((SXL, lb + sl * 16384) if i == 0 else None, (sb, st * 128) if i == 0 else None,
                                  f"buffer_load_dwordx4 {v(vd+i)}, {srd(sr)}, s{SDO} offen offset:{i*1024} lds", cb))
            return self.dseq(items)
        tick[0] = t0_
        npro = o.get("npro_u", 2)
        def setup():
            p = self.p
            p(f"s_mul_i32 s{SREG}, s{SWV}, 40960\ns_lshl_b32 s{SA}, s{WT}, 13")
            self.plain_read_addr(XR, SA, T)
            p(f"s_lshl_b32 s{SA}, s{WP}, 12\ns_add_u32 s{SA}, s{SA}, 49152")
            self.plain_read_addr(BR, SA, T)
            self.w_tr_addr(WR, 98304, T)
            p(f"v_bfe_u32 {v(T)}, {v(VL)}, 3, 1\nv_lshlrev_b32 {v(T+1)}, 12, {v(T)}\nv_xor_b32 {v(T)}, s{WT}, {v(T)}\nv_lshlrev_b32 {v(T)}, 1, {v(T)}")
            p(f"v_bfe_u32 {v(T+2)}, {v(VL)}, 1, 2\nv_lshl_add_u32 {v(T+1)}, {v(T+2)}, 10, {v(T+1)}")
            p(f"v_and_b32 {v(T+2)}, 1, {v(T+2)}\nv_lshl_add_u32 {v(T)}, {v(T+2)}, 2, {v(T)}")
            p(f"v_and_b32 {v(T+2)}, 1, {v(VL)}\nv_lshl_add_u32 {v(T+1)}, {v(T+2)}, 8, {v(T+1)}\nv_or_b32 {v(T)}, {v(T)}, {v(T+2)}")
            p(f"v_bfe_u32 {v(T+2)}, {v(VL)}, 4, 1\nv_lshl_add_u32 {v(T+1)}, {v(T+2)}, 7, {v(T+1)}")
            p(f"s_lshl_b32 s{SA}, s{WP}, 13\ns_lshl_b32 s{SB_}, s{WT}, 9\ns_add_u32 s{SA}, s{SA}, s{SB_}\nv_add_u32 {v(T+1)}, s{SA}, {v(T+1)}")
            p(f"v_lshrrev_b32 {v(T+2)}, 5, {v(VL)}\nv_xor_b32 {v(T)}, {v(T)}, {v(T+2)}\nv_lshlrev_b32 {v(T)}, 4, {v(T)}")
            for ks in range(4): p(f"v_xor_b32 {v(X1R+ks)}, {32*ks}, {v(T)}\nv_add_u32 {v(X1R+ks)}, {v(X1R+ks)}, {v(T+1)}")
            self.wsp_setup(T)
            p(f"s_lshl_b32 s{SPB+1}, s{WT}, 13\ns_mul_i32 s{SA}, s{WP}, 49152\ns_add_u32 s{SPB+1}, s{SPB+1}, s{SA}\ns_add_u32 s{SPB}, s{SPB+1}, 32768\ns_add_u32 s{SPB+2}, s{SPB+1}, 16384")
            p(f"s_lshl_b32 s{SA}, s{SWV}, 13\ns_add_u32 s{SPB+3}, s{SA}, {13*8192}\ns_add_u32 s{SPB+4}, s{SA}, {17*8192}")
            p.atom(f"s_cmp_eq_u32 s{SWV}, 3\ns_cselect_b32 s{SPB+4}, {12*8192}, s{SPB+4}")
            self.valid_masks()
        self.run(merge(self.cap(lambda: (self.common3(), setup())), (dma(1) if npro > 1 else []) + (dma(2) if npro > 2 else [])))
        p(f"s_lshl_b32 s{SD}, s{SRB}, 1\ns_add_u32 s{SD}, s{SD}, s{WT}")
        p(f"s_lshl_b32 s{SA}, s{SCOL}, 1\ns_add_u32 s{SA}, s{SA}, s{WP}")
        p(f"s_lshl_b32 s{SE}, s{SD}, 4\ns_add_u32 s{SE}, s{SE}, s{SA}")
        p(f"s_lshl_b32 s{SA}, s{SA}, 5\nv_and_b32 {v(T)}, 31, {v(VL)}\nv_add_lshl_u32 {v(T)}, {v(T)}, s{SA}, 1")
        p.wait_lg_all()
        p.vmem(f"global_load_ushort {v(PR)}, {v(T)}, {sp(PLRE)}")
        p.vmem(f"global_load_ushort {v(PR+1)}, {v(T)}, {sp(PLIM)}")
        tp = p.vmem(f"global_load_ushort {v(PR+2)}, {v(T)}, {sp(PLDT)}")
        LB, CF, L16, L128, L256, LQ0, LQ1 = 218, 220, 222, 224, 226, 228, 230
        X0, X1, X2, X3 = 232, 233, 234, 235
        L32, L64 = 236, 238
        def csq(d, s):
            p = self.p
            p(f"v_mul_f32 {v(X0)}, {v(s+1)}, {v(s+1)}\nv_add_f32 {v(X1)}, {v(s)}, {v(s)}")
            p(f"v_mul_f32 {v(d+1)}, {v(X1)}, {v(s+1)}\nv_fma_f32 {v(d)}, {v(s)}, {v(s)}, -{v(X0)}")
        def cmul(d, a, b):
            p = self.p
            p(f"v_mul_f32 {v(X0)}, {v(a+1)}, {v(b+1)}\nv_mul_f32 {v(X1)}, {v(a+1)}, {v(b)}")
            p(f"v_fma_f32 {v(X0)}, {v(a)}, {v(b)}, -{v(X0)}\nv_fma_f32 {v(d+1)}, {v(a)}, {v(b+1)}, {v(X1)}\nv_mov_b32 {v(d)}, {v(X0)}")
        def cfma(d, a, b, c):
            p = self.p
            p(f"v_fma_f32 {v(X0)}, {v(a)}, {v(b)}, {v(c)}\nv_fma_f32 {v(X1)}, {v(a)}, {v(b+1)}, {v(c+1)}")
            p(f"v_fma_f32 {v(X0)}, -{v(a+1)}, {v(b+1)}, {v(X0)}\nv_fma_f32 {v(d+1)}, {v(a+1)}, {v(b)}, {v(X1)}\nv_mov_b32 {v(d)}, {v(X0)}")
        def params():
            p = self.p
            p(f"v_lshlrev_b32 {v(PR)}, 16, {v(PR)}\nv_lshlrev_b32 {v(PR+1)}, 16, {v(PR+1)}\nv_lshlrev_b32 {v(PR+2)}, 16, {v(PR+2)}")
            p(f"v_mul_f32 {v(X0)}, {f2u(LOG2E)}, {v(PR+2)}\nv_exp_f32 {v(X0)}, {v(X0)}"); self.rnd(X0, X0)
            p(f"v_mul_f32 {v(X1)}, {v(X0)}, {v(PR)}\nv_mul_f32 {v(X2)}, {v(X0)}, {v(PR+1)}")
            p(f"v_mul_f32 {v(X1)}, {f2u(LOG2E)}, {v(X1)}\nv_exp_f32 {v(X1)}, {v(X1)}")
            p(f"v_mul_f32 {v(X2)}, {f2u(1/(2*math.pi))}, {v(X2)}\nv_fract_f32 {v(X2)}, {v(X2)}")
            p(f"v_cos_f32 {v(X3)}, {v(X2)}\nv_sin_f32 {v(X2)}, {v(X2)}")
            p(f"v_mul_f32 {v(X0)}, {v(PR)}, {v(PR)}")
            p(f"v_mul_f32 {v(LB)}, {v(X1)}, {v(X3)}\nv_mul_f32 {v(LB+1)}, {v(X1)}, {v(X2)}")
            p(f"v_fmac_f32 {v(X0)}, {v(PR+1)}, {v(PR+1)}\nv_rcp_f32 {v(X0)}, {v(X0)}")
            p(f"v_add_f32 {v(X1)}, -1.0, {v(LB)}\nv_add_f32 {v(X0)}, {v(X0)}, {v(X0)}")
            p(f"v_mul_f32 {v(X2)}, {v(X1)}, {v(PR)}\nv_fmac_f32 {v(X2)}, {v(LB+1)}, {v(PR+1)}\nv_mul_f32 {v(CF)}, {v(X2)}, {v(X0)}")
            p(f"v_mul_f32 {v(X2)}, {v(LB+1)}, {v(PR)}\nv_fma_f32 {v(X2)}, -{v(X1)}, {v(PR+1)}, {v(X2)}\nv_mul_f32 {v(CF+1)}, {v(X2)}, {v(X0)}")
            csq(L16, LB); csq(L16, L16); csq(L16, L16); csq(L16, L16)
            csq(L32, L16); csq(L64, L32); csq(L128, L64); csq(L256, L128)
            p.atom(f"s_cmp_eq_u32 s{WT}, 0\ns_cselect_b64 vcc, -1, 0")
            p(f"v_cndmask_b32 {v(L64)}, {v(L64)}, 1.0, vcc\nv_cndmask_b32 {v(L64+1)}, {v(L64+1)}, 0, vcc")
            p(f"v_cmp_gt_u32 vcc, 32, {v(VL)}\nv_cndmask_b32 {v(LQ0)}, {v(L32)}, 1.0, vcc\nv_cndmask_b32 {v(LQ0+1)}, {v(L32+1)}, 0, vcc")
            cmul(LQ0, LQ0, L64); cmul(LQ1, LQ0, L16)
        self.pf2()
        self.epoch2()
        self.stamp(0)
        pops = [lambda: p.wait(vm=tp)] + self.cap(params)
        valu = {}
        q = (len(pops) + 15) // 16
        for i in range(16): valu[8 + i] = pops[i * q:(i + 1) * q]
        self.paced(valu, 217, 205, o.get("ut0", 4), o.get("udt", 4))
        rt = {}
        def reads(n):
            st, ks = n // 4, n % 4; sl = st % 3; s = n & 1; ops = []
            for k in range(2):
                def ra(k=k): rt[(n, 'a', k)] = p.lds(f"ds_read_b128 {v(FA+8*s+4*k,4)}, {v(XR+(ks^k))} offset:{sl*16384+k*4096}")
                def rb(k=k): rt[(n, 'b', k)] = p.lds(f"ds_read_b128 {v(FB+8*s+4*k,4)}, {v(BR+ks)} offset:{sl*16384+k*8192}")
                ops += [ra, rb]
            def rx(): p.lds(f"ds_read_b128 {v(FX+4*s,4)}, {v(X1R+ks)} offset:{sl*16384}")
            ops.append(rx)
            for mt in range(3):
                for a in range(2):
                    def rw(mt=mt, a=a):
                        rt[(n, 'w', mt)] = p.lds(f"ds_read_b64_tr_b16 {v(FW+12*s+4*mt+2*a,2)}, {v(WR)} offset:{sl*12288+ks*3072+a*768+mt*64}")
                    ops.append(rw)
            return ops
        def mfmas(n):
            s = n & 1; ops = []
            for (mt, cp) in [(0, 0), (1, 0), (1, 1), (0, 1)]:
                def m(mt=mt, cp=cp):
                    if (mt, cp) == (0, 0): p.wait(lg=rt[(n, 'b', 1)])
                    d = v(ACC + 32 * mt + 16 * cp, 16)
                    p(f"{MF} {d}, {v(FA+8*s+4*mt,4)}, {v(FB+8*s+4*cp,4)}, {'0' if n == 0 else d}")
                ops.append(m)
            for mt in range(3):
                def m(mt=mt):
                    if mt == 0: p.wait(lg=rt[(n, 'w', 2)])
                    d = v(ZA + 16 * mt, 16)
                    p(f"{MF} {d}, {v(FW+12*s+4*mt,4)}, {v(FX+4*s,4)}, {'0' if n == 0 else d}")
                ops.append(m)
            return ops
        self.gemm_loop(3, reads, mfmas, dma, tick, 5, npro, {6: lambda: self.wsp_dma(0), 7: lambda: self.wsp_dma(1)}, valu)
        self.stamp(1)
        def U(sg, cp): return ACC + 32 * (sg >> 3) + 16 * cp + 4 * ((sg & 7) >> 1) + 2 * (sg & 1)
        def step(hr, hi, sg, nr, ni, t0, t1):
            p = self.p; A = v(LB, 2)
            p(f"v_pk_fma_f32 {v(t0,2)}, {A}, {v(hr,2)}, {v(U(sg,0),2)} op_sel_hi:[0,1,1]")
            p(f"v_pk_fma_f32 {v(t1,2)}, {A}, {v(hi,2)}, {v(U(sg,1),2)} op_sel_hi:[0,1,1]")
            p(f"v_pk_fma_f32 {v(nr,2)}, {A}, {v(hi,2)}, {v(t0,2)} op_sel:[1,0,0] op_sel_hi:[1,1,1] neg_lo:[1,0,0] neg_hi:[1,0,0]")
            p(f"v_pk_fma_f32 {v(ni,2)}, {A}, {v(hr,2)}, {v(t1,2)} op_sel:[1,0,0] op_sel_hi:[1,1,1]")
        HA, HBb, T0, EX, E8, AD, GR, CQ = 128, 132, 136, 140, 144, 160, 164, 168
        SCR = 98304
        p(f"s_lshl_b32 s{SA}, s{WP}, 11\ns_add_u32 s{SA}, s{SA}, {SCR}")
        p(f"v_and_b32 {v(AD)}, 31, {v(VL)}\nv_lshlrev_b32 {v(AD)}, 6, {v(AD)}\nv_add_u32 {v(AD)}, s{SA}, {v(AD)}")
        p(f"v_lshrrev_b32 {v(AD+1)}, 5, {v(VL)}\nv_lshl_add_u32 {v(AD+1)}, {v(AD+1)}, 4, {v(AD)}\ns_lshl_b32 s{SA}, s{WT}, 5\nv_add_u32 {v(AD+1)}, s{SA}, {v(AD+1)}")
        Z1P = 192
        SZ0, SZ1 = SXL, SWL
        VA_ = 176
        MA, MB = SK + 2, SK + 4
        def z1st(u):
            mt, q = u >> 1, u & 1
            for i in range(4): p(f"v_cvt_pk_bf16_f32 {v(Z1P+4*u+i)}, {v(ZA+8*u+2*i)}, {v(ZA+8*u+2*i+1)}")
            r = v(Z1P + 4 * u, 4)
            if mt < 2: p.vmem(f"buffer_store_dwordx4 {r}, {v(VL16)}, {srd(SWS)}, s{SZ0} offen offset:{mt*2048+q*1024} sc1")
            else: p.vmem(f"buffer_store_dwordx4 {r}, {v(VA_+q)}, {srd(SWS)}, s{SZ1} offen offset:{q*1024} sc1")
        p(f"s_lshl_b32 s{SA}, s{SCOL}, 6\ns_lshl_b32 s{SB_}, s{SRB}, 2\ns_add_u32 s{SA}, s{SA}, s{SB_}\ns_add_u32 s{SA}, s{SA}, s{SWV}\ns_mul_i32 s{SA}, s{SA}, 5632")
        p(f"s_add_u32 s{SZ0}, s{SA}, {Z1}\ns_add_u32 s{SZ1}, s{SZ0}, 4096")
        p(f"v_cndmask_b32 {v(VA_)}, {v(VOOB)}, {v(VL16)}, {sp(MA)}\nv_cndmask_b32 {v(VA_+1)}, {v(VOOB)}, {v(VL16)}, {sp(MB)}")
        zs = [(lambda u=u: z1st(u)) for u in range(6)]
        self.run(zs[:2])
        p("s_barrier")
        def pass1():
            hr, hi = U(0, 0), U(0, 1)
            for sg in range(1, 16):
                nr, ni = (HA, HA + 2) if sg & 1 else (HBb, HBb + 2)
                step(hr, hi, sg, nr, ni, T0, T0 + 2)
                hr, hi = nr, ni
            self.p(f"v_mov_b32 {v(EX)}, {v(hr)}\nv_mov_b32 {v(EX+1)}, {v(hi)}\nv_mov_b32 {v(EX+2)}, {v(hr+1)}\nv_mov_b32 {v(EX+3)}, {v(hi+1)}")
        d2 = self.wsp_dma(2) + self.wsp_dma(3)
        self.run(merge(merge(self.cap(pass1), zs[2:]), d2[:7]))
        p.lds(f"ds_write_b128 {v(AD+1)}, {v(EX,4)}")
        p.wait_lg_all(); p("s_barrier")
        for i in range(4): p.lds(f"ds_read_b128 {v(E8+4*i,4)}, {v(AD)} offset:{16*i}")
        te = p.lg - 1
        self.run(d2[7:11])
        p(f"s_cmp_eq_u32 s{WT}, 0\ns_cselect_b32 s{SA}, 32, 0")
        p(f"v_cmp_gt_u32 vcc, s{SA}, {v(VL)}\nv_mov_b32 {v(GR+1)}, s{ST_T}\nv_mov_b32 {v(GR+3)}, s{ST_T}\nv_cndmask_b32 {v(T0)}, {v(VOOB)}, {v(VL16)}, vcc")
        p(f"s_lshl_b32 s{SC}, s{SCOL}, 14\ns_lshl_b32 s{SA}, s{WP}, 9\ns_add_u32 s{SC}, s{SC}, s{SA}\ns_add_u32 s{SC}, s{SC}, {EG}")
        p(f"s_lshl_b32 s{SA}, s{SRB}, 10\ns_add_u32 s{SA}, s{SA}, s{SC}")
        p.wait(lg=te); p("s_barrier")
        self.run(merge(self.cap(lambda: [cfma(E8 + 2 * q, L16, E8 + 2 * (q - 1), E8 + 2 * q) for q in range(1, 8)]), d2[11:15]))
        p(f"v_mov_b32 {v(GR)}, {v(E8+14)}\nv_mov_b32 {v(GR+2)}, {v(E8+15)}")
        p.vmem(f"buffer_store_dwordx4 {v(GR,4)}, {v(T0)}, {srd(SWS)}, s{SA} offen sc1")
        self.run(d2[15:])
        self.stamp(2)
        p(f"v_cmp_gt_u32 vcc, 32, {v(VL)}")
        w1 = p.label("w1"); w2 = p.label("w2")
        p(f"s_cmp_eq_u32 s{WT}, 0\ns_cbranch_scc0 {w1}")
        p(f"v_cndmask_b32 {v(CQ)}, {v(E8+2)}, 0, vcc\nv_cndmask_b32 {v(CQ+1)}, {v(E8+3)}, 0, vcc")
        p(f"v_cndmask_b32 {v(CQ+2)}, {v(E8+4)}, {v(E8)}, vcc\nv_cndmask_b32 {v(CQ+3)}, {v(E8+5)}, {v(E8+1)}, vcc")
        p(f"s_branch {w2}")
        p.put(w1)
        for k in range(4): p(f"v_cndmask_b32 {v(CQ+k)}, {v(E8+10+k)}, {v(E8+6+k)}, vcc")
        p.put(w2)
        Z1P = 192
        EGR, EO, EXP, ET = 80, 144, 152, 160
        def eo():
            p = self.p
            p(f"v_lshrrev_b32 {v(ET)}, 5, {v(VL)}\nv_sub_u32 {v(ET)}, s{SRB}, {v(ET)}\nv_add_u32 {v(ET)}, -1, {v(ET)}")
            p(f"v_and_b32 {v(ET+1)}, 31, {v(VL)}\nv_lshlrev_b32 {v(ET+1)}, 4, {v(ET+1)}\nv_mov_b32 {v(ET+3)}, s{ST_T}")
            for q in range(8):
                p(f"v_add_u32 {v(ET+2)}, {-2*q}, {v(ET)}\nv_cmp_le_i32 vcc, 0, {v(ET+2)}\nv_lshl_add_u32 {v(ET+2)}, {v(ET+2)}, 10, {v(ET+1)}")
                p(f"v_cndmask_b32 {v(EO+q)}, {v(VOOB)}, {v(ET+2)}, vcc\nv_cndmask_b32 {v(EXP+q)}, 0, {v(ET+3)}, vcc")
        lgw = lambda: p.wait(lg=p.lg - 1)
        self.run(merge(self.cap(lambda: (eo(), self.g_early(184))), self.wsp_dma(4) + self.wsp_read(0) + self.wsp_read(1)))
        et = {}
        def eload(q):
            et['t'] = p.vmem(f"buffer_load_dwordx4 {v(EGR+4*q,4)}, {v(EO+q)}, {srd(SWS)}, s{SC} offen sc1")
        for q in range(8): eload(q)
        self.run([lgw] + self.wsp_dma(5))
        self.stamp(3)
        l = p.label("ep"); dl = p.label("ed")
        p.wait(vm=et['t'])
        p(f"s_mov_b32 s{SSPIN}, 0")
        p.put(l)
        p(f"v_mov_b32 {v(ET)}, 0")
        for q in range(8):
            p(f"v_xor_b32 {v(ET+1)}, {v(EXP+q)}, {v(EGR+4*q+1)}\nv_xor_b32 {v(ET+2)}, {v(EXP+q)}, {v(EGR+4*q+3)}\nv_or3_b32 {v(ET)}, {v(ET)}, {v(ET+1)}, {v(ET+2)}")
        p(f"v_cmp_ne_u32 vcc, 0, {v(ET)}\ns_cmp_eq_u64 vcc, 0\ns_cbranch_scc1 {dl}")
        for q in range(8): p(f"buffer_load_dwordx4 {v(EGR+4*q,4)}, {v(EO+q)}, {srd(SWS)}, s{SC} offen sc1")
        p("s_waitcnt vmcnt(0)")
        p(f"s_add_u32 s{SSPIN}, s{SSPIN}, 1\ns_cmp_lt_u32 s{SSPIN}, {SPIN}\ns_cbranch_scc1 {l}")
        p.put(dl)
        self.flag_prep(178)
        p(f"s_lshl_b32 s{SA}, s{SCOL}, 6\ns_lshl_b32 s{SB_}, s{SRB}, 2\ns_add_u32 s{SA}, s{SA}, s{SB_}\ns_add_u32 s{SA}, s{SA}, s{SWV}\ns_lshl_b32 s{SA}, s{SA}, 7\ns_add_u32 s{SA}, s{SA}, {Z1F}")
        self.flag(SA, 178)
        self.stamp(4)
        OP, OT, HO = 80, 144, 132
        MA, MB = SK + 2, SK + 4
        SH0, SH1 = SXB, SW1B
        def pass2a():
            p = self.p
            p(f"s_lshl_b32 s{SA}, s{SD}, 3\ns_add_u32 s{SA}, s{SA}, s{SCOL}\ns_lshl_b32 s{SA}, s{SA}, 14\ns_lshl_b32 s{SB_}, s{WP}, 12\ns_add_u32 s{SA}, s{SA}, s{SB_}")
            p(f"s_add_u32 s{SH0}, s{SA}, {HB}\ns_add_u32 s{SH1}, s{SH0}, 8192")
            p(f"v_lshrrev_b32 {v(T0)}, 5, {v(VL)}\nv_lshlrev_b32 {v(T0)}, 11, {v(T0)}\nv_and_b32 {v(T0+1)}, 31, {v(VL)}\nv_lshl_add_u32 {v(HO)}, {v(T0+1)}, 4, {v(T0)}")
            for k in range(1, 4): p(f"v_xor_b32 {v(HO+k)}, {64*k}, {v(HO)}")
            for q in range(8): p(f"v_mov_b32 {v(EGR+4*q+1)}, {v(EGR+4*q+2)}")
            S = EGR + 28
            for q in range(6, -1, -1): cfma(S, L256, S, EGR + 4 * q)
            p(f"v_mov_b32 {v(ET)}, {v(S)}\nv_mov_b32 {v(ET+1)}, {v(S+1)}\nv_permlane32_swap_b32 {v(S)}, {v(ET)}\nv_permlane32_swap_b32 {v(S+1)}, {v(ET+1)}")
            cfma(S, L128, ET, S)
            cfma(CQ, LQ0, S, CQ); cfma(CQ + 2, LQ1, S, CQ + 2)
            p(f"v_mov_b32 {v(HA)}, {v(CQ)}\nv_mov_b32 {v(HA+1)}, {v(CQ+2)}\nv_mov_b32 {v(HA+2)}, {v(CQ+1)}\nv_mov_b32 {v(HA+3)}, {v(CQ+3)}")
        def pass2(s0, s1):
            p = self.p
            Cc = v(CF, 2)
            for sg in range(s0, s1):
                hr, hi = (HA, HA + 2) if sg == 0 else (U(sg - 1, 0), U(sg - 1, 1))
                step(hr, hi, sg, U(sg, 0), U(sg, 1), T0, T0 + 2)
                hr, hi = U(sg, 0), U(sg, 1)
                oo = OT + 4 * (sg & 1) + 8 * ((sg >> 1) & 1)
                p(f"v_pk_mul_f32 {v(oo,2)}, {Cc}, {v(hr,2)} op_sel_hi:[0,1]")
                p(f"v_pk_mul_f32 {v(oo+2,2)}, {Cc}, {v(hi,2)} op_sel_hi:[0,1] neg_lo:[1,0] neg_hi:[1,0]")
                p(f"v_pk_fma_f32 {v(oo,2)}, {Cc}, {v(hi,2)}, {v(oo,2)} op_sel:[1,0,0] op_sel_hi:[1,1,1] neg_lo:[1,0,0] neg_hi:[1,0,0]")
                p(f"v_pk_fma_f32 {v(oo+2,2)}, {Cc}, {v(hr,2)}, {v(oo+2,2)} op_sel:[1,0,0] op_sel_hi:[1,1,1] neg_lo:[1,0,0] neg_hi:[1,0,0]")
                if sg & 1:
                    q, i = sg >> 3, (sg & 7) >> 1
                    for cp in range(2):
                        for e in range(2):
                            p(f"v_cvt_pk_bf16_f32 {v(OP+16*cp+8*e+4*q+i)}, {v(oo-4+2*cp+e)}, {v(oo+2*cp+e)}")
        def hst(cp, k):
            if o.get("x_nost"): return
            p.vmem(f"buffer_store_dwordx4 {v(OP+16*cp+4*k,4)}, {v(HO+k)}, {srd(SWS)}, s{SH0 if cp == 0 else SH1} offen offset:{512*k} sc1")
        uo = o.get("uo", 0)
        if uo:
            H1 = [(lambda cp=cp, k=k: hst(cp, k)) for k in (0, 2) for cp in range(2)]
            H2 = [(lambda cp=cp, k=k: hst(cp, k)) for k in (1, 3) for cp in range(2)]
            self.run(merge(self.cap(pass2a), self.wsp_read(2) + self.wsp_read(3)))
            self.run(merge(self.cap(lambda: pass2(0, 8)), (self.wsp_dma(6) if uo == 2 else []) + self.wsp_read(4)))
            self.run(merge(self.cap(lambda: pass2(8, 16)), H1))
            self.run(H2 + ([] if uo == 2 else self.wsp_dma(6)) + [lgw] + self.wsp_dma(7) + self.wsp_read(5))
            self.g_poll_issue()
            self.run(self.wsp_read(6) + self.wsp_read(7))
        else:
            self.run(merge(self.cap(pass2a), self.wsp_dma(6) + self.wsp_read(2) + [lgw]))
            self.run(merge(self.cap(lambda: pass2(0, 8)), self.wsp_dma(7) + self.wsp_read(3)))
            self.g_poll_issue()
            self.run(merge(merge(self.cap(lambda: pass2(8, 16)), [(lambda cp=cp, k=k: hst(cp, k)) for k in (0, 2) for cp in range(2)]), self.wsp_read(4) + self.wsp_read(5)))
            h2 = [(lambda cp=cp, k=k: hst(cp, k)) for k in (1, 3) for cp in range(2)]
            self.run(merge(self.wsp_read(6) + self.wsp_read(7), h2))
        p(f"s_lshl_b32 s{SLATE}, s{SE}, 7\ns_add_u32 s{SLATE}, s{SLATE}, {HF}")
        self.stamp(5)
        p(f"s_branch {self.LG}")

    CD, CR, HT, GY, WD, WT_ = 210, 214, 218, 240, 244, 228
    ZUP = [4, 6, 8, 10, 12, 14, 204, 206, 208, 248, 250, 252]
    YSL = [1, 1, 0, 1]
    YB = [96, 160, 96, 160]
    def wo_dma(self, parts):
        items = []
        for (i0, i1, base) in parts:
            for i in range(i0, i1):
                def cb(t, i=i): self.wo[i] = t
                k = i - i0
                items.append(((SREG, base + k * 1024) if k % 4 == 0 else None, (SXB, i * 8192) if k % 4 == 0 else None,
                              f"buffer_load_dwordx4 {v(self.WD+k%4)}, {srd(SWOUT)}, s{SDO} offen offset:{(k%4)*1024} lds", cb))
        return self.dseq(items)
    def c_setup(self):
        p = self.p
        self.plain_dma_addr(self.CD, 1024, 224)
        p(f"s_add_u32 s{SA}, s{SREG}, 4096")
        self.plain_read_addr(self.CR, SA, 224)
        p(f"s_add_u32 s{SA}, s{SREG}, {4096+8192}")
        self.unit_tr_addr(self.HT, SA, 224, False)
        p(f"s_lshl_b32 s{SCB}, s{SCOL}, 16\ns_lshl_b32 s{SA}, s{SWV}, 8\ns_add_u32 s{SCB}, s{SCB}, s{SA}")
        p(f"s_lshl_b32 s{SHB}, s{STB}, 17\ns_lshl_b32 s{SA}, s{SWV}, 15\ns_add_u32 s{SHB}, s{SHB}, s{SA}\ns_add_u32 s{SHB}, s{SHB}, {HB}")
        self.yt = {}
    def y_items(self, s):
        sl = self.YSL[s]; items = []
        def cb(t): self.yt[s] = t
        for hh in range(2):
            for i in range(4):
                items.append(((SREG, 4096 + sl * 20480 + hh * 4096), (SCB, (s >> 1) * 128 + hh * 32768),
                              f"buffer_load_dwordx4 {v(self.CD+i)}, {srd(SCIM if s & 1 else SCRE)}, s{SDO} offen offset:{i*1024} lds", cb))
        for hh in range(2):
            for i in range(4):
                items.append(((SREG, 4096 + sl * 20480 + 8192 + hh * 4096), (SHB, s * 8192 + hh * 4096),
                              f"buffer_load_dwordx4 {v(VL16)}, {srd(SWS)}, s{SDO} offen offset:{i*1024} sc1 lds", cb))
        return items
    def y_dma(self, s): return self.dseq(self.y_items(s))
    def y_read(self, s):
        p = self.p; sl = self.YSL[s]; ops = []
        self.yr = getattr(self, "yr", {})
        for ks in range(4):
            def f(ks=ks):
                p.wait(vm=self.yt[s], lg=p.lg - 10)
                b = self.YB[s] + 16 * ks
                for k in range(2):
                    p.lds(f"ds_read_b128 {ar(b+4*k,4)}, {v(self.CR+ks)} offset:{sl*20480+k*4096}")
                    for a in range(2):
                        self.yr[(s, ks)] = p.lds(f"ds_read_b64_tr_b16 {ar(b+8+4*k+2*a,2)}, {v(self.HT+a)} offset:{sl*20480+(ks>>1)*4096+k*2048+(ks&1)*256}")
            ops.append(f)
        return ops
    def phase_g(self):
        p = self.p; o = self.o
        p.c("==== phase B: G ====")
        p.put(self.LG)
        p.vm_done = -1; p.lg_done = -1
        ACC, FA, TR, T = 16, 112, self.GTR, 186
        Z1R, BI, PV, WD, PL, PL2, PL3, OGV = 190, 202, 203, self.WD, self.GPL, 222, 234, 241
        Q = SK + 9
        AOFF = 24576
        lgw = lambda: p.wait(lg=p.lg - 1)
        p(f"s_mov_b32 s{SCOL}, s{SJ}")
        def late_setup():
            p = self.p
            p(f"s_lshl_b32 s{SE}, s{STB}, 11\ns_add_u32 s{SE}, s{SE}, {HF}")
            p(f"s_lshl_b32 s{SA}, s{SZI}, 7\ns_add_u32 s{SA}, s{SA}, {Z1F}")
            self.poll_addr(PL3, [(SE, 16), (SA, 1)])
            p(f"s_lshr_b32 s{SA}, s{STB}, 1\ns_lshl_b32 s{SA}, s{SA}, 9\ns_add_u32 s{SA}, s{SA}, {ZF2}")
            p(f"v_bfe_u32 {v(T)}, {v(VL)}, 2, 3\nv_lshlrev_b32 {v(T)}, 13, {v(T)}\nv_and_b32 {v(T+1)}, 3, {v(VL)}\nv_lshl_add_u32 {v(T)}, {v(T+1)}, 7, {v(T)}\nv_add_u32 {v(T)}, s{SA}, {v(T)}")
            p(f"s_mov_b32 vcc_lo, 0\ns_mov_b32 vcc_hi, -1\nv_cndmask_b32 {v(PL3)}, {v(PL3)}, {v(T)}, vcc")
            self.flag_prep(220)
            p(f"v_lshrrev_b32 {v(T)}, 3, {v(VL)}\nv_lshlrev_b32 {v(T)}, 10, {v(T)}")
            p(f"v_bfe_u32 {v(T+1)}, {v(VL)}, 4, 1\nv_lshlrev_b32 {v(T+1)}, 2, {v(T+1)}\nv_and_b32 {v(T+2)}, 7, {v(VL)}\nv_xor_b32 {v(T+1)}, {v(T+1)}, {v(T+2)}")
            p(f"v_lshl_add_u32 {v(WD)}, {v(T+1)}, 4, {v(T)}")
            for i in range(1, 4): p(f"v_add_u32 {v(WD+i)}, {i*7168}, {v(WD)}")
            p(f"s_mul_i32 s{SXB}, s{SWV}, {176*1024}\ns_lshl_b32 s{SA}, s{SCOL}, 7\ns_add_u32 s{SXB}, s{SXB}, s{SA}")
            self.panel_tr_addr(self.WT_, SREG, 224, False)
        p(f"s_lshr_b32 s{Q}, s{SWV}, 1\ns_and_b32 s{SC}, s{SZI}, 63")
        p.atom(f"s_cmp_lt_u32 s{SCOL}, 7\ns_cselect_b32 s{SD}, 64, 32")
        p(f"s_lshl_b32 s{SF}, s{Q}, 5\ns_sub_u32 s{SD}, s{SD}, s{SF}")
        p(f"v_cmp_gt_u32 vcc, s{SD}, {v(VL)}\nv_and_b32 {v(T)}, 31, {v(VL)}\ns_lshl_b32 s{SA}, s{SC}, 5\nv_cndmask_b32 {v(PV)}, {v(VOOB)}, {v(VL16)}, vcc")
        p(f"v_add_lshl_u32 {v(T)}, {v(T)}, s{SA}, 1")
        p.vmem(f"global_load_ushort {v(BI)}, {v(T)}, {sp(PBSP)}")
        p(f"s_mul_i32 s{SD}, s{SZI}, 5632\ns_lshl_b32 s{SB_}, s{Q}, 10\ns_add_u32 s{SD}, s{SD}, s{SB_}\ns_add_u32 s{SD}, s{SD}, {Z1}\ns_add_u32 s{SE}, s{SD}, 4096")
        p(f"v_and_b32 {v(PL2)}, 31, {v(VL)}\nv_lshlrev_b32 {v(PL2)}, 2, {v(PL2)}")
        p.wait_lg_all()
        self.stamp(6)
        l = p.label("gp"); dn = p.label("gd")
        p(f"s_waitcnt vmcnt({1 if o.get('uo') else 9})")
        p(f"s_cmp_ge_u32 s2, 128\ns_cbranch_scc1 {l}\ns_waitcnt vmcnt({7 if o.get('zsched', 0) else 0})")
        p.put(l)
        p(f"v_cmp_ne_u32 vcc, s{ST_T}, {v(PL+1)}\ns_and_b32 vcc_hi, vcc_hi, 0xffff\ns_or_b32 s{SF}, vcc_lo, vcc_hi\ns_cbranch_scc0 {dn}")
        self.poll(PL, 48)
        p.put(dn)
        p("s_barrier")
        g0 = p.vm
        def late_flag():
            nf = p.label("nf")
            p(f"s_cmp_eq_u32 s{SLATE}, 0\ns_cbranch_scc1 {nf}")
            p(f"s_waitcnt vmcnt({p.vm - g0})")
            p(f"buffer_store_dword {v(220)}, {v(221)}, {srd(SWS)}, s{SLATE} offen sc1")
            p.put(nf)
        p.vm_done = -1
        self.stamp(7)
        def soff(B): return ((B & 3) >> 1) * 40960 + (B & 1) * 12288
        tick = {}
        def dma(B):
            items = []
            for i in range(6):
                def cb(t): tick[B] = t
                g = i // 4
                txt = f"buffer_load_dwordx4 {v(VL16 if i < 4 else TR + 1)}, {srd(SWS)}, s{SDO} offen offset:{(i%4)*1024} sc1 lds"
                items.append(((SGL, soff(B) + g * 4096) if i % 4 == 0 else None, (SGB, B * 12288 + g * 4096) if i % 4 == 0 else None, txt, cb))
            return self.dseq(items)
        z1t = {}
        def z1load():
            p.vmem(f"buffer_load_dwordx4 {v(Z1R,4)}, {v(VL16)}, {srd(SWS)}, s{SD} offen sc1")
            p.vmem(f"buffer_load_dwordx4 {v(Z1R+4,4)}, {v(VL16)}, {srd(SWS)}, s{SD} offen offset:2048 sc1")
            p(f"s_add_u32 s{SD}, s{SD}, 4096")
            z1t['t'] = p.vmem(f"buffer_load_dwordx4 {v(Z1R+8,4)}, {v(PV)}, {srd(SWS)}, s{SD} offen sc1")
        self.run(dma(0))
        self.run(merge(self.cap(lambda: (late_setup(), self.c_setup())), dma(1)))
        def gyl():
            p(f"s_lshl_b32 s{SA}, s{STB}, 8\ns_add_u32 s{SA}, s{SA}, {GATE}")
            p.vmem(f"buffer_load_dword {v(self.GY)}, {v(PL2)}, {srd(SWS)}, s{SA} offen sc1")
            p.vmem(f"buffer_load_dword {v(self.GY+2)}, {v(PL2)}, {srd(SWS)}, s{SA} offen offset:128 sc1")
            p(f"s_lshl_b32 s{SA}, s{SC}, 7\ns_add_u32 s{SA}, s{SA}, {GATE}")
            p.vmem(f"buffer_load_dword {v(OGV)}, {v(PL2)}, {srd(SWS)}, s{SA} offen sc1")
        def z1gelu():
            c1 = -2 * LOG2E * 0.7978845608028654
            self.VC0 = 188
            self.p(f"s_mov_b32 s{SK}, {f2u(c1*0.044715)}\nv_mov_b32 {v(188)}, {f2u(c1)}")
            for i in range(12): self.unpack(self.ZUP[i], Z1R + i)
            self.gelu_many(self.ZUP, [24, 26, 28, 30])
        lt = {}
        def issue(r):
            lt[r] = p.vmem(f"buffer_load_dword {v(r+1)}, {v(r)}, {srd(SWS)}, 0 offen sc1")
        def check(r, mask):
            l = p.label("lp"); d = p.label("ld")
            p.wait(vm=lt[r])
            p(f"s_mov_b32 s{SSPIN}, 0")
            p.put(l)
            p(f"v_cmp_ne_u32 vcc, s{ST_T}, {v(r+1)}\ns_and_b32 s{SF}, vcc_lo, {mask}\ns_or_b32 s{SF}, s{SF}, vcc_hi\ns_cbranch_scc0 {d}")
            p(f"buffer_load_dword {v(r+1)}, {v(r)}, {srd(SWS)}, 0 offen sc1\ns_waitcnt vmcnt(0)")
            p(f"s_add_u32 s{SSPIN}, s{SSPIN}, 1\ns_cmp_lt_u32 s{SSPIN}, {SPIN}\ns_cbranch_scc1 {l}")
            p.put(d)
        rt = {}
        def fset(hb): return FA + 24 * (2 if hb == 15 else hb & 1)
        FO = [(0, 0), (0, 1), (0, 2), (1, 0), (1, 1), (1, 2)]; FP = {(0, 0): 0, (0, 1): 1, (1, 0): 2, (1, 1): 3, (0, 2): 4, (1, 2): 5}
        def reads(hb):
            B, e = hb >> 1, hb & 1; ops = []
            for (ks, mt) in FO:
                def ra(ks=ks, mt=mt):
                    rt[(hb, ks, mt)] = p.lds(f"ds_read_b128 {v(fset(hb)+12*ks+4*mt,4)}, {v(TR)} offset:{soff(B)+e*6144+FP[(ks,mt)]*1024}")
                ops.append(ra)
            return ops
        def mf(hb, ks, mt, nt):
            def m():
                p.wait(lg=rt[(hb, ks, 2 if hb < 14 else mt)])
                d = v(ACC + 16 * (2 * mt + nt), 16); kap = 2 * hb + ks
                p(f"{MF} {d}, {v(fset(hb)+12*ks+4*mt,4)}, {ar((kap*2+nt)*4,4)}, {'0' if kap == 0 else d}")
            return m
        self.wo = wo = {}
        def WOA(kap): return (kap - 8) * 8 if kap >= 8 else 24 + kap * 8
        def wo_rd(kap):
            def f():
                p.wait(vm=wo[2 * kap + 1], lg=p.lg - 12)
                for mt in range(2):
                    for a in range(2):
                        base = AOFF + (kap if kap < 8 else kap - 8) * 2048
                        p.lds(f"ds_read_b64_tr_b16 {ar(WOA(kap)+4*mt+2*a,2)}, {v(self.WT_+mt)} offset:{base+a*512}")
            return f
        p.wait(vm=tick[0]); p("s_barrier")
        self.run(reads(0))
        wa = self.wo_dma([(16, 22, AOFF)])
        def wb(i0, i1): return self.wo_dma([(i0, i1, AOFF + i0 * 1024)])
        y0 = self.y_dma(0)
        y1 = self.y_dma(1)
        yc0 = self.dseq(self.y_items(0)[:8]); yc0b = self.dseq(self.y_items(0)[:4]);
        def ypart(s_, a, b): return self.dseq(self.y_items(s_)[a:b])
        extra = {0: dma(2), 1: dma(3), 2: wa, 4: [wo_rd(8), wo_rd(9), wo_rd(10), lgw] + wb(0, 3), 5: wb(3, 4), 6: wb(4, 9) + [gyl], 7: wb(9, 10), 8: wb(10, 16) + [lambda: issue(PL3)],
                 10: [wo_rd(k) for k in range(8)] + [lgw] + ypart(0, 0, 2), 11: ypart(0, 2, 8) + [z1load], 12: ypart(0, 8, 13), 13: ypart(0, 13, 16)}
        gl = o.get("gl", 0)
        if gl:
            self.YSL = [0, 1, 0, 1]
            y0, y1 = self.y_dma(0), self.y_dma(1)
            extra = {0: dma(2), 1: dma(3), 2: wa[:4], 3: wa[4:], 5: [wo_rd(8), wo_rd(9), wo_rd(10)], 6: [lgw] + wb(0, 3) + [gyl], 7: wb(3, 4), 8: wb(4, 8) + [lambda: issue(PL3)],
                     9: wb(8, 11), 10: wb(11, 14), 11: wb(14, 16) + [z1load]}
            extra[3] = extra[3]
        gel = {}
        for hb in range(14):
            if o.get("gstamps") and hb % 2 == 0: self.stamp(21 + hb // 2)
            B = hb >> 1
            if hb & 1:
                p.wait(vm=tick[B + 1], lg=p.lg - 1); p("s_barrier")
            if hb == 11: check(PL3, 0x1ffff)
            mm = [mf(hb, ks, mt, nt) for ks in range(2) for mt in range(3) for nt in range(2)]
            rd = reads(hb + 1) + (reads(15) if hb == 13 else [])
            seq = merge(mm, rd, 0, 8 if hb == 13 else 6)
            f = list(extra.get(hb, []))
            if hb & 1 and B + 4 < 8: f = f + dma(B + 4)
            if f: seq = merge(seq, f, len(seq) // 4)
            if hb in gel: seq = merge(seq, gel[hb])
            if hb == o.get("hflag", 3): seq = seq + [late_flag]
            self.run(seq)
        VW, VRD = T, T + 1
        p(f"s_xor_b32 s{SA}, s{SWV}, 2\ns_mul_i32 s{SA}, s{SA}, 40960\nv_add_u32 {v(VW)}, s{SREG}, {v(VL16)}\nv_add_u32 {v(VRD)}, s{SA}, {v(VL16)}")
        def roff(i): return i * 1024
        def rw(ti):
            return [(lambda hq=hq: p.lds(f"ds_write_b128 {v(VW)}, {v(ACC+16*ti+8+4*hq,4)} offset:{roff(2*ti+hq)}")) for hq in range(2)]
        tiles = [1, 3, 5, 0, 2, 4]
        for n_, ti in enumerate(tiles):
            mm = [mf(hb, ks, ti >> 1, ti & 1) for hb in (14, 15) for ks in range(2)]
            f = (rw(tiles[n_ - 2]) if n_ >= 2 else [])
            self.run(merge(mm, f))
        self.stamp(8)
        yl = o.get('y0late', 0) or gl
        self.run(merge([] if yl else self.y_read(0), rw(tiles[4]) + rw(tiles[5])) if not yl else rw(tiles[4]) + rw(tiles[5]))
        p.wait_lg_all(); p("s_barrier")
        RB = 112
        tk = {}
        for n_, ti in enumerate(tiles):
            for hq in range(2): tk[(ti, hq)] = p.lds(f"ds_read_b128 {v(RB+8*ti+4*hq,4)}, {v(VRD)} offset:{roff(2*ti+hq)}")
        if not yl: self.run(y1[:3])
        def radd(ti):
            for hq in range(2):
                p.wait(lg=tk[(ti, hq)])
                for hh in range(2): p(f"v_pk_add_f32 {v(ACC+16*ti+4*hq+2*hh,2)}, {v(ACC+16*ti+4*hq+2*hh,2)}, {v(RB+8*ti+4*hq+2*hh,2)}")
        XS = [40, 44, 56, 60]; XR = [72, 76, 88, 92]
        p(f"s_lshl_b32 s{SA}, s2, 2\ns_add_u32 s{SA}, s{SA}, s{SWV}\ns_lshl_b32 s{SA}, s{SA}, 12\ns_add_u32 s{SA}, s{SA}, {XB}\ns_xor_b32 s{SE}, s{SA}, {(64 if o.get('xl') else 1) * 16384}")
        for g in range(4): p(f"v_mov_b32 {v(XS[g]+3)}, s{ST_T}")
        for ti in (1, 3, 5): radd(ti)
        for i in range(12):
            src = ACC + 16 * (2 * (i >> 2) + 1) + 2 * (i & 3)
            p(f"v_cvt_pk_bf16_f32 {v(XS[i//3]+i%3)}, {v(src)}, {v(src+1)}")
            if i % 3 == 2: p.vmem(f"buffer_store_dwordx4 {v(XS[i//3],4)}, {v(VL16)}, {srd(SWS)}, s{SA} offen offset:{(i//3)*1024} {o.get('xm', 'sc1')}")
        if yl and not gl: self.run(self.y_read(0))
        for ti in (0, 2, 4): radd(ti)
        if yl and not gl: self.run([lgw] + y1[:3])
        p("s_barrier")
        self.stamp(9)

        p.c("==== phase C ====")
        YA, PA = 112, 16
        XE, GE, DE, OV, P10, PLP, TC = 186, 194, 198, 184, 185, 222, 64
        RW, RX, WA, RA = 176, 177, 180, 230
        SROW, SXO, SPB_ = SXL, SWL, SW1B
        ep = {}
        def setup():
            p = self.p; T = TC
            p(f"v_lshrrev_b32 {v(T)}, 4, {v(VL)}\nv_and_b32 {v(T+1)}, 15, {v(VL)}")
            p(f"v_lshlrev_b32 {v(T+2)}, 10, {v(T)}\nv_lshl_add_u32 {v(T+2)}, {v(T+1)}, 3, {v(T+2)}")
            p(f"v_lshlrev_b32 {v(T+3)}, 2, {v(T)}\nv_lshlrev_b32 {v(T+4)}, 3, {v(T+1)}")
            p(f"v_lshlrev_b32 {v(OV)}, 1, {v(T+2)}")
            p(f"s_lshl_b32 s{SROW}, s{STB}, 6\ns_lshl_b32 s{SA}, s{SWV}, 4\ns_add_u32 s{SROW}, s{SROW}, s{SA}")
            p(f"s_lshl_b32 s{SXO}, s{SROW}, 10\ns_lshl_b32 s{SA}, s{SCOL}, 7\ns_add_u32 s{SXO}, s{SXO}, s{SA}\nv_add_u32 {v(T+4)}, s{SA}, {v(T+4)}")
            p(f"s_lshl_b32 s{SA}, s{STB}, 12\ns_lshl_b32 s{SB_}, s{SWV}, 10\ns_add_u32 s{SB_}, s{SB_}, s{SA}\ns_add_u32 s{SB_}, s{SB_}, {PF}")
            self.poll_addr(PLP, [(SB_, 8)])
            p.atom(f"s_cmp_eq_u32 s{SWV}, 3\ns_cselect_b64 vcc, -1, 0")
            p(f"v_cndmask_b32 {v(P10)}, {v(VL16)}, {v(VOOB)}, vcc")
            p(f"s_mul_i32 s{SPB_}, s{STB}, {2*45056}\ns_mul_i32 s{SA}, s{SWV}, {22*512}\ns_add_u32 s{SPB_}, s{SPB_}, s{SA}\ns_add_u32 s{SPB_}, s{SPB_}, {PB}")
            p(f"s_add_u32 s{SA}, s{SREG}, 4096\nv_and_b32 {v(RW)}, 31, {v(VL)}\nv_lshlrev_b32 {v(RW)}, 8, {v(RW)}\nv_add_u32 {v(RW)}, s{SA}, {v(RW)}")
            p(f"v_lshrrev_b32 {v(RX)}, 5, {v(VL)}\nv_and_b32 {v(RX+1)}, 7, {v(VL)}\nv_xor_b32 {v(RX)}, {v(RX)}, {v(RX+1)}\nv_lshlrev_b32 {v(RX)}, 4, {v(RX)}")
            for i in range(4): p(f"v_xor_b32 {v(WA+i)}, {32*i}, {v(RX)}\nv_add_u32 {v(WA+i)}, {v(WA+i)}, {v(RW)}")
            p(f"v_xor_b32 {v(T+1)}, {v(T+1)}, {v(T)}\nv_lshlrev_b32 {v(T+1)}, 4, {v(T+1)}")
            p(f"v_lshlrev_b32 {v(T)}, 8, {v(T)}\ns_lshl_b32 s{SA}, s{SWV}, 12\ns_add_u32 s{SA}, s{SA}, 4096\nv_add_u32 {v(T)}, s{SA}, {v(T)}")
            p(f"v_add_u32 {v(RA)}, {v(T)}, {v(T+1)}\nv_xor_b32 {v(T+1)}, 64, {v(T+1)}\nv_add_u32 {v(RA+1)}, {v(T)}, {v(T+1)}")
            p(f"v_add_u32 {v(RA+2)}, 81920, {v(RA)}\nv_add_u32 {v(RA+3)}, 81920, {v(RA+1)}")
            p(f"s_lshr_b32 s{SLATE}, s{SC}, 1\ns_lshl_b32 s{SLATE}, s{SLATE}, 3\ns_add_u32 s{SLATE}, s{SLATE}, s{SCOL}\ns_lshl_b32 s{SLATE}, s{SLATE}, 1\ns_add_u32 s{SLATE}, s{SLATE}, s{SKH}")
            p(f"s_lshl_b32 s{SLATE}, s{SLATE}, 1\ns_add_u32 s{SLATE}, s{SLATE}, s{Q}\ns_lshl_b32 s{SLATE}, s{SLATE}, 7\ns_add_u32 s{SLATE}, s{SLATE}, {PF}")
            p(f"s_mul_i32 s{SD}, s{SC}, 45056\ns_mul_i32 s{SB_}, s{SCOL}, 5632\ns_add_u32 s{SD}, s{SD}, s{SB_}\ns_lshl_b32 s{SB_}, s{Q}, 10\ns_add_u32 s{SD}, s{SD}, s{SB_}\ns_add_u32 s{SD}, s{SD}, {PB}")
            p(f"v_lshlrev_b32 {v(BI)}, 16, {v(BI)}\nv_sub_f32 {v(178)}, 1.0, {v(OGV)}\nv_mul_f32 {v(179)}, {v(178)}, {v(BI)}")
        def eloads():
            T = TC
            for gi in range(4):
                p(f"s_add_u32 s{SA}, s{SXO}, {gi*4096}")
                p.vmem(f"buffer_load_dwordx2 {v(XE+2*gi,2)}, {v(T+2)}, {srd(SX)}, s{SA} offen")
            p(f"s_lshl_b32 s{SA}, s{SROW}, 2\ns_add_u32 s{SA}, s{SA}, {GATE}")
            for gi in range(4): p.vmem(f"buffer_load_dword {v(GE+gi)}, {v(T+3)}, {srd(SWS)}, s{SA} offen offset:{gi*16} sc1")
            ep['t'] = p.vmem(f"global_load_dwordx2 {v(DE,2)}, {v(T+4)}, {sp(PDSK)}")
        T4 = [(0, 0), (1, 0), (1, 1), (0, 1)]
        def ym(s):
            ops = []
            for ks in range(4):
                for (mt, nt) in T4:
                    def m(ks=ks, mt=mt, nt=nt):
                        p.wait(lg=self.yr[(s, ks)])
                        d = v(YA + 16 * (2 * mt + nt), 16); b = self.YB[s] + 16 * ks
                        p(f"{MF} {d}, {ar(b+4*mt,4)}, {ar(b+8+4*nt,4)}, {'0' if (s, ks) == (0, 0) else d}")
                    ops.append(m)
            return ops
        pt = {}
        def ploads():
            ops = []
            for nt in range(2):
                for kap in range(11):
                    def f(kap=kap, nt=nt):
                        if kap % 4 == 0: p(f"s_add_u32 s{SB_}, s{SPB_}, {nt*45056+kap*1024}")
                        pt[(kap, nt)] = p.vmem(f"buffer_load_dwordx4 {v(PA+(kap*2+nt)*4,4)}, {v(P10 if kap == 10 else VL16)}, {srd(SWS)}, s{SB_} offen offset:{(kap%4)*1024} sc1")
                    ops.append(f)
            return ops
        xt = {}
        def xload():
            for g in range(4): xt['t'] = p.vmem(f"buffer_load_dwordx4 {v(XR[g],4)}, {v(VL16)}, {srd(SWS)}, s{SE} offen offset:{g*1024} sc1")
        def xcheck():
            l = p.label("xp"); d = p.label("xd")
            p.wait(vm=xt['t'])
            p(f"s_mov_b32 s{SSPIN}, 0")
            p.put(l)
            p(f"v_xor_b32 {v(32)}, s{ST_T}, {v(XR[0]+3)}\nv_xor_b32 {v(33)}, s{ST_T}, {v(XR[1]+3)}\nv_xor_b32 {v(34)}, s{ST_T}, {v(XR[2]+3)}\nv_xor_b32 {v(35)}, s{ST_T}, {v(XR[3]+3)}")
            p(f"v_or3_b32 {v(32)}, {v(32)}, {v(33)}, {v(34)}\nv_or_b32 {v(32)}, {v(32)}, {v(35)}")
            p(f"v_cmp_ne_u32 vcc, 0, {v(32)}\ns_cmp_eq_u64 vcc, 0\ns_cbranch_scc1 {d}")
            for g in range(4): p(f"buffer_load_dwordx4 {v(XR[g],4)}, {v(VL16)}, {srd(SWS)}, s{SE} offen offset:{g*1024} sc1")
            p("s_waitcnt vmcnt(0)")
            p(f"s_add_u32 s{SSPIN}, s{SSPIN}, 1\ns_cmp_lt_u32 s{SSPIN}, {SPIN}\ns_cbranch_scc1 {l}")
            p.put(d)
        PK = [24, 28, 104]
        def pepi(mt):
            p = self.p
            for i in range(4 * mt, 4 * mt + 4): self.unpack(32 + 2 * (i & 3), XR[i // 3] + i % 3)
            for i in range(4):
                a = ACC + 32 * mt + 2 * i
                p(f"v_pk_add_f32 {v(a,2)}, {v(a,2)}, {v(32+2*i,2)}")
            for i in range(4):
                a = ACC + 32 * mt + 2 * i
                p(f"v_pk_fma_f32 {v(a,2)}, {v(a,2)}, {v(178,2)}, {v(178,2)} op_sel:[0,0,1] op_sel_hi:[1,0,1]")
            for i in range(4):
                a = ACC + 32 * mt + 2 * i
                p(f"v_pk_mul_f32 {v(a,2)}, {v(a,2)}, {v(self.ZUP[4*mt+i],2)}")
            for i in range(4):
                a = ACC + 32 * mt + 2 * i
                p(f"v_cvt_pk_bf16_f32 {v(PK[mt]+i)}, {v(a)}, {v(a+1)}")
        def pflag():
            p.wait(vm=ep['p']); self.flag(SLATE, 220)
        su = self.cap(setup)
        y2, y3, pl_ = self.y_dma(2), self.y_dma(3), ploads()
        sent = 1
        zg = [lambda: p.wait(vm=z1t['t'])] + self.cap(z1gelu)
        c1_ = o.get("c1", 9); c2_ = o.get("c2", 16)
        def pe():
            pepi(0); p.vmem(f"buffer_store_dwordx4 {v(PK[0],4)}, {v(VL16)}, {srd(SWS)}, s{SD} offen {o.get('pm', 'sc1')}")
            pepi(1); p.vmem(f"buffer_store_dwordx4 {v(PK[1],4)}, {v(VL16)}, {srd(SWS)}, s{SD} offen offset:2048 {o.get('pm', 'sc1')}")
            p(f"s_add_u32 s{SD}, s{SD}, 4096")
            pepi(2); ep['p'] = p.vmem(f"buffer_store_dwordx4 {v(PK[2],4)}, {v(PV)}, {srd(SWS)}, s{SD} offen {o.get('pm', 'sc1')}")
        if gl:
            g1, g2 = o.get("g1", 6), o.get("g2", 17)
            w_ = merge(zg + su, [wo_rd(k) for k in range(8)])
            h_ = len(w_) * o.get("xat", 50) // 100
            self.run(merge(w_[:h_], y0[:g1]) + [xload] + merge(w_[h_:], y0[g1:g2]))
            self.run(y0[g2:] + [lgw] + y1[:o.get("g3", 1)])
            xcheck()
            self.stamp(10)
            pe()
            self.run(y1[o.get("g3", 1):12])
            self.run(merge(self.y_read(0), y1[12:]))
            self.run(merge(ym(0), [lgw] + y2[:9]))
            self.run(merge(self.y_read(1), y2[9:13]))
            y3a = 4
            self.run(merge(ym(1), y2[13:] + [lgw] + y3[:y3a]))
        else:
            nx = y1[3:] + y2
            self.run(merge(zg, nx[:c1_]))
            xload()
            self.run(merge(merge(ym(0), su), nx[c1_:c2_]))
            if o.get('ee'): eloads()
            xcheck()
            self.stamp(10)
            pepi(0); p.vmem(f"buffer_store_dwordx4 {v(PK[0],4)}, {v(VL16)}, {srd(SWS)}, s{SD} offen {o.get('pm', 'sc1')}")
            pepi(1); p.vmem(f"buffer_store_dwordx4 {v(PK[1],4)}, {v(VL16)}, {srd(SWS)}, s{SD} offen offset:2048 {o.get('pm', 'sc1')}")
            p(f"s_add_u32 s{SD}, s{SD}, 4096")
            pepi(2); ep['p'] = p.vmem(f"buffer_store_dwordx4 {v(PK[2],4)}, {v(PV)}, {srd(SWS)}, s{SD} offen {o.get('pm', 'sc1')}")
            c3_ = max(c2_, 18)
            self.run(nx[c2_:c3_])
            self.run(merge(self.y_read(1), nx[c3_:c3_ + 4]))
            y3a = o.get('y3a', 3)
            self.run(merge(ym(1), nx[c3_ + 4:] + [lgw] + y3[:y3a]))
        self.stamp(11)
        self.run(y3[y3a:9])
        self.run(merge(self.y_read(2), y3[9:13]))
        self.run(merge(ym(2), y3[13:] + ([] if o.get('ee') else [eloads]) + pl_[:o.get('p2', 0)]))
        pl_ = pl_[o.get('p2', 0):]
        self.stamp(12)
        pa_ = o.get("pa", 4)
        self.run(merge(self.y_read(3), pl_[:pa_]))
        DU = 104; XP = [4, 8, 12, 108]
        def xpart():
            p = self.p
            self.unpack(DU, DE); self.unpack(DU + 2, DE + 1)
            for gi in range(4):
                x = XP[gi]
                self.unpack(x, XE + 2 * gi); self.unpack(x + 2, XE + 2 * gi + 1)
                for k in range(4): p(f"v_mul_f32 {v(x+k)}, {v(x+k)}, {v(DU+k)}")
                for k in range(4): p(f"v_mul_f32 {v(x+k)}, {v(x+k)}, {v(GE+gi)}")
        self.run(merge(merge(ym(3), pl_[pa_:pa_ + 8]), ([lambda: p.wait(vm=ep['t'])] + self.cap(xpart)) if o.get("gc") else []))
        prest = pl_[pa_ + 8:]
        self.stamp(13)
        def pcheck(nt):
            l = p.label("sp"); d = p.label("sd")
            p.wait(vm=pt[(10, nt)])
            p(f"s_mov_b32 s{SSPIN}, 0")
            p.put(l)
            r = [PA + (kap * 2 + nt) * 4 for kap in range(11)]
            p(f"v_max3_u32 {v(178)}, {v(r[0])}, {v(r[1])}, {v(r[2])}")
            for k in range(3, 11, 2): p(f"v_max3_u32 {v(178)}, {v(178)}, {v(r[k])}, {v(r[k+1])}")
            p(f"v_cmp_eq_u32 vcc, -1, {v(178)}\ns_cmp_eq_u64 vcc, 0\ns_cbranch_scc1 {d}")
            for kap in range(11):
                if kap % 4 == 0: p(f"s_add_u32 s{SF}, s{SPB_}, {nt*45056+kap*1024}")
                p(f"buffer_load_dwordx4 {v(PA+(kap*2+nt)*4,4)}, {v(P10 if kap == 10 else VL16)}, {srd(SWS)}, s{SF} offen offset:{(kap%4)*1024} sc1")
            p("s_waitcnt vmcnt(0)")
            p(f"s_add_u32 s{SSPIN}, s{SSPIN}, 1\ns_cmp_lt_u32 s{SSPIN}, {SPIN}\ns_cbranch_scc1 {l}")
            p.put(d)
        def gcheck(nt, k0, k1):
            def f():
                l = p.label("sp"); d = p.label("sd")
                p.wait(vm=pt[(k1 - 1, nt)])
                p(f"s_mov_b32 s{SSPIN}, 0")
                p.put(l)
                r = [PA + (kap * 2 + nt) * 4 for kap in range(k0, k1)]
                p(f"v_max3_u32 {v(178)}, {v(r[0])}, {v(r[1])}, {v(r[2])}")
                if len(r) == 4: p(f"v_max_u32 {v(178)}, {v(178)}, {v(r[3])}")
                p(f"v_cmp_eq_u32 vcc, -1, {v(178)}\ns_cmp_eq_u64 vcc, 0\ns_cbranch_scc1 {d}")
                for kap in range(k0, k1):
                    p(f"s_add_u32 s{SF}, s{SPB_}, {nt*45056+kap*1024}")
                    p(f"buffer_load_dwordx4 {v(PA+(kap*2+nt)*4,4)}, {v(P10 if kap == 10 else VL16)}, {srd(SWS)}, s{SF} offen sc1")
                p("s_waitcnt vmcnt(0)")
                p(f"s_add_u32 s{SSPIN}, s{SSPIN}, 1\ns_cmp_lt_u32 s{SSPIN}, {SPIN}\ns_cbranch_scc1 {l}")
                p.put(d)
            return f
        def redw(tiles):
            return [(lambda mt=mt, nt=nt, i=i: p.lds(f"ds_write_b128 {v(WA+i)}, {v(YA+16*(2*mt+nt)+4*i,4)} offset:{nt*8192+mt*128}"))
                    for (mt, nt) in tiles for i in range(4)]
        def bm(kap, mt, nt):
            def m():
                p.wait(vm=pt[(kap, nt)])
                d = v(YA + 16 * (2 * mt + nt), 16)
                p(f"{MF} {d}, {ar(WOA(kap)+4*mt,4)}, {v(PA+(kap*2+nt)*4,4)}, {d}")
            return m
        def yscale(mt, nt):
            return [(lambda i=i: p(f"v_pk_mul_f32 {v(YA+16*(2*mt+nt)+2*i,2)}, {v(YA+16*(2*mt+nt)+2*i,2)}, {v(self.GY+2*nt,2)} op_sel_hi:[1,0]")) for i in range(8)]
        DU = 104; XP = [4, 8, 12, 108]
        def xpart():
            p = self.p
            self.unpack(DU, DE); self.unpack(DU + 2, DE + 1)
            for gi in range(4):
                x = XP[gi]
                self.unpack(x, XE + 2 * gi); self.unpack(x + 2, XE + 2 * gi + 1)
                for k in range(4): p(f"v_mul_f32 {v(x+k)}, {v(x+k)}, {v(DU+k)}")
                for k in range(4): p(f"v_mul_f32 {v(x+k)}, {v(x+k)}, {v(GE+gi)}")
        def yscale1(mt, nt):
            return [(lambda i=i: p(f"v_mul_f32 {v(YA+16*(2*mt+nt)+i)}, {v(YA+16*(2*mt+nt)+i)}, {v(self.GY+2*nt)}")) for i in range(16)]
        if o.get("gc"):
            GR_ = [(0, 4), (4, 8), (8, 11)]
            def bgrp(nt):
                ops = []
                for (k0, k1) in GR_:
                    ops.append(gcheck(nt, k0, k1))
                    ops += [bm(kap, mt, nt) for kap in range(k0, k1) for mt in range(2)]
                return ops
            self.run(merge(yscale(0, 0) + yscale(1, 0) + yscale(1, 1) + yscale(0, 1), prest[:3]))
            self.run(merge(bgrp(0), prest[3:], 0, 14))
            b1 = bgrp(1)
            b1 = b1[:19] + [bm(kap, 0, 1) for kap in range(8, 11)] + [bm(kap, 1, 1) for kap in range(8, 11)]
            self.run(merge(b1, redw([(0, 0), (1, 0)]), 3, 19))
            self.run(redw([(0, 1), (1, 1)]))
        else:
            self.run(merge(yscale(0, 0) + yscale(1, 0), prest[:2]))
            pcheck(0)
            mm0 = [bm(kap, mt, 0) for kap in range(11) for mt in range(2)]
            self.run(merge(merge(mm0, prest[2:], 0, 12), yscale1(1, 1) + yscale1(0, 1) + [lambda: p.wait(vm=ep['t'])] + self.cap(xpart)))
            if sent: pcheck(1)
            mm1 = [bm(kap, 0, 1) for kap in range(11)]
            mm2 = [bm(kap, 1, 1) for kap in range(11)]
            self.run(merge(mm1, redw([(0, 0), (1, 0)]), 2))
            self.run(merge(mm2, redw([(0, 1)]), 4))
            self.run(redw([(1, 1)]))
        p.wait_lg_all(); p("s_barrier")
        self.stamp(14)
        tk = {}
        def R(gi, s): return 16 + 16 * gi + 4 * s
        for gi in range(4):
            p.wait(lg=p.lg - 12)
            for s_ in range(4):
                tk[gi] = p.lds(f"ds_read_b128 {v(R(gi,s_),4)}, {v(RA+2*(s_>>1)+(gi&1))} offset:{(s_&1)*40960+gi*1024}")
        p(f"s_lshl_b32 s{SXO}, s{SXO}, 1")
        for gi in range(4):
            y = R(gi, 0)
            p.wait(lg=tk[gi])
            for hh in (0, 2):
                p(f"v_pk_add_f32 {v(y+hh,2)}, {v(y+hh,2)}, {v(y+4+hh,2)}\nv_pk_add_f32 {v(y+8+hh,2)}, {v(y+8+hh,2)}, {v(y+12+hh,2)}")
            for hh in (0, 2): p(f"v_pk_add_f32 {v(y+hh,2)}, {v(y+hh,2)}, {v(XP[gi]+hh,2)}")
            for hh in (0, 2): p(f"v_pk_add_f32 {v(y+hh,2)}, {v(y+hh,2)}, {v(y+8+hh,2)}")
            p(f"s_add_u32 s{SA}, s{SXO}, {gi*8192}")
            p.vmem(f"buffer_store_dwordx4 {v(y,4)}, {v(OV)}, {srd(SOUT)}, s{SA} offen{' ' + o['outmod'] if 'outmod' in o else ''}")
        ne = p.label("ne")
        p(f"s_lshl_b32 s{SA}, s{STB}, 3\ns_add_u32 s{SA}, s{SA}, s{SCOL}\ns_lshl_b32 s{SA}, s{SA}, 2\ns_add_u32 s{SA}, s{SA}, s{SWV}")
        p(f"s_cmp_eq_u32 s{SA}, {255*4}\ns_cbranch_scc0 {ne}")
        p(f"s_mov_b32 s{SA}, {EPOCH}")
        self.flag(SA, 220)
        p.put(ne)
        if o.get("stamps"):
            self.stamp(15)
            p(f"s_lshl_b32 s{SA}, s2, 2\ns_add_u32 s{SA}, s{SA}, s{SWV}\ns_lshl_b32 s{SA}, s{SA}, 8\ns_add_u32 s{SA}, s{SA}, {DBG}")
            p(f"v_lshlrev_b32 v254, 2, {v(VL)}")
            p.vmem(f"buffer_store_dword v255, v254, {srd(SWS)}, s{SA} offen")
            if o.get("dbgmax"):
                ty = o["dbgmax"]
                nd = p.label("nd")
                if ty > 1: p(f"s_cmp_{'ge' if ty == 2 else 'lt'}_u32 s2, 128\ns_cbranch_scc1 {nd}")
                p(f"s_load_dwordx2 s[{SX}:{SX+1}], s[0:1], 128\ns_waitcnt lgkmcnt(0)\ns_mov_b32 s{SX+2}, 64")
                p(f"v_readlane_b32 s{SA}, v255, 17\nv_readlane_b32 s{SB_}, v255, 20\ns_not_b32 s{SA}, s{SA}\ns_nop 3\nv_writelane_b32 v255, s{SA}, 0\nv_writelane_b32 v255, s{SB_}, 6")
                p.vmem(f"buffer_atomic_umax v255, v254, {srd(SX)}, 0 offen")
                p.put(nd)
        if "spin_from" in o:
            self.stamp(15)
            sl = p.label("spin")
            p(f"v_readlane_b32 s{SA}, v254, 0")
            p.put(sl)
            p(f"s_memrealtime s[{SSTMP}:{SSTMP+1}]\ns_waitcnt lgkmcnt(0)\ns_sub_u32 s{SB_}, s{SSTMP}, s{SA}\ns_cmp_lt_u32 s{SB_}, 3000\ns_cbranch_scc1 {sl}")
        p.put(self.END)
        p("s_endpgm")

    def build(self):
        self.prologue()
        self.p.vm_done = -1; self.p.lg_done = -1
        self.phase_u()
        self.p.vm_done = -1; self.p.lg_done = -1
        self.p("s_nop 15")
        self.phase_z()
        self.phase_g()
        lines, added = hazard_pass([x for l in self.p.L for x in l.split(chr(10))])
        hdr = open("gated_mix__ssm_conv_s5__mixer_gmlp__prompt.s.ref").read().split("; Override")[0]
        s = hdr + "; @launch grid=(256,1,1) block=(256,1,1) lds=163840\n"
        s += '.amdgcn_target "amdgcn-amd-amdhsa--gfx950"\n.text\n'
        s += f".globl {NAME}\n.p2align 8\n.type {NAME},@function\n{NAME}:\n"
        s += "\n".join((l if l.endswith(":") else "    " + l) for l in lines) + "\n"
        s += f""".section .rodata,"a"
.p2align 6
.amdhsa_kernel {NAME}
  .amdhsa_next_free_vgpr 512
  .amdhsa_next_free_sgpr 102
  .amdhsa_accum_offset 256
  .amdhsa_group_segment_fixed_size 0
  .amdhsa_kernarg_size 144
  .amdhsa_user_sgpr_count 2
  .amdhsa_user_sgpr_kernarg_segment_ptr 1
  .amdhsa_system_sgpr_workgroup_id_x 1
  .amdhsa_float_denorm_mode_32 3
.end_amdhsa_kernel
"""
        return s, added

if __name__ == "__main__":
    out = sys.argv[1]
    opt = dict(ee=1, p2=5, outmod="sc1", npro=3, npro_u=3, c1=16, c2=26, y3a=9, touch=2, zs0=19, zs1=20, zs2=8, zmode=2, pf=5, tlb=2, map=1)
    for a in sys.argv[2:]:
        k, _, val = a.partition("=")
        try: opt[k] = int(val) if val else 1
        except ValueError: opt[k] = val
    s, added = G(opt).build()
    open(out, "w").write(s)
    print("wrote", out, "nops added", added, "lines", s.count("\n"))
```

```python
import sys, math, struct
from core import *

NAME = "gated_mix__ssm_conv_s5__mixer_gmlp__prompt_kernel"
EPOCH = 0; GATE = 0x4000
ST = 0x10000; EG = 0x50000; DBG = 0x80000
Z2N = 0x100000; Z1 = 0x400000; PB = 0x700000; HB = 0xA00000
ZF = 0xE00000; HF = 0xE10000; PF = 0xE20000; Z1F = 0xE40000; ZF2 = 0xE50000; XB = 0x1000000; WS_END = 0x1400000
OOB = 0x80000000
SPIN = 200000
SX, SW1, SWSP, SWS, SCRE, SCIM, SWOUT, SOUT = 4, 8, 12, 16, 20, 24, 28, 32
PLRE, PLIM, PLDT, PDSK, PBSP, PGW, PBRE, PBIM, PWIN = 36, 38, 40, 42, 44, 46, 48, 50, 52
ST_T = 100
SWV, SRB, SCOL, STB = 56, 57, 58, 59
SA, SB_, SC, SD = 60, 61, 62, 63
SSTMP = 64
SDO, SWB, SPB0, SPST, SPSP = 68, 69, 70, 71, 72
SXB, SW1B, SXL, SWL = 73, 74, 75, 76
SPC = 77
SCB, SHB = 78, 79
SK = 80
SREG = 96
SE, SF = 97, 98
SSPIN = 99
SLATE = 101
SJ = 3
SGB = 95
SPFP = 70
SPFE = 79
SKH = 81
SGL = 77
SZI = 72
SPB = 90
def srd(b): return f"s[{b}:{b+3}]"
def v(a, n=1): return f"v{a}" if n == 1 else f"v[{a}:{a+n-1}]"
def ar(a, n=1): return f"a{a}" if n == 1 else f"a[{a}:{a+n-1}]"
def sp(a): return f"s[{a}:{a+1}]"
VL, VL16, VOOB = 1, 2, 3
LOG2E = 1.4426950408889634
def f2u(x): return struct.unpack("<I", struct.pack("<f", x))[0]
MF = "v_mfma_f32_32x32x16_bf16"

class G:
    def __init__(self, opt):
        self.o = opt
        self.p = Prog()

    def stamp(self, k):
        if self.o.get("spin_from") == k:
            p = self.p
            p(f"s_memrealtime s[{SSTMP}:{SSTMP+1}]"); p.wait_lg_all()
            p(f"v_mov_b32 v254, s{SSTMP}")
        if self.o.get("stamps"):
            p = self.p
            p(f"s_memrealtime s[{SSTMP}:{SSTMP+1}]\ns_memtime s[{SSTMP+2}:{SSTMP+3}]"); p.wait_lg_all()
            p(f"v_writelane_b32 v255, s{SSTMP}, {k}\nv_writelane_b32 v255, s{SSTMP+2}, {k+32}")
    def cap(self, fn):
        sub = Prog(); save = self.p; self.p = sub
        fn()
        self.p = save
        assert sub.vm == 0 and sub.lg == 0
        return [(lambda l=l: self.p(l)) for l in sub.L]
    def run(self, ops):
        for op in ops: op()
    def rot(self, sreg, st, unit):
        if not self.o.get("rot"): return (sreg, st * unit)
        return (sreg, ("rot", st, unit))
    def rot0(self, sreg, unit):
        if not self.o.get("rot"): return sreg
        self.p(f"s_and_b32 s{SDO}, s2, 7\ns_mul_i32 s{SDO}, s{SDO}, {unit}\ns_add_u32 s{SDO}, s{SDO}, s{sreg}")
        return SDO
    def dseq(self, items):
        p = self.p
        def setup(it):
            if it[0] is not None: p(f"s_add_u32 m0, s{it[0][0]}, {it[0][1]}")
            if it[1] is not None:
                if isinstance(it[1][1], tuple):
                    _, st, unit = it[1][1]
                    p(f"s_add_u32 s{SDO}, s2, {st}\ns_and_b32 s{SDO}, s{SDO}, 7\ns_mul_i32 s{SDO}, s{SDO}, {unit}\ns_add_u32 s{SDO}, s{SDO}, s{it[1][0]}")
                else: p(f"s_add_u32 s{SDO}, s{it[1][0]}, {it[1][1]}")
        ops = [lambda: setup(items[0])]
        for i, it in enumerate(items):
            def f(i=i, it=it):
                t = p.vmem(it[2])
                if it[3]: it[3](t)
                if i + 1 < len(items) and items[i + 1][:2] != it[:2]: setup(items[i + 1])
            ops.append(f)
        return ops
    def poll_addr(self, vt, groups):
        p = self.p; n0 = 0
        p(f"v_mov_b32 {v(vt)}, {v(VOOB)}")
        for (sr, n) in groups:
            if n == 1: p(f"v_writelane_b32 {v(vt)}, s{sr}, {n0}")
            else:
                p(f"s_sub_u32 s{sr}, s{sr}, {n0*128}\nv_lshl_add_u32 {v(vt+1)}, {v(VL)}, 7, s{sr}")
                m = ((1 << n) - 1) << n0
                p(f"s_mov_b32 vcc_lo, {m & 0xffffffff}\ns_mov_b32 vcc_hi, {m >> 32}\nv_cndmask_b32 {v(vt)}, {v(vt)}, {v(vt+1)}, vcc")
            n0 += n
        return n0
    def poll(self, vt, n):
        p = self.p
        l = p.label("poll"); d = p.label("pd")
        p(f"s_mov_b32 s{SSPIN}, 0")
        p.put(l)
        p.vmem(f"buffer_load_dword {v(vt+1)}, {v(vt)}, {srd(SWS)}, 0 offen sc1")
        p.wait_vm_all()
        p(f"v_cmp_ne_u32 vcc, s{ST_T}, {v(vt+1)}")
        if n <= 32: p(f"s_and_b32 s{SF}, vcc_lo, {(1<<n)-1}")
        else: p(f"s_and_b32 vcc_hi, vcc_hi, {(1<<(n-32))-1}\ns_or_b32 s{SF}, vcc_lo, vcc_hi")
        p(f"s_cbranch_scc0 {d}")
        p(f"s_add_u32 s{SSPIN}, s{SSPIN}, 1\ns_cmp_lt_u32 s{SSPIN}, {SPIN}\ns_cbranch_scc1 {l}")
        p.put(d)
    def flag_prep(self, vt):
        p = self.p
        p(f"v_mov_b32 {v(vt)}, s{ST_T}\nv_mov_b32 {v(vt+1)}, {v(VOOB)}\nv_writelane_b32 {v(vt+1)}, 0, 0")
    def flag(self, off_sreg, vt):
        self.p.vmem(f"buffer_store_dword {v(vt)}, {v(vt+1)}, {srd(SWS)}, s{off_sreg} offen sc1")
    def xhalf_sum(self, a, t):
        self.p(f"v_mov_b32 {v(t)}, {v(a)}\nv_permlane32_swap_b32 {v(a)}, {v(t)}\nv_add_f32 {v(a)}, {v(a)}, {v(t)}")
    def rnd(self, d, s):
        self.p(f"v_cvt_pk_bf16_f32 {v(d)}, {v(s)}, {v(s)}\nv_lshlrev_b32 {v(d)}, 16, {v(d)}")
    def unpack(self, d, s):
        self.p(f"v_and_b32 {v(d+1)}, 0xffff0000, {v(s)}\nv_lshlrev_b32 {v(d)}, 16, {v(s)}")
    def plain_read_addr(self, dst4, base_sreg, t):
        p = self.p
        p(f"v_and_b32 {v(t)}, 31, {v(VL)}\nv_lshlrev_b32 {v(t)}, 7, {v(t)}")
        if base_sreg is not None: p(f"v_add_u32 {v(t)}, s{base_sreg}, {v(t)}")
        p(f"v_bfe_u32 {v(t+1)}, {v(VL)}, 1, 3\nv_lshrrev_b32 {v(dst4)}, 5, {v(VL)}\nv_xor_b32 {v(t+1)}, {v(t+1)}, {v(dst4)}")
        p(f"v_lshlrev_b32 {v(t+1)}, 4, {v(t+1)}")
        for ks in range(4):
            p(f"v_xor_b32 {v(dst4+ks)}, {32*ks}, {v(t+1)}\nv_add_u32 {v(dst4+ks)}, {v(dst4+ks)}, {v(t)}")
    def plain_dma_addr(self, dst4, rowbytes, t, rowstep=8):
        p = self.p
        p(f"v_lshrrev_b32 {v(t)}, 3, {v(VL)}\nv_mul_u32_u24 {v(t)}, {rowbytes}, {v(t)}")
        self.plain_dma_addr2(dst4, t, t + 1, rowstep * rowbytes)
    def plain_dma_addr2(self, dst4, vrow, t, step):
        p = self.p
        p(f"v_and_b32 {v(t)}, 7, {v(VL)}\nv_lshrrev_b32 {v(dst4)}, 4, {v(VL)}\nv_xor_b32 {v(t)}, {v(t)}, {v(dst4)}\nv_lshlrev_b32 {v(t)}, 4, {v(t)}")
        p(f"v_add_u32 {v(dst4)}, {v(t)}, {v(vrow)}")
        p(f"v_xor_b32 {v(t)}, 64, {v(t)}\nv_add_u32 {v(dst4+1)}, {v(t)}, {v(vrow)}")
        p(f"v_add_u32 {v(dst4+2)}, {2*(step-1024)}, {v(dst4)}\nv_add_u32 {v(dst4+3)}, {3*(step-1024)}, {v(dst4+1)}\nv_add_u32 {v(dst4+1)}, {step-1024}, {v(dst4+1)}")
    def panel_tr_addr(self, dst2, base_sreg, t, perm):
        p = self.p
        p(f"v_lshrrev_b32 {v(t)}, 5, {v(VL)}\nv_lshlrev_b32 {v(t)}, 10, {v(t)}")
        p(f"v_bfe_u32 {v(t+1)}, {v(VL)}, 2, 2\nv_lshl_add_u32 {v(t)}, {v(t+1)}, 7, {v(t)}")
        p(f"v_bfe_u32 {v(t+1)}, {v(VL)}, 4, 1\nv_lshl_add_u32 {v(t)}, {v(t+1)}, 5, {v(t)}")
        if perm:
            p(f"v_and_b32 {v(t+1)}, 1, {v(VL)}\nv_lshl_add_u32 {v(t)}, {v(t+1)}, 4, {v(t)}")
            p(f"v_bfe_u32 {v(t+1)}, {v(VL)}, 1, 1\nv_lshl_add_u32 {v(t)}, {v(t+1)}, 3, {v(t)}")
        else:
            p(f"v_and_b32 {v(t+1)}, 3, {v(VL)}\nv_lshl_add_u32 {v(t)}, {v(t+1)}, 3, {v(t)}")
        p(f"v_bfe_u32 {v(t+1)}, {v(VL)}, 3, 1\nv_lshlrev_b32 {v(t+1)}, 6, {v(t+1)}")
        if base_sreg is not None: p(f"v_add_u32 {v(t)}, s{base_sreg}, {v(t)}")
        p(f"v_add_u32 {v(dst2)}, {v(t)}, {v(t+1)}\nv_xor_b32 {v(t+1)}, 64, {v(t+1)}\nv_add_u32 {v(dst2+1)}, {v(t)}, {v(t+1)}")
    def unit_tr_addr(self, dst2, base_sreg, t, perm, flip_sreg=None):
        p = self.p
        p(f"v_bfe_u32 {v(t)}, {v(VL)}, 4, 1")
        if flip_sreg is not None: p(f"v_xor_b32 {v(t)}, s{flip_sreg}, {v(t)}")
        p(f"v_lshlrev_b32 {v(t)}, 1, {v(t)}")
        p(f"v_bfe_u32 {v(t+1)}, {v(VL)}, {0 if perm else 1}, 1\nv_or_b32 {v(t)}, {v(t)}, {v(t+1)}")
        p(f"v_lshrrev_b32 {v(t+1)}, 5, {v(VL)}\nv_lshlrev_b32 {v(t+1)}, 1, {v(t+1)}\nv_xor_b32 {v(t+1)}, {v(t+1)}, {v(t)}")
        p(f"v_lshlrev_b32 {v(t)}, 9, {v(t)}")
        p(f"v_bfe_u32 {v(t+2)}, {v(VL)}, 2, 2\nv_lshl_add_u32 {v(t)}, {v(t+2)}, 4, {v(t)}")
        p(f"v_bfe_u32 {v(t+2)}, {v(VL)}, {1 if perm else 0}, 1\nv_lshl_add_u32 {v(t)}, {v(t+2)}, 3, {v(t)}")
        if base_sreg is not None: p(f"v_add_u32 {v(t)}, s{base_sreg}, {v(t)}")
        p(f"v_lshl_add_u32 {v(dst2)}, {v(t+1)}, 6, {v(t)}")
        p(f"v_xor_b32 {v(t+1)}, 1, {v(t+1)}\nv_lshl_add_u32 {v(dst2+1)}, {v(t+1)}, 6, {v(t)}")

    def gemm_loop(self, nslot, reads, mfmas, dma, tick, rfront, npro, extra, valu=None):
        p = self.p
        p.wait(vm=tick[0]); p("s_barrier")
        self.stamp(20)
        self.run(reads(0))
        d = []
        for st in range(npro, nslot): d += dma(st)
        q = (len(d) + 2) // 3
        pend = [d[i * q:(i + 1) * q] for i in range(3)]
        for n in range(32):
            rd = []
            if n + 1 < 32:
                if (n + 1) % 4 == 0:
                    st = (n + 1) // 4
                    p.wait(vm=tick[st], lg=p.lg - 1); p("s_barrier")
                    if self.o.get("astamps"): self.stamp(20 + st)
                    d = dma(st - 1 + nslot) if st - 1 + nslot < 8 else extra.get(st, lambda: [])()
                    q = (len(d) + 3) // 4
                    pend = [d[i * q:(i + 1) * q] for i in range(4)]
                rd = reads(n + 1)
            seq = merge(mfmas(n), rd, 0, rfront)
            if pend: seq = merge(seq, pend.pop(0), len(seq) // 2)
            if valu and n in valu: seq = merge(seq, valu[n])
            self.run(seq)

    def gate(self, GX, GW, GU, GS, GT):
        p = self.p
        for i in range(4):
            for r in range(4):
                p(f"v_dot2_f32_bf16 {v(GS+r)}, {v(GX+4*r+i)}, {v(GW+i)}, {'0' if i == 0 else v(GS+r)}")
        p("s_nop 2")
        for mod in ["quad_perm:[1,0,3,2]", "quad_perm:[2,3,0,1]", "row_half_mirror", "row_mirror"]:
            for r in range(4): p(f"v_add_f32_dpp {v(GS+r)}, {v(GS+r)}, {v(GS+r)} {mod} row_mask:0xf bank_mask:0xf")
        for sw in ["v_permlane16_swap_b32", "v_permlane32_swap_b32"]:
            for r in range(4): p(f"v_mov_b32 {v(GT+r)}, {v(GS+r)}")
            for r in range(4): p(f"{sw} {v(GS+r)}, {v(GT+r)}")
            for r in range(4): p(f"v_add_f32 {v(GS+r)}, {v(GS+r)}, {v(GT+r)}")
        for r in range(4): p(f"v_mul_f32 {v(GS+r)}, {f2u(-LOG2E)}, {v(GS+r)}")
        for r in range(4): p(f"v_exp_f32 {v(GS+r)}, {v(GS+r)}")
        for r in range(4): p(f"v_add_f32 {v(GS+r)}, 1.0, {v(GS+r)}")
        for r in range(4): p(f"v_rcp_f32 {v(GS+r)}, {v(GS+r)}")
        p(f"v_mov_b32 {v(GT)}, {v(VOOB)}\nv_writelane_b32 {v(GT)}, 0, 0")

    def w_dma_addr(self, dst3, t, colbase):
        p = self.p
        for i in range(3):
            p(f"v_add_u32 {v(t)}, {64*i}, {v(VL)}\nv_mul_u32_u24 {v(t+1)}, 171, {v(t)}\nv_lshrrev_b32 {v(t+1)}, 11, {v(t+1)}")
            p(f"v_mul_u32_u24 {v(t+2)}, 12, {v(t+1)}\nv_sub_u32 {v(t)}, {v(t)}, {v(t+2)}\nv_cmp_eq_u32 vcc, 11, {v(t)}")
            p(f"v_mul_u32_u24 {v(t+1)}, 2752, {v(t+1)}\nv_lshl_add_u32 {v(t)}, {v(t)}, 4, {v(t+1)}")
            if colbase - 1024 * i: p(f"v_add_u32 {v(t)}, {colbase-1024*i}, {v(t)}")
            p(f"v_cndmask_b32 {v(dst3+i)}, {v(t)}, {v(VOOB)}, vcc")
    def w_tr_addr(self, dst, base, t):
        p = self.p
        p(f"v_lshrrev_b32 {v(t)}, 5, {v(VL)}\nv_bfe_u32 {v(t+1)}, {v(VL)}, 2, 2\nv_lshl_add_u32 {v(t)}, {v(t)}, 3, {v(t+1)}\nv_mul_u32_u24 {v(t)}, 192, {v(t)}")
        p(f"v_bfe_u32 {v(t+1)}, {v(VL)}, 4, 1\nv_lshl_add_u32 {v(t)}, {v(t+1)}, 5, {v(t)}")
        p(f"v_and_b32 {v(t+1)}, 1, {v(VL)}\nv_lshl_add_u32 {v(t)}, {v(t+1)}, 4, {v(t)}")
        p(f"v_bfe_u32 {v(t+1)}, {v(VL)}, 1, 1\nv_lshl_add_u32 {v(t)}, {v(t+1)}, 3, {v(t)}")
        p(f"v_add_u32 {v(dst)}, {base}, {v(t)}")
    def valid_masks(self):
        MA, MB = SK + 2, SK + 4
        self.p.atom(f"s_cmp_lt_u32 s{SCOL}, 7\ns_mov_b32 s{MA}, -1\ns_cselect_b32 s{MA+1}, -1, 0\ns_cselect_b32 s{MB}, -1, 0\ns_mov_b32 s{MB+1}, 0\n"
                    f"s_mov_b32 s{SK+6}, {f2u(1/72)}\ns_cselect_b32 s{SK+6}, {f2u(1/88)}, s{SK+6}")
        c1 = -2 * LOG2E * 0.7978845608028654
        self.p(f"s_mov_b32 s{SK}, {f2u(c1*0.044715)}\nv_mov_b32 {v(self.VC0)}, {f2u(c1)}")

    def gelu_pair(self, a, t, out_packed=None):
        p = self.p
        p(f"v_pk_mul_f32 {v(t,2)}, {v(a,2)}, {v(a,2)}")
        p(f"v_pk_fma_f32 {v(t,2)}, {v(t,2)}, {sp(SK)}, {v(self.VC0,2)} op_sel_hi:[1,0,0]")
        p(f"v_pk_mul_f32 {v(t,2)}, {v(t,2)}, {v(a,2)}")
        p(f"v_exp_f32 {v(t)}, {v(t)}\nv_exp_f32 {v(t+1)}, {v(t+1)}")
        p(f"v_pk_add_f32 {v(t,2)}, {v(t,2)}, 1.0 op_sel_hi:[1,0]")
        p(f"v_rcp_f32 {v(t)}, {v(t)}\nv_rcp_f32 {v(t+1)}, {v(t+1)}")
        if out_packed is not None:
            p(f"v_pk_mul_f32 {v(t,2)}, {v(t,2)}, {v(a,2)}")
            p(f"v_cvt_pk_bf16_f32 {v(out_packed)}, {v(t)}, {v(t+1)}")
        else:
            p(f"v_pk_mul_f32 {v(a,2)}, {v(t,2)}, {v(a,2)}")
    def gelu_many(self, pairs, temps, outs=None):
        p = self.p; ng = len(temps)
        for g0 in range(0, len(pairs), ng):
            streams = []
            for k, i in enumerate(range(g0, min(g0 + ng, len(pairs)))):
                sub = Prog(); save = self.p; self.p = sub
                self.gelu_pair(pairs[i], temps[k], None if outs is None else outs[i])
                self.p = save
                streams.append(sub.L)
            for j in range(len(streams[0])):
                for s in streams: p(s[j])

    VWD, VWR, VWA, VC0 = 240, 244, 248, 252
    def wsp_setup(self, t):
        p = self.p
        self.plain_dma_addr(self.VWD, 4096, t)
        p(f"s_lshl_b32 s{SA}, s{SKH}, 12")
        self.plain_read_addr(self.VWR, SA, t)
        p(f"s_lshr_b32 s{SWB}, s{STB}, 1\ns_lshl_b32 s{SWB}, s{SWB}, 19\ns_and_b32 s{SB_}, s{SWV}, 1\ns_lshl_b32 s{SB_}, s{SB_}, 18\ns_add_u32 s{SWB}, s{SWB}, s{SB_}")
        p(f"s_lshl_b32 s{SB_}, s{SKH}, 11\ns_add_u32 s{SWB}, s{SWB}, s{SB_}\ns_lshr_b32 s{SB_}, s{SWV}, 1\ns_lshl_b32 s{SB_}, s{SB_}, 10\ns_add_u32 s{SWB}, s{SWB}, s{SB_}")
        self.wsp_t = {}
    def piece(self, st): return (SPB + st % 5, 0)
    def wsp_dma(self, st):
        if self.o.get("x_nowsp") and st >= 2:
            self.wsp_t[st] = -1
            return [lambda: None] * 9
        items = []; sr, im = self.piece(st)
        for hh in range(2):
            for i in range(4):
                def cb(t): self.wsp_t[st] = t
                items.append(((sr, im + hh * 4096) if i == 0 else None, (SWB, st * 128 + hh * 131072) if i == 0 else None,
                              f"buffer_load_dwordx4 {v(self.VWD+i)}, {srd(SWSP)}, s{SDO} offen offset:{i*1024} {self.o.get('wmod', '')} lds", cb))
        return self.dseq(items)
    def wsp_read(self, st):
        if self.o.get("x_nord"): return [lambda: None]
        p = self.p; sr, im = self.piece(st)
        def pre():
            for ks in range(4): p(f"v_add_u32 {v(self.VWA+ks)}, s{sr}, {v(self.VWR+ks)}")
            p.wait(vm=self.wsp_t[st], lg=p.lg - 8)
        ops = [pre]
        for nt in range(2):
            for ks in range(4):
                def f(ks=ks, nt=nt):
                    p.lds(f"ds_read_b128 {ar(((st*4+ks)*2+nt)*4,4)}, {v(self.VWA+ks)} offset:{im}")
                    if nt == 0: p(f"v_xor_b32 {v(self.VWA+ks)}, 4096, {v(self.VWA+ks)}")
                ops.append(f)
        return ops

    ZXD = 104
    def prologue(self):
        p = self.p
        self.END = p.label("end"); self.LU = p.label("U"); self.LG = p.label("G"); self.LZ = p.label("Z")
        p(f"s_cmp_ge_u32 s2, 256\ns_cbranch_scc1 {self.END}")
        if self.o.get("sst"): p("s_memrealtime s[84:85]\ns_waitcnt lgkmcnt(0)")
        if self.o.get("cpf", 1):
            p(f"s_getpc_b64 {sp(SSTMP)}\nv_lshlrev_b32 v4, 7, v0\nglobal_load_dword v5, v4, {sp(SSTMP)}")
        p(f"s_load_dwordx2 {sp(SX)}, s[0:1], 0\ns_load_dwordx2 {sp(PWIN)}, s[0:1], 80\ns_load_dwordx4 s[{PBRE}:{PBRE+3}], s[0:1], 24")
        p(f"v_lshrrev_b32 v2, 6, v0\nv_and_b32 {v(VL)}, 63, v0\nv_readfirstlane_b32 s{SWV}, v2")
        p(f"s_and_b32 s{SA}, s2, 6\ns_lshl_b32 s{SA}, s{SA}, 1\ns_bfe_u32 s{SRB}, s2, 0x20005\ns_add_u32 s{SRB}, s{SRB}, s{SA}")
        p(f"s_mov_b32 s{SX+2}, 2097152\ns_mov_b32 s{SX+3}, 0x20000\ns_lshl_b32 s{SXB}, s{SRB}, 17")
        if self.o.get("pf", 2) == 5:
            p(f"s_lshl_b32 s{SA}, s2, 1\ns_add_u32 s{SA}, s{SA}, s{SWV}\ns_and_b32 s{SB_}, s2, 127\ns_cmp_eq_u32 s{SWV}, 3\ns_cselect_b32 s{SA}, s{SB_}, s{SA}\ns_lshl_b32 s{SA}, s{SA}, 12")
            p(f"s_mul_i32 s{SB_}, s2, 5504\ns_cmp_eq_u32 s{SWV}, 2\ns_cselect_b32 s{SA}, s{SB_}, s{SA}\ns_cselect_b32 s{SB_}, 42, 31\nv_min_u32 v6, s{SB_}, {v(VL)}\nv_lshl_add_u32 v6, v6, 7, s{SA}")
            p.wait_lg_all()
            p(f"s_cselect_b64 {sp(SPFP)}, {sp(PWIN)}, {sp(SX)}\ns_cmp_ge_u32 s2, 128\ns_cselect_b64 {sp(SC)}, {sp(PBIM)}, {sp(PBRE)}\ns_cmp_eq_u32 s{SWV}, 3\ns_cselect_b64 {sp(SPFP)}, {sp(SC)}, {sp(SPFP)}")
            p(f"global_load_dword v7, v6, {sp(SPFP)}")
        p(f"s_cmp_ge_u32 s2, 128\ns_cbranch_scc1 {self.LU}")
        self.plain_dma_addr(self.ZXD, 1024, 112)
        p(f"s_lshl_b32 s{SA}, s{SWV}, 15\ns_add_u32 s{SXB}, s{SXB}, s{SA}\ns_mul_i32 s{SREG}, s{SWV}, 40960\ns_mov_b32 m0, s{SREG}")
        p.wait_lg_all()
        so = self.rot0(SXB, 128)
        for i in range(4): p.vmem(f"buffer_load_dwordx4 {v(self.ZXD+i)}, {srd(SX)}, s{so} offen offset:{i*1024} lds")
        p(f"s_branch {self.LZ}")
    def common2(self):
        p = self.p
        p(f"v_lshlrev_b32 {v(VL16)}, 4, {v(VL)}\nv_mov_b32 {v(VOOB)}, {OOB}")
        if self.o.get("stamps"):
            p("v_mov_b32 v255, 0")
            if self.o.get("sst"): p("v_writelane_b32 v255, s84, 17"); self.stamp(22)
            else: self.stamp(17)
        elif "spin_from" in self.o: self.stamp(17)
        p(f"s_and_b32 s{SKH}, s2, 1\ns_lshl_b32 s{SC}, s{SKH}, 2\ns_bfe_u32 s{SD}, s2, 0x20003\ns_add_u32 s{SCOL}, s{SC}, s{SD}\ns_mov_b32 s{SW1+3}, 0x20000")
    def common3(self):
        p = self.p
        p(f"s_load_dwordx2 {sp(SWS)}, s[0:1], 136\ns_load_dwordx2 {sp(PGW)}, s[0:1], 112\ns_load_dwordx4 s[{PLRE}:{PLRE+3}], s[0:1], 8\ns_load_dwordx2 {sp(PLDT)}, s[0:1], 56")
        for (r, off) in [(SWSP, 88), (SCRE, 40), (SCIM, 48), (SWOUT, 104), (SOUT, 120), (PDSK, 64), (PBSP, 96)]:
            p(f"s_load_dwordx2 {sp(r)}, s[0:1], {off}")
        for (r, n) in [(SWSP, 8388608), (SWS, WS_END), (SCRE, 524288), (SCIM, 524288), (SWOUT, 704512), (SOUT, 4194304)]:
            p(f"s_mov_b32 s{r+2}, {n}\ns_mov_b32 s{r+3}, 0x20000")
        if self.o.get("xl"):
            p(f"s_bfe_u32 s{SKH}, s2, 0x10006\ns_and_b32 s{STB}, s2, 7\ns_lshl_b32 s{STB}, s{STB}, 2\ns_lshr_b32 s{SC}, s2, 6\ns_add_u32 s{STB}, s{STB}, s{SC}\ns_bfe_u32 s{SJ}, s2, 0x30003")
        else:
            p(f"s_and_b32 s{SC}, s2, 6\ns_lshl_b32 s{SC}, s{SC}, 1\ns_lshr_b32 s{STB}, s2, 6\ns_add_u32 s{STB}, s{STB}, s{SC}\ns_lshl_b32 s{STB}, s{STB}, 1\ns_add_u32 s{STB}, s{STB}, s{SKH}\ns_bfe_u32 s{SJ}, s2, 0x30003")
        if self.o.get("pf", 2) == 2:
            A_, C_, D_, E_ = SA, SC, SB_, SF
            p(f"s_lshl_b32 s{D_}, s{SWV}, 8\ns_add_u32 s{D_}, s{D_}, s2\ns_mov_b32 s{C_}, 0\ns_mov_b32 s{A_}, 0\ns_mov_b32 s{E_}, 2047")
            for (lo, off, last) in [(171, 24, 511), (214, 32, 511), (257, 80, 0)]:
                p.atom(f"s_cmp_ge_u32 s{D_}, {lo}\ns_cselect_b32 s{C_}, {off}, s{C_}\ns_cselect_b32 s{A_}, {lo}, s{A_}\ns_cselect_b32 s{E_}, {last}, s{E_}")
            p.atom(f"s_cmp_lt_u32 s{D_}, 365\ns_cselect_b32 s{SPFE}, 1, 0")
            p(f"s_sub_u32 s{D_}, s{D_}, s{A_}\ns_load_dwordx2 {sp(SPFP)}, s[0:1], s{C_}")
            p(f"v_mul_u32_u24 {v(6)}, 52, {v(VL)}\nv_lshrrev_b32 {v(6)}, 8, {v(6)}\nv_mul_u32_u24 {v(7)}, 5, {v(6)}\nv_sub_u32 {v(7)}, {v(VL)}, {v(7)}")
            p(f"s_mul_i32 s{A_}, s{D_}, 12\nv_add_u32 {v(6)}, s{A_}, {v(6)}\nv_min_u32 {v(6)}, s{E_}, {v(6)}\nv_lshlrev_b32 {v(6)}, 10, {v(6)}\nv_lshl_add_u32 {v(6)}, {v(7)}, 7, {v(6)}\nv_add_u32 {v(6)}, 384, {v(6)}")
            p(f"s_lshl_b32 s{D_}, s{D_}, 13\ns_add_u32 s{D_}, s{D_}, {192*2752}\nv_lshl_add_u32 {v(7)}, {v(VL)}, 7, s{D_}\nv_min_u32 {v(7)}, {512*2752-4}, {v(7)}")
            p.atom(f"s_cmp_eq_u32 s{E_}, 0\ns_cselect_b64 vcc, -1, 0")
            p(f"v_cndmask_b32 {v(6)}, {v(6)}, {v(7)}, vcc")
    def pf2(self):
        p = self.p
        p.wait_lg_all()
        if self.o.get("pf", 2) == 2:
            l = p.label("pf")
            p(f"s_cmp_eq_u32 s{SPFE}, 0\ns_cbranch_scc1 {l}\nglobal_load_dword {v(7)}, {v(6)}, {sp(SPFP)}")
            p.put(l)
        if self.o.get("cpf", 1):
            l = p.label("c2")
            here = p.label("pc")
            p(f"s_cmp_lg_u32 s{SWV}, 0\ns_cbranch_scc1 {l}\ns_getpc_b64 {sp(SSTMP)}")
            p.put(here)
            p(f"s_sub_u32 s{SSTMP}, s{SSTMP}, {here}-{NAME}\ns_subb_u32 s{SSTMP+1}, s{SSTMP+1}, 0")
            p(f"v_add_u32 v4, 32768, v4\nv_min_u32 v4, {self.END}-{NAME}, v4\nglobal_load_dword v5, v4, {sp(SSTMP)}")
            p.put(l)
        if self.o.get("tw", 0):
            ls = [p.label("tw") for _ in range(3)]
            p(f"v_lshlrev_b32 v8, 19, {v(VL)}\nv_mov_b32 v9, 0")
            p(f"s_cmp_eq_u32 s{SWV}, 1\ns_cbranch_scc1 {ls[0]}\ns_cmp_eq_u32 s{SWV}, 2\ns_cbranch_scc1 {ls[1]}\ns_cmp_eq_u32 s{SWV}, 3\ns_cbranch_scc0 {ls[2]}")
            p(f"buffer_load_dword v10, v8, {srd(SWS)}, 0 offen sc1\ns_branch {ls[2]}")
            p.put(ls[0]); p(f"buffer_load_dword v10, v8, {srd(SWSP)}, 0 offen\nbuffer_load_dword v11, v8, {srd(SOUT)}, 0 offen sc1\nglobal_load_ushort v12, v9, {sp(PBSP)}\nglobal_load_ushort v13, v9, {sp(PDSK)}\ns_branch {ls[2]}")
            p.put(ls[1]); p(f"buffer_load_dword v10, v8, {srd(SCRE)}, 0 offen\nbuffer_load_dword v11, v8, {srd(SCIM)}, 0 offen\nbuffer_load_dword v12, v8, {srd(SWOUT)}, 0 offen\nglobal_load_ushort v13, v9, {sp(PGW)}")
            p.put(ls[2])
        p(f"s_load_dword s{ST_T}, {sp(SWS)}, {EPOCH}")
    def code_prefetch(self, va, vd):
        if not self.o.get("cpf", 1): return
        p = self.p
        sk = p.label("cpf"); here = p.label("pc")
        nsl = self.o.get("cpfn", 6)
        p(f"s_lshr_b32 s{SA}, s2, 3\ns_and_b32 s{SA}, s{SA}, 15\ns_lshl_b32 s{SA}, s{SA}, 2\ns_add_u32 s{SA}, s{SA}, s{SWV}")
        p(f"s_cmp_ge_u32 s{SA}, {nsl}\ns_cbranch_scc1 {sk}")
        p(f"s_getpc_b64 s[{SSTMP}:{SSTMP+1}]")
        p.put(here)
        p(f"s_sub_u32 s{SSTMP}, s{SSTMP}, {here}-{NAME}\ns_subb_u32 s{SSTMP+1}, s{SSTMP+1}, 0")
        p(f"s_lshl_b32 s{SA}, s{SA}, 13\nv_lshl_add_u32 {v(va)}, {v(VL)}, 7, s{SA}\nv_min_u32 {v(va)}, {self.END}-{NAME}, {v(va)}")
        p(f"global_load_dword {v(vd)}, {v(va)}, s[{SSTMP}:{SSTMP+1}]")
        p.put(sk)
    def pf1(self, when=1):
        if self.o.get("pf", 2) == 4 and self.o.get("pfw", 5) == when:
            self.p.vmem(f"global_load_dword {v(7)}, {v(6)}, {sp(PWIN)}")
            self.p.vmem(f"global_load_dword {v(5)}, {v(4)}, {sp(SPFP)}")
        if {3: 1, 2: self.o.get("pfw2", 2)}.get(self.o.get("pf", 2), self.o.get("pf", 2)) == when:
            p = self.p; l = p.label("pf")
            p(f"s_cmp_eq_u32 s{SPFE}, 0\ns_cbranch_scc1 {l}\nglobal_load_dword {v(5)}, {v(4)}, {sp(SPFP)}")
            p.put(l)
        if self.o.get("wfirst") == when: self.touch_wsp(11, 12, 0, 1)
    def tlb_warm(self):
        p = self.p
        ls = [p.label("tw") for _ in range(4)]
        p(f"v_lshlrev_b32 {v(6)}, 19, {v(VL)}\nv_mov_b32 {v(7)}, 0")
        p(f"s_cmp_eq_u32 s{SWV}, 1\ns_cbranch_scc1 {ls[0]}\ns_cmp_eq_u32 s{SWV}, 2\ns_cbranch_scc1 {ls[1]}\ns_cmp_eq_u32 s{SWV}, 3\ns_cbranch_scc1 {ls[2]}")
        p(f"buffer_load_dword {v(8)}, {v(6)}, {srd(SWS)}, 0 offen sc1\nglobal_load_ushort {v(9)}, {v(7)}, {sp(PGW)}\ns_branch {ls[3]}")
        p.put(ls[0]); p(f"buffer_load_dword {v(8)}, {v(6)}, {srd(SWSP)}, 0 offen\nglobal_load_ushort {v(9)}, {v(7)}, {sp(PBSP)}\nglobal_load_ushort {v(10)}, {v(7)}, {sp(PDSK)}\ns_branch {ls[3]}")
        p.put(ls[1]); p(f"buffer_load_dword {v(8)}, {v(6)}, {srd(SOUT)}, 0 offen sc1\nbuffer_load_dword {v(9)}, {v(6)}, {srd(SWOUT)}, 0 offen\ns_branch {ls[3]}")
        p.put(ls[2]); p(f"buffer_load_dword {v(8)}, {v(6)}, {srd(SCRE)}, 0 offen\nbuffer_load_dword {v(9)}, {v(6)}, {srd(SCIM)}, 0 offen")
        p.put(ls[3])
    def late_args(self):
        p = self.p
        if self.o.get("tlb", 1):
            if self.o.get("tlb", 1) == 1: self.tlb_warm()
            self.pf1(5)
            p(f"s_load_dword s{ST_T}, {sp(SWS)}, {EPOCH}")
            return
        for (r, off) in [(SWSP, 88), (SCRE, 40), (SCIM, 48), (SWOUT, 104), (SOUT, 120), (PDSK, 64), (PBSP, 96)]:
            p(f"s_load_dwordx2 {sp(r)}, s[0:1], {off}")
        p(f"s_load_dword s{ST_T}, {sp(SWS)}, {EPOCH}")
        for (r, n) in [(SWSP, 8388608), (SWS, WS_END), (SCRE, 524288), (SCIM, 524288), (SWOUT, 704512), (SOUT, 4194304)]:
            p(f"s_mov_b32 s{r+2}, {n}\ns_mov_b32 s{r+3}, 0x20000")
    def epoch2(self):
        p = self.p
        p.wait_lg_all()
        p(f"s_mul_i32 s{ST_T}, s{ST_T}, 0x9E3779B1\ns_add_u32 s{ST_T}, s{ST_T}, 0x7F4A7C15")

    def touch_wsp(self, va, vd, k, n):
        p = self.p
        if k == 0:
            p(f"s_lshr_b32 s{SB_}, s2, 3\ns_lshl_b32 s{SB_}, s{SB_}, 2\ns_add_u32 s{SB_}, s{SB_}, s{SWV}\ns_lshl_b32 s{SB_}, s{SB_}, 13")
            p(f"s_and_b32 s{SA}, s2, 7\ns_lshl_b32 s{SA}, s{SA}, 20\ns_add_u32 s87, s{SA}, s{SB_}")
            p(f"v_cmp_gt_u32 vcc, {64//n}, {v(VL)}\nv_lshlrev_b32 {v(va)}, 7, {v(VL)}\ns_nop 0\nv_cndmask_b32 {v(va)}, {v(VOOB)}, {v(va)}, vcc")
        else: p(f"s_add_u32 s87, s87, {8192//n}")
        p.vmem(f"buffer_load_dword {v(vd)}, {v(va)}, {srd(SWSP)}, s87 offen {self.o.get('tmod', '')}")
    def ctouch(self, va, vd):
        p = self.p; l = p.label("ct")
        p(f"s_lshl_b32 s{SA}, s{SWV}, 8\ns_add_u32 s{SA}, s{SA}, s2\ns_cmp_ge_u32 s{SA}, 856\ns_cbranch_scc1 {l}")
        p(f"s_cmp_lt_u32 s{SA}, 256\ns_cselect_b64 {sp(SSTMP)}, {sp(SCRE)}, {sp(SCIM)}")
        p(f"s_sub_u32 s{SB_}, s{SA}, 512\ns_and_b32 s{SSPIN}, s{SA}, 255\ns_cmp_ge_u32 s{SA}, 512\ns_cselect_b64 {sp(SSTMP)}, {sp(SWOUT)}, {sp(SSTMP)}\ns_cselect_b32 s{SA}, s{SB_}, s{SSPIN}")
        p(f"s_lshl_b32 s{SA}, s{SA}, 11\nv_and_b32 {v(vd)}, 15, {v(VL)}\nv_lshlrev_b32 {v(vd)}, 7, {v(vd)}\nv_add_u32 {v(vd)}, s{SA}, {v(vd)}")
        p(f"global_load_dword {v(vd)}, {v(vd)}, {sp(SSTMP)}")
        p.put(l)
    def paced(self, valu, va, vd, t0, dt):
        if "ct" in self.o: valu.setdefault(self.o["ct"], []).append(lambda: self.ctouch(va, vd + 1 if vd != 205 else 4))
        n = self.o.get("tn", 4)
        if self.o.get("touch", 1) != 1: return
        for k in range(n):
            valu.setdefault(t0 + k * dt, []).append(lambda k=k: self.touch_wsp(va, vd, k, n))
    def touch_c(self, va, vd):
        p = self.p
        p(f"v_lshlrev_b32 {v(va)}, 7, {v(VL)}\ns_lshr_b32 s{SB_}, s2, 3\ns_lshl_b32 s{SB_}, s{SB_}, 2\ns_add_u32 s{SB_}, s{SB_}, s{SWV}\ns_lshl_b32 s{SA}, s{SB_}, 13")
        p.vmem(f"buffer_load_dword {v(vd)}, {v(va)}, {srd(SWOUT)}, s{SA} offen")
        p.vmem(f"buffer_load_dword {v(vd)}, {v(va)}, {srd(SCRE)}, s{SA} offen")
        p.vmem(f"buffer_load_dword {v(vd)}, {v(va)}, {srd(SCIM)}, s{SA} offen")
        p(f"s_add_u32 s{SA}, s{SA}, 524288")
        p.vmem(f"buffer_load_dword {v(vd)}, {v(va)}, {srd(SWOUT)}, s{SA} offen")
    GTR, GPL = 236, 238
    def g_early(self, t):
        p = self.p
        p(f"s_lshr_b32 s{SA}, s{SWV}, 1\ns_mul_i32 s{SGL}, s{SA}, 81920")
        p(f"v_bfe_u32 {v(t)}, {v(VL)}, 4, 1\nv_xor_b32 {v(t)}, s{SA}, {v(t)}\nv_lshlrev_b32 {v(t)}, 4, {v(t)}")
        p(f"v_bfe_u32 {v(t+1)}, {v(VL)}, 2, 1\nv_lshl_add_u32 {v(t)}, {v(t+1)}, 3, {v(t)}\nv_bfe_u32 {v(t+1)}, {v(VL)}, 3, 1\nv_lshl_add_u32 {v(t)}, {v(t+1)}, 2, {v(t)}")
        p(f"v_and_b32 {v(t+1)}, 35, {v(VL)}\nv_add_lshl_u32 {v(t)}, {v(t)}, {v(t+1)}, 4\nv_add_u32 {v(self.GTR)}, s{SGL}, {v(t)}")
        p.atom(f"s_cmp_lt_u32 s{SJ}, 7\ns_cselect_b32 s{SB_}, 24, 8")
        p(f"v_and_b32 {v(t)}, 31, {v(VL)}\nv_cmp_gt_u32 vcc, s{SB_}, {v(t)}\ns_nop 1\nv_cndmask_b32 {v(self.GTR+1)}, {v(VOOB)}, {v(VL16)}, vcc")
        p(f"s_lshl_b32 s{SB_}, s{SJ}, 2\ns_add_u32 s{SB_}, s{SB_}, s{SA}\ns_lshl_b32 s{SA}, s{SKH}, 1\ns_add_u32 s{SB_}, s{SB_}, s{SA}\ns_lshl_b32 s{SB_}, s{SB_}, 4")
        p(f"s_and_b32 s{SA}, s{SWV}, 1\ns_add_u32 s{SGB}, s{SB_}, s{SA}\ns_mul_i32 s{SGB}, s{SGB}, 6144\ns_add_u32 s{SGB}, s{SGB}, {Z2N}\ns_mul_i32 s{SA}, s{SA}, 6144\ns_add_u32 s{SGL}, s{SGL}, s{SA}")
        p(f"s_lshl_b32 s{SB_}, s{SB_}, 7\ns_add_u32 s{SB_}, s{SB_}, {ZF}")
        self.poll_addr(self.GPL, [(SB_, 16)])
        p(f"s_lshr_b32 s{SA}, s{STB}, 1\ns_lshl_b32 s{SA}, s{SA}, 9\ns_add_u32 s{SA}, s{SA}, {ZF}")
        p(f"v_add_u32 {v(t)}, 16, {v(VL)}\nv_bfe_u32 {v(t)}, {v(t)}, 2, 3\nv_lshlrev_b32 {v(t)}, 13, {v(t)}\nv_and_b32 {v(t+1)}, 3, {v(VL)}\nv_lshl_add_u32 {v(t)}, {v(t+1)}, 7, {v(t)}\nv_add_u32 {v(t)}, s{SA}, {v(t)}")
        p(f"s_mov_b32 vcc_lo, 0xffff0000\ns_mov_b32 vcc_hi, 0xffff\nv_cndmask_b32 {v(self.GPL)}, {v(self.GPL)}, {v(t)}, vcc")
        p(f"s_lshr_b32 s{SA}, s{STB}, 1\ns_lshl_b32 s{SA}, s{SA}, 1\ns_and_b32 s{SB_}, s{SWV}, 1\ns_add_u32 s{SA}, s{SA}, s{SB_}\ns_lshl_b32 s{SA}, s{SA}, 1\ns_add_u32 s{SA}, s{SA}, s{SKH}")
        p(f"s_lshl_b32 s{SB_}, s{SJ}, 6\ns_add_u32 s{SZI}, s{SA}, s{SB_}")
    def g_poll_issue(self):
        self.gp = self.p.vmem(f"buffer_load_dword {v(self.GPL+1)}, {v(self.GPL)}, {srd(SWS)}, 0 offen sc1")

    def phase_z(self):
        p = self.p; o = self.o
        ACC, FA, FB, XR, WR, XD, WD, T = 16, 64, 88, 96, 100, 104, 108, 112
        p.c("==== phase A: Z ====")
        p.put(self.LZ)
        self.common2()
        tick = {}
        def xdma(st, cb=None):
            return [((SREG, (st & 3) * 4096) if i == 0 else None, self.rot(SXB, st, 128) if i == 0 else None,
                     f"buffer_load_dwordx4 {v(XD+i)}, {srd(SX)}, s{SDO} offen offset:{i*1024} lds", cb) for i in range(4)]
        def wdma(st, cb=None):
            return [((SWL, (st & 3) * 40960) if i == 0 else None, self.rot(SW1B, st, 64 * 2752) if i == 0 else None,
                     f"buffer_load_dwordx4 {v(WD+i)}, {srd(SW1)}, s{SDO} offen offset:{i*1024} lds", cb) for i in range(3)]
        def dma(st):
            def cb(t): tick[st] = t
            return self.dseq(wdma(st) + xdma(st, cb))
        self.w_dma_addr(WD, T, 1376)
        p(f"s_mul_i32 s{SW1B}, s{SWV}, {16*2752}\ns_mul_i32 s{SA}, s{SCOL}, 176\ns_add_u32 s{SW1B}, s{SW1B}, s{SA}")
        p(f"s_mul_i32 s{SWL}, s{SWV}, 3072\ns_add_u32 s{SWL}, s{SWL}, 16384\ns_mov_b32 s{SW1+2}, {512*2752}")
        p(f"s_mov_b64 {sp(SW1)}, {sp(PWIN)}")
        npro = o.get("npro", 3)
        def cb0(t): tick[0] = t
        self.run(self.dseq(wdma(0, cb0)))
        if o.get("sst"): self.stamp(23)
        def setup():
            self.plain_read_addr(XR, SREG, T)
            self.w_tr_addr(WR, 16384, T)
            self.p(f"v_add_u32 {v(WR+1)}, 81920, {v(WR)}")
            self.wsp_setup(T)
            self.p(f"s_add_u32 s{SPB}, s{SREG}, 32768\ns_mov_b32 s{SPB+1}, s{SREG}\ns_add_u32 s{SPB+2}, s{SREG}, 8192\ns_add_u32 s{SPB+3}, s{SREG}, 16384\ns_add_u32 s{SPB+4}, s{SREG}, 24576")
            self.valid_masks()
        d = []
        for st in range(1, npro): d += dma(st)
        self.run(merge(self.cap(lambda: (self.common3(), setup())), d))
        def prefill(u0, u1):
            if u0 == 0:
                p(f"s_lshl_b32 s{SCB}, s{SRB}, 2\ns_add_u32 s{SCB}, s{SCB}, s{SWV}\ns_mul_i32 s{SCB}, s{SCB}, 45056\ns_mul_i32 s{SA}, s{SCOL}, 5632\ns_add_u32 s{SCB}, s{SCB}, s{SA}\ns_add_u32 s{SCB}, s{SCB}, {PB}")
                for k in range(4): p(f"v_mov_b32 {v(176+k)}, -1")
            for u in range(u0, u1):
                if u == 4: p(f"s_add_u32 s{SCB}, s{SCB}, 4096")
                if u == 5: p("s_mov_b32 exec_hi, 0")
                p.vmem(f"buffer_store_dwordx4 {v(176,4)}, {v(VL16)}, {srd(SWS)}, s{SCB} offen offset:{(u%4)*1024} sc1")
                if u == 5: p("s_mov_b32 exec_hi, -1")
        self.pf2()
        self.epoch2()
        self.stamp(0)
        rt = {}
        def reads(n):
            st, ks = n // 4, n % 4; sl = st & 3; s = n & 1; ops = []
            def rb(): rt[(n, 'b')] = p.lds(f"ds_read_b128 {v(FB+4*s,4)}, {v(XR+ks)} offset:{sl*4096}")
            ops.append(rb)
            for mt in range(3):
                for a in range(2):
                    def ra(mt=mt, a=a):
                        rt[(n, mt)] = p.lds(f"ds_read_b64_tr_b16 {v(FA+12*s+4*mt+2*a,2)}, {v(WR+(sl>>1))} offset:{(sl&1)*40960+ks*3072+a*768+mt*64}")
                    ops.append(ra)
            return ops
        def mfmas(n):
            s = n & 1; ops = []
            for mt in range(3):
                def m(mt=mt):
                    p.wait(lg=rt[(n, mt)])
                    c = "0" if n == 0 else v(ACC + 16 * mt, 16)
                    p(f"{MF} {v(ACC+16*mt,16)}, {v(FA+12*s+4*mt,4)}, {v(FB+4*s,4)}, {c}")
                ops.append(m)
            return ops
        GX, GW, GU, GS, GT = 128, 144, 148, 156, 160
        gt = {}
        def gload():
            p(f"s_lshl_b32 s{SE}, s{SRB}, 2\ns_add_u32 s{SE}, s{SE}, s{SWV}\ns_lshl_b32 s{SE}, s{SE}, 3\ns_add_u32 s{SE}, s{SE}, s{SCOL}\ns_lshl_b32 s{SA}, s{SE}, 12")
            for r in range(4): p.vmem(f"buffer_load_dwordx4 {v(GX+4*r,4)}, {v(VL16)}, {srd(SX)}, s{SA} offen offset:{r*1024}")
            gt['t'] = p.vmem(f"global_load_dwordx4 {v(GW,4)}, {v(VL16)}, {sp(PGW)}")
        def gstore():
            p(f"s_lshl_b32 s{SA}, s{SE}, 4\ns_add_u32 s{SA}, s{SA}, {GATE}")
            p.vmem(f"buffer_store_dwordx4 {v(GS,4)}, {v(GT)}, {srd(SWS)}, s{SA} offen sc1")
        gops = [lambda: p.wait(vm=gt['t'])] + self.cap(lambda: self.gate(GX, GW, GU, GS, GT)) + [gstore]
        zm = o.get('zmode', 1)
        valu = {(28 if zm == 1 else 13): [gload]}
        def touch_u():
            p(f"v_lshlrev_b32 {v(170)}, 7, {v(VL)}\ns_lshr_b32 s{SB_}, s2, 3\ns_lshl_b32 s{SB_}, s{SB_}, 2\ns_add_u32 s{SB_}, s{SB_}, s{SWV}\ns_lshl_b32 s{SB_}, s{SB_}, 13")
            p(f"s_and_b32 s{SA}, s2, 7\ns_lshl_b32 s{SA}, s{SA}, 20\ns_add_u32 s{SA}, s{SA}, s{SB_}\ns_add_u32 s{SA}, s{SA}, {1<<19}")
            p.vmem(f"buffer_load_dword {v(171)}, {v(170)}, {srd(SWSP)}, s{SA} offen")
        def warm():
            p(f"v_lshlrev_b32 {v(170)}, 18, {v(VL)}\nv_lshlrev_b32 {v(172)}, 16, {v(VL)}\nv_lshlrev_b32 {v(173)}, 13, {v(VL)}")
            ls = [p.label("wm") for _ in range(4)]
            p(f"s_cmp_eq_u32 s{SWV}, 1\ns_cbranch_scc1 {ls[0]}\ns_cmp_eq_u32 s{SWV}, 2\ns_cbranch_scc1 {ls[1]}\ns_cmp_eq_u32 s{SWV}, 3\ns_cbranch_scc1 {ls[2]}")
            p(f"buffer_load_dword {v(171)}, {v(170)}, {srd(SWS)}, 0 offen sc1\ns_branch {ls[3]}")
            p.put(ls[0]); p(f"buffer_load_dword {v(171)}, {v(172)}, {srd(SOUT)}, 0 offen sc1\ns_branch {ls[3]}")
            p.put(ls[1]); p(f"buffer_load_dword {v(171)}, {v(173)}, {srd(SCRE)}, 0 offen\nbuffer_load_dword {v(171)}, {v(173)}, {srd(SCIM)}, 0 offen\ns_branch {ls[3]}")
            p.put(ls[2]); p(f"v_lshlrev_b32 {v(173)}, 14, {v(VL)}\nbuffer_load_dword {v(171)}, {v(173)}, {srd(SWOUT)}, 0 offen")
            p.put(ls[3])
        if o.get("warm"): valu[31] = [warm]
        def ztouch(part):
            if part == 0:
                p(f"s_lshr_b32 s{SB_}, s2, 3\ns_lshl_b32 s{SB_}, s{SB_}, 2\ns_add_u32 s{SB_}, s{SB_}, s{SWV}")
                p(f"s_and_b32 s{SA}, s2, 7\ns_lshl_b32 s{SPFP+1}, s{SB_}, 3\ns_add_u32 s{SPFP+1}, s{SPFP+1}, s{SA}")
                p(f"s_lshr_b32 s{SA}, s{SA}, 1\ns_lshl_b32 s{SA}, s{SA}, 21\ns_lshl_b32 s{SB_}, s{SB_}, 14\ns_add_u32 s{SPFP}, s{SA}, s{SB_}\ns_lshl_b32 s{SA}, s{SKH}, 11\ns_add_u32 s{SPFP}, s{SPFP}, s{SA}")
                p(f"v_lshrrev_b32 {v(173)}, 4, {v(VL)}\nv_lshlrev_b32 {v(173)}, 12, {v(173)}\nv_and_b32 {v(174)}, 15, {v(VL)}\nv_lshl_add_u32 {v(173)}, {v(174)}, 7, {v(173)}\nv_lshlrev_b32 {v(174)}, 7, {v(VL)}")
                if o.get("xl"):
                    p(f"s_and_b32 s{SA}, s2, 7\ns_lshl_b32 s{SA}, s{SA}, 20\ns_lshr_b32 s{SB_}, s{SB_}, 1\ns_add_u32 s{SPFP}, s{SA}, s{SB_}\nv_mov_b32 {v(173)}, {v(174)}")
                p.vmem(f"buffer_load_dword {v(175)}, {v(173)}, {srd(SWSP)}, s{SPFP} offen")
            if part == 1:
                p(f"s_add_u32 s{SPFP}, s{SPFP}, {1<<(19 if o.get('xl') else 20)}")
                p.vmem(f"buffer_load_dword {v(175)}, {v(173)}, {srd(SWSP)}, s{SPFP} offen")
            if part == 2:
                l = p.label("zt")
                p(f"s_lshr_b32 s{SB_}, s2, 3\ns_lshl_b32 s{SB_}, s{SB_}, 2\ns_add_u32 s{SB_}, s{SB_}, s{SWV}\ns_and_b32 s{SA}, s2, 7\ns_lshl_b32 s{SF}, s{SB_}, 3\ns_add_u32 s{SF}, s{SF}, s{SA}")
                p(f"s_cmp_ge_u32 s{SF}, 428\ns_cbranch_scc1 {l}")
                p(f"s_cmp_lt_u32 s{SF}, 128\ns_cselect_b64 {sp(SSTMP)}, {sp(SCRE)}, {sp(SCIM)}\ns_and_b32 s{SA}, s{SF}, 127")
                p(f"s_sub_u32 s{SB_}, s{SF}, 256\ns_cmp_ge_u32 s{SF}, 256\ns_cselect_b64 {sp(SSTMP)}, {sp(SWOUT)}, {sp(SSTMP)}\ns_cselect_b32 s{SA}, s{SB_}, s{SA}")
                p(f"s_lshl_b32 s{SA}, s{SA}, 12\nv_and_b32 {v(172)}, 31, {v(VL)}\nv_lshl_add_u32 {v(172)}, {v(172)}, 7, s{SA}")
                p(f"global_load_dword {v(171)}, {v(172)}, {sp(SSTMP)}")
                p.put(l)
            if part == 3:
                p(f"s_lshr_b32 s{SB_}, s2, 3\ns_lshl_b32 s{SB_}, s{SB_}, 2\ns_add_u32 s{SB_}, s{SB_}, s{SWV}\ns_lshl_b32 s{SA}, s{SB_}, 13\nv_lshlrev_b32 {v(172)}, 7, {v(VL)}\ns_mul_i32 s{SB_}, s{SB_}, 11008")
                p.vmem(f"buffer_load_dword {v(171)}, {v(172)}, {srd(SWOUT)}, s{SB_} offen")
                p(f"s_add_u32 s{SB_}, s{SB_}, 2816")
                p.vmem(f"buffer_load_dword {v(171)}, {v(172)}, {srd(SWOUT)}, s{SB_} offen")
                if o.get("ct2") == 2:
                    p.vmem(f"buffer_load_dword {v(171)}, {v(172)}, {srd(SCRE)}, s{SA} offen")
                    p.vmem(f"buffer_load_dword {v(171)}, {v(172)}, {srd(SCIM)}, s{SA} offen")
            if part == 5:
                l = p.label("zh")
                p(f"s_lshr_b32 s{SB_}, s2, 3\ns_lshl_b32 s{SB_}, s{SB_}, 2\ns_add_u32 s{SB_}, s{SB_}, s{SWV}\ns_cmp_ge_u32 s{SB_}, 27\ns_cbranch_scc1 {l}")
                p(f"s_cmp_lt_u32 s{SB_}, 8\ns_cselect_b64 {sp(SSTMP)}, {sp(SCRE)}, {sp(SCIM)}\ns_and_b32 s{SA}, s{SB_}, 7\ns_sub_u32 s{SF}, s{SB_}, 16")
                p(f"s_cmp_ge_u32 s{SB_}, 16\ns_cselect_b64 {sp(SSTMP)}, {sp(SWOUT)}, {sp(SSTMP)}\ns_cselect_b32 s{SA}, s{SF}, s{SA}\ns_lshl_b32 s{SA}, s{SA}, 6")
                p(f"v_add_u32 {v(172)}, s{SA}, {v(VL)}\nv_min_u32 {v(172)}, 687, {v(172)}\nv_lshlrev_b32 {v(172)}, 10, {v(172)}")
                p(f"global_load_dword {v(171)}, {v(172)}, {sp(SSTMP)} offset:384")
                p.put(l)
            if part == 4:
                p(f"s_bfe_u32 s{SB_}, s2, 0x10006\ns_lshl_b32 s{SB_}, s{SB_}, 2\ns_add_u32 s{SB_}, s{SB_}, s{SWV}\ns_mul_i32 s{SB_}, s{SB_}, {86*1024}\ns_lshl_b32 s{SA}, s{SJ}, 7\ns_add_u32 s{SB_}, s{SB_}, s{SA}\nv_lshlrev_b32 {v(172)}, 10, {v(VL)}")
                p.vmem(f"buffer_load_dword {v(171)}, {v(172)}, {srd(SWOUT)}, s{SB_} offen")
                p(f"s_add_u32 s{SB_}, s{SB_}, {22*1024}")
                p.vmem(f"buffer_load_dword {v(171)}, {v(172)}, {srd(SWOUT)}, s{SB_} offen")
        if o.get("touch", 1) == 2:
            if o.get("wt"): valu.setdefault(o["wt"], []).append(lambda: ztouch(3))
            for k in range(3): valu.setdefault(o.get(f"zs{k}", [0, 0, 0][k]), []).append(lambda k=k: ztouch(k))
        else: self.paced(valu, 174, 175, o.get("zt0", 6), o.get("zdt", 6))
        self.gemm_loop(4, reads, mfmas, dma, tick, 2, npro, {o.get('ze0', 5): lambda: self.wsp_dma(0), o.get('ze1', 6): lambda: self.wsp_dma(1)} if zm == 1 else {}, valu)
        self.stamp(1)
        MA, MB = SK + 2, SK + 4
        GR, VLO = 72, 80
        def seg1b():
            p = self.p
            S0, S1, MU = 64, 66, 68
            p(f"v_pk_add_f32 {v(S0,2)}, {v(ACC,2)}, {v(ACC+2,2)}\nv_pk_add_f32 {v(S1,2)}, {v(ACC+4,2)}, {v(ACC+6,2)}")
            for i in range(4, 16):
                s = S0 if i % 2 == 0 else S1
                p(f"v_pk_add_f32 {v(s,2)}, {v(s,2)}, {v(ACC+2*i,2)}")
            for (m, b) in [(MA, 16), (MB, 20)]:
                p(f"s_mov_b64 exec, {sp(m)}")
                for i in range(b, b + 4):
                    s = S0 if i % 2 == 0 else S1
                    p(f"v_pk_add_f32 {v(s,2)}, {v(s,2)}, {v(ACC+2*i,2)}")
            p("s_mov_b64 exec, -1")
            p(f"v_pk_add_f32 {v(S0,2)}, {v(S0,2)}, {v(S1,2)}\nv_add_f32 {v(GR)}, {v(S0)}, {v(S0+1)}")
            p(f"v_mov_b32 {v(S0)}, {v(GR)}\nv_mov_b32 {v(GR+1)}, s{ST_T}\nv_mov_b32 {v(GR+3)}, s{ST_T}\nv_permlane32_swap_b32 {v(GR)}, {v(S0)}\nv_add_f32 {v(GR)}, {v(GR)}, {v(S0)}")
            p(f"v_mul_f32 {v(MU)}, s{SK+6}, {v(GR)}")
            D0, D1 = 76, 78
            def m2(i, first=False):
                d = D0 if i % 2 == 0 else D1; s = S0 if i % 2 == 0 else S1
                p(f"v_pk_add_f32 {v(d,2)}, {v(ACC+2*i,2)}, {v(MU,2)} op_sel_hi:[1,0] neg_lo:[0,1] neg_hi:[0,1]")
                if first: p(f"v_pk_mul_f32 {v(s,2)}, {v(d,2)}, {v(d,2)}")
                else: p(f"v_pk_fma_f32 {v(s,2)}, {v(d,2)}, {v(d,2)}, {v(s,2)}")
            for i in range(16): m2(i, i < 2)
            for (m, b) in [(MA, 16), (MB, 20)]:
                p(f"s_mov_b64 exec, {sp(m)}")
                for i in range(b, b + 4): m2(i)
            p("s_mov_b64 exec, -1")
            p(f"v_pk_add_f32 {v(S0,2)}, {v(S0,2)}, {v(S1,2)}\nv_add_f32 {v(GR+2)}, {v(S0)}, {v(S0+1)}")
            p(f"v_mov_b32 {v(S0)}, {v(GR+2)}\nv_cmp_gt_u32 vcc, 32, {v(VL)}")
            p(f"s_lshl_b32 s{SC}, s{SRB}, 2\ns_add_u32 s{SC}, s{SC}, s{SWV}")
            p(f"v_permlane32_swap_b32 {v(GR+2)}, {v(S0)}\nv_cndmask_b32 {v(VLO)}, {v(VOOB)}, {v(VL16)}, vcc\nv_add_f32 {v(GR+2)}, {v(GR+2)}, {v(S0)}")
            p(f"s_lshl_b32 s{SD}, s{SC}, 12\ns_add_u32 s{SD}, s{SD}, {ST}\ns_lshl_b32 s{SA}, s{SCOL}, 9\ns_add_u32 s{SA}, s{SA}, s{SD}")
        seg1 = self.cap(lambda: self.gelu_many([ACC + 2 * i for i in range(24)], [64, 68, 72, 76]))
        h = len(seg1) // 5
        f1 = self.wsp_dma(2) + [lambda: p("s_barrier")]
        f2 = self.wsp_dma(3) + self.wsp_dma(4)
        if zm == 1: self.run(merge(seg1[:h], f1) + merge(seg1[h:], f2))
        else:
            zg2 = o.get("zg2", 0); h2_ = len(seg1) * o.get("zg2at", 60) // 100
            fz = (self.wsp_dma(0) if zg2 >= 1 else []) + (self.wsp_dma(1) if zg2 >= 2 else [])
            self.run(seg1[:h] + [lambda: p("s_barrier")] + seg1[h:h2_] + merge(seg1[h2_:], fz))
        seg1b()
        p.vmem(f"buffer_store_dwordx4 {v(GR,4)}, {v(VLO)}, {srd(SWS)}, s{SA} offen sc1")
        self.stamp(2)
        lgw = lambda: p.wait(lg=p.lg - 1)
        Q0, Q1, QA, QB = 112, 113, 114, 115
        MN, VR, N3, I3, TM = 80, 81, 82, 83, 84
        def misc():
            p = self.p
            self.g_early(120)
            p(f"v_lshrrev_b32 {v(Q1)}, 5, {v(VL)}\nv_lshlrev_b32 {v(Q1)}, 6, {v(Q1)}\nv_xor_b32 {v(Q0)}, {v(VL16)}, {v(Q1)}\nv_xor_b32 {v(Q1)}, 128, {v(Q0)}")
            p(f"v_add_u32 {v(Q0)}, s{SPB+4}, {v(Q0)}\nv_add_u32 {v(Q1)}, s{SPB+4}, {v(Q1)}")
            self.unit_tr_addr(124, SPB + 4, 120, False)
            p.atom(f"s_cmp_lt_u32 s{SCOL}, 7\ns_cselect_b32 s{SA}, 24, 8")
            p(f"v_and_b32 {v(QB)}, 31, {v(VL)}\nv_cmp_gt_u32 vcc, s{SA}, {v(QB)}\nv_add_u32 {v(QB)}, 4096, {v(VL16)}\nv_cndmask_b32 {v(QA)}, {v(VOOB)}, {v(QB)}, vcc")
            p(f"s_lshl_b32 s{SA}, s{SCOL}, 6\ns_add_u32 s{SC}, s{SA}, s{SC}\ns_mul_i32 s{SE}, s{SC}, 6144")
            self.flag_prep(118)
            p(f"v_cmp_gt_u32 vcc, 32, {v(VL)}\nv_mov_b32 {v(N3)}, {f2u(72.0)}\nv_mov_b32 {v(TM)}, {f2u(88.0)}\nv_mov_b32 {v(I3)}, {f2u(1/72)}\nv_mov_b32 {v(TM+1)}, {f2u(1/88)}")
            p(f"v_cndmask_b32 {v(N3)}, {v(N3)}, {v(TM)}, vcc\nv_cndmask_b32 {v(I3)}, {v(I3)}, {v(TM+1)}, vcc")
        za = o.get("za", 1)
        f = self.wsp_read(0) + self.wsp_read(1) + [lgw]
        for st in range(5, 5 + za): f += self.wsp_dma(st)
        zs = o.get('zsched', 0)
        if zm == 2: f = self.wsp_dma(zg2) + self.wsp_dma(zg2 + 1) + (self.wsp_dma(2) if zs in (1, 2) else [])
        self.run(merge(gops + self.cap(misc), f))
        self.stamp(3)
        SG = 64
        for q in range(4):
            ts = p.vmem(f"buffer_load_dwordx4 {v(SG+4*q,4)}, {v(VL16)}, {srd(SWS)}, s{SD} offen offset:{q*1024} sc1")
        if zm == 1:
            for st in range(5 + za, 7): self.run(self.wsp_dma(st))
        else: self.run(self.wsp_dma(3) + self.wsp_read(0) if zs in (1, 2) else {0: self.wsp_dma(2), 1: self.wsp_dma(3), 2: self.wsp_read(0) + self.wsp_read(1)}[zg2])
        l = p.label("sp"); dl = p.label("sd")
        p.wait(vm=ts)
        p(f"s_mov_b32 s{SSPIN}, 0")
        p.put(l)
        X0 = 116
        p(f"v_xor_b32 {v(MN)}, s{ST_T}, {v(SG+1)}\nv_xor_b32 {v(VR)}, s{ST_T}, {v(SG+3)}")
        for r in [5, 9, 13]:
            p(f"v_xor_b32 {v(X0)}, s{ST_T}, {v(SG+r)}\nv_xor_b32 {v(X0+1)}, s{ST_T}, {v(SG+r+2)}\nv_or3_b32 {v(MN)}, {v(MN)}, {v(X0)}, {v(X0+1)}")
        p(f"v_or_b32 {v(MN)}, {v(MN)}, {v(VR)}")
        p(f"v_cmp_ne_u32 vcc, 0, {v(MN)}\ns_cmp_eq_u64 vcc, 0\ns_cbranch_scc1 {dl}")
        for q in range(4):
            p(f"buffer_load_dwordx4 {v(SG+4*q,4)}, {v(VL16)}, {srd(SWS)}, s{SD} offen offset:{q*1024} sc1")
        p("s_waitcnt vmcnt(0)")
        p(f"s_add_u32 s{SSPIN}, s{SSPIN}, 1\ns_cmp_lt_u32 s{SSPIN}, {SPIN}\ns_cbranch_scc1 {l}")
        p.put(dl)
        self.stamp(4)
        p(f"v_add_f32 {v(MN)}, {v(SG)}, {v(SG+4)}\nv_add_f32 {v(TM+2)}, {v(SG+8)}, {v(SG+12)}\nv_add_f32 {v(MN)}, {v(MN)}, {v(TM+2)}")
        p(f"v_mov_b32 {v(TM+3)}, {v(MN)}\nv_add_f32 {v(VR)}, {v(SG+2)}, {v(SG+6)}\nv_add_f32 {v(TM+2)}, {v(SG+10)}, {v(SG+14)}")
        p(f"v_permlane32_swap_b32 {v(MN)}, {v(TM+3)}\nv_add_f32 {v(VR)}, {v(VR)}, {v(TM+2)}\nv_add_f32 {v(MN)}, {v(MN)}, {v(TM+3)}")
        p(f"v_mul_f32 {v(MN)}, {f2u(1/688)}, {v(MN)}")
        for q in range(4):
            n_, i_ = (TM, TM + 1) if q < 3 else (N3, I3)
            p(f"v_fma_f32 {v(TM+2)}, {v(SG+4*q)}, {v(i_)}, -{v(MN)}\nv_mul_f32 {v(TM+2)}, {v(TM+2)}, {v(TM+2)}\nv_fmac_f32 {v(VR)}, {v(TM+2)}, {v(n_)}")
        self.xhalf_sum(VR, TM)
        p(f"v_mov_b32 {v(TM)}, {f2u(1e-5)}\nv_fmac_f32 {v(TM)}, {f2u(1/688)}, {v(VR)}\nv_rsq_f32 {v(VR)}, {v(TM)}")
        p(f"s_add_u32 s{SA}, s{SE}, {Z2N}\ns_add_u32 s{SB_}, s{SA}, 4096")
        p(f"v_mul_f32 {v(MN)}, {v(MN)}, {v(VR)}")
        ZP = 88
        for u in range(6):
            mt, q = u >> 1, u & 1
            R4 = range(4 * u, 4 * u + 4)
            for i in R4: p(f"v_pk_fma_f32 {v(ACC+2*i,2)}, {v(ACC+2*i,2)}, {v(MN,2)}, {v(MN,2)} op_sel:[0,1,0] op_sel_hi:[1,1,0] neg_lo:[0,0,1] neg_hi:[0,0,1]")
            for i in R4: p(f"v_cvt_pk_bf16_f32 {v(ZP+i)}, {v(ACC+2*i)}, {v(ACC+2*i+1)}")
            p.lds(f"ds_write_b128 {v(Q0+q)}, {v(ZP+4*u,4)} offset:{mt*2048+q*1024}")
        FO = [(0, 0), (0, 1), (1, 0), (1, 1), (0, 2), (1, 2)]
        zr = {}
        for fi, (ks, mt) in enumerate(FO):
            for a in range(2): zr[fi] = p.lds(f"ds_read_b64_tr_b16 {v(128+4*fi+2*a,2)}, {v(124+a)} offset:{mt*2048+ks*256}")
        p(f"s_lshl_b32 s{SE}, s{SC}, 7\ns_add_u32 s{SE}, s{SE}, {ZF}")
        for fi in range(6):
            p.wait(lg=zr[fi])
            t = p.vmem(f"buffer_store_dwordx4 {v(128+4*fi,4)}, {v(VL16 if fi < 4 else QA)}, {srd(SWS)}, s{SA} offen offset:{(fi%4)*1024} sc1")
        if zs:
            if zs >= 3:
                self.run(merge(self.wsp_dma(3) + (self.wsp_dma(4) if zs == 4 else []), self.wsp_read(0) + self.wsp_read(1) + self.wsp_read(2)))
                p.wait(vm=t)
                self.flag(SE, 118)
                self.run(([] if zs == 4 else self.wsp_dma(4)) + [lgw] + self.wsp_dma(5) + self.wsp_dma(6) + self.wsp_dma(7))
            else:
                self.run(merge(self.wsp_dma(4) + (self.wsp_dma(5) if zs > 1 else []), self.wsp_read(1) + self.wsp_read(2)))
                p.wait(vm=t)
                self.flag(SE, 118)
                self.run([lgw] + ([] if zs > 1 else self.wsp_dma(5)) + self.wsp_dma(6) + self.wsp_dma(7))
            for st in range(3, 6): self.run(self.wsp_read(st))
            self.g_poll_issue()
            prefill(0, 6)
            for st in range(6, 8): self.run(self.wsp_read(st))
            p(f"s_add_u32 s{SLATE}, s{SE}, {ZF2-ZF}")
            self.stamp(5)
            return
        if zg2 == 0:
            self.run(merge(self.wsp_dma(3), self.wsp_read(0) + self.wsp_read(1) + self.wsp_read(2)))
            rest = self.wsp_dma(4) + [lgw] + self.wsp_dma(5) + self.wsp_dma(6)
        elif zg2 == 1:
            self.run(merge(self.wsp_dma(4), self.wsp_read(0) + self.wsp_read(1) + self.wsp_read(2)))
            rest = [lgw] + self.wsp_dma(5) + self.wsp_dma(6)
        else:
            self.run(merge(self.wsp_dma(4), self.wsp_read(2)))
            rest = [lgw] + self.wsp_dma(5) + self.wsp_dma(6)
        p.wait(vm=t)
        self.flag(SE, 118)
        prefill(0, 6); tpf = p.vm - 1
        self.run(rest)
        p.wait(vm=tpf)
        p(f"s_add_u32 s{SE}, s{SE}, {ZF2-ZF}")
        self.flag(SE, 118)
        self.run(self.wsp_dma(7))
        if o.get("ct2") in (2, 3): ztouch(3)
        if o.get("ct2") == 5: ztouch(5)
        for st in range(3, 8): self.run(self.wsp_read(st))
        self.g_poll_issue()
        p(f"s_mov_b32 s{SLATE}, 0")
        self.stamp(5)

    def phase_u(self):
        p = self.p; o = self.o
        ACC, ZA, FA, FB, FW, FX = 16, 80, 128, 144, 160, 184
        XR, BR, X1R, WR, XD, BD, WD, T = 192, 196, 200, 204, 206, 210, 214, 60
        p.c("==== phase A: U ====")
        p.put(self.LU)
        WT, WP = SK + 8, SK + 9
        p(f"v_lshrrev_b32 {v(T)}, 5, {v(VL)}\nv_lshlrev_b32 {v(T)}, 15, {v(T)}")
        p(f"v_bfe_u32 {v(T+1)}, {v(VL)}, 3, 1\nv_lshl_add_u32 {v(T)}, {v(T+1)}, 14, {v(T)}")
        p(f"v_bfe_u32 {v(T+1)}, {v(VL)}, 4, 1\nv_lshl_add_u32 {v(T)}, {v(T+1)}, 10, {v(T)}")
        self.plain_dma_addr2(XD, T, T + 1, 2048)
        p(f"s_lshr_b32 s{WP}, s{SWV}, 1\ns_and_b32 s{WT}, s{SWV}, 1\ns_lshl_b32 s{SA}, s{WT}, 5")
        for i in range(4): p(f"v_xor_b32 {v(XD+i)}, s{SA}, {v(XD+i)}")
        p(f"s_lshl_b32 s{SD}, s{WP}, 16\ns_add_u32 s{SXB}, s{SXB}, s{SD}\ns_lshl_b32 s{SD}, s{WT}, 13\ns_add_u32 s{SXB}, s{SXB}, s{SD}\ns_lshl_b32 s{SXL}, s{SWV}, 12\ns_mov_b32 m0, s{SXL}")
        p.wait_lg_all()
        so = self.rot0(SXB, 128)
        for i in range(4): p.vmem(f"buffer_load_dwordx4 {v(XD+i)}, {srd(SX)}, s{so} offen offset:{i*1024} lds")
        self.common2()
        self.plain_dma_addr(BD, 1024, T)
        p(f"s_lshl_b32 s{SW1B}, s{SCOL}, 16\ns_lshl_b32 s{SD}, s{WT}, 15\ns_add_u32 s{SW1B}, s{SW1B}, s{SD}\ns_mov_b32 s{SW1+2}, 524288\ns_add_u32 m0, s{SXL}, 49152")
        p(f"s_cmp_eq_u32 s{WP}, 0\ns_cselect_b64 {sp(SW1)}, {sp(PBRE)}, {sp(PBIM)}")
        so = self.rot0(SW1B, 128)
        for i in range(4): p.vmem(f"buffer_load_dwordx4 {v(BD+i)}, {srd(SW1)}, s{so} offen offset:{i*1024} lds")
        self.w_dma_addr(WD, T, 0)
        SWIB = SCB
        p(f"s_mul_i32 s{SWIB}, s{SWV}, {16*2752}\ns_mul_i32 s{SA}, s{SCOL}, 176\ns_add_u32 s{SWIB}, s{SWIB}, s{SA}")
        p(f"s_mul_i32 s{SWL}, s{SWV}, 3072\ns_add_u32 s{SWL}, s{SWL}, 98304\ns_mov_b32 m0, s{SWL}\ns_mov_b32 s{PWIN+2}, {512*2752}\ns_mov_b32 s{PWIN+3}, 0x20000")
        so = self.rot0(SWIB, 64 * 2752)
        for i in range(3): t0_ = p.vmem(f"buffer_load_dwordx4 {v(WD+i)}, {srd(PWIN)}, s{so} offen offset:{i*1024} lds")
        if o.get("sst"): self.stamp(23)
        PR = 228
        tick = {}
        def dma(st):
            sl = st % 3; items = []
            def cb(t): tick[st] = t
            for i in range(3):
                items.append(((SWL, sl * 12288) if i == 0 else None, self.rot(SWIB, st, 64 * 2752) if i == 0 else None,
                              f"buffer_load_dwordx4 {v(WD+i)}, {srd(PWIN)}, s{SDO} offen offset:{i*1024} lds", None))
            for (vd, sr, sb, lb) in [(XD, SX, SXB, 0), (BD, SW1, SW1B, 49152)]:
                for i in range(4):
                    items.append(((SXL, lb + sl * 16384) if i == 0 else None, self.rot(sb, st, 128) if i == 0 else None,
                                  f"buffer_load_dwordx4 {v(vd+i)}, {srd(sr)}, s{SDO} offen offset:{i*1024} lds", cb))
            return self.dseq(items)
        tick[0] = t0_
        npro = o.get("npro_u", 2)
        def setup():
            p = self.p
            p(f"s_mul_i32 s{SREG}, s{SWV}, 40960\ns_lshl_b32 s{SA}, s{WT}, 13")
            self.plain_read_addr(XR, SA, T)
            p(f"s_lshl_b32 s{SA}, s{WP}, 12\ns_add_u32 s{SA}, s{SA}, 49152")
            self.plain_read_addr(BR, SA, T)
            self.w_tr_addr(WR, 98304, T)
            p(f"v_bfe_u32 {v(T)}, {v(VL)}, 3, 1\nv_lshlrev_b32 {v(T+1)}, 12, {v(T)}\nv_xor_b32 {v(T)}, s{WT}, {v(T)}\nv_lshlrev_b32 {v(T)}, 1, {v(T)}")
            p(f"v_bfe_u32 {v(T+2)}, {v(VL)}, 1, 2\nv_lshl_add_u32 {v(T+1)}, {v(T+2)}, 10, {v(T+1)}")
            p(f"v_and_b32 {v(T+2)}, 1, {v(T+2)}\nv_lshl_add_u32 {v(T)}, {v(T+2)}, 2, {v(T)}")
            p(f"v_and_b32 {v(T+2)}, 1, {v(VL)}\nv_lshl_add_u32 {v(T+1)}, {v(T+2)}, 8, {v(T+1)}\nv_or_b32 {v(T)}, {v(T)}, {v(T+2)}")
            p(f"v_bfe_u32 {v(T+2)}, {v(VL)}, 4, 1\nv_lshl_add_u32 {v(T+1)}, {v(T+2)}, 7, {v(T+1)}")
            p(f"s_lshl_b32 s{SA}, s{WP}, 13\ns_lshl_b32 s{SB_}, s{WT}, 9\ns_add_u32 s{SA}, s{SA}, s{SB_}\nv_add_u32 {v(T+1)}, s{SA}, {v(T+1)}")
            p(f"v_lshrrev_b32 {v(T+2)}, 5, {v(VL)}\nv_xor_b32 {v(T)}, {v(T)}, {v(T+2)}\nv_lshlrev_b32 {v(T)}, 4, {v(T)}")
            for ks in range(4): p(f"v_xor_b32 {v(X1R+ks)}, {32*ks}, {v(T)}\nv_add_u32 {v(X1R+ks)}, {v(X1R+ks)}, {v(T+1)}")
            self.wsp_setup(T)
            p(f"s_lshl_b32 s{SPB+1}, s{WT}, 13\ns_mul_i32 s{SA}, s{WP}, 49152\ns_add_u32 s{SPB+1}, s{SPB+1}, s{SA}\ns_add_u32 s{SPB}, s{SPB+1}, 32768\ns_add_u32 s{SPB+2}, s{SPB+1}, 16384")
            p(f"s_lshl_b32 s{SA}, s{SWV}, 13\ns_add_u32 s{SPB+3}, s{SA}, {13*8192}\ns_add_u32 s{SPB+4}, s{SA}, {17*8192}")
            p.atom(f"s_cmp_eq_u32 s{SWV}, 3\ns_cselect_b32 s{SPB+4}, {12*8192}, s{SPB+4}")
            self.valid_masks()
        self.run(merge(self.cap(lambda: (self.common3(), setup())), (dma(1) if npro > 1 else []) + (dma(2) if npro > 2 else [])))
        p(f"s_lshl_b32 s{SD}, s{SRB}, 1\ns_add_u32 s{SD}, s{SD}, s{WT}")
        p(f"s_lshl_b32 s{SA}, s{SCOL}, 1\ns_add_u32 s{SA}, s{SA}, s{WP}")
        p(f"s_lshl_b32 s{SE}, s{SD}, 4\ns_add_u32 s{SE}, s{SE}, s{SA}")
        p(f"s_lshl_b32 s{SA}, s{SA}, 5\nv_and_b32 {v(T)}, 31, {v(VL)}\nv_add_lshl_u32 {v(T)}, {v(T)}, s{SA}, 1")
        p.wait_lg_all()
        p.vmem(f"global_load_ushort {v(PR)}, {v(T)}, {sp(PLRE)}")
        p.vmem(f"global_load_ushort {v(PR+1)}, {v(T)}, {sp(PLIM)}")
        tp = p.vmem(f"global_load_ushort {v(PR+2)}, {v(T)}, {sp(PLDT)}")
        LB, CF, L16, L128, L256, LQ0, LQ1 = 218, 220, 222, 224, 226, 228, 230
        X0, X1, X2, X3 = 232, 233, 234, 235
        L32, L64 = 236, 238
        def csq(d, s):
            p = self.p
            p(f"v_mul_f32 {v(X0)}, {v(s+1)}, {v(s+1)}\nv_add_f32 {v(X1)}, {v(s)}, {v(s)}")
            p(f"v_mul_f32 {v(d+1)}, {v(X1)}, {v(s+1)}\nv_fma_f32 {v(d)}, {v(s)}, {v(s)}, -{v(X0)}")
        def cmul(d, a, b):
            p = self.p
            p(f"v_mul_f32 {v(X0)}, {v(a+1)}, {v(b+1)}\nv_mul_f32 {v(X1)}, {v(a+1)}, {v(b)}")
            p(f"v_fma_f32 {v(X0)}, {v(a)}, {v(b)}, -{v(X0)}\nv_fma_f32 {v(d+1)}, {v(a)}, {v(b+1)}, {v(X1)}\nv_mov_b32 {v(d)}, {v(X0)}")
        def cfma(d, a, b, c):
            p = self.p
            p(f"v_fma_f32 {v(X0)}, {v(a)}, {v(b)}, {v(c)}\nv_fma_f32 {v(X1)}, {v(a)}, {v(b+1)}, {v(c+1)}")
            p(f"v_fma_f32 {v(X0)}, -{v(a+1)}, {v(b+1)}, {v(X0)}\nv_fma_f32 {v(d+1)}, {v(a+1)}, {v(b)}, {v(X1)}\nv_mov_b32 {v(d)}, {v(X0)}")
        def params():
            p = self.p
            p(f"v_lshlrev_b32 {v(PR)}, 16, {v(PR)}\nv_lshlrev_b32 {v(PR+1)}, 16, {v(PR+1)}\nv_lshlrev_b32 {v(PR+2)}, 16, {v(PR+2)}")
            p(f"v_mul_f32 {v(X0)}, {f2u(LOG2E)}, {v(PR+2)}\nv_exp_f32 {v(X0)}, {v(X0)}"); self.rnd(X0, X0)
            p(f"v_mul_f32 {v(X1)}, {v(X0)}, {v(PR)}\nv_mul_f32 {v(X2)}, {v(X0)}, {v(PR+1)}")
            p(f"v_mul_f32 {v(X1)}, {f2u(LOG2E)}, {v(X1)}\nv_exp_f32 {v(X1)}, {v(X1)}")
            p(f"v_mul_f32 {v(X2)}, {f2u(1/(2*math.pi))}, {v(X2)}\nv_fract_f32 {v(X2)}, {v(X2)}")
            p(f"v_cos_f32 {v(X3)}, {v(X2)}\nv_sin_f32 {v(X2)}, {v(X2)}")
            p(f"v_mul_f32 {v(X0)}, {v(PR)}, {v(PR)}")
            p(f"v_mul_f32 {v(LB)}, {v(X1)}, {v(X3)}\nv_mul_f32 {v(LB+1)}, {v(X1)}, {v(X2)}")
            p(f"v_fmac_f32 {v(X0)}, {v(PR+1)}, {v(PR+1)}\nv_rcp_f32 {v(X0)}, {v(X0)}")
            p(f"v_add_f32 {v(X1)}, -1.0, {v(LB)}\nv_add_f32 {v(X0)}, {v(X0)}, {v(X0)}")
            p(f"v_mul_f32 {v(X2)}, {v(X1)}, {v(PR)}\nv_fmac_f32 {v(X2)}, {v(LB+1)}, {v(PR+1)}\nv_mul_f32 {v(CF)}, {v(X2)}, {v(X0)}")
            p(f"v_mul_f32 {v(X2)}, {v(LB+1)}, {v(PR)}\nv_fma_f32 {v(X2)}, -{v(X1)}, {v(PR+1)}, {v(X2)}\nv_mul_f32 {v(CF+1)}, {v(X2)}, {v(X0)}")
            csq(L16, LB); csq(L16, L16); csq(L16, L16); csq(L16, L16)
            csq(L32, L16); csq(L64, L32); csq(L128, L64); csq(L256, L128)
            p.atom(f"s_cmp_eq_u32 s{WT}, 0\ns_cselect_b64 vcc, -1, 0")
            p(f"v_cndmask_b32 {v(L64)}, {v(L64)}, 1.0, vcc\nv_cndmask_b32 {v(L64+1)}, {v(L64+1)}, 0, vcc")
            p(f"v_cmp_gt_u32 vcc, 32, {v(VL)}\nv_cndmask_b32 {v(LQ0)}, {v(L32)}, 1.0, vcc\nv_cndmask_b32 {v(LQ0+1)}, {v(L32+1)}, 0, vcc")
            cmul(LQ0, LQ0, L64); cmul(LQ1, LQ0, L16)
        self.pf2()
        self.epoch2()
        self.stamp(0)
        pops = [lambda: p.wait(vm=tp)] + self.cap(params)
        valu = {}
        q = (len(pops) + 15) // 16
        for i in range(16): valu[8 + i] = pops[i * q:(i + 1) * q]
        self.paced(valu, 217, 205, o.get("ut0", 4), o.get("udt", 4))
        rt = {}
        def reads(n):
            st, ks = n // 4, n % 4; sl = st % 3; s = n & 1; ops = []
            for k in range(2):
                def ra(k=k): rt[(n, 'a', k)] = p.lds(f"ds_read_b128 {v(FA+8*s+4*k,4)}, {v(XR+(ks^k))} offset:{sl*16384+k*4096}")
                def rb(k=k): rt[(n, 'b', k)] = p.lds(f"ds_read_b128 {v(FB+8*s+4*k,4)}, {v(BR+ks)} offset:{sl*16384+k*8192}")
                ops += [ra, rb]
            def rx(): p.lds(f"ds_read_b128 {v(FX+4*s,4)}, {v(X1R+ks)} offset:{sl*16384}")
            ops.append(rx)
            for mt in range(3):
                for a in range(2):
                    def rw(mt=mt, a=a):
                        rt[(n, 'w', mt)] = p.lds(f"ds_read_b64_tr_b16 {v(FW+12*s+4*mt+2*a,2)}, {v(WR)} offset:{sl*12288+ks*3072+a*768+mt*64}")
                    ops.append(rw)
            return ops
        def mfmas(n):
            s = n & 1; ops = []
            for (mt, cp) in [(0, 0), (1, 0), (1, 1), (0, 1)]:
                def m(mt=mt, cp=cp):
                    if (mt, cp) == (0, 0): p.wait(lg=rt[(n, 'b', 1)])
                    d = v(ACC + 32 * mt + 16 * cp, 16)
                    p(f"{MF} {d}, {v(FA+8*s+4*mt,4)}, {v(FB+8*s+4*cp,4)}, {'0' if n == 0 else d}")
                ops.append(m)
            for mt in range(3):
                def m(mt=mt):
                    if mt == 0: p.wait(lg=rt[(n, 'w', 2)])
                    d = v(ZA + 16 * mt, 16)
                    p(f"{MF} {d}, {v(FW+12*s+4*mt,4)}, {v(FX+4*s,4)}, {'0' if n == 0 else d}")
                ops.append(m)
            return ops
        self.gemm_loop(3, reads, mfmas, dma, tick, 5, npro, {6: lambda: self.wsp_dma(0), 7: lambda: self.wsp_dma(1)}, valu)
        self.stamp(1)
        def U(sg, cp): return ACC + 32 * (sg >> 3) + 16 * cp + 4 * ((sg & 7) >> 1) + 2 * (sg & 1)
        def step(hr, hi, sg, nr, ni, t0, t1):
            p = self.p; A = v(LB, 2)
            p(f"v_pk_fma_f32 {v(t0,2)}, {A}, {v(hr,2)}, {v(U(sg,0),2)} op_sel_hi:[0,1,1]")
            p(f"v_pk_fma_f32 {v(t1,2)}, {A}, {v(hi,2)}, {v(U(sg,1),2)} op_sel_hi:[0,1,1]")
            p(f"v_pk_fma_f32 {v(nr,2)}, {A}, {v(hi,2)}, {v(t0,2)} op_sel:[1,0,0] op_sel_hi:[1,1,1] neg_lo:[1,0,0] neg_hi:[1,0,0]")
            p(f"v_pk_fma_f32 {v(ni,2)}, {A}, {v(hr,2)}, {v(t1,2)} op_sel:[1,0,0] op_sel_hi:[1,1,1]")
        HA, HBb, T0, EX, E8, AD, GR, CQ = 128, 132, 136, 140, 144, 160, 164, 168
        SCR = 98304
        p(f"s_lshl_b32 s{SA}, s{WP}, 11\ns_add_u32 s{SA}, s{SA}, {SCR}")
        p(f"v_and_b32 {v(AD)}, 31, {v(VL)}\nv_lshlrev_b32 {v(AD)}, 6, {v(AD)}\nv_add_u32 {v(AD)}, s{SA}, {v(AD)}")
        p(f"v_lshrrev_b32 {v(AD+1)}, 5, {v(VL)}\nv_lshl_add_u32 {v(AD+1)}, {v(AD+1)}, 4, {v(AD)}\ns_lshl_b32 s{SA}, s{WT}, 5\nv_add_u32 {v(AD+1)}, s{SA}, {v(AD+1)}")
        Z1P = 192
        SZ0, SZ1 = SXL, SWL
        VA_ = 176
        MA, MB = SK + 2, SK + 4
        def z1st(u):
            mt, q = u >> 1, u & 1
            for i in range(4): p(f"v_cvt_pk_bf16_f32 {v(Z1P+4*u+i)}, {v(ZA+8*u+2*i)}, {v(ZA+8*u+2*i+1)}")
            r = v(Z1P + 4 * u, 4)
            if mt < 2: p.vmem(f"buffer_store_dwordx4 {r}, {v(VL16)}, {srd(SWS)}, s{SZ0} offen offset:{mt*2048+q*1024} sc1")
            else: p.vmem(f"buffer_store_dwordx4 {r}, {v(VA_+q)}, {srd(SWS)}, s{SZ1} offen offset:{q*1024} sc1")
        p(f"s_lshl_b32 s{SA}, s{SCOL}, 6\ns_lshl_b32 s{SB_}, s{SRB}, 2\ns_add_u32 s{SA}, s{SA}, s{SB_}\ns_add_u32 s{SA}, s{SA}, s{SWV}\ns_mul_i32 s{SA}, s{SA}, 5632")
        p(f"s_add_u32 s{SZ0}, s{SA}, {Z1}\ns_add_u32 s{SZ1}, s{SZ0}, 4096")
        p(f"v_cndmask_b32 {v(VA_)}, {v(VOOB)}, {v(VL16)}, {sp(MA)}\nv_cndmask_b32 {v(VA_+1)}, {v(VOOB)}, {v(VL16)}, {sp(MB)}")
        zs = [(lambda u=u: z1st(u)) for u in range(6)]
        self.run(zs[:2])
        p("s_barrier")
        def pass1():
            hr, hi = U(0, 0), U(0, 1)
            for sg in range(1, 16):
                nr, ni = (HA, HA + 2) if sg & 1 else (HBb, HBb + 2)
                step(hr, hi, sg, nr, ni, T0, T0 + 2)
                hr, hi = nr, ni
            self.p(f"v_mov_b32 {v(EX)}, {v(hr)}\nv_mov_b32 {v(EX+1)}, {v(hi)}\nv_mov_b32 {v(EX+2)}, {v(hr+1)}\nv_mov_b32 {v(EX+3)}, {v(hi+1)}")
        d2 = self.wsp_dma(2) + self.wsp_dma(3)
        self.run(merge(merge(self.cap(pass1), zs[2:]), d2[:7]))
        p.lds(f"ds_write_b128 {v(AD+1)}, {v(EX,4)}")
        p.wait_lg_all(); p("s_barrier")
        for i in range(4): p.lds(f"ds_read_b128 {v(E8+4*i,4)}, {v(AD)} offset:{16*i}")
        te = p.lg - 1
        self.run(d2[7:11])
        p(f"s_cmp_eq_u32 s{WT}, 0\ns_cselect_b32 s{SA}, 32, 0")
        p(f"v_cmp_gt_u32 vcc, s{SA}, {v(VL)}\nv_mov_b32 {v(GR+1)}, s{ST_T}\nv_mov_b32 {v(GR+3)}, s{ST_T}\nv_cndmask_b32 {v(T0)}, {v(VOOB)}, {v(VL16)}, vcc")
        p(f"s_lshl_b32 s{SC}, s{SCOL}, 14\ns_lshl_b32 s{SA}, s{WP}, 9\ns_add_u32 s{SC}, s{SC}, s{SA}\ns_add_u32 s{SC}, s{SC}, {EG}")
        p(f"s_lshl_b32 s{SA}, s{SRB}, 10\ns_add_u32 s{SA}, s{SA}, s{SC}")
        p.wait(lg=te); p("s_barrier")
        self.run(merge(self.cap(lambda: [cfma(E8 + 2 * q, L16, E8 + 2 * (q - 1), E8 + 2 * q) for q in range(1, 8)]), d2[11:15]))
        p(f"v_mov_b32 {v(GR)}, {v(E8+14)}\nv_mov_b32 {v(GR+2)}, {v(E8+15)}")
        p.vmem(f"buffer_store_dwordx4 {v(GR,4)}, {v(T0)}, {srd(SWS)}, s{SA} offen sc1")
        self.run(d2[15:])
        self.stamp(2)
        p(f"v_cmp_gt_u32 vcc, 32, {v(VL)}")
        w1 = p.label("w1"); w2 = p.label("w2")
        p(f"s_cmp_eq_u32 s{WT}, 0\ns_cbranch_scc0 {w1}")
        p(f"v_cndmask_b32 {v(CQ)}, {v(E8+2)}, 0, vcc\nv_cndmask_b32 {v(CQ+1)}, {v(E8+3)}, 0, vcc")
        p(f"v_cndmask_b32 {v(CQ+2)}, {v(E8+4)}, {v(E8)}, vcc\nv_cndmask_b32 {v(CQ+3)}, {v(E8+5)}, {v(E8+1)}, vcc")
        p(f"s_branch {w2}")
        p.put(w1)
        for k in range(4): p(f"v_cndmask_b32 {v(CQ+k)}, {v(E8+10+k)}, {v(E8+6+k)}, vcc")
        p.put(w2)
        Z1P = 192
        EGR, EO, EXP, ET = 80, 144, 152, 160
        def eo():
            p = self.p
            p(f"v_lshrrev_b32 {v(ET)}, 5, {v(VL)}\nv_sub_u32 {v(ET)}, s{SRB}, {v(ET)}\nv_add_u32 {v(ET)}, -1, {v(ET)}")
            p(f"v_and_b32 {v(ET+1)}, 31, {v(VL)}\nv_lshlrev_b32 {v(ET+1)}, 4, {v(ET+1)}\nv_mov_b32 {v(ET+3)}, s{ST_T}")
            for q in range(8):
                p(f"v_add_u32 {v(ET+2)}, {-2*q}, {v(ET)}\nv_cmp_le_i32 vcc, 0, {v(ET+2)}\nv_lshl_add_u32 {v(ET+2)}, {v(ET+2)}, 10, {v(ET+1)}")
                p(f"v_cndmask_b32 {v(EO+q)}, {v(VOOB)}, {v(ET+2)}, vcc\nv_cndmask_b32 {v(EXP+q)}, 0, {v(ET+3)}, vcc")
        lgw = lambda: p.wait(lg=p.lg - 1)
        self.run(merge(self.cap(lambda: (eo(), self.g_early(184))), self.wsp_dma(4) + self.wsp_read(0) + self.wsp_read(1)))
        et = {}
        def eload(q):
            et['t'] = p.vmem(f"buffer_load_dwordx4 {v(EGR+4*q,4)}, {v(EO+q)}, {srd(SWS)}, s{SC} offen sc1")
        for q in range(8): eload(q)
        ue = o.get('ue', 0)
        self.run([lgw] + self.wsp_dma(5) + (self.wsp_dma(6) if ue else []))
        if ue == 2: self.run(self.wsp_read(2) + [lgw] + self.wsp_dma(7))
        self.stamp(3)
        l = p.label("ep"); dl = p.label("ed")
        p.wait(vm=et['t'])
        p(f"s_mov_b32 s{SSPIN}, 0")
        p.put(l)
        p(f"v_mov_b32 {v(ET)}, 0")
        for q in range(8):
            p(f"v_xor_b32 {v(ET+1)}, {v(EXP+q)}, {v(EGR+4*q+1)}\nv_xor_b32 {v(ET+2)}, {v(EXP+q)}, {v(EGR+4*q+3)}\nv_or3_b32 {v(ET)}, {v(ET)}, {v(ET+1)}, {v(ET+2)}")
        p(f"v_cmp_ne_u32 vcc, 0, {v(ET)}\ns_cmp_eq_u64 vcc, 0\ns_cbranch_scc1 {dl}")
        for q in range(8): p(f"buffer_load_dwordx4 {v(EGR+4*q,4)}, {v(EO+q)}, {srd(SWS)}, s{SC} offen sc1")
        p("s_waitcnt vmcnt(0)")
        p(f"s_add_u32 s{SSPIN}, s{SSPIN}, 1\ns_cmp_lt_u32 s{SSPIN}, {SPIN}\ns_cbranch_scc1 {l}")
        p.put(dl)
        self.flag_prep(178)
        p(f"s_lshl_b32 s{SA}, s{SCOL}, 6\ns_lshl_b32 s{SB_}, s{SRB}, 2\ns_add_u32 s{SA}, s{SA}, s{SB_}\ns_add_u32 s{SA}, s{SA}, s{SWV}\ns_lshl_b32 s{SA}, s{SA}, 7\ns_add_u32 s{SA}, s{SA}, {Z1F}")
        self.flag(SA, 178)
        self.stamp(4)
        OP, OT, HO = 80, 144, 132
        MA, MB = SK + 2, SK + 4
        SH0, SH1 = SXB, SW1B
        def pass2a():
            p = self.p
            p(f"s_lshl_b32 s{SA}, s{SD}, 3\ns_add_u32 s{SA}, s{SA}, s{SCOL}\ns_lshl_b32 s{SA}, s{SA}, 14\ns_lshl_b32 s{SB_}, s{WP}, 12\ns_add_u32 s{SA}, s{SA}, s{SB_}")
            p(f"s_add_u32 s{SH0}, s{SA}, {HB}\ns_add_u32 s{SH1}, s{SH0}, 8192")
            p(f"v_lshrrev_b32 {v(T0)}, 5, {v(VL)}\nv_lshlrev_b32 {v(T0)}, 11, {v(T0)}\nv_and_b32 {v(T0+1)}, 31, {v(VL)}\nv_lshl_add_u32 {v(HO)}, {v(T0+1)}, 4, {v(T0)}")
            for k in range(1, 4): p(f"v_xor_b32 {v(HO+k)}, {64*k}, {v(HO)}")
            for q in range(8): p(f"v_mov_b32 {v(EGR+4*q+1)}, {v(EGR+4*q+2)}")
            S = EGR + 28
            for q in range(6, -1, -1): cfma(S, L256, S, EGR + 4 * q)
            p(f"v_mov_b32 {v(ET)}, {v(S)}\nv_mov_b32 {v(ET+1)}, {v(S+1)}\nv_permlane32_swap_b32 {v(S)}, {v(ET)}\nv_permlane32_swap_b32 {v(S+1)}, {v(ET+1)}")
            cfma(S, L128, ET, S)
            cfma(CQ, LQ0, S, CQ); cfma(CQ + 2, LQ1, S, CQ + 2)
            p(f"v_mov_b32 {v(HA)}, {v(CQ)}\nv_mov_b32 {v(HA+1)}, {v(CQ+2)}\nv_mov_b32 {v(HA+2)}, {v(CQ+1)}\nv_mov_b32 {v(HA+3)}, {v(CQ+3)}")
        def pass2(s0, s1):
            p = self.p
            Cc = v(CF, 2)
            for sg in range(s0, s1):
                hr, hi = (HA, HA + 2) if sg == 0 else (U(sg - 1, 0), U(sg - 1, 1))
                step(hr, hi, sg, U(sg, 0), U(sg, 1), T0, T0 + 2)
                hr, hi = U(sg, 0), U(sg, 1)
                oo = OT + 4 * (sg & 1) + 8 * ((sg >> 1) & 1)
                p(f"v_pk_mul_f32 {v(oo,2)}, {Cc}, {v(hr,2)} op_sel_hi:[0,1]")
                p(f"v_pk_mul_f32 {v(oo+2,2)}, {Cc}, {v(hi,2)} op_sel_hi:[0,1] neg_lo:[1,0] neg_hi:[1,0]")
                p(f"v_pk_fma_f32 {v(oo,2)}, {Cc}, {v(hi,2)}, {v(oo,2)} op_sel:[1,0,0] op_sel_hi:[1,1,1] neg_lo:[1,0,0] neg_hi:[1,0,0]")
                p(f"v_pk_fma_f32 {v(oo+2,2)}, {Cc}, {v(hr,2)}, {v(oo+2,2)} op_sel:[1,0,0] op_sel_hi:[1,1,1] neg_lo:[1,0,0] neg_hi:[1,0,0]")
                if sg & 1:
                    q, i = sg >> 3, (sg & 7) >> 1
                    for cp in range(2):
                        for e in range(2):
                            p(f"v_cvt_pk_bf16_f32 {v(OP+16*cp+8*e+4*q+i)}, {v(oo-4+2*cp+e)}, {v(oo+2*cp+e)}")
        def hst(cp, k):
            if o.get("x_nost"): return
            p.vmem(f"buffer_store_dwordx4 {v(OP+16*cp+4*k,4)}, {v(HO+k)}, {srd(SWS)}, s{SH0 if cp == 0 else SH1} offen offset:{512*k} sc1")
        uo = o.get("uo", 0)
        if uo:
            H1 = [(lambda cp=cp, k=k: hst(cp, k)) for k in (0, 2) for cp in range(2)]
            H2 = [(lambda cp=cp, k=k: hst(cp, k)) for k in (1, 3) for cp in range(2)]
            self.run(merge(self.cap(pass2a), self.wsp_read(2) + self.wsp_read(3)))
            self.run(merge(self.cap(lambda: pass2(0, 8)), (self.wsp_dma(6) if uo == 2 else []) + self.wsp_read(4)))
            self.run(merge(self.cap(lambda: pass2(8, 16)), H1))
            self.run(H2 + ([] if uo == 2 else self.wsp_dma(6)) + [lgw] + self.wsp_dma(7) + self.wsp_read(5))
            self.g_poll_issue()
            self.run(self.wsp_read(6) + self.wsp_read(7))
        else:
            if ue == 2:
                self.run(merge(self.cap(pass2a), self.wsp_read(3)))
                self.run(self.cap(lambda: pass2(0, 8)))
            elif ue:
                self.run(merge(self.cap(pass2a), self.wsp_read(2) + [lgw] + self.wsp_dma(7)))
                self.run(merge(self.cap(lambda: pass2(0, 8)), self.wsp_read(3)))
            else:
                self.run(merge(self.cap(pass2a), self.wsp_dma(6) + self.wsp_read(2) + [lgw]))
                self.run(merge(self.cap(lambda: pass2(0, 8)), self.wsp_dma(7) + self.wsp_read(3)))
            self.g_poll_issue()
            self.run(merge(merge(self.cap(lambda: pass2(8, 16)), [(lambda cp=cp, k=k: hst(cp, k)) for k in (0, 2) for cp in range(2)]), self.wsp_read(4) + self.wsp_read(5)))
            h2 = [(lambda cp=cp, k=k: hst(cp, k)) for k in (1, 3) for cp in range(2)]
            self.run(merge(self.wsp_read(6) + self.wsp_read(7), h2))
        p(f"s_lshl_b32 s{SLATE}, s{SE}, 7\ns_add_u32 s{SLATE}, s{SLATE}, {HF}")
        self.stamp(5)
        p(f"s_branch {self.LG}")

    CD, CR, HT, GY, WD, WT_ = 210, 214, 218, 240, 244, 228
    ZUP = [4, 6, 8, 10, 12, 14, 204, 206, 208, 248, 250, 252]
    YSL = [1, 1, 0, 1]
    YB = [96, 160, 96, 160]
    def wo_dma(self, parts):
        items = []
        for (i0, i1, base) in parts:
            for i in range(i0, i1):
                def cb(t, i=i): self.wo[i] = t
                k = i - i0
                items.append(((SREG, base + k * 1024) if k % 4 == 0 else None, (SXB, i * 8192) if k % 4 == 0 else None,
                              f"buffer_load_dwordx4 {v(self.WD+k%4)}, {srd(SWOUT)}, s{SDO} offen offset:{(k%4)*1024} lds", cb))
        return self.dseq(items)
    def c_setup(self):
        p = self.p
        self.plain_dma_addr(self.CD, 1024, 224)
        p(f"s_add_u32 s{SA}, s{SREG}, 4096")
        self.plain_read_addr(self.CR, SA, 224)
        p(f"s_add_u32 s{SA}, s{SREG}, {4096+8192}")
        self.unit_tr_addr(self.HT, SA, 224, False)
        p(f"s_lshl_b32 s{SCB}, s{SCOL}, 16\ns_lshl_b32 s{SA}, s{SWV}, 8\ns_add_u32 s{SCB}, s{SCB}, s{SA}")
        p(f"s_lshl_b32 s{SHB}, s{STB}, 17\ns_lshl_b32 s{SA}, s{SWV}, 15\ns_add_u32 s{SHB}, s{SHB}, s{SA}\ns_add_u32 s{SHB}, s{SHB}, {HB}")
        self.yt = {}
    def y_items(self, s):
        sl = self.YSL[s]; items = []
        def cb(t): self.yt[s] = t
        for hh in range(2):
            for i in range(4):
                items.append(((SREG, 4096 + sl * 20480 + hh * 4096), (SCB, (s >> 1) * 128 + hh * 32768),
                              f"buffer_load_dwordx4 {v(self.CD+i)}, {srd(SCIM if s & 1 else SCRE)}, s{SDO} offen offset:{i*1024} lds", cb))
        for hh in range(2):
            for i in range(4):
                items.append(((SREG, 4096 + sl * 20480 + 8192 + hh * 4096), (SHB, s * 8192 + hh * 4096),
                              f"buffer_load_dwordx4 {v(VL16)}, {srd(SWS)}, s{SDO} offen offset:{i*1024} sc1 lds", cb))
        return items
    def y_dma(self, s): return self.dseq(self.y_items(s))
    def y_read(self, s):
        p = self.p; sl = self.YSL[s]; ops = []
        self.yr = getattr(self, "yr", {})
        for ks in range(4):
            def f(ks=ks):
                p.wait(vm=self.yt[s], lg=p.lg - 10)
                b = self.YB[s] + 16 * ks
                for k in range(2):
                    p.lds(f"ds_read_b128 {ar(b+4*k,4)}, {v(self.CR+ks)} offset:{sl*20480+k*4096}")
                    for a in range(2):
                        self.yr[(s, ks)] = p.lds(f"ds_read_b64_tr_b16 {ar(b+8+4*k+2*a,2)}, {v(self.HT+a)} offset:{sl*20480+(ks>>1)*4096+k*2048+(ks&1)*256}")
            ops.append(f)
        return ops
    def phase_g(self):
        p = self.p; o = self.o
        p.c("==== phase B: G ====")
        p.put(self.LG)
        p.vm_done = -1; p.lg_done = -1
        ACC, FA, TR, T = 16, 112, self.GTR, 186
        Z1R, BI, PV, WD, PL, PL2, PL3, OGV = 190, 202, 203, self.WD, self.GPL, 222, 234, 241
        Q = SK + 9
        AOFF = 24576
        lgw = lambda: p.wait(lg=p.lg - 1)
        p(f"s_mov_b32 s{SCOL}, s{SJ}")
        def late_setup():
            p = self.p
            p(f"s_lshl_b32 s{SE}, s{STB}, 11\ns_add_u32 s{SE}, s{SE}, {HF}")
            p(f"s_lshl_b32 s{SA}, s{SZI}, 7\ns_add_u32 s{SA}, s{SA}, {Z1F}")
            self.poll_addr(PL3, [(SE, 16), (SA, 1)])
            p(f"s_lshr_b32 s{SA}, s{STB}, 1\ns_lshl_b32 s{SA}, s{SA}, 9\ns_add_u32 s{SA}, s{SA}, {ZF2}")
            p(f"v_bfe_u32 {v(T)}, {v(VL)}, 2, 3\nv_lshlrev_b32 {v(T)}, 13, {v(T)}\nv_and_b32 {v(T+1)}, 3, {v(VL)}\nv_lshl_add_u32 {v(T)}, {v(T+1)}, 7, {v(T)}\nv_add_u32 {v(T)}, s{SA}, {v(T)}")
            p(f"s_mov_b32 vcc_lo, 0\ns_mov_b32 vcc_hi, -1\nv_cndmask_b32 {v(PL3)}, {v(PL3)}, {v(T)}, vcc")
            self.flag_prep(220)
            p(f"v_lshrrev_b32 {v(T)}, 3, {v(VL)}\nv_lshlrev_b32 {v(T)}, 10, {v(T)}")
            p(f"v_bfe_u32 {v(T+1)}, {v(VL)}, 4, 1\nv_lshlrev_b32 {v(T+1)}, 2, {v(T+1)}\nv_and_b32 {v(T+2)}, 7, {v(VL)}\nv_xor_b32 {v(T+1)}, {v(T+1)}, {v(T+2)}")
            p(f"v_lshl_add_u32 {v(WD)}, {v(T+1)}, 4, {v(T)}")
            for i in range(1, 4): p(f"v_add_u32 {v(WD+i)}, {i*7168}, {v(WD)}")
            p(f"s_mul_i32 s{SXB}, s{SWV}, {176*1024}\ns_lshl_b32 s{SA}, s{SCOL}, 7\ns_add_u32 s{SXB}, s{SXB}, s{SA}")
            self.panel_tr_addr(self.WT_, SREG, 224, False)
        p(f"s_lshr_b32 s{Q}, s{SWV}, 1\ns_and_b32 s{SC}, s{SZI}, 63")
        p.atom(f"s_cmp_lt_u32 s{SCOL}, 7\ns_cselect_b32 s{SD}, 64, 32")
        p(f"s_lshl_b32 s{SF}, s{Q}, 5\ns_sub_u32 s{SD}, s{SD}, s{SF}")
        p(f"v_cmp_gt_u32 vcc, s{SD}, {v(VL)}\nv_and_b32 {v(T)}, 31, {v(VL)}\ns_lshl_b32 s{SA}, s{SC}, 5\nv_cndmask_b32 {v(PV)}, {v(VOOB)}, {v(VL16)}, vcc")
        p(f"v_add_lshl_u32 {v(T)}, {v(T)}, s{SA}, 1")
        p.vmem(f"global_load_ushort {v(BI)}, {v(T)}, {sp(PBSP)}")
        p(f"s_mul_i32 s{SD}, s{SZI}, 5632\ns_lshl_b32 s{SB_}, s{Q}, 10\ns_add_u32 s{SD}, s{SD}, s{SB_}\ns_add_u32 s{SD}, s{SD}, {Z1}\ns_add_u32 s{SE}, s{SD}, 4096")
        p(f"v_and_b32 {v(PL2)}, 31, {v(VL)}\nv_lshlrev_b32 {v(PL2)}, 2, {v(PL2)}")
        p.wait_lg_all()
        self.stamp(6)
        l = p.label("gp"); dn = p.label("gd")
        p(f"s_waitcnt vmcnt({1 if o.get('uo') else 9})")
        p(f"s_cmp_ge_u32 s2, 128\ns_cbranch_scc1 {l}\ns_waitcnt vmcnt({7 if o.get('zsched', 0) else 0})")
        p.put(l)
        p(f"v_cmp_ne_u32 vcc, s{ST_T}, {v(PL+1)}\ns_and_b32 vcc_hi, vcc_hi, 0xffff\ns_or_b32 s{SF}, vcc_lo, vcc_hi\ns_cbranch_scc0 {dn}")
        self.poll(PL, 48)
        p.put(dn)
        p("s_barrier")
        g0 = p.vm
        def late_flag():
            nf = p.label("nf")
            p(f"s_cmp_eq_u32 s{SLATE}, 0\ns_cbranch_scc1 {nf}")
            p(f"s_waitcnt vmcnt({p.vm - g0})")
            p(f"buffer_store_dword {v(220)}, {v(221)}, {srd(SWS)}, s{SLATE} offen sc1")
            p.put(nf)
        p.vm_done = -1
        self.stamp(7)
        def soff(B): return ((B & 3) >> 1) * 40960 + (B & 1) * 12288
        tick = {}
        def dma(B):
            items = []
            for i in range(6):
                def cb(t): tick[B] = t
                g = i // 4
                txt = f"buffer_load_dwordx4 {v(VL16 if i < 4 else TR + 1)}, {srd(SWS)}, s{SDO} offen offset:{(i%4)*1024} sc1 lds"
                items.append(((SGL, soff(B) + g * 4096) if i % 4 == 0 else None, (SGB, B * 12288 + g * 4096) if i % 4 == 0 else None, txt, cb))
            return self.dseq(items)
        z1t = {}
        def z1load():
            p.vmem(f"buffer_load_dwordx4 {v(Z1R,4)}, {v(VL16)}, {srd(SWS)}, s{SD} offen sc1")
            p.vmem(f"buffer_load_dwordx4 {v(Z1R+4,4)}, {v(VL16)}, {srd(SWS)}, s{SD} offen offset:2048 sc1")
            p(f"s_add_u32 s{SD}, s{SD}, 4096")
            z1t['t'] = p.vmem(f"buffer_load_dwordx4 {v(Z1R+8,4)}, {v(PV)}, {srd(SWS)}, s{SD} offen sc1")
        def z2touch(b0=2):
            p(f"s_bfe_u32 s{SA}, s2, 0x20006\ns_mul_i32 s{SB_}, s{SA}, 1536\ns_add_u32 s{SA}, s{SGB}, s{SB_}\ns_add_u32 s{SA}, s{SA}, {b0*12288}")
            p(f"v_mul_u32_u24 {v(230)}, 43, {v(VL)}\nv_lshrrev_b32 {v(230)}, 9, {v(230)}\nv_mul_u32_u24 {v(231)}, 12, {v(230)}\nv_sub_u32 {v(231)}, {v(VL)}, {v(231)}")
            p(f"v_mul_u32_u24 {v(230)}, 12288, {v(230)}\nv_lshl_add_u32 {v(230)}, {v(231)}, 7, {v(230)}")
            p.vmem(f"buffer_load_dword {v(231)}, {v(230)}, {srd(SWS)}, s{SA} offen sc1")
        zt2 = o.get("zt2", 0)
        if zt2 == 2: z2touch(0)
        self.run(dma(0))
        if zt2 == 3: z2touch(1)
        self.run(merge(self.cap(lambda: (late_setup(), self.c_setup())), dma(1)))
        if zt2 == 1: z2touch(2)
        if zt2 in (2, 3):
            p(f"s_add_u32 s{SA}, s{SGB}, {(5 if zt2 == 2 else 6)*12288}\ns_bfe_u32 s{SB_}, s2, 0x20006\ns_mul_i32 s{SB_}, s{SB_}, 1536\ns_add_u32 s{SA}, s{SA}, s{SB_}")
            p(f"v_cmp_gt_u32 vcc, {36 if zt2 == 2 else 24}, {v(VL)}\ns_nop 1\nv_cndmask_b32 {v(230)}, {v(VOOB)}, {v(230)}, vcc")
            p.vmem(f"buffer_load_dword {v(231)}, {v(230)}, {srd(SWS)}, s{SA} offen sc1")
        def gyl():
            p(f"s_lshl_b32 s{SA}, s{STB}, 8\ns_add_u32 s{SA}, s{SA}, {GATE}")
            p.vmem(f"buffer_load_dword {v(self.GY)}, {v(PL2)}, {srd(SWS)}, s{SA} offen sc1")
            p.vmem(f"buffer_load_dword {v(self.GY+2)}, {v(PL2)}, {srd(SWS)}, s{SA} offen offset:128 sc1")
            p(f"s_lshl_b32 s{SA}, s{SC}, 7\ns_add_u32 s{SA}, s{SA}, {GATE}")
            p.vmem(f"buffer_load_dword {v(OGV)}, {v(PL2)}, {srd(SWS)}, s{SA} offen sc1")
        def z1gelu():
            c1 = -2 * LOG2E * 0.7978845608028654
            self.VC0 = 188
            self.p(f"s_mov_b32 s{SK}, {f2u(c1*0.044715)}\nv_mov_b32 {v(188)}, {f2u(c1)}")
            for i in range(12): self.unpack(self.ZUP[i], Z1R + i)
            self.gelu_many(self.ZUP, [24, 26, 28, 30])
        lt = {}
        def issue(r):
            lt[r] = p.vmem(f"buffer_load_dword {v(r+1)}, {v(r)}, {srd(SWS)}, 0 offen sc1")
        def check(r, mask):
            l = p.label("lp"); d = p.label("ld")
            p.wait(vm=lt[r])
            p(f"s_mov_b32 s{SSPIN}, 0")
            p.put(l)
            p(f"v_cmp_ne_u32 vcc, s{ST_T}, {v(r+1)}\ns_and_b32 s{SF}, vcc_lo, {mask}\ns_or_b32 s{SF}, s{SF}, vcc_hi\ns_cbranch_scc0 {d}")
            p(f"buffer_load_dword {v(r+1)}, {v(r)}, {srd(SWS)}, 0 offen sc1\ns_waitcnt vmcnt(0)")
            p(f"s_add_u32 s{SSPIN}, s{SSPIN}, 1\ns_cmp_lt_u32 s{SSPIN}, {SPIN}\ns_cbranch_scc1 {l}")
            p.put(d)
        rt = {}
        def fset(hb): return FA + 24 * (2 if hb == 15 else hb & 1)
        FO = [(0, 0), (0, 1), (0, 2), (1, 0), (1, 1), (1, 2)]; FP = {(0, 0): 0, (0, 1): 1, (1, 0): 2, (1, 1): 3, (0, 2): 4, (1, 2): 5}
        def reads(hb):
            B, e = hb >> 1, hb & 1; ops = []
            for (ks, mt) in FO:
                def ra(ks=ks, mt=mt):
                    rt[(hb, ks, mt)] = p.lds(f"ds_read_b128 {v(fset(hb)+12*ks+4*mt,4)}, {v(TR)} offset:{soff(B)+e*6144+FP[(ks,mt)]*1024}")
                ops.append(ra)
            return ops
        def mf(hb, ks, mt, nt):
            def m():
                p.wait(lg=rt[(hb, ks, 2 if hb < 14 else mt)])
                d = v(ACC + 16 * (2 * mt + nt), 16); kap = 2 * hb + ks
                p(f"{MF} {d}, {v(fset(hb)+12*ks+4*mt,4)}, {ar((kap*2+nt)*4,4)}, {'0' if kap == 0 else d}")
            return m
        self.wo = wo = {}
        def WOA(kap): return (kap - 8) * 8 if kap >= 8 else 24 + kap * 8
        def wo_rd(kap):
            def f():
                p.wait(vm=wo[2 * kap + 1], lg=p.lg - 12)
                for mt in range(2):
                    for a in range(2):
                        base = AOFF + (kap if kap < 8 else kap - 8) * 2048
                        p.lds(f"ds_read_b64_tr_b16 {ar(WOA(kap)+4*mt+2*a,2)}, {v(self.WT_+mt)} offset:{base+a*512}")
            return f
        p.wait(vm=tick[0]); p("s_barrier")
        self.run(reads(0))
        wa = self.wo_dma([(16, 22, AOFF)])
        def wb(i0, i1): return self.wo_dma([(i0, i1, AOFF + i0 * 1024)])
        y0 = self.y_dma(0)
        y1 = self.y_dma(1)
        yc0 = self.dseq(self.y_items(0)[:8]); yc0b = self.dseq(self.y_items(0)[:4]);
        def ypart(s_, a, b): return self.dseq(self.y_items(s_)[a:b])
        extra = {0: dma(2), 1: dma(3), 2: wa, 4: [wo_rd(8), wo_rd(9), wo_rd(10), lgw] + wb(0, 3), 5: wb(3, 4), 6: wb(4, 9) + [gyl], 7: wb(9, 10), 8: wb(10, 16) + [lambda: issue(PL3)],
                 10: [wo_rd(k) for k in range(8)] + [lgw] + ypart(0, 0, 2), 11: ypart(0, 2, 8) + [z1load], 12: ypart(0, 8, 13), 13: ypart(0, 13, 16)}
        gl = o.get("gl", 0)
        if gl:
            self.YSL = [0, 1, 0, 1]
            y0, y1 = self.y_dma(0), self.y_dma(1)
            extra = {0: dma(2), 1: dma(3), 2: wa[:4], 3: wa[4:], 5: [wo_rd(8), wo_rd(9), wo_rd(10)], 6: [lgw] + wb(0, 3) + [gyl], 7: wb(3, 4), 8: wb(4, 8) + [lambda: issue(PL3)],
                     9: wb(8, 11), 10: wb(11, 14), 11: wb(14, 16) + [z1load]}
            extra[3] = extra[3]
        gel = {}
        for hb in range(14):
            if o.get("gstamps") and hb % 2 == 0: self.stamp(21 + hb // 2)
            B = hb >> 1
            if hb & 1:
                p.wait(vm=tick[B + 1], lg=p.lg - 1); p("s_barrier")
            if hb == 11:
                check(PL3, 0x1ffff)
                if o.get("ht"):
                    p(f"s_lshl_b32 s{SA}, s{STB}, 17\ns_lshl_b32 s{SB_}, s{SCOL}, 14\ns_add_u32 s{SA}, s{SA}, s{SB_}\ns_lshl_b32 s{SB_}, s{SWV}, 12\ns_add_u32 s{SA}, s{SA}, s{SB_}\ns_add_u32 s{SA}, s{SA}, {HB}")
                    p(f"v_and_b32 {v(230)}, 31, {v(VL)}\nv_lshlrev_b32 {v(230)}, 7, {v(230)}")
                    p.vmem(f"buffer_load_dword {v(231)}, {v(230)}, {srd(SWS)}, s{SA} offen sc1")
            mm = [mf(hb, ks, mt, nt) for ks in range(2) for mt in range(3) for nt in range(2)]
            rd = reads(hb + 1) + (reads(15) if hb == 13 else [])
            seq = merge(mm, rd, 0, 8 if hb == 13 else 6)
            f = list(extra.get(hb, []))
            if hb & 1 and B + 4 < 8: f = f + dma(B + 4)
            if f: seq = merge(seq, f, len(seq) // 4)
            if hb in gel: seq = merge(seq, gel[hb])
            if hb == o.get("hflag", 3): seq = seq + [late_flag]
            self.run(seq)
        VW, VRD = T, T + 1
        p(f"s_xor_b32 s{SA}, s{SWV}, 2\ns_mul_i32 s{SA}, s{SA}, 40960\nv_add_u32 {v(VW)}, s{SREG}, {v(VL16)}\nv_add_u32 {v(VRD)}, s{SA}, {v(VL16)}")
        def roff(i): return i * 1024
        def rw(ti):
            return [(lambda hq=hq: p.lds(f"ds_write_b128 {v(VW)}, {v(ACC+16*ti+8+4*hq,4)} offset:{roff(2*ti+hq)}")) for hq in range(2)]
        tiles = [1, 3, 5, 0, 2, 4]
        for n_, ti in enumerate(tiles):
            mm = [mf(hb, ks, ti >> 1, ti & 1) for hb in (14, 15) for ks in range(2)]
            f = (rw(tiles[n_ - 2]) if n_ >= 2 else [])
            self.run(merge(mm, f))
        self.stamp(8)
        yl = o.get('y0late', 0) or gl
        self.run(merge([] if yl else self.y_read(0), rw(tiles[4]) + rw(tiles[5])) if not yl else rw(tiles[4]) + rw(tiles[5]))
        p.wait_lg_all(); p("s_barrier")
        RB = 112
        tk = {}
        for n_, ti in enumerate(tiles):
            for hq in range(2): tk[(ti, hq)] = p.lds(f"ds_read_b128 {v(RB+8*ti+4*hq,4)}, {v(VRD)} offset:{roff(2*ti+hq)}")
        if not yl: self.run(y1[:3])
        def radd(ti):
            for hq in range(2):
                p.wait(lg=tk[(ti, hq)])
                for hh in range(2): p(f"v_pk_add_f32 {v(ACC+16*ti+4*hq+2*hh,2)}, {v(ACC+16*ti+4*hq+2*hh,2)}, {v(RB+8*ti+4*hq+2*hh,2)}")
        XS = [40, 44, 56, 60]; XR = [72, 76, 88, 92]
        p(f"s_lshl_b32 s{SA}, s2, 2\ns_add_u32 s{SA}, s{SA}, s{SWV}\ns_lshl_b32 s{SA}, s{SA}, 12\ns_add_u32 s{SA}, s{SA}, {XB}\ns_xor_b32 s{SE}, s{SA}, {(64 if o.get('xl') else 1) * 16384}")
        for g in range(4): p(f"v_mov_b32 {v(XS[g]+3)}, s{ST_T}")
        for ti in (1, 3, 5): radd(ti)
        for i in range(12):
            src = ACC + 16 * (2 * (i >> 2) + 1) + 2 * (i & 3)
            p(f"v_cvt_pk_bf16_f32 {v(XS[i//3]+i%3)}, {v(src)}, {v(src+1)}")
            if i % 3 == 2: p.vmem(f"buffer_store_dwordx4 {v(XS[i//3],4)}, {v(VL16)}, {srd(SWS)}, s{SA} offen offset:{(i//3)*1024} {o.get('xm', 'sc1')}")
        if yl and not gl: self.run(self.y_read(0))
        for ti in (0, 2, 4): radd(ti)
        if yl and not gl: self.run([lgw] + y1[:3])
        p("s_barrier")
        self.stamp(9)

        p.c("==== phase C ====")
        YA, PA = 112, 16
        XE, GE, DE, OV, P10, PLP, TC = 186, 194, 198, 184, 185, 222, 64
        RW, RX, WA, RA = 176, 177, 180, 230
        SROW, SXO, SPB_ = SXL, SWL, SW1B
        ep = {}
        def setup():
            p = self.p; T = TC
            p(f"v_lshrrev_b32 {v(T)}, 4, {v(VL)}\nv_and_b32 {v(T+1)}, 15, {v(VL)}")
            p(f"v_lshlrev_b32 {v(T+2)}, 10, {v(T)}\nv_lshl_add_u32 {v(T+2)}, {v(T+1)}, 3, {v(T+2)}")
            p(f"v_lshlrev_b32 {v(T+3)}, 2, {v(T)}\nv_lshlrev_b32 {v(T+4)}, 3, {v(T+1)}")
            p(f"v_lshlrev_b32 {v(OV)}, 1, {v(T+2)}")
            p(f"s_lshl_b32 s{SROW}, s{STB}, 6\ns_lshl_b32 s{SA}, s{SWV}, 4\ns_add_u32 s{SROW}, s{SROW}, s{SA}")
            p(f"s_lshl_b32 s{SXO}, s{SROW}, 10\ns_lshl_b32 s{SA}, s{SCOL}, 7\ns_add_u32 s{SXO}, s{SXO}, s{SA}\nv_add_u32 {v(T+4)}, s{SA}, {v(T+4)}")
            p(f"s_lshl_b32 s{SA}, s{STB}, 12\ns_lshl_b32 s{SB_}, s{SWV}, 10\ns_add_u32 s{SB_}, s{SB_}, s{SA}\ns_add_u32 s{SB_}, s{SB_}, {PF}")
            self.poll_addr(PLP, [(SB_, 8)])
            p.atom(f"s_cmp_eq_u32 s{SWV}, 3\ns_cselect_b64 vcc, -1, 0")
            p(f"v_cndmask_b32 {v(P10)}, {v(VL16)}, {v(VOOB)}, vcc")
            p(f"s_mul_i32 s{SPB_}, s{STB}, {2*45056}\ns_mul_i32 s{SA}, s{SWV}, {22*512}\ns_add_u32 s{SPB_}, s{SPB_}, s{SA}\ns_add_u32 s{SPB_}, s{SPB_}, {PB}")
            p(f"s_add_u32 s{SA}, s{SREG}, 4096\nv_and_b32 {v(RW)}, 31, {v(VL)}\nv_lshlrev_b32 {v(RW)}, 8, {v(RW)}\nv_add_u32 {v(RW)}, s{SA}, {v(RW)}")
            p(f"v_lshrrev_b32 {v(RX)}, 5, {v(VL)}\nv_and_b32 {v(RX+1)}, 7, {v(VL)}\nv_xor_b32 {v(RX)}, {v(RX)}, {v(RX+1)}\nv_lshlrev_b32 {v(RX)}, 4, {v(RX)}")
            for i in range(4): p(f"v_xor_b32 {v(WA+i)}, {32*i}, {v(RX)}\nv_add_u32 {v(WA+i)}, {v(WA+i)}, {v(RW)}")
            p(f"v_xor_b32 {v(T+1)}, {v(T+1)}, {v(T)}\nv_lshlrev_b32 {v(T+1)}, 4, {v(T+1)}")
            p(f"v_lshlrev_b32 {v(T)}, 8, {v(T)}\ns_lshl_b32 s{SA}, s{SWV}, 12\ns_add_u32 s{SA}, s{SA}, 4096\nv_add_u32 {v(T)}, s{SA}, {v(T)}")
            p(f"v_add_u32 {v(RA)}, {v(T)}, {v(T+1)}\nv_xor_b32 {v(T+1)}, 64, {v(T+1)}\nv_add_u32 {v(RA+1)}, {v(T)}, {v(T+1)}")
            p(f"v_add_u32 {v(RA+2)}, 81920, {v(RA)}\nv_add_u32 {v(RA+3)}, 81920, {v(RA+1)}")
            p(f"s_lshr_b32 s{SLATE}, s{SC}, 1\ns_lshl_b32 s{SLATE}, s{SLATE}, 3\ns_add_u32 s{SLATE}, s{SLATE}, s{SCOL}\ns_lshl_b32 s{SLATE}, s{SLATE}, 1\ns_add_u32 s{SLATE}, s{SLATE}, s{SKH}")
            p(f"s_lshl_b32 s{SLATE}, s{SLATE}, 1\ns_add_u32 s{SLATE}, s{SLATE}, s{Q}\ns_lshl_b32 s{SLATE}, s{SLATE}, 7\ns_add_u32 s{SLATE}, s{SLATE}, {PF}")
            p(f"s_mul_i32 s{SD}, s{SC}, 45056\ns_mul_i32 s{SB_}, s{SCOL}, 5632\ns_add_u32 s{SD}, s{SD}, s{SB_}\ns_lshl_b32 s{SB_}, s{Q}, 10\ns_add_u32 s{SD}, s{SD}, s{SB_}\ns_add_u32 s{SD}, s{SD}, {PB}")
            p(f"v_lshlrev_b32 {v(BI)}, 16, {v(BI)}\nv_sub_f32 {v(178)}, 1.0, {v(OGV)}\nv_mul_f32 {v(179)}, {v(178)}, {v(BI)}")
        def eloads():
            T = TC
            for gi in range(4):
                p(f"s_add_u32 s{SA}, s{SXO}, {gi*4096}")
                p.vmem(f"buffer_load_dwordx2 {v(XE+2*gi,2)}, {v(T+2)}, {srd(SX)}, s{SA} offen")
            p(f"s_lshl_b32 s{SA}, s{SROW}, 2\ns_add_u32 s{SA}, s{SA}, {GATE}")
            for gi in range(4): p.vmem(f"buffer_load_dword {v(GE+gi)}, {v(T+3)}, {srd(SWS)}, s{SA} offen offset:{gi*16} sc1")
            ep['t'] = p.vmem(f"global_load_dwordx2 {v(DE,2)}, {v(T+4)}, {sp(PDSK)}")
        T4 = [(0, 0), (1, 0), (1, 1), (0, 1)]
        def ym(s):
            ops = []
            for ks in range(4):
                for (mt, nt) in T4:
                    def m(ks=ks, mt=mt, nt=nt):
                        p.wait(lg=self.yr[(s, ks)])
                        d = v(YA + 16 * (2 * mt + nt), 16); b = self.YB[s] + 16 * ks
                        p(f"{MF} {d}, {ar(b+4*mt,4)}, {ar(b+8+4*nt,4)}, {'0' if (s, ks) == (0, 0) else d}")
                    ops.append(m)
            return ops
        pt = {}
        def ploads():
            ops = []
            for nt in range(2):
                for kap in range(11):
                    def f(kap=kap, nt=nt):
                        if kap % 4 == 0: p(f"s_add_u32 s{SB_}, s{SPB_}, {nt*45056+kap*1024}")
                        pt[(kap, nt)] = p.vmem(f"buffer_load_dwordx4 {v(PA+(kap*2+nt)*4,4)}, {v(P10 if kap == 10 else VL16)}, {srd(SWS)}, s{SB_} offen offset:{(kap%4)*1024} sc1")
                    ops.append(f)
            return ops
        xt = {}
        def xload():
            for g in range(4): xt['t'] = p.vmem(f"buffer_load_dwordx4 {v(XR[g],4)}, {v(VL16)}, {srd(SWS)}, s{SE} offen offset:{g*1024} sc1")
        def xcheck():
            l = p.label("xp"); d = p.label("xd")
            p.wait(vm=xt['t'])
            p(f"s_mov_b32 s{SSPIN}, 0")
            p.put(l)
            p(f"v_xor_b32 {v(32)}, s{ST_T}, {v(XR[0]+3)}\nv_xor_b32 {v(33)}, s{ST_T}, {v(XR[1]+3)}\nv_xor_b32 {v(34)}, s{ST_T}, {v(XR[2]+3)}\nv_xor_b32 {v(35)}, s{ST_T}, {v(XR[3]+3)}")
            p(f"v_or3_b32 {v(32)}, {v(32)}, {v(33)}, {v(34)}\nv_or_b32 {v(32)}, {v(32)}, {v(35)}")
            p(f"v_cmp_ne_u32 vcc, 0, {v(32)}\ns_cmp_eq_u64 vcc, 0\ns_cbranch_scc1 {d}")
            for g in range(4): p(f"buffer_load_dwordx4 {v(XR[g],4)}, {v(VL16)}, {srd(SWS)}, s{SE} offen offset:{g*1024} sc1")
            p("s_waitcnt vmcnt(0)")
            p(f"s_add_u32 s{SSPIN}, s{SSPIN}, 1\ns_cmp_lt_u32 s{SSPIN}, {SPIN}\ns_cbranch_scc1 {l}")
            p.put(d)
        PK = [24, 28, 104]
        def pepi(mt):
            p = self.p
            for i in range(4 * mt, 4 * mt + 4): self.unpack(32 + 2 * (i & 3), XR[i // 3] + i % 3)
            for i in range(4):
                a = ACC + 32 * mt + 2 * i
                p(f"v_pk_add_f32 {v(a,2)}, {v(a,2)}, {v(32+2*i,2)}")
            for i in range(4):
                a = ACC + 32 * mt + 2 * i
                p(f"v_pk_fma_f32 {v(a,2)}, {v(a,2)}, {v(178,2)}, {v(178,2)} op_sel:[0,0,1] op_sel_hi:[1,0,1]")
            for i in range(4):
                a = ACC + 32 * mt + 2 * i
                p(f"v_pk_mul_f32 {v(a,2)}, {v(a,2)}, {v(self.ZUP[4*mt+i],2)}")
            for i in range(4):
                a = ACC + 32 * mt + 2 * i
                p(f"v_cvt_pk_bf16_f32 {v(PK[mt]+i)}, {v(a)}, {v(a+1)}")
        def pflag():
            p.wait(vm=ep['p']); self.flag(SLATE, 220)
        su = self.cap(setup)
        y2, y3, pl_ = self.y_dma(2), self.y_dma(3), ploads()
        sent = 1
        zg = [lambda: p.wait(vm=z1t['t'])] + self.cap(z1gelu)
        c1_ = o.get("c1", 9); c2_ = o.get("c2", 16)
        def pe():
            pepi(0); p.vmem(f"buffer_store_dwordx4 {v(PK[0],4)}, {v(VL16)}, {srd(SWS)}, s{SD} offen {o.get('pm', 'sc1')}")
            pepi(1); p.vmem(f"buffer_store_dwordx4 {v(PK[1],4)}, {v(VL16)}, {srd(SWS)}, s{SD} offen offset:2048 {o.get('pm', 'sc1')}")
            p(f"s_add_u32 s{SD}, s{SD}, 4096")
            pepi(2); ep['p'] = p.vmem(f"buffer_store_dwordx4 {v(PK[2],4)}, {v(PV)}, {srd(SWS)}, s{SD} offen {o.get('pm', 'sc1')}")
        if gl:
            g1, g2 = o.get("g1", 6), o.get("g2", 17)
            w_ = merge(zg + su, [wo_rd(k) for k in range(8)])
            h_ = len(w_) * o.get("xat", 50) // 100
            self.run(merge(w_[:h_], y0[:g1]) + [xload] + merge(w_[h_:], y0[g1:g2]))
            self.run(y0[g2:] + [lgw] + y1[:o.get("g3", 1)])
            xcheck()
            self.stamp(10)
            pe()
            self.run(y1[o.get("g3", 1):12])
            self.run(merge(self.y_read(0), y1[12:]))
            self.run(merge(ym(0), [lgw] + y2[:9]))
            self.run(merge(self.y_read(1), y2[9:13]))
            y3a = 4
            self.run(merge(ym(1), y2[13:] + [lgw] + y3[:y3a]))
        else:
            nx = y1[3:] + y2
            self.run(merge(zg, nx[:c1_]))
            xload()
            self.run(merge(merge(ym(0), su), nx[c1_:c2_]))
            if o.get('ee'): eloads()
            xcheck()
            self.stamp(10)
            pepi(0); p.vmem(f"buffer_store_dwordx4 {v(PK[0],4)}, {v(VL16)}, {srd(SWS)}, s{SD} offen {o.get('pm', 'sc1')}")
            pepi(1); p.vmem(f"buffer_store_dwordx4 {v(PK[1],4)}, {v(VL16)}, {srd(SWS)}, s{SD} offen offset:2048 {o.get('pm', 'sc1')}")
            p(f"s_add_u32 s{SD}, s{SD}, 4096")
            pepi(2); ep['p'] = p.vmem(f"buffer_store_dwordx4 {v(PK[2],4)}, {v(PV)}, {srd(SWS)}, s{SD} offen {o.get('pm', 'sc1')}")
            c3_ = max(c2_, 18)
            self.run(nx[c2_:c3_])
            self.run(merge(self.y_read(1), nx[c3_:c3_ + 4]))
            y3a = o.get('y3a', 3)
            self.run(merge(ym(1), nx[c3_ + 4:] + [lgw] + y3[:y3a]))
        self.stamp(11)
        self.run(y3[y3a:9])
        def ptouch():
            p(f"s_mul_i32 s{SA}, s{STB}, {2*45056}\ns_lshl_b32 s{SB_}, s{SCOL}, 2\ns_add_u32 s{SB_}, s{SB_}, s{SWV}\ns_mul_i32 s{SB_}, s{SB_}, 2816\ns_add_u32 s{SA}, s{SA}, s{SB_}\ns_add_u32 s{SA}, s{SA}, {PB}")
            p(f"v_min_u32 {v(222)}, 21, {v(VL)}\nv_lshlrev_b32 {v(222)}, 7, {v(222)}")
            p.vmem(f"buffer_load_dword {v(223)}, {v(222)}, {srd(SWS)}, s{SA} offen sc1")
        self.run(merge(self.y_read(2), y3[9:13]) + ([ptouch] if o.get("pt") else []))
        self.run(merge(ym(2), y3[13:] + ([] if o.get('ee') else [eloads]) + pl_[:o.get('p2', 0)]))
        pl_ = pl_[o.get('p2', 0):]
        self.stamp(12)
        pa_ = o.get("pa", 4)
        self.run(merge(self.y_read(3), pl_[:pa_]))
        DU = 104; XP = [4, 8, 12, 108]
        def xpart():
            p = self.p
            self.unpack(DU, DE); self.unpack(DU + 2, DE + 1)
            for gi in range(4):
                x = XP[gi]
                self.unpack(x, XE + 2 * gi); self.unpack(x + 2, XE + 2 * gi + 1)
                for k in range(4): p(f"v_mul_f32 {v(x+k)}, {v(x+k)}, {v(DU+k)}")
                for k in range(4): p(f"v_mul_f32 {v(x+k)}, {v(x+k)}, {v(GE+gi)}")
        self.run(merge(merge(ym(3), pl_[pa_:pa_ + 8]), ([lambda: p.wait(vm=ep['t'])] + self.cap(xpart)) if o.get("gc") else []))
        prest = pl_[pa_ + 8:]
        self.stamp(13)
        def pcheck(nt):
            l = p.label("sp"); d = p.label("sd")
            p.wait(vm=pt[(10, nt)])
            p(f"s_mov_b32 s{SSPIN}, 0")
            p.put(l)
            r = [PA + (kap * 2 + nt) * 4 for kap in range(11)]
            p(f"v_max3_u32 {v(178)}, {v(r[0])}, {v(r[1])}, {v(r[2])}")
            for k in range(3, 11, 2): p(f"v_max3_u32 {v(178)}, {v(178)}, {v(r[k])}, {v(r[k+1])}")
            p(f"v_cmp_eq_u32 vcc, -1, {v(178)}\ns_cmp_eq_u64 vcc, 0\ns_cbranch_scc1 {d}")
            for kap in range(11):
                if kap % 4 == 0: p(f"s_add_u32 s{SF}, s{SPB_}, {nt*45056+kap*1024}")
                p(f"buffer_load_dwordx4 {v(PA+(kap*2+nt)*4,4)}, {v(P10 if kap == 10 else VL16)}, {srd(SWS)}, s{SF} offen offset:{(kap%4)*1024} sc1")
            p("s_waitcnt vmcnt(0)")
            p(f"s_add_u32 s{SSPIN}, s{SSPIN}, 1\ns_cmp_lt_u32 s{SSPIN}, {SPIN}\ns_cbranch_scc1 {l}")
            p.put(d)
        def gcheck(nt, k0, k1):
            def f():
                l = p.label("sp"); d = p.label("sd")
                p.wait(vm=pt[(k1 - 1, nt)])
                p(f"s_mov_b32 s{SSPIN}, 0")
                p.put(l)
                r = [PA + (kap * 2 + nt) * 4 for kap in range(k0, k1)]
                p(f"v_max3_u32 {v(178)}, {v(r[0])}, {v(r[1])}, {v(r[2])}")
                if len(r) == 4: p(f"v_max_u32 {v(178)}, {v(178)}, {v(r[3])}")
                p(f"v_cmp_eq_u32 vcc, -1, {v(178)}\ns_cmp_eq_u64 vcc, 0\ns_cbranch_scc1 {d}")
                for kap in range(k0, k1):
                    p(f"s_add_u32 s{SF}, s{SPB_}, {nt*45056+kap*1024}")
                    p(f"buffer_load_dwordx4 {v(PA+(kap*2+nt)*4,4)}, {v(P10 if kap == 10 else VL16)}, {srd(SWS)}, s{SF} offen sc1")
                p("s_waitcnt vmcnt(0)")
                p(f"s_add_u32 s{SSPIN}, s{SSPIN}, 1\ns_cmp_lt_u32 s{SSPIN}, {SPIN}\ns_cbranch_scc1 {l}")
                p.put(d)
            return f
        def redw(tiles):
            return [(lambda mt=mt, nt=nt, i=i: p.lds(f"ds_write_b128 {v(WA+i)}, {v(YA+16*(2*mt+nt)+4*i,4)} offset:{nt*8192+mt*128}"))
                    for (mt, nt) in tiles for i in range(4)]
        def bm(kap, mt, nt):
            def m():
                p.wait(vm=pt[(kap, nt)])
                d = v(YA + 16 * (2 * mt + nt), 16)
                p(f"{MF} {d}, {ar(WOA(kap)+4*mt,4)}, {v(PA+(kap*2+nt)*4,4)}, {d}")
            return m
        def yscale(mt, nt):
            return [(lambda i=i: p(f"v_pk_mul_f32 {v(YA+16*(2*mt+nt)+2*i,2)}, {v(YA+16*(2*mt+nt)+2*i,2)}, {v(self.GY+2*nt,2)} op_sel_hi:[1,0]")) for i in range(8)]
        DU = 104; XP = [4, 8, 12, 108]
        def xpart():
            p = self.p
            self.unpack(DU, DE); self.unpack(DU + 2, DE + 1)
            for gi in range(4):
                x = XP[gi]
                self.unpack(x, XE + 2 * gi); self.unpack(x + 2, XE + 2 * gi + 1)
                for k in range(4): p(f"v_mul_f32 {v(x+k)}, {v(x+k)}, {v(DU+k)}")
                for k in range(4): p(f"v_mul_f32 {v(x+k)}, {v(x+k)}, {v(GE+gi)}")
        def yscale1(mt, nt):
            return [(lambda i=i: p(f"v_mul_f32 {v(YA+16*(2*mt+nt)+i)}, {v(YA+16*(2*mt+nt)+i)}, {v(self.GY+2*nt)}")) for i in range(16)]
        if o.get("gc"):
            GR_ = [(0, 4), (4, 8), (8, 11)]
            def bgrp(nt):
                ops = []
                for (k0, k1) in GR_:
                    ops.append(gcheck(nt, k0, k1))
                    ops += [bm(kap, mt, nt) for kap in range(k0, k1) for mt in range(2)]
                return ops
            self.run(merge(yscale(0, 0) + yscale(1, 0) + yscale(1, 1) + yscale(0, 1), prest[:3]))
            self.run(merge(bgrp(0), prest[3:], 0, 14))
            b1 = bgrp(1)
            b1 = b1[:19] + [bm(kap, 0, 1) for kap in range(8, 11)] + [bm(kap, 1, 1) for kap in range(8, 11)]
            self.run(merge(b1, redw([(0, 0), (1, 0)]), 3, 19))
            self.run(redw([(0, 1), (1, 1)]))
        else:
            self.run(merge(yscale(0, 0) + yscale(1, 0), prest[:2]))
            pcheck(0)
            mm0 = [bm(kap, mt, 0) for kap in range(11) for mt in range(2)]
            self.run(merge(merge(mm0, prest[2:], 0, 12), yscale1(1, 1) + yscale1(0, 1) + [lambda: p.wait(vm=ep['t'])] + self.cap(xpart)))
            if sent: pcheck(1)
            mm1 = [bm(kap, 0, 1) for kap in range(11)]
            mm2 = [bm(kap, 1, 1) for kap in range(11)]
            self.run(merge(mm1, redw([(0, 0), (1, 0)]), 2))
            self.run(merge(mm2, redw([(0, 1)]), 4))
            self.run(redw([(1, 1)]))
        p.wait_lg_all(); p("s_barrier")
        self.stamp(14)
        tk = {}
        def R(gi, s): return 16 + 16 * gi + 4 * s
        for gi in range(4):
            p.wait(lg=p.lg - 12)
            for s_ in range(4):
                tk[gi] = p.lds(f"ds_read_b128 {v(R(gi,s_),4)}, {v(RA+2*(s_>>1)+(gi&1))} offset:{(s_&1)*40960+gi*1024}")
        p(f"s_lshl_b32 s{SXO}, s{SXO}, 1")
        for gi in range(4):
            y = R(gi, 0)
            p.wait(lg=tk[gi])
            for hh in (0, 2):
                p(f"v_pk_add_f32 {v(y+hh,2)}, {v(y+hh,2)}, {v(y+4+hh,2)}\nv_pk_add_f32 {v(y+8+hh,2)}, {v(y+8+hh,2)}, {v(y+12+hh,2)}")
            for hh in (0, 2): p(f"v_pk_add_f32 {v(y+hh,2)}, {v(y+hh,2)}, {v(XP[gi]+hh,2)}")
            for hh in (0, 2): p(f"v_pk_add_f32 {v(y+hh,2)}, {v(y+hh,2)}, {v(y+8+hh,2)}")
            p(f"s_add_u32 s{SA}, s{SXO}, {gi*8192}")
            p.vmem(f"buffer_store_dwordx4 {v(y,4)}, {v(OV)}, {srd(SOUT)}, s{SA} offen{' ' + o['outmod'] if 'outmod' in o else ''}")
        ne = p.label("ne")
        p(f"s_lshl_b32 s{SA}, s{STB}, 3\ns_add_u32 s{SA}, s{SA}, s{SCOL}\ns_lshl_b32 s{SA}, s{SA}, 2\ns_add_u32 s{SA}, s{SA}, s{SWV}")
        p(f"s_cmp_eq_u32 s{SA}, {255*4}\ns_cbranch_scc0 {ne}")
        p(f"s_mov_b32 s{SA}, {EPOCH}")
        self.flag(SA, 220)
        p.put(ne)
        if o.get("stamps"):
            self.stamp(15)
            p(f"s_lshl_b32 s{SA}, s2, 2\ns_add_u32 s{SA}, s{SA}, s{SWV}\ns_lshl_b32 s{SA}, s{SA}, 8\ns_add_u32 s{SA}, s{SA}, {DBG}")
            p(f"v_lshlrev_b32 v254, 2, {v(VL)}")
            p.vmem(f"buffer_store_dword v255, v254, {srd(SWS)}, s{SA} offen")
            if o.get("dbgmax"):
                ty = o["dbgmax"]
                nd = p.label("nd")
                if ty > 1: p(f"s_cmp_{'ge' if ty == 2 else 'lt'}_u32 s2, 128\ns_cbranch_scc1 {nd}")
                p(f"s_load_dwordx2 s[{SX}:{SX+1}], s[0:1], 128\ns_waitcnt lgkmcnt(0)\ns_mov_b32 s{SX+2}, 64")
                p(f"v_readlane_b32 s{SA}, v255, 17\nv_readlane_b32 s{SB_}, v255, 20\ns_not_b32 s{SA}, s{SA}\ns_nop 3\nv_writelane_b32 v255, s{SA}, 0\nv_writelane_b32 v255, s{SB_}, 6")
                p.vmem(f"buffer_atomic_umax v255, v254, {srd(SX)}, 0 offen")
                p.put(nd)
        if "spin_from" in o:
            self.stamp(15)
            sl = p.label("spin")
            p(f"v_readlane_b32 s{SA}, v254, 0")
            p.put(sl)
            p(f"s_memrealtime s[{SSTMP}:{SSTMP+1}]\ns_waitcnt lgkmcnt(0)\ns_sub_u32 s{SB_}, s{SSTMP}, s{SA}\ns_cmp_lt_u32 s{SB_}, 3000\ns_cbranch_scc1 {sl}")
        p.put(self.END)
        p("s_endpgm")

    def build(self):
        self.prologue()
        self.p.vm_done = -1; self.p.lg_done = -1
        self.phase_u()
        self.p.vm_done = -1; self.p.lg_done = -1
        self.p("s_nop 15")
        self.phase_z()
        self.phase_g()
        lines, added = hazard_pass([x for l in self.p.L for x in l.split(chr(10))])
        hdr = open("gated_mix__ssm_conv_s5__mixer_gmlp__prompt.s.ref").read().split("; Override")[0]
        s = hdr + "; @launch grid=(256,1,1) block=(256,1,1) lds=163840\n"
        s += '.amdgcn_target "amdgcn-amd-amdhsa--gfx950"\n.text\n'
        s += f".globl {NAME}\n.p2align 8\n.type {NAME},@function\n{NAME}:\n"
        s += "\n".join((l if l.endswith(":") else "    " + l) for l in lines) + "\n"
        s += f""".section .rodata,"a"
.p2align 6
.amdhsa_kernel {NAME}
  .amdhsa_next_free_vgpr 512
  .amdhsa_next_free_sgpr 102
  .amdhsa_accum_offset 256
  .amdhsa_group_segment_fixed_size 0
  .amdhsa_kernarg_size 144
  .amdhsa_user_sgpr_count 2
  .amdhsa_user_sgpr_kernarg_segment_ptr 1
  .amdhsa_system_sgpr_workgroup_id_x 1
  .amdhsa_float_denorm_mode_32 3
.end_amdhsa_kernel
"""
        return s, added

if __name__ == "__main__":
    out = sys.argv[1]
    opt = dict(zt2=1, ht=1, ue=1, ee=1, p2=5, outmod="sc1", npro=3, npro_u=3, c1=16, c2=26, y3a=9, touch=2, zs0=19, zs1=20, zs2=8, zmode=2, pf=5, tlb=2, map=1)
    for a in sys.argv[2:]:
        k, _, val = a.partition("=")
        try: opt[k] = int(val) if val else 1
        except ValueError: opt[k] = val
    s, added = G(opt).build()
    open(out, "w").write(s)
    print("wrote", out, "nops added", added, "lines", s.count("\n"))
```

```python
import sys, math, struct
from core import *

NAME = "gated_mix__ssm_conv_s5__mixer_gmlp__prompt_kernel"
EPOCH = 0; GATE = 0x4000
ST = 0x10000; EG = 0x50000; DBG = 0x80000
Z2N = 0x100000; Z1 = 0x400000; PB = 0x700000; HB = 0xA00000
ZF = 0xE00000; HF = 0xE10000; PF = 0xE20000; Z1F = 0xE40000; ZF2 = 0xE50000; XB = 0x1000000; WS_END = 0x1400000
OOB = 0x80000000
SPIN = 200000
SX, SW1, SWSP, SWS, SCRE, SCIM, SWOUT, SOUT = 4, 8, 12, 16, 20, 24, 28, 32
PLRE, PLIM, PLDT, PDSK, PBSP, PGW, PBRE, PBIM, PWIN = 36, 38, 40, 42, 44, 46, 48, 50, 52
ST_T = 100
SWV, SRB, SCOL, STB = 56, 57, 58, 59
SA, SB_, SC, SD = 60, 61, 62, 63
SSTMP = 64
SDO, SWB, SPB0, SPST, SPSP = 68, 69, 70, 71, 72
SXB, SW1B, SXL, SWL = 73, 74, 75, 76
SPC = 77
SCB, SHB = 78, 79
SK = 80
SREG = 96
SE, SF = 97, 98
SSPIN = 99
SLATE = 101
SJ = 3
SGB = 95
SPFP = 70
SPFE = 79
SKH = 81
SGL = 77
SPO = 86
SU0, SNU = 82, 83
SZI = 72
SPB = 90
def srd(b): return f"s[{b}:{b+3}]"
def v(a, n=1): return f"v{a}" if n == 1 else f"v[{a}:{a+n-1}]"
def ar(a, n=1): return f"a{a}" if n == 1 else f"a[{a}:{a+n-1}]"
def sp(a): return f"s[{a}:{a+1}]"
VL, VL16, VOOB = 1, 2, 3
LOG2E = 1.4426950408889634
def f2u(x): return struct.unpack("<I", struct.pack("<f", x))[0]
MF = "v_mfma_f32_32x32x16_bf16"

class G:
    def __init__(self, opt):
        self.o = opt
        self.p = Prog()

    def stamp(self, k):
        if self.o.get("spin_from") == k:
            p = self.p
            p(f"s_memrealtime s[{SSTMP}:{SSTMP+1}]"); p.wait_lg_all()
            p(f"v_mov_b32 v254, s{SSTMP}")
        if self.o.get("stamps"):
            p = self.p
            p(f"s_memrealtime s[{SSTMP}:{SSTMP+1}]\ns_memtime s[{SSTMP+2}:{SSTMP+3}]"); p.wait_lg_all()
            p(f"v_writelane_b32 v255, s{SSTMP}, {k}\nv_writelane_b32 v255, s{SSTMP+2}, {k+32}")
    def cap(self, fn):
        sub = Prog(); save = self.p; self.p = sub
        fn()
        self.p = save
        assert sub.vm == 0 and sub.lg == 0
        return [(lambda l=l: self.p(l)) for l in sub.L]
    def run(self, ops):
        for op in ops: op()
    def rot(self, sreg, st, unit):
        if not self.o.get("rot"): return (sreg, st * unit)
        return (sreg, ("rot", st, unit))
    def rot0(self, sreg, unit):
        if not self.o.get("rot"): return sreg
        self.p(f"s_and_b32 s{SDO}, s2, 7\ns_mul_i32 s{SDO}, s{SDO}, {unit}\ns_add_u32 s{SDO}, s{SDO}, s{sreg}")
        return SDO
    def dseq(self, items):
        p = self.p
        def setup(it):
            if it[0] is not None: p(f"s_add_u32 m0, s{it[0][0]}, {it[0][1]}")
            if it[1] is not None:
                if isinstance(it[1][1], tuple):
                    _, st, unit = it[1][1]
                    p(f"s_add_u32 s{SDO}, s2, {st}\ns_and_b32 s{SDO}, s{SDO}, 7\ns_mul_i32 s{SDO}, s{SDO}, {unit}\ns_add_u32 s{SDO}, s{SDO}, s{it[1][0]}")
                else: p(f"s_add_u32 s{SDO}, s{it[1][0]}, {it[1][1]}")
        ops = [lambda: setup(items[0])]
        for i, it in enumerate(items):
            def f(i=i, it=it):
                t = p.vmem(it[2])
                if it[3]: it[3](t)
                if i + 1 < len(items) and items[i + 1][:2] != it[:2]: setup(items[i + 1])
            ops.append(f)
        return ops
    def poll_addr(self, vt, groups):
        p = self.p; n0 = 0
        p(f"v_mov_b32 {v(vt)}, {v(VOOB)}")
        for (sr, n) in groups:
            if n == 1: p(f"v_writelane_b32 {v(vt)}, s{sr}, {n0}")
            else:
                p(f"s_sub_u32 s{sr}, s{sr}, {n0*128}\nv_lshl_add_u32 {v(vt+1)}, {v(VL)}, 7, s{sr}")
                m = ((1 << n) - 1) << n0
                p(f"s_mov_b32 vcc_lo, {m & 0xffffffff}\ns_mov_b32 vcc_hi, {m >> 32}\nv_cndmask_b32 {v(vt)}, {v(vt)}, {v(vt+1)}, vcc")
            n0 += n
        return n0
    def poll(self, vt, n):
        p = self.p
        l = p.label("poll"); d = p.label("pd")
        p(f"s_mov_b32 s{SSPIN}, 0")
        p.put(l)
        p.vmem(f"buffer_load_dword {v(vt+1)}, {v(vt)}, {srd(SWS)}, 0 offen sc1")
        p.wait_vm_all()
        p(f"v_cmp_ne_u32 vcc, s{ST_T}, {v(vt+1)}")
        if n <= 32: p(f"s_and_b32 s{SF}, vcc_lo, {(1<<n)-1}")
        else: p(f"s_and_b32 vcc_hi, vcc_hi, {(1<<(n-32))-1}\ns_or_b32 s{SF}, vcc_lo, vcc_hi")
        p(f"s_cbranch_scc0 {d}")
        p(f"s_add_u32 s{SSPIN}, s{SSPIN}, 1\ns_cmp_lt_u32 s{SSPIN}, {SPIN}\ns_cbranch_scc1 {l}")
        p.put(d)
    def flag_prep(self, vt):
        p = self.p
        p(f"v_mov_b32 {v(vt)}, s{ST_T}\nv_mov_b32 {v(vt+1)}, {v(VOOB)}\nv_writelane_b32 {v(vt+1)}, 0, 0")
    def flag(self, off_sreg, vt):
        self.p.vmem(f"buffer_store_dword {v(vt)}, {v(vt+1)}, {srd(SWS)}, s{off_sreg} offen sc1")
    def xhalf_sum(self, a, t):
        self.p(f"v_mov_b32 {v(t)}, {v(a)}\nv_permlane32_swap_b32 {v(a)}, {v(t)}\nv_add_f32 {v(a)}, {v(a)}, {v(t)}")
    def rnd(self, d, s):
        self.p(f"v_cvt_pk_bf16_f32 {v(d)}, {v(s)}, {v(s)}\nv_lshlrev_b32 {v(d)}, 16, {v(d)}")
    def unpack(self, d, s):
        self.p(f"v_and_b32 {v(d+1)}, 0xffff0000, {v(s)}\nv_lshlrev_b32 {v(d)}, 16, {v(s)}")
    def plain_read_addr(self, dst4, base_sreg, t):
        p = self.p
        p(f"v_and_b32 {v(t)}, 31, {v(VL)}\nv_lshlrev_b32 {v(t)}, 7, {v(t)}")
        if base_sreg is not None: p(f"v_add_u32 {v(t)}, s{base_sreg}, {v(t)}")
        p(f"v_bfe_u32 {v(t+1)}, {v(VL)}, 1, 3\nv_lshrrev_b32 {v(dst4)}, 5, {v(VL)}\nv_xor_b32 {v(t+1)}, {v(t+1)}, {v(dst4)}")
        p(f"v_lshlrev_b32 {v(t+1)}, 4, {v(t+1)}")
        for ks in range(4):
            p(f"v_xor_b32 {v(dst4+ks)}, {32*ks}, {v(t+1)}\nv_add_u32 {v(dst4+ks)}, {v(dst4+ks)}, {v(t)}")
    def plain_dma_addr(self, dst4, rowbytes, t, rowstep=8):
        p = self.p
        p(f"v_lshrrev_b32 {v(t)}, 3, {v(VL)}\nv_mul_u32_u24 {v(t)}, {rowbytes}, {v(t)}")
        self.plain_dma_addr2(dst4, t, t + 1, rowstep * rowbytes)
    def plain_dma_addr2(self, dst4, vrow, t, step):
        p = self.p
        p(f"v_and_b32 {v(t)}, 7, {v(VL)}\nv_lshrrev_b32 {v(dst4)}, 4, {v(VL)}\nv_xor_b32 {v(t)}, {v(t)}, {v(dst4)}\nv_lshlrev_b32 {v(t)}, 4, {v(t)}")
        p(f"v_add_u32 {v(dst4)}, {v(t)}, {v(vrow)}")
        p(f"v_xor_b32 {v(t)}, 64, {v(t)}\nv_add_u32 {v(dst4+1)}, {v(t)}, {v(vrow)}")
        p(f"v_add_u32 {v(dst4+2)}, {2*(step-1024)}, {v(dst4)}\nv_add_u32 {v(dst4+3)}, {3*(step-1024)}, {v(dst4+1)}\nv_add_u32 {v(dst4+1)}, {step-1024}, {v(dst4+1)}")
    def panel_tr_addr(self, dst2, base_sreg, t, perm):
        p = self.p
        p(f"v_lshrrev_b32 {v(t)}, 5, {v(VL)}\nv_lshlrev_b32 {v(t)}, 10, {v(t)}")
        p(f"v_bfe_u32 {v(t+1)}, {v(VL)}, 2, 2\nv_lshl_add_u32 {v(t)}, {v(t+1)}, 7, {v(t)}")
        p(f"v_bfe_u32 {v(t+1)}, {v(VL)}, 4, 1\nv_lshl_add_u32 {v(t)}, {v(t+1)}, 5, {v(t)}")
        if perm:
            p(f"v_and_b32 {v(t+1)}, 1, {v(VL)}\nv_lshl_add_u32 {v(t)}, {v(t+1)}, 4, {v(t)}")
            p(f"v_bfe_u32 {v(t+1)}, {v(VL)}, 1, 1\nv_lshl_add_u32 {v(t)}, {v(t+1)}, 3, {v(t)}")
        else:
            p(f"v_and_b32 {v(t+1)}, 3, {v(VL)}\nv_lshl_add_u32 {v(t)}, {v(t+1)}, 3, {v(t)}")
        p(f"v_bfe_u32 {v(t+1)}, {v(VL)}, 3, 1\nv_lshlrev_b32 {v(t+1)}, 6, {v(t+1)}")
        if base_sreg is not None: p(f"v_add_u32 {v(t)}, s{base_sreg}, {v(t)}")
        p(f"v_add_u32 {v(dst2)}, {v(t)}, {v(t+1)}\nv_xor_b32 {v(t+1)}, 64, {v(t+1)}\nv_add_u32 {v(dst2+1)}, {v(t)}, {v(t+1)}")
    def unit_tr_addr(self, dst2, base_sreg, t, perm, flip_sreg=None):
        p = self.p
        p(f"v_bfe_u32 {v(t)}, {v(VL)}, 4, 1")
        if flip_sreg is not None: p(f"v_xor_b32 {v(t)}, s{flip_sreg}, {v(t)}")
        p(f"v_lshlrev_b32 {v(t)}, 1, {v(t)}")
        p(f"v_bfe_u32 {v(t+1)}, {v(VL)}, {0 if perm else 1}, 1\nv_or_b32 {v(t)}, {v(t)}, {v(t+1)}")
        p(f"v_lshrrev_b32 {v(t+1)}, 5, {v(VL)}\nv_lshlrev_b32 {v(t+1)}, 1, {v(t+1)}\nv_xor_b32 {v(t+1)}, {v(t+1)}, {v(t)}")
        p(f"v_lshlrev_b32 {v(t)}, 9, {v(t)}")
        p(f"v_bfe_u32 {v(t+2)}, {v(VL)}, 2, 2\nv_lshl_add_u32 {v(t)}, {v(t+2)}, 4, {v(t)}")
        p(f"v_bfe_u32 {v(t+2)}, {v(VL)}, {1 if perm else 0}, 1\nv_lshl_add_u32 {v(t)}, {v(t+2)}, 3, {v(t)}")
        if base_sreg is not None: p(f"v_add_u32 {v(t)}, s{base_sreg}, {v(t)}")
        p(f"v_lshl_add_u32 {v(dst2)}, {v(t+1)}, 6, {v(t)}")
        p(f"v_xor_b32 {v(t+1)}, 1, {v(t+1)}\nv_lshl_add_u32 {v(dst2+1)}, {v(t+1)}, 6, {v(t)}")

    def gemm_loop(self, nslot, reads, mfmas, dma, tick, rfront, npro, extra, valu=None):
        p = self.p
        p.wait(vm=tick[0]); p("s_barrier")
        self.stamp(20)
        self.run(reads(0))
        d = []
        for st in range(npro, nslot): d += dma(st)
        q = (len(d) + 2) // 3
        pend = [d[i * q:(i + 1) * q] for i in range(3)]
        for n in range(32):
            rd = []
            if n + 1 < 32:
                if (n + 1) % 4 == 0:
                    st = (n + 1) // 4
                    p.wait(vm=tick[st], lg=p.lg - 1); p("s_barrier")
                    if self.o.get("astamps"): self.stamp(20 + st)
                    d = dma(st - 1 + nslot) if st - 1 + nslot < 8 else extra.get(st, lambda: [])()
                    q = (len(d) + 3) // 4
                    pend = [d[i * q:(i + 1) * q] for i in range(4)]
                rd = reads(n + 1)
            seq = merge(mfmas(n), rd, 0, rfront)
            if pend: seq = merge(seq, pend.pop(0), len(seq) // 2)
            if valu and n in valu: seq = merge(seq, valu[n])
            self.run(seq)

    def gate(self, GX, GW, GU, GS, GT):
        p = self.p
        for i in range(4):
            for r in range(4):
                p(f"v_dot2_f32_bf16 {v(GS+r)}, {v(GX+4*r+i)}, {v(GW+i)}, {'0' if i == 0 else v(GS+r)}")
        p("s_nop 2")
        for mod in ["quad_perm:[1,0,3,2]", "quad_perm:[2,3,0,1]", "row_half_mirror", "row_mirror"]:
            for r in range(4): p(f"v_add_f32_dpp {v(GS+r)}, {v(GS+r)}, {v(GS+r)} {mod} row_mask:0xf bank_mask:0xf")
        for sw in ["v_permlane16_swap_b32", "v_permlane32_swap_b32"]:
            for r in range(4): p(f"v_mov_b32 {v(GT+r)}, {v(GS+r)}")
            for r in range(4): p(f"{sw} {v(GS+r)}, {v(GT+r)}")
            for r in range(4): p(f"v_add_f32 {v(GS+r)}, {v(GS+r)}, {v(GT+r)}")
        for r in range(4): p(f"v_mul_f32 {v(GS+r)}, {f2u(-LOG2E)}, {v(GS+r)}")
        for r in range(4): p(f"v_exp_f32 {v(GS+r)}, {v(GS+r)}")
        for r in range(4): p(f"v_add_f32 {v(GS+r)}, 1.0, {v(GS+r)}")
        for r in range(4): p(f"v_rcp_f32 {v(GS+r)}, {v(GS+r)}")
        p(f"v_mov_b32 {v(GT)}, {v(VOOB)}\nv_writelane_b32 {v(GT)}, 0, 0")

    def w_dma_addr(self, dst3, t, colbase):
        p = self.p
        for i in range(3):
            p(f"v_add_u32 {v(t)}, {64*i}, {v(VL)}\nv_mul_u32_u24 {v(t+1)}, 171, {v(t)}\nv_lshrrev_b32 {v(t+1)}, 11, {v(t+1)}")
            p(f"v_mul_u32_u24 {v(t+2)}, 12, {v(t+1)}\nv_sub_u32 {v(t)}, {v(t)}, {v(t+2)}\nv_cmp_le_u32 vcc, s{SNU}, {v(t)}")
            p(f"v_mul_u32_u24 {v(t+1)}, 2752, {v(t+1)}\nv_lshl_add_u32 {v(t)}, {v(t)}, 4, {v(t+1)}")
            if colbase - 1024 * i: p(f"v_add_u32 {v(t)}, {colbase-1024*i}, {v(t)}")
            p(f"v_cndmask_b32 {v(dst3+i)}, {v(t)}, {v(VOOB)}, vcc")
    def w_tr_addr(self, dst, base, t):
        p = self.p
        p(f"v_lshrrev_b32 {v(t)}, 5, {v(VL)}\nv_bfe_u32 {v(t+1)}, {v(VL)}, 2, 2\nv_lshl_add_u32 {v(t)}, {v(t)}, 3, {v(t+1)}\nv_mul_u32_u24 {v(t)}, 192, {v(t)}")
        p(f"v_bfe_u32 {v(t+1)}, {v(VL)}, 4, 1\nv_lshl_add_u32 {v(t)}, {v(t+1)}, 5, {v(t)}")
        p(f"v_and_b32 {v(t+1)}, 1, {v(VL)}\nv_lshl_add_u32 {v(t)}, {v(t+1)}, 4, {v(t)}")
        p(f"v_bfe_u32 {v(t+1)}, {v(VL)}, 1, 1\nv_lshl_add_u32 {v(t)}, {v(t+1)}, 3, {v(t)}")
        p(f"v_add_u32 {v(dst)}, {base}, {v(t)}")
    def slice_z2(self, j):
        p = self.p
        p(f"s_mul_i32 s{SU0}, s{j}, 12\ns_sub_u32 s{SU0}, s{SU0}, 2")
        p.atom(f"s_cmp_eq_u32 s{j}, 0\ns_cselect_b32 s{SU0}, 0, s{SU0}\ns_cselect_b32 s{SNU}, 10, 12\ns_cmp_eq_u32 s{j}, 7\ns_cselect_b32 s{SNU}, 4, s{SNU}")
    def valid_masks(self):
        p = self.p
        p.atom(f"s_mov_b32 s{SK+6}, {f2u(1/96)}\ns_mov_b32 s{SK+4}, 0\ns_cmp_eq_u32 s{SCOL}, 0\ns_cselect_b32 s{SK+6}, {f2u(1/80)}, s{SK+6}\ns_cselect_b32 s{SK+4}, {f2u(16.0)}, s{SK+4}\n"
               f"s_cmp_eq_u32 s{SCOL}, 7\ns_cselect_b32 s{SK+6}, {f2u(1/32)}, s{SK+6}\ns_cselect_b32 s{SK+4}, {f2u(64.0)}, s{SK+4}")
        c1 = -2 * LOG2E * 0.7978845608028654
        p(f"s_mov_b32 s{SK}, {f2u(c1*0.044715)}\nv_mov_b32 {v(self.VC0)}, {f2u(c1)}")

    def gelu_pair(self, a, t, out_packed=None):
        p = self.p
        p(f"v_pk_mul_f32 {v(t,2)}, {v(a,2)}, {v(a,2)}")
        p(f"v_pk_fma_f32 {v(t,2)}, {v(t,2)}, {sp(SK)}, {v(self.VC0,2)} op_sel_hi:[1,0,0]")
        p(f"v_pk_mul_f32 {v(t,2)}, {v(t,2)}, {v(a,2)}")
        p(f"v_exp_f32 {v(t)}, {v(t)}\nv_exp_f32 {v(t+1)}, {v(t+1)}")
        p(f"v_pk_add_f32 {v(t,2)}, {v(t,2)}, 1.0 op_sel_hi:[1,0]")
        p(f"v_rcp_f32 {v(t)}, {v(t)}\nv_rcp_f32 {v(t+1)}, {v(t+1)}")
        if out_packed is not None:
            p(f"v_pk_mul_f32 {v(t,2)}, {v(t,2)}, {v(a,2)}")
            p(f"v_cvt_pk_bf16_f32 {v(out_packed)}, {v(t)}, {v(t+1)}")
        else:
            p(f"v_pk_mul_f32 {v(a,2)}, {v(t,2)}, {v(a,2)}")
    def gelu_many(self, pairs, temps, outs=None):
        p = self.p; ng = len(temps)
        for g0 in range(0, len(pairs), ng):
            streams = []
            for k, i in enumerate(range(g0, min(g0 + ng, len(pairs)))):
                sub = Prog(); save = self.p; self.p = sub
                self.gelu_pair(pairs[i], temps[k], None if outs is None else outs[i])
                self.p = save
                streams.append(sub.L)
            for j in range(len(streams[0])):
                for s in streams: p(s[j])

    VWD, VWR, VWA, VC0 = 240, 244, 248, 252
    def wsp_setup(self, t):
        p = self.p
        self.plain_dma_addr(self.VWD, 4096, t)
        p(f"s_lshl_b32 s{SA}, s{SKH}, 12")
        self.plain_read_addr(self.VWR, SA, t)
        p(f"s_lshr_b32 s{SWB}, s{STB}, 1\ns_lshl_b32 s{SWB}, s{SWB}, 19\ns_and_b32 s{SB_}, s{SWV}, 1\ns_lshl_b32 s{SB_}, s{SB_}, 18\ns_add_u32 s{SWB}, s{SWB}, s{SB_}")
        p(f"s_lshl_b32 s{SB_}, s{SKH}, 11\ns_add_u32 s{SWB}, s{SWB}, s{SB_}\ns_lshr_b32 s{SB_}, s{SWV}, 1\ns_lshl_b32 s{SB_}, s{SB_}, 10\ns_add_u32 s{SWB}, s{SWB}, s{SB_}")
        self.wsp_t = {}
    def piece(self, st): return (SPB + st % 5, 0)
    def wsp_dma(self, st):
        if self.o.get("x_nowsp") and st >= 2:
            self.wsp_t[st] = -1
            return [lambda: None] * 9
        items = []; sr, im = self.piece(st)
        for hh in range(2):
            for i in range(4):
                def cb(t): self.wsp_t[st] = t
                items.append(((sr, im + hh * 4096) if i == 0 else None, (SWB, st * 128 + hh * 131072) if i == 0 else None,
                              f"buffer_load_dwordx4 {v(self.VWD+i)}, {srd(SWSP)}, s{SDO} offen offset:{i*1024} {self.o.get('wmod', '')} lds", cb))
        return self.dseq(items)
    def wsp_read(self, st):
        if self.o.get("x_nord"): return [lambda: None]
        p = self.p; sr, im = self.piece(st)
        def pre():
            for ks in range(4): p(f"v_add_u32 {v(self.VWA+ks)}, s{sr}, {v(self.VWR+ks)}")
            p.wait(vm=self.wsp_t[st], lg=p.lg - 8)
        ops = [pre]
        for nt in range(2):
            for ks in range(4):
                def f(ks=ks, nt=nt):
                    p.lds(f"ds_read_b128 {ar(((st*4+ks)*2+nt)*4,4)}, {v(self.VWA+ks)} offset:{im}")
                    if nt == 0: p(f"v_xor_b32 {v(self.VWA+ks)}, 4096, {v(self.VWA+ks)}")
                ops.append(f)
        return ops

    ZXD = 104
    def prologue(self):
        p = self.p
        self.END = p.label("end"); self.LU = p.label("U"); self.LG = p.label("G"); self.LZ = p.label("Z")
        p(f"s_cmp_ge_u32 s2, 256\ns_cbranch_scc1 {self.END}")
        if self.o.get("sst"): p("s_memrealtime s[84:85]\ns_waitcnt lgkmcnt(0)")
        if self.o.get("cpf", 1):
            p(f"s_getpc_b64 {sp(SSTMP)}\nv_lshlrev_b32 v4, 7, v0\nglobal_load_dword v5, v4, {sp(SSTMP)}")
        p(f"s_load_dwordx2 {sp(SX)}, s[0:1], 0\ns_load_dwordx2 {sp(PWIN)}, s[0:1], 80\ns_load_dwordx4 s[{PBRE}:{PBRE+3}], s[0:1], 24")
        p(f"v_lshrrev_b32 v2, 6, v0\nv_and_b32 {v(VL)}, 63, v0\nv_readfirstlane_b32 s{SWV}, v2")
        p(f"s_and_b32 s{SA}, s2, 6\ns_lshl_b32 s{SA}, s{SA}, 1\ns_bfe_u32 s{SRB}, s2, 0x20005\ns_add_u32 s{SRB}, s{SRB}, s{SA}")
        p(f"s_mov_b32 s{SX+2}, 2097152\ns_mov_b32 s{SX+3}, 0x20000\ns_lshl_b32 s{SXB}, s{SRB}, 17")
        if self.o.get("pf", 2) == 5:
            p(f"s_lshl_b32 s{SA}, s2, 1\ns_add_u32 s{SA}, s{SA}, s{SWV}\ns_and_b32 s{SB_}, s2, 127\ns_cmp_eq_u32 s{SWV}, 3\ns_cselect_b32 s{SA}, s{SB_}, s{SA}\ns_lshl_b32 s{SA}, s{SA}, 12")
            p(f"s_mul_i32 s{SB_}, s2, 5504\ns_cmp_eq_u32 s{SWV}, 2\ns_cselect_b32 s{SA}, s{SB_}, s{SA}\ns_cselect_b32 s{SB_}, 42, 31\nv_min_u32 v6, s{SB_}, {v(VL)}\nv_lshl_add_u32 v6, v6, 7, s{SA}")
            p.wait_lg_all()
            p(f"s_cselect_b64 {sp(SPFP)}, {sp(PWIN)}, {sp(SX)}\ns_cmp_ge_u32 s2, 128\ns_cselect_b64 {sp(SC)}, {sp(PBIM)}, {sp(PBRE)}\ns_cmp_eq_u32 s{SWV}, 3\ns_cselect_b64 {sp(SPFP)}, {sp(SC)}, {sp(SPFP)}")
            if not self.o.get("pfpos"): p(f"global_load_dword v7, v6, {sp(SPFP)}")
        p(f"s_cmp_ge_u32 s2, 128\ns_cbranch_scc1 {self.LU}")
        self.plain_dma_addr(self.ZXD, 1024, 112)
        p(f"s_lshl_b32 s{SA}, s{SWV}, 15\ns_add_u32 s{SXB}, s{SXB}, s{SA}\ns_mul_i32 s{SREG}, s{SWV}, 40960\ns_mov_b32 m0, s{SREG}")
        p.wait_lg_all()
        so = self.rot0(SXB, 128)
        for i in range(4): p.vmem(f"buffer_load_dwordx4 {v(self.ZXD+i)}, {srd(SX)}, s{so} offen offset:{i*1024} lds")
        p(f"s_branch {self.LZ}")
    def common2(self):
        p = self.p
        if self.o.get("pfpos") == 1: p(f"global_load_dword v7, v6, {sp(SPFP)}")
        p(f"v_lshlrev_b32 {v(VL16)}, 4, {v(VL)}\nv_mov_b32 {v(VOOB)}, {OOB}")
        if self.o.get("stamps"):
            p("v_mov_b32 v255, 0")
            if self.o.get("sst"): p("v_writelane_b32 v255, s84, 17"); self.stamp(22)
            else: self.stamp(17)
        elif "spin_from" in self.o: self.stamp(17)
        p(f"s_and_b32 s{SKH}, s2, 1\ns_lshl_b32 s{SC}, s{SKH}, 2\ns_bfe_u32 s{SD}, s2, 0x20003\ns_add_u32 s{SCOL}, s{SC}, s{SD}\ns_mov_b32 s{SW1+3}, 0x20000")
    def common3(self):
        p = self.p
        if self.o.get("pfpos") == 2: p(f"global_load_dword v7, v6, {sp(SPFP)}")
        p(f"s_load_dwordx2 {sp(SWS)}, s[0:1], 136\ns_load_dwordx2 {sp(PGW)}, s[0:1], 112\ns_load_dwordx4 s[{PLRE}:{PLRE+3}], s[0:1], 8\ns_load_dwordx2 {sp(PLDT)}, s[0:1], 56")
        for (r, off) in [(SWSP, 88), (SCRE, 40), (SCIM, 48), (SWOUT, 104), (SOUT, 120), (PDSK, 64), (PBSP, 96)]:
            p(f"s_load_dwordx2 {sp(r)}, s[0:1], {off}")
        for (r, n) in [(SWSP, 8388608), (SWS, WS_END), (SCRE, 524288), (SCIM, 524288), (SWOUT, 704512), (SOUT, 4194304)]:
            p(f"s_mov_b32 s{r+2}, {n}\ns_mov_b32 s{r+3}, 0x20000")
        if self.o.get("xl"):
            p(f"s_bfe_u32 s{SKH}, s2, 0x10006\ns_and_b32 s{STB}, s2, 7\ns_lshl_b32 s{STB}, s{STB}, 2\ns_lshr_b32 s{SC}, s2, 6\ns_add_u32 s{STB}, s{STB}, s{SC}\ns_bfe_u32 s{SJ}, s2, 0x30003")
        else:
            p(f"s_and_b32 s{SC}, s2, 6\ns_lshl_b32 s{SC}, s{SC}, 1\ns_lshr_b32 s{STB}, s2, 6\ns_add_u32 s{STB}, s{STB}, s{SC}\ns_lshl_b32 s{STB}, s{STB}, 1\ns_add_u32 s{STB}, s{STB}, s{SKH}\ns_bfe_u32 s{SJ}, s2, 0x30003")
        if self.o.get("pf", 2) == 2:
            A_, C_, D_, E_ = SA, SC, SB_, SF
            p(f"s_lshl_b32 s{D_}, s{SWV}, 8\ns_add_u32 s{D_}, s{D_}, s2\ns_mov_b32 s{C_}, 0\ns_mov_b32 s{A_}, 0\ns_mov_b32 s{E_}, 2047")
            for (lo, off, last) in [(171, 24, 511), (214, 32, 511), (257, 80, 0)]:
                p.atom(f"s_cmp_ge_u32 s{D_}, {lo}\ns_cselect_b32 s{C_}, {off}, s{C_}\ns_cselect_b32 s{A_}, {lo}, s{A_}\ns_cselect_b32 s{E_}, {last}, s{E_}")
            p.atom(f"s_cmp_lt_u32 s{D_}, 365\ns_cselect_b32 s{SPFE}, 1, 0")
            p(f"s_sub_u32 s{D_}, s{D_}, s{A_}\ns_load_dwordx2 {sp(SPFP)}, s[0:1], s{C_}")
            p(f"v_mul_u32_u24 {v(6)}, 52, {v(VL)}\nv_lshrrev_b32 {v(6)}, 8, {v(6)}\nv_mul_u32_u24 {v(7)}, 5, {v(6)}\nv_sub_u32 {v(7)}, {v(VL)}, {v(7)}")
            p(f"s_mul_i32 s{A_}, s{D_}, 12\nv_add_u32 {v(6)}, s{A_}, {v(6)}\nv_min_u32 {v(6)}, s{E_}, {v(6)}\nv_lshlrev_b32 {v(6)}, 10, {v(6)}\nv_lshl_add_u32 {v(6)}, {v(7)}, 7, {v(6)}\nv_add_u32 {v(6)}, 384, {v(6)}")
            p(f"s_lshl_b32 s{D_}, s{D_}, 13\ns_add_u32 s{D_}, s{D_}, {192*2752}\nv_lshl_add_u32 {v(7)}, {v(VL)}, 7, s{D_}\nv_min_u32 {v(7)}, {512*2752-4}, {v(7)}")
            p.atom(f"s_cmp_eq_u32 s{E_}, 0\ns_cselect_b64 vcc, -1, 0")
            p(f"v_cndmask_b32 {v(6)}, {v(6)}, {v(7)}, vcc")
    def pf2(self):
        p = self.p
        p.wait_lg_all()
        if self.o.get("wsoff"): p(f"s_add_u32 s{SWS}, s{SWS}, {self.o['wsoff'] << 20}\ns_addc_u32 s{SWS+1}, s{SWS+1}, 0")
        if self.o.get("pf", 2) == 2:
            l = p.label("pf")
            p(f"s_cmp_eq_u32 s{SPFE}, 0\ns_cbranch_scc1 {l}\nglobal_load_dword {v(7)}, {v(6)}, {sp(SPFP)}")
            p.put(l)
        if self.o.get("cpf", 1):
            l = p.label("c2")
            here = p.label("pc")
            p(f"s_cmp_lg_u32 s{SWV}, 0\ns_cbranch_scc1 {l}\ns_getpc_b64 {sp(SSTMP)}")
            p.put(here)
            p(f"s_sub_u32 s{SSTMP}, s{SSTMP}, {here}-{NAME}\ns_subb_u32 s{SSTMP+1}, s{SSTMP+1}, 0")
            p(f"v_add_u32 v4, 32768, v4\nv_min_u32 v4, {self.END}-{NAME}, v4\nglobal_load_dword v5, v4, {sp(SSTMP)}")
            p.put(l)
        if self.o.get("tw", 0):
            ls = [p.label("tw") for _ in range(3)]
            p(f"v_lshlrev_b32 v8, 19, {v(VL)}\nv_mov_b32 v9, 0")
            p(f"s_cmp_eq_u32 s{SWV}, 1\ns_cbranch_scc1 {ls[0]}\ns_cmp_eq_u32 s{SWV}, 2\ns_cbranch_scc1 {ls[1]}\ns_cmp_eq_u32 s{SWV}, 3\ns_cbranch_scc0 {ls[2]}")
            p(f"buffer_load_dword v10, v8, {srd(SWS)}, 0 offen sc1\ns_branch {ls[2]}")
            p.put(ls[0]); p(f"buffer_load_dword v10, v8, {srd(SWSP)}, 0 offen\nbuffer_load_dword v11, v8, {srd(SOUT)}, 0 offen sc1\nglobal_load_ushort v12, v9, {sp(PBSP)}\nglobal_load_ushort v13, v9, {sp(PDSK)}\ns_branch {ls[2]}")
            p.put(ls[1]); p(f"buffer_load_dword v10, v8, {srd(SCRE)}, 0 offen\nbuffer_load_dword v11, v8, {srd(SCIM)}, 0 offen\nbuffer_load_dword v12, v8, {srd(SWOUT)}, 0 offen\nglobal_load_ushort v13, v9, {sp(PGW)}")
            p.put(ls[2])
        p(f"s_load_dword s{ST_T}, {sp(SWS)}, {EPOCH}")
    def code_prefetch(self, va, vd):
        if not self.o.get("cpf", 1): return
        p = self.p
        sk = p.label("cpf"); here = p.label("pc")
        nsl = self.o.get("cpfn", 6)
        p(f"s_lshr_b32 s{SA}, s2, 3\ns_and_b32 s{SA}, s{SA}, 15\ns_lshl_b32 s{SA}, s{SA}, 2\ns_add_u32 s{SA}, s{SA}, s{SWV}")
        p(f"s_cmp_ge_u32 s{SA}, {nsl}\ns_cbranch_scc1 {sk}")
        p(f"s_getpc_b64 s[{SSTMP}:{SSTMP+1}]")
        p.put(here)
        p(f"s_sub_u32 s{SSTMP}, s{SSTMP}, {here}-{NAME}\ns_subb_u32 s{SSTMP+1}, s{SSTMP+1}, 0")
        p(f"s_lshl_b32 s{SA}, s{SA}, 13\nv_lshl_add_u32 {v(va)}, {v(VL)}, 7, s{SA}\nv_min_u32 {v(va)}, {self.END}-{NAME}, {v(va)}")
        p(f"global_load_dword {v(vd)}, {v(va)}, s[{SSTMP}:{SSTMP+1}]")
        p.put(sk)
    def pf1(self, when=1):
        if self.o.get("pf", 2) == 4 and self.o.get("pfw", 5) == when:
            self.p.vmem(f"global_load_dword {v(7)}, {v(6)}, {sp(PWIN)}")
            self.p.vmem(f"global_load_dword {v(5)}, {v(4)}, {sp(SPFP)}")
        if {3: 1, 2: self.o.get("pfw2", 2)}.get(self.o.get("pf", 2), self.o.get("pf", 2)) == when:
            p = self.p; l = p.label("pf")
            p(f"s_cmp_eq_u32 s{SPFE}, 0\ns_cbranch_scc1 {l}\nglobal_load_dword {v(5)}, {v(4)}, {sp(SPFP)}")
            p.put(l)
        if self.o.get("wfirst") == when: self.touch_wsp(11, 12, 0, 1)
    def tlb_warm(self):
        p = self.p
        ls = [p.label("tw") for _ in range(4)]
        p(f"v_lshlrev_b32 {v(6)}, 19, {v(VL)}\nv_mov_b32 {v(7)}, 0")
        p(f"s_cmp_eq_u32 s{SWV}, 1\ns_cbranch_scc1 {ls[0]}\ns_cmp_eq_u32 s{SWV}, 2\ns_cbranch_scc1 {ls[1]}\ns_cmp_eq_u32 s{SWV}, 3\ns_cbranch_scc1 {ls[2]}")
        p(f"buffer_load_dword {v(8)}, {v(6)}, {srd(SWS)}, 0 offen sc1\nglobal_load_ushort {v(9)}, {v(7)}, {sp(PGW)}\ns_branch {ls[3]}")
        p.put(ls[0]); p(f"buffer_load_dword {v(8)}, {v(6)}, {srd(SWSP)}, 0 offen\nglobal_load_ushort {v(9)}, {v(7)}, {sp(PBSP)}\nglobal_load_ushort {v(10)}, {v(7)}, {sp(PDSK)}\ns_branch {ls[3]}")
        p.put(ls[1]); p(f"buffer_load_dword {v(8)}, {v(6)}, {srd(SOUT)}, 0 offen sc1\nbuffer_load_dword {v(9)}, {v(6)}, {srd(SWOUT)}, 0 offen\ns_branch {ls[3]}")
        p.put(ls[2]); p(f"buffer_load_dword {v(8)}, {v(6)}, {srd(SCRE)}, 0 offen\nbuffer_load_dword {v(9)}, {v(6)}, {srd(SCIM)}, 0 offen")
        p.put(ls[3])
    def late_args(self):
        p = self.p
        if self.o.get("tlb", 1):
            if self.o.get("tlb", 1) == 1: self.tlb_warm()
            self.pf1(5)
            p(f"s_load_dword s{ST_T}, {sp(SWS)}, {EPOCH}")
            return
        for (r, off) in [(SWSP, 88), (SCRE, 40), (SCIM, 48), (SWOUT, 104), (SOUT, 120), (PDSK, 64), (PBSP, 96)]:
            p(f"s_load_dwordx2 {sp(r)}, s[0:1], {off}")
        p(f"s_load_dword s{ST_T}, {sp(SWS)}, {EPOCH}")
        for (r, n) in [(SWSP, 8388608), (SWS, WS_END), (SCRE, 524288), (SCIM, 524288), (SWOUT, 704512), (SOUT, 4194304)]:
            p(f"s_mov_b32 s{r+2}, {n}\ns_mov_b32 s{r+3}, 0x20000")
    def epoch2(self):
        p = self.p
        p.wait_lg_all()
        p(f"s_mul_i32 s{ST_T}, s{ST_T}, 0x9E3779B1\ns_add_u32 s{ST_T}, s{ST_T}, 0x7F4A7C15")

    def touch_wsp(self, va, vd, k, n):
        p = self.p
        if k == 0:
            p(f"s_lshr_b32 s{SB_}, s2, 3\ns_lshl_b32 s{SB_}, s{SB_}, 2\ns_add_u32 s{SB_}, s{SB_}, s{SWV}\ns_lshl_b32 s{SB_}, s{SB_}, 13")
            p(f"s_and_b32 s{SA}, s2, 7\ns_lshl_b32 s{SA}, s{SA}, 20\ns_add_u32 s87, s{SA}, s{SB_}")
            p(f"v_cmp_gt_u32 vcc, {64//n}, {v(VL)}\nv_lshlrev_b32 {v(va)}, 7, {v(VL)}\ns_nop 0\nv_cndmask_b32 {v(va)}, {v(VOOB)}, {v(va)}, vcc")
        else: p(f"s_add_u32 s87, s87, {8192//n}")
        p.vmem(f"buffer_load_dword {v(vd)}, {v(va)}, {srd(SWSP)}, s87 offen {self.o.get('tmod', '')}")
    def ctouch(self, va, vd):
        p = self.p; l = p.label("ct")
        p(f"s_lshl_b32 s{SA}, s{SWV}, 8\ns_add_u32 s{SA}, s{SA}, s2\ns_cmp_ge_u32 s{SA}, 856\ns_cbranch_scc1 {l}")
        p(f"s_cmp_lt_u32 s{SA}, 256\ns_cselect_b64 {sp(SSTMP)}, {sp(SCRE)}, {sp(SCIM)}")
        p(f"s_sub_u32 s{SB_}, s{SA}, 512\ns_and_b32 s{SSPIN}, s{SA}, 255\ns_cmp_ge_u32 s{SA}, 512\ns_cselect_b64 {sp(SSTMP)}, {sp(SWOUT)}, {sp(SSTMP)}\ns_cselect_b32 s{SA}, s{SB_}, s{SSPIN}")
        p(f"s_lshl_b32 s{SA}, s{SA}, 11\nv_and_b32 {v(vd)}, 15, {v(VL)}\nv_lshlrev_b32 {v(vd)}, 7, {v(vd)}\nv_add_u32 {v(vd)}, s{SA}, {v(vd)}")
        p(f"global_load_dword {v(vd)}, {v(vd)}, {sp(SSTMP)}")
        p.put(l)
    def paced(self, valu, va, vd, t0, dt):
        if "ct" in self.o: valu.setdefault(self.o["ct"], []).append(lambda: self.ctouch(va, vd + 1 if vd != 205 else 4))
        n = self.o.get("tn", 4)
        if self.o.get("touch", 1) != 1: return
        for k in range(n):
            valu.setdefault(t0 + k * dt, []).append(lambda k=k: self.touch_wsp(va, vd, k, n))
    def touch_c(self, va, vd):
        p = self.p
        p(f"v_lshlrev_b32 {v(va)}, 7, {v(VL)}\ns_lshr_b32 s{SB_}, s2, 3\ns_lshl_b32 s{SB_}, s{SB_}, 2\ns_add_u32 s{SB_}, s{SB_}, s{SWV}\ns_lshl_b32 s{SA}, s{SB_}, 13")
        p.vmem(f"buffer_load_dword {v(vd)}, {v(va)}, {srd(SWOUT)}, s{SA} offen")
        p.vmem(f"buffer_load_dword {v(vd)}, {v(va)}, {srd(SCRE)}, s{SA} offen")
        p.vmem(f"buffer_load_dword {v(vd)}, {v(va)}, {srd(SCIM)}, s{SA} offen")
        p(f"s_add_u32 s{SA}, s{SA}, 524288")
        p.vmem(f"buffer_load_dword {v(vd)}, {v(va)}, {srd(SWOUT)}, s{SA} offen")
    GTR, GPL = 236, 238
    def g_early(self, t):
        p = self.p
        p(f"s_lshr_b32 s{SA}, s{SWV}, 1\ns_mul_i32 s{SGL}, s{SA}, 81920")
        p(f"v_bfe_u32 {v(t)}, {v(VL)}, 4, 1\nv_xor_b32 {v(t)}, s{SA}, {v(t)}\nv_lshlrev_b32 {v(t)}, 4, {v(t)}")
        p(f"v_bfe_u32 {v(t+1)}, {v(VL)}, 2, 1\nv_lshl_add_u32 {v(t)}, {v(t+1)}, 3, {v(t)}\nv_bfe_u32 {v(t+1)}, {v(VL)}, 3, 1\nv_lshl_add_u32 {v(t)}, {v(t+1)}, 2, {v(t)}")
        p(f"v_and_b32 {v(t+1)}, 35, {v(VL)}\nv_add_lshl_u32 {v(t)}, {v(t)}, {v(t+1)}, 4\nv_add_u32 {v(self.GTR)}, s{SGL}, {v(t)}")
        p(f"s_lshl_b32 s{SB_}, s{SJ}, 2\ns_add_u32 s{SB_}, s{SB_}, s{SA}\ns_lshl_b32 s{SA}, s{SKH}, 1\ns_add_u32 s{SB_}, s{SB_}, s{SA}\ns_lshl_b32 s{SB_}, s{SB_}, 4")
        p(f"s_and_b32 s{SA}, s{SWV}, 1\ns_add_u32 s{SGB}, s{SB_}, s{SA}\ns_mul_i32 s{SGB}, s{SGB}, 6144\ns_add_u32 s{SGB}, s{SGB}, {Z2N}\ns_mul_i32 s{SA}, s{SA}, 6144\ns_add_u32 s{SGL}, s{SGL}, s{SA}")
        p(f"s_lshl_b32 s{SB_}, s{SB_}, 7\ns_add_u32 s{SB_}, s{SB_}, {ZF}")
        self.poll_addr(self.GPL, [(SB_, 16)])
        p(f"s_lshr_b32 s{SA}, s{STB}, 1\ns_lshl_b32 s{SA}, s{SA}, 9\ns_add_u32 s{SA}, s{SA}, {ZF}")
        p(f"v_add_u32 {v(t)}, 16, {v(VL)}\nv_bfe_u32 {v(t)}, {v(t)}, 2, 3\nv_lshlrev_b32 {v(t)}, 13, {v(t)}\nv_and_b32 {v(t+1)}, 3, {v(VL)}\nv_lshl_add_u32 {v(t)}, {v(t+1)}, 7, {v(t)}\nv_add_u32 {v(t)}, s{SA}, {v(t)}")
        p(f"s_mov_b32 vcc_lo, 0xffff0000\ns_mov_b32 vcc_hi, 0xffff\nv_cndmask_b32 {v(self.GPL)}, {v(self.GPL)}, {v(t)}, vcc")
        p(f"s_lshr_b32 s{SA}, s{STB}, 1\ns_lshl_b32 s{SA}, s{SA}, 1\ns_and_b32 s{SB_}, s{SWV}, 1\ns_add_u32 s{SA}, s{SA}, s{SB_}\ns_lshl_b32 s{SA}, s{SA}, 1\ns_add_u32 s{SA}, s{SA}, s{SKH}")
        p(f"s_lshl_b32 s{SB_}, s{SJ}, 6\ns_add_u32 s{SZI}, s{SA}, s{SB_}")
    def g_poll_issue(self):
        self.gp = self.p.vmem(f"buffer_load_dword {v(self.GPL+1)}, {v(self.GPL)}, {srd(SWS)}, 0 offen sc1")

    def phase_z(self):
        p = self.p; o = self.o
        ACC, FA, FB, XR, WR, XD, WD, T = 16, 64, 88, 96, 100, 104, 108, 112
        p.c("==== phase A: Z ====")
        p.put(self.LZ)
        self.common2()
        tick = {}
        def xdma(st, cb=None):
            return [((SREG, (st & 3) * 4096) if i == 0 else None, self.rot(SXB, st, 128) if i == 0 else None,
                     f"buffer_load_dwordx4 {v(XD+i)}, {srd(SX)}, s{SDO} offen offset:{i*1024} lds", cb) for i in range(4)]
        def wdma(st, cb=None):
            return [((SWL, (st & 3) * 40960) if i == 0 else None, self.rot(SW1B, st, 64 * 2752) if i == 0 else None,
                     f"buffer_load_dwordx4 {v(WD+i)}, {srd(SW1)}, s{SDO} offen offset:{i*1024} lds", cb) for i in range(3)]
        def dma(st):
            def cb(t): tick[st] = t
            return self.dseq(wdma(st) + xdma(st, cb))
        self.slice_z2(SCOL)
        self.w_dma_addr(WD, T, 1376)
        p(f"s_mul_i32 s{SW1B}, s{SWV}, {16*2752}\ns_lshl_b32 s{SA}, s{SU0}, 4\ns_add_u32 s{SW1B}, s{SW1B}, s{SA}")
        p(f"s_mul_i32 s{SWL}, s{SWV}, 3072\ns_add_u32 s{SWL}, s{SWL}, 16384\ns_mov_b32 s{SW1+2}, {512*2752}")
        p(f"s_mov_b64 {sp(SW1)}, {sp(PWIN)}")
        npro = o.get("npro", 3)
        def cb0(t): tick[0] = t
        self.run(self.dseq(wdma(0, cb0)))
        if o.get("sst"): self.stamp(23)
        def setup():
            self.plain_read_addr(XR, SREG, T)
            self.w_tr_addr(WR, 16384, T)
            self.p(f"v_add_u32 {v(WR+1)}, 81920, {v(WR)}")
            self.wsp_setup(T)
            self.p(f"s_add_u32 s{SPB}, s{SREG}, 32768\ns_mov_b32 s{SPB+1}, s{SREG}\ns_add_u32 s{SPB+2}, s{SREG}, 8192\ns_add_u32 s{SPB+3}, s{SREG}, 16384\ns_add_u32 s{SPB+4}, s{SREG}, 24576")
            self.valid_masks()
        d = []
        for st in range(1, npro): d += dma(st)
        self.run(merge(self.cap(lambda: (self.common3(), setup())), d))
        def prefill(u0, u1):
            p(f"s_lshl_b32 s{SCB}, s{SRB}, 2\ns_add_u32 s{SCB}, s{SCB}, s{SWV}\ns_mul_i32 s{SCB}, s{SCB}, 45056\ns_lshl_b32 s{SA}, s{SU0}, 9\ns_add_u32 s{SCB}, s{SCB}, s{SA}\ns_add_u32 s{SCB}, s{SCB}, {PB}")
            for k in range(4): p(f"v_mov_b32 {v(176+k)}, -1")
            for u in range(6):
                if u == 4: p(f"s_add_u32 s{SCB}, s{SCB}, 4096")
                p.vmem(f"buffer_store_dwordx4 {v(176,4)}, {v(VL16 if u < 3 else 115)}, {srd(SWS)}, s{SCB} offen offset:{(u%4)*1024} sc1")
        self.pf2()
        self.epoch2()
        self.stamp(0)
        rt = {}
        def reads(n):
            st, ks = n // 4, n % 4; sl = st & 3; s = n & 1; ops = []
            def rb(): rt[(n, 'b')] = p.lds(f"ds_read_b128 {v(FB+4*s,4)}, {v(XR+ks)} offset:{sl*4096}")
            ops.append(rb)
            for mt in range(3):
                for a in range(2):
                    def ra(mt=mt, a=a):
                        rt[(n, mt)] = p.lds(f"ds_read_b64_tr_b16 {v(FA+12*s+4*mt+2*a,2)}, {v(WR+(sl>>1))} offset:{(sl&1)*40960+ks*3072+a*768+mt*64}")
                    ops.append(ra)
            return ops
        def mfmas(n):
            s = n & 1; ops = []
            for mt in range(3):
                def m(mt=mt):
                    p.wait(lg=rt[(n, mt)])
                    c = "0" if n == 0 else v(ACC + 16 * mt, 16)
                    p(f"{MF} {v(ACC+16*mt,16)}, {v(FA+12*s+4*mt,4)}, {v(FB+4*s,4)}, {c}")
                ops.append(m)
            return ops
        GX, GW, GU, GS, GT = 128, 144, 148, 156, 160
        gt = {}
        def gload():
            p(f"s_lshl_b32 s{SE}, s{SRB}, 2\ns_add_u32 s{SE}, s{SE}, s{SWV}\ns_lshl_b32 s{SE}, s{SE}, 3\ns_add_u32 s{SE}, s{SE}, s{SCOL}\ns_lshl_b32 s{SA}, s{SE}, 12")
            for r in range(4): p.vmem(f"buffer_load_dwordx4 {v(GX+4*r,4)}, {v(VL16)}, {srd(SX)}, s{SA} offen offset:{r*1024}")
            gt['t'] = p.vmem(f"global_load_dwordx4 {v(GW,4)}, {v(VL16)}, {sp(PGW)}")
        def gstore():
            p(f"s_lshl_b32 s{SA}, s{SE}, 4\ns_add_u32 s{SA}, s{SA}, {GATE}")
            p.vmem(f"buffer_store_dwordx4 {v(GS,4)}, {v(GT)}, {srd(SWS)}, s{SA} offen sc1")
        gops = [lambda: p.wait(vm=gt['t'])] + self.cap(lambda: self.gate(GX, GW, GU, GS, GT)) + [gstore]
        zm = o.get('zmode', 1)
        valu = {(28 if zm == 1 else 13): [gload]}
        def touch_u():
            p(f"v_lshlrev_b32 {v(170)}, 7, {v(VL)}\ns_lshr_b32 s{SB_}, s2, 3\ns_lshl_b32 s{SB_}, s{SB_}, 2\ns_add_u32 s{SB_}, s{SB_}, s{SWV}\ns_lshl_b32 s{SB_}, s{SB_}, 13")
            p(f"s_and_b32 s{SA}, s2, 7\ns_lshl_b32 s{SA}, s{SA}, 20\ns_add_u32 s{SA}, s{SA}, s{SB_}\ns_add_u32 s{SA}, s{SA}, {1<<19}")
            p.vmem(f"buffer_load_dword {v(171)}, {v(170)}, {srd(SWSP)}, s{SA} offen")
        def warm():
            p(f"v_lshlrev_b32 {v(170)}, 18, {v(VL)}\nv_lshlrev_b32 {v(172)}, 16, {v(VL)}\nv_lshlrev_b32 {v(173)}, 13, {v(VL)}")
            ls = [p.label("wm") for _ in range(4)]
            p(f"s_cmp_eq_u32 s{SWV}, 1\ns_cbranch_scc1 {ls[0]}\ns_cmp_eq_u32 s{SWV}, 2\ns_cbranch_scc1 {ls[1]}\ns_cmp_eq_u32 s{SWV}, 3\ns_cbranch_scc1 {ls[2]}")
            p(f"buffer_load_dword {v(171)}, {v(170)}, {srd(SWS)}, 0 offen sc1\ns_branch {ls[3]}")
            p.put(ls[0]); p(f"buffer_load_dword {v(171)}, {v(172)}, {srd(SOUT)}, 0 offen sc1\ns_branch {ls[3]}")
            p.put(ls[1]); p(f"buffer_load_dword {v(171)}, {v(173)}, {srd(SCRE)}, 0 offen\nbuffer_load_dword {v(171)}, {v(173)}, {srd(SCIM)}, 0 offen\ns_branch {ls[3]}")
            p.put(ls[2]); p(f"v_lshlrev_b32 {v(173)}, 14, {v(VL)}\nbuffer_load_dword {v(171)}, {v(173)}, {srd(SWOUT)}, 0 offen")
            p.put(ls[3])
        if o.get("warm"): valu[31] = [warm]
        def ztouch(part):
            if part == 0:
                p(f"s_lshr_b32 s{SB_}, s2, 3\ns_lshl_b32 s{SB_}, s{SB_}, 2\ns_add_u32 s{SB_}, s{SB_}, s{SWV}")
                p(f"s_and_b32 s{SA}, s2, 7\ns_lshl_b32 s{SPFP+1}, s{SB_}, 3\ns_add_u32 s{SPFP+1}, s{SPFP+1}, s{SA}")
                p(f"s_lshr_b32 s{SA}, s{SA}, 1\ns_lshl_b32 s{SA}, s{SA}, 21\ns_lshl_b32 s{SB_}, s{SB_}, 14\ns_add_u32 s{SPFP}, s{SA}, s{SB_}\ns_lshl_b32 s{SA}, s{SKH}, 11\ns_add_u32 s{SPFP}, s{SPFP}, s{SA}")
                p(f"v_lshrrev_b32 {v(173)}, 4, {v(VL)}\nv_lshlrev_b32 {v(173)}, 12, {v(173)}\nv_and_b32 {v(174)}, 15, {v(VL)}\nv_lshl_add_u32 {v(173)}, {v(174)}, 7, {v(173)}\nv_lshlrev_b32 {v(174)}, 7, {v(VL)}")
                if o.get("xl"):
                    p(f"s_and_b32 s{SA}, s2, 7\ns_lshl_b32 s{SA}, s{SA}, 20\ns_lshr_b32 s{SB_}, s{SB_}, 1\ns_add_u32 s{SPFP}, s{SA}, s{SB_}\nv_mov_b32 {v(173)}, {v(174)}")
                p.vmem(f"buffer_load_dword {v(175)}, {v(173)}, {srd(SWSP)}, s{SPFP} offen")
            if part == 1:
                p(f"s_add_u32 s{SPFP}, s{SPFP}, {1<<(19 if o.get('xl') else 20)}")
                p.vmem(f"buffer_load_dword {v(175)}, {v(173)}, {srd(SWSP)}, s{SPFP} offen")
            if part == 2:
                l = p.label("zt")
                p(f"s_lshr_b32 s{SB_}, s2, 3\ns_lshl_b32 s{SB_}, s{SB_}, 2\ns_add_u32 s{SB_}, s{SB_}, s{SWV}\ns_and_b32 s{SA}, s2, 7\ns_lshl_b32 s{SF}, s{SB_}, 3\ns_add_u32 s{SF}, s{SF}, s{SA}")
                p(f"s_cmp_ge_u32 s{SF}, 428\ns_cbranch_scc1 {l}")
                p(f"s_cmp_lt_u32 s{SF}, 128\ns_cselect_b64 {sp(SSTMP)}, {sp(SCRE)}, {sp(SCIM)}\ns_and_b32 s{SA}, s{SF}, 127")
                p(f"s_sub_u32 s{SB_}, s{SF}, 256\ns_cmp_ge_u32 s{SF}, 256\ns_cselect_b64 {sp(SSTMP)}, {sp(SWOUT)}, {sp(SSTMP)}\ns_cselect_b32 s{SA}, s{SB_}, s{SA}")
                p(f"s_lshl_b32 s{SA}, s{SA}, 12\nv_and_b32 {v(172)}, 31, {v(VL)}\nv_lshl_add_u32 {v(172)}, {v(172)}, 7, s{SA}")
                p(f"global_load_dword {v(171)}, {v(172)}, {sp(SSTMP)}")
                p.put(l)
            if part == 3:
                p(f"s_lshr_b32 s{SB_}, s2, 3\ns_lshl_b32 s{SB_}, s{SB_}, 2\ns_add_u32 s{SB_}, s{SB_}, s{SWV}\ns_lshl_b32 s{SA}, s{SB_}, 13\nv_lshlrev_b32 {v(172)}, 7, {v(VL)}\ns_mul_i32 s{SB_}, s{SB_}, 11008")
                p.vmem(f"buffer_load_dword {v(171)}, {v(172)}, {srd(SWOUT)}, s{SB_} offen")
                p(f"s_add_u32 s{SB_}, s{SB_}, 2816")
                p.vmem(f"buffer_load_dword {v(171)}, {v(172)}, {srd(SWOUT)}, s{SB_} offen")
                if o.get("ct2") == 2:
                    p.vmem(f"buffer_load_dword {v(171)}, {v(172)}, {srd(SCRE)}, s{SA} offen")
                    p.vmem(f"buffer_load_dword {v(171)}, {v(172)}, {srd(SCIM)}, s{SA} offen")
            if part == 5:
                l = p.label("zh")
                p(f"s_lshr_b32 s{SB_}, s2, 3\ns_lshl_b32 s{SB_}, s{SB_}, 2\ns_add_u32 s{SB_}, s{SB_}, s{SWV}\ns_cmp_ge_u32 s{SB_}, 27\ns_cbranch_scc1 {l}")
                p(f"s_cmp_lt_u32 s{SB_}, 8\ns_cselect_b64 {sp(SSTMP)}, {sp(SCRE)}, {sp(SCIM)}\ns_and_b32 s{SA}, s{SB_}, 7\ns_sub_u32 s{SF}, s{SB_}, 16")
                p(f"s_cmp_ge_u32 s{SB_}, 16\ns_cselect_b64 {sp(SSTMP)}, {sp(SWOUT)}, {sp(SSTMP)}\ns_cselect_b32 s{SA}, s{SF}, s{SA}\ns_lshl_b32 s{SA}, s{SA}, 6")
                p(f"v_add_u32 {v(172)}, s{SA}, {v(VL)}\nv_min_u32 {v(172)}, 687, {v(172)}\nv_lshlrev_b32 {v(172)}, 10, {v(172)}")
                p(f"global_load_dword {v(171)}, {v(172)}, {sp(SSTMP)} offset:384")
                p.put(l)
            if part == 4:
                p(f"s_bfe_u32 s{SB_}, s2, 0x10006\ns_lshl_b32 s{SB_}, s{SB_}, 2\ns_add_u32 s{SB_}, s{SB_}, s{SWV}\ns_mul_i32 s{SB_}, s{SB_}, {86*1024}\ns_lshl_b32 s{SA}, s{SJ}, 7\ns_add_u32 s{SB_}, s{SB_}, s{SA}\nv_lshlrev_b32 {v(172)}, 10, {v(VL)}")
                p.vmem(f"buffer_load_dword {v(171)}, {v(172)}, {srd(SWOUT)}, s{SB_} offen")
                p(f"s_add_u32 s{SB_}, s{SB_}, {22*1024}")
                p.vmem(f"buffer_load_dword {v(171)}, {v(172)}, {srd(SWOUT)}, s{SB_} offen")
        if o.get("touch", 1) == 2:
            if o.get("wt"): valu.setdefault(o["wt"], []).append(lambda: ztouch(3))
            for k in range(3): valu.setdefault(o.get(f"zs{k}", [0, 0, 0][k]), []).append(lambda k=k: ztouch(k))
        else: self.paced(valu, 174, 175, o.get("zt0", 6), o.get("zdt", 6))
        self.gemm_loop(4, reads, mfmas, dma, tick, 2, npro, {o.get('ze0', 5): lambda: self.wsp_dma(0), o.get('ze1', 6): lambda: self.wsp_dma(1)} if zm == 1 else {}, valu)
        self.stamp(1)
        MA, MB = SK + 2, SK + 4
        GR, VLO = 72, 80
        MUL = 126
        def seg1b():
            p = self.p
            S = [64, 66, 68, 70]
            for k in range(4): p(f"v_pk_add_f32 {v(S[k],2)}, {v(ACC+2*k,2)}, {v(ACC+8+2*k,2)}")
            for i in range(8, 24): p(f"v_pk_add_f32 {v(S[i&3],2)}, {v(S[i&3],2)}, {v(ACC+2*i,2)}")
            p(f"v_pk_add_f32 {v(S[0],2)}, {v(S[0],2)}, {v(S[1],2)}\nv_pk_add_f32 {v(S[2],2)}, {v(S[2],2)}, {v(S[3],2)}")
            p(f"v_mov_b32 {v(GR+1)}, s{ST_T}\nv_pk_add_f32 {v(S[0],2)}, {v(S[0],2)}, {v(S[2],2)}\nv_mov_b32 {v(GR+3)}, s{ST_T}\nv_add_f32 {v(GR)}, {v(S[0])}, {v(S[0]+1)}")
            p(f"v_cmp_gt_u32 vcc, 32, {v(VL)}\nv_mov_b32 {v(S[0])}, {v(GR)}")
            p(f"s_lshl_b32 s{SC}, s{SRB}, 2\ns_add_u32 s{SC}, s{SC}, s{SWV}")
            p(f"v_permlane32_swap_b32 {v(GR)}, {v(S[0])}\nv_cndmask_b32 {v(VLO)}, {v(VOOB)}, {v(VL16)}, vcc\nv_add_f32 {v(GR)}, {v(GR)}, {v(S[0])}")
            p(f"s_lshl_b32 s{SD}, s{SC}, 12\ns_add_u32 s{SD}, s{SD}, {ST}")
            p(f"v_mul_f32 {v(MUL)}, s{SK+6}, {v(GR)}")
            p(f"s_lshl_b32 s{SA}, s{SCOL}, 9\ns_add_u32 s{SA}, s{SA}, s{SD}")
            for i in range(24): p(f"v_pk_add_f32 {v(ACC+2*i,2)}, {v(ACC+2*i,2)}, {v(MUL,2)} op_sel_hi:[1,0] neg_lo:[0,1] neg_hi:[0,1]")
            for i in range(4): p(f"v_pk_mul_f32 {v(S[i],2)}, {v(ACC+2*i,2)}, {v(ACC+2*i,2)}")
            for i in range(4, 24): p(f"v_pk_fma_f32 {v(S[i&3],2)}, {v(ACC+2*i,2)}, {v(ACC+2*i,2)}, {v(S[i&3],2)}")
            p(f"v_mul_f32 {v(76)}, s{SK+4}, {v(MUL)}")
            p(f"v_pk_add_f32 {v(S[0],2)}, {v(S[0],2)}, {v(S[1],2)}\nv_pk_add_f32 {v(S[2],2)}, {v(S[2],2)}, {v(S[3],2)}\nv_pk_add_f32 {v(S[0],2)}, {v(S[0],2)}, {v(S[2],2)}")
            p(f"v_add_f32 {v(GR+2)}, {v(S[0])}, {v(S[0]+1)}")
            self.xhalf_sum(GR + 2, S[0])
            p(f"v_fma_f32 {v(GR+2)}, -{v(76)}, {v(MUL)}, {v(GR+2)}")
        seg1 = self.cap(lambda: self.gelu_many([ACC + 2 * i for i in range(24)], [64, 68, 72, 76]))
        h = len(seg1) // 5
        f1 = self.wsp_dma(2) + [lambda: p("s_barrier")]
        f2 = self.wsp_dma(3) + self.wsp_dma(4)
        if zm == 1: self.run(merge(seg1[:h], f1) + merge(seg1[h:], f2))
        else:
            zg2 = o.get("zg2", 0); h2_ = len(seg1) * o.get("zg2at", 60) // 100
            fz = (self.wsp_dma(0) if zg2 >= 1 else []) + (self.wsp_dma(1) if zg2 >= 2 else [])
            self.run(seg1[:h] + [lambda: p("s_barrier")] + seg1[h:h2_] + merge(seg1[h2_:], fz))
        seg1b()
        p.vmem(f"buffer_store_dwordx4 {v(GR,4)}, {v(VLO)}, {srd(SWS)}, s{SA} offen sc1")
        self.stamp(2)
        lgw = lambda: p.wait(lg=p.lg - 1)
        Q0, Q1, QA, QB = 112, 113, 114, 115
        MN, VR, N3, I3, TM = 80, 81, 82, 83, 84
        def misc():
            p = self.p
            self.g_early(120)
            p(f"v_lshrrev_b32 {v(Q1)}, 5, {v(VL)}\nv_lshlrev_b32 {v(Q1)}, 6, {v(Q1)}\nv_xor_b32 {v(Q0)}, {v(VL16)}, {v(Q1)}\nv_xor_b32 {v(Q1)}, 128, {v(Q0)}")
            p(f"v_add_u32 {v(Q0)}, s{SPB+4}, {v(Q0)}\nv_add_u32 {v(Q1)}, s{SPB+4}, {v(Q1)}")
            self.unit_tr_addr(124, SPB + 4, 120, False)
            p(f"s_lshl_b32 s{SA}, s{SNU}, 3\ns_sub_i32 s{SA}, s{SA}, 64")
            p(f"v_and_b32 {v(QB)}, 31, {v(VL)}\nv_cmp_gt_i32 vcc, s{SA}, {v(QB)}\nv_add_u32 {v(QB)}, 4096, {v(VL16)}\nv_cndmask_b32 {v(QA)}, {v(VOOB)}, {v(QB)}, vcc")
            p.atom(f"s_cmp_gt_u32 s{SNU}, 4\ns_cselect_b64 vcc, -1, 0")
            p(f"v_cndmask_b32 {v(QB)}, {v(VOOB)}, {v(VL16)}, vcc")
            p(f"s_lshl_b32 s{SA}, s{SCOL}, 6\ns_add_u32 s{SC}, s{SA}, s{SC}\ns_mul_i32 s{SE}, s{SC}, 6144")
            self.flag_prep(118)
            p(f"v_cmp_gt_u32 vcc, 32, {v(VL)}\nv_mov_b32 {v(N3)}, {f2u(32.0)}\nv_mov_b32 {v(TM)}, {f2u(96.0)}\nv_mov_b32 {v(I3)}, {f2u(1/32)}\nv_mov_b32 {v(TM+1)}, {f2u(1/96)}")
            p(f"v_mov_b32 {v(152)}, {f2u(80.0)}\nv_mov_b32 {v(153)}, {f2u(1/80)}")
            p(f"v_cndmask_b32 {v(N3)}, {v(N3)}, {v(TM)}, vcc\nv_cndmask_b32 {v(I3)}, {v(I3)}, {v(TM+1)}, vcc\nv_cndmask_b32 {v(152)}, {v(TM)}, {v(152)}, vcc\nv_cndmask_b32 {v(153)}, {v(TM+1)}, {v(153)}, vcc")
        za = o.get("za", 1)
        f = self.wsp_read(0) + self.wsp_read(1) + [lgw]
        for st in range(5, 5 + za): f += self.wsp_dma(st)
        zs = o.get('zsched', 0)
        zw = o.get('zw', 0)
        if zm == 2: f = self.wsp_dma(zg2) + self.wsp_dma(zg2 + 1) + (self.wsp_dma(2) if zs in (1, 2) else [])
        if zw: f = self.wsp_dma(0) if zw in (1, 3) else []
        self.run(merge(gops + self.cap(misc), f))
        self.stamp(3)
        SG = 64
        for q in range(4):
            ts = p.vmem(f"buffer_load_dwordx4 {v(SG+4*q,4)}, {v(VL16)}, {srd(SWS)}, s{SD} offen offset:{q*1024} sc1")
        if zm == 1:
            for st in range(5 + za, 7): self.run(self.wsp_dma(st))
        elif zw: self.run((self.wsp_dma(1) if zw in (1, 3) else self.wsp_dma(0)))
        else: self.run(self.wsp_dma(3) + self.wsp_read(0) if zs in (1, 2) else {0: self.wsp_dma(2), 1: self.wsp_dma(3), 2: self.wsp_read(0) + self.wsp_read(1)}[zg2])
        l = p.label("sp"); dl = p.label("sd")
        p.wait(vm=ts)
        p(f"s_mov_b32 s{SSPIN}, 0")
        p.put(l)
        X0 = 116
        p(f"v_xor_b32 {v(MN)}, s{ST_T}, {v(SG+1)}\nv_xor_b32 {v(VR)}, s{ST_T}, {v(SG+3)}")
        for r in [5, 9, 13]:
            p(f"v_xor_b32 {v(X0)}, s{ST_T}, {v(SG+r)}\nv_xor_b32 {v(X0+1)}, s{ST_T}, {v(SG+r+2)}\nv_or3_b32 {v(MN)}, {v(MN)}, {v(X0)}, {v(X0+1)}")
        p(f"v_or_b32 {v(MN)}, {v(MN)}, {v(VR)}")
        p(f"v_cmp_ne_u32 vcc, 0, {v(MN)}\ns_cmp_eq_u64 vcc, 0\ns_cbranch_scc1 {dl}")
        for q in range(4):
            p(f"buffer_load_dwordx4 {v(SG+4*q,4)}, {v(VL16)}, {srd(SWS)}, s{SD} offen offset:{q*1024} sc1")
        p("s_waitcnt vmcnt(0)")
        p(f"s_add_u32 s{SSPIN}, s{SSPIN}, 1\ns_cmp_lt_u32 s{SSPIN}, {SPIN}\ns_cbranch_scc1 {l}")
        p.put(dl)
        self.stamp(4)
        p(f"v_add_f32 {v(MN)}, {v(SG)}, {v(SG+4)}\nv_add_f32 {v(TM+2)}, {v(SG+8)}, {v(SG+12)}\nv_add_f32 {v(MN)}, {v(MN)}, {v(TM+2)}")
        p(f"v_mov_b32 {v(TM+3)}, {v(MN)}\nv_add_f32 {v(VR)}, {v(SG+2)}, {v(SG+6)}\nv_add_f32 {v(TM+2)}, {v(SG+10)}, {v(SG+14)}")
        p(f"v_permlane32_swap_b32 {v(MN)}, {v(TM+3)}\nv_add_f32 {v(VR)}, {v(VR)}, {v(TM+2)}\nv_add_f32 {v(MN)}, {v(MN)}, {v(TM+3)}")
        p(f"v_mul_f32 {v(MN)}, {f2u(1/688)}, {v(MN)}")
        for q in range(4):
            n_, i_ = {0: (152, 153), 3: (N3, I3)}.get(q, (TM, TM + 1))
            p(f"v_fma_f32 {v(TM+2)}, {v(SG+4*q)}, {v(i_)}, -{v(MN)}\nv_mul_f32 {v(TM+2)}, {v(TM+2)}, {v(TM+2)}\nv_fmac_f32 {v(VR)}, {v(TM+2)}, {v(n_)}")
        self.xhalf_sum(VR, TM)
        p(f"v_mov_b32 {v(TM)}, {f2u(1e-5)}\nv_fmac_f32 {v(TM)}, {f2u(1/688)}, {v(VR)}\nv_rsq_f32 {v(VR)}, {v(TM)}")
        p(f"s_add_u32 s{SA}, s{SE}, {Z2N}\ns_add_u32 s{SB_}, s{SA}, 4096")
        p(f"v_sub_f32 {v(MN)}, {v(MN)}, {v(MUL)}\nv_mul_f32 {v(MN)}, {v(MN)}, {v(VR)}")
        ZP = 88
        FP_ = {(0, 0): 0, (0, 1): 1, (1, 0): 2, (1, 1): 3, (0, 2): 4, (1, 2): 5}; zr = {}
        def zst(fi):
            p.wait(lg=zr[fi])
            return p.vmem(f"buffer_store_dwordx4 {v(128+4*fi,4)}, {v([VL16, QB, VL16, QB, QA, QA][fi])}, {srd(SWS)}, s{SA} offen offset:{(fi%4)*1024} sc1")
        for u in range(6):
            mt, q = u >> 1, u & 1
            R4 = range(4 * u, 4 * u + 4)
            for i in R4: p(f"v_pk_fma_f32 {v(ACC+2*i,2)}, {v(ACC+2*i,2)}, {v(MN,2)}, {v(MN,2)} op_sel:[0,1,0] op_sel_hi:[1,1,0] neg_lo:[0,0,1] neg_hi:[0,0,1]")
            for i in R4: p(f"v_cvt_pk_bf16_f32 {v(ZP+i)}, {v(ACC+2*i)}, {v(ACC+2*i+1)}")
            p.lds(f"ds_write_b128 {v(Q0+q)}, {v(ZP+4*u,4)} offset:{mt*2048+q*1024}")
            if q == 1:
                for ks in range(2):
                    fi = FP_[(ks, mt)]
                    for a in range(2): zr[fi] = p.lds(f"ds_read_b64_tr_b16 {v(128+4*fi+2*a,2)}, {v(124+a)} offset:{mt*2048+ks*256}")
                if mt >= 1: zst(FP_[(0, mt - 1)]); zst(FP_[(1, mt - 1)])
        p(f"s_lshl_b32 s{SE}, s{SC}, 7\ns_add_u32 s{SE}, s{SE}, {ZF}")
        zst(4); t = zst(5)
        if zs:
            if zs >= 3:
                self.run(merge(self.wsp_dma(3) + (self.wsp_dma(4) if zs == 4 else []), self.wsp_read(0) + self.wsp_read(1) + self.wsp_read(2)))
                p.wait(vm=t)
                self.flag(SE, 118)
                self.run(([] if zs == 4 else self.wsp_dma(4)) + [lgw] + self.wsp_dma(5) + self.wsp_dma(6) + self.wsp_dma(7))
            else:
                self.run(merge(self.wsp_dma(4) + (self.wsp_dma(5) if zs > 1 else []), self.wsp_read(1) + self.wsp_read(2)))
                p.wait(vm=t)
                self.flag(SE, 118)
                self.run([lgw] + ([] if zs > 1 else self.wsp_dma(5)) + self.wsp_dma(6) + self.wsp_dma(7))
            for st in range(3, 6): self.run(self.wsp_read(st))
            self.g_poll_issue()
            prefill(0, 6)
            for st in range(6, 8): self.run(self.wsp_read(st))
            p(f"s_add_u32 s{SLATE}, s{SE}, {ZF2-ZF}")
            self.stamp(5)
            return
        if zw:
            k0 = 2 if zw in (1, 3) else 1
            self.run((self.wsp_dma(k0) if zw < 3 else []) + self.wsp_read(0))
            rest = []
            for st in range(k0 + (1 if zw < 3 else 0), 5): rest += self.wsp_dma(st)
            rest += self.wsp_read(1) + self.wsp_read(2) + [lgw] + self.wsp_dma(5) + self.wsp_dma(6)
        elif zg2 == 0:
            self.run(merge(self.wsp_dma(3), self.wsp_read(0) + self.wsp_read(1) + self.wsp_read(2)))
            rest = self.wsp_dma(4) + [lgw] + self.wsp_dma(5) + self.wsp_dma(6)
        elif zg2 == 1:
            self.run(merge(self.wsp_dma(4), self.wsp_read(0) + self.wsp_read(1) + self.wsp_read(2)))
            rest = [lgw] + self.wsp_dma(5) + self.wsp_dma(6)
        else:
            self.run(merge(self.wsp_dma(4), self.wsp_read(2)))
            rest = [lgw] + self.wsp_dma(5) + self.wsp_dma(6)
        p.wait(vm=t)
        self.flag(SE, 118)
        prefill(0, 6); tpf = p.vm - 1
        self.run(rest)
        p.wait(vm=tpf)
        p(f"s_add_u32 s{SE}, s{SE}, {ZF2-ZF}")
        self.flag(SE, 118)
        self.run(self.wsp_dma(7))
        if o.get("ct2") in (2, 3): ztouch(3)
        if o.get("ct2") == 5: ztouch(5)
        for st in range(3, 8): self.run(self.wsp_read(st))
        self.g_poll_issue()
        p(f"s_mov_b32 s{SLATE}, 0")
        self.stamp(5)

    def phase_u(self):
        p = self.p; o = self.o
        ACC, ZA, FA, FB, FW, FX = 16, 80, 128, 144, 160, 184
        XR, BR, X1R, WR, XD, BD, WD, T = 192, 196, 200, 204, 206, 210, 214, 60
        p.c("==== phase A: U ====")
        p.put(self.LU)
        WT, WP = SK + 8, SK + 9
        p(f"v_lshrrev_b32 {v(T)}, 5, {v(VL)}\nv_lshlrev_b32 {v(T)}, 15, {v(T)}")
        p(f"v_bfe_u32 {v(T+1)}, {v(VL)}, 3, 1\nv_lshl_add_u32 {v(T)}, {v(T+1)}, 14, {v(T)}")
        p(f"v_bfe_u32 {v(T+1)}, {v(VL)}, 4, 1\nv_lshl_add_u32 {v(T)}, {v(T+1)}, 10, {v(T)}")
        self.plain_dma_addr2(XD, T, T + 1, 2048)
        p(f"s_lshr_b32 s{WP}, s{SWV}, 1\ns_and_b32 s{WT}, s{SWV}, 1\ns_lshl_b32 s{SA}, s{WT}, 5")
        for i in range(4): p(f"v_xor_b32 {v(XD+i)}, s{SA}, {v(XD+i)}")
        p(f"s_lshl_b32 s{SD}, s{WP}, 16\ns_add_u32 s{SXB}, s{SXB}, s{SD}\ns_lshl_b32 s{SD}, s{WT}, 13\ns_add_u32 s{SXB}, s{SXB}, s{SD}\ns_lshl_b32 s{SXL}, s{SWV}, 12\ns_mov_b32 m0, s{SXL}")
        p.wait_lg_all()
        so = self.rot0(SXB, 128)
        for i in range(4): p.vmem(f"buffer_load_dwordx4 {v(XD+i)}, {srd(SX)}, s{so} offen offset:{i*1024} lds")
        self.common2()
        self.plain_dma_addr(BD, 1024, T)
        p(f"s_lshl_b32 s{SW1B}, s{SCOL}, 16\ns_lshl_b32 s{SD}, s{WT}, 15\ns_add_u32 s{SW1B}, s{SW1B}, s{SD}\ns_mov_b32 s{SW1+2}, 524288\ns_add_u32 m0, s{SXL}, 49152")
        p(f"s_cmp_eq_u32 s{WP}, 0\ns_cselect_b64 {sp(SW1)}, {sp(PBRE)}, {sp(PBIM)}")
        so = self.rot0(SW1B, 128)
        for i in range(4): p.vmem(f"buffer_load_dwordx4 {v(BD+i)}, {srd(SW1)}, s{so} offen offset:{i*1024} lds")
        p(f"s_cmp_eq_u32 s{SCOL}, 7\ns_cselect_b32 s{SNU}, 2, 12")
        self.w_dma_addr(WD, T, 0)
        SWIB = SCB
        p(f"s_mul_i32 s{SWIB}, s{SWV}, {16*2752}\ns_mul_i32 s{SA}, s{SCOL}, 192\ns_add_u32 s{SWIB}, s{SWIB}, s{SA}")
        p(f"s_mul_i32 s{SWL}, s{SWV}, 3072\ns_add_u32 s{SWL}, s{SWL}, 98304\ns_mov_b32 m0, s{SWL}\ns_mov_b32 s{PWIN+2}, {512*2752}\ns_mov_b32 s{PWIN+3}, 0x20000")
        so = self.rot0(SWIB, 64 * 2752)
        for i in range(3): t0_ = p.vmem(f"buffer_load_dwordx4 {v(WD+i)}, {srd(PWIN)}, s{so} offen offset:{i*1024} lds")
        if o.get("sst"): self.stamp(23)
        PR = 228
        tick = {}
        def dma(st):
            sl = st % 3; items = []
            def cb(t): tick[st] = t
            for i in range(3):
                items.append(((SWL, sl * 12288) if i == 0 else None, self.rot(SWIB, st, 64 * 2752) if i == 0 else None,
                              f"buffer_load_dwordx4 {v(WD+i)}, {srd(PWIN)}, s{SDO} offen offset:{i*1024} lds", None))
            for (vd, sr, sb, lb) in [(XD, SX, SXB, 0), (BD, SW1, SW1B, 49152)]:
                for i in range(4):
                    items.append(((SXL, lb + sl * 16384) if i == 0 else None, self.rot(sb, st, 128) if i == 0 else None,
                                  f"buffer_load_dwordx4 {v(vd+i)}, {srd(sr)}, s{SDO} offen offset:{i*1024} lds", cb))
            return self.dseq(items)
        tick[0] = t0_
        npro = o.get("npro_u", 2)
        def setup():
            p = self.p
            p(f"s_mul_i32 s{SREG}, s{SWV}, 40960\ns_lshl_b32 s{SA}, s{WT}, 13")
            self.plain_read_addr(XR, SA, T)
            p(f"s_lshl_b32 s{SA}, s{WP}, 12\ns_add_u32 s{SA}, s{SA}, 49152")
            self.plain_read_addr(BR, SA, T)
            self.w_tr_addr(WR, 98304, T)
            p(f"v_bfe_u32 {v(T)}, {v(VL)}, 3, 1\nv_lshlrev_b32 {v(T+1)}, 12, {v(T)}\nv_xor_b32 {v(T)}, s{WT}, {v(T)}\nv_lshlrev_b32 {v(T)}, 1, {v(T)}")
            p(f"v_bfe_u32 {v(T+2)}, {v(VL)}, 1, 2\nv_lshl_add_u32 {v(T+1)}, {v(T+2)}, 10, {v(T+1)}")
            p(f"v_and_b32 {v(T+2)}, 1, {v(T+2)}\nv_lshl_add_u32 {v(T)}, {v(T+2)}, 2, {v(T)}")
            p(f"v_and_b32 {v(T+2)}, 1, {v(VL)}\nv_lshl_add_u32 {v(T+1)}, {v(T+2)}, 8, {v(T+1)}\nv_or_b32 {v(T)}, {v(T)}, {v(T+2)}")
            p(f"v_bfe_u32 {v(T+2)}, {v(VL)}, 4, 1\nv_lshl_add_u32 {v(T+1)}, {v(T+2)}, 7, {v(T+1)}")
            p(f"s_lshl_b32 s{SA}, s{WP}, 13\ns_lshl_b32 s{SB_}, s{WT}, 9\ns_add_u32 s{SA}, s{SA}, s{SB_}\nv_add_u32 {v(T+1)}, s{SA}, {v(T+1)}")
            p(f"v_lshrrev_b32 {v(T+2)}, 5, {v(VL)}\nv_xor_b32 {v(T)}, {v(T)}, {v(T+2)}\nv_lshlrev_b32 {v(T)}, 4, {v(T)}")
            for ks in range(4): p(f"v_xor_b32 {v(X1R+ks)}, {32*ks}, {v(T)}\nv_add_u32 {v(X1R+ks)}, {v(X1R+ks)}, {v(T+1)}")
            self.wsp_setup(T)
            p(f"s_lshl_b32 s{SPB+1}, s{WT}, 13\ns_mul_i32 s{SA}, s{WP}, 49152\ns_add_u32 s{SPB+1}, s{SPB+1}, s{SA}\ns_add_u32 s{SPB}, s{SPB+1}, 32768\ns_add_u32 s{SPB+2}, s{SPB+1}, 16384")
            p(f"s_lshl_b32 s{SA}, s{SWV}, 13\ns_add_u32 s{SPB+3}, s{SA}, {13*8192}\ns_add_u32 s{SPB+4}, s{SA}, {17*8192}")
            p.atom(f"s_cmp_eq_u32 s{SWV}, 3\ns_cselect_b32 s{SPB+4}, {12*8192}, s{SPB+4}")
        self.run(merge(self.cap(lambda: (self.common3(), setup())), (dma(1) if npro > 1 else []) + (dma(2) if npro > 2 else [])))
        p(f"s_lshl_b32 s{SD}, s{SRB}, 1\ns_add_u32 s{SD}, s{SD}, s{WT}")
        p(f"s_lshl_b32 s{SA}, s{SCOL}, 1\ns_add_u32 s{SA}, s{SA}, s{WP}")
        p(f"s_lshl_b32 s{SE}, s{SD}, 4\ns_add_u32 s{SE}, s{SE}, s{SA}")
        p(f"s_lshl_b32 s{SA}, s{SA}, 5\nv_and_b32 {v(T)}, 31, {v(VL)}\nv_add_lshl_u32 {v(T)}, {v(T)}, s{SA}, 1")
        p.wait_lg_all()
        p.vmem(f"global_load_ushort {v(PR)}, {v(T)}, {sp(PLRE)}")
        p.vmem(f"global_load_ushort {v(PR+1)}, {v(T)}, {sp(PLIM)}")
        tp = p.vmem(f"global_load_ushort {v(PR+2)}, {v(T)}, {sp(PLDT)}")
        LB, CF, L16, L128, L256, LQ0, LQ1 = 218, 220, 222, 224, 226, 228, 230
        X0, X1, X2, X3 = 232, 233, 234, 235
        L32, L64 = 236, 238
        def csq(d, s):
            p = self.p
            p(f"v_mul_f32 {v(X0)}, {v(s+1)}, {v(s+1)}\nv_add_f32 {v(X1)}, {v(s)}, {v(s)}")
            p(f"v_mul_f32 {v(d+1)}, {v(X1)}, {v(s+1)}\nv_fma_f32 {v(d)}, {v(s)}, {v(s)}, -{v(X0)}")
        def cmul(d, a, b):
            p = self.p
            p(f"v_mul_f32 {v(X0)}, {v(a+1)}, {v(b+1)}\nv_mul_f32 {v(X1)}, {v(a+1)}, {v(b)}")
            p(f"v_fma_f32 {v(X0)}, {v(a)}, {v(b)}, -{v(X0)}\nv_fma_f32 {v(d+1)}, {v(a)}, {v(b+1)}, {v(X1)}\nv_mov_b32 {v(d)}, {v(X0)}")
        def cfma(d, a, b, c):
            p = self.p
            p(f"v_fma_f32 {v(X0)}, {v(a)}, {v(b)}, {v(c)}\nv_fma_f32 {v(X1)}, {v(a)}, {v(b+1)}, {v(c+1)}")
            p(f"v_fma_f32 {v(X0)}, -{v(a+1)}, {v(b+1)}, {v(X0)}\nv_fma_f32 {v(d+1)}, {v(a+1)}, {v(b)}, {v(X1)}\nv_mov_b32 {v(d)}, {v(X0)}")
        def params():
            p = self.p
            p(f"v_lshlrev_b32 {v(PR)}, 16, {v(PR)}\nv_lshlrev_b32 {v(PR+1)}, 16, {v(PR+1)}\nv_lshlrev_b32 {v(PR+2)}, 16, {v(PR+2)}")
            p(f"v_mul_f32 {v(X0)}, {f2u(LOG2E)}, {v(PR+2)}\nv_exp_f32 {v(X0)}, {v(X0)}"); self.rnd(X0, X0)
            p(f"v_mul_f32 {v(X1)}, {v(X0)}, {v(PR)}\nv_mul_f32 {v(X2)}, {v(X0)}, {v(PR+1)}")
            p(f"v_mul_f32 {v(X1)}, {f2u(LOG2E)}, {v(X1)}\nv_exp_f32 {v(X1)}, {v(X1)}")
            p(f"v_mul_f32 {v(X2)}, {f2u(1/(2*math.pi))}, {v(X2)}\nv_fract_f32 {v(X2)}, {v(X2)}")
            p(f"v_cos_f32 {v(X3)}, {v(X2)}\nv_sin_f32 {v(X2)}, {v(X2)}")
            p(f"v_mul_f32 {v(X0)}, {v(PR)}, {v(PR)}")
            p(f"v_mul_f32 {v(LB)}, {v(X1)}, {v(X3)}\nv_mul_f32 {v(LB+1)}, {v(X1)}, {v(X2)}")
            p(f"v_fmac_f32 {v(X0)}, {v(PR+1)}, {v(PR+1)}\nv_rcp_f32 {v(X0)}, {v(X0)}")
            p(f"v_add_f32 {v(X1)}, -1.0, {v(LB)}\nv_add_f32 {v(X0)}, {v(X0)}, {v(X0)}")
            p(f"v_mul_f32 {v(X2)}, {v(X1)}, {v(PR)}\nv_fmac_f32 {v(X2)}, {v(LB+1)}, {v(PR+1)}\nv_mul_f32 {v(CF)}, {v(X2)}, {v(X0)}")
            p(f"v_mul_f32 {v(X2)}, {v(LB+1)}, {v(PR)}\nv_fma_f32 {v(X2)}, -{v(X1)}, {v(PR+1)}, {v(X2)}\nv_mul_f32 {v(CF+1)}, {v(X2)}, {v(X0)}")
            csq(L16, LB); csq(L16, L16); csq(L16, L16); csq(L16, L16)
            csq(L32, L16); csq(L64, L32); csq(L128, L64); csq(L256, L128)
            p.atom(f"s_cmp_eq_u32 s{WT}, 0\ns_cselect_b64 vcc, -1, 0")
            p(f"v_cndmask_b32 {v(L64)}, {v(L64)}, 1.0, vcc\nv_cndmask_b32 {v(L64+1)}, {v(L64+1)}, 0, vcc")
            p(f"v_cmp_gt_u32 vcc, 32, {v(VL)}\nv_cndmask_b32 {v(LQ0)}, {v(L32)}, 1.0, vcc\nv_cndmask_b32 {v(LQ0+1)}, {v(L32+1)}, 0, vcc")
            cmul(LQ0, LQ0, L64); cmul(LQ1, LQ0, L16)
        self.pf2()
        self.epoch2()
        self.stamp(0)
        pops = [lambda: p.wait(vm=tp)] + self.cap(params)
        valu = {}
        q = (len(pops) + 15) // 16
        for i in range(16): valu[8 + i] = pops[i * q:(i + 1) * q]
        def utouch():
            p(f"s_lshr_b32 s{SB_}, s2, 3\ns_lshl_b32 s{SB_}, s{SB_}, 2\ns_add_u32 s{SB_}, s{SB_}, s{SWV}\ns_lshl_b32 s{SB_}, s{SB_}, 14")
            p(f"s_and_b32 s{SA}, s2, 6\ns_lshl_b32 s{SA}, s{SA}, 20\ns_add_u32 s{SB_}, s{SB_}, s{SA}\ns_lshl_b32 s{SA}, s{SKH}, 11\ns_add_u32 s{SB_}, s{SB_}, s{SA}")
            p(f"v_lshrrev_b32 {v(217)}, 4, {v(VL)}\nv_lshlrev_b32 {v(217)}, 12, {v(217)}\nv_and_b32 {v(205)}, 15, {v(VL)}\nv_lshl_add_u32 {v(217)}, {v(205)}, 7, {v(217)}")
            p.vmem(f"buffer_load_dword {v(205)}, {v(217)}, {srd(SWSP)}, s{SB_} offen")
        if o.get("utch"): valu.setdefault(o["utch"], []).append(utouch)
        rt = {}
        def reads(n):
            st, ks = n // 4, n % 4; sl = st % 3; s = n & 1; ops = []
            for k in range(2):
                def ra(k=k): rt[(n, 'a', k)] = p.lds(f"ds_read_b128 {v(FA+8*s+4*k,4)}, {v(XR+(ks^k))} offset:{sl*16384+k*4096}")
                def rb(k=k): rt[(n, 'b', k)] = p.lds(f"ds_read_b128 {v(FB+8*s+4*k,4)}, {v(BR+ks)} offset:{sl*16384+k*8192}")
                ops += [ra, rb]
            def rx(): p.lds(f"ds_read_b128 {v(FX+4*s,4)}, {v(X1R+ks)} offset:{sl*16384}")
            ops.append(rx)
            for mt in range(3):
                for a in range(2):
                    def rw(mt=mt, a=a):
                        rt[(n, 'w', mt)] = p.lds(f"ds_read_b64_tr_b16 {v(FW+12*s+4*mt+2*a,2)}, {v(WR)} offset:{sl*12288+ks*3072+a*768+mt*64}")
                    ops.append(rw)
            return ops
        def mfmas(n):
            s = n & 1; ops = []
            for (mt, cp) in [(0, 0), (1, 0), (1, 1), (0, 1)]:
                def m(mt=mt, cp=cp):
                    if (mt, cp) == (0, 0): p.wait(lg=rt[(n, 'b', 1)])
                    d = v(ACC + 32 * mt + 16 * cp, 16)
                    p(f"{MF} {d}, {v(FA+8*s+4*mt,4)}, {v(FB+8*s+4*cp,4)}, {'0' if n == 0 else d}")
                ops.append(m)
            for mt in range(3):
                def m(mt=mt):
                    if mt == 0: p.wait(lg=rt[(n, 'w', 2)])
                    d = v(ZA + 16 * mt, 16)
                    p(f"{MF} {d}, {v(FW+12*s+4*mt,4)}, {v(FX+4*s,4)}, {'0' if n == 0 else d}")
                ops.append(m)
            return ops
        self.gemm_loop(3, reads, mfmas, dma, tick, 5, npro, {6: lambda: self.wsp_dma(0), 7: lambda: self.wsp_dma(1)} if not o.get('ul') else {7: lambda: [lambda: None] * 9 + self.wsp_dma(0) + self.wsp_dma(1)}, valu)
        self.stamp(1)
        def U(sg, cp): return ACC + 32 * (sg >> 3) + 16 * cp + 4 * ((sg & 7) >> 1) + 2 * (sg & 1)
        def step(hr, hi, sg, nr, ni, t0, t1):
            p = self.p; A = v(LB, 2)
            p(f"v_pk_fma_f32 {v(t0,2)}, {A}, {v(hr,2)}, {v(U(sg,0),2)} op_sel_hi:[0,1,1]")
            p(f"v_pk_fma_f32 {v(t1,2)}, {A}, {v(hi,2)}, {v(U(sg,1),2)} op_sel_hi:[0,1,1]")
            p(f"v_pk_fma_f32 {v(nr,2)}, {A}, {v(hi,2)}, {v(t0,2)} op_sel:[1,0,0] op_sel_hi:[1,1,1] neg_lo:[1,0,0] neg_hi:[1,0,0]")
            p(f"v_pk_fma_f32 {v(ni,2)}, {A}, {v(hr,2)}, {v(t1,2)} op_sel:[1,0,0] op_sel_hi:[1,1,1]")
        HA, HBb, T0, EX, E8, AD, GR, CQ = 128, 132, 136, 140, 144, 160, 164, 168
        SCR = 98304
        p(f"s_lshl_b32 s{SA}, s{WP}, 11\ns_add_u32 s{SA}, s{SA}, {SCR}")
        p(f"v_and_b32 {v(AD)}, 31, {v(VL)}\nv_lshlrev_b32 {v(AD)}, 6, {v(AD)}\nv_add_u32 {v(AD)}, s{SA}, {v(AD)}")
        p(f"v_lshrrev_b32 {v(AD+1)}, 5, {v(VL)}\nv_lshl_add_u32 {v(AD+1)}, {v(AD+1)}, 4, {v(AD)}\ns_lshl_b32 s{SA}, s{WT}, 5\nv_add_u32 {v(AD+1)}, s{SA}, {v(AD+1)}")
        Z1P = 192
        SZ0, SZ1 = SXL, SWL
        VA_ = 176
        MA, MB = SK + 2, SK + 4
        def z1st(u):
            mt, q = u >> 1, u & 1
            for i in range(4): p(f"v_cvt_pk_bf16_f32 {v(Z1P+4*u+i)}, {v(ZA+8*u+2*i)}, {v(ZA+8*u+2*i+1)}")
            r = v(Z1P + 4 * u, 4)
            p.vmem(f"buffer_store_dwordx4 {r}, {v(VA_ if u else VL16)}, {srd(SWS)}, s{SZ0 if u < 4 else SZ1} offen offset:{(u%4)*1024} sc1")
        p(f"s_lshl_b32 s{SA}, s{SRB}, 2\ns_add_u32 s{SA}, s{SA}, s{SWV}\ns_mul_i32 s{SA}, s{SA}, 45056\ns_mul_i32 s{SB_}, s{SCOL}, 6144\ns_add_u32 s{SA}, s{SA}, s{SB_}")
        p(f"s_add_u32 s{SZ0}, s{SA}, {Z1}\ns_add_u32 s{SZ1}, s{SZ0}, 4096\ns_cmp_lt_u32 s{SCOL}, 7\ns_cselect_b64 vcc, -1, 0")
        p(f"v_cndmask_b32 {v(VA_)}, {v(VOOB)}, {v(VL16)}, vcc")
        zs = [(lambda u=u: z1st(u)) for u in range(6)]
        self.run(zs[:2])
        p("s_barrier")
        def pass1():
            hr, hi = U(0, 0), U(0, 1)
            for sg in range(1, 16):
                nr, ni = (HA, HA + 2) if sg & 1 else (HBb, HBb + 2)
                step(hr, hi, sg, nr, ni, T0, T0 + 2)
                hr, hi = nr, ni
            self.p(f"v_mov_b32 {v(EX)}, {v(hr)}\nv_mov_b32 {v(EX+1)}, {v(hi)}\nv_mov_b32 {v(EX+2)}, {v(hr+1)}\nv_mov_b32 {v(EX+3)}, {v(hi+1)}")
        d2 = self.wsp_dma(2) + self.wsp_dma(3)
        self.run(merge(merge(self.cap(pass1), zs[2:]), d2[:7]))
        p.lds(f"ds_write_b128 {v(AD+1)}, {v(EX,4)}")
        p.wait_lg_all(); p("s_barrier")
        for i in range(4): p.lds(f"ds_read_b128 {v(E8+4*i,4)}, {v(AD)} offset:{16*i}")
        te = p.lg - 1
        self.run(d2[7:11])
        p(f"s_cmp_eq_u32 s{WT}, 0\ns_cselect_b32 s{SA}, 32, 0")
        p(f"v_cmp_gt_u32 vcc, s{SA}, {v(VL)}\nv_mov_b32 {v(GR+1)}, s{ST_T}\nv_mov_b32 {v(GR+3)}, s{ST_T}\nv_cndmask_b32 {v(T0)}, {v(VOOB)}, {v(VL16)}, vcc")
        p(f"s_lshl_b32 s{SC}, s{SCOL}, 14\ns_lshl_b32 s{SA}, s{WP}, 9\ns_add_u32 s{SC}, s{SC}, s{SA}\ns_add_u32 s{SC}, s{SC}, {EG}")
        p(f"s_lshl_b32 s{SA}, s{SRB}, 10\ns_add_u32 s{SA}, s{SA}, s{SC}")
        p.wait(lg=te); p("s_barrier")
        self.run(merge(self.cap(lambda: [cfma(E8 + 2 * q, L16, E8 + 2 * (q - 1), E8 + 2 * q) for q in range(1, 8)]), d2[11:15]))
        p(f"v_mov_b32 {v(GR)}, {v(E8+14)}\nv_mov_b32 {v(GR+2)}, {v(E8+15)}")
        p.vmem(f"buffer_store_dwordx4 {v(GR,4)}, {v(T0)}, {srd(SWS)}, s{SA} offen sc1")
        self.run(d2[15:])
        self.stamp(2)
        p(f"v_cmp_gt_u32 vcc, 32, {v(VL)}")
        w1 = p.label("w1"); w2 = p.label("w2")
        p(f"s_cmp_eq_u32 s{WT}, 0\ns_cbranch_scc0 {w1}")
        p(f"v_cndmask_b32 {v(CQ)}, {v(E8+2)}, 0, vcc\nv_cndmask_b32 {v(CQ+1)}, {v(E8+3)}, 0, vcc")
        p(f"v_cndmask_b32 {v(CQ+2)}, {v(E8+4)}, {v(E8)}, vcc\nv_cndmask_b32 {v(CQ+3)}, {v(E8+5)}, {v(E8+1)}, vcc")
        p(f"s_branch {w2}")
        p.put(w1)
        for k in range(4): p(f"v_cndmask_b32 {v(CQ+k)}, {v(E8+10+k)}, {v(E8+6+k)}, vcc")
        p.put(w2)
        Z1P = 192
        EGR, EO, EXP, ET = 80, 144, 152, 160
        def eo():
            p = self.p
            p(f"v_lshrrev_b32 {v(ET)}, 5, {v(VL)}\nv_sub_u32 {v(ET)}, s{SRB}, {v(ET)}\nv_add_u32 {v(ET)}, -1, {v(ET)}")
            p(f"v_and_b32 {v(ET+1)}, 31, {v(VL)}\nv_lshlrev_b32 {v(ET+1)}, 4, {v(ET+1)}\nv_mov_b32 {v(ET+3)}, s{ST_T}")
            for q in range(8):
                p(f"v_add_u32 {v(ET+2)}, {-2*q}, {v(ET)}\nv_cmp_le_i32 vcc, 0, {v(ET+2)}\nv_lshl_add_u32 {v(ET+2)}, {v(ET+2)}, 10, {v(ET+1)}")
                p(f"v_cndmask_b32 {v(EO+q)}, {v(VOOB)}, {v(ET+2)}, vcc\nv_cndmask_b32 {v(EXP+q)}, 0, {v(ET+3)}, vcc")
        lgw = lambda: p.wait(lg=p.lg - 1)
        self.run(merge(self.cap(lambda: (eo(), self.g_early(184))), self.wsp_dma(4) + self.wsp_read(0) + self.wsp_read(1)))
        et = {}
        def eload(q):
            et['t'] = p.vmem(f"buffer_load_dwordx4 {v(EGR+4*q,4)}, {v(EO+q)}, {srd(SWS)}, s{SC} offen sc1")
        for q in range(8): eload(q)
        ue = o.get('ue', 0)
        self.run([lgw] + self.wsp_dma(5) + (self.wsp_dma(6) if ue else []))
        if ue == 2: self.run(self.wsp_read(2) + [lgw] + self.wsp_dma(7))
        self.stamp(3)
        l = p.label("ep"); dl = p.label("ed")
        p.wait(vm=et['t'])
        p(f"s_mov_b32 s{SSPIN}, 0")
        p.put(l)
        p(f"v_mov_b32 {v(ET)}, 0")
        for q in range(8):
            p(f"v_xor_b32 {v(ET+1)}, {v(EXP+q)}, {v(EGR+4*q+1)}\nv_xor_b32 {v(ET+2)}, {v(EXP+q)}, {v(EGR+4*q+3)}\nv_or3_b32 {v(ET)}, {v(ET)}, {v(ET+1)}, {v(ET+2)}")
        p(f"v_cmp_ne_u32 vcc, 0, {v(ET)}\ns_cmp_eq_u64 vcc, 0\ns_cbranch_scc1 {dl}")
        for q in range(8): p(f"buffer_load_dwordx4 {v(EGR+4*q,4)}, {v(EO+q)}, {srd(SWS)}, s{SC} offen sc1")
        p("s_waitcnt vmcnt(0)")
        p(f"s_add_u32 s{SSPIN}, s{SSPIN}, 1\ns_cmp_lt_u32 s{SSPIN}, {SPIN}\ns_cbranch_scc1 {l}")
        p.put(dl)
        self.flag_prep(178)
        p(f"s_lshl_b32 s{SA}, s{SCOL}, 6\ns_lshl_b32 s{SB_}, s{SRB}, 2\ns_add_u32 s{SA}, s{SA}, s{SB_}\ns_add_u32 s{SA}, s{SA}, s{SWV}\ns_lshl_b32 s{SA}, s{SA}, 7\ns_add_u32 s{SA}, s{SA}, {Z1F}")
        self.flag(SA, 178)
        self.stamp(4)
        OP, OT, HO = 80, 144, 132
        MA, MB = SK + 2, SK + 4
        SH0, SH1 = SXB, SW1B
        def pass2a():
            p = self.p
            p(f"s_lshl_b32 s{SA}, s{SD}, 3\ns_add_u32 s{SA}, s{SA}, s{SCOL}\ns_lshl_b32 s{SA}, s{SA}, 14\ns_lshl_b32 s{SB_}, s{WP}, 12\ns_add_u32 s{SA}, s{SA}, s{SB_}")
            p(f"s_add_u32 s{SH0}, s{SA}, {HB}\ns_add_u32 s{SH1}, s{SH0}, 8192")
            p(f"v_lshrrev_b32 {v(T0)}, 5, {v(VL)}\nv_lshlrev_b32 {v(T0)}, 11, {v(T0)}\nv_and_b32 {v(T0+1)}, 31, {v(VL)}\nv_lshl_add_u32 {v(HO)}, {v(T0+1)}, 4, {v(T0)}")
            for k in range(1, 4): p(f"v_xor_b32 {v(HO+k)}, {64*k}, {v(HO)}")
            for q in range(8): p(f"v_mov_b32 {v(EGR+4*q+1)}, {v(EGR+4*q+2)}")
            S = EGR + 28
            for q in range(6, -1, -1): cfma(S, L256, S, EGR + 4 * q)
            p(f"v_mov_b32 {v(ET)}, {v(S)}\nv_mov_b32 {v(ET+1)}, {v(S+1)}\nv_permlane32_swap_b32 {v(S)}, {v(ET)}\nv_permlane32_swap_b32 {v(S+1)}, {v(ET+1)}")
            cfma(S, L128, ET, S)
            cfma(CQ, LQ0, S, CQ); cfma(CQ + 2, LQ1, S, CQ + 2)
            p(f"v_mov_b32 {v(HA)}, {v(CQ)}\nv_mov_b32 {v(HA+1)}, {v(CQ+2)}\nv_mov_b32 {v(HA+2)}, {v(CQ+1)}\nv_mov_b32 {v(HA+3)}, {v(CQ+3)}")
        def pass2(s0, s1):
            p = self.p
            Cc = v(CF, 2)
            for sg in range(s0, s1):
                hr, hi = (HA, HA + 2) if sg == 0 else (U(sg - 1, 0), U(sg - 1, 1))
                step(hr, hi, sg, U(sg, 0), U(sg, 1), T0, T0 + 2)
                hr, hi = U(sg, 0), U(sg, 1)
                oo = OT + 4 * (sg & 1) + 8 * ((sg >> 1) & 1)
                p(f"v_pk_mul_f32 {v(oo,2)}, {Cc}, {v(hr,2)} op_sel_hi:[0,1]")
                p(f"v_pk_mul_f32 {v(oo+2,2)}, {Cc}, {v(hi,2)} op_sel_hi:[0,1] neg_lo:[1,0] neg_hi:[1,0]")
                p(f"v_pk_fma_f32 {v(oo,2)}, {Cc}, {v(hi,2)}, {v(oo,2)} op_sel:[1,0,0] op_sel_hi:[1,1,1] neg_lo:[1,0,0] neg_hi:[1,0,0]")
                p(f"v_pk_fma_f32 {v(oo+2,2)}, {Cc}, {v(hr,2)}, {v(oo+2,2)} op_sel:[1,0,0] op_sel_hi:[1,1,1] neg_lo:[1,0,0] neg_hi:[1,0,0]")
                if sg & 1:
                    q, i = sg >> 3, (sg & 7) >> 1
                    for cp in range(2):
                        for e in range(2):
                            p(f"v_cvt_pk_bf16_f32 {v(OP+16*cp+8*e+4*q+i)}, {v(oo-4+2*cp+e)}, {v(oo+2*cp+e)}")
        def hst(cp, k):
            if o.get("x_nost"): return
            p.vmem(f"buffer_store_dwordx4 {v(OP+16*cp+4*k,4)}, {v(HO+k)}, {srd(SWS)}, s{SH0 if cp == 0 else SH1} offen offset:{512*k} sc1")
        uo = o.get("uo", 0)
        if uo:
            H1 = [(lambda cp=cp, k=k: hst(cp, k)) for k in (0, 2) for cp in range(2)]
            H2 = [(lambda cp=cp, k=k: hst(cp, k)) for k in (1, 3) for cp in range(2)]
            self.run(merge(self.cap(pass2a), self.wsp_read(2) + self.wsp_read(3)))
            self.run(merge(self.cap(lambda: pass2(0, 8)), (self.wsp_dma(6) if uo == 2 else []) + self.wsp_read(4)))
            self.run(merge(self.cap(lambda: pass2(8, 16)), H1))
            self.run(H2 + ([] if uo == 2 else self.wsp_dma(6)) + [lgw] + self.wsp_dma(7) + self.wsp_read(5))
            self.g_poll_issue()
            self.run(self.wsp_read(6) + self.wsp_read(7))
        else:
            if ue == 2:
                self.run(merge(self.cap(pass2a), self.wsp_read(3)))
                self.run(self.cap(lambda: pass2(0, 8)))
            elif ue:
                self.run(merge(self.cap(pass2a), self.wsp_read(2) + [lgw] + self.wsp_dma(7)))
                self.run(merge(self.cap(lambda: pass2(0, 8)), self.wsp_read(3)))
            else:
                self.run(merge(self.cap(pass2a), self.wsp_dma(6) + self.wsp_read(2) + [lgw]))
                self.run(merge(self.cap(lambda: pass2(0, 8)), self.wsp_dma(7) + self.wsp_read(3)))
            self.g_poll_issue()
            self.run(merge(merge(self.cap(lambda: pass2(8, 16)), [(lambda cp=cp, k=k: hst(cp, k)) for k in (0, 2) for cp in range(2)]), self.wsp_read(4) + self.wsp_read(5)))
            h2 = [(lambda cp=cp, k=k: hst(cp, k)) for k in (1, 3) for cp in range(2)]
            self.run(merge(self.wsp_read(6) + self.wsp_read(7), h2))
        p(f"s_lshl_b32 s{SLATE}, s{SE}, 7\ns_add_u32 s{SLATE}, s{SLATE}, {HF}")
        self.stamp(5)
        p(f"s_branch {self.LG}")

    CD, CR, HT, GY, WD, WT_ = 210, 214, 218, 240, 244, 228
    ZUP = [4, 6, 8, 10, 12, 14, 204, 206, 208, 248, 250, 252]
    YSL = [1, 1, 0, 1]
    YB = [96, 160, 96, 160]
    def wo_dma(self, parts):
        items = []
        for (i0, i1, base) in parts:
            for i in range(i0, i1):
                def cb(t, i=i): self.wo[i] = t
                k = i - i0
                items.append(((SREG, base + k * 1024) if k % 4 == 0 else None, (SXB, i * 8192) if k % 4 == 0 else None,
                              f"buffer_load_dwordx4 {v(self.WD+k%4)}, {srd(SWOUT)}, s{SDO} offen offset:{(k%4)*1024} lds", cb))
        return self.dseq(items)
    def c_setup(self):
        p = self.p
        self.plain_dma_addr(self.CD, 1024, 224)
        p(f"s_add_u32 s{SA}, s{SREG}, 4096")
        self.plain_read_addr(self.CR, SA, 224)
        p(f"s_add_u32 s{SA}, s{SREG}, {4096+8192}")
        self.unit_tr_addr(self.HT, SA, 224, False)
        p(f"s_lshl_b32 s{SCB}, s{SCOL}, 16\ns_lshl_b32 s{SA}, s{SWV}, 8\ns_add_u32 s{SCB}, s{SCB}, s{SA}")
        p(f"s_lshl_b32 s{SHB}, s{STB}, 17\ns_lshl_b32 s{SA}, s{SWV}, 15\ns_add_u32 s{SHB}, s{SHB}, s{SA}\ns_add_u32 s{SHB}, s{SHB}, {HB}")
        self.yt = {}
    def y_items(self, s):
        sl = self.YSL[s]; items = []
        def cb(t): self.yt[s] = t
        for hh in range(2):
            for i in range(4):
                items.append(((SREG, 4096 + sl * 20480 + hh * 4096), (SCB, (s >> 1) * 128 + hh * 32768),
                              f"buffer_load_dwordx4 {v(self.CD+i)}, {srd(SCIM if s & 1 else SCRE)}, s{SDO} offen offset:{i*1024} lds", cb))
        for hh in range(2):
            for i in range(4):
                items.append(((SREG, 4096 + sl * 20480 + 8192 + hh * 4096), (SHB, s * 8192 + hh * 4096),
                              f"buffer_load_dwordx4 {v(VL16)}, {srd(SWS)}, s{SDO} offen offset:{i*1024} sc1 lds", cb))
        return items
    def y_dma(self, s): return self.dseq(self.y_items(s))
    def y_read(self, s):
        p = self.p; sl = self.YSL[s]; ops = []
        self.yr = getattr(self, "yr", {})
        for ks in range(4):
            def f(ks=ks):
                p.wait(vm=self.yt[s], lg=p.lg - 10)
                b = self.YB[s] + 16 * ks
                for k in range(2):
                    p.lds(f"ds_read_b128 {ar(b+4*k,4)}, {v(self.CR+ks)} offset:{sl*20480+k*4096}")
                    for a in range(2):
                        self.yr[(s, ks)] = p.lds(f"ds_read_b64_tr_b16 {ar(b+8+4*k+2*a,2)}, {v(self.HT+a)} offset:{sl*20480+(ks>>1)*4096+k*2048+(ks&1)*256}")
            ops.append(f)
        return ops
    def phase_g(self):
        p = self.p; o = self.o
        p.c("==== phase B: G ====")
        p.put(self.LG)
        p.vm_done = -1; p.lg_done = -1
        ACC, FA, TR, T = 16, 112, self.GTR, 186
        Z1R, BI, PV, WD, PL, PL2, PL3, OGV = 190, 202, 203, self.WD, self.GPL, 222, 234, 241
        Q = SK + 9
        AOFF = 24576
        lgw = lambda: p.wait(lg=p.lg - 1)
        p(f"s_mov_b32 s{SCOL}, s{SJ}")
        def late_setup():
            p = self.p
            p(f"s_lshl_b32 s{SE}, s{STB}, 11\ns_add_u32 s{SE}, s{SE}, {HF}")
            p(f"s_lshl_b32 s{SA}, s{SZI}, 7\ns_add_u32 s{SA}, s{SA}, {Z1F}")
            p.atom(f"s_sub_u32 s{SB_}, s{SA}, 8192\ns_cmp_eq_u32 s{SCOL}, 0\ns_cselect_b32 s{SB_}, s{SA}, s{SB_}")
            self.poll_addr(PL3, [(SE, 16), (SA, 1), (SB_, 1)])
            p(f"s_lshr_b32 s{SA}, s{STB}, 1\ns_lshl_b32 s{SA}, s{SA}, 9\ns_add_u32 s{SA}, s{SA}, {ZF2}")
            p(f"v_bfe_u32 {v(T)}, {v(VL)}, 2, 3\nv_lshlrev_b32 {v(T)}, 13, {v(T)}\nv_and_b32 {v(T+1)}, 3, {v(VL)}\nv_lshl_add_u32 {v(T)}, {v(T+1)}, 7, {v(T)}\nv_add_u32 {v(T)}, s{SA}, {v(T)}")
            p(f"s_mov_b32 vcc_lo, 0\ns_mov_b32 vcc_hi, -1\nv_cndmask_b32 {v(PL3)}, {v(PL3)}, {v(T)}, vcc")
            self.flag_prep(220)
            p(f"v_lshrrev_b32 {v(T)}, 3, {v(VL)}\nv_lshlrev_b32 {v(T)}, 10, {v(T)}")
            p(f"v_bfe_u32 {v(T+1)}, {v(VL)}, 4, 1\nv_lshlrev_b32 {v(T+1)}, 2, {v(T+1)}\nv_and_b32 {v(T+2)}, 7, {v(VL)}\nv_xor_b32 {v(T+1)}, {v(T+1)}, {v(T+2)}")
            p(f"v_lshl_add_u32 {v(WD)}, {v(T+1)}, 4, {v(T)}")
            for i in range(1, 4): p(f"v_add_u32 {v(WD+i)}, {i*7168}, {v(WD)}")
            p(f"s_mul_i32 s{SXB}, s{SWV}, {176*1024}\ns_lshl_b32 s{SA}, s{SCOL}, 7\ns_add_u32 s{SXB}, s{SXB}, s{SA}")
            self.panel_tr_addr(self.WT_, SREG, 224, False)
        p(f"s_lshr_b32 s{Q}, s{SWV}, 1\ns_and_b32 s{SC}, s{SZI}, 63")
        GT1 = 227
        self.slice_z2(SJ)
        p(f"s_lshl_b32 s{SA}, s{SNU}, 3\ns_sub_i32 s{SA}, s{SA}, 64\nv_and_b32 {v(T)}, 31, {v(VL)}\nv_cmp_gt_i32 vcc, s{SA}, {v(T)}\ns_lshl_b32 s{SF}, s{Q}, 1\ns_add_u32 s{SD}, s{SF}, 8\nv_cndmask_b32 {v(TR+1)}, {v(VOOB)}, {v(VL16)}, vcc")
        p(f"s_cmp_gt_u32 s{SNU}, 4\ns_cselect_b64 vcc, -1, 0\nv_cndmask_b32 {v(GT1)}, {v(VOOB)}, {v(VL16)}, vcc")
        p(f"s_cmp_lt_u32 s{SD}, s{SNU}\ns_cselect_b64 vcc, -1, 0\nv_cndmask_b32 {v(PV)}, {v(VOOB)}, {v(VL16)}, vcc")
        p(f"s_lshl_b32 s{SA}, s{SC}, 5\nv_add_lshl_u32 {v(T)}, {v(T)}, s{SA}, 1")
        p.vmem(f"global_load_ushort {v(BI)}, {v(T)}, {sp(PBSP)}")
        p(f"s_add_u32 s{SF}, s{SF}, s{SU0}\ns_lshl_b32 s{SF}, s{SF}, 9\ns_mul_i32 s{SPO}, s{SC}, 45056\ns_add_u32 s{SPO}, s{SPO}, s{SF}\ns_add_u32 s{SD}, s{SPO}, {Z1}")
        p(f"v_and_b32 {v(PL2)}, 31, {v(VL)}\nv_lshlrev_b32 {v(PL2)}, 2, {v(PL2)}")
        p.wait_lg_all()
        self.stamp(6)
        l = p.label("gp"); dn = p.label("gd")
        p(f"s_waitcnt vmcnt({1 if o.get('uo') else 9})")
        p(f"s_cmp_ge_u32 s2, 128\ns_cbranch_scc1 {l}\ns_waitcnt vmcnt({7 if o.get('zsched', 0) else 0})")
        p.put(l)
        p(f"v_cmp_ne_u32 vcc, s{ST_T}, {v(PL+1)}\ns_and_b32 vcc_hi, vcc_hi, 0xffff\ns_or_b32 s{SF}, vcc_lo, vcc_hi\ns_cbranch_scc0 {dn}")
        self.poll(PL, 48)
        p.put(dn)
        p("s_barrier")
        g0 = p.vm
        def late_flag():
            nf = p.label("nf")
            p(f"s_cmp_eq_u32 s{SLATE}, 0\ns_cbranch_scc1 {nf}")
            p(f"s_waitcnt vmcnt({p.vm - g0})")
            p(f"buffer_store_dword {v(220)}, {v(221)}, {srd(SWS)}, s{SLATE} offen sc1")
            p.put(nf)
        p.vm_done = -1
        self.stamp(7)
        def soff(B): return ((B & 3) >> 1) * 40960 + (B & 1) * 12288
        tick = {}
        def dma(B):
            items = []
            for i in range(6):
                def cb(t): tick[B] = t
                g = i // 4
                txt = f"buffer_load_dwordx4 {v([VL16, GT1, VL16, GT1, TR + 1, TR + 1][i])}, {srd(SWS)}, s{SDO} offen offset:{(i%4)*1024} sc1 lds"
                items.append(((SGL, soff(B) + g * 4096) if i % 4 == 0 else None, (SGB, B * 12288 + g * 4096) if i % 4 == 0 else None, txt, cb))
            return self.dseq(items)
        z1t = {}
        def z1load():
            p.vmem(f"buffer_load_dwordx4 {v(Z1R,4)}, {v(VL16)}, {srd(SWS)}, s{SD} offen sc1")
            p.vmem(f"buffer_load_dwordx4 {v(Z1R+4,4)}, {v(GT1)}, {srd(SWS)}, s{SD} offen offset:2048 sc1")
            p(f"s_add_u32 s{SD}, s{SD}, 4096")
            z1t['t'] = p.vmem(f"buffer_load_dwordx4 {v(Z1R+8,4)}, {v(PV)}, {srd(SWS)}, s{SD} offen sc1")
        def z2touch(b0=2):
            p(f"s_bfe_u32 s{SA}, s2, 0x20006\ns_mul_i32 s{SB_}, s{SA}, 1536\ns_add_u32 s{SA}, s{SGB}, s{SB_}\ns_add_u32 s{SA}, s{SA}, {b0*12288}")
            p(f"v_mul_u32_u24 {v(230)}, 43, {v(VL)}\nv_lshrrev_b32 {v(230)}, 9, {v(230)}\nv_mul_u32_u24 {v(231)}, 12, {v(230)}\nv_sub_u32 {v(231)}, {v(VL)}, {v(231)}")
            p(f"v_mul_u32_u24 {v(230)}, 12288, {v(230)}\nv_lshl_add_u32 {v(230)}, {v(231)}, 7, {v(230)}")
            p.vmem(f"buffer_load_dword {v(231)}, {v(230)}, {srd(SWS)}, s{SA} offen sc1")
        zt2 = o.get("zt2", 0)
        if zt2 == 2: z2touch(0)
        self.run(dma(0))
        if zt2 == 3: z2touch(1)
        self.run(merge(self.cap(lambda: (late_setup(), self.c_setup())), dma(1)))
        if zt2 == 1: z2touch(2)
        if zt2 in (2, 3):
            p(f"s_add_u32 s{SA}, s{SGB}, {(5 if zt2 == 2 else 6)*12288}\ns_bfe_u32 s{SB_}, s2, 0x20006\ns_mul_i32 s{SB_}, s{SB_}, 1536\ns_add_u32 s{SA}, s{SA}, s{SB_}")
            p(f"v_cmp_gt_u32 vcc, {36 if zt2 == 2 else 24}, {v(VL)}\ns_nop 1\nv_cndmask_b32 {v(230)}, {v(VOOB)}, {v(230)}, vcc")
            p.vmem(f"buffer_load_dword {v(231)}, {v(230)}, {srd(SWS)}, s{SA} offen sc1")
        def gyl():
            p(f"s_lshl_b32 s{SA}, s{STB}, 8\ns_add_u32 s{SA}, s{SA}, {GATE}")
            p.vmem(f"buffer_load_dword {v(self.GY)}, {v(PL2)}, {srd(SWS)}, s{SA} offen sc1")
            p.vmem(f"buffer_load_dword {v(self.GY+2)}, {v(PL2)}, {srd(SWS)}, s{SA} offen offset:128 sc1")
            p(f"s_lshl_b32 s{SA}, s{SC}, 7\ns_add_u32 s{SA}, s{SA}, {GATE}")
            p.vmem(f"buffer_load_dword {v(OGV)}, {v(PL2)}, {srd(SWS)}, s{SA} offen sc1")
        def z1gelu():
            c1 = -2 * LOG2E * 0.7978845608028654
            self.VC0 = 188
            self.p(f"s_mov_b32 s{SK}, {f2u(c1*0.044715)}\nv_mov_b32 {v(188)}, {f2u(c1)}")
            for i in range(12): self.unpack(self.ZUP[i], Z1R + i)
            self.gelu_many(self.ZUP, [24, 26, 28, 30])
        lt = {}
        def issue(r):
            lt[r] = p.vmem(f"buffer_load_dword {v(r+1)}, {v(r)}, {srd(SWS)}, 0 offen sc1")
        def check(r, mask):
            l = p.label("lp"); d = p.label("ld")
            p.wait(vm=lt[r])
            p(f"s_mov_b32 s{SSPIN}, 0")
            p.put(l)
            p(f"v_cmp_ne_u32 vcc, s{ST_T}, {v(r+1)}\ns_and_b32 s{SF}, vcc_lo, {mask}\ns_or_b32 s{SF}, s{SF}, vcc_hi\ns_cbranch_scc0 {d}")
            p(f"buffer_load_dword {v(r+1)}, {v(r)}, {srd(SWS)}, 0 offen sc1\ns_waitcnt vmcnt(0)")
            p(f"s_add_u32 s{SSPIN}, s{SSPIN}, 1\ns_cmp_lt_u32 s{SSPIN}, {SPIN}\ns_cbranch_scc1 {l}")
            p.put(d)
        rt = {}
        def fset(hb): return FA + 24 * (2 if hb == 15 else hb & 1)
        FO = [(0, 0), (0, 1), (0, 2), (1, 0), (1, 1), (1, 2)]; FP = {(0, 0): 0, (0, 1): 1, (1, 0): 2, (1, 1): 3, (0, 2): 4, (1, 2): 5}
        def reads(hb):
            B, e = hb >> 1, hb & 1; ops = []
            for (ks, mt) in FO:
                def ra(ks=ks, mt=mt):
                    rt[(hb, ks, mt)] = p.lds(f"ds_read_b128 {v(fset(hb)+12*ks+4*mt,4)}, {v(TR)} offset:{soff(B)+e*6144+FP[(ks,mt)]*1024}")
                ops.append(ra)
            return ops
        def mf(hb, ks, mt, nt):
            def m():
                p.wait(lg=rt[(hb, ks, 2 if hb < 14 else mt)])
                d = v(ACC + 16 * (2 * mt + nt), 16); kap = 2 * hb + ks
                p(f"{MF} {d}, {v(fset(hb)+12*ks+4*mt,4)}, {ar((kap*2+nt)*4,4)}, {'0' if kap == 0 else d}")
            return m
        self.wo = wo = {}
        def WOA(kap): return (kap - 8) * 8 if kap >= 8 else 24 + kap * 8
        def wo_rd(kap):
            def f():
                p.wait(vm=wo[2 * kap + 1], lg=p.lg - 12)
                for mt in range(2):
                    for a in range(2):
                        base = AOFF + (kap if kap < 8 else kap - 8) * 2048
                        p.lds(f"ds_read_b64_tr_b16 {ar(WOA(kap)+4*mt+2*a,2)}, {v(self.WT_+mt)} offset:{base+a*512}")
            return f
        p.wait(vm=tick[0]); p("s_barrier")
        self.run(reads(0))
        wa = self.wo_dma([(16, 22, AOFF)])
        def wb(i0, i1): return self.wo_dma([(i0, i1, AOFF + i0 * 1024)])
        y0 = self.y_dma(0)
        y1 = self.y_dma(1)
        yc0 = self.dseq(self.y_items(0)[:8]); yc0b = self.dseq(self.y_items(0)[:4]);
        def ypart(s_, a, b): return self.dseq(self.y_items(s_)[a:b])
        extra = {0: dma(2), 1: dma(3), 2: wa, 4: [wo_rd(8), wo_rd(9), wo_rd(10), lgw] + wb(0, 3), 5: wb(3, 4), 6: wb(4, 9) + [gyl], 7: wb(9, 10), 8: wb(10, 16) + [lambda: issue(PL3)],
                 10: [wo_rd(k) for k in range(8)] + [lgw] + ypart(0, 0, 2), 11: ypart(0, 2, 8) + [z1load], 12: ypart(0, 8, 13), 13: ypart(0, 13, 16)}
        gl = o.get("gl", 0)
        if gl:
            self.YSL = [0, 1, 0, 1]
            y0, y1 = self.y_dma(0), self.y_dma(1)
            extra = {0: dma(2), 1: dma(3), 2: wa[:4], 3: wa[4:], 5: [wo_rd(8), wo_rd(9), wo_rd(10)], 6: [lgw] + wb(0, 3) + [gyl], 7: wb(3, 4), 8: wb(4, 8) + [lambda: issue(PL3)],
                     9: wb(8, 11), 10: wb(11, 14), 11: wb(14, 16) + [z1load]}
            extra[3] = extra[3]
        gel = {}
        for hb in range(14):
            if o.get("gstamps") and hb % 2 == 0: self.stamp(21 + hb // 2)
            B = hb >> 1
            if hb & 1:
                p.wait(vm=tick[B + 1], lg=p.lg - 1); p("s_barrier")
            if hb == 11:
                check(PL3, 0x3ffff)
                if o.get("ht"):
                    p(f"s_lshl_b32 s{SA}, s{STB}, 17\ns_lshl_b32 s{SB_}, s{SCOL}, 14\ns_add_u32 s{SA}, s{SA}, s{SB_}\ns_lshl_b32 s{SB_}, s{SWV}, 12\ns_add_u32 s{SA}, s{SA}, s{SB_}\ns_add_u32 s{SA}, s{SA}, {HB}")
                    p(f"v_and_b32 {v(230)}, 31, {v(VL)}\nv_lshlrev_b32 {v(230)}, 7, {v(230)}")
                    p.vmem(f"buffer_load_dword {v(231)}, {v(230)}, {srd(SWS)}, s{SA} offen sc1")
            mm = [mf(hb, ks, mt, nt) for ks in range(2) for mt in range(3) for nt in range(2)]
            rd = reads(hb + 1) + (reads(15) if hb == 13 else [])
            seq = merge(mm, rd, 0, 8 if hb == 13 else 6)
            f = list(extra.get(hb, []))
            if hb & 1 and B + 4 < 8: f = f + dma(B + 4)
            if f: seq = merge(seq, f, len(seq) // 4)
            if hb in gel: seq = merge(seq, gel[hb])
            if hb == o.get("hflag", 3): seq = seq + [late_flag]
            self.run(seq)
        VW, VRD = T, T + 1
        p(f"s_xor_b32 s{SA}, s{SWV}, 2\ns_mul_i32 s{SA}, s{SA}, 40960\nv_add_u32 {v(VW)}, s{SREG}, {v(VL16)}\nv_add_u32 {v(VRD)}, s{SA}, {v(VL16)}")
        def roff(i): return i * 1024
        def rw(ti):
            return [(lambda hq=hq: p.lds(f"ds_write_b128 {v(VW)}, {v(ACC+16*ti+8+4*hq,4)} offset:{roff(2*ti+hq)}")) for hq in range(2)]
        tiles = [1, 3, 5, 0, 2, 4]
        for n_, ti in enumerate(tiles):
            mm = [mf(hb, ks, ti >> 1, ti & 1) for hb in (14, 15) for ks in range(2)]
            f = (rw(tiles[n_ - 2]) if n_ >= 2 else [])
            self.run(merge(mm, f))
        self.stamp(8)
        yl = o.get('y0late', 0) or gl
        self.run(merge([] if yl else self.y_read(0), rw(tiles[4]) + rw(tiles[5])) if not yl else rw(tiles[4]) + rw(tiles[5]))
        p.wait_lg_all(); p("s_barrier")
        RB = 112
        tk = {}
        for n_, ti in enumerate(tiles):
            for hq in range(2): tk[(ti, hq)] = p.lds(f"ds_read_b128 {v(RB+8*ti+4*hq,4)}, {v(VRD)} offset:{roff(2*ti+hq)}")
        if not yl: self.run(y1[:3])
        def radd(ti):
            for hq in range(2):
                p.wait(lg=tk[(ti, hq)])
                for hh in range(2): p(f"v_pk_add_f32 {v(ACC+16*ti+4*hq+2*hh,2)}, {v(ACC+16*ti+4*hq+2*hh,2)}, {v(RB+8*ti+4*hq+2*hh,2)}")
        XS = [40, 44, 56, 60]; XR = [72, 76, 88, 92]
        p(f"s_lshl_b32 s{SA}, s2, 2\ns_add_u32 s{SA}, s{SA}, s{SWV}\ns_lshl_b32 s{SA}, s{SA}, 12\ns_add_u32 s{SA}, s{SA}, {XB}\ns_xor_b32 s{SE}, s{SA}, {(64 if o.get('xl') else 1) * 16384}")
        for g in range(4): p(f"v_mov_b32 {v(XS[g]+3)}, s{ST_T}")
        for ti in (1, 3, 5): radd(ti)
        for i in range(12):
            src = ACC + 16 * (2 * (i >> 2) + 1) + 2 * (i & 3)
            p(f"v_cvt_pk_bf16_f32 {v(XS[i//3]+i%3)}, {v(src)}, {v(src+1)}")
            if i % 3 == 2: p.vmem(f"buffer_store_dwordx4 {v(XS[i//3],4)}, {v(VL16)}, {srd(SWS)}, s{SA} offen offset:{(i//3)*1024} {o.get('xm', 'sc1')}")
        if yl and not gl: self.run(self.y_read(0))
        for ti in (0, 2, 4): radd(ti)
        if yl and not gl: self.run([lgw] + y1[:3])
        p("s_barrier")
        self.stamp(9)

        p.c("==== phase C ====")
        YA, PA = 112, 16
        XE, GE, DE, OV, P10, PLP, TC = 186, 194, 198, 184, 185, 222, 64
        RW, RX, WA, RA = 176, 177, 180, 230
        SROW, SXO, SPB_ = SXL, SWL, SW1B
        ep = {}
        def setup():
            p = self.p; T = TC
            p(f"v_lshrrev_b32 {v(T)}, 4, {v(VL)}\nv_and_b32 {v(T+1)}, 15, {v(VL)}")
            p(f"v_lshlrev_b32 {v(T+2)}, 10, {v(T)}\nv_lshl_add_u32 {v(T+2)}, {v(T+1)}, 3, {v(T+2)}")
            p(f"v_lshlrev_b32 {v(T+3)}, 2, {v(T)}\nv_lshlrev_b32 {v(T+4)}, 3, {v(T+1)}")
            p(f"v_lshlrev_b32 {v(OV)}, 1, {v(T+2)}")
            p(f"s_lshl_b32 s{SROW}, s{STB}, 6\ns_lshl_b32 s{SA}, s{SWV}, 4\ns_add_u32 s{SROW}, s{SROW}, s{SA}")
            p(f"s_lshl_b32 s{SXO}, s{SROW}, 10\ns_lshl_b32 s{SA}, s{SCOL}, 7\ns_add_u32 s{SXO}, s{SXO}, s{SA}\nv_add_u32 {v(T+4)}, s{SA}, {v(T+4)}")
            p(f"s_lshl_b32 s{SA}, s{STB}, 12\ns_lshl_b32 s{SB_}, s{SWV}, 10\ns_add_u32 s{SB_}, s{SB_}, s{SA}\ns_add_u32 s{SB_}, s{SB_}, {PF}")
            self.poll_addr(PLP, [(SB_, 8)])
            p.atom(f"s_cmp_eq_u32 s{SWV}, 3\ns_cselect_b64 vcc, -1, 0")
            p(f"v_cndmask_b32 {v(P10)}, {v(VL16)}, {v(VOOB)}, vcc")
            p(f"s_mul_i32 s{SPB_}, s{STB}, {2*45056}\ns_mul_i32 s{SA}, s{SWV}, {22*512}\ns_add_u32 s{SPB_}, s{SPB_}, s{SA}\ns_add_u32 s{SPB_}, s{SPB_}, {PB}")
            p(f"s_add_u32 s{SA}, s{SREG}, 4096\nv_and_b32 {v(RW)}, 31, {v(VL)}\nv_lshlrev_b32 {v(RW)}, 8, {v(RW)}\nv_add_u32 {v(RW)}, s{SA}, {v(RW)}")
            p(f"v_lshrrev_b32 {v(RX)}, 5, {v(VL)}\nv_and_b32 {v(RX+1)}, 7, {v(VL)}\nv_xor_b32 {v(RX)}, {v(RX)}, {v(RX+1)}\nv_lshlrev_b32 {v(RX)}, 4, {v(RX)}")
            for i in range(4): p(f"v_xor_b32 {v(WA+i)}, {32*i}, {v(RX)}\nv_add_u32 {v(WA+i)}, {v(WA+i)}, {v(RW)}")
            p(f"v_xor_b32 {v(T+1)}, {v(T+1)}, {v(T)}\nv_lshlrev_b32 {v(T+1)}, 4, {v(T+1)}")
            p(f"v_lshlrev_b32 {v(T)}, 8, {v(T)}\ns_lshl_b32 s{SA}, s{SWV}, 12\ns_add_u32 s{SA}, s{SA}, 4096\nv_add_u32 {v(T)}, s{SA}, {v(T)}")
            p(f"v_add_u32 {v(RA)}, {v(T)}, {v(T+1)}\nv_xor_b32 {v(T+1)}, 64, {v(T+1)}\nv_add_u32 {v(RA+1)}, {v(T)}, {v(T+1)}")
            p(f"v_add_u32 {v(RA+2)}, 81920, {v(RA)}\nv_add_u32 {v(RA+3)}, 81920, {v(RA+1)}")
            p(f"s_lshr_b32 s{SLATE}, s{SC}, 1\ns_lshl_b32 s{SLATE}, s{SLATE}, 3\ns_add_u32 s{SLATE}, s{SLATE}, s{SCOL}\ns_lshl_b32 s{SLATE}, s{SLATE}, 1\ns_add_u32 s{SLATE}, s{SLATE}, s{SKH}")
            p(f"s_lshl_b32 s{SLATE}, s{SLATE}, 1\ns_add_u32 s{SLATE}, s{SLATE}, s{Q}\ns_lshl_b32 s{SLATE}, s{SLATE}, 7\ns_add_u32 s{SLATE}, s{SLATE}, {PF}")
            p(f"s_add_u32 s{SD}, s{SPO}, {PB}")
            p(f"v_lshlrev_b32 {v(BI)}, 16, {v(BI)}\nv_sub_f32 {v(178)}, 1.0, {v(OGV)}\nv_mul_f32 {v(179)}, {v(178)}, {v(BI)}")
        def eloads():
            T = TC
            for gi in range(4):
                p(f"s_add_u32 s{SA}, s{SXO}, {gi*4096}")
                p.vmem(f"buffer_load_dwordx2 {v(XE+2*gi,2)}, {v(T+2)}, {srd(SX)}, s{SA} offen")
            p(f"s_lshl_b32 s{SA}, s{SROW}, 2\ns_add_u32 s{SA}, s{SA}, {GATE}")
            for gi in range(4): p.vmem(f"buffer_load_dword {v(GE+gi)}, {v(T+3)}, {srd(SWS)}, s{SA} offen offset:{gi*16} sc1")
            ep['t'] = p.vmem(f"global_load_dwordx2 {v(DE,2)}, {v(T+4)}, {sp(PDSK)}")
        T4 = [(0, 0), (1, 0), (1, 1), (0, 1)]
        def ym(s):
            ops = []
            for ks in range(4):
                for (mt, nt) in T4:
                    def m(ks=ks, mt=mt, nt=nt):
                        p.wait(lg=self.yr[(s, ks)])
                        d = v(YA + 16 * (2 * mt + nt), 16); b = self.YB[s] + 16 * ks
                        p(f"{MF} {d}, {ar(b+4*mt,4)}, {ar(b+8+4*nt,4)}, {'0' if (s, ks) == (0, 0) else d}")
                    ops.append(m)
            return ops
        pt = {}
        def ploads():
            ops = []
            for nt in range(2):
                for kap in range(11):
                    def f(kap=kap, nt=nt):
                        if kap % 4 == 0: p(f"s_add_u32 s{SB_}, s{SPB_}, {nt*45056+kap*1024}")
                        pt[(kap, nt)] = p.vmem(f"buffer_load_dwordx4 {v(PA+(kap*2+nt)*4,4)}, {v(P10 if kap == 10 else VL16)}, {srd(SWS)}, s{SB_} offen offset:{(kap%4)*1024} sc1")
                    ops.append(f)
            return ops
        xt = {}
        def xload():
            for g in range(4): xt['t'] = p.vmem(f"buffer_load_dwordx4 {v(XR[g],4)}, {v(VL16)}, {srd(SWS)}, s{SE} offen offset:{g*1024} sc1")
        def xcheck():
            l = p.label("xp"); d = p.label("xd")
            p.wait(vm=xt['t'])
            p(f"s_mov_b32 s{SSPIN}, 0")
            p.put(l)
            p(f"v_xor_b32 {v(32)}, s{ST_T}, {v(XR[0]+3)}\nv_xor_b32 {v(33)}, s{ST_T}, {v(XR[1]+3)}\nv_xor_b32 {v(34)}, s{ST_T}, {v(XR[2]+3)}\nv_xor_b32 {v(35)}, s{ST_T}, {v(XR[3]+3)}")
            p(f"v_or3_b32 {v(32)}, {v(32)}, {v(33)}, {v(34)}\nv_or_b32 {v(32)}, {v(32)}, {v(35)}")
            p(f"v_cmp_ne_u32 vcc, 0, {v(32)}\ns_cmp_eq_u64 vcc, 0\ns_cbranch_scc1 {d}")
            for g in range(4): p(f"buffer_load_dwordx4 {v(XR[g],4)}, {v(VL16)}, {srd(SWS)}, s{SE} offen offset:{g*1024} sc1")
            p("s_waitcnt vmcnt(0)")
            p(f"s_add_u32 s{SSPIN}, s{SSPIN}, 1\ns_cmp_lt_u32 s{SSPIN}, {SPIN}\ns_cbranch_scc1 {l}")
            p.put(d)
        PK = [24, 28, 104]
        def pepi(mt):
            p = self.p
            for i in range(4 * mt, 4 * mt + 4): self.unpack(32 + 2 * (i & 3), XR[i // 3] + i % 3)
            for i in range(4):
                a = ACC + 32 * mt + 2 * i
                p(f"v_pk_add_f32 {v(a,2)}, {v(a,2)}, {v(32+2*i,2)}")
            for i in range(4):
                a = ACC + 32 * mt + 2 * i
                p(f"v_pk_fma_f32 {v(a,2)}, {v(a,2)}, {v(178,2)}, {v(178,2)} op_sel:[0,0,1] op_sel_hi:[1,0,1]")
            for i in range(4):
                a = ACC + 32 * mt + 2 * i
                p(f"v_pk_mul_f32 {v(a,2)}, {v(a,2)}, {v(self.ZUP[4*mt+i],2)}")
            for i in range(4):
                a = ACC + 32 * mt + 2 * i
                p(f"v_cvt_pk_bf16_f32 {v(PK[mt]+i)}, {v(a)}, {v(a+1)}")
        def pflag():
            p.wait(vm=ep['p']); self.flag(SLATE, 220)
        su = self.cap(setup)
        y2, y3, pl_ = self.y_dma(2), self.y_dma(3), ploads()
        sent = 1
        zg = [lambda: p.wait(vm=z1t['t'])] + self.cap(z1gelu)
        c1_ = o.get("c1", 9); c2_ = o.get("c2", 16)
        def pe():
            pepi(0); p.vmem(f"buffer_store_dwordx4 {v(PK[0],4)}, {v(VL16)}, {srd(SWS)}, s{SD} offen {o.get('pm', 'sc1')}")
            pepi(1); p.vmem(f"buffer_store_dwordx4 {v(PK[1],4)}, {v(GT1)}, {srd(SWS)}, s{SD} offen offset:2048 {o.get('pm', 'sc1')}")
            p(f"s_add_u32 s{SD}, s{SD}, 4096")
            pepi(2); ep['p'] = p.vmem(f"buffer_store_dwordx4 {v(PK[2],4)}, {v(PV)}, {srd(SWS)}, s{SD} offen {o.get('pm', 'sc1')}")
        if gl:
            g1, g2 = o.get("g1", 6), o.get("g2", 17)
            w_ = merge(zg + su, [wo_rd(k) for k in range(8)])
            h_ = len(w_) * o.get("xat", 50) // 100
            self.run(merge(w_[:h_], y0[:g1]) + [xload] + merge(w_[h_:], y0[g1:g2]))
            self.run(y0[g2:] + [lgw] + y1[:o.get("g3", 1)])
            xcheck()
            self.stamp(10)
            pe()
            self.run(y1[o.get("g3", 1):12])
            self.run(merge(self.y_read(0), y1[12:]))
            self.run(merge(ym(0), [lgw] + y2[:9]))
            self.run(merge(self.y_read(1), y2[9:13]))
            y3a = 4
            self.run(merge(ym(1), y2[13:] + [lgw] + y3[:y3a]))
        else:
            nx = y1[3:] + y2
            self.run(merge(zg, nx[:c1_]))
            xload()
            self.run(merge(merge(ym(0), su), nx[c1_:c2_]))
            if o.get('ee'): eloads()
            xcheck()
            self.stamp(10)
            pepi(0); p.vmem(f"buffer_store_dwordx4 {v(PK[0],4)}, {v(VL16)}, {srd(SWS)}, s{SD} offen {o.get('pm', 'sc1')}")
            pepi(1); p.vmem(f"buffer_store_dwordx4 {v(PK[1],4)}, {v(GT1)}, {srd(SWS)}, s{SD} offen offset:2048 {o.get('pm', 'sc1')}")
            p(f"s_add_u32 s{SD}, s{SD}, 4096")
            pepi(2); ep['p'] = p.vmem(f"buffer_store_dwordx4 {v(PK[2],4)}, {v(PV)}, {srd(SWS)}, s{SD} offen {o.get('pm', 'sc1')}")
            c3_ = max(c2_, 18)
            self.run(nx[c2_:c3_])
            self.run(merge(self.y_read(1), nx[c3_:c3_ + 4]))
            y3a = o.get('y3a', 3)
            self.run(merge(ym(1), nx[c3_ + 4:] + [lgw] + y3[:y3a]))
        self.stamp(11)
        self.run(y3[y3a:9])
        def ptouch():
            p(f"s_mul_i32 s{SA}, s{STB}, {2*45056}\ns_lshl_b32 s{SB_}, s{SCOL}, 2\ns_add_u32 s{SB_}, s{SB_}, s{SWV}\ns_mul_i32 s{SB_}, s{SB_}, 2816\ns_add_u32 s{SA}, s{SA}, s{SB_}\ns_add_u32 s{SA}, s{SA}, {PB}")
            p(f"v_min_u32 {v(222)}, 21, {v(VL)}\nv_lshlrev_b32 {v(222)}, 7, {v(222)}")
            p.vmem(f"buffer_load_dword {v(223)}, {v(222)}, {srd(SWS)}, s{SA} offen sc1")
        self.run(merge(self.y_read(2), y3[9:13]) + ([ptouch] if o.get("pt") else []))
        self.run(merge(ym(2), y3[13:] + ([] if o.get('ee') else [eloads]) + pl_[:o.get('p2', 0)]))
        pl_ = pl_[o.get('p2', 0):]
        self.stamp(12)
        pa_ = o.get("pa", 4)
        self.run(merge(self.y_read(3), pl_[:pa_]))
        DU = 104; XP = [4, 8, 12, 108]
        def xpart():
            p = self.p
            self.unpack(DU, DE); self.unpack(DU + 2, DE + 1)
            for gi in range(4):
                x = XP[gi]
                self.unpack(x, XE + 2 * gi); self.unpack(x + 2, XE + 2 * gi + 1)
                for k in range(4): p(f"v_mul_f32 {v(x+k)}, {v(x+k)}, {v(DU+k)}")
                for k in range(4): p(f"v_mul_f32 {v(x+k)}, {v(x+k)}, {v(GE+gi)}")
        self.run(merge(merge(ym(3), pl_[pa_:pa_ + 8]), ([lambda: p.wait(vm=ep['t'])] + self.cap(xpart)) if o.get("gc") else []))
        prest = pl_[pa_ + 8:]
        self.stamp(13)
        def pcheck(nt):
            l = p.label("sp"); d = p.label("sd")
            p.wait(vm=pt[(10, nt)])
            p(f"s_mov_b32 s{SSPIN}, 0")
            p.put(l)
            r = [PA + (kap * 2 + nt) * 4 for kap in range(11)]
            p(f"v_max3_u32 {v(178)}, {v(r[0])}, {v(r[1])}, {v(r[2])}")
            for k in range(3, 11, 2): p(f"v_max3_u32 {v(178)}, {v(178)}, {v(r[k])}, {v(r[k+1])}")
            p(f"v_cmp_eq_u32 vcc, -1, {v(178)}\ns_cmp_eq_u64 vcc, 0\ns_cbranch_scc1 {d}")
            for kap in range(11):
                if kap % 4 == 0: p(f"s_add_u32 s{SF}, s{SPB_}, {nt*45056+kap*1024}")
                p(f"buffer_load_dwordx4 {v(PA+(kap*2+nt)*4,4)}, {v(P10 if kap == 10 else VL16)}, {srd(SWS)}, s{SF} offen offset:{(kap%4)*1024} sc1")
            p("s_waitcnt vmcnt(0)")
            p(f"s_add_u32 s{SSPIN}, s{SSPIN}, 1\ns_cmp_lt_u32 s{SSPIN}, {SPIN}\ns_cbranch_scc1 {l}")
            p.put(d)
        def gcheck(nt, k0, k1):
            def f():
                l = p.label("sp"); d = p.label("sd")
                p.wait(vm=pt[(k1 - 1, nt)])
                p(f"s_mov_b32 s{SSPIN}, 0")
                p.put(l)
                r = [PA + (kap * 2 + nt) * 4 for kap in range(k0, k1)]
                p(f"v_max3_u32 {v(178)}, {v(r[0])}, {v(r[1])}, {v(r[2])}")
                if len(r) == 4: p(f"v_max_u32 {v(178)}, {v(178)}, {v(r[3])}")
                p(f"v_cmp_eq_u32 vcc, -1, {v(178)}\ns_cmp_eq_u64 vcc, 0\ns_cbranch_scc1 {d}")
                for kap in range(k0, k1):
                    p(f"s_add_u32 s{SF}, s{SPB_}, {nt*45056+kap*1024}")
                    p(f"buffer_load_dwordx4 {v(PA+(kap*2+nt)*4,4)}, {v(P10 if kap == 10 else VL16)}, {srd(SWS)}, s{SF} offen sc1")
                p("s_waitcnt vmcnt(0)")
                p(f"s_add_u32 s{SSPIN}, s{SSPIN}, 1\ns_cmp_lt_u32 s{SSPIN}, {SPIN}\ns_cbranch_scc1 {l}")
                p.put(d)
            return f
        def redw(tiles):
            return [(lambda mt=mt, nt=nt, i=i: p.lds(f"ds_write_b128 {v(WA+i)}, {v(YA+16*(2*mt+nt)+4*i,4)} offset:{nt*8192+mt*128}"))
                    for (mt, nt) in tiles for i in range(4)]
        def bm(kap, mt, nt):
            def m():
                p.wait(vm=pt[(kap, nt)])
                d = v(YA + 16 * (2 * mt + nt), 16)
                p(f"{MF} {d}, {ar(WOA(kap)+4*mt,4)}, {v(PA+(kap*2+nt)*4,4)}, {d}")
            return m
        def yscale(mt, nt):
            return [(lambda i=i: p(f"v_pk_mul_f32 {v(YA+16*(2*mt+nt)+2*i,2)}, {v(YA+16*(2*mt+nt)+2*i,2)}, {v(self.GY+2*nt,2)} op_sel_hi:[1,0]")) for i in range(8)]
        DU = 104; XP = [4, 8, 12, 108]
        def xpart():
            p = self.p
            self.unpack(DU, DE); self.unpack(DU + 2, DE + 1)
            for gi in range(4):
                x = XP[gi]
                self.unpack(x, XE + 2 * gi); self.unpack(x + 2, XE + 2 * gi + 1)
                for k in range(4): p(f"v_mul_f32 {v(x+k)}, {v(x+k)}, {v(DU+k)}")
                for k in range(4): p(f"v_mul_f32 {v(x+k)}, {v(x+k)}, {v(GE+gi)}")
        def yscale1(mt, nt):
            return [(lambda i=i: p(f"v_mul_f32 {v(YA+16*(2*mt+nt)+i)}, {v(YA+16*(2*mt+nt)+i)}, {v(self.GY+2*nt)}")) for i in range(16)]
        if o.get("gc"):
            GR_ = [(0, 4), (4, 8), (8, 11)]
            def bgrp(nt):
                ops = []
                for (k0, k1) in GR_:
                    ops.append(gcheck(nt, k0, k1))
                    ops += [bm(kap, mt, nt) for kap in range(k0, k1) for mt in range(2)]
                return ops
            self.run(merge(yscale(0, 0) + yscale(1, 0) + yscale(1, 1) + yscale(0, 1), prest[:3]))
            self.run(merge(bgrp(0), prest[3:], 0, 14))
            b1 = bgrp(1)
            b1 = b1[:19] + [bm(kap, 0, 1) for kap in range(8, 11)] + [bm(kap, 1, 1) for kap in range(8, 11)]
            self.run(merge(b1, redw([(0, 0), (1, 0)]), 3, 19))
            self.run(redw([(0, 1), (1, 1)]))
        else:
            self.run(merge(yscale(0, 0) + yscale(1, 0), prest[:2]))
            pcheck(0)
            mm0 = [bm(kap, mt, 0) for kap in range(11) for mt in range(2)]
            self.run(merge(merge(mm0, prest[2:], 0, 12), yscale1(1, 1) + yscale1(0, 1) + [lambda: p.wait(vm=ep['t'])] + self.cap(xpart)))
            if sent: pcheck(1)
            mm1 = [bm(kap, 0, 1) for kap in range(11)]
            mm2 = [bm(kap, 1, 1) for kap in range(11)]
            self.run(merge(mm1, redw([(0, 0), (1, 0)]), 2))
            self.run(merge(mm2, redw([(0, 1)]), 4))
            self.run(redw([(1, 1)]))
        p.wait_lg_all(); p("s_barrier")
        self.stamp(14)
        tk = {}
        def R(gi, s): return 16 + 16 * gi + 4 * s
        for gi in range(4):
            p.wait(lg=p.lg - 12)
            for s_ in range(4):
                tk[gi] = p.lds(f"ds_read_b128 {v(R(gi,s_),4)}, {v(RA+2*(s_>>1)+(gi&1))} offset:{(s_&1)*40960+gi*1024}")
        p(f"s_lshl_b32 s{SXO}, s{SXO}, 1")
        for gi in range(4):
            y = R(gi, 0)
            p.wait(lg=tk[gi])
            for hh in (0, 2):
                p(f"v_pk_add_f32 {v(y+hh,2)}, {v(y+hh,2)}, {v(y+4+hh,2)}\nv_pk_add_f32 {v(y+8+hh,2)}, {v(y+8+hh,2)}, {v(y+12+hh,2)}")
            for hh in (0, 2): p(f"v_pk_add_f32 {v(y+hh,2)}, {v(y+hh,2)}, {v(XP[gi]+hh,2)}")
            for hh in (0, 2): p(f"v_pk_add_f32 {v(y+hh,2)}, {v(y+hh,2)}, {v(y+8+hh,2)}")
            p(f"s_add_u32 s{SA}, s{SXO}, {gi*8192}")
            p.vmem(f"buffer_store_dwordx4 {v(y,4)}, {v(OV)}, {srd(SOUT)}, s{SA} offen{' ' + o['outmod'] if 'outmod' in o else ''}")
        ne = p.label("ne")
        p(f"s_lshl_b32 s{SA}, s{STB}, 3\ns_add_u32 s{SA}, s{SA}, s{SCOL}\ns_lshl_b32 s{SA}, s{SA}, 2\ns_add_u32 s{SA}, s{SA}, s{SWV}")
        p(f"s_cmp_eq_u32 s{SA}, {255*4}\ns_cbranch_scc0 {ne}")
        p(f"s_mov_b32 s{SA}, {EPOCH}")
        self.flag(SA, 220)
        p.put(ne)
        if o.get("stamps"):
            self.stamp(15)
            p(f"s_lshl_b32 s{SA}, s2, 2\ns_add_u32 s{SA}, s{SA}, s{SWV}\ns_lshl_b32 s{SA}, s{SA}, 8\ns_add_u32 s{SA}, s{SA}, {DBG}")
            p(f"v_lshlrev_b32 v254, 2, {v(VL)}")
            p.vmem(f"buffer_store_dword v255, v254, {srd(SWS)}, s{SA} offen")
            if o.get("dbgmax"):
                ty = o["dbgmax"]
                nd = p.label("nd")
                if ty > 1: p(f"s_cmp_{'ge' if ty == 2 else 'lt'}_u32 s2, 128\ns_cbranch_scc1 {nd}")
                p(f"s_load_dwordx2 s[{SX}:{SX+1}], s[0:1], 128\ns_waitcnt lgkmcnt(0)\ns_mov_b32 s{SX+2}, 64")
                p(f"v_readlane_b32 s{SA}, v255, 17\nv_readlane_b32 s{SB_}, v255, 20\ns_not_b32 s{SA}, s{SA}\ns_nop 3\nv_writelane_b32 v255, s{SA}, 0\nv_writelane_b32 v255, s{SB_}, 6")
                p.vmem(f"buffer_atomic_umax v255, v254, {srd(SX)}, 0 offen")
                p.put(nd)
        if "spin_from" in o:
            self.stamp(15)
            sl = p.label("spin")
            p(f"v_readlane_b32 s{SA}, v254, 0")
            p.put(sl)
            p(f"s_memrealtime s[{SSTMP}:{SSTMP+1}]\ns_waitcnt lgkmcnt(0)\ns_sub_u32 s{SB_}, s{SSTMP}, s{SA}\ns_cmp_lt_u32 s{SB_}, 3000\ns_cbranch_scc1 {sl}")
        p.put(self.END)
        p("s_endpgm")

    def build(self):
        self.prologue()
        self.p.vm_done = -1; self.p.lg_done = -1
        self.phase_u()
        self.p.vm_done = -1; self.p.lg_done = -1
        self.p("s_nop 15")
        self.phase_z()
        self.phase_g()
        lines, added = hazard_pass([x for l in self.p.L for x in l.split(chr(10))])
        hdr = open("gated_mix__ssm_conv_s5__mixer_gmlp__prompt.s.ref").read().split("; Override")[0]
        s = hdr + """; One persistent launch, 256 workgroups (one per CU), generated by a python script (work/gen7.py).
;  A: wg<128 : z2=gelu(x w_in[:,688:]) tile, LayerNorm (row stats exchanged as tagged granules), gate, -> z2n fragments
;     wg>=128: U=x B^T tile + chunked complex scan (chunk states exchanged as tagged granules) -> H ; x w_in[:,:688] tile
;  B: G = w_sp z2n (128x88 tile, K halves exchanged between two workgroups), P = gelu(z1)*(G+b)*(1-g)
;  C: out = g*(H C^T + x D) + P w_out  (64x64 tile, K split over the waves)
;  Hand-offs: write-through stores + per-launch tag (derived from ws[0], renewed at the end of the launch).
; @launch grid=(256,1,1) block=(256,1,1) lds=163840
"""
        s += '.amdgcn_target "amdgcn-amd-amdhsa--gfx950"\n.text\n'
        s += f".globl {NAME}\n.p2align 8\n.type {NAME},@function\n{NAME}:\n"
        s += "\n".join((l if l.endswith(":") else "    " + l) for l in lines) + "\n"
        s += f""".section .rodata,"a"
.p2align 6
.amdhsa_kernel {NAME}
  .amdhsa_next_free_vgpr 512
  .amdhsa_next_free_sgpr 102
  .amdhsa_accum_offset 256
  .amdhsa_group_segment_fixed_size 0
  .amdhsa_kernarg_size 144
  .amdhsa_user_sgpr_count 2
  .amdhsa_user_sgpr_kernarg_segment_ptr 1
  .amdhsa_system_sgpr_workgroup_id_x 1
  .amdhsa_float_denorm_mode_32 3
.end_amdhsa_kernel
"""
        return s, added

if __name__ == "__main__":
    out = sys.argv[1]
    opt = dict(ue=1, ee=1, p2=5, outmod="sc1", npro=2, npro_u=2, c1=16, c2=26, y3a=9, touch=2, zs0=19, zs1=20, zs2=8, zmode=2, pf=0, tlb=2, map=1)
    for a in sys.argv[2:]:
        k, _, val = a.partition("=")
        try: opt[k] = int(val) if val else 1
        except ValueError: opt[k] = val
    s, added = G(opt).build()
    open(out, "w").write(s)
    print("wrote", out, "nops added", added, "lines", s.count("\n"))
```

```python
import sys, math, struct
from core import *

NAME = "gated_mix__ssm_conv_s5__mixer_gmlp__prompt_kernel"
EPOCH = 0; GATE = 0x4000
ST = 0x10000; EG = 0x50000; DBG = 0x80000
Z2N = 0x100000; Z1 = 0x400000; PB = 0x700000; HB = 0xA00000
ZF = 0xE00000; HF = 0xE10000; PF = 0xE20000; Z1F = 0xE40000; ZF2 = 0xE50000; XB = 0x1000000; WS_END = 0x1400000
OOB = 0x80000000
SPIN = 200000
SX, SW1, SWSP, SWS, SCRE, SCIM, SWOUT, SOUT = 4, 8, 12, 16, 20, 24, 28, 32
PLRE, PLIM, PLDT, PDSK, PBSP, PGW, PBRE, PBIM, PWIN = 36, 38, 40, 42, 44, 46, 48, 50, 52
ST_T = 100
SWV, SRB, SCOL, STB = 56, 57, 58, 59
SA, SB_, SC, SD = 60, 61, 62, 63
SSTMP = 64
SDO, SWB, SPB0, SPST, SPSP = 68, 69, 70, 71, 72
SXB, SW1B, SXL, SWL = 73, 74, 75, 76
SPC = 77
SCB, SHB = 78, 79
SK = 80
SREG = 96
SE, SF = 97, 98
SSPIN = 99
SLATE = 101
SJ = 3
SGB = 95
SPFP = 70
SPFE = 79
SKH = 81
SGL = 77
SPO = 86
SU0, SNU = 82, 83
SZI = 72
SPB = 90
def srd(b): return f"s[{b}:{b+3}]"
def v(a, n=1): return f"v{a}" if n == 1 else f"v[{a}:{a+n-1}]"
def ar(a, n=1): return f"a{a}" if n == 1 else f"a[{a}:{a+n-1}]"
def sp(a): return f"s[{a}:{a+1}]"
VL, VL16, VOOB = 1, 2, 3
LOG2E = 1.4426950408889634
def f2u(x): return struct.unpack("<I", struct.pack("<f", x))[0]
MF = "v_mfma_f32_32x32x16_bf16"

class G:
    def __init__(self, opt):
        self.o = opt
        self.p = Prog()

    def stamp(self, k):
        if self.o.get("spin_from") == k:
            p = self.p
            p(f"s_memrealtime s[{SSTMP}:{SSTMP+1}]"); p.wait_lg_all()
            p(f"v_mov_b32 v254, s{SSTMP}")
        if self.o.get("stamps"):
            p = self.p
            p(f"s_memrealtime s[{SSTMP}:{SSTMP+1}]\ns_memtime s[{SSTMP+2}:{SSTMP+3}]"); p.wait_lg_all()
            p(f"v_writelane_b32 v255, s{SSTMP}, {k}\nv_writelane_b32 v255, s{SSTMP+2}, {k+32}")
    def cap(self, fn):
        sub = Prog(); save = self.p; self.p = sub
        fn()
        self.p = save
        assert sub.vm == 0 and sub.lg == 0
        return [(lambda l=l: self.p(l)) for l in sub.L]
    def run(self, ops):
        for op in ops: op()
    def rot(self, sreg, st, unit):
        if not self.o.get("rot"): return (sreg, st * unit)
        return (sreg, ("rot", st, unit))
    def rot0(self, sreg, unit):
        if not self.o.get("rot"): return sreg
        self.p(f"s_and_b32 s{SDO}, s2, 7\ns_mul_i32 s{SDO}, s{SDO}, {unit}\ns_add_u32 s{SDO}, s{SDO}, s{sreg}")
        return SDO
    def dseq(self, items):
        p = self.p
        def setup(it):
            if it[0] is not None: p(f"s_add_u32 m0, s{it[0][0]}, {it[0][1]}")
            if it[1] is not None:
                if isinstance(it[1][1], tuple):
                    _, st, unit = it[1][1]
                    p(f"s_add_u32 s{SDO}, s2, {st}\ns_and_b32 s{SDO}, s{SDO}, 7\ns_mul_i32 s{SDO}, s{SDO}, {unit}\ns_add_u32 s{SDO}, s{SDO}, s{it[1][0]}")
                else: p(f"s_add_u32 s{SDO}, s{it[1][0]}, {it[1][1]}")
        ops = [lambda: setup(items[0])]
        for i, it in enumerate(items):
            def f(i=i, it=it):
                t = p.vmem(it[2])
                if it[3]: it[3](t)
                if i + 1 < len(items) and items[i + 1][:2] != it[:2]: setup(items[i + 1])
            ops.append(f)
        return ops
    def poll_addr(self, vt, groups):
        p = self.p; n0 = 0
        p(f"v_mov_b32 {v(vt)}, {v(VOOB)}")
        for (sr, n) in groups:
            if n == 1: p(f"v_writelane_b32 {v(vt)}, s{sr}, {n0}")
            else:
                p(f"s_sub_u32 s{sr}, s{sr}, {n0*128}\nv_lshl_add_u32 {v(vt+1)}, {v(VL)}, 7, s{sr}")
                m = ((1 << n) - 1) << n0
                p(f"s_mov_b32 vcc_lo, {m & 0xffffffff}\ns_mov_b32 vcc_hi, {m >> 32}\nv_cndmask_b32 {v(vt)}, {v(vt)}, {v(vt+1)}, vcc")
            n0 += n
        return n0
    def poll(self, vt, n):
        p = self.p
        l = p.label("poll"); d = p.label("pd")
        p(f"s_mov_b32 s{SSPIN}, 0")
        p.put(l)
        p.vmem(f"buffer_load_dword {v(vt+1)}, {v(vt)}, {srd(SWS)}, 0 offen sc1")
        p.wait_vm_all()
        p(f"v_cmp_ne_u32 vcc, s{ST_T}, {v(vt+1)}")
        if n <= 32: p(f"s_and_b32 s{SF}, vcc_lo, {(1<<n)-1}")
        else: p(f"s_and_b32 vcc_hi, vcc_hi, {(1<<(n-32))-1}\ns_or_b32 s{SF}, vcc_lo, vcc_hi")
        p(f"s_cbranch_scc0 {d}")
        p(f"s_add_u32 s{SSPIN}, s{SSPIN}, 1\ns_cmp_lt_u32 s{SSPIN}, {SPIN}\ns_cbranch_scc1 {l}")
        p.put(d)
    def flag_prep(self, vt):
        p = self.p
        p(f"v_mov_b32 {v(vt)}, s{ST_T}\nv_mov_b32 {v(vt+1)}, {v(VOOB)}\nv_writelane_b32 {v(vt+1)}, 0, 0")
    def flag(self, off_sreg, vt):
        self.p.vmem(f"buffer_store_dword {v(vt)}, {v(vt+1)}, {srd(SWS)}, s{off_sreg} offen sc1")
    def xhalf_sum(self, a, t):
        self.p(f"v_mov_b32 {v(t)}, {v(a)}\nv_permlane32_swap_b32 {v(a)}, {v(t)}\nv_add_f32 {v(a)}, {v(a)}, {v(t)}")
    def rnd(self, d, s):
        self.p(f"v_cvt_pk_bf16_f32 {v(d)}, {v(s)}, {v(s)}\nv_lshlrev_b32 {v(d)}, 16, {v(d)}")
    def unpack(self, d, s):
        self.p(f"v_and_b32 {v(d+1)}, 0xffff0000, {v(s)}\nv_lshlrev_b32 {v(d)}, 16, {v(s)}")
    def plain_read_addr(self, dst4, base_sreg, t):
        p = self.p
        p(f"v_and_b32 {v(t)}, 31, {v(VL)}\nv_lshlrev_b32 {v(t)}, 7, {v(t)}")
        if base_sreg is not None: p(f"v_add_u32 {v(t)}, s{base_sreg}, {v(t)}")
        p(f"v_bfe_u32 {v(t+1)}, {v(VL)}, 1, 3\nv_lshrrev_b32 {v(dst4)}, 5, {v(VL)}\nv_xor_b32 {v(t+1)}, {v(t+1)}, {v(dst4)}")
        p(f"v_lshlrev_b32 {v(t+1)}, 4, {v(t+1)}")
        for ks in range(4):
            p(f"v_xor_b32 {v(dst4+ks)}, {32*ks}, {v(t+1)}\nv_add_u32 {v(dst4+ks)}, {v(dst4+ks)}, {v(t)}")
    def plain_dma_addr(self, dst4, rowbytes, t, rowstep=8):
        p = self.p
        p(f"v_lshrrev_b32 {v(t)}, 3, {v(VL)}\nv_mul_u32_u24 {v(t)}, {rowbytes}, {v(t)}")
        self.plain_dma_addr2(dst4, t, t + 1, rowstep * rowbytes)
    def plain_dma_addr2(self, dst4, vrow, t, step):
        p = self.p
        p(f"v_and_b32 {v(t)}, 7, {v(VL)}\nv_lshrrev_b32 {v(dst4)}, 4, {v(VL)}\nv_xor_b32 {v(t)}, {v(t)}, {v(dst4)}\nv_lshlrev_b32 {v(t)}, 4, {v(t)}")
        p(f"v_add_u32 {v(dst4)}, {v(t)}, {v(vrow)}")
        p(f"v_xor_b32 {v(t)}, 64, {v(t)}\nv_add_u32 {v(dst4+1)}, {v(t)}, {v(vrow)}")
        p(f"v_add_u32 {v(dst4+2)}, {2*(step-1024)}, {v(dst4)}\nv_add_u32 {v(dst4+3)}, {3*(step-1024)}, {v(dst4+1)}\nv_add_u32 {v(dst4+1)}, {step-1024}, {v(dst4+1)}")
    def panel_tr_addr(self, dst2, base_sreg, t, perm):
        p = self.p
        p(f"v_lshrrev_b32 {v(t)}, 5, {v(VL)}\nv_lshlrev_b32 {v(t)}, 10, {v(t)}")
        p(f"v_bfe_u32 {v(t+1)}, {v(VL)}, 2, 2\nv_lshl_add_u32 {v(t)}, {v(t+1)}, 7, {v(t)}")
        p(f"v_bfe_u32 {v(t+1)}, {v(VL)}, 4, 1\nv_lshl_add_u32 {v(t)}, {v(t+1)}, 5, {v(t)}")
        if perm:
            p(f"v_and_b32 {v(t+1)}, 1, {v(VL)}\nv_lshl_add_u32 {v(t)}, {v(t+1)}, 4, {v(t)}")
            p(f"v_bfe_u32 {v(t+1)}, {v(VL)}, 1, 1\nv_lshl_add_u32 {v(t)}, {v(t+1)}, 3, {v(t)}")
        else:
            p(f"v_and_b32 {v(t+1)}, 3, {v(VL)}\nv_lshl_add_u32 {v(t)}, {v(t+1)}, 3, {v(t)}")
        p(f"v_bfe_u32 {v(t+1)}, {v(VL)}, 3, 1\nv_lshlrev_b32 {v(t+1)}, 6, {v(t+1)}")
        if base_sreg is not None: p(f"v_add_u32 {v(t)}, s{base_sreg}, {v(t)}")
        p(f"v_add_u32 {v(dst2)}, {v(t)}, {v(t+1)}\nv_xor_b32 {v(t+1)}, 64, {v(t+1)}\nv_add_u32 {v(dst2+1)}, {v(t)}, {v(t+1)}")
    def unit_tr_addr(self, dst2, base_sreg, t, perm, flip_sreg=None):
        p = self.p
        p(f"v_bfe_u32 {v(t)}, {v(VL)}, 4, 1")
        if flip_sreg is not None: p(f"v_xor_b32 {v(t)}, s{flip_sreg}, {v(t)}")
        p(f"v_lshlrev_b32 {v(t)}, 1, {v(t)}")
        p(f"v_bfe_u32 {v(t+1)}, {v(VL)}, {0 if perm else 1}, 1\nv_or_b32 {v(t)}, {v(t)}, {v(t+1)}")
        p(f"v_lshrrev_b32 {v(t+1)}, 5, {v(VL)}\nv_lshlrev_b32 {v(t+1)}, 1, {v(t+1)}\nv_xor_b32 {v(t+1)}, {v(t+1)}, {v(t)}")
        p(f"v_lshlrev_b32 {v(t)}, 9, {v(t)}")
        p(f"v_bfe_u32 {v(t+2)}, {v(VL)}, 2, 2\nv_lshl_add_u32 {v(t)}, {v(t+2)}, 4, {v(t)}")
        p(f"v_bfe_u32 {v(t+2)}, {v(VL)}, {1 if perm else 0}, 1\nv_lshl_add_u32 {v(t)}, {v(t+2)}, 3, {v(t)}")
        if base_sreg is not None: p(f"v_add_u32 {v(t)}, s{base_sreg}, {v(t)}")
        p(f"v_lshl_add_u32 {v(dst2)}, {v(t+1)}, 6, {v(t)}")
        p(f"v_xor_b32 {v(t+1)}, 1, {v(t+1)}\nv_lshl_add_u32 {v(dst2+1)}, {v(t+1)}, 6, {v(t)}")

    def gemm_loop(self, nslot, reads, mfmas, dma, tick, rfront, npro, extra, valu=None):
        p = self.p
        p.wait(vm=tick[0]); p("s_barrier")
        self.stamp(20)
        self.run(reads(0))
        d = []
        for st in range(npro, nslot): d += dma(st)
        q = (len(d) + 2) // 3
        pend = [d[i * q:(i + 1) * q] for i in range(3)]
        for n in range(32):
            rd = []
            if n + 1 < 32:
                if (n + 1) % 4 == 0:
                    st = (n + 1) // 4
                    p.wait(vm=tick[st], lg=p.lg - 1); p("s_barrier")
                    if self.o.get("astamps"): self.stamp(20 + st)
                    d = dma(st - 1 + nslot) if st - 1 + nslot < 8 else extra.get(st, lambda: [])()
                    q = (len(d) + 3) // 4
                    pend = [d[i * q:(i + 1) * q] for i in range(4)]
                rd = reads(n + 1)
            seq = merge(mfmas(n), rd, 0, rfront)
            if pend: seq = merge(seq, pend.pop(0), len(seq) // 2)
            if valu and n in valu: seq = merge(seq, valu[n])
            self.run(seq)

    def gate(self, GX, GW, GU, GS, GT):
        p = self.p
        for i in range(4):
            for r in range(4):
                p(f"v_dot2_f32_bf16 {v(GS+r)}, {v(GX+4*r+i)}, {v(GW+i)}, {'0' if i == 0 else v(GS+r)}")
        p("s_nop 2")
        for mod in ["quad_perm:[1,0,3,2]", "quad_perm:[2,3,0,1]", "row_half_mirror", "row_mirror"]:
            for r in range(4): p(f"v_add_f32_dpp {v(GS+r)}, {v(GS+r)}, {v(GS+r)} {mod} row_mask:0xf bank_mask:0xf")
        for sw in ["v_permlane16_swap_b32", "v_permlane32_swap_b32"]:
            for r in range(4): p(f"v_mov_b32 {v(GT+r)}, {v(GS+r)}")
            for r in range(4): p(f"{sw} {v(GS+r)}, {v(GT+r)}")
            for r in range(4): p(f"v_add_f32 {v(GS+r)}, {v(GS+r)}, {v(GT+r)}")
        for r in range(4): p(f"v_mul_f32 {v(GS+r)}, {f2u(-LOG2E)}, {v(GS+r)}")
        for r in range(4): p(f"v_exp_f32 {v(GS+r)}, {v(GS+r)}")
        for r in range(4): p(f"v_add_f32 {v(GS+r)}, 1.0, {v(GS+r)}")
        for r in range(4): p(f"v_rcp_f32 {v(GS+r)}, {v(GS+r)}")
        p(f"v_mov_b32 {v(GT)}, {v(VOOB)}\nv_writelane_b32 {v(GT)}, 0, 0")

    def w_dma_addr(self, dst3, t, colbase):
        p = self.p
        for i in range(3):
            p(f"v_add_u32 {v(t)}, {64*i}, {v(VL)}\nv_mul_u32_u24 {v(t+1)}, 171, {v(t)}\nv_lshrrev_b32 {v(t+1)}, 11, {v(t+1)}")
            p(f"v_mul_u32_u24 {v(t+2)}, 12, {v(t+1)}\nv_sub_u32 {v(t)}, {v(t)}, {v(t+2)}\nv_cmp_le_u32 vcc, s{SNU}, {v(t)}")
            p(f"v_mul_u32_u24 {v(t+1)}, 2752, {v(t+1)}\nv_lshl_add_u32 {v(t)}, {v(t)}, 4, {v(t+1)}")
            if colbase - 1024 * i: p(f"v_add_u32 {v(t)}, {colbase-1024*i}, {v(t)}")
            p(f"v_cndmask_b32 {v(dst3+i)}, {v(t)}, {v(VOOB)}, vcc")
    def w_tr_addr(self, dst, base, t):
        p = self.p
        p(f"v_lshrrev_b32 {v(t)}, 5, {v(VL)}\nv_bfe_u32 {v(t+1)}, {v(VL)}, 2, 2\nv_lshl_add_u32 {v(t)}, {v(t)}, 3, {v(t+1)}\nv_mul_u32_u24 {v(t)}, 192, {v(t)}")
        p(f"v_bfe_u32 {v(t+1)}, {v(VL)}, 4, 1\nv_lshl_add_u32 {v(t)}, {v(t+1)}, 5, {v(t)}")
        p(f"v_and_b32 {v(t+1)}, 1, {v(VL)}\nv_lshl_add_u32 {v(t)}, {v(t+1)}, 4, {v(t)}")
        p(f"v_bfe_u32 {v(t+1)}, {v(VL)}, 1, 1\nv_lshl_add_u32 {v(t)}, {v(t+1)}, 3, {v(t)}")
        p(f"v_add_u32 {v(dst)}, {base}, {v(t)}")
    def slice_z2(self, j):
        p = self.p
        p(f"s_mul_i32 s{SU0}, s{j}, 12\ns_sub_u32 s{SU0}, s{SU0}, 2")
        p.atom(f"s_cmp_eq_u32 s{j}, 0\ns_cselect_b32 s{SU0}, 0, s{SU0}\ns_cselect_b32 s{SNU}, 10, 12\ns_cmp_eq_u32 s{j}, 7\ns_cselect_b32 s{SNU}, 4, s{SNU}")
    def valid_masks(self):
        p = self.p
        p.atom(f"s_mov_b32 s{SK+6}, {f2u(1/96)}\ns_mov_b32 s{SK+4}, 0\ns_cmp_eq_u32 s{SCOL}, 0\ns_cselect_b32 s{SK+6}, {f2u(1/80)}, s{SK+6}\ns_cselect_b32 s{SK+4}, {f2u(16.0)}, s{SK+4}\n"
               f"s_cmp_eq_u32 s{SCOL}, 7\ns_cselect_b32 s{SK+6}, {f2u(1/32)}, s{SK+6}\ns_cselect_b32 s{SK+4}, {f2u(64.0)}, s{SK+4}")
        c1 = -2 * LOG2E * 0.7978845608028654
        p(f"s_mov_b32 s{SK}, {f2u(c1*0.044715)}\nv_mov_b32 {v(self.VC0)}, {f2u(c1)}")

    def gelu_pair(self, a, t, out_packed=None):
        p = self.p
        p(f"v_pk_mul_f32 {v(t,2)}, {v(a,2)}, {v(a,2)}")
        p(f"v_pk_fma_f32 {v(t,2)}, {v(t,2)}, {sp(SK)}, {v(self.VC0,2)} op_sel_hi:[1,0,0]")
        p(f"v_pk_mul_f32 {v(t,2)}, {v(t,2)}, {v(a,2)}")
        p(f"v_exp_f32 {v(t)}, {v(t)}\nv_exp_f32 {v(t+1)}, {v(t+1)}")
        p(f"v_pk_add_f32 {v(t,2)}, {v(t,2)}, 1.0 op_sel_hi:[1,0]")
        p(f"v_rcp_f32 {v(t)}, {v(t)}\nv_rcp_f32 {v(t+1)}, {v(t+1)}")
        if out_packed is not None:
            p(f"v_pk_mul_f32 {v(t,2)}, {v(t,2)}, {v(a,2)}")
            p(f"v_cvt_pk_bf16_f32 {v(out_packed)}, {v(t)}, {v(t+1)}")
        else:
            p(f"v_pk_mul_f32 {v(a,2)}, {v(t,2)}, {v(a,2)}")
    def gelu_many(self, pairs, temps, outs=None):
        p = self.p; ng = len(temps)
        for g0 in range(0, len(pairs), ng):
            streams = []
            for k, i in enumerate(range(g0, min(g0 + ng, len(pairs)))):
                sub = Prog(); save = self.p; self.p = sub
                self.gelu_pair(pairs[i], temps[k], None if outs is None else outs[i])
                self.p = save
                streams.append(sub.L)
            for j in range(len(streams[0])):
                for s in streams: p(s[j])

    VWD, VWR, VWA, VC0 = 240, 244, 248, 252
    def wsp_setup(self, t):
        p = self.p
        self.plain_dma_addr(self.VWD, 4096, t)
        p(f"s_lshl_b32 s{SA}, s{SKH}, 12")
        self.plain_read_addr(self.VWR, SA, t)
        p(f"s_lshr_b32 s{SWB}, s{STB}, 1\ns_lshl_b32 s{SWB}, s{SWB}, 19\ns_and_b32 s{SB_}, s{SWV}, 1\ns_lshl_b32 s{SB_}, s{SB_}, 18\ns_add_u32 s{SWB}, s{SWB}, s{SB_}")
        p(f"s_lshl_b32 s{SB_}, s{SKH}, 11\ns_add_u32 s{SWB}, s{SWB}, s{SB_}\ns_lshr_b32 s{SB_}, s{SWV}, 1\ns_lshl_b32 s{SB_}, s{SB_}, 10\ns_add_u32 s{SWB}, s{SWB}, s{SB_}")
        self.wsp_t = {}
    def piece(self, st): return (SPB + st % 5, 0)
    def wsp_dma(self, st):
        if self.o.get("x_nowsp") and st >= 2:
            self.wsp_t[st] = -1
            return [lambda: None] * 9
        items = []; sr, im = self.piece(st)
        for hh in range(2):
            for i in range(4):
                def cb(t): self.wsp_t[st] = t
                items.append(((sr, im + hh * 4096) if i == 0 else None, (SWB, st * 128 + hh * 131072) if i == 0 else None,
                              f"buffer_load_dwordx4 {v(self.VWD+i)}, {srd(SWSP)}, s{SDO} offen offset:{i*1024} {self.o.get('wmod', '')} lds", cb))
        return self.dseq(items)
    def wsp_read(self, st):
        if self.o.get("x_nord"): return [lambda: None]
        p = self.p; sr, im = self.piece(st)
        def pre():
            for ks in range(4): p(f"v_add_u32 {v(self.VWA+ks)}, s{sr}, {v(self.VWR+ks)}")
            p.wait(vm=self.wsp_t[st], lg=p.lg - 8)
        ops = [pre]
        for nt in range(2):
            for ks in range(4):
                def f(ks=ks, nt=nt):
                    p.lds(f"ds_read_b128 {ar(((st*4+ks)*2+nt)*4,4)}, {v(self.VWA+ks)} offset:{im}")
                    if nt == 0: p(f"v_xor_b32 {v(self.VWA+ks)}, 4096, {v(self.VWA+ks)}")
                ops.append(f)
        return ops

    ZXD = 104
    def prologue(self):
        p = self.p
        self.END = p.label("end"); self.LU = p.label("U"); self.LG = p.label("G"); self.LZ = p.label("Z")
        p(f"s_cmp_ge_u32 s2, 256\ns_cbranch_scc1 {self.END}")
        if self.o.get("sst"): p("s_memrealtime s[84:85]\ns_waitcnt lgkmcnt(0)")
        if self.o.get("cpf", 1):
            p(f"s_getpc_b64 {sp(SSTMP)}\nv_lshlrev_b32 v4, 7, v0\nglobal_load_dword v5, v4, {sp(SSTMP)}")
        p(f"s_load_dwordx2 {sp(SX)}, s[0:1], 0\ns_load_dwordx2 {sp(PWIN)}, s[0:1], 80\ns_load_dwordx4 s[{PBRE}:{PBRE+3}], s[0:1], 24")
        p(f"v_lshrrev_b32 v2, 6, v0\nv_and_b32 {v(VL)}, 63, v0\nv_readfirstlane_b32 s{SWV}, v2")
        p(f"s_and_b32 s{SA}, s2, 6\ns_lshl_b32 s{SA}, s{SA}, 1\ns_bfe_u32 s{SRB}, s2, 0x20005\ns_add_u32 s{SRB}, s{SRB}, s{SA}")
        p(f"s_mov_b32 s{SX+2}, 2097152\ns_mov_b32 s{SX+3}, 0x20000\ns_lshl_b32 s{SXB}, s{SRB}, 17")
        if self.o.get("pf", 2) == 5:
            p(f"s_lshl_b32 s{SA}, s2, 1\ns_add_u32 s{SA}, s{SA}, s{SWV}\ns_and_b32 s{SB_}, s2, 127\ns_cmp_eq_u32 s{SWV}, 3\ns_cselect_b32 s{SA}, s{SB_}, s{SA}\ns_lshl_b32 s{SA}, s{SA}, 12")
            p(f"s_mul_i32 s{SB_}, s2, 5504\ns_cmp_eq_u32 s{SWV}, 2\ns_cselect_b32 s{SA}, s{SB_}, s{SA}\ns_cselect_b32 s{SB_}, 42, 31\nv_min_u32 v6, s{SB_}, {v(VL)}\nv_lshl_add_u32 v6, v6, 7, s{SA}")
            p.wait_lg_all()
            p(f"s_cselect_b64 {sp(SPFP)}, {sp(PWIN)}, {sp(SX)}\ns_cmp_ge_u32 s2, 128\ns_cselect_b64 {sp(SC)}, {sp(PBIM)}, {sp(PBRE)}\ns_cmp_eq_u32 s{SWV}, 3\ns_cselect_b64 {sp(SPFP)}, {sp(SC)}, {sp(SPFP)}")
            if not self.o.get("pfpos"): p(f"global_load_dword v7, v6, {sp(SPFP)}")
        p(f"s_cmp_ge_u32 s2, 128\ns_cbranch_scc1 {self.LU}")
        self.plain_dma_addr(self.ZXD, 1024, 112)
        p(f"s_lshl_b32 s{SA}, s{SWV}, 15\ns_add_u32 s{SXB}, s{SXB}, s{SA}\ns_mul_i32 s{SREG}, s{SWV}, 40960\ns_mov_b32 m0, s{SREG}")
        p.wait_lg_all()
        so = self.rot0(SXB, 128)
        for i in range(4): p.vmem(f"buffer_load_dwordx4 {v(self.ZXD+i)}, {srd(SX)}, s{so} offen offset:{i*1024} lds")
        p(f"s_branch {self.LZ}")
    def common2(self):
        p = self.p
        if self.o.get("pfpos") == 1: p(f"global_load_dword v7, v6, {sp(SPFP)}")
        p(f"v_lshlrev_b32 {v(VL16)}, 4, {v(VL)}\nv_mov_b32 {v(VOOB)}, {OOB}")
        if self.o.get("stamps"):
            p("v_mov_b32 v255, 0")
            if self.o.get("sst"): p("v_writelane_b32 v255, s84, 17"); self.stamp(22)
            else: self.stamp(17)
        elif "spin_from" in self.o: self.stamp(17)
        p(f"s_and_b32 s{SKH}, s2, 1\ns_lshl_b32 s{SC}, s{SKH}, 2\ns_bfe_u32 s{SD}, s2, 0x20003\ns_add_u32 s{SCOL}, s{SC}, s{SD}\ns_mov_b32 s{SW1+3}, 0x20000")
    def common3(self):
        p = self.p
        if self.o.get("pfpos") == 2: p(f"global_load_dword v7, v6, {sp(SPFP)}")
        p(f"s_load_dwordx2 {sp(SWS)}, s[0:1], 136\ns_load_dwordx2 {sp(PGW)}, s[0:1], 112\ns_load_dwordx4 s[{PLRE}:{PLRE+3}], s[0:1], 8\ns_load_dwordx2 {sp(PLDT)}, s[0:1], 56")
        for (r, off) in [(SWSP, 88), (SCRE, 40), (SCIM, 48), (SWOUT, 104), (SOUT, 120), (PDSK, 64), (PBSP, 96)]:
            p(f"s_load_dwordx2 {sp(r)}, s[0:1], {off}")
        for (r, n) in [(SWSP, 8388608), (SWS, WS_END), (SCRE, 524288), (SCIM, 524288), (SWOUT, 704512), (SOUT, 4194304)]:
            p(f"s_mov_b32 s{r+2}, {n}\ns_mov_b32 s{r+3}, 0x20000")
        if self.o.get("xl"):
            p(f"s_bfe_u32 s{SKH}, s2, 0x10006\ns_and_b32 s{STB}, s2, 7\ns_lshl_b32 s{STB}, s{STB}, 2\ns_lshr_b32 s{SC}, s2, 6\ns_add_u32 s{STB}, s{STB}, s{SC}\ns_bfe_u32 s{SJ}, s2, 0x30003")
        else:
            p(f"s_and_b32 s{SC}, s2, 6\ns_lshl_b32 s{SC}, s{SC}, 1\ns_lshr_b32 s{STB}, s2, 6\ns_add_u32 s{STB}, s{STB}, s{SC}\ns_lshl_b32 s{STB}, s{STB}, 1\ns_add_u32 s{STB}, s{STB}, s{SKH}\ns_bfe_u32 s{SJ}, s2, 0x30003")
        if self.o.get("pf", 2) == 6:
            D_, E_ = SB_, SF
            p(f"s_lshr_b32 s{D_}, s2, 3\ns_lshl_b32 s{D_}, s{D_}, 2\ns_add_u32 s{D_}, s{D_}, s{SWV}")
            p(f"s_bfe_u32 s{SA}, s2, 0x20001\ns_lshl_b32 s{SA}, s{SA}, 6\ns_add_u32 s{SA}, s{SA}, s{D_}")
            p(f"s_and_b32 s{E_}, s2, 1\ns_lshl_b32 s{SC}, s{E_}, 5\ns_and_b32 s{SPFE}, s{D_}, 31\ns_add_u32 s{SC}, s{SC}, s{SPFE}")
            p.atom(f"s_cmp_ge_u32 s{D_}, 64\ns_cselect_b32 s{SA}, s{SC}, s{SA}\ns_cselect_b64 {sp(SPFP)}, {sp(PBRE)}, {sp(SX)}\ns_cmp_ge_u32 s{D_}, 96\ns_cselect_b64 {sp(SPFP)}, {sp(PBIM)}, {sp(SPFP)}")
            p(f"s_lshl_b32 s{SA}, s{SA}, 13\nv_lshl_add_u32 {v(6)}, {v(VL)}, 7, s{SA}")
            p(f"v_mul_u32_u24 {v(8)}, 37, {v(VL)}\nv_lshrrev_b32 {v(8)}, 8, {v(8)}")
            p(f"v_mul_u32_u24 {v(9)}, 7, {v(8)}\nv_sub_u32 {v(9)}, {v(VL)}, {v(9)}\nv_lshlrev_b32 {v(9)}, 7, {v(9)}\nv_min_u32 {v(9)}, 760, {v(9)}")
            p(f"v_min_u32 {v(8)}, 7, {v(8)}\nv_and_b32 {v(10)}, 1, {v(8)}\nv_mul_u32_u24 {v(8)}, 1376, {v(8)}\nv_add_u32 {v(8)}, {v(8)}, {v(9)}")
            p(f"s_lshl_b32 s{SA}, s{E_}, 5\nv_mul_u32_u24 {v(10)}, s{SA}, {v(10)}\nv_sub_u32 {v(8)}, {v(8)}, {v(10)}")
            p(f"s_mul_i32 s{SA}, s{D_}, {4*2752}\ns_mul_i32 s{E_}, s{E_}, 768\ns_add_u32 s{SA}, s{SA}, s{E_}\nv_add_u32 {v(8)}, s{SA}, {v(8)}\nv_min_u32 {v(8)}, {512*2752-4}, {v(8)}")
            if self.o.get("pfpos") == 3: p(f"global_load_dword {v(9)}, {v(8)}, {sp(PWIN)}\nglobal_load_dword {v(7)}, {v(6)}, {sp(SPFP)}".replace("\n", "\n"))
        if self.o.get("pf", 2) == 2:
            A_, C_, D_, E_ = SA, SC, SB_, SF
            p(f"s_lshl_b32 s{D_}, s{SWV}, 8\ns_add_u32 s{D_}, s{D_}, s2\ns_mov_b32 s{C_}, 0\ns_mov_b32 s{A_}, 0\ns_mov_b32 s{E_}, 2047")
            for (lo, off, last) in [(171, 24, 511), (214, 32, 511), (257, 80, 0)]:
                p.atom(f"s_cmp_ge_u32 s{D_}, {lo}\ns_cselect_b32 s{C_}, {off}, s{C_}\ns_cselect_b32 s{A_}, {lo}, s{A_}\ns_cselect_b32 s{E_}, {last}, s{E_}")
            p.atom(f"s_cmp_lt_u32 s{D_}, 365\ns_cselect_b32 s{SPFE}, 1, 0")
            p(f"s_sub_u32 s{D_}, s{D_}, s{A_}\ns_load_dwordx2 {sp(SPFP)}, s[0:1], s{C_}")
            p(f"v_mul_u32_u24 {v(6)}, 52, {v(VL)}\nv_lshrrev_b32 {v(6)}, 8, {v(6)}\nv_mul_u32_u24 {v(7)}, 5, {v(6)}\nv_sub_u32 {v(7)}, {v(VL)}, {v(7)}")
            p(f"s_mul_i32 s{A_}, s{D_}, 12\nv_add_u32 {v(6)}, s{A_}, {v(6)}\nv_min_u32 {v(6)}, s{E_}, {v(6)}\nv_lshlrev_b32 {v(6)}, 10, {v(6)}\nv_lshl_add_u32 {v(6)}, {v(7)}, 7, {v(6)}\nv_add_u32 {v(6)}, 384, {v(6)}")
            p(f"s_lshl_b32 s{D_}, s{D_}, 13\ns_add_u32 s{D_}, s{D_}, {192*2752}\nv_lshl_add_u32 {v(7)}, {v(VL)}, 7, s{D_}\nv_min_u32 {v(7)}, {512*2752-4}, {v(7)}")
            p.atom(f"s_cmp_eq_u32 s{E_}, 0\ns_cselect_b64 vcc, -1, 0")
            p(f"v_cndmask_b32 {v(6)}, {v(6)}, {v(7)}, vcc")
    def pf2(self):
        p = self.p
        p.wait_lg_all()
        if self.o.get("wsoff"): p(f"s_add_u32 s{SWS}, s{SWS}, {self.o['wsoff'] << 20}\ns_addc_u32 s{SWS+1}, s{SWS+1}, 0")
        if self.o.get("pf", 2) == 6 and self.o.get("pfpos") != 3:
            p(f"global_load_dword {v(9)}, {v(8)}, {sp(PWIN)}\nglobal_load_dword {v(7)}, {v(6)}, {sp(SPFP)}")
        if self.o.get("pf", 2) == 2:
            l = p.label("pf")
            p(f"s_cmp_eq_u32 s{SPFE}, 0\ns_cbranch_scc1 {l}\nglobal_load_dword {v(7)}, {v(6)}, {sp(SPFP)}")
            p.put(l)
        if self.o.get("cpf", 1):
            l = p.label("c2")
            here = p.label("pc")
            p(f"s_cmp_lg_u32 s{SWV}, 0\ns_cbranch_scc1 {l}\ns_getpc_b64 {sp(SSTMP)}")
            p.put(here)
            p(f"s_sub_u32 s{SSTMP}, s{SSTMP}, {here}-{NAME}\ns_subb_u32 s{SSTMP+1}, s{SSTMP+1}, 0")
            p(f"v_add_u32 v4, 32768, v4\nv_min_u32 v4, {self.END}-{NAME}, v4\nglobal_load_dword v5, v4, {sp(SSTMP)}")
            p.put(l)
        if self.o.get("tw", 0):
            ls = [p.label("tw") for _ in range(3)]
            p(f"v_lshlrev_b32 v8, 19, {v(VL)}\nv_mov_b32 v9, 0")
            p(f"s_cmp_eq_u32 s{SWV}, 1\ns_cbranch_scc1 {ls[0]}\ns_cmp_eq_u32 s{SWV}, 2\ns_cbranch_scc1 {ls[1]}\ns_cmp_eq_u32 s{SWV}, 3\ns_cbranch_scc0 {ls[2]}")
            p(f"buffer_load_dword v10, v8, {srd(SWS)}, 0 offen sc1\ns_branch {ls[2]}")
            p.put(ls[0]); p(f"buffer_load_dword v10, v8, {srd(SWSP)}, 0 offen\nbuffer_load_dword v11, v8, {srd(SOUT)}, 0 offen sc1\nglobal_load_ushort v12, v9, {sp(PBSP)}\nglobal_load_ushort v13, v9, {sp(PDSK)}\ns_branch {ls[2]}")
            p.put(ls[1]); p(f"buffer_load_dword v10, v8, {srd(SCRE)}, 0 offen\nbuffer_load_dword v11, v8, {srd(SCIM)}, 0 offen\nbuffer_load_dword v12, v8, {srd(SWOUT)}, 0 offen\nglobal_load_ushort v13, v9, {sp(PGW)}")
            p.put(ls[2])
        p(f"s_load_dword s{ST_T}, {sp(SWS)}, {EPOCH}")
    def code_prefetch(self, va, vd):
        if not self.o.get("cpf", 1): return
        p = self.p
        sk = p.label("cpf"); here = p.label("pc")
        nsl = self.o.get("cpfn", 6)
        p(f"s_lshr_b32 s{SA}, s2, 3\ns_and_b32 s{SA}, s{SA}, 15\ns_lshl_b32 s{SA}, s{SA}, 2\ns_add_u32 s{SA}, s{SA}, s{SWV}")
        p(f"s_cmp_ge_u32 s{SA}, {nsl}\ns_cbranch_scc1 {sk}")
        p(f"s_getpc_b64 s[{SSTMP}:{SSTMP+1}]")
        p.put(here)
        p(f"s_sub_u32 s{SSTMP}, s{SSTMP}, {here}-{NAME}\ns_subb_u32 s{SSTMP+1}, s{SSTMP+1}, 0")
        p(f"s_lshl_b32 s{SA}, s{SA}, 13\nv_lshl_add_u32 {v(va)}, {v(VL)}, 7, s{SA}\nv_min_u32 {v(va)}, {self.END}-{NAME}, {v(va)}")
        p(f"global_load_dword {v(vd)}, {v(va)}, s[{SSTMP}:{SSTMP+1}]")
        p.put(sk)
    def pf1(self, when=1):
        if self.o.get("pf", 2) == 4 and self.o.get("pfw", 5) == when:
            self.p.vmem(f"global_load_dword {v(7)}, {v(6)}, {sp(PWIN)}")
            self.p.vmem(f"global_load_dword {v(5)}, {v(4)}, {sp(SPFP)}")
        if {3: 1, 2: self.o.get("pfw2", 2)}.get(self.o.get("pf", 2), self.o.get("pf", 2)) == when:
            p = self.p; l = p.label("pf")
            p(f"s_cmp_eq_u32 s{SPFE}, 0\ns_cbranch_scc1 {l}\nglobal_load_dword {v(5)}, {v(4)}, {sp(SPFP)}")
            p.put(l)
        if self.o.get("wfirst") == when: self.touch_wsp(11, 12, 0, 1)
    def tlb_warm(self):
        p = self.p
        ls = [p.label("tw") for _ in range(4)]
        p(f"v_lshlrev_b32 {v(6)}, 19, {v(VL)}\nv_mov_b32 {v(7)}, 0")
        p(f"s_cmp_eq_u32 s{SWV}, 1\ns_cbranch_scc1 {ls[0]}\ns_cmp_eq_u32 s{SWV}, 2\ns_cbranch_scc1 {ls[1]}\ns_cmp_eq_u32 s{SWV}, 3\ns_cbranch_scc1 {ls[2]}")
        p(f"buffer_load_dword {v(8)}, {v(6)}, {srd(SWS)}, 0 offen sc1\nglobal_load_ushort {v(9)}, {v(7)}, {sp(PGW)}\ns_branch {ls[3]}")
        p.put(ls[0]); p(f"buffer_load_dword {v(8)}, {v(6)}, {srd(SWSP)}, 0 offen\nglobal_load_ushort {v(9)}, {v(7)}, {sp(PBSP)}\nglobal_load_ushort {v(10)}, {v(7)}, {sp(PDSK)}\ns_branch {ls[3]}")
        p.put(ls[1]); p(f"buffer_load_dword {v(8)}, {v(6)}, {srd(SOUT)}, 0 offen sc1\nbuffer_load_dword {v(9)}, {v(6)}, {srd(SWOUT)}, 0 offen\ns_branch {ls[3]}")
        p.put(ls[2]); p(f"buffer_load_dword {v(8)}, {v(6)}, {srd(SCRE)}, 0 offen\nbuffer_load_dword {v(9)}, {v(6)}, {srd(SCIM)}, 0 offen")
        p.put(ls[3])
    def late_args(self):
        p = self.p
        if self.o.get("tlb", 1):
            if self.o.get("tlb", 1) == 1: self.tlb_warm()
            self.pf1(5)
            p(f"s_load_dword s{ST_T}, {sp(SWS)}, {EPOCH}")
            return
        for (r, off) in [(SWSP, 88), (SCRE, 40), (SCIM, 48), (SWOUT, 104), (SOUT, 120), (PDSK, 64), (PBSP, 96)]:
            p(f"s_load_dwordx2 {sp(r)}, s[0:1], {off}")
        p(f"s_load_dword s{ST_T}, {sp(SWS)}, {EPOCH}")
        for (r, n) in [(SWSP, 8388608), (SWS, WS_END), (SCRE, 524288), (SCIM, 524288), (SWOUT, 704512), (SOUT, 4194304)]:
            p(f"s_mov_b32 s{r+2}, {n}\ns_mov_b32 s{r+3}, 0x20000")
    def epoch2(self):
        p = self.p
        p.wait_lg_all()
        p(f"s_mul_i32 s{ST_T}, s{ST_T}, 0x9E3779B1\ns_add_u32 s{ST_T}, s{ST_T}, 0x7F4A7C15")

    def touch_wsp(self, va, vd, k, n):
        p = self.p
        if k == 0:
            p(f"s_lshr_b32 s{SB_}, s2, 3\ns_lshl_b32 s{SB_}, s{SB_}, 2\ns_add_u32 s{SB_}, s{SB_}, s{SWV}\ns_lshl_b32 s{SB_}, s{SB_}, 13")
            p(f"s_and_b32 s{SA}, s2, 7\ns_lshl_b32 s{SA}, s{SA}, 20\ns_add_u32 s87, s{SA}, s{SB_}")
            p(f"v_cmp_gt_u32 vcc, {64//n}, {v(VL)}\nv_lshlrev_b32 {v(va)}, 7, {v(VL)}\ns_nop 0\nv_cndmask_b32 {v(va)}, {v(VOOB)}, {v(va)}, vcc")
        else: p(f"s_add_u32 s87, s87, {8192//n}")
        p.vmem(f"buffer_load_dword {v(vd)}, {v(va)}, {srd(SWSP)}, s87 offen {self.o.get('tmod', '')}")
    def ctouch(self, va, vd):
        p = self.p; l = p.label("ct")
        p(f"s_lshl_b32 s{SA}, s{SWV}, 8\ns_add_u32 s{SA}, s{SA}, s2\ns_cmp_ge_u32 s{SA}, 856\ns_cbranch_scc1 {l}")
        p(f"s_cmp_lt_u32 s{SA}, 256\ns_cselect_b64 {sp(SSTMP)}, {sp(SCRE)}, {sp(SCIM)}")
        p(f"s_sub_u32 s{SB_}, s{SA}, 512\ns_and_b32 s{SSPIN}, s{SA}, 255\ns_cmp_ge_u32 s{SA}, 512\ns_cselect_b64 {sp(SSTMP)}, {sp(SWOUT)}, {sp(SSTMP)}\ns_cselect_b32 s{SA}, s{SB_}, s{SSPIN}")
        p(f"s_lshl_b32 s{SA}, s{SA}, 11\nv_and_b32 {v(vd)}, 15, {v(VL)}\nv_lshlrev_b32 {v(vd)}, 7, {v(vd)}\nv_add_u32 {v(vd)}, s{SA}, {v(vd)}")
        p(f"global_load_dword {v(vd)}, {v(vd)}, {sp(SSTMP)}")
        p.put(l)
    def paced(self, valu, va, vd, t0, dt):
        if "ct" in self.o: valu.setdefault(self.o["ct"], []).append(lambda: self.ctouch(va, vd + 1 if vd != 205 else 4))
        n = self.o.get("tn", 4)
        if self.o.get("touch", 1) != 1: return
        for k in range(n):
            valu.setdefault(t0 + k * dt, []).append(lambda k=k: self.touch_wsp(va, vd, k, n))
    def touch_c(self, va, vd):
        p = self.p
        p(f"v_lshlrev_b32 {v(va)}, 7, {v(VL)}\ns_lshr_b32 s{SB_}, s2, 3\ns_lshl_b32 s{SB_}, s{SB_}, 2\ns_add_u32 s{SB_}, s{SB_}, s{SWV}\ns_lshl_b32 s{SA}, s{SB_}, 13")
        p.vmem(f"buffer_load_dword {v(vd)}, {v(va)}, {srd(SWOUT)}, s{SA} offen")
        p.vmem(f"buffer_load_dword {v(vd)}, {v(va)}, {srd(SCRE)}, s{SA} offen")
        p.vmem(f"buffer_load_dword {v(vd)}, {v(va)}, {srd(SCIM)}, s{SA} offen")
        p(f"s_add_u32 s{SA}, s{SA}, 524288")
        p.vmem(f"buffer_load_dword {v(vd)}, {v(va)}, {srd(SWOUT)}, s{SA} offen")
    GTR, GPL = 236, 238
    def g_early(self, t):
        p = self.p
        p(f"s_lshr_b32 s{SA}, s{SWV}, 1\ns_mul_i32 s{SGL}, s{SA}, 81920")
        p(f"v_bfe_u32 {v(t)}, {v(VL)}, 4, 1\nv_xor_b32 {v(t)}, s{SA}, {v(t)}\nv_lshlrev_b32 {v(t)}, 4, {v(t)}")
        p(f"v_bfe_u32 {v(t+1)}, {v(VL)}, 2, 1\nv_lshl_add_u32 {v(t)}, {v(t+1)}, 3, {v(t)}\nv_bfe_u32 {v(t+1)}, {v(VL)}, 3, 1\nv_lshl_add_u32 {v(t)}, {v(t+1)}, 2, {v(t)}")
        p(f"v_and_b32 {v(t+1)}, 35, {v(VL)}\nv_add_lshl_u32 {v(t)}, {v(t)}, {v(t+1)}, 4\nv_add_u32 {v(self.GTR)}, s{SGL}, {v(t)}")
        p(f"s_lshl_b32 s{SB_}, s{SJ}, 2\ns_add_u32 s{SB_}, s{SB_}, s{SA}\ns_lshl_b32 s{SA}, s{SKH}, 1\ns_add_u32 s{SB_}, s{SB_}, s{SA}\ns_lshl_b32 s{SB_}, s{SB_}, 4")
        p(f"s_and_b32 s{SA}, s{SWV}, 1\ns_add_u32 s{SGB}, s{SB_}, s{SA}\ns_mul_i32 s{SGB}, s{SGB}, 6144\ns_add_u32 s{SGB}, s{SGB}, {Z2N}\ns_mul_i32 s{SA}, s{SA}, 6144\ns_add_u32 s{SGL}, s{SGL}, s{SA}")
        p(f"s_lshl_b32 s{SB_}, s{SB_}, 7\ns_add_u32 s{SB_}, s{SB_}, {ZF}")
        self.poll_addr(self.GPL, [(SB_, 16)])
        p(f"s_lshr_b32 s{SA}, s{STB}, 1\ns_lshl_b32 s{SA}, s{SA}, 9\ns_add_u32 s{SA}, s{SA}, {ZF}")
        p(f"v_add_u32 {v(t)}, 16, {v(VL)}\nv_bfe_u32 {v(t)}, {v(t)}, 2, 3\nv_lshlrev_b32 {v(t)}, 13, {v(t)}\nv_and_b32 {v(t+1)}, 3, {v(VL)}\nv_lshl_add_u32 {v(t)}, {v(t+1)}, 7, {v(t)}\nv_add_u32 {v(t)}, s{SA}, {v(t)}")
        p(f"s_mov_b32 vcc_lo, 0xffff0000\ns_mov_b32 vcc_hi, 0xffff\nv_cndmask_b32 {v(self.GPL)}, {v(self.GPL)}, {v(t)}, vcc")
        p(f"s_lshr_b32 s{SA}, s{STB}, 1\ns_lshl_b32 s{SA}, s{SA}, 1\ns_and_b32 s{SB_}, s{SWV}, 1\ns_add_u32 s{SA}, s{SA}, s{SB_}\ns_lshl_b32 s{SA}, s{SA}, 1\ns_add_u32 s{SA}, s{SA}, s{SKH}")
        p(f"s_lshl_b32 s{SB_}, s{SJ}, 6\ns_add_u32 s{SZI}, s{SA}, s{SB_}")
    def g_poll_issue(self):
        self.gp = self.p.vmem(f"buffer_load_dword {v(self.GPL+1)}, {v(self.GPL)}, {srd(SWS)}, 0 offen sc1")

    def phase_z(self):
        p = self.p; o = self.o
        ACC, FA, FB, XR, WR, XD, WD, T = 16, 64, 88, 96, 100, 104, 108, 112
        p.c("==== phase A: Z ====")
        p.put(self.LZ)
        self.common2()
        tick = {}
        def xdma(st, cb=None):
            return [((SREG, (st & 3) * 4096) if i == 0 else None, self.rot(SXB, st, 128) if i == 0 else None,
                     f"buffer_load_dwordx4 {v(XD+i)}, {srd(SX)}, s{SDO} offen offset:{i*1024} lds", cb) for i in range(4)]
        def wdma(st, cb=None):
            return [((SWL, (st & 3) * 40960) if i == 0 else None, self.rot(SW1B, st, 64 * 2752) if i == 0 else None,
                     f"buffer_load_dwordx4 {v(WD+i)}, {srd(SW1)}, s{SDO} offen offset:{i*1024} lds", cb) for i in range(3)]
        def dma(st):
            def cb(t): tick[st] = t
            return self.dseq(wdma(st) + xdma(st, cb))
        self.slice_z2(SCOL)
        self.w_dma_addr(WD, T, 1376)
        p(f"s_mul_i32 s{SW1B}, s{SWV}, {16*2752}\ns_lshl_b32 s{SA}, s{SU0}, 4\ns_add_u32 s{SW1B}, s{SW1B}, s{SA}")
        p(f"s_mul_i32 s{SWL}, s{SWV}, 3072\ns_add_u32 s{SWL}, s{SWL}, 16384\ns_mov_b32 s{SW1+2}, {512*2752}")
        p(f"s_mov_b64 {sp(SW1)}, {sp(PWIN)}")
        npro = o.get("npro", 3)
        def cb0(t): tick[0] = t
        self.run(self.dseq(wdma(0, cb0)))
        if o.get("sst"): self.stamp(23)
        def setup():
            self.plain_read_addr(XR, SREG, T)
            self.w_tr_addr(WR, 16384, T)
            self.p(f"v_add_u32 {v(WR+1)}, 81920, {v(WR)}")
            self.wsp_setup(T)
            self.p(f"s_add_u32 s{SPB}, s{SREG}, 32768\ns_mov_b32 s{SPB+1}, s{SREG}\ns_add_u32 s{SPB+2}, s{SREG}, 8192\ns_add_u32 s{SPB+3}, s{SREG}, 16384\ns_add_u32 s{SPB+4}, s{SREG}, 24576")
            self.valid_masks()
        d = []
        for st in range(1, npro): d += dma(st)
        self.run(merge(self.cap(lambda: (self.common3(), setup())), d))
        def prefill(u0, u1):
            p(f"s_lshl_b32 s{SCB}, s{SRB}, 2\ns_add_u32 s{SCB}, s{SCB}, s{SWV}\ns_mul_i32 s{SCB}, s{SCB}, 45056\ns_lshl_b32 s{SA}, s{SU0}, 9\ns_add_u32 s{SCB}, s{SCB}, s{SA}\ns_add_u32 s{SCB}, s{SCB}, {PB}")
            for k in range(4): p(f"v_mov_b32 {v(176+k)}, -1")
            for u in range(6):
                if u == 4: p(f"s_add_u32 s{SCB}, s{SCB}, 4096")
                p.vmem(f"buffer_store_dwordx4 {v(176,4)}, {v(VL16 if u < 3 else 115)}, {srd(SWS)}, s{SCB} offen offset:{(u%4)*1024} sc1")
        self.pf2()
        self.epoch2()
        self.stamp(0)
        rt = {}
        def reads(n):
            st, ks = n // 4, n % 4; sl = st & 3; s = n & 1; ops = []
            def rb(): rt[(n, 'b')] = p.lds(f"ds_read_b128 {v(FB+4*s,4)}, {v(XR+ks)} offset:{sl*4096}")
            ops.append(rb)
            for mt in range(3):
                for a in range(2):
                    def ra(mt=mt, a=a):
                        rt[(n, mt)] = p.lds(f"ds_read_b64_tr_b16 {v(FA+12*s+4*mt+2*a,2)}, {v(WR+(sl>>1))} offset:{(sl&1)*40960+ks*3072+a*768+mt*64}")
                    ops.append(ra)
            return ops
        def mfmas(n):
            s = n & 1; ops = []
            for mt in range(3):
                def m(mt=mt):
                    p.wait(lg=rt[(n, mt)])
                    c = "0" if n == 0 else v(ACC + 16 * mt, 16)
                    p(f"{MF} {v(ACC+16*mt,16)}, {v(FA+12*s+4*mt,4)}, {v(FB+4*s,4)}, {c}")
                ops.append(m)
            return ops
        GX, GW, GU, GS, GT = 128, 144, 148, 156, 160
        gt = {}
        def gload():
            p(f"s_lshl_b32 s{SE}, s{SRB}, 2\ns_add_u32 s{SE}, s{SE}, s{SWV}\ns_lshl_b32 s{SE}, s{SE}, 3\ns_add_u32 s{SE}, s{SE}, s{SCOL}\ns_lshl_b32 s{SA}, s{SE}, 12")
            for r in range(4): p.vmem(f"buffer_load_dwordx4 {v(GX+4*r,4)}, {v(VL16)}, {srd(SX)}, s{SA} offen offset:{r*1024}")
            gt['t'] = p.vmem(f"global_load_dwordx4 {v(GW,4)}, {v(VL16)}, {sp(PGW)}")
        def gstore():
            p(f"s_lshl_b32 s{SA}, s{SE}, 4\ns_add_u32 s{SA}, s{SA}, {GATE}")
            p.vmem(f"buffer_store_dwordx4 {v(GS,4)}, {v(GT)}, {srd(SWS)}, s{SA} offen sc1")
        gops = [lambda: p.wait(vm=gt['t'])] + self.cap(lambda: self.gate(GX, GW, GU, GS, GT)) + [gstore]
        zm = o.get('zmode', 1)
        valu = {(28 if zm == 1 else 13): [gload]}
        def touch_u():
            p(f"v_lshlrev_b32 {v(170)}, 7, {v(VL)}\ns_lshr_b32 s{SB_}, s2, 3\ns_lshl_b32 s{SB_}, s{SB_}, 2\ns_add_u32 s{SB_}, s{SB_}, s{SWV}\ns_lshl_b32 s{SB_}, s{SB_}, 13")
            p(f"s_and_b32 s{SA}, s2, 7\ns_lshl_b32 s{SA}, s{SA}, 20\ns_add_u32 s{SA}, s{SA}, s{SB_}\ns_add_u32 s{SA}, s{SA}, {1<<19}")
            p.vmem(f"buffer_load_dword {v(171)}, {v(170)}, {srd(SWSP)}, s{SA} offen")
        def warm():
            p(f"v_lshlrev_b32 {v(170)}, 18, {v(VL)}\nv_lshlrev_b32 {v(172)}, 16, {v(VL)}\nv_lshlrev_b32 {v(173)}, 13, {v(VL)}")
            ls = [p.label("wm") for _ in range(4)]
            p(f"s_cmp_eq_u32 s{SWV}, 1\ns_cbranch_scc1 {ls[0]}\ns_cmp_eq_u32 s{SWV}, 2\ns_cbranch_scc1 {ls[1]}\ns_cmp_eq_u32 s{SWV}, 3\ns_cbranch_scc1 {ls[2]}")
            p(f"buffer_load_dword {v(171)}, {v(170)}, {srd(SWS)}, 0 offen sc1\ns_branch {ls[3]}")
            p.put(ls[0]); p(f"buffer_load_dword {v(171)}, {v(172)}, {srd(SOUT)}, 0 offen sc1\ns_branch {ls[3]}")
            p.put(ls[1]); p(f"buffer_load_dword {v(171)}, {v(173)}, {srd(SCRE)}, 0 offen\nbuffer_load_dword {v(171)}, {v(173)}, {srd(SCIM)}, 0 offen\ns_branch {ls[3]}")
            p.put(ls[2]); p(f"v_lshlrev_b32 {v(173)}, 14, {v(VL)}\nbuffer_load_dword {v(171)}, {v(173)}, {srd(SWOUT)}, 0 offen")
            p.put(ls[3])
        if o.get("warm"): valu[31] = [warm]
        def ztouch(part):
            if part == 0:
                p(f"s_lshr_b32 s{SB_}, s2, 3\ns_lshl_b32 s{SB_}, s{SB_}, 2\ns_add_u32 s{SB_}, s{SB_}, s{SWV}")
                p(f"s_and_b32 s{SA}, s2, 7\ns_lshl_b32 s{SPFP+1}, s{SB_}, 3\ns_add_u32 s{SPFP+1}, s{SPFP+1}, s{SA}")
                p(f"s_lshr_b32 s{SA}, s{SA}, 1\ns_lshl_b32 s{SA}, s{SA}, 21\ns_lshl_b32 s{SB_}, s{SB_}, 14\ns_add_u32 s{SPFP}, s{SA}, s{SB_}\ns_lshl_b32 s{SA}, s{SKH}, 11\ns_add_u32 s{SPFP}, s{SPFP}, s{SA}")
                p(f"v_lshrrev_b32 {v(173)}, 4, {v(VL)}\nv_lshlrev_b32 {v(173)}, 12, {v(173)}\nv_and_b32 {v(174)}, 15, {v(VL)}\nv_lshl_add_u32 {v(173)}, {v(174)}, 7, {v(173)}\nv_lshlrev_b32 {v(174)}, 7, {v(VL)}")
                if o.get("xl"):
                    p(f"s_and_b32 s{SA}, s2, 7\ns_lshl_b32 s{SA}, s{SA}, 20\ns_lshr_b32 s{SB_}, s{SB_}, 1\ns_add_u32 s{SPFP}, s{SA}, s{SB_}\nv_mov_b32 {v(173)}, {v(174)}")
                p.vmem(f"buffer_load_dword {v(175)}, {v(173)}, {srd(SWSP)}, s{SPFP} offen")
            if part == 1:
                p(f"s_add_u32 s{SPFP}, s{SPFP}, {1<<(19 if o.get('xl') else 20)}")
                p.vmem(f"buffer_load_dword {v(175)}, {v(173)}, {srd(SWSP)}, s{SPFP} offen")
            if part == 2:
                l = p.label("zt")
                p(f"s_lshr_b32 s{SB_}, s2, 3\ns_lshl_b32 s{SB_}, s{SB_}, 2\ns_add_u32 s{SB_}, s{SB_}, s{SWV}\ns_and_b32 s{SA}, s2, 7\ns_lshl_b32 s{SF}, s{SB_}, 3\ns_add_u32 s{SF}, s{SF}, s{SA}")
                p(f"s_cmp_ge_u32 s{SF}, 428\ns_cbranch_scc1 {l}")
                p(f"s_cmp_lt_u32 s{SF}, 128\ns_cselect_b64 {sp(SSTMP)}, {sp(SCRE)}, {sp(SCIM)}\ns_and_b32 s{SA}, s{SF}, 127")
                p(f"s_sub_u32 s{SB_}, s{SF}, 256\ns_cmp_ge_u32 s{SF}, 256\ns_cselect_b64 {sp(SSTMP)}, {sp(SWOUT)}, {sp(SSTMP)}\ns_cselect_b32 s{SA}, s{SB_}, s{SA}")
                p(f"s_lshl_b32 s{SA}, s{SA}, 12\nv_and_b32 {v(172)}, 31, {v(VL)}\nv_lshl_add_u32 {v(172)}, {v(172)}, 7, s{SA}")
                p(f"global_load_dword {v(171)}, {v(172)}, {sp(SSTMP)}")
                p.put(l)
            if part == 3:
                p(f"s_lshr_b32 s{SB_}, s2, 3\ns_lshl_b32 s{SB_}, s{SB_}, 2\ns_add_u32 s{SB_}, s{SB_}, s{SWV}\ns_lshl_b32 s{SA}, s{SB_}, 13\nv_lshlrev_b32 {v(172)}, 7, {v(VL)}\ns_mul_i32 s{SB_}, s{SB_}, 11008")
                p.vmem(f"buffer_load_dword {v(171)}, {v(172)}, {srd(SWOUT)}, s{SB_} offen")
                p(f"s_add_u32 s{SB_}, s{SB_}, 2816")
                p.vmem(f"buffer_load_dword {v(171)}, {v(172)}, {srd(SWOUT)}, s{SB_} offen")
                if o.get("ct2") == 2:
                    p.vmem(f"buffer_load_dword {v(171)}, {v(172)}, {srd(SCRE)}, s{SA} offen")
                    p.vmem(f"buffer_load_dword {v(171)}, {v(172)}, {srd(SCIM)}, s{SA} offen")
            if part == 5:
                l = p.label("zh")
                p(f"s_lshr_b32 s{SB_}, s2, 3\ns_lshl_b32 s{SB_}, s{SB_}, 2\ns_add_u32 s{SB_}, s{SB_}, s{SWV}\ns_cmp_ge_u32 s{SB_}, 27\ns_cbranch_scc1 {l}")
                p(f"s_cmp_lt_u32 s{SB_}, 8\ns_cselect_b64 {sp(SSTMP)}, {sp(SCRE)}, {sp(SCIM)}\ns_and_b32 s{SA}, s{SB_}, 7\ns_sub_u32 s{SF}, s{SB_}, 16")
                p(f"s_cmp_ge_u32 s{SB_}, 16\ns_cselect_b64 {sp(SSTMP)}, {sp(SWOUT)}, {sp(SSTMP)}\ns_cselect_b32 s{SA}, s{SF}, s{SA}\ns_lshl_b32 s{SA}, s{SA}, 6")
                p(f"v_add_u32 {v(172)}, s{SA}, {v(VL)}\nv_min_u32 {v(172)}, 687, {v(172)}\nv_lshlrev_b32 {v(172)}, 10, {v(172)}")
                p(f"global_load_dword {v(171)}, {v(172)}, {sp(SSTMP)} offset:384")
                p.put(l)
            if part == 4:
                p(f"s_bfe_u32 s{SB_}, s2, 0x10006\ns_lshl_b32 s{SB_}, s{SB_}, 2\ns_add_u32 s{SB_}, s{SB_}, s{SWV}\ns_mul_i32 s{SB_}, s{SB_}, {86*1024}\ns_lshl_b32 s{SA}, s{SJ}, 7\ns_add_u32 s{SB_}, s{SB_}, s{SA}\nv_lshlrev_b32 {v(172)}, 10, {v(VL)}")
                p.vmem(f"buffer_load_dword {v(171)}, {v(172)}, {srd(SWOUT)}, s{SB_} offen")
                p(f"s_add_u32 s{SB_}, s{SB_}, {22*1024}")
                p.vmem(f"buffer_load_dword {v(171)}, {v(172)}, {srd(SWOUT)}, s{SB_} offen")
        if o.get("touch", 1) == 2:
            if o.get("wt"): valu.setdefault(o["wt"], []).append(lambda: ztouch(3))
            for k in range(3): valu.setdefault(o.get(f"zs{k}", [0, 0, 0][k]), []).append(lambda k=k: ztouch(k))
        else: self.paced(valu, 174, 175, o.get("zt0", 6), o.get("zdt", 6))
        self.gemm_loop(4, reads, mfmas, dma, tick, 2, npro, {o.get('ze0', 5): lambda: self.wsp_dma(0), o.get('ze1', 6): lambda: self.wsp_dma(1)} if zm == 1 else {}, valu)
        self.stamp(1)
        MA, MB = SK + 2, SK + 4
        GR, VLO = 72, 80
        MUL = 126
        def seg1b():
            p = self.p
            S = [64, 66, 68, 70]
            for k in range(4): p(f"v_pk_add_f32 {v(S[k],2)}, {v(ACC+2*k,2)}, {v(ACC+8+2*k,2)}")
            for i in range(8, 24): p(f"v_pk_add_f32 {v(S[i&3],2)}, {v(S[i&3],2)}, {v(ACC+2*i,2)}")
            p(f"v_pk_add_f32 {v(S[0],2)}, {v(S[0],2)}, {v(S[1],2)}\nv_pk_add_f32 {v(S[2],2)}, {v(S[2],2)}, {v(S[3],2)}")
            p(f"v_mov_b32 {v(GR+1)}, s{ST_T}\nv_pk_add_f32 {v(S[0],2)}, {v(S[0],2)}, {v(S[2],2)}\nv_mov_b32 {v(GR+3)}, s{ST_T}\nv_add_f32 {v(GR)}, {v(S[0])}, {v(S[0]+1)}")
            p(f"v_cmp_gt_u32 vcc, 32, {v(VL)}\nv_mov_b32 {v(S[0])}, {v(GR)}")
            p(f"s_lshl_b32 s{SC}, s{SRB}, 2\ns_add_u32 s{SC}, s{SC}, s{SWV}")
            p(f"v_permlane32_swap_b32 {v(GR)}, {v(S[0])}\nv_cndmask_b32 {v(VLO)}, {v(VOOB)}, {v(VL16)}, vcc\nv_add_f32 {v(GR)}, {v(GR)}, {v(S[0])}")
            p(f"s_lshl_b32 s{SD}, s{SC}, 12\ns_add_u32 s{SD}, s{SD}, {ST}")
            p(f"v_mul_f32 {v(MUL)}, s{SK+6}, {v(GR)}")
            p(f"s_lshl_b32 s{SA}, s{SCOL}, 9\ns_add_u32 s{SA}, s{SA}, s{SD}")
            for i in range(24): p(f"v_pk_add_f32 {v(ACC+2*i,2)}, {v(ACC+2*i,2)}, {v(MUL,2)} op_sel_hi:[1,0] neg_lo:[0,1] neg_hi:[0,1]")
            for i in range(4): p(f"v_pk_mul_f32 {v(S[i],2)}, {v(ACC+2*i,2)}, {v(ACC+2*i,2)}")
            for i in range(4, 24): p(f"v_pk_fma_f32 {v(S[i&3],2)}, {v(ACC+2*i,2)}, {v(ACC+2*i,2)}, {v(S[i&3],2)}")
            p(f"v_mul_f32 {v(76)}, s{SK+4}, {v(MUL)}")
            p(f"v_pk_add_f32 {v(S[0],2)}, {v(S[0],2)}, {v(S[1],2)}\nv_pk_add_f32 {v(S[2],2)}, {v(S[2],2)}, {v(S[3],2)}\nv_pk_add_f32 {v(S[0],2)}, {v(S[0],2)}, {v(S[2],2)}")
            p(f"v_add_f32 {v(GR+2)}, {v(S[0])}, {v(S[0]+1)}")
            self.xhalf_sum(GR + 2, S[0])
            p(f"v_fma_f32 {v(GR+2)}, -{v(76)}, {v(MUL)}, {v(GR+2)}")
        seg1 = self.cap(lambda: self.gelu_many([ACC + 2 * i for i in range(24)], [64, 68, 72, 76]))
        h = len(seg1) // 5
        f1 = self.wsp_dma(2) + [lambda: p("s_barrier")]
        f2 = self.wsp_dma(3) + self.wsp_dma(4)
        if zm == 1: self.run(merge(seg1[:h], f1) + merge(seg1[h:], f2))
        else:
            zg2 = o.get("zg2", 0); h2_ = len(seg1) * o.get("zg2at", 60) // 100
            fz = (self.wsp_dma(0) if zg2 >= 1 else []) + (self.wsp_dma(1) if zg2 >= 2 else [])
            self.run(seg1[:h] + [lambda: p("s_barrier")] + seg1[h:h2_] + merge(seg1[h2_:], fz))
        seg1b()
        p.vmem(f"buffer_store_dwordx4 {v(GR,4)}, {v(VLO)}, {srd(SWS)}, s{SA} offen sc1")
        self.stamp(2)
        lgw = lambda: p.wait(lg=p.lg - 1)
        Q0, Q1, QA, QB = 112, 113, 114, 115
        MN, VR, N3, I3, TM = 80, 81, 82, 83, 84
        def misc():
            p = self.p
            self.g_early(120)
            p(f"v_lshrrev_b32 {v(Q1)}, 5, {v(VL)}\nv_lshlrev_b32 {v(Q1)}, 6, {v(Q1)}\nv_xor_b32 {v(Q0)}, {v(VL16)}, {v(Q1)}\nv_xor_b32 {v(Q1)}, 128, {v(Q0)}")
            p(f"v_add_u32 {v(Q0)}, s{SPB+4}, {v(Q0)}\nv_add_u32 {v(Q1)}, s{SPB+4}, {v(Q1)}")
            self.unit_tr_addr(124, SPB + 4, 120, False)
            p(f"s_lshl_b32 s{SA}, s{SNU}, 3\ns_sub_i32 s{SA}, s{SA}, 64")
            p(f"v_and_b32 {v(QB)}, 31, {v(VL)}\nv_cmp_gt_i32 vcc, s{SA}, {v(QB)}\nv_add_u32 {v(QB)}, 4096, {v(VL16)}\nv_cndmask_b32 {v(QA)}, {v(VOOB)}, {v(QB)}, vcc")
            p.atom(f"s_cmp_gt_u32 s{SNU}, 4\ns_cselect_b64 vcc, -1, 0")
            p(f"v_cndmask_b32 {v(QB)}, {v(VOOB)}, {v(VL16)}, vcc")
            p(f"s_lshl_b32 s{SA}, s{SCOL}, 6\ns_add_u32 s{SC}, s{SA}, s{SC}\ns_mul_i32 s{SE}, s{SC}, 6144")
            self.flag_prep(118)
            p(f"v_cmp_gt_u32 vcc, 32, {v(VL)}\nv_mov_b32 {v(N3)}, {f2u(32.0)}\nv_mov_b32 {v(TM)}, {f2u(96.0)}\nv_mov_b32 {v(I3)}, {f2u(1/32)}\nv_mov_b32 {v(TM+1)}, {f2u(1/96)}")
            p(f"v_mov_b32 {v(152)}, {f2u(80.0)}\nv_mov_b32 {v(153)}, {f2u(1/80)}")
            p(f"v_cndmask_b32 {v(N3)}, {v(N3)}, {v(TM)}, vcc\nv_cndmask_b32 {v(I3)}, {v(I3)}, {v(TM+1)}, vcc\nv_cndmask_b32 {v(152)}, {v(TM)}, {v(152)}, vcc\nv_cndmask_b32 {v(153)}, {v(TM+1)}, {v(153)}, vcc")
        za = o.get("za", 1)
        f = self.wsp_read(0) + self.wsp_read(1) + [lgw]
        for st in range(5, 5 + za): f += self.wsp_dma(st)
        zs = o.get('zsched', 0)
        zw = o.get('zw', 0)
        if zm == 2: f = self.wsp_dma(zg2) + self.wsp_dma(zg2 + 1) + (self.wsp_dma(2) if zs in (1, 2) else [])
        if zw: f = self.wsp_dma(0) if zw in (1, 3) else []
        self.run(merge(gops + self.cap(misc), f))
        self.stamp(3)
        SG = 64
        for q in range(4):
            ts = p.vmem(f"buffer_load_dwordx4 {v(SG+4*q,4)}, {v(VL16)}, {srd(SWS)}, s{SD} offen offset:{q*1024} sc1")
        if zm == 1:
            for st in range(5 + za, 7): self.run(self.wsp_dma(st))
        elif zw: self.run((self.wsp_dma(1) if zw in (1, 3) else self.wsp_dma(0)))
        else: self.run(self.wsp_dma(3) + self.wsp_read(0) if zs in (1, 2) else {0: self.wsp_dma(2), 1: self.wsp_dma(3), 2: self.wsp_read(0) + self.wsp_read(1)}[zg2])
        l = p.label("sp"); dl = p.label("sd")
        p.wait(vm=ts)
        p(f"s_mov_b32 s{SSPIN}, 0")
        p.put(l)
        X0 = 116
        p(f"v_xor_b32 {v(MN)}, s{ST_T}, {v(SG+1)}\nv_xor_b32 {v(VR)}, s{ST_T}, {v(SG+3)}")
        for r in [5, 9, 13]:
            p(f"v_xor_b32 {v(X0)}, s{ST_T}, {v(SG+r)}\nv_xor_b32 {v(X0+1)}, s{ST_T}, {v(SG+r+2)}\nv_or3_b32 {v(MN)}, {v(MN)}, {v(X0)}, {v(X0+1)}")
        p(f"v_or_b32 {v(MN)}, {v(MN)}, {v(VR)}")
        p(f"v_cmp_ne_u32 vcc, 0, {v(MN)}\ns_cmp_eq_u64 vcc, 0\ns_cbranch_scc1 {dl}")
        for q in range(4):
            p(f"buffer_load_dwordx4 {v(SG+4*q,4)}, {v(VL16)}, {srd(SWS)}, s{SD} offen offset:{q*1024} sc1")
        p("s_waitcnt vmcnt(0)")
        p(f"s_add_u32 s{SSPIN}, s{SSPIN}, 1\ns_cmp_lt_u32 s{SSPIN}, {SPIN}\ns_cbranch_scc1 {l}")
        p.put(dl)
        self.stamp(4)
        p(f"v_add_f32 {v(MN)}, {v(SG)}, {v(SG+4)}\nv_add_f32 {v(TM+2)}, {v(SG+8)}, {v(SG+12)}\nv_add_f32 {v(MN)}, {v(MN)}, {v(TM+2)}")
        p(f"v_mov_b32 {v(TM+3)}, {v(MN)}\nv_add_f32 {v(VR)}, {v(SG+2)}, {v(SG+6)}\nv_add_f32 {v(TM+2)}, {v(SG+10)}, {v(SG+14)}")
        p(f"v_permlane32_swap_b32 {v(MN)}, {v(TM+3)}\nv_add_f32 {v(VR)}, {v(VR)}, {v(TM+2)}\nv_add_f32 {v(MN)}, {v(MN)}, {v(TM+3)}")
        p(f"v_mul_f32 {v(MN)}, {f2u(1/688)}, {v(MN)}")
        for q in range(4):
            n_, i_ = {0: (152, 153), 3: (N3, I3)}.get(q, (TM, TM + 1))
            p(f"v_fma_f32 {v(TM+2)}, {v(SG+4*q)}, {v(i_)}, -{v(MN)}\nv_mul_f32 {v(TM+2)}, {v(TM+2)}, {v(TM+2)}\nv_fmac_f32 {v(VR)}, {v(TM+2)}, {v(n_)}")
        self.xhalf_sum(VR, TM)
        p(f"v_mov_b32 {v(TM)}, {f2u(1e-5)}\nv_fmac_f32 {v(TM)}, {f2u(1/688)}, {v(VR)}\nv_rsq_f32 {v(VR)}, {v(TM)}")
        p(f"s_add_u32 s{SA}, s{SE}, {Z2N}\ns_add_u32 s{SB_}, s{SA}, 4096")
        p(f"v_sub_f32 {v(MN)}, {v(MN)}, {v(MUL)}\nv_mul_f32 {v(MN)}, {v(MN)}, {v(VR)}")
        ZP = 88
        FP_ = {(0, 0): 0, (0, 1): 1, (1, 0): 2, (1, 1): 3, (0, 2): 4, (1, 2): 5}; zr = {}
        def zst(fi):
            p.wait(lg=zr[fi])
            return p.vmem(f"buffer_store_dwordx4 {v(128+4*fi,4)}, {v([VL16, QB, VL16, QB, QA, QA][fi])}, {srd(SWS)}, s{SA} offen offset:{(fi%4)*1024} sc1")
        for u in range(6):
            mt, q = u >> 1, u & 1
            R4 = range(4 * u, 4 * u + 4)
            for i in R4: p(f"v_pk_fma_f32 {v(ACC+2*i,2)}, {v(ACC+2*i,2)}, {v(MN,2)}, {v(MN,2)} op_sel:[0,1,0] op_sel_hi:[1,1,0] neg_lo:[0,0,1] neg_hi:[0,0,1]")
            for i in R4: p(f"v_cvt_pk_bf16_f32 {v(ZP+i)}, {v(ACC+2*i)}, {v(ACC+2*i+1)}")
            p.lds(f"ds_write_b128 {v(Q0+q)}, {v(ZP+4*u,4)} offset:{mt*2048+q*1024}")
            if q == 1:
                for ks in range(2):
                    fi = FP_[(ks, mt)]
                    for a in range(2): zr[fi] = p.lds(f"ds_read_b64_tr_b16 {v(128+4*fi+2*a,2)}, {v(124+a)} offset:{mt*2048+ks*256}")
                if mt >= 1: zst(FP_[(0, mt - 1)]); zst(FP_[(1, mt - 1)])
        p(f"s_lshl_b32 s{SE}, s{SC}, 7\ns_add_u32 s{SE}, s{SE}, {ZF}")
        zst(4); t = zst(5)
        if zs:
            if zs >= 3:
                self.run(merge(self.wsp_dma(3) + (self.wsp_dma(4) if zs == 4 else []), self.wsp_read(0) + self.wsp_read(1) + self.wsp_read(2)))
                p.wait(vm=t)
                self.flag(SE, 118)
                self.run(([] if zs == 4 else self.wsp_dma(4)) + [lgw] + self.wsp_dma(5) + self.wsp_dma(6) + self.wsp_dma(7))
            else:
                self.run(merge(self.wsp_dma(4) + (self.wsp_dma(5) if zs > 1 else []), self.wsp_read(1) + self.wsp_read(2)))
                p.wait(vm=t)
                self.flag(SE, 118)
                self.run([lgw] + ([] if zs > 1 else self.wsp_dma(5)) + self.wsp_dma(6) + self.wsp_dma(7))
            for st in range(3, 6): self.run(self.wsp_read(st))
            self.g_poll_issue()
            prefill(0, 6)
            for st in range(6, 8): self.run(self.wsp_read(st))
            p(f"s_add_u32 s{SLATE}, s{SE}, {ZF2-ZF}")
            self.stamp(5)
            return
        if zw:
            k0 = 2 if zw in (1, 3) else 1
            self.run((self.wsp_dma(k0) if zw < 3 else []) + self.wsp_read(0))
            rest = []
            for st in range(k0 + (1 if zw < 3 else 0), 5): rest += self.wsp_dma(st)
            rest += self.wsp_read(1) + self.wsp_read(2) + [lgw] + self.wsp_dma(5) + self.wsp_dma(6)
        elif zg2 == 0:
            self.run(merge(self.wsp_dma(3), self.wsp_read(0) + self.wsp_read(1) + self.wsp_read(2)))
            rest = self.wsp_dma(4) + [lgw] + self.wsp_dma(5) + self.wsp_dma(6)
        elif zg2 == 1:
            self.run(merge(self.wsp_dma(4), self.wsp_read(0) + self.wsp_read(1) + self.wsp_read(2)))
            rest = [lgw] + self.wsp_dma(5) + self.wsp_dma(6)
        else:
            self.run(merge(self.wsp_dma(4), self.wsp_read(2)))
            rest = [lgw] + self.wsp_dma(5) + self.wsp_dma(6)
        p.wait(vm=t)
        self.flag(SE, 118)
        prefill(0, 6); tpf = p.vm - 1
        self.run(rest)
        p.wait(vm=tpf)
        p(f"s_add_u32 s{SE}, s{SE}, {ZF2-ZF}")
        self.flag(SE, 118)
        self.run(self.wsp_dma(7))
        if o.get("ct2") in (2, 3): ztouch(3)
        if o.get("ct2") == 5: ztouch(5)
        for st in range(3, 8): self.run(self.wsp_read(st))
        self.g_poll_issue()
        p(f"s_mov_b32 s{SLATE}, 0")
        self.stamp(5)

    def phase_u(self):
        p = self.p; o = self.o
        ACC, ZA, FA, FB, FW, FX = 16, 80, 128, 144, 160, 184
        XR, BR, X1R, WR, XD, BD, WD, T = 192, 196, 200, 204, 206, 210, 214, 60
        p.c("==== phase A: U ====")
        p.put(self.LU)
        WT, WP = SK + 8, SK + 9
        p(f"v_lshrrev_b32 {v(T)}, 5, {v(VL)}\nv_lshlrev_b32 {v(T)}, 15, {v(T)}")
        p(f"v_bfe_u32 {v(T+1)}, {v(VL)}, 3, 1\nv_lshl_add_u32 {v(T)}, {v(T+1)}, 14, {v(T)}")
        p(f"v_bfe_u32 {v(T+1)}, {v(VL)}, 4, 1\nv_lshl_add_u32 {v(T)}, {v(T+1)}, 10, {v(T)}")
        self.plain_dma_addr2(XD, T, T + 1, 2048)
        p(f"s_lshr_b32 s{WP}, s{SWV}, 1\ns_and_b32 s{WT}, s{SWV}, 1\ns_lshl_b32 s{SA}, s{WT}, 5")
        for i in range(4): p(f"v_xor_b32 {v(XD+i)}, s{SA}, {v(XD+i)}")
        p(f"s_lshl_b32 s{SD}, s{WP}, 16\ns_add_u32 s{SXB}, s{SXB}, s{SD}\ns_lshl_b32 s{SD}, s{WT}, 13\ns_add_u32 s{SXB}, s{SXB}, s{SD}\ns_lshl_b32 s{SXL}, s{SWV}, 12\ns_mov_b32 m0, s{SXL}")
        p.wait_lg_all()
        so = self.rot0(SXB, 128)
        for i in range(4): p.vmem(f"buffer_load_dwordx4 {v(XD+i)}, {srd(SX)}, s{so} offen offset:{i*1024} lds")
        self.common2()
        self.plain_dma_addr(BD, 1024, T)
        p(f"s_lshl_b32 s{SW1B}, s{SCOL}, 16\ns_lshl_b32 s{SD}, s{WT}, 15\ns_add_u32 s{SW1B}, s{SW1B}, s{SD}\ns_mov_b32 s{SW1+2}, 524288\ns_add_u32 m0, s{SXL}, 49152")
        p(f"s_cmp_eq_u32 s{WP}, 0\ns_cselect_b64 {sp(SW1)}, {sp(PBRE)}, {sp(PBIM)}")
        so = self.rot0(SW1B, 128)
        for i in range(4): p.vmem(f"buffer_load_dwordx4 {v(BD+i)}, {srd(SW1)}, s{so} offen offset:{i*1024} lds")
        p(f"s_cmp_eq_u32 s{SCOL}, 7\ns_cselect_b32 s{SNU}, 2, 12")
        self.w_dma_addr(WD, T, 0)
        SWIB = SCB
        p(f"s_mul_i32 s{SWIB}, s{SWV}, {16*2752}\ns_mul_i32 s{SA}, s{SCOL}, 192\ns_add_u32 s{SWIB}, s{SWIB}, s{SA}")
        p(f"s_mul_i32 s{SWL}, s{SWV}, 3072\ns_add_u32 s{SWL}, s{SWL}, 98304\ns_mov_b32 m0, s{SWL}\ns_mov_b32 s{PWIN+2}, {512*2752}\ns_mov_b32 s{PWIN+3}, 0x20000")
        so = self.rot0(SWIB, 64 * 2752)
        for i in range(3): t0_ = p.vmem(f"buffer_load_dwordx4 {v(WD+i)}, {srd(PWIN)}, s{so} offen offset:{i*1024} lds")
        if o.get("sst"): self.stamp(23)
        PR = 228
        tick = {}
        def dma(st):
            sl = st % 3; items = []
            def cb(t): tick[st] = t
            for i in range(3):
                items.append(((SWL, sl * 12288) if i == 0 else None, self.rot(SWIB, st, 64 * 2752) if i == 0 else None,
                              f"buffer_load_dwordx4 {v(WD+i)}, {srd(PWIN)}, s{SDO} offen offset:{i*1024} lds", None))
            for (vd, sr, sb, lb) in [(XD, SX, SXB, 0), (BD, SW1, SW1B, 49152)]:
                for i in range(4):
                    items.append(((SXL, lb + sl * 16384) if i == 0 else None, self.rot(sb, st, 128) if i == 0 else None,
                                  f"buffer_load_dwordx4 {v(vd+i)}, {srd(sr)}, s{SDO} offen offset:{i*1024} lds", cb))
            return self.dseq(items)
        tick[0] = t0_
        npro = o.get("npro_u", 2)
        def setup():
            p = self.p
            p(f"s_mul_i32 s{SREG}, s{SWV}, 40960\ns_lshl_b32 s{SA}, s{WT}, 13")
            self.plain_read_addr(XR, SA, T)
            p(f"s_lshl_b32 s{SA}, s{WP}, 12\ns_add_u32 s{SA}, s{SA}, 49152")
            self.plain_read_addr(BR, SA, T)
            self.w_tr_addr(WR, 98304, T)
            p(f"v_bfe_u32 {v(T)}, {v(VL)}, 3, 1\nv_lshlrev_b32 {v(T+1)}, 12, {v(T)}\nv_xor_b32 {v(T)}, s{WT}, {v(T)}\nv_lshlrev_b32 {v(T)}, 1, {v(T)}")
            p(f"v_bfe_u32 {v(T+2)}, {v(VL)}, 1, 2\nv_lshl_add_u32 {v(T+1)}, {v(T+2)}, 10, {v(T+1)}")
            p(f"v_and_b32 {v(T+2)}, 1, {v(T+2)}\nv_lshl_add_u32 {v(T)}, {v(T+2)}, 2, {v(T)}")
            p(f"v_and_b32 {v(T+2)}, 1, {v(VL)}\nv_lshl_add_u32 {v(T+1)}, {v(T+2)}, 8, {v(T+1)}\nv_or_b32 {v(T)}, {v(T)}, {v(T+2)}")
            p(f"v_bfe_u32 {v(T+2)}, {v(VL)}, 4, 1\nv_lshl_add_u32 {v(T+1)}, {v(T+2)}, 7, {v(T+1)}")
            p(f"s_lshl_b32 s{SA}, s{WP}, 13\ns_lshl_b32 s{SB_}, s{WT}, 9\ns_add_u32 s{SA}, s{SA}, s{SB_}\nv_add_u32 {v(T+1)}, s{SA}, {v(T+1)}")
            p(f"v_lshrrev_b32 {v(T+2)}, 5, {v(VL)}\nv_xor_b32 {v(T)}, {v(T)}, {v(T+2)}\nv_lshlrev_b32 {v(T)}, 4, {v(T)}")
            for ks in range(4): p(f"v_xor_b32 {v(X1R+ks)}, {32*ks}, {v(T)}\nv_add_u32 {v(X1R+ks)}, {v(X1R+ks)}, {v(T+1)}")
            self.wsp_setup(T)
            p(f"s_lshl_b32 s{SPB+1}, s{WT}, 13\ns_mul_i32 s{SA}, s{WP}, 49152\ns_add_u32 s{SPB+1}, s{SPB+1}, s{SA}\ns_add_u32 s{SPB}, s{SPB+1}, 32768\ns_add_u32 s{SPB+2}, s{SPB+1}, 16384")
            p(f"s_lshl_b32 s{SA}, s{SWV}, 13\ns_add_u32 s{SPB+3}, s{SA}, {13*8192}\ns_add_u32 s{SPB+4}, s{SA}, {17*8192}")
            p.atom(f"s_cmp_eq_u32 s{SWV}, 3\ns_cselect_b32 s{SPB+4}, {12*8192}, s{SPB+4}")
        self.run(merge(self.cap(lambda: (self.common3(), setup())), (dma(1) if npro > 1 else []) + (dma(2) if npro > 2 else [])))
        p(f"s_lshl_b32 s{SD}, s{SRB}, 1\ns_add_u32 s{SD}, s{SD}, s{WT}")
        p(f"s_lshl_b32 s{SA}, s{SCOL}, 1\ns_add_u32 s{SA}, s{SA}, s{WP}")
        p(f"s_lshl_b32 s{SE}, s{SD}, 4\ns_add_u32 s{SE}, s{SE}, s{SA}")
        p(f"s_lshl_b32 s{SA}, s{SA}, 5\nv_and_b32 {v(T)}, 31, {v(VL)}\nv_add_lshl_u32 {v(T)}, {v(T)}, s{SA}, 1")
        p.wait_lg_all()
        p.vmem(f"global_load_ushort {v(PR)}, {v(T)}, {sp(PLRE)}")
        p.vmem(f"global_load_ushort {v(PR+1)}, {v(T)}, {sp(PLIM)}")
        tp = p.vmem(f"global_load_ushort {v(PR+2)}, {v(T)}, {sp(PLDT)}")
        LB, CF, L16, L128, L256, LQ0, LQ1 = 218, 220, 222, 224, 226, 228, 230
        X0, X1, X2, X3 = 232, 233, 234, 235
        L32, L64 = 236, 238
        def csq(d, s):
            p = self.p
            p(f"v_mul_f32 {v(X0)}, {v(s+1)}, {v(s+1)}\nv_add_f32 {v(X1)}, {v(s)}, {v(s)}")
            p(f"v_mul_f32 {v(d+1)}, {v(X1)}, {v(s+1)}\nv_fma_f32 {v(d)}, {v(s)}, {v(s)}, -{v(X0)}")
        def cmul(d, a, b):
            p = self.p
            p(f"v_mul_f32 {v(X0)}, {v(a+1)}, {v(b+1)}\nv_mul_f32 {v(X1)}, {v(a+1)}, {v(b)}")
            p(f"v_fma_f32 {v(X0)}, {v(a)}, {v(b)}, -{v(X0)}\nv_fma_f32 {v(d+1)}, {v(a)}, {v(b+1)}, {v(X1)}\nv_mov_b32 {v(d)}, {v(X0)}")
        def cfma(d, a, b, c):
            p = self.p
            p(f"v_fma_f32 {v(X0)}, {v(a)}, {v(b)}, {v(c)}\nv_fma_f32 {v(X1)}, {v(a)}, {v(b+1)}, {v(c+1)}")
            p(f"v_fma_f32 {v(X0)}, -{v(a+1)}, {v(b+1)}, {v(X0)}\nv_fma_f32 {v(d+1)}, {v(a+1)}, {v(b)}, {v(X1)}\nv_mov_b32 {v(d)}, {v(X0)}")
        def params():
            p = self.p
            p(f"v_lshlrev_b32 {v(PR)}, 16, {v(PR)}\nv_lshlrev_b32 {v(PR+1)}, 16, {v(PR+1)}\nv_lshlrev_b32 {v(PR+2)}, 16, {v(PR+2)}")
            p(f"v_mul_f32 {v(X0)}, {f2u(LOG2E)}, {v(PR+2)}\nv_exp_f32 {v(X0)}, {v(X0)}"); self.rnd(X0, X0)
            p(f"v_mul_f32 {v(X1)}, {v(X0)}, {v(PR)}\nv_mul_f32 {v(X2)}, {v(X0)}, {v(PR+1)}")
            p(f"v_mul_f32 {v(X1)}, {f2u(LOG2E)}, {v(X1)}\nv_exp_f32 {v(X1)}, {v(X1)}")
            p(f"v_mul_f32 {v(X2)}, {f2u(1/(2*math.pi))}, {v(X2)}\nv_fract_f32 {v(X2)}, {v(X2)}")
            p(f"v_cos_f32 {v(X3)}, {v(X2)}\nv_sin_f32 {v(X2)}, {v(X2)}")
            p(f"v_mul_f32 {v(X0)}, {v(PR)}, {v(PR)}")
            p(f"v_mul_f32 {v(LB)}, {v(X1)}, {v(X3)}\nv_mul_f32 {v(LB+1)}, {v(X1)}, {v(X2)}")
            p(f"v_fmac_f32 {v(X0)}, {v(PR+1)}, {v(PR+1)}\nv_rcp_f32 {v(X0)}, {v(X0)}")
            p(f"v_add_f32 {v(X1)}, -1.0, {v(LB)}\nv_add_f32 {v(X0)}, {v(X0)}, {v(X0)}")
            p(f"v_mul_f32 {v(X2)}, {v(X1)}, {v(PR)}\nv_fmac_f32 {v(X2)}, {v(LB+1)}, {v(PR+1)}\nv_mul_f32 {v(CF)}, {v(X2)}, {v(X0)}")
            p(f"v_mul_f32 {v(X2)}, {v(LB+1)}, {v(PR)}\nv_fma_f32 {v(X2)}, -{v(X1)}, {v(PR+1)}, {v(X2)}\nv_mul_f32 {v(CF+1)}, {v(X2)}, {v(X0)}")
            csq(L16, LB); csq(L16, L16); csq(L16, L16); csq(L16, L16)
            csq(L32, L16); csq(L64, L32); csq(L128, L64); csq(L256, L128)
            p.atom(f"s_cmp_eq_u32 s{WT}, 0\ns_cselect_b64 vcc, -1, 0")
            p(f"v_cndmask_b32 {v(L64)}, {v(L64)}, 1.0, vcc\nv_cndmask_b32 {v(L64+1)}, {v(L64+1)}, 0, vcc")
            p(f"v_cmp_gt_u32 vcc, 32, {v(VL)}\nv_cndmask_b32 {v(LQ0)}, {v(L32)}, 1.0, vcc\nv_cndmask_b32 {v(LQ0+1)}, {v(L32+1)}, 0, vcc")
            cmul(LQ0, LQ0, L64); cmul(LQ1, LQ0, L16)
        self.pf2()
        self.epoch2()
        self.stamp(0)
        pops = [lambda: p.wait(vm=tp)] + self.cap(params)
        valu = {}
        q = (len(pops) + 15) // 16
        for i in range(16): valu[8 + i] = pops[i * q:(i + 1) * q]
        def utouch():
            p(f"s_lshr_b32 s{SB_}, s2, 3\ns_lshl_b32 s{SB_}, s{SB_}, 2\ns_add_u32 s{SB_}, s{SB_}, s{SWV}\ns_lshl_b32 s{SB_}, s{SB_}, 14")
            p(f"s_and_b32 s{SA}, s2, 6\ns_lshl_b32 s{SA}, s{SA}, 20\ns_add_u32 s{SB_}, s{SB_}, s{SA}\ns_lshl_b32 s{SA}, s{SKH}, 11\ns_add_u32 s{SB_}, s{SB_}, s{SA}")
            p(f"v_lshrrev_b32 {v(217)}, 4, {v(VL)}\nv_lshlrev_b32 {v(217)}, 12, {v(217)}\nv_and_b32 {v(205)}, 15, {v(VL)}\nv_lshl_add_u32 {v(217)}, {v(205)}, 7, {v(217)}")
            p.vmem(f"buffer_load_dword {v(205)}, {v(217)}, {srd(SWSP)}, s{SB_} offen")
        if o.get("utch"): valu.setdefault(o["utch"], []).append(utouch)
        rt = {}
        def reads(n):
            st, ks = n // 4, n % 4; sl = st % 3; s = n & 1; ops = []
            for k in range(2):
                def ra(k=k): rt[(n, 'a', k)] = p.lds(f"ds_read_b128 {v(FA+8*s+4*k,4)}, {v(XR+(ks^k))} offset:{sl*16384+k*4096}")
                def rb(k=k): rt[(n, 'b', k)] = p.lds(f"ds_read_b128 {v(FB+8*s+4*k,4)}, {v(BR+ks)} offset:{sl*16384+k*8192}")
                ops += [ra, rb]
            def rx(): p.lds(f"ds_read_b128 {v(FX+4*s,4)}, {v(X1R+ks)} offset:{sl*16384}")
            ops.append(rx)
            for mt in range(3):
                for a in range(2):
                    def rw(mt=mt, a=a):
                        rt[(n, 'w', mt)] = p.lds(f"ds_read_b64_tr_b16 {v(FW+12*s+4*mt+2*a,2)}, {v(WR)} offset:{sl*12288+ks*3072+a*768+mt*64}")
                    ops.append(rw)
            return ops
        def mfmas(n):
            s = n & 1; ops = []
            for (mt, cp) in [(0, 0), (1, 0), (1, 1), (0, 1)]:
                def m(mt=mt, cp=cp):
                    if (mt, cp) == (0, 0): p.wait(lg=rt[(n, 'b', 1)])
                    d = v(ACC + 32 * mt + 16 * cp, 16)
                    p(f"{MF} {d}, {v(FA+8*s+4*mt,4)}, {v(FB+8*s+4*cp,4)}, {'0' if n == 0 else d}")
                ops.append(m)
            for mt in range(3):
                def m(mt=mt):
                    if mt == 0: p.wait(lg=rt[(n, 'w', 2)])
                    d = v(ZA + 16 * mt, 16)
                    p(f"{MF} {d}, {v(FW+12*s+4*mt,4)}, {v(FX+4*s,4)}, {'0' if n == 0 else d}")
                ops.append(m)
            return ops
        self.gemm_loop(3, reads, mfmas, dma, tick, 5, npro, {6: lambda: self.wsp_dma(0), 7: lambda: self.wsp_dma(1)} if not o.get('ul') else {7: lambda: [lambda: None] * 9 + self.wsp_dma(0) + self.wsp_dma(1)}, valu)
        self.stamp(1)
        def U(sg, cp): return ACC + 32 * (sg >> 3) + 16 * cp + 4 * ((sg & 7) >> 1) + 2 * (sg & 1)
        def step(hr, hi, sg, nr, ni, t0, t1):
            p = self.p; A = v(LB, 2)
            p(f"v_pk_fma_f32 {v(t0,2)}, {A}, {v(hr,2)}, {v(U(sg,0),2)} op_sel_hi:[0,1,1]")
            p(f"v_pk_fma_f32 {v(t1,2)}, {A}, {v(hi,2)}, {v(U(sg,1),2)} op_sel_hi:[0,1,1]")
            p(f"v_pk_fma_f32 {v(nr,2)}, {A}, {v(hi,2)}, {v(t0,2)} op_sel:[1,0,0] op_sel_hi:[1,1,1] neg_lo:[1,0,0] neg_hi:[1,0,0]")
            p(f"v_pk_fma_f32 {v(ni,2)}, {A}, {v(hr,2)}, {v(t1,2)} op_sel:[1,0,0] op_sel_hi:[1,1,1]")
        HA, HBb, T0, EX, E8, AD, GR, CQ = 128, 132, 136, 140, 144, 160, 164, 168
        SCR = 98304
        p(f"s_lshl_b32 s{SA}, s{WP}, 11\ns_add_u32 s{SA}, s{SA}, {SCR}")
        p(f"v_and_b32 {v(AD)}, 31, {v(VL)}\nv_lshlrev_b32 {v(AD)}, 6, {v(AD)}\nv_add_u32 {v(AD)}, s{SA}, {v(AD)}")
        p(f"v_lshrrev_b32 {v(AD+1)}, 5, {v(VL)}\nv_lshl_add_u32 {v(AD+1)}, {v(AD+1)}, 4, {v(AD)}\ns_lshl_b32 s{SA}, s{WT}, 5\nv_add_u32 {v(AD+1)}, s{SA}, {v(AD+1)}")
        Z1P = 192
        SZ0, SZ1 = SXL, SWL
        VA_ = 176
        MA, MB = SK + 2, SK + 4
        def z1st(u):
            mt, q = u >> 1, u & 1
            for i in range(4): p(f"v_cvt_pk_bf16_f32 {v(Z1P+4*u+i)}, {v(ZA+8*u+2*i)}, {v(ZA+8*u+2*i+1)}")
            r = v(Z1P + 4 * u, 4)
            p.vmem(f"buffer_store_dwordx4 {r}, {v(VA_ if u else VL16)}, {srd(SWS)}, s{SZ0 if u < 4 else SZ1} offen offset:{(u%4)*1024} sc1")
        p(f"s_lshl_b32 s{SA}, s{SRB}, 2\ns_add_u32 s{SA}, s{SA}, s{SWV}\ns_mul_i32 s{SA}, s{SA}, 45056\ns_mul_i32 s{SB_}, s{SCOL}, 6144\ns_add_u32 s{SA}, s{SA}, s{SB_}")
        p(f"s_add_u32 s{SZ0}, s{SA}, {Z1}\ns_add_u32 s{SZ1}, s{SZ0}, 4096\ns_cmp_lt_u32 s{SCOL}, 7\ns_cselect_b64 vcc, -1, 0")
        p(f"v_cndmask_b32 {v(VA_)}, {v(VOOB)}, {v(VL16)}, vcc")
        zs = [(lambda u=u: z1st(u)) for u in range(6)]
        self.run(zs[:2])
        p("s_barrier")
        def pass1():
            hr, hi = U(0, 0), U(0, 1)
            for sg in range(1, 16):
                nr, ni = (HA, HA + 2) if sg & 1 else (HBb, HBb + 2)
                step(hr, hi, sg, nr, ni, T0, T0 + 2)
                hr, hi = nr, ni
            self.p(f"v_mov_b32 {v(EX)}, {v(hr)}\nv_mov_b32 {v(EX+1)}, {v(hi)}\nv_mov_b32 {v(EX+2)}, {v(hr+1)}\nv_mov_b32 {v(EX+3)}, {v(hi+1)}")
        d2 = self.wsp_dma(2) + self.wsp_dma(3)
        self.run(merge(merge(self.cap(pass1), zs[2:]), d2[:7]))
        p.lds(f"ds_write_b128 {v(AD+1)}, {v(EX,4)}")
        p.wait_lg_all(); p("s_barrier")
        for i in range(4): p.lds(f"ds_read_b128 {v(E8+4*i,4)}, {v(AD)} offset:{16*i}")
        te = p.lg - 1
        self.run(d2[7:11])
        p(f"s_cmp_eq_u32 s{WT}, 0\ns_cselect_b32 s{SA}, 32, 0")
        p(f"v_cmp_gt_u32 vcc, s{SA}, {v(VL)}\nv_mov_b32 {v(GR+1)}, s{ST_T}\nv_mov_b32 {v(GR+3)}, s{ST_T}\nv_cndmask_b32 {v(T0)}, {v(VOOB)}, {v(VL16)}, vcc")
        p(f"s_lshl_b32 s{SC}, s{SCOL}, 14\ns_lshl_b32 s{SA}, s{WP}, 9\ns_add_u32 s{SC}, s{SC}, s{SA}\ns_add_u32 s{SC}, s{SC}, {EG}")
        p(f"s_lshl_b32 s{SA}, s{SRB}, 10\ns_add_u32 s{SA}, s{SA}, s{SC}")
        p.wait(lg=te); p("s_barrier")
        self.run(merge(self.cap(lambda: [cfma(E8 + 2 * q, L16, E8 + 2 * (q - 1), E8 + 2 * q) for q in range(1, 8)]), d2[11:15]))
        p(f"v_mov_b32 {v(GR)}, {v(E8+14)}\nv_mov_b32 {v(GR+2)}, {v(E8+15)}")
        p.vmem(f"buffer_store_dwordx4 {v(GR,4)}, {v(T0)}, {srd(SWS)}, s{SA} offen sc1")
        self.run(d2[15:])
        self.stamp(2)
        p(f"v_cmp_gt_u32 vcc, 32, {v(VL)}")
        w1 = p.label("w1"); w2 = p.label("w2")
        p(f"s_cmp_eq_u32 s{WT}, 0\ns_cbranch_scc0 {w1}")
        p(f"v_cndmask_b32 {v(CQ)}, {v(E8+2)}, 0, vcc\nv_cndmask_b32 {v(CQ+1)}, {v(E8+3)}, 0, vcc")
        p(f"v_cndmask_b32 {v(CQ+2)}, {v(E8+4)}, {v(E8)}, vcc\nv_cndmask_b32 {v(CQ+3)}, {v(E8+5)}, {v(E8+1)}, vcc")
        p(f"s_branch {w2}")
        p.put(w1)
        for k in range(4): p(f"v_cndmask_b32 {v(CQ+k)}, {v(E8+10+k)}, {v(E8+6+k)}, vcc")
        p.put(w2)
        Z1P = 192
        EGR, EO, EXP, ET = 80, 144, 152, 160
        def eo():
            p = self.p
            p(f"v_lshrrev_b32 {v(ET)}, 5, {v(VL)}\nv_sub_u32 {v(ET)}, s{SRB}, {v(ET)}\nv_add_u32 {v(ET)}, -1, {v(ET)}")
            p(f"v_and_b32 {v(ET+1)}, 31, {v(VL)}\nv_lshlrev_b32 {v(ET+1)}, 4, {v(ET+1)}\nv_mov_b32 {v(ET+3)}, s{ST_T}")
            for q in range(8):
                p(f"v_add_u32 {v(ET+2)}, {-2*q}, {v(ET)}\nv_cmp_le_i32 vcc, 0, {v(ET+2)}\nv_lshl_add_u32 {v(ET+2)}, {v(ET+2)}, 10, {v(ET+1)}")
                p(f"v_cndmask_b32 {v(EO+q)}, {v(VOOB)}, {v(ET+2)}, vcc\nv_cndmask_b32 {v(EXP+q)}, 0, {v(ET+3)}, vcc")
        lgw = lambda: p.wait(lg=p.lg - 1)
        self.run(merge(self.cap(lambda: (eo(), self.g_early(184))), self.wsp_dma(4) + self.wsp_read(0) + self.wsp_read(1)))
        et = {}
        def eload(q):
            et['t'] = p.vmem(f"buffer_load_dwordx4 {v(EGR+4*q,4)}, {v(EO+q)}, {srd(SWS)}, s{SC} offen sc1")
        for q in range(8): eload(q)
        ue = o.get('ue', 0)
        self.run([lgw] + self.wsp_dma(5) + (self.wsp_dma(6) if ue else []))
        if ue == 2: self.run(self.wsp_read(2) + [lgw] + self.wsp_dma(7))
        self.stamp(3)
        l = p.label("ep"); dl = p.label("ed")
        p.wait(vm=et['t'])
        p(f"s_mov_b32 s{SSPIN}, 0")
        p.put(l)
        p(f"v_mov_b32 {v(ET)}, 0")
        for q in range(8):
            p(f"v_xor_b32 {v(ET+1)}, {v(EXP+q)}, {v(EGR+4*q+1)}\nv_xor_b32 {v(ET+2)}, {v(EXP+q)}, {v(EGR+4*q+3)}\nv_or3_b32 {v(ET)}, {v(ET)}, {v(ET+1)}, {v(ET+2)}")
        p(f"v_cmp_ne_u32 vcc, 0, {v(ET)}\ns_cmp_eq_u64 vcc, 0\ns_cbranch_scc1 {dl}")
        for q in range(8): p(f"buffer_load_dwordx4 {v(EGR+4*q,4)}, {v(EO+q)}, {srd(SWS)}, s{SC} offen sc1")
        p("s_waitcnt vmcnt(0)")
        p(f"s_add_u32 s{SSPIN}, s{SSPIN}, 1\ns_cmp_lt_u32 s{SSPIN}, {SPIN}\ns_cbranch_scc1 {l}")
        p.put(dl)
        self.flag_prep(178)
        p(f"s_lshl_b32 s{SA}, s{SCOL}, 6\ns_lshl_b32 s{SB_}, s{SRB}, 2\ns_add_u32 s{SA}, s{SA}, s{SB_}\ns_add_u32 s{SA}, s{SA}, s{SWV}\ns_lshl_b32 s{SA}, s{SA}, 7\ns_add_u32 s{SA}, s{SA}, {Z1F}")
        self.flag(SA, 178)
        self.stamp(4)
        OP, OT, HO = 80, 144, 132
        MA, MB = SK + 2, SK + 4
        SH0, SH1 = SXB, SW1B
        def pass2a():
            p = self.p
            p(f"s_lshl_b32 s{SA}, s{SD}, 3\ns_add_u32 s{SA}, s{SA}, s{SCOL}\ns_lshl_b32 s{SA}, s{SA}, 14\ns_lshl_b32 s{SB_}, s{WP}, 12\ns_add_u32 s{SA}, s{SA}, s{SB_}")
            p(f"s_add_u32 s{SH0}, s{SA}, {HB}\ns_add_u32 s{SH1}, s{SH0}, 8192")
            p(f"v_lshrrev_b32 {v(T0)}, 5, {v(VL)}\nv_lshlrev_b32 {v(T0)}, 11, {v(T0)}\nv_and_b32 {v(T0+1)}, 31, {v(VL)}\nv_lshl_add_u32 {v(HO)}, {v(T0+1)}, 4, {v(T0)}")
            for k in range(1, 4): p(f"v_xor_b32 {v(HO+k)}, {64*k}, {v(HO)}")
            for q in range(8): p(f"v_mov_b32 {v(EGR+4*q+1)}, {v(EGR+4*q+2)}")
            S = EGR + 28
            for q in range(6, -1, -1): cfma(S, L256, S, EGR + 4 * q)
            p(f"v_mov_b32 {v(ET)}, {v(S)}\nv_mov_b32 {v(ET+1)}, {v(S+1)}\nv_permlane32_swap_b32 {v(S)}, {v(ET)}\nv_permlane32_swap_b32 {v(S+1)}, {v(ET+1)}")
            cfma(S, L128, ET, S)
            cfma(CQ, LQ0, S, CQ); cfma(CQ + 2, LQ1, S, CQ + 2)
            p(f"v_mov_b32 {v(HA)}, {v(CQ)}\nv_mov_b32 {v(HA+1)}, {v(CQ+2)}\nv_mov_b32 {v(HA+2)}, {v(CQ+1)}\nv_mov_b32 {v(HA+3)}, {v(CQ+3)}")
        def pass2(s0, s1):
            p = self.p
            Cc = v(CF, 2)
            for sg in range(s0, s1):
                hr, hi = (HA, HA + 2) if sg == 0 else (U(sg - 1, 0), U(sg - 1, 1))
                step(hr, hi, sg, U(sg, 0), U(sg, 1), T0, T0 + 2)
                hr, hi = U(sg, 0), U(sg, 1)
                oo = OT + 4 * (sg & 1) + 8 * ((sg >> 1) & 1)
                p(f"v_pk_mul_f32 {v(oo,2)}, {Cc}, {v(hr,2)} op_sel_hi:[0,1]")
                p(f"v_pk_mul_f32 {v(oo+2,2)}, {Cc}, {v(hi,2)} op_sel_hi:[0,1] neg_lo:[1,0] neg_hi:[1,0]")
                p(f"v_pk_fma_f32 {v(oo,2)}, {Cc}, {v(hi,2)}, {v(oo,2)} op_sel:[1,0,0] op_sel_hi:[1,1,1] neg_lo:[1,0,0] neg_hi:[1,0,0]")
                p(f"v_pk_fma_f32 {v(oo+2,2)}, {Cc}, {v(hr,2)}, {v(oo+2,2)} op_sel:[1,0,0] op_sel_hi:[1,1,1] neg_lo:[1,0,0] neg_hi:[1,0,0]")
                if sg & 1:
                    q, i = sg >> 3, (sg & 7) >> 1
                    for cp in range(2):
                        for e in range(2):
                            p(f"v_cvt_pk_bf16_f32 {v(OP+16*cp+8*e+4*q+i)}, {v(oo-4+2*cp+e)}, {v(oo+2*cp+e)}")
        def hst(cp, k):
            if o.get("x_nost"): return
            p.vmem(f"buffer_store_dwordx4 {v(OP+16*cp+4*k,4)}, {v(HO+k)}, {srd(SWS)}, s{SH0 if cp == 0 else SH1} offen offset:{512*k} sc1")
        uo = o.get("uo", 0)
        if uo:
            H1 = [(lambda cp=cp, k=k: hst(cp, k)) for k in (0, 2) for cp in range(2)]
            H2 = [(lambda cp=cp, k=k: hst(cp, k)) for k in (1, 3) for cp in range(2)]
            self.run(merge(self.cap(pass2a), self.wsp_read(2) + self.wsp_read(3)))
            self.run(merge(self.cap(lambda: pass2(0, 8)), (self.wsp_dma(6) if uo == 2 else []) + self.wsp_read(4)))
            self.run(merge(self.cap(lambda: pass2(8, 16)), H1))
            self.run(H2 + ([] if uo == 2 else self.wsp_dma(6)) + [lgw] + self.wsp_dma(7) + self.wsp_read(5))
            self.g_poll_issue()
            self.run(self.wsp_read(6) + self.wsp_read(7))
        else:
            if ue == 2:
                self.run(merge(self.cap(pass2a), self.wsp_read(3)))
                self.run(self.cap(lambda: pass2(0, 8)))
            elif ue:
                self.run(merge(self.cap(pass2a), self.wsp_read(2) + [lgw] + self.wsp_dma(7)))
                self.run(merge(self.cap(lambda: pass2(0, 8)), self.wsp_read(3)))
            else:
                self.run(merge(self.cap(pass2a), self.wsp_dma(6) + self.wsp_read(2) + [lgw]))
                self.run(merge(self.cap(lambda: pass2(0, 8)), self.wsp_dma(7) + self.wsp_read(3)))
            self.g_poll_issue()
            self.run(merge(merge(self.cap(lambda: pass2(8, 16)), [(lambda cp=cp, k=k: hst(cp, k)) for k in (0, 2) for cp in range(2)]), self.wsp_read(4) + self.wsp_read(5)))
            h2 = [(lambda cp=cp, k=k: hst(cp, k)) for k in (1, 3) for cp in range(2)]
            self.run(merge(self.wsp_read(6) + self.wsp_read(7), h2))
        p(f"s_lshl_b32 s{SLATE}, s{SE}, 7\ns_add_u32 s{SLATE}, s{SLATE}, {HF}")
        self.stamp(5)
        p(f"s_branch {self.LG}")

    CD, CR, HT, GY, WD, WT_ = 210, 214, 218, 240, 244, 228
    ZUP = [4, 6, 8, 10, 12, 14, 204, 206, 208, 248, 250, 252]
    YSL = [1, 1, 0, 1]
    YB = [96, 160, 96, 160]
    def wo_dma(self, parts):
        items = []
        for (i0, i1, base) in parts:
            for i in range(i0, i1):
                def cb(t, i=i): self.wo[i] = t
                k = i - i0
                items.append(((SREG, base + k * 1024) if k % 4 == 0 else None, (SXB, i * 8192) if k % 4 == 0 else None,
                              f"buffer_load_dwordx4 {v(self.WD+k%4)}, {srd(SWOUT)}, s{SDO} offen offset:{(k%4)*1024} lds", cb))
        return self.dseq(items)
    def c_setup(self):
        p = self.p
        self.plain_dma_addr(self.CD, 1024, 224)
        p(f"s_add_u32 s{SA}, s{SREG}, 4096")
        self.plain_read_addr(self.CR, SA, 224)
        p(f"s_add_u32 s{SA}, s{SREG}, {4096+8192}")
        self.unit_tr_addr(self.HT, SA, 224, False)
        p(f"s_lshl_b32 s{SCB}, s{SCOL}, 16\ns_lshl_b32 s{SA}, s{SWV}, 8\ns_add_u32 s{SCB}, s{SCB}, s{SA}")
        p(f"s_lshl_b32 s{SHB}, s{STB}, 17\ns_lshl_b32 s{SA}, s{SWV}, 15\ns_add_u32 s{SHB}, s{SHB}, s{SA}\ns_add_u32 s{SHB}, s{SHB}, {HB}")
        self.yt = {}
    def y_items(self, s):
        sl = self.YSL[s]; items = []
        def cb(t): self.yt[s] = t
        for hh in range(2):
            for i in range(4):
                items.append(((SREG, 4096 + sl * 20480 + hh * 4096), (SCB, (s >> 1) * 128 + hh * 32768),
                              f"buffer_load_dwordx4 {v(self.CD+i)}, {srd(SCIM if s & 1 else SCRE)}, s{SDO} offen offset:{i*1024} lds", cb))
        for hh in range(2):
            for i in range(4):
                items.append(((SREG, 4096 + sl * 20480 + 8192 + hh * 4096), (SHB, s * 8192 + hh * 4096),
                              f"buffer_load_dwordx4 {v(VL16)}, {srd(SWS)}, s{SDO} offen offset:{i*1024} sc1 lds", cb))
        return items
    def y_dma(self, s): return self.dseq(self.y_items(s))
    def y_read(self, s):
        p = self.p; sl = self.YSL[s]; ops = []
        self.yr = getattr(self, "yr", {})
        for ks in range(4):
            def f(ks=ks):
                p.wait(vm=self.yt[s], lg=p.lg - 10)
                b = self.YB[s] + 16 * ks
                for k in range(2):
                    p.lds(f"ds_read_b128 {ar(b+4*k,4)}, {v(self.CR+ks)} offset:{sl*20480+k*4096}")
                    for a in range(2):
                        self.yr[(s, ks)] = p.lds(f"ds_read_b64_tr_b16 {ar(b+8+4*k+2*a,2)}, {v(self.HT+a)} offset:{sl*20480+(ks>>1)*4096+k*2048+(ks&1)*256}")
            ops.append(f)
        return ops
    def phase_g(self):
        p = self.p; o = self.o
        p.c("==== phase B: G ====")
        p.put(self.LG)
        p.vm_done = -1; p.lg_done = -1
        ACC, FA, TR, T = 16, 112, self.GTR, 186
        Z1R, BI, PV, WD, PL, PL2, PL3, OGV = 190, 202, 203, self.WD, self.GPL, 222, 234, 241
        Q = SK + 9
        AOFF = 24576
        lgw = lambda: p.wait(lg=p.lg - 1)
        p(f"s_mov_b32 s{SCOL}, s{SJ}")
        def late_setup():
            p = self.p
            p(f"s_lshl_b32 s{SE}, s{STB}, 11\ns_add_u32 s{SE}, s{SE}, {HF}")
            p(f"s_lshl_b32 s{SA}, s{SZI}, 7\ns_add_u32 s{SA}, s{SA}, {Z1F}")
            p.atom(f"s_sub_u32 s{SB_}, s{SA}, 8192\ns_cmp_eq_u32 s{SCOL}, 0\ns_cselect_b32 s{SB_}, s{SA}, s{SB_}")
            self.poll_addr(PL3, [(SE, 16), (SA, 1), (SB_, 1)])
            p(f"s_lshr_b32 s{SA}, s{STB}, 1\ns_lshl_b32 s{SA}, s{SA}, 9\ns_add_u32 s{SA}, s{SA}, {ZF2}")
            p(f"v_bfe_u32 {v(T)}, {v(VL)}, 2, 3\nv_lshlrev_b32 {v(T)}, 13, {v(T)}\nv_and_b32 {v(T+1)}, 3, {v(VL)}\nv_lshl_add_u32 {v(T)}, {v(T+1)}, 7, {v(T)}\nv_add_u32 {v(T)}, s{SA}, {v(T)}")
            p(f"s_mov_b32 vcc_lo, 0\ns_mov_b32 vcc_hi, -1\nv_cndmask_b32 {v(PL3)}, {v(PL3)}, {v(T)}, vcc")
            self.flag_prep(220)
            p(f"v_lshrrev_b32 {v(T)}, 3, {v(VL)}\nv_lshlrev_b32 {v(T)}, 10, {v(T)}")
            p(f"v_bfe_u32 {v(T+1)}, {v(VL)}, 4, 1\nv_lshlrev_b32 {v(T+1)}, 2, {v(T+1)}\nv_and_b32 {v(T+2)}, 7, {v(VL)}\nv_xor_b32 {v(T+1)}, {v(T+1)}, {v(T+2)}")
            p(f"v_lshl_add_u32 {v(WD)}, {v(T+1)}, 4, {v(T)}")
            for i in range(1, 4): p(f"v_add_u32 {v(WD+i)}, {i*7168}, {v(WD)}")
            p(f"s_mul_i32 s{SXB}, s{SWV}, {176*1024}\ns_lshl_b32 s{SA}, s{SCOL}, 7\ns_add_u32 s{SXB}, s{SXB}, s{SA}")
            self.panel_tr_addr(self.WT_, SREG, 224, False)
        p(f"s_lshr_b32 s{Q}, s{SWV}, 1\ns_and_b32 s{SC}, s{SZI}, 63")
        GT1 = 227
        self.slice_z2(SJ)
        p(f"s_lshl_b32 s{SA}, s{SNU}, 3\ns_sub_i32 s{SA}, s{SA}, 64\nv_and_b32 {v(T)}, 31, {v(VL)}\nv_cmp_gt_i32 vcc, s{SA}, {v(T)}\ns_lshl_b32 s{SF}, s{Q}, 1\ns_add_u32 s{SD}, s{SF}, 8\nv_cndmask_b32 {v(TR+1)}, {v(VOOB)}, {v(VL16)}, vcc")
        p(f"s_cmp_gt_u32 s{SNU}, 4\ns_cselect_b64 vcc, -1, 0\nv_cndmask_b32 {v(GT1)}, {v(VOOB)}, {v(VL16)}, vcc")
        p(f"s_cmp_lt_u32 s{SD}, s{SNU}\ns_cselect_b64 vcc, -1, 0\nv_cndmask_b32 {v(PV)}, {v(VOOB)}, {v(VL16)}, vcc")
        p(f"s_lshl_b32 s{SA}, s{SC}, 5\nv_add_lshl_u32 {v(T)}, {v(T)}, s{SA}, 1")
        p.vmem(f"global_load_ushort {v(BI)}, {v(T)}, {sp(PBSP)}")
        p(f"s_add_u32 s{SF}, s{SF}, s{SU0}\ns_lshl_b32 s{SF}, s{SF}, 9\ns_mul_i32 s{SPO}, s{SC}, 45056\ns_add_u32 s{SPO}, s{SPO}, s{SF}\ns_add_u32 s{SD}, s{SPO}, {Z1}")
        p(f"v_and_b32 {v(PL2)}, 31, {v(VL)}\nv_lshlrev_b32 {v(PL2)}, 2, {v(PL2)}")
        p.wait_lg_all()
        self.stamp(6)
        l = p.label("gp"); dn = p.label("gd")
        p(f"s_waitcnt vmcnt({1 if o.get('uo') else 9})")
        p(f"s_cmp_ge_u32 s2, 128\ns_cbranch_scc1 {l}\ns_waitcnt vmcnt({7 if o.get('zsched', 0) else 0})")
        p.put(l)
        p(f"v_cmp_ne_u32 vcc, s{ST_T}, {v(PL+1)}\ns_and_b32 vcc_hi, vcc_hi, 0xffff\ns_or_b32 s{SF}, vcc_lo, vcc_hi\ns_cbranch_scc0 {dn}")
        self.poll(PL, 48)
        p.put(dn)
        p("s_barrier")
        g0 = p.vm
        def late_flag():
            nf = p.label("nf")
            p(f"s_cmp_eq_u32 s{SLATE}, 0\ns_cbranch_scc1 {nf}")
            p(f"s_waitcnt vmcnt({p.vm - g0})")
            p(f"buffer_store_dword {v(220)}, {v(221)}, {srd(SWS)}, s{SLATE} offen sc1")
            p.put(nf)
        p.vm_done = -1
        self.stamp(7)
        def soff(B): return ((B & 3) >> 1) * 40960 + (B & 1) * 12288
        tick = {}
        def dma(B):
            items = []
            for i in range(6):
                def cb(t): tick[B] = t
                g = i // 4
                txt = f"buffer_load_dwordx4 {v([VL16, GT1, VL16, GT1, TR + 1, TR + 1][i])}, {srd(SWS)}, s{SDO} offen offset:{(i%4)*1024} sc1 lds"
                items.append(((SGL, soff(B) + g * 4096) if i % 4 == 0 else None, (SGB, B * 12288 + g * 4096) if i % 4 == 0 else None, txt, cb))
            return self.dseq(items)
        z1t = {}
        def z1load():
            p.vmem(f"buffer_load_dwordx4 {v(Z1R,4)}, {v(VL16)}, {srd(SWS)}, s{SD} offen sc1")
            p.vmem(f"buffer_load_dwordx4 {v(Z1R+4,4)}, {v(GT1)}, {srd(SWS)}, s{SD} offen offset:2048 sc1")
            p(f"s_add_u32 s{SD}, s{SD}, 4096")
            z1t['t'] = p.vmem(f"buffer_load_dwordx4 {v(Z1R+8,4)}, {v(PV)}, {srd(SWS)}, s{SD} offen sc1")
        def z2touch(b0=2):
            p(f"s_bfe_u32 s{SA}, s2, 0x20006\ns_mul_i32 s{SB_}, s{SA}, 1536\ns_add_u32 s{SA}, s{SGB}, s{SB_}\ns_add_u32 s{SA}, s{SA}, {b0*12288}")
            p(f"v_mul_u32_u24 {v(230)}, 43, {v(VL)}\nv_lshrrev_b32 {v(230)}, 9, {v(230)}\nv_mul_u32_u24 {v(231)}, 12, {v(230)}\nv_sub_u32 {v(231)}, {v(VL)}, {v(231)}")
            p(f"v_mul_u32_u24 {v(230)}, 12288, {v(230)}\nv_lshl_add_u32 {v(230)}, {v(231)}, 7, {v(230)}")
            p.vmem(f"buffer_load_dword {v(231)}, {v(230)}, {srd(SWS)}, s{SA} offen sc1")
        zt2 = o.get("zt2", 0)
        if zt2 == 2: z2touch(0)
        self.run(dma(0))
        if zt2 == 3: z2touch(1)
        self.run(merge(self.cap(lambda: (late_setup(), self.c_setup())), dma(1)))
        if zt2 == 1: z2touch(2)
        if zt2 in (2, 3):
            p(f"s_add_u32 s{SA}, s{SGB}, {(5 if zt2 == 2 else 6)*12288}\ns_bfe_u32 s{SB_}, s2, 0x20006\ns_mul_i32 s{SB_}, s{SB_}, 1536\ns_add_u32 s{SA}, s{SA}, s{SB_}")
            p(f"v_cmp_gt_u32 vcc, {36 if zt2 == 2 else 24}, {v(VL)}\ns_nop 1\nv_cndmask_b32 {v(230)}, {v(VOOB)}, {v(230)}, vcc")
            p.vmem(f"buffer_load_dword {v(231)}, {v(230)}, {srd(SWS)}, s{SA} offen sc1")
        def gyl():
            p(f"s_lshl_b32 s{SA}, s{STB}, 8\ns_add_u32 s{SA}, s{SA}, {GATE}")
            p.vmem(f"buffer_load_dword {v(self.GY)}, {v(PL2)}, {srd(SWS)}, s{SA} offen sc1")
            p.vmem(f"buffer_load_dword {v(self.GY+2)}, {v(PL2)}, {srd(SWS)}, s{SA} offen offset:128 sc1")
            p(f"s_lshl_b32 s{SA}, s{SC}, 7\ns_add_u32 s{SA}, s{SA}, {GATE}")
            p.vmem(f"buffer_load_dword {v(OGV)}, {v(PL2)}, {srd(SWS)}, s{SA} offen sc1")
        def z1gelu():
            c1 = -2 * LOG2E * 0.7978845608028654
            self.VC0 = 188
            self.p(f"s_mov_b32 s{SK}, {f2u(c1*0.044715)}\nv_mov_b32 {v(188)}, {f2u(c1)}")
            for i in range(12): self.unpack(self.ZUP[i], Z1R + i)
            self.gelu_many(self.ZUP, [24, 26, 28, 30])
        lt = {}
        def issue(r):
            lt[r] = p.vmem(f"buffer_load_dword {v(r+1)}, {v(r)}, {srd(SWS)}, 0 offen sc1")
        def check(r, mask):
            l = p.label("lp"); d = p.label("ld")
            p.wait(vm=lt[r])
            p(f"s_mov_b32 s{SSPIN}, 0")
            p.put(l)
            p(f"v_cmp_ne_u32 vcc, s{ST_T}, {v(r+1)}\ns_and_b32 s{SF}, vcc_lo, {mask}\ns_or_b32 s{SF}, s{SF}, vcc_hi\ns_cbranch_scc0 {d}")
            p(f"buffer_load_dword {v(r+1)}, {v(r)}, {srd(SWS)}, 0 offen sc1\ns_waitcnt vmcnt(0)")
            p(f"s_add_u32 s{SSPIN}, s{SSPIN}, 1\ns_cmp_lt_u32 s{SSPIN}, {SPIN}\ns_cbranch_scc1 {l}")
            p.put(d)
        rt = {}
        def fset(hb): return FA + 24 * (2 if hb == 15 else hb & 1)
        FO = [(0, 0), (0, 1), (0, 2), (1, 0), (1, 1), (1, 2)]; FP = {(0, 0): 0, (0, 1): 1, (1, 0): 2, (1, 1): 3, (0, 2): 4, (1, 2): 5}
        def reads(hb):
            B, e = hb >> 1, hb & 1; ops = []
            for (ks, mt) in FO:
                def ra(ks=ks, mt=mt):
                    rt[(hb, ks, mt)] = p.lds(f"ds_read_b128 {v(fset(hb)+12*ks+4*mt,4)}, {v(TR)} offset:{soff(B)+e*6144+FP[(ks,mt)]*1024}")
                ops.append(ra)
            return ops
        def mf(hb, ks, mt, nt):
            def m():
                p.wait(lg=rt[(hb, ks, 2 if hb < 14 else mt)])
                d = v(ACC + 16 * (2 * mt + nt), 16); kap = 2 * hb + ks
                p(f"{MF} {d}, {v(fset(hb)+12*ks+4*mt,4)}, {ar((kap*2+nt)*4,4)}, {'0' if kap == 0 else d}")
            return m
        self.wo = wo = {}
        def WOA(kap): return (kap - 8) * 8 if kap >= 8 else 24 + kap * 8
        def wo_rd(kap):
            def f():
                p.wait(vm=wo[2 * kap + 1], lg=p.lg - 12)
                for mt in range(2):
                    for a in range(2):
                        base = AOFF + (kap if kap < 8 else kap - 8) * 2048
                        p.lds(f"ds_read_b64_tr_b16 {ar(WOA(kap)+4*mt+2*a,2)}, {v(self.WT_+mt)} offset:{base+a*512}")
            return f
        p.wait(vm=tick[0]); p("s_barrier")
        self.run(reads(0))
        wa = self.wo_dma([(16, 22, AOFF)])
        def wb(i0, i1): return self.wo_dma([(i0, i1, AOFF + i0 * 1024)])
        y0 = self.y_dma(0)
        y1 = self.y_dma(1)
        yc0 = self.dseq(self.y_items(0)[:8]); yc0b = self.dseq(self.y_items(0)[:4]);
        def ypart(s_, a, b): return self.dseq(self.y_items(s_)[a:b])
        extra = {0: dma(2), 1: dma(3), 2: wa, 4: [wo_rd(8), wo_rd(9), wo_rd(10), lgw] + wb(0, 3), 5: wb(3, 4), 6: wb(4, 9) + [gyl], 7: wb(9, 10), 8: wb(10, 16) + [lambda: issue(PL3)],
                 10: [wo_rd(k) for k in range(8)] + [lgw] + ypart(0, 0, 2), 11: ypart(0, 2, 8) + [z1load], 12: ypart(0, 8, 13), 13: ypart(0, 13, 16)}
        gl = o.get("gl", 0)
        if gl:
            self.YSL = [0, 1, 0, 1]
            y0, y1 = self.y_dma(0), self.y_dma(1)
            extra = {0: dma(2), 1: dma(3), 2: wa[:4], 3: wa[4:], 5: [wo_rd(8), wo_rd(9), wo_rd(10)], 6: [lgw] + wb(0, 3) + [gyl], 7: wb(3, 4), 8: wb(4, 8) + [lambda: issue(PL3)],
                     9: wb(8, 11), 10: wb(11, 14), 11: wb(14, 16) + [z1load]}
            extra[3] = extra[3]
        gel = {}
        for hb in range(14):
            if o.get("gstamps") and hb % 2 == 0: self.stamp(21 + hb // 2)
            B = hb >> 1
            if hb & 1:
                p.wait(vm=tick[B + 1], lg=p.lg - 1); p("s_barrier")
            if hb == 11:
                check(PL3, 0x3ffff)
                if o.get("ht"):
                    p(f"s_lshl_b32 s{SA}, s{STB}, 17\ns_lshl_b32 s{SB_}, s{SCOL}, 14\ns_add_u32 s{SA}, s{SA}, s{SB_}\ns_lshl_b32 s{SB_}, s{SWV}, 12\ns_add_u32 s{SA}, s{SA}, s{SB_}\ns_add_u32 s{SA}, s{SA}, {HB}")
                    p(f"v_and_b32 {v(230)}, 31, {v(VL)}\nv_lshlrev_b32 {v(230)}, 7, {v(230)}")
                    p.vmem(f"buffer_load_dword {v(231)}, {v(230)}, {srd(SWS)}, s{SA} offen sc1")
            mm = [mf(hb, ks, mt, nt) for ks in range(2) for mt in range(3) for nt in range(2)]
            rd = reads(hb + 1) + (reads(15) if hb == 13 else [])
            seq = merge(mm, rd, 0, 8 if hb == 13 else 6)
            f = list(extra.get(hb, []))
            if hb & 1 and B + 4 < 8: f = f + dma(B + 4)
            if f: seq = merge(seq, f, len(seq) // 4)
            if hb in gel: seq = merge(seq, gel[hb])
            if hb == o.get("hflag", 3): seq = seq + [late_flag]
            self.run(seq)
        VW, VRD = T, T + 1
        p(f"s_xor_b32 s{SA}, s{SWV}, 2\ns_mul_i32 s{SA}, s{SA}, 40960\nv_add_u32 {v(VW)}, s{SREG}, {v(VL16)}\nv_add_u32 {v(VRD)}, s{SA}, {v(VL16)}")
        def roff(i): return i * 1024
        def rw(ti):
            return [(lambda hq=hq: p.lds(f"ds_write_b128 {v(VW)}, {v(ACC+16*ti+8+4*hq,4)} offset:{roff(2*ti+hq)}")) for hq in range(2)]
        tiles = [1, 3, 5, 0, 2, 4]
        for n_, ti in enumerate(tiles):
            mm = [mf(hb, ks, ti >> 1, ti & 1) for hb in (14, 15) for ks in range(2)]
            f = (rw(tiles[n_ - 2]) if n_ >= 2 else [])
            self.run(merge(mm, f))
        self.stamp(8)
        yl = o.get('y0late', 0) or gl
        self.run(merge([] if yl else self.y_read(0), rw(tiles[4]) + rw(tiles[5])) if not yl else rw(tiles[4]) + rw(tiles[5]))
        p.wait_lg_all(); p("s_barrier")
        RB = 112
        tk = {}
        for n_, ti in enumerate(tiles):
            for hq in range(2): tk[(ti, hq)] = p.lds(f"ds_read_b128 {v(RB+8*ti+4*hq,4)}, {v(VRD)} offset:{roff(2*ti+hq)}")
        if not yl: self.run(y1[:3])
        def radd(ti):
            for hq in range(2):
                p.wait(lg=tk[(ti, hq)])
                for hh in range(2): p(f"v_pk_add_f32 {v(ACC+16*ti+4*hq+2*hh,2)}, {v(ACC+16*ti+4*hq+2*hh,2)}, {v(RB+8*ti+4*hq+2*hh,2)}")
        XS = [40, 44, 56, 60]; XR = [72, 76, 88, 92]
        p(f"s_lshl_b32 s{SA}, s2, 2\ns_add_u32 s{SA}, s{SA}, s{SWV}\ns_lshl_b32 s{SA}, s{SA}, 12\ns_add_u32 s{SA}, s{SA}, {XB}\ns_xor_b32 s{SE}, s{SA}, {(64 if o.get('xl') else 1) * 16384}")
        for g in range(4): p(f"v_mov_b32 {v(XS[g]+3)}, s{ST_T}")
        for ti in (1, 3, 5): radd(ti)
        for i in range(12):
            src = ACC + 16 * (2 * (i >> 2) + 1) + 2 * (i & 3)
            p(f"v_cvt_pk_bf16_f32 {v(XS[i//3]+i%3)}, {v(src)}, {v(src+1)}")
            if i % 3 == 2: p.vmem(f"buffer_store_dwordx4 {v(XS[i//3],4)}, {v(VL16)}, {srd(SWS)}, s{SA} offen offset:{(i//3)*1024} {o.get('xm', 'sc1')}")
        if yl and not gl: self.run(self.y_read(0))
        for ti in (0, 2, 4): radd(ti)
        if yl and not gl: self.run([lgw] + y1[:3])
        p("s_barrier")
        self.stamp(9)

        p.c("==== phase C ====")
        YA, PA = 112, 16
        XE, GE, DE, OV, P10, PLP, TC = 186, 194, 198, 184, 185, 222, 64
        RW, RX, WA, RA = 176, 177, 180, 230
        SROW, SXO, SPB_ = SXL, SWL, SW1B
        ep = {}
        def setup():
            p = self.p; T = TC
            p(f"v_lshrrev_b32 {v(T)}, 4, {v(VL)}\nv_and_b32 {v(T+1)}, 15, {v(VL)}")
            p(f"v_lshlrev_b32 {v(T+2)}, 10, {v(T)}\nv_lshl_add_u32 {v(T+2)}, {v(T+1)}, 3, {v(T+2)}")
            p(f"v_lshlrev_b32 {v(T+3)}, 2, {v(T)}\nv_lshlrev_b32 {v(T+4)}, 3, {v(T+1)}")
            p(f"v_lshlrev_b32 {v(OV)}, 1, {v(T+2)}")
            p(f"s_lshl_b32 s{SROW}, s{STB}, 6\ns_lshl_b32 s{SA}, s{SWV}, 4\ns_add_u32 s{SROW}, s{SROW}, s{SA}")
            p(f"s_lshl_b32 s{SXO}, s{SROW}, 10\ns_lshl_b32 s{SA}, s{SCOL}, 7\ns_add_u32 s{SXO}, s{SXO}, s{SA}\nv_add_u32 {v(T+4)}, s{SA}, {v(T+4)}")
            p(f"s_lshl_b32 s{SA}, s{STB}, 12\ns_lshl_b32 s{SB_}, s{SWV}, 10\ns_add_u32 s{SB_}, s{SB_}, s{SA}\ns_add_u32 s{SB_}, s{SB_}, {PF}")
            self.poll_addr(PLP, [(SB_, 8)])
            p.atom(f"s_cmp_eq_u32 s{SWV}, 3\ns_cselect_b64 vcc, -1, 0")
            p(f"v_cndmask_b32 {v(P10)}, {v(VL16)}, {v(VOOB)}, vcc")
            p(f"s_mul_i32 s{SPB_}, s{STB}, {2*45056}\ns_mul_i32 s{SA}, s{SWV}, {22*512}\ns_add_u32 s{SPB_}, s{SPB_}, s{SA}\ns_add_u32 s{SPB_}, s{SPB_}, {PB}")
            p(f"s_add_u32 s{SA}, s{SREG}, 4096\nv_and_b32 {v(RW)}, 31, {v(VL)}\nv_lshlrev_b32 {v(RW)}, 8, {v(RW)}\nv_add_u32 {v(RW)}, s{SA}, {v(RW)}")
            p(f"v_lshrrev_b32 {v(RX)}, 5, {v(VL)}\nv_and_b32 {v(RX+1)}, 7, {v(VL)}\nv_xor_b32 {v(RX)}, {v(RX)}, {v(RX+1)}\nv_lshlrev_b32 {v(RX)}, 4, {v(RX)}")
            for i in range(4): p(f"v_xor_b32 {v(WA+i)}, {32*i}, {v(RX)}\nv_add_u32 {v(WA+i)}, {v(WA+i)}, {v(RW)}")
            p(f"v_xor_b32 {v(T+1)}, {v(T+1)}, {v(T)}\nv_lshlrev_b32 {v(T+1)}, 4, {v(T+1)}")
            p(f"v_lshlrev_b32 {v(T)}, 8, {v(T)}\ns_lshl_b32 s{SA}, s{SWV}, 12\ns_add_u32 s{SA}, s{SA}, 4096\nv_add_u32 {v(T)}, s{SA}, {v(T)}")
            p(f"v_add_u32 {v(RA)}, {v(T)}, {v(T+1)}\nv_xor_b32 {v(T+1)}, 64, {v(T+1)}\nv_add_u32 {v(RA+1)}, {v(T)}, {v(T+1)}")
            p(f"v_add_u32 {v(RA+2)}, 81920, {v(RA)}\nv_add_u32 {v(RA+3)}, 81920, {v(RA+1)}")
            p(f"s_lshr_b32 s{SLATE}, s{SC}, 1\ns_lshl_b32 s{SLATE}, s{SLATE}, 3\ns_add_u32 s{SLATE}, s{SLATE}, s{SCOL}\ns_lshl_b32 s{SLATE}, s{SLATE}, 1\ns_add_u32 s{SLATE}, s{SLATE}, s{SKH}")
            p(f"s_lshl_b32 s{SLATE}, s{SLATE}, 1\ns_add_u32 s{SLATE}, s{SLATE}, s{Q}\ns_lshl_b32 s{SLATE}, s{SLATE}, 7\ns_add_u32 s{SLATE}, s{SLATE}, {PF}")
            p(f"s_add_u32 s{SD}, s{SPO}, {PB}")
            p(f"v_lshlrev_b32 {v(BI)}, 16, {v(BI)}\nv_sub_f32 {v(178)}, 1.0, {v(OGV)}\nv_mul_f32 {v(179)}, {v(178)}, {v(BI)}")
        def eloads():
            T = TC
            for gi in range(4):
                p(f"s_add_u32 s{SA}, s{SXO}, {gi*4096}")
                p.vmem(f"buffer_load_dwordx2 {v(XE+2*gi,2)}, {v(T+2)}, {srd(SX)}, s{SA} offen")
            p(f"s_lshl_b32 s{SA}, s{SROW}, 2\ns_add_u32 s{SA}, s{SA}, {GATE}")
            for gi in range(4): p.vmem(f"buffer_load_dword {v(GE+gi)}, {v(T+3)}, {srd(SWS)}, s{SA} offen offset:{gi*16} sc1")
            ep['t'] = p.vmem(f"global_load_dwordx2 {v(DE,2)}, {v(T+4)}, {sp(PDSK)}")
        T4 = [(0, 0), (1, 0), (1, 1), (0, 1)]
        def ym(s):
            ops = []
            for ks in range(4):
                for (mt, nt) in T4:
                    def m(ks=ks, mt=mt, nt=nt):
                        p.wait(lg=self.yr[(s, ks)])
                        d = v(YA + 16 * (2 * mt + nt), 16); b = self.YB[s] + 16 * ks
                        p(f"{MF} {d}, {ar(b+4*mt,4)}, {ar(b+8+4*nt,4)}, {'0' if (s, ks) == (0, 0) else d}")
                    ops.append(m)
            return ops
        pt = {}
        def ploads():
            ops = []
            for nt in range(2):
                for kap in range(11):
                    def f(kap=kap, nt=nt):
                        if kap % 4 == 0: p(f"s_add_u32 s{SB_}, s{SPB_}, {nt*45056+kap*1024}")
                        pt[(kap, nt)] = p.vmem(f"buffer_load_dwordx4 {v(PA+(kap*2+nt)*4,4)}, {v(P10 if kap == 10 else VL16)}, {srd(SWS)}, s{SB_} offen offset:{(kap%4)*1024} sc1")
                    ops.append(f)
            return ops
        xt = {}
        def xload():
            for g in range(4): xt['t'] = p.vmem(f"buffer_load_dwordx4 {v(XR[g],4)}, {v(VL16)}, {srd(SWS)}, s{SE} offen offset:{g*1024} sc1")
        def xcheck():
            l = p.label("xp"); d = p.label("xd")
            p.wait(vm=xt['t'])
            p(f"s_mov_b32 s{SSPIN}, 0")
            p.put(l)
            p(f"v_xor_b32 {v(32)}, s{ST_T}, {v(XR[0]+3)}\nv_xor_b32 {v(33)}, s{ST_T}, {v(XR[1]+3)}\nv_xor_b32 {v(34)}, s{ST_T}, {v(XR[2]+3)}\nv_xor_b32 {v(35)}, s{ST_T}, {v(XR[3]+3)}")
            p(f"v_or3_b32 {v(32)}, {v(32)}, {v(33)}, {v(34)}\nv_or_b32 {v(32)}, {v(32)}, {v(35)}")
            p(f"v_cmp_ne_u32 vcc, 0, {v(32)}\ns_cmp_eq_u64 vcc, 0\ns_cbranch_scc1 {d}")
            for g in range(4): p(f"buffer_load_dwordx4 {v(XR[g],4)}, {v(VL16)}, {srd(SWS)}, s{SE} offen offset:{g*1024} sc1")
            p("s_waitcnt vmcnt(0)")
            p(f"s_add_u32 s{SSPIN}, s{SSPIN}, 1\ns_cmp_lt_u32 s{SSPIN}, {SPIN}\ns_cbranch_scc1 {l}")
            p.put(d)
        PK = [24, 28, 104]
        def pepi(mt):
            p = self.p
            for i in range(4 * mt, 4 * mt + 4): self.unpack(32 + 2 * (i & 3), XR[i // 3] + i % 3)
            for i in range(4):
                a = ACC + 32 * mt + 2 * i
                p(f"v_pk_add_f32 {v(a,2)}, {v(a,2)}, {v(32+2*i,2)}")
            for i in range(4):
                a = ACC + 32 * mt + 2 * i
                p(f"v_pk_fma_f32 {v(a,2)}, {v(a,2)}, {v(178,2)}, {v(178,2)} op_sel:[0,0,1] op_sel_hi:[1,0,1]")
            for i in range(4):
                a = ACC + 32 * mt + 2 * i
                p(f"v_pk_mul_f32 {v(a,2)}, {v(a,2)}, {v(self.ZUP[4*mt+i],2)}")
            for i in range(4):
                a = ACC + 32 * mt + 2 * i
                p(f"v_cvt_pk_bf16_f32 {v(PK[mt]+i)}, {v(a)}, {v(a+1)}")
        def pflag():
            p.wait(vm=ep['p']); self.flag(SLATE, 220)
        su = self.cap(setup)
        y2, y3, pl_ = self.y_dma(2), self.y_dma(3), ploads()
        sent = 1
        zg = [lambda: p.wait(vm=z1t['t'])] + self.cap(z1gelu)
        c1_ = o.get("c1", 9); c2_ = o.get("c2", 16)
        def pe():
            pepi(0); p.vmem(f"buffer_store_dwordx4 {v(PK[0],4)}, {v(VL16)}, {srd(SWS)}, s{SD} offen {o.get('pm', 'sc1')}")
            pepi(1); p.vmem(f"buffer_store_dwordx4 {v(PK[1],4)}, {v(GT1)}, {srd(SWS)}, s{SD} offen offset:2048 {o.get('pm', 'sc1')}")
            p(f"s_add_u32 s{SD}, s{SD}, 4096")
            pepi(2); ep['p'] = p.vmem(f"buffer_store_dwordx4 {v(PK[2],4)}, {v(PV)}, {srd(SWS)}, s{SD} offen {o.get('pm', 'sc1')}")
        if gl:
            g1, g2 = o.get("g1", 6), o.get("g2", 17)
            w_ = merge(zg + su, [wo_rd(k) for k in range(8)])
            h_ = len(w_) * o.get("xat", 50) // 100
            self.run(merge(w_[:h_], y0[:g1]) + [xload] + merge(w_[h_:], y0[g1:g2]))
            self.run(y0[g2:] + [lgw] + y1[:o.get("g3", 1)])
            xcheck()
            self.stamp(10)
            pe()
            self.run(y1[o.get("g3", 1):12])
            self.run(merge(self.y_read(0), y1[12:]))
            self.run(merge(ym(0), [lgw] + y2[:9]))
            self.run(merge(self.y_read(1), y2[9:13]))
            y3a = 4
            self.run(merge(ym(1), y2[13:] + [lgw] + y3[:y3a]))
        else:
            nx = y1[3:] + y2
            self.run(merge(zg, nx[:c1_]))
            xload()
            self.run(merge(merge(ym(0), su), nx[c1_:c2_]))
            if o.get('ee'): eloads()
            xcheck()
            self.stamp(10)
            pepi(0); p.vmem(f"buffer_store_dwordx4 {v(PK[0],4)}, {v(VL16)}, {srd(SWS)}, s{SD} offen {o.get('pm', 'sc1')}")
            pepi(1); p.vmem(f"buffer_store_dwordx4 {v(PK[1],4)}, {v(GT1)}, {srd(SWS)}, s{SD} offen offset:2048 {o.get('pm', 'sc1')}")
            p(f"s_add_u32 s{SD}, s{SD}, 4096")
            pepi(2); ep['p'] = p.vmem(f"buffer_store_dwordx4 {v(PK[2],4)}, {v(PV)}, {srd(SWS)}, s{SD} offen {o.get('pm', 'sc1')}")
            c3_ = max(c2_, 18)
            self.run(nx[c2_:c3_])
            self.run(merge(self.y_read(1), nx[c3_:c3_ + 4]))
            y3a = o.get('y3a', 3)
            self.run(merge(ym(1), nx[c3_ + 4:] + [lgw] + y3[:y3a]))
        self.stamp(11)
        self.run(y3[y3a:9])
        def ptouch():
            p(f"s_mul_i32 s{SA}, s{STB}, {2*45056}\ns_lshl_b32 s{SB_}, s{SCOL}, 2\ns_add_u32 s{SB_}, s{SB_}, s{SWV}\ns_mul_i32 s{SB_}, s{SB_}, 2816\ns_add_u32 s{SA}, s{SA}, s{SB_}\ns_add_u32 s{SA}, s{SA}, {PB}")
            p(f"v_min_u32 {v(222)}, 21, {v(VL)}\nv_lshlrev_b32 {v(222)}, 7, {v(222)}")
            p.vmem(f"buffer_load_dword {v(223)}, {v(222)}, {srd(SWS)}, s{SA} offen sc1")
        self.run(merge(self.y_read(2), y3[9:13]) + ([ptouch] if o.get("pt") else []))
        self.run(merge(ym(2), y3[13:] + ([] if o.get('ee') else [eloads]) + pl_[:o.get('p2', 0)]))
        pl_ = pl_[o.get('p2', 0):]
        self.stamp(12)
        pa_ = o.get("pa", 4)
        self.run(merge(self.y_read(3), pl_[:pa_]))
        DU = 104; XP = [4, 8, 12, 108]
        def xpart():
            p = self.p
            self.unpack(DU, DE); self.unpack(DU + 2, DE + 1)
            for gi in range(4):
                x = XP[gi]
                self.unpack(x, XE + 2 * gi); self.unpack(x + 2, XE + 2 * gi + 1)
                for k in range(4): p(f"v_mul_f32 {v(x+k)}, {v(x+k)}, {v(DU+k)}")
                for k in range(4): p(f"v_mul_f32 {v(x+k)}, {v(x+k)}, {v(GE+gi)}")
        self.run(merge(merge(ym(3), pl_[pa_:pa_ + 8]), ([lambda: p.wait(vm=ep['t'])] + self.cap(xpart)) if o.get("gc") else []))
        prest = pl_[pa_ + 8:]
        self.stamp(13)
        def pcheck(nt):
            l = p.label("sp"); d = p.label("sd")
            p.wait(vm=pt[(10, nt)])
            p(f"s_mov_b32 s{SSPIN}, 0")
            p.put(l)
            r = [PA + (kap * 2 + nt) * 4 for kap in range(11)]
            p(f"v_max3_u32 {v(178)}, {v(r[0])}, {v(r[1])}, {v(r[2])}")
            for k in range(3, 11, 2): p(f"v_max3_u32 {v(178)}, {v(178)}, {v(r[k])}, {v(r[k+1])}")
            p(f"v_cmp_eq_u32 vcc, -1, {v(178)}\ns_cmp_eq_u64 vcc, 0\ns_cbranch_scc1 {d}")
            for kap in range(11):
                if kap % 4 == 0: p(f"s_add_u32 s{SF}, s{SPB_}, {nt*45056+kap*1024}")
                p(f"buffer_load_dwordx4 {v(PA+(kap*2+nt)*4,4)}, {v(P10 if kap == 10 else VL16)}, {srd(SWS)}, s{SF} offen offset:{(kap%4)*1024} sc1")
            p("s_waitcnt vmcnt(0)")
            p(f"s_add_u32 s{SSPIN}, s{SSPIN}, 1\ns_cmp_lt_u32 s{SSPIN}, {SPIN}\ns_cbranch_scc1 {l}")
            p.put(d)
        def gcheck(nt, k0, k1):
            def f():
                l = p.label("sp"); d = p.label("sd")
                p.wait(vm=pt[(k1 - 1, nt)])
                p(f"s_mov_b32 s{SSPIN}, 0")
                p.put(l)
                r = [PA + (kap * 2 + nt) * 4 for kap in range(k0, k1)]
                p(f"v_max3_u32 {v(178)}, {v(r[0])}, {v(r[1])}, {v(r[2])}")
                if len(r) == 4: p(f"v_max_u32 {v(178)}, {v(178)}, {v(r[3])}")
                p(f"v_cmp_eq_u32 vcc, -1, {v(178)}\ns_cmp_eq_u64 vcc, 0\ns_cbranch_scc1 {d}")
                for kap in range(k0, k1):
                    p(f"s_add_u32 s{SF}, s{SPB_}, {nt*45056+kap*1024}")
                    p(f"buffer_load_dwordx4 {v(PA+(kap*2+nt)*4,4)}, {v(P10 if kap == 10 else VL16)}, {srd(SWS)}, s{SF} offen sc1")
                p("s_waitcnt vmcnt(0)")
                p(f"s_add_u32 s{SSPIN}, s{SSPIN}, 1\ns_cmp_lt_u32 s{SSPIN}, {SPIN}\ns_cbranch_scc1 {l}")
                p.put(d)
            return f
        def redw(tiles):
            return [(lambda mt=mt, nt=nt, i=i: p.lds(f"ds_write_b128 {v(WA+i)}, {v(YA+16*(2*mt+nt)+4*i,4)} offset:{nt*8192+mt*128}"))
                    for (mt, nt) in tiles for i in range(4)]
        def bm(kap, mt, nt):
            def m():
                p.wait(vm=pt[(kap, nt)])
                d = v(YA + 16 * (2 * mt + nt), 16)
                p(f"{MF} {d}, {ar(WOA(kap)+4*mt,4)}, {v(PA+(kap*2+nt)*4,4)}, {d}")
            return m
        def yscale(mt, nt):
            return [(lambda i=i: p(f"v_pk_mul_f32 {v(YA+16*(2*mt+nt)+2*i,2)}, {v(YA+16*(2*mt+nt)+2*i,2)}, {v(self.GY+2*nt,2)} op_sel_hi:[1,0]")) for i in range(8)]
        DU = 104; XP = [4, 8, 12, 108]
        def xpart():
            p = self.p
            self.unpack(DU, DE); self.unpack(DU + 2, DE + 1)
            for gi in range(4):
                x = XP[gi]
                self.unpack(x, XE + 2 * gi); self.unpack(x + 2, XE + 2 * gi + 1)
                for k in range(4): p(f"v_mul_f32 {v(x+k)}, {v(x+k)}, {v(DU+k)}")
                for k in range(4): p(f"v_mul_f32 {v(x+k)}, {v(x+k)}, {v(GE+gi)}")
        def yscale1(mt, nt):
            return [(lambda i=i: p(f"v_mul_f32 {v(YA+16*(2*mt+nt)+i)}, {v(YA+16*(2*mt+nt)+i)}, {v(self.GY+2*nt)}")) for i in range(16)]
        if o.get("gc"):
            GR_ = [(0, 4), (4, 8), (8, 11)]
            def bgrp(nt):
                ops = []
                for (k0, k1) in GR_:
                    ops.append(gcheck(nt, k0, k1))
                    ops += [bm(kap, mt, nt) for kap in range(k0, k1) for mt in range(2)]
                return ops
            self.run(merge(yscale(0, 0) + yscale(1, 0) + yscale(1, 1) + yscale(0, 1), prest[:3]))
            self.run(merge(bgrp(0), prest[3:], 0, 14))
            b1 = bgrp(1)
            b1 = b1[:19] + [bm(kap, 0, 1) for kap in range(8, 11)] + [bm(kap, 1, 1) for kap in range(8, 11)]
            self.run(merge(b1, redw([(0, 0), (1, 0)]), 3, 19))
            self.run(redw([(0, 1), (1, 1)]))
        else:
            self.run(merge(yscale(0, 0) + yscale(1, 0), prest[:2]))
            pcheck(0)
            mm0 = [bm(kap, mt, 0) for kap in range(11) for mt in range(2)]
            self.run(merge(merge(mm0, prest[2:], 0, 12), yscale1(1, 1) + yscale1(0, 1) + [lambda: p.wait(vm=ep['t'])] + self.cap(xpart)))
            if sent: pcheck(1)
            mm1 = [bm(kap, 0, 1) for kap in range(11)]
            mm2 = [bm(kap, 1, 1) for kap in range(11)]
            self.run(merge(mm1, redw([(0, 0), (1, 0)]), 2))
            self.run(merge(mm2, redw([(0, 1)]), 4))
            self.run(redw([(1, 1)]))
        p.wait_lg_all(); p("s_barrier")
        self.stamp(14)
        tk = {}
        def R(gi, s): return 16 + 16 * gi + 4 * s
        for gi in range(4):
            p.wait(lg=p.lg - 12)
            for s_ in range(4):
                tk[gi] = p.lds(f"ds_read_b128 {v(R(gi,s_),4)}, {v(RA+2*(s_>>1)+(gi&1))} offset:{(s_&1)*40960+gi*1024}")
        p(f"s_lshl_b32 s{SXO}, s{SXO}, 1")
        for gi in range(4):
            y = R(gi, 0)
            p.wait(lg=tk[gi])
            for hh in (0, 2):
                p(f"v_pk_add_f32 {v(y+hh,2)}, {v(y+hh,2)}, {v(y+4+hh,2)}\nv_pk_add_f32 {v(y+8+hh,2)}, {v(y+8+hh,2)}, {v(y+12+hh,2)}")
            for hh in (0, 2): p(f"v_pk_add_f32 {v(y+hh,2)}, {v(y+hh,2)}, {v(XP[gi]+hh,2)}")
            for hh in (0, 2): p(f"v_pk_add_f32 {v(y+hh,2)}, {v(y+hh,2)}, {v(y+8+hh,2)}")
            p(f"s_add_u32 s{SA}, s{SXO}, {gi*8192}")
            p.vmem(f"buffer_store_dwordx4 {v(y,4)}, {v(OV)}, {srd(SOUT)}, s{SA} offen{' ' + o['outmod'] if 'outmod' in o else ''}")
        ne = p.label("ne")
        p(f"s_lshl_b32 s{SA}, s{STB}, 3\ns_add_u32 s{SA}, s{SA}, s{SCOL}\ns_lshl_b32 s{SA}, s{SA}, 2\ns_add_u32 s{SA}, s{SA}, s{SWV}")
        p(f"s_cmp_eq_u32 s{SA}, {255*4}\ns_cbranch_scc0 {ne}")
        p(f"s_mov_b32 s{SA}, {EPOCH}")
        self.flag(SA, 220)
        p.put(ne)
        if o.get("stamps"):
            self.stamp(15)
            p(f"s_lshl_b32 s{SA}, s2, 2\ns_add_u32 s{SA}, s{SA}, s{SWV}\ns_lshl_b32 s{SA}, s{SA}, 8\ns_add_u32 s{SA}, s{SA}, {DBG}")
            p(f"v_lshlrev_b32 v254, 2, {v(VL)}")
            p.vmem(f"buffer_store_dword v255, v254, {srd(SWS)}, s{SA} offen")
            if o.get("dbgmax"):
                ty = o["dbgmax"]
                nd = p.label("nd")
                if ty > 1: p(f"s_cmp_{'ge' if ty == 2 else 'lt'}_u32 s2, 128\ns_cbranch_scc1 {nd}")
                p(f"s_load_dwordx2 s[{SX}:{SX+1}], s[0:1], 128\ns_waitcnt lgkmcnt(0)\ns_mov_b32 s{SX+2}, 64")
                p(f"v_readlane_b32 s{SA}, v255, 17\nv_readlane_b32 s{SB_}, v255, 20\ns_not_b32 s{SA}, s{SA}\ns_nop 3\nv_writelane_b32 v255, s{SA}, 0\nv_writelane_b32 v255, s{SB_}, 6")
                p.vmem(f"buffer_atomic_umax v255, v254, {srd(SX)}, 0 offen")
                p.put(nd)
        if "spin_from" in o:
            self.stamp(15)
            sl = p.label("spin")
            p(f"v_readlane_b32 s{SA}, v254, 0")
            p.put(sl)
            p(f"s_memrealtime s[{SSTMP}:{SSTMP+1}]\ns_waitcnt lgkmcnt(0)\ns_sub_u32 s{SB_}, s{SSTMP}, s{SA}\ns_cmp_lt_u32 s{SB_}, 3000\ns_cbranch_scc1 {sl}")
        p.put(self.END)
        p("s_endpgm")

    def build(self):
        self.prologue()
        self.p.vm_done = -1; self.p.lg_done = -1
        self.phase_u()
        self.p.vm_done = -1; self.p.lg_done = -1
        self.p("s_nop 15")
        self.phase_z()
        self.phase_g()
        lines, added = hazard_pass([x for l in self.p.L for x in l.split(chr(10))])
        hdr = open("gated_mix__ssm_conv_s5__mixer_gmlp__prompt.s.ref").read().split("; Override")[0]
        s = hdr + """; One persistent launch, 256 workgroups (one per CU), generated by a python script (work/gen7.py).
;  A: wg<128 : z2=gelu(x w_in[:,688:]) tile, LayerNorm (row stats exchanged as tagged granules), gate, -> z2n fragments
;     wg>=128: U=x B^T tile + chunked complex scan (chunk states exchanged as tagged granules) -> H ; x w_in[:,:688] tile
;  B: G = w_sp z2n (128x88 tile, K halves exchanged between two workgroups), P = gelu(z1)*(G+b)*(1-g)
;  C: out = g*(H C^T + x D) + P w_out  (64x64 tile, K split over the waves)
;  Hand-offs: write-through stores + per-launch tag (derived from ws[0], renewed at the end of the launch).
; @launch grid=(256,1,1) block=(256,1,1) lds=163840
"""
        s += '.amdgcn_target "amdgcn-amd-amdhsa--gfx950"\n.text\n'
        s += f".globl {NAME}\n.p2align 8\n.type {NAME},@function\n{NAME}:\n"
        s += "\n".join((l if l.endswith(":") else "    " + l) for l in lines) + "\n"
        s += f""".section .rodata,"a"
.p2align 6
.amdhsa_kernel {NAME}
  .amdhsa_next_free_vgpr 512
  .amdhsa_next_free_sgpr 102
  .amdhsa_accum_offset 256
  .amdhsa_group_segment_fixed_size 0
  .amdhsa_kernarg_size 144
  .amdhsa_user_sgpr_count 2
  .amdhsa_user_sgpr_kernarg_segment_ptr 1
  .amdhsa_system_sgpr_workgroup_id_x 1
  .amdhsa_float_denorm_mode_32 3
.end_amdhsa_kernel
"""
        return s, added

if __name__ == "__main__":
    out = sys.argv[1]
    opt = dict(ue=1, ee=1, p2=5, outmod="sc1", npro=2, npro_u=2, c1=16, c2=26, y3a=9, touch=2, zs0=19, zs1=20, zs2=8, zmode=2, pf=0, tlb=2, map=1)
    for a in sys.argv[2:]:
        k, _, val = a.partition("=")
        try: opt[k] = int(val) if val else 1
        except ValueError: opt[k] = val
    s, added = G(opt).build()
    open(out, "w").write(s)
    print("wrote", out, "nops added", added, "lines", s.count("\n"))
```

```python
import sys, math, struct
from core import *

NAME = "gated_mix__ssm_conv_s5__mixer_gmlp__prompt_kernel"
EPOCH = 0; GATE = 0x4000
ST = 0x10000; EG = 0x50000; DBG = 0x80000
Z2N = 0x100000; Z1 = 0x400000; PB = 0x700000; HB = 0xA00000
ZF = 0xE00000; HF = 0xE10000; PF = 0xE20000; Z1F = 0xE40000; ZF2 = 0xE50000; XB = 0x1000000; WS_END = 0x1400000
OOB = 0x80000000
SPIN = 200000
SX, SW1, SWSP, SWS, SCRE, SCIM, SWOUT, SOUT = 4, 8, 12, 16, 20, 24, 28, 32
PLRE, PLIM, PLDT, PDSK, PBSP, PGW, PBRE, PBIM, PWIN = 36, 38, 40, 42, 44, 46, 48, 50, 52
ST_T = 100
SWV, SRB, SCOL, STB = 56, 57, 58, 59
SA, SB_, SC, SD = 60, 61, 62, 63
SSTMP = 64
SDO, SWB, SPB0, SPST, SPSP = 68, 69, 70, 71, 72
SXB, SW1B, SXL, SWL = 73, 74, 75, 76
SPC = 77
SCB, SHB = 78, 79
SK = 80
SREG = 96
SE, SF = 97, 98
SSPIN = 99
SLATE = 101
SJ = 3
SGB = 95
SPFP = 70
SPFE = 79
SKH = 81
SGL = 77
SPO = 86
SROT = 79
SU0, SNU = 82, 83
SZI = 72
SPB = 90
def srd(b): return f"s[{b}:{b+3}]"
def v(a, n=1): return f"v{a}" if n == 1 else f"v[{a}:{a+n-1}]"
def ar(a, n=1): return f"a{a}" if n == 1 else f"a[{a}:{a+n-1}]"
def sp(a): return f"s[{a}:{a+1}]"
VL, VL16, VOOB = 1, 2, 3
LOG2E = 1.4426950408889634
def f2u(x): return struct.unpack("<I", struct.pack("<f", x))[0]
MF = "v_mfma_f32_32x32x16_bf16"

class G:
    def __init__(self, opt):
        self.o = opt
        self.p = Prog()

    def stamp(self, k):
        if self.o.get("spin_from") == k:
            p = self.p
            p(f"s_memrealtime s[{SSTMP}:{SSTMP+1}]"); p.wait_lg_all()
            p(f"v_mov_b32 v254, s{SSTMP}")
        if self.o.get("stamps"):
            p = self.p
            p(f"s_memrealtime s[{SSTMP}:{SSTMP+1}]\ns_memtime s[{SSTMP+2}:{SSTMP+3}]"); p.wait_lg_all()
            p(f"v_writelane_b32 v255, s{SSTMP}, {k}\nv_writelane_b32 v255, s{SSTMP+2}, {k+32}")
    def cap(self, fn):
        sub = Prog(); save = self.p; self.p = sub
        fn()
        self.p = save
        assert sub.vm == 0 and sub.lg == 0
        return [(lambda l=l: self.p(l)) for l in sub.L]
    def run(self, ops):
        for op in ops: op()
    def rot(self, sreg, st, unit):
        if not self.o.get("rot"): return (sreg, st * unit)
        return (sreg, ("rot", st, unit))
    def rot0(self, sreg, unit):
        if not self.o.get("rot"): return sreg
        self.p(f"s_mul_i32 s{SDO}, s{SROT}, {unit}\ns_add_u32 s{SDO}, s{SDO}, s{sreg}")
        return SDO
    def dseq(self, items):
        p = self.p
        def setup(it):
            if it[0] is not None: p(f"s_add_u32 m0, s{it[0][0]}, {it[0][1]}")
            if it[1] is not None:
                if isinstance(it[1][1], tuple):
                    _, st, unit = it[1][1]
                    p(f"s_add_u32 s{SDO}, s{SROT}, {st}\ns_and_b32 s{SDO}, s{SDO}, 7\ns_mul_i32 s{SDO}, s{SDO}, {unit}\ns_add_u32 s{SDO}, s{SDO}, s{it[1][0]}")
                else: p(f"s_add_u32 s{SDO}, s{it[1][0]}, {it[1][1]}")
        ops = [lambda: setup(items[0])]
        for i, it in enumerate(items):
            def f(i=i, it=it):
                t = p.vmem(it[2])
                if it[3]: it[3](t)
                if i + 1 < len(items) and items[i + 1][:2] != it[:2]: setup(items[i + 1])
            ops.append(f)
        return ops
    def poll_addr(self, vt, groups):
        p = self.p; n0 = 0
        p(f"v_mov_b32 {v(vt)}, {v(VOOB)}")
        for (sr, n) in groups:
            if n == 1: p(f"v_writelane_b32 {v(vt)}, s{sr}, {n0}")
            else:
                p(f"s_sub_u32 s{sr}, s{sr}, {n0*128}\nv_lshl_add_u32 {v(vt+1)}, {v(VL)}, 7, s{sr}")
                m = ((1 << n) - 1) << n0
                p(f"s_mov_b32 vcc_lo, {m & 0xffffffff}\ns_mov_b32 vcc_hi, {m >> 32}\nv_cndmask_b32 {v(vt)}, {v(vt)}, {v(vt+1)}, vcc")
            n0 += n
        return n0
    def poll(self, vt, n):
        p = self.p
        l = p.label("poll"); d = p.label("pd")
        p(f"s_mov_b32 s{SSPIN}, 0")
        p.put(l)
        p.vmem(f"buffer_load_dword {v(vt+1)}, {v(vt)}, {srd(SWS)}, 0 offen sc1")
        p.wait_vm_all()
        p(f"v_cmp_ne_u32 vcc, s{ST_T}, {v(vt+1)}")
        if n <= 32: p(f"s_and_b32 s{SF}, vcc_lo, {(1<<n)-1}")
        else: p(f"s_and_b32 vcc_hi, vcc_hi, {(1<<(n-32))-1}\ns_or_b32 s{SF}, vcc_lo, vcc_hi")
        p(f"s_cbranch_scc0 {d}")
        p(f"s_add_u32 s{SSPIN}, s{SSPIN}, 1\ns_cmp_lt_u32 s{SSPIN}, {SPIN}\ns_cbranch_scc1 {l}")
        p.put(d)
    def flag_prep(self, vt):
        p = self.p
        p(f"v_mov_b32 {v(vt)}, s{ST_T}\nv_mov_b32 {v(vt+1)}, {v(VOOB)}\nv_writelane_b32 {v(vt+1)}, 0, 0")
    def flag(self, off_sreg, vt):
        self.p.vmem(f"buffer_store_dword {v(vt)}, {v(vt+1)}, {srd(SWS)}, s{off_sreg} offen sc1")
    def xhalf_sum(self, a, t):
        self.p(f"v_mov_b32 {v(t)}, {v(a)}\nv_permlane32_swap_b32 {v(a)}, {v(t)}\nv_add_f32 {v(a)}, {v(a)}, {v(t)}")
    def rnd(self, d, s):
        self.p(f"v_cvt_pk_bf16_f32 {v(d)}, {v(s)}, {v(s)}\nv_lshlrev_b32 {v(d)}, 16, {v(d)}")
    def unpack(self, d, s):
        self.p(f"v_and_b32 {v(d+1)}, 0xffff0000, {v(s)}\nv_lshlrev_b32 {v(d)}, 16, {v(s)}")
    def plain_read_addr(self, dst4, base_sreg, t):
        p = self.p
        p(f"v_and_b32 {v(t)}, 31, {v(VL)}\nv_lshlrev_b32 {v(t)}, 7, {v(t)}")
        if base_sreg is not None: p(f"v_add_u32 {v(t)}, s{base_sreg}, {v(t)}")
        p(f"v_bfe_u32 {v(t+1)}, {v(VL)}, 1, 3\nv_lshrrev_b32 {v(dst4)}, 5, {v(VL)}\nv_xor_b32 {v(t+1)}, {v(t+1)}, {v(dst4)}")
        p(f"v_lshlrev_b32 {v(t+1)}, 4, {v(t+1)}")
        for ks in range(4):
            p(f"v_xor_b32 {v(dst4+ks)}, {32*ks}, {v(t+1)}\nv_add_u32 {v(dst4+ks)}, {v(dst4+ks)}, {v(t)}")
    def plain_dma_addr(self, dst4, rowbytes, t, rowstep=8):
        p = self.p
        p(f"v_lshrrev_b32 {v(t)}, 3, {v(VL)}\nv_mul_u32_u24 {v(t)}, {rowbytes}, {v(t)}")
        self.plain_dma_addr2(dst4, t, t + 1, rowstep * rowbytes)
    def plain_dma_addr2(self, dst4, vrow, t, step):
        p = self.p
        p(f"v_and_b32 {v(t)}, 7, {v(VL)}\nv_lshrrev_b32 {v(dst4)}, 4, {v(VL)}\nv_xor_b32 {v(t)}, {v(t)}, {v(dst4)}\nv_lshlrev_b32 {v(t)}, 4, {v(t)}")
        p(f"v_add_u32 {v(dst4)}, {v(t)}, {v(vrow)}")
        p(f"v_xor_b32 {v(t)}, 64, {v(t)}\nv_add_u32 {v(dst4+1)}, {v(t)}, {v(vrow)}")
        p(f"v_add_u32 {v(dst4+2)}, {2*(step-1024)}, {v(dst4)}\nv_add_u32 {v(dst4+3)}, {3*(step-1024)}, {v(dst4+1)}\nv_add_u32 {v(dst4+1)}, {step-1024}, {v(dst4+1)}")
    def panel_tr_addr(self, dst2, base_sreg, t, perm):
        p = self.p
        p(f"v_lshrrev_b32 {v(t)}, 5, {v(VL)}\nv_lshlrev_b32 {v(t)}, 10, {v(t)}")
        p(f"v_bfe_u32 {v(t+1)}, {v(VL)}, 2, 2\nv_lshl_add_u32 {v(t)}, {v(t+1)}, 7, {v(t)}")
        p(f"v_bfe_u32 {v(t+1)}, {v(VL)}, 4, 1\nv_lshl_add_u32 {v(t)}, {v(t+1)}, 5, {v(t)}")
        if perm:
            p(f"v_and_b32 {v(t+1)}, 1, {v(VL)}\nv_lshl_add_u32 {v(t)}, {v(t+1)}, 4, {v(t)}")
            p(f"v_bfe_u32 {v(t+1)}, {v(VL)}, 1, 1\nv_lshl_add_u32 {v(t)}, {v(t+1)}, 3, {v(t)}")
        else:
            p(f"v_and_b32 {v(t+1)}, 3, {v(VL)}\nv_lshl_add_u32 {v(t)}, {v(t+1)}, 3, {v(t)}")
        p(f"v_bfe_u32 {v(t+1)}, {v(VL)}, 3, 1\nv_lshlrev_b32 {v(t+1)}, 6, {v(t+1)}")
        if base_sreg is not None: p(f"v_add_u32 {v(t)}, s{base_sreg}, {v(t)}")
        p(f"v_add_u32 {v(dst2)}, {v(t)}, {v(t+1)}\nv_xor_b32 {v(t+1)}, 64, {v(t+1)}\nv_add_u32 {v(dst2+1)}, {v(t)}, {v(t+1)}")
    def unit_tr_addr(self, dst2, base_sreg, t, perm, flip_sreg=None):
        p = self.p
        p(f"v_bfe_u32 {v(t)}, {v(VL)}, 4, 1")
        if flip_sreg is not None: p(f"v_xor_b32 {v(t)}, s{flip_sreg}, {v(t)}")
        p(f"v_lshlrev_b32 {v(t)}, 1, {v(t)}")
        p(f"v_bfe_u32 {v(t+1)}, {v(VL)}, {0 if perm else 1}, 1\nv_or_b32 {v(t)}, {v(t)}, {v(t+1)}")
        p(f"v_lshrrev_b32 {v(t+1)}, 5, {v(VL)}\nv_lshlrev_b32 {v(t+1)}, 1, {v(t+1)}\nv_xor_b32 {v(t+1)}, {v(t+1)}, {v(t)}")
        p(f"v_lshlrev_b32 {v(t)}, 9, {v(t)}")
        p(f"v_bfe_u32 {v(t+2)}, {v(VL)}, 2, 2\nv_lshl_add_u32 {v(t)}, {v(t+2)}, 4, {v(t)}")
        p(f"v_bfe_u32 {v(t+2)}, {v(VL)}, {1 if perm else 0}, 1\nv_lshl_add_u32 {v(t)}, {v(t+2)}, 3, {v(t)}")
        if base_sreg is not None: p(f"v_add_u32 {v(t)}, s{base_sreg}, {v(t)}")
        p(f"v_lshl_add_u32 {v(dst2)}, {v(t+1)}, 6, {v(t)}")
        p(f"v_xor_b32 {v(t+1)}, 1, {v(t+1)}\nv_lshl_add_u32 {v(dst2+1)}, {v(t+1)}, 6, {v(t)}")

    def gemm_loop(self, nslot, reads, mfmas, dma, tick, rfront, npro, extra, valu=None):
        p = self.p
        p.wait(vm=tick[0]); p("s_barrier")
        self.stamp(20)
        self.run(reads(0))
        d = []
        for st in range(npro, nslot): d += dma(st)
        q = (len(d) + 2) // 3
        pend = [d[i * q:(i + 1) * q] for i in range(3)]
        for n in range(32):
            rd = []
            if n + 1 < 32:
                if (n + 1) % 4 == 0:
                    st = (n + 1) // 4
                    p.wait(vm=tick[st], lg=p.lg - 1); p("s_barrier")
                    if self.o.get("astamps"): self.stamp(20 + st)
                    d = dma(st - 1 + nslot) if st - 1 + nslot < 8 else extra.get(st, lambda: [])()
                    q = (len(d) + 3) // 4
                    pend = [d[i * q:(i + 1) * q] for i in range(4)]
                rd = reads(n + 1)
            seq = merge(mfmas(n), rd, 0, rfront)
            if pend: seq = merge(seq, pend.pop(0), len(seq) // 2)
            if valu and n in valu: seq = merge(seq, valu[n])
            self.run(seq)

    def gate(self, GX, GW, GU, GS, GT):
        p = self.p
        for i in range(4):
            for r in range(4):
                p(f"v_dot2_f32_bf16 {v(GS+r)}, {v(GX+4*r+i)}, {v(GW+i)}, {'0' if i == 0 else v(GS+r)}")
        p("s_nop 2")
        for mod in ["quad_perm:[1,0,3,2]", "quad_perm:[2,3,0,1]", "row_half_mirror", "row_mirror"]:
            for r in range(4): p(f"v_add_f32_dpp {v(GS+r)}, {v(GS+r)}, {v(GS+r)} {mod} row_mask:0xf bank_mask:0xf")
        for sw in ["v_permlane16_swap_b32", "v_permlane32_swap_b32"]:
            for r in range(4): p(f"v_mov_b32 {v(GT+r)}, {v(GS+r)}")
            for r in range(4): p(f"{sw} {v(GS+r)}, {v(GT+r)}")
            for r in range(4): p(f"v_add_f32 {v(GS+r)}, {v(GS+r)}, {v(GT+r)}")
        for r in range(4): p(f"v_mul_f32 {v(GS+r)}, {f2u(-LOG2E)}, {v(GS+r)}")
        for r in range(4): p(f"v_exp_f32 {v(GS+r)}, {v(GS+r)}")
        for r in range(4): p(f"v_add_f32 {v(GS+r)}, 1.0, {v(GS+r)}")
        for r in range(4): p(f"v_rcp_f32 {v(GS+r)}, {v(GS+r)}")
        p(f"v_mov_b32 {v(GT)}, {v(VOOB)}\nv_writelane_b32 {v(GT)}, 0, 0")

    def w_dma_addr(self, dst3, t, colbase):
        p = self.p
        for i in range(3):
            p(f"v_add_u32 {v(t)}, {64*i}, {v(VL)}\nv_mul_u32_u24 {v(t+1)}, 171, {v(t)}\nv_lshrrev_b32 {v(t+1)}, 11, {v(t+1)}")
            p(f"v_mul_u32_u24 {v(t+2)}, 12, {v(t+1)}\nv_sub_u32 {v(t)}, {v(t)}, {v(t+2)}\nv_cmp_le_u32 vcc, s{SNU}, {v(t)}")
            p(f"v_mul_u32_u24 {v(t+1)}, 2752, {v(t+1)}\nv_lshl_add_u32 {v(t)}, {v(t)}, 4, {v(t+1)}")
            if colbase - 1024 * i: p(f"v_add_u32 {v(t)}, {colbase-1024*i}, {v(t)}")
            p(f"v_cndmask_b32 {v(dst3+i)}, {v(t)}, {v(VOOB)}, vcc")
    def w_tr_addr(self, dst, base, t):
        p = self.p
        p(f"v_lshrrev_b32 {v(t)}, 5, {v(VL)}\nv_bfe_u32 {v(t+1)}, {v(VL)}, 2, 2\nv_lshl_add_u32 {v(t)}, {v(t)}, 3, {v(t+1)}\nv_mul_u32_u24 {v(t)}, 192, {v(t)}")
        p(f"v_bfe_u32 {v(t+1)}, {v(VL)}, 4, 1\nv_lshl_add_u32 {v(t)}, {v(t+1)}, 5, {v(t)}")
        p(f"v_and_b32 {v(t+1)}, 1, {v(VL)}\nv_lshl_add_u32 {v(t)}, {v(t+1)}, 4, {v(t)}")
        p(f"v_bfe_u32 {v(t+1)}, {v(VL)}, 1, 1\nv_lshl_add_u32 {v(t)}, {v(t+1)}, 3, {v(t)}")
        p(f"v_add_u32 {v(dst)}, {base}, {v(t)}")
    def slice_z2(self, j):
        p = self.p
        p(f"s_mul_i32 s{SU0}, s{j}, 12\ns_sub_u32 s{SU0}, s{SU0}, 2")
        p.atom(f"s_cmp_eq_u32 s{j}, 0\ns_cselect_b32 s{SU0}, 0, s{SU0}\ns_cselect_b32 s{SNU}, 10, 12\ns_cmp_eq_u32 s{j}, 7\ns_cselect_b32 s{SNU}, 4, s{SNU}")
    def valid_masks(self):
        p = self.p
        p.atom(f"s_mov_b32 s{SK+6}, {f2u(1/96)}\ns_mov_b32 s{SK+4}, 0\ns_cmp_eq_u32 s{SCOL}, 0\ns_cselect_b32 s{SK+6}, {f2u(1/80)}, s{SK+6}\ns_cselect_b32 s{SK+4}, {f2u(16.0)}, s{SK+4}\n"
               f"s_cmp_eq_u32 s{SCOL}, 7\ns_cselect_b32 s{SK+6}, {f2u(1/32)}, s{SK+6}\ns_cselect_b32 s{SK+4}, {f2u(64.0)}, s{SK+4}")
        c1 = -2 * LOG2E * 0.7978845608028654
        p(f"s_mov_b32 s{SK}, {f2u(c1*0.044715)}\nv_mov_b32 {v(self.VC0)}, {f2u(c1)}")

    def gelu_pair(self, a, t, out_packed=None):
        p = self.p
        p(f"v_pk_mul_f32 {v(t,2)}, {v(a,2)}, {v(a,2)}")
        p(f"v_pk_fma_f32 {v(t,2)}, {v(t,2)}, {sp(SK)}, {v(self.VC0,2)} op_sel_hi:[1,0,0]")
        p(f"v_pk_mul_f32 {v(t,2)}, {v(t,2)}, {v(a,2)}")
        p(f"v_exp_f32 {v(t)}, {v(t)}\nv_exp_f32 {v(t+1)}, {v(t+1)}")
        p(f"v_pk_add_f32 {v(t,2)}, {v(t,2)}, 1.0 op_sel_hi:[1,0]")
        p(f"v_rcp_f32 {v(t)}, {v(t)}\nv_rcp_f32 {v(t+1)}, {v(t+1)}")
        if out_packed is not None:
            p(f"v_pk_mul_f32 {v(t,2)}, {v(t,2)}, {v(a,2)}")
            p(f"v_cvt_pk_bf16_f32 {v(out_packed)}, {v(t)}, {v(t+1)}")
        else:
            p(f"v_pk_mul_f32 {v(a,2)}, {v(t,2)}, {v(a,2)}")
    def gelu_many(self, pairs, temps, outs=None):
        p = self.p; ng = len(temps)
        for g0 in range(0, len(pairs), ng):
            streams = []
            for k, i in enumerate(range(g0, min(g0 + ng, len(pairs)))):
                sub = Prog(); save = self.p; self.p = sub
                self.gelu_pair(pairs[i], temps[k], None if outs is None else outs[i])
                self.p = save
                streams.append(sub.L)
            for j in range(len(streams[0])):
                for s in streams: p(s[j])

    VWD, VWR, VWA, VC0 = 240, 244, 248, 252
    def wsp_setup(self, t):
        p = self.p
        self.plain_dma_addr(self.VWD, 4096, t)
        p(f"s_lshl_b32 s{SA}, s{SKH}, 12")
        self.plain_read_addr(self.VWR, SA, t)
        p(f"s_lshr_b32 s{SWB}, s{STB}, 1\ns_lshl_b32 s{SWB}, s{SWB}, 19\ns_and_b32 s{SB_}, s{SWV}, 1\ns_lshl_b32 s{SB_}, s{SB_}, 18\ns_add_u32 s{SWB}, s{SWB}, s{SB_}")
        p(f"s_lshl_b32 s{SB_}, s{SKH}, 11\ns_add_u32 s{SWB}, s{SWB}, s{SB_}\ns_lshr_b32 s{SB_}, s{SWV}, 1\ns_lshl_b32 s{SB_}, s{SB_}, 10\ns_add_u32 s{SWB}, s{SWB}, s{SB_}")
        self.wsp_t = {}
    def piece(self, st): return (SPB + st % 5, 0)
    def wsp_dma(self, st):
        if self.o.get("x_nowsp") and st >= 2:
            self.wsp_t[st] = -1
            return [lambda: None] * 9
        items = []; sr, im = self.piece(st)
        for hh in range(2):
            for i in range(4):
                def cb(t): self.wsp_t[st] = t
                items.append(((sr, im + hh * 4096) if i == 0 else None, (SWB, st * 128 + hh * 131072) if i == 0 else None,
                              f"buffer_load_dwordx4 {v(self.VWD+i)}, {srd(SWSP)}, s{SDO} offen offset:{i*1024} {self.o.get('wmod', '')} lds", cb))
        return self.dseq(items)
    def wsp_read(self, st):
        if self.o.get("x_nord"): return [lambda: None]
        p = self.p; sr, im = self.piece(st)
        def pre():
            for ks in range(4): p(f"v_add_u32 {v(self.VWA+ks)}, s{sr}, {v(self.VWR+ks)}")
            p.wait(vm=self.wsp_t[st], lg=p.lg - 8)
        ops = [pre]
        for nt in range(2):
            for ks in range(4):
                def f(ks=ks, nt=nt):
                    p.lds(f"ds_read_b128 {ar(((st*4+ks)*2+nt)*4,4)}, {v(self.VWA+ks)} offset:{im}")
                    if nt == 0: p(f"v_xor_b32 {v(self.VWA+ks)}, 4096, {v(self.VWA+ks)}")
                ops.append(f)
        return ops

    ZXD = 104
    def prologue(self):
        p = self.p
        self.END = p.label("end"); self.LU = p.label("U"); self.LG = p.label("G"); self.LZ = p.label("Z")
        p(f"s_cmp_ge_u32 s2, 256\ns_cbranch_scc1 {self.END}")
        if self.o.get("sst"): p("s_memrealtime s[84:85]\ns_waitcnt lgkmcnt(0)")
        if self.o.get("cpf", 1):
            p(f"s_getpc_b64 {sp(SSTMP)}\nv_lshlrev_b32 v4, 7, v0\nglobal_load_dword v5, v4, {sp(SSTMP)}")
        p(f"s_load_dwordx2 {sp(SX)}, s[0:1], 0\ns_load_dwordx2 {sp(PWIN)}, s[0:1], 80\ns_load_dwordx4 s[{PBRE}:{PBRE+3}], s[0:1], 24")
        p(f"v_lshrrev_b32 v2, 6, v0\nv_and_b32 {v(VL)}, 63, v0\nv_readfirstlane_b32 s{SWV}, v2")
        p(f"s_and_b32 s{SA}, s2, 6\ns_lshl_b32 s{SA}, s{SA}, 1\ns_bfe_u32 s{SRB}, s2, 0x20005\ns_add_u32 s{SRB}, s{SRB}, s{SA}")
        r_ = self.o.get("rot", 0)
        if r_ == 1: p(f"s_and_b32 s{SROT}, s2, 7")
        if r_ >= 2:
            p(f"s_and_b32 s{SROT}, s2, 1\ns_mul_i32 s{SROT}, s{SROT}, {[4, 5, 3, 7][r_-2]}\ns_and_b32 s{SA}, s2, 6\ns_add_u32 s{SROT}, s{SROT}, s{SA}\ns_and_b32 s{SROT}, s{SROT}, 7")
        p(f"s_mov_b32 s{SX+2}, 2097152\ns_mov_b32 s{SX+3}, 0x20000\ns_lshl_b32 s{SXB}, s{SRB}, 17")
        if self.o.get("pf", 2) == 5:
            p(f"s_lshl_b32 s{SA}, s2, 1\ns_add_u32 s{SA}, s{SA}, s{SWV}\ns_and_b32 s{SB_}, s2, 127\ns_cmp_eq_u32 s{SWV}, 3\ns_cselect_b32 s{SA}, s{SB_}, s{SA}\ns_lshl_b32 s{SA}, s{SA}, 12")
            p(f"s_mul_i32 s{SB_}, s2, 5504\ns_cmp_eq_u32 s{SWV}, 2\ns_cselect_b32 s{SA}, s{SB_}, s{SA}\ns_cselect_b32 s{SB_}, 42, 31\nv_min_u32 v6, s{SB_}, {v(VL)}\nv_lshl_add_u32 v6, v6, 7, s{SA}")
            p.wait_lg_all()
            p(f"s_cselect_b64 {sp(SPFP)}, {sp(PWIN)}, {sp(SX)}\ns_cmp_ge_u32 s2, 128\ns_cselect_b64 {sp(SC)}, {sp(PBIM)}, {sp(PBRE)}\ns_cmp_eq_u32 s{SWV}, 3\ns_cselect_b64 {sp(SPFP)}, {sp(SC)}, {sp(SPFP)}")
            if not self.o.get("pfpos"): p(f"global_load_dword v7, v6, {sp(SPFP)}")
        p(f"s_cmp_ge_u32 s2, 128\ns_cbranch_scc1 {self.LU}")
        self.plain_dma_addr(self.ZXD, 1024, 112)
        p(f"s_lshl_b32 s{SA}, s{SWV}, 15\ns_add_u32 s{SXB}, s{SXB}, s{SA}\ns_mul_i32 s{SREG}, s{SWV}, 40960\ns_mov_b32 m0, s{SREG}")
        p.wait_lg_all()
        so = self.rot0(SXB, 128)
        for i in range(4): p.vmem(f"buffer_load_dwordx4 {v(self.ZXD+i)}, {srd(SX)}, s{so} offen offset:{i*1024} lds")
        p(f"s_branch {self.LZ}")
    def common2(self):
        p = self.p
        if self.o.get("pfpos") == 1: p(f"global_load_dword v7, v6, {sp(SPFP)}")
        p(f"v_lshlrev_b32 {v(VL16)}, 4, {v(VL)}\nv_mov_b32 {v(VOOB)}, {OOB}")
        if self.o.get("stamps"):
            p("v_mov_b32 v255, 0")
            if self.o.get("sst"): p("v_writelane_b32 v255, s84, 17"); self.stamp(22)
            else: self.stamp(17)
        elif "spin_from" in self.o: self.stamp(17)
        p(f"s_and_b32 s{SKH}, s2, 1\ns_lshl_b32 s{SC}, s{SKH}, 2\ns_bfe_u32 s{SD}, s2, 0x20003\ns_add_u32 s{SCOL}, s{SC}, s{SD}\ns_mov_b32 s{SW1+3}, 0x20000")
    def common3(self):
        p = self.p
        if self.o.get("pfpos") == 2: p(f"global_load_dword v7, v6, {sp(SPFP)}")
        p(f"s_load_dwordx2 {sp(SWS)}, s[0:1], 136\ns_load_dwordx2 {sp(PGW)}, s[0:1], 112\ns_load_dwordx4 s[{PLRE}:{PLRE+3}], s[0:1], 8\ns_load_dwordx2 {sp(PLDT)}, s[0:1], 56")
        for (r, off) in [(SWSP, 88), (SCRE, 40), (SCIM, 48), (SWOUT, 104), (SOUT, 120), (PDSK, 64), (PBSP, 96)]:
            p(f"s_load_dwordx2 {sp(r)}, s[0:1], {off}")
        for (r, n) in [(SWSP, 8388608), (SWS, WS_END), (SCRE, 524288), (SCIM, 524288), (SWOUT, 704512), (SOUT, 4194304)]:
            p(f"s_mov_b32 s{r+2}, {n}\ns_mov_b32 s{r+3}, 0x20000")
        if self.o.get("xl"):
            p(f"s_bfe_u32 s{SKH}, s2, 0x10006\ns_and_b32 s{STB}, s2, 7\ns_lshl_b32 s{STB}, s{STB}, 2\ns_lshr_b32 s{SC}, s2, 6\ns_add_u32 s{STB}, s{STB}, s{SC}\ns_bfe_u32 s{SJ}, s2, 0x30003")
        else:
            p(f"s_and_b32 s{SC}, s2, 6\ns_lshl_b32 s{SC}, s{SC}, 1\ns_lshr_b32 s{STB}, s2, 6\ns_add_u32 s{STB}, s{STB}, s{SC}\ns_lshl_b32 s{STB}, s{STB}, 1\ns_add_u32 s{STB}, s{STB}, s{SKH}\ns_bfe_u32 s{SJ}, s2, 0x30003")
        if self.o.get("pf", 2) == 6:
            D_, E_ = SB_, SF
            p(f"s_lshr_b32 s{D_}, s2, 3\ns_lshl_b32 s{D_}, s{D_}, 2\ns_add_u32 s{D_}, s{D_}, s{SWV}")
            p(f"s_bfe_u32 s{SA}, s2, 0x20001\ns_lshl_b32 s{SA}, s{SA}, 6\ns_add_u32 s{SA}, s{SA}, s{D_}")
            p(f"s_and_b32 s{E_}, s2, 1\ns_lshl_b32 s{SC}, s{E_}, 5\ns_and_b32 s{SPFE}, s{D_}, 31\ns_add_u32 s{SC}, s{SC}, s{SPFE}")
            p.atom(f"s_cmp_ge_u32 s{D_}, 64\ns_cselect_b32 s{SA}, s{SC}, s{SA}\ns_cselect_b64 {sp(SPFP)}, {sp(PBRE)}, {sp(SX)}\ns_cmp_ge_u32 s{D_}, 96\ns_cselect_b64 {sp(SPFP)}, {sp(PBIM)}, {sp(SPFP)}")
            p(f"s_lshl_b32 s{SA}, s{SA}, 13\nv_lshl_add_u32 {v(6)}, {v(VL)}, 7, s{SA}")
            p(f"v_mul_u32_u24 {v(8)}, 37, {v(VL)}\nv_lshrrev_b32 {v(8)}, 8, {v(8)}")
            p(f"v_mul_u32_u24 {v(9)}, 7, {v(8)}\nv_sub_u32 {v(9)}, {v(VL)}, {v(9)}\nv_lshlrev_b32 {v(9)}, 7, {v(9)}\nv_min_u32 {v(9)}, 760, {v(9)}")
            p(f"v_min_u32 {v(8)}, 7, {v(8)}\nv_and_b32 {v(10)}, 1, {v(8)}\nv_mul_u32_u24 {v(8)}, 1376, {v(8)}\nv_add_u32 {v(8)}, {v(8)}, {v(9)}")
            p(f"s_lshl_b32 s{SA}, s{E_}, 5\nv_mul_u32_u24 {v(10)}, s{SA}, {v(10)}\nv_sub_u32 {v(8)}, {v(8)}, {v(10)}")
            p(f"s_mul_i32 s{SA}, s{D_}, {4*2752}\ns_mul_i32 s{E_}, s{E_}, 768\ns_add_u32 s{SA}, s{SA}, s{E_}\nv_add_u32 {v(8)}, s{SA}, {v(8)}\nv_min_u32 {v(8)}, {512*2752-4}, {v(8)}")
            if self.o.get("pfpos") == 3: p(f"global_load_dword {v(9)}, {v(8)}, {sp(PWIN)}\nglobal_load_dword {v(7)}, {v(6)}, {sp(SPFP)}".replace("\n", "\n"))
        if self.o.get("pf", 2) == 2:
            A_, C_, D_, E_ = SA, SC, SB_, SF
            p(f"s_lshl_b32 s{D_}, s{SWV}, 8\ns_add_u32 s{D_}, s{D_}, s2\ns_mov_b32 s{C_}, 0\ns_mov_b32 s{A_}, 0\ns_mov_b32 s{E_}, 2047")
            for (lo, off, last) in [(171, 24, 511), (214, 32, 511), (257, 80, 0)]:
                p.atom(f"s_cmp_ge_u32 s{D_}, {lo}\ns_cselect_b32 s{C_}, {off}, s{C_}\ns_cselect_b32 s{A_}, {lo}, s{A_}\ns_cselect_b32 s{E_}, {last}, s{E_}")
            p.atom(f"s_cmp_lt_u32 s{D_}, 365\ns_cselect_b32 s{SPFE}, 1, 0")
            p(f"s_sub_u32 s{D_}, s{D_}, s{A_}\ns_load_dwordx2 {sp(SPFP)}, s[0:1], s{C_}")
            p(f"v_mul_u32_u24 {v(6)}, 52, {v(VL)}\nv_lshrrev_b32 {v(6)}, 8, {v(6)}\nv_mul_u32_u24 {v(7)}, 5, {v(6)}\nv_sub_u32 {v(7)}, {v(VL)}, {v(7)}")
            p(f"s_mul_i32 s{A_}, s{D_}, 12\nv_add_u32 {v(6)}, s{A_}, {v(6)}\nv_min_u32 {v(6)}, s{E_}, {v(6)}\nv_lshlrev_b32 {v(6)}, 10, {v(6)}\nv_lshl_add_u32 {v(6)}, {v(7)}, 7, {v(6)}\nv_add_u32 {v(6)}, 384, {v(6)}")
            p(f"s_lshl_b32 s{D_}, s{D_}, 13\ns_add_u32 s{D_}, s{D_}, {192*2752}\nv_lshl_add_u32 {v(7)}, {v(VL)}, 7, s{D_}\nv_min_u32 {v(7)}, {512*2752-4}, {v(7)}")
            p.atom(f"s_cmp_eq_u32 s{E_}, 0\ns_cselect_b64 vcc, -1, 0")
            p(f"v_cndmask_b32 {v(6)}, {v(6)}, {v(7)}, vcc")
    def pf2(self):
        p = self.p
        p.wait_lg_all()
        if self.o.get("wsoff"): p(f"s_add_u32 s{SWS}, s{SWS}, {self.o['wsoff'] << 20}\ns_addc_u32 s{SWS+1}, s{SWS+1}, 0")
        if self.o.get("pf", 2) == 6 and self.o.get("pfpos") != 3:
            p(f"global_load_dword {v(9)}, {v(8)}, {sp(PWIN)}\nglobal_load_dword {v(7)}, {v(6)}, {sp(SPFP)}")
        if self.o.get("pf", 2) == 2:
            l = p.label("pf")
            p(f"s_cmp_eq_u32 s{SPFE}, 0\ns_cbranch_scc1 {l}\nglobal_load_dword {v(7)}, {v(6)}, {sp(SPFP)}")
            p.put(l)
        if self.o.get("cpf", 1):
            l = p.label("c2")
            here = p.label("pc")
            p(f"s_cmp_lg_u32 s{SWV}, 0\ns_cbranch_scc1 {l}\ns_getpc_b64 {sp(SSTMP)}")
            p.put(here)
            p(f"s_sub_u32 s{SSTMP}, s{SSTMP}, {here}-{NAME}\ns_subb_u32 s{SSTMP+1}, s{SSTMP+1}, 0")
            p(f"v_add_u32 v4, 32768, v4\nv_min_u32 v4, {self.END}-{NAME}, v4\nglobal_load_dword v5, v4, {sp(SSTMP)}")
            p.put(l)
        if self.o.get("tw", 0):
            ls = [p.label("tw") for _ in range(3)]
            p(f"v_lshlrev_b32 v8, 19, {v(VL)}\nv_mov_b32 v9, 0")
            p(f"s_cmp_eq_u32 s{SWV}, 1\ns_cbranch_scc1 {ls[0]}\ns_cmp_eq_u32 s{SWV}, 2\ns_cbranch_scc1 {ls[1]}\ns_cmp_eq_u32 s{SWV}, 3\ns_cbranch_scc0 {ls[2]}")
            p(f"buffer_load_dword v10, v8, {srd(SWS)}, 0 offen sc1\ns_branch {ls[2]}")
            p.put(ls[0]); p(f"buffer_load_dword v10, v8, {srd(SWSP)}, 0 offen\nbuffer_load_dword v11, v8, {srd(SOUT)}, 0 offen sc1\nglobal_load_ushort v12, v9, {sp(PBSP)}\nglobal_load_ushort v13, v9, {sp(PDSK)}\ns_branch {ls[2]}")
            p.put(ls[1]); p(f"buffer_load_dword v10, v8, {srd(SCRE)}, 0 offen\nbuffer_load_dword v11, v8, {srd(SCIM)}, 0 offen\nbuffer_load_dword v12, v8, {srd(SWOUT)}, 0 offen\nglobal_load_ushort v13, v9, {sp(PGW)}")
            p.put(ls[2])
        p(f"s_load_dword s{ST_T}, {sp(SWS)}, {EPOCH}")
    def code_prefetch(self, va, vd):
        if not self.o.get("cpf", 1): return
        p = self.p
        sk = p.label("cpf"); here = p.label("pc")
        nsl = self.o.get("cpfn", 6)
        p(f"s_lshr_b32 s{SA}, s2, 3\ns_and_b32 s{SA}, s{SA}, 15\ns_lshl_b32 s{SA}, s{SA}, 2\ns_add_u32 s{SA}, s{SA}, s{SWV}")
        p(f"s_cmp_ge_u32 s{SA}, {nsl}\ns_cbranch_scc1 {sk}")
        p(f"s_getpc_b64 s[{SSTMP}:{SSTMP+1}]")
        p.put(here)
        p(f"s_sub_u32 s{SSTMP}, s{SSTMP}, {here}-{NAME}\ns_subb_u32 s{SSTMP+1}, s{SSTMP+1}, 0")
        p(f"s_lshl_b32 s{SA}, s{SA}, 13\nv_lshl_add_u32 {v(va)}, {v(VL)}, 7, s{SA}\nv_min_u32 {v(va)}, {self.END}-{NAME}, {v(va)}")
        p(f"global_load_dword {v(vd)}, {v(va)}, s[{SSTMP}:{SSTMP+1}]")
        p.put(sk)
    def pf1(self, when=1):
        if self.o.get("pf", 2) == 4 and self.o.get("pfw", 5) == when:
            self.p.vmem(f"global_load_dword {v(7)}, {v(6)}, {sp(PWIN)}")
            self.p.vmem(f"global_load_dword {v(5)}, {v(4)}, {sp(SPFP)}")
        if {3: 1, 2: self.o.get("pfw2", 2)}.get(self.o.get("pf", 2), self.o.get("pf", 2)) == when:
            p = self.p; l = p.label("pf")
            p(f"s_cmp_eq_u32 s{SPFE}, 0\ns_cbranch_scc1 {l}\nglobal_load_dword {v(5)}, {v(4)}, {sp(SPFP)}")
            p.put(l)
        if self.o.get("wfirst") == when: self.touch_wsp(11, 12, 0, 1)
    def tlb_warm(self):
        p = self.p
        ls = [p.label("tw") for _ in range(4)]
        p(f"v_lshlrev_b32 {v(6)}, 19, {v(VL)}\nv_mov_b32 {v(7)}, 0")
        p(f"s_cmp_eq_u32 s{SWV}, 1\ns_cbranch_scc1 {ls[0]}\ns_cmp_eq_u32 s{SWV}, 2\ns_cbranch_scc1 {ls[1]}\ns_cmp_eq_u32 s{SWV}, 3\ns_cbranch_scc1 {ls[2]}")
        p(f"buffer_load_dword {v(8)}, {v(6)}, {srd(SWS)}, 0 offen sc1\nglobal_load_ushort {v(9)}, {v(7)}, {sp(PGW)}\ns_branch {ls[3]}")
        p.put(ls[0]); p(f"buffer_load_dword {v(8)}, {v(6)}, {srd(SWSP)}, 0 offen\nglobal_load_ushort {v(9)}, {v(7)}, {sp(PBSP)}\nglobal_load_ushort {v(10)}, {v(7)}, {sp(PDSK)}\ns_branch {ls[3]}")
        p.put(ls[1]); p(f"buffer_load_dword {v(8)}, {v(6)}, {srd(SOUT)}, 0 offen sc1\nbuffer_load_dword {v(9)}, {v(6)}, {srd(SWOUT)}, 0 offen\ns_branch {ls[3]}")
        p.put(ls[2]); p(f"buffer_load_dword {v(8)}, {v(6)}, {srd(SCRE)}, 0 offen\nbuffer_load_dword {v(9)}, {v(6)}, {srd(SCIM)}, 0 offen")
        p.put(ls[3])
    def late_args(self):
        p = self.p
        if self.o.get("tlb", 1):
            if self.o.get("tlb", 1) == 1: self.tlb_warm()
            self.pf1(5)
            p(f"s_load_dword s{ST_T}, {sp(SWS)}, {EPOCH}")
            return
        for (r, off) in [(SWSP, 88), (SCRE, 40), (SCIM, 48), (SWOUT, 104), (SOUT, 120), (PDSK, 64), (PBSP, 96)]:
            p(f"s_load_dwordx2 {sp(r)}, s[0:1], {off}")
        p(f"s_load_dword s{ST_T}, {sp(SWS)}, {EPOCH}")
        for (r, n) in [(SWSP, 8388608), (SWS, WS_END), (SCRE, 524288), (SCIM, 524288), (SWOUT, 704512), (SOUT, 4194304)]:
            p(f"s_mov_b32 s{r+2}, {n}\ns_mov_b32 s{r+3}, 0x20000")
    def epoch2(self):
        p = self.p
        p.wait_lg_all()
        p(f"s_mul_i32 s{ST_T}, s{ST_T}, 0x9E3779B1\ns_add_u32 s{ST_T}, s{ST_T}, 0x7F4A7C15")

    def touch_wsp(self, va, vd, k, n):
        p = self.p
        if k == 0:
            p(f"s_lshr_b32 s{SB_}, s2, 3\ns_lshl_b32 s{SB_}, s{SB_}, 2\ns_add_u32 s{SB_}, s{SB_}, s{SWV}\ns_lshl_b32 s{SB_}, s{SB_}, 13")
            p(f"s_and_b32 s{SA}, s2, 7\ns_lshl_b32 s{SA}, s{SA}, 20\ns_add_u32 s87, s{SA}, s{SB_}")
            p(f"v_cmp_gt_u32 vcc, {64//n}, {v(VL)}\nv_lshlrev_b32 {v(va)}, 7, {v(VL)}\ns_nop 0\nv_cndmask_b32 {v(va)}, {v(VOOB)}, {v(va)}, vcc")
        else: p(f"s_add_u32 s87, s87, {8192//n}")
        p.vmem(f"buffer_load_dword {v(vd)}, {v(va)}, {srd(SWSP)}, s87 offen {self.o.get('tmod', '')}")
    def ctouch(self, va, vd):
        p = self.p; l = p.label("ct")
        p(f"s_lshl_b32 s{SA}, s{SWV}, 8\ns_add_u32 s{SA}, s{SA}, s2\ns_cmp_ge_u32 s{SA}, 856\ns_cbranch_scc1 {l}")
        p(f"s_cmp_lt_u32 s{SA}, 256\ns_cselect_b64 {sp(SSTMP)}, {sp(SCRE)}, {sp(SCIM)}")
        p(f"s_sub_u32 s{SB_}, s{SA}, 512\ns_and_b32 s{SSPIN}, s{SA}, 255\ns_cmp_ge_u32 s{SA}, 512\ns_cselect_b64 {sp(SSTMP)}, {sp(SWOUT)}, {sp(SSTMP)}\ns_cselect_b32 s{SA}, s{SB_}, s{SSPIN}")
        p(f"s_lshl_b32 s{SA}, s{SA}, 11\nv_and_b32 {v(vd)}, 15, {v(VL)}\nv_lshlrev_b32 {v(vd)}, 7, {v(vd)}\nv_add_u32 {v(vd)}, s{SA}, {v(vd)}")
        p(f"global_load_dword {v(vd)}, {v(vd)}, {sp(SSTMP)}")
        p.put(l)
    def paced(self, valu, va, vd, t0, dt):
        if "ct" in self.o: valu.setdefault(self.o["ct"], []).append(lambda: self.ctouch(va, vd + 1 if vd != 205 else 4))
        n = self.o.get("tn", 4)
        if self.o.get("touch", 1) != 1: return
        for k in range(n):
            valu.setdefault(t0 + k * dt, []).append(lambda k=k: self.touch_wsp(va, vd, k, n))
    def touch_c(self, va, vd):
        p = self.p
        p(f"v_lshlrev_b32 {v(va)}, 7, {v(VL)}\ns_lshr_b32 s{SB_}, s2, 3\ns_lshl_b32 s{SB_}, s{SB_}, 2\ns_add_u32 s{SB_}, s{SB_}, s{SWV}\ns_lshl_b32 s{SA}, s{SB_}, 13")
        p.vmem(f"buffer_load_dword {v(vd)}, {v(va)}, {srd(SWOUT)}, s{SA} offen")
        p.vmem(f"buffer_load_dword {v(vd)}, {v(va)}, {srd(SCRE)}, s{SA} offen")
        p.vmem(f"buffer_load_dword {v(vd)}, {v(va)}, {srd(SCIM)}, s{SA} offen")
        p(f"s_add_u32 s{SA}, s{SA}, 524288")
        p.vmem(f"buffer_load_dword {v(vd)}, {v(va)}, {srd(SWOUT)}, s{SA} offen")
    GTR, GPL = 236, 238
    def g_early(self, t):
        p = self.p
        p(f"s_lshr_b32 s{SA}, s{SWV}, 1\ns_mul_i32 s{SGL}, s{SA}, 81920")
        p(f"v_bfe_u32 {v(t)}, {v(VL)}, 4, 1\nv_xor_b32 {v(t)}, s{SA}, {v(t)}\nv_lshlrev_b32 {v(t)}, 4, {v(t)}")
        p(f"v_bfe_u32 {v(t+1)}, {v(VL)}, 2, 1\nv_lshl_add_u32 {v(t)}, {v(t+1)}, 3, {v(t)}\nv_bfe_u32 {v(t+1)}, {v(VL)}, 3, 1\nv_lshl_add_u32 {v(t)}, {v(t+1)}, 2, {v(t)}")
        p(f"v_and_b32 {v(t+1)}, 35, {v(VL)}\nv_add_lshl_u32 {v(t)}, {v(t)}, {v(t+1)}, 4\nv_add_u32 {v(self.GTR)}, s{SGL}, {v(t)}")
        p(f"s_lshl_b32 s{SB_}, s{SJ}, 2\ns_add_u32 s{SB_}, s{SB_}, s{SA}\ns_lshl_b32 s{SA}, s{SKH}, 1\ns_add_u32 s{SB_}, s{SB_}, s{SA}\ns_lshl_b32 s{SB_}, s{SB_}, 4")
        p(f"s_and_b32 s{SA}, s{SWV}, 1\ns_add_u32 s{SGB}, s{SB_}, s{SA}\ns_mul_i32 s{SGB}, s{SGB}, 6144\ns_add_u32 s{SGB}, s{SGB}, {Z2N}\ns_mul_i32 s{SA}, s{SA}, 6144\ns_add_u32 s{SGL}, s{SGL}, s{SA}")
        p(f"s_lshl_b32 s{SB_}, s{SB_}, 7\ns_add_u32 s{SB_}, s{SB_}, {ZF}")
        self.poll_addr(self.GPL, [(SB_, 16)])
        p(f"s_lshr_b32 s{SA}, s{STB}, 1\ns_lshl_b32 s{SA}, s{SA}, 9\ns_add_u32 s{SA}, s{SA}, {ZF}")
        p(f"v_add_u32 {v(t)}, 16, {v(VL)}\nv_bfe_u32 {v(t)}, {v(t)}, 2, 3\nv_lshlrev_b32 {v(t)}, 13, {v(t)}\nv_and_b32 {v(t+1)}, 3, {v(VL)}\nv_lshl_add_u32 {v(t)}, {v(t+1)}, 7, {v(t)}\nv_add_u32 {v(t)}, s{SA}, {v(t)}")
        p(f"s_mov_b32 vcc_lo, 0xffff0000\ns_mov_b32 vcc_hi, 0xffff\nv_cndmask_b32 {v(self.GPL)}, {v(self.GPL)}, {v(t)}, vcc")
        p(f"s_lshr_b32 s{SA}, s{STB}, 1\ns_lshl_b32 s{SA}, s{SA}, 1\ns_and_b32 s{SB_}, s{SWV}, 1\ns_add_u32 s{SA}, s{SA}, s{SB_}\ns_lshl_b32 s{SA}, s{SA}, 1\ns_add_u32 s{SA}, s{SA}, s{SKH}")
        p(f"s_lshl_b32 s{SB_}, s{SJ}, 6\ns_add_u32 s{SZI}, s{SA}, s{SB_}")
    def g_poll_issue(self):
        self.gp = self.p.vmem(f"buffer_load_dword {v(self.GPL+1)}, {v(self.GPL)}, {srd(SWS)}, 0 offen sc1")

    def phase_z(self):
        p = self.p; o = self.o
        ACC, FA, FB, XR, WR, XD, WD, T = 16, 64, 88, 96, 100, 104, 108, 112
        p.c("==== phase A: Z ====")
        p.put(self.LZ)
        self.common2()
        tick = {}
        def xdma(st, cb=None):
            return [((SREG, (st & 3) * 4096) if i == 0 else None, self.rot(SXB, st, 128) if i == 0 else None,
                     f"buffer_load_dwordx4 {v(XD+i)}, {srd(SX)}, s{SDO} offen offset:{i*1024} lds", cb) for i in range(4)]
        def wdma(st, cb=None):
            return [((SWL, (st & 3) * 40960) if i == 0 else None, self.rot(SW1B, st, 64 * 2752) if i == 0 else None,
                     f"buffer_load_dwordx4 {v(WD+i)}, {srd(SW1)}, s{SDO} offen offset:{i*1024} lds", cb) for i in range(3)]
        def dma(st):
            def cb(t): tick[st] = t
            return self.dseq(wdma(st) + xdma(st, cb))
        self.slice_z2(SCOL)
        self.w_dma_addr(WD, T, 1376)
        p(f"s_mul_i32 s{SW1B}, s{SWV}, {16*2752}\ns_lshl_b32 s{SA}, s{SU0}, 4\ns_add_u32 s{SW1B}, s{SW1B}, s{SA}")
        p(f"s_mul_i32 s{SWL}, s{SWV}, 3072\ns_add_u32 s{SWL}, s{SWL}, 16384\ns_mov_b32 s{SW1+2}, {512*2752}")
        p(f"s_mov_b64 {sp(SW1)}, {sp(PWIN)}")
        npro = o.get("npro", 3)
        def cb0(t): tick[0] = t
        self.run(self.dseq(wdma(0, cb0)))
        if o.get("sst"): self.stamp(23)
        def setup():
            self.plain_read_addr(XR, SREG, T)
            self.w_tr_addr(WR, 16384, T)
            self.p(f"v_add_u32 {v(WR+1)}, 81920, {v(WR)}")
            self.wsp_setup(T)
            self.p(f"s_add_u32 s{SPB}, s{SREG}, 32768\ns_mov_b32 s{SPB+1}, s{SREG}\ns_add_u32 s{SPB+2}, s{SREG}, 8192\ns_add_u32 s{SPB+3}, s{SREG}, 16384\ns_add_u32 s{SPB+4}, s{SREG}, 24576")
            self.valid_masks()
        d = []
        for st in range(1, npro): d += dma(st)
        self.run(merge(self.cap(lambda: (self.common3(), setup())), d))
        def prefill(u0, u1):
            p(f"s_lshl_b32 s{SCB}, s{SRB}, 2\ns_add_u32 s{SCB}, s{SCB}, s{SWV}\ns_mul_i32 s{SCB}, s{SCB}, 45056\ns_lshl_b32 s{SA}, s{SU0}, 9\ns_add_u32 s{SCB}, s{SCB}, s{SA}\ns_add_u32 s{SCB}, s{SCB}, {PB}")
            for k in range(4): p(f"v_mov_b32 {v(176+k)}, -1")
            for u in range(6):
                if u == 4: p(f"s_add_u32 s{SCB}, s{SCB}, 4096")
                p.vmem(f"buffer_store_dwordx4 {v(176,4)}, {v(VL16 if u < 3 else 115)}, {srd(SWS)}, s{SCB} offen offset:{(u%4)*1024} sc1")
        self.pf2()
        self.epoch2()
        self.stamp(0)
        rt = {}
        def reads(n):
            st, ks = n // 4, n % 4; sl = st & 3; s = n & 1; ops = []
            def rb(): rt[(n, 'b')] = p.lds(f"ds_read_b128 {v(FB+4*s,4)}, {v(XR+ks)} offset:{sl*4096}")
            ops.append(rb)
            for mt in range(3):
                for a in range(2):
                    def ra(mt=mt, a=a):
                        rt[(n, mt)] = p.lds(f"ds_read_b64_tr_b16 {v(FA+12*s+4*mt+2*a,2)}, {v(WR+(sl>>1))} offset:{(sl&1)*40960+ks*3072+a*768+mt*64}")
                    ops.append(ra)
            return ops
        def mfmas(n):
            s = n & 1; ops = []
            for mt in range(3):
                def m(mt=mt):
                    p.wait(lg=rt[(n, mt)])
                    c = "0" if n == 0 else v(ACC + 16 * mt, 16)
                    p(f"{MF} {v(ACC+16*mt,16)}, {v(FA+12*s+4*mt,4)}, {v(FB+4*s,4)}, {c}")
                ops.append(m)
            return ops
        GX, GW, GU, GS, GT = 128, 144, 148, 156, 160
        gt = {}
        def gload():
            p(f"s_lshl_b32 s{SE}, s{SRB}, 2\ns_add_u32 s{SE}, s{SE}, s{SWV}\ns_lshl_b32 s{SE}, s{SE}, 3\ns_add_u32 s{SE}, s{SE}, s{SCOL}\ns_lshl_b32 s{SA}, s{SE}, 12")
            for r in range(4): p.vmem(f"buffer_load_dwordx4 {v(GX+4*r,4)}, {v(VL16)}, {srd(SX)}, s{SA} offen offset:{r*1024}")
            gt['t'] = p.vmem(f"global_load_dwordx4 {v(GW,4)}, {v(VL16)}, {sp(PGW)}")
        def gstore():
            p(f"s_lshl_b32 s{SA}, s{SE}, 4\ns_add_u32 s{SA}, s{SA}, {GATE}")
            p.vmem(f"buffer_store_dwordx4 {v(GS,4)}, {v(GT)}, {srd(SWS)}, s{SA} offen sc1")
        gops = [lambda: p.wait(vm=gt['t'])] + self.cap(lambda: self.gate(GX, GW, GU, GS, GT)) + [gstore]
        zm = o.get('zmode', 1)
        valu = {(28 if zm == 1 else 13): [gload]}
        def touch_u():
            p(f"v_lshlrev_b32 {v(170)}, 7, {v(VL)}\ns_lshr_b32 s{SB_}, s2, 3\ns_lshl_b32 s{SB_}, s{SB_}, 2\ns_add_u32 s{SB_}, s{SB_}, s{SWV}\ns_lshl_b32 s{SB_}, s{SB_}, 13")
            p(f"s_and_b32 s{SA}, s2, 7\ns_lshl_b32 s{SA}, s{SA}, 20\ns_add_u32 s{SA}, s{SA}, s{SB_}\ns_add_u32 s{SA}, s{SA}, {1<<19}")
            p.vmem(f"buffer_load_dword {v(171)}, {v(170)}, {srd(SWSP)}, s{SA} offen")
        def warm():
            p(f"v_lshlrev_b32 {v(170)}, 18, {v(VL)}\nv_lshlrev_b32 {v(172)}, 16, {v(VL)}\nv_lshlrev_b32 {v(173)}, 13, {v(VL)}")
            ls = [p.label("wm") for _ in range(4)]
            p(f"s_cmp_eq_u32 s{SWV}, 1\ns_cbranch_scc1 {ls[0]}\ns_cmp_eq_u32 s{SWV}, 2\ns_cbranch_scc1 {ls[1]}\ns_cmp_eq_u32 s{SWV}, 3\ns_cbranch_scc1 {ls[2]}")
            p(f"buffer_load_dword {v(171)}, {v(170)}, {srd(SWS)}, 0 offen sc1\ns_branch {ls[3]}")
            p.put(ls[0]); p(f"buffer_load_dword {v(171)}, {v(172)}, {srd(SOUT)}, 0 offen sc1\ns_branch {ls[3]}")
            p.put(ls[1]); p(f"buffer_load_dword {v(171)}, {v(173)}, {srd(SCRE)}, 0 offen\nbuffer_load_dword {v(171)}, {v(173)}, {srd(SCIM)}, 0 offen\ns_branch {ls[3]}")
            p.put(ls[2]); p(f"v_lshlrev_b32 {v(173)}, 14, {v(VL)}\nbuffer_load_dword {v(171)}, {v(173)}, {srd(SWOUT)}, 0 offen")
            p.put(ls[3])
        if o.get("warm"): valu[31] = [warm]
        def ztouch(part):
            if part == 0:
                p(f"s_lshr_b32 s{SB_}, s2, 3\ns_lshl_b32 s{SB_}, s{SB_}, 2\ns_add_u32 s{SB_}, s{SB_}, s{SWV}")
                p(f"s_and_b32 s{SA}, s2, 7\ns_lshl_b32 s{SPFP+1}, s{SB_}, 3\ns_add_u32 s{SPFP+1}, s{SPFP+1}, s{SA}")
                p(f"s_lshr_b32 s{SA}, s{SA}, 1\ns_lshl_b32 s{SA}, s{SA}, 21\ns_lshl_b32 s{SB_}, s{SB_}, 14\ns_add_u32 s{SPFP}, s{SA}, s{SB_}\ns_lshl_b32 s{SA}, s{SKH}, 11\ns_add_u32 s{SPFP}, s{SPFP}, s{SA}")
                p(f"v_lshrrev_b32 {v(173)}, 4, {v(VL)}\nv_lshlrev_b32 {v(173)}, 12, {v(173)}\nv_and_b32 {v(174)}, 15, {v(VL)}\nv_lshl_add_u32 {v(173)}, {v(174)}, 7, {v(173)}\nv_lshlrev_b32 {v(174)}, 7, {v(VL)}")
                if o.get("xl"):
                    p(f"s_and_b32 s{SA}, s2, 7\ns_lshl_b32 s{SA}, s{SA}, 20\ns_lshr_b32 s{SB_}, s{SB_}, 1\ns_add_u32 s{SPFP}, s{SA}, s{SB_}\nv_mov_b32 {v(173)}, {v(174)}")
                p.vmem(f"buffer_load_dword {v(175)}, {v(173)}, {srd(SWSP)}, s{SPFP} offen")
            if part == 1:
                p(f"s_add_u32 s{SPFP}, s{SPFP}, {1<<(19 if o.get('xl') else 20)}")
                p.vmem(f"buffer_load_dword {v(175)}, {v(173)}, {srd(SWSP)}, s{SPFP} offen")
            if part == 2:
                l = p.label("zt")
                p(f"s_lshr_b32 s{SB_}, s2, 3\ns_lshl_b32 s{SB_}, s{SB_}, 2\ns_add_u32 s{SB_}, s{SB_}, s{SWV}\ns_and_b32 s{SA}, s2, 7\ns_lshl_b32 s{SF}, s{SB_}, 3\ns_add_u32 s{SF}, s{SF}, s{SA}")
                p(f"s_cmp_ge_u32 s{SF}, 428\ns_cbranch_scc1 {l}")
                p(f"s_cmp_lt_u32 s{SF}, 128\ns_cselect_b64 {sp(SSTMP)}, {sp(SCRE)}, {sp(SCIM)}\ns_and_b32 s{SA}, s{SF}, 127")
                p(f"s_sub_u32 s{SB_}, s{SF}, 256\ns_cmp_ge_u32 s{SF}, 256\ns_cselect_b64 {sp(SSTMP)}, {sp(SWOUT)}, {sp(SSTMP)}\ns_cselect_b32 s{SA}, s{SB_}, s{SA}")
                p(f"s_lshl_b32 s{SA}, s{SA}, 12\nv_and_b32 {v(172)}, 31, {v(VL)}\nv_lshl_add_u32 {v(172)}, {v(172)}, 7, s{SA}")
                p(f"global_load_dword {v(171)}, {v(172)}, {sp(SSTMP)}")
                p.put(l)
            if part == 3:
                p(f"s_lshr_b32 s{SB_}, s2, 3\ns_lshl_b32 s{SB_}, s{SB_}, 2\ns_add_u32 s{SB_}, s{SB_}, s{SWV}\ns_lshl_b32 s{SA}, s{SB_}, 13\nv_lshlrev_b32 {v(172)}, 7, {v(VL)}\ns_mul_i32 s{SB_}, s{SB_}, 11008")
                p.vmem(f"buffer_load_dword {v(171)}, {v(172)}, {srd(SWOUT)}, s{SB_} offen")
                p(f"s_add_u32 s{SB_}, s{SB_}, 2816")
                p.vmem(f"buffer_load_dword {v(171)}, {v(172)}, {srd(SWOUT)}, s{SB_} offen")
                if o.get("ct2") == 2:
                    p.vmem(f"buffer_load_dword {v(171)}, {v(172)}, {srd(SCRE)}, s{SA} offen")
                    p.vmem(f"buffer_load_dword {v(171)}, {v(172)}, {srd(SCIM)}, s{SA} offen")
            if part == 5:
                l = p.label("zh")
                p(f"s_lshr_b32 s{SB_}, s2, 3\ns_lshl_b32 s{SB_}, s{SB_}, 2\ns_add_u32 s{SB_}, s{SB_}, s{SWV}\ns_cmp_ge_u32 s{SB_}, 27\ns_cbranch_scc1 {l}")
                p(f"s_cmp_lt_u32 s{SB_}, 8\ns_cselect_b64 {sp(SSTMP)}, {sp(SCRE)}, {sp(SCIM)}\ns_and_b32 s{SA}, s{SB_}, 7\ns_sub_u32 s{SF}, s{SB_}, 16")
                p(f"s_cmp_ge_u32 s{SB_}, 16\ns_cselect_b64 {sp(SSTMP)}, {sp(SWOUT)}, {sp(SSTMP)}\ns_cselect_b32 s{SA}, s{SF}, s{SA}\ns_lshl_b32 s{SA}, s{SA}, 6")
                p(f"v_add_u32 {v(172)}, s{SA}, {v(VL)}\nv_min_u32 {v(172)}, 687, {v(172)}\nv_lshlrev_b32 {v(172)}, 10, {v(172)}")
                p(f"global_load_dword {v(171)}, {v(172)}, {sp(SSTMP)} offset:384")
                p.put(l)
            if part == 4:
                p(f"s_bfe_u32 s{SB_}, s2, 0x10006\ns_lshl_b32 s{SB_}, s{SB_}, 2\ns_add_u32 s{SB_}, s{SB_}, s{SWV}\ns_mul_i32 s{SB_}, s{SB_}, {86*1024}\ns_lshl_b32 s{SA}, s{SJ}, 7\ns_add_u32 s{SB_}, s{SB_}, s{SA}\nv_lshlrev_b32 {v(172)}, 10, {v(VL)}")
                p.vmem(f"buffer_load_dword {v(171)}, {v(172)}, {srd(SWOUT)}, s{SB_} offen")
                p(f"s_add_u32 s{SB_}, s{SB_}, {22*1024}")
                p.vmem(f"buffer_load_dword {v(171)}, {v(172)}, {srd(SWOUT)}, s{SB_} offen")
        if o.get("touch", 1) == 2:
            if o.get("wt"): valu.setdefault(o["wt"], []).append(lambda: ztouch(3))
            for k in range(3): valu.setdefault(o.get(f"zs{k}", [0, 0, 0][k]), []).append(lambda k=k: ztouch(k))
        else: self.paced(valu, 174, 175, o.get("zt0", 6), o.get("zdt", 6))
        self.gemm_loop(4, reads, mfmas, dma, tick, 2, npro, {o.get('ze0', 5): lambda: self.wsp_dma(0), o.get('ze1', 6): lambda: self.wsp_dma(1)} if zm == 1 else {}, valu)
        self.stamp(1)
        MA, MB = SK + 2, SK + 4
        GR, VLO = 72, 80
        MUL = 126
        def seg1b():
            p = self.p
            S = [64, 66, 68, 70]
            for k in range(4): p(f"v_pk_add_f32 {v(S[k],2)}, {v(ACC+2*k,2)}, {v(ACC+8+2*k,2)}")
            for i in range(8, 24): p(f"v_pk_add_f32 {v(S[i&3],2)}, {v(S[i&3],2)}, {v(ACC+2*i,2)}")
            p(f"v_pk_add_f32 {v(S[0],2)}, {v(S[0],2)}, {v(S[1],2)}\nv_pk_add_f32 {v(S[2],2)}, {v(S[2],2)}, {v(S[3],2)}")
            p(f"v_mov_b32 {v(GR+1)}, s{ST_T}\nv_pk_add_f32 {v(S[0],2)}, {v(S[0],2)}, {v(S[2],2)}\nv_mov_b32 {v(GR+3)}, s{ST_T}\nv_add_f32 {v(GR)}, {v(S[0])}, {v(S[0]+1)}")
            p(f"v_cmp_gt_u32 vcc, 32, {v(VL)}\nv_mov_b32 {v(S[0])}, {v(GR)}")
            p(f"s_lshl_b32 s{SC}, s{SRB}, 2\ns_add_u32 s{SC}, s{SC}, s{SWV}")
            p(f"v_permlane32_swap_b32 {v(GR)}, {v(S[0])}\nv_cndmask_b32 {v(VLO)}, {v(VOOB)}, {v(VL16)}, vcc\nv_add_f32 {v(GR)}, {v(GR)}, {v(S[0])}")
            p(f"s_lshl_b32 s{SD}, s{SC}, 12\ns_add_u32 s{SD}, s{SD}, {ST}")
            p(f"v_mul_f32 {v(MUL)}, s{SK+6}, {v(GR)}")
            p(f"s_lshl_b32 s{SA}, s{SCOL}, 9\ns_add_u32 s{SA}, s{SA}, s{SD}")
            for i in range(24): p(f"v_pk_add_f32 {v(ACC+2*i,2)}, {v(ACC+2*i,2)}, {v(MUL,2)} op_sel_hi:[1,0] neg_lo:[0,1] neg_hi:[0,1]")
            for i in range(4): p(f"v_pk_mul_f32 {v(S[i],2)}, {v(ACC+2*i,2)}, {v(ACC+2*i,2)}")
            for i in range(4, 24): p(f"v_pk_fma_f32 {v(S[i&3],2)}, {v(ACC+2*i,2)}, {v(ACC+2*i,2)}, {v(S[i&3],2)}")
            p(f"v_mul_f32 {v(76)}, s{SK+4}, {v(MUL)}")
            p(f"v_pk_add_f32 {v(S[0],2)}, {v(S[0],2)}, {v(S[1],2)}\nv_pk_add_f32 {v(S[2],2)}, {v(S[2],2)}, {v(S[3],2)}\nv_pk_add_f32 {v(S[0],2)}, {v(S[0],2)}, {v(S[2],2)}")
            p(f"v_add_f32 {v(GR+2)}, {v(S[0])}, {v(S[0]+1)}")
            self.xhalf_sum(GR + 2, S[0])
            p(f"v_fma_f32 {v(GR+2)}, -{v(76)}, {v(MUL)}, {v(GR+2)}")
        seg1 = self.cap(lambda: self.gelu_many([ACC + 2 * i for i in range(24)], [64, 68, 72, 76]))
        h = len(seg1) // 5
        f1 = self.wsp_dma(2) + [lambda: p("s_barrier")]
        f2 = self.wsp_dma(3) + self.wsp_dma(4)
        if zm == 1: self.run(merge(seg1[:h], f1) + merge(seg1[h:], f2))
        else:
            zg2 = o.get("zg2", 0); h2_ = len(seg1) * o.get("zg2at", 60) // 100
            fz = (self.wsp_dma(0) if zg2 >= 1 else []) + (self.wsp_dma(1) if zg2 >= 2 else [])
            self.run(seg1[:h] + [lambda: p("s_barrier")] + seg1[h:h2_] + merge(seg1[h2_:], fz))
        seg1b()
        p.vmem(f"buffer_store_dwordx4 {v(GR,4)}, {v(VLO)}, {srd(SWS)}, s{SA} offen sc1")
        self.stamp(2)
        lgw = lambda: p.wait(lg=p.lg - 1)
        Q0, Q1, QA, QB = 112, 113, 114, 115
        MN, VR, N3, I3, TM = 80, 81, 82, 83, 84
        def misc():
            p = self.p
            self.g_early(120)
            p(f"v_lshrrev_b32 {v(Q1)}, 5, {v(VL)}\nv_lshlrev_b32 {v(Q1)}, 6, {v(Q1)}\nv_xor_b32 {v(Q0)}, {v(VL16)}, {v(Q1)}\nv_xor_b32 {v(Q1)}, 128, {v(Q0)}")
            p(f"v_add_u32 {v(Q0)}, s{SPB+4}, {v(Q0)}\nv_add_u32 {v(Q1)}, s{SPB+4}, {v(Q1)}")
            self.unit_tr_addr(124, SPB + 4, 120, False)
            p(f"s_lshl_b32 s{SA}, s{SNU}, 3\ns_sub_i32 s{SA}, s{SA}, 64")
            p(f"v_and_b32 {v(QB)}, 31, {v(VL)}\nv_cmp_gt_i32 vcc, s{SA}, {v(QB)}\nv_add_u32 {v(QB)}, 4096, {v(VL16)}\nv_cndmask_b32 {v(QA)}, {v(VOOB)}, {v(QB)}, vcc")
            p.atom(f"s_cmp_gt_u32 s{SNU}, 4\ns_cselect_b64 vcc, -1, 0")
            p(f"v_cndmask_b32 {v(QB)}, {v(VOOB)}, {v(VL16)}, vcc")
            p(f"s_lshl_b32 s{SA}, s{SCOL}, 6\ns_add_u32 s{SC}, s{SA}, s{SC}\ns_mul_i32 s{SE}, s{SC}, 6144")
            self.flag_prep(118)
            p(f"v_cmp_gt_u32 vcc, 32, {v(VL)}\nv_mov_b32 {v(N3)}, {f2u(32.0)}\nv_mov_b32 {v(TM)}, {f2u(96.0)}\nv_mov_b32 {v(I3)}, {f2u(1/32)}\nv_mov_b32 {v(TM+1)}, {f2u(1/96)}")
            p(f"v_mov_b32 {v(152)}, {f2u(80.0)}\nv_mov_b32 {v(153)}, {f2u(1/80)}")
            p(f"v_cndmask_b32 {v(N3)}, {v(N3)}, {v(TM)}, vcc\nv_cndmask_b32 {v(I3)}, {v(I3)}, {v(TM+1)}, vcc\nv_cndmask_b32 {v(152)}, {v(TM)}, {v(152)}, vcc\nv_cndmask_b32 {v(153)}, {v(TM+1)}, {v(153)}, vcc")
        za = o.get("za", 1)
        f = self.wsp_read(0) + self.wsp_read(1) + [lgw]
        for st in range(5, 5 + za): f += self.wsp_dma(st)
        zs = o.get('zsched', 0)
        zw = o.get('zw', 0)
        if zm == 2: f = self.wsp_dma(zg2) + self.wsp_dma(zg2 + 1) + (self.wsp_dma(2) if zs in (1, 2) else [])
        if zw: f = self.wsp_dma(0) if zw in (1, 3) else []
        self.run(merge(gops + self.cap(misc), f))
        self.stamp(3)
        SG = 64
        for q in range(4):
            ts = p.vmem(f"buffer_load_dwordx4 {v(SG+4*q,4)}, {v(VL16)}, {srd(SWS)}, s{SD} offen offset:{q*1024} sc1")
        if zm == 1:
            for st in range(5 + za, 7): self.run(self.wsp_dma(st))
        elif zw: self.run((self.wsp_dma(1) if zw in (1, 3) else self.wsp_dma(0)))
        else: self.run(self.wsp_dma(3) + self.wsp_read(0) if zs in (1, 2) else {0: self.wsp_dma(2), 1: self.wsp_dma(3), 2: self.wsp_read(0) + self.wsp_read(1)}[zg2])
        l = p.label("sp"); dl = p.label("sd")
        p.wait(vm=ts)
        p(f"s_mov_b32 s{SSPIN}, 0")
        p.put(l)
        X0 = 116
        p(f"v_xor_b32 {v(MN)}, s{ST_T}, {v(SG+1)}\nv_xor_b32 {v(VR)}, s{ST_T}, {v(SG+3)}")
        for r in [5, 9, 13]:
            p(f"v_xor_b32 {v(X0)}, s{ST_T}, {v(SG+r)}\nv_xor_b32 {v(X0+1)}, s{ST_T}, {v(SG+r+2)}\nv_or3_b32 {v(MN)}, {v(MN)}, {v(X0)}, {v(X0+1)}")
        p(f"v_or_b32 {v(MN)}, {v(MN)}, {v(VR)}")
        p(f"v_cmp_ne_u32 vcc, 0, {v(MN)}\ns_cmp_eq_u64 vcc, 0\ns_cbranch_scc1 {dl}")
        for q in range(4):
            p(f"buffer_load_dwordx4 {v(SG+4*q,4)}, {v(VL16)}, {srd(SWS)}, s{SD} offen offset:{q*1024} sc1")
        p("s_waitcnt vmcnt(0)")
        p(f"s_add_u32 s{SSPIN}, s{SSPIN}, 1\ns_cmp_lt_u32 s{SSPIN}, {SPIN}\ns_cbranch_scc1 {l}")
        p.put(dl)
        self.stamp(4)
        p(f"v_add_f32 {v(MN)}, {v(SG)}, {v(SG+4)}\nv_add_f32 {v(TM+2)}, {v(SG+8)}, {v(SG+12)}\nv_add_f32 {v(MN)}, {v(MN)}, {v(TM+2)}")
        p(f"v_mov_b32 {v(TM+3)}, {v(MN)}\nv_add_f32 {v(VR)}, {v(SG+2)}, {v(SG+6)}\nv_add_f32 {v(TM+2)}, {v(SG+10)}, {v(SG+14)}")
        p(f"v_permlane32_swap_b32 {v(MN)}, {v(TM+3)}\nv_add_f32 {v(VR)}, {v(VR)}, {v(TM+2)}\nv_add_f32 {v(MN)}, {v(MN)}, {v(TM+3)}")
        p(f"v_mul_f32 {v(MN)}, {f2u(1/688)}, {v(MN)}")
        for q in range(4):
            n_, i_ = {0: (152, 153), 3: (N3, I3)}.get(q, (TM, TM + 1))
            p(f"v_fma_f32 {v(TM+2)}, {v(SG+4*q)}, {v(i_)}, -{v(MN)}\nv_mul_f32 {v(TM+2)}, {v(TM+2)}, {v(TM+2)}\nv_fmac_f32 {v(VR)}, {v(TM+2)}, {v(n_)}")
        self.xhalf_sum(VR, TM)
        p(f"v_mov_b32 {v(TM)}, {f2u(1e-5)}\nv_fmac_f32 {v(TM)}, {f2u(1/688)}, {v(VR)}\nv_rsq_f32 {v(VR)}, {v(TM)}")
        p(f"s_add_u32 s{SA}, s{SE}, {Z2N}\ns_add_u32 s{SB_}, s{SA}, 4096")
        p(f"v_sub_f32 {v(MN)}, {v(MN)}, {v(MUL)}\nv_mul_f32 {v(MN)}, {v(MN)}, {v(VR)}")
        ZP = 88
        FP_ = {(0, 0): 0, (0, 1): 1, (1, 0): 2, (1, 1): 3, (0, 2): 4, (1, 2): 5}; zr = {}
        def zst(fi):
            p.wait(lg=zr[fi])
            return p.vmem(f"buffer_store_dwordx4 {v(128+4*fi,4)}, {v([VL16, QB, VL16, QB, QA, QA][fi])}, {srd(SWS)}, s{SA} offen offset:{(fi%4)*1024} sc1")
        for u in range(6):
            mt, q = u >> 1, u & 1
            R4 = range(4 * u, 4 * u + 4)
            for i in R4: p(f"v_pk_fma_f32 {v(ACC+2*i,2)}, {v(ACC+2*i,2)}, {v(MN,2)}, {v(MN,2)} op_sel:[0,1,0] op_sel_hi:[1,1,0] neg_lo:[0,0,1] neg_hi:[0,0,1]")
            for i in R4: p(f"v_cvt_pk_bf16_f32 {v(ZP+i)}, {v(ACC+2*i)}, {v(ACC+2*i+1)}")
            p.lds(f"ds_write_b128 {v(Q0+q)}, {v(ZP+4*u,4)} offset:{mt*2048+q*1024}")
            if q == 1:
                for ks in range(2):
                    fi = FP_[(ks, mt)]
                    for a in range(2): zr[fi] = p.lds(f"ds_read_b64_tr_b16 {v(128+4*fi+2*a,2)}, {v(124+a)} offset:{mt*2048+ks*256}")
                if mt >= 1: zst(FP_[(0, mt - 1)]); zst(FP_[(1, mt - 1)])
        p(f"s_lshl_b32 s{SE}, s{SC}, 7\ns_add_u32 s{SE}, s{SE}, {ZF}")
        zst(4); t = zst(5)
        if zs:
            if zs >= 3:
                self.run(merge(self.wsp_dma(3) + (self.wsp_dma(4) if zs == 4 else []), self.wsp_read(0) + self.wsp_read(1) + self.wsp_read(2)))
                p.wait(vm=t)
                self.flag(SE, 118)
                self.run(([] if zs == 4 else self.wsp_dma(4)) + [lgw] + self.wsp_dma(5) + self.wsp_dma(6) + self.wsp_dma(7))
            else:
                self.run(merge(self.wsp_dma(4) + (self.wsp_dma(5) if zs > 1 else []), self.wsp_read(1) + self.wsp_read(2)))
                p.wait(vm=t)
                self.flag(SE, 118)
                self.run([lgw] + ([] if zs > 1 else self.wsp_dma(5)) + self.wsp_dma(6) + self.wsp_dma(7))
            for st in range(3, 6): self.run(self.wsp_read(st))
            self.g_poll_issue()
            prefill(0, 6)
            for st in range(6, 8): self.run(self.wsp_read(st))
            p(f"s_add_u32 s{SLATE}, s{SE}, {ZF2-ZF}")
            self.stamp(5)
            return
        if zw:
            k0 = 2 if zw in (1, 3) else 1
            self.run((self.wsp_dma(k0) if zw < 3 else []) + self.wsp_read(0))
            rest = []
            for st in range(k0 + (1 if zw < 3 else 0), 5): rest += self.wsp_dma(st)
            rest += self.wsp_read(1) + self.wsp_read(2) + [lgw] + self.wsp_dma(5) + self.wsp_dma(6)
        elif zg2 == 0:
            self.run(merge(self.wsp_dma(3), self.wsp_read(0) + self.wsp_read(1) + self.wsp_read(2)))
            rest = self.wsp_dma(4) + [lgw] + self.wsp_dma(5) + self.wsp_dma(6)
        elif zg2 == 1:
            self.run(merge(self.wsp_dma(4), self.wsp_read(0) + self.wsp_read(1) + self.wsp_read(2)))
            rest = [lgw] + self.wsp_dma(5) + self.wsp_dma(6)
        else:
            self.run(merge(self.wsp_dma(4), self.wsp_read(2)))
            rest = [lgw] + self.wsp_dma(5) + self.wsp_dma(6)
        p.wait(vm=t)
        self.flag(SE, 118)
        prefill(0, 6); tpf = p.vm - 1
        self.run(rest)
        p.wait(vm=tpf)
        p(f"s_add_u32 s{SE}, s{SE}, {ZF2-ZF}")
        self.flag(SE, 118)
        self.run(self.wsp_dma(7))
        if o.get("ct2") in (2, 3): ztouch(3)
        if o.get("ct2") == 5: ztouch(5)
        for st in range(3, 8): self.run(self.wsp_read(st))
        self.g_poll_issue()
        p(f"s_mov_b32 s{SLATE}, 0")
        self.stamp(5)

    def phase_u(self):
        p = self.p; o = self.o
        ACC, ZA, FA, FB, FW, FX = 16, 80, 128, 144, 160, 184
        XR, BR, X1R, WR, XD, BD, WD, T = 192, 196, 200, 204, 206, 210, 214, 60
        p.c("==== phase A: U ====")
        p.put(self.LU)
        WT, WP = SK + 8, SK + 9
        p(f"v_lshrrev_b32 {v(T)}, 5, {v(VL)}\nv_lshlrev_b32 {v(T)}, 15, {v(T)}")
        p(f"v_bfe_u32 {v(T+1)}, {v(VL)}, 3, 1\nv_lshl_add_u32 {v(T)}, {v(T+1)}, 14, {v(T)}")
        p(f"v_bfe_u32 {v(T+1)}, {v(VL)}, 4, 1\nv_lshl_add_u32 {v(T)}, {v(T+1)}, 10, {v(T)}")
        self.plain_dma_addr2(XD, T, T + 1, 2048)
        p(f"s_lshr_b32 s{WP}, s{SWV}, 1\ns_and_b32 s{WT}, s{SWV}, 1\ns_lshl_b32 s{SA}, s{WT}, 5")
        for i in range(4): p(f"v_xor_b32 {v(XD+i)}, s{SA}, {v(XD+i)}")
        p(f"s_lshl_b32 s{SD}, s{WP}, 16\ns_add_u32 s{SXB}, s{SXB}, s{SD}\ns_lshl_b32 s{SD}, s{WT}, 13\ns_add_u32 s{SXB}, s{SXB}, s{SD}\ns_lshl_b32 s{SXL}, s{SWV}, 12\ns_mov_b32 m0, s{SXL}")
        p.wait_lg_all()
        so = self.rot0(SXB, 128)
        for i in range(4): p.vmem(f"buffer_load_dwordx4 {v(XD+i)}, {srd(SX)}, s{so} offen offset:{i*1024} lds")
        self.common2()
        self.plain_dma_addr(BD, 1024, T)
        p(f"s_lshl_b32 s{SW1B}, s{SCOL}, 16\ns_lshl_b32 s{SD}, s{WT}, 15\ns_add_u32 s{SW1B}, s{SW1B}, s{SD}\ns_mov_b32 s{SW1+2}, 524288\ns_add_u32 m0, s{SXL}, 49152")
        p(f"s_cmp_eq_u32 s{WP}, 0\ns_cselect_b64 {sp(SW1)}, {sp(PBRE)}, {sp(PBIM)}")
        so = self.rot0(SW1B, 128)
        for i in range(4): p.vmem(f"buffer_load_dwordx4 {v(BD+i)}, {srd(SW1)}, s{so} offen offset:{i*1024} lds")
        p(f"s_cmp_eq_u32 s{SCOL}, 7\ns_cselect_b32 s{SNU}, 2, 12")
        self.w_dma_addr(WD, T, 0)
        SWIB = SCB
        p(f"s_mul_i32 s{SWIB}, s{SWV}, {16*2752}\ns_mul_i32 s{SA}, s{SCOL}, 192\ns_add_u32 s{SWIB}, s{SWIB}, s{SA}")
        p(f"s_mul_i32 s{SWL}, s{SWV}, 3072\ns_add_u32 s{SWL}, s{SWL}, 98304\ns_mov_b32 m0, s{SWL}\ns_mov_b32 s{PWIN+2}, {512*2752}\ns_mov_b32 s{PWIN+3}, 0x20000")
        so = self.rot0(SWIB, 64 * 2752)
        for i in range(3): t0_ = p.vmem(f"buffer_load_dwordx4 {v(WD+i)}, {srd(PWIN)}, s{so} offen offset:{i*1024} lds")
        if o.get("sst"): self.stamp(23)
        PR = 228
        tick = {}
        def dma(st):
            sl = st % 3; items = []
            def cb(t): tick[st] = t
            for i in range(3):
                items.append(((SWL, sl * 12288) if i == 0 else None, self.rot(SWIB, st, 64 * 2752) if i == 0 else None,
                              f"buffer_load_dwordx4 {v(WD+i)}, {srd(PWIN)}, s{SDO} offen offset:{i*1024} lds", None))
            for (vd, sr, sb, lb) in [(XD, SX, SXB, 0), (BD, SW1, SW1B, 49152)]:
                for i in range(4):
                    items.append(((SXL, lb + sl * 16384) if i == 0 else None, self.rot(sb, st, 128) if i == 0 else None,
                                  f"buffer_load_dwordx4 {v(vd+i)}, {srd(sr)}, s{SDO} offen offset:{i*1024} lds", cb))
            return self.dseq(items)
        tick[0] = t0_
        npro = o.get("npro_u", 2)
        def setup():
            p = self.p
            p(f"s_mul_i32 s{SREG}, s{SWV}, 40960\ns_lshl_b32 s{SA}, s{WT}, 13")
            self.plain_read_addr(XR, SA, T)
            p(f"s_lshl_b32 s{SA}, s{WP}, 12\ns_add_u32 s{SA}, s{SA}, 49152")
            self.plain_read_addr(BR, SA, T)
            self.w_tr_addr(WR, 98304, T)
            p(f"v_bfe_u32 {v(T)}, {v(VL)}, 3, 1\nv_lshlrev_b32 {v(T+1)}, 12, {v(T)}\nv_xor_b32 {v(T)}, s{WT}, {v(T)}\nv_lshlrev_b32 {v(T)}, 1, {v(T)}")
            p(f"v_bfe_u32 {v(T+2)}, {v(VL)}, 1, 2\nv_lshl_add_u32 {v(T+1)}, {v(T+2)}, 10, {v(T+1)}")
            p(f"v_and_b32 {v(T+2)}, 1, {v(T+2)}\nv_lshl_add_u32 {v(T)}, {v(T+2)}, 2, {v(T)}")
            p(f"v_and_b32 {v(T+2)}, 1, {v(VL)}\nv_lshl_add_u32 {v(T+1)}, {v(T+2)}, 8, {v(T+1)}\nv_or_b32 {v(T)}, {v(T)}, {v(T+2)}")
            p(f"v_bfe_u32 {v(T+2)}, {v(VL)}, 4, 1\nv_lshl_add_u32 {v(T+1)}, {v(T+2)}, 7, {v(T+1)}")
            p(f"s_lshl_b32 s{SA}, s{WP}, 13\ns_lshl_b32 s{SB_}, s{WT}, 9\ns_add_u32 s{SA}, s{SA}, s{SB_}\nv_add_u32 {v(T+1)}, s{SA}, {v(T+1)}")
            p(f"v_lshrrev_b32 {v(T+2)}, 5, {v(VL)}\nv_xor_b32 {v(T)}, {v(T)}, {v(T+2)}\nv_lshlrev_b32 {v(T)}, 4, {v(T)}")
            for ks in range(4): p(f"v_xor_b32 {v(X1R+ks)}, {32*ks}, {v(T)}\nv_add_u32 {v(X1R+ks)}, {v(X1R+ks)}, {v(T+1)}")
            self.wsp_setup(T)
            p(f"s_lshl_b32 s{SPB+1}, s{WT}, 13\ns_mul_i32 s{SA}, s{WP}, 49152\ns_add_u32 s{SPB+1}, s{SPB+1}, s{SA}\ns_add_u32 s{SPB}, s{SPB+1}, 32768\ns_add_u32 s{SPB+2}, s{SPB+1}, 16384")
            p(f"s_lshl_b32 s{SA}, s{SWV}, 13\ns_add_u32 s{SPB+3}, s{SA}, {13*8192}\ns_add_u32 s{SPB+4}, s{SA}, {17*8192}")
            p.atom(f"s_cmp_eq_u32 s{SWV}, 3\ns_cselect_b32 s{SPB+4}, {12*8192}, s{SPB+4}")
        self.run(merge(self.cap(lambda: (self.common3(), setup())), (dma(1) if npro > 1 else []) + (dma(2) if npro > 2 else [])))
        p(f"s_lshl_b32 s{SD}, s{SRB}, 1\ns_add_u32 s{SD}, s{SD}, s{WT}")
        p(f"s_lshl_b32 s{SA}, s{SCOL}, 1\ns_add_u32 s{SA}, s{SA}, s{WP}")
        p(f"s_lshl_b32 s{SE}, s{SD}, 4\ns_add_u32 s{SE}, s{SE}, s{SA}")
        p(f"s_lshl_b32 s{SA}, s{SA}, 5\nv_and_b32 {v(T)}, 31, {v(VL)}\nv_add_lshl_u32 {v(T)}, {v(T)}, s{SA}, 1")
        p.wait_lg_all()
        p.vmem(f"global_load_ushort {v(PR)}, {v(T)}, {sp(PLRE)}")
        p.vmem(f"global_load_ushort {v(PR+1)}, {v(T)}, {sp(PLIM)}")
        tp = p.vmem(f"global_load_ushort {v(PR+2)}, {v(T)}, {sp(PLDT)}")
        LB, CF, L16, L128, L256, LQ0, LQ1 = 218, 220, 222, 224, 226, 228, 230
        X0, X1, X2, X3 = 232, 233, 234, 235
        L32, L64 = 236, 238
        def csq(d, s):
            p = self.p
            p(f"v_mul_f32 {v(X0)}, {v(s+1)}, {v(s+1)}\nv_add_f32 {v(X1)}, {v(s)}, {v(s)}")
            p(f"v_mul_f32 {v(d+1)}, {v(X1)}, {v(s+1)}\nv_fma_f32 {v(d)}, {v(s)}, {v(s)}, -{v(X0)}")
        def cmul(d, a, b):
            p = self.p
            p(f"v_mul_f32 {v(X0)}, {v(a+1)}, {v(b+1)}\nv_mul_f32 {v(X1)}, {v(a+1)}, {v(b)}")
            p(f"v_fma_f32 {v(X0)}, {v(a)}, {v(b)}, -{v(X0)}\nv_fma_f32 {v(d+1)}, {v(a)}, {v(b+1)}, {v(X1)}\nv_mov_b32 {v(d)}, {v(X0)}")
        def cfma(d, a, b, c):
            p = self.p
            p(f"v_fma_f32 {v(X0)}, {v(a)}, {v(b)}, {v(c)}\nv_fma_f32 {v(X1)}, {v(a)}, {v(b+1)}, {v(c+1)}")
            p(f"v_fma_f32 {v(X0)}, -{v(a+1)}, {v(b+1)}, {v(X0)}\nv_fma_f32 {v(d+1)}, {v(a+1)}, {v(b)}, {v(X1)}\nv_mov_b32 {v(d)}, {v(X0)}")
        def params():
            p = self.p
            p(f"v_lshlrev_b32 {v(PR)}, 16, {v(PR)}\nv_lshlrev_b32 {v(PR+1)}, 16, {v(PR+1)}\nv_lshlrev_b32 {v(PR+2)}, 16, {v(PR+2)}")
            p(f"v_mul_f32 {v(X0)}, {f2u(LOG2E)}, {v(PR+2)}\nv_exp_f32 {v(X0)}, {v(X0)}"); self.rnd(X0, X0)
            p(f"v_mul_f32 {v(X1)}, {v(X0)}, {v(PR)}\nv_mul_f32 {v(X2)}, {v(X0)}, {v(PR+1)}")
            p(f"v_mul_f32 {v(X1)}, {f2u(LOG2E)}, {v(X1)}\nv_exp_f32 {v(X1)}, {v(X1)}")
            p(f"v_mul_f32 {v(X2)}, {f2u(1/(2*math.pi))}, {v(X2)}\nv_fract_f32 {v(X2)}, {v(X2)}")
            p(f"v_cos_f32 {v(X3)}, {v(X2)}\nv_sin_f32 {v(X2)}, {v(X2)}")
            p(f"v_mul_f32 {v(X0)}, {v(PR)}, {v(PR)}")
            p(f"v_mul_f32 {v(LB)}, {v(X1)}, {v(X3)}\nv_mul_f32 {v(LB+1)}, {v(X1)}, {v(X2)}")
            p(f"v_fmac_f32 {v(X0)}, {v(PR+1)}, {v(PR+1)}\nv_rcp_f32 {v(X0)}, {v(X0)}")
            p(f"v_add_f32 {v(X1)}, -1.0, {v(LB)}\nv_add_f32 {v(X0)}, {v(X0)}, {v(X0)}")
            p(f"v_mul_f32 {v(X2)}, {v(X1)}, {v(PR)}\nv_fmac_f32 {v(X2)}, {v(LB+1)}, {v(PR+1)}\nv_mul_f32 {v(CF)}, {v(X2)}, {v(X0)}")
            p(f"v_mul_f32 {v(X2)}, {v(LB+1)}, {v(PR)}\nv_fma_f32 {v(X2)}, -{v(X1)}, {v(PR+1)}, {v(X2)}\nv_mul_f32 {v(CF+1)}, {v(X2)}, {v(X0)}")
            csq(L16, LB); csq(L16, L16); csq(L16, L16); csq(L16, L16)
            csq(L32, L16); csq(L64, L32); csq(L128, L64); csq(L256, L128)
            p.atom(f"s_cmp_eq_u32 s{WT}, 0\ns_cselect_b64 vcc, -1, 0")
            p(f"v_cndmask_b32 {v(L64)}, {v(L64)}, 1.0, vcc\nv_cndmask_b32 {v(L64+1)}, {v(L64+1)}, 0, vcc")
            p(f"v_cmp_gt_u32 vcc, 32, {v(VL)}\nv_cndmask_b32 {v(LQ0)}, {v(L32)}, 1.0, vcc\nv_cndmask_b32 {v(LQ0+1)}, {v(L32+1)}, 0, vcc")
            cmul(LQ0, LQ0, L64); cmul(LQ1, LQ0, L16)
        self.pf2()
        self.epoch2()
        self.stamp(0)
        pops = [lambda: p.wait(vm=tp)] + self.cap(params)
        valu = {}
        q = (len(pops) + 15) // 16
        for i in range(16): valu[8 + i] = pops[i * q:(i + 1) * q]
        def utouch():
            p(f"s_lshr_b32 s{SB_}, s2, 3\ns_lshl_b32 s{SB_}, s{SB_}, 2\ns_add_u32 s{SB_}, s{SB_}, s{SWV}\ns_lshl_b32 s{SB_}, s{SB_}, 14")
            p(f"s_and_b32 s{SA}, s2, 6\ns_lshl_b32 s{SA}, s{SA}, 20\ns_add_u32 s{SB_}, s{SB_}, s{SA}\ns_lshl_b32 s{SA}, s{SKH}, 11\ns_add_u32 s{SB_}, s{SB_}, s{SA}")
            p(f"v_lshrrev_b32 {v(217)}, 4, {v(VL)}\nv_lshlrev_b32 {v(217)}, 12, {v(217)}\nv_and_b32 {v(205)}, 15, {v(VL)}\nv_lshl_add_u32 {v(217)}, {v(205)}, 7, {v(217)}")
            p.vmem(f"buffer_load_dword {v(205)}, {v(217)}, {srd(SWSP)}, s{SB_} offen")
        if o.get("utch"): valu.setdefault(o["utch"], []).append(utouch)
        rt = {}
        def reads(n):
            st, ks = n // 4, n % 4; sl = st % 3; s = n & 1; ops = []
            for k in range(2):
                def ra(k=k): rt[(n, 'a', k)] = p.lds(f"ds_read_b128 {v(FA+8*s+4*k,4)}, {v(XR+(ks^k))} offset:{sl*16384+k*4096}")
                def rb(k=k): rt[(n, 'b', k)] = p.lds(f"ds_read_b128 {v(FB+8*s+4*k,4)}, {v(BR+ks)} offset:{sl*16384+k*8192}")
                ops += [ra, rb]
            def rx(): p.lds(f"ds_read_b128 {v(FX+4*s,4)}, {v(X1R+ks)} offset:{sl*16384}")
            ops.append(rx)
            for mt in range(3):
                for a in range(2):
                    def rw(mt=mt, a=a):
                        rt[(n, 'w', mt)] = p.lds(f"ds_read_b64_tr_b16 {v(FW+12*s+4*mt+2*a,2)}, {v(WR)} offset:{sl*12288+ks*3072+a*768+mt*64}")
                    ops.append(rw)
            return ops
        def mfmas(n):
            s = n & 1; ops = []
            for (mt, cp) in [(0, 0), (1, 0), (1, 1), (0, 1)]:
                def m(mt=mt, cp=cp):
                    if (mt, cp) == (0, 0): p.wait(lg=rt[(n, 'b', 1)])
                    d = v(ACC + 32 * mt + 16 * cp, 16)
                    p(f"{MF} {d}, {v(FA+8*s+4*mt,4)}, {v(FB+8*s+4*cp,4)}, {'0' if n == 0 else d}")
                ops.append(m)
            for mt in range(3):
                def m(mt=mt):
                    if mt == 0: p.wait(lg=rt[(n, 'w', 2)])
                    d = v(ZA + 16 * mt, 16)
                    p(f"{MF} {d}, {v(FW+12*s+4*mt,4)}, {v(FX+4*s,4)}, {'0' if n == 0 else d}")
                ops.append(m)
            return ops
        self.gemm_loop(3, reads, mfmas, dma, tick, 5, npro, {6: lambda: self.wsp_dma(0), 7: lambda: self.wsp_dma(1)} if not o.get('ul') else {7: lambda: [lambda: None] * 9 + self.wsp_dma(0) + self.wsp_dma(1)}, valu)
        self.stamp(1)
        def U(sg, cp): return ACC + 32 * (sg >> 3) + 16 * cp + 4 * ((sg & 7) >> 1) + 2 * (sg & 1)
        def step(hr, hi, sg, nr, ni, t0, t1):
            p = self.p; A = v(LB, 2)
            p(f"v_pk_fma_f32 {v(t0,2)}, {A}, {v(hr,2)}, {v(U(sg,0),2)} op_sel_hi:[0,1,1]")
            p(f"v_pk_fma_f32 {v(t1,2)}, {A}, {v(hi,2)}, {v(U(sg,1),2)} op_sel_hi:[0,1,1]")
            p(f"v_pk_fma_f32 {v(nr,2)}, {A}, {v(hi,2)}, {v(t0,2)} op_sel:[1,0,0] op_sel_hi:[1,1,1] neg_lo:[1,0,0] neg_hi:[1,0,0]")
            p(f"v_pk_fma_f32 {v(ni,2)}, {A}, {v(hr,2)}, {v(t1,2)} op_sel:[1,0,0] op_sel_hi:[1,1,1]")
        HA, HBb, T0, EX, E8, AD, GR, CQ = 128, 132, 136, 140, 144, 160, 164, 168
        SCR = 98304
        p(f"s_lshl_b32 s{SA}, s{WP}, 11\ns_add_u32 s{SA}, s{SA}, {SCR}")
        p(f"v_and_b32 {v(AD)}, 31, {v(VL)}\nv_lshlrev_b32 {v(AD)}, 6, {v(AD)}\nv_add_u32 {v(AD)}, s{SA}, {v(AD)}")
        p(f"v_lshrrev_b32 {v(AD+1)}, 5, {v(VL)}\nv_lshl_add_u32 {v(AD+1)}, {v(AD+1)}, 4, {v(AD)}\ns_lshl_b32 s{SA}, s{WT}, 5\nv_add_u32 {v(AD+1)}, s{SA}, {v(AD+1)}")
        Z1P = 192
        SZ0, SZ1 = SXL, SWL
        VA_ = 176
        MA, MB = SK + 2, SK + 4
        def z1st(u):
            mt, q = u >> 1, u & 1
            for i in range(4): p(f"v_cvt_pk_bf16_f32 {v(Z1P+4*u+i)}, {v(ZA+8*u+2*i)}, {v(ZA+8*u+2*i+1)}")
            r = v(Z1P + 4 * u, 4)
            p.vmem(f"buffer_store_dwordx4 {r}, {v(VA_ if u else VL16)}, {srd(SWS)}, s{SZ0 if u < 4 else SZ1} offen offset:{(u%4)*1024} sc1")
        p(f"s_lshl_b32 s{SA}, s{SRB}, 2\ns_add_u32 s{SA}, s{SA}, s{SWV}\ns_mul_i32 s{SA}, s{SA}, 45056\ns_mul_i32 s{SB_}, s{SCOL}, 6144\ns_add_u32 s{SA}, s{SA}, s{SB_}")
        p(f"s_add_u32 s{SZ0}, s{SA}, {Z1}\ns_add_u32 s{SZ1}, s{SZ0}, 4096\ns_cmp_lt_u32 s{SCOL}, 7\ns_cselect_b64 vcc, -1, 0")
        p(f"v_cndmask_b32 {v(VA_)}, {v(VOOB)}, {v(VL16)}, vcc")
        zs = [(lambda u=u: z1st(u)) for u in range(6)]
        self.run(zs[:2])
        p("s_barrier")
        def pass1():
            hr, hi = U(0, 0), U(0, 1)
            for sg in range(1, 16):
                nr, ni = (HA, HA + 2) if sg & 1 else (HBb, HBb + 2)
                step(hr, hi, sg, nr, ni, T0, T0 + 2)
                hr, hi = nr, ni
            self.p(f"v_mov_b32 {v(EX)}, {v(hr)}\nv_mov_b32 {v(EX+1)}, {v(hi)}\nv_mov_b32 {v(EX+2)}, {v(hr+1)}\nv_mov_b32 {v(EX+3)}, {v(hi+1)}")
        d2 = self.wsp_dma(2) + self.wsp_dma(3)
        self.run(merge(merge(self.cap(pass1), zs[2:]), d2[:7]))
        p.lds(f"ds_write_b128 {v(AD+1)}, {v(EX,4)}")
        p.wait_lg_all(); p("s_barrier")
        for i in range(4): p.lds(f"ds_read_b128 {v(E8+4*i,4)}, {v(AD)} offset:{16*i}")
        te = p.lg - 1
        self.run(d2[7:11])
        p(f"s_cmp_eq_u32 s{WT}, 0\ns_cselect_b32 s{SA}, 32, 0")
        p(f"v_cmp_gt_u32 vcc, s{SA}, {v(VL)}\nv_mov_b32 {v(GR+1)}, s{ST_T}\nv_mov_b32 {v(GR+3)}, s{ST_T}\nv_cndmask_b32 {v(T0)}, {v(VOOB)}, {v(VL16)}, vcc")
        p(f"s_lshl_b32 s{SC}, s{SCOL}, 14\ns_lshl_b32 s{SA}, s{WP}, 9\ns_add_u32 s{SC}, s{SC}, s{SA}\ns_add_u32 s{SC}, s{SC}, {EG}")
        p(f"s_lshl_b32 s{SA}, s{SRB}, 10\ns_add_u32 s{SA}, s{SA}, s{SC}")
        p.wait(lg=te); p("s_barrier")
        self.run(merge(self.cap(lambda: [cfma(E8 + 2 * q, L16, E8 + 2 * (q - 1), E8 + 2 * q) for q in range(1, 8)]), d2[11:15]))
        p(f"v_mov_b32 {v(GR)}, {v(E8+14)}\nv_mov_b32 {v(GR+2)}, {v(E8+15)}")
        p.vmem(f"buffer_store_dwordx4 {v(GR,4)}, {v(T0)}, {srd(SWS)}, s{SA} offen sc1")
        self.run(d2[15:])
        self.stamp(2)
        p(f"v_cmp_gt_u32 vcc, 32, {v(VL)}")
        w1 = p.label("w1"); w2 = p.label("w2")
        p(f"s_cmp_eq_u32 s{WT}, 0\ns_cbranch_scc0 {w1}")
        p(f"v_cndmask_b32 {v(CQ)}, {v(E8+2)}, 0, vcc\nv_cndmask_b32 {v(CQ+1)}, {v(E8+3)}, 0, vcc")
        p(f"v_cndmask_b32 {v(CQ+2)}, {v(E8+4)}, {v(E8)}, vcc\nv_cndmask_b32 {v(CQ+3)}, {v(E8+5)}, {v(E8+1)}, vcc")
        p(f"s_branch {w2}")
        p.put(w1)
        for k in range(4): p(f"v_cndmask_b32 {v(CQ+k)}, {v(E8+10+k)}, {v(E8+6+k)}, vcc")
        p.put(w2)
        Z1P = 192
        EGR, EO, EXP, ET = 80, 144, 152, 160
        def eo():
            p = self.p
            p(f"v_lshrrev_b32 {v(ET)}, 5, {v(VL)}\nv_sub_u32 {v(ET)}, s{SRB}, {v(ET)}\nv_add_u32 {v(ET)}, -1, {v(ET)}")
            p(f"v_and_b32 {v(ET+1)}, 31, {v(VL)}\nv_lshlrev_b32 {v(ET+1)}, 4, {v(ET+1)}\nv_mov_b32 {v(ET+3)}, s{ST_T}")
            for q in range(8):
                p(f"v_add_u32 {v(ET+2)}, {-2*q}, {v(ET)}\nv_cmp_le_i32 vcc, 0, {v(ET+2)}\nv_lshl_add_u32 {v(ET+2)}, {v(ET+2)}, 10, {v(ET+1)}")
                p(f"v_cndmask_b32 {v(EO+q)}, {v(VOOB)}, {v(ET+2)}, vcc\nv_cndmask_b32 {v(EXP+q)}, 0, {v(ET+3)}, vcc")
        lgw = lambda: p.wait(lg=p.lg - 1)
        self.run(merge(self.cap(lambda: (eo(), self.g_early(184))), self.wsp_dma(4) + self.wsp_read(0) + self.wsp_read(1)))
        et = {}
        def eload(q):
            et['t'] = p.vmem(f"buffer_load_dwordx4 {v(EGR+4*q,4)}, {v(EO+q)}, {srd(SWS)}, s{SC} offen sc1")
        for q in range(8): eload(q)
        ue = o.get('ue', 0)
        self.run([lgw] + self.wsp_dma(5) + (self.wsp_dma(6) if ue else []))
        if ue == 2: self.run(self.wsp_read(2) + [lgw] + self.wsp_dma(7))
        self.stamp(3)
        l = p.label("ep"); dl = p.label("ed")
        p.wait(vm=et['t'])
        p(f"s_mov_b32 s{SSPIN}, 0")
        p.put(l)
        p(f"v_mov_b32 {v(ET)}, 0")
        for q in range(8):
            p(f"v_xor_b32 {v(ET+1)}, {v(EXP+q)}, {v(EGR+4*q+1)}\nv_xor_b32 {v(ET+2)}, {v(EXP+q)}, {v(EGR+4*q+3)}\nv_or3_b32 {v(ET)}, {v(ET)}, {v(ET+1)}, {v(ET+2)}")
        p(f"v_cmp_ne_u32 vcc, 0, {v(ET)}\ns_cmp_eq_u64 vcc, 0\ns_cbranch_scc1 {dl}")
        for q in range(8): p(f"buffer_load_dwordx4 {v(EGR+4*q,4)}, {v(EO+q)}, {srd(SWS)}, s{SC} offen sc1")
        p("s_waitcnt vmcnt(0)")
        p(f"s_add_u32 s{SSPIN}, s{SSPIN}, 1\ns_cmp_lt_u32 s{SSPIN}, {SPIN}\ns_cbranch_scc1 {l}")
        p.put(dl)
        self.flag_prep(178)
        p(f"s_lshl_b32 s{SA}, s{SCOL}, 6\ns_lshl_b32 s{SB_}, s{SRB}, 2\ns_add_u32 s{SA}, s{SA}, s{SB_}\ns_add_u32 s{SA}, s{SA}, s{SWV}\ns_lshl_b32 s{SA}, s{SA}, 7\ns_add_u32 s{SA}, s{SA}, {Z1F}")
        self.flag(SA, 178)
        self.stamp(4)
        OP, OT, HO = 80, 144, 132
        MA, MB = SK + 2, SK + 4
        SH0, SH1 = SXB, SW1B
        def pass2a():
            p = self.p
            p(f"s_lshl_b32 s{SA}, s{SD}, 3\ns_add_u32 s{SA}, s{SA}, s{SCOL}\ns_lshl_b32 s{SA}, s{SA}, 14\ns_lshl_b32 s{SB_}, s{WP}, 12\ns_add_u32 s{SA}, s{SA}, s{SB_}")
            p(f"s_add_u32 s{SH0}, s{SA}, {HB}\ns_add_u32 s{SH1}, s{SH0}, 8192")
            p(f"v_lshrrev_b32 {v(T0)}, 5, {v(VL)}\nv_lshlrev_b32 {v(T0)}, 11, {v(T0)}\nv_and_b32 {v(T0+1)}, 31, {v(VL)}\nv_lshl_add_u32 {v(HO)}, {v(T0+1)}, 4, {v(T0)}")
            for k in range(1, 4): p(f"v_xor_b32 {v(HO+k)}, {64*k}, {v(HO)}")
            for q in range(8): p(f"v_mov_b32 {v(EGR+4*q+1)}, {v(EGR+4*q+2)}")
            S = EGR + 28
            for q in range(6, -1, -1): cfma(S, L256, S, EGR + 4 * q)
            p(f"v_mov_b32 {v(ET)}, {v(S)}\nv_mov_b32 {v(ET+1)}, {v(S+1)}\nv_permlane32_swap_b32 {v(S)}, {v(ET)}\nv_permlane32_swap_b32 {v(S+1)}, {v(ET+1)}")
            cfma(S, L128, ET, S)
            cfma(CQ, LQ0, S, CQ); cfma(CQ + 2, LQ1, S, CQ + 2)
            p(f"v_mov_b32 {v(HA)}, {v(CQ)}\nv_mov_b32 {v(HA+1)}, {v(CQ+2)}\nv_mov_b32 {v(HA+2)}, {v(CQ+1)}\nv_mov_b32 {v(HA+3)}, {v(CQ+3)}")
        def pass2(s0, s1):
            p = self.p
            Cc = v(CF, 2)
            for sg in range(s0, s1):
                hr, hi = (HA, HA + 2) if sg == 0 else (U(sg - 1, 0), U(sg - 1, 1))
                step(hr, hi, sg, U(sg, 0), U(sg, 1), T0, T0 + 2)
                hr, hi = U(sg, 0), U(sg, 1)
                oo = OT + 4 * (sg & 1) + 8 * ((sg >> 1) & 1)
                p(f"v_pk_mul_f32 {v(oo,2)}, {Cc}, {v(hr,2)} op_sel_hi:[0,1]")
                p(f"v_pk_mul_f32 {v(oo+2,2)}, {Cc}, {v(hi,2)} op_sel_hi:[0,1] neg_lo:[1,0] neg_hi:[1,0]")
                p(f"v_pk_fma_f32 {v(oo,2)}, {Cc}, {v(hi,2)}, {v(oo,2)} op_sel:[1,0,0] op_sel_hi:[1,1,1] neg_lo:[1,0,0] neg_hi:[1,0,0]")
                p(f"v_pk_fma_f32 {v(oo+2,2)}, {Cc}, {v(hr,2)}, {v(oo+2,2)} op_sel:[1,0,0] op_sel_hi:[1,1,1] neg_lo:[1,0,0] neg_hi:[1,0,0]")
                if sg & 1:
                    q, i = sg >> 3, (sg & 7) >> 1
                    for cp in range(2):
                        for e in range(2):
                            p(f"v_cvt_pk_bf16_f32 {v(OP+16*cp+8*e+4*q+i)}, {v(oo-4+2*cp+e)}, {v(oo+2*cp+e)}")
        def hst(cp, k):
            if o.get("x_nost"): return
            p.vmem(f"buffer_store_dwordx4 {v(OP+16*cp+4*k,4)}, {v(HO+k)}, {srd(SWS)}, s{SH0 if cp == 0 else SH1} offen offset:{512*k} sc1")
        uo = o.get("uo", 0)
        if uo:
            H1 = [(lambda cp=cp, k=k: hst(cp, k)) for k in (0, 2) for cp in range(2)]
            H2 = [(lambda cp=cp, k=k: hst(cp, k)) for k in (1, 3) for cp in range(2)]
            self.run(merge(self.cap(pass2a), self.wsp_read(2) + self.wsp_read(3)))
            self.run(merge(self.cap(lambda: pass2(0, 8)), (self.wsp_dma(6) if uo == 2 else []) + self.wsp_read(4)))
            self.run(merge(self.cap(lambda: pass2(8, 16)), H1))
            self.run(H2 + ([] if uo == 2 else self.wsp_dma(6)) + [lgw] + self.wsp_dma(7) + self.wsp_read(5))
            self.g_poll_issue()
            self.run(self.wsp_read(6) + self.wsp_read(7))
        else:
            if ue == 2:
                self.run(merge(self.cap(pass2a), self.wsp_read(3)))
                self.run(self.cap(lambda: pass2(0, 8)))
            elif ue:
                self.run(merge(self.cap(pass2a), self.wsp_read(2) + [lgw] + self.wsp_dma(7)))
                self.run(merge(self.cap(lambda: pass2(0, 8)), self.wsp_read(3)))
            else:
                self.run(merge(self.cap(pass2a), self.wsp_dma(6) + self.wsp_read(2) + [lgw]))
                self.run(merge(self.cap(lambda: pass2(0, 8)), self.wsp_dma(7) + self.wsp_read(3)))
            self.g_poll_issue()
            self.run(merge(merge(self.cap(lambda: pass2(8, 16)), [(lambda cp=cp, k=k: hst(cp, k)) for k in (0, 2) for cp in range(2)]), self.wsp_read(4) + self.wsp_read(5)))
            h2 = [(lambda cp=cp, k=k: hst(cp, k)) for k in (1, 3) for cp in range(2)]
            self.run(merge(self.wsp_read(6) + self.wsp_read(7), h2))
        p(f"s_lshl_b32 s{SLATE}, s{SE}, 7\ns_add_u32 s{SLATE}, s{SLATE}, {HF}")
        self.stamp(5)
        p(f"s_branch {self.LG}")

    CD, CR, HT, GY, WD, WT_ = 210, 214, 218, 240, 244, 228
    ZUP = [4, 6, 8, 10, 12, 14, 204, 206, 208, 248, 250, 252]
    YSL = [1, 1, 0, 1]
    YB = [96, 160, 96, 160]
    def wo_dma(self, parts):
        items = []
        for (i0, i1, base) in parts:
            for i in range(i0, i1):
                def cb(t, i=i): self.wo[i] = t
                k = i - i0
                items.append(((SREG, base + k * 1024) if k % 4 == 0 else None, (SXB, i * 8192) if k % 4 == 0 else None,
                              f"buffer_load_dwordx4 {v(self.WD+k%4)}, {srd(SWOUT)}, s{SDO} offen offset:{(k%4)*1024} lds", cb))
        return self.dseq(items)
    def c_setup(self):
        p = self.p
        self.plain_dma_addr(self.CD, 1024, 224)
        p(f"s_add_u32 s{SA}, s{SREG}, 4096")
        self.plain_read_addr(self.CR, SA, 224)
        p(f"s_add_u32 s{SA}, s{SREG}, {4096+8192}")
        self.unit_tr_addr(self.HT, SA, 224, False)
        p(f"s_lshl_b32 s{SCB}, s{SCOL}, 16\ns_lshl_b32 s{SA}, s{SWV}, 8\ns_add_u32 s{SCB}, s{SCB}, s{SA}")
        p(f"s_lshl_b32 s{SHB}, s{STB}, 17\ns_lshl_b32 s{SA}, s{SWV}, 15\ns_add_u32 s{SHB}, s{SHB}, s{SA}\ns_add_u32 s{SHB}, s{SHB}, {HB}")
        self.yt = {}
    def y_items(self, s):
        sl = self.YSL[s]; items = []
        def cb(t): self.yt[s] = t
        for hh in range(2):
            for i in range(4):
                items.append(((SREG, 4096 + sl * 20480 + hh * 4096), (SCB, (s >> 1) * 128 + hh * 32768),
                              f"buffer_load_dwordx4 {v(self.CD+i)}, {srd(SCIM if s & 1 else SCRE)}, s{SDO} offen offset:{i*1024} lds", cb))
        for hh in range(2):
            for i in range(4):
                items.append(((SREG, 4096 + sl * 20480 + 8192 + hh * 4096), (SHB, s * 8192 + hh * 4096),
                              f"buffer_load_dwordx4 {v(VL16)}, {srd(SWS)}, s{SDO} offen offset:{i*1024} sc1 lds", cb))
        return items
    def y_dma(self, s): return self.dseq(self.y_items(s))
    def y_read(self, s):
        p = self.p; sl = self.YSL[s]; ops = []
        self.yr = getattr(self, "yr", {})
        for ks in range(4):
            def f(ks=ks):
                p.wait(vm=self.yt[s], lg=p.lg - 10)
                b = self.YB[s] + 16 * ks
                for k in range(2):
                    p.lds(f"ds_read_b128 {ar(b+4*k,4)}, {v(self.CR+ks)} offset:{sl*20480+k*4096}")
                    for a in range(2):
                        self.yr[(s, ks)] = p.lds(f"ds_read_b64_tr_b16 {ar(b+8+4*k+2*a,2)}, {v(self.HT+a)} offset:{sl*20480+(ks>>1)*4096+k*2048+(ks&1)*256}")
            ops.append(f)
        return ops
    def phase_g(self):
        p = self.p; o = self.o
        p.c("==== phase B: G ====")
        p.put(self.LG)
        p.vm_done = -1; p.lg_done = -1
        ACC, FA, TR, T = 16, 112, self.GTR, 186
        Z1R, BI, PV, WD, PL, PL2, PL3, OGV = 190, 202, 203, self.WD, self.GPL, 222, 234, 241
        Q = SK + 9
        AOFF = 24576
        lgw = lambda: p.wait(lg=p.lg - 1)
        p(f"s_mov_b32 s{SCOL}, s{SJ}")
        def late_setup():
            p = self.p
            p(f"s_lshl_b32 s{SE}, s{STB}, 11\ns_add_u32 s{SE}, s{SE}, {HF}")
            p(f"s_lshl_b32 s{SA}, s{SZI}, 7\ns_add_u32 s{SA}, s{SA}, {Z1F}")
            p.atom(f"s_sub_u32 s{SB_}, s{SA}, 8192\ns_cmp_eq_u32 s{SCOL}, 0\ns_cselect_b32 s{SB_}, s{SA}, s{SB_}")
            self.poll_addr(PL3, [(SE, 16), (SA, 1), (SB_, 1)])
            p(f"s_lshr_b32 s{SA}, s{STB}, 1\ns_lshl_b32 s{SA}, s{SA}, 9\ns_add_u32 s{SA}, s{SA}, {ZF2}")
            p(f"v_bfe_u32 {v(T)}, {v(VL)}, 2, 3\nv_lshlrev_b32 {v(T)}, 13, {v(T)}\nv_and_b32 {v(T+1)}, 3, {v(VL)}\nv_lshl_add_u32 {v(T)}, {v(T+1)}, 7, {v(T)}\nv_add_u32 {v(T)}, s{SA}, {v(T)}")
            p(f"s_mov_b32 vcc_lo, 0\ns_mov_b32 vcc_hi, -1\nv_cndmask_b32 {v(PL3)}, {v(PL3)}, {v(T)}, vcc")
            self.flag_prep(220)
            p(f"v_lshrrev_b32 {v(T)}, 3, {v(VL)}\nv_lshlrev_b32 {v(T)}, 10, {v(T)}")
            p(f"v_bfe_u32 {v(T+1)}, {v(VL)}, 4, 1\nv_lshlrev_b32 {v(T+1)}, 2, {v(T+1)}\nv_and_b32 {v(T+2)}, 7, {v(VL)}\nv_xor_b32 {v(T+1)}, {v(T+1)}, {v(T+2)}")
            p(f"v_lshl_add_u32 {v(WD)}, {v(T+1)}, 4, {v(T)}")
            for i in range(1, 4): p(f"v_add_u32 {v(WD+i)}, {i*7168}, {v(WD)}")
            p(f"s_mul_i32 s{SXB}, s{SWV}, {176*1024}\ns_lshl_b32 s{SA}, s{SCOL}, 7\ns_add_u32 s{SXB}, s{SXB}, s{SA}")
            self.panel_tr_addr(self.WT_, SREG, 224, False)
        p(f"s_lshr_b32 s{Q}, s{SWV}, 1\ns_and_b32 s{SC}, s{SZI}, 63")
        GT1 = 227
        self.slice_z2(SJ)
        p(f"s_lshl_b32 s{SA}, s{SNU}, 3\ns_sub_i32 s{SA}, s{SA}, 64\nv_and_b32 {v(T)}, 31, {v(VL)}\nv_cmp_gt_i32 vcc, s{SA}, {v(T)}\ns_lshl_b32 s{SF}, s{Q}, 1\ns_add_u32 s{SD}, s{SF}, 8\nv_cndmask_b32 {v(TR+1)}, {v(VOOB)}, {v(VL16)}, vcc")
        p(f"s_cmp_gt_u32 s{SNU}, 4\ns_cselect_b64 vcc, -1, 0\nv_cndmask_b32 {v(GT1)}, {v(VOOB)}, {v(VL16)}, vcc")
        p(f"s_cmp_lt_u32 s{SD}, s{SNU}\ns_cselect_b64 vcc, -1, 0\nv_cndmask_b32 {v(PV)}, {v(VOOB)}, {v(VL16)}, vcc")
        p(f"s_lshl_b32 s{SA}, s{SC}, 5\nv_add_lshl_u32 {v(T)}, {v(T)}, s{SA}, 1")
        p.vmem(f"global_load_ushort {v(BI)}, {v(T)}, {sp(PBSP)}")
        p(f"s_add_u32 s{SF}, s{SF}, s{SU0}\ns_lshl_b32 s{SF}, s{SF}, 9\ns_mul_i32 s{SPO}, s{SC}, 45056\ns_add_u32 s{SPO}, s{SPO}, s{SF}\ns_add_u32 s{SD}, s{SPO}, {Z1}")
        p(f"v_and_b32 {v(PL2)}, 31, {v(VL)}\nv_lshlrev_b32 {v(PL2)}, 2, {v(PL2)}")
        p.wait_lg_all()
        self.stamp(6)
        l = p.label("gp"); dn = p.label("gd")
        p(f"s_waitcnt vmcnt({1 if o.get('uo') else 9})")
        p(f"s_cmp_ge_u32 s2, 128\ns_cbranch_scc1 {l}\ns_waitcnt vmcnt({7 if o.get('zsched', 0) else 0})")
        p.put(l)
        p(f"v_cmp_ne_u32 vcc, s{ST_T}, {v(PL+1)}\ns_and_b32 vcc_hi, vcc_hi, 0xffff\ns_or_b32 s{SF}, vcc_lo, vcc_hi\ns_cbranch_scc0 {dn}")
        self.poll(PL, 48)
        p.put(dn)
        p("s_barrier")
        g0 = p.vm
        def late_flag():
            nf = p.label("nf")
            p(f"s_cmp_eq_u32 s{SLATE}, 0\ns_cbranch_scc1 {nf}")
            p(f"s_waitcnt vmcnt({p.vm - g0})")
            p(f"buffer_store_dword {v(220)}, {v(221)}, {srd(SWS)}, s{SLATE} offen sc1")
            p.put(nf)
        p.vm_done = -1
        self.stamp(7)
        def soff(B): return ((B & 3) >> 1) * 40960 + (B & 1) * 12288
        tick = {}
        def dma(B):
            items = []
            for i in range(6):
                def cb(t): tick[B] = t
                g = i // 4
                txt = f"buffer_load_dwordx4 {v([VL16, GT1, VL16, GT1, TR + 1, TR + 1][i])}, {srd(SWS)}, s{SDO} offen offset:{(i%4)*1024} sc1 lds"
                items.append(((SGL, soff(B) + g * 4096) if i % 4 == 0 else None, (SGB, B * 12288 + g * 4096) if i % 4 == 0 else None, txt, cb))
            return self.dseq(items)
        z1t = {}
        def z1load():
            p.vmem(f"buffer_load_dwordx4 {v(Z1R,4)}, {v(VL16)}, {srd(SWS)}, s{SD} offen sc1")
            p.vmem(f"buffer_load_dwordx4 {v(Z1R+4,4)}, {v(GT1)}, {srd(SWS)}, s{SD} offen offset:2048 sc1")
            p(f"s_add_u32 s{SD}, s{SD}, 4096")
            z1t['t'] = p.vmem(f"buffer_load_dwordx4 {v(Z1R+8,4)}, {v(PV)}, {srd(SWS)}, s{SD} offen sc1")
        def z2touch(b0=2):
            p(f"s_bfe_u32 s{SA}, s2, 0x20006\ns_mul_i32 s{SB_}, s{SA}, 1536\ns_add_u32 s{SA}, s{SGB}, s{SB_}\ns_add_u32 s{SA}, s{SA}, {b0*12288}")
            p(f"v_mul_u32_u24 {v(230)}, 43, {v(VL)}\nv_lshrrev_b32 {v(230)}, 9, {v(230)}\nv_mul_u32_u24 {v(231)}, 12, {v(230)}\nv_sub_u32 {v(231)}, {v(VL)}, {v(231)}")
            p(f"v_mul_u32_u24 {v(230)}, 12288, {v(230)}\nv_lshl_add_u32 {v(230)}, {v(231)}, 7, {v(230)}")
            p.vmem(f"buffer_load_dword {v(231)}, {v(230)}, {srd(SWS)}, s{SA} offen sc1")
        zt2 = o.get("zt2", 0)
        if zt2 == 2: z2touch(0)
        self.run(dma(0))
        if zt2 == 3: z2touch(1)
        self.run(merge(self.cap(lambda: (late_setup(), self.c_setup())), dma(1)))
        if zt2 == 1: z2touch(2)
        if zt2 in (2, 3):
            p(f"s_add_u32 s{SA}, s{SGB}, {(5 if zt2 == 2 else 6)*12288}\ns_bfe_u32 s{SB_}, s2, 0x20006\ns_mul_i32 s{SB_}, s{SB_}, 1536\ns_add_u32 s{SA}, s{SA}, s{SB_}")
            p(f"v_cmp_gt_u32 vcc, {36 if zt2 == 2 else 24}, {v(VL)}\ns_nop 1\nv_cndmask_b32 {v(230)}, {v(VOOB)}, {v(230)}, vcc")
            p.vmem(f"buffer_load_dword {v(231)}, {v(230)}, {srd(SWS)}, s{SA} offen sc1")
        def gyl():
            p(f"s_lshl_b32 s{SA}, s{STB}, 8\ns_add_u32 s{SA}, s{SA}, {GATE}")
            p.vmem(f"buffer_load_dword {v(self.GY)}, {v(PL2)}, {srd(SWS)}, s{SA} offen sc1")
            p.vmem(f"buffer_load_dword {v(self.GY+2)}, {v(PL2)}, {srd(SWS)}, s{SA} offen offset:128 sc1")
            p(f"s_lshl_b32 s{SA}, s{SC}, 7\ns_add_u32 s{SA}, s{SA}, {GATE}")
            p.vmem(f"buffer_load_dword {v(OGV)}, {v(PL2)}, {srd(SWS)}, s{SA} offen sc1")
        def z1gelu():
            c1 = -2 * LOG2E * 0.7978845608028654
            self.VC0 = 188
            self.p(f"s_mov_b32 s{SK}, {f2u(c1*0.044715)}\nv_mov_b32 {v(188)}, {f2u(c1)}")
            for i in range(12): self.unpack(self.ZUP[i], Z1R + i)
            self.gelu_many(self.ZUP, [24, 26, 28, 30])
        lt = {}
        def issue(r):
            lt[r] = p.vmem(f"buffer_load_dword {v(r+1)}, {v(r)}, {srd(SWS)}, 0 offen sc1")
        def check(r, mask):
            l = p.label("lp"); d = p.label("ld")
            p.wait(vm=lt[r])
            p(f"s_mov_b32 s{SSPIN}, 0")
            p.put(l)
            p(f"v_cmp_ne_u32 vcc, s{ST_T}, {v(r+1)}\ns_and_b32 s{SF}, vcc_lo, {mask}\ns_or_b32 s{SF}, s{SF}, vcc_hi\ns_cbranch_scc0 {d}")
            p(f"buffer_load_dword {v(r+1)}, {v(r)}, {srd(SWS)}, 0 offen sc1\ns_waitcnt vmcnt(0)")
            p(f"s_add_u32 s{SSPIN}, s{SSPIN}, 1\ns_cmp_lt_u32 s{SSPIN}, {SPIN}\ns_cbranch_scc1 {l}")
            p.put(d)
        rt = {}
        def fset(hb): return FA + 24 * (2 if hb == 15 else hb & 1)
        FO = [(0, 0), (0, 1), (0, 2), (1, 0), (1, 1), (1, 2)]; FP = {(0, 0): 0, (0, 1): 1, (1, 0): 2, (1, 1): 3, (0, 2): 4, (1, 2): 5}
        def reads(hb):
            B, e = hb >> 1, hb & 1; ops = []
            for (ks, mt) in FO:
                def ra(ks=ks, mt=mt):
                    rt[(hb, ks, mt)] = p.lds(f"ds_read_b128 {v(fset(hb)+12*ks+4*mt,4)}, {v(TR)} offset:{soff(B)+e*6144+FP[(ks,mt)]*1024}")
                ops.append(ra)
            return ops
        def mf(hb, ks, mt, nt):
            def m():
                p.wait(lg=rt[(hb, ks, 2 if hb < 14 else mt)])
                d = v(ACC + 16 * (2 * mt + nt), 16); kap = 2 * hb + ks
                p(f"{MF} {d}, {v(fset(hb)+12*ks+4*mt,4)}, {ar((kap*2+nt)*4,4)}, {'0' if kap == 0 else d}")
            return m
        self.wo = wo = {}
        def WOA(kap): return (kap - 8) * 8 if kap >= 8 else 24 + kap * 8
        def wo_rd(kap):
            def f():
                p.wait(vm=wo[2 * kap + 1], lg=p.lg - 12)
                for mt in range(2):
                    for a in range(2):
                        base = AOFF + (kap if kap < 8 else kap - 8) * 2048
                        p.lds(f"ds_read_b64_tr_b16 {ar(WOA(kap)+4*mt+2*a,2)}, {v(self.WT_+mt)} offset:{base+a*512}")
            return f
        p.wait(vm=tick[0]); p("s_barrier")
        self.run(reads(0))
        wa = self.wo_dma([(16, 22, AOFF)])
        def wb(i0, i1): return self.wo_dma([(i0, i1, AOFF + i0 * 1024)])
        y0 = self.y_dma(0)
        y1 = self.y_dma(1)
        yc0 = self.dseq(self.y_items(0)[:8]); yc0b = self.dseq(self.y_items(0)[:4]);
        def ypart(s_, a, b): return self.dseq(self.y_items(s_)[a:b])
        extra = {0: dma(2), 1: dma(3), 2: wa, 4: [wo_rd(8), wo_rd(9), wo_rd(10), lgw] + wb(0, 3), 5: wb(3, 4), 6: wb(4, 9) + [gyl], 7: wb(9, 10), 8: wb(10, 16) + [lambda: issue(PL3)],
                 10: [wo_rd(k) for k in range(8)] + [lgw] + ypart(0, 0, 2), 11: ypart(0, 2, 8) + [z1load], 12: ypart(0, 8, 13), 13: ypart(0, 13, 16)}
        gl = o.get("gl", 0)
        if gl:
            self.YSL = [0, 1, 0, 1]
            y0, y1 = self.y_dma(0), self.y_dma(1)
            extra = {0: dma(2), 1: dma(3), 2: wa[:4], 3: wa[4:], 5: [wo_rd(8), wo_rd(9), wo_rd(10)], 6: [lgw] + wb(0, 3) + [gyl], 7: wb(3, 4), 8: wb(4, 8) + [lambda: issue(PL3)],
                     9: wb(8, 11), 10: wb(11, 14), 11: wb(14, 16) + [z1load]}
            extra[3] = extra[3]
        gel = {}
        for hb in range(14):
            if o.get("gstamps") and hb % 2 == 0: self.stamp(21 + hb // 2)
            B = hb >> 1
            if hb & 1:
                p.wait(vm=tick[B + 1], lg=p.lg - 1); p("s_barrier")
            if hb == 11:
                check(PL3, 0x3ffff)
                if o.get("ht"):
                    p(f"s_lshl_b32 s{SA}, s{STB}, 17\ns_lshl_b32 s{SB_}, s{SCOL}, 14\ns_add_u32 s{SA}, s{SA}, s{SB_}\ns_lshl_b32 s{SB_}, s{SWV}, 12\ns_add_u32 s{SA}, s{SA}, s{SB_}\ns_add_u32 s{SA}, s{SA}, {HB}")
                    p(f"v_and_b32 {v(230)}, 31, {v(VL)}\nv_lshlrev_b32 {v(230)}, 7, {v(230)}")
                    p.vmem(f"buffer_load_dword {v(231)}, {v(230)}, {srd(SWS)}, s{SA} offen sc1")
            mm = [mf(hb, ks, mt, nt) for ks in range(2) for mt in range(3) for nt in range(2)]
            rd = reads(hb + 1) + (reads(15) if hb == 13 else [])
            seq = merge(mm, rd, 0, 8 if hb == 13 else 6)
            f = list(extra.get(hb, []))
            if hb & 1 and B + 4 < 8: f = f + dma(B + 4)
            if f: seq = merge(seq, f, len(seq) // 4)
            if hb in gel: seq = merge(seq, gel[hb])
            if hb == o.get("hflag", 3): seq = seq + [late_flag]
            self.run(seq)
        VW, VRD = T, T + 1
        p(f"s_xor_b32 s{SA}, s{SWV}, 2\ns_mul_i32 s{SA}, s{SA}, 40960\nv_add_u32 {v(VW)}, s{SREG}, {v(VL16)}\nv_add_u32 {v(VRD)}, s{SA}, {v(VL16)}")
        def roff(i): return i * 1024
        def rw(ti):
            return [(lambda hq=hq: p.lds(f"ds_write_b128 {v(VW)}, {v(ACC+16*ti+8+4*hq,4)} offset:{roff(2*ti+hq)}")) for hq in range(2)]
        tiles = [1, 3, 5, 0, 2, 4]
        for n_, ti in enumerate(tiles):
            mm = [mf(hb, ks, ti >> 1, ti & 1) for hb in (14, 15) for ks in range(2)]
            f = (rw(tiles[n_ - 2]) if n_ >= 2 else [])
            self.run(merge(mm, f))
        self.stamp(8)
        yl = o.get('y0late', 0) or gl
        self.run(merge([] if yl else self.y_read(0), rw(tiles[4]) + rw(tiles[5])) if not yl else rw(tiles[4]) + rw(tiles[5]))
        p.wait_lg_all(); p("s_barrier")
        RB = 112
        tk = {}
        for n_, ti in enumerate(tiles):
            for hq in range(2): tk[(ti, hq)] = p.lds(f"ds_read_b128 {v(RB+8*ti+4*hq,4)}, {v(VRD)} offset:{roff(2*ti+hq)}")
        if not yl: self.run(y1[:3])
        def radd(ti):
            for hq in range(2):
                p.wait(lg=tk[(ti, hq)])
                for hh in range(2): p(f"v_pk_add_f32 {v(ACC+16*ti+4*hq+2*hh,2)}, {v(ACC+16*ti+4*hq+2*hh,2)}, {v(RB+8*ti+4*hq+2*hh,2)}")
        XS = [40, 44, 56, 60]; XR = [72, 76, 88, 92]
        p(f"s_lshl_b32 s{SA}, s2, 2\ns_add_u32 s{SA}, s{SA}, s{SWV}\ns_lshl_b32 s{SA}, s{SA}, 12\ns_add_u32 s{SA}, s{SA}, {XB}\ns_xor_b32 s{SE}, s{SA}, {(64 if o.get('xl') else 1) * 16384}")
        for g in range(4): p(f"v_mov_b32 {v(XS[g]+3)}, s{ST_T}")
        for ti in (1, 3, 5): radd(ti)
        for i in range(12):
            src = ACC + 16 * (2 * (i >> 2) + 1) + 2 * (i & 3)
            p(f"v_cvt_pk_bf16_f32 {v(XS[i//3]+i%3)}, {v(src)}, {v(src+1)}")
            if i % 3 == 2: p.vmem(f"buffer_store_dwordx4 {v(XS[i//3],4)}, {v(VL16)}, {srd(SWS)}, s{SA} offen offset:{(i//3)*1024} {o.get('xm', 'sc1')}")
        if yl and not gl: self.run(self.y_read(0))
        for ti in (0, 2, 4): radd(ti)
        if yl and not gl: self.run([lgw] + y1[:3])
        p("s_barrier")
        self.stamp(9)

        p.c("==== phase C ====")
        YA, PA = 112, 16
        XE, GE, DE, OV, P10, PLP, TC = 186, 194, 198, 184, 185, 222, 64
        RW, RX, WA, RA = 176, 177, 180, 230
        SROW, SXO, SPB_ = SXL, SWL, SW1B
        ep = {}
        def setup():
            p = self.p; T = TC
            p(f"v_lshrrev_b32 {v(T)}, 4, {v(VL)}\nv_and_b32 {v(T+1)}, 15, {v(VL)}")
            p(f"v_lshlrev_b32 {v(T+2)}, 10, {v(T)}\nv_lshl_add_u32 {v(T+2)}, {v(T+1)}, 3, {v(T+2)}")
            p(f"v_lshlrev_b32 {v(T+3)}, 2, {v(T)}\nv_lshlrev_b32 {v(T+4)}, 3, {v(T+1)}")
            p(f"v_lshlrev_b32 {v(OV)}, 1, {v(T+2)}")
            p(f"s_lshl_b32 s{SROW}, s{STB}, 6\ns_lshl_b32 s{SA}, s{SWV}, 4\ns_add_u32 s{SROW}, s{SROW}, s{SA}")
            p(f"s_lshl_b32 s{SXO}, s{SROW}, 10\ns_lshl_b32 s{SA}, s{SCOL}, 7\ns_add_u32 s{SXO}, s{SXO}, s{SA}\nv_add_u32 {v(T+4)}, s{SA}, {v(T+4)}")
            p(f"s_lshl_b32 s{SA}, s{STB}, 12\ns_lshl_b32 s{SB_}, s{SWV}, 10\ns_add_u32 s{SB_}, s{SB_}, s{SA}\ns_add_u32 s{SB_}, s{SB_}, {PF}")
            self.poll_addr(PLP, [(SB_, 8)])
            p.atom(f"s_cmp_eq_u32 s{SWV}, 3\ns_cselect_b64 vcc, -1, 0")
            p(f"v_cndmask_b32 {v(P10)}, {v(VL16)}, {v(VOOB)}, vcc")
            p(f"s_mul_i32 s{SPB_}, s{STB}, {2*45056}\ns_mul_i32 s{SA}, s{SWV}, {22*512}\ns_add_u32 s{SPB_}, s{SPB_}, s{SA}\ns_add_u32 s{SPB_}, s{SPB_}, {PB}")
            p(f"s_add_u32 s{SA}, s{SREG}, 4096\nv_and_b32 {v(RW)}, 31, {v(VL)}\nv_lshlrev_b32 {v(RW)}, 8, {v(RW)}\nv_add_u32 {v(RW)}, s{SA}, {v(RW)}")
            p(f"v_lshrrev_b32 {v(RX)}, 5, {v(VL)}\nv_and_b32 {v(RX+1)}, 7, {v(VL)}\nv_xor_b32 {v(RX)}, {v(RX)}, {v(RX+1)}\nv_lshlrev_b32 {v(RX)}, 4, {v(RX)}")
            for i in range(4): p(f"v_xor_b32 {v(WA+i)}, {32*i}, {v(RX)}\nv_add_u32 {v(WA+i)}, {v(WA+i)}, {v(RW)}")
            p(f"v_xor_b32 {v(T+1)}, {v(T+1)}, {v(T)}\nv_lshlrev_b32 {v(T+1)}, 4, {v(T+1)}")
            p(f"v_lshlrev_b32 {v(T)}, 8, {v(T)}\ns_lshl_b32 s{SA}, s{SWV}, 12\ns_add_u32 s{SA}, s{SA}, 4096\nv_add_u32 {v(T)}, s{SA}, {v(T)}")
            p(f"v_add_u32 {v(RA)}, {v(T)}, {v(T+1)}\nv_xor_b32 {v(T+1)}, 64, {v(T+1)}\nv_add_u32 {v(RA+1)}, {v(T)}, {v(T+1)}")
            p(f"v_add_u32 {v(RA+2)}, 81920, {v(RA)}\nv_add_u32 {v(RA+3)}, 81920, {v(RA+1)}")
            p(f"s_lshr_b32 s{SLATE}, s{SC}, 1\ns_lshl_b32 s{SLATE}, s{SLATE}, 3\ns_add_u32 s{SLATE}, s{SLATE}, s{SCOL}\ns_lshl_b32 s{SLATE}, s{SLATE}, 1\ns_add_u32 s{SLATE}, s{SLATE}, s{SKH}")
            p(f"s_lshl_b32 s{SLATE}, s{SLATE}, 1\ns_add_u32 s{SLATE}, s{SLATE}, s{Q}\ns_lshl_b32 s{SLATE}, s{SLATE}, 7\ns_add_u32 s{SLATE}, s{SLATE}, {PF}")
            p(f"s_add_u32 s{SD}, s{SPO}, {PB}")
            p(f"v_lshlrev_b32 {v(BI)}, 16, {v(BI)}\nv_sub_f32 {v(178)}, 1.0, {v(OGV)}\nv_mul_f32 {v(179)}, {v(178)}, {v(BI)}")
        def eloads():
            T = TC
            for gi in range(4):
                p(f"s_add_u32 s{SA}, s{SXO}, {gi*4096}")
                p.vmem(f"buffer_load_dwordx2 {v(XE+2*gi,2)}, {v(T+2)}, {srd(SX)}, s{SA} offen")
            p(f"s_lshl_b32 s{SA}, s{SROW}, 2\ns_add_u32 s{SA}, s{SA}, {GATE}")
            for gi in range(4): p.vmem(f"buffer_load_dword {v(GE+gi)}, {v(T+3)}, {srd(SWS)}, s{SA} offen offset:{gi*16} sc1")
            ep['t'] = p.vmem(f"global_load_dwordx2 {v(DE,2)}, {v(T+4)}, {sp(PDSK)}")
        T4 = [(0, 0), (1, 0), (1, 1), (0, 1)]
        def ym(s):
            ops = []
            for ks in range(4):
                for (mt, nt) in T4:
                    def m(ks=ks, mt=mt, nt=nt):
                        p.wait(lg=self.yr[(s, ks)])
                        d = v(YA + 16 * (2 * mt + nt), 16); b = self.YB[s] + 16 * ks
                        p(f"{MF} {d}, {ar(b+4*mt,4)}, {ar(b+8+4*nt,4)}, {'0' if (s, ks) == (0, 0) else d}")
                    ops.append(m)
            return ops
        pt = {}
        def ploads():
            ops = []
            for nt in range(2):
                for kap in range(11):
                    def f(kap=kap, nt=nt):
                        if kap % 4 == 0: p(f"s_add_u32 s{SB_}, s{SPB_}, {nt*45056+kap*1024}")
                        pt[(kap, nt)] = p.vmem(f"buffer_load_dwordx4 {v(PA+(kap*2+nt)*4,4)}, {v(P10 if kap == 10 else VL16)}, {srd(SWS)}, s{SB_} offen offset:{(kap%4)*1024} sc1")
                    ops.append(f)
            return ops
        xt = {}
        def xload():
            for g in range(4): xt['t'] = p.vmem(f"buffer_load_dwordx4 {v(XR[g],4)}, {v(VL16)}, {srd(SWS)}, s{SE} offen offset:{g*1024} sc1")
        def xcheck():
            l = p.label("xp"); d = p.label("xd")
            p.wait(vm=xt['t'])
            p(f"s_mov_b32 s{SSPIN}, 0")
            p.put(l)
            p(f"v_xor_b32 {v(32)}, s{ST_T}, {v(XR[0]+3)}\nv_xor_b32 {v(33)}, s{ST_T}, {v(XR[1]+3)}\nv_xor_b32 {v(34)}, s{ST_T}, {v(XR[2]+3)}\nv_xor_b32 {v(35)}, s{ST_T}, {v(XR[3]+3)}")
            p(f"v_or3_b32 {v(32)}, {v(32)}, {v(33)}, {v(34)}\nv_or_b32 {v(32)}, {v(32)}, {v(35)}")
            p(f"v_cmp_ne_u32 vcc, 0, {v(32)}\ns_cmp_eq_u64 vcc, 0\ns_cbranch_scc1 {d}")
            for g in range(4): p(f"buffer_load_dwordx4 {v(XR[g],4)}, {v(VL16)}, {srd(SWS)}, s{SE} offen offset:{g*1024} sc1")
            p("s_waitcnt vmcnt(0)")
            p(f"s_add_u32 s{SSPIN}, s{SSPIN}, 1\ns_cmp_lt_u32 s{SSPIN}, {SPIN}\ns_cbranch_scc1 {l}")
            p.put(d)
        PK = [24, 28, 104]
        def pepi(mt):
            p = self.p
            for i in range(4 * mt, 4 * mt + 4): self.unpack(32 + 2 * (i & 3), XR[i // 3] + i % 3)
            for i in range(4):
                a = ACC + 32 * mt + 2 * i
                p(f"v_pk_add_f32 {v(a,2)}, {v(a,2)}, {v(32+2*i,2)}")
            for i in range(4):
                a = ACC + 32 * mt + 2 * i
                p(f"v_pk_fma_f32 {v(a,2)}, {v(a,2)}, {v(178,2)}, {v(178,2)} op_sel:[0,0,1] op_sel_hi:[1,0,1]")
            for i in range(4):
                a = ACC + 32 * mt + 2 * i
                p(f"v_pk_mul_f32 {v(a,2)}, {v(a,2)}, {v(self.ZUP[4*mt+i],2)}")
            for i in range(4):
                a = ACC + 32 * mt + 2 * i
                p(f"v_cvt_pk_bf16_f32 {v(PK[mt]+i)}, {v(a)}, {v(a+1)}")
        def pflag():
            p.wait(vm=ep['p']); self.flag(SLATE, 220)
        su = self.cap(setup)
        y2, y3, pl_ = self.y_dma(2), self.y_dma(3), ploads()
        sent = 1
        zg = [lambda: p.wait(vm=z1t['t'])] + self.cap(z1gelu)
        c1_ = o.get("c1", 9); c2_ = o.get("c2", 16)
        def pe():
            pepi(0); p.vmem(f"buffer_store_dwordx4 {v(PK[0],4)}, {v(VL16)}, {srd(SWS)}, s{SD} offen {o.get('pm', 'sc1')}")
            pepi(1); p.vmem(f"buffer_store_dwordx4 {v(PK[1],4)}, {v(GT1)}, {srd(SWS)}, s{SD} offen offset:2048 {o.get('pm', 'sc1')}")
            p(f"s_add_u32 s{SD}, s{SD}, 4096")
            pepi(2); ep['p'] = p.vmem(f"buffer_store_dwordx4 {v(PK[2],4)}, {v(PV)}, {srd(SWS)}, s{SD} offen {o.get('pm', 'sc1')}")
        if gl:
            g1, g2 = o.get("g1", 6), o.get("g2", 17)
            w_ = merge(zg + su, [wo_rd(k) for k in range(8)])
            h_ = len(w_) * o.get("xat", 50) // 100
            self.run(merge(w_[:h_], y0[:g1]) + [xload] + merge(w_[h_:], y0[g1:g2]))
            self.run(y0[g2:] + [lgw] + y1[:o.get("g3", 1)])
            xcheck()
            self.stamp(10)
            pe()
            self.run(y1[o.get("g3", 1):12])
            self.run(merge(self.y_read(0), y1[12:]))
            self.run(merge(ym(0), [lgw] + y2[:9]))
            self.run(merge(self.y_read(1), y2[9:13]))
            y3a = 4
            self.run(merge(ym(1), y2[13:] + [lgw] + y3[:y3a]))
        else:
            nx = y1[3:] + y2
            self.run(merge(zg, nx[:c1_]))
            xload()
            self.run(merge(merge(ym(0), su), nx[c1_:c2_]))
            if o.get('ee'): eloads()
            xcheck()
            self.stamp(10)
            pepi(0); p.vmem(f"buffer_store_dwordx4 {v(PK[0],4)}, {v(VL16)}, {srd(SWS)}, s{SD} offen {o.get('pm', 'sc1')}")
            pepi(1); p.vmem(f"buffer_store_dwordx4 {v(PK[1],4)}, {v(GT1)}, {srd(SWS)}, s{SD} offen offset:2048 {o.get('pm', 'sc1')}")
            p(f"s_add_u32 s{SD}, s{SD}, 4096")
            pepi(2); ep['p'] = p.vmem(f"buffer_store_dwordx4 {v(PK[2],4)}, {v(PV)}, {srd(SWS)}, s{SD} offen {o.get('pm', 'sc1')}")
            c3_ = max(c2_, 18)
            self.run(nx[c2_:c3_])
            self.run(merge(self.y_read(1), nx[c3_:c3_ + 4]))
            y3a = o.get('y3a', 3)
            self.run(merge(ym(1), nx[c3_ + 4:] + [lgw] + y3[:y3a]))
        self.stamp(11)
        self.run(y3[y3a:9])
        def ptouch():
            p(f"s_mul_i32 s{SA}, s{STB}, {2*45056}\ns_lshl_b32 s{SB_}, s{SCOL}, 2\ns_add_u32 s{SB_}, s{SB_}, s{SWV}\ns_mul_i32 s{SB_}, s{SB_}, 2816\ns_add_u32 s{SA}, s{SA}, s{SB_}\ns_add_u32 s{SA}, s{SA}, {PB}")
            p(f"v_min_u32 {v(222)}, 21, {v(VL)}\nv_lshlrev_b32 {v(222)}, 7, {v(222)}")
            p.vmem(f"buffer_load_dword {v(223)}, {v(222)}, {srd(SWS)}, s{SA} offen sc1")
        self.run(merge(self.y_read(2), y3[9:13]) + ([ptouch] if o.get("pt") else []))
        self.run(merge(ym(2), y3[13:] + ([] if o.get('ee') else [eloads]) + pl_[:o.get('p2', 0)]))
        pl_ = pl_[o.get('p2', 0):]
        self.stamp(12)
        pa_ = o.get("pa", 4)
        self.run(merge(self.y_read(3), pl_[:pa_]))
        DU = 104; XP = [4, 8, 12, 108]
        def xpart():
            p = self.p
            self.unpack(DU, DE); self.unpack(DU + 2, DE + 1)
            for gi in range(4):
                x = XP[gi]
                self.unpack(x, XE + 2 * gi); self.unpack(x + 2, XE + 2 * gi + 1)
                for k in range(4): p(f"v_mul_f32 {v(x+k)}, {v(x+k)}, {v(DU+k)}")
                for k in range(4): p(f"v_mul_f32 {v(x+k)}, {v(x+k)}, {v(GE+gi)}")
        self.run(merge(merge(ym(3), pl_[pa_:pa_ + 8]), ([lambda: p.wait(vm=ep['t'])] + self.cap(xpart)) if o.get("gc") else []))
        prest = pl_[pa_ + 8:]
        self.stamp(13)
        def pcheck(nt):
            l = p.label("sp"); d = p.label("sd")
            p.wait(vm=pt[(10, nt)])
            p(f"s_mov_b32 s{SSPIN}, 0")
            p.put(l)
            r = [PA + (kap * 2 + nt) * 4 for kap in range(11)]
            p(f"v_max3_u32 {v(178)}, {v(r[0])}, {v(r[1])}, {v(r[2])}")
            for k in range(3, 11, 2): p(f"v_max3_u32 {v(178)}, {v(178)}, {v(r[k])}, {v(r[k+1])}")
            p(f"v_cmp_eq_u32 vcc, -1, {v(178)}\ns_cmp_eq_u64 vcc, 0\ns_cbranch_scc1 {d}")
            for kap in range(11):
                if kap % 4 == 0: p(f"s_add_u32 s{SF}, s{SPB_}, {nt*45056+kap*1024}")
                p(f"buffer_load_dwordx4 {v(PA+(kap*2+nt)*4,4)}, {v(P10 if kap == 10 else VL16)}, {srd(SWS)}, s{SF} offen offset:{(kap%4)*1024} sc1")
            p("s_waitcnt vmcnt(0)")
            p(f"s_add_u32 s{SSPIN}, s{SSPIN}, 1\ns_cmp_lt_u32 s{SSPIN}, {SPIN}\ns_cbranch_scc1 {l}")
            p.put(d)
        def gcheck(nt, k0, k1):
            def f():
                l = p.label("sp"); d = p.label("sd")
                p.wait(vm=pt[(k1 - 1, nt)])
                p(f"s_mov_b32 s{SSPIN}, 0")
                p.put(l)
                r = [PA + (kap * 2 + nt) * 4 for kap in range(k0, k1)]
                p(f"v_max3_u32 {v(178)}, {v(r[0])}, {v(r[1])}, {v(r[2])}")
                if len(r) == 4: p(f"v_max_u32 {v(178)}, {v(178)}, {v(r[3])}")
                p(f"v_cmp_eq_u32 vcc, -1, {v(178)}\ns_cmp_eq_u64 vcc, 0\ns_cbranch_scc1 {d}")
                for kap in range(k0, k1):
                    p(f"s_add_u32 s{SF}, s{SPB_}, {nt*45056+kap*1024}")
                    p(f"buffer_load_dwordx4 {v(PA+(kap*2+nt)*4,4)}, {v(P10 if kap == 10 else VL16)}, {srd(SWS)}, s{SF} offen sc1")
                p("s_waitcnt vmcnt(0)")
                p(f"s_add_u32 s{SSPIN}, s{SSPIN}, 1\ns_cmp_lt_u32 s{SSPIN}, {SPIN}\ns_cbranch_scc1 {l}")
                p.put(d)
            return f
        def redw(tiles):
            return [(lambda mt=mt, nt=nt, i=i: p.lds(f"ds_write_b128 {v(WA+i)}, {v(YA+16*(2*mt+nt)+4*i,4)} offset:{nt*8192+mt*128}"))
                    for (mt, nt) in tiles for i in range(4)]
        def bm(kap, mt, nt):
            def m():
                p.wait(vm=pt[(kap, nt)])
                d = v(YA + 16 * (2 * mt + nt), 16)
                p(f"{MF} {d}, {ar(WOA(kap)+4*mt,4)}, {v(PA+(kap*2+nt)*4,4)}, {d}")
            return m
        def yscale(mt, nt):
            return [(lambda i=i: p(f"v_pk_mul_f32 {v(YA+16*(2*mt+nt)+2*i,2)}, {v(YA+16*(2*mt+nt)+2*i,2)}, {v(self.GY+2*nt,2)} op_sel_hi:[1,0]")) for i in range(8)]
        DU = 104; XP = [4, 8, 12, 108]
        def xpart():
            p = self.p
            self.unpack(DU, DE); self.unpack(DU + 2, DE + 1)
            for gi in range(4):
                x = XP[gi]
                self.unpack(x, XE + 2 * gi); self.unpack(x + 2, XE + 2 * gi + 1)
                for k in range(4): p(f"v_mul_f32 {v(x+k)}, {v(x+k)}, {v(DU+k)}")
                for k in range(4): p(f"v_mul_f32 {v(x+k)}, {v(x+k)}, {v(GE+gi)}")
        def yscale1(mt, nt):
            return [(lambda i=i: p(f"v_mul_f32 {v(YA+16*(2*mt+nt)+i)}, {v(YA+16*(2*mt+nt)+i)}, {v(self.GY+2*nt)}")) for i in range(16)]
        if o.get("gc"):
            GR_ = [(0, 4), (4, 8), (8, 11)]
            def bgrp(nt):
                ops = []
                for (k0, k1) in GR_:
                    ops.append(gcheck(nt, k0, k1))
                    ops += [bm(kap, mt, nt) for kap in range(k0, k1) for mt in range(2)]
                return ops
            self.run(merge(yscale(0, 0) + yscale(1, 0) + yscale(1, 1) + yscale(0, 1), prest[:3]))
            self.run(merge(bgrp(0), prest[3:], 0, 14))
            b1 = bgrp(1)
            b1 = b1[:19] + [bm(kap, 0, 1) for kap in range(8, 11)] + [bm(kap, 1, 1) for kap in range(8, 11)]
            self.run(merge(b1, redw([(0, 0), (1, 0)]), 3, 19))
            self.run(redw([(0, 1), (1, 1)]))
        else:
            self.run(merge(yscale(0, 0) + yscale(1, 0), prest[:2]))
            pcheck(0)
            mm0 = [bm(kap, mt, 0) for kap in range(11) for mt in range(2)]
            self.run(merge(merge(mm0, prest[2:], 0, 12), yscale1(1, 1) + yscale1(0, 1) + [lambda: p.wait(vm=ep['t'])] + self.cap(xpart)))
            if sent: pcheck(1)
            mm1 = [bm(kap, 0, 1) for kap in range(11)]
            mm2 = [bm(kap, 1, 1) for kap in range(11)]
            self.run(merge(mm1, redw([(0, 0), (1, 0)]), 2))
            self.run(merge(mm2, redw([(0, 1)]), 4))
            self.run(redw([(1, 1)]))
        p.wait_lg_all(); p("s_barrier")
        self.stamp(14)
        tk = {}
        def R(gi, s): return 16 + 16 * gi + 4 * s
        for gi in range(4):
            p.wait(lg=p.lg - 12)
            for s_ in range(4):
                tk[gi] = p.lds(f"ds_read_b128 {v(R(gi,s_),4)}, {v(RA+2*(s_>>1)+(gi&1))} offset:{(s_&1)*40960+gi*1024}")
        p(f"s_lshl_b32 s{SXO}, s{SXO}, 1")
        for gi in range(4):
            y = R(gi, 0)
            p.wait(lg=tk[gi])
            for hh in (0, 2):
                p(f"v_pk_add_f32 {v(y+hh,2)}, {v(y+hh,2)}, {v(y+4+hh,2)}\nv_pk_add_f32 {v(y+8+hh,2)}, {v(y+8+hh,2)}, {v(y+12+hh,2)}")
            for hh in (0, 2): p(f"v_pk_add_f32 {v(y+hh,2)}, {v(y+hh,2)}, {v(XP[gi]+hh,2)}")
            for hh in (0, 2): p(f"v_pk_add_f32 {v(y+hh,2)}, {v(y+hh,2)}, {v(y+8+hh,2)}")
            p(f"s_add_u32 s{SA}, s{SXO}, {gi*8192}")
            p.vmem(f"buffer_store_dwordx4 {v(y,4)}, {v(OV)}, {srd(SOUT)}, s{SA} offen{' ' + o['outmod'] if 'outmod' in o else ''}")
        ne = p.label("ne")
        p(f"s_lshl_b32 s{SA}, s{STB}, 3\ns_add_u32 s{SA}, s{SA}, s{SCOL}\ns_lshl_b32 s{SA}, s{SA}, 2\ns_add_u32 s{SA}, s{SA}, s{SWV}")
        p(f"s_cmp_eq_u32 s{SA}, {255*4}\ns_cbranch_scc0 {ne}")
        p(f"s_mov_b32 s{SA}, {EPOCH}")
        self.flag(SA, 220)
        p.put(ne)
        if o.get("stamps"):
            self.stamp(15)
            p(f"s_lshl_b32 s{SA}, s2, 2\ns_add_u32 s{SA}, s{SA}, s{SWV}\ns_lshl_b32 s{SA}, s{SA}, 8\ns_add_u32 s{SA}, s{SA}, {DBG}")
            p(f"v_lshlrev_b32 v254, 2, {v(VL)}")
            p.vmem(f"buffer_store_dword v255, v254, {srd(SWS)}, s{SA} offen")
            if o.get("dbgmax"):
                ty = o["dbgmax"]
                nd = p.label("nd")
                if ty > 1: p(f"s_cmp_{'ge' if ty == 2 else 'lt'}_u32 s2, 128\ns_cbranch_scc1 {nd}")
                p(f"s_load_dwordx2 s[{SX}:{SX+1}], s[0:1], 128\ns_waitcnt lgkmcnt(0)\ns_mov_b32 s{SX+2}, 64")
                p(f"v_readlane_b32 s{SA}, v255, 17\nv_readlane_b32 s{SB_}, v255, 20\ns_not_b32 s{SA}, s{SA}\ns_nop 3\nv_writelane_b32 v255, s{SA}, 0\nv_writelane_b32 v255, s{SB_}, 6")
                p.vmem(f"buffer_atomic_umax v255, v254, {srd(SX)}, 0 offen")
                p.put(nd)
        if "spin_from" in o:
            self.stamp(15)
            sl = p.label("spin")
            p(f"v_readlane_b32 s{SA}, v254, 0")
            p.put(sl)
            p(f"s_memrealtime s[{SSTMP}:{SSTMP+1}]\ns_waitcnt lgkmcnt(0)\ns_sub_u32 s{SB_}, s{SSTMP}, s{SA}\ns_cmp_lt_u32 s{SB_}, 3000\ns_cbranch_scc1 {sl}")
        p.put(self.END)
        p("s_endpgm")

    def build(self):
        self.prologue()
        self.p.vm_done = -1; self.p.lg_done = -1
        self.phase_u()
        self.p.vm_done = -1; self.p.lg_done = -1
        self.p("s_nop 15")
        self.phase_z()
        self.phase_g()
        lines, added = hazard_pass([x for l in self.p.L for x in l.split(chr(10))])
        hdr = open("gated_mix__ssm_conv_s5__mixer_gmlp__prompt.s.ref").read().split("; Override")[0]
        s = hdr + """; One persistent launch, 256 workgroups (one per CU), generated by a python script (work/gen7.py).
;  A: wg<128 : z2=gelu(x w_in[:,688:]) tile, LayerNorm (row stats exchanged as tagged granules), gate, -> z2n fragments
;     wg>=128: U=x B^T tile + chunked complex scan (chunk states exchanged as tagged granules) -> H ; x w_in[:,:688] tile
;  B: G = w_sp z2n (128x88 tile, K halves exchanged between two workgroups), P = gelu(z1)*(G+b)*(1-g)
;  C: out = g*(H C^T + x D) + P w_out  (64x64 tile, K split over the waves)
;  Hand-offs: write-through stores + per-launch tag (derived from ws[0], renewed at the end of the launch).
; @launch grid=(256,1,1) block=(256,1,1) lds=163840
"""
        s += '.amdgcn_target "amdgcn-amd-amdhsa--gfx950"\n.text\n'
        s += f".globl {NAME}\n.p2align 8\n.type {NAME},@function\n{NAME}:\n"
        s += "\n".join((l if l.endswith(":") else "    " + l) for l in lines) + "\n"
        s += f""".section .rodata,"a"
.p2align 6
.amdhsa_kernel {NAME}
  .amdhsa_next_free_vgpr 512
  .amdhsa_next_free_sgpr 102
  .amdhsa_accum_offset 256
  .amdhsa_group_segment_fixed_size 0
  .amdhsa_kernarg_size 144
  .amdhsa_user_sgpr_count 2
  .amdhsa_user_sgpr_kernarg_segment_ptr 1
  .amdhsa_system_sgpr_workgroup_id_x 1
  .amdhsa_float_denorm_mode_32 3
.end_amdhsa_kernel
"""
        return s, added

if __name__ == "__main__":
    out = sys.argv[1]
    opt = dict(rot=1, ue=1, ee=1, p2=5, outmod="sc1", npro=2, npro_u=2, c1=16, c2=26, y3a=9, touch=2, zs0=19, zs1=20, zs2=8, zmode=2, pf=0, tlb=2, map=1)
    for a in sys.argv[2:]:
        k, _, val = a.partition("=")
        try: opt[k] = int(val) if val else 1
        except ValueError: opt[k] = val
    s, added = G(opt).build()
    open(out, "w").write(s)
    print("wrote", out, "nops added", added, "lines", s.count("\n"))
```
